```python
import torch

def _softmax(x, axis=-1):
    return torch.softmax(x, dim=axis)
def _gelu(x):
    return torch.nn.functional.gelu(x, approximate="tanh")
def _silu(x):
    return torch.nn.functional.silu(x)
def _sigmoid(x):
    return torch.sigmoid(x)
def _layernorm(x, axis=-1, eps=1e-5):
    m = x.mean(dim=axis, keepdim=True)
    v = x.var(dim=axis, keepdim=True, unbiased=False)
    return (x - m) / torch.sqrt(v + eps)
def _scatter_add(tgt, idx, src, axis=0):
    return tgt.clone().index_add_(axis, idx, src)
def _segment_sum(src, seg, n):
    out = torch.zeros((n,) + src.shape[1:], dtype=src.dtype)
    return out.index_add_(0, seg, src)
def _pad(x, pw):
    flat = tuple(v for pair in reversed(pw) for v in pair)
    return torch.nn.functional.pad(x, flat)

kernel_name = 'parallel_sum__ssm_conv_h3__glu_gated_bilinear__prompt'

def setup_inputs():

    _w = (lambda a: (lambda t: t.to(torch.bfloat16) if t.is_floating_point() else t)(torch.as_tensor(a)))
    def _A_setup():
        B, S, D = 1, 2048, 512
        ks = 4
        return {
            "q": _w((lambda *s: torch.randn(*s, dtype=torch.bfloat16) * 0.05)(B, S, D)),
            "k": _w((lambda *s: torch.randn(*s, dtype=torch.bfloat16) * 0.2)(B, S, D)),
            "v": _w((lambda *s: torch.randn(*s, dtype=torch.bfloat16) * 0.2)(B, S, D)),
            "shift_k": _w((lambda *s: torch.randn(*s, dtype=torch.bfloat16) * 0.2)(D, ks) * 0.5),
            "ssm_k": _w((lambda *s: torch.randn(*s, dtype=torch.bfloat16) * 0.4)(D, S) * (1.0 / S ** 0.5)),
            "ssm_D": _w((lambda *s: torch.randn(*s, dtype=torch.bfloat16) * 0.2)(D)),
        }
    _A_in = _A_setup()

    def _B_setup():
        B, S, D, F = 1, 2048, 512, 1376
        return {
            "x": _w((lambda *s: torch.randn(*s, dtype=torch.bfloat16) * 0.05)(B, S, D)),
            "w_gate": _w((lambda *s: torch.randn(*s, dtype=torch.bfloat16) * 0.2)(D, F) * (D ** -0.5)),
            "w_up": _w((lambda *s: torch.randn(*s, dtype=torch.bfloat16) * 0.2)(D, F) * (D ** -0.5)),
            "w_down": _w((lambda *s: torch.randn(*s, dtype=torch.bfloat16) * 0.2)(F, D) * (F ** -0.5)),
        }
    _B_in = _B_setup()

    return {
        "A_q": _A_in["q"],
        "A_k": _A_in["k"],
        "A_v": _A_in["v"],
        "A_shift_k": _A_in["shift_k"],
        "A_ssm_k": _A_in["ssm_k"],
        "A_ssm_D": _A_in["ssm_D"],
        "B_x": _B_in["x"],
        "B_w_gate": _B_in["w_gate"],
        "B_w_up": _B_in["w_up"],
        "B_w_down": _B_in["w_down"],
    }

def reference(A_q, A_k, A_v, A_shift_k, A_ssm_k, A_ssm_D, B_x, B_w_gate, B_w_up, B_w_down):
    def _A_ref(q, k, v, shift_k, ssm_k, ssm_D):
        B, S, D = q.shape
        ks = shift_k.shape[-1]
        k_pad = _pad(k, ((0, 0), (ks - 1, 0), (0, 0)))
        k_shift = torch.zeros_like(k)
        for t in range(ks):
            k_shift = k_shift + k_pad[:, t:t + S, :] * shift_k[:, ks - 1 - t][None, None, :]
        kv = k_shift * v
        L = 2 * S
        kv_pad = _pad(kv, ((0, 0), (0, S), (0, 0)))
        kf_pad = _pad(ssm_k, ((0, 0), (0, S)))
        kv_f = (lambda x, axes=(-2,-1): torch.fft.rfft2(x.float(), dim=axes))(kv_pad[:, None, :, :], axes=(1, 2))
        kf_f = (lambda x, axes=(-2,-1): torch.fft.rfft2(x.float(), dim=axes))(kf_pad[:, None, :], axes=(1, 2))
        kf_f = (lambda x, *d: x.permute(*d))(kf_f, 1, 2, 0)
        y_f = kv_f * kf_f[None, :, :, :]
        y = (lambda x, s, axes=(-2,-1): torch.fft.irfft2(x, s=s, dim=axes).to(torch.bfloat16))(y_f, (1, L), axes=(1, 2))[:, 0, :S, :]
        y = y + kv * ssm_D[None, None, :]
        return q * y

    def _B_ref(x, w_gate, w_up, w_down):
        g = torch.einsum("bsd,df->bsf", x, w_gate)
        u = torch.einsum("bsd,df->bsf", x, w_up)
        h = g * u
        return torch.einsum("bsf,fd->bsd", h, w_down)

    x = A_q
    xn = _layernorm(x, axis=-1)
    return x + _A_ref(xn, A_k, A_v, A_shift_k, A_ssm_k, A_ssm_D) + _B_ref(xn, B_w_gate, B_w_up, B_w_down)
```

```python
import sys

NAME = "parallel_sum__ssm_conv_h3__glu_gated_bilinear__prompt"

WS_H = 0
WS_H_BYTES = 2048 * 1376 * 2
WS_Y2 = 0x600000
WS_ST = 0x800000

L = []


def e(s=""):
    L.append("    " + s if s and not s.endswith(":") else s)


def c(s):
    L.append("    ; " + s)


def vr(a, n=1):
    return f"v{a}" if n == 1 else f"v[{a}:{a + n - 1}]"


def sr(a, n=1):
    return f"s{a}" if n == 1 else f"s[{a}:{a + n - 1}]"


def make_srd(d, ptr, nbytes):
    e(f"s_mov_b32 s{d}, s{ptr}")
    e(f"s_and_b32 s{d + 1}, s{ptr + 1}, 0xffff")
    e(f"s_mov_b32 s{d + 2}, {nbytes}")
    e(f"s_mov_b32 s{d + 3}, 0x00020000")


P_Q, P_K, P_V, P_SH, P_SK, P_SD, P_BX, P_WG = 16, 18, 20, 22, 24, 26, 28, 30
P_WU, P_WD, P_OUT, P_DBG, P_WS = 32, 34, 36, 38, 40


def load_ptrs():
    e("s_load_dwordx16 s[16:31], s[0:1], 0")
    e("s_load_dwordx8 s[32:39], s[0:1], 64")
    e("s_load_dwordx2 s[40:41], s[0:1], 96")


K1_NCONV = 64
K1_NGEMM = 176
K1_BUF = [131072, 0, 32768, 65536, 98304]


def k1_gemm():
    S_X, S_WG, S_WU, S_WS = 44, 48, 52, 56
    sMT, sNT, sW, sT0, sT1, sW0, sMW, sROW = 60, 61, 62, 63, 64, 65, 66, 67
    sONE, sEXS = 68, 70
    XD = 16
    AF = 16
    ACC = 144
    BF = 208
    vDMA, vB0, vB1, vBc0, vBc1, vHoff = 240, 241, 242, 243, 244, 245
    e("k1_gemm:")
    e("s_sub_u32 s3, s2, %d" % K1_NCONV)
    e(f"s_and_b32 s{sMT}, s3, 15")
    e(f"s_lshr_b32 s{sNT}, s3, 4")
    e("v_lshrrev_b32 v2, 6, v0")
    e("v_and_b32 v1, 63, v0")
    e(f"v_readfirstlane_b32 s{sW}, v2")
    e("s_waitcnt lgkmcnt(0)")
    make_srd(S_X, P_Q, 2048 * 1024)
    make_srd(S_WG, P_WG, 512 * 2752)
    make_srd(S_WU, P_WU, 512 * 2752)
    make_srd(S_WS, P_WS, 0x1000000)
    c("LN rows of this wave: mt*128 + w*16 + l/4")
    e(f"s_lshl_b32 s{sROW}, s{sMT}, 7")
    e(f"s_lshl_b32 s{sT0}, s{sW}, 4")
    e(f"s_add_u32 s{sROW}, s{sROW}, s{sT0}")
    e("v_lshrrev_b32 v2, 2, v1")
    e(f"v_add_u32 v3, s{sROW}, v2")
    e("v_lshlrev_b32 v4, 10, v3")
    e("v_and_b32 v5, 3, v1")
    e("v_lshl_add_u32 v4, v5, 4, v4")
    for i in range(16):
        e(f"buffer_load_dwordx4 {vr(XD + 4 * i, 4)}, v4, {sr(S_X, 4)}, 0 offen offset:{64 * i}")
    c("DMA lane offsets")
    e("v_lshrrev_b32 v6, 4, v1")
    e("v_and_b32 v7, 15, v1")
    e("v_lshlrev_b32 v8, 2, v6")
    e("v_xor_b32 v7, v7, v8")
    e("v_lshlrev_b32 v7, 4, v7")
    e("v_mul_u32_u24 v8, 2752, v6")
    e(f"v_add_u32 v{vDMA}, v7, v8")
    e(f"s_mul_i32 s{sW0}, s{sW}, {8 * 2752}")
    e(f"s_lshl_b32 s{sT0}, s{sNT}, 8")
    e(f"s_add_u32 s{sW0}, s{sW0}, s{sT0}")
    e(f"s_lshl_b32 s{sMW}, s{sW}, 11")

    def dma_slab(s):
        for part in range(2):
            for j in range(2):
                e(f"s_add_u32 m0, s{sMW}, {K1_BUF[s % 5] + part * 16384 + j * 1024}")
                e(f"s_add_u32 s{sT0}, s{sW0}, {(64 * s + 4 * j) * 2752}")
                e(f"buffer_load_dwordx4 v{vDMA}, {sr(S_WU if part else S_WG, 4)}, s{sT0} offen lds")

    dma_slab(0)
    c("LDS write addresses for xn: r*1024 + (((k<<2|q) ^ f(r&15))<<4), k=0..3 ; r = w*16 + l/4")
    e(f"s_lshl_b32 s{sT0}, s{sW}, 4")
    e(f"v_add_u32 v6, s{sT0}, v2")
    e("v_and_b32 v7, 3, v2")
    e("v_lshlrev_b32 v7, 2, v7")
    e("v_lshrrev_b32 v8, 2, v2")
    e("v_or_b32 v7, v7, v8")
    e("v_xor_b32 v7, v7, v5")
    e("v_lshlrev_b32 v7, 4, v7")
    e("v_lshl_add_u32 v8, v6, 10, v7")
    e("v_xor_b32 v9, 64, v8")
    e("v_xor_b32 v10, 128, v8")
    e("v_xor_b32 v11, 192, v8")
    e(f"s_mov_b32 s{sONE}, 0x3f803f80")
    T = 144
    for r in range(4):
        e(f"v_mov_b32 v{T + r}, 0")
    e("s_waitcnt vmcnt(4)")
    for i in range(64):
        e(f"v_dot2c_f32_bf16 v{T + (i & 1)}, s{sONE}, v{XD + i}")
        e(f"v_dot2c_f32_bf16 v{T + 2 + (i & 1)}, v{XD + i}, v{XD + i}")
    e("s_nop 3")
    e(f"v_add_f32 v{T}, v{T}, v{T + 1}")
    e(f"v_add_f32 v{T + 2}, v{T + 2}, v{T + 3}")
    e("s_nop 1")
    e(f"v_add_f32_dpp v{T + 1}, v{T}, v{T} quad_perm:[1,0,3,2] row_mask:0xf bank_mask:0xf")
    e(f"v_add_f32_dpp v{T + 3}, v{T + 2}, v{T + 2} quad_perm:[1,0,3,2] row_mask:0xf bank_mask:0xf")
    e("s_nop 1")
    e(f"v_add_f32_dpp v{T}, v{T + 1}, v{T + 1} quad_perm:[2,3,0,1] row_mask:0xf bank_mask:0xf")
    e(f"v_add_f32_dpp v{T + 2}, v{T + 3}, v{T + 3} quad_perm:[2,3,0,1] row_mask:0xf bank_mask:0xf")
    e(f"v_mul_f32 v{T}, 0x3b000000, v{T}")
    e(f"v_mul_f32 v{T + 2}, 0x3b000000, v{T + 2}")
    e(f"v_fma_f32 v{T + 2}, -v{T}, v{T}, v{T + 2}")
    e(f"v_max_f32 v{T + 2}, 0, v{T + 2}")
    e(f"v_cvt_pk_bf16_f32 v{T + 1}, v{T}, v{T + 2}")
    e(f"v_lshlrev_b32 v{T + 4}, 16, v{T + 1}")
    e(f"v_and_b32 v{T + 2}, 0xffff0000, v{T + 1}")
    e(f"v_add_f32 v{T + 2}, 0x3727c5ac, v{T + 2}")
    e(f"v_cvt_pk_bf16_f32 v{T + 2}, v{T + 2}, v{T + 2}")
    e(f"v_and_b32 v{T + 2}, 0xffff0000, v{T + 2}")
    e(f"v_sqrt_f32 v{T + 2}, v{T + 2}")
    e("s_nop 0")
    e(f"v_cvt_pk_bf16_f32 v{T + 2}, v{T + 2}, v{T + 2}")
    e(f"v_and_b32 v{T + 2}, 0xffff0000, v{T + 2}")
    e(f"v_rcp_f32 v{T + 5}, v{T + 2}")
    e("s_nop 0")
    RS, NM = T + 6, T + 8
    e(f"v_mov_b32 v{RS}, v{T + 5}")
    e(f"v_mov_b32 v{RS + 1}, v{T + 5}")
    e(f"v_mul_f32 v{NM}, v{T + 4}, v{T + 5}")
    e(f"v_sub_f32 v{NM}, 0, v{NM}")
    e(f"v_mov_b32 v{NM + 1}, v{NM}")
    c("row stats store (nt == 0 only, lanes with q == 0)")
    e(f"s_cmp_lg_u32 s{sNT}, 0")
    e("s_cbranch_scc1 k1_nostat")
    e("v_cmp_eq_u32 vcc, 0, v5")
    e(f"s_and_saveexec_b64 {sr(sEXS, 2)}, vcc")
    e("v_lshlrev_b32 v12, 3, v3")
    e(f"v_add_u32 v12, {WS_ST}, v12")
    e(f"buffer_store_dwordx2 {vr(T + 4, 2)}, v12, {sr(S_WS, 4)}, 0 offen")
    e(f"s_mov_b64 exec, {sr(sEXS, 2)}")
    e("k1_nostat:")
    c("normalize, write to LDS")
    TT = 160
    for i in range(16):
        for d in range(4):
            x = XD + 4 * i + d
            t = TT + 2 * d
            e(f"v_lshlrev_b32 v{t}, 16, v{x}")
            e(f"v_and_b32 v{t + 1}, 0xffff0000, v{x}")
        for d in range(4):
            t = TT + 2 * d
            e(f"v_pk_fma_f32 {vr(t, 2)}, {vr(t, 2)}, {vr(RS, 2)}, {vr(NM, 2)}")
        o = TT + 8 + 4 * (i & 1)
        for d in range(4):
            t = TT + 2 * d
            e(f"v_cvt_pk_bf16_f32 v{o + d}, v{t}, v{t + 1}")
        e(f"ds_write_b128 v{8 + (i & 3)}, {vr(o, 4)} offset:{(i >> 2) * 256}")
    e("s_waitcnt lgkmcnt(0)")
    e("s_barrier")
    c("A frag reads: rows (w%4)*32 + l%32, chunk 2i+g")
    e(f"s_and_b32 s{sT0}, s{sW}, 3")
    e(f"s_lshl_b32 s{sT0}, s{sT0}, 5")
    e("v_and_b32 v2, 31, v1")
    e(f"v_add_u32 v6, s{sT0}, v2")
    e("v_and_b32 v7, 3, v2")
    e("v_lshlrev_b32 v7, 2, v7")
    e("v_lshrrev_b32 v8, 2, v2")
    e("v_and_b32 v8, 3, v8")
    e("v_or_b32 v7, v7, v8")
    e("v_lshrrev_b32 v8, 5, v1")
    e("v_xor_b32 v7, v7, v8")
    e("v_lshlrev_b32 v7, 4, v7")
    e("v_lshl_add_u32 v208, v6, 10, v7")
    for k in range(1, 8):
        e(f"v_xor_b32 v{208 + k}, {k << 5}, v208")
    for i in range(32):
        e(f"ds_read_b128 {vr(AF + 4 * i, 4)}, v{208 + (i & 7)} offset:{(i >> 3) * 256}")
        if i == 11:
            e("s_waitcnt lgkmcnt(4)")
        if i == 23:
            e("s_waitcnt lgkmcnt(4)")
    c("h store offset: row*2752 + (nt*128 + nh*64 + 8g)*2")
    e(f"s_lshl_b32 s{sT1}, s{sMT}, 7")
    e(f"v_add_u32 v6, s{sT1}, v6")
    e("v_mov_b32 v7, 2752")
    e("v_mul_lo_u32 v6, v6, v7")
    e(f"s_lshr_b32 s{sT0}, s{sW}, 2")
    e(f"s_lshl_b32 s{sT0}, s{sT0}, 7")
    e(f"s_lshl_b32 s{sT1}, s{sNT}, 8")
    e(f"s_add_u32 s{sT0}, s{sT0}, s{sT1}")
    e(f"v_add_u32 v6, s{sT0}, v6")
    e("v_lshrrev_b32 v8, 5, v1")
    e(f"v_lshl_add_u32 v{vHoff}, v8, 4, v6")
    c("B tr-read lane addresses for tiles T0=2nh, T1=2nh+1")
    e("v_and_b32 v2, 15, v1")
    e("v_lshrrev_b32 v6, 2, v2")
    e("v_lshrrev_b32 v7, 5, v1")
    e("v_lshl_add_u32 v7, v7, 3, v6")
    e("v_lshlrev_b32 v7, 8, v7")
    e("v_lshrrev_b32 v8, 4, v1")
    e("v_and_b32 v8, 1, v8")
    e("v_lshlrev_b32 v8, 5, v8")
    e("v_add_u32 v7, v7, v8")
    e("v_and_b32 v8, 3, v2")
    e("v_lshlrev_b32 v8, 3, v8")
    e("v_add_u32 v7, v7, v8")
    e(f"s_lshr_b32 s{sT0}, s{sW}, 2")
    e(f"s_lshl_b32 s{sT0}, s{sT0}, 1")
    e(f"v_xor_b32 v8, s{sT0}, v6")
    e(f"v_lshl_add_u32 v{vB0}, v8, 6, v7")
    e("v_xor_b32 v8, 1, v8")
    e(f"v_lshl_add_u32 v{vB1}, v8, 6, v7")
    e("s_waitcnt lgkmcnt(0)")
    e("s_barrier")
    for s in range(1, 5):
        dma_slab(s)

    def breads(kk, st):
        for ti in range(4):
            part, T = ti >> 1, ti & 1
            for u in range(2):
                off = part * 16384 + (16 * kk + 4 * u) * 256
                e(f"ds_read_b64_tr_b16 {vr(BF + 16 * st + 4 * ti + 2 * u, 2)}, v{vBc1 if T else vBc0} offset:{off}")

    for s in range(8):
        last_issued = min(max(4, s + 3), 7)
        e(f"s_waitcnt vmcnt({4 * (last_issued - s)})")
        e("s_barrier")
        e(f"v_add_u32 v{vBc0}, {K1_BUF[s % 5]}, v{vB0}")
        e(f"v_add_u32 v{vBc1}, {K1_BUF[s % 5]}, v{vB1}")
        breads(0, 0)
        if s >= 1 and s + 4 <= 7:
            dma_slab(s + 4)
        for kk in range(4):
            if kk < 3:
                breads(kk + 1, (kk + 1) & 1)
                e("s_waitcnt lgkmcnt(8)")
            else:
                e("s_waitcnt lgkmcnt(0)")
            i = 4 * s + kk
            for ti in range(4):
                cc = "0" if i == 0 else vr(ACC + 16 * ti, 16)
                e(f"v_mfma_f32_32x32x16_bf16 {vr(ACC + 16 * ti, 16)}, {vr(BF + 16 * (kk & 1) + 4 * ti, 4)}, "
                  f"{vr(AF + 4 * i, 4)}, {cc}")
    e("s_nop 15")
    e("s_nop 3")
    c("epilogue: h = bf16(bf16(g)*bf16(u))")
    for T in range(2):
        if T == 1:
            e(f"s_cmp_eq_u32 s{sNT}, 10")
            e(f"s_cselect_b32 s{sT0}, 1, 0")
            e(f"s_lshr_b32 s{sT1}, s{sW}, 2")
            e(f"s_and_b32 s{sT0}, s{sT0}, s{sT1}")
            e(f"s_cmp_lg_u32 s{sT0}, 0")
            e("s_cbranch_scc1 k1_done")
        G, U = ACC + 16 * T, ACC + 32 + 16 * T
        for qq in range(2):
            o = 16 + 4 * (2 * T + qq)
            for h2 in range(4):
                r = 8 * qq + 2 * h2
                e(f"v_cvt_pk_bf16_f32 v8, v{G + r}, v{G + r + 1}")
                e(f"v_cvt_pk_bf16_f32 v9, v{U + r}, v{U + r + 1}")
                e("v_lshlrev_b32 v10, 16, v8")
                e("v_and_b32 v11, 0xffff0000, v8")
                e("v_lshlrev_b32 v12, 16, v9")
                e("v_and_b32 v13, 0xffff0000, v9")
                e("v_mul_f32 v10, v10, v12")
                e("v_mul_f32 v11, v11, v13")
                e(f"v_cvt_pk_bf16_f32 v{o + h2}, v10, v11")
            e("s_nop 1")
            e(f"v_permlane32_swap_b32 v{o}, v{o + 2}")
            e(f"v_permlane32_swap_b32 v{o + 1}, v{o + 3}")
            e(f"buffer_store_dwordx4 {vr(o, 4)}, v{vHoff}, {sr(S_WS, 4)}, 0 offen offset:{64 * T + 32 * qq}")
    e("s_branch k1_done")


CV_R = 0
CV_RSTR = 4608
CV_KT = 36864
CV_KSTR = 8320
CV_KCPY = 4160


def k1_conv():
    S_K, S_V, S_SK, S_WS = 44, 48, 52, 56
    sW, sT0, sT1, sD = 62, 63, 64, 65
    sWT = 4
    e("k1_conv:")
    e("v_lshrrev_b32 v2, 6, v0")
    e("v_and_b32 v1, 63, v0")
    e(f"v_readfirstlane_b32 s{sW}, v2")
    e("s_waitcnt lgkmcnt(0)")
    make_srd(S_K, P_K, 2048 * 1024)
    make_srd(S_V, P_V, 2048 * 1024)
    make_srd(S_SK, P_SK, 512 * 4096)
    make_srd(S_WS, P_WS, 0x1000000)
    c("shift weights: 64 bytes at shift_k + cg*64 -> s[4:15],s[12..]: use two loads")
    e(f"s_lshl_b32 s{sT0}, s2, 6")
    e(f"s_add_u32 s{P_SH}, s{P_SH}, s{sT0}")
    e(f"s_addc_u32 s{P_SH + 1}, s{P_SH + 1}, 0")
    e(f"s_load_dwordx16 s[72:87], {sr(P_SH, 2)}, 0")
    c("ssm_D for this wave's channel")
    e(f"s_lshl_b32 s{sT0}, s2, 4")
    e(f"s_lshl_b32 s{sT1}, s{sW}, 1")
    e(f"s_add_u32 s{sT0}, s{sT0}, s{sT1}")
    e(f"s_and_b32 s{sT1}, s{sT0}, 0xfffffffc")
    e(f"s_add_u32 s{P_SD}, s{P_SD}, s{sT1}")
    e(f"s_addc_u32 s{P_SD + 1}, s{P_SD + 1}, 0")
    e(f"s_load_dword s{sD}, {sr(P_SD, 2)}, 0")
    c("k/v loads: rows t0-3..t0+3, t0 = 4*tid")
    KD, VD = 16, 44
    e("v_lshlrev_b32 v3, 12, v0")
    e("v_lshl_add_u32 v3, s2, 4, v3")
    e("v_subrev_u32 v4, 3072, v3")
    for r in range(3):
        e(f"buffer_load_dwordx4 {vr(KD + 4 * r, 4)}, v4, {sr(S_K, 4)}, 0 offen offset:{1024 * r}")
    for r in range(4):
        e(f"buffer_load_dwordx4 {vr(KD + 12 + 4 * r, 4)}, v3, {sr(S_K, 4)}, 0 offen offset:{1024 * r}")
    for r in range(4):
        e(f"buffer_load_dwordx4 {vr(VD + 4 * r, 4)}, v3, {sr(S_V, 4)}, 0 offen offset:{1024 * r}")
    c("ssm_k row of this wave's channel")
    SKD = 60
    e(f"s_lshl_b32 s{sT0}, s2, 3")
    e(f"s_add_u32 s{sT0}, s{sT0}, s{sW}")
    e(f"s_lshl_b32 s{sT0}, s{sT0}, 12")
    e("v_lshlrev_b32 v5, 4, v1")
    e(f"v_add_u32 v5, s{sT0}, v5")
    for j in range(4):
        e(f"buffer_load_dwordx4 {vr(SKD + 4 * j, 4)}, v5, {sr(S_SK, 4)}, 0 offen offset:{1024 * j}")
    for j in range(4):
        e(f"buffer_load_dword v{SKD + 16 + j}, v5, {sr(S_SK, 4)}, 0 offen offset:{1024 * j + 16}")
    c("zero pads: R pad (512B at +4096), KT pads (32B at copy starts)")
    e(f"s_mul_i32 s{sT0}, s{sW}, {CV_RSTR}")
    e("v_lshlrev_b32 v6, 3, v1")
    e(f"v_add_u32 v6, s{sT0}, v6")
    e("v_mov_b32 v8, 0")
    e("v_mov_b32 v9, 0")
    e(f"ds_write_b64 v6, v[8:9] offset:{CV_R + 4096}")
    e(f"s_mul_i32 s{sT1}, s{sW}, {CV_KSTR}")
    e(f"s_add_u32 s{sT1}, s{sT1}, {CV_KT}")
    e("v_lshlrev_b32 v7, 2, v1")
    e(f"v_add_u32 v7, s{sT1}, v7")
    e("v_cmp_gt_u32 vcc, 8, v1")
    e("s_and_saveexec_b64 s[70:71], vcc")
    e("ds_write_b32 v7, v8")
    e(f"ds_write_b32 v7, v8 offset:{CV_KCPY}")
    e("s_mov_b64 exec, s[70:71]")
    c("convert weights to fp32 sgprs: layout [j][c]")
    e("s_waitcnt lgkmcnt(0)")
    def raw(d):
        return 72 + d
    for cc in range(8):
        for jp in range(2):
            rws = raw(2 * cc + jp)
            e(f"s_lshl_b32 s{sWT + (2 * jp) * 8 + cc}, s{rws}, 16")
            e(f"s_and_b32 s{sWT + (2 * jp + 1) * 8 + cc}, s{rws}, 0xffff0000")
    c("D: select half by channel parity")
    e(f"s_lshl_b32 s{sT0}, s{sD}, 16")
    e(f"s_and_b32 s{sD}, s{sD}, 0xffff0000")
    e(f"s_bitcmp1_b32 s{sW}, 0")
    e(f"s_cselect_b32 s{sD}, s{sD}, s{sT0}")
    c("KT copies")
    e("s_waitcnt vmcnt(0)")
    e("v_lshlrev_b32 v7, 4, v1")
    e(f"v_add_u32 v7, s{sT1}, v7")
    for j in range(4):
        d = SKD + 4 * j
        e(f"ds_write_b128 v7, {vr(d, 4)} offset:{32 + 1024 * j}")
        e(f"v_alignbit_b32 v8, v{d + 1}, v{d}, 16")
        e(f"v_alignbit_b32 v9, v{d + 2}, v{d + 1}, 16")
        e(f"v_alignbit_b32 v10, v{d + 3}, v{d + 2}, 16")
        e(f"v_alignbit_b32 v11, v{SKD + 16 + j}, v{d + 3}, 16")
        e(f"ds_write_b128 v7, v[8:11] offset:{CV_KCPY + 32 + 1024 * j}")
        e("s_nop 1")
    e(f"v_lshlrev_b32 v8, 16, v{SKD}")
    e("v_cmp_eq_u32 vcc, 0, v1")
    e("s_and_saveexec_b64 s[70:71], vcc")
    e(f"ds_write_b32 v7, v8 offset:{CV_KCPY + 28}")
    e("s_mov_b64 exec, s[70:71]")
    c("unpack k (7 rows x 8 ch) -> v[80:135]; v (4 rows x 8) -> v[136:167]")
    KF, VF = 80, 136
    for i in range(28):
        e(f"v_lshlrev_b32 v{KF + 2 * i}, 16, v{KD + i}")
        e(f"v_and_b32 v{KF + 2 * i + 1}, 0xffff0000, v{KD + i}")
    for i in range(16):
        e(f"v_lshlrev_b32 v{VF + 2 * i}, 16, v{VD + i}")
        e(f"v_and_b32 v{VF + 2 * i + 1}, 0xffff0000, v{VD + i}")
    KV = 168
    for r in range(4):
        for cp in range(4):
            d = KV + 8 * r + 2 * cp
            e(f"v_pk_mul_f32 {vr(d, 2)}, {vr(KF + 8 * r + 2 * cp, 2)}, {sr(sWT + 3 * 8 + 2 * cp, 2)}")
            for j in range(1, 4):
                e(f"v_pk_fma_f32 {vr(d, 2)}, {vr(KF + 8 * (r + j) + 2 * cp, 2)}, "
                  f"{sr(sWT + (3 - j) * 8 + 2 * cp, 2)}, {vr(d, 2)}")
            e(f"v_pk_mul_f32 {vr(d, 2)}, {vr(d, 2)}, {vr(VF + 8 * r + 2 * cp, 2)}")
    c("write kv reversed: addr = c*4608 + 2*(2044 - 4 tid)")
    e("v_lshlrev_b32 v6, 3, v0")
    e("v_sub_u32 v6, 4088, v6")
    for cc in range(8):
        o = 8 + 2 * (cc & 1)
        e(f"v_cvt_pk_bf16_f32 v{o}, v{KV + 24 + cc}, v{KV + 16 + cc}")
        e(f"v_cvt_pk_bf16_f32 v{o + 1}, v{KV + 8 + cc}, v{KV + cc}")
        e(f"ds_write_b64 v6, {vr(o, 2)} offset:{CV_R + cc * CV_RSTR}")
    e("s_waitcnt lgkmcnt(0)")
    e("s_barrier")
    c("MFMA phase: wave w -> channel w")
    ACC = 16
    AR = [48, 112]
    BR = [80, 144]
    vKT, vR, vA = 200, 201, 202
    e("v_and_b32 v2, 15, v1")
    e("v_lshrrev_b32 v3, 4, v1")
    e("v_lshlrev_b32 v4, 1, v2")
    e("v_lshlrev_b32 v5, 4, v3")
    e("v_sub_u32 v4, v4, v5")
    e(f"v_add_u32 v4, {32 - 14}, v4")
    e("v_and_b32 v5, 1, v2")
    e("v_cmp_eq_u32 vcc, 0, v5")
    e("v_mov_b32 v5, 0")
    e(f"v_mov_b32 v6, {CV_KCPY - 2}")
    e("s_nop 1")
    e("v_cndmask_b32 v5, v5, v6, vcc")
    e("v_add_u32 v4, v4, v5")
    e(f"v_add_u32 v{vKT}, s{sT1}, v4")
    e(f"s_mul_i32 s{sT0}, s{sW}, {CV_RSTR}")
    e("v_lshlrev_b32 v4, 5, v2")
    e("v_lshl_add_u32 v4, v3, 4, v4")
    e(f"v_sub_u32 v4, {CV_R + 4080 - 3584}, v4")
    e(f"v_add_u32 v{vR}, s{sT0}, v4")

    def creads(ci, st):
        d0 = 2 * ci + 1
        for pp in range(4):
            e(f"v_add_u32 v{vA + pp}, {32 * d0 + 1024 * pp}, v{vKT}")
        order = [("B", 0)] + [("A", p) for p in range(8)] + [("B", m) for m in range(1, 8)]
        for kind, x in order:
            if kind == "A":
                p = x
                o = 128 * (p & 1)
                e(f"ds_read2_b32 {vr(AR[st] + 4 * p, 2)}, v{vA + (p >> 1)} offset0:{o} offset1:{o + 1}")
                e(f"ds_read2_b32 {vr(AR[st] + 4 * p + 2, 2)}, v{vA + (p >> 1)} offset0:{o + 2} offset1:{o + 3}")
            else:
                m = x
                e(f"ds_read_b128 {vr(BR[st] + 4 * m, 4)}, v{vR} offset:{32 * d0 + 512 * (7 - m)}")

    creads(0, 0)
    for ci in range(8):
        st = ci & 1
        e("s_waitcnt lgkmcnt(0)")
        if ci < 7:
            creads(ci + 1, st ^ 1)
        for m in range(8):
            for p in range(8 - m):
                cc = "0" if (ci == 0 and m == 0) else vr(ACC + 4 * (m + p), 4)
                e(f"v_mfma_f32_16x16x32_bf16 {vr(ACC + 4 * (m + p), 4)}, {vr(AR[st] + 4 * p, 4)}, "
                  f"{vr(BR[st] + 4 * m, 4)}, {cc}")
    c("epilogue: kv reads, y2 = bf16(bf16(y) + bf16(kv*D)), store y2T")
    e("v_lshlrev_b32 v4, 5, v2")
    e("v_lshl_add_u32 v4, v3, 3, v4")
    e(f"v_sub_u32 v5, {CV_R + 4088 - 3584}, v4")
    e(f"v_add_u32 v5, s{sT0}, v5")
    KVR = 48
    for n in range(8):
        e(f"ds_read_b64 {vr(KVR + 2 * n, 2)}, v5 offset:{512 * (7 - n)}")
    e(f"s_lshl_b32 s{sT1}, s2, 3")
    e(f"s_add_u32 s{sT1}, s{sT1}, s{sW}")
    e(f"s_lshl_b32 s{sT1}, s{sT1}, 12")
    e(f"s_add_u32 s{sT1}, s{sT1}, {WS_Y2}")
    e(f"v_add_u32 v6, s{sT1}, v4")
    e("s_nop 7")
    e("s_waitcnt lgkmcnt(0)")
    for n in range(8):
        a = ACC + 4 * n
        k0, k1 = KVR + 2 * n, KVR + 2 * n + 1
        o = 80 + 2 * n
        e(f"v_cvt_pk_bf16_f32 v8, v{a}, v{a + 1}")
        e(f"v_cvt_pk_bf16_f32 v9, v{a + 2}, v{a + 3}")
        e(f"v_and_b32 v10, 0xffff0000, v{k1}")
        e(f"v_lshlrev_b32 v11, 16, v{k1}")
        e(f"v_and_b32 v12, 0xffff0000, v{k0}")
        e(f"v_lshlrev_b32 v13, 16, v{k0}")
        for t in range(4):
            e(f"v_mul_f32 v{10 + t}, s{sD}, v{10 + t}")
        e("v_cvt_pk_bf16_f32 v10, v10, v11")
        e("v_cvt_pk_bf16_f32 v12, v12, v13")
        e("v_lshlrev_b32 v14, 16, v8")
        e("v_and_b32 v15, 0xffff0000, v8")
        e("v_lshlrev_b32 v11, 16, v10")
        e("v_and_b32 v10, 0xffff0000, v10")
        e("v_add_f32 v14, v14, v11")
        e("v_add_f32 v15, v15, v10")
        e(f"v_cvt_pk_bf16_f32 v{o}, v14, v15")
        e("v_lshlrev_b32 v14, 16, v9")
        e("v_and_b32 v15, 0xffff0000, v9")
        e("v_lshlrev_b32 v13, 16, v12")
        e("v_and_b32 v12, 0xffff0000, v12")
        e("v_add_f32 v14, v14, v13")
        e("v_add_f32 v15, v15, v12")
        e(f"v_cvt_pk_bf16_f32 v{o + 1}, v14, v15")
        e(f"buffer_store_dwordx2 {vr(o, 2)}, v6, {sr(S_WS, 4)}, 0 offen offset:{512 * n}")
    e("s_branch k1_done")


def kernel1():
    e(".globl k1_kernel")
    e(".p2align 8")
    e(".type k1_kernel,@function")
    e("k1_kernel:")
    e(f"s_cmp_ge_u32 s2, {K1_NCONV + K1_NGEMM}")
    e("s_cbranch_scc1 k1_done")
    load_ptrs()
    e(f"s_cmp_lt_u32 s2, {K1_NCONV}")
    e("s_cbranch_scc1 k1_conv")
    k1_gemm()
    k1_conv()
    e("k1_done:")
    e("s_endpgm")


K2_NST = 6
K2_WREG = K2_NST * 4096 + 2048
K2_LDS = 4 * K2_WREG
K2_STEPS = 11


def kernel2():
    S_H, S_WD, S_X, S_WS, S_OUT = 44, 48, 52, 56, 60
    sW, sT0, sT1, sMT, sNT, sKA, sKB, sLB = 64, 65, 66, 67, 68, 69, 70, 71
    AR = 16
    ACC = 112
    BF = 176
    vA0, vA1, vDMA, vB0, vB1, vOut = 208, 209, 210, 211, 212, 213
    XR = 216
    STR = 224
    e(".globl k2_kernel")
    e(".p2align 8")
    e(".type k2_kernel,@function")
    e("k2_kernel:")
    e("s_cmp_ge_u32 s2, 256")
    e("s_cbranch_scc1 k2_done")
    load_ptrs()
    e("v_lshrrev_b32 v2, 6, v0")
    e("v_and_b32 v1, 63, v0")
    e(f"v_readfirstlane_b32 s{sW}, v2")
    e(f"s_and_b32 s{sMT}, s2, 31")
    e(f"s_lshr_b32 s{sNT}, s2, 5")
    e("s_waitcnt lgkmcnt(0)")
    make_srd(S_H, P_WS, WS_H_BYTES)
    make_srd(S_WD, P_WD, 1376 * 1024)
    make_srd(S_X, P_Q, 2048 * 1024)
    make_srd(S_WS, P_WS, 0x1000000)
    make_srd(S_OUT, P_OUT, 2048 * 1024)
    e(f"s_mul_i32 s{sT0}, s{sW}, {K2_STEPS}")
    e(f"s_lshl_b32 s{sKA}, s{sT0}, 6")
    e(f"s_lshl_b32 s{sKB}, s{sT0}, 15")
    e(f"s_lshl_b32 s{sT1}, s{sNT}, 7")
    e(f"s_add_u32 s{sKB}, s{sKB}, s{sT1}")
    e(f"s_mul_i32 s{sLB}, s{sW}, {K2_WREG}")
    c("A lane offsets")
    e("v_and_b32 v2, 31, v1")
    e("v_lshrrev_b32 v3, 5, v1")
    e(f"s_lshl_b32 s{sT1}, s{sMT}, 6")
    e(f"v_add_u32 v4, s{sT1}, v2")
    e("v_mov_b32 v5, 2752")
    e("v_mul_lo_u32 v4, v4, v5")
    e(f"v_lshl_add_u32 v{vA0}, v3, 5, v4")
    e(f"v_add_u32 v{vA1}, {32 * 2752}, v{vA0}")
    c("B DMA lane offsets: row = l/8, chunk' = l%8; global chunk = chunk' ^ (((row>>1)&1)<<2)")
    e("v_lshrrev_b32 v4, 3, v1")
    e("v_and_b32 v5, 7, v1")
    e("v_lshrrev_b32 v6, 1, v4")
    e("v_and_b32 v6, 1, v6")
    e("v_lshlrev_b32 v6, 2, v6")
    e("v_xor_b32 v5, v5, v6")
    e("v_lshlrev_b32 v5, 4, v5")
    e(f"v_lshl_add_u32 v{vDMA}, v4, 10, v5")

    def issue_step(i):
        st = i % K2_NST
        for mi in range(2):
            for hh in range(2):
                e(f"buffer_load_dwordx4 {vr(AR + 16 * st + 8 * mi + 4 * hh, 4)}, v{vA1 if mi else vA0}, "
                  f"{sr(S_H, 4)}, s{sKA} offen offset:{64 * i + 16 * hh}")
        for j in range(4):
            e(f"s_add_u32 m0, s{sLB}, {st * 4096 + j * 1024}")
            e(f"s_add_u32 s{sT0}, s{sKB}, {(32 * i + 8 * j) * 1024}")
            e(f"buffer_load_dwordx4 v{vDMA}, {sr(S_WD, 4)}, s{sT0} offen lds")

    for i in range(K2_NST):
        issue_step(i)
    c("epilogue operand loads: tile (mi = w/2, ni = w%2)")
    e(f"s_lshr_b32 s{sT0}, s{sW}, 1")
    e(f"s_lshl_b32 s{sT0}, s{sT0}, 5")
    e(f"s_lshl_b32 s{sT1}, s{sMT}, 6")
    e(f"s_add_u32 s{sT0}, s{sT0}, s{sT1}")
    e(f"v_add_u32 v4, s{sT0}, v2")
    e(f"v_lshlrev_b32 v5, 3, v4")
    e(f"v_add_u32 v5, {WS_ST}, v5")
    e(f"buffer_load_dwordx2 {vr(STR, 2)}, v5, {sr(S_WS, 4)}, 0 offen")
    e(f"s_and_b32 s{sT1}, s{sW}, 1")
    e(f"s_lshl_b32 s{sT1}, s{sT1}, 6")
    e(f"s_lshl_b32 s72, s{sNT}, 7")
    e(f"s_add_u32 s{sT1}, s{sT1}, s72")
    e("v_lshlrev_b32 v5, 10, v4")
    e(f"v_add_u32 v5, s{sT1}, v5")
    e(f"v_lshl_add_u32 v{vOut}, v3, 4, v5")
    e("v_lshl_add_u32 v5, v3, 3, v5")
    for q in range(4):
        e(f"buffer_load_dwordx2 {vr(XR + 2 * q, 2)}, v5, {sr(S_X, 4)}, 0 offen offset:{16 * q}")
    c("y2T tile staging: [32 ch][64 B]; lane: ch = l/4 (+16j), chunk = l%4")
    e(f"s_lshr_b32 s{sT1}, s{sT1}, 1")
    e(f"s_lshl_b32 s{sT1}, s{sT1}, 12")
    e(f"s_lshl_b32 s{sT0}, s{sT0}, 1")
    e(f"s_add_u32 s{sT1}, s{sT1}, s{sT0}")
    e(f"s_add_u32 s{sT1}, s{sT1}, {WS_Y2}")
    e("v_lshrrev_b32 v5, 2, v1")
    e("v_lshlrev_b32 v5, 12, v5")
    e("v_and_b32 v6, 3, v1")
    e("v_lshl_add_u32 v5, v6, 4, v5")
    for j in range(2):
        e(f"s_add_u32 m0, s{sLB}, {K2_NST * 4096 + j * 1024}")
        e(f"s_add_u32 s{sT0}, s{sT1}, {j * 16 * 4096}")
        e(f"buffer_load_dwordx4 v5, {sr(S_WS, 4)}, s{sT0} offen lds")
    NEPI = 1 + 4 + 2
    c("B tr-read lane addresses")
    e("v_and_b32 v4, 15, v1")
    e("v_lshrrev_b32 v5, 2, v4")
    e("v_lshl_add_u32 v6, v3, 4, v5")
    e("v_lshlrev_b32 v6, 7, v6")
    e("v_lshrrev_b32 v7, 4, v1")
    e("v_and_b32 v7, 1, v7")
    e("v_lshl_add_u32 v6, v7, 5, v6")
    e("v_and_b32 v7, 3, v4")
    e("v_lshl_add_u32 v6, v7, 3, v6")
    e(f"v_add_u32 v6, s{sLB}, v6")
    e("v_lshrrev_b32 v7, 3, v4")
    e(f"v_lshl_add_u32 v{vB0}, v7, 6, v6")
    e("v_xor_b32 v7, 1, v7")
    e(f"v_lshl_add_u32 v{vB1}, v7, 6, v6")

    def breads(i, bs):
        st = i % K2_NST
        for s in range(2):
            for ni in range(2):
                for u in range(2):
                    e(f"ds_read_b64_tr_b16 {vr(BF + 16 * bs + 8 * s + 4 * ni + 2 * u, 2)}, v{vB1 if ni else vB0} "
                      f"offset:{st * 4096 + (8 * s + 4 * u) * 128}")

    issued = [("step", i) for i in range(K2_NST)] + [("epi", 0)]

    def wait_for_step(i):
        n = 0
        seen = False
        for kind, x in issued:
            if seen:
                n += 8 if kind == "step" else NEPI
            if kind == "step" and x == i:
                seen = True
        e(f"s_waitcnt vmcnt({min(n, 63)})")

    wait_for_step(0)
    breads(0, 0)
    for i in range(K2_STEPS):
        bs = i & 1
        if i + 1 < K2_STEPS:
            wait_for_step(i + 1)
            breads(i + 1, bs ^ 1)
            e("s_waitcnt lgkmcnt(8)")
        else:
            e("s_waitcnt lgkmcnt(0)")
        if i == K2_STEPS - 1:
            e(f"s_cmp_eq_u32 s{sW}, 3")
            e("s_cbranch_scc1 k2_skiplast")
        st = i % K2_NST
        for s in range(2):
            for mi in range(2):
                for ni in range(2):
                    a = ACC + 16 * (2 * mi + ni)
                    cc = "0" if (i == 0 and s == 0) else vr(a, 16)
                    e(f"v_mfma_f32_32x32x16_bf16 {vr(a, 16)}, {vr(BF + 16 * bs + 8 * s + 4 * ni, 4)}, "
                      f"{vr(AR + 16 * st + 8 * mi + 4 * s, 4)}, {cc}")
        if i == K2_STEPS - 1:
            e("k2_skiplast:")
        if i + K2_NST < K2_STEPS:
            issue_step(i + K2_NST)
            issued.append(("step", i + K2_NST))
    e("s_nop 15")
    e("s_nop 3")
    c("write non-owned partial tiles to own LDS ring region")
    e("v_lshlrev_b32 v4, 4, v1")
    e(f"v_add_u32 v4, s{sLB}, v4")
    for t in range(4):
        e(f"s_cmp_eq_u32 s{sW}, {t}")
        e(f"s_cbranch_scc1 k2_skipw{t}")
        for q in range(4):
            e(f"ds_write_b128 v4, {vr(ACC + 16 * t + 4 * q, 4)} offset:{t * 4096 + q * 1024}")
        e(f"k2_skipw{t}:")
    e("s_waitcnt lgkmcnt(0)")
    e("s_barrier")
    c("owner gathers: tile w from the other 3 waves; move own tile to v[16:31]")
    for t in range(4):
        e(f"s_cmp_lg_u32 s{sW}, {t}")
        e(f"s_cbranch_scc1 k2_skipm{t}")
        for r in range(16):
            e(f"v_mov_b32 v{16 + r}, v{ACC + 16 * t + r}")
        e(f"k2_skipm{t}:")
    e(f"s_lshl_b32 s{sT0}, s{sW}, 12")
    e("v_lshlrev_b32 v4, 4, v1")
    e(f"v_add_u32 v4, s{sT0}, v4")
    for k in range(1, 4):
        e(f"s_add_u32 s{sT1}, s{sW}, {k}")
        e(f"s_and_b32 s{sT1}, s{sT1}, 3")
        e(f"s_mul_i32 s{sT1}, s{sT1}, {K2_WREG}")
        e(f"v_add_u32 v5, s{sT1}, v4")
        for q in range(4):
            e(f"ds_read_b128 {vr(32 + 16 * (k - 1) + 4 * q, 4)}, v5 offset:{q * 1024}")
    c("y2 tr reads: c0 = 8q + 4g, rows: lane group")
    e("v_and_b32 v4, 15, v1")
    e("v_lshrrev_b32 v5, 2, v4")
    e("v_lshl_add_u32 v5, v3, 2, v5")
    e("v_lshlrev_b32 v5, 6, v5")
    e("v_lshrrev_b32 v6, 4, v1")
    e("v_and_b32 v6, 1, v6")
    e("v_lshl_add_u32 v5, v6, 5, v5")
    e("v_and_b32 v6, 3, v4")
    e("v_lshl_add_u32 v5, v6, 3, v5")
    e(f"v_add_u32 v5, s{sLB}, v5")
    e("s_waitcnt vmcnt(0)")
    YR = 96
    for q in range(4):
        e(f"ds_read_b64_tr_b16 {vr(YR + 2 * q, 2)}, v5 offset:{K2_NST * 4096 + q * 512}")
    e(f"v_mul_f32 v6, v{STR}, v{STR + 1}")
    e("v_sub_f32 v6, 0, v6")
    e("s_waitcnt lgkmcnt(0)")
    for r in range(16):
        e(f"v_add_f32 v{16 + r}, v{16 + r}, v{32 + r}")
        e(f"v_add_f32 v{48 + r}, v{48 + r}, v{64 + r}")
    for r in range(16):
        e(f"v_add_f32 v{16 + r}, v{16 + r}, v{48 + r}")
    OUTR = 104
    for q in range(4):
        for h2 in range(2):
            x = XR + 2 * q + h2
            y = YR + 2 * q + h2
            b = 16 + 4 * q + 2 * h2
            e(f"v_lshlrev_b32 v8, 16, v{x}")
            e(f"v_and_b32 v9, 0xffff0000, v{x}")
            e(f"v_fma_f32 v10, v8, v{STR + 1}, v6")
            e(f"v_fma_f32 v11, v9, v{STR + 1}, v6")
            e("v_cvt_pk_bf16_f32 v10, v10, v11")
            e("v_lshlrev_b32 v11, 16, v10")
            e("v_and_b32 v10, 0xffff0000, v10")
            e(f"v_lshlrev_b32 v12, 16, v{y}")
            e(f"v_and_b32 v13, 0xffff0000, v{y}")
            e("v_mul_f32 v11, v11, v12")
            e("v_mul_f32 v10, v10, v13")
            e("v_cvt_pk_bf16_f32 v10, v11, v10")
            e("v_lshlrev_b32 v11, 16, v10")
            e("v_and_b32 v10, 0xffff0000, v10")
            e("v_add_f32 v11, v8, v11")
            e("v_add_f32 v10, v9, v10")
            e("v_cvt_pk_bf16_f32 v10, v11, v10")
            e(f"v_cvt_pk_bf16_f32 v12, v{b}, v{b + 1}")
            e("v_lshlrev_b32 v11, 16, v10")
            e("v_and_b32 v10, 0xffff0000, v10")
            e("v_lshlrev_b32 v13, 16, v12")
            e("v_and_b32 v12, 0xffff0000, v12")
            e("v_add_f32 v11, v11, v13")
            e("v_add_f32 v10, v10, v12")
            e(f"v_cvt_pk_bf16_f32 v{OUTR + 2 * q + h2}, v11, v10")
    e("s_nop 1")
    for qq in range(2):
        o = OUTR + 4 * qq
        e(f"v_permlane32_swap_b32 v{o}, v{o + 2}")
        e(f"v_permlane32_swap_b32 v{o + 1}, v{o + 3}")
        e(f"buffer_store_dwordx4 {vr(o, 4)}, v{vOut}, {sr(S_OUT, 4)}, 0 offen offset:{32 * qq}")
    e("k2_done:")
    e("s_endpgm")


def descriptor(name, nv):
    L.append(".p2align 6")
    L.append(f".amdhsa_kernel {name}")
    L.append(f"  .amdhsa_next_free_vgpr {nv}")
    L.append("  .amdhsa_next_free_sgpr 102")
    L.append(f"  .amdhsa_accum_offset {nv}")
    L.append("  .amdhsa_group_segment_fixed_size 0")
    L.append("  .amdhsa_kernarg_size 104")
    L.append("  .amdhsa_user_sgpr_count 2")
    L.append("  .amdhsa_user_sgpr_kernarg_segment_ptr 1")
    L.append("  .amdhsa_system_sgpr_workgroup_id_x 1")
    L.append(".end_amdhsa_kernel")


def main():
    hdr = open(f"cdna_kernels/{NAME}.s.ref").read().split("\n")
    for line in hdr:
        if line.startswith("; Override") or line.startswith("; grid=") or "@launch" in line:
            continue
        if not line.startswith(";"):
            break
        L.append(line)
    L.append(f"; @launch kernel=k1_kernel grid=({K1_NCONV + K1_NGEMM},1,1) block=(512,1,1) lds=163840")
    L.append(f"; @launch kernel=k2_kernel grid=(256,1,1) block=(256,1,1) lds={K2_LDS}")
    L.append('.amdgcn_target "amdgcn-amd-amdhsa--gfx950"')
    L.append(".text")
    kernel1()
    kernel2()
    L.append('.section .rodata,"a"')
    descriptor("k1_kernel", 256)
    descriptor("k2_kernel", 256)
    out = sys.argv[1] if len(sys.argv) > 1 else f"cdna_kernels/{NAME}.s"
    open(out, "w").write("\n".join(L) + "\n")


if __name__ == "__main__":
    main()
```

```python
import sys

NAME = "parallel_sum__ssm_conv_h3__glu_gated_bilinear__prompt"

WS_H = 0
WS_H_BYTES = 2048 * 1376 * 2
WS_Y2 = 0x600000
WS_ST = 0x800000
WS_XN = 0xA00000
WS_KV = 0xC00000

import os
K1MAP = int(os.environ.get('K1MAP', '1'))
STC = os.environ.get('STC', '')
PREF = int(os.environ.get('PREF', '1'))
PREF2 = int(os.environ.get('PREF2', '1'))
KV16 = int(os.environ.get('KV16', '1'))
L = []


def e(s=""):
    L.append("    " + s if s and not s.endswith(":") else s)


def c(s):
    L.append("    ; " + s)


PROF = len(sys.argv) > 2 and sys.argv[2] == "prof"
WS_PROF = 0xE00000
_stamp = [0]


def stamp(reset=False):
    if not PROF:
        return
    if reset:
        _stamp[0] = 0
        e("s_memrealtime s[98:99]")
        e("s_waitcnt lgkmcnt(0)")
        e("v_writelane_b32 v255, s98, 63")
    e("s_memtime s[98:99]")
    e("s_waitcnt lgkmcnt(0)")
    e(f"v_writelane_b32 v255, s98, {_stamp[0]}")
    _stamp[0] += 1


def stamp_flush(srd, base):
    if not PROF:
        return
    stamp()
    e("s_memrealtime s[98:99]")
    e("s_waitcnt lgkmcnt(0)")
    e("v_writelane_b32 v255, s98, 62")
    e("v_lshrrev_b32 v253, 6, v0")
    e("v_lshl_add_u32 v253, s2, 3, v253")
    e("v_lshlrev_b32 v253, 8, v253")
    e("v_and_b32 v254, 63, v0")
    e("v_lshl_add_u32 v253, v254, 2, v253")
    e(f"v_add_u32 v253, {base}, v253")
    e(f"buffer_store_dword v255, v253, {sr(srd, 4)}, 0 offen")


def vr(a, n=1):
    return f"v{a}" if n == 1 else f"v[{a}:{a + n - 1}]"


def sr(a, n=1):
    return f"s{a}" if n == 1 else f"s[{a}:{a + n - 1}]"


def make_srd(d, ptr, nbytes):
    e(f"s_mov_b32 s{d}, s{ptr}")
    e(f"s_and_b32 s{d + 1}, s{ptr + 1}, 0xffff")
    e(f"s_mov_b32 s{d + 2}, {nbytes}")
    e(f"s_mov_b32 s{d + 3}, 0x00020000")


P_Q, P_K, P_V, P_SH, P_SK, P_SD, P_BX, P_WG = 16, 18, 20, 22, 24, 26, 28, 30
P_WU, P_WD, P_OUT, P_DBG, P_WS = 32, 34, 36, 38, 40


def load_ptrs():
    e("s_load_dwordx16 s[16:31], s[0:1], 0")
    e("s_load_dwordx8 s[32:39], s[0:1], 64")
    e("s_load_dwordx2 s[40:41], s[0:1], 96")


K1_NCONV = 64
K1_NGEMM = 176
K1_BUF = [131072, 0, 32768, 65536, 98304]


def k1_gemm():
    S_X, S_WG, S_WU, S_WS = 44, 48, 52, 56
    sMT, sNT, sW, sT0, sT1, sW0, sMW, sROW = 60, 61, 62, 63, 64, 65, 66, 67
    sONE, sEXS = 68, 70
    XD = 16
    AF = 16
    ACC = 144
    BF = 208
    vDMA, vB0, vB1, vBc0, vBc1, vHoff = 240, 241, 242, 243, 244, 245
    e("k1_gemm:")
    e("s_sub_u32 s3, s2, %d" % K1_NCONV)
    if K1MAP:
        c("k = 22*(t%8) + t/8 ; mh = k/88 ; rem = k%88 ; nt = rem/8 ; mt = mh*8 + rem%8")
        e("s_and_b32 s4, s3, 7")
        e("s_mul_i32 s4, s4, 22")
        e("s_lshr_b32 s5, s3, 3")
        e("s_add_u32 s4, s4, s5")
        e("s_cmp_ge_u32 s4, 88")
        e("s_cselect_b32 s5, 88, 0")
        e(f"s_cselect_b32 s{sMT}, 8, 0")
        e("s_sub_u32 s4, s4, s5")
        e(f"s_lshr_b32 s{sNT}, s4, 3")
        e("s_and_b32 s4, s4, 7")
        e(f"s_add_u32 s{sMT}, s{sMT}, s4")
    else:
        e(f"s_and_b32 s{sMT}, s3, 15")
        e(f"s_lshr_b32 s{sNT}, s3, 4")
    e("v_lshrrev_b32 v2, 6, v0")
    e("v_and_b32 v1, 63, v0")
    e(f"v_readfirstlane_b32 s{sW}, v2")
    e("s_waitcnt lgkmcnt(0)")
    stamp(True)
    make_srd(S_X, P_Q, 2048 * 1024)
    make_srd(S_WG, P_WG, 512 * 2752)
    make_srd(S_WU, P_WU, 512 * 2752)
    make_srd(S_WS, P_WS, 0x1000000)
    c("LN rows of this wave: mt*128 + w*16 + l/4")
    e(f"s_lshl_b32 s{sROW}, s{sMT}, 7")
    e(f"s_lshl_b32 s{sT0}, s{sW}, 4")
    e(f"s_add_u32 s{sROW}, s{sROW}, s{sT0}")
    e("v_lshrrev_b32 v2, 2, v1")
    e(f"v_add_u32 v3, s{sROW}, v2")
    e("v_lshlrev_b32 v4, 10, v3")
    e("v_and_b32 v5, 3, v1")
    e("v_lshl_add_u32 v4, v5, 4, v4")
    for i in range(16):
        e(f"buffer_load_dwordx4 {vr(XD + 4 * i, 4)}, v4, {sr(S_X, 4)}, 0 offen offset:{64 * i}")
    c("DMA lane offsets")
    e("v_lshrrev_b32 v6, 4, v1")
    e("v_and_b32 v7, 15, v1")
    e("v_lshlrev_b32 v8, 2, v6")
    e("v_xor_b32 v7, v7, v8")
    e("v_lshlrev_b32 v7, 4, v7")
    e("v_mul_u32_u24 v8, 2752, v6")
    e(f"v_add_u32 v{vDMA}, v7, v8")
    e(f"s_mul_i32 s{sW0}, s{sW}, {8 * 2752}")
    e(f"s_lshl_b32 s{sT0}, s{sNT}, 8")
    e(f"s_add_u32 s{sW0}, s{sW0}, s{sT0}")
    e(f"s_lshl_b32 s{sMW}, s{sW}, 11")

    def dma_slab(s):
        for part in range(2):
            for j in range(2):
                e(f"s_add_u32 m0, s{sMW}, {K1_BUF[s % 5] + part * 16384 + j * 1024}")
                e(f"s_add_u32 s{sT0}, s{sW0}, {(64 * s + 4 * j) * 2752}")
                e(f"buffer_load_dwordx4 v{vDMA}, {sr(S_WU if part else S_WG, 4)}, s{sT0} offen lds")

    dma_slab(0)
    if PREF:
        c("L2 prefetch: rows k = (mt%8)*64 + w*8 + (l/16)*2 + {0,1} of both W tiles (256B per row)")
        e(f"s_and_b32 s{sT0}, s{sMT}, 7")
        e(f"s_lshl_b32 s{sT0}, s{sT0}, 6")
        e(f"s_lshl_b32 s{sT1}, s{sW}, 3")
        e(f"s_add_u32 s{sT0}, s{sT0}, s{sT1}")
        e(f"s_mul_i32 s{sT0}, s{sT0}, 2752")
        e(f"s_lshl_b32 s{sT1}, s{sNT}, 8")
        e(f"s_add_u32 s{sT0}, s{sT0}, s{sT1}")
        e("v_lshrrev_b32 v6, 4, v1")
        e(f"v_mul_u32_u24 v6, {2 * 2752}, v6")
        e("v_and_b32 v7, 15, v1")
        e("v_lshl_add_u32 v6, v7, 4, v6")
        e(f"buffer_load_dwordx4 v[224:227], v6, {sr(S_WG, 4)}, s{sT0} offen")
        e(f"buffer_load_dwordx4 v[228:231], v6, {sr(S_WG, 4)}, s{sT0} offen offset:2752")
        e(f"buffer_load_dwordx4 v[232:235], v6, {sr(S_WU, 4)}, s{sT0} offen")
        e(f"buffer_load_dwordx4 v[236:239], v6, {sr(S_WU, 4)}, s{sT0} offen offset:2752")
    c("LDS write addresses for xn: r*1024 + (((k<<2|q) ^ f(r&15))<<4), k=0..3 ; r = w*16 + l/4")
    e(f"s_lshl_b32 s{sT0}, s{sW}, 4")
    e(f"v_add_u32 v6, s{sT0}, v2")
    e("v_and_b32 v7, 3, v2")
    e("v_lshlrev_b32 v7, 2, v7")
    e("v_lshrrev_b32 v8, 2, v2")
    e("v_or_b32 v7, v7, v8")
    e("v_xor_b32 v7, v7, v5")
    e("v_lshlrev_b32 v7, 4, v7")
    e("v_lshl_add_u32 v8, v6, 10, v7")
    e("v_xor_b32 v9, 64, v8")
    e("v_xor_b32 v10, 128, v8")
    e("v_xor_b32 v11, 192, v8")
    e(f"s_mov_b32 s{sONE}, 0x3f803f80")
    T = 144
    for r in range(4):
        e(f"v_mov_b32 v{T + r}, 0")
    e(f"s_waitcnt vmcnt({8 if PREF else 4})")
    stamp()
    for i in range(64):
        e(f"v_dot2c_f32_bf16 v{T + (i & 1)}, s{sONE}, v{XD + i}")
        e(f"v_dot2c_f32_bf16 v{T + 2 + (i & 1)}, v{XD + i}, v{XD + i}")
    e("s_nop 3")
    e(f"v_add_f32 v{T}, v{T}, v{T + 1}")
    e(f"v_add_f32 v{T + 2}, v{T + 2}, v{T + 3}")
    e("s_nop 1")
    e(f"v_add_f32_dpp v{T + 1}, v{T}, v{T} quad_perm:[1,0,3,2] row_mask:0xf bank_mask:0xf")
    e(f"v_add_f32_dpp v{T + 3}, v{T + 2}, v{T + 2} quad_perm:[1,0,3,2] row_mask:0xf bank_mask:0xf")
    e("s_nop 1")
    e(f"v_add_f32_dpp v{T}, v{T + 1}, v{T + 1} quad_perm:[2,3,0,1] row_mask:0xf bank_mask:0xf")
    e(f"v_add_f32_dpp v{T + 2}, v{T + 3}, v{T + 3} quad_perm:[2,3,0,1] row_mask:0xf bank_mask:0xf")
    e(f"v_mul_f32 v{T}, 0x3b000000, v{T}")
    e(f"v_mul_f32 v{T + 2}, 0x3b000000, v{T + 2}")
    e(f"v_fma_f32 v{T + 2}, -v{T}, v{T}, v{T + 2}")
    e(f"v_max_f32 v{T + 2}, 0, v{T + 2}")
    e(f"v_cvt_pk_bf16_f32 v{T + 1}, v{T}, v{T + 2}")
    e(f"v_lshlrev_b32 v{T + 4}, 16, v{T + 1}")
    e(f"v_and_b32 v{T + 2}, 0xffff0000, v{T + 1}")
    e(f"v_add_f32 v{T + 2}, 0x3727c5ac, v{T + 2}")
    e(f"v_cvt_pk_bf16_f32 v{T + 2}, v{T + 2}, v{T + 2}")
    e(f"v_and_b32 v{T + 2}, 0xffff0000, v{T + 2}")
    e(f"v_sqrt_f32 v{T + 2}, v{T + 2}")
    e("s_nop 0")
    e(f"v_cvt_pk_bf16_f32 v{T + 2}, v{T + 2}, v{T + 2}")
    e(f"v_and_b32 v{T + 2}, 0xffff0000, v{T + 2}")
    e(f"v_rcp_f32 v{T + 5}, v{T + 2}")
    e("s_nop 0")
    RS, NM = T + 6, T + 8
    e(f"v_mov_b32 v{RS}, v{T + 5}")
    e(f"v_mov_b32 v{RS + 1}, v{T + 5}")
    e(f"v_mul_f32 v{NM}, v{T + 4}, v{T + 5}")
    e(f"v_sub_f32 v{NM}, 0, v{NM}")
    e(f"v_mov_b32 v{NM + 1}, v{NM}")
    e(f"s_mov_b32 s{sT1}, {WS_XN}")
    e(f"s_cmp_lg_u32 s{sNT}, 0")
    e("s_cbranch_scc1 k1_norm_b")
    c("normalize, write to LDS")
    TT = 160
    for ver in range(2):
        if ver == 1:
            e("s_branch k1_norm_e")
            e("k1_norm_b:")
        for i in range(16):
            for d in range(4):
                x = XD + 4 * i + d
                t = TT + 2 * d
                e(f"v_lshlrev_b32 v{t}, 16, v{x}")
                e(f"v_and_b32 v{t + 1}, 0xffff0000, v{x}")
            for d in range(4):
                t = TT + 2 * d
                e(f"v_pk_fma_f32 {vr(t, 2)}, {vr(t, 2)}, {vr(RS, 2)}, {vr(NM, 2)}")
            o = TT + 8 + 4 * (i & 1)
            for d in range(4):
                t = TT + 2 * d
                e(f"v_cvt_pk_bf16_f32 v{o + d}, v{t}, v{t + 1}")
            e(f"ds_write_b128 v{8 + (i & 3)}, {vr(o, 4)} offset:{(i >> 2) * 256}")
            if ver == 0:
                e(f"buffer_store_dwordx4 {vr(o, 4)}, v4, {sr(S_WS, 4)}, s{sT1} offen offset:{64 * i}")
    e("k1_norm_e:")
    e("s_waitcnt lgkmcnt(0)")
    stamp()
    e("s_barrier")
    c("A frag reads: rows (w%4)*32 + l%32, chunk 2i+g")
    e(f"s_and_b32 s{sT0}, s{sW}, 3")
    e(f"s_lshl_b32 s{sT0}, s{sT0}, 5")
    e("v_and_b32 v2, 31, v1")
    e(f"v_add_u32 v6, s{sT0}, v2")
    e("v_and_b32 v7, 3, v2")
    e("v_lshlrev_b32 v7, 2, v7")
    e("v_lshrrev_b32 v8, 2, v2")
    e("v_and_b32 v8, 3, v8")
    e("v_or_b32 v7, v7, v8")
    e("v_lshrrev_b32 v8, 5, v1")
    e("v_xor_b32 v7, v7, v8")
    e("v_lshlrev_b32 v7, 4, v7")
    e("v_lshl_add_u32 v208, v6, 10, v7")
    for k in range(1, 8):
        e(f"v_xor_b32 v{208 + k}, {k << 5}, v208")
    for i in range(32):
        e(f"ds_read_b128 {vr(AF + 4 * i, 4)}, v{208 + (i & 7)} offset:{(i >> 3) * 256}")
        if i == 11:
            e("s_waitcnt lgkmcnt(4)")
        if i == 23:
            e("s_waitcnt lgkmcnt(4)")
    c("h store offset: row*2752 + (nt*128 + nh*64 + 8g)*2")
    e(f"s_lshl_b32 s{sT1}, s{sMT}, 7")
    e(f"v_add_u32 v6, s{sT1}, v6")
    e("v_mov_b32 v7, 2752")
    e("v_mul_lo_u32 v6, v6, v7")
    e(f"s_lshr_b32 s{sT0}, s{sW}, 2")
    e(f"s_lshl_b32 s{sT0}, s{sT0}, 7")
    e(f"s_lshl_b32 s{sT1}, s{sNT}, 8")
    e(f"s_add_u32 s{sT0}, s{sT0}, s{sT1}")
    e(f"v_add_u32 v6, s{sT0}, v6")
    e("v_lshrrev_b32 v8, 5, v1")
    e(f"v_lshl_add_u32 v{vHoff}, v8, 4, v6")
    c("B tr-read lane addresses for tiles T0=2nh, T1=2nh+1")
    e("v_and_b32 v2, 15, v1")
    e("v_lshrrev_b32 v6, 2, v2")
    e("v_lshrrev_b32 v7, 5, v1")
    e("v_lshl_add_u32 v7, v7, 3, v6")
    e("v_lshlrev_b32 v7, 8, v7")
    e("v_lshrrev_b32 v8, 4, v1")
    e("v_and_b32 v8, 1, v8")
    e("v_lshlrev_b32 v8, 5, v8")
    e("v_add_u32 v7, v7, v8")
    e("v_and_b32 v8, 3, v2")
    e("v_lshlrev_b32 v8, 3, v8")
    e("v_add_u32 v7, v7, v8")
    e(f"s_lshr_b32 s{sT0}, s{sW}, 2")
    e(f"s_lshl_b32 s{sT0}, s{sT0}, 1")
    e(f"v_xor_b32 v8, s{sT0}, v6")
    e(f"v_lshl_add_u32 v{vB0}, v8, 6, v7")
    e("v_xor_b32 v8, 1, v8")
    e(f"v_lshl_add_u32 v{vB1}, v8, 6, v7")
    e("s_waitcnt lgkmcnt(0)")
    e("s_barrier")
    stamp()
    for s in range(1, 5):
        dma_slab(s)

    def breads(kk, st):
        for ti in range(4):
            part, T = ti >> 1, ti & 1
            for u in range(2):
                off = part * 16384 + (16 * kk + 4 * u) * 256
                e(f"ds_read_b64_tr_b16 {vr(BF + 16 * st + 4 * ti + 2 * u, 2)}, v{vBc1 if T else vBc0} offset:{off}")

    for s in range(8):
        last_issued = min(max(4, s + 3), 7)
        e(f"s_waitcnt vmcnt({4 * (last_issued - s)})")
        e("s_barrier")
        stamp()
        e(f"v_add_u32 v{vBc0}, {K1_BUF[s % 5]}, v{vB0}")
        e(f"v_add_u32 v{vBc1}, {K1_BUF[s % 5]}, v{vB1}")
        breads(0, 0)
        if s >= 1 and s + 4 <= 7:
            dma_slab(s + 4)
        for kk in range(4):
            if kk < 3:
                breads(kk + 1, (kk + 1) & 1)
                e("s_waitcnt lgkmcnt(8)")
            else:
                e("s_waitcnt lgkmcnt(0)")
            i = 4 * s + kk
            for ti in range(4):
                cc = "0" if i == 0 else vr(ACC + 16 * ti, 16)
                e(f"v_mfma_f32_32x32x16_bf16 {vr(ACC + 16 * ti, 16)}, {vr(BF + 16 * (kk & 1) + 4 * ti, 4)}, "
                  f"{vr(AF + 4 * i, 4)}, {cc}")
    if PREF2:
        c("prefetch a slice of w_down (1 KB per wave) towards MALL for k2")
        e("s_sub_u32 s3, s2, %d" % K1_NCONV)
        e("s_lshl_b32 s3, s3, 3")
        e(f"s_add_u32 s3, s3, s{sW}")
        e("s_lshl_b32 s3, s3, 10")
        make_srd(S_X, P_WD, 1376 * 1024)
        e("v_lshlrev_b32 v6, 4, v1")
        e(f"buffer_load_dwordx4 v[224:227], v6, {sr(S_X, 4)}, s3 offen")
    e("s_nop 15")
    e("s_nop 3")
    stamp()
    c("epilogue: h = bf16(bf16(g)*bf16(u))")
    for T in range(2):
        if T == 1:
            e(f"s_cmp_eq_u32 s{sNT}, 10")
            e(f"s_cselect_b32 s{sT0}, 1, 0")
            e(f"s_lshr_b32 s{sT1}, s{sW}, 2")
            e(f"s_and_b32 s{sT0}, s{sT0}, s{sT1}")
            e(f"s_cmp_lg_u32 s{sT0}, 0")
            e("s_cbranch_scc1 k1g_end")
        G, U = ACC + 16 * T, ACC + 32 + 16 * T
        for qq in range(2):
            o = 16 + 4 * (2 * T + qq)
            for h2 in range(4):
                r = 8 * qq + 2 * h2
                e(f"v_cvt_pk_bf16_f32 v8, v{G + r}, v{G + r + 1}")
                e(f"v_cvt_pk_bf16_f32 v9, v{U + r}, v{U + r + 1}")
                e("v_lshlrev_b32 v10, 16, v8")
                e("v_and_b32 v11, 0xffff0000, v8")
                e("v_lshlrev_b32 v12, 16, v9")
                e("v_and_b32 v13, 0xffff0000, v9")
                e("v_mul_f32 v10, v10, v12")
                e("v_mul_f32 v11, v11, v13")
                e(f"v_cvt_pk_bf16_f32 v{o + h2}, v10, v11")
            e("s_nop 1")
            e(f"v_permlane32_swap_b32 v{o}, v{o + 2}")
            e(f"v_permlane32_swap_b32 v{o + 1}, v{o + 3}")
            e(f"buffer_store_dwordx4 {vr(o, 4)}, v{vHoff}, {sr(S_WS, 4)}, 0 offen offset:{64 * T + 32 * qq}{STC}")
    e("k1g_end:")
    stamp_flush(S_WS, WS_PROF)
    e("s_branch k1_done")


CV_R = 0
CV_RSTR = 4608
CV_KT = 36864
CV_KSTR = 8320
CV_KCPY = 4160


def k1_conv():
    S_K, S_V, S_SK, S_WS, S_SH, S_DBG = 44, 48, 52, 56, 72, 76
    sW, sT0, sT1, sD, sG, sJ = 62, 63, 64, 65, 66, 67
    e("k1_conv:")
    e("v_lshrrev_b32 v2, 6, v0")
    e("v_and_b32 v1, 63, v0")
    e(f"v_readfirstlane_b32 s{sW}, v2")
    e("s_waitcnt lgkmcnt(0)")
    stamp(True)
    make_srd(S_K, P_K, 2048 * 1024)
    make_srd(S_V, P_V, 2048 * 1024)
    make_srd(S_SK, P_SK, 512 * 4096)
    make_srd(S_WS, P_WS, 0x1000000)
    make_srd(S_SH, P_SH, 4096)
    make_srd(S_DBG, P_DBG, 256)
    e(f"s_lshr_b32 s{sG}, s2, 3")
    e(f"s_and_b32 s{sJ}, s2, 7")
    c("---- kv phase: rows J*256 + 4*rg.., channels G*64 + cs*8..")
    e("v_lshrrev_b32 v2, 3, v0")
    e("v_and_b32 v3, 7, v0")
    e(f"s_lshl_b32 s{sT0}, s{sJ}, 18")
    e(f"s_lshl_b32 s{sT1}, s{sG}, 7")
    e(f"s_add_u32 s{sT0}, s{sT0}, s{sT1}")
    e("v_lshlrev_b32 v4, 12, v2")
    e("v_lshl_add_u32 v4, v3, 4, v4")
    e(f"v_add_u32 v4, s{sT0}, v4")
    e("v_subrev_u32 v5, 3072, v4")
    KD, VD, WD = 16, 44, 60
    for r in range(3):
        e(f"buffer_load_dwordx4 {vr(KD + 4 * r, 4)}, v5, {sr(S_K, 4)}, 0 offen offset:{1024 * r}")
    for r in range(4):
        e(f"buffer_load_dwordx4 {vr(KD + 12 + 4 * r, 4)}, v4, {sr(S_K, 4)}, 0 offen offset:{1024 * r}")
    for r in range(4):
        e(f"buffer_load_dwordx4 {vr(VD + 4 * r, 4)}, v4, {sr(S_V, 4)}, 0 offen offset:{1024 * r}")
    e(f"s_lshl_b32 s{sT1}, s{sG}, 9")
    e("v_lshlrev_b32 v6, 6, v3")
    e(f"v_add_u32 v6, s{sT1}, v6")
    for j in range(4):
        e(f"buffer_load_dwordx4 {vr(WD + 4 * j, 4)}, v6, {sr(S_SH, 4)}, 0 offen offset:{16 * j}")
    c("ssm_D for this wave's channel")
    e(f"s_lshl_b32 s{sT0}, s2, 4")
    e(f"s_lshl_b32 s{sT1}, s{sW}, 1")
    e(f"s_add_u32 s{sT0}, s{sT0}, s{sT1}")
    e(f"s_and_b32 s{sT1}, s{sT0}, 0xfffffffc")
    e(f"s_add_u32 s{P_SD}, s{P_SD}, s{sT1}")
    e(f"s_addc_u32 s{P_SD + 1}, s{P_SD + 1}, 0")
    e(f"s_load_dword s{sD}, {sr(P_SD, 2)}, 0")
    c("ssm_k row of this wave's channel")
    SKD = 232
    e(f"s_lshl_b32 s{sT0}, s2, 3")
    e(f"s_add_u32 s{sT0}, s{sT0}, s{sW}")
    e(f"s_lshl_b32 s{sT0}, s{sT0}, 12")
    e("v_lshlrev_b32 v8, 4, v1")
    e(f"v_add_u32 v8, s{sT0}, v8")
    for j in range(4):
        e(f"buffer_load_dwordx4 {vr(SKD + 4 * j, 4)}, v8, {sr(S_SK, 4)}, 0 offen offset:{1024 * j}")
    for j in range(4):
        e(f"buffer_load_dword v{SKD + 16 + j}, v8, {sr(S_SK, 4)}, 0 offen offset:{1024 * j + 16}")
    c("kv store base: WS_KV + c*4096 + 2*(2044 - t0)")
    e(f"s_lshl_b32 s{sT0}, s{sG}, 18")
    e(f"s_add_u32 s{sT0}, s{sT0}, {WS_KV + 4088}")
    e(f"s_lshl_b32 s{sT1}, s{sJ}, 9")
    e(f"s_sub_u32 s{sT0}, s{sT0}, s{sT1}")
    e("v_lshlrev_b32 v7, 15, v3")
    e(f"v_add_u32 v7, s{sT0}, v7")
    e("v_lshlrev_b32 v9, 3, v2")
    e("v_sub_u32 v7, v7, v9")
    e("s_waitcnt vmcnt(8)")
    stamp()
    KF, VF, WF = 80, 136, 200
    for cc in range(8):
        for jp in range(2):
            w = WD + 2 * cc + jp
            e(f"v_lshlrev_b32 v{WF + (2 * jp) * 8 + cc}, 16, v{w}")
            e(f"v_and_b32 v{WF + (2 * jp + 1) * 8 + cc}, 0xffff0000, v{w}")
    for i in range(28):
        e(f"v_lshlrev_b32 v{KF + 2 * i}, 16, v{KD + i}")
        e(f"v_and_b32 v{KF + 2 * i + 1}, 0xffff0000, v{KD + i}")
    for i in range(16):
        e(f"v_lshlrev_b32 v{VF + 2 * i}, 16, v{VD + i}")
        e(f"v_and_b32 v{VF + 2 * i + 1}, 0xffff0000, v{VD + i}")
    KV = 168
    for r in range(4):
        for cp in range(4):
            d = KV + 8 * r + 2 * cp
            e(f"v_pk_mul_f32 {vr(d, 2)}, {vr(KF + 8 * r + 2 * cp, 2)}, {vr(WF + 3 * 8 + 2 * cp, 2)}")
            for j in range(1, 4):
                e(f"v_pk_fma_f32 {vr(d, 2)}, {vr(KF + 8 * (r + j) + 2 * cp, 2)}, "
                  f"{vr(WF + (3 - j) * 8 + 2 * cp, 2)}, {vr(d, 2)}")
            e(f"v_pk_mul_f32 {vr(d, 2)}, {vr(d, 2)}, {vr(VF + 8 * r + 2 * cp, 2)}")
    if not KV16:
        for cc in range(8):
            o = 16 + 2 * cc
            e(f"v_cvt_pk_bf16_f32 v{o}, v{KV + 24 + cc}, v{KV + 16 + cc}")
            e(f"v_cvt_pk_bf16_f32 v{o + 1}, v{KV + 8 + cc}, v{KV + cc}")
            e(f"s_mov_b32 s{sT1}, {cc * 4096}")
            e(f"buffer_store_dwordx2 {vr(o, 2)}, v7, {sr(S_WS, 4)}, s{sT1} offen sc1")
    else:
        for cc in range(8):
            o = 16 + 2 * cc
            e(f"v_cvt_pk_bf16_f32 v{o}, v{KV + 24 + cc}, v{KV + 16 + cc}")
            e(f"v_cvt_pk_bf16_f32 v{o + 1}, v{KV + 8 + cc}, v{KV + cc}")
        c("pair lanes (rg even = A, odd = B): A stores ch 0-3, B stores ch 4-7, 16B each")
        e("v_and_b32 v9, 8, v0")
        e("v_cmp_ne_u32 vcc, 0, v9")
        e("v_add_u32 v9, 16384, v7")
        e("v_subrev_u32 v7, 8, v7")
        e("s_nop 0")
        e("v_cndmask_b32 v7, v7, v9, vcc")
        for i in range(16):
            e(f"v_mov_b32_dpp v{32 + i}, v{16 + i} row_ror:8 row_mask:0xf bank_mask:0xf")
        for cc in range(4):
            X, Y, PX, PY = 16 + 2 * cc, 24 + 2 * cc, 32 + 2 * cc, 40 + 2 * cc
            o = 48 + 4 * cc
            e(f"v_cndmask_b32 v{o}, v{PX}, v{Y}, vcc")
            e(f"v_cndmask_b32 v{o + 1}, v{PX + 1}, v{Y + 1}, vcc")
            e(f"v_cndmask_b32 v{o + 2}, v{X}, v{PY}, vcc")
            e(f"v_cndmask_b32 v{o + 3}, v{X + 1}, v{PY + 1}, vcc")
            e(f"s_mov_b32 s{sT1}, {cc * 4096}")
            e(f"buffer_store_dwordx4 {vr(o, 4)}, v7, {sr(S_WS, 4)}, s{sT1} offen sc1")
    c("meanwhile: zero pads and KT copies")
    e(f"s_mul_i32 s{sT1}, s{sW}, {CV_RSTR}")
    e("v_lshlrev_b32 v6, 3, v1")
    e(f"v_add_u32 v6, s{sT1}, v6")
    e("v_mov_b32 v10, 0")
    e("v_mov_b32 v11, 0")
    e(f"ds_write_b64 v6, v[10:11] offset:{CV_R + 4096}")
    e(f"s_mul_i32 s{sT1}, s{sW}, {CV_KSTR}")
    e(f"s_add_u32 s{sT1}, s{sT1}, {CV_KT}")
    e("v_lshlrev_b32 v7, 2, v1")
    e(f"v_add_u32 v7, s{sT1}, v7")
    e("v_cmp_gt_u32 vcc, 8, v1")
    e("s_and_saveexec_b64 s[70:71], vcc")
    e("ds_write_b32 v7, v10")
    e(f"ds_write_b32 v7, v10 offset:{CV_KCPY}")
    e("s_mov_b64 exec, s[70:71]")
    e("s_waitcnt lgkmcnt(0)")
    e(f"s_lshl_b32 s{sT0}, s{sD}, 16")
    e(f"s_and_b32 s{sD}, s{sD}, 0xffff0000")
    e(f"s_bitcmp1_b32 s{sW}, 0")
    e(f"s_cselect_b32 s{sD}, s{sD}, s{sT0}")
    e("v_lshlrev_b32 v7, 4, v1")
    e(f"v_add_u32 v7, s{sT1}, v7")
    e(f"s_waitcnt vmcnt({4 if KV16 else 8})")
    for j in range(4):
        d = SKD + 4 * j
        e(f"ds_write_b128 v7, {vr(d, 4)} offset:{32 + 1024 * j}")
        e(f"v_alignbit_b32 v12, v{d + 1}, v{d}, 16")
        e(f"v_alignbit_b32 v13, v{d + 2}, v{d + 1}, 16")
        e(f"v_alignbit_b32 v14, v{d + 3}, v{d + 2}, 16")
        e(f"v_alignbit_b32 v15, v{SKD + 16 + j}, v{d + 3}, 16")
        e(f"ds_write_b128 v7, v[12:15] offset:{CV_KCPY + 32 + 1024 * j}")
        e("s_nop 1")
    e(f"v_lshlrev_b32 v12, 16, v{SKD}")
    e("v_cmp_eq_u32 vcc, 0, v1")
    e("s_and_saveexec_b64 s[70:71], vcc")
    e(f"ds_write_b32 v7, v12 offset:{CV_KCPY + 28}")
    e("s_mov_b64 exec, s[70:71]")
    c("hand-off: all kv stores drained -> barrier -> one atomic add; then poll")
    e("s_waitcnt vmcnt(0)")
    e("s_barrier")
    stamp()
    e(f"s_cmp_lg_u32 s{sW}, 0")
    e("s_cbranch_scc1 k1c_wait")
    e(f"s_lshl_b32 s{sT0}, s{sG}, 5")
    e(f"v_mov_b32 v12, s{sT0}")
    e("v_mov_b32 v13, 1")
    e("v_cmp_eq_u32 vcc, 0, v1")
    e("s_and_saveexec_b64 s[70:71], vcc")
    e(f"buffer_atomic_add v13, v12, {sr(S_DBG, 4)}, 0 offen")
    e("s_mov_b32 s80, 0")
    e("k1c_poll:")
    e(f"buffer_load_dword v14, v12, {sr(S_DBG, 4)}, 0 offen sc1")
    e("s_waitcnt vmcnt(0)")
    e("v_readfirstlane_b32 s81, v14")
    e("s_add_u32 s80, s80, 1")
    e("s_cmp_ge_u32 s81, 8")
    e("s_cbranch_scc1 k1c_polled")
    e("s_sleep 1")
    e("s_cmp_lt_u32 s80, 0x400000")
    e("s_cbranch_scc1 k1c_poll")
    e("k1c_polled:")
    e("s_mov_b64 exec, s[70:71]")
    e("k1c_wait:")
    e("s_barrier")
    c("load own channel kvR row (sc1) -> LDS R")
    e(f"v_add_u32 v8, {WS_KV}, v8")
    for j in range(4):
        e(f"buffer_load_dwordx4 {vr(16 + 4 * j, 4)}, v8, {sr(S_WS, 4)}, 0 offen offset:{1024 * j} sc1")
    e(f"s_mul_i32 s{sT0}, s{sW}, {CV_RSTR}")
    e("v_lshlrev_b32 v6, 4, v1")
    e(f"v_add_u32 v6, s{sT0}, v6")
    for j in range(4):
        e(f"s_waitcnt vmcnt({3 - j})")
        e(f"ds_write_b128 v6, {vr(16 + 4 * j, 4)} offset:{CV_R + 1024 * j}")
    e("s_waitcnt lgkmcnt(0)")
    stamp()
    c("MFMA phase: wave w -> channel w")
    ACC = 16
    AR = [48, 112]
    BR = [80, 144]
    vKT, vR, vA = 200, 201, 202
    e("v_and_b32 v2, 15, v1")
    e("v_lshrrev_b32 v3, 4, v1")
    e("v_lshlrev_b32 v4, 1, v2")
    e("v_lshlrev_b32 v5, 4, v3")
    e("v_sub_u32 v4, v4, v5")
    e(f"v_add_u32 v4, {32 - 14}, v4")
    e("v_and_b32 v5, 1, v2")
    e("v_cmp_eq_u32 vcc, 0, v5")
    e("v_mov_b32 v5, 0")
    e(f"v_mov_b32 v6, {CV_KCPY - 2}")
    e("s_nop 1")
    e("v_cndmask_b32 v5, v5, v6, vcc")
    e("v_add_u32 v4, v4, v5")
    e(f"v_add_u32 v{vKT}, s{sT1}, v4")
    e(f"s_mul_i32 s{sT0}, s{sW}, {CV_RSTR}")
    e("v_lshlrev_b32 v4, 5, v2")
    e("v_lshl_add_u32 v4, v3, 4, v4")
    e(f"v_sub_u32 v4, {CV_R + 4080 - 3584}, v4")
    e(f"v_add_u32 v{vR}, s{sT0}, v4")

    def creads(ci, st):
        d0 = 2 * ci + 1
        for pp in range(4):
            e(f"v_add_u32 v{vA + pp}, {32 * d0 + 1024 * pp}, v{vKT}")
        order = [("B", 0)] + [("A", p) for p in range(8)] + [("B", m) for m in range(1, 8)]
        for kind, x in order:
            if kind == "A":
                p = x
                o = 128 * (p & 1)
                e(f"ds_read2_b32 {vr(AR[st] + 4 * p, 2)}, v{vA + (p >> 1)} offset0:{o} offset1:{o + 1}")
                e(f"ds_read2_b32 {vr(AR[st] + 4 * p + 2, 2)}, v{vA + (p >> 1)} offset0:{o + 2} offset1:{o + 3}")
            else:
                m = x
                e(f"ds_read_b128 {vr(BR[st] + 4 * m, 4)}, v{vR} offset:{32 * d0 + 512 * (7 - m)}")

    creads(0, 0)
    for ci in range(8):
        st = ci & 1
        e("s_waitcnt lgkmcnt(0)")
        if ci < 7:
            creads(ci + 1, st ^ 1)
        for m in range(8):
            for p in range(8 - m):
                cc = "0" if (ci == 0 and m == 0) else vr(ACC + 4 * (m + p), 4)
                e(f"v_mfma_f32_16x16x32_bf16 {vr(ACC + 4 * (m + p), 4)}, {vr(AR[st] + 4 * p, 4)}, "
                  f"{vr(BR[st] + 4 * m, 4)}, {cc}")
    stamp()
    c("epilogue: kv reads, y2 = bf16(bf16(y) + bf16(kv*D)), store y2T")
    e("v_lshlrev_b32 v4, 5, v2")
    e("v_lshl_add_u32 v4, v3, 3, v4")
    e(f"v_sub_u32 v5, {CV_R + 4088 - 3584}, v4")
    e(f"v_add_u32 v5, s{sT0}, v5")
    KVR = 48
    for n in range(8):
        e(f"ds_read_b64 {vr(KVR + 2 * n, 2)}, v5 offset:{512 * (7 - n)}")
    e(f"s_lshl_b32 s{sT1}, s2, 3")
    e(f"s_add_u32 s{sT1}, s{sT1}, s{sW}")
    e(f"s_lshl_b32 s{sT1}, s{sT1}, 12")
    e(f"s_add_u32 s{sT1}, s{sT1}, {WS_Y2}")
    e(f"v_add_u32 v6, s{sT1}, v4")
    e("s_nop 7")
    e("s_waitcnt lgkmcnt(0)")
    for n in range(8):
        a = ACC + 4 * n
        k0, k1 = KVR + 2 * n, KVR + 2 * n + 1
        o = 80 + 2 * n
        e(f"v_cvt_pk_bf16_f32 v8, v{a}, v{a + 1}")
        e(f"v_cvt_pk_bf16_f32 v9, v{a + 2}, v{a + 3}")
        e(f"v_and_b32 v10, 0xffff0000, v{k1}")
        e(f"v_lshlrev_b32 v11, 16, v{k1}")
        e(f"v_and_b32 v12, 0xffff0000, v{k0}")
        e(f"v_lshlrev_b32 v13, 16, v{k0}")
        for t in range(4):
            e(f"v_mul_f32 v{10 + t}, s{sD}, v{10 + t}")
        e("v_cvt_pk_bf16_f32 v10, v10, v11")
        e("v_cvt_pk_bf16_f32 v12, v12, v13")
        e("v_lshlrev_b32 v14, 16, v8")
        e("v_and_b32 v15, 0xffff0000, v8")
        e("v_lshlrev_b32 v11, 16, v10")
        e("v_and_b32 v10, 0xffff0000, v10")
        e("v_add_f32 v14, v14, v11")
        e("v_add_f32 v15, v15, v10")
        e(f"v_cvt_pk_bf16_f32 v{o}, v14, v15")
        e("v_lshlrev_b32 v14, 16, v9")
        e("v_and_b32 v15, 0xffff0000, v9")
        e("v_lshlrev_b32 v13, 16, v12")
        e("v_and_b32 v12, 0xffff0000, v12")
        e("v_add_f32 v14, v14, v13")
        e("v_add_f32 v15, v15, v12")
        e(f"v_cvt_pk_bf16_f32 v{o + 1}, v14, v15")
        e(f"buffer_store_dwordx2 {vr(o, 2)}, v6, {sr(S_WS, 4)}, 0 offen offset:{512 * n}{STC}")
    stamp_flush(S_WS, WS_PROF)
    e("s_branch k1_done")


def kernel1():
    e(".globl k1_kernel")
    e(".p2align 8")
    e(".type k1_kernel,@function")
    e("k1_kernel:")
    e(f"s_cmp_ge_u32 s2, {K1_NCONV + K1_NGEMM}")
    e("s_cbranch_scc1 k1_done")
    load_ptrs()
    e(f"s_cmp_lt_u32 s2, {K1_NCONV}")
    e("s_cbranch_scc1 k1_conv")
    k1_gemm()
    k1_conv()
    e("k1_done:")
    e("s_endpgm")


def kernel0():
    S_X, S_K, S_V, S_SH, S_WS = 44, 48, 52, 56, 60
    sT0, sT1, sONE = 64, 65, 66
    e(".globl k0_kernel")
    e(".p2align 8")
    e(".type k0_kernel,@function")
    e("k0_kernel:")
    e("s_cmp_ge_u32 s2, 256")
    e("s_cbranch_scc1 k0_done")
    load_ptrs()
    e("v_and_b32 v1, 63, v0")
    e("s_cmp_ge_u32 s2, 128")
    e("s_cbranch_scc1 k0_ln")
    c("---- kv tile: rt = id%16 (128 rows), ct = id/16 (64 channels)")
    e("s_waitcnt lgkmcnt(0)")
    stamp(True)
    make_srd(S_K, P_K, 2048 * 1024)
    make_srd(S_V, P_V, 2048 * 1024)
    make_srd(S_SH, P_SH, 4096)
    make_srd(S_WS, P_WS, 0x1000000)
    e("s_and_b32 s3, s2, 15")
    e("s_lshr_b32 s4, s2, 4")
    e("v_lshrrev_b32 v2, 3, v0")
    e("v_and_b32 v3, 7, v0")
    e(f"s_lshl_b32 s{sT0}, s3, 17")
    e(f"s_lshl_b32 s{sT1}, s4, 7")
    e(f"s_add_u32 s{sT0}, s{sT0}, s{sT1}")
    e("v_lshlrev_b32 v4, 12, v2")
    e("v_lshl_add_u32 v4, v3, 4, v4")
    e(f"v_add_u32 v4, s{sT0}, v4")
    e("v_subrev_u32 v5, 3072, v4")
    KD, VD, WD = 16, 44, 60
    for r in range(3):
        e(f"buffer_load_dwordx4 {vr(KD + 4 * r, 4)}, v5, {sr(S_K, 4)}, 0 offen offset:{1024 * r}")
    for r in range(4):
        e(f"buffer_load_dwordx4 {vr(KD + 12 + 4 * r, 4)}, v4, {sr(S_K, 4)}, 0 offen offset:{1024 * r}")
    for r in range(4):
        e(f"buffer_load_dwordx4 {vr(VD + 4 * r, 4)}, v4, {sr(S_V, 4)}, 0 offen offset:{1024 * r}")
    e(f"s_lshl_b32 s{sT1}, s4, 9")
    e("v_lshlrev_b32 v6, 6, v3")
    e(f"v_add_u32 v6, s{sT1}, v6")
    for j in range(4):
        e(f"buffer_load_dwordx4 {vr(WD + 4 * j, 4)}, v6, {sr(S_SH, 4)}, 0 offen offset:{16 * j}")
    c("store base: WS_KV + c*4096 + 2*(2044 - t0), c = ct*64 + cs*8 + cc")
    e(f"s_lshl_b32 s{sT0}, s4, 18")
    e(f"s_add_u32 s{sT0}, s{sT0}, {WS_KV + 4088}")
    e(f"s_lshl_b32 s{sT1}, s3, 8")
    e(f"s_sub_u32 s{sT0}, s{sT0}, s{sT1}")
    e("v_lshlrev_b32 v7, 15, v3")
    e(f"v_add_u32 v7, s{sT0}, v7")
    e("v_lshlrev_b32 v8, 3, v2")
    e("v_sub_u32 v7, v7, v8")
    e("s_waitcnt vmcnt(0)")
    stamp()
    KF, VF, WF = 80, 136, 200
    for cc in range(8):
        for jp in range(2):
            w = WD + 2 * cc + jp
            e(f"v_lshlrev_b32 v{WF + (2 * jp) * 8 + cc}, 16, v{w}")
            e(f"v_and_b32 v{WF + (2 * jp + 1) * 8 + cc}, 0xffff0000, v{w}")
    for i in range(28):
        e(f"v_lshlrev_b32 v{KF + 2 * i}, 16, v{KD + i}")
        e(f"v_and_b32 v{KF + 2 * i + 1}, 0xffff0000, v{KD + i}")
    for i in range(16):
        e(f"v_lshlrev_b32 v{VF + 2 * i}, 16, v{VD + i}")
        e(f"v_and_b32 v{VF + 2 * i + 1}, 0xffff0000, v{VD + i}")
    KV = 168
    for r in range(4):
        for cp in range(4):
            d = KV + 8 * r + 2 * cp
            e(f"v_pk_mul_f32 {vr(d, 2)}, {vr(KF + 8 * r + 2 * cp, 2)}, {vr(WF + 3 * 8 + 2 * cp, 2)}")
            for j in range(1, 4):
                e(f"v_pk_fma_f32 {vr(d, 2)}, {vr(KF + 8 * (r + j) + 2 * cp, 2)}, "
                  f"{vr(WF + (3 - j) * 8 + 2 * cp, 2)}, {vr(d, 2)}")
            e(f"v_pk_mul_f32 {vr(d, 2)}, {vr(d, 2)}, {vr(VF + 8 * r + 2 * cp, 2)}")
    for cc in range(8):
        o = 16 + 2 * cc
        e(f"v_cvt_pk_bf16_f32 v{o}, v{KV + 24 + cc}, v{KV + 16 + cc}")
        e(f"v_cvt_pk_bf16_f32 v{o + 1}, v{KV + 8 + cc}, v{KV + cc}")
        if cc < 1:
            e(f"buffer_store_dwordx2 {vr(o, 2)}, v7, {sr(S_WS, 4)}, 0 offen{STC}")
        else:
            e(f"s_mov_b32 s{sT1}, {cc * 4096}")
            e(f"buffer_store_dwordx2 {vr(o, 2)}, v7, {sr(S_WS, 4)}, s{sT1} offen{STC}")
    stamp_flush(S_WS, WS_PROF + 0x100000)
    e("s_branch k0_done")
    e("k0_ln:")
    e("s_waitcnt lgkmcnt(0)")
    stamp(True)
    make_srd(S_X, P_Q, 2048 * 1024)
    make_srd(S_WS, P_WS, 0x1000000)
    e("s_sub_u32 s3, s2, 128")
    e("v_lshrrev_b32 v2, 4, v0")
    e("v_lshl_add_u32 v2, s3, 4, v2")
    e("v_and_b32 v3, 15, v0")
    e("v_lshlrev_b32 v4, 10, v2")
    e("v_lshl_add_u32 v4, v3, 4, v4")
    XD = 16
    for i in range(4):
        e(f"buffer_load_dwordx4 {vr(XD + 4 * i, 4)}, v4, {sr(S_X, 4)}, 0 offen offset:{256 * i}")
    e(f"s_mov_b32 s{sONE}, 0x3f803f80")
    T = 40
    for r in range(4):
        e(f"v_mov_b32 v{T + r}, 0")
    e(f"v_add_u32 v5, {WS_XN}, v4")
    e("s_waitcnt vmcnt(0)")
    stamp()
    for i in range(16):
        e(f"v_dot2c_f32_bf16 v{T + (i & 1)}, s{sONE}, v{XD + i}")
        e(f"v_dot2c_f32_bf16 v{T + 2 + (i & 1)}, v{XD + i}, v{XD + i}")
    e("s_nop 3")
    e(f"v_add_f32 v{T}, v{T}, v{T + 1}")
    e(f"v_add_f32 v{T + 2}, v{T + 2}, v{T + 3}")
    for sh in (8, 4, 2, 1):
        e("s_nop 1")
        e(f"v_add_f32_dpp v{T}, v{T}, v{T} row_ror:{sh} row_mask:0xf bank_mask:0xf")
        e(f"v_add_f32_dpp v{T + 2}, v{T + 2}, v{T + 2} row_ror:{sh} row_mask:0xf bank_mask:0xf")
    e(f"v_mul_f32 v{T}, 0x3b000000, v{T}")
    e(f"v_mul_f32 v{T + 2}, 0x3b000000, v{T + 2}")
    e(f"v_fma_f32 v{T + 2}, -v{T}, v{T}, v{T + 2}")
    e(f"v_max_f32 v{T + 2}, 0, v{T + 2}")
    e(f"v_cvt_pk_bf16_f32 v{T + 1}, v{T}, v{T + 2}")
    e(f"v_lshlrev_b32 v{T + 4}, 16, v{T + 1}")
    e(f"v_and_b32 v{T + 2}, 0xffff0000, v{T + 1}")
    e(f"v_add_f32 v{T + 2}, 0x3727c5ac, v{T + 2}")
    e(f"v_cvt_pk_bf16_f32 v{T + 2}, v{T + 2}, v{T + 2}")
    e(f"v_and_b32 v{T + 2}, 0xffff0000, v{T + 2}")
    e(f"v_sqrt_f32 v{T + 2}, v{T + 2}")
    e("s_nop 0")
    e(f"v_cvt_pk_bf16_f32 v{T + 2}, v{T + 2}, v{T + 2}")
    e(f"v_and_b32 v{T + 2}, 0xffff0000, v{T + 2}")
    e(f"v_rcp_f32 v{T + 5}, v{T + 2}")
    e("s_nop 0")
    for i in range(4):
        for d in range(4):
            x = XD + 4 * i + d
            e(f"v_lshlrev_b32 v50, 16, v{x}")
            e(f"v_and_b32 v51, 0xffff0000, v{x}")
            e(f"v_sub_f32 v50, v50, v{T + 4}")
            e(f"v_sub_f32 v51, v51, v{T + 4}")
            e("v_cvt_pk_bf16_f32 v50, v50, v51")
            e("v_lshlrev_b32 v52, 16, v50")
            e("v_and_b32 v53, 0xffff0000, v50")
            e(f"v_mul_f32 v52, v52, v{T + 5}")
            e(f"v_mul_f32 v53, v53, v{T + 5}")
            e(f"v_cvt_pk_bf16_f32 v{x}, v52, v53")
        e(f"buffer_store_dwordx4 {vr(XD + 4 * i, 4)}, v5, {sr(S_WS, 4)}, 0 offen offset:{256 * i}{STC}")
    stamp_flush(S_WS, WS_PROF + 0x100000)
    e("k0_done:")
    e("s_endpgm")


K2_NST = 4
K2_WREG = K2_NST * 8192 + 2048
K2_LDS = 4 * K2_WREG
K2_STEPS = 11
import os
K2ROT_A = int(os.environ.get('K2ROT_A', '4'))
K2ROT_B = int(os.environ.get('K2ROT_B', '3'))


def kernel2():
    S_H, S_WD, S_X, S_WS, S_OUT = 44, 48, 52, 56, 60
    sW, sT0, sT1, sMT, sNT, sKA, sKB, sLB = 64, 65, 66, 67, 68, 69, 70, 71
    ACC = 112
    FR = 176
    vDA, vDB, vB0, vB1, vAr, vOut = 8, 9, 10, 11, 12, 13
    XR = 96
    NR = 104
    e(".globl k2_kernel")
    e(".p2align 8")
    e(".type k2_kernel,@function")
    e("k2_kernel:")
    e("s_cmp_ge_u32 s2, 256")
    e("s_cbranch_scc1 k2_done")
    load_ptrs()
    e("v_lshrrev_b32 v2, 6, v0")
    e("v_and_b32 v1, 63, v0")
    e(f"v_readfirstlane_b32 s{sW}, v2")
    e(f"s_and_b32 s{sMT}, s2, 31")
    e(f"s_lshr_b32 s{sNT}, s2, 5")
    e("s_waitcnt lgkmcnt(0)")
    stamp(True)
    make_srd(S_H, P_WS, WS_H_BYTES)
    make_srd(S_WD, P_WD, 1376 * 1024)
    make_srd(S_X, P_Q, 2048 * 1024)
    make_srd(S_WS, P_WS, 0x1000000)
    make_srd(S_OUT, P_OUT, 2048 * 1024)
    e(f"s_mul_i32 s{sT0}, s{sW}, {K2_STEPS}")
    e(f"s_lshl_b32 s{sKA}, s{sT0}, 6")
    e(f"s_mul_i32 s{sT1}, s{sMT}, {64 * 2752}")
    e(f"s_add_u32 s{sKA}, s{sKA}, s{sT1}")
    e(f"s_lshl_b32 s{sKB}, s{sT0}, 15")
    e(f"s_lshl_b32 s{sT1}, s{sNT}, 7")
    e(f"s_add_u32 s{sKB}, s{sKB}, s{sT1}")
    e(f"s_mul_i32 s{sLB}, s{sW}, {K2_WREG}")
    e("v_and_b32 v2, 31, v1")
    e("v_lshrrev_b32 v3, 5, v1")
    c("A DMA lane offsets: row = l/4, src chunk = (l%4) ^ ((l/16)&3)")
    e("v_lshrrev_b32 v4, 2, v1")
    e("v_mul_u32_u24 v4, 2752, v4")
    e("v_and_b32 v5, 3, v1")
    e("v_lshrrev_b32 v6, 4, v1")
    e("v_xor_b32 v5, v5, v6")
    e(f"v_lshl_add_u32 v{vDA}, v5, 4, v4")
    c("B DMA lane offsets: row = l/8, chunk' = l%8; global chunk = chunk' ^ (((row>>1)&1)<<2)")
    e("v_lshrrev_b32 v4, 3, v1")
    e("v_and_b32 v5, 7, v1")
    e("v_lshrrev_b32 v6, 1, v4")
    e("v_and_b32 v6, 1, v6")
    e("v_lshlrev_b32 v6, 2, v6")
    e("v_xor_b32 v5, v5, v6")
    e("v_lshlrev_b32 v5, 4, v5")
    e(f"v_lshl_add_u32 v{vDB}, v4, 10, v5")

    c("K rotation: rot = (nt*K2ROT_A + (mt>>3)*K2ROT_B) mod 11 ; s73 = current step index")
    e(f"s_mul_i32 s73, s{sNT}, {K2ROT_A}")
    e(f"s_lshr_b32 s74, s{sMT}, 3")
    e(f"s_mul_i32 s74, s74, {K2ROT_B}")
    e("s_add_u32 s73, s73, s74")
    for _ in range(4):
        e("s_cmp_ge_u32 s73, 11")
        e("s_cselect_b32 s74, 11, 0")
        e("s_sub_u32 s73, s73, s74")
    e("s_mov_b32 s75, s73")

    def issue_step(i):
        st = i % K2_NST
        e("s_lshl_b32 s76, s73, 6")
        e(f"s_add_u32 s76, s76, s{sKA}")
        e("s_lshl_b32 s77, s73, 15")
        e(f"s_add_u32 s77, s77, s{sKB}")
        for j in range(4):
            e(f"s_add_u32 m0, s{sLB}, {st * 8192 + j * 1024}")
            e(f"s_add_u32 s{sT0}, s76, {16 * j * 2752}")
            e(f"buffer_load_dwordx4 v{vDA}, {sr(S_H, 4)}, s{sT0} offen lds")
        for j in range(4):
            e(f"s_add_u32 m0, s{sLB}, {st * 8192 + 4096 + j * 1024}")
            e(f"s_add_u32 s{sT0}, s77, {8 * j * 1024}")
            e(f"buffer_load_dwordx4 v{vDB}, {sr(S_WD, 4)}, s{sT0} offen lds")
        e("s_add_u32 s73, s73, 1")
        e("s_cmp_ge_u32 s73, 11")
        e("s_cselect_b32 s73, 0, s73")

    for i in range(K2_NST):
        issue_step(i)
    c("epilogue operand loads: tile (mi = w/2, ni = w%2)")
    e(f"s_lshr_b32 s{sT0}, s{sW}, 1")
    e(f"s_lshl_b32 s{sT0}, s{sT0}, 5")
    e(f"s_lshl_b32 s{sT1}, s{sMT}, 6")
    e(f"s_add_u32 s{sT0}, s{sT0}, s{sT1}")
    e(f"v_add_u32 v4, s{sT0}, v2")
    e(f"s_and_b32 s{sT1}, s{sW}, 1")
    e(f"s_lshl_b32 s{sT1}, s{sT1}, 6")
    e(f"s_lshl_b32 s72, s{sNT}, 7")
    e(f"s_add_u32 s{sT1}, s{sT1}, s72")
    e("v_lshlrev_b32 v5, 10, v4")
    e(f"v_add_u32 v5, s{sT1}, v5")
    e(f"v_lshl_add_u32 v{vOut}, v3, 4, v5")
    e("v_lshl_add_u32 v5, v3, 3, v5")
    for q in range(4):
        e(f"buffer_load_dwordx2 {vr(XR + 2 * q, 2)}, v5, {sr(S_X, 4)}, 0 offen offset:{16 * q}")
    e(f"s_mov_b32 s72, {WS_XN}")
    for q in range(4):
        e(f"buffer_load_dwordx2 {vr(NR + 2 * q, 2)}, v5, {sr(S_WS, 4)}, s72 offen offset:{16 * q}")
    c("y2T tile staging: [32 ch][64 B]; lane: ch = l/4 (+16j), chunk = l%4")
    e(f"s_lshr_b32 s{sT1}, s{sT1}, 1")
    e(f"s_lshl_b32 s{sT1}, s{sT1}, 12")
    e(f"s_lshl_b32 s{sT0}, s{sT0}, 1")
    e(f"s_add_u32 s{sT1}, s{sT1}, s{sT0}")
    e(f"s_add_u32 s{sT1}, s{sT1}, {WS_Y2}")
    e("v_lshrrev_b32 v5, 2, v1")
    e("v_lshlrev_b32 v5, 12, v5")
    e("v_and_b32 v6, 3, v1")
    e("v_lshl_add_u32 v5, v6, 4, v5")
    for j in range(2):
        e(f"s_add_u32 m0, s{sLB}, {K2_NST * 8192 + j * 1024}")
        e(f"s_add_u32 s{sT0}, s{sT1}, {j * 16 * 4096}")
        e(f"buffer_load_dwordx4 v5, {sr(S_WS, 4)}, s{sT0} offen lds")
    NEPI = 4 + 4 + 2
    c("B tr-read lane addresses")
    e("v_and_b32 v4, 15, v1")
    e("v_lshrrev_b32 v5, 2, v4")
    e("v_lshl_add_u32 v6, v3, 4, v5")
    e("v_lshlrev_b32 v6, 7, v6")
    e("v_lshrrev_b32 v7, 4, v1")
    e("v_and_b32 v7, 1, v7")
    e("v_lshl_add_u32 v6, v7, 5, v6")
    e("v_and_b32 v7, 3, v4")
    e("v_lshl_add_u32 v6, v7, 3, v6")
    e(f"v_add_u32 v6, s{sLB}, v6")
    e("v_lshrrev_b32 v7, 3, v4")
    e(f"v_lshl_add_u32 v{vB0}, v7, 6, v6")
    e("v_xor_b32 v7, 1, v7")
    e(f"v_lshl_add_u32 v{vB1}, v7, 6, v6")
    c("A read address: r*64 + ((2g+s) ^ ((r>>2)&3))*16 ; s via xor 16")
    e("v_lshrrev_b32 v4, 2, v2")
    e("v_and_b32 v4, 3, v4")
    e("v_lshlrev_b32 v5, 1, v3")
    e("v_xor_b32 v4, v4, v5")
    e("v_lshlrev_b32 v4, 4, v4")
    e("v_lshl_add_u32 v4, v2, 6, v4")
    e(f"v_add_u32 v{vAr}, s{sLB}, v4")
    e(f"v_xor_b32 v14, 16, v{vAr}")

    def freads(i, bs):
        st = i % K2_NST
        for s in range(2):
            for mi in range(2):
                e(f"ds_read_b128 {vr(FR + 32 * bs + 8 * mi + 4 * s, 4)}, v{14 if s else vAr} "
                  f"offset:{st * 8192 + mi * 2048}")
        for s in range(2):
            for ni in range(2):
                for u in range(2):
                    e(f"ds_read_b64_tr_b16 {vr(FR + 32 * bs + 16 + 8 * s + 4 * ni + 2 * u, 2)}, v{vB1 if ni else vB0} "
                      f"offset:{st * 8192 + 4096 + (8 * s + 4 * u) * 128}")

    issued = [("step", i) for i in range(K2_NST)] + [("epi", 0)]

    def wait_for_step(i):
        n = 0
        seen = False
        for kind, x in issued:
            if seen:
                n += 8 if kind == "step" else NEPI
            if kind == "step" and x == i:
                seen = True
        e(f"s_waitcnt vmcnt({min(n, 63)})")

    for r in range(64):
        e(f"v_mov_b32 v{ACC + r}, 0")
    stamp()
    wait_for_step(0)
    stamp()
    freads(0, 0)
    for i in range(K2_STEPS):
        bs = i & 1
        e("s_waitcnt lgkmcnt(0)")
        if i + K2_NST < K2_STEPS:
            issue_step(i + K2_NST)
            issued.append(("step", i + K2_NST))
        if i + 1 < K2_STEPS:
            wait_for_step(i + 1)
            freads(i + 1, bs ^ 1)
        stamp()
        e(f"s_add_u32 s74, s75, s{sW}")
        e("s_add_u32 s75, s75, 1")
        e("s_cmp_ge_u32 s75, 11")
        e("s_cselect_b32 s75, 0, s75")
        e("s_cmp_eq_u32 s74, 13")
        e(f"s_cbranch_scc1 k2_skip{i}")
        for s in range(2):
            for mi in range(2):
                for ni in range(2):
                    a = ACC + 16 * (2 * mi + ni)
                    e(f"v_mfma_f32_32x32x16_bf16 {vr(a, 16)}, {vr(FR + 32 * bs + 16 + 8 * s + 4 * ni, 4)}, "
                      f"{vr(FR + 32 * bs + 8 * mi + 4 * s, 4)}, {vr(a, 16)}")
        e(f"k2_skip{i}:")
    e("s_nop 15")
    e("s_nop 3")
    stamp()
    c("write non-owned partial tiles to own LDS ring region")
    e("v_lshlrev_b32 v4, 4, v1")
    e(f"v_add_u32 v4, s{sLB}, v4")
    for t in range(4):
        e(f"s_cmp_eq_u32 s{sW}, {t}")
        e(f"s_cbranch_scc1 k2_skipw{t}")
        for q in range(4):
            e(f"ds_write_b128 v4, {vr(ACC + 16 * t + 4 * q, 4)} offset:{t * 4096 + q * 1024}")
        e(f"k2_skipw{t}:")
    e("s_waitcnt lgkmcnt(0)")
    e("s_barrier")
    stamp()
    c("owner gathers: tile w from the other 3 waves; move own tile to v[16:31]")
    for t in range(4):
        e(f"s_cmp_lg_u32 s{sW}, {t}")
        e(f"s_cbranch_scc1 k2_skipm{t}")
        for r in range(16):
            e(f"v_mov_b32 v{16 + r}, v{ACC + 16 * t + r}")
        e(f"k2_skipm{t}:")
    e(f"s_lshl_b32 s{sT0}, s{sW}, 12")
    e("v_lshlrev_b32 v4, 4, v1")
    e(f"v_add_u32 v4, s{sT0}, v4")
    for k in range(1, 4):
        e(f"s_add_u32 s{sT1}, s{sW}, {k}")
        e(f"s_and_b32 s{sT1}, s{sT1}, 3")
        e(f"s_mul_i32 s{sT1}, s{sT1}, {K2_WREG}")
        e(f"v_add_u32 v5, s{sT1}, v4")
        for q in range(4):
            e(f"ds_read_b128 {vr(32 + 16 * (k - 1) + 4 * q, 4)}, v5 offset:{q * 1024}")
    c("y2 tr reads: c0 = 8q + 4g")
    e("v_and_b32 v4, 15, v1")
    e("v_lshrrev_b32 v5, 2, v4")
    e("v_lshl_add_u32 v5, v3, 2, v5")
    e("v_lshlrev_b32 v5, 6, v5")
    e("v_lshrrev_b32 v6, 4, v1")
    e("v_and_b32 v6, 1, v6")
    e("v_lshl_add_u32 v5, v6, 5, v5")
    e("v_and_b32 v6, 3, v4")
    e("v_lshl_add_u32 v5, v6, 3, v5")
    e(f"v_add_u32 v5, s{sLB}, v5")
    e("s_waitcnt vmcnt(0)")
    YR = 80
    for q in range(4):
        e(f"ds_read_b64_tr_b16 {vr(YR + 2 * q, 2)}, v5 offset:{K2_NST * 8192 + q * 512}")
    e("s_waitcnt lgkmcnt(0)")
    for r in range(16):
        e(f"v_add_f32 v{16 + r}, v{16 + r}, v{32 + r}")
        e(f"v_add_f32 v{48 + r}, v{48 + r}, v{64 + r}")
    for r in range(16):
        e(f"v_add_f32 v{16 + r}, v{16 + r}, v{48 + r}")
    OUTR = 88
    for q in range(4):
        for h2 in range(2):
            x = XR + 2 * q + h2
            n = NR + 2 * q + h2
            y = YR + 2 * q + h2
            b = 16 + 4 * q + 2 * h2
            e(f"v_lshlrev_b32 v4, 16, v{x}")
            e(f"v_and_b32 v5, 0xffff0000, v{x}")
            e(f"v_lshlrev_b32 v7, 16, v{n}")
            e(f"v_and_b32 v6, 0xffff0000, v{n}")
            e(f"v_lshlrev_b32 v32, 16, v{y}")
            e(f"v_and_b32 v33, 0xffff0000, v{y}")
            e("v_mul_f32 v7, v7, v32")
            e("v_mul_f32 v6, v6, v33")
            e("v_cvt_pk_bf16_f32 v6, v7, v6")
            e("v_lshlrev_b32 v7, 16, v6")
            e("v_and_b32 v6, 0xffff0000, v6")
            e("v_add_f32 v7, v4, v7")
            e("v_add_f32 v6, v5, v6")
            e("v_cvt_pk_bf16_f32 v6, v7, v6")
            e(f"v_cvt_pk_bf16_f32 v32, v{b}, v{b + 1}")
            e("v_lshlrev_b32 v7, 16, v6")
            e("v_and_b32 v6, 0xffff0000, v6")
            e("v_lshlrev_b32 v33, 16, v32")
            e("v_and_b32 v32, 0xffff0000, v32")
            e("v_add_f32 v7, v7, v33")
            e("v_add_f32 v6, v6, v32")
            e(f"v_cvt_pk_bf16_f32 v{OUTR + 2 * q + h2}, v7, v6")
    e("s_nop 1")
    for qq in range(2):
        o = OUTR + 4 * qq
        e(f"v_permlane32_swap_b32 v{o}, v{o + 2}")
        e(f"v_permlane32_swap_b32 v{o + 1}, v{o + 3}")
        e(f"buffer_store_dwordx4 {vr(o, 4)}, v{vOut}, {sr(S_OUT, 4)}, 0 offen offset:{32 * qq}")
    stamp_flush(S_WS, WS_PROF + 0x80000)
    e("k2_done:")
    e("s_endpgm")


def descriptor(name, nv):
    L.append(".p2align 6")
    L.append(f".amdhsa_kernel {name}")
    L.append(f"  .amdhsa_next_free_vgpr {nv}")
    L.append("  .amdhsa_next_free_sgpr 102")
    L.append(f"  .amdhsa_accum_offset {nv}")
    L.append("  .amdhsa_group_segment_fixed_size 0")
    L.append("  .amdhsa_kernarg_size 104")
    L.append("  .amdhsa_user_sgpr_count 2")
    L.append("  .amdhsa_user_sgpr_kernarg_segment_ptr 1")
    L.append("  .amdhsa_system_sgpr_workgroup_id_x 1")
    L.append(".end_amdhsa_kernel")


def main():
    hdr = open(f"cdna_kernels/{NAME}.s.ref").read().split("\n")
    for line in hdr:
        if line.startswith("; Override") or line.startswith("; grid=") or "@launch" in line:
            continue
        if not line.startswith(";"):
            break
        L.append(line)
    L.append(f"; @launch kernel=k1_kernel grid=({K1_NCONV + K1_NGEMM},1,1) block=(512,1,1) lds=163840")
    L.append(f"; @launch kernel=k2_kernel grid=(256,1,1) block=(256,1,1) lds={K2_LDS}")
    L.append('.amdgcn_target "amdgcn-amd-amdhsa--gfx950"')
    L.append(".text")
    kernel1()
    kernel2()
    L.append('.section .rodata,"a"')
    descriptor("k1_kernel", 256)
    descriptor("k2_kernel", 256)
    out = sys.argv[1] if len(sys.argv) > 1 else f"cdna_kernels/{NAME}.s"
    open(out, "w").write("\n".join(L) + "\n")


if __name__ == "__main__":
    main()
```

```python
import sys

NAME = "parallel_sum__ssm_conv_h3__glu_gated_bilinear__prompt"

WS_H = 0
HP = 2816
WS_H_BYTES = 2048 * HP
WS_Y2 = 0x600000
WS_ST = 0x800000
WS_XN = 0xA00000
WS_KV = 0xC00000

import os
K1MAP = int(os.environ.get('K1MAP', '1'))
WBL2 = int(os.environ.get('WBL2', '0'))
STC = os.environ.get('STC', '' if WBL2 else ' sc1')
PREF = int(os.environ.get('PREF', '1'))
PREF2 = int(os.environ.get('PREF2', '1'))
PREF3 = int(os.environ.get('PREF3', '1'))
KV16 = int(os.environ.get('KV16', '0'))
L = []


def e(s=""):
    L.append("    " + s if s and not s.endswith(":") else s)


def c(s):
    L.append("    ; " + s)


PROF = len(sys.argv) > 2 and sys.argv[2] == "prof"
WS_PROF = 0xE00000
_stamp = [0]


def stamp(reset=False):
    if not PROF:
        return
    if reset:
        _stamp[0] = 0
        e("s_memrealtime s[98:99]")
        e("s_waitcnt lgkmcnt(0)")
        e("v_writelane_b32 v255, s98, 63")
    e("s_memtime s[98:99]")
    e("s_waitcnt lgkmcnt(0)")
    e(f"v_writelane_b32 v255, s98, {_stamp[0]}")
    _stamp[0] += 1


def stamp_flush(srd, base):
    if not PROF:
        return
    stamp()
    e("s_memrealtime s[98:99]")
    e("s_waitcnt lgkmcnt(0)")
    e("v_writelane_b32 v255, s98, 62")
    e("v_lshrrev_b32 v253, 6, v0")
    e("v_lshl_add_u32 v253, s2, 3, v253")
    e("v_lshlrev_b32 v253, 8, v253")
    e("v_and_b32 v254, 63, v0")
    e("v_lshl_add_u32 v253, v254, 2, v253")
    e(f"v_add_u32 v253, {base}, v253")
    e(f"buffer_store_dword v255, v253, {sr(srd, 4)}, 0 offen")


def vr(a, n=1):
    return f"v{a}" if n == 1 else f"v[{a}:{a + n - 1}]"


def sr(a, n=1):
    return f"s{a}" if n == 1 else f"s[{a}:{a + n - 1}]"


def make_srd(d, ptr, nbytes):
    e(f"s_mov_b32 s{d}, s{ptr}")
    e(f"s_and_b32 s{d + 1}, s{ptr + 1}, 0xffff")
    e(f"s_mov_b32 s{d + 2}, {nbytes}")
    e(f"s_mov_b32 s{d + 3}, 0x00020000")


P_Q, P_K, P_V, P_SH, P_SK, P_SD, P_BX, P_WG = 16, 18, 20, 22, 24, 26, 28, 30
P_WU, P_WD, P_OUT, P_DBG, P_WS = 32, 34, 36, 38, 40


def load_ptrs():
    e("s_load_dwordx16 s[16:31], s[0:1], 0")
    e("s_load_dwordx8 s[32:39], s[0:1], 64")
    e("s_load_dwordx2 s[40:41], s[0:1], 96")


S_DB2 = 84
_lbl = [0]


def signal(sW, sOff):
    _lbl[0] += 1
    n = _lbl[0]
    e(f"s_cmp_lg_u32 s{sW}, 0")
    e(f"s_cbranch_scc1 sig_skip{n}")
    make_srd(S_DB2, P_DBG, 256)
    if WBL2:
        e("buffer_wbl2 sc1")
        e("s_waitcnt vmcnt(0)")
    e(f"v_mov_b32 v12, s{sOff}")
    e("v_mov_b32 v13, 1")
    e("v_and_b32 v14, 63, v0")
    e("v_cmp_eq_u32 vcc, 0, v14")
    e("s_and_saveexec_b64 s[70:71], vcc")
    e(f"buffer_atomic_add v13, v12, {sr(S_DB2, 4)}, 0 offen")
    e("s_mov_b64 exec, s[70:71]")
    e(f"sig_skip{n}:")


def poll(sOff, target):
    _lbl[0] += 1
    n = _lbl[0]
    e(f"v_mov_b32 v15, s{sOff}")
    e("s_mov_b32 s80, 0")
    e(f"poll{n}:")
    e(f"buffer_load_dword v14, v15, {sr(S_DB2, 4)}, 0 offen sc1")
    e("s_waitcnt vmcnt(0)")
    e("v_readfirstlane_b32 s81, v14")
    e("s_add_u32 s80, s80, 1")
    e(f"s_cmp_ge_u32 s81, {target}")
    e(f"s_cbranch_scc1 polled{n}")
    e("s_sleep 1")
    e("s_cmp_lt_u32 s80, 0x40000")
    e(f"s_cbranch_scc1 poll{n}")
    e(f"polled{n}:")


K1_NCONV = 64
K1_NGEMM = 176
K1_BUF = [131072, 0, 32768, 65536, 98304]


K1_STG = 49152
K1_EX = 147456


def k1_gemm():
    S_X, S_WG, S_WU, S_WS = 44, 48, 52, 56
    sMT, sNT, sW, sT0, sT1, sW0, sMW, sROW = 60, 61, 62, 63, 64, 65, 66, 67
    AF = 16
    CD = 24
    ACC = 144
    BF = 208
    vDMA, vB0, vB1, vBc0, vBc1, vHoff = 240, 241, 242, 243, 244, 245
    CS, SX, SQ = 246, 250, 252
    vXD, vA0, vAc, vC0, vCc = 40, 41, 42, 43, 44
    e("k1_gemm:")
    e("s_sub_u32 s3, s2, %d" % K1_NCONV)
    if K1MAP:
        c("k = 22*(t%8) + t/8 ; mh = k/88 ; rem = k%88 ; nt = rem/8 ; mt = mh*8 + rem%8")
        e("s_and_b32 s4, s3, 7")
        e("s_mul_i32 s4, s4, 22")
        e("s_lshr_b32 s5, s3, 3")
        e("s_add_u32 s4, s4, s5")
        e("s_cmp_ge_u32 s4, 88")
        e("s_cselect_b32 s5, 88, 0")
        e(f"s_cselect_b32 s{sMT}, 8, 0")
        e("s_sub_u32 s4, s4, s5")
        e(f"s_lshr_b32 s{sNT}, s4, 3")
        e("s_and_b32 s4, s4, 7")
        e(f"s_add_u32 s{sMT}, s{sMT}, s4")
    else:
        e("s_and_b32 s4, s3, 7")
        e("s_lshr_b32 s5, s3, 3")
        e(f"s_lshr_b32 s{sNT}, s5, 1")
        e("s_and_b32 s5, s5, 1")
        e(f"s_lshl_b32 s{sMT}, s4, 1")
        e(f"s_add_u32 s{sMT}, s{sMT}, s5")
    e("v_lshrrev_b32 v2, 6, v0")
    e("v_and_b32 v1, 63, v0")
    e(f"v_readfirstlane_b32 s{sW}, v2")
    c("x DMA lane offset: row = l>>3, src chunk = (l&7) ^ (row&7)")
    e("v_lshrrev_b32 v2, 3, v1")
    e("v_and_b32 v3, 7, v1")
    e("v_xor_b32 v3, v3, v2")
    e("v_lshlrev_b32 v3, 4, v3")
    e(f"v_lshl_add_u32 v{vXD}, v2, 10, v3")
    c("W DMA lane offsets")
    e("v_lshrrev_b32 v12, 4, v1")
    e("v_and_b32 v13, 15, v1")
    e("v_lshlrev_b32 v14, 2, v12")
    e("v_xor_b32 v13, v13, v14")
    e("v_lshlrev_b32 v13, 4, v13")
    e("v_mul_u32_u24 v14, 2752, v12")
    e(f"v_add_u32 v{vDMA}, v13, v14")
    e(f"s_mul_i32 s{sW0}, s{sW}, {8 * 2752}")
    e(f"s_lshl_b32 s{sT0}, s{sNT}, 8")
    e(f"s_add_u32 s{sW0}, s{sW0}, s{sT0}")
    e(f"s_lshl_b32 s{sMW}, s{sW}, 11")
    e(f"s_lshl_b32 s{sROW}, s{sMT}, 17")
    e(f"s_lshl_b32 s{sT0}, s{sW}, 14")
    e(f"s_add_u32 s{sROW}, s{sROW}, s{sT0}")
    e("s_waitcnt lgkmcnt(0)")
    stamp(True)
    make_srd(S_X, P_Q, 2048 * 1024)
    make_srd(S_WG, P_WG, 512 * 2752)
    make_srd(S_WU, P_WU, 512 * 2752)
    make_srd(S_WS, P_WS, 0x1000000)

    def dma_slab(s):
        base = K1_STG * (s % 3)
        for j in range(2):
            e(f"s_add_u32 m0, s{sMW}, {base + 32768 + j * 1024}")
            e(f"s_add_u32 s{sT0}, s{sROW}, {j * 8192 + s * 128}")
            e(f"buffer_load_dwordx4 v{vXD}, {sr(S_X, 4)}, s{sT0} offen lds")
        for part in range(2):
            for j in range(2):
                e(f"s_add_u32 m0, s{sMW}, {base + part * 16384 + j * 1024}")
                e(f"s_add_u32 s{sT0}, s{sW0}, {(64 * s + 4 * j) * 2752}")
                e(f"buffer_load_dwordx4 v{vDMA}, {sr(S_WU if part else S_WG, 4)}, s{sT0} offen lds")

    for s in range(3):
        dma_slab(s)
    NPF = 0
    if PREF:
        c("L2 prefetch: W rows k = (mt%8)*64 + w*8 + (l/16)*2 + {0,1} of both W tiles; x K-slabs 3..7")
        e(f"s_and_b32 s{sT0}, s{sMT}, 7")
        e(f"s_lshl_b32 s{sT0}, s{sT0}, 6")
        e(f"s_lshl_b32 s{sT1}, s{sW}, 3")
        e(f"s_add_u32 s{sT0}, s{sT0}, s{sT1}")
        e(f"s_mul_i32 s{sT0}, s{sT0}, 2752")
        e(f"s_lshl_b32 s{sT1}, s{sNT}, 8")
        e(f"s_add_u32 s{sT0}, s{sT0}, s{sT1}")
        e("v_lshrrev_b32 v12, 4, v1")
        e(f"v_mul_u32_u24 v12, {2 * 2752}, v12")
        e("v_and_b32 v13, 15, v1")
        e("v_lshl_add_u32 v12, v13, 4, v12")
        e(f"buffer_load_dwordx4 v[48:51], v12, {sr(S_WG, 4)}, s{sT0} offen")
        e(f"buffer_load_dwordx4 v[52:55], v12, {sr(S_WG, 4)}, s{sT0} offen offset:2752")
        e(f"buffer_load_dwordx4 v[56:59], v12, {sr(S_WU, 4)}, s{sT0} offen")
        e(f"buffer_load_dwordx4 v[60:63], v12, {sr(S_WU, 4)}, s{sT0} offen offset:2752")
        NPF = 4
        if PREF > 1:
            for sl in range(3, 8):
                for j in range(2):
                    e(f"s_add_u32 s{sT0}, s{sROW}, {j * 8192 + sl * 128}")
                    e(f"buffer_load_dwordx4 {vr(64 + 4 * (2 * sl + j - 6), 4)}, v{vXD}, {sr(S_X, 4)}, s{sT0} offen")
            NPF += 10
    for r in range(8):
        e(f"v_mov_b32 v{CS + r}, 0")
    c("A frag read address: 32768 + r*128 + ((2kk+g) ^ (r&7))*16 ; r = (w%4)*32 + l%32 ; kk via xor kk<<5")
    e(f"s_and_b32 s{sT0}, s{sW}, 3")
    e(f"s_lshl_b32 s{sT0}, s{sT0}, 5")
    e("v_and_b32 v2, 31, v1")
    e(f"v_add_u32 v6, s{sT0}, v2")
    e("v_and_b32 v7, 7, v2")
    e("v_lshrrev_b32 v8, 5, v1")
    e("v_xor_b32 v7, v7, v8")
    e("v_lshlrev_b32 v7, 4, v7")
    e("v_lshl_add_u32 v7, v6, 7, v7")
    e(f"v_add_u32 v{vA0}, 32768, v7")
    c("h store offset: (mt*128 + (w%4)*32 + l/8)*HP + nt*256 + nh*128 + (l%8)*16")
    e(f"s_lshl_b32 s{sT1}, s{sMT}, 7")
    e(f"s_add_u32 s{sT1}, s{sT1}, s{sT0}")
    e("v_lshrrev_b32 v6, 3, v1")
    e(f"v_add_u32 v6, s{sT1}, v6")
    e(f"v_mov_b32 v7, {HP}")
    e("v_mul_lo_u32 v6, v6, v7")
    e(f"s_lshr_b32 s{sT0}, s{sW}, 2")
    e(f"s_lshl_b32 s{sT0}, s{sT0}, 7")
    e(f"s_lshl_b32 s{sT1}, s{sNT}, 8")
    e(f"s_add_u32 s{sT0}, s{sT0}, s{sT1}")
    e(f"v_add_u32 v6, s{sT0}, v6")
    e("v_and_b32 v8, 7, v1")
    e(f"v_lshl_add_u32 v{vHoff}, v8, 4, v6")
    c("B tr-read lane addresses for tiles T0=2nh, T1=2nh+1")
    e("v_and_b32 v2, 15, v1")
    e("v_lshrrev_b32 v6, 2, v2")
    e("v_lshrrev_b32 v7, 5, v1")
    e("v_lshl_add_u32 v7, v7, 3, v6")
    e("v_lshlrev_b32 v7, 8, v7")
    e("v_lshrrev_b32 v8, 4, v1")
    e("v_and_b32 v8, 1, v8")
    e("v_lshlrev_b32 v8, 5, v8")
    e("v_add_u32 v7, v7, v8")
    e("v_and_b32 v8, 3, v2")
    e("v_lshlrev_b32 v8, 3, v8")
    e("v_add_u32 v7, v7, v8")
    e(f"s_lshr_b32 s{sT0}, s{sW}, 2")
    e(f"s_lshl_b32 s{sT0}, s{sT0}, 1")
    e(f"v_xor_b32 v8, s{sT0}, v6")
    e(f"v_lshl_add_u32 v{vB0}, v8, 6, v7")
    e("v_xor_b32 v8, 1, v8")
    e(f"v_lshl_add_u32 v{vB1}, v8, 6, v7")
    c("cs lane base (waves 4-7): part*16384 + (l>>3)*256 + (((8hf + (l&7)) ^ (4*((l>>3)&3))) << 4)")
    e("v_lshrrev_b32 v2, 3, v1")
    e("v_and_b32 v3, 3, v2")
    e("v_lshlrev_b32 v3, 2, v3")
    e("v_and_b32 v4, 7, v1")
    e(f"s_and_b32 s{sT0}, s{sW}, 1")
    e(f"s_lshl_b32 s{sT0}, s{sT0}, 3")
    e(f"v_or_b32 v4, s{sT0}, v4")
    e("v_xor_b32 v4, v4, v3")
    e("v_lshlrev_b32 v4, 4, v4")
    e("v_lshl_add_u32 v4, v2, 8, v4")
    e(f"s_lshr_b32 s{sT0}, s{sW}, 1")
    e(f"s_and_b32 s{sT0}, s{sT0}, 1")
    e(f"s_lshl_b32 s{sT0}, s{sT0}, 14")
    e(f"v_add_u32 v{vC0}, s{sT0}, v4")

    def reads(i, var):
        s, kk, st = i >> 2, i & 3, i & 1
        base = K1_STG * (s % 3)
        if kk == 0:
            e(f"v_add_u32 v{vBc0}, {base}, v{vB0}")
            e(f"v_add_u32 v{vBc1}, {base}, v{vB1}")
            e(f"v_add_u32 v{vAc}, {base}, v{vA0}")
            if var:
                e(f"v_add_u32 v{vCc}, {base}, v{vC0}")
        if kk == 0:
            e(f"ds_read_b128 {vr(AF + 4 * st, 4)}, v{vAc}")
        else:
            e(f"v_xor_b32 v2, {kk << 5}, v{vAc}")
            e(f"ds_read_b128 {vr(AF + 4 * st, 4)}, v2")
        for ti in range(4):
            part, T = ti >> 1, ti & 1
            for u in range(2):
                off = part * 16384 + (16 * kk + 4 * u) * 256
                e(f"ds_read_b64_tr_b16 {vr(BF + 16 * st + 4 * ti + 2 * u, 2)}, v{vBc1 if T else vBc0} offset:{off}")
        if var:
            for t in range(2):
                e(f"ds_read_b128 {vr(CD + 8 * st + 4 * t, 4)}, v{vCc} offset:{(2 * kk + t) * 2048}")

    e(f"s_waitcnt vmcnt({12 + NPF})")
    e("s_barrier")
    stamp()
    e(f"s_cmp_ge_u32 s{sW}, 4")
    e("s_cbranch_scc1 k1_loop1")
    st0 = _stamp[0]
    for var in range(2):
        _stamp[0] = st0
        if var == 1:
            e("k1_loop1:")
        NR = 11 if var else 9
        reads(0, var)
        for i in range(32):
            st = i & 1
            newslab = i + 1 < 32 and (i + 1) % 4 == 0
            sn = (i + 1) // 4
            if newslab:
                e(f"s_waitcnt vmcnt({(6 + NPF if sn <= 2 else 6) if sn < 7 else 0}) lgkmcnt(0)")
                e("s_barrier")
                stamp()
                reads(i + 1, var)
                if sn + 2 <= 7:
                    dma_slab(sn + 2)
            elif i + 1 < 32:
                reads(i + 1, var)
                e(f"s_waitcnt lgkmcnt({NR})")
            else:
                e("s_waitcnt lgkmcnt(0)")
            side = []
            if var == 0:
                for d in range(4):
                    x = AF + 4 * st + d
                    t0, t1 = 4 + 2 * (d & 1), 5 + 2 * (d & 1)
                    side += [f"v_lshlrev_b32 v{t0}, 16, v{x}", f"v_and_b32 v{t1}, 0xffff0000, v{x}",
                             f"v_add_f32 v{SX}, v{SX}, v{t0}", f"v_add_f32 v{SX + 1}, v{SX + 1}, v{t1}",
                             f"v_fma_f32 v{SQ}, v{t0}, v{t0}, v{SQ}", f"v_fma_f32 v{SQ + 1}, v{t1}, v{t1}, v{SQ + 1}"]
            else:
                for t in range(2):
                    for d in range(4):
                        x = CD + 8 * st + 4 * t + d
                        tm = 4 + (d & 1)
                        side += [f"v_and_b32 v{tm}, 0xffff0000, v{x}", f"v_lshlrev_b32 v{x}, 16, v{x}",
                                 f"v_add_f32 v{CS + 2 * d + 1}, v{CS + 2 * d + 1}, v{tm}",
                                 f"v_add_f32 v{CS + 2 * d}, v{CS + 2 * d}, v{x}"]
            n4 = len(side) // 4
            for ti in range(4):
                cc = "0" if i == 0 else vr(ACC + 16 * ti, 16)
                e(f"v_mfma_f32_32x32x16_bf16 {vr(ACC + 16 * ti, 16)}, {vr(BF + 16 * st + 4 * ti, 4)}, "
                  f"{vr(AF + 4 * st, 4)}, {cc}")
                for x in side[n4 * ti:n4 * ti + n4]:
                    e(x)
        stamp()
        e("v_and_b32 v2, 31, v1")
        e("v_lshrrev_b32 v3, 5, v1")
        if var == 0:
            c("row stats -> LDS (EX + 1024 + row*8)")
            e(f"v_add_f32 v{SX}, v{SX}, v{SX + 1}")
            e(f"v_add_f32 v{SQ}, v{SQ}, v{SQ + 1}")
            for r in (SX, SQ):
                e(f"v_mov_b32 v4, v{r}")
                e("s_nop 1")
                e(f"v_permlane32_swap_b32 v4, v{r}")
                e("s_nop 1")
                e(f"v_add_f32 v{r}, v4, v{r}")
            T = 8
            e(f"v_mul_f32 v{T}, 0x3b000000, v{SX}")
            e(f"v_mul_f32 v{T + 2}, 0x3b000000, v{SQ}")
            e(f"v_fma_f32 v{T + 2}, -v{T}, v{T}, v{T + 2}")
            e(f"v_max_f32 v{T + 2}, 0, v{T + 2}")
            e(f"v_cvt_pk_bf16_f32 v{T + 1}, v{T}, v{T + 2}")
            e(f"v_lshlrev_b32 v{T + 4}, 16, v{T + 1}")
            e(f"v_and_b32 v{T + 2}, 0xffff0000, v{T + 1}")
            e(f"v_add_f32 v{T + 2}, 0x3727c5ac, v{T + 2}")
            e(f"v_cvt_pk_bf16_f32 v{T + 2}, v{T + 2}, v{T + 2}")
            e(f"v_and_b32 v{T + 2}, 0xffff0000, v{T + 2}")
            e(f"v_sqrt_f32 v{T + 2}, v{T + 2}")
            e("s_nop 0")
            e(f"v_cvt_pk_bf16_f32 v{T + 2}, v{T + 2}, v{T + 2}")
            e(f"v_and_b32 v{T + 2}, 0xffff0000, v{T + 2}")
            e(f"v_rcp_f32 v{T + 6}, v{T + 2}")
            e("s_nop 0")
            e(f"v_mul_f32 v{T + 7}, v{T + 4}, v{T + 6}")
            e(f"v_sub_f32 v{T + 7}, 0, v{T + 7}")
            e(f"s_lshl_b32 s{sT0}, s{sW}, 8")
            e(f"s_add_u32 s{sT0}, s{sT0}, {K1_EX + 1024}")
            e(f"v_lshl_add_u32 v4, v2, 3, s{sT0}")
            e(f"ds_write_b64 v4, {vr(T + 6, 2)}")
            e("s_branch k1_loop_e")
        else:
            c("column sums: reduce over the 8 lane groups, lanes 0-7 write EX + part*512 + (8hf + l)*32")
            for r in range(8):
                e(f"v_add_f32_dpp v{CS + r}, v{CS + r}, v{CS + r} row_ror:8 row_mask:0xf bank_mask:0xf")
            for sw in ("v_permlane16_swap_b32", "v_permlane32_swap_b32"):
                for r in range(8):
                    e(f"v_mov_b32 v{4 + r}, v{CS + r}")
                e("s_nop 1")
                for r in range(8):
                    e(f"{sw} v{4 + r}, v{CS + r}")
                e("s_nop 1")
                for r in range(8):
                    e(f"v_add_f32 v{CS + r}, v{4 + r}, v{CS + r}")
            e(f"s_and_b32 s{sT0}, s{sW}, 3")
            e(f"s_lshl_b32 s{sT0}, s{sT0}, 8")
            e(f"s_add_u32 s{sT0}, s{sT0}, {K1_EX}")
            e(f"v_lshl_add_u32 v4, v1, 5, s{sT0}")
            e("v_cmp_gt_u32 vcc, 8, v1")
            e("s_and_saveexec_b64 s[70:71], vcc")
            e(f"ds_write_b128 v4, {vr(CS, 4)}")
            e(f"ds_write_b128 v4, {vr(CS + 4, 4)} offset:16")
            e("s_mov_b64 exec, s[70:71]")
    e("k1_loop_e:")
    if PREF2:
        c("prefetch a slice of w_down (1 KB per wave) towards MALL for k2")
        e("s_sub_u32 s3, s2, %d" % K1_NCONV)
        e("s_lshl_b32 s3, s3, 3")
        e(f"s_add_u32 s3, s3, s{sW}")
        e("s_lshl_b32 s3, s3, 10")
        make_srd(S_X, P_WD, 1376 * 1024)
        e("v_lshlrev_b32 v6, 4, v1")
        e(f"buffer_load_dwordx4 v[224:227], v6, {sr(S_X, 4)}, s3 offen")
    e("s_waitcnt lgkmcnt(0)")
    e("s_barrier")
    RS, NM = 246, 248
    e(f"s_and_b32 s{sT0}, s{sW}, 3")
    e(f"s_lshl_b32 s{sT0}, s{sT0}, 8")
    e(f"s_add_u32 s{sT0}, s{sT0}, {K1_EX + 1024}")
    e(f"v_lshl_add_u32 v4, v2, 3, s{sT0}")
    e(f"ds_read_b64 v[250:251], v4")
    e(f"s_lshr_b32 s{sT0}, s{sW}, 2")
    e(f"s_lshl_b32 s{sT0}, s{sT0}, 8")
    e(f"s_add_u32 s{sT0}, s{sT0}, {K1_EX}")
    e(f"v_lshl_add_u32 v4, v3, 4, s{sT0}")
    CSR = 80
    for ti in range(4):
        part, T = ti >> 1, ti & 1
        for q in range(4):
            e(f"ds_read_b128 {vr(CSR + 16 * ti + 4 * q, 4)}, v4 offset:{512 * part + 128 * T + 32 * q}")
    e("s_waitcnt lgkmcnt(15)")
    e(f"v_mov_b32 v{RS}, v250")
    e(f"v_mov_b32 v{RS + 1}, v250")
    e(f"v_mov_b32 v{NM}, v251")
    e(f"v_mov_b32 v{NM + 1}, v251")
    c("row stats store (nt == 0, waves 0-3, lanes 0-31)")
    e(f"s_lshr_b32 s{sT0}, s{sW}, 2")
    e(f"s_or_b32 s{sT0}, s{sT0}, s{sNT}")
    e(f"s_cmp_lg_u32 s{sT0}, 0")
    e("s_cbranch_scc1 k1_nostat")
    e(f"s_lshl_b32 s{sT0}, s{sMT}, 7")
    e(f"s_lshl_b32 s{sT1}, s{sW}, 5")
    e(f"s_add_u32 s{sT0}, s{sT0}, s{sT1}")
    e(f"s_lshl_b32 s{sT0}, s{sT0}, 3")
    e(f"s_add_u32 s{sT0}, s{sT0}, {WS_ST}")
    e("v_lshlrev_b32 v252, 3, v2")
    e("v_cmp_eq_u32 vcc, 0, v3")
    e("s_and_saveexec_b64 s[70:71], vcc")
    e(f"buffer_store_dwordx2 v[250:251], v252, {sr(S_WS, 4)}, s{sT0} offen{STC}")
    e("s_mov_b64 exec, s[70:71]")
    e("k1_nostat:")
    c("epilogue: h = bf16(bf16(g)*bf16(u)); transpose via wave-private LDS (4 KB at 65536 + w*4096)")
    e(f"s_lshl_b32 s{sT0}, s{sW}, 12")
    e(f"s_add_u32 s{sT0}, s{sT0}, 65536")
    e("v_and_b32 v4, 7, v2")
    e("v_xor_b32 v4, v4, v3")
    e("v_lshlrev_b32 v4, 4, v4")
    e("v_lshl_add_u32 v4, v2, 7, v4")
    e(f"v_add_u32 v4, s{sT0}, v4")
    e("v_lshrrev_b32 v5, 3, v1")
    e("v_and_b32 v6, 7, v1")
    e("v_xor_b32 v6, v6, v5")
    e("v_lshlrev_b32 v6, 4, v6")
    e("v_lshl_add_u32 v6, v5, 7, v6")
    e(f"v_add_u32 v6, s{sT0}, v6")
    e("s_waitcnt lgkmcnt(0)")
    for r in range(0, 64, 2):
        e(f"v_pk_mul_f32 {vr(CSR + r, 2)}, {vr(CSR + r, 2)}, {vr(NM, 2)}")
    for r in range(0, 64, 2):
        e(f"v_pk_fma_f32 {vr(ACC + r, 2)}, {vr(ACC + r, 2)}, {vr(RS, 2)}, {vr(CSR + r, 2)}")
    for T in range(2):
        G, U = ACC + 16 * T, ACC + 32 + 16 * T
        for qq in range(2):
            o = 16 + 4 * (2 * T + qq)
            for h2 in range(4):
                r = 8 * qq + 2 * h2
                e(f"v_cvt_pk_bf16_f32 v8, v{G + r}, v{G + r + 1}")
                e(f"v_cvt_pk_bf16_f32 v9, v{U + r}, v{U + r + 1}")
                e("v_lshlrev_b32 v10, 16, v8")
                e("v_and_b32 v11, 0xffff0000, v8")
                e("v_lshlrev_b32 v12, 16, v9")
                e("v_and_b32 v13, 0xffff0000, v9")
                e("v_mul_f32 v10, v10, v12")
                e("v_mul_f32 v11, v11, v13")
                e(f"v_cvt_pk_bf16_f32 v{o + h2}, v10, v11")
            e("s_nop 1")
            e(f"v_permlane32_swap_b32 v{o}, v{o + 2}")
            e(f"v_permlane32_swap_b32 v{o + 1}, v{o + 3}")
            e(f"v_xor_b32 v7, {(4 * T + 2 * qq) << 4}, v4")
            e(f"ds_write_b128 v7, {vr(o, 4)}")
    e("s_waitcnt lgkmcnt(0)")
    for j in range(4):
        e(f"ds_read_b128 {vr(32 + 4 * j, 4)}, v6 offset:{1024 * j}")
    for j in range(4):
        e(f"s_waitcnt lgkmcnt({3 - j})")
        e(f"s_mov_b32 s{sT0}, {8 * j * HP}")
        e(f"buffer_store_dwordx4 {vr(32 + 4 * j, 4)}, v{vHoff}, {sr(S_WS, 4)}, s{sT0} offen{STC}")
    stamp()
    e("s_waitcnt vmcnt(0)")
    e("s_barrier")
    stamp()
    e(f"s_lshr_b32 s{sT0}, s{sMT}, 1")
    e(f"s_lshl_b32 s{sT0}, s{sT0}, 5")
    e(f"s_and_b32 s{sT1}, s{sMT}, 1")
    e(f"s_lshl_b32 s{sT1}, s{sT1}, 2")
    e(f"s_add_u32 s{sT0}, s{sT0}, s{sT1}")
    e(f"s_add_u32 s{sT0}, s{sT0}, 4")
    signal(sW, sT0)
    e("s_branch g2_entry")


CV_R = 0
CV_RSTR = 4608
CV_KT = 36864
CV_KSTR = 8320
CV_KCPY = 4160


def k1_conv():
    S_K, S_V, S_SK, S_WS, S_SH, S_DBG = 44, 48, 52, 56, 72, 76
    sW, sT0, sT1, sD, sG, sJ = 62, 63, 64, 65, 66, 67
    e("k1_conv:")
    e("v_lshrrev_b32 v2, 6, v0")
    e("v_and_b32 v1, 63, v0")
    e(f"v_readfirstlane_b32 s{sW}, v2")
    e("s_waitcnt lgkmcnt(0)")
    stamp(True)
    make_srd(S_K, P_K, 2048 * 1024)
    make_srd(S_V, P_V, 2048 * 1024)
    make_srd(S_SK, P_SK, 512 * 4096)
    make_srd(S_WS, P_WS, 0x1000000)
    make_srd(S_SH, P_SH, 4096)
    make_srd(S_DBG, P_DBG, 256)
    e(f"s_lshr_b32 s{sG}, s2, 3")
    e(f"s_and_b32 s{sJ}, s2, 7")
    c("---- kv phase: rows J*256 + 4*rg.., channels G*64 + cs*8..")
    e("v_lshrrev_b32 v2, 3, v0")
    e("v_and_b32 v3, 7, v0")
    e(f"s_lshl_b32 s{sT0}, s{sJ}, 18")
    e(f"s_lshl_b32 s{sT1}, s{sG}, 7")
    e(f"s_add_u32 s{sT0}, s{sT0}, s{sT1}")
    e("v_lshlrev_b32 v4, 12, v2")
    e("v_lshl_add_u32 v4, v3, 4, v4")
    e(f"v_add_u32 v4, s{sT0}, v4")
    e("v_subrev_u32 v5, 3072, v4")
    KD, VD, WD = 16, 44, 60
    for r in range(3):
        e(f"buffer_load_dwordx4 {vr(KD + 4 * r, 4)}, v5, {sr(S_K, 4)}, 0 offen offset:{1024 * r}")
    for r in range(4):
        e(f"buffer_load_dwordx4 {vr(KD + 12 + 4 * r, 4)}, v4, {sr(S_K, 4)}, 0 offen offset:{1024 * r}")
    for r in range(4):
        e(f"buffer_load_dwordx4 {vr(VD + 4 * r, 4)}, v4, {sr(S_V, 4)}, 0 offen offset:{1024 * r}")
    e(f"s_lshl_b32 s{sT1}, s{sG}, 9")
    e("v_lshlrev_b32 v6, 6, v3")
    e(f"v_add_u32 v6, s{sT1}, v6")
    for j in range(4):
        e(f"buffer_load_dwordx4 {vr(WD + 4 * j, 4)}, v6, {sr(S_SH, 4)}, 0 offen offset:{16 * j}")
    c("ssm_D for this wave's channel")
    e(f"s_lshl_b32 s{sT0}, s2, 4")
    e(f"s_lshl_b32 s{sT1}, s{sW}, 1")
    e(f"s_add_u32 s{sT0}, s{sT0}, s{sT1}")
    e(f"s_and_b32 s{sT1}, s{sT0}, 0xfffffffc")
    e(f"s_add_u32 s{P_SD}, s{P_SD}, s{sT1}")
    e(f"s_addc_u32 s{P_SD + 1}, s{P_SD + 1}, 0")
    e(f"s_load_dword s{sD}, {sr(P_SD, 2)}, 0")
    c("ssm_k row of this wave's channel")
    SKD = 232
    e(f"s_lshl_b32 s{sT0}, s2, 3")
    e(f"s_add_u32 s{sT0}, s{sT0}, s{sW}")
    e(f"s_lshl_b32 s{sT0}, s{sT0}, 12")
    e("v_lshlrev_b32 v8, 4, v1")
    e(f"v_add_u32 v8, s{sT0}, v8")
    for j in range(4):
        e(f"buffer_load_dwordx4 {vr(SKD + 4 * j, 4)}, v8, {sr(S_SK, 4)}, 0 offen offset:{1024 * j}")
    for j in range(4):
        e(f"buffer_load_dword v{SKD + 16 + j}, v8, {sr(S_SK, 4)}, 0 offen offset:{1024 * j + 16}")
    c("kv store base: WS_KV + c*4096 + 2*(2044 - t0)")
    e(f"s_lshl_b32 s{sT0}, s{sG}, 18")
    e(f"s_add_u32 s{sT0}, s{sT0}, {WS_KV + 4088}")
    e(f"s_lshl_b32 s{sT1}, s{sJ}, 9")
    e(f"s_sub_u32 s{sT0}, s{sT0}, s{sT1}")
    e("v_lshlrev_b32 v7, 15, v3")
    e(f"v_add_u32 v7, s{sT0}, v7")
    e("v_lshlrev_b32 v9, 3, v2")
    e("v_sub_u32 v7, v7, v9")
    e("s_waitcnt vmcnt(8)")
    stamp()
    KF, VF, WF = 80, 136, 200
    for cc in range(8):
        for jp in range(2):
            w = WD + 2 * cc + jp
            e(f"v_lshlrev_b32 v{WF + (2 * jp) * 8 + cc}, 16, v{w}")
            e(f"v_and_b32 v{WF + (2 * jp + 1) * 8 + cc}, 0xffff0000, v{w}")
    for i in range(28):
        e(f"v_lshlrev_b32 v{KF + 2 * i}, 16, v{KD + i}")
        e(f"v_and_b32 v{KF + 2 * i + 1}, 0xffff0000, v{KD + i}")
    for i in range(16):
        e(f"v_lshlrev_b32 v{VF + 2 * i}, 16, v{VD + i}")
        e(f"v_and_b32 v{VF + 2 * i + 1}, 0xffff0000, v{VD + i}")
    KV = 168
    for r in range(4):
        for cp in range(4):
            d = KV + 8 * r + 2 * cp
            e(f"v_pk_mul_f32 {vr(d, 2)}, {vr(KF + 8 * r + 2 * cp, 2)}, {vr(WF + 3 * 8 + 2 * cp, 2)}")
            for j in range(1, 4):
                e(f"v_pk_fma_f32 {vr(d, 2)}, {vr(KF + 8 * (r + j) + 2 * cp, 2)}, "
                  f"{vr(WF + (3 - j) * 8 + 2 * cp, 2)}, {vr(d, 2)}")
            e(f"v_pk_mul_f32 {vr(d, 2)}, {vr(d, 2)}, {vr(VF + 8 * r + 2 * cp, 2)}")
    if not KV16:
        for cc in range(8):
            o = 16 + 2 * cc
            e(f"v_cvt_pk_bf16_f32 v{o}, v{KV + 24 + cc}, v{KV + 16 + cc}")
            e(f"v_cvt_pk_bf16_f32 v{o + 1}, v{KV + 8 + cc}, v{KV + cc}")
            e(f"s_mov_b32 s{sT1}, {cc * 4096}")
            e(f"buffer_store_dwordx2 {vr(o, 2)}, v7, {sr(S_WS, 4)}, s{sT1} offen sc1")
    else:
        for cc in range(8):
            o = 16 + 2 * cc
            e(f"v_cvt_pk_bf16_f32 v{o}, v{KV + 24 + cc}, v{KV + 16 + cc}")
            e(f"v_cvt_pk_bf16_f32 v{o + 1}, v{KV + 8 + cc}, v{KV + cc}")
        c("pair lanes (rg even = A, odd = B): A stores ch 0-3, B stores ch 4-7, 16B each")
        e("v_and_b32 v9, 8, v0")
        e("v_cmp_ne_u32 vcc, 0, v9")
        e("v_add_u32 v9, 16384, v7")
        e("v_subrev_u32 v7, 8, v7")
        e("s_nop 0")
        e("v_cndmask_b32 v7, v7, v9, vcc")
        for i in range(16):
            e(f"v_mov_b32_dpp v{32 + i}, v{16 + i} row_ror:8 row_mask:0xf bank_mask:0xf")
        for cc in range(4):
            X, Y, PX, PY = 16 + 2 * cc, 24 + 2 * cc, 32 + 2 * cc, 40 + 2 * cc
            o = 48 + 4 * cc
            e(f"v_cndmask_b32 v{o}, v{PX}, v{Y}, vcc")
            e(f"v_cndmask_b32 v{o + 1}, v{PX + 1}, v{Y + 1}, vcc")
            e(f"v_cndmask_b32 v{o + 2}, v{X}, v{PY}, vcc")
            e(f"v_cndmask_b32 v{o + 3}, v{X + 1}, v{PY + 1}, vcc")
            e(f"s_mov_b32 s{sT1}, {cc * 4096}")
            e(f"buffer_store_dwordx4 {vr(o, 4)}, v7, {sr(S_WS, 4)}, s{sT1} offen sc1")
    c("meanwhile: zero pads and KT copies")
    e(f"s_mul_i32 s{sT1}, s{sW}, {CV_RSTR}")
    e("v_lshlrev_b32 v6, 3, v1")
    e(f"v_add_u32 v6, s{sT1}, v6")
    e("v_mov_b32 v10, 0")
    e("v_mov_b32 v11, 0")
    e(f"ds_write_b64 v6, v[10:11] offset:{CV_R + 4096}")
    e(f"s_mul_i32 s{sT1}, s{sW}, {CV_KSTR}")
    e(f"s_add_u32 s{sT1}, s{sT1}, {CV_KT}")
    e("v_lshlrev_b32 v7, 2, v1")
    e(f"v_add_u32 v7, s{sT1}, v7")
    e("v_cmp_gt_u32 vcc, 8, v1")
    e("s_and_saveexec_b64 s[70:71], vcc")
    e("ds_write_b32 v7, v10")
    e(f"ds_write_b32 v7, v10 offset:{CV_KCPY}")
    e("s_mov_b64 exec, s[70:71]")
    e("s_waitcnt lgkmcnt(0)")
    e(f"s_lshl_b32 s{sT0}, s{sD}, 16")
    e(f"s_and_b32 s{sD}, s{sD}, 0xffff0000")
    e(f"s_bitcmp1_b32 s{sW}, 0")
    e(f"s_cselect_b32 s{sD}, s{sD}, s{sT0}")
    e("v_lshlrev_b32 v7, 4, v1")
    e(f"v_add_u32 v7, s{sT1}, v7")
    e(f"s_waitcnt vmcnt({4 if KV16 else 8})")
    for j in range(4):
        d = SKD + 4 * j
        e(f"ds_write_b128 v7, {vr(d, 4)} offset:{32 + 1024 * j}")
        e(f"v_alignbit_b32 v12, v{d + 1}, v{d}, 16")
        e(f"v_alignbit_b32 v13, v{d + 2}, v{d + 1}, 16")
        e(f"v_alignbit_b32 v14, v{d + 3}, v{d + 2}, 16")
        e(f"v_alignbit_b32 v15, v{SKD + 16 + j}, v{d + 3}, 16")
        e(f"ds_write_b128 v7, v[12:15] offset:{CV_KCPY + 32 + 1024 * j}")
        e("s_nop 1")
    e(f"v_lshlrev_b32 v12, 16, v{SKD}")
    e("v_cmp_eq_u32 vcc, 0, v1")
    e("s_and_saveexec_b64 s[70:71], vcc")
    e(f"ds_write_b32 v7, v12 offset:{CV_KCPY + 28}")
    e("s_mov_b64 exec, s[70:71]")
    c("hand-off: all kv stores drained -> barrier -> one atomic add; then poll")
    e("s_waitcnt vmcnt(0)")
    e("s_barrier")
    stamp()
    e(f"s_cmp_lg_u32 s{sW}, 0")
    e("s_cbranch_scc1 k1c_wait")
    e(f"s_lshl_b32 s{sT0}, s{sG}, 5")
    e(f"v_mov_b32 v12, s{sT0}")
    e("v_mov_b32 v13, 1")
    e("v_cmp_eq_u32 vcc, 0, v1")
    e("s_and_saveexec_b64 s[70:71], vcc")
    e(f"buffer_atomic_add v13, v12, {sr(S_DBG, 4)}, 0 offen")
    e("s_mov_b32 s80, 0")
    e("k1c_poll:")
    e(f"buffer_load_dword v14, v12, {sr(S_DBG, 4)}, 0 offen sc1")
    e("s_waitcnt vmcnt(0)")
    e("v_readfirstlane_b32 s81, v14")
    e("s_add_u32 s80, s80, 1")
    e("s_cmp_ge_u32 s81, 8")
    e("s_cbranch_scc1 k1c_polled")
    e("s_sleep 1")
    e("s_cmp_lt_u32 s80, 0x400000")
    e("s_cbranch_scc1 k1c_poll")
    e("k1c_polled:")
    e("s_mov_b64 exec, s[70:71]")
    e("k1c_wait:")
    e("s_barrier")
    c("load own channel kvR row (sc1) -> LDS R")
    e(f"v_add_u32 v8, {WS_KV}, v8")
    for j in range(4):
        e(f"buffer_load_dwordx4 {vr(16 + 4 * j, 4)}, v8, {sr(S_WS, 4)}, 0 offen offset:{1024 * j} sc1")
    e(f"s_mul_i32 s{sT0}, s{sW}, {CV_RSTR}")
    e("v_lshlrev_b32 v6, 4, v1")
    e(f"v_add_u32 v6, s{sT0}, v6")
    for j in range(4):
        e(f"s_waitcnt vmcnt({3 - j})")
        e(f"ds_write_b128 v6, {vr(16 + 4 * j, 4)} offset:{CV_R + 1024 * j}")
    e("s_waitcnt lgkmcnt(0)")
    stamp()
    c("MFMA phase: wave w -> channel w")
    ACC = 16
    AR = [48, 112]
    BR = [80, 144]
    vKT, vR, vA = 200, 201, 202
    e("v_and_b32 v2, 15, v1")
    e("v_lshrrev_b32 v3, 4, v1")
    e("v_lshlrev_b32 v4, 1, v2")
    e("v_lshlrev_b32 v5, 4, v3")
    e("v_sub_u32 v4, v4, v5")
    e(f"v_add_u32 v4, {32 - 14}, v4")
    e("v_and_b32 v5, 1, v2")
    e("v_cmp_eq_u32 vcc, 0, v5")
    e("v_mov_b32 v5, 0")
    e(f"v_mov_b32 v6, {CV_KCPY - 2}")
    e("s_nop 1")
    e("v_cndmask_b32 v5, v5, v6, vcc")
    e("v_add_u32 v4, v4, v5")
    e(f"v_add_u32 v{vKT}, s{sT1}, v4")
    e(f"s_mul_i32 s{sT0}, s{sW}, {CV_RSTR}")
    e("v_lshlrev_b32 v4, 5, v2")
    e("v_lshl_add_u32 v4, v3, 4, v4")
    e(f"v_sub_u32 v4, {CV_R + 4080 - 3584}, v4")
    e(f"v_add_u32 v{vR}, s{sT0}, v4")

    def creads(ci, st):
        d0 = 2 * ci + 1
        for pp in range(4):
            e(f"v_add_u32 v{vA + pp}, {32 * d0 + 1024 * pp}, v{vKT}")
        order = [("B", 0)] + [("A", p) for p in range(8)] + [("B", m) for m in range(1, 8)]
        for kind, x in order:
            if kind == "A":
                p = x
                o = 128 * (p & 1)
                e(f"ds_read2_b32 {vr(AR[st] + 4 * p, 2)}, v{vA + (p >> 1)} offset0:{o} offset1:{o + 1}")
                e(f"ds_read2_b32 {vr(AR[st] + 4 * p + 2, 2)}, v{vA + (p >> 1)} offset0:{o + 2} offset1:{o + 3}")
            else:
                m = x
                e(f"ds_read_b128 {vr(BR[st] + 4 * m, 4)}, v{vR} offset:{32 * d0 + 512 * (7 - m)}")

    creads(0, 0)
    for ci in range(8):
        st = ci & 1
        e("s_waitcnt lgkmcnt(0)")
        if ci < 7:
            creads(ci + 1, st ^ 1)
        for m in range(8):
            for p in range(8 - m):
                cc = "0" if (ci == 0 and m == 0) else vr(ACC + 4 * (m + p), 4)
                e(f"v_mfma_f32_16x16x32_bf16 {vr(ACC + 4 * (m + p), 4)}, {vr(AR[st] + 4 * p, 4)}, "
                  f"{vr(BR[st] + 4 * m, 4)}, {cc}")
    stamp()
    c("epilogue: kv reads, y2 = bf16(bf16(y) + bf16(kv*D)), store y2T")
    e("v_lshlrev_b32 v4, 5, v2")
    e("v_lshl_add_u32 v4, v3, 3, v4")
    e(f"v_sub_u32 v5, {CV_R + 4088 - 3584}, v4")
    e(f"v_add_u32 v5, s{sT0}, v5")
    KVR = 48
    for n in range(8):
        e(f"ds_read_b64 {vr(KVR + 2 * n, 2)}, v5 offset:{512 * (7 - n)}")
    e(f"s_lshl_b32 s{sT1}, s2, 3")
    e(f"s_add_u32 s{sT1}, s{sT1}, s{sW}")
    e(f"s_lshl_b32 s{sT1}, s{sT1}, 12")
    e(f"s_add_u32 s{sT1}, s{sT1}, {WS_Y2}")
    e(f"v_add_u32 v6, s{sT1}, v4")
    e("s_nop 7")
    e("s_waitcnt lgkmcnt(0)")
    for n in range(8):
        a = ACC + 4 * n
        k0, k1 = KVR + 2 * n, KVR + 2 * n + 1
        o = 80 + 2 * n
        e(f"v_cvt_pk_bf16_f32 v8, v{a}, v{a + 1}")
        e(f"v_cvt_pk_bf16_f32 v9, v{a + 2}, v{a + 3}")
        e(f"v_and_b32 v10, 0xffff0000, v{k1}")
        e(f"v_lshlrev_b32 v11, 16, v{k1}")
        e(f"v_and_b32 v12, 0xffff0000, v{k0}")
        e(f"v_lshlrev_b32 v13, 16, v{k0}")
        for t in range(4):
            e(f"v_mul_f32 v{10 + t}, s{sD}, v{10 + t}")
        e("v_cvt_pk_bf16_f32 v10, v10, v11")
        e("v_cvt_pk_bf16_f32 v12, v12, v13")
        e("v_lshlrev_b32 v14, 16, v8")
        e("v_and_b32 v15, 0xffff0000, v8")
        e("v_lshlrev_b32 v11, 16, v10")
        e("v_and_b32 v10, 0xffff0000, v10")
        e("v_add_f32 v14, v14, v11")
        e("v_add_f32 v15, v15, v10")
        e(f"v_cvt_pk_bf16_f32 v{o}, v14, v15")
        e("v_lshlrev_b32 v14, 16, v9")
        e("v_and_b32 v15, 0xffff0000, v9")
        e("v_lshlrev_b32 v13, 16, v12")
        e("v_and_b32 v12, 0xffff0000, v12")
        e("v_add_f32 v14, v14, v13")
        e("v_add_f32 v15, v15, v12")
        e(f"v_cvt_pk_bf16_f32 v{o + 1}, v14, v15")
        e(f"buffer_store_dwordx2 {vr(o, 2)}, v6, {sr(S_WS, 4)}, 0 offen offset:{512 * n}{STC}")
    stamp()
    e("s_waitcnt vmcnt(0)")
    e("s_barrier")
    stamp()
    e(f"s_lshl_b32 s{sT0}, s{sG}, 5")
    e(f"s_add_u32 s{sT0}, s{sT0}, 12")
    signal(sW, sT0)
    e("s_branch g2_entry")


def kernel1():
    e(".globl k1_kernel")
    e(".p2align 8")
    e(".type k1_kernel,@function")
    e("k1_kernel:")
    e("s_cmp_ge_u32 s2, 256")
    e("s_cbranch_scc1 k1_done")
    load_ptrs()
    e(f"s_cmp_lt_u32 s2, {K1_NCONV}")
    e("s_cbranch_scc1 k1_conv")
    e(f"s_cmp_lt_u32 s2, {K1_NCONV + K1_NGEMM}")
    e("s_cbranch_scc1 k1_gemm")
    e("s_waitcnt lgkmcnt(0)")
    stamp(True)
    if PREF3:
        c("idle WGs: pull half of w_down into this XCD's L2 (86 KB per wave)")
        make_srd(44, P_WD, 1376 * 1024)
        e("s_sub_u32 s3, s2, 240")
        e("s_lshr_b32 s3, s3, 3")
        e("v_lshrrev_b32 v2, 6, v0")
        e("v_and_b32 v1, 63, v0")
        e("v_readfirstlane_b32 s4, v2")
        e("s_lshl_b32 s3, s3, 3")
        e("s_add_u32 s3, s3, s4")
        e("s_mul_i32 s3, s3, 88064")
        e("v_lshlrev_b32 v3, 4, v1")
        for j in range(86):
            e(f"buffer_load_dwordx4 {vr(16 + 4 * (j % 8), 4)}, v3, s[44:47], s3 offen")
            e("s_add_u32 s3, s3, 1024")
            if j >= 32:
                e("s_waitcnt vmcnt(32)")
        e("s_waitcnt vmcnt(0)")
    e("s_branch g2_entry")
    k1_gemm()
    k1_conv()
    kernel2()
    e("k1_done:")
    e("s_endpgm")


def kernel0():
    S_X, S_K, S_V, S_SH, S_WS = 44, 48, 52, 56, 60
    sT0, sT1, sONE = 64, 65, 66
    e(".globl k0_kernel")
    e(".p2align 8")
    e(".type k0_kernel,@function")
    e("k0_kernel:")
    e("s_cmp_ge_u32 s2, 256")
    e("s_cbranch_scc1 k0_done")
    load_ptrs()
    e("v_and_b32 v1, 63, v0")
    e("s_cmp_ge_u32 s2, 128")
    e("s_cbranch_scc1 k0_ln")
    c("---- kv tile: rt = id%16 (128 rows), ct = id/16 (64 channels)")
    e("s_waitcnt lgkmcnt(0)")
    stamp(True)
    make_srd(S_K, P_K, 2048 * 1024)
    make_srd(S_V, P_V, 2048 * 1024)
    make_srd(S_SH, P_SH, 4096)
    make_srd(S_WS, P_WS, 0x1000000)
    e("s_and_b32 s3, s2, 15")
    e("s_lshr_b32 s4, s2, 4")
    e("v_lshrrev_b32 v2, 3, v0")
    e("v_and_b32 v3, 7, v0")
    e(f"s_lshl_b32 s{sT0}, s3, 17")
    e(f"s_lshl_b32 s{sT1}, s4, 7")
    e(f"s_add_u32 s{sT0}, s{sT0}, s{sT1}")
    e("v_lshlrev_b32 v4, 12, v2")
    e("v_lshl_add_u32 v4, v3, 4, v4")
    e(f"v_add_u32 v4, s{sT0}, v4")
    e("v_subrev_u32 v5, 3072, v4")
    KD, VD, WD = 16, 44, 60
    for r in range(3):
        e(f"buffer_load_dwordx4 {vr(KD + 4 * r, 4)}, v5, {sr(S_K, 4)}, 0 offen offset:{1024 * r}")
    for r in range(4):
        e(f"buffer_load_dwordx4 {vr(KD + 12 + 4 * r, 4)}, v4, {sr(S_K, 4)}, 0 offen offset:{1024 * r}")
    for r in range(4):
        e(f"buffer_load_dwordx4 {vr(VD + 4 * r, 4)}, v4, {sr(S_V, 4)}, 0 offen offset:{1024 * r}")
    e(f"s_lshl_b32 s{sT1}, s4, 9")
    e("v_lshlrev_b32 v6, 6, v3")
    e(f"v_add_u32 v6, s{sT1}, v6")
    for j in range(4):
        e(f"buffer_load_dwordx4 {vr(WD + 4 * j, 4)}, v6, {sr(S_SH, 4)}, 0 offen offset:{16 * j}")
    c("store base: WS_KV + c*4096 + 2*(2044 - t0), c = ct*64 + cs*8 + cc")
    e(f"s_lshl_b32 s{sT0}, s4, 18")
    e(f"s_add_u32 s{sT0}, s{sT0}, {WS_KV + 4088}")
    e(f"s_lshl_b32 s{sT1}, s3, 8")
    e(f"s_sub_u32 s{sT0}, s{sT0}, s{sT1}")
    e("v_lshlrev_b32 v7, 15, v3")
    e(f"v_add_u32 v7, s{sT0}, v7")
    e("v_lshlrev_b32 v8, 3, v2")
    e("v_sub_u32 v7, v7, v8")
    e("s_waitcnt vmcnt(0)")
    stamp()
    KF, VF, WF = 80, 136, 200
    for cc in range(8):
        for jp in range(2):
            w = WD + 2 * cc + jp
            e(f"v_lshlrev_b32 v{WF + (2 * jp) * 8 + cc}, 16, v{w}")
            e(f"v_and_b32 v{WF + (2 * jp + 1) * 8 + cc}, 0xffff0000, v{w}")
    for i in range(28):
        e(f"v_lshlrev_b32 v{KF + 2 * i}, 16, v{KD + i}")
        e(f"v_and_b32 v{KF + 2 * i + 1}, 0xffff0000, v{KD + i}")
    for i in range(16):
        e(f"v_lshlrev_b32 v{VF + 2 * i}, 16, v{VD + i}")
        e(f"v_and_b32 v{VF + 2 * i + 1}, 0xffff0000, v{VD + i}")
    KV = 168
    for r in range(4):
        for cp in range(4):
            d = KV + 8 * r + 2 * cp
            e(f"v_pk_mul_f32 {vr(d, 2)}, {vr(KF + 8 * r + 2 * cp, 2)}, {vr(WF + 3 * 8 + 2 * cp, 2)}")
            for j in range(1, 4):
                e(f"v_pk_fma_f32 {vr(d, 2)}, {vr(KF + 8 * (r + j) + 2 * cp, 2)}, "
                  f"{vr(WF + (3 - j) * 8 + 2 * cp, 2)}, {vr(d, 2)}")
            e(f"v_pk_mul_f32 {vr(d, 2)}, {vr(d, 2)}, {vr(VF + 8 * r + 2 * cp, 2)}")
    for cc in range(8):
        o = 16 + 2 * cc
        e(f"v_cvt_pk_bf16_f32 v{o}, v{KV + 24 + cc}, v{KV + 16 + cc}")
        e(f"v_cvt_pk_bf16_f32 v{o + 1}, v{KV + 8 + cc}, v{KV + cc}")
        if cc < 1:
            e(f"buffer_store_dwordx2 {vr(o, 2)}, v7, {sr(S_WS, 4)}, 0 offen{STC}")
        else:
            e(f"s_mov_b32 s{sT1}, {cc * 4096}")
            e(f"buffer_store_dwordx2 {vr(o, 2)}, v7, {sr(S_WS, 4)}, s{sT1} offen{STC}")
    stamp_flush(S_WS, WS_PROF + 0x100000)
    e("s_branch k0_done")
    e("k0_ln:")
    e("s_waitcnt lgkmcnt(0)")
    stamp(True)
    make_srd(S_X, P_Q, 2048 * 1024)
    make_srd(S_WS, P_WS, 0x1000000)
    e("s_sub_u32 s3, s2, 128")
    e("v_lshrrev_b32 v2, 4, v0")
    e("v_lshl_add_u32 v2, s3, 4, v2")
    e("v_and_b32 v3, 15, v0")
    e("v_lshlrev_b32 v4, 10, v2")
    e("v_lshl_add_u32 v4, v3, 4, v4")
    XD = 16
    for i in range(4):
        e(f"buffer_load_dwordx4 {vr(XD + 4 * i, 4)}, v4, {sr(S_X, 4)}, 0 offen offset:{256 * i}")
    e(f"s_mov_b32 s{sONE}, 0x3f803f80")
    T = 40
    for r in range(4):
        e(f"v_mov_b32 v{T + r}, 0")
    e(f"v_add_u32 v5, {WS_XN}, v4")
    e("s_waitcnt vmcnt(0)")
    stamp()
    for i in range(16):
        e(f"v_dot2c_f32_bf16 v{T + (i & 1)}, s{sONE}, v{XD + i}")
        e(f"v_dot2c_f32_bf16 v{T + 2 + (i & 1)}, v{XD + i}, v{XD + i}")
    e("s_nop 3")
    e(f"v_add_f32 v{T}, v{T}, v{T + 1}")
    e(f"v_add_f32 v{T + 2}, v{T + 2}, v{T + 3}")
    for sh in (8, 4, 2, 1):
        e("s_nop 1")
        e(f"v_add_f32_dpp v{T}, v{T}, v{T} row_ror:{sh} row_mask:0xf bank_mask:0xf")
        e(f"v_add_f32_dpp v{T + 2}, v{T + 2}, v{T + 2} row_ror:{sh} row_mask:0xf bank_mask:0xf")
    e(f"v_mul_f32 v{T}, 0x3b000000, v{T}")
    e(f"v_mul_f32 v{T + 2}, 0x3b000000, v{T + 2}")
    e(f"v_fma_f32 v{T + 2}, -v{T}, v{T}, v{T + 2}")
    e(f"v_max_f32 v{T + 2}, 0, v{T + 2}")
    e(f"v_cvt_pk_bf16_f32 v{T + 1}, v{T}, v{T + 2}")
    e(f"v_lshlrev_b32 v{T + 4}, 16, v{T + 1}")
    e(f"v_and_b32 v{T + 2}, 0xffff0000, v{T + 1}")
    e(f"v_add_f32 v{T + 2}, 0x3727c5ac, v{T + 2}")
    e(f"v_cvt_pk_bf16_f32 v{T + 2}, v{T + 2}, v{T + 2}")
    e(f"v_and_b32 v{T + 2}, 0xffff0000, v{T + 2}")
    e(f"v_sqrt_f32 v{T + 2}, v{T + 2}")
    e("s_nop 0")
    e(f"v_cvt_pk_bf16_f32 v{T + 2}, v{T + 2}, v{T + 2}")
    e(f"v_and_b32 v{T + 2}, 0xffff0000, v{T + 2}")
    e(f"v_rcp_f32 v{T + 5}, v{T + 2}")
    e("s_nop 0")
    for i in range(4):
        for d in range(4):
            x = XD + 4 * i + d
            e(f"v_lshlrev_b32 v50, 16, v{x}")
            e(f"v_and_b32 v51, 0xffff0000, v{x}")
            e(f"v_sub_f32 v50, v50, v{T + 4}")
            e(f"v_sub_f32 v51, v51, v{T + 4}")
            e("v_cvt_pk_bf16_f32 v50, v50, v51")
            e("v_lshlrev_b32 v52, 16, v50")
            e("v_and_b32 v53, 0xffff0000, v50")
            e(f"v_mul_f32 v52, v52, v{T + 5}")
            e(f"v_mul_f32 v53, v53, v{T + 5}")
            e(f"v_cvt_pk_bf16_f32 v{x}, v52, v53")
        e(f"buffer_store_dwordx4 {vr(XD + 4 * i, 4)}, v5, {sr(S_WS, 4)}, 0 offen offset:{256 * i}{STC}")
    stamp_flush(S_WS, WS_PROF + 0x100000)
    e("k0_done:")
    e("s_endpgm")


K2_NST = 4
K2_WREG = K2_NST * 8192 + 2048
K2_LDS = 4 * K2_WREG
K2_STEPS = 11
import os
K2ROT_A = int(os.environ.get('K2ROT_A', '4'))
K2ROT_B = int(os.environ.get('K2ROT_B', '3'))


def kernel2():
    S_H, S_WD, S_X, S_WS, S_OUT = 44, 48, 52, 56, 60
    sW, sT0, sT1, sMT, sNT, sKA, sKB, sLB = 64, 65, 66, 67, 68, 69, 70, 71
    ACC = 112
    FR = 176
    vDA, vDB, vB0, vB1, vAr, vOut = 8, 9, 10, 11, 12, 13
    XR = 96
    NR = 104
    e("g2_entry:")
    _stamp[0] = 24
    e("v_lshrrev_b32 v2, 6, v0")
    e("v_and_b32 v1, 63, v0")
    e(f"v_readfirstlane_b32 s{sW}, v2")
    make_srd(S_WS, P_WS, 0x1000000)
    e(f"s_cmp_gt_u32 s{sW}, 4")
    e("s_cbranch_scc1 g2_exit")
    c("x = id%8, j = id/8 : mt2 = 4x + (j&3), nt2 = j>>2")
    e("s_and_b32 s4, s2, 7")
    e("s_lshr_b32 s5, s2, 3")
    e(f"s_lshr_b32 s{sNT}, s5, 2")
    e("s_and_b32 s5, s5, 3")
    e(f"s_lshl_b32 s{sMT}, s4, 2")
    e(f"s_add_u32 s{sMT}, s{sMT}, s5")
    make_srd(S_DB2, P_DBG, 256)
    e(f"s_cmp_eq_u32 s{sW}, 4")
    e("s_cbranch_scc1 g2_helper")
    stamp()
    make_srd(S_H, P_WS, WS_H_BYTES)
    make_srd(S_WD, P_WD, 1376 * 1024)
    make_srd(S_X, P_Q, 2048 * 1024)
    make_srd(S_OUT, P_OUT, 2048 * 1024)
    e(f"s_mul_i32 s{sT0}, s{sW}, {K2_STEPS}")
    e(f"s_lshl_b32 s{sKA}, s{sT0}, 6")
    e(f"s_mul_i32 s{sT1}, s{sMT}, {64 * HP}")
    e(f"s_add_u32 s{sKA}, s{sKA}, s{sT1}")
    e(f"s_lshl_b32 s{sKB}, s{sT0}, 15")
    e(f"s_lshl_b32 s{sT1}, s{sNT}, 7")
    e(f"s_add_u32 s{sKB}, s{sKB}, s{sT1}")
    e(f"s_mul_i32 s{sLB}, s{sW}, {K2_WREG}")
    e("v_and_b32 v2, 31, v1")
    e("v_lshrrev_b32 v3, 5, v1")
    c("A DMA lane offsets: row = l/4, src chunk = (l%4) ^ ((l/16)&3)")
    e("v_lshrrev_b32 v4, 2, v1")
    e(f"v_mul_u32_u24 v4, {HP}, v4")
    e("v_and_b32 v5, 3, v1")
    e("v_lshrrev_b32 v6, 4, v1")
    e("v_xor_b32 v5, v5, v6")
    e(f"v_lshl_add_u32 v{vDA}, v5, 4, v4")
    c("B DMA lane offsets: row = l/8, chunk' = l%8; global chunk = chunk' ^ (((row>>1)&1)<<2)")
    e("v_lshrrev_b32 v4, 3, v1")
    e("v_and_b32 v5, 7, v1")
    e("v_lshrrev_b32 v6, 1, v4")
    e("v_and_b32 v6, 1, v6")
    e("v_lshlrev_b32 v6, 2, v6")
    e("v_xor_b32 v5, v5, v6")
    e("v_lshlrev_b32 v5, 4, v5")
    e(f"v_lshl_add_u32 v{vDB}, v4, 10, v5")

    c("K rotation: rot = (nt*K2ROT_A + (mt>>3)*K2ROT_B) mod 11 ; s73 = current step index")
    e(f"s_mul_i32 s73, s{sNT}, {K2ROT_A}")
    e(f"s_and_b32 s74, s{sMT}, 3")
    e(f"s_mul_i32 s74, s74, {K2ROT_B}")
    e("s_add_u32 s73, s73, s74")
    for _ in range(4):
        e("s_cmp_ge_u32 s73, 11")
        e("s_cselect_b32 s74, 11, 0")
        e("s_sub_u32 s73, s73, s74")
    e("s_mov_b32 s75, s73")

    def issue_A(i, sidx):
        st = i % K2_NST
        e(f"s_lshl_b32 s76, s{sidx}, 6")
        e(f"s_add_u32 s76, s76, s{sKA}")
        for j in range(4):
            e(f"s_add_u32 m0, s{sLB}, {st * 8192 + j * 1024}")
            e(f"s_add_u32 s{sT0}, s76, {16 * j * HP}")
            e(f"buffer_load_dwordx4 v{vDA}, {sr(S_H, 4)}, s{sT0} offen lds")

    def issue_B(i, sidx):
        st = i % K2_NST
        e(f"s_lshl_b32 s77, s{sidx}, 15")
        e(f"s_add_u32 s77, s77, s{sKB}")
        for j in range(4):
            e(f"s_add_u32 m0, s{sLB}, {st * 8192 + 4096 + j * 1024}")
            e(f"s_add_u32 s{sT0}, s77, {8 * j * 1024}")
            e(f"buffer_load_dwordx4 v{vDB}, {sr(S_WD, 4)}, s{sT0} offen lds")

    def adv(sidx):
        e(f"s_add_u32 s{sidx}, s{sidx}, 1")
        e(f"s_cmp_ge_u32 s{sidx}, 11")
        e(f"s_cselect_b32 s{sidx}, 0, s{sidx}")

    def issue_step(i):
        issue_A(i, 73)
        issue_B(i, 73)
        adv(73)

    e("s_mov_b32 s78, s73")
    for i in range(K2_NST):
        issue_B(i, 78)
        adv(78)
    e("s_barrier")
    stamp()
    for i in range(K2_NST):
        issue_A(i, 73)
        adv(73)
    c("epilogue operand loads: tile (mi = w/2, ni = w%2)")
    e(f"s_lshr_b32 s{sT0}, s{sW}, 1")
    e(f"s_lshl_b32 s{sT0}, s{sT0}, 5")
    e(f"s_lshl_b32 s{sT1}, s{sMT}, 6")
    e(f"s_add_u32 s{sT0}, s{sT0}, s{sT1}")
    e(f"v_add_u32 v4, s{sT0}, v2")
    e(f"s_and_b32 s{sT1}, s{sW}, 1")
    e(f"s_lshl_b32 s{sT1}, s{sT1}, 6")
    e(f"s_lshl_b32 s72, s{sNT}, 7")
    e(f"s_add_u32 s{sT1}, s{sT1}, s72")
    e("v_lshlrev_b32 v5, 10, v4")
    e(f"v_add_u32 v5, s{sT1}, v5")
    e(f"v_lshl_add_u32 v{vOut}, v3, 4, v5")
    e("v_lshl_add_u32 v5, v3, 3, v5")
    for q in range(4):
        e(f"buffer_load_dwordx2 {vr(XR + 2 * q, 2)}, v5, {sr(S_X, 4)}, 0 offen offset:{16 * q}")
    e(f"s_mov_b32 s72, {WS_ST}")
    e("v_lshlrev_b32 v5, 3, v4")
    e(f"buffer_load_dwordx2 {vr(NR, 2)}, v5, {sr(S_WS, 4)}, s72 offen")
    NEPI = 4 + 1
    c("B tr-read lane addresses")
    e("v_and_b32 v4, 15, v1")
    e("v_lshrrev_b32 v5, 2, v4")
    e("v_lshl_add_u32 v6, v3, 4, v5")
    e("v_lshlrev_b32 v6, 7, v6")
    e("v_lshrrev_b32 v7, 4, v1")
    e("v_and_b32 v7, 1, v7")
    e("v_lshl_add_u32 v6, v7, 5, v6")
    e("v_and_b32 v7, 3, v4")
    e("v_lshl_add_u32 v6, v7, 3, v6")
    e(f"v_add_u32 v6, s{sLB}, v6")
    e("v_lshrrev_b32 v7, 3, v4")
    e(f"v_lshl_add_u32 v{vB0}, v7, 6, v6")
    e("v_xor_b32 v7, 1, v7")
    e(f"v_lshl_add_u32 v{vB1}, v7, 6, v6")
    c("A read address: r*64 + ((2g+s) ^ ((r>>2)&3))*16 ; s via xor 16")
    e("v_lshrrev_b32 v4, 2, v2")
    e("v_and_b32 v4, 3, v4")
    e("v_lshlrev_b32 v5, 1, v3")
    e("v_xor_b32 v4, v4, v5")
    e("v_lshlrev_b32 v4, 4, v4")
    e("v_lshl_add_u32 v4, v2, 6, v4")
    e(f"v_add_u32 v{vAr}, s{sLB}, v4")
    e(f"v_xor_b32 v14, 16, v{vAr}")

    def freads(i, bs):
        st = i % K2_NST
        for s in range(2):
            for mi in range(2):
                e(f"ds_read_b128 {vr(FR + 32 * bs + 8 * mi + 4 * s, 4)}, v{14 if s else vAr} "
                  f"offset:{st * 8192 + mi * 2048}")
        for s in range(2):
            for ni in range(2):
                for u in range(2):
                    e(f"ds_read_b64_tr_b16 {vr(FR + 32 * bs + 16 + 8 * s + 4 * ni + 2 * u, 2)}, v{vB1 if ni else vB0} "
                      f"offset:{st * 8192 + 4096 + (8 * s + 4 * u) * 128}")

    issued = [(i, 4) for i in range(K2_NST)] + [("epi", NEPI)]

    def wait_for_step(i):
        n = 0
        seen = False
        for x, cnt in issued:
            if seen:
                n += cnt
            if x == i:
                seen = True
        e(f"s_waitcnt vmcnt({min(n, 63)})")

    for r in range(64):
        e(f"v_mov_b32 v{ACC + r}, 0")
    stamp()
    wait_for_step(0)
    stamp()
    freads(0, 0)
    for i in range(K2_STEPS):
        bs = i & 1
        e("s_waitcnt lgkmcnt(0)")
        if i + K2_NST < K2_STEPS:
            issue_step(i + K2_NST)
            issued.append((i + K2_NST, 8))
        if i + 1 < K2_STEPS:
            wait_for_step(i + 1)
            freads(i + 1, bs ^ 1)
        stamp()
        e(f"s_add_u32 s74, s75, s{sW}")
        e("s_add_u32 s75, s75, 1")
        e("s_cmp_ge_u32 s75, 11")
        e("s_cselect_b32 s75, 0, s75")
        e("s_cmp_eq_u32 s74, 13")
        e(f"s_cbranch_scc1 k2_skip{i}")
        for s in range(2):
            for mi in range(2):
                for ni in range(2):
                    a = ACC + 16 * (2 * mi + ni)
                    e(f"v_mfma_f32_32x32x16_bf16 {vr(a, 16)}, {vr(FR + 32 * bs + 16 + 8 * s + 4 * ni, 4)}, "
                      f"{vr(FR + 32 * bs + 8 * mi + 4 * s, 4)}, {vr(a, 16)}")
        e(f"k2_skip{i}:")
    e("s_nop 15")
    e("s_nop 3")
    stamp()
    c("write non-owned partial tiles to own LDS ring region")
    e("v_lshlrev_b32 v4, 4, v1")
    e(f"v_add_u32 v4, s{sLB}, v4")
    for t in range(4):
        e(f"s_cmp_eq_u32 s{sW}, {t}")
        e(f"s_cbranch_scc1 k2_skipw{t}")
        for q in range(4):
            e(f"ds_write_b128 v4, {vr(ACC + 16 * t + 4 * q, 4)} offset:{t * 4096 + q * 1024}")
        e(f"k2_skipw{t}:")
    e("s_waitcnt lgkmcnt(0)")
    e("s_barrier")
    stamp()
    c("owner gathers: tile w from the other 3 waves; move own tile to v[16:31]")
    for t in range(4):
        e(f"s_cmp_lg_u32 s{sW}, {t}")
        e(f"s_cbranch_scc1 k2_skipm{t}")
        for r in range(16):
            e(f"v_mov_b32 v{16 + r}, v{ACC + 16 * t + r}")
        e(f"k2_skipm{t}:")
    e(f"s_lshl_b32 s{sT0}, s{sW}, 12")
    e("v_lshlrev_b32 v4, 4, v1")
    e(f"v_add_u32 v4, s{sT0}, v4")
    for k in range(1, 4):
        e(f"s_add_u32 s{sT1}, s{sW}, {k}")
        e(f"s_and_b32 s{sT1}, s{sT1}, 3")
        e(f"s_mul_i32 s{sT1}, s{sT1}, {K2_WREG}")
        e(f"v_add_u32 v5, s{sT1}, v4")
        for q in range(4):
            e(f"ds_read_b128 {vr(32 + 16 * (k - 1) + 4 * q, 4)}, v5 offset:{q * 1024}")
    c("y2 tr reads: c0 = 8q + 4g")
    e("v_and_b32 v4, 15, v1")
    e("v_lshrrev_b32 v5, 2, v4")
    e("v_lshl_add_u32 v5, v3, 2, v5")
    e("v_lshlrev_b32 v5, 6, v5")
    e("v_lshrrev_b32 v6, 4, v1")
    e("v_and_b32 v6, 1, v6")
    e("v_lshl_add_u32 v5, v6, 5, v5")
    e("v_and_b32 v6, 3, v4")
    e("v_lshl_add_u32 v5, v6, 3, v5")
    e(f"v_add_u32 v5, s{sLB}, v5")
    e("s_waitcnt vmcnt(0)")
    YR = 80
    for q in range(4):
        e(f"ds_read_b64_tr_b16 {vr(YR + 2 * q, 2)}, v5 offset:{K2_NST * 8192 + q * 512}")
    e("s_waitcnt lgkmcnt(0)")
    for r in range(16):
        e(f"v_add_f32 v{16 + r}, v{16 + r}, v{32 + r}")
        e(f"v_add_f32 v{48 + r}, v{48 + r}, v{64 + r}")
    for r in range(16):
        e(f"v_add_f32 v{16 + r}, v{16 + r}, v{48 + r}")
    OUTR = 88
    for q in range(4):
        for h2 in range(2):
            x = XR + 2 * q + h2
            n = NR + 2 * q + h2
            y = YR + 2 * q + h2
            b = 16 + 4 * q + 2 * h2
            e(f"v_lshlrev_b32 v4, 16, v{x}")
            e(f"v_and_b32 v5, 0xffff0000, v{x}")
            e(f"v_fma_f32 v7, v4, v{NR}, v{NR + 1}")
            e(f"v_fma_f32 v6, v5, v{NR}, v{NR + 1}")
            e("v_cvt_pk_bf16_f32 v6, v7, v6")
            e("v_lshlrev_b32 v7, 16, v6")
            e("v_and_b32 v6, 0xffff0000, v6")
            e(f"v_lshlrev_b32 v32, 16, v{y}")
            e(f"v_and_b32 v33, 0xffff0000, v{y}")
            e("v_mul_f32 v7, v7, v32")
            e("v_mul_f32 v6, v6, v33")
            e("v_cvt_pk_bf16_f32 v6, v7, v6")
            e("v_lshlrev_b32 v7, 16, v6")
            e("v_and_b32 v6, 0xffff0000, v6")
            e("v_add_f32 v7, v4, v7")
            e("v_add_f32 v6, v5, v6")
            e("v_cvt_pk_bf16_f32 v6, v7, v6")
            e(f"v_cvt_pk_bf16_f32 v32, v{b}, v{b + 1}")
            e("v_lshlrev_b32 v7, 16, v6")
            e("v_and_b32 v6, 0xffff0000, v6")
            e("v_lshlrev_b32 v33, 16, v32")
            e("v_and_b32 v32, 0xffff0000, v32")
            e("v_add_f32 v7, v7, v33")
            e("v_add_f32 v6, v6, v32")
            e(f"v_cvt_pk_bf16_f32 v{OUTR + 2 * q + h2}, v7, v6")
    e("s_nop 1")
    for qq in range(2):
        o = OUTR + 4 * qq
        e(f"v_permlane32_swap_b32 v{o}, v{o + 2}")
        e(f"v_permlane32_swap_b32 v{o + 1}, v{o + 3}")
        e(f"buffer_store_dwordx4 {vr(o, 4)}, v{vOut}, {sr(S_OUT, 4)}, 0 offen offset:{32 * qq}")
    e("g2_exit:")
    stamp_flush(S_WS, WS_PROF)
    e("s_endpgm")
    e("g2_helper:")
    c("helper wave: wait for the 11 GEMM1 tiles of row block mt2/2")
    e(f"s_lshr_b32 s79, s{sMT}, 2")
    e(f"s_lshl_b32 s79, s79, 5")
    e(f"s_lshr_b32 s78, s{sMT}, 1")
    e(f"s_and_b32 s78, s78, 1")
    e(f"s_lshl_b32 s78, s78, 2")
    e(f"s_add_u32 s79, s79, s78")
    e(f"s_add_u32 s79, s79, 4")
    poll(79, 11)
    e("s_barrier")
    c("wait for conv group nt2, stage the four y2T tiles")
    e(f"s_lshl_b32 s79, s{sNT}, 5")
    e("s_add_u32 s79, s79, 12")
    poll(79, 8)
    e("v_lshrrev_b32 v5, 2, v1")
    e("v_lshlrev_b32 v5, 12, v5")
    e("v_and_b32 v6, 3, v1")
    e("v_lshl_add_u32 v5, v6, 4, v5")
    e(f"s_lshl_b32 s{sT1}, s{sNT}, 18")
    e(f"s_lshl_b32 s{sT0}, s{sMT}, 7")
    e(f"s_add_u32 s{sT1}, s{sT1}, s{sT0}")
    e(f"s_add_u32 s{sT1}, s{sT1}, {WS_Y2}")
    for w in range(4):
        mi, ni = w >> 1, w & 1
        for j in range(2):
            e(f"s_mov_b32 m0, {w * K2_WREG + K2_NST * 8192 + j * 1024}")
            e(f"s_add_u32 s{sT0}, s{sT1}, {(ni * 32 + j * 16) * 4096 + mi * 64}")
            e(f"buffer_load_dwordx4 v5, {sr(S_WS, 4)}, s{sT0} offen lds")
    e("s_waitcnt vmcnt(0)")
    e("s_barrier")
    e("s_branch g2_exit")


def descriptor(name, nv):
    L.append(".p2align 6")
    L.append(f".amdhsa_kernel {name}")
    L.append(f"  .amdhsa_next_free_vgpr {nv}")
    L.append("  .amdhsa_next_free_sgpr 102")
    L.append(f"  .amdhsa_accum_offset {nv}")
    L.append("  .amdhsa_group_segment_fixed_size 0")
    L.append("  .amdhsa_kernarg_size 104")
    L.append("  .amdhsa_user_sgpr_count 2")
    L.append("  .amdhsa_user_sgpr_kernarg_segment_ptr 1")
    L.append("  .amdhsa_system_sgpr_workgroup_id_x 1")
    L.append(".end_amdhsa_kernel")


def main():
    hdr = open(f"cdna_kernels/{NAME}.s.ref").read().split("\n")
    for line in hdr:
        if line.startswith("; Override") or line.startswith("; grid=") or "@launch" in line:
            continue
        if not line.startswith(";"):
            break
        L.append(line)
    L.append(f"; @launch kernel=k1_kernel grid=(256,1,1) block=(512,1,1) lds=163840")
    L.append('.amdgcn_target "amdgcn-amd-amdhsa--gfx950"')
    L.append(".text")
    kernel1()
    L.append('.section .rodata,"a"')
    descriptor("k1_kernel", 256)
    out = sys.argv[1] if len(sys.argv) > 1 else f"cdna_kernels/{NAME}.s"
    open(out, "w").write("\n".join(L) + "\n")


if __name__ == "__main__":
    main()
```

```python
import sys

NAME = "parallel_sum__ssm_conv_h3__glu_gated_bilinear__prompt"

WS_H = 0
HP = 2816
WS_H_BYTES = 2048 * HP
WS_Y2 = 0x600000
WS_ST = 0x800000
WS_XN = 0xA00000
WS_KV = 0xC00000
WS_MB = 0x900000
ZOFF = 16

import os
K1MAP = int(os.environ.get('K1MAP', '1'))
WBL2 = int(os.environ.get('WBL2', '0'))
STC = os.environ.get('STC', '' if WBL2 else ' sc1')
PREF = int(os.environ.get('PREF', '1'))
PREF2 = int(os.environ.get('PREF2', '1'))
PREF3 = int(os.environ.get('PREF3', '1'))
PSLEEP = int(os.environ.get('PSLEEP', '1'))
CSLEEP = int(os.environ.get('CSLEEP', '0'))
ISLEEP = int(os.environ.get('ISLEEP', '0'))
KV16 = int(os.environ.get('KV16', '0'))
L = []


def e(s=""):
    L.append("    " + s if s and not s.endswith(":") else s)


def c(s):
    L.append("    ; " + s)


PROF = len(sys.argv) > 2 and sys.argv[2] == "prof"
WS_PROF = 0xE00000
_stamp = [0]


SPAIR = [6, 8, 10, 12, 14, 88, 90, 92, 94, 96, 100]


def stamp(k=None):
    if not PROF or k is None or k is True:
        return
    if k == 0:
        e("s_memrealtime s[98:99]")
        e("s_waitcnt lgkmcnt(0)")
        e("v_writelane_b32 v255, s98, 63")
        for p in SPAIR:
            e(f"s_mov_b32 s{p}, 0")
    e(f"s_memtime s[{SPAIR[k]}:{SPAIR[k] + 1}]")


def stamp_flush(srd, base):
    if not PROF:
        return
    stamp(10)
    e("s_memrealtime s[98:99]")
    e("s_waitcnt lgkmcnt(0)")
    e("v_writelane_b32 v255, s98, 62")
    for k, p in enumerate(SPAIR):
        e(f"v_writelane_b32 v255, s{p}, {k}")
    e("v_lshrrev_b32 v253, 6, v0")
    e("v_lshl_add_u32 v253, s2, 3, v253")
    e("v_lshlrev_b32 v253, 8, v253")
    e("v_and_b32 v254, 63, v0")
    e("v_lshl_add_u32 v253, v254, 2, v253")
    e(f"v_add_u32 v253, {base}, v253")
    e(f"buffer_store_dword v255, v253, {sr(srd, 4)}, 0 offen")


def vr(a, n=1):
    return f"v{a}" if n == 1 else f"v[{a}:{a + n - 1}]"


def sr(a, n=1):
    return f"s{a}" if n == 1 else f"s[{a}:{a + n - 1}]"


def make_srd(d, ptr, nbytes):
    e(f"s_mov_b32 s{d}, s{ptr}")
    e(f"s_and_b32 s{d + 1}, s{ptr + 1}, 0xffff")
    e(f"s_mov_b32 s{d + 2}, {nbytes}")
    e(f"s_mov_b32 s{d + 3}, 0x00020000")


P_Q, P_K, P_V, P_SH, P_SK, P_SD, P_BX, P_WG = 16, 18, 20, 22, 24, 26, 28, 30
P_WU, P_WD, P_OUT, P_DBG, P_WS = 32, 34, 36, 38, 40


def load_ptrs():
    e("s_load_dwordx16 s[16:31], s[0:1], 0")
    e("s_load_dwordx8 s[32:39], s[0:1], 64")
    e("s_load_dwordx2 s[40:41], s[0:1], 96")


S_DB2 = 84
_lbl = [0]


sZ = 82


def zload():
    e(f"s_load_dword s{sZ}, {sr(P_DBG, 2)}, {ZOFF}")


def signal(sW, S_WS, mode, sIdx):
    _lbl[0] += 1
    n = _lbl[0]
    e(f"s_cmp_lg_u32 s{sW}, 0")
    e(f"s_cbranch_scc1 sig_skip{n}")
    e(f"s_cmp_ge_u32 s{sZ}, 256")
    e(f"s_cbranch_scc1 sig_go{n}")
    make_srd(S_DB2, P_DBG, 256)
    e(f"s_mov_b32 s79, {ZOFF}")
    poll(79, 256)
    e(f"sig_go{n}:")
    e("v_and_b32 v14, 63, v0")
    if mode == "h":
        e("v_and_b32 v12, 1, v14")
        e(f"s_lshl_b32 s79, s{sIdx}, 1")
        e("v_add_u32 v12, s79, v12")
        e("v_lshrrev_b32 v13, 1, v14")
    else:
        e("v_mov_b32 v12, v14")
        e(f"v_mov_b32 v13, s{sIdx}")
    e("v_and_b32 v15, 3, v12")
    e("v_lshl_add_u32 v15, v13, 2, v15")
    e("v_lshrrev_b32 v12, 2, v12")
    e("v_lshl_add_u32 v12, v15, 3, v12")
    e("v_lshlrev_b32 v12, 8, v12")
    e(f"v_add_u32 v12, {WS_MB + (0 if mode == 'h' else 4)}, v12")
    e("v_mov_b32 v13, 1")
    e(f"v_cmp_gt_u32 vcc, {16 if mode == 'h' else 32}, v14")
    e("s_and_saveexec_b64 s[70:71], vcc")
    e(f"buffer_atomic_add v13, v12, {sr(S_WS, 4)}, 0 offen sc1")
    e("s_mov_b64 exec, s[70:71]")
    e(f"sig_skip{n}:")


def poll(sOff, target, srd=None):
    srd = S_DB2 if srd is None else srd
    _lbl[0] += 1
    n = _lbl[0]
    e(f"v_mov_b32 v15, s{sOff}")
    e("s_mov_b32 s80, 0")
    e(f"poll{n}:")
    e(f"buffer_load_dword v14, v15, {sr(srd, 4)}, 0 offen sc1")
    e("s_waitcnt vmcnt(0)")
    e("v_readfirstlane_b32 s81, v14")
    e("s_nop 3")
    e("s_add_u32 s80, s80, 1")
    e(f"s_cmp_ge_u32 s81, {target}")
    e(f"s_cbranch_scc1 polled{n}")
    if PSLEEP:
        e(f"s_sleep {PSLEEP}")
    e("s_cmp_lt_u32 s80, 0x40000")
    e(f"s_cbranch_scc1 poll{n}")
    e(f"polled{n}:")


K1_NCONV = 64
K1_NGEMM = 176
K1_BUF = [131072, 0, 32768, 65536, 98304]


K1_STG = 49152
K1_EX = 147456


def k1_gemm():
    S_X, S_WG, S_WU, S_WS = 44, 48, 52, 56
    sMT, sNT, sW, sT0, sT1, sW0, sMW, sROW = 60, 61, 62, 63, 64, 65, 66, 67
    AF = 16
    CD = 24
    ACC = 144
    BF = 208
    vDMA, vB0, vB1, vBc0, vBc1, vHoff = 240, 241, 242, 243, 244, 245
    CS, SX, SQ = 246, 250, 252
    vXD, vA0, vAc, vC0, vCc = 40, 41, 42, 43, 44
    e("k1_gemm:")
    e("s_sub_u32 s3, s2, %d" % K1_NCONV)
    if K1MAP:
        c("k = 22*(t%8) + t/8 ; mh = k/88 ; rem = k%88 ; nt = rem/8 ; mt = mh*8 + rem%8")
        e("s_and_b32 s4, s3, 7")
        e("s_mul_i32 s4, s4, 22")
        e("s_lshr_b32 s5, s3, 3")
        e("s_add_u32 s4, s4, s5")
        e("s_cmp_ge_u32 s4, 88")
        e("s_cselect_b32 s5, 88, 0")
        e(f"s_cselect_b32 s{sMT}, 8, 0")
        e("s_sub_u32 s4, s4, s5")
        e(f"s_lshr_b32 s{sNT}, s4, 3")
        e("s_and_b32 s4, s4, 7")
        e(f"s_add_u32 s{sMT}, s{sMT}, s4")
    else:
        e("s_and_b32 s4, s3, 7")
        e("s_lshr_b32 s5, s3, 3")
        e(f"s_lshr_b32 s{sNT}, s5, 1")
        e("s_and_b32 s5, s5, 1")
        e(f"s_lshl_b32 s{sMT}, s4, 1")
        e(f"s_add_u32 s{sMT}, s{sMT}, s5")
    e("v_lshrrev_b32 v2, 6, v0")
    e("v_and_b32 v1, 63, v0")
    e(f"v_readfirstlane_b32 s{sW}, v2")
    c("x DMA lane offset: row = l>>3, src chunk = (l&7) ^ (row&7)")
    e("v_lshrrev_b32 v2, 3, v1")
    e("v_and_b32 v3, 7, v1")
    e("v_xor_b32 v3, v3, v2")
    e("v_lshlrev_b32 v3, 4, v3")
    e(f"v_lshl_add_u32 v{vXD}, v2, 10, v3")
    c("W DMA lane offsets")
    e("v_lshrrev_b32 v12, 4, v1")
    e("v_and_b32 v13, 15, v1")
    e("v_lshlrev_b32 v14, 2, v12")
    e("v_xor_b32 v13, v13, v14")
    e("v_lshlrev_b32 v13, 4, v13")
    e("v_mul_u32_u24 v14, 2752, v12")
    e(f"v_add_u32 v{vDMA}, v13, v14")
    e(f"s_mul_i32 s{sW0}, s{sW}, {8 * 2752}")
    e(f"s_lshl_b32 s{sT0}, s{sNT}, 8")
    e(f"s_add_u32 s{sW0}, s{sW0}, s{sT0}")
    e(f"s_lshl_b32 s{sMW}, s{sW}, 11")
    e(f"s_lshl_b32 s{sROW}, s{sMT}, 17")
    e(f"s_lshl_b32 s{sT0}, s{sW}, 14")
    e(f"s_add_u32 s{sROW}, s{sROW}, s{sT0}")
    e("s_waitcnt lgkmcnt(0)")
    stamp(0)
    make_srd(S_X, P_Q, 2048 * 1024)
    make_srd(S_WG, P_WG, 512 * 2752)
    make_srd(S_WU, P_WU, 512 * 2752)
    make_srd(S_WS, P_WS, 0x1000000)

    def dma_slab(s):
        base = K1_STG * (s % 3)
        for j in range(2):
            e(f"s_add_u32 m0, s{sMW}, {base + 32768 + j * 1024}")
            e(f"s_add_u32 s{sT0}, s{sROW}, {j * 8192 + s * 128}")
            e(f"buffer_load_dwordx4 v{vXD}, {sr(S_X, 4)}, s{sT0} offen lds")
        for part in range(2):
            for j in range(2):
                e(f"s_add_u32 m0, s{sMW}, {base + part * 16384 + j * 1024}")
                e(f"s_add_u32 s{sT0}, s{sW0}, {(64 * s + 4 * j) * 2752}")
                e(f"buffer_load_dwordx4 v{vDMA}, {sr(S_WU if part else S_WG, 4)}, s{sT0} offen lds")

    for s in range(3):
        dma_slab(s)
    NPF = 0
    if PREF:
        c("L2 prefetch: W rows k = (mt%8)*64 + w*8 + (l/16)*2 + {0,1} of both W tiles; x K-slabs 3..7")
        e(f"s_and_b32 s{sT0}, s{sMT}, 7")
        e(f"s_lshl_b32 s{sT0}, s{sT0}, 6")
        e(f"s_lshl_b32 s{sT1}, s{sW}, 3")
        e(f"s_add_u32 s{sT0}, s{sT0}, s{sT1}")
        e(f"s_mul_i32 s{sT0}, s{sT0}, 2752")
        e(f"s_lshl_b32 s{sT1}, s{sNT}, 8")
        e(f"s_add_u32 s{sT0}, s{sT0}, s{sT1}")
        e("v_lshrrev_b32 v12, 4, v1")
        e(f"v_mul_u32_u24 v12, {2 * 2752}, v12")
        e("v_and_b32 v13, 15, v1")
        e("v_lshl_add_u32 v12, v13, 4, v12")
        e(f"buffer_load_dwordx4 v[48:51], v12, {sr(S_WG, 4)}, s{sT0} offen")
        e(f"buffer_load_dwordx4 v[52:55], v12, {sr(S_WG, 4)}, s{sT0} offen offset:2752")
        e(f"buffer_load_dwordx4 v[56:59], v12, {sr(S_WU, 4)}, s{sT0} offen")
        e(f"buffer_load_dwordx4 v[60:63], v12, {sr(S_WU, 4)}, s{sT0} offen offset:2752")
        NPF = 4
        if PREF > 1:
            for sl in range(3, 8):
                for j in range(2):
                    e(f"s_add_u32 s{sT0}, s{sROW}, {j * 8192 + sl * 128}")
                    e(f"buffer_load_dwordx4 {vr(64 + 4 * (2 * sl + j - 6), 4)}, v{vXD}, {sr(S_X, 4)}, s{sT0} offen")
            NPF += 10
    for r in range(8):
        e(f"v_mov_b32 v{CS + r}, 0")
    c("A frag read address: 32768 + r*128 + ((2kk+g) ^ (r&7))*16 ; r = (w%4)*32 + l%32 ; kk via xor kk<<5")
    e(f"s_and_b32 s{sT0}, s{sW}, 3")
    e(f"s_lshl_b32 s{sT0}, s{sT0}, 5")
    e("v_and_b32 v2, 31, v1")
    e(f"v_add_u32 v6, s{sT0}, v2")
    e("v_and_b32 v7, 7, v2")
    e("v_lshrrev_b32 v8, 5, v1")
    e("v_xor_b32 v7, v7, v8")
    e("v_lshlrev_b32 v7, 4, v7")
    e("v_lshl_add_u32 v7, v6, 7, v7")
    e(f"v_add_u32 v{vA0}, 32768, v7")
    c("h store offset: (mt*128 + (w%4)*32 + l/8)*HP + nt*256 + nh*128 + (l%8)*16")
    e(f"s_lshl_b32 s{sT1}, s{sMT}, 7")
    e(f"s_add_u32 s{sT1}, s{sT1}, s{sT0}")
    e("v_lshrrev_b32 v6, 3, v1")
    e(f"v_add_u32 v6, s{sT1}, v6")
    e(f"v_mov_b32 v7, {HP}")
    e("v_mul_lo_u32 v6, v6, v7")
    e(f"s_lshr_b32 s{sT0}, s{sW}, 2")
    e(f"s_lshl_b32 s{sT0}, s{sT0}, 7")
    e(f"s_lshl_b32 s{sT1}, s{sNT}, 8")
    e(f"s_add_u32 s{sT0}, s{sT0}, s{sT1}")
    e(f"v_add_u32 v6, s{sT0}, v6")
    e("v_and_b32 v8, 7, v1")
    e(f"v_lshl_add_u32 v{vHoff}, v8, 4, v6")
    c("B tr-read lane addresses for tiles T0=2nh, T1=2nh+1")
    e("v_and_b32 v2, 15, v1")
    e("v_lshrrev_b32 v6, 2, v2")
    e("v_lshrrev_b32 v7, 5, v1")
    e("v_lshl_add_u32 v7, v7, 3, v6")
    e("v_lshlrev_b32 v7, 8, v7")
    e("v_lshrrev_b32 v8, 4, v1")
    e("v_and_b32 v8, 1, v8")
    e("v_lshlrev_b32 v8, 5, v8")
    e("v_add_u32 v7, v7, v8")
    e("v_and_b32 v8, 3, v2")
    e("v_lshlrev_b32 v8, 3, v8")
    e("v_add_u32 v7, v7, v8")
    e(f"s_lshr_b32 s{sT0}, s{sW}, 2")
    e(f"s_lshl_b32 s{sT0}, s{sT0}, 1")
    e(f"v_xor_b32 v8, s{sT0}, v6")
    e(f"v_lshl_add_u32 v{vB0}, v8, 6, v7")
    e("v_xor_b32 v8, 1, v8")
    e(f"v_lshl_add_u32 v{vB1}, v8, 6, v7")
    c("cs lane base (waves 4-7): part*16384 + (l>>3)*256 + (((8hf + (l&7)) ^ (4*((l>>3)&3))) << 4)")
    e("v_lshrrev_b32 v2, 3, v1")
    e("v_and_b32 v3, 3, v2")
    e("v_lshlrev_b32 v3, 2, v3")
    e("v_and_b32 v4, 7, v1")
    e(f"s_and_b32 s{sT0}, s{sW}, 1")
    e(f"s_lshl_b32 s{sT0}, s{sT0}, 3")
    e(f"v_or_b32 v4, s{sT0}, v4")
    e("v_xor_b32 v4, v4, v3")
    e("v_lshlrev_b32 v4, 4, v4")
    e("v_lshl_add_u32 v4, v2, 8, v4")
    e(f"s_lshr_b32 s{sT0}, s{sW}, 1")
    e(f"s_and_b32 s{sT0}, s{sT0}, 1")
    e(f"s_lshl_b32 s{sT0}, s{sT0}, 14")
    e(f"v_add_u32 v{vC0}, s{sT0}, v4")

    def reads(i, var):
        s, kk, st = i >> 2, i & 3, i & 1
        base = K1_STG * (s % 3)
        if kk == 0:
            e(f"v_add_u32 v{vBc0}, {base}, v{vB0}")
            e(f"v_add_u32 v{vBc1}, {base}, v{vB1}")
            e(f"v_add_u32 v{vAc}, {base}, v{vA0}")
            if var:
                e(f"v_add_u32 v{vCc}, {base}, v{vC0}")
        if kk == 0:
            e(f"ds_read_b128 {vr(AF + 4 * st, 4)}, v{vAc}")
        else:
            e(f"v_xor_b32 v2, {kk << 5}, v{vAc}")
            e(f"ds_read_b128 {vr(AF + 4 * st, 4)}, v2")
        for ti in range(4):
            part, T = ti >> 1, ti & 1
            for u in range(2):
                off = part * 16384 + (16 * kk + 4 * u) * 256
                e(f"ds_read_b64_tr_b16 {vr(BF + 16 * st + 4 * ti + 2 * u, 2)}, v{vBc1 if T else vBc0} offset:{off}")
        if var:
            for t in range(2):
                e(f"ds_read_b128 {vr(CD + 8 * st + 4 * t, 4)}, v{vCc} offset:{(2 * kk + t) * 2048}")

    e(f"s_waitcnt vmcnt({12 + NPF})")
    e("s_barrier")
    stamp(1)
    e(f"s_cmp_ge_u32 s{sW}, 4")
    e("s_cbranch_scc1 k1_loop1")
    st0 = _stamp[0]
    for var in range(2):
        _stamp[0] = st0
        if var == 1:
            e("k1_loop1:")
        NR = 11 if var else 9
        reads(0, var)
        for i in range(32):
            st = i & 1
            newslab = i + 1 < 32 and (i + 1) % 4 == 0
            sn = (i + 1) // 4
            if newslab:
                e(f"s_waitcnt vmcnt({(6 + NPF if sn <= 2 else 6) if sn < 7 else 0}) lgkmcnt(0)")
                e("s_barrier")
                stamp(2 if sn == 4 else None)
                reads(i + 1, var)
                if sn + 2 <= 7:
                    dma_slab(sn + 2)
                if sn == 6 and var == 0:
                    zload()
            elif i + 1 < 32:
                reads(i + 1, var)
                e(f"s_waitcnt lgkmcnt({NR})")
            else:
                e("s_waitcnt lgkmcnt(0)")
            side = []
            if var == 0:
                for d in range(4):
                    x = AF + 4 * st + d
                    t0, t1 = 4 + 2 * (d & 1), 5 + 2 * (d & 1)
                    side += [f"v_lshlrev_b32 v{t0}, 16, v{x}", f"v_and_b32 v{t1}, 0xffff0000, v{x}",
                             f"v_add_f32 v{SX}, v{SX}, v{t0}", f"v_add_f32 v{SX + 1}, v{SX + 1}, v{t1}",
                             f"v_fma_f32 v{SQ}, v{t0}, v{t0}, v{SQ}", f"v_fma_f32 v{SQ + 1}, v{t1}, v{t1}, v{SQ + 1}"]
            else:
                for t in range(2):
                    for d in range(4):
                        x = CD + 8 * st + 4 * t + d
                        tm = 4 + (d & 1)
                        side += [f"v_and_b32 v{tm}, 0xffff0000, v{x}", f"v_lshlrev_b32 v{x}, 16, v{x}",
                                 f"v_add_f32 v{CS + 2 * d + 1}, v{CS + 2 * d + 1}, v{tm}",
                                 f"v_add_f32 v{CS + 2 * d}, v{CS + 2 * d}, v{x}"]
            n4 = len(side) // 4
            for ti in range(4):
                cc = "0" if i == 0 else vr(ACC + 16 * ti, 16)
                e(f"v_mfma_f32_32x32x16_bf16 {vr(ACC + 16 * ti, 16)}, {vr(BF + 16 * st + 4 * ti, 4)}, "
                  f"{vr(AF + 4 * st, 4)}, {cc}")
                for x in side[n4 * ti:n4 * ti + n4]:
                    e(x)
        stamp(3)
        e("v_and_b32 v2, 31, v1")
        e("v_lshrrev_b32 v3, 5, v1")
        if var == 0:
            c("row stats -> LDS (EX + 1024 + row*8)")
            e(f"v_add_f32 v{SX}, v{SX}, v{SX + 1}")
            e(f"v_add_f32 v{SQ}, v{SQ}, v{SQ + 1}")
            for r in (SX, SQ):
                e(f"v_mov_b32 v4, v{r}")
                e("s_nop 1")
                e(f"v_permlane32_swap_b32 v4, v{r}")
                e("s_nop 1")
                e(f"v_add_f32 v{r}, v4, v{r}")
            T = 8
            e(f"v_mul_f32 v{T}, 0x3b000000, v{SX}")
            e(f"v_mul_f32 v{T + 2}, 0x3b000000, v{SQ}")
            e(f"v_fma_f32 v{T + 2}, -v{T}, v{T}, v{T + 2}")
            e(f"v_max_f32 v{T + 2}, 0, v{T + 2}")
            e(f"v_cvt_pk_bf16_f32 v{T + 1}, v{T}, v{T + 2}")
            e(f"v_lshlrev_b32 v{T + 4}, 16, v{T + 1}")
            e(f"v_and_b32 v{T + 2}, 0xffff0000, v{T + 1}")
            e(f"v_add_f32 v{T + 2}, 0x3727c5ac, v{T + 2}")
            e(f"v_cvt_pk_bf16_f32 v{T + 2}, v{T + 2}, v{T + 2}")
            e(f"v_and_b32 v{T + 2}, 0xffff0000, v{T + 2}")
            e(f"v_sqrt_f32 v{T + 2}, v{T + 2}")
            e("s_nop 0")
            e(f"v_cvt_pk_bf16_f32 v{T + 2}, v{T + 2}, v{T + 2}")
            e(f"v_and_b32 v{T + 2}, 0xffff0000, v{T + 2}")
            e(f"v_rcp_f32 v{T + 6}, v{T + 2}")
            e("s_nop 0")
            e(f"v_mul_f32 v{T + 7}, v{T + 4}, v{T + 6}")
            e(f"v_sub_f32 v{T + 7}, 0, v{T + 7}")
            e(f"s_lshl_b32 s{sT0}, s{sW}, 8")
            e(f"s_add_u32 s{sT0}, s{sT0}, {K1_EX + 1024}")
            e(f"v_lshl_add_u32 v4, v2, 3, s{sT0}")
            e(f"ds_write_b64 v4, {vr(T + 6, 2)}")
            e("s_branch k1_loop_e")
        else:
            c("column sums: reduce over the 8 lane groups, lanes 0-7 write EX + part*512 + (8hf + l)*32")
            for r in range(8):
                e(f"v_add_f32_dpp v{CS + r}, v{CS + r}, v{CS + r} row_ror:8 row_mask:0xf bank_mask:0xf")
            for sw in ("v_permlane16_swap_b32", "v_permlane32_swap_b32"):
                for r in range(8):
                    e(f"v_mov_b32 v{4 + r}, v{CS + r}")
                e("s_nop 1")
                for r in range(8):
                    e(f"{sw} v{4 + r}, v{CS + r}")
                e("s_nop 1")
                for r in range(8):
                    e(f"v_add_f32 v{CS + r}, v{4 + r}, v{CS + r}")
            e(f"s_and_b32 s{sT0}, s{sW}, 3")
            e(f"s_lshl_b32 s{sT0}, s{sT0}, 8")
            e(f"s_add_u32 s{sT0}, s{sT0}, {K1_EX}")
            e(f"v_lshl_add_u32 v4, v1, 5, s{sT0}")
            e("v_cmp_gt_u32 vcc, 8, v1")
            e("s_and_saveexec_b64 s[70:71], vcc")
            e(f"ds_write_b128 v4, {vr(CS, 4)}")
            e(f"ds_write_b128 v4, {vr(CS + 4, 4)} offset:16")
            e("s_mov_b64 exec, s[70:71]")
    e("k1_loop_e:")
    if PREF2:
        c("prefetch a slice of w_down (1 KB per wave) towards MALL for k2")
        e("s_sub_u32 s3, s2, %d" % K1_NCONV)
        e("s_lshl_b32 s3, s3, 3")
        e(f"s_add_u32 s3, s3, s{sW}")
        e("s_lshl_b32 s3, s3, 10")
        make_srd(S_X, P_WD, 1376 * 1024)
        e("v_lshlrev_b32 v6, 4, v1")
        e(f"buffer_load_dwordx4 v[224:227], v6, {sr(S_X, 4)}, s3 offen")
    e("s_waitcnt lgkmcnt(0)")
    e("s_barrier")
    RS, NM = 246, 248
    e(f"s_and_b32 s{sT0}, s{sW}, 3")
    e(f"s_lshl_b32 s{sT0}, s{sT0}, 8")
    e(f"s_add_u32 s{sT0}, s{sT0}, {K1_EX + 1024}")
    e(f"v_lshl_add_u32 v4, v2, 3, s{sT0}")
    e(f"ds_read_b64 v[250:251], v4")
    e(f"s_lshr_b32 s{sT0}, s{sW}, 2")
    e(f"s_lshl_b32 s{sT0}, s{sT0}, 8")
    e(f"s_add_u32 s{sT0}, s{sT0}, {K1_EX}")
    e(f"v_lshl_add_u32 v4, v3, 4, s{sT0}")
    CSR = 80
    for ti in range(4):
        part, T = ti >> 1, ti & 1
        for q in range(4):
            e(f"ds_read_b128 {vr(CSR + 16 * ti + 4 * q, 4)}, v4 offset:{512 * part + 128 * T + 32 * q}")
    e("s_waitcnt lgkmcnt(15)")
    e(f"v_mov_b32 v{RS}, v250")
    e(f"v_mov_b32 v{RS + 1}, v250")
    e(f"v_mov_b32 v{NM}, v251")
    e(f"v_mov_b32 v{NM + 1}, v251")
    c("row stats store (nt == 0, waves 0-3, lanes 0-31)")
    e(f"s_lshr_b32 s{sT0}, s{sW}, 2")
    e(f"s_or_b32 s{sT0}, s{sT0}, s{sNT}")
    e(f"s_cmp_lg_u32 s{sT0}, 0")
    e("s_cbranch_scc1 k1_nostat")
    e(f"s_lshl_b32 s{sT0}, s{sMT}, 7")
    e(f"s_lshl_b32 s{sT1}, s{sW}, 5")
    e(f"s_add_u32 s{sT0}, s{sT0}, s{sT1}")
    e(f"s_lshl_b32 s{sT0}, s{sT0}, 3")
    e(f"s_add_u32 s{sT0}, s{sT0}, {WS_ST}")
    e("v_lshlrev_b32 v252, 3, v2")
    e("v_cmp_eq_u32 vcc, 0, v3")
    e("s_and_saveexec_b64 s[70:71], vcc")
    e(f"buffer_store_dwordx2 v[250:251], v252, {sr(S_WS, 4)}, s{sT0} offen{STC}")
    e("s_mov_b64 exec, s[70:71]")
    e("k1_nostat:")
    c("epilogue: h = bf16(bf16(g)*bf16(u)); transpose via wave-private LDS (4 KB at 65536 + w*4096)")
    e(f"s_lshl_b32 s{sT0}, s{sW}, 12")
    e(f"s_add_u32 s{sT0}, s{sT0}, 65536")
    e("v_and_b32 v4, 7, v2")
    e("v_xor_b32 v4, v4, v3")
    e("v_lshlrev_b32 v4, 4, v4")
    e("v_lshl_add_u32 v4, v2, 7, v4")
    e(f"v_add_u32 v4, s{sT0}, v4")
    e("v_lshrrev_b32 v5, 3, v1")
    e("v_and_b32 v6, 7, v1")
    e("v_xor_b32 v6, v6, v5")
    e("v_lshlrev_b32 v6, 4, v6")
    e("v_lshl_add_u32 v6, v5, 7, v6")
    e(f"v_add_u32 v6, s{sT0}, v6")
    e("s_waitcnt lgkmcnt(0)")
    for r in range(0, 64, 2):
        e(f"v_pk_mul_f32 {vr(CSR + r, 2)}, {vr(CSR + r, 2)}, {vr(NM, 2)}")
    for r in range(0, 64, 2):
        e(f"v_pk_fma_f32 {vr(ACC + r, 2)}, {vr(ACC + r, 2)}, {vr(RS, 2)}, {vr(CSR + r, 2)}")
    for T in range(2):
        G, U = ACC + 16 * T, ACC + 32 + 16 * T
        for qq in range(2):
            o = 16 + 4 * (2 * T + qq)
            for h2 in range(4):
                r = 8 * qq + 2 * h2
                e(f"v_cvt_pk_bf16_f32 v8, v{G + r}, v{G + r + 1}")
                e(f"v_cvt_pk_bf16_f32 v9, v{U + r}, v{U + r + 1}")
                e("v_lshlrev_b32 v10, 16, v8")
                e("v_and_b32 v11, 0xffff0000, v8")
                e("v_lshlrev_b32 v12, 16, v9")
                e("v_and_b32 v13, 0xffff0000, v9")
                e("v_mul_f32 v10, v10, v12")
                e("v_mul_f32 v11, v11, v13")
                e(f"v_cvt_pk_bf16_f32 v{o + h2}, v10, v11")
            e("s_nop 1")
            e(f"v_permlane32_swap_b32 v{o}, v{o + 2}")
            e(f"v_permlane32_swap_b32 v{o + 1}, v{o + 3}")
            e(f"v_xor_b32 v7, {(4 * T + 2 * qq) << 4}, v4")
            e(f"ds_write_b128 v7, {vr(o, 4)}")
    e("s_waitcnt lgkmcnt(0)")
    for j in range(4):
        e(f"ds_read_b128 {vr(32 + 4 * j, 4)}, v6 offset:{1024 * j}")
    for j in range(4):
        e(f"s_waitcnt lgkmcnt({3 - j})")
        e(f"s_mov_b32 s{sT0}, {8 * j * HP}")
        e(f"buffer_store_dwordx4 {vr(32 + 4 * j, 4)}, v{vHoff}, {sr(S_WS, 4)}, s{sT0} offen{STC}")
    stamp(4)
    e("s_waitcnt vmcnt(0)")
    e("s_barrier")
    stamp(5)
    signal(sW, S_WS, "h", sMT)
    e("s_branch g2_entry")


CV_R = 0
CV_RSTR = 4608
CV_KT = 36864
CV_KSTR = 8320
CV_KCPY = 4160


def k1_conv():
    S_K, S_V, S_SK, S_WS, S_SH, S_DBG = 44, 48, 52, 56, 72, 76
    sW, sT0, sT1, sD, sG, sJ = 62, 63, 64, 65, 66, 67
    e("k1_conv:")
    e("v_lshrrev_b32 v2, 6, v0")
    e("v_and_b32 v1, 63, v0")
    e(f"v_readfirstlane_b32 s{sW}, v2")
    e("s_waitcnt lgkmcnt(0)")
    stamp(0)
    for _ in range(CSLEEP):
        e("s_sleep 16")
    make_srd(S_K, P_K, 2048 * 1024)
    make_srd(S_V, P_V, 2048 * 1024)
    make_srd(S_SK, P_SK, 512 * 4096)
    make_srd(S_WS, P_WS, 0x1000000)
    make_srd(S_SH, P_SH, 4096)
    make_srd(S_DBG, P_DBG, 256)
    e(f"s_lshr_b32 s{sG}, s2, 3")
    e(f"s_and_b32 s{sJ}, s2, 7")
    c("---- kv phase: rows J*256 + 4*rg.., channels G*64 + cs*8..")
    e("v_lshrrev_b32 v2, 3, v0")
    e("v_and_b32 v3, 7, v0")
    e(f"s_lshl_b32 s{sT0}, s{sJ}, 18")
    e(f"s_lshl_b32 s{sT1}, s{sG}, 7")
    e(f"s_add_u32 s{sT0}, s{sT0}, s{sT1}")
    e("v_lshlrev_b32 v4, 12, v2")
    e("v_lshl_add_u32 v4, v3, 4, v4")
    e(f"v_add_u32 v4, s{sT0}, v4")
    e("v_subrev_u32 v5, 3072, v4")
    KD, VD, WD = 16, 44, 60
    for r in range(3):
        e(f"buffer_load_dwordx4 {vr(KD + 4 * r, 4)}, v5, {sr(S_K, 4)}, 0 offen offset:{1024 * r}")
    for r in range(4):
        e(f"buffer_load_dwordx4 {vr(KD + 12 + 4 * r, 4)}, v4, {sr(S_K, 4)}, 0 offen offset:{1024 * r}")
    for r in range(4):
        e(f"buffer_load_dwordx4 {vr(VD + 4 * r, 4)}, v4, {sr(S_V, 4)}, 0 offen offset:{1024 * r}")
    e(f"s_lshl_b32 s{sT1}, s{sG}, 9")
    e("v_lshlrev_b32 v6, 6, v3")
    e(f"v_add_u32 v6, s{sT1}, v6")
    for j in range(4):
        e(f"buffer_load_dwordx4 {vr(WD + 4 * j, 4)}, v6, {sr(S_SH, 4)}, 0 offen offset:{16 * j}")
    c("ssm_D for this wave's channel")
    e(f"s_lshl_b32 s{sT0}, s2, 4")
    e(f"s_lshl_b32 s{sT1}, s{sW}, 1")
    e(f"s_add_u32 s{sT0}, s{sT0}, s{sT1}")
    e(f"s_and_b32 s{sT1}, s{sT0}, 0xfffffffc")
    e(f"s_add_u32 s{P_SD}, s{P_SD}, s{sT1}")
    e(f"s_addc_u32 s{P_SD + 1}, s{P_SD + 1}, 0")
    e(f"s_load_dword s{sD}, {sr(P_SD, 2)}, 0")
    c("ssm_k row of this wave's channel")
    SKD = 232
    e(f"s_lshl_b32 s{sT0}, s2, 3")
    e(f"s_add_u32 s{sT0}, s{sT0}, s{sW}")
    e(f"s_lshl_b32 s{sT0}, s{sT0}, 12")
    e("v_lshlrev_b32 v8, 4, v1")
    e(f"v_add_u32 v8, s{sT0}, v8")
    for j in range(4):
        e(f"buffer_load_dwordx4 {vr(SKD + 4 * j, 4)}, v8, {sr(S_SK, 4)}, 0 offen offset:{1024 * j}")
    for j in range(4):
        e(f"buffer_load_dword v{SKD + 16 + j}, v8, {sr(S_SK, 4)}, 0 offen offset:{1024 * j + 16}")
    c("kv store base: WS_KV + c*4096 + 2*(2044 - t0)")
    e(f"s_lshl_b32 s{sT0}, s{sG}, 18")
    e(f"s_add_u32 s{sT0}, s{sT0}, {WS_KV + 4088}")
    e(f"s_lshl_b32 s{sT1}, s{sJ}, 9")
    e(f"s_sub_u32 s{sT0}, s{sT0}, s{sT1}")
    e("v_lshlrev_b32 v7, 15, v3")
    e(f"v_add_u32 v7, s{sT0}, v7")
    e("v_lshlrev_b32 v9, 3, v2")
    e("v_sub_u32 v7, v7, v9")
    e("s_waitcnt vmcnt(8)")
    stamp(1)
    KF, VF, WF = 80, 136, 200
    for cc in range(8):
        for jp in range(2):
            w = WD + 2 * cc + jp
            e(f"v_lshlrev_b32 v{WF + (2 * jp) * 8 + cc}, 16, v{w}")
            e(f"v_and_b32 v{WF + (2 * jp + 1) * 8 + cc}, 0xffff0000, v{w}")
    for i in range(28):
        e(f"v_lshlrev_b32 v{KF + 2 * i}, 16, v{KD + i}")
        e(f"v_and_b32 v{KF + 2 * i + 1}, 0xffff0000, v{KD + i}")
    for i in range(16):
        e(f"v_lshlrev_b32 v{VF + 2 * i}, 16, v{VD + i}")
        e(f"v_and_b32 v{VF + 2 * i + 1}, 0xffff0000, v{VD + i}")
    KV = 168
    for r in range(4):
        for cp in range(4):
            d = KV + 8 * r + 2 * cp
            e(f"v_pk_mul_f32 {vr(d, 2)}, {vr(KF + 8 * r + 2 * cp, 2)}, {vr(WF + 3 * 8 + 2 * cp, 2)}")
            for j in range(1, 4):
                e(f"v_pk_fma_f32 {vr(d, 2)}, {vr(KF + 8 * (r + j) + 2 * cp, 2)}, "
                  f"{vr(WF + (3 - j) * 8 + 2 * cp, 2)}, {vr(d, 2)}")
            e(f"v_pk_mul_f32 {vr(d, 2)}, {vr(d, 2)}, {vr(VF + 8 * r + 2 * cp, 2)}")
    if not KV16:
        for cc in range(8):
            o = 16 + 2 * cc
            e(f"v_cvt_pk_bf16_f32 v{o}, v{KV + 24 + cc}, v{KV + 16 + cc}")
            e(f"v_cvt_pk_bf16_f32 v{o + 1}, v{KV + 8 + cc}, v{KV + cc}")
            e(f"s_mov_b32 s{sT1}, {cc * 4096}")
            e(f"buffer_store_dwordx2 {vr(o, 2)}, v7, {sr(S_WS, 4)}, s{sT1} offen sc1")
    else:
        for cc in range(8):
            o = 16 + 2 * cc
            e(f"v_cvt_pk_bf16_f32 v{o}, v{KV + 24 + cc}, v{KV + 16 + cc}")
            e(f"v_cvt_pk_bf16_f32 v{o + 1}, v{KV + 8 + cc}, v{KV + cc}")
        c("pair lanes (rg even = A, odd = B): A stores ch 0-3, B stores ch 4-7, 16B each")
        e("v_and_b32 v9, 8, v0")
        e("v_cmp_ne_u32 vcc, 0, v9")
        e("v_add_u32 v9, 16384, v7")
        e("v_subrev_u32 v7, 8, v7")
        e("s_nop 0")
        e("v_cndmask_b32 v7, v7, v9, vcc")
        for i in range(16):
            e(f"v_mov_b32_dpp v{32 + i}, v{16 + i} row_ror:8 row_mask:0xf bank_mask:0xf")
        for cc in range(4):
            X, Y, PX, PY = 16 + 2 * cc, 24 + 2 * cc, 32 + 2 * cc, 40 + 2 * cc
            o = 48 + 4 * cc
            e(f"v_cndmask_b32 v{o}, v{PX}, v{Y}, vcc")
            e(f"v_cndmask_b32 v{o + 1}, v{PX + 1}, v{Y + 1}, vcc")
            e(f"v_cndmask_b32 v{o + 2}, v{X}, v{PY}, vcc")
            e(f"v_cndmask_b32 v{o + 3}, v{X + 1}, v{PY + 1}, vcc")
            e(f"s_mov_b32 s{sT1}, {cc * 4096}")
            e(f"buffer_store_dwordx4 {vr(o, 4)}, v7, {sr(S_WS, 4)}, s{sT1} offen sc1")
    c("meanwhile: zero pads and KT copies")
    e(f"s_mul_i32 s{sT1}, s{sW}, {CV_RSTR}")
    e("v_lshlrev_b32 v6, 3, v1")
    e(f"v_add_u32 v6, s{sT1}, v6")
    e("v_mov_b32 v10, 0")
    e("v_mov_b32 v11, 0")
    e(f"ds_write_b64 v6, v[10:11] offset:{CV_R + 4096}")
    e(f"s_mul_i32 s{sT1}, s{sW}, {CV_KSTR}")
    e(f"s_add_u32 s{sT1}, s{sT1}, {CV_KT}")
    e("v_lshlrev_b32 v7, 2, v1")
    e(f"v_add_u32 v7, s{sT1}, v7")
    e("v_cmp_gt_u32 vcc, 8, v1")
    e("s_and_saveexec_b64 s[70:71], vcc")
    e("ds_write_b32 v7, v10")
    e(f"ds_write_b32 v7, v10 offset:{CV_KCPY}")
    e("s_mov_b64 exec, s[70:71]")
    e("s_waitcnt lgkmcnt(0)")
    e(f"s_lshl_b32 s{sT0}, s{sD}, 16")
    e(f"s_and_b32 s{sD}, s{sD}, 0xffff0000")
    e(f"s_bitcmp1_b32 s{sW}, 0")
    e(f"s_cselect_b32 s{sD}, s{sD}, s{sT0}")
    e("v_lshlrev_b32 v7, 4, v1")
    e(f"v_add_u32 v7, s{sT1}, v7")
    e(f"s_waitcnt vmcnt({4 if KV16 else 8})")
    for j in range(4):
        d = SKD + 4 * j
        e(f"ds_write_b128 v7, {vr(d, 4)} offset:{32 + 1024 * j}")
        e(f"v_alignbit_b32 v12, v{d + 1}, v{d}, 16")
        e(f"v_alignbit_b32 v13, v{d + 2}, v{d + 1}, 16")
        e(f"v_alignbit_b32 v14, v{d + 3}, v{d + 2}, 16")
        e(f"v_alignbit_b32 v15, v{SKD + 16 + j}, v{d + 3}, 16")
        e(f"ds_write_b128 v7, v[12:15] offset:{CV_KCPY + 32 + 1024 * j}")
        e("s_nop 1")
    e(f"v_lshlrev_b32 v12, 16, v{SKD}")
    e("v_cmp_eq_u32 vcc, 0, v1")
    e("s_and_saveexec_b64 s[70:71], vcc")
    e(f"ds_write_b32 v7, v12 offset:{CV_KCPY + 28}")
    e("s_mov_b64 exec, s[70:71]")
    c("hand-off: all kv stores drained -> barrier -> one atomic add; then poll")
    e("s_waitcnt vmcnt(0)")
    e("s_barrier")
    stamp(2)
    e(f"s_cmp_lg_u32 s{sW}, 0")
    e("s_cbranch_scc1 k1c_wait")
    e(f"s_lshl_b32 s{sT0}, s{sG}, 5")
    e(f"v_mov_b32 v12, s{sT0}")
    e("v_mov_b32 v13, 1")
    e("v_cmp_eq_u32 vcc, 0, v1")
    e("s_and_saveexec_b64 s[70:71], vcc")
    e(f"buffer_atomic_add v13, v12, {sr(S_DBG, 4)}, 0 offen sc1")
    e("s_mov_b32 s80, 0")
    e("k1c_poll:")
    e(f"buffer_load_dword v14, v12, {sr(S_DBG, 4)}, 0 offen sc1")
    e("s_waitcnt vmcnt(0)")
    e("v_readfirstlane_b32 s81, v14")
    e("s_nop 3")
    e("s_add_u32 s80, s80, 1")
    e("s_cmp_ge_u32 s81, 8")
    e("s_cbranch_scc1 k1c_polled")
    e("s_sleep 1")
    e("s_cmp_lt_u32 s80, 0x400000")
    e("s_cbranch_scc1 k1c_poll")
    e("k1c_polled:")
    e("s_mov_b64 exec, s[70:71]")
    e("k1c_wait:")
    e("s_barrier")
    c("load own channel kvR row (sc1) -> LDS R")
    e(f"v_add_u32 v8, {WS_KV}, v8")
    for j in range(4):
        e(f"buffer_load_dwordx4 {vr(16 + 4 * j, 4)}, v8, {sr(S_WS, 4)}, 0 offen offset:{1024 * j} sc1")
    e(f"s_mul_i32 s{sT0}, s{sW}, {CV_RSTR}")
    e("v_lshlrev_b32 v6, 4, v1")
    e(f"v_add_u32 v6, s{sT0}, v6")
    for j in range(4):
        e(f"s_waitcnt vmcnt({3 - j})")
        e(f"ds_write_b128 v6, {vr(16 + 4 * j, 4)} offset:{CV_R + 1024 * j}")
    e("s_waitcnt lgkmcnt(0)")
    stamp(3)
    zload()
    c("MFMA phase: wave w -> channel w")
    ACC = 16
    AR = [48, 112]
    BR = [80, 144]
    vKT, vR, vA = 200, 201, 202
    e("v_and_b32 v2, 15, v1")
    e("v_lshrrev_b32 v3, 4, v1")
    e("v_lshlrev_b32 v4, 1, v2")
    e("v_lshlrev_b32 v5, 4, v3")
    e("v_sub_u32 v4, v4, v5")
    e(f"v_add_u32 v4, {32 - 14}, v4")
    e("v_and_b32 v5, 1, v2")
    e("v_cmp_eq_u32 vcc, 0, v5")
    e("v_mov_b32 v5, 0")
    e(f"v_mov_b32 v6, {CV_KCPY - 2}")
    e("s_nop 1")
    e("v_cndmask_b32 v5, v5, v6, vcc")
    e("v_add_u32 v4, v4, v5")
    e(f"v_add_u32 v{vKT}, s{sT1}, v4")
    e(f"s_mul_i32 s{sT0}, s{sW}, {CV_RSTR}")
    e("v_lshlrev_b32 v4, 5, v2")
    e("v_lshl_add_u32 v4, v3, 4, v4")
    e(f"v_sub_u32 v4, {CV_R + 4080 - 3584}, v4")
    e(f"v_add_u32 v{vR}, s{sT0}, v4")

    def creads(ci, st):
        d0 = 2 * ci + 1
        for pp in range(4):
            e(f"v_add_u32 v{vA + pp}, {32 * d0 + 1024 * pp}, v{vKT}")
        order = [("B", 0)] + [("A", p) for p in range(8)] + [("B", m) for m in range(1, 8)]
        for kind, x in order:
            if kind == "A":
                p = x
                o = 128 * (p & 1)
                e(f"ds_read2_b32 {vr(AR[st] + 4 * p, 2)}, v{vA + (p >> 1)} offset0:{o} offset1:{o + 1}")
                e(f"ds_read2_b32 {vr(AR[st] + 4 * p + 2, 2)}, v{vA + (p >> 1)} offset0:{o + 2} offset1:{o + 3}")
            else:
                m = x
                e(f"ds_read_b128 {vr(BR[st] + 4 * m, 4)}, v{vR} offset:{32 * d0 + 512 * (7 - m)}")

    creads(0, 0)
    for ci in range(8):
        st = ci & 1
        e("s_waitcnt lgkmcnt(0)")
        if ci < 7:
            creads(ci + 1, st ^ 1)
        for m in range(8):
            for p in range(8 - m):
                cc = "0" if (ci == 0 and m == 0) else vr(ACC + 4 * (m + p), 4)
                e(f"v_mfma_f32_16x16x32_bf16 {vr(ACC + 4 * (m + p), 4)}, {vr(AR[st] + 4 * p, 4)}, "
                  f"{vr(BR[st] + 4 * m, 4)}, {cc}")
    stamp(None)
    c("epilogue: kv reads, y2 = bf16(bf16(y) + bf16(kv*D)), store y2T")
    e("v_lshlrev_b32 v4, 5, v2")
    e("v_lshl_add_u32 v4, v3, 3, v4")
    e(f"v_sub_u32 v5, {CV_R + 4088 - 3584}, v4")
    e(f"v_add_u32 v5, s{sT0}, v5")
    KVR = 48
    for n in range(8):
        e(f"ds_read_b64 {vr(KVR + 2 * n, 2)}, v5 offset:{512 * (7 - n)}")
    e(f"s_lshl_b32 s{sT1}, s2, 3")
    e(f"s_add_u32 s{sT1}, s{sT1}, s{sW}")
    e(f"s_lshl_b32 s{sT1}, s{sT1}, 12")
    e(f"s_add_u32 s{sT1}, s{sT1}, {WS_Y2}")
    e(f"v_add_u32 v6, s{sT1}, v4")
    e("s_nop 7")
    e("s_waitcnt lgkmcnt(0)")
    for n in range(8):
        a = ACC + 4 * n
        k0, k1 = KVR + 2 * n, KVR + 2 * n + 1
        o = 80 + 2 * n
        e(f"v_cvt_pk_bf16_f32 v8, v{a}, v{a + 1}")
        e(f"v_cvt_pk_bf16_f32 v9, v{a + 2}, v{a + 3}")
        e(f"v_and_b32 v10, 0xffff0000, v{k1}")
        e(f"v_lshlrev_b32 v11, 16, v{k1}")
        e(f"v_and_b32 v12, 0xffff0000, v{k0}")
        e(f"v_lshlrev_b32 v13, 16, v{k0}")
        for t in range(4):
            e(f"v_mul_f32 v{10 + t}, s{sD}, v{10 + t}")
        e("v_cvt_pk_bf16_f32 v10, v10, v11")
        e("v_cvt_pk_bf16_f32 v12, v12, v13")
        e("v_lshlrev_b32 v14, 16, v8")
        e("v_and_b32 v15, 0xffff0000, v8")
        e("v_lshlrev_b32 v11, 16, v10")
        e("v_and_b32 v10, 0xffff0000, v10")
        e("v_add_f32 v14, v14, v11")
        e("v_add_f32 v15, v15, v10")
        e(f"v_cvt_pk_bf16_f32 v{o}, v14, v15")
        e("v_lshlrev_b32 v14, 16, v9")
        e("v_and_b32 v15, 0xffff0000, v9")
        e("v_lshlrev_b32 v13, 16, v12")
        e("v_and_b32 v12, 0xffff0000, v12")
        e("v_add_f32 v14, v14, v13")
        e("v_add_f32 v15, v15, v12")
        e(f"v_cvt_pk_bf16_f32 v{o + 1}, v14, v15")
        e(f"buffer_store_dwordx2 {vr(o, 2)}, v6, {sr(S_WS, 4)}, 0 offen offset:{512 * n}{STC}")
    stamp(4)
    e("s_waitcnt vmcnt(0)")
    e("s_barrier")
    stamp(5)
    signal(sW, S_WS, "c", sG)
    e("s_branch g2_entry")


def kernel1():
    e(".globl k1_kernel")
    e(".p2align 8")
    e(".type k1_kernel,@function")
    e("k1_kernel:")
    e("s_cmp_ge_u32 s2, 256")
    e("s_cbranch_scc1 k1_done")
    load_ptrs()
    e("v_lshrrev_b32 v2, 6, v0")
    e("s_nop 1")
    e("v_readfirstlane_b32 s3, v2")
    e("s_nop 4")
    e("s_cmp_lg_u32 s3, 4")
    e("s_cbranch_scc1 k1_noinit")
    c("wave 4: zero own mailbox, then count it in d_debug")
    e("s_waitcnt lgkmcnt(0)")
    make_srd(44, P_WS, 0x1000000)
    make_srd(S_DB2, P_DBG, 256)
    e("s_lshl_b32 s3, s2, 8")
    e(f"s_add_u32 s3, s3, {WS_MB}")
    e("v_mov_b32 v2, 0")
    e("v_mov_b32 v4, 1")
    e(f"v_mov_b32 v5, {ZOFF}")
    e("v_and_b32 v6, 63, v0")
    e("v_lshlrev_b32 v3, 2, v6")
    e("v_cmp_gt_u32 vcc, 2, v6")
    e("s_and_saveexec_b64 s[70:71], vcc")
    e("buffer_atomic_and v2, v3, s[44:47], s3 offen sc1")
    e("s_waitcnt vmcnt(0)")
    e("v_cmp_eq_u32 vcc, 0, v6")
    e("s_and_b64 exec, exec, vcc")
    e(f"buffer_atomic_add v4, v5, {sr(S_DB2, 4)}, 0 offen sc1")
    e("s_mov_b64 exec, s[70:71]")
    e("k1_noinit:")
    e(f"s_cmp_lt_u32 s2, {K1_NCONV}")
    e("s_cbranch_scc1 k1_conv")
    e(f"s_cmp_lt_u32 s2, {K1_NCONV + K1_NGEMM}")
    e("s_cbranch_scc1 k1_gemm")
    e("s_waitcnt lgkmcnt(0)")
    stamp(0)
    for _ in range(ISLEEP):
        e("s_sleep 16")
    if PREF3:
        c("idle WGs: pull half of w_down into this XCD's L2 (86 KB per wave)")
        make_srd(44, P_WD, 1376 * 1024)
        e("s_sub_u32 s3, s2, 240")
        e("s_lshr_b32 s3, s3, 3")
        e("v_lshrrev_b32 v2, 6, v0")
        e("v_and_b32 v1, 63, v0")
        e("v_readfirstlane_b32 s4, v2")
        e("s_nop 3")
        e("s_lshl_b32 s3, s3, 3")
        e("s_add_u32 s3, s3, s4")
        e("s_mul_i32 s3, s3, 88064")
        e("v_lshlrev_b32 v3, 4, v1")
        for j in range(86):
            e(f"buffer_load_dwordx4 {vr(16 + 4 * (j % 8), 4)}, v3, s[44:47], s3 offen")
            e("s_add_u32 s3, s3, 1024")
            if j >= 32:
                e("s_waitcnt vmcnt(32)")
        e("s_waitcnt vmcnt(0)")
    e("s_branch g2_entry")
    k1_gemm()
    k1_conv()
    kernel2()
    e("k1_done:")
    e("s_endpgm")


def kernel0():
    S_X, S_K, S_V, S_SH, S_WS = 44, 48, 52, 56, 60
    sT0, sT1, sONE = 64, 65, 66
    e(".globl k0_kernel")
    e(".p2align 8")
    e(".type k0_kernel,@function")
    e("k0_kernel:")
    e("s_cmp_ge_u32 s2, 256")
    e("s_cbranch_scc1 k0_done")
    load_ptrs()
    e("v_and_b32 v1, 63, v0")
    e("s_cmp_ge_u32 s2, 128")
    e("s_cbranch_scc1 k0_ln")
    c("---- kv tile: rt = id%16 (128 rows), ct = id/16 (64 channels)")
    e("s_waitcnt lgkmcnt(0)")
    stamp(True)
    make_srd(S_K, P_K, 2048 * 1024)
    make_srd(S_V, P_V, 2048 * 1024)
    make_srd(S_SH, P_SH, 4096)
    make_srd(S_WS, P_WS, 0x1000000)
    e("s_and_b32 s3, s2, 15")
    e("s_lshr_b32 s4, s2, 4")
    e("v_lshrrev_b32 v2, 3, v0")
    e("v_and_b32 v3, 7, v0")
    e(f"s_lshl_b32 s{sT0}, s3, 17")
    e(f"s_lshl_b32 s{sT1}, s4, 7")
    e(f"s_add_u32 s{sT0}, s{sT0}, s{sT1}")
    e("v_lshlrev_b32 v4, 12, v2")
    e("v_lshl_add_u32 v4, v3, 4, v4")
    e(f"v_add_u32 v4, s{sT0}, v4")
    e("v_subrev_u32 v5, 3072, v4")
    KD, VD, WD = 16, 44, 60
    for r in range(3):
        e(f"buffer_load_dwordx4 {vr(KD + 4 * r, 4)}, v5, {sr(S_K, 4)}, 0 offen offset:{1024 * r}")
    for r in range(4):
        e(f"buffer_load_dwordx4 {vr(KD + 12 + 4 * r, 4)}, v4, {sr(S_K, 4)}, 0 offen offset:{1024 * r}")
    for r in range(4):
        e(f"buffer_load_dwordx4 {vr(VD + 4 * r, 4)}, v4, {sr(S_V, 4)}, 0 offen offset:{1024 * r}")
    e(f"s_lshl_b32 s{sT1}, s4, 9")
    e("v_lshlrev_b32 v6, 6, v3")
    e(f"v_add_u32 v6, s{sT1}, v6")
    for j in range(4):
        e(f"buffer_load_dwordx4 {vr(WD + 4 * j, 4)}, v6, {sr(S_SH, 4)}, 0 offen offset:{16 * j}")
    c("store base: WS_KV + c*4096 + 2*(2044 - t0), c = ct*64 + cs*8 + cc")
    e(f"s_lshl_b32 s{sT0}, s4, 18")
    e(f"s_add_u32 s{sT0}, s{sT0}, {WS_KV + 4088}")
    e(f"s_lshl_b32 s{sT1}, s3, 8")
    e(f"s_sub_u32 s{sT0}, s{sT0}, s{sT1}")
    e("v_lshlrev_b32 v7, 15, v3")
    e(f"v_add_u32 v7, s{sT0}, v7")
    e("v_lshlrev_b32 v8, 3, v2")
    e("v_sub_u32 v7, v7, v8")
    e("s_waitcnt vmcnt(0)")
    stamp()
    KF, VF, WF = 80, 136, 200
    for cc in range(8):
        for jp in range(2):
            w = WD + 2 * cc + jp
            e(f"v_lshlrev_b32 v{WF + (2 * jp) * 8 + cc}, 16, v{w}")
            e(f"v_and_b32 v{WF + (2 * jp + 1) * 8 + cc}, 0xffff0000, v{w}")
    for i in range(28):
        e(f"v_lshlrev_b32 v{KF + 2 * i}, 16, v{KD + i}")
        e(f"v_and_b32 v{KF + 2 * i + 1}, 0xffff0000, v{KD + i}")
    for i in range(16):
        e(f"v_lshlrev_b32 v{VF + 2 * i}, 16, v{VD + i}")
        e(f"v_and_b32 v{VF + 2 * i + 1}, 0xffff0000, v{VD + i}")
    KV = 168
    for r in range(4):
        for cp in range(4):
            d = KV + 8 * r + 2 * cp
            e(f"v_pk_mul_f32 {vr(d, 2)}, {vr(KF + 8 * r + 2 * cp, 2)}, {vr(WF + 3 * 8 + 2 * cp, 2)}")
            for j in range(1, 4):
                e(f"v_pk_fma_f32 {vr(d, 2)}, {vr(KF + 8 * (r + j) + 2 * cp, 2)}, "
                  f"{vr(WF + (3 - j) * 8 + 2 * cp, 2)}, {vr(d, 2)}")
            e(f"v_pk_mul_f32 {vr(d, 2)}, {vr(d, 2)}, {vr(VF + 8 * r + 2 * cp, 2)}")
    for cc in range(8):
        o = 16 + 2 * cc
        e(f"v_cvt_pk_bf16_f32 v{o}, v{KV + 24 + cc}, v{KV + 16 + cc}")
        e(f"v_cvt_pk_bf16_f32 v{o + 1}, v{KV + 8 + cc}, v{KV + cc}")
        if cc < 1:
            e(f"buffer_store_dwordx2 {vr(o, 2)}, v7, {sr(S_WS, 4)}, 0 offen{STC}")
        else:
            e(f"s_mov_b32 s{sT1}, {cc * 4096}")
            e(f"buffer_store_dwordx2 {vr(o, 2)}, v7, {sr(S_WS, 4)}, s{sT1} offen{STC}")
    stamp_flush(S_WS, WS_PROF + 0x100000)
    e("s_branch k0_done")
    e("k0_ln:")
    e("s_waitcnt lgkmcnt(0)")
    stamp(True)
    make_srd(S_X, P_Q, 2048 * 1024)
    make_srd(S_WS, P_WS, 0x1000000)
    e("s_sub_u32 s3, s2, 128")
    e("v_lshrrev_b32 v2, 4, v0")
    e("v_lshl_add_u32 v2, s3, 4, v2")
    e("v_and_b32 v3, 15, v0")
    e("v_lshlrev_b32 v4, 10, v2")
    e("v_lshl_add_u32 v4, v3, 4, v4")
    XD = 16
    for i in range(4):
        e(f"buffer_load_dwordx4 {vr(XD + 4 * i, 4)}, v4, {sr(S_X, 4)}, 0 offen offset:{256 * i}")
    e(f"s_mov_b32 s{sONE}, 0x3f803f80")
    T = 40
    for r in range(4):
        e(f"v_mov_b32 v{T + r}, 0")
    e(f"v_add_u32 v5, {WS_XN}, v4")
    e("s_waitcnt vmcnt(0)")
    stamp()
    for i in range(16):
        e(f"v_dot2c_f32_bf16 v{T + (i & 1)}, s{sONE}, v{XD + i}")
        e(f"v_dot2c_f32_bf16 v{T + 2 + (i & 1)}, v{XD + i}, v{XD + i}")
    e("s_nop 3")
    e(f"v_add_f32 v{T}, v{T}, v{T + 1}")
    e(f"v_add_f32 v{T + 2}, v{T + 2}, v{T + 3}")
    for sh in (8, 4, 2, 1):
        e("s_nop 1")
        e(f"v_add_f32_dpp v{T}, v{T}, v{T} row_ror:{sh} row_mask:0xf bank_mask:0xf")
        e(f"v_add_f32_dpp v{T + 2}, v{T + 2}, v{T + 2} row_ror:{sh} row_mask:0xf bank_mask:0xf")
    e(f"v_mul_f32 v{T}, 0x3b000000, v{T}")
    e(f"v_mul_f32 v{T + 2}, 0x3b000000, v{T + 2}")
    e(f"v_fma_f32 v{T + 2}, -v{T}, v{T}, v{T + 2}")
    e(f"v_max_f32 v{T + 2}, 0, v{T + 2}")
    e(f"v_cvt_pk_bf16_f32 v{T + 1}, v{T}, v{T + 2}")
    e(f"v_lshlrev_b32 v{T + 4}, 16, v{T + 1}")
    e(f"v_and_b32 v{T + 2}, 0xffff0000, v{T + 1}")
    e(f"v_add_f32 v{T + 2}, 0x3727c5ac, v{T + 2}")
    e(f"v_cvt_pk_bf16_f32 v{T + 2}, v{T + 2}, v{T + 2}")
    e(f"v_and_b32 v{T + 2}, 0xffff0000, v{T + 2}")
    e(f"v_sqrt_f32 v{T + 2}, v{T + 2}")
    e("s_nop 0")
    e(f"v_cvt_pk_bf16_f32 v{T + 2}, v{T + 2}, v{T + 2}")
    e(f"v_and_b32 v{T + 2}, 0xffff0000, v{T + 2}")
    e(f"v_rcp_f32 v{T + 5}, v{T + 2}")
    e("s_nop 0")
    for i in range(4):
        for d in range(4):
            x = XD + 4 * i + d
            e(f"v_lshlrev_b32 v50, 16, v{x}")
            e(f"v_and_b32 v51, 0xffff0000, v{x}")
            e(f"v_sub_f32 v50, v50, v{T + 4}")
            e(f"v_sub_f32 v51, v51, v{T + 4}")
            e("v_cvt_pk_bf16_f32 v50, v50, v51")
            e("v_lshlrev_b32 v52, 16, v50")
            e("v_and_b32 v53, 0xffff0000, v50")
            e(f"v_mul_f32 v52, v52, v{T + 5}")
            e(f"v_mul_f32 v53, v53, v{T + 5}")
            e(f"v_cvt_pk_bf16_f32 v{x}, v52, v53")
        e(f"buffer_store_dwordx4 {vr(XD + 4 * i, 4)}, v5, {sr(S_WS, 4)}, 0 offen offset:{256 * i}{STC}")
    stamp_flush(S_WS, WS_PROF + 0x100000)
    e("k0_done:")
    e("s_endpgm")


K2_NST = 4
K2_WREG = K2_NST * 8192 + 2048
K2_LDS = 4 * K2_WREG
K2_STEPS = 11
import os
K2ROT_A = int(os.environ.get('K2ROT_A', '4'))
K2ROT_B = int(os.environ.get('K2ROT_B', '3'))


def kernel2():
    S_H, S_WD, S_X, S_WS, S_OUT = 44, 48, 52, 56, 60
    sW, sT0, sT1, sMT, sNT, sKA, sKB, sLB = 64, 65, 66, 67, 68, 69, 70, 71
    ACC = 112
    FR = 176
    vDA, vDB, vB0, vB1, vAr, vOut = 8, 9, 10, 11, 12, 13
    XR = 96
    NR = 104
    e("g2_entry:")
    _stamp[0] = 24
    e("v_lshrrev_b32 v2, 6, v0")
    e("v_and_b32 v1, 63, v0")
    e(f"v_readfirstlane_b32 s{sW}, v2")
    make_srd(S_WS, P_WS, 0x1000000)
    e(f"s_cmp_gt_u32 s{sW}, 4")
    e("s_cbranch_scc1 g2_exit")
    c("x = id%8, j = id/8 : mt2 = 4x + (j&3), nt2 = j>>2")
    e("s_and_b32 s4, s2, 7")
    e("s_lshr_b32 s5, s2, 3")
    e(f"s_lshr_b32 s{sNT}, s5, 2")
    e("s_and_b32 s5, s5, 3")
    e(f"s_lshl_b32 s{sMT}, s4, 2")
    e(f"s_add_u32 s{sMT}, s{sMT}, s5")
    make_srd(S_DB2, P_DBG, 256)
    e(f"s_cmp_eq_u32 s{sW}, 4")
    e("s_cbranch_scc1 g2_helper")
    stamp(None)
    make_srd(S_H, P_WS, WS_H_BYTES)
    make_srd(S_WD, P_WD, 1376 * 1024)
    make_srd(S_X, P_Q, 2048 * 1024)
    make_srd(S_OUT, P_OUT, 2048 * 1024)
    e(f"s_mul_i32 s{sT0}, s{sW}, {K2_STEPS}")
    e(f"s_lshl_b32 s{sKA}, s{sT0}, 6")
    e(f"s_mul_i32 s{sT1}, s{sMT}, {64 * HP}")
    e(f"s_add_u32 s{sKA}, s{sKA}, s{sT1}")
    e(f"s_lshl_b32 s{sKB}, s{sT0}, 15")
    e(f"s_lshl_b32 s{sT1}, s{sNT}, 7")
    e(f"s_add_u32 s{sKB}, s{sKB}, s{sT1}")
    e(f"s_mul_i32 s{sLB}, s{sW}, {K2_WREG}")
    e("v_and_b32 v2, 31, v1")
    e("v_lshrrev_b32 v3, 5, v1")
    c("A DMA lane offsets: row = l/4, src chunk = (l%4) ^ ((l/16)&3)")
    e("v_lshrrev_b32 v4, 2, v1")
    e(f"v_mul_u32_u24 v4, {HP}, v4")
    e("v_and_b32 v5, 3, v1")
    e("v_lshrrev_b32 v6, 4, v1")
    e("v_xor_b32 v5, v5, v6")
    e(f"v_lshl_add_u32 v{vDA}, v5, 4, v4")
    c("B DMA lane offsets: row = l/8, chunk' = l%8; global chunk = chunk' ^ (((row>>1)&1)<<2)")
    e("v_lshrrev_b32 v4, 3, v1")
    e("v_and_b32 v5, 7, v1")
    e("v_lshrrev_b32 v6, 1, v4")
    e("v_and_b32 v6, 1, v6")
    e("v_lshlrev_b32 v6, 2, v6")
    e("v_xor_b32 v5, v5, v6")
    e("v_lshlrev_b32 v5, 4, v5")
    e(f"v_lshl_add_u32 v{vDB}, v4, 10, v5")

    c("K rotation: rot = (nt*K2ROT_A + (mt>>3)*K2ROT_B) mod 11 ; s73 = current step index")
    e(f"s_mul_i32 s73, s{sNT}, {K2ROT_A}")
    e(f"s_and_b32 s74, s{sMT}, 3")
    e(f"s_mul_i32 s74, s74, {K2ROT_B}")
    e("s_add_u32 s73, s73, s74")
    for _ in range(4):
        e("s_cmp_ge_u32 s73, 11")
        e("s_cselect_b32 s74, 11, 0")
        e("s_sub_u32 s73, s73, s74")
    e("s_mov_b32 s75, s73")

    def issue_A(i, sidx):
        st = i % K2_NST
        e(f"s_lshl_b32 s76, s{sidx}, 6")
        e(f"s_add_u32 s76, s76, s{sKA}")
        for j in range(4):
            e(f"s_add_u32 m0, s{sLB}, {st * 8192 + j * 1024}")
            e(f"s_add_u32 s{sT0}, s76, {16 * j * HP}")
            e(f"buffer_load_dwordx4 v{vDA}, {sr(S_H, 4)}, s{sT0} offen lds")

    def issue_B(i, sidx):
        st = i % K2_NST
        e(f"s_lshl_b32 s77, s{sidx}, 15")
        e(f"s_add_u32 s77, s77, s{sKB}")
        for j in range(4):
            e(f"s_add_u32 m0, s{sLB}, {st * 8192 + 4096 + j * 1024}")
            e(f"s_add_u32 s{sT0}, s77, {8 * j * 1024}")
            e(f"buffer_load_dwordx4 v{vDB}, {sr(S_WD, 4)}, s{sT0} offen lds")

    def adv(sidx):
        e(f"s_add_u32 s{sidx}, s{sidx}, 1")
        e(f"s_cmp_ge_u32 s{sidx}, 11")
        e(f"s_cselect_b32 s{sidx}, 0, s{sidx}")

    def issue_step(i):
        issue_A(i, 73)
        issue_B(i, 73)
        adv(73)

    e("s_mov_b32 s78, s73")
    for i in range(K2_NST):
        issue_B(i, 78)
        adv(78)
    e("s_barrier")
    stamp(6)
    for i in range(K2_NST):
        issue_A(i, 73)
        adv(73)
    c("epilogue operand loads: tile (mi = w/2, ni = w%2)")
    e(f"s_lshr_b32 s{sT0}, s{sW}, 1")
    e(f"s_lshl_b32 s{sT0}, s{sT0}, 5")
    e(f"s_lshl_b32 s{sT1}, s{sMT}, 6")
    e(f"s_add_u32 s{sT0}, s{sT0}, s{sT1}")
    e(f"v_add_u32 v4, s{sT0}, v2")
    e(f"s_and_b32 s{sT1}, s{sW}, 1")
    e(f"s_lshl_b32 s{sT1}, s{sT1}, 6")
    e(f"s_lshl_b32 s72, s{sNT}, 7")
    e(f"s_add_u32 s{sT1}, s{sT1}, s72")
    e("v_lshlrev_b32 v5, 10, v4")
    e(f"v_add_u32 v5, s{sT1}, v5")
    e(f"v_lshl_add_u32 v{vOut}, v3, 4, v5")
    e("v_lshl_add_u32 v5, v3, 3, v5")
    for q in range(4):
        e(f"buffer_load_dwordx2 {vr(XR + 2 * q, 2)}, v5, {sr(S_X, 4)}, 0 offen offset:{16 * q}")
    e(f"s_mov_b32 s72, {WS_ST}")
    e("v_lshlrev_b32 v5, 3, v4")
    e(f"buffer_load_dwordx2 {vr(NR, 2)}, v5, {sr(S_WS, 4)}, s72 offen")
    NEPI = 4 + 1
    c("B tr-read lane addresses")
    e("v_and_b32 v4, 15, v1")
    e("v_lshrrev_b32 v5, 2, v4")
    e("v_lshl_add_u32 v6, v3, 4, v5")
    e("v_lshlrev_b32 v6, 7, v6")
    e("v_lshrrev_b32 v7, 4, v1")
    e("v_and_b32 v7, 1, v7")
    e("v_lshl_add_u32 v6, v7, 5, v6")
    e("v_and_b32 v7, 3, v4")
    e("v_lshl_add_u32 v6, v7, 3, v6")
    e(f"v_add_u32 v6, s{sLB}, v6")
    e("v_lshrrev_b32 v7, 3, v4")
    e(f"v_lshl_add_u32 v{vB0}, v7, 6, v6")
    e("v_xor_b32 v7, 1, v7")
    e(f"v_lshl_add_u32 v{vB1}, v7, 6, v6")
    c("A read address: r*64 + ((2g+s) ^ ((r>>2)&3))*16 ; s via xor 16")
    e("v_lshrrev_b32 v4, 2, v2")
    e("v_and_b32 v4, 3, v4")
    e("v_lshlrev_b32 v5, 1, v3")
    e("v_xor_b32 v4, v4, v5")
    e("v_lshlrev_b32 v4, 4, v4")
    e("v_lshl_add_u32 v4, v2, 6, v4")
    e(f"v_add_u32 v{vAr}, s{sLB}, v4")
    e(f"v_xor_b32 v14, 16, v{vAr}")

    def freads(i, bs):
        st = i % K2_NST
        for s in range(2):
            for mi in range(2):
                e(f"ds_read_b128 {vr(FR + 32 * bs + 8 * mi + 4 * s, 4)}, v{14 if s else vAr} "
                  f"offset:{st * 8192 + mi * 2048}")
        for s in range(2):
            for ni in range(2):
                for u in range(2):
                    e(f"ds_read_b64_tr_b16 {vr(FR + 32 * bs + 16 + 8 * s + 4 * ni + 2 * u, 2)}, v{vB1 if ni else vB0} "
                      f"offset:{st * 8192 + 4096 + (8 * s + 4 * u) * 128}")

    issued = [(i, 4) for i in range(K2_NST)] + [("epi", NEPI)]

    def wait_for_step(i):
        n = 0
        seen = False
        for x, cnt in issued:
            if seen:
                n += cnt
            if x == i:
                seen = True
        e(f"s_waitcnt vmcnt({min(n, 63)})")

    for r in range(64):
        e(f"v_mov_b32 v{ACC + r}, 0")
    stamp(None)
    wait_for_step(0)
    stamp(7)
    freads(0, 0)
    for i in range(K2_STEPS):
        bs = i & 1
        e("s_waitcnt lgkmcnt(0)")
        if i + K2_NST < K2_STEPS:
            issue_step(i + K2_NST)
            issued.append((i + K2_NST, 8))
        if i + 1 < K2_STEPS:
            wait_for_step(i + 1)
            freads(i + 1, bs ^ 1)
        stamp(None)
        e(f"s_add_u32 s74, s75, s{sW}")
        e("s_add_u32 s75, s75, 1")
        e("s_cmp_ge_u32 s75, 11")
        e("s_cselect_b32 s75, 0, s75")
        e("s_cmp_eq_u32 s74, 13")
        e(f"s_cbranch_scc1 k2_skip{i}")
        for s in range(2):
            for mi in range(2):
                for ni in range(2):
                    a = ACC + 16 * (2 * mi + ni)
                    e(f"v_mfma_f32_32x32x16_bf16 {vr(a, 16)}, {vr(FR + 32 * bs + 16 + 8 * s + 4 * ni, 4)}, "
                      f"{vr(FR + 32 * bs + 8 * mi + 4 * s, 4)}, {vr(a, 16)}")
        e(f"k2_skip{i}:")
    e("s_nop 15")
    e("s_nop 3")
    stamp(8)
    c("write non-owned partial tiles to own LDS ring region")
    e("v_lshlrev_b32 v4, 4, v1")
    e(f"v_add_u32 v4, s{sLB}, v4")
    for t in range(4):
        e(f"s_cmp_eq_u32 s{sW}, {t}")
        e(f"s_cbranch_scc1 k2_skipw{t}")
        for q in range(4):
            e(f"ds_write_b128 v4, {vr(ACC + 16 * t + 4 * q, 4)} offset:{t * 4096 + q * 1024}")
        e(f"k2_skipw{t}:")
    e("s_waitcnt lgkmcnt(0)")
    e("s_barrier")
    stamp(9)
    c("owner gathers: tile w from the other 3 waves; move own tile to v[16:31]")
    for t in range(4):
        e(f"s_cmp_lg_u32 s{sW}, {t}")
        e(f"s_cbranch_scc1 k2_skipm{t}")
        for r in range(16):
            e(f"v_mov_b32 v{16 + r}, v{ACC + 16 * t + r}")
        e(f"k2_skipm{t}:")
    e(f"s_lshl_b32 s{sT0}, s{sW}, 12")
    e("v_lshlrev_b32 v4, 4, v1")
    e(f"v_add_u32 v4, s{sT0}, v4")
    for k in range(1, 4):
        e(f"s_add_u32 s{sT1}, s{sW}, {k}")
        e(f"s_and_b32 s{sT1}, s{sT1}, 3")
        e(f"s_mul_i32 s{sT1}, s{sT1}, {K2_WREG}")
        e(f"v_add_u32 v5, s{sT1}, v4")
        for q in range(4):
            e(f"ds_read_b128 {vr(32 + 16 * (k - 1) + 4 * q, 4)}, v5 offset:{q * 1024}")
    c("y2 tr reads: c0 = 8q + 4g")
    e("v_and_b32 v4, 15, v1")
    e("v_lshrrev_b32 v5, 2, v4")
    e("v_lshl_add_u32 v5, v3, 2, v5")
    e("v_lshlrev_b32 v5, 6, v5")
    e("v_lshrrev_b32 v6, 4, v1")
    e("v_and_b32 v6, 1, v6")
    e("v_lshl_add_u32 v5, v6, 5, v5")
    e("v_and_b32 v6, 3, v4")
    e("v_lshl_add_u32 v5, v6, 3, v5")
    e(f"v_add_u32 v5, s{sLB}, v5")
    e("s_waitcnt vmcnt(0)")
    YR = 80
    for q in range(4):
        e(f"ds_read_b64_tr_b16 {vr(YR + 2 * q, 2)}, v5 offset:{K2_NST * 8192 + q * 512}")
    e("s_waitcnt lgkmcnt(0)")
    for r in range(16):
        e(f"v_add_f32 v{16 + r}, v{16 + r}, v{32 + r}")
        e(f"v_add_f32 v{48 + r}, v{48 + r}, v{64 + r}")
    for r in range(16):
        e(f"v_add_f32 v{16 + r}, v{16 + r}, v{48 + r}")
    OUTR = 88
    for q in range(4):
        for h2 in range(2):
            x = XR + 2 * q + h2
            n = NR + 2 * q + h2
            y = YR + 2 * q + h2
            b = 16 + 4 * q + 2 * h2
            e(f"v_lshlrev_b32 v4, 16, v{x}")
            e(f"v_and_b32 v5, 0xffff0000, v{x}")
            e(f"v_fma_f32 v7, v4, v{NR}, v{NR + 1}")
            e(f"v_fma_f32 v6, v5, v{NR}, v{NR + 1}")
            e("v_cvt_pk_bf16_f32 v6, v7, v6")
            e("v_lshlrev_b32 v7, 16, v6")
            e("v_and_b32 v6, 0xffff0000, v6")
            e(f"v_lshlrev_b32 v32, 16, v{y}")
            e(f"v_and_b32 v33, 0xffff0000, v{y}")
            e("v_mul_f32 v7, v7, v32")
            e("v_mul_f32 v6, v6, v33")
            e("v_cvt_pk_bf16_f32 v6, v7, v6")
            e("v_lshlrev_b32 v7, 16, v6")
            e("v_and_b32 v6, 0xffff0000, v6")
            e("v_add_f32 v7, v4, v7")
            e("v_add_f32 v6, v5, v6")
            e("v_cvt_pk_bf16_f32 v6, v7, v6")
            e(f"v_cvt_pk_bf16_f32 v32, v{b}, v{b + 1}")
            e("v_lshlrev_b32 v7, 16, v6")
            e("v_and_b32 v6, 0xffff0000, v6")
            e("v_lshlrev_b32 v33, 16, v32")
            e("v_and_b32 v32, 0xffff0000, v32")
            e("v_add_f32 v7, v7, v33")
            e("v_add_f32 v6, v6, v32")
            e(f"v_cvt_pk_bf16_f32 v{OUTR + 2 * q + h2}, v7, v6")
    e("s_nop 1")
    for qq in range(2):
        o = OUTR + 4 * qq
        e(f"v_permlane32_swap_b32 v{o}, v{o + 2}")
        e(f"v_permlane32_swap_b32 v{o + 1}, v{o + 3}")
        e(f"buffer_store_dwordx4 {vr(o, 4)}, v{vOut}, {sr(S_OUT, 4)}, 0 offen offset:{32 * qq}")
    e("g2_exit:")
    stamp_flush(S_WS, WS_PROF)
    e("s_endpgm")
    e("g2_helper:")
    c("helper wave: wait for the 11 GEMM1 tiles of row block mt2/2 (own mailbox)")
    e("s_lshl_b32 s79, s2, 8")
    e(f"s_add_u32 s79, s79, {WS_MB}")
    poll(79, 11, S_WS)
    e("s_barrier")
    c("wait for conv group nt2, stage the four y2T tiles")
    e("s_add_u32 s79, s79, 4")
    poll(79, 8, S_WS)
    e("v_lshrrev_b32 v5, 2, v1")
    e("v_lshlrev_b32 v5, 12, v5")
    e("v_and_b32 v6, 3, v1")
    e("v_lshl_add_u32 v5, v6, 4, v5")
    e(f"s_lshl_b32 s{sT1}, s{sNT}, 18")
    e(f"s_lshl_b32 s{sT0}, s{sMT}, 7")
    e(f"s_add_u32 s{sT1}, s{sT1}, s{sT0}")
    e(f"s_add_u32 s{sT1}, s{sT1}, {WS_Y2}")
    for w in range(4):
        mi, ni = w >> 1, w & 1
        for j in range(2):
            e(f"s_mov_b32 m0, {w * K2_WREG + K2_NST * 8192 + j * 1024}")
            e(f"s_add_u32 s{sT0}, s{sT1}, {(ni * 32 + j * 16) * 4096 + mi * 64}")
            e(f"buffer_load_dwordx4 v5, {sr(S_WS, 4)}, s{sT0} offen lds")
    e("s_waitcnt vmcnt(0)")
    e("s_barrier")
    e("s_branch g2_exit")


def descriptor(name, nv):
    L.append(".p2align 6")
    L.append(f".amdhsa_kernel {name}")
    L.append(f"  .amdhsa_next_free_vgpr {nv}")
    L.append("  .amdhsa_next_free_sgpr 102")
    L.append(f"  .amdhsa_accum_offset {nv}")
    L.append("  .amdhsa_group_segment_fixed_size 0")
    L.append("  .amdhsa_kernarg_size 104")
    L.append("  .amdhsa_user_sgpr_count 2")
    L.append("  .amdhsa_user_sgpr_kernarg_segment_ptr 1")
    L.append("  .amdhsa_system_sgpr_workgroup_id_x 1")
    L.append(".end_amdhsa_kernel")


def main():
    hdr = open(f"cdna_kernels/{NAME}.s.ref").read().split("\n")
    for line in hdr:
        if line.startswith("; Override") or line.startswith("; grid=") or "@launch" in line:
            continue
        if not line.startswith(";"):
            break
        L.append(line)
    L.append(f"; @launch kernel=k1_kernel grid=(256,1,1) block=(512,1,1) lds=163840")
    L.append('.amdgcn_target "amdgcn-amd-amdhsa--gfx950"')
    L.append(".text")
    kernel1()
    L.append('.section .rodata,"a"')
    descriptor("k1_kernel", 256)
    out = sys.argv[1] if len(sys.argv) > 1 else f"cdna_kernels/{NAME}.s"
    open(out, "w").write("\n".join(L) + "\n")


if __name__ == "__main__":
    main()
```

```python
import sys

NAME = "parallel_sum__ssm_conv_h3__glu_gated_bilinear__prompt"

WS_H = 0
HP = 2816
WS_H_BYTES = 2048 * HP
WS_Y2 = 0x600000
WS_ST = 0x800000
WS_XN = 0xA00000
WS_KV = 0xC00000
WS_MB = 0x900000
ZOFF = 16
ZN = 16

import os
K1MAP = int(os.environ.get('K1MAP', '1'))
WBL2 = int(os.environ.get('WBL2', '0'))
STC = os.environ.get('STC', '' if WBL2 else ' sc1')
PREF = int(os.environ.get('PREF', '1'))
PREF2 = int(os.environ.get('PREF2', '1'))
PREF3 = int(os.environ.get('PREF3', '2'))
PSLEEP = int(os.environ.get('PSLEEP', '1'))
CSLEEP = int(os.environ.get('CSLEEP', '0'))
ISLEEP = int(os.environ.get('ISLEEP', '0'))
KV16 = int(os.environ.get('KV16', '0'))
MIDN = int(os.environ.get('MIDN', '5'))
ASW = int(os.environ.get('ASW', '1'))
NODMA = int(os.environ.get('NODMA', '0'))
K2ROT_A = int(os.environ.get('K2ROT_A', '4'))
K2ROT_B = int(os.environ.get('K2ROT_B', '3'))
PROFB = int(os.environ.get('PROFB', '0'))
L = []


def e(s=""):
    L.append("    " + s if s and not s.endswith(":") else s)


def c(s):
    L.append("    ; " + s)


PROF = len(sys.argv) > 2 and sys.argv[2] == "prof"
WS_PROF = 0xE00000
_stamp = [0]


SPAIR = [6, 8, 10, 12, 14, 88, 90, 92, 94, 96, 100]


def stamp(k=None):
    if not PROF or k is None or k is True:
        return
    if k == 0:
        e("s_memrealtime s[98:99]")
        e("s_waitcnt lgkmcnt(0)")
        e("v_writelane_b32 v255, s98, 63")
        for p in SPAIR:
            e(f"s_mov_b32 s{p}, 0")
    e(f"s_memtime s[{SPAIR[k]}:{SPAIR[k] + 1}]")


def stamp_flush(srd, base):
    if not PROF:
        return
    stamp(10)
    e("s_memrealtime s[98:99]")
    e("s_waitcnt lgkmcnt(0)")
    e("v_writelane_b32 v255, s98, 62")
    for k, p in enumerate(SPAIR):
        e(f"v_writelane_b32 v255, s{p}, {k}")
    e("v_lshrrev_b32 v253, 6, v0")
    e("v_lshl_add_u32 v253, s2, 3, v253")
    e("v_lshlrev_b32 v253, 8, v253")
    e("v_and_b32 v254, 63, v0")
    e("v_lshl_add_u32 v253, v254, 2, v253")
    e(f"v_add_u32 v253, {base}, v253")
    e(f"buffer_store_dword v255, v253, {sr(srd, 4)}, 0 offen")


OOL = []


class ool:
    def __init__(self, label):
        self.label = label

    def __enter__(self):
        global L
        self.saved = L
        L = []
        L.append(f"{self.label}:")

    def __exit__(self, *a):
        global L
        L.append(f"    s_branch {self.label}_ret")
        OOL.extend(L)
        L = self.saved
        L.append(f"{self.label}_ret:")


def flush_ool():
    L.extend(OOL)
    OOL.clear()


def vr(a, n=1):
    return f"v{a}" if n == 1 else f"v[{a}:{a + n - 1}]"


def sr(a, n=1):
    return f"s{a}" if n == 1 else f"s[{a}:{a + n - 1}]"


def make_srd(d, ptr, nbytes):
    e(f"s_mov_b32 s{d}, s{ptr}")
    e(f"s_and_b32 s{d + 1}, s{ptr + 1}, 0xffff")
    e(f"s_mov_b32 s{d + 2}, {nbytes}")
    e(f"s_mov_b32 s{d + 3}, 0x00020000")


P_Q, P_K, P_V, P_SH, P_SK, P_SD, P_BX, P_WG = 16, 18, 20, 22, 24, 26, 28, 30
P_WU, P_WD, P_OUT, P_DBG, P_WS = 32, 34, 36, 38, 40


def load_ptrs():
    e("s_load_dwordx16 s[16:31], s[0:1], 0")
    e("s_load_dwordx8 s[32:39], s[0:1], 64")
    e("s_load_dwordx2 s[40:41], s[0:1], 96")


S_DB2 = 84
_lbl = [0]


sZ = 82


def zload():
    e(f"s_load_dword s{sZ}, {sr(P_DBG, 2)}, {ZOFF}")


MB_H, MB_C, MB_KV, MB_CS, MB_ST = 0, 12, 20, 32, 48


def zcheck():
    _lbl[0] += 1
    n = _lbl[0]
    e(f"s_cmp_ge_u32 s{sZ}, 1")
    e(f"s_cbranch_scc1 sig_go{n}")
    make_srd(S_DB2, P_DBG, 256)
    e(f"s_mov_b32 s79, {ZOFF}")
    poll(79, 1, slp=8)
    e(f"sig_go{n}:")


def signal(sW, S_WS, mode, sIdx, sWord):
    _lbl[0] += 1
    n = _lbl[0]
    e(f"s_cmp_lg_u32 s{sW}, 0")
    e(f"s_cbranch_scc1 sig_skip{n}")
    zcheck()
    e("v_and_b32 v14, 63, v0")
    if mode == "h":
        e("v_and_b32 v12, 1, v14")
        e(f"s_lshl_b32 s79, s{sIdx}, 1")
        e("v_add_u32 v12, s79, v12")
        e("v_lshrrev_b32 v13, 1, v14")
    else:
        e("v_mov_b32 v12, v14")
        e(f"v_mov_b32 v13, s{sIdx}")
    e("v_and_b32 v15, 3, v12")
    e("v_lshl_add_u32 v15, v13, 2, v15")
    e("v_lshrrev_b32 v12, 2, v12")
    e("v_lshl_add_u32 v12, v15, 3, v12")
    e("v_lshlrev_b32 v12, 8, v12")
    e(f"s_lshl_b32 s79, s{sWord}, 2")
    e(f"s_add_u32 s79, s79, {WS_MB + 4 * (MB_H if mode == 'h' else MB_C)}")
    e("v_mov_b32 v13, 1")
    e(f"v_cmp_gt_u32 vcc, {16 if mode == 'h' else 32}, v14")
    e("s_and_saveexec_b64 s[70:71], vcc")
    e(f"buffer_store_dword v13, v12, {sr(S_WS, 4)}, s79 offen sc1")
    e("s_mov_b64 exec, s[70:71]")
    e(f"sig_skip{n}:")


def pollmask(sOff, mask, srd, first=None):
    _lbl[0] += 1
    n = _lbl[0]
    if first is not None:
        e(f"v_cmp_ne_u32 vcc, 0, v{first}")
        e(f"s_and_b32 s81, vcc_lo, {mask}")
        e(f"s_cmp_eq_u32 s81, {mask}")
        e(f"s_cbranch_scc1 polled{n}")
    e("v_and_b32 v15, 31, v0")
    e("v_lshlrev_b32 v15, 2, v15")
    e("s_mov_b32 s80, 0")
    e(f"poll{n}:")
    e(f"buffer_load_dword v14, v15, {sr(srd, 4)}, s{sOff} offen sc1")
    e("s_waitcnt vmcnt(0)")
    e("v_cmp_ne_u32 vcc, 0, v14")
    e("s_add_u32 s80, s80, 1")
    e(f"s_and_b32 s81, vcc_lo, {mask}")
    e(f"s_cmp_eq_u32 s81, {mask}")
    e(f"s_cbranch_scc1 polled{n}")
    if PSLEEP:
        e(f"s_sleep {PSLEEP}")
    e("s_cmp_lt_u32 s80, 0x40000")
    e(f"s_cbranch_scc1 poll{n}")
    e(f"polled{n}:")


def poll(sOff, target, srd=None, slp=None):
    srd = S_DB2 if srd is None else srd
    _lbl[0] += 1
    n = _lbl[0]
    e(f"v_mov_b32 v15, s{sOff}")
    e("s_mov_b32 s80, 0")
    e(f"poll{n}:")
    e(f"buffer_load_dword v14, v15, {sr(srd, 4)}, 0 offen sc1")
    e("s_waitcnt vmcnt(0)")
    e("v_readfirstlane_b32 s81, v14")
    e("s_nop 3")
    e("s_add_u32 s80, s80, 1")
    e(f"s_cmp_ge_u32 s81, {target}")
    e(f"s_cbranch_scc1 polled{n}")
    if slp or PSLEEP:
        e(f"s_sleep {slp or PSLEEP}")
    e("s_cmp_lt_u32 s80, 0x40000")
    e(f"s_cbranch_scc1 poll{n}")
    e(f"polled{n}:")


K1_NCONV = 64
K1_NGEMM = 176
K1_BUF = [131072, 0, 32768, 65536, 98304]


K1_STG = 49152
K1_EX = 147456


AUXOFF = 132
WS_CS = 0x880000
WS_SP = 0x8C0000


def zadd(sW, wait=None):
    _lbl[0] += 1
    n = _lbl[0]
    e(f"s_cmp_lg_u32 s{sW}, 4")
    e(f"s_cbranch_scc1 zadd{n}")
    if wait is not None:
        e(f"s_waitcnt vmcnt({wait})")
        stamp(1)
    make_srd(S_DB2, P_DBG, 256)
    e("v_mov_b32 v14, 1")
    e(f"v_mov_b32 v15, {ZOFF}")
    e("v_cmp_eq_u32 vcc, 0, v1")
    e("s_and_saveexec_b64 s[70:71], vcc")
    e(f"buffer_atomic_add v14, v15, {sr(S_DB2, 4)}, 0 offen sc1")
    e("s_mov_b64 exec, s[70:71]")
    e(f"zadd{n}:")


S_WD2, sKB2, sBI, sROT, sLB2, sNPRE = 20, 24, 25, 26, 27, 28
vDB2 = 252
K2_SB = [6, 7, 8, 0, 1, 2, 3, 4, 5]


def g2_setup(sW, npre):
    c("GEMM2 B state: x = id%8, j = id/8 : mt2 = 4x + (j&3), nt2 = j>>2")
    make_srd(S_WD2, P_WD, 1376 * 1024)
    e("s_lshr_b32 s3, s2, 3")
    e("s_lshr_b32 s4, s3, 2")
    e("s_and_b32 s3, s3, 3")
    e(f"s_mul_i32 s{sROT}, s4, {K2ROT_A}")
    e(f"s_mul_i32 s3, s3, {K2ROT_B}")
    e(f"s_add_u32 s{sROT}, s{sROT}, s3")
    for _ in range(4):
        e(f"s_cmp_ge_u32 s{sROT}, 11")
        e("s_cselect_b32 s3, 11, 0")
        e(f"s_sub_u32 s{sROT}, s{sROT}, s3")
    e(f"s_mov_b32 s{sBI}, s{sROT}")
    e(f"s_and_b32 s3, s{sW}, 3")
    e(f"s_lshl_b32 s{sLB2}, s3, 12")
    e(f"s_mul_i32 s{sKB2}, s3, {11 << 15}")
    e("s_lshl_b32 s4, s4, 7")
    e(f"s_add_u32 s{sKB2}, s{sKB2}, s4")
    e(f"s_mov_b32 s{sNPRE}, {npre}")
    c("B DMA lane offsets: row = l/8, chunk' = l%8; global chunk = chunk' ^ (((row>>1)&1)<<2)")
    e("v_lshrrev_b32 v4, 3, v1")
    e("v_and_b32 v5, 7, v1")
    e("v_lshrrev_b32 v6, 1, v4")
    e("v_and_b32 v6, 1, v6")
    e("v_lshlrev_b32 v6, 2, v6")
    e("v_xor_b32 v5, v5, v6")
    e("v_lshlrev_b32 v5, 4, v5")
    e(f"v_lshl_add_u32 v{vDB2}, v4, 10, v5")
    e(f"s_lshr_b32 s3, s{sW}, 2")
    e(f"s_lshl_b32 s29, s3, 11")
    e(f"s_add_u32 s29, s29, s{sLB2}")
    e(f"s_lshl_b32 s5, s3, 14")
    e(f"s_add_u32 s5, s5, s{sKB2}")


def g2_adv(sidx):
    return [f"s_add_u32 s{sidx}, s{sidx}, 1", f"s_cmp_ge_u32 s{sidx}, 11", f"s_cselect_b32 s{sidx}, 0, s{sidx}"]


def g2_early(i):
    g = []
    for j in range(2):
        x = []
        if j == 0:
            x += [f"s_lshl_b32 s3, s{sBI}, 15", "s_add_u32 s3, s3, s5"]
        x += [f"s_add_u32 m0, s29, {K2_SB[i] * 16384 + j * 1024}",
              f"s_add_u32 s4, s3, {8 * j * 1024}",
              f"buffer_load_dwordx4 v{vDB2}, {sr(S_WD2, 4)}, s4 offen lds"]
        if j == 1:
            x += g2_adv(sBI)
        g.append(x)
    return g


def k1_gemm():
    S_X, S_WG, S_WU, S_WS = 44, 48, 52, 56
    sMT, sNT, sW, sT0, sT1, sW0, sMW, sROW = 60, 61, 62, 63, 64, 65, 66, 67
    sSB, sDS, sIT, sDB, sAUX = 68, 69, 72, 73, 83
    AF = 16
    ACC = 144
    BF = 208
    vDMA, vB0, vB1, vBc0, vBc1, vHoff = 240, 241, 242, 243, 244, 245
    vXD, vA0, vCS, vST, vXD1 = 40, 41, 42, 43, 39
    vAk = 44
    CSR = 80
    e("k1_gemm:")
    e("s_sub_u32 s3, s2, %d" % K1_NCONV)
    c("k = 22*(t%8) + t/8 ; mh = k/88 ; rem = k%88 ; nt = rem/8 ; mt = mh*8 + rem%8")
    e("s_and_b32 s4, s3, 7")
    e("s_mul_i32 s4, s4, 22")
    e("s_lshr_b32 s5, s3, 3")
    e("s_add_u32 s4, s4, s5")
    e("s_cmp_ge_u32 s4, 88")
    e("s_cselect_b32 s5, 88, 0")
    e(f"s_cselect_b32 s{sMT}, 8, 0")
    e("s_sub_u32 s4, s4, s5")
    e(f"s_lshr_b32 s{sNT}, s4, 3")
    e("s_and_b32 s4, s4, 7")
    e(f"s_add_u32 s{sMT}, s{sMT}, s4")
    e("v_lshrrev_b32 v2, 6, v0")
    e("v_and_b32 v1, 63, v0")
    e(f"v_readfirstlane_b32 s{sW}, v2")
    c("x DMA lane offset: row = l>>3, src chunk = (l&7) ^ (row&7)")
    e("v_lshrrev_b32 v2, 3, v1")
    e("v_and_b32 v3, 7, v1")
    if ASW:
        e("v_lshrrev_b32 v4, 4, v1")
        e("v_xor_b32 v3, v3, v4")
    else:
        e("v_xor_b32 v3, v3, v2")
    e("v_lshlrev_b32 v3, 4, v3")
    e(f"v_lshl_add_u32 v{vXD}, v2, 10, v3")
    e(f"v_xor_b32 v{vXD1}, {64 if ASW else 0}, v{vXD}")
    c("W DMA lane offsets")
    e("v_lshrrev_b32 v12, 4, v1")
    e("v_and_b32 v13, 15, v1")
    e("v_lshlrev_b32 v14, 2, v12")
    e("v_xor_b32 v13, v13, v14")
    e("v_lshlrev_b32 v13, 4, v13")
    e("v_mul_u32_u24 v14, 2752, v12")
    e(f"v_add_u32 v{vDMA}, v13, v14")
    e(f"s_mul_i32 s{sW0}, s{sW}, {8 * 2752}")
    e(f"s_lshl_b32 s{sT0}, s{sNT}, 8")
    e(f"s_add_u32 s{sW0}, s{sW0}, s{sT0}")
    e(f"s_lshl_b32 s{sMW}, s{sW}, 11")
    e(f"s_lshl_b32 s{sROW}, s{sMT}, 17")
    e(f"s_lshl_b32 s{sT0}, s{sW}, 14")
    e(f"s_add_u32 s{sROW}, s{sROW}, s{sT0}")
    e(f"s_mov_b32 s{sDS}, 0")
    e(f"s_mov_b32 s{sDB}, s{sMW}")
    e("s_waitcnt lgkmcnt(0)")
    stamp(0)
    make_srd(S_X, P_Q, 2048 * 1024)
    make_srd(S_WG, P_WG, 512 * 2752)
    make_srd(S_WU, P_WU, 512 * 2752)
    make_srd(S_WS, P_WS, 0x1000000)

    def dma_groups():
        g = []
        for j in range(2):
            g.append([f"s_add_u32 m0, s{sDB}, {32768 + j * 1024}",
                      f"s_add_u32 s{sT0}, s{sROW}, {j * 8192}",
                      f"buffer_load_dwordx4 v{vXD1 if j else vXD}, {sr(S_X, 4)}, s{sT0} offen lds"])
        for part in range(2):
            for j in range(2):
                g.append([f"s_add_u32 m0, s{sDB}, {part * 16384 + j * 1024}",
                          f"s_add_u32 s{sT0}, s{sW0}, {4 * j * 2752}",
                          f"buffer_load_dwordx4 v{vDMA}, {sr(S_WU if part else S_WG, 4)}, s{sT0} offen lds"])
        g[-1] += [f"s_add_u32 s{sROW}, s{sROW}, {128 if MIDN == 5 else 0}",
                  f"s_add_u32 s{sW0}, s{sW0}, {64 * 2752 if MIDN == 5 else 0}",
                  f"s_add_u32 s{sDS}, s{sDS}, {K1_STG}",
                  f"s_cmp_ge_u32 s{sDS}, {3 * K1_STG}",
                  f"s_cselect_b32 s{sDS}, 0, s{sDS}",
                  f"s_add_u32 s{sDB}, s{sDS}, s{sMW}"]
        return g

    def dma_slab():
        for g in dma_groups():
            for x in g:
                e(x)

    dma_slab()
    dma_slab()
    dma_slab()
    S_OWN, S_OTH = 20, 24
    c("partial sums source + L2 prefetch: W rows (mt%8)*64.. ; own part = mt/8 (summed), other part prefetch only")
    e(f"s_cmp_ge_u32 s{sMT}, 8")
    for i in range(4):
        e(f"s_cselect_b32 s{S_OWN + i}, s{S_WU + i}, s{S_WG + i}")
        e(f"s_cselect_b32 s{S_OTH + i}, s{S_WG + i}, s{S_WU + i}")
    e(f"s_and_b32 s{sT0}, s{sMT}, 7")
    e(f"s_mul_i32 s{sT0}, s{sT0}, {64 * 2752}")
    e(f"s_lshl_b32 s{sT1}, s{sNT}, 8")
    e(f"s_add_u32 s{sT0}, s{sT0}, s{sT1}")
    e(f"s_lshl_b32 s{sT1}, s{sW}, 5")
    e(f"s_add_u32 s18, s{sT1}, s{sT0}")
    e(f"s_add_u32 s19, s18, {32 * 2752}")
    e("v_lshrrev_b32 v12, 1, v1")
    e("v_mul_u32_u24 v12, 2752, v12")
    e("v_and_b32 v13, 1, v1")
    e("v_lshl_add_u32 v76, v13, 4, v12")
    e(f"s_mul_i32 s{sT1}, s{sW}, {8 * 2752}")
    e(f"s_add_u32 s28, s{sT1}, s{sT0}")
    e("v_lshrrev_b32 v12, 4, v1")
    e(f"v_mul_u32_u24 v12, {2 * 2752}, v12")
    e("v_and_b32 v13, 15, v1")
    e("v_lshl_add_u32 v77, v13, 4, v12")
    c("x rows 16w + l/4, bytes (nt&7)*128 + (l%4)*32 + {0,16}")
    e(f"s_and_b32 s{sT1}, s{sNT}, 7")
    e(f"s_lshl_b32 s{sT1}, s{sT1}, 7")
    e(f"s_add_u32 s{sT1}, s{sT1}, s{sROW}")
    e(f"s_sub_u32 s29, s{sT1}, 384")
    e("v_lshrrev_b32 v12, 2, v1")
    e("v_and_b32 v13, 3, v1")
    e("v_lshlrev_b32 v13, 5, v13")
    e("v_lshl_add_u32 v78, v12, 10, v13")
    PFL = [f"buffer_load_dwordx4 v[48:51], v76, {sr(S_OWN, 4)}, s18 offen",
           f"buffer_load_dwordx4 v[52:55], v76, {sr(S_OWN, 4)}, s19 offen",
           f"buffer_load_dwordx4 v[64:67], v78, {sr(S_X, 4)}, s29 offen",
           f"buffer_load_dwordx4 v[68:71], v78, {sr(S_X, 4)}, s29 offen offset:16",
           f"buffer_load_dwordx4 v[56:59], v77, {sr(S_OTH, 4)}, s28 offen",
           f"buffer_load_dwordx4 v[60:63], v77, {sr(S_OTH, 4)}, s28 offen offset:2752"]
    c("partial store addresses")
    vPC, vPS = 72, 73
    e(f"s_lshl_b32 s{sT0}, s{sNT}, 1")
    e(f"s_lshr_b32 s{sT1}, s{sMT}, 3")
    e(f"s_add_u32 s{sT0}, s{sT0}, s{sT1}")
    e(f"s_lshl_b32 s{sT0}, s{sT0}, 3")
    e(f"s_and_b32 s{sT1}, s{sMT}, 7")
    e(f"s_add_u32 s{sT0}, s{sT0}, s{sT1}")
    e(f"s_lshl_b32 s{sT0}, s{sT0}, 10")
    e(f"s_lshl_b32 s{sT1}, s{sW}, 7")
    e(f"s_add_u32 s{sT0}, s{sT0}, s{sT1}")
    e(f"s_add_u32 s{sT0}, s{sT0}, {WS_CS}")
    e("v_and_b32 v12, 1, v1")
    e(f"v_lshl_add_u32 v{vPC}, v12, 5, s{sT0}")
    e("v_lshrrev_b32 v12, 1, v1")
    e("v_and_b32 v13, 1, v12")
    e(f"v_lshl_add_u32 v{vPC}, v13, 4, v{vPC}")
    e("v_lshrrev_b32 v12, 1, v12")
    e(f"v_lshl_add_u32 v{vPC}, v12, 6, v{vPC}")
    e(f"s_lshl_b32 s{sT0}, s{sMT}, 4")
    e(f"s_add_u32 s{sT0}, s{sT0}, s{sNT}")
    e(f"s_lshl_b32 s{sT0}, s{sT0}, 10")
    e(f"s_lshl_b32 s{sT1}, s{sW}, 7")
    e(f"s_add_u32 s{sT0}, s{sT0}, s{sT1}")
    e(f"s_add_u32 s{sT0}, s{sT0}, {WS_SP}")
    e("v_lshrrev_b32 v12, 2, v1")
    e(f"v_lshl_add_u32 v{vPS}, v12, 3, s{sT0}")
    e("s_mov_b32 s74, 0x3f80")
    e("s_mov_b32 s75, 0x3f800000")
    e("s_mov_b32 s76, 0x3f803f80")
    e(f"s_cmp_eq_u32 s{sW}, 4")
    e("s_cselect_b32 s77, 1, 0")
    e(f"s_cmp_eq_u32 s{sW}, 0")
    e("s_cselect_b32 s78, 3, 99")
    e("s_cselect_b32 s5, 4, 99")
    e("s_lshl_b32 s83, s2, 8")
    e(f"s_add_u32 s83, s83, {WS_MB + 128}")
    for r in range(12):
        e(f"v_mov_b32 v{24 + r}, 0")
    c("A frag read address: 32768 + r*128 + ((2kk+g) ^ (r&7))*16 ; r = (w%4)*32 + l%32 ; kk via xor kk<<5")
    e(f"s_and_b32 s{sT0}, s{sW}, 3")
    e(f"s_lshl_b32 s{sT0}, s{sT0}, 5")
    e("v_and_b32 v2, 31, v1")
    e(f"v_add_u32 v6, s{sT0}, v2")
    if ASW:
        e("v_lshrrev_b32 v7, 1, v2")
        e("v_and_b32 v7, 7, v7")
    else:
        e("v_and_b32 v7, 7, v2")
    e("v_lshrrev_b32 v8, 5, v1")
    e("v_xor_b32 v7, v7, v8")
    e("v_lshlrev_b32 v7, 4, v7")
    e("v_lshl_add_u32 v7, v6, 7, v7")
    e(f"v_add_u32 v{vA0}, 32768, v7")
    c("partial row stats address: WS_SP + mt*16384 + r*8 (+ slot*1024)")
    e(f"s_lshl_b32 s{sT1}, s{sMT}, 14")
    e(f"s_add_u32 s{sT1}, s{sT1}, {WS_SP}")
    e(f"v_lshl_add_u32 v{vST}, v6, 3, s{sT1}")
    c("h store offset: (mt*128 + (w%4)*32 + l/8)*HP + nt*256 + nh*128 + (l%8)*16")
    e(f"s_lshl_b32 s{sT1}, s{sMT}, 7")
    e(f"s_add_u32 s{sT1}, s{sT1}, s{sT0}")
    e("v_lshrrev_b32 v6, 3, v1")
    e(f"v_add_u32 v6, s{sT1}, v6")
    e(f"v_mov_b32 v7, {HP}")
    e("v_mul_lo_u32 v6, v6, v7")
    e(f"s_lshr_b32 s{sT0}, s{sW}, 2")
    e(f"s_lshl_b32 s{sT0}, s{sT0}, 7")
    e(f"s_lshl_b32 s{sT1}, s{sNT}, 8")
    e(f"s_add_u32 s{sT0}, s{sT0}, s{sT1}")
    e(f"v_add_u32 v6, s{sT0}, v6")
    e("v_and_b32 v9, 7, v1")
    e(f"v_lshl_add_u32 v{vHoff}, v9, 4, v6")
    c("partial cs address: WS_CS + (nt*2 + g)*8192 + nh*512 + ((l%32)/8)*128 + (l%8)*8 (+ j*1024)")
    e(f"s_lshr_b32 s{sT0}, s{sW}, 2")
    e(f"s_lshl_b32 s{sT0}, s{sT0}, 9")
    e(f"s_lshl_b32 s{sT1}, s{sNT}, 14")
    e(f"s_add_u32 s{sT0}, s{sT0}, s{sT1}")
    e(f"s_add_u32 s{sT0}, s{sT0}, {WS_CS}")
    e(f"v_lshl_add_u32 v{vCS}, v8, 13, s{sT0}")
    e(f"v_lshl_add_u32 v{vCS}, v9, 3, v{vCS}")
    e("v_lshrrev_b32 v7, 3, v2")
    e(f"v_lshl_add_u32 v{vCS}, v7, 7, v{vCS}")
    c("B tr-read lane addresses for tiles T0=2nh, T1=2nh+1")
    e("v_and_b32 v2, 15, v1")
    e("v_lshrrev_b32 v6, 2, v2")
    e("v_lshrrev_b32 v7, 5, v1")
    e("v_lshl_add_u32 v7, v7, 3, v6")
    e("v_lshlrev_b32 v7, 8, v7")
    e("v_lshrrev_b32 v8, 4, v1")
    e("v_and_b32 v8, 1, v8")
    e("v_lshlrev_b32 v8, 5, v8")
    e("v_add_u32 v7, v7, v8")
    e("v_and_b32 v8, 3, v2")
    e("v_lshlrev_b32 v8, 3, v8")
    e("v_add_u32 v7, v7, v8")
    e(f"s_lshr_b32 s{sT0}, s{sW}, 2")
    e(f"s_lshl_b32 s{sT0}, s{sT0}, 1")
    e(f"v_xor_b32 v8, s{sT0}, v6")
    e(f"v_lshl_add_u32 v{vB0}, v8, 6, v7")
    e("v_xor_b32 v8, 1, v8")
    e(f"v_lshl_add_u32 v{vB1}, v8, 6, v7")
    e(f"s_mov_b32 s{sSB}, 0")
    if os.environ.get('BLIN'):
        e(f"v_lshlrev_b32 v{vB0}, 3, v1")
        e(f"v_add_u32 v{vB1}, 512, v{vB0}")
    if os.environ.get('ALIN'):
        e(f"v_lshlrev_b32 v{vA0}, 4, v1")
        e(f"v_add_u32 v{vA0}, 32768, v{vA0}")

    vAD = 112
    for t in range(3):
        e(f"v_add_u32 v{vAD + 6 * t}, {K1_STG * t}, v{vB0}")
        e(f"v_add_u32 v{vAD + 6 * t + 1}, {K1_STG * t}, v{vB1}")
        e(f"v_add_u32 v{vAD + 6 * t + 2}, {K1_STG * t}, v{vA0}")
        for kk in range(1, 4):
            e(f"v_xor_b32 v{vAD + 6 * t + 2 + kk}, {32 * kk}, v{vAD + 6 * t + 2}")

    def rlist(s, kk):
        st = kk & 1
        ad = vAD + 6 * (s % 3)
        r = [f"ds_read_b128 {vr(AF + 4 * st, 4)}, v{ad + 2 + kk}"]
        for ti in range(4):
            part, T = ti >> 1, ti & 1
            for u in range(2):
                off = part * 16384 + (16 * kk + 4 * u) * 256
                r.append(f"ds_read_b64_tr_b16 {vr(BF + 16 * st + 4 * ti + 2 * u, 2)}, v{ad + T} offset:{off}")
        return r

    def side_first():
        s = []
        PA, PT = 24, 32
        for row in range(2):
            for d in range(4):
                x = 48 + 4 * row + d
                s += [f"v_dot2c_f32_bf16 v{PA + 2 * d}, s74, v{x}", f"v_dot2c_f32_bf16 v{PA + 2 * d + 1}, s75, v{x}"]
        for i in range(8):
            s += [f"v_dot2c_f32_bf16 v{PT + (i & 1)}, s76, v{64 + i}",
                  f"v_dot2c_f32_bf16 v{PT + 2 + (i & 1)}, v{64 + i}, v{64 + i}"]
        s += ["s_nop 3"]
        for sh in (2, 4, 8):
            for r in range(8):
                s.append(f"v_add_f32_dpp v{PA + r}, v{PA + r}, v{PA + r} row_ror:{sh} row_mask:0xf bank_mask:0xf")
        s += [f"v_add_f32 v{PT}, v{PT}, v{PT + 1}", f"v_add_f32 v{PT + 1}, v{PT + 2}, v{PT + 3}"]
        for sw in ("v_permlane16_swap_b32", "v_permlane32_swap_b32"):
            for r in range(8):
                s.append(f"v_mov_b32 v{4 + r}, v{PA + r}")
            for r in range(8):
                s.append(f"{sw} v{4 + r}, v{PA + r}")
            qp = "[1,0,3,2]" if "16" in sw else "[2,3,0,1]"
            s += [f"v_add_f32_dpp v{PT}, v{PT}, v{PT} quad_perm:{qp} row_mask:0xf bank_mask:0xf",
                  f"v_add_f32_dpp v{PT + 1}, v{PT + 1}, v{PT + 1} quad_perm:{qp} row_mask:0xf bank_mask:0xf"]
            for r in range(8):
                s.append(f"v_add_f32 v{PA + r}, v{4 + r}, v{PA + r}")
        s += [("v_and_b32 v4, 3, v1", "v_cmp_eq_u32 vcc, 0, v4", "s_and_saveexec_b64 s[70:71], vcc",
               f"buffer_store_dwordx2 {vr(PT, 2)}, v{vPS}, {sr(S_WS, 4)}, 0 offen sc1",
               "s_mov_b64 exec, s[70:71]", "v_and_b32 v4, 2, v1", "v_cmp_ne_u32 vcc, 0, v4",
               f"v_cndmask_b32 v{PA}, v{PA}, v{PA + 4}, vcc", f"v_cndmask_b32 v{PA + 1}, v{PA + 1}, v{PA + 5}, vcc",
               f"v_cndmask_b32 v{PA + 2}, v{PA + 2}, v{PA + 6}, vcc", f"v_cndmask_b32 v{PA + 3}, v{PA + 3}, v{PA + 7}, vcc",
               "v_cmp_gt_u32 vcc, 8, v1", "s_and_b64 exec, s[70:71], vcc",
               f"buffer_store_dwordx4 {vr(PA, 4)}, v{vPC}, {sr(S_WS, 4)}, 0 offen sc1",
               "s_mov_b64 exec, s[70:71]",
               "s_cmp_eq_u32 s77, 0", "s_cbranch_scc1 k1_nozl",
               f"s_mov_b32 s{S_DB2}, s{P_DBG}", f"s_and_b32 s{S_DB2 + 1}, s{P_DBG + 1}, 0xffff",
               f"s_mov_b32 s{S_DB2 + 2}, 256", f"s_mov_b32 s{S_DB2 + 3}, 0x00020000",
               f"v_mov_b32 v15, {ZOFF}",
               f"buffer_load_dword v74, v15, {sr(S_DB2, 4)}, 0 offen sc1",
               "k1_nozl:")]
        return s

    def stats_math(SX, SQ, T):
        return [f"v_mul_f32 v{T}, 0x3b000000, v{SX}",
                f"v_mul_f32 v{T + 2}, 0x3b000000, v{SQ}",
                f"v_fma_f32 v{T + 2}, -v{T}, v{T}, v{T + 2}",
                f"v_max_f32 v{T + 2}, 0, v{T + 2}",
                f"v_cvt_pk_bf16_f32 v{T + 1}, v{T}, v{T + 2}",
                f"v_lshlrev_b32 v{T + 4}, 16, v{T + 1}",
                f"v_and_b32 v{T + 2}, 0xffff0000, v{T + 1}",
                f"v_add_f32 v{T + 2}, 0x3727c5ac, v{T + 2}",
                f"v_cvt_pk_bf16_f32 v{T + 2}, v{T + 2}, v{T + 2}",
                f"v_and_b32 v{T + 2}, 0xffff0000, v{T + 2}",
                f"v_sqrt_f32 v{T + 2}, v{T + 2}",
                "s_nop 0",
                f"v_cvt_pk_bf16_f32 v{T + 2}, v{T + 2}, v{T + 2}",
                f"v_and_b32 v{T + 2}, 0xffff0000, v{T + 2}",
                f"v_rcp_f32 v250, v{T + 2}",
                "s_nop 0",
                f"v_mul_f32 v251, v{T + 4}, v250",
                "v_sub_f32 v251, 0, v251"]

    VM = ["s0"] * 6 + ["s1"] * 6 + ["s2"] * 6

    def emit(x, tag=None):
        e(x)
        if x.startswith("buffer_") and tag:
            VM.append(tag)

    def nwait(*tags):
        last = max(i for i, t in enumerate(VM) if t in tags)
        return len(VM) - 1 - last

    S_SIDE, S_SIG, S_MBR, S_CHK, S_PL = 1, 2, 5, 5, 6

    def body(s):
        last = s == 7
        dg = dma_groups() if 1 <= s <= 5 else []
        dtag = f"s{s + 2}"
        side = side_first() if s == S_SIDE else []
        nside = (len(side) + 7) // 8
        ex = []
        if s == 0:
            ex = [[x] for x in PFL]
        if s == S_PL:
            for j in range(8):
                ex.append([f"s_mov_b32 s{sT0}, {1024 * j}",
                           f"buffer_load_dwordx2 {vr(48 + 2 * j, 2)}, v{vCS}, {sr(S_WS, 4)}, s{sT0} offen"])
                ex.append([f"buffer_load_dwordx2 {vr(64 + 2 * j, 2)}, v{vST}, {sr(S_WS, 4)}, s{sT0} offen"])
        eb = []
        if s >= 6:
            for i in range(3 * (s - 6), 3 * (s - 6) + 3):
                eb += g2_early(i)
        for kk in range(4):
            st = kk & 1
            rl = rlist(s, kk + 1) if kk < 3 else (rlist(s + 1, 0) if not last else [])
            issued = 0
            for m in range(4):
                if not (kk == 3 and m > 0):
                    e(f"s_waitcnt lgkmcnt({9 - (3 + 2 * m) + issued})")
                cc = "0" if (s == 0 and kk == 0) else vr(ACC + 16 * m, 16)
                e(f"v_mfma_f32_32x32x16_bf16 {vr(ACC + 16 * m, 16)}, {vr(BF + 16 * st + 4 * m, 4)}, "
                  f"{vr(AF + 4 * st, 4)}, {cc}")
                if kk == 3 and m == 0 and not last:
                    tags = [f"s{s + 1}"] + (["pst"] if s == S_SIG else []) + (["mbr"] if s == S_CHK else [])
                    e(f"s_waitcnt vmcnt({nwait(*tags)}) lgkmcnt(0)")
                    if s == S_CHK:
                        c("wave 0: all 24 partial producers have signalled? (else poll)")
                        e(f"s_cmp_eq_u32 s{sW}, 0")
                        e("s_cbranch_scc1 k1_chk")
                        with ool("k1_chk"):
                            pollmask(83, 0xffffff, S_WS, first=75)
                    e("s_barrier")
                    if s == 4:
                        stamp(2)
                    if s == S_SIG:
                        c("wave 4: everybody's partial stores are complete -> signal the consumers")
                        e(f"s_cmp_eq_u32 s{sW}, 4")
                        e("s_cbranch_scc1 k1_psig")
                        with ool("k1_psig"):
                            psig()
                for _ in range(3):
                    if rl:
                        e(rl.pop(0))
                        issued += 1
                if dg and kk < 3 and m >= 2:
                    for x in dg.pop(0):
                        emit(x, dtag)
                if ex:
                    for _ in range(2 if s == S_PL else 1):
                        if ex:
                            for x in ex.pop(0):
                                emit(x, "pf" if s == 0 else "pl")
                if eb and not ex and (kk < 3 or s == 6):
                    for x in eb.pop(0):
                        emit(x, "eb")
                if s == 4 and kk == 1 and m == 0:
                    g2_setup(sW, 6)
                if s == S_MBR and kk == 0 and m == 0:
                    c("every wave issues it (uniform counting), only wave 0 uses it")
                    e("v_and_b32 v15, 31, v1")
                    e("v_lshlrev_b32 v15, 2, v15")
                    e(f"s_cmp_eq_u32 s{sW}, 0")
                    e("s_cselect_b64 exec, -1, 0")
                    emit(f"buffer_load_dword v75, v15, {sr(S_WS, 4)}, s83 offen sc1", "mbr")
                    e("s_mov_b64 exec, -1")
                if side and kk in (1, 2):
                    if kk == 1 and m == 0:
                        e(f"s_waitcnt vmcnt({nwait('pf') + 2})")
                    for _ in range(nside):
                        if side:
                            x = side.pop(0)
                            for y in (x if isinstance(x, tuple) else (x,)):
                                emit(y, "pst" if "store" in y else None)
                if last and kk == 3:
                    if m == 0:
                        e(f"s_waitcnt vmcnt({nwait('pl')})")
                        for j in range(1, 8):
                            e(f"v_add_f32 v48, v48, v{48 + 2 * j}")
                            e(f"v_add_f32 v49, v49, v{49 + 2 * j}")
                            e(f"v_add_f32 v64, v64, v{64 + 2 * j}")
                            e(f"v_add_f32 v65, v65, v{65 + 2 * j}")
                        e(f"s_lshl_b32 s{sT0}, s{sW}, 9")
                        e(f"s_add_u32 s{sT0}, s{sT0}, {K1_EX}")
                        e(f"v_lshl_add_u32 v4, v1, 3, s{sT0}")
                        e("ds_write_b64 v4, v[48:49]")
                        e("v_lshrrev_b32 v4, 5, v1")
                        e(f"v_lshl_add_u32 v4, v4, 4, s{sT0}")
                        e("s_waitcnt lgkmcnt(0)")
                    elif m == 1:
                        for ti in range(4):
                            part, T = ti >> 1, ti & 1
                            for q in range(4):
                                e(f"ds_read_b128 {vr(CSR + 16 * ti + 4 * q, 4)}, v4 offset:{256 * part + 128 * T + 32 * q}")
                    elif m == 2:
                        for x in stats_math(64, 65, 8):
                            e(x)
        assert not dg and not side and not ex and not eb

    def psig():
        e(f"v_readfirstlane_b32 s{sZ}, v74")
        e("s_nop 3")
        zcheck()
        c("lanes 0-15: (mt'=l, nt) ; lanes 16-26: (mt, nt'=l-16) if nt < 8")
        e("v_cmp_gt_u32 vcc, 16, v1")
        e(f"v_mov_b32 v12, s{sMT}")
        e(f"v_mov_b32 v13, s{sNT}")
        e("v_subrev_u32 v14, 16, v1")
        e("v_cndmask_b32 v12, v12, v1, vcc")
        e("v_cndmask_b32 v13, v14, v13, vcc")
        e("v_lshrrev_b32 v14, 3, v12")
        e("v_mul_u32_u24 v14, 88, v14")
        e("v_lshl_add_u32 v14, v13, 3, v14")
        e("v_and_b32 v12, 7, v12")
        e("v_add_u32 v14, v14, v12")
        e("v_mul_u32_u24 v12, 2979, v14")
        e("v_lshrrev_b32 v12, 16, v12")
        e("v_mul_u32_u24 v13, 22, v12")
        e("v_sub_u32 v13, v14, v13")
        e("v_lshl_add_u32 v12, v13, 3, v12")
        e("v_lshlrev_b32 v12, 8, v12")
        e(f"s_lshl_b32 s79, s{sMT}, 2")
        e(f"s_add_u32 s79, s79, {WS_MB + 64 * 256 + 4 * MB_CS}")
        e(f"s_lshl_b32 s80, s{sNT}, 2")
        e(f"s_add_u32 s80, s80, {WS_MB + 64 * 256 + 4 * MB_ST}")
        e("v_mov_b32 v13, s80")
        e("v_mov_b32 v14, s79")
        e("v_cndmask_b32 v13, v13, v14, vcc")
        e("v_add_u32 v12, v12, v13")
        e("v_mov_b32 v13, 1")
        e(f"s_cmp_lt_u32 s{sNT}, 8")
        e("s_cselect_b32 s79, 27, 16")
        e("v_cmp_gt_u32 vcc, s79, v1")
        e("s_and_saveexec_b64 s[70:71], vcc")
        e(f"buffer_store_dword v13, v12, {sr(S_WS, 4)}, 0 offen sc1")
        e("s_mov_b64 exec, s[70:71]")

    e("s_waitcnt vmcnt(12)")
    e("s_barrier")
    stamp(1)
    for x in rlist(0, 0):
        e(x)
    for s in range(8):
        body(s)
    stamp(3)
    e("v_and_b32 v2, 31, v1")
    e("v_lshrrev_b32 v3, 5, v1")
    if PREF2:
        c("prefetch a slice of w_down (1 KB per wave) towards MALL for k2")
        e("s_sub_u32 s3, s2, %d" % K1_NCONV)
        e("s_lshl_b32 s3, s3, 3")
        e(f"s_add_u32 s3, s3, s{sW}")
        e("s_lshl_b32 s3, s3, 10")
        make_srd(S_X, P_WD, 1376 * 1024)
        e("v_lshlrev_b32 v6, 4, v1")
        e(f"buffer_load_dwordx4 v[224:227], v6, {sr(S_X, 4)}, s3 offen")
    RS, NM = 246, 248
    c("epilogue: h = bf16(bf16(g)*bf16(u)); transpose via wave-private LDS (4 KB at 49152 + w*4096)")
    e("s_barrier")
    e(f"s_lshl_b32 s{sT0}, s{sW}, 12")
    e(f"s_add_u32 s{sT0}, s{sT0}, 49152")
    e("v_and_b32 v4, 7, v2")
    e("v_xor_b32 v4, v4, v3")
    e("v_lshlrev_b32 v4, 4, v4")
    e("v_lshl_add_u32 v4, v2, 7, v4")
    e(f"v_add_u32 v4, s{sT0}, v4")
    e("v_lshrrev_b32 v5, 3, v1")
    e("v_and_b32 v6, 7, v1")
    e("v_xor_b32 v6, v6, v5")
    e("v_lshlrev_b32 v6, 4, v6")
    e("v_lshl_add_u32 v6, v5, 7, v6")
    e(f"v_add_u32 v6, s{sT0}, v6")
    e(f"v_mov_b32 v{RS}, v250")
    e(f"v_mov_b32 v{RS + 1}, v250")
    e(f"v_mov_b32 v{NM}, v251")
    e(f"v_mov_b32 v{NM + 1}, v251")
    c("row stats store (nt == 0, waves 0-3, lanes 0-31)")
    e(f"s_lshr_b32 s{sT0}, s{sW}, 2")
    e(f"s_or_b32 s{sT0}, s{sT0}, s{sNT}")
    e(f"s_cmp_lg_u32 s{sT0}, 0")
    e("s_cbranch_scc1 k1_nostat")
    e(f"s_lshl_b32 s{sT0}, s{sMT}, 7")
    e(f"s_lshl_b32 s{sT1}, s{sW}, 5")
    e(f"s_add_u32 s{sT0}, s{sT0}, s{sT1}")
    e(f"s_lshl_b32 s{sT0}, s{sT0}, 3")
    e(f"s_add_u32 s{sT0}, s{sT0}, {WS_ST}")
    e("v_lshlrev_b32 v15, 3, v2")
    e("v_cmp_eq_u32 vcc, 0, v3")
    e("s_and_saveexec_b64 s[70:71], vcc")
    e(f"buffer_store_dwordx2 v[250:251], v15, {sr(S_WS, 4)}, s{sT0} offen{STC}")
    e("s_mov_b64 exec, s[70:71]")
    e("k1_nostat:")
    e("s_waitcnt lgkmcnt(0)")
    for r in range(0, 64, 2):
        e(f"v_pk_mul_f32 {vr(CSR + r, 2)}, {vr(CSR + r, 2)}, {vr(NM, 2)}")
    for r in range(0, 64, 2):
        e(f"v_pk_fma_f32 {vr(ACC + r, 2)}, {vr(ACC + r, 2)}, {vr(RS, 2)}, {vr(CSR + r, 2)}")
    for T in range(2):
        G, U = ACC + 16 * T, ACC + 32 + 16 * T
        for qq in range(2):
            o = 16 + 4 * (2 * T + qq)
            for h2 in range(4):
                r = 8 * qq + 2 * h2
                e(f"v_cvt_pk_bf16_f32 v8, v{G + r}, v{G + r + 1}")
                e(f"v_cvt_pk_bf16_f32 v9, v{U + r}, v{U + r + 1}")
                e("v_lshlrev_b32 v10, 16, v8")
                e("v_and_b32 v11, 0xffff0000, v8")
                e("v_lshlrev_b32 v12, 16, v9")
                e("v_and_b32 v13, 0xffff0000, v9")
                e("v_mul_f32 v10, v10, v12")
                e("v_mul_f32 v11, v11, v13")
                e(f"v_cvt_pk_bf16_f32 v{o + h2}, v10, v11")
            e("s_nop 1")
            e(f"v_permlane32_swap_b32 v{o}, v{o + 2}")
            e(f"v_permlane32_swap_b32 v{o + 1}, v{o + 3}")
            e(f"v_xor_b32 v7, {(4 * T + 2 * qq) << 4}, v4")
            e(f"ds_write_b128 v7, {vr(o, 4)}")
    e("s_waitcnt lgkmcnt(0)")
    for j in range(4):
        e(f"ds_read_b128 {vr(32 + 4 * j, 4)}, v6 offset:{1024 * j}")
    for j in range(4):
        e(f"s_waitcnt lgkmcnt({3 - j})")
        e(f"s_mov_b32 s{sT0}, {8 * j * HP}")
        e(f"buffer_store_dwordx4 {vr(32 + 4 * j, 4)}, v{vHoff}, {sr(S_WS, 4)}, s{sT0} offen{STC}")
    stamp(4)
    e("s_waitcnt vmcnt(0)")
    e("s_barrier")
    stamp(5)
    e(f"s_mov_b32 s{sZ}, 1")
    signal(sW, S_WS, "h", sMT, sNT)
    e("s_branch g2_entry")
    flush_ool()


def k1_aux():
    sW = 62
    e("k1_aux:")
    e("v_lshrrev_b32 v2, 6, v0")
    e("v_and_b32 v1, 63, v0")
    e(f"v_readfirstlane_b32 s{sW}, v2")
    e("s_waitcnt lgkmcnt(0)")
    stamp(0)
    e(f"s_mov_b32 s{sZ}, 0")
    g2_setup(sW, 0)
    c("WG 240: zero all mailboxes (64 KB), then set the flag in d_debug")
    make_srd(48, P_WS, 0x1000000)
    make_srd(S_DB2, P_DBG, 256)
    e("s_cmp_lg_u32 s2, 240")
    e("s_cbranch_scc1 aux_nz")
    e(f"s_lshl_b32 s3, s{sW}, 13")
    e(f"s_add_u32 s3, s3, {WS_MB}")
    e("v_lshlrev_b32 v3, 4, v1")
    for r in range(4):
        e(f"v_mov_b32 v{4 + r}, 0")
    for j in range(8):
        e("buffer_store_dwordx4 v[4:7], v3, s[48:51], s3 offen sc1")
        e("s_add_u32 s3, s3, 1024")
    e("s_waitcnt vmcnt(0)")
    e("s_barrier")
    stamp(1)
    e(f"s_cmp_lg_u32 s{sW}, 0")
    e("s_cbranch_scc1 aux_nz")
    e("v_mov_b32 v14, 1")
    e(f"v_mov_b32 v15, {ZOFF}")
    e("v_cmp_eq_u32 vcc, 0, v1")
    e("s_and_saveexec_b64 s[70:71], vcc")
    e(f"buffer_store_dword v14, v15, {sr(S_DB2, 4)}, 0 offen sc1")
    e("s_mov_b64 exec, s[70:71]")
    e("aux_nz:")
    if PREF3 == 0:
        e("s_branch g2_entry")
        return
    if PREF3 == 2:
        e(f"s_cmp_lt_u32 s{sW}, 5")
        e("s_cbranch_scc1 g2_entry")
    c("pull half of w_down into this XCD's L2 (86 KB per wave)")
    make_srd(44, P_WD, 1376 * 1024)
    e("s_sub_u32 s3, s2, 240")
    e("s_lshr_b32 s3, s3, 3")
    e("s_lshl_b32 s3, s3, 3")
    e(f"s_add_u32 s3, s3, s{sW}")
    e("s_mul_i32 s3, s3, 88064")
    e("v_lshlrev_b32 v3, 4, v1")
    for j in range(86):
        e(f"buffer_load_dwordx4 {vr(16 + 4 * (j % 8), 4)}, v3, s[44:47], s3 offen")
        e("s_add_u32 s3, s3, 1024")
        if j >= 32:
            e("s_waitcnt vmcnt(32)")
        if j == 41:
            stamp(2)
    e("s_waitcnt vmcnt(0)")
    stamp(5)
    e("s_branch g2_entry")


CV_R = 0
CV_RSTR = 4608
CV_KT = 0
CV_KSTR = 8320
CV_KCPY = 4160
CV_T = 98304
CV_TP = 528


def k1_conv():
    S_K, S_V, S_SK, S_WS, S_SH, S_DBG = 44, 48, 52, 56, 72, 76
    sW, sT0, sT1, sD, sG, sJ, sCG, sRB = 62, 63, 64, 65, 66, 67, 68, 69
    e("k1_conv:")
    e("v_lshrrev_b32 v2, 6, v0")
    e("v_and_b32 v1, 63, v0")
    e(f"v_readfirstlane_b32 s{sW}, v2")
    e("s_waitcnt lgkmcnt(0)")
    stamp(0)
    for _ in range(CSLEEP):
        e("s_sleep 16")
    make_srd(S_K, P_K, 2048 * 1024)
    make_srd(S_V, P_V, 2048 * 1024)
    make_srd(S_SK, P_SK, 512 * 4096)
    make_srd(S_WS, P_WS, 0x1000000)
    make_srd(S_SH, P_SH, 4096)
    make_srd(S_DBG, P_DBG, 256)
    c("G = id%8 (64-channel group, one XCD), J = id/8 (256-row block / channel sub-group), cg = 8G + J")
    e(f"s_and_b32 s{sG}, s2, 7")
    e(f"s_lshr_b32 s{sJ}, s2, 3")
    e(f"s_lshl_b32 s{sCG}, s{sG}, 3")
    e(f"s_add_u32 s{sCG}, s{sCG}, s{sJ}")
    e(f"s_mul_i32 s{sRB}, s{sW}, {CV_RSTR}")
    e(f"s_cmp_ge_u32 s{sW}, 6")
    e(f"s_mov_b32 s{sT0}, 66560")
    e(f"s_cselect_b32 s{sT0}, {147456 - 6 * CV_RSTR}, s{sT0}")
    e(f"s_add_u32 s{sRB}, s{sRB}, s{sT0}")
    c("---- kv phase: rows J*256 + 4*rg.., channels G*64 + cs*8..")
    e("v_lshrrev_b32 v2, 3, v0")
    e("v_and_b32 v3, 7, v0")
    e(f"s_lshl_b32 s{sT0}, s{sJ}, 18")
    e(f"s_lshl_b32 s{sT1}, s{sG}, 7")
    e(f"s_add_u32 s{sT0}, s{sT0}, s{sT1}")
    e("v_lshlrev_b32 v4, 12, v2")
    e("v_lshl_add_u32 v4, v3, 4, v4")
    e(f"v_add_u32 v4, s{sT0}, v4")
    e("v_subrev_u32 v5, 3072, v4")
    KD, VD, WD = 16, 44, 60
    for r in range(3):
        e(f"buffer_load_dwordx4 {vr(KD + 4 * r, 4)}, v5, {sr(S_K, 4)}, 0 offen offset:{1024 * r}")
    for r in range(4):
        e(f"buffer_load_dwordx4 {vr(KD + 12 + 4 * r, 4)}, v4, {sr(S_K, 4)}, 0 offen offset:{1024 * r}")
    for r in range(4):
        e(f"buffer_load_dwordx4 {vr(VD + 4 * r, 4)}, v4, {sr(S_V, 4)}, 0 offen offset:{1024 * r}")
    e(f"s_lshl_b32 s{sT1}, s{sG}, 9")
    e("v_lshlrev_b32 v6, 6, v3")
    e(f"v_add_u32 v6, s{sT1}, v6")
    for j in range(4):
        e(f"buffer_load_dwordx4 {vr(WD + 4 * j, 4)}, v6, {sr(S_SH, 4)}, 0 offen offset:{16 * j}")
    c("ssm_D for this wave's channel")
    e(f"s_lshl_b32 s{sT0}, s{sCG}, 4")
    e(f"s_lshl_b32 s{sT1}, s{sW}, 1")
    e(f"s_add_u32 s{sT0}, s{sT0}, s{sT1}")
    e(f"s_and_b32 s{sT1}, s{sT0}, 0xfffffffc")
    e(f"s_add_u32 s{P_SD}, s{P_SD}, s{sT1}")
    e(f"s_addc_u32 s{P_SD + 1}, s{P_SD + 1}, 0")
    e(f"s_load_dword s{sD}, {sr(P_SD, 2)}, 0")
    c("ssm_k row of this wave's channel")
    SKD = 232
    e(f"s_lshl_b32 s{sT0}, s{sCG}, 3")
    e(f"s_add_u32 s{sT0}, s{sT0}, s{sW}")
    e(f"s_lshl_b32 s{sT0}, s{sT0}, 12")
    e("v_lshlrev_b32 v8, 4, v1")
    e(f"v_add_u32 v8, s{sT0}, v8")
    for j in range(4):
        e(f"buffer_load_dwordx4 {vr(SKD + 4 * j, 4)}, v8, {sr(S_SK, 4)}, 0 offen offset:{1024 * j}")
    for j in range(4):
        e(f"buffer_load_dword v{SKD + 16 + j}, v8, {sr(S_SK, 4)}, 0 offen offset:{1024 * j + 16}")
    c("kv LDS transpose position: T + (cs*8 + cc)*528 + 504 - 8 rg")
    e(f"v_mul_u32_u24 v7, {8 * CV_TP}, v3")
    e("v_lshlrev_b32 v9, 3, v2")
    e("v_sub_u32 v7, v7, v9")
    e(f"v_add_u32 v7, {CV_T + 504}, v7")
    e("s_waitcnt vmcnt(8)")
    stamp(1)
    e(f"s_cmp_lg_u32 s{sW}, 0")
    e("s_cbranch_scc1 k1c_nozl")
    zload()
    e("k1c_nozl:")
    KF, VF, WF = 80, 136, 200
    for cc in range(8):
        for jp in range(2):
            w = WD + 2 * cc + jp
            e(f"v_lshlrev_b32 v{WF + (2 * jp) * 8 + cc}, 16, v{w}")
            e(f"v_and_b32 v{WF + (2 * jp + 1) * 8 + cc}, 0xffff0000, v{w}")
    for i in range(28):
        e(f"v_lshlrev_b32 v{KF + 2 * i}, 16, v{KD + i}")
        e(f"v_and_b32 v{KF + 2 * i + 1}, 0xffff0000, v{KD + i}")
    for i in range(16):
        e(f"v_lshlrev_b32 v{VF + 2 * i}, 16, v{VD + i}")
        e(f"v_and_b32 v{VF + 2 * i + 1}, 0xffff0000, v{VD + i}")
    KV = 168
    for r in range(4):
        for cp in range(4):
            d = KV + 8 * r + 2 * cp
            e(f"v_pk_mul_f32 {vr(d, 2)}, {vr(KF + 8 * r + 2 * cp, 2)}, {vr(WF + 3 * 8 + 2 * cp, 2)}")
            for j in range(1, 4):
                e(f"v_pk_fma_f32 {vr(d, 2)}, {vr(KF + 8 * (r + j) + 2 * cp, 2)}, "
                  f"{vr(WF + (3 - j) * 8 + 2 * cp, 2)}, {vr(d, 2)}")
            e(f"v_pk_mul_f32 {vr(d, 2)}, {vr(d, 2)}, {vr(VF + 8 * r + 2 * cp, 2)}")
    for cc in range(8):
        o = 16 + 2 * cc
        e(f"v_cvt_pk_bf16_f32 v{o}, v{KV + 24 + cc}, v{KV + 16 + cc}")
        e(f"v_cvt_pk_bf16_f32 v{o + 1}, v{KV + 8 + cc}, v{KV + cc}")
        e(f"ds_write_b64 v7, {vr(o, 2)} offset:{cc * CV_TP}")
    e("s_waitcnt lgkmcnt(0)")
    e("s_barrier")
    c("wave w: channels 8w..8w+7 of the group: full-line stores (2 channels x 512 B per instruction)")
    e("v_lshrrev_b32 v6, 5, v1")
    e("v_and_b32 v7, 31, v1")
    e("v_lshlrev_b32 v7, 4, v7")
    e(f"v_mul_u32_u24 v9, {CV_TP}, v6")
    e("v_add_u32 v9, v9, v7")
    e(f"s_mul_i32 s{sT1}, s{sW}, {8 * CV_TP}")
    e(f"s_add_u32 s{sT1}, s{sT1}, {CV_T}")
    e(f"v_add_u32 v9, s{sT1}, v9")
    for j in range(4):
        e(f"ds_read_b128 {vr(16 + 4 * j, 4)}, v9 offset:{2 * j * CV_TP}")
    e("v_lshl_add_u32 v7, v6, 12, v7")
    e(f"s_lshl_b32 s{sT0}, s{sG}, 18")
    e(f"s_lshl_b32 s{sT1}, s{sW}, 15")
    e(f"s_add_u32 s{sT0}, s{sT0}, s{sT1}")
    e(f"s_add_u32 s{sT0}, s{sT0}, {WS_KV + 3584}")
    e(f"s_lshl_b32 s{sT1}, s{sJ}, 9")
    e(f"s_sub_u32 s{sT0}, s{sT0}, s{sT1}")
    for j in range(4):
        e(f"s_waitcnt lgkmcnt({3 - j})")
        e(f"buffer_store_dwordx4 {vr(16 + 4 * j, 4)}, v7, {sr(S_WS, 4)}, s{sT0} offen sc1")
        e(f"s_add_u32 s{sT0}, s{sT0}, 8192")
    c("meanwhile: zero pads and KT copies")
    e(f"s_mov_b32 s{sT1}, s{sRB}")
    e("v_lshlrev_b32 v6, 3, v1")
    e(f"v_add_u32 v6, s{sT1}, v6")
    e("v_mov_b32 v10, 0")
    e("v_mov_b32 v11, 0")
    e(f"ds_write_b64 v6, v[10:11] offset:{CV_R + 4096}")
    e(f"s_mul_i32 s{sT1}, s{sW}, {CV_KSTR}")
    e(f"s_add_u32 s{sT1}, s{sT1}, {CV_KT}")
    e("v_lshlrev_b32 v7, 2, v1")
    e(f"v_add_u32 v7, s{sT1}, v7")
    e("v_cmp_gt_u32 vcc, 8, v1")
    e("s_and_saveexec_b64 s[70:71], vcc")
    e("ds_write_b32 v7, v10")
    e(f"ds_write_b32 v7, v10 offset:{CV_KCPY}")
    e("s_mov_b64 exec, s[70:71]")
    e("s_waitcnt lgkmcnt(0)")
    e(f"s_lshl_b32 s{sT0}, s{sD}, 16")
    e(f"s_and_b32 s{sD}, s{sD}, 0xffff0000")
    e(f"s_bitcmp1_b32 s{sW}, 0")
    e(f"s_cselect_b32 s{sD}, s{sD}, s{sT0}")
    e("v_lshlrev_b32 v7, 4, v1")
    e(f"v_add_u32 v7, s{sT1}, v7")
    e("s_waitcnt vmcnt(4)")
    for j in range(4):
        d = SKD + 4 * j
        e(f"ds_write_b128 v7, {vr(d, 4)} offset:{32 + 1024 * j}")
        e(f"v_alignbit_b32 v12, v{d + 1}, v{d}, 16")
        e(f"v_alignbit_b32 v13, v{d + 2}, v{d + 1}, 16")
        e(f"v_alignbit_b32 v14, v{d + 3}, v{d + 2}, 16")
        e(f"v_alignbit_b32 v15, v{SKD + 16 + j}, v{d + 3}, 16")
        e(f"ds_write_b128 v7, v[12:15] offset:{CV_KCPY + 32 + 1024 * j}")
        e("s_nop 1")
    e(f"v_lshlrev_b32 v12, 16, v{SKD}")
    e("v_cmp_eq_u32 vcc, 0, v1")
    e("s_and_saveexec_b64 s[70:71], vcc")
    e(f"ds_write_b32 v7, v12 offset:{CV_KCPY + 28}")
    e("s_mov_b64 exec, s[70:71]")
    c("hand-off: all kv stores drained -> barrier -> flags to the 8 WGs of the group; then poll own mailbox")
    e("s_waitcnt vmcnt(0)")
    e("s_barrier")
    stamp(2)
    e(f"s_cmp_lg_u32 s{sW}, 0")
    e("s_cbranch_scc1 k1c_wait")
    zcheck()
    e(f"v_lshl_add_u32 v12, v1, 3, s{sG}")
    e("v_lshlrev_b32 v12, 8, v12")
    e(f"s_lshl_b32 s79, s{sJ}, 2")
    e(f"s_add_u32 s79, s79, {WS_MB + 4 * MB_KV}")
    e("v_mov_b32 v13, 1")
    e("v_cmp_gt_u32 vcc, 8, v1")
    e("s_and_saveexec_b64 s[70:71], vcc")
    e(f"buffer_store_dword v13, v12, {sr(S_WS, 4)}, s79 offen sc1")
    e("s_mov_b64 exec, s[70:71]")
    e("s_lshl_b32 s79, s2, 8")
    e(f"s_add_u32 s79, s79, {WS_MB}")
    pollmask(79, 0xff << MB_KV, S_WS)
    e(f"s_mov_b32 s{sZ}, 1")
    e("k1c_wait:")
    e("s_barrier")
    c("load own channel kvR row (sc1) -> LDS R")
    e(f"v_add_u32 v8, {WS_KV}, v8")
    for j in range(4):
        e(f"buffer_load_dwordx4 {vr(16 + 4 * j, 4)}, v8, {sr(S_WS, 4)}, 0 offen offset:{1024 * j} sc1")
    e(f"s_mov_b32 s{sT0}, s{sRB}")
    e("v_lshlrev_b32 v6, 4, v1")
    e(f"v_add_u32 v6, s{sT0}, v6")
    for j in range(4):
        e(f"s_waitcnt vmcnt({3 - j})")
        e(f"ds_write_b128 v6, {vr(16 + 4 * j, 4)} offset:{CV_R + 1024 * j}")
    e("s_waitcnt lgkmcnt(0)")
    stamp(3)
    c("MFMA phase: wave w -> channel w")
    ACC = 16
    AR = [48, 112]
    BR = [80, 144]
    vKT, vR, vA = 200, 201, 202
    e("v_and_b32 v2, 15, v1")
    e("v_lshrrev_b32 v3, 4, v1")
    e("v_lshlrev_b32 v4, 1, v2")
    e("v_lshlrev_b32 v5, 4, v3")
    e("v_sub_u32 v4, v4, v5")
    e(f"v_add_u32 v4, {32 - 14}, v4")
    e("v_and_b32 v5, 1, v2")
    e("v_cmp_eq_u32 vcc, 0, v5")
    e("v_mov_b32 v5, 0")
    e(f"v_mov_b32 v6, {CV_KCPY - 2}")
    e("s_nop 1")
    e("v_cndmask_b32 v5, v5, v6, vcc")
    e("v_add_u32 v4, v4, v5")
    e(f"v_add_u32 v{vKT}, s{sT1}, v4")
    e(f"s_mov_b32 s{sT0}, s{sRB}")
    e("v_lshlrev_b32 v4, 5, v2")
    e("v_lshl_add_u32 v4, v3, 4, v4")
    e(f"v_sub_u32 v4, {CV_R + 4080 - 3584}, v4")
    e(f"v_add_u32 v{vR}, s{sT0}, v4")

    def creads(ci, st):
        d0 = 2 * ci + 1
        for pp in range(4):
            e(f"v_add_u32 v{vA + pp}, {32 * d0 + 1024 * pp}, v{vKT}")
        order = [("B", 0)] + [("A", p) for p in range(8)] + [("B", m) for m in range(1, 8)]
        for kind, x in order:
            if kind == "A":
                p = x
                o = 128 * (p & 1)
                e(f"ds_read2_b32 {vr(AR[st] + 4 * p, 2)}, v{vA + (p >> 1)} offset0:{o} offset1:{o + 1}")
                e(f"ds_read2_b32 {vr(AR[st] + 4 * p + 2, 2)}, v{vA + (p >> 1)} offset0:{o + 2} offset1:{o + 3}")
            else:
                m = x
                e(f"ds_read_b128 {vr(BR[st] + 4 * m, 4)}, v{vR} offset:{32 * d0 + 512 * (7 - m)}")

    creads(0, 0)
    g2_setup(sW, 3)
    for ci in range(8):
        st = ci & 1
        e("s_waitcnt lgkmcnt(0)")
        if ci < 7:
            creads(ci + 1, st ^ 1)
        if 2 <= ci <= 4:
            for g in g2_early(ci - 2):
                for x in g:
                    e(x)
        for m in range(8):
            for p in range(8 - m):
                cc = "0" if (ci == 0 and m == 0) else vr(ACC + 4 * (m + p), 4)
                e(f"v_mfma_f32_16x16x32_bf16 {vr(ACC + 4 * (m + p), 4)}, {vr(AR[st] + 4 * p, 4)}, "
                  f"{vr(BR[st] + 4 * m, 4)}, {cc}")
    stamp(None)
    c("epilogue: kv reads, y2 = bf16(bf16(y) + bf16(kv*D)), store y2T")
    e("v_lshlrev_b32 v4, 5, v2")
    e("v_lshl_add_u32 v4, v3, 3, v4")
    e(f"v_sub_u32 v5, {CV_R + 4088 - 3584}, v4")
    e(f"v_add_u32 v5, s{sT0}, v5")
    KVR = 48
    for n in range(8):
        e(f"ds_read_b64 {vr(KVR + 2 * n, 2)}, v5 offset:{512 * (7 - n)}")
    e(f"s_lshl_b32 s{sT1}, s{sCG}, 3")
    e(f"s_add_u32 s{sT1}, s{sT1}, s{sW}")
    e(f"s_lshl_b32 s{sT1}, s{sT1}, 12")
    e(f"s_add_u32 s{sT1}, s{sT1}, {WS_Y2}")
    e(f"v_add_u32 v6, s{sT1}, v4")
    e("s_nop 7")
    e("s_waitcnt lgkmcnt(0)")
    for n in range(8):
        a = ACC + 4 * n
        k0, k1 = KVR + 2 * n, KVR + 2 * n + 1
        o = 80 + 2 * n
        e(f"v_cvt_pk_bf16_f32 v8, v{a}, v{a + 1}")
        e(f"v_cvt_pk_bf16_f32 v9, v{a + 2}, v{a + 3}")
        e(f"v_and_b32 v10, 0xffff0000, v{k1}")
        e(f"v_lshlrev_b32 v11, 16, v{k1}")
        e(f"v_and_b32 v12, 0xffff0000, v{k0}")
        e(f"v_lshlrev_b32 v13, 16, v{k0}")
        for t in range(4):
            e(f"v_mul_f32 v{10 + t}, s{sD}, v{10 + t}")
        e("v_cvt_pk_bf16_f32 v10, v10, v11")
        e("v_cvt_pk_bf16_f32 v12, v12, v13")
        e("v_lshlrev_b32 v14, 16, v8")
        e("v_and_b32 v15, 0xffff0000, v8")
        e("v_lshlrev_b32 v11, 16, v10")
        e("v_and_b32 v10, 0xffff0000, v10")
        e("v_add_f32 v14, v14, v11")
        e("v_add_f32 v15, v15, v10")
        e(f"v_cvt_pk_bf16_f32 v{o}, v14, v15")
        e("v_lshlrev_b32 v14, 16, v9")
        e("v_and_b32 v15, 0xffff0000, v9")
        e("v_lshlrev_b32 v13, 16, v12")
        e("v_and_b32 v12, 0xffff0000, v12")
        e("v_add_f32 v14, v14, v13")
        e("v_add_f32 v15, v15, v12")
        e(f"v_cvt_pk_bf16_f32 v{o + 1}, v14, v15")
        e(f"buffer_store_dwordx2 {vr(o, 2)}, v6, {sr(S_WS, 4)}, 0 offen offset:{512 * n}{STC}")
    stamp(4)
    e("s_waitcnt vmcnt(0)")
    e("s_barrier")
    stamp(5)
    signal(sW, S_WS, "c", sG, sJ)
    e(f"s_mov_b32 s{sZ}, 1")
    e("s_branch g2_entry")


def kernel1():
    e(".globl k1_kernel")
    e(".p2align 8")
    e(".type k1_kernel,@function")
    e("k1_kernel:")
    e("s_cmp_ge_u32 s2, 256")
    e("s_cbranch_scc1 k1_done")
    load_ptrs()
    e(f"s_cmp_lt_u32 s2, {K1_NCONV}")
    e("s_cbranch_scc1 k1_conv")
    e(f"s_cmp_lt_u32 s2, {K1_NCONV + K1_NGEMM}")
    e("s_cbranch_scc1 k1_gemm")
    k1_aux()
    k1_gemm()
    k1_conv()
    kernel2()
    e("k1_done:")
    e("s_endpgm")


K2_Y2 = 147456
K2_MASK = K2_Y2 + 8192
K2_STATS = K2_MASK + 64
K2_AS = [6, 7, 8, 0, 1, 2]
K2_STEPS = 11
K2_NBR = 8
K2_NA = 6


def kernel2():
    S_H, S_WD, S_X, S_WS, S_OUT = 44, 48, 52, 56, 60
    sW, sT0, sT1, sMT, sNT, sKA, sKB, sLB = 64, 65, 66, 67, 68, 69, 70, 71
    sMASK, sW11 = 18, 19
    XR = 16
    NR = 24
    AFR = 28
    ACC = 60
    BFR = 124
    vDA, vDB, vB0, vB1, vAr, vOut = 8, 9, 10, 11, 12, 13
    e("g2_entry:")
    e("v_lshrrev_b32 v2, 6, v0")
    e("v_and_b32 v1, 63, v0")
    e(f"v_readfirstlane_b32 s{sW}, v2")
    make_srd(S_WS, P_WS, 0x1000000)
    e(f"s_cmp_gt_u32 s{sW}, 4")
    e("s_cbranch_scc1 g2_exit")
    c("x = id%8, j = id/8 : mt2 = 4x + (j&3), nt2 = j>>2")
    e("s_and_b32 s4, s2, 7")
    e("s_lshr_b32 s5, s2, 3")
    e(f"s_lshr_b32 s{sNT}, s5, 2")
    e("s_and_b32 s5, s5, 3")
    e(f"s_lshl_b32 s{sMT}, s4, 2")
    e(f"s_add_u32 s{sMT}, s{sMT}, s5")
    e(f"s_cmp_eq_u32 s{sW}, 4")
    e("s_cbranch_scc1 g2_helper")
    make_srd(S_H, P_WS, WS_H_BYTES)
    make_srd(S_X, P_Q, 2048 * 1024)
    make_srd(S_OUT, P_OUT, 2048 * 1024)
    e(f"s_mul_i32 s{sW11}, s{sW}, {K2_STEPS}")
    e(f"s_lshl_b32 s{sKA}, s{sW11}, 6")
    e(f"s_mul_i32 s{sT1}, s{sMT}, {64 * HP}")
    e(f"s_add_u32 s{sKA}, s{sKA}, s{sT1}")
    e(f"s_mov_b32 s{sLB}, s{sLB2}")
    e("v_and_b32 v2, 31, v1")
    e("v_lshrrev_b32 v3, 5, v1")
    e(f"s_mov_b32 s73, s{sROT}")
    e(f"s_mov_b32 s75, s{sROT}")
    VM = []

    def adv(sidx):
        return [f"s_add_u32 s{sidx}, s{sidx}, 1", f"s_cmp_ge_u32 s{sidx}, 11", f"s_cselect_b32 s{sidx}, 0, s{sidx}"]

    def groups_B(i, slot):
        g = []
        for j in range(4):
            x = []
            if j == 0:
                x += [f"s_lshl_b32 s77, s{sBI}, 15", f"s_add_u32 s77, s77, s{sKB2}"]
            x += [f"s_add_u32 m0, s{sLB}, {slot * 16384 + j * 1024}",
                  f"s_add_u32 s{sT0}, s77, {8 * j * 1024}",
                  f"buffer_load_dwordx4 v{vDB2}, {sr(S_WD2, 4)}, s{sT0} offen lds"]
            if j == 3:
                x += adv(sBI)
            g.append((x, f"B{i}"))
        return g

    def groups_A(i):
        slot = K2_AS[i % K2_NA]
        g = []
        for j in range(4):
            x = []
            if j == 0:
                x += [f"s_add_u32 s76, s73, s{sW11}", "s_lshr_b32 s76, s76, 2",
                      f"s_bitcmp1_b32 s{sMASK}, s76", f"s_cbranch_scc0 g2_wt{i}", ("ool", i),
                      "s_lshl_b32 s76, s73, 6", f"s_add_u32 s76, s76, s{sKA}"]
            x += [f"s_add_u32 m0, s{sLB}, {slot * 16384 + j * 1024}",
                  f"s_add_u32 s{sT0}, s76, {16 * j * HP}",
                  f"buffer_load_dwordx4 v{vDA}, {sr(S_H, 4)}, s{sT0} offen lds"]
            if j == 3:
                x += adv(73)
            g.append((x, f"A{i}"))
        return g

    def emit_group(g):
        x, tag = g
        for y in x:
            if isinstance(y, tuple):
                i = y[1]
                with ool(f"g2_wt{i}"):
                    e("s_mov_b32 s80, 0")
                    e(f"g2_wl{i}:")
                    e("ds_read_b32 v15, v26")
                    e("s_waitcnt lgkmcnt(0)")
                    e(f"v_readfirstlane_b32 s{sMASK}, v15")
                    e("s_add_u32 s80, s80, 1")
                    e("s_nop 2")
                    e(f"s_bitcmp1_b32 s{sMASK}, s76")
                    e(f"s_cbranch_scc1 g2_wt{i}_ret")
                    e("s_sleep 1")
                    e("s_cmp_lt_u32 s80, 0x400000")
                    e(f"s_cbranch_scc1 g2_wl{i}")
                continue
            e(y)
            if y.startswith("buffer_"):
                VM.append(tag)

    def nwait(tag):
        last = max(i for i, t in enumerate(VM) if t == tag)
        return min(63, len(VM) - 1 - last)

    c("B steps not issued early (branch on the role)")
    e(f"s_cmp_eq_u32 s{sNPRE}, 6")
    e("s_cbranch_scc1 g2_b6")
    e(f"s_cmp_eq_u32 s{sNPRE}, 3")
    e("s_cbranch_scc1 g2_b3")
    for i in range(9):
        if i in (3, 6):
            e(f"g2_b{i}:")
        for g in groups_B(i, K2_SB[i]):
            emit_group(g)
    c("A DMA lane offsets: row = l/4, src chunk = (l%4) ^ ((l/16)&3)")
    e("v_lshrrev_b32 v4, 2, v1")
    e(f"v_mul_u32_u24 v4, {HP}, v4")
    e("v_and_b32 v5, 3, v1")
    e("v_lshrrev_b32 v6, 4, v1")
    e("v_xor_b32 v5, v5, v6")
    e(f"v_lshl_add_u32 v{vDA}, v5, 4, v4")
    c("epilogue operand loads: tile (mi = w/2, ni = w%2)")
    e(f"s_lshr_b32 s{sT0}, s{sW}, 1")
    e(f"s_lshl_b32 s{sT0}, s{sT0}, 5")
    e(f"v_add_u32 v27, s{sT0}, v2")
    e(f"v_lshlrev_b32 v27, 3, v27")
    e(f"v_add_u32 v27, {K2_STATS}, v27")
    e(f"s_lshl_b32 s{sT1}, s{sMT}, 6")
    e(f"s_add_u32 s{sT0}, s{sT0}, s{sT1}")
    e(f"v_add_u32 v4, s{sT0}, v2")
    e(f"s_and_b32 s{sT1}, s{sW}, 1")
    e(f"s_lshl_b32 s{sT1}, s{sT1}, 6")
    e(f"s_lshl_b32 s72, s{sNT}, 7")
    e(f"s_add_u32 s{sT1}, s{sT1}, s72")
    e("v_lshlrev_b32 v5, 10, v4")
    e(f"v_add_u32 v5, s{sT1}, v5")
    e(f"v_lshl_add_u32 v{vOut}, v3, 4, v5")
    e("v_lshl_add_u32 v5, v3, 3, v5")
    for q in range(4):
        e(f"buffer_load_dwordx2 {vr(XR + 2 * q, 2)}, v5, {sr(S_X, 4)}, 0 offen offset:{16 * q}")
        VM.append("epi")
    c("B tr-read lane addresses")
    e("v_and_b32 v4, 15, v1")
    e("v_lshrrev_b32 v5, 2, v4")
    e("v_lshl_add_u32 v6, v3, 4, v5")
    e("v_lshlrev_b32 v6, 7, v6")
    e("v_lshrrev_b32 v7, 4, v1")
    e("v_and_b32 v7, 1, v7")
    e("v_lshl_add_u32 v6, v7, 5, v6")
    e("v_and_b32 v7, 3, v4")
    e("v_lshl_add_u32 v6, v7, 3, v6")
    e(f"v_add_u32 v6, s{sLB}, v6")
    e("v_lshrrev_b32 v7, 3, v4")
    e(f"v_lshl_add_u32 v{vB0}, v7, 6, v6")
    e("v_xor_b32 v7, 1, v7")
    e(f"v_lshl_add_u32 v{vB1}, v7, 6, v6")
    c("A read address: r*64 + ((2g+s) ^ ((r>>2)&3))*16 ; s via xor 16")
    e("v_lshrrev_b32 v4, 2, v2")
    e("v_and_b32 v4, 3, v4")
    e("v_lshlrev_b32 v5, 1, v3")
    e("v_xor_b32 v4, v4, v5")
    e("v_lshlrev_b32 v4, 4, v4")
    e("v_lshl_add_u32 v4, v2, 6, v4")
    e(f"v_add_u32 v{vAr}, s{sLB}, v4")
    e(f"v_xor_b32 v14, 16, v{vAr}")
    e(f"v_mov_b32 v26, {K2_MASK}")
    e(f"s_mov_b32 s{sMASK}, 0")

    c("address regs per 48 KB third: (B0, B1, A0, A1) x 3 in v[240:251]?  -> B frags end at 251, so use v[4:7] dynamically")

    def rebase(third):
        return [f"v_add_u32 v4, {third * 49152}, v{vB0}", f"v_add_u32 v5, {third * 49152}, v{vB1}",
                f"v_add_u32 v6, {third * 49152}, v{vAr}", f"v_add_u32 v7, {third * 49152}, v14"]

    def breads(i, slot):
        r = rebase(slot // 3)[:2]
        base = BFR + 16 * (i % K2_NBR)
        for s in range(2):
            for ni in range(2):
                for u in range(2):
                    r.append(f"ds_read_b64_tr_b16 {vr(base + 8 * s + 4 * ni + 2 * u, 2)}, v{5 if ni else 4} "
                             f"offset:{(slot % 3) * 16384 + (8 * s + 4 * u) * 128}")
        return r

    def areads(i):
        slot = K2_AS[i % K2_NA]
        r = rebase(slot // 3)[2:]
        for s in range(2):
            for mi in range(2):
                r.append(f"ds_read_b128 {vr(AFR + 16 * (i & 1) + 8 * mi + 4 * s, 4)}, v{7 if s else 6} "
                         f"offset:{(slot % 3) * 16384 + mi * 2048}")
        return r

    for r in range(64):
        e(f"v_mov_b32 v{ACC + r}, 0")
    e("s_barrier")
    for i in range(6):
        e(f"s_waitcnt vmcnt({nwait(f'B{i}')})")
        for x in breads(i, K2_SB[i]):
            e(x)
    e("s_waitcnt lgkmcnt(0)")
    stamp(6)
    for i in range(K2_NA):
        for g in groups_A(i):
            emit_group(g)
    for i in (6, 7):
        e(f"s_waitcnt vmcnt({nwait(f'B{i}')})")
        for x in breads(i, K2_SB[i]):
            e(x)
    e("s_waitcnt lgkmcnt(0)")
    for g in groups_B(9, 3) + groups_B(10, 4):
        emit_group(g)
    e(f"s_waitcnt vmcnt({nwait('A0')})")
    stamp(7)
    for x in areads(0):
        e(x)
    BSLOT = {8: 5, 9: 3, 10: 4}
    for i in range(K2_STEPS):
        e("s_waitcnt lgkmcnt(0)")
        dg = groups_A(i + K2_NA) if i + K2_NA < K2_STEPS else []
        rl = []
        if i + 1 < K2_STEPS:
            rl = areads(i + 1)
            if i + 1 >= K2_NBR:
                rl += breads(i + 1, BSLOT[i + 1])
        for g in dg:
            emit_group(g)
        if rl:
            tag = f"A{i + 1}"
            n = nwait(tag)
            if i + 1 >= K2_NBR:
                n = min(n, nwait(f"B{i + 1}"))
            e(f"s_waitcnt vmcnt({n})")
            for x in rl:
                e(x)
        e(f"s_add_u32 s74, s75, s{sW}")
        for x in adv(75):
            e(x)
        e("s_cmp_eq_u32 s74, 13")
        e(f"s_cbranch_scc1 k2_skip{i}")
        for s in range(2):
            for mi in range(2):
                for ni in range(2):
                    a = ACC + 16 * (2 * mi + ni)
                    bb = BFR + 16 * (i % K2_NBR) + 8 * s + 4 * ni
                    e(f"v_mfma_f32_32x32x16_bf16 {vr(a, 16)}, {vr(bb, 4)}, "
                      f"{vr(AFR + 16 * (i & 1) + 8 * mi + 4 * s, 4)}, {vr(a, 16)}")
        e(f"k2_skip{i}:")
    e("s_nop 15")
    e("s_nop 3")
    stamp(8)
    c("write non-owned partial tiles to own LDS region")
    e("v_lshlrev_b32 v4, 4, v1")
    e(f"v_add_u32 v4, s{sLB}, v4")
    for t in range(4):
        e(f"s_cmp_eq_u32 s{sW}, {t}")
        e(f"s_cbranch_scc1 k2_skipw{t}")
        for q in range(4):
            e(f"ds_write_b128 v4, {vr(ACC + 16 * t + 4 * q, 4)} offset:{t * 16384 + q * 1024}")
        e(f"k2_skipw{t}:")
    e("s_waitcnt lgkmcnt(0)")
    e("s_barrier")
    stamp(9)
    OWN, OTH, YR, OUTR, TA, TB = 124, 140, 188, 196, 204, 205
    c("owner gathers: tile w from the other 3 waves")
    for t in range(4):
        e(f"s_cmp_lg_u32 s{sW}, {t}")
        e(f"s_cbranch_scc1 k2_skipm{t}")
        for r in range(16):
            e(f"v_mov_b32 v{OWN + r}, v{ACC + 16 * t + r}")
        e(f"k2_skipm{t}:")
    e(f"s_lshl_b32 s{sT0}, s{sW}, 14")
    e("v_lshlrev_b32 v4, 4, v1")
    e(f"v_add_u32 v4, s{sT0}, v4")
    for k in range(1, 4):
        e(f"s_add_u32 s{sT1}, s{sW}, {k}")
        e(f"s_and_b32 s{sT1}, s{sT1}, 3")
        e(f"s_lshl_b32 s{sT1}, s{sT1}, 12")
        e(f"v_add_u32 v5, s{sT1}, v4")
        for q in range(4):
            e(f"ds_read_b128 {vr(OTH + 16 * (k - 1) + 4 * q, 4)}, v5 offset:{q * 1024}")
    c("y2 tr reads: c0 = 8q + 4g")
    e("v_and_b32 v4, 15, v1")
    e("v_lshrrev_b32 v5, 2, v4")
    e("v_lshl_add_u32 v5, v3, 2, v5")
    e("v_lshlrev_b32 v5, 6, v5")
    e("v_lshrrev_b32 v6, 4, v1")
    e("v_and_b32 v6, 1, v6")
    e("v_lshl_add_u32 v5, v6, 5, v5")
    e("v_and_b32 v6, 3, v4")
    e("v_lshl_add_u32 v5, v6, 3, v5")
    e(f"s_lshl_b32 s{sT1}, s{sW}, 11")
    e(f"s_add_u32 s{sT1}, s{sT1}, {K2_Y2}")
    e(f"v_add_u32 v5, s{sT1}, v5")
    e("s_waitcnt lgkmcnt(8)")
    for q in range(4):
        e(f"ds_read_b64_tr_b16 {vr(YR + 2 * q, 2)}, v5 offset:{q * 512}")
    e(f"ds_read_b64 {vr(NR, 2)}, v27")
    e("s_waitcnt vmcnt(0) lgkmcnt(0)")
    for r in range(16):
        e(f"v_add_f32 v{OWN + r}, v{OWN + r}, v{OTH + r}")
        e(f"v_add_f32 v{OTH + 16 + r}, v{OTH + 16 + r}, v{OTH + 32 + r}")
    for r in range(16):
        e(f"v_add_f32 v{OWN + r}, v{OWN + r}, v{OTH + 16 + r}")
    for q in range(4):
        for h2 in range(2):
            x = XR + 2 * q + h2
            y = YR + 2 * q + h2
            b = OWN + 4 * q + 2 * h2
            e(f"v_lshlrev_b32 v4, 16, v{x}")
            e(f"v_and_b32 v5, 0xffff0000, v{x}")
            e(f"v_fma_f32 v7, v4, v{NR}, v{NR + 1}")
            e(f"v_fma_f32 v6, v5, v{NR}, v{NR + 1}")
            e("v_cvt_pk_bf16_f32 v6, v7, v6")
            e("v_lshlrev_b32 v7, 16, v6")
            e("v_and_b32 v6, 0xffff0000, v6")
            e(f"v_lshlrev_b32 v{TA}, 16, v{y}")
            e(f"v_and_b32 v{TB}, 0xffff0000, v{y}")
            e(f"v_mul_f32 v7, v7, v{TA}")
            e(f"v_mul_f32 v6, v6, v{TB}")
            e("v_cvt_pk_bf16_f32 v6, v7, v6")
            e("v_lshlrev_b32 v7, 16, v6")
            e("v_and_b32 v6, 0xffff0000, v6")
            e("v_add_f32 v7, v4, v7")
            e("v_add_f32 v6, v5, v6")
            e("v_cvt_pk_bf16_f32 v6, v7, v6")
            e(f"v_cvt_pk_bf16_f32 v{TA}, v{b}, v{b + 1}")
            e("v_lshlrev_b32 v7, 16, v6")
            e("v_and_b32 v6, 0xffff0000, v6")
            e(f"v_lshlrev_b32 v{TB}, 16, v{TA}")
            e(f"v_and_b32 v{TA}, 0xffff0000, v{TA}")
            e(f"v_add_f32 v7, v7, v{TB}")
            e(f"v_add_f32 v6, v6, v{TA}")
            e(f"v_cvt_pk_bf16_f32 v{OUTR + 2 * q + h2}, v7, v6")
    e("s_nop 1")
    for qq in range(2):
        o = OUTR + 4 * qq
        e(f"v_permlane32_swap_b32 v{o}, v{o + 2}")
        e(f"v_permlane32_swap_b32 v{o + 1}, v{o + 3}")
        e(f"buffer_store_dwordx4 {vr(o, 4)}, v{vOut}, {sr(S_OUT, 4)}, 0 offen offset:{32 * qq}")
    e("g2_exit:")
    stamp_flush(S_WS, WS_PROF)
    e("s_endpgm")
    flush_ool()
    e("g2_helper:")
    c("helper wave: publish the ready mask of the 11 GEMM1 tiles of row block mt2/2 (own mailbox)")
    e(f"v_mov_b32 v26, {K2_MASK}")
    e("v_mov_b32 v13, 0")
    e("ds_write_b32 v26, v13")
    e("s_waitcnt lgkmcnt(0)")
    e("s_barrier")
    zcheck()
    e("s_lshl_b32 s79, s2, 8")
    e(f"s_add_u32 s79, s79, {WS_MB}")
    e("v_and_b32 v15, 31, v0")
    e("v_lshlrev_b32 v15, 2, v15")
    e("s_mov_b32 s80, 0")
    e("g2_hp:")
    e(f"buffer_load_dword v14, v15, {sr(S_WS, 4)}, s79 offen sc1")
    e("s_waitcnt vmcnt(0)")
    e("v_cmp_ne_u32 vcc, 0, v14")
    e("s_add_u32 s80, s80, 1")
    e("s_and_b32 s81, vcc_lo, 0x7ff")
    e("v_mov_b32 v13, s81")
    e("ds_write_b32 v26, v13")
    e("s_cmp_eq_u32 s81, 0x7ff")
    e("s_cbranch_scc1 g2_hd")
    e("s_cmp_lt_u32 s80, 0x40000")
    e("s_cbranch_scc1 g2_hp")
    e("g2_hd:")
    c("row stats of the 64 rows -> LDS")
    e("v_lshlrev_b32 v5, 2, v1")
    e(f"s_lshl_b32 s{sT1}, s{sMT}, 9")
    e(f"s_add_u32 s{sT1}, s{sT1}, {WS_ST}")
    for j in range(2):
        e(f"s_mov_b32 m0, {K2_STATS + 256 * j}")
        e(f"buffer_load_dword v5, {sr(S_WS, 4)}, s{sT1} offen lds")
        e(f"s_add_u32 s{sT1}, s{sT1}, 256")
    c("wait for conv group nt2, stage the four y2T tiles")
    pollmask(79, 0xff << MB_C, S_WS, first=14)
    e("v_lshrrev_b32 v5, 2, v1")
    e("v_lshlrev_b32 v5, 12, v5")
    e("v_and_b32 v6, 3, v1")
    e("v_lshl_add_u32 v5, v6, 4, v5")
    e(f"s_lshl_b32 s{sT1}, s{sNT}, 18")
    e(f"s_lshl_b32 s{sT0}, s{sMT}, 7")
    e(f"s_add_u32 s{sT1}, s{sT1}, s{sT0}")
    e(f"s_add_u32 s{sT1}, s{sT1}, {WS_Y2}")
    for w in range(4):
        mi, ni = w >> 1, w & 1
        for j in range(2):
            e(f"s_mov_b32 m0, {K2_Y2 + w * 2048 + j * 1024}")
            e(f"s_add_u32 s{sT0}, s{sT1}, {(ni * 32 + j * 16) * 4096 + mi * 64}")
            e(f"buffer_load_dwordx4 v5, {sr(S_WS, 4)}, s{sT0} offen lds")
    e("s_waitcnt vmcnt(0) lgkmcnt(0)")
    e("s_barrier")
    e("s_branch g2_exit")


def descriptor(name, nv):
    L.append(".p2align 6")
    L.append(f".amdhsa_kernel {name}")
    L.append(f"  .amdhsa_next_free_vgpr {nv}")
    L.append("  .amdhsa_next_free_sgpr 102")
    L.append(f"  .amdhsa_accum_offset {nv}")
    L.append("  .amdhsa_group_segment_fixed_size 0")
    L.append("  .amdhsa_kernarg_size 104")
    L.append("  .amdhsa_user_sgpr_count 2")
    L.append("  .amdhsa_user_sgpr_kernarg_segment_ptr 1")
    L.append("  .amdhsa_system_sgpr_workgroup_id_x 1")
    L.append(".end_amdhsa_kernel")


def main():
    hdr = open(f"cdna_kernels/{NAME}.s.ref").read().split("\n")
    for line in hdr:
        if line.startswith("; Override") or line.startswith("; grid=") or "@launch" in line:
            continue
        if not line.startswith(";"):
            break
        L.append(line)
    L.append(f"; @launch kernel=k1_kernel grid=(256,1,1) block=(512,1,1) lds=163840")
    L.append('.amdgcn_target "amdgcn-amd-amdhsa--gfx950"')
    L.append(".text")
    kernel1()
    L.append('.section .rodata,"a"')
    descriptor("k1_kernel", 256)
    out = sys.argv[1] if len(sys.argv) > 1 else f"cdna_kernels/{NAME}.s"
    open(out, "w").write("\n".join(L) + "\n")


if __name__ == "__main__":
    main()
```

```python
import sys

NAME = "parallel_sum__ssm_conv_h3__glu_gated_bilinear__prompt"

WS_H = 0
HP = 2816
WS_H_BYTES = 2048 * HP
WS_Y2 = 0x600000
WS_ST = 0x800000
WS_XN = 0xA00000
WS_KV = 0xC00000
WS_MB = 0x900000
ZOFF = 16
ZN = 16

import os
K1MAP = int(os.environ.get('K1MAP', '1'))
WBL2 = int(os.environ.get('WBL2', '0'))
STC = os.environ.get('STC', '' if WBL2 else ' sc1')
PREF = int(os.environ.get('PREF', '1'))
PREF2 = int(os.environ.get('PREF2', '1'))
PREF3 = int(os.environ.get('PREF3', '2'))
PSLEEP = int(os.environ.get('PSLEEP', '1'))
CSLEEP = int(os.environ.get('CSLEEP', '0'))
ISLEEP = int(os.environ.get('ISLEEP', '0'))
KV16 = int(os.environ.get('KV16', '0'))
MIDN = int(os.environ.get('MIDN', '5'))
ASW = int(os.environ.get('ASW', '1'))
NODMA = int(os.environ.get('NODMA', '0'))
K2ROT_A = int(os.environ.get('K2ROT_A', '4'))
K2ROT_B = int(os.environ.get('K2ROT_B', '3'))
PROFB = int(os.environ.get('PROFB', '0'))
PLH = int(os.environ.get('PLH', '-1'))
PLO = int(os.environ.get('PLO', '-1'))
PLY = int(os.environ.get('PLY', '0'))
PLK = int(os.environ.get('PLK', '0'))
OSC = os.environ.get('OSC', '')
L = []


def e(s=""):
    L.append("    " + s if s and not s.endswith(":") else s)


def c(s):
    L.append("    ; " + s)


PROF = len(sys.argv) > 2 and sys.argv[2] == "prof"
WS_PROF = 0xE00000
_stamp = [0]


SPAIR = [6, 8, 10, 12, 14, 88, 90, 92, 94, 96, 100]


def stamp(k=None):
    if not PROF or k is None or k is True:
        return
    if k == 0:
        e("s_memrealtime s[98:99]")
        e("s_waitcnt lgkmcnt(0)")
        e("v_writelane_b32 v255, s98, 63")
        for p in SPAIR:
            e(f"s_mov_b32 s{p}, 0")
    e(f"s_memtime s[{SPAIR[k]}:{SPAIR[k] + 1}]")


def stamp_flush(srd, base):
    if not PROF:
        return
    stamp(10)
    e("s_memrealtime s[98:99]")
    e("s_waitcnt lgkmcnt(0)")
    e("v_writelane_b32 v255, s98, 62")
    for k, p in enumerate(SPAIR):
        e(f"v_writelane_b32 v255, s{p}, {k}")
    e("v_lshrrev_b32 v253, 6, v0")
    e("v_lshl_add_u32 v253, s2, 3, v253")
    e("v_lshlrev_b32 v253, 8, v253")
    e("v_and_b32 v254, 63, v0")
    e("v_lshl_add_u32 v253, v254, 2, v253")
    e(f"v_add_u32 v253, {base}, v253")
    e(f"buffer_store_dword v255, v253, {sr(srd, 4)}, 0 offen")


OOL = []


class ool:
    def __init__(self, label):
        self.label = label

    def __enter__(self):
        global L
        self.saved = L
        L = []
        L.append(f"{self.label}:")

    def __exit__(self, *a):
        global L
        L.append(f"    s_branch {self.label}_ret")
        OOL.extend(L)
        L = self.saved
        L.append(f"{self.label}_ret:")


def flush_ool():
    L.extend(OOL)
    OOL.clear()


def vr(a, n=1):
    return f"v{a}" if n == 1 else f"v[{a}:{a + n - 1}]"


def sr(a, n=1):
    return f"s{a}" if n == 1 else f"s[{a}:{a + n - 1}]"


def make_srd(d, ptr, nbytes):
    e(f"s_mov_b32 s{d}, s{ptr}")
    e(f"s_and_b32 s{d + 1}, s{ptr + 1}, 0xffff")
    e(f"s_mov_b32 s{d + 2}, {nbytes}")
    e(f"s_mov_b32 s{d + 3}, 0x00020000")


P_Q, P_K, P_V, P_SH, P_SK, P_SD, P_BX, P_WG = 16, 18, 20, 22, 24, 26, 28, 30
P_WU, P_WD, P_OUT, P_DBG, P_WS = 32, 34, 36, 38, 40


def load_ptrs():
    e("s_load_dwordx16 s[16:31], s[0:1], 0")
    e("s_load_dwordx8 s[32:39], s[0:1], 64")
    e("s_load_dwordx2 s[40:41], s[0:1], 96")


S_DB2 = 84
_lbl = [0]


sZ = 82


def zload():
    e(f"s_load_dword s{sZ}, {sr(P_DBG, 2)}, {ZOFF}")


MB_H, MB_C, MB_KV, MB_CS, MB_ST = 0, 12, 20, 32, 48


def zcheck():
    _lbl[0] += 1
    n = _lbl[0]
    e(f"s_cmp_ge_u32 s{sZ}, 1")
    e(f"s_cbranch_scc1 sig_go{n}")
    make_srd(S_DB2, P_DBG, 256)
    e(f"s_mov_b32 s79, {ZOFF}")
    poll(79, 1, slp=8)
    e(f"sig_go{n}:")


def signal(sW, S_WS, mode, sIdx, sWord):
    _lbl[0] += 1
    n = _lbl[0]
    e(f"s_cmp_lg_u32 s{sW}, 0")
    e(f"s_cbranch_scc1 sig_skip{n}")
    zcheck()
    e("v_and_b32 v14, 63, v0")
    if mode == "h":
        e("v_and_b32 v12, 1, v14")
        e(f"s_lshl_b32 s79, s{sIdx}, 1")
        e("v_add_u32 v12, s79, v12")
        e("v_lshrrev_b32 v13, 1, v14")
    else:
        e("v_mov_b32 v12, v14")
        e(f"v_mov_b32 v13, s{sIdx}")
    e("v_and_b32 v15, 3, v12")
    e("v_lshl_add_u32 v15, v13, 2, v15")
    e("v_lshrrev_b32 v12, 2, v12")
    e("v_lshl_add_u32 v12, v15, 3, v12")
    e("v_lshlrev_b32 v12, 8, v12")
    e(f"s_lshl_b32 s79, s{sWord}, 2")
    e(f"s_add_u32 s79, s79, {WS_MB + 4 * (MB_H if mode == 'h' else MB_C)}")
    e("v_mov_b32 v13, 1")
    e(f"v_cmp_gt_u32 vcc, {16 if mode == 'h' else 32}, v14")
    e("s_and_saveexec_b64 s[70:71], vcc")
    e(f"buffer_store_dword v13, v12, {sr(S_WS, 4)}, s79 offen sc1")
    e("s_mov_b64 exec, s[70:71]")
    e(f"sig_skip{n}:")


def pollmask(sOff, mask, srd, first=None):
    _lbl[0] += 1
    n = _lbl[0]
    if first is not None:
        e(f"v_cmp_ne_u32 vcc, 0, v{first}")
        e(f"s_and_b32 s81, vcc_lo, {mask}")
        e(f"s_cmp_eq_u32 s81, {mask}")
        e(f"s_cbranch_scc1 polled{n}")
    e("v_and_b32 v15, 31, v0")
    e("v_lshlrev_b32 v15, 2, v15")
    e("s_mov_b32 s80, 0")
    e(f"poll{n}:")
    e(f"buffer_load_dword v14, v15, {sr(srd, 4)}, s{sOff} offen sc1")
    e("s_waitcnt vmcnt(0)")
    e("v_cmp_ne_u32 vcc, 0, v14")
    e("s_add_u32 s80, s80, 1")
    e(f"s_and_b32 s81, vcc_lo, {mask}")
    e(f"s_cmp_eq_u32 s81, {mask}")
    e(f"s_cbranch_scc1 polled{n}")
    if PSLEEP:
        e(f"s_sleep {PSLEEP}")
    e("s_cmp_lt_u32 s80, 0x40000")
    e(f"s_cbranch_scc1 poll{n}")
    e(f"polled{n}:")


def poll(sOff, target, srd=None, slp=None):
    srd = S_DB2 if srd is None else srd
    _lbl[0] += 1
    n = _lbl[0]
    e(f"v_mov_b32 v15, s{sOff}")
    e("s_mov_b32 s80, 0")
    e(f"poll{n}:")
    e(f"buffer_load_dword v14, v15, {sr(srd, 4)}, 0 offen sc1")
    e("s_waitcnt vmcnt(0)")
    e("v_readfirstlane_b32 s81, v14")
    e("s_nop 3")
    e("s_add_u32 s80, s80, 1")
    e(f"s_cmp_ge_u32 s81, {target}")
    e(f"s_cbranch_scc1 polled{n}")
    if slp or PSLEEP:
        e(f"s_sleep {slp or PSLEEP}")
    e("s_cmp_lt_u32 s80, 0x40000")
    e(f"s_cbranch_scc1 poll{n}")
    e(f"polled{n}:")


K1_NCONV = 64
K1_NGEMM = 176
K1_BUF = [131072, 0, 32768, 65536, 98304]


K1_STG = 49152
K1_EX = 147456


AUXOFF = 132
WS_CS = 0x880000
WS_SP = 0x8C0000


def zadd(sW, wait=None):
    _lbl[0] += 1
    n = _lbl[0]
    e(f"s_cmp_lg_u32 s{sW}, 4")
    e(f"s_cbranch_scc1 zadd{n}")
    if wait is not None:
        e(f"s_waitcnt vmcnt({wait})")
        stamp(1)
    make_srd(S_DB2, P_DBG, 256)
    e("v_mov_b32 v14, 1")
    e(f"v_mov_b32 v15, {ZOFF}")
    e("v_cmp_eq_u32 vcc, 0, v1")
    e("s_and_saveexec_b64 s[70:71], vcc")
    e(f"buffer_atomic_add v14, v15, {sr(S_DB2, 4)}, 0 offen sc1")
    e("s_mov_b64 exec, s[70:71]")
    e(f"zadd{n}:")


S_WD2, sKB2, sBI, sROT, sLB2, sNPRE = 20, 24, 25, 26, 27, 28
vDB2 = 252
K2_SB = [6, 7, 8, 0, 1, 2, 3, 4, 5]


def g2_setup(sW, npre):
    c("GEMM2 B state: x = id%8, j = id/8 : mt2 = 4x + (j&3), nt2 = j>>2")
    make_srd(S_WD2, P_WD, 1376 * 1024)
    e("s_lshr_b32 s3, s2, 3")
    e("s_lshr_b32 s4, s3, 2")
    e("s_and_b32 s3, s3, 3")
    e(f"s_mul_i32 s{sROT}, s4, {K2ROT_A}")
    e(f"s_mul_i32 s3, s3, {K2ROT_B}")
    e(f"s_add_u32 s{sROT}, s{sROT}, s3")
    for _ in range(4):
        e(f"s_cmp_ge_u32 s{sROT}, 11")
        e("s_cselect_b32 s3, 11, 0")
        e(f"s_sub_u32 s{sROT}, s{sROT}, s3")
    e(f"s_mov_b32 s{sBI}, s{sROT}")
    e(f"s_and_b32 s3, s{sW}, 3")
    e(f"s_lshl_b32 s{sLB2}, s3, 12")
    e(f"s_mul_i32 s{sKB2}, s3, {11 << 15}")
    e("s_lshl_b32 s4, s4, 7")
    e(f"s_add_u32 s{sKB2}, s{sKB2}, s4")
    e(f"s_mov_b32 s{sNPRE}, {npre}")
    c("B DMA lane offsets: row = l/8, chunk' = l%8; global chunk = chunk' ^ (((row>>1)&1)<<2)")
    e("v_lshrrev_b32 v4, 3, v1")
    e("v_and_b32 v5, 7, v1")
    e("v_lshrrev_b32 v6, 1, v4")
    e("v_and_b32 v6, 1, v6")
    e("v_lshlrev_b32 v6, 2, v6")
    e("v_xor_b32 v5, v5, v6")
    e("v_lshlrev_b32 v5, 4, v5")
    e(f"v_lshl_add_u32 v{vDB2}, v4, 10, v5")
    e(f"s_lshr_b32 s3, s{sW}, 2")
    e(f"s_lshl_b32 s29, s3, 11")
    e(f"s_add_u32 s29, s29, s{sLB2}")
    e(f"s_lshl_b32 s5, s3, 14")
    e(f"s_add_u32 s5, s5, s{sKB2}")


def out_pre_addr(sW, vd, srd):
    e("s_and_b32 s3, s2, 7")
    e("s_lshl_b32 s3, s3, 2")
    e("s_lshr_b32 s4, s2, 3")
    e("s_and_b32 s4, s4, 3")
    e("s_add_u32 s3, s3, s4")
    e("s_lshl_b32 s3, s3, 3")
    e(f"s_add_u32 s3, s3, s{sW}")
    e("s_lshl_b32 s3, s3, 13")
    e("s_lshr_b32 s4, s2, 5")
    e("s_lshl_b32 s4, s4, 7")
    e("s_add_u32 s3, s3, s4")
    e(f"v_lshrrev_b32 v{vd}, 3, v1")
    e(f"v_lshlrev_b32 v{vd}, 10, v{vd}")
    e("v_and_b32 v4, 7, v1")
    e(f"v_lshl_add_u32 v{vd}, v4, 4, v{vd}")
    e(f"v_add_u32 v{vd}, s3, v{vd}")


def g2_adv(sidx):
    return [f"s_add_u32 s{sidx}, s{sidx}, 1", f"s_cmp_ge_u32 s{sidx}, 11", f"s_cselect_b32 s{sidx}, 0, s{sidx}"]


def g2_early(i):
    g = []
    for j in range(2):
        x = []
        if j == 0:
            x += [f"s_lshl_b32 s3, s{sBI}, 15", "s_add_u32 s3, s3, s5"]
        x += [f"s_add_u32 m0, s29, {K2_SB[i] * 16384 + j * 1024}",
              f"s_add_u32 s4, s3, {8 * j * 1024}",
              f"buffer_load_dwordx4 v{vDB2}, {sr(S_WD2, 4)}, s4 offen lds"]
        if j == 1:
            x += g2_adv(sBI)
        g.append(x)
    return g


def k1_gemm():
    S_X, S_WG, S_WU, S_WS = 44, 48, 52, 56
    sMT, sNT, sW, sT0, sT1, sW0, sMW, sROW = 60, 61, 62, 63, 64, 65, 66, 67
    sSB, sDS, sIT, sDB, sAUX = 68, 69, 72, 73, 83
    AF = 16
    ACC = 144
    BF = 208
    vDMA, vB0, vB1, vBc0, vBc1, vHoff = 240, 241, 242, 243, 244, 245
    vXD, vA0, vCS, vST, vXD1 = 40, 41, 42, 43, 39
    vAk = 44
    CSR = 80
    e("k1_gemm:")
    e("s_sub_u32 s3, s2, %d" % K1_NCONV)
    c("k = 22*(t%8) + t/8 ; mh = k/88 ; rem = k%88 ; nt = rem/8 ; mt = mh*8 + rem%8")
    e("s_and_b32 s4, s3, 7")
    e("s_mul_i32 s4, s4, 22")
    e("s_lshr_b32 s5, s3, 3")
    e("s_add_u32 s4, s4, s5")
    e("s_cmp_ge_u32 s4, 88")
    e("s_cselect_b32 s5, 88, 0")
    e(f"s_cselect_b32 s{sMT}, 8, 0")
    e("s_sub_u32 s4, s4, s5")
    e(f"s_lshr_b32 s{sNT}, s4, 3")
    e("s_and_b32 s4, s4, 7")
    e(f"s_add_u32 s{sMT}, s{sMT}, s4")
    e("v_lshrrev_b32 v2, 6, v0")
    e("v_and_b32 v1, 63, v0")
    e(f"v_readfirstlane_b32 s{sW}, v2")
    c("x DMA lane offset: row = l>>3, src chunk = (l&7) ^ (row&7)")
    e("v_lshrrev_b32 v2, 3, v1")
    e("v_and_b32 v3, 7, v1")
    if ASW:
        e("v_lshrrev_b32 v4, 4, v1")
        e("v_xor_b32 v3, v3, v4")
    else:
        e("v_xor_b32 v3, v3, v2")
    e("v_lshlrev_b32 v3, 4, v3")
    e(f"v_lshl_add_u32 v{vXD}, v2, 10, v3")
    e(f"v_xor_b32 v{vXD1}, {64 if ASW else 0}, v{vXD}")
    c("W DMA lane offsets")
    e("v_lshrrev_b32 v12, 4, v1")
    e("v_and_b32 v13, 15, v1")
    e("v_lshlrev_b32 v14, 2, v12")
    e("v_xor_b32 v13, v13, v14")
    e("v_lshlrev_b32 v13, 4, v13")
    e("v_mul_u32_u24 v14, 2752, v12")
    e(f"v_add_u32 v{vDMA}, v13, v14")
    e(f"s_mul_i32 s{sW0}, s{sW}, {8 * 2752}")
    e(f"s_lshl_b32 s{sT0}, s{sNT}, 8")
    e(f"s_add_u32 s{sW0}, s{sW0}, s{sT0}")
    e(f"s_lshl_b32 s{sMW}, s{sW}, 11")
    e(f"s_lshl_b32 s{sROW}, s{sMT}, 17")
    e(f"s_lshl_b32 s{sT0}, s{sW}, 14")
    e(f"s_add_u32 s{sROW}, s{sROW}, s{sT0}")
    e(f"s_mov_b32 s{sDS}, 0")
    e(f"s_mov_b32 s{sDB}, s{sMW}")
    e("s_waitcnt lgkmcnt(0)")
    stamp(0)
    make_srd(S_X, P_Q, 2048 * 1024)
    make_srd(S_WG, P_WG, 512 * 2752)
    make_srd(S_WU, P_WU, 512 * 2752)
    make_srd(S_WS, P_WS, 0x1000000)

    def dma_groups():
        g = []
        for j in range(2):
            g.append([f"s_add_u32 m0, s{sDB}, {32768 + j * 1024}",
                      f"s_add_u32 s{sT0}, s{sROW}, {j * 8192}",
                      f"buffer_load_dwordx4 v{vXD1 if j else vXD}, {sr(S_X, 4)}, s{sT0} offen lds"])
        for part in range(2):
            for j in range(2):
                g.append([f"s_add_u32 m0, s{sDB}, {part * 16384 + j * 1024}",
                          f"s_add_u32 s{sT0}, s{sW0}, {4 * j * 2752}",
                          f"buffer_load_dwordx4 v{vDMA}, {sr(S_WU if part else S_WG, 4)}, s{sT0} offen lds"])
        g[-1] += [f"s_add_u32 s{sROW}, s{sROW}, {128 if MIDN == 5 else 0}",
                  f"s_add_u32 s{sW0}, s{sW0}, {64 * 2752 if MIDN == 5 else 0}",
                  f"s_add_u32 s{sDS}, s{sDS}, {K1_STG}",
                  f"s_cmp_ge_u32 s{sDS}, {3 * K1_STG}",
                  f"s_cselect_b32 s{sDS}, 0, s{sDS}",
                  f"s_add_u32 s{sDB}, s{sDS}, s{sMW}"]
        return g

    def dma_slab():
        for g in dma_groups():
            for x in g:
                e(x)

    dma_slab()
    dma_slab()
    dma_slab()
    S_OWN, S_OTH = 20, 24
    c("partial sums source + L2 prefetch: W rows (mt%8)*64.. ; own part = mt/8 (summed), other part prefetch only")
    e(f"s_cmp_ge_u32 s{sMT}, 8")
    for i in range(4):
        e(f"s_cselect_b32 s{S_OWN + i}, s{S_WU + i}, s{S_WG + i}")
        e(f"s_cselect_b32 s{S_OTH + i}, s{S_WG + i}, s{S_WU + i}")
    e(f"s_and_b32 s{sT0}, s{sMT}, 7")
    e(f"s_mul_i32 s{sT0}, s{sT0}, {64 * 2752}")
    e(f"s_lshl_b32 s{sT1}, s{sNT}, 8")
    e(f"s_add_u32 s{sT0}, s{sT0}, s{sT1}")
    e(f"s_lshl_b32 s{sT1}, s{sW}, 5")
    e(f"s_add_u32 s18, s{sT1}, s{sT0}")
    e(f"s_add_u32 s19, s18, {32 * 2752}")
    e("v_lshrrev_b32 v12, 1, v1")
    e("v_mul_u32_u24 v12, 2752, v12")
    e("v_and_b32 v13, 1, v1")
    e("v_lshl_add_u32 v76, v13, 4, v12")
    e(f"s_mul_i32 s{sT1}, s{sW}, {8 * 2752}")
    e(f"s_add_u32 s28, s{sT1}, s{sT0}")
    e("v_lshrrev_b32 v12, 4, v1")
    e(f"v_mul_u32_u24 v12, {2 * 2752}, v12")
    e("v_and_b32 v13, 15, v1")
    e("v_lshl_add_u32 v77, v13, 4, v12")
    c("x rows 16w + l/4, bytes (nt&7)*128 + (l%4)*32 + {0,16}")
    e(f"s_and_b32 s{sT1}, s{sNT}, 7")
    e(f"s_lshl_b32 s{sT1}, s{sT1}, 7")
    e(f"s_add_u32 s{sT1}, s{sT1}, s{sROW}")
    e(f"s_sub_u32 s29, s{sT1}, 384")
    e("v_lshrrev_b32 v12, 2, v1")
    e("v_and_b32 v13, 3, v1")
    e("v_lshlrev_b32 v13, 5, v13")
    e("v_lshl_add_u32 v78, v12, 10, v13")
    PFL = [f"buffer_load_dwordx4 v[48:51], v76, {sr(S_OWN, 4)}, s18 offen",
           f"buffer_load_dwordx4 v[52:55], v76, {sr(S_OWN, 4)}, s19 offen",
           f"buffer_load_dwordx4 v[64:67], v78, {sr(S_X, 4)}, s29 offen",
           f"buffer_load_dwordx4 v[68:71], v78, {sr(S_X, 4)}, s29 offen offset:16",
           f"buffer_load_dwordx4 v[56:59], v77, {sr(S_OTH, 4)}, s28 offen",
           f"buffer_load_dwordx4 v[60:63], v77, {sr(S_OTH, 4)}, s28 offen offset:2752"]
    c("partial store addresses")
    vPC, vPS = 72, 73
    e(f"s_lshl_b32 s{sT0}, s{sNT}, 1")
    e(f"s_lshr_b32 s{sT1}, s{sMT}, 3")
    e(f"s_add_u32 s{sT0}, s{sT0}, s{sT1}")
    e(f"s_lshl_b32 s{sT0}, s{sT0}, 3")
    e(f"s_and_b32 s{sT1}, s{sMT}, 7")
    e(f"s_add_u32 s{sT0}, s{sT0}, s{sT1}")
    e(f"s_lshl_b32 s{sT0}, s{sT0}, 10")
    e(f"s_lshl_b32 s{sT1}, s{sW}, 7")
    e(f"s_add_u32 s{sT0}, s{sT0}, s{sT1}")
    e(f"s_add_u32 s{sT0}, s{sT0}, {WS_CS}")
    e("v_and_b32 v12, 1, v1")
    e(f"v_lshl_add_u32 v{vPC}, v12, 5, s{sT0}")
    e("v_lshrrev_b32 v12, 1, v1")
    e("v_and_b32 v13, 1, v12")
    e(f"v_lshl_add_u32 v{vPC}, v13, 4, v{vPC}")
    e("v_lshrrev_b32 v12, 1, v12")
    e(f"v_lshl_add_u32 v{vPC}, v12, 6, v{vPC}")
    e(f"s_lshl_b32 s{sT0}, s{sMT}, 4")
    e(f"s_add_u32 s{sT0}, s{sT0}, s{sNT}")
    e(f"s_lshl_b32 s{sT0}, s{sT0}, 10")
    e(f"s_lshl_b32 s{sT1}, s{sW}, 7")
    e(f"s_add_u32 s{sT0}, s{sT0}, s{sT1}")
    e(f"s_add_u32 s{sT0}, s{sT0}, {WS_SP}")
    e("v_lshrrev_b32 v12, 2, v1")
    e(f"v_lshl_add_u32 v{vPS}, v12, 3, s{sT0}")
    e("s_mov_b32 s74, 0x3f80")
    e("s_mov_b32 s75, 0x3f800000")
    e("s_mov_b32 s76, 0x3f803f80")
    e(f"s_cmp_eq_u32 s{sW}, 4")
    e("s_cselect_b32 s77, 1, 0")
    e(f"s_cmp_eq_u32 s{sW}, 0")
    e("s_cselect_b32 s78, 3, 99")
    e("s_cselect_b32 s5, 4, 99")
    e("s_lshl_b32 s83, s2, 8")
    e(f"s_add_u32 s83, s83, {WS_MB + 128}")
    for r in range(12):
        e(f"v_mov_b32 v{24 + r}, 0")
    c("A frag read address: 32768 + r*128 + ((2kk+g) ^ (r&7))*16 ; r = (w%4)*32 + l%32 ; kk via xor kk<<5")
    e(f"s_and_b32 s{sT0}, s{sW}, 3")
    e(f"s_lshl_b32 s{sT0}, s{sT0}, 5")
    e("v_and_b32 v2, 31, v1")
    e(f"v_add_u32 v6, s{sT0}, v2")
    if ASW:
        e("v_lshrrev_b32 v7, 1, v2")
        e("v_and_b32 v7, 7, v7")
    else:
        e("v_and_b32 v7, 7, v2")
    e("v_lshrrev_b32 v8, 5, v1")
    e("v_xor_b32 v7, v7, v8")
    e("v_lshlrev_b32 v7, 4, v7")
    e("v_lshl_add_u32 v7, v6, 7, v7")
    e(f"v_add_u32 v{vA0}, 32768, v7")
    c("partial row stats address: WS_SP + mt*16384 + r*8 (+ slot*1024)")
    e(f"s_lshl_b32 s{sT1}, s{sMT}, 14")
    e(f"s_add_u32 s{sT1}, s{sT1}, {WS_SP}")
    e(f"v_lshl_add_u32 v{vST}, v6, 3, s{sT1}")
    c("h store offset: (mt*128 + (w%4)*32 + l/8)*HP + nt*256 + nh*128 + (l%8)*16")
    e(f"s_lshl_b32 s{sT1}, s{sMT}, 7")
    e(f"s_add_u32 s{sT1}, s{sT1}, s{sT0}")
    e("v_lshrrev_b32 v6, 3, v1")
    e(f"v_add_u32 v6, s{sT1}, v6")
    e(f"v_mov_b32 v7, {HP}")
    e("v_mul_lo_u32 v6, v6, v7")
    e(f"s_lshr_b32 s{sT0}, s{sW}, 2")
    e(f"s_lshl_b32 s{sT0}, s{sT0}, 7")
    e(f"s_lshl_b32 s{sT1}, s{sNT}, 8")
    e(f"s_add_u32 s{sT0}, s{sT0}, s{sT1}")
    e(f"v_add_u32 v6, s{sT0}, v6")
    e("v_and_b32 v9, 7, v1")
    e(f"v_lshl_add_u32 v{vHoff}, v9, 4, v6")
    if PLH >= 0:
        c("pre-touch address of the own h tile: row l/2, 64 B half l%2")
        e(f"v_readfirstlane_b32 s{sT1}, v{vHoff}")
        e("v_lshrrev_b32 v36, 1, v1")
        e(f"v_mul_u32_u24 v36, {HP}, v36")
        e("v_and_b32 v37, 1, v1")
        e("v_lshl_add_u32 v36, v37, 6, v36")
        e(f"v_add_u32 v36, s{sT1}, v36")
    if PLO >= 0:
        out_pre_addr(sW, 37, 84)
    c("partial cs address: WS_CS + (nt*2 + g)*8192 + nh*512 + ((l%32)/8)*128 + (l%8)*8 (+ j*1024)")
    e(f"s_lshr_b32 s{sT0}, s{sW}, 2")
    e(f"s_lshl_b32 s{sT0}, s{sT0}, 9")
    e(f"s_lshl_b32 s{sT1}, s{sNT}, 14")
    e(f"s_add_u32 s{sT0}, s{sT0}, s{sT1}")
    e(f"s_add_u32 s{sT0}, s{sT0}, {WS_CS}")
    e(f"v_lshl_add_u32 v{vCS}, v8, 13, s{sT0}")
    e(f"v_lshl_add_u32 v{vCS}, v9, 3, v{vCS}")
    e("v_lshrrev_b32 v7, 3, v2")
    e(f"v_lshl_add_u32 v{vCS}, v7, 7, v{vCS}")
    c("B tr-read lane addresses for tiles T0=2nh, T1=2nh+1")
    e("v_and_b32 v2, 15, v1")
    e("v_lshrrev_b32 v6, 2, v2")
    e("v_lshrrev_b32 v7, 5, v1")
    e("v_lshl_add_u32 v7, v7, 3, v6")
    e("v_lshlrev_b32 v7, 8, v7")
    e("v_lshrrev_b32 v8, 4, v1")
    e("v_and_b32 v8, 1, v8")
    e("v_lshlrev_b32 v8, 5, v8")
    e("v_add_u32 v7, v7, v8")
    e("v_and_b32 v8, 3, v2")
    e("v_lshlrev_b32 v8, 3, v8")
    e("v_add_u32 v7, v7, v8")
    e(f"s_lshr_b32 s{sT0}, s{sW}, 2")
    e(f"s_lshl_b32 s{sT0}, s{sT0}, 1")
    e(f"v_xor_b32 v8, s{sT0}, v6")
    e(f"v_lshl_add_u32 v{vB0}, v8, 6, v7")
    e("v_xor_b32 v8, 1, v8")
    e(f"v_lshl_add_u32 v{vB1}, v8, 6, v7")
    e(f"s_mov_b32 s{sSB}, 0")
    if os.environ.get('BLIN'):
        e(f"v_lshlrev_b32 v{vB0}, 3, v1")
        e(f"v_add_u32 v{vB1}, 512, v{vB0}")
    if os.environ.get('ALIN'):
        e(f"v_lshlrev_b32 v{vA0}, 4, v1")
        e(f"v_add_u32 v{vA0}, 32768, v{vA0}")

    vAD = 112
    for t in range(3):
        e(f"v_add_u32 v{vAD + 6 * t}, {K1_STG * t}, v{vB0}")
        e(f"v_add_u32 v{vAD + 6 * t + 1}, {K1_STG * t}, v{vB1}")
        e(f"v_add_u32 v{vAD + 6 * t + 2}, {K1_STG * t}, v{vA0}")
        for kk in range(1, 4):
            e(f"v_xor_b32 v{vAD + 6 * t + 2 + kk}, {32 * kk}, v{vAD + 6 * t + 2}")

    def rlist(s, kk):
        st = kk & 1
        ad = vAD + 6 * (s % 3)
        r = [f"ds_read_b128 {vr(AF + 4 * st, 4)}, v{ad + 2 + kk}"]
        for ti in range(4):
            part, T = ti >> 1, ti & 1
            for u in range(2):
                off = part * 16384 + (16 * kk + 4 * u) * 256
                r.append(f"ds_read_b64_tr_b16 {vr(BF + 16 * st + 4 * ti + 2 * u, 2)}, v{ad + T} offset:{off}")
        return r

    def side_first():
        s = []
        PA, PT = 24, 32
        for row in range(2):
            for d in range(4):
                x = 48 + 4 * row + d
                s += [f"v_dot2c_f32_bf16 v{PA + 2 * d}, s74, v{x}", f"v_dot2c_f32_bf16 v{PA + 2 * d + 1}, s75, v{x}"]
        for i in range(8):
            s += [f"v_dot2c_f32_bf16 v{PT + (i & 1)}, s76, v{64 + i}",
                  f"v_dot2c_f32_bf16 v{PT + 2 + (i & 1)}, v{64 + i}, v{64 + i}"]
        s += ["s_nop 3"]
        for sh in (2, 4, 8):
            for r in range(8):
                s.append(f"v_add_f32_dpp v{PA + r}, v{PA + r}, v{PA + r} row_ror:{sh} row_mask:0xf bank_mask:0xf")
        s += [f"v_add_f32 v{PT}, v{PT}, v{PT + 1}", f"v_add_f32 v{PT + 1}, v{PT + 2}, v{PT + 3}"]
        for sw in ("v_permlane16_swap_b32", "v_permlane32_swap_b32"):
            for r in range(8):
                s.append(f"v_mov_b32 v{4 + r}, v{PA + r}")
            for r in range(8):
                s.append(f"{sw} v{4 + r}, v{PA + r}")
            qp = "[1,0,3,2]" if "16" in sw else "[2,3,0,1]"
            s += [f"v_add_f32_dpp v{PT}, v{PT}, v{PT} quad_perm:{qp} row_mask:0xf bank_mask:0xf",
                  f"v_add_f32_dpp v{PT + 1}, v{PT + 1}, v{PT + 1} quad_perm:{qp} row_mask:0xf bank_mask:0xf"]
            for r in range(8):
                s.append(f"v_add_f32 v{PA + r}, v{4 + r}, v{PA + r}")
        s += [("v_and_b32 v4, 3, v1", "v_cmp_eq_u32 vcc, 0, v4", "s_and_saveexec_b64 s[70:71], vcc",
               f"buffer_store_dwordx2 {vr(PT, 2)}, v{vPS}, {sr(S_WS, 4)}, 0 offen sc1",
               "s_mov_b64 exec, s[70:71]", "v_and_b32 v4, 2, v1", "v_cmp_ne_u32 vcc, 0, v4",
               f"v_cndmask_b32 v{PA}, v{PA}, v{PA + 4}, vcc", f"v_cndmask_b32 v{PA + 1}, v{PA + 1}, v{PA + 5}, vcc",
               f"v_cndmask_b32 v{PA + 2}, v{PA + 2}, v{PA + 6}, vcc", f"v_cndmask_b32 v{PA + 3}, v{PA + 3}, v{PA + 7}, vcc",
               "v_cmp_gt_u32 vcc, 8, v1", "s_and_b64 exec, s[70:71], vcc",
               f"buffer_store_dwordx4 {vr(PA, 4)}, v{vPC}, {sr(S_WS, 4)}, 0 offen sc1",
               "s_mov_b64 exec, s[70:71]",
               "s_cmp_eq_u32 s77, 0", "s_cbranch_scc1 k1_nozl",
               f"s_mov_b32 s{S_DB2}, s{P_DBG}", f"s_and_b32 s{S_DB2 + 1}, s{P_DBG + 1}, 0xffff",
               f"s_mov_b32 s{S_DB2 + 2}, 256", f"s_mov_b32 s{S_DB2 + 3}, 0x00020000",
               f"v_mov_b32 v15, {ZOFF}",
               f"buffer_load_dword v74, v15, {sr(S_DB2, 4)}, 0 offen sc1",
               "k1_nozl:")]
        return s

    def stats_math(SX, SQ, T):
        return [f"v_mul_f32 v{T}, 0x3b000000, v{SX}",
                f"v_mul_f32 v{T + 2}, 0x3b000000, v{SQ}",
                f"v_fma_f32 v{T + 2}, -v{T}, v{T}, v{T + 2}",
                f"v_max_f32 v{T + 2}, 0, v{T + 2}",
                f"v_cvt_pk_bf16_f32 v{T + 1}, v{T}, v{T + 2}",
                f"v_lshlrev_b32 v{T + 4}, 16, v{T + 1}",
                f"v_and_b32 v{T + 2}, 0xffff0000, v{T + 1}",
                f"v_add_f32 v{T + 2}, 0x3727c5ac, v{T + 2}",
                f"v_cvt_pk_bf16_f32 v{T + 2}, v{T + 2}, v{T + 2}",
                f"v_and_b32 v{T + 2}, 0xffff0000, v{T + 2}",
                f"v_sqrt_f32 v{T + 2}, v{T + 2}",
                "s_nop 0",
                f"v_cvt_pk_bf16_f32 v{T + 2}, v{T + 2}, v{T + 2}",
                f"v_and_b32 v{T + 2}, 0xffff0000, v{T + 2}",
                f"v_rcp_f32 v250, v{T + 2}",
                "s_nop 0",
                f"v_mul_f32 v251, v{T + 4}, v250",
                "v_sub_f32 v251, 0, v251"]

    VM = ["s0"] * 6 + ["s1"] * 6 + ["s2"] * 6

    def emit(x, tag=None):
        e(x)
        if x.startswith("buffer_") and tag:
            VM.append(tag)

    def nwait(*tags):
        last = max(i for i, t in enumerate(VM) if t in tags)
        return len(VM) - 1 - last

    S_SIDE, S_SIG, S_MBR, S_CHK, S_PL = 1, 2, 5, 5, 6

    def body(s):
        last = s == 7
        dg = dma_groups() if 1 <= s <= 5 else []
        dtag = f"s{s + 2}"
        side = side_first() if s == S_SIDE else []
        nside = (len(side) + 7) // 8
        ex = []
        if s == 0:
            ex = [[x] for x in PFL]
        if s == S_PL:
            for j in range(8):
                ex.append([f"s_mov_b32 s{sT0}, {1024 * j}",
                           f"buffer_load_dwordx2 {vr(48 + 2 * j, 2)}, v{vCS}, {sr(S_WS, 4)}, s{sT0} offen"])
                ex.append([f"buffer_load_dwordx2 {vr(64 + 2 * j, 2)}, v{vST}, {sr(S_WS, 4)}, s{sT0} offen"])
        eb = []
        if s >= 6:
            for i in range(3 * (s - 6), 3 * (s - 6) + 3):
                eb += g2_early(i)
        for kk in range(4):
            st = kk & 1
            rl = rlist(s, kk + 1) if kk < 3 else (rlist(s + 1, 0) if not last else [])
            issued = 0
            for m in range(4):
                if not (kk == 3 and m > 0):
                    e(f"s_waitcnt lgkmcnt({9 - (3 + 2 * m) + issued})")
                cc = "0" if (s == 0 and kk == 0) else vr(ACC + 16 * m, 16)
                e(f"v_mfma_f32_32x32x16_bf16 {vr(ACC + 16 * m, 16)}, {vr(BF + 16 * st + 4 * m, 4)}, "
                  f"{vr(AF + 4 * st, 4)}, {cc}")
                if kk == 3 and m == 0 and not last:
                    tags = [f"s{s + 1}"] + (["pst"] if s == S_SIG else []) + (["mbr"] if s == S_CHK else [])
                    e(f"s_waitcnt vmcnt({nwait(*tags)}) lgkmcnt(0)")
                    if s == S_CHK:
                        c("wave 0: all 24 partial producers have signalled? (else poll)")
                        e(f"s_cmp_eq_u32 s{sW}, 0")
                        e("s_cbranch_scc1 k1_chk")
                        with ool("k1_chk"):
                            pollmask(83, 0xffffff, S_WS, first=75)
                    e("s_barrier")
                    if s == 4:
                        stamp(2)
                    if s == S_SIG:
                        c("wave 4: everybody's partial stores are complete -> signal the consumers")
                        e(f"s_cmp_eq_u32 s{sW}, 4")
                        e("s_cbranch_scc1 k1_psig")
                        with ool("k1_psig"):
                            psig()
                for _ in range(3):
                    if rl:
                        e(rl.pop(0))
                        issued += 1
                if dg and kk < 3 and m >= 2:
                    for x in dg.pop(0):
                        emit(x, dtag)
                if ex:
                    for _ in range(2 if s == S_PL else 1):
                        if ex:
                            for x in ex.pop(0):
                                emit(x, "pf" if s == 0 else "pl")
                if eb and not ex and (kk < 3 or s == 6):
                    for x in eb.pop(0):
                        emit(x, "eb")
                if s == 4 and kk == 1 and m == 0:
                    g2_setup(sW, 6)
                if s == PLH and kk == 0 and m == 1:
                    emit(f"buffer_load_dword v38, v36, {sr(S_WS, 4)}, 0 offen", "plh")
                if s == PLO and kk == 1 and m == 1:
                    make_srd(84, P_OUT, 2048 * 1024)
                    emit(f"buffer_load_dword v38, v37, {sr(84, 4)}, 0 offen", "plo")
                if s == S_MBR and kk == 0 and m == 0:
                    c("every wave issues it (uniform counting), only wave 0 uses it")
                    e("v_and_b32 v15, 31, v1")
                    e("v_lshlrev_b32 v15, 2, v15")
                    e(f"s_cmp_eq_u32 s{sW}, 0")
                    e("s_cselect_b64 exec, -1, 0")
                    emit(f"buffer_load_dword v75, v15, {sr(S_WS, 4)}, s83 offen sc1", "mbr")
                    e("s_mov_b64 exec, -1")
                if side and kk in (1, 2):
                    if kk == 1 and m == 0:
                        e(f"s_waitcnt vmcnt({nwait('pf') + 2})")
                    for _ in range(nside):
                        if side:
                            x = side.pop(0)
                            for y in (x if isinstance(x, tuple) else (x,)):
                                emit(y, "pst" if "store" in y else None)
                if last and kk == 3:
                    if m == 0:
                        e(f"s_waitcnt vmcnt({nwait('pl')})")
                        for j in range(1, 8):
                            e(f"v_add_f32 v48, v48, v{48 + 2 * j}")
                            e(f"v_add_f32 v49, v49, v{49 + 2 * j}")
                            e(f"v_add_f32 v64, v64, v{64 + 2 * j}")
                            e(f"v_add_f32 v65, v65, v{65 + 2 * j}")
                        e(f"s_lshl_b32 s{sT0}, s{sW}, 9")
                        e(f"s_add_u32 s{sT0}, s{sT0}, {K1_EX}")
                        e(f"v_lshl_add_u32 v4, v1, 3, s{sT0}")
                        e("ds_write_b64 v4, v[48:49]")
                        e("v_lshrrev_b32 v4, 5, v1")
                        e(f"v_lshl_add_u32 v4, v4, 4, s{sT0}")
                        e("s_waitcnt lgkmcnt(0)")
                    elif m == 1:
                        for ti in range(4):
                            part, T = ti >> 1, ti & 1
                            for q in range(4):
                                e(f"ds_read_b128 {vr(CSR + 16 * ti + 4 * q, 4)}, v4 offset:{256 * part + 128 * T + 32 * q}")
                    elif m == 2:
                        for x in stats_math(64, 65, 8):
                            e(x)
        assert not dg and not side and not ex and not eb

    def psig():
        e(f"v_readfirstlane_b32 s{sZ}, v74")
        e("s_nop 3")
        zcheck()
        c("lanes 0-15: (mt'=l, nt) ; lanes 16-26: (mt, nt'=l-16) if nt < 8")
        e("v_cmp_gt_u32 vcc, 16, v1")
        e(f"v_mov_b32 v12, s{sMT}")
        e(f"v_mov_b32 v13, s{sNT}")
        e("v_subrev_u32 v14, 16, v1")
        e("v_cndmask_b32 v12, v12, v1, vcc")
        e("v_cndmask_b32 v13, v14, v13, vcc")
        e("v_lshrrev_b32 v14, 3, v12")
        e("v_mul_u32_u24 v14, 88, v14")
        e("v_lshl_add_u32 v14, v13, 3, v14")
        e("v_and_b32 v12, 7, v12")
        e("v_add_u32 v14, v14, v12")
        e("v_mul_u32_u24 v12, 2979, v14")
        e("v_lshrrev_b32 v12, 16, v12")
        e("v_mul_u32_u24 v13, 22, v12")
        e("v_sub_u32 v13, v14, v13")
        e("v_lshl_add_u32 v12, v13, 3, v12")
        e("v_lshlrev_b32 v12, 8, v12")
        e(f"s_lshl_b32 s79, s{sMT}, 2")
        e(f"s_add_u32 s79, s79, {WS_MB + 64 * 256 + 4 * MB_CS}")
        e(f"s_lshl_b32 s80, s{sNT}, 2")
        e(f"s_add_u32 s80, s80, {WS_MB + 64 * 256 + 4 * MB_ST}")
        e("v_mov_b32 v13, s80")
        e("v_mov_b32 v14, s79")
        e("v_cndmask_b32 v13, v13, v14, vcc")
        e("v_add_u32 v12, v12, v13")
        e("v_mov_b32 v13, 1")
        e(f"s_cmp_lt_u32 s{sNT}, 8")
        e("s_cselect_b32 s79, 27, 16")
        e("v_cmp_gt_u32 vcc, s79, v1")
        e("s_and_saveexec_b64 s[70:71], vcc")
        e(f"buffer_store_dword v13, v12, {sr(S_WS, 4)}, 0 offen sc1")
        e("s_mov_b64 exec, s[70:71]")

    e("s_waitcnt vmcnt(12)")
    e("s_barrier")
    stamp(1)
    for x in rlist(0, 0):
        e(x)
    for s in range(8):
        body(s)
    stamp(3)
    e("v_and_b32 v2, 31, v1")
    e("v_lshrrev_b32 v3, 5, v1")
    if PREF2:
        c("prefetch a slice of w_down (1 KB per wave) towards MALL for k2")
        e("s_sub_u32 s3, s2, %d" % K1_NCONV)
        e("s_lshl_b32 s3, s3, 3")
        e(f"s_add_u32 s3, s3, s{sW}")
        e("s_lshl_b32 s3, s3, 10")
        make_srd(S_X, P_WD, 1376 * 1024)
        e("v_lshlrev_b32 v6, 4, v1")
        e(f"buffer_load_dwordx4 v[224:227], v6, {sr(S_X, 4)}, s3 offen")
    RS, NM = 246, 248
    c("epilogue: h = bf16(bf16(g)*bf16(u)); transpose via wave-private LDS (4 KB at 49152 + w*4096)")
    e("s_barrier")
    e(f"s_lshl_b32 s{sT0}, s{sW}, 12")
    e(f"s_add_u32 s{sT0}, s{sT0}, 49152")
    e("v_and_b32 v4, 7, v2")
    e("v_xor_b32 v4, v4, v3")
    e("v_lshlrev_b32 v4, 4, v4")
    e("v_lshl_add_u32 v4, v2, 7, v4")
    e(f"v_add_u32 v4, s{sT0}, v4")
    e("v_lshrrev_b32 v5, 3, v1")
    e("v_and_b32 v6, 7, v1")
    e("v_xor_b32 v6, v6, v5")
    e("v_lshlrev_b32 v6, 4, v6")
    e("v_lshl_add_u32 v6, v5, 7, v6")
    e(f"v_add_u32 v6, s{sT0}, v6")
    e(f"v_mov_b32 v{RS}, v250")
    e(f"v_mov_b32 v{RS + 1}, v250")
    e(f"v_mov_b32 v{NM}, v251")
    e(f"v_mov_b32 v{NM + 1}, v251")
    c("row stats store (nt == 0, waves 0-3, lanes 0-31)")
    e(f"s_lshr_b32 s{sT0}, s{sW}, 2")
    e(f"s_or_b32 s{sT0}, s{sT0}, s{sNT}")
    e(f"s_cmp_lg_u32 s{sT0}, 0")
    e("s_cbranch_scc1 k1_nostat")
    e(f"s_lshl_b32 s{sT0}, s{sMT}, 7")
    e(f"s_lshl_b32 s{sT1}, s{sW}, 5")
    e(f"s_add_u32 s{sT0}, s{sT0}, s{sT1}")
    e(f"s_lshl_b32 s{sT0}, s{sT0}, 3")
    e(f"s_add_u32 s{sT0}, s{sT0}, {WS_ST}")
    e("v_lshlrev_b32 v15, 3, v2")
    e("v_cmp_eq_u32 vcc, 0, v3")
    e("s_and_saveexec_b64 s[70:71], vcc")
    e(f"buffer_store_dwordx2 v[250:251], v15, {sr(S_WS, 4)}, s{sT0} offen{STC}")
    e("s_mov_b64 exec, s[70:71]")
    e("k1_nostat:")
    e("s_waitcnt lgkmcnt(0)")
    for r in range(0, 64, 2):
        e(f"v_pk_mul_f32 {vr(CSR + r, 2)}, {vr(CSR + r, 2)}, {vr(NM, 2)}")
    for r in range(0, 64, 2):
        e(f"v_pk_fma_f32 {vr(ACC + r, 2)}, {vr(ACC + r, 2)}, {vr(RS, 2)}, {vr(CSR + r, 2)}")
    for T in range(2):
        G, U = ACC + 16 * T, ACC + 32 + 16 * T
        for qq in range(2):
            o = 16 + 4 * (2 * T + qq)
            for h2 in range(4):
                r = 8 * qq + 2 * h2
                e(f"v_cvt_pk_bf16_f32 v8, v{G + r}, v{G + r + 1}")
                e(f"v_cvt_pk_bf16_f32 v9, v{U + r}, v{U + r + 1}")
                e("v_lshlrev_b32 v10, 16, v8")
                e("v_and_b32 v11, 0xffff0000, v8")
                e("v_lshlrev_b32 v12, 16, v9")
                e("v_and_b32 v13, 0xffff0000, v9")
                e("v_mul_f32 v10, v10, v12")
                e("v_mul_f32 v11, v11, v13")
                e(f"v_cvt_pk_bf16_f32 v{o + h2}, v10, v11")
            e("s_nop 1")
            e(f"v_permlane32_swap_b32 v{o}, v{o + 2}")
            e(f"v_permlane32_swap_b32 v{o + 1}, v{o + 3}")
            e(f"v_xor_b32 v7, {(4 * T + 2 * qq) << 4}, v4")
            e(f"ds_write_b128 v7, {vr(o, 4)}")
    e("s_waitcnt lgkmcnt(0)")
    for j in range(4):
        e(f"ds_read_b128 {vr(32 + 4 * j, 4)}, v6 offset:{1024 * j}")
    for j in range(4):
        e(f"s_waitcnt lgkmcnt({3 - j})")
        e(f"s_mov_b32 s{sT0}, {8 * j * HP}")
        e(f"buffer_store_dwordx4 {vr(32 + 4 * j, 4)}, v{vHoff}, {sr(S_WS, 4)}, s{sT0} offen{STC}")
    stamp(4)
    e("s_waitcnt vmcnt(0)")
    e("s_barrier")
    stamp(5)
    e(f"s_mov_b32 s{sZ}, 1")
    signal(sW, S_WS, "h", sMT, sNT)
    e("s_branch g2_entry")
    flush_ool()


def k1_aux():
    sW = 62
    e("k1_aux:")
    e("v_lshrrev_b32 v2, 6, v0")
    e("v_and_b32 v1, 63, v0")
    e(f"v_readfirstlane_b32 s{sW}, v2")
    e("s_waitcnt lgkmcnt(0)")
    stamp(0)
    e(f"s_mov_b32 s{sZ}, 0")
    g2_setup(sW, 0)
    if PLO >= 0:
        out_pre_addr(sW, 206, 84)
        make_srd(84, P_OUT, 2048 * 1024)
        e(f"buffer_load_dword v207, v206, {sr(84, 4)}, 0 offen")
    c("WG 240: zero all mailboxes (64 KB), then set the flag in d_debug")
    make_srd(48, P_WS, 0x1000000)
    make_srd(S_DB2, P_DBG, 256)
    e("s_cmp_lg_u32 s2, 240")
    e("s_cbranch_scc1 aux_nz")
    e(f"s_lshl_b32 s3, s{sW}, 13")
    e(f"s_add_u32 s3, s3, {WS_MB}")
    e("v_lshlrev_b32 v3, 4, v1")
    for r in range(4):
        e(f"v_mov_b32 v{4 + r}, 0")
    for j in range(8):
        e("buffer_store_dwordx4 v[4:7], v3, s[48:51], s3 offen sc1")
        e("s_add_u32 s3, s3, 1024")
    e("s_waitcnt vmcnt(0)")
    e("s_barrier")
    stamp(1)
    e(f"s_cmp_lg_u32 s{sW}, 0")
    e("s_cbranch_scc1 aux_nz")
    e("v_mov_b32 v14, 1")
    e(f"v_mov_b32 v15, {ZOFF}")
    e("v_cmp_eq_u32 vcc, 0, v1")
    e("s_and_saveexec_b64 s[70:71], vcc")
    e(f"buffer_store_dword v14, v15, {sr(S_DB2, 4)}, 0 offen sc1")
    e("s_mov_b64 exec, s[70:71]")
    e("aux_nz:")
    if PREF3 == 0:
        e("s_branch g2_entry")
        return
    if PREF3 == 2:
        e(f"s_cmp_lt_u32 s{sW}, 5")
        e("s_cbranch_scc1 g2_entry")
    c("pull half of w_down into this XCD's L2 (86 KB per wave)")
    make_srd(44, P_WD, 1376 * 1024)
    e("s_sub_u32 s3, s2, 240")
    e("s_lshr_b32 s3, s3, 3")
    e("s_lshl_b32 s3, s3, 3")
    e(f"s_add_u32 s3, s3, s{sW}")
    e("s_mul_i32 s3, s3, 88064")
    e("v_lshlrev_b32 v3, 4, v1")
    for j in range(86):
        e(f"buffer_load_dwordx4 {vr(16 + 4 * (j % 8), 4)}, v3, s[44:47], s3 offen")
        e("s_add_u32 s3, s3, 1024")
        if j >= 32:
            e("s_waitcnt vmcnt(32)")
        if j == 41:
            stamp(2)
    e("s_waitcnt vmcnt(0)")
    stamp(5)
    e("s_branch g2_entry")


CV_R = 0
CV_RSTR = 4608
CV_KT = 0
CV_KSTR = 8320
CV_KCPY = 4160
CV_T = 98304
CV_TP = 528


def k1_conv():
    S_K, S_V, S_SK, S_WS, S_SH, S_DBG = 44, 48, 52, 56, 72, 76
    sW, sT0, sT1, sD, sG, sJ, sCG, sRB = 62, 63, 64, 65, 66, 67, 68, 69
    e("k1_conv:")
    e("v_lshrrev_b32 v2, 6, v0")
    e("v_and_b32 v1, 63, v0")
    e(f"v_readfirstlane_b32 s{sW}, v2")
    e("s_waitcnt lgkmcnt(0)")
    stamp(0)
    for _ in range(CSLEEP):
        e("s_sleep 16")
    make_srd(S_K, P_K, 2048 * 1024)
    make_srd(S_V, P_V, 2048 * 1024)
    make_srd(S_SK, P_SK, 512 * 4096)
    make_srd(S_WS, P_WS, 0x1000000)
    make_srd(S_SH, P_SH, 4096)
    make_srd(S_DBG, P_DBG, 256)
    c("G = id%8 (64-channel group, one XCD), J = id/8 (256-row block / channel sub-group), cg = 8G + J")
    e(f"s_and_b32 s{sG}, s2, 7")
    e(f"s_lshr_b32 s{sJ}, s2, 3")
    e(f"s_lshl_b32 s{sCG}, s{sG}, 3")
    e(f"s_add_u32 s{sCG}, s{sCG}, s{sJ}")
    e(f"s_mul_i32 s{sRB}, s{sW}, {CV_RSTR}")
    e(f"s_cmp_ge_u32 s{sW}, 6")
    e(f"s_mov_b32 s{sT0}, 66560")
    e(f"s_cselect_b32 s{sT0}, {147456 - 6 * CV_RSTR}, s{sT0}")
    e(f"s_add_u32 s{sRB}, s{sRB}, s{sT0}")
    c("---- kv phase: rows J*256 + 4*rg.., channels G*64 + cs*8..")
    e("v_lshrrev_b32 v2, 3, v0")
    e("v_and_b32 v3, 7, v0")
    e(f"s_lshl_b32 s{sT0}, s{sJ}, 18")
    e(f"s_lshl_b32 s{sT1}, s{sG}, 7")
    e(f"s_add_u32 s{sT0}, s{sT0}, s{sT1}")
    e("v_lshlrev_b32 v4, 12, v2")
    e("v_lshl_add_u32 v4, v3, 4, v4")
    e(f"v_add_u32 v4, s{sT0}, v4")
    e("v_subrev_u32 v5, 3072, v4")
    KD, VD, WD = 16, 44, 60
    for r in range(3):
        e(f"buffer_load_dwordx4 {vr(KD + 4 * r, 4)}, v5, {sr(S_K, 4)}, 0 offen offset:{1024 * r}")
    for r in range(4):
        e(f"buffer_load_dwordx4 {vr(KD + 12 + 4 * r, 4)}, v4, {sr(S_K, 4)}, 0 offen offset:{1024 * r}")
    for r in range(4):
        e(f"buffer_load_dwordx4 {vr(VD + 4 * r, 4)}, v4, {sr(S_V, 4)}, 0 offen offset:{1024 * r}")
    e(f"s_lshl_b32 s{sT1}, s{sG}, 9")
    e("v_lshlrev_b32 v6, 6, v3")
    e(f"v_add_u32 v6, s{sT1}, v6")
    for j in range(4):
        e(f"buffer_load_dwordx4 {vr(WD + 4 * j, 4)}, v6, {sr(S_SH, 4)}, 0 offen offset:{16 * j}")
    c("ssm_D for this wave's channel")
    e(f"s_lshl_b32 s{sT0}, s{sCG}, 4")
    e(f"s_lshl_b32 s{sT1}, s{sW}, 1")
    e(f"s_add_u32 s{sT0}, s{sT0}, s{sT1}")
    e(f"s_and_b32 s{sT1}, s{sT0}, 0xfffffffc")
    e(f"s_add_u32 s{P_SD}, s{P_SD}, s{sT1}")
    e(f"s_addc_u32 s{P_SD + 1}, s{P_SD + 1}, 0")
    e(f"s_load_dword s{sD}, {sr(P_SD, 2)}, 0")
    c("ssm_k row of this wave's channel")
    SKD = 232
    e(f"s_lshl_b32 s{sT0}, s{sCG}, 3")
    e(f"s_add_u32 s{sT0}, s{sT0}, s{sW}")
    e(f"s_lshl_b32 s{sT0}, s{sT0}, 12")
    e("v_lshlrev_b32 v8, 4, v1")
    e(f"v_add_u32 v8, s{sT0}, v8")
    for j in range(4):
        e(f"buffer_load_dwordx4 {vr(SKD + 4 * j, 4)}, v8, {sr(S_SK, 4)}, 0 offen offset:{1024 * j}")
    for j in range(4):
        e(f"buffer_load_dword v{SKD + 16 + j}, v8, {sr(S_SK, 4)}, 0 offen offset:{1024 * j + 16}")
    c("kv LDS transpose position: T + (cs*8 + cc)*528 + 504 - 8 rg")
    e(f"v_mul_u32_u24 v7, {8 * CV_TP}, v3")
    e("v_lshlrev_b32 v9, 3, v2")
    e("v_sub_u32 v7, v7, v9")
    e(f"v_add_u32 v7, {CV_T + 504}, v7")
    e("s_waitcnt vmcnt(8)")
    stamp(1)
    e(f"s_cmp_lg_u32 s{sW}, 0")
    e("s_cbranch_scc1 k1c_nozl")
    zload()
    e("k1c_nozl:")
    KF, VF, WF = 80, 136, 200
    for cc in range(8):
        for jp in range(2):
            w = WD + 2 * cc + jp
            e(f"v_lshlrev_b32 v{WF + (2 * jp) * 8 + cc}, 16, v{w}")
            e(f"v_and_b32 v{WF + (2 * jp + 1) * 8 + cc}, 0xffff0000, v{w}")
    for i in range(28):
        e(f"v_lshlrev_b32 v{KF + 2 * i}, 16, v{KD + i}")
        e(f"v_and_b32 v{KF + 2 * i + 1}, 0xffff0000, v{KD + i}")
    for i in range(16):
        e(f"v_lshlrev_b32 v{VF + 2 * i}, 16, v{VD + i}")
        e(f"v_and_b32 v{VF + 2 * i + 1}, 0xffff0000, v{VD + i}")
    KV = 168
    for r in range(4):
        for cp in range(4):
            d = KV + 8 * r + 2 * cp
            e(f"v_pk_mul_f32 {vr(d, 2)}, {vr(KF + 8 * r + 2 * cp, 2)}, {vr(WF + 3 * 8 + 2 * cp, 2)}")
            for j in range(1, 4):
                e(f"v_pk_fma_f32 {vr(d, 2)}, {vr(KF + 8 * (r + j) + 2 * cp, 2)}, "
                  f"{vr(WF + (3 - j) * 8 + 2 * cp, 2)}, {vr(d, 2)}")
            e(f"v_pk_mul_f32 {vr(d, 2)}, {vr(d, 2)}, {vr(VF + 8 * r + 2 * cp, 2)}")
    for cc in range(8):
        o = 16 + 2 * cc
        e(f"v_cvt_pk_bf16_f32 v{o}, v{KV + 24 + cc}, v{KV + 16 + cc}")
        e(f"v_cvt_pk_bf16_f32 v{o + 1}, v{KV + 8 + cc}, v{KV + cc}")
        e(f"ds_write_b64 v7, {vr(o, 2)} offset:{cc * CV_TP}")
    e("s_waitcnt lgkmcnt(0)")
    e("s_barrier")
    c("wave w: channels 8w..8w+7 of the group: full-line stores (2 channels x 512 B per instruction)")
    e("v_lshrrev_b32 v6, 5, v1")
    e("v_and_b32 v7, 31, v1")
    e("v_lshlrev_b32 v7, 4, v7")
    e(f"v_mul_u32_u24 v9, {CV_TP}, v6")
    e("v_add_u32 v9, v9, v7")
    e(f"s_mul_i32 s{sT1}, s{sW}, {8 * CV_TP}")
    e(f"s_add_u32 s{sT1}, s{sT1}, {CV_T}")
    e(f"v_add_u32 v9, s{sT1}, v9")
    for j in range(4):
        e(f"ds_read_b128 {vr(16 + 4 * j, 4)}, v9 offset:{2 * j * CV_TP}")
    e("v_lshl_add_u32 v7, v6, 12, v7")
    e(f"s_lshl_b32 s{sT0}, s{sG}, 18")
    e(f"s_lshl_b32 s{sT1}, s{sW}, 15")
    e(f"s_add_u32 s{sT0}, s{sT0}, s{sT1}")
    e(f"s_add_u32 s{sT0}, s{sT0}, {WS_KV + 3584}")
    e(f"s_lshl_b32 s{sT1}, s{sJ}, 9")
    e(f"s_sub_u32 s{sT0}, s{sT0}, s{sT1}")
    for j in range(4):
        e(f"s_waitcnt lgkmcnt({3 - j})")
        e(f"buffer_store_dwordx4 {vr(16 + 4 * j, 4)}, v7, {sr(S_WS, 4)}, s{sT0} offen sc1")
        e(f"s_add_u32 s{sT0}, s{sT0}, 8192")
    c("meanwhile: zero pads and KT copies")
    e(f"s_mov_b32 s{sT1}, s{sRB}")
    e("v_lshlrev_b32 v6, 3, v1")
    e(f"v_add_u32 v6, s{sT1}, v6")
    e("v_mov_b32 v10, 0")
    e("v_mov_b32 v11, 0")
    e(f"ds_write_b64 v6, v[10:11] offset:{CV_R + 4096}")
    e(f"s_mul_i32 s{sT1}, s{sW}, {CV_KSTR}")
    e(f"s_add_u32 s{sT1}, s{sT1}, {CV_KT}")
    e("v_lshlrev_b32 v7, 2, v1")
    e(f"v_add_u32 v7, s{sT1}, v7")
    e("v_cmp_gt_u32 vcc, 8, v1")
    e("s_and_saveexec_b64 s[70:71], vcc")
    e("ds_write_b32 v7, v10")
    e(f"ds_write_b32 v7, v10 offset:{CV_KCPY}")
    e("s_mov_b64 exec, s[70:71]")
    e("s_waitcnt lgkmcnt(0)")
    e(f"s_lshl_b32 s{sT0}, s{sD}, 16")
    e(f"s_and_b32 s{sD}, s{sD}, 0xffff0000")
    e(f"s_bitcmp1_b32 s{sW}, 0")
    e(f"s_cselect_b32 s{sD}, s{sD}, s{sT0}")
    e("v_lshlrev_b32 v7, 4, v1")
    e(f"v_add_u32 v7, s{sT1}, v7")
    e("s_waitcnt vmcnt(4)")
    for j in range(4):
        d = SKD + 4 * j
        e(f"ds_write_b128 v7, {vr(d, 4)} offset:{32 + 1024 * j}")
        e(f"v_alignbit_b32 v12, v{d + 1}, v{d}, 16")
        e(f"v_alignbit_b32 v13, v{d + 2}, v{d + 1}, 16")
        e(f"v_alignbit_b32 v14, v{d + 3}, v{d + 2}, 16")
        e(f"v_alignbit_b32 v15, v{SKD + 16 + j}, v{d + 3}, 16")
        e(f"ds_write_b128 v7, v[12:15] offset:{CV_KCPY + 32 + 1024 * j}")
        e("s_nop 1")
    e(f"v_lshlrev_b32 v12, 16, v{SKD}")
    e("v_cmp_eq_u32 vcc, 0, v1")
    e("s_and_saveexec_b64 s[70:71], vcc")
    e(f"ds_write_b32 v7, v12 offset:{CV_KCPY + 28}")
    e("s_mov_b64 exec, s[70:71]")
    c("hand-off: all kv stores drained -> barrier -> flags to the 8 WGs of the group; then poll own mailbox")
    e("s_waitcnt vmcnt(0)")
    e("s_barrier")
    stamp(2)
    e(f"s_cmp_lg_u32 s{sW}, 0")
    e("s_cbranch_scc1 k1c_wait")
    zcheck()
    e(f"v_lshl_add_u32 v12, v1, 3, s{sG}")
    e("v_lshlrev_b32 v12, 8, v12")
    e(f"s_lshl_b32 s79, s{sJ}, 2")
    e(f"s_add_u32 s79, s79, {WS_MB + 4 * MB_KV}")
    e("v_mov_b32 v13, 1")
    e("v_cmp_gt_u32 vcc, 8, v1")
    e("s_and_saveexec_b64 s[70:71], vcc")
    e(f"buffer_store_dword v13, v12, {sr(S_WS, 4)}, s79 offen sc1")
    e("s_mov_b64 exec, s[70:71]")
    e("s_lshl_b32 s79, s2, 8")
    e(f"s_add_u32 s79, s79, {WS_MB}")
    pollmask(79, 0xff << MB_KV, S_WS)
    e(f"s_mov_b32 s{sZ}, 1")
    e("k1c_wait:")
    e("s_barrier")
    c("load own channel kvR row (sc1) -> LDS R")
    e(f"v_add_u32 v8, {WS_KV}, v8")
    for j in range(4):
        e(f"buffer_load_dwordx4 {vr(16 + 4 * j, 4)}, v8, {sr(S_WS, 4)}, 0 offen offset:{1024 * j} sc1")
    e(f"s_mov_b32 s{sT0}, s{sRB}")
    e("v_lshlrev_b32 v6, 4, v1")
    e(f"v_add_u32 v6, s{sT0}, v6")
    for j in range(4):
        e(f"s_waitcnt vmcnt({3 - j})")
        e(f"ds_write_b128 v6, {vr(16 + 4 * j, 4)} offset:{CV_R + 1024 * j}")
    e("s_waitcnt lgkmcnt(0)")
    stamp(3)
    c("MFMA phase: wave w -> channel w")
    ACC = 16
    AR = [48, 112]
    BR = [80, 144]
    vKT, vR, vA = 200, 201, 202
    e("v_and_b32 v2, 15, v1")
    e("v_lshrrev_b32 v3, 4, v1")
    e("v_lshlrev_b32 v4, 1, v2")
    e("v_lshlrev_b32 v5, 4, v3")
    e("v_sub_u32 v4, v4, v5")
    e(f"v_add_u32 v4, {32 - 14}, v4")
    e("v_and_b32 v5, 1, v2")
    e("v_cmp_eq_u32 vcc, 0, v5")
    e("v_mov_b32 v5, 0")
    e(f"v_mov_b32 v6, {CV_KCPY - 2}")
    e("s_nop 1")
    e("v_cndmask_b32 v5, v5, v6, vcc")
    e("v_add_u32 v4, v4, v5")
    e(f"v_add_u32 v{vKT}, s{sT1}, v4")
    e(f"s_mov_b32 s{sT0}, s{sRB}")
    e("v_lshlrev_b32 v4, 5, v2")
    e("v_lshl_add_u32 v4, v3, 4, v4")
    e(f"v_sub_u32 v4, {CV_R + 4080 - 3584}, v4")
    e(f"v_add_u32 v{vR}, s{sT0}, v4")

    def creads(ci, st):
        d0 = 2 * ci + 1
        for pp in range(4):
            e(f"v_add_u32 v{vA + pp}, {32 * d0 + 1024 * pp}, v{vKT}")
        order = [("B", 0)] + [("A", p) for p in range(8)] + [("B", m) for m in range(1, 8)]
        for kind, x in order:
            if kind == "A":
                p = x
                o = 128 * (p & 1)
                e(f"ds_read2_b32 {vr(AR[st] + 4 * p, 2)}, v{vA + (p >> 1)} offset0:{o} offset1:{o + 1}")
                e(f"ds_read2_b32 {vr(AR[st] + 4 * p + 2, 2)}, v{vA + (p >> 1)} offset0:{o + 2} offset1:{o + 3}")
            else:
                m = x
                e(f"ds_read_b128 {vr(BR[st] + 4 * m, 4)}, v{vR} offset:{32 * d0 + 512 * (7 - m)}")

    creads(0, 0)
    g2_setup(sW, 3)
    if PLO >= 0:
        out_pre_addr(sW, 206, 84)
        make_srd(84, P_OUT, 2048 * 1024)
        e(f"buffer_load_dword v207, v206, {sr(84, 4)}, 0 offen")
    if PLY:
        e(f"s_lshl_b32 s3, s{sCG}, 3")
        e(f"s_add_u32 s3, s3, s{sW}")
        e("s_lshl_b32 s3, s3, 12")
        e(f"s_add_u32 s3, s3, {WS_Y2}")
        e("v_lshlrev_b32 v206, 6, v1")
        e(f"buffer_load_dword v207, v206, {sr(S_WS, 4)}, s3 offen")
    for ci in range(8):
        st = ci & 1
        e("s_waitcnt lgkmcnt(0)")
        if ci < 7:
            creads(ci + 1, st ^ 1)
        if 2 <= ci <= 4:
            for g in g2_early(ci - 2):
                for x in g:
                    e(x)
        for m in range(8):
            for p in range(8 - m):
                cc = "0" if (ci == 0 and m == 0) else vr(ACC + 4 * (m + p), 4)
                e(f"v_mfma_f32_16x16x32_bf16 {vr(ACC + 4 * (m + p), 4)}, {vr(AR[st] + 4 * p, 4)}, "
                  f"{vr(BR[st] + 4 * m, 4)}, {cc}")
    stamp(None)
    c("epilogue: kv reads, y2 = bf16(bf16(y) + bf16(kv*D)), store y2T")
    e("v_lshlrev_b32 v4, 5, v2")
    e("v_lshl_add_u32 v4, v3, 3, v4")
    e(f"v_sub_u32 v5, {CV_R + 4088 - 3584}, v4")
    e(f"v_add_u32 v5, s{sT0}, v5")
    KVR = 48
    for n in range(8):
        e(f"ds_read_b64 {vr(KVR + 2 * n, 2)}, v5 offset:{512 * (7 - n)}")
    e(f"s_lshl_b32 s{sT1}, s{sCG}, 3")
    e(f"s_add_u32 s{sT1}, s{sT1}, s{sW}")
    e(f"s_lshl_b32 s{sT1}, s{sT1}, 12")
    e(f"s_add_u32 s{sT1}, s{sT1}, {WS_Y2}")
    e(f"v_add_u32 v6, s{sT1}, v4")
    e("s_nop 7")
    e("s_waitcnt lgkmcnt(0)")
    for n in range(8):
        a = ACC + 4 * n
        k0, k1 = KVR + 2 * n, KVR + 2 * n + 1
        o = 80 + 2 * n
        e(f"v_cvt_pk_bf16_f32 v8, v{a}, v{a + 1}")
        e(f"v_cvt_pk_bf16_f32 v9, v{a + 2}, v{a + 3}")
        e(f"v_and_b32 v10, 0xffff0000, v{k1}")
        e(f"v_lshlrev_b32 v11, 16, v{k1}")
        e(f"v_and_b32 v12, 0xffff0000, v{k0}")
        e(f"v_lshlrev_b32 v13, 16, v{k0}")
        for t in range(4):
            e(f"v_mul_f32 v{10 + t}, s{sD}, v{10 + t}")
        e("v_cvt_pk_bf16_f32 v10, v10, v11")
        e("v_cvt_pk_bf16_f32 v12, v12, v13")
        e("v_lshlrev_b32 v14, 16, v8")
        e("v_and_b32 v15, 0xffff0000, v8")
        e("v_lshlrev_b32 v11, 16, v10")
        e("v_and_b32 v10, 0xffff0000, v10")
        e("v_add_f32 v14, v14, v11")
        e("v_add_f32 v15, v15, v10")
        e(f"v_cvt_pk_bf16_f32 v{o}, v14, v15")
        e("v_lshlrev_b32 v14, 16, v9")
        e("v_and_b32 v15, 0xffff0000, v9")
        e("v_lshlrev_b32 v13, 16, v12")
        e("v_and_b32 v12, 0xffff0000, v12")
        e("v_add_f32 v14, v14, v13")
        e("v_add_f32 v15, v15, v12")
        e(f"v_cvt_pk_bf16_f32 v{o + 1}, v14, v15")
        e(f"buffer_store_dwordx2 {vr(o, 2)}, v6, {sr(S_WS, 4)}, 0 offen offset:{512 * n}{STC}")
    stamp(4)
    e("s_waitcnt vmcnt(0)")
    e("s_barrier")
    stamp(5)
    signal(sW, S_WS, "c", sG, sJ)
    e(f"s_mov_b32 s{sZ}, 1")
    e("s_branch g2_entry")


def kernel1():
    e(".globl k1_kernel")
    e(".p2align 8")
    e(".type k1_kernel,@function")
    e("k1_kernel:")
    e("s_cmp_ge_u32 s2, 256")
    e("s_cbranch_scc1 k1_done")
    load_ptrs()
    e(f"s_cmp_lt_u32 s2, {K1_NCONV}")
    e("s_cbranch_scc1 k1_conv")
    e(f"s_cmp_lt_u32 s2, {K1_NCONV + K1_NGEMM}")
    e("s_cbranch_scc1 k1_gemm")
    k1_aux()
    k1_gemm()
    k1_conv()
    kernel2()
    e("k1_done:")
    e("s_endpgm")


K2_Y2 = 147456
K2_MASK = K2_Y2 + 8192
K2_STATS = K2_MASK + 64
K2_AS = [6, 7, 8, 0, 1, 2]
K2_STEPS = 11
K2_NBR = 8
K2_NA = 6


def kernel2():
    S_H, S_WD, S_X, S_WS, S_OUT = 44, 48, 52, 56, 60
    sW, sT0, sT1, sMT, sNT, sKA, sKB, sLB = 64, 65, 66, 67, 68, 69, 70, 71
    sMASK, sW11 = 18, 19
    XR = 16
    NR = 24
    AFR = 28
    ACC = 60
    BFR = 124
    vDA, vDB, vB0, vB1, vAr, vOut = 8, 9, 10, 11, 12, 13
    e("g2_entry:")
    e("v_lshrrev_b32 v2, 6, v0")
    e("v_and_b32 v1, 63, v0")
    e(f"v_readfirstlane_b32 s{sW}, v2")
    make_srd(S_WS, P_WS, 0x1000000)
    e(f"s_cmp_gt_u32 s{sW}, 4")
    e("s_cbranch_scc1 g2_exit")
    c("x = id%8, j = id/8 : mt2 = 4x + (j&3), nt2 = j>>2")
    e("s_and_b32 s4, s2, 7")
    e("s_lshr_b32 s5, s2, 3")
    e(f"s_lshr_b32 s{sNT}, s5, 2")
    e("s_and_b32 s5, s5, 3")
    e(f"s_lshl_b32 s{sMT}, s4, 2")
    e(f"s_add_u32 s{sMT}, s{sMT}, s5")
    e(f"s_cmp_eq_u32 s{sW}, 4")
    e("s_cbranch_scc1 g2_helper")
    make_srd(S_H, P_WS, WS_H_BYTES)
    make_srd(S_X, P_Q, 2048 * 1024)
    make_srd(S_OUT, P_OUT, 2048 * 1024)
    e(f"s_mul_i32 s{sW11}, s{sW}, {K2_STEPS}")
    e(f"s_lshl_b32 s{sKA}, s{sW11}, 6")
    e(f"s_mul_i32 s{sT1}, s{sMT}, {64 * HP}")
    e(f"s_add_u32 s{sKA}, s{sKA}, s{sT1}")
    e(f"s_mov_b32 s{sLB}, s{sLB2}")
    e("v_and_b32 v2, 31, v1")
    e("v_lshrrev_b32 v3, 5, v1")
    e(f"s_mov_b32 s73, s{sROT}")
    e(f"s_mov_b32 s75, s{sROT}")
    VM = []

    def adv(sidx):
        return [f"s_add_u32 s{sidx}, s{sidx}, 1", f"s_cmp_ge_u32 s{sidx}, 11", f"s_cselect_b32 s{sidx}, 0, s{sidx}"]

    def groups_B(i, slot):
        g = []
        for j in range(4):
            x = []
            if j == 0:
                x += [f"s_lshl_b32 s77, s{sBI}, 15", f"s_add_u32 s77, s77, s{sKB2}"]
            x += [f"s_add_u32 m0, s{sLB}, {slot * 16384 + j * 1024}",
                  f"s_add_u32 s{sT0}, s77, {8 * j * 1024}",
                  f"buffer_load_dwordx4 v{vDB2}, {sr(S_WD2, 4)}, s{sT0} offen lds"]
            if j == 3:
                x += adv(sBI)
            g.append((x, f"B{i}"))
        return g

    def groups_A(i):
        slot = K2_AS[i % K2_NA]
        g = []
        for j in range(4):
            x = []
            if j == 0:
                x += [f"s_add_u32 s76, s73, s{sW11}", "s_lshr_b32 s76, s76, 2",
                      f"s_bitcmp1_b32 s{sMASK}, s76", f"s_cbranch_scc0 g2_wt{i}", ("ool", i),
                      "s_lshl_b32 s76, s73, 6", f"s_add_u32 s76, s76, s{sKA}"]
            x += [f"s_add_u32 m0, s{sLB}, {slot * 16384 + j * 1024}",
                  f"s_add_u32 s{sT0}, s76, {16 * j * HP}",
                  f"buffer_load_dwordx4 v{vDA}, {sr(S_H, 4)}, s{sT0} offen lds"]
            if j == 3:
                x += adv(73)
            g.append((x, f"A{i}"))
        return g

    def emit_group(g):
        x, tag = g
        for y in x:
            if isinstance(y, tuple):
                i = y[1]
                with ool(f"g2_wt{i}"):
                    e("s_mov_b32 s80, 0")
                    e(f"g2_wl{i}:")
                    e("ds_read_b32 v15, v26")
                    e("s_waitcnt lgkmcnt(0)")
                    e(f"v_readfirstlane_b32 s{sMASK}, v15")
                    e("s_add_u32 s80, s80, 1")
                    e("s_nop 2")
                    e(f"s_bitcmp1_b32 s{sMASK}, s76")
                    e(f"s_cbranch_scc1 g2_wt{i}_ret")
                    e("s_sleep 1")
                    e("s_cmp_lt_u32 s80, 0x400000")
                    e(f"s_cbranch_scc1 g2_wl{i}")
                continue
            e(y)
            if y.startswith("buffer_"):
                VM.append(tag)

    def nwait(tag):
        last = max(i for i, t in enumerate(VM) if t == tag)
        return min(63, len(VM) - 1 - last)

    c("B steps not issued early (branch on the role)")
    e(f"s_cmp_eq_u32 s{sNPRE}, 6")
    e("s_cbranch_scc1 g2_b6")
    e(f"s_cmp_eq_u32 s{sNPRE}, 3")
    e("s_cbranch_scc1 g2_b3")
    for i in range(9):
        if i in (3, 6):
            e(f"g2_b{i}:")
        for g in groups_B(i, K2_SB[i]):
            emit_group(g)
    c("A DMA lane offsets: row = l/4, src chunk = (l%4) ^ ((l/16)&3)")
    e("v_lshrrev_b32 v4, 2, v1")
    e(f"v_mul_u32_u24 v4, {HP}, v4")
    e("v_and_b32 v5, 3, v1")
    e("v_lshrrev_b32 v6, 4, v1")
    e("v_xor_b32 v5, v5, v6")
    e(f"v_lshl_add_u32 v{vDA}, v5, 4, v4")
    c("epilogue operand loads: tile (mi = w/2, ni = w%2)")
    e(f"s_lshr_b32 s{sT0}, s{sW}, 1")
    e(f"s_lshl_b32 s{sT0}, s{sT0}, 5")
    e(f"v_add_u32 v27, s{sT0}, v2")
    e(f"v_lshlrev_b32 v27, 3, v27")
    e(f"v_add_u32 v27, {K2_STATS}, v27")
    e(f"s_lshl_b32 s{sT1}, s{sMT}, 6")
    e(f"s_add_u32 s{sT0}, s{sT0}, s{sT1}")
    e(f"v_add_u32 v4, s{sT0}, v2")
    e(f"s_and_b32 s{sT1}, s{sW}, 1")
    e(f"s_lshl_b32 s{sT1}, s{sT1}, 6")
    e(f"s_lshl_b32 s72, s{sNT}, 7")
    e(f"s_add_u32 s{sT1}, s{sT1}, s72")
    e("v_lshlrev_b32 v5, 10, v4")
    e(f"v_add_u32 v5, s{sT1}, v5")
    e(f"v_lshl_add_u32 v{vOut}, v3, 4, v5")
    e("v_lshl_add_u32 v5, v3, 3, v5")
    for q in range(4):
        e(f"buffer_load_dwordx2 {vr(XR + 2 * q, 2)}, v5, {sr(S_X, 4)}, 0 offen offset:{16 * q}")
        VM.append("epi")
    c("B tr-read lane addresses")
    e("v_and_b32 v4, 15, v1")
    e("v_lshrrev_b32 v5, 2, v4")
    e("v_lshl_add_u32 v6, v3, 4, v5")
    e("v_lshlrev_b32 v6, 7, v6")
    e("v_lshrrev_b32 v7, 4, v1")
    e("v_and_b32 v7, 1, v7")
    e("v_lshl_add_u32 v6, v7, 5, v6")
    e("v_and_b32 v7, 3, v4")
    e("v_lshl_add_u32 v6, v7, 3, v6")
    e(f"v_add_u32 v6, s{sLB}, v6")
    e("v_lshrrev_b32 v7, 3, v4")
    e(f"v_lshl_add_u32 v{vB0}, v7, 6, v6")
    e("v_xor_b32 v7, 1, v7")
    e(f"v_lshl_add_u32 v{vB1}, v7, 6, v6")
    c("A read address: r*64 + ((2g+s) ^ ((r>>2)&3))*16 ; s via xor 16")
    e("v_lshrrev_b32 v4, 2, v2")
    e("v_and_b32 v4, 3, v4")
    e("v_lshlrev_b32 v5, 1, v3")
    e("v_xor_b32 v4, v4, v5")
    e("v_lshlrev_b32 v4, 4, v4")
    e("v_lshl_add_u32 v4, v2, 6, v4")
    e(f"v_add_u32 v{vAr}, s{sLB}, v4")
    e(f"v_xor_b32 v14, 16, v{vAr}")
    e(f"v_mov_b32 v26, {K2_MASK}")
    e(f"s_mov_b32 s{sMASK}, 0")

    c("address regs per 48 KB third: (B0, B1, A0, A1) x 3 in v[240:251]?  -> B frags end at 251, so use v[4:7] dynamically")

    def rebase(third):
        return [f"v_add_u32 v4, {third * 49152}, v{vB0}", f"v_add_u32 v5, {third * 49152}, v{vB1}",
                f"v_add_u32 v6, {third * 49152}, v{vAr}", f"v_add_u32 v7, {third * 49152}, v14"]

    def breads(i, slot):
        r = rebase(slot // 3)[:2]
        base = BFR + 16 * (i % K2_NBR)
        for s in range(2):
            for ni in range(2):
                for u in range(2):
                    r.append(f"ds_read_b64_tr_b16 {vr(base + 8 * s + 4 * ni + 2 * u, 2)}, v{5 if ni else 4} "
                             f"offset:{(slot % 3) * 16384 + (8 * s + 4 * u) * 128}")
        return r

    def areads(i):
        slot = K2_AS[i % K2_NA]
        r = rebase(slot // 3)[2:]
        for s in range(2):
            for mi in range(2):
                r.append(f"ds_read_b128 {vr(AFR + 16 * (i & 1) + 8 * mi + 4 * s, 4)}, v{7 if s else 6} "
                         f"offset:{(slot % 3) * 16384 + mi * 2048}")
        return r

    for r in range(64):
        e(f"v_mov_b32 v{ACC + r}, 0")
    e("s_barrier")
    for i in range(6):
        e(f"s_waitcnt vmcnt({nwait(f'B{i}')})")
        for x in breads(i, K2_SB[i]):
            e(x)
    e("s_waitcnt lgkmcnt(0)")
    stamp(6)
    for i in range(K2_NA):
        for g in groups_A(i):
            emit_group(g)
    for i in (6, 7):
        e(f"s_waitcnt vmcnt({nwait(f'B{i}')})")
        for x in breads(i, K2_SB[i]):
            e(x)
    e("s_waitcnt lgkmcnt(0)")
    for g in groups_B(9, 3) + groups_B(10, 4):
        emit_group(g)
    e(f"s_waitcnt vmcnt({nwait('A0')})")
    stamp(7)
    for x in areads(0):
        e(x)
    BSLOT = {8: 5, 9: 3, 10: 4}
    for i in range(K2_STEPS):
        e("s_waitcnt lgkmcnt(0)")
        dg = groups_A(i + K2_NA) if i + K2_NA < K2_STEPS else []
        rl = []
        if i + 1 < K2_STEPS:
            rl = areads(i + 1)
            if i + 1 >= K2_NBR:
                rl += breads(i + 1, BSLOT[i + 1])
        for g in dg:
            emit_group(g)
        if rl:
            tag = f"A{i + 1}"
            n = nwait(tag)
            if i + 1 >= K2_NBR:
                n = min(n, nwait(f"B{i + 1}"))
            e(f"s_waitcnt vmcnt({n})")
            for x in rl:
                e(x)
        e(f"s_add_u32 s74, s75, s{sW}")
        for x in adv(75):
            e(x)
        e("s_cmp_eq_u32 s74, 13")
        e(f"s_cbranch_scc1 k2_skip{i}")
        for s in range(2):
            for mi in range(2):
                for ni in range(2):
                    a = ACC + 16 * (2 * mi + ni)
                    bb = BFR + 16 * (i % K2_NBR) + 8 * s + 4 * ni
                    e(f"v_mfma_f32_32x32x16_bf16 {vr(a, 16)}, {vr(bb, 4)}, "
                      f"{vr(AFR + 16 * (i & 1) + 8 * mi + 4 * s, 4)}, {vr(a, 16)}")
        e(f"k2_skip{i}:")
    e("s_nop 15")
    e("s_nop 3")
    stamp(8)
    c("write non-owned partial tiles to own LDS region")
    e("v_lshlrev_b32 v4, 4, v1")
    e(f"v_add_u32 v4, s{sLB}, v4")
    for t in range(4):
        e(f"s_cmp_eq_u32 s{sW}, {t}")
        e(f"s_cbranch_scc1 k2_skipw{t}")
        for q in range(4):
            e(f"ds_write_b128 v4, {vr(ACC + 16 * t + 4 * q, 4)} offset:{t * 16384 + q * 1024}")
        e(f"k2_skipw{t}:")
    e("s_waitcnt lgkmcnt(0)")
    e("s_barrier")
    stamp(9)
    OWN, OTH, YR, OUTR, TA, TB = 124, 140, 188, 196, 204, 205
    c("owner gathers: tile w from the other 3 waves")
    for t in range(4):
        e(f"s_cmp_lg_u32 s{sW}, {t}")
        e(f"s_cbranch_scc1 k2_skipm{t}")
        for r in range(16):
            e(f"v_mov_b32 v{OWN + r}, v{ACC + 16 * t + r}")
        e(f"k2_skipm{t}:")
    e(f"s_lshl_b32 s{sT0}, s{sW}, 14")
    e("v_lshlrev_b32 v4, 4, v1")
    e(f"v_add_u32 v4, s{sT0}, v4")
    for k in range(1, 4):
        e(f"s_add_u32 s{sT1}, s{sW}, {k}")
        e(f"s_and_b32 s{sT1}, s{sT1}, 3")
        e(f"s_lshl_b32 s{sT1}, s{sT1}, 12")
        e(f"v_add_u32 v5, s{sT1}, v4")
        for q in range(4):
            e(f"ds_read_b128 {vr(OTH + 16 * (k - 1) + 4 * q, 4)}, v5 offset:{q * 1024}")
    c("y2 tr reads: c0 = 8q + 4g")
    e("v_and_b32 v4, 15, v1")
    e("v_lshrrev_b32 v5, 2, v4")
    e("v_lshl_add_u32 v5, v3, 2, v5")
    e("v_lshlrev_b32 v5, 6, v5")
    e("v_lshrrev_b32 v6, 4, v1")
    e("v_and_b32 v6, 1, v6")
    e("v_lshl_add_u32 v5, v6, 5, v5")
    e("v_and_b32 v6, 3, v4")
    e("v_lshl_add_u32 v5, v6, 3, v5")
    e(f"s_lshl_b32 s{sT1}, s{sW}, 11")
    e(f"s_add_u32 s{sT1}, s{sT1}, {K2_Y2}")
    e(f"v_add_u32 v5, s{sT1}, v5")
    e("s_waitcnt lgkmcnt(8)")
    for q in range(4):
        e(f"ds_read_b64_tr_b16 {vr(YR + 2 * q, 2)}, v5 offset:{q * 512}")
    e(f"ds_read_b64 {vr(NR, 2)}, v27")
    e("s_waitcnt vmcnt(0) lgkmcnt(0)")
    for r in range(16):
        e(f"v_add_f32 v{OWN + r}, v{OWN + r}, v{OTH + r}")
        e(f"v_add_f32 v{OTH + 16 + r}, v{OTH + 16 + r}, v{OTH + 32 + r}")
    for r in range(16):
        e(f"v_add_f32 v{OWN + r}, v{OWN + r}, v{OTH + 16 + r}")
    for q in range(4):
        for h2 in range(2):
            x = XR + 2 * q + h2
            y = YR + 2 * q + h2
            b = OWN + 4 * q + 2 * h2
            e(f"v_lshlrev_b32 v4, 16, v{x}")
            e(f"v_and_b32 v5, 0xffff0000, v{x}")
            e(f"v_fma_f32 v7, v4, v{NR}, v{NR + 1}")
            e(f"v_fma_f32 v6, v5, v{NR}, v{NR + 1}")
            e("v_cvt_pk_bf16_f32 v6, v7, v6")
            e("v_lshlrev_b32 v7, 16, v6")
            e("v_and_b32 v6, 0xffff0000, v6")
            e(f"v_lshlrev_b32 v{TA}, 16, v{y}")
            e(f"v_and_b32 v{TB}, 0xffff0000, v{y}")
            e(f"v_mul_f32 v7, v7, v{TA}")
            e(f"v_mul_f32 v6, v6, v{TB}")
            e("v_cvt_pk_bf16_f32 v6, v7, v6")
            e("v_lshlrev_b32 v7, 16, v6")
            e("v_and_b32 v6, 0xffff0000, v6")
            e("v_add_f32 v7, v4, v7")
            e("v_add_f32 v6, v5, v6")
            e("v_cvt_pk_bf16_f32 v6, v7, v6")
            e(f"v_cvt_pk_bf16_f32 v{TA}, v{b}, v{b + 1}")
            e("v_lshlrev_b32 v7, 16, v6")
            e("v_and_b32 v6, 0xffff0000, v6")
            e(f"v_lshlrev_b32 v{TB}, 16, v{TA}")
            e(f"v_and_b32 v{TA}, 0xffff0000, v{TA}")
            e(f"v_add_f32 v7, v7, v{TB}")
            e(f"v_add_f32 v6, v6, v{TA}")
            e(f"v_cvt_pk_bf16_f32 v{OUTR + 2 * q + h2}, v7, v6")
    e("s_nop 1")
    for qq in range(2):
        o = OUTR + 4 * qq
        e(f"v_permlane32_swap_b32 v{o}, v{o + 2}")
        e(f"v_permlane32_swap_b32 v{o + 1}, v{o + 3}")
        e(f"buffer_store_dwordx4 {vr(o, 4)}, v{vOut}, {sr(S_OUT, 4)}, 0 offen offset:{32 * qq}{OSC}")
    e("g2_exit:")
    stamp_flush(S_WS, WS_PROF)
    e("s_endpgm")
    flush_ool()
    e("g2_helper:")
    c("helper wave: publish the ready mask of the 11 GEMM1 tiles of row block mt2/2 (own mailbox)")
    e(f"v_mov_b32 v26, {K2_MASK}")
    e("v_mov_b32 v13, 0")
    e("ds_write_b32 v26, v13")
    e("s_waitcnt lgkmcnt(0)")
    e("s_barrier")
    zcheck()
    e("s_lshl_b32 s79, s2, 8")
    e(f"s_add_u32 s79, s79, {WS_MB}")
    e("v_and_b32 v15, 31, v0")
    e("v_lshlrev_b32 v15, 2, v15")
    e("s_mov_b32 s80, 0")
    e("g2_hp:")
    e(f"buffer_load_dword v14, v15, {sr(S_WS, 4)}, s79 offen sc1")
    e("s_waitcnt vmcnt(0)")
    e("v_cmp_ne_u32 vcc, 0, v14")
    e("s_add_u32 s80, s80, 1")
    e("s_and_b32 s81, vcc_lo, 0x7ff")
    e("v_mov_b32 v13, s81")
    e("ds_write_b32 v26, v13")
    e("s_cmp_eq_u32 s81, 0x7ff")
    e("s_cbranch_scc1 g2_hd")
    e("s_cmp_lt_u32 s80, 0x40000")
    e("s_cbranch_scc1 g2_hp")
    e("g2_hd:")
    c("row stats of the 64 rows -> LDS")
    e("v_lshlrev_b32 v5, 2, v1")
    e(f"s_lshl_b32 s{sT1}, s{sMT}, 9")
    e(f"s_add_u32 s{sT1}, s{sT1}, {WS_ST}")
    for j in range(2):
        e(f"s_mov_b32 m0, {K2_STATS + 256 * j}")
        e(f"buffer_load_dword v5, {sr(S_WS, 4)}, s{sT1} offen lds")
        e(f"s_add_u32 s{sT1}, s{sT1}, 256")
    c("wait for conv group nt2, stage the four y2T tiles")
    pollmask(79, 0xff << MB_C, S_WS, first=14)
    e("v_lshrrev_b32 v5, 2, v1")
    e("v_lshlrev_b32 v5, 12, v5")
    e("v_and_b32 v6, 3, v1")
    e("v_lshl_add_u32 v5, v6, 4, v5")
    e(f"s_lshl_b32 s{sT1}, s{sNT}, 18")
    e(f"s_lshl_b32 s{sT0}, s{sMT}, 7")
    e(f"s_add_u32 s{sT1}, s{sT1}, s{sT0}")
    e(f"s_add_u32 s{sT1}, s{sT1}, {WS_Y2}")
    for w in range(4):
        mi, ni = w >> 1, w & 1
        for j in range(2):
            e(f"s_mov_b32 m0, {K2_Y2 + w * 2048 + j * 1024}")
            e(f"s_add_u32 s{sT0}, s{sT1}, {(ni * 32 + j * 16) * 4096 + mi * 64}")
            e(f"buffer_load_dwordx4 v5, {sr(S_WS, 4)}, s{sT0} offen lds")
    e("s_waitcnt vmcnt(0) lgkmcnt(0)")
    e("s_barrier")
    e("s_branch g2_exit")


def descriptor(name, nv):
    L.append(".p2align 6")
    L.append(f".amdhsa_kernel {name}")
    L.append(f"  .amdhsa_next_free_vgpr {nv}")
    L.append("  .amdhsa_next_free_sgpr 102")
    L.append(f"  .amdhsa_accum_offset {nv}")
    L.append("  .amdhsa_group_segment_fixed_size 0")
    L.append("  .amdhsa_kernarg_size 104")
    L.append("  .amdhsa_user_sgpr_count 2")
    L.append("  .amdhsa_user_sgpr_kernarg_segment_ptr 1")
    L.append("  .amdhsa_system_sgpr_workgroup_id_x 1")
    L.append(".end_amdhsa_kernel")


def main():
    hdr = open(f"cdna_kernels/{NAME}.s.ref").read().split("\n")
    for line in hdr:
        if line.startswith("; Override") or line.startswith("; grid=") or "@launch" in line:
            continue
        if not line.startswith(";"):
            break
        L.append(line)
    L.append(f"; @launch kernel=k1_kernel grid=(256,1,1) block=(512,1,1) lds=163840")
    L.append('.amdgcn_target "amdgcn-amd-amdhsa--gfx950"')
    L.append(".text")
    kernel1()
    L.append('.section .rodata,"a"')
    descriptor("k1_kernel", 256)
    out = sys.argv[1] if len(sys.argv) > 1 else f"cdna_kernels/{NAME}.s"
    open(out, "w").write("\n".join(L) + "\n")


if __name__ == "__main__":
    main()
```

```python
import sys

NAME = "parallel_sum__ssm_conv_h3__glu_gated_bilinear__prompt"

WS_H = 0
HP = 2816
WS_H_BYTES = 2048 * HP
WS_Y2 = 0x600000
WS_ST = 0x800000
WS_XN = 0xA00000
WS_KV = 0xC00000
WS_MB = 0x900000
ZOFF = 16
ZN = 16

import os
K1MAP = int(os.environ.get('K1MAP', '1'))
WBL2 = int(os.environ.get('WBL2', '0'))
STC = os.environ.get('STC', '' if WBL2 else ' sc1')
PREF = int(os.environ.get('PREF', '1'))
PREF2 = int(os.environ.get('PREF2', '1'))
PREF3 = int(os.environ.get('PREF3', '2'))
PSLEEP = int(os.environ.get('PSLEEP', '1'))
CSLEEP = int(os.environ.get('CSLEEP', '0'))
ISLEEP = int(os.environ.get('ISLEEP', '0'))
KV16 = int(os.environ.get('KV16', '0'))
MIDN = int(os.environ.get('MIDN', '5'))
ASW = int(os.environ.get('ASW', '1'))
NODMA = int(os.environ.get('NODMA', '0'))
K2ROT_A = int(os.environ.get('K2ROT_A', '4'))
K2ROT_B = int(os.environ.get('K2ROT_B', '3'))
PROFB = int(os.environ.get('PROFB', '0'))
PLH = int(os.environ.get('PLH', '-1'))
PLO = int(os.environ.get('PLO', '-1'))
PLY = int(os.environ.get('PLY', '0'))
PLK = int(os.environ.get('PLK', '0'))
OSC = os.environ.get('OSC', '')
L = []


def e(s=""):
    L.append("    " + s if s and not s.endswith(":") else s)


def c(s):
    L.append("    ; " + s)


PROF = len(sys.argv) > 2 and sys.argv[2] == "prof"
WS_PROF = 0xE00000
_stamp = [0]


SPAIR = [6, 8, 10, 12, 14, 88, 90, 92, 94, 96, 100]


def stamp(k=None):
    if not PROF or k is None or k is True:
        return
    if k == 0:
        e("s_memrealtime s[98:99]")
        e("s_waitcnt lgkmcnt(0)")
        e("v_writelane_b32 v255, s98, 63")
        for p in SPAIR:
            e(f"s_mov_b32 s{p}, 0")
    e(f"s_memtime s[{SPAIR[k]}:{SPAIR[k] + 1}]")


def stamp_flush(srd, base):
    if not PROF:
        return
    stamp(10)
    if os.environ.get('DIAG'):
        a, b, wg, mul = [int(x) for x in os.environ['DIAG'].split(',')]
        e("s_waitcnt lgkmcnt(0)")
        e(f"s_cmp_lg_u32 s2, {wg}")
        e("s_cbranch_scc1 diag_done")
        e("v_readfirstlane_b32 s98, v0")
        e("s_nop 3")
        e("s_cmp_lg_u32 s98, 0")
        e("s_cbranch_scc1 diag_done")
        e(f"s_sub_u32 s98, s{SPAIR[b]}, s{SPAIR[a]}")
        e(f"s_mul_i32 s98, s98, {mul}")
        e("s_min_u32 s98, s98, 400000")
        e("diag_l:")
        e("s_memtime s[6:7]")
        e("s_waitcnt lgkmcnt(0)")
        e(f"s_sub_u32 s6, s6, s{SPAIR[10]}")
        e("s_cmp_lt_u32 s6, s98")
        e("s_cbranch_scc1 diag_l")
        e("diag_done:")
        return
    e("s_memrealtime s[98:99]")
    e("s_waitcnt lgkmcnt(0)")
    e("v_writelane_b32 v255, s98, 62")
    for k, p in enumerate(SPAIR):
        e(f"v_writelane_b32 v255, s{p}, {k}")
    e("v_lshrrev_b32 v253, 6, v0")
    e("v_lshl_add_u32 v253, s2, 3, v253")
    e("v_lshlrev_b32 v253, 8, v253")
    e("v_and_b32 v254, 63, v0")
    e("v_lshl_add_u32 v253, v254, 2, v253")
    e(f"v_add_u32 v253, {base}, v253")
    e(f"buffer_store_dword v255, v253, {sr(srd, 4)}, 0 offen")


OOL = []


class ool:
    def __init__(self, label):
        self.label = label

    def __enter__(self):
        global L
        self.saved = L
        L = []
        L.append(f"{self.label}:")

    def __exit__(self, *a):
        global L
        L.append(f"    s_branch {self.label}_ret")
        OOL.extend(L)
        L = self.saved
        L.append(f"{self.label}_ret:")


def flush_ool():
    L.extend(OOL)
    OOL.clear()


def vr(a, n=1):
    return f"v{a}" if n == 1 else f"v[{a}:{a + n - 1}]"


def sr(a, n=1):
    return f"s{a}" if n == 1 else f"s[{a}:{a + n - 1}]"


def make_srd(d, ptr, nbytes):
    e(f"s_mov_b32 s{d}, s{ptr}")
    e(f"s_and_b32 s{d + 1}, s{ptr + 1}, 0xffff")
    e(f"s_mov_b32 s{d + 2}, {nbytes}")
    e(f"s_mov_b32 s{d + 3}, 0x00020000")


P_Q, P_K, P_V, P_SH, P_SK, P_SD, P_BX, P_WG = 16, 18, 20, 22, 24, 26, 28, 30
P_WU, P_WD, P_OUT, P_DBG, P_WS = 32, 34, 36, 38, 40


def load_ptrs():
    e("s_load_dwordx16 s[16:31], s[0:1], 0")
    e("s_load_dwordx8 s[32:39], s[0:1], 64")
    e("s_load_dwordx2 s[40:41], s[0:1], 96")


S_DB2 = 84
_lbl = [0]


sZ = 82


def zload():
    e(f"s_load_dword s{sZ}, {sr(P_DBG, 2)}, {ZOFF}")


MB_H, MB_C, MB_KV, MB_CS, MB_ST = 0, 12, 20, 32, 48


def zcheck():
    _lbl[0] += 1
    n = _lbl[0]
    e(f"s_cmp_ge_u32 s{sZ}, 1")
    e(f"s_cbranch_scc1 sig_go{n}")
    make_srd(S_DB2, P_DBG, 256)
    e(f"s_mov_b32 s79, {ZOFF}")
    poll(79, 1, slp=8)
    e(f"sig_go{n}:")


def signal(sW, S_WS, mode, sIdx, sWord):
    _lbl[0] += 1
    n = _lbl[0]
    e(f"s_cmp_lg_u32 s{sW}, 0")
    e(f"s_cbranch_scc1 sig_skip{n}")
    zcheck()
    e("v_and_b32 v14, 63, v0")
    if mode == "h":
        e("v_and_b32 v12, 1, v14")
        e(f"s_lshl_b32 s79, s{sIdx}, 1")
        e("v_add_u32 v12, s79, v12")
        e("v_lshrrev_b32 v13, 1, v14")
    else:
        e("v_mov_b32 v12, v14")
        e(f"v_mov_b32 v13, s{sIdx}")
    e("v_and_b32 v15, 3, v12")
    e("v_lshl_add_u32 v15, v13, 2, v15")
    e("v_lshrrev_b32 v12, 2, v12")
    e("v_lshl_add_u32 v12, v15, 3, v12")
    e("v_lshlrev_b32 v12, 8, v12")
    e(f"s_lshl_b32 s79, s{sWord}, 2")
    e(f"s_add_u32 s79, s79, {WS_MB + 4 * (MB_H if mode == 'h' else MB_C)}")
    e("v_mov_b32 v13, 1")
    e(f"v_cmp_gt_u32 vcc, {16 if mode == 'h' else 32}, v14")
    e("s_and_saveexec_b64 s[70:71], vcc")
    e(f"buffer_store_dword v13, v12, {sr(S_WS, 4)}, s79 offen sc1")
    e("s_mov_b64 exec, s[70:71]")
    e(f"sig_skip{n}:")


def pollmask(sOff, mask, srd, first=None):
    _lbl[0] += 1
    n = _lbl[0]
    if first is not None:
        e(f"v_cmp_ne_u32 vcc, 0, v{first}")
        e(f"s_and_b32 s81, vcc_lo, {mask}")
        e(f"s_cmp_eq_u32 s81, {mask}")
        e(f"s_cbranch_scc1 polled{n}")
    e("v_and_b32 v15, 31, v0")
    e("v_lshlrev_b32 v15, 2, v15")
    e("s_mov_b32 s80, 0")
    e(f"poll{n}:")
    e(f"buffer_load_dword v14, v15, {sr(srd, 4)}, s{sOff} offen sc1")
    e("s_waitcnt vmcnt(0)")
    e("v_cmp_ne_u32 vcc, 0, v14")
    e("s_add_u32 s80, s80, 1")
    e(f"s_and_b32 s81, vcc_lo, {mask}")
    e(f"s_cmp_eq_u32 s81, {mask}")
    e(f"s_cbranch_scc1 polled{n}")
    if PSLEEP:
        e(f"s_sleep {PSLEEP}")
    e("s_cmp_lt_u32 s80, 0x40000")
    e(f"s_cbranch_scc1 poll{n}")
    e(f"polled{n}:")


def poll(sOff, target, srd=None, slp=None):
    srd = S_DB2 if srd is None else srd
    _lbl[0] += 1
    n = _lbl[0]
    e(f"v_mov_b32 v15, s{sOff}")
    e("s_mov_b32 s80, 0")
    e(f"poll{n}:")
    e(f"buffer_load_dword v14, v15, {sr(srd, 4)}, 0 offen sc1")
    e("s_waitcnt vmcnt(0)")
    e("v_readfirstlane_b32 s81, v14")
    e("s_nop 3")
    e("s_add_u32 s80, s80, 1")
    e(f"s_cmp_ge_u32 s81, {target}")
    e(f"s_cbranch_scc1 polled{n}")
    if slp or PSLEEP:
        e(f"s_sleep {slp or PSLEEP}")
    e("s_cmp_lt_u32 s80, 0x40000")
    e(f"s_cbranch_scc1 poll{n}")
    e(f"polled{n}:")


K1_NCONV = 64
K1_NGEMM = 176
K1_BUF = [131072, 0, 32768, 65536, 98304]


K1_STG = 49152
K1_EX = 147456


AUXOFF = 132
WS_CS = 0x880000
WS_SP = 0x8C0000


def zadd(sW, wait=None):
    _lbl[0] += 1
    n = _lbl[0]
    e(f"s_cmp_lg_u32 s{sW}, 4")
    e(f"s_cbranch_scc1 zadd{n}")
    if wait is not None:
        e(f"s_waitcnt vmcnt({wait})")
        stamp(1)
    make_srd(S_DB2, P_DBG, 256)
    e("v_mov_b32 v14, 1")
    e(f"v_mov_b32 v15, {ZOFF}")
    e("v_cmp_eq_u32 vcc, 0, v1")
    e("s_and_saveexec_b64 s[70:71], vcc")
    e(f"buffer_atomic_add v14, v15, {sr(S_DB2, 4)}, 0 offen sc1")
    e("s_mov_b64 exec, s[70:71]")
    e(f"zadd{n}:")


S_WD2, sKB2, sBI, sROT, sLB2, sNPRE = 20, 24, 25, 26, 27, 28
vDB2 = 252
K2_SB = [6, 7, 8, 0, 1, 2, 3, 4, 5]


def g2_setup(sW, npre):
    c("GEMM2 B state: x = id%8, j = id/8 : mt2 = 4x + (j&3), nt2 = j>>2")
    make_srd(S_WD2, P_WD, 1376 * 1024)
    e("s_lshr_b32 s3, s2, 3")
    e("s_lshr_b32 s4, s3, 2")
    e("s_and_b32 s3, s3, 3")
    e(f"s_mul_i32 s{sROT}, s4, {K2ROT_A}")
    e(f"s_mul_i32 s3, s3, {K2ROT_B}")
    e(f"s_add_u32 s{sROT}, s{sROT}, s3")
    for _ in range(4):
        e(f"s_cmp_ge_u32 s{sROT}, 11")
        e("s_cselect_b32 s3, 11, 0")
        e(f"s_sub_u32 s{sROT}, s{sROT}, s3")
    e(f"s_mov_b32 s{sBI}, s{sROT}")
    e(f"s_and_b32 s3, s{sW}, 3")
    e(f"s_lshl_b32 s{sLB2}, s3, 12")
    e(f"s_mul_i32 s{sKB2}, s3, {11 << 15}")
    e("s_lshl_b32 s4, s4, 7")
    e(f"s_add_u32 s{sKB2}, s{sKB2}, s4")
    e(f"s_mov_b32 s{sNPRE}, {npre}")
    c("B DMA lane offsets: row = l/8, chunk' = l%8; global chunk = chunk' ^ (((row>>1)&1)<<2)")
    e("v_lshrrev_b32 v4, 3, v1")
    e("v_and_b32 v5, 7, v1")
    e("v_lshrrev_b32 v6, 1, v4")
    e("v_and_b32 v6, 1, v6")
    e("v_lshlrev_b32 v6, 2, v6")
    e("v_xor_b32 v5, v5, v6")
    e("v_lshlrev_b32 v5, 4, v5")
    e(f"v_lshl_add_u32 v{vDB2}, v4, 10, v5")
    e(f"s_lshr_b32 s3, s{sW}, 2")
    e(f"s_lshl_b32 s29, s3, 11")
    e(f"s_add_u32 s29, s29, s{sLB2}")
    e(f"s_lshl_b32 s5, s3, 14")
    e(f"s_add_u32 s5, s5, s{sKB2}")


def out_pre_addr(sW, vd, srd):
    e("s_and_b32 s3, s2, 7")
    e("s_lshl_b32 s3, s3, 2")
    e("s_lshr_b32 s4, s2, 3")
    e("s_and_b32 s4, s4, 3")
    e("s_add_u32 s3, s3, s4")
    e("s_lshl_b32 s3, s3, 3")
    e(f"s_add_u32 s3, s3, s{sW}")
    e("s_lshl_b32 s3, s3, 13")
    e("s_lshr_b32 s4, s2, 5")
    e("s_lshl_b32 s4, s4, 7")
    e("s_add_u32 s3, s3, s4")
    e(f"v_lshrrev_b32 v{vd}, 3, v1")
    e(f"v_lshlrev_b32 v{vd}, 10, v{vd}")
    e("v_and_b32 v4, 7, v1")
    e(f"v_lshl_add_u32 v{vd}, v4, 4, v{vd}")
    e(f"v_add_u32 v{vd}, s3, v{vd}")


def g2_adv(sidx):
    return [f"s_add_u32 s{sidx}, s{sidx}, 1", f"s_cmp_ge_u32 s{sidx}, 11", f"s_cselect_b32 s{sidx}, 0, s{sidx}"]


def g2_early(i):
    g = []
    for j in range(2):
        x = []
        if j == 0:
            x += [f"s_lshl_b32 s3, s{sBI}, 15", "s_add_u32 s3, s3, s5"]
        x += [f"s_add_u32 m0, s29, {K2_SB[i] * 16384 + j * 1024}",
              f"s_add_u32 s4, s3, {8 * j * 1024}",
              f"buffer_load_dwordx4 v{vDB2}, {sr(S_WD2, 4)}, s4 offen lds"]
        if j == 1:
            x += g2_adv(sBI)
        g.append(x)
    return g


def k1_gemm():
    S_X, S_WG, S_WU, S_WS = 44, 48, 52, 56
    sMT, sNT, sW, sT0, sT1, sW0, sMW, sROW = 60, 61, 62, 63, 64, 65, 66, 67
    sSB, sDS, sIT, sDB, sAUX = 68, 69, 72, 73, 83
    AF = 16
    ACC = 144
    BF = 208
    vDMA, vB0, vB1, vBc0, vBc1, vHoff = 240, 241, 242, 243, 244, 245
    vXD, vA0, vCS, vST, vXD1 = 40, 41, 42, 43, 39
    vAk = 44
    CSR = 80
    e("k1_gemm:")
    e("s_sub_u32 s3, s2, %d" % K1_NCONV)
    c("k = 22*(t%8) + t/8 ; mh = k/88 ; rem = k%88 ; nt = rem/8 ; mt = mh*8 + rem%8")
    e("s_and_b32 s4, s3, 7")
    e("s_mul_i32 s4, s4, 22")
    e("s_lshr_b32 s5, s3, 3")
    e("s_add_u32 s4, s4, s5")
    e("s_cmp_ge_u32 s4, 88")
    e("s_cselect_b32 s5, 88, 0")
    e(f"s_cselect_b32 s{sMT}, 8, 0")
    e("s_sub_u32 s4, s4, s5")
    e(f"s_lshr_b32 s{sNT}, s4, 3")
    e("s_and_b32 s4, s4, 7")
    e(f"s_add_u32 s{sMT}, s{sMT}, s4")
    e("v_lshrrev_b32 v2, 6, v0")
    e("v_and_b32 v1, 63, v0")
    e(f"v_readfirstlane_b32 s{sW}, v2")
    c("x DMA lane offset: row = l>>3, src chunk = (l&7) ^ (row&7)")
    e("v_lshrrev_b32 v2, 3, v1")
    e("v_and_b32 v3, 7, v1")
    if ASW:
        e("v_lshrrev_b32 v4, 4, v1")
        e("v_xor_b32 v3, v3, v4")
    else:
        e("v_xor_b32 v3, v3, v2")
    e("v_lshlrev_b32 v3, 4, v3")
    e(f"v_lshl_add_u32 v{vXD}, v2, 10, v3")
    e(f"v_xor_b32 v{vXD1}, {64 if ASW else 0}, v{vXD}")
    c("W DMA lane offsets")
    e("v_lshrrev_b32 v12, 4, v1")
    e("v_and_b32 v13, 15, v1")
    e("v_lshlrev_b32 v14, 2, v12")
    e("v_xor_b32 v13, v13, v14")
    e("v_lshlrev_b32 v13, 4, v13")
    e("v_mul_u32_u24 v14, 2752, v12")
    e(f"v_add_u32 v{vDMA}, v13, v14")
    e(f"s_mul_i32 s{sW0}, s{sW}, {8 * 2752}")
    e(f"s_lshl_b32 s{sT0}, s{sNT}, 8")
    e(f"s_add_u32 s{sW0}, s{sW0}, s{sT0}")
    e(f"s_lshl_b32 s{sMW}, s{sW}, 11")
    e(f"s_lshl_b32 s{sROW}, s{sMT}, 17")
    e(f"s_lshl_b32 s{sT0}, s{sW}, 14")
    e(f"s_add_u32 s{sROW}, s{sROW}, s{sT0}")
    e(f"s_mov_b32 s{sDS}, 0")
    e(f"s_mov_b32 s{sDB}, s{sMW}")
    e("s_waitcnt lgkmcnt(0)")
    stamp(0)
    make_srd(S_X, P_Q, 2048 * 1024)
    make_srd(S_WG, P_WG, 512 * 2752)
    make_srd(S_WU, P_WU, 512 * 2752)
    make_srd(S_WS, P_WS, 0x1000000)

    def dma_groups():
        g = []
        for j in range(2):
            g.append([f"s_add_u32 m0, s{sDB}, {32768 + j * 1024}",
                      f"s_add_u32 s{sT0}, s{sROW}, {j * 8192}",
                      f"buffer_load_dwordx4 v{vXD1 if j else vXD}, {sr(S_X, 4)}, s{sT0} offen lds"])
        for part in range(2):
            for j in range(2):
                g.append([f"s_add_u32 m0, s{sDB}, {part * 16384 + j * 1024}",
                          f"s_add_u32 s{sT0}, s{sW0}, {4 * j * 2752}",
                          f"buffer_load_dwordx4 v{vDMA}, {sr(S_WU if part else S_WG, 4)}, s{sT0} offen lds"])
        g[-1] += [f"s_add_u32 s{sROW}, s{sROW}, {128 if MIDN == 5 else 0}",
                  f"s_add_u32 s{sW0}, s{sW0}, {64 * 2752 if MIDN == 5 else 0}",
                  f"s_add_u32 s{sDS}, s{sDS}, {K1_STG}",
                  f"s_cmp_ge_u32 s{sDS}, {3 * K1_STG}",
                  f"s_cselect_b32 s{sDS}, 0, s{sDS}",
                  f"s_add_u32 s{sDB}, s{sDS}, s{sMW}"]
        return g

    def dma_slab():
        for g in dma_groups():
            for x in g:
                e(x)

    dma_slab()
    dma_slab()
    dma_slab()
    S_OWN, S_OTH = 20, 24
    c("partial sums source + L2 prefetch: W rows (mt%8)*64.. ; own part = mt/8 (summed), other part prefetch only")
    e(f"s_cmp_ge_u32 s{sMT}, 8")
    for i in range(4):
        e(f"s_cselect_b32 s{S_OWN + i}, s{S_WU + i}, s{S_WG + i}")
        e(f"s_cselect_b32 s{S_OTH + i}, s{S_WG + i}, s{S_WU + i}")
    e(f"s_and_b32 s{sT0}, s{sMT}, 7")
    e(f"s_mul_i32 s{sT0}, s{sT0}, {64 * 2752}")
    e(f"s_lshl_b32 s{sT1}, s{sNT}, 8")
    e(f"s_add_u32 s{sT0}, s{sT0}, s{sT1}")
    e(f"s_lshl_b32 s{sT1}, s{sW}, 5")
    e(f"s_add_u32 s18, s{sT1}, s{sT0}")
    e(f"s_add_u32 s19, s18, {32 * 2752}")
    e("v_lshrrev_b32 v12, 1, v1")
    e("v_mul_u32_u24 v12, 2752, v12")
    e("v_and_b32 v13, 1, v1")
    e("v_lshl_add_u32 v76, v13, 4, v12")
    e(f"s_mul_i32 s{sT1}, s{sW}, {8 * 2752}")
    e(f"s_add_u32 s28, s{sT1}, s{sT0}")
    e("v_lshrrev_b32 v12, 4, v1")
    e(f"v_mul_u32_u24 v12, {2 * 2752}, v12")
    e("v_and_b32 v13, 15, v1")
    e("v_lshl_add_u32 v77, v13, 4, v12")
    c("x rows 16w + l/4, bytes (nt&7)*128 + (l%4)*32 + {0,16}")
    e(f"s_and_b32 s{sT1}, s{sNT}, 7")
    e(f"s_lshl_b32 s{sT1}, s{sT1}, 7")
    e(f"s_add_u32 s{sT1}, s{sT1}, s{sROW}")
    e(f"s_sub_u32 s29, s{sT1}, 384")
    e("v_lshrrev_b32 v12, 2, v1")
    e("v_and_b32 v13, 3, v1")
    e("v_lshlrev_b32 v13, 5, v13")
    e("v_lshl_add_u32 v78, v12, 10, v13")
    PFL = [f"buffer_load_dwordx4 v[48:51], v76, {sr(S_OWN, 4)}, s18 offen",
           f"buffer_load_dwordx4 v[52:55], v76, {sr(S_OWN, 4)}, s19 offen",
           f"buffer_load_dwordx4 v[64:67], v78, {sr(S_X, 4)}, s29 offen",
           f"buffer_load_dwordx4 v[68:71], v78, {sr(S_X, 4)}, s29 offen offset:16",
           f"buffer_load_dwordx4 v[56:59], v77, {sr(S_OTH, 4)}, s28 offen",
           f"buffer_load_dwordx4 v[60:63], v77, {sr(S_OTH, 4)}, s28 offen offset:2752"]
    c("partial store addresses")
    vPC, vPS = 72, 73
    e(f"s_lshl_b32 s{sT0}, s{sNT}, 1")
    e(f"s_lshr_b32 s{sT1}, s{sMT}, 3")
    e(f"s_add_u32 s{sT0}, s{sT0}, s{sT1}")
    e(f"s_lshl_b32 s{sT0}, s{sT0}, 3")
    e(f"s_and_b32 s{sT1}, s{sMT}, 7")
    e(f"s_add_u32 s{sT0}, s{sT0}, s{sT1}")
    e(f"s_lshl_b32 s{sT0}, s{sT0}, 10")
    e(f"s_lshl_b32 s{sT1}, s{sW}, 7")
    e(f"s_add_u32 s{sT0}, s{sT0}, s{sT1}")
    e(f"s_add_u32 s{sT0}, s{sT0}, {WS_CS}")
    e("v_and_b32 v12, 1, v1")
    e(f"v_lshl_add_u32 v{vPC}, v12, 5, s{sT0}")
    e("v_lshrrev_b32 v12, 1, v1")
    e("v_and_b32 v13, 1, v12")
    e(f"v_lshl_add_u32 v{vPC}, v13, 4, v{vPC}")
    e("v_lshrrev_b32 v12, 1, v12")
    e(f"v_lshl_add_u32 v{vPC}, v12, 6, v{vPC}")
    e(f"s_lshl_b32 s{sT0}, s{sMT}, 4")
    e(f"s_add_u32 s{sT0}, s{sT0}, s{sNT}")
    e(f"s_lshl_b32 s{sT0}, s{sT0}, 10")
    e(f"s_lshl_b32 s{sT1}, s{sW}, 7")
    e(f"s_add_u32 s{sT0}, s{sT0}, s{sT1}")
    e(f"s_add_u32 s{sT0}, s{sT0}, {WS_SP}")
    e("v_lshrrev_b32 v12, 2, v1")
    e(f"v_lshl_add_u32 v{vPS}, v12, 3, s{sT0}")
    e("s_mov_b32 s74, 0x3f80")
    e("s_mov_b32 s75, 0x3f800000")
    e("s_mov_b32 s76, 0x3f803f80")
    e(f"s_cmp_eq_u32 s{sW}, 4")
    e("s_cselect_b32 s77, 1, 0")
    e(f"s_cmp_eq_u32 s{sW}, 0")
    e("s_cselect_b32 s78, 3, 99")
    e("s_cselect_b32 s5, 4, 99")
    e("s_lshl_b32 s83, s2, 8")
    e(f"s_add_u32 s83, s83, {WS_MB + 128}")
    for r in range(12):
        e(f"v_mov_b32 v{24 + r}, 0")
    c("A frag read address: 32768 + r*128 + ((2kk+g) ^ (r&7))*16 ; r = (w%4)*32 + l%32 ; kk via xor kk<<5")
    e(f"s_and_b32 s{sT0}, s{sW}, 3")
    e(f"s_lshl_b32 s{sT0}, s{sT0}, 5")
    e("v_and_b32 v2, 31, v1")
    e(f"v_add_u32 v6, s{sT0}, v2")
    if ASW:
        e("v_lshrrev_b32 v7, 1, v2")
        e("v_and_b32 v7, 7, v7")
    else:
        e("v_and_b32 v7, 7, v2")
    e("v_lshrrev_b32 v8, 5, v1")
    e("v_xor_b32 v7, v7, v8")
    e("v_lshlrev_b32 v7, 4, v7")
    e("v_lshl_add_u32 v7, v6, 7, v7")
    e(f"v_add_u32 v{vA0}, 32768, v7")
    c("partial row stats address: WS_SP + mt*16384 + r*8 (+ slot*1024)")
    e(f"s_lshl_b32 s{sT1}, s{sMT}, 14")
    e(f"s_add_u32 s{sT1}, s{sT1}, {WS_SP}")
    e(f"v_lshl_add_u32 v{vST}, v6, 3, s{sT1}")
    c("h store offset: (mt*128 + (w%4)*32 + l/8)*HP + nt*256 + nh*128 + (l%8)*16")
    e(f"s_lshl_b32 s{sT1}, s{sMT}, 7")
    e(f"s_add_u32 s{sT1}, s{sT1}, s{sT0}")
    e("v_lshrrev_b32 v6, 3, v1")
    e(f"v_add_u32 v6, s{sT1}, v6")
    e(f"v_mov_b32 v7, {HP}")
    e("v_mul_lo_u32 v6, v6, v7")
    e(f"s_lshr_b32 s{sT0}, s{sW}, 2")
    e(f"s_lshl_b32 s{sT0}, s{sT0}, 7")
    e(f"s_lshl_b32 s{sT1}, s{sNT}, 8")
    e(f"s_add_u32 s{sT0}, s{sT0}, s{sT1}")
    e(f"v_add_u32 v6, s{sT0}, v6")
    e("v_and_b32 v9, 7, v1")
    e(f"v_lshl_add_u32 v{vHoff}, v9, 4, v6")
    if PLH >= 0:
        c("pre-touch address of the own h tile: row l/2, 64 B half l%2")
        e(f"v_readfirstlane_b32 s{sT1}, v{vHoff}")
        e("v_lshrrev_b32 v36, 1, v1")
        e(f"v_mul_u32_u24 v36, {HP}, v36")
        e("v_and_b32 v37, 1, v1")
        e("v_lshl_add_u32 v36, v37, 6, v36")
        e(f"v_add_u32 v36, s{sT1}, v36")
    if PLO >= 0:
        out_pre_addr(sW, 37, 84)
    c("partial cs address: WS_CS + (nt*2 + g)*8192 + nh*512 + ((l%32)/8)*128 + (l%8)*8 (+ j*1024)")
    e(f"s_lshr_b32 s{sT0}, s{sW}, 2")
    e(f"s_lshl_b32 s{sT0}, s{sT0}, 9")
    e(f"s_lshl_b32 s{sT1}, s{sNT}, 14")
    e(f"s_add_u32 s{sT0}, s{sT0}, s{sT1}")
    e(f"s_add_u32 s{sT0}, s{sT0}, {WS_CS}")
    e(f"v_lshl_add_u32 v{vCS}, v8, 13, s{sT0}")
    e(f"v_lshl_add_u32 v{vCS}, v9, 3, v{vCS}")
    e("v_lshrrev_b32 v7, 3, v2")
    e(f"v_lshl_add_u32 v{vCS}, v7, 7, v{vCS}")
    c("B tr-read lane addresses for tiles T0=2nh, T1=2nh+1")
    e("v_and_b32 v2, 15, v1")
    e("v_lshrrev_b32 v6, 2, v2")
    e("v_lshrrev_b32 v7, 5, v1")
    e("v_lshl_add_u32 v7, v7, 3, v6")
    e("v_lshlrev_b32 v7, 8, v7")
    e("v_lshrrev_b32 v8, 4, v1")
    e("v_and_b32 v8, 1, v8")
    e("v_lshlrev_b32 v8, 5, v8")
    e("v_add_u32 v7, v7, v8")
    e("v_and_b32 v8, 3, v2")
    e("v_lshlrev_b32 v8, 3, v8")
    e("v_add_u32 v7, v7, v8")
    e(f"s_lshr_b32 s{sT0}, s{sW}, 2")
    e(f"s_lshl_b32 s{sT0}, s{sT0}, 1")
    e(f"v_xor_b32 v8, s{sT0}, v6")
    e(f"v_lshl_add_u32 v{vB0}, v8, 6, v7")
    e("v_xor_b32 v8, 1, v8")
    e(f"v_lshl_add_u32 v{vB1}, v8, 6, v7")
    e(f"s_mov_b32 s{sSB}, 0")
    if os.environ.get('BLIN'):
        e(f"v_lshlrev_b32 v{vB0}, 3, v1")
        e(f"v_add_u32 v{vB1}, 512, v{vB0}")
    if os.environ.get('ALIN'):
        e(f"v_lshlrev_b32 v{vA0}, 4, v1")
        e(f"v_add_u32 v{vA0}, 32768, v{vA0}")

    vAD = 112
    for t in range(3):
        e(f"v_add_u32 v{vAD + 6 * t}, {K1_STG * t}, v{vB0}")
        e(f"v_add_u32 v{vAD + 6 * t + 1}, {K1_STG * t}, v{vB1}")
        e(f"v_add_u32 v{vAD + 6 * t + 2}, {K1_STG * t}, v{vA0}")
        for kk in range(1, 4):
            e(f"v_xor_b32 v{vAD + 6 * t + 2 + kk}, {32 * kk}, v{vAD + 6 * t + 2}")

    def rlist(s, kk):
        st = kk & 1
        ad = vAD + 6 * (s % 3)
        r = [f"ds_read_b128 {vr(AF + 4 * st, 4)}, v{ad + 2 + kk}"]
        for ti in range(4):
            part, T = ti >> 1, ti & 1
            for u in range(2):
                off = part * 16384 + (16 * kk + 4 * u) * 256
                r.append(f"ds_read_b64_tr_b16 {vr(BF + 16 * st + 4 * ti + 2 * u, 2)}, v{ad + T} offset:{off}")
        return r

    def side_first():
        s = []
        PA, PT = 24, 32
        for row in range(2):
            for d in range(4):
                x = 48 + 4 * row + d
                s += [f"v_dot2c_f32_bf16 v{PA + 2 * d}, s74, v{x}", f"v_dot2c_f32_bf16 v{PA + 2 * d + 1}, s75, v{x}"]
        for i in range(8):
            s += [f"v_dot2c_f32_bf16 v{PT + (i & 1)}, s76, v{64 + i}",
                  f"v_dot2c_f32_bf16 v{PT + 2 + (i & 1)}, v{64 + i}, v{64 + i}"]
        s += ["s_nop 3"]
        for sh in (2, 4, 8):
            for r in range(8):
                s.append(f"v_add_f32_dpp v{PA + r}, v{PA + r}, v{PA + r} row_ror:{sh} row_mask:0xf bank_mask:0xf")
        s += [f"v_add_f32 v{PT}, v{PT}, v{PT + 1}", f"v_add_f32 v{PT + 1}, v{PT + 2}, v{PT + 3}"]
        for sw in ("v_permlane16_swap_b32", "v_permlane32_swap_b32"):
            for r in range(8):
                s.append(f"v_mov_b32 v{4 + r}, v{PA + r}")
            for r in range(8):
                s.append(f"{sw} v{4 + r}, v{PA + r}")
            qp = "[1,0,3,2]" if "16" in sw else "[2,3,0,1]"
            s += [f"v_add_f32_dpp v{PT}, v{PT}, v{PT} quad_perm:{qp} row_mask:0xf bank_mask:0xf",
                  f"v_add_f32_dpp v{PT + 1}, v{PT + 1}, v{PT + 1} quad_perm:{qp} row_mask:0xf bank_mask:0xf"]
            for r in range(8):
                s.append(f"v_add_f32 v{PA + r}, v{4 + r}, v{PA + r}")
        s += [("v_and_b32 v4, 3, v1", "v_cmp_eq_u32 vcc, 0, v4", "s_and_saveexec_b64 s[70:71], vcc",
               f"buffer_store_dwordx2 {vr(PT, 2)}, v{vPS}, {sr(S_WS, 4)}, 0 offen sc1",
               "s_mov_b64 exec, s[70:71]", "v_and_b32 v4, 2, v1", "v_cmp_ne_u32 vcc, 0, v4",
               f"v_cndmask_b32 v{PA}, v{PA}, v{PA + 4}, vcc", f"v_cndmask_b32 v{PA + 1}, v{PA + 1}, v{PA + 5}, vcc",
               f"v_cndmask_b32 v{PA + 2}, v{PA + 2}, v{PA + 6}, vcc", f"v_cndmask_b32 v{PA + 3}, v{PA + 3}, v{PA + 7}, vcc",
               "v_cmp_gt_u32 vcc, 8, v1", "s_and_b64 exec, s[70:71], vcc",
               f"buffer_store_dwordx4 {vr(PA, 4)}, v{vPC}, {sr(S_WS, 4)}, 0 offen sc1",
               "s_mov_b64 exec, s[70:71]",
               "s_cmp_eq_u32 s77, 0", "s_cbranch_scc1 k1_nozl",
               f"s_mov_b32 s{S_DB2}, s{P_DBG}", f"s_and_b32 s{S_DB2 + 1}, s{P_DBG + 1}, 0xffff",
               f"s_mov_b32 s{S_DB2 + 2}, 256", f"s_mov_b32 s{S_DB2 + 3}, 0x00020000",
               f"v_mov_b32 v15, {ZOFF}",
               f"buffer_load_dword v74, v15, {sr(S_DB2, 4)}, 0 offen sc1",
               "k1_nozl:")]
        return s

    def stats_math(SX, SQ, T):
        return [f"v_mul_f32 v{T}, 0x3b000000, v{SX}",
                f"v_mul_f32 v{T + 2}, 0x3b000000, v{SQ}",
                f"v_fma_f32 v{T + 2}, -v{T}, v{T}, v{T + 2}",
                f"v_max_f32 v{T + 2}, 0, v{T + 2}",
                f"v_cvt_pk_bf16_f32 v{T + 1}, v{T}, v{T + 2}",
                f"v_lshlrev_b32 v{T + 4}, 16, v{T + 1}",
                f"v_and_b32 v{T + 2}, 0xffff0000, v{T + 1}",
                f"v_add_f32 v{T + 2}, 0x3727c5ac, v{T + 2}",
                f"v_cvt_pk_bf16_f32 v{T + 2}, v{T + 2}, v{T + 2}",
                f"v_and_b32 v{T + 2}, 0xffff0000, v{T + 2}",
                f"v_sqrt_f32 v{T + 2}, v{T + 2}",
                "s_nop 0",
                f"v_cvt_pk_bf16_f32 v{T + 2}, v{T + 2}, v{T + 2}",
                f"v_and_b32 v{T + 2}, 0xffff0000, v{T + 2}",
                f"v_rcp_f32 v250, v{T + 2}",
                "s_nop 0",
                f"v_mul_f32 v251, v{T + 4}, v250",
                "v_sub_f32 v251, 0, v251"]

    VM = ["s0"] * 6 + ["s1"] * 6 + ["s2"] * 6

    def emit(x, tag=None):
        e(x)
        if x.startswith("buffer_") and tag:
            VM.append(tag)

    def nwait(*tags):
        last = max(i for i, t in enumerate(VM) if t in tags)
        return len(VM) - 1 - last

    S_SIDE, S_SIG, S_MBR, S_CHK, S_PL = 1, 2, 5, 5, 6

    def body(s):
        last = s == 7
        dg = dma_groups() if 1 <= s <= 5 else []
        dtag = f"s{s + 2}"
        side = side_first() if s == S_SIDE else []
        nside = (len(side) + 7) // 8
        ex = []
        if s == 0:
            ex = [[x] for x in PFL]
        if s == S_PL:
            for j in range(8):
                ex.append([f"s_mov_b32 s{sT0}, {1024 * j}",
                           f"buffer_load_dwordx2 {vr(48 + 2 * j, 2)}, v{vCS}, {sr(S_WS, 4)}, s{sT0} offen"])
                ex.append([f"buffer_load_dwordx2 {vr(64 + 2 * j, 2)}, v{vST}, {sr(S_WS, 4)}, s{sT0} offen"])
        eb = []
        if s >= 6:
            for i in range(3 * (s - 6), 3 * (s - 6) + 3):
                eb += g2_early(i)
        for kk in range(4):
            st = kk & 1
            rl = rlist(s, kk + 1) if kk < 3 else (rlist(s + 1, 0) if not last else [])
            issued = 0
            for m in range(4):
                if not (kk == 3 and m > 0):
                    e(f"s_waitcnt lgkmcnt({9 - (3 + 2 * m) + issued})")
                cc = "0" if (s == 0 and kk == 0) else vr(ACC + 16 * m, 16)
                e(f"v_mfma_f32_32x32x16_bf16 {vr(ACC + 16 * m, 16)}, {vr(BF + 16 * st + 4 * m, 4)}, "
                  f"{vr(AF + 4 * st, 4)}, {cc}")
                if kk == 3 and m == 0 and not last:
                    tags = [f"s{s + 1}"] + (["pst"] if s == S_SIG else []) + (["mbr"] if s == S_CHK else [])
                    e(f"s_waitcnt vmcnt({nwait(*tags)}) lgkmcnt(0)")
                    if s == S_CHK:
                        c("wave 0: all 24 partial producers have signalled? (else poll)")
                        e(f"s_cmp_eq_u32 s{sW}, 0")
                        e("s_cbranch_scc1 k1_chk")
                        with ool("k1_chk"):
                            pollmask(83, 0xffffff, S_WS, first=75)
                    e("s_barrier")
                    if s == 4:
                        stamp(2)
                    if s == S_SIG:
                        c("wave 4: everybody's partial stores are complete -> signal the consumers")
                        e(f"s_cmp_eq_u32 s{sW}, 4")
                        e("s_cbranch_scc1 k1_psig")
                        with ool("k1_psig"):
                            psig()
                for _ in range(3):
                    if rl:
                        e(rl.pop(0))
                        issued += 1
                if dg and kk < 3 and m >= 2:
                    for x in dg.pop(0):
                        emit(x, dtag)
                if ex:
                    for _ in range(2 if s == S_PL else 1):
                        if ex:
                            for x in ex.pop(0):
                                emit(x, "pf" if s == 0 else "pl")
                if eb and not ex and (kk < 3 or s == 6):
                    for x in eb.pop(0):
                        emit(x, "eb")
                if s == 4 and kk == 1 and m == 0:
                    g2_setup(sW, 6)
                if s == PLH and kk == 0 and m == 1:
                    emit(f"buffer_load_dword v38, v36, {sr(S_WS, 4)}, 0 offen", "plh")
                if s == PLO and kk == 1 and m == 1:
                    make_srd(84, P_OUT, 2048 * 1024)
                    emit(f"buffer_load_dword v38, v37, {sr(84, 4)}, 0 offen", "plo")
                if s == S_MBR and kk == 0 and m == 0:
                    c("every wave issues it (uniform counting), only wave 0 uses it")
                    e("v_and_b32 v15, 31, v1")
                    e("v_lshlrev_b32 v15, 2, v15")
                    e(f"s_cmp_eq_u32 s{sW}, 0")
                    e("s_cselect_b64 exec, -1, 0")
                    emit(f"buffer_load_dword v75, v15, {sr(S_WS, 4)}, s83 offen sc1", "mbr")
                    e("s_mov_b64 exec, -1")
                if side and kk in (1, 2):
                    if kk == 1 and m == 0:
                        e(f"s_waitcnt vmcnt({nwait('pf') + 2})")
                    for _ in range(nside):
                        if side:
                            x = side.pop(0)
                            for y in (x if isinstance(x, tuple) else (x,)):
                                emit(y, "pst" if "store" in y else None)
                if last and kk == 3:
                    if m == 0:
                        e(f"s_waitcnt vmcnt({nwait('pl')})")
                        for j in range(1, 8):
                            e(f"v_add_f32 v48, v48, v{48 + 2 * j}")
                            e(f"v_add_f32 v49, v49, v{49 + 2 * j}")
                            e(f"v_add_f32 v64, v64, v{64 + 2 * j}")
                            e(f"v_add_f32 v65, v65, v{65 + 2 * j}")
                        e(f"s_lshl_b32 s{sT0}, s{sW}, 9")
                        e(f"s_add_u32 s{sT0}, s{sT0}, {K1_EX}")
                        e(f"v_lshl_add_u32 v4, v1, 3, s{sT0}")
                        e("ds_write_b64 v4, v[48:49]")
                        e("v_lshrrev_b32 v4, 5, v1")
                        e(f"v_lshl_add_u32 v4, v4, 4, s{sT0}")
                        e("s_waitcnt lgkmcnt(0)")
                    elif m == 1:
                        for ti in range(4):
                            part, T = ti >> 1, ti & 1
                            for q in range(4):
                                e(f"ds_read_b128 {vr(CSR + 16 * ti + 4 * q, 4)}, v4 offset:{256 * part + 128 * T + 32 * q}")
                    elif m == 2:
                        for x in stats_math(64, 65, 8):
                            e(x)
        assert not dg and not side and not ex and not eb

    def psig():
        e(f"v_readfirstlane_b32 s{sZ}, v74")
        e("s_nop 3")
        zcheck()
        c("lanes 0-15: (mt'=l, nt) ; lanes 16-26: (mt, nt'=l-16) if nt < 8")
        e("v_cmp_gt_u32 vcc, 16, v1")
        e(f"v_mov_b32 v12, s{sMT}")
        e(f"v_mov_b32 v13, s{sNT}")
        e("v_subrev_u32 v14, 16, v1")
        e("v_cndmask_b32 v12, v12, v1, vcc")
        e("v_cndmask_b32 v13, v14, v13, vcc")
        e("v_lshrrev_b32 v14, 3, v12")
        e("v_mul_u32_u24 v14, 88, v14")
        e("v_lshl_add_u32 v14, v13, 3, v14")
        e("v_and_b32 v12, 7, v12")
        e("v_add_u32 v14, v14, v12")
        e("v_mul_u32_u24 v12, 2979, v14")
        e("v_lshrrev_b32 v12, 16, v12")
        e("v_mul_u32_u24 v13, 22, v12")
        e("v_sub_u32 v13, v14, v13")
        e("v_lshl_add_u32 v12, v13, 3, v12")
        e("v_lshlrev_b32 v12, 8, v12")
        e(f"s_lshl_b32 s79, s{sMT}, 2")
        e(f"s_add_u32 s79, s79, {WS_MB + 64 * 256 + 4 * MB_CS}")
        e(f"s_lshl_b32 s80, s{sNT}, 2")
        e(f"s_add_u32 s80, s80, {WS_MB + 64 * 256 + 4 * MB_ST}")
        e("v_mov_b32 v13, s80")
        e("v_mov_b32 v14, s79")
        e("v_cndmask_b32 v13, v13, v14, vcc")
        e("v_add_u32 v12, v12, v13")
        e("v_mov_b32 v13, 1")
        e(f"s_cmp_lt_u32 s{sNT}, 8")
        e("s_cselect_b32 s79, 27, 16")
        e("v_cmp_gt_u32 vcc, s79, v1")
        e("s_and_saveexec_b64 s[70:71], vcc")
        e(f"buffer_store_dword v13, v12, {sr(S_WS, 4)}, 0 offen sc1")
        e("s_mov_b64 exec, s[70:71]")

    e("s_waitcnt vmcnt(12)")
    e("s_barrier")
    stamp(1)
    for x in rlist(0, 0):
        e(x)
    for s in range(8):
        body(s)
    stamp(3)
    e("v_and_b32 v2, 31, v1")
    e("v_lshrrev_b32 v3, 5, v1")
    if PREF2:
        c("prefetch a slice of w_down (1 KB per wave) towards MALL for k2")
        e("s_sub_u32 s3, s2, %d" % K1_NCONV)
        e("s_lshl_b32 s3, s3, 3")
        e(f"s_add_u32 s3, s3, s{sW}")
        e("s_lshl_b32 s3, s3, 10")
        make_srd(S_X, P_WD, 1376 * 1024)
        e("v_lshlrev_b32 v6, 4, v1")
        e(f"buffer_load_dwordx4 v[224:227], v6, {sr(S_X, 4)}, s3 offen")
    RS, NM = 246, 248
    c("epilogue: h = bf16(bf16(g)*bf16(u)); transpose via wave-private LDS (4 KB at 49152 + w*4096)")
    e("s_barrier")
    e(f"s_lshl_b32 s{sT0}, s{sW}, 12")
    e(f"s_add_u32 s{sT0}, s{sT0}, 49152")
    e("v_and_b32 v4, 7, v2")
    e("v_xor_b32 v4, v4, v3")
    e("v_lshlrev_b32 v4, 4, v4")
    e("v_lshl_add_u32 v4, v2, 7, v4")
    e(f"v_add_u32 v4, s{sT0}, v4")
    e("v_lshrrev_b32 v5, 3, v1")
    e("v_and_b32 v6, 7, v1")
    e("v_xor_b32 v6, v6, v5")
    e("v_lshlrev_b32 v6, 4, v6")
    e("v_lshl_add_u32 v6, v5, 7, v6")
    e(f"v_add_u32 v6, s{sT0}, v6")
    e(f"v_mov_b32 v{RS}, v250")
    e(f"v_mov_b32 v{RS + 1}, v250")
    e(f"v_mov_b32 v{NM}, v251")
    e(f"v_mov_b32 v{NM + 1}, v251")
    c("row stats store (nt == 0, waves 0-3, lanes 0-31)")
    e(f"s_lshr_b32 s{sT0}, s{sW}, 2")
    e(f"s_or_b32 s{sT0}, s{sT0}, s{sNT}")
    e(f"s_cmp_lg_u32 s{sT0}, 0")
    e("s_cbranch_scc1 k1_nostat")
    e(f"s_lshl_b32 s{sT0}, s{sMT}, 7")
    e(f"s_lshl_b32 s{sT1}, s{sW}, 5")
    e(f"s_add_u32 s{sT0}, s{sT0}, s{sT1}")
    e(f"s_lshl_b32 s{sT0}, s{sT0}, 3")
    e(f"s_add_u32 s{sT0}, s{sT0}, {WS_ST}")
    e("v_lshlrev_b32 v15, 3, v2")
    e("v_cmp_eq_u32 vcc, 0, v3")
    e("s_and_saveexec_b64 s[70:71], vcc")
    e(f"buffer_store_dwordx2 v[250:251], v15, {sr(S_WS, 4)}, s{sT0} offen{STC}")
    e("s_mov_b64 exec, s[70:71]")
    e("k1_nostat:")
    e("s_waitcnt lgkmcnt(0)")
    for r in range(0, 64, 2):
        e(f"v_pk_mul_f32 {vr(CSR + r, 2)}, {vr(CSR + r, 2)}, {vr(NM, 2)}")
    for r in range(0, 64, 2):
        e(f"v_pk_fma_f32 {vr(ACC + r, 2)}, {vr(ACC + r, 2)}, {vr(RS, 2)}, {vr(CSR + r, 2)}")
    for T in range(2):
        G, U = ACC + 16 * T, ACC + 32 + 16 * T
        for qq in range(2):
            o = 16 + 4 * (2 * T + qq)
            for h2 in range(4):
                r = 8 * qq + 2 * h2
                e(f"v_cvt_pk_bf16_f32 v8, v{G + r}, v{G + r + 1}")
                e(f"v_cvt_pk_bf16_f32 v9, v{U + r}, v{U + r + 1}")
                e("v_lshlrev_b32 v10, 16, v8")
                e("v_and_b32 v11, 0xffff0000, v8")
                e("v_lshlrev_b32 v12, 16, v9")
                e("v_and_b32 v13, 0xffff0000, v9")
                e("v_mul_f32 v10, v10, v12")
                e("v_mul_f32 v11, v11, v13")
                e(f"v_cvt_pk_bf16_f32 v{o + h2}, v10, v11")
            e("s_nop 1")
            e(f"v_permlane32_swap_b32 v{o}, v{o + 2}")
            e(f"v_permlane32_swap_b32 v{o + 1}, v{o + 3}")
            e(f"v_xor_b32 v7, {(4 * T + 2 * qq) << 4}, v4")
            e(f"ds_write_b128 v7, {vr(o, 4)}")
    e("s_waitcnt lgkmcnt(0)")
    for j in range(4):
        e(f"ds_read_b128 {vr(32 + 4 * j, 4)}, v6 offset:{1024 * j}")
    for j in range(4):
        e(f"s_waitcnt lgkmcnt({3 - j})")
        e(f"s_mov_b32 s{sT0}, {8 * j * HP}")
        e(f"buffer_store_dwordx4 {vr(32 + 4 * j, 4)}, v{vHoff}, {sr(S_WS, 4)}, s{sT0} offen{STC}")
    stamp(4)
    e("s_waitcnt vmcnt(0)")
    e("s_barrier")
    stamp(5)
    e(f"s_mov_b32 s{sZ}, 1")
    signal(sW, S_WS, "h", sMT, sNT)
    e("s_branch g2_entry")
    flush_ool()


def k1_aux():
    sW = 62
    e("k1_aux:")
    e("v_lshrrev_b32 v2, 6, v0")
    e("v_and_b32 v1, 63, v0")
    e(f"v_readfirstlane_b32 s{sW}, v2")
    e("s_waitcnt lgkmcnt(0)")
    stamp(0)
    e(f"s_mov_b32 s{sZ}, 0")
    g2_setup(sW, 0)
    if PLO >= 0:
        out_pre_addr(sW, 206, 84)
        make_srd(84, P_OUT, 2048 * 1024)
        e(f"buffer_load_dword v207, v206, {sr(84, 4)}, 0 offen")
    c("WG 240: zero all mailboxes (64 KB), then set the flag in d_debug")
    make_srd(48, P_WS, 0x1000000)
    make_srd(S_DB2, P_DBG, 256)
    e("s_cmp_lg_u32 s2, 240")
    e("s_cbranch_scc1 aux_nz")
    e(f"s_lshl_b32 s3, s{sW}, 13")
    e(f"s_add_u32 s3, s3, {WS_MB}")
    e("v_lshlrev_b32 v3, 4, v1")
    for r in range(4):
        e(f"v_mov_b32 v{4 + r}, 0")
    for j in range(8):
        e("buffer_store_dwordx4 v[4:7], v3, s[48:51], s3 offen sc1")
        e("s_add_u32 s3, s3, 1024")
    e("s_waitcnt vmcnt(0)")
    e("s_barrier")
    stamp(1)
    e(f"s_cmp_lg_u32 s{sW}, 0")
    e("s_cbranch_scc1 aux_nz")
    e("v_mov_b32 v14, 1")
    e(f"v_mov_b32 v15, {ZOFF}")
    e("v_cmp_eq_u32 vcc, 0, v1")
    e("s_and_saveexec_b64 s[70:71], vcc")
    e(f"buffer_store_dword v14, v15, {sr(S_DB2, 4)}, 0 offen sc1")
    e("s_mov_b64 exec, s[70:71]")
    e("aux_nz:")
    if PREF3 == 0:
        e("s_branch g2_entry")
        return
    if PREF3 == 2:
        e(f"s_cmp_lt_u32 s{sW}, 5")
        e("s_cbranch_scc1 g2_entry")
    c("pull half of w_down into this XCD's L2 (86 KB per wave)")
    make_srd(44, P_WD, 1376 * 1024)
    e("s_sub_u32 s3, s2, 240")
    e("s_lshr_b32 s3, s3, 3")
    e("s_lshl_b32 s3, s3, 3")
    e(f"s_add_u32 s3, s3, s{sW}")
    e("s_mul_i32 s3, s3, 88064")
    e("v_lshlrev_b32 v3, 4, v1")
    for j in range(86):
        e(f"buffer_load_dwordx4 {vr(16 + 4 * (j % 8), 4)}, v3, s[44:47], s3 offen")
        e("s_add_u32 s3, s3, 1024")
        if j >= 32:
            e("s_waitcnt vmcnt(32)")
        if j == 41:
            stamp(2)
    e("s_waitcnt vmcnt(0)")
    stamp(5)
    e("s_branch g2_entry")


CV_R = 0
CV_RSTR = 4608
CV_KT = 0
CV_KSTR = 8320
CV_KCPY = 4160
CV_T = 98304
CV_TP = 528


def k1_conv():
    S_K, S_V, S_SK, S_WS, S_SH, S_DBG = 44, 48, 52, 56, 72, 76
    sW, sT0, sT1, sD, sG, sJ, sCG, sRB = 62, 63, 64, 65, 66, 67, 68, 69
    e("k1_conv:")
    e("v_lshrrev_b32 v2, 6, v0")
    e("v_and_b32 v1, 63, v0")
    e(f"v_readfirstlane_b32 s{sW}, v2")
    e("s_waitcnt lgkmcnt(0)")
    stamp(0)
    for _ in range(CSLEEP):
        e("s_sleep 16")
    make_srd(S_K, P_K, 2048 * 1024)
    make_srd(S_V, P_V, 2048 * 1024)
    make_srd(S_SK, P_SK, 512 * 4096)
    make_srd(S_WS, P_WS, 0x1000000)
    make_srd(S_SH, P_SH, 4096)
    make_srd(S_DBG, P_DBG, 256)
    c("G = id%8 (64-channel group, one XCD), J = id/8 (256-row block / channel sub-group), cg = 8G + J")
    e(f"s_and_b32 s{sG}, s2, 7")
    e(f"s_lshr_b32 s{sJ}, s2, 3")
    e(f"s_lshl_b32 s{sCG}, s{sG}, 3")
    e(f"s_add_u32 s{sCG}, s{sCG}, s{sJ}")
    e(f"s_mul_i32 s{sRB}, s{sW}, {CV_RSTR}")
    e(f"s_cmp_ge_u32 s{sW}, 6")
    e(f"s_mov_b32 s{sT0}, 66560")
    e(f"s_cselect_b32 s{sT0}, {147456 - 6 * CV_RSTR}, s{sT0}")
    e(f"s_add_u32 s{sRB}, s{sRB}, s{sT0}")
    c("---- kv phase: rows J*256 + 4*rg.., channels G*64 + cs*8..")
    e("v_lshrrev_b32 v2, 3, v0")
    e("v_and_b32 v3, 7, v0")
    e(f"s_lshl_b32 s{sT0}, s{sJ}, 18")
    e(f"s_lshl_b32 s{sT1}, s{sG}, 7")
    e(f"s_add_u32 s{sT0}, s{sT0}, s{sT1}")
    e("v_lshlrev_b32 v4, 12, v2")
    e("v_lshl_add_u32 v4, v3, 4, v4")
    e(f"v_add_u32 v4, s{sT0}, v4")
    e("v_subrev_u32 v5, 3072, v4")
    KD, VD, WD = 16, 44, 60
    for r in range(3):
        e(f"buffer_load_dwordx4 {vr(KD + 4 * r, 4)}, v5, {sr(S_K, 4)}, 0 offen offset:{1024 * r}")
    for r in range(4):
        e(f"buffer_load_dwordx4 {vr(KD + 12 + 4 * r, 4)}, v4, {sr(S_K, 4)}, 0 offen offset:{1024 * r}")
    for r in range(4):
        e(f"buffer_load_dwordx4 {vr(VD + 4 * r, 4)}, v4, {sr(S_V, 4)}, 0 offen offset:{1024 * r}")
    e(f"s_lshl_b32 s{sT1}, s{sG}, 9")
    e("v_lshlrev_b32 v6, 6, v3")
    e(f"v_add_u32 v6, s{sT1}, v6")
    for j in range(4):
        e(f"buffer_load_dwordx4 {vr(WD + 4 * j, 4)}, v6, {sr(S_SH, 4)}, 0 offen offset:{16 * j}")
    c("ssm_D for this wave's channel")
    e(f"s_lshl_b32 s{sT0}, s{sCG}, 4")
    e(f"s_lshl_b32 s{sT1}, s{sW}, 1")
    e(f"s_add_u32 s{sT0}, s{sT0}, s{sT1}")
    e(f"s_and_b32 s{sT1}, s{sT0}, 0xfffffffc")
    e(f"s_add_u32 s{P_SD}, s{P_SD}, s{sT1}")
    e(f"s_addc_u32 s{P_SD + 1}, s{P_SD + 1}, 0")
    e(f"s_load_dword s{sD}, {sr(P_SD, 2)}, 0")
    c("ssm_k row of this wave's channel")
    SKD = 232
    e(f"s_lshl_b32 s{sT0}, s{sCG}, 3")
    e(f"s_add_u32 s{sT0}, s{sT0}, s{sW}")
    e(f"s_lshl_b32 s{sT0}, s{sT0}, 12")
    e("v_lshlrev_b32 v8, 4, v1")
    e(f"v_add_u32 v8, s{sT0}, v8")
    for j in range(4):
        e(f"buffer_load_dwordx4 {vr(SKD + 4 * j, 4)}, v8, {sr(S_SK, 4)}, 0 offen offset:{1024 * j}")
    for j in range(4):
        e(f"buffer_load_dword v{SKD + 16 + j}, v8, {sr(S_SK, 4)}, 0 offen offset:{1024 * j + 16}")
    c("kv LDS transpose position: T + (cs*8 + cc)*528 + 504 - 8 rg")
    e(f"v_mul_u32_u24 v7, {8 * CV_TP}, v3")
    e("v_lshlrev_b32 v9, 3, v2")
    e("v_sub_u32 v7, v7, v9")
    e(f"v_add_u32 v7, {CV_T + 504}, v7")
    e("s_waitcnt vmcnt(8)")
    stamp(1)
    e(f"s_cmp_lg_u32 s{sW}, 0")
    e("s_cbranch_scc1 k1c_nozl")
    zload()
    e("k1c_nozl:")
    KF, VF, WF = 80, 136, 200
    for cc in range(8):
        for jp in range(2):
            w = WD + 2 * cc + jp
            e(f"v_lshlrev_b32 v{WF + (2 * jp) * 8 + cc}, 16, v{w}")
            e(f"v_and_b32 v{WF + (2 * jp + 1) * 8 + cc}, 0xffff0000, v{w}")
    for i in range(28):
        e(f"v_lshlrev_b32 v{KF + 2 * i}, 16, v{KD + i}")
        e(f"v_and_b32 v{KF + 2 * i + 1}, 0xffff0000, v{KD + i}")
    for i in range(16):
        e(f"v_lshlrev_b32 v{VF + 2 * i}, 16, v{VD + i}")
        e(f"v_and_b32 v{VF + 2 * i + 1}, 0xffff0000, v{VD + i}")
    KV = 168
    for r in range(4):
        for cp in range(4):
            d = KV + 8 * r + 2 * cp
            e(f"v_pk_mul_f32 {vr(d, 2)}, {vr(KF + 8 * r + 2 * cp, 2)}, {vr(WF + 3 * 8 + 2 * cp, 2)}")
            for j in range(1, 4):
                e(f"v_pk_fma_f32 {vr(d, 2)}, {vr(KF + 8 * (r + j) + 2 * cp, 2)}, "
                  f"{vr(WF + (3 - j) * 8 + 2 * cp, 2)}, {vr(d, 2)}")
            e(f"v_pk_mul_f32 {vr(d, 2)}, {vr(d, 2)}, {vr(VF + 8 * r + 2 * cp, 2)}")
    for cc in range(8):
        o = 16 + 2 * cc
        e(f"v_cvt_pk_bf16_f32 v{o}, v{KV + 24 + cc}, v{KV + 16 + cc}")
        e(f"v_cvt_pk_bf16_f32 v{o + 1}, v{KV + 8 + cc}, v{KV + cc}")
        e(f"ds_write_b64 v7, {vr(o, 2)} offset:{cc * CV_TP}")
    e("s_waitcnt lgkmcnt(0)")
    e("s_barrier")
    c("wave w: channels 8w..8w+7 of the group: full-line stores (2 channels x 512 B per instruction)")
    e("v_lshrrev_b32 v6, 5, v1")
    e("v_and_b32 v7, 31, v1")
    e("v_lshlrev_b32 v7, 4, v7")
    e(f"v_mul_u32_u24 v9, {CV_TP}, v6")
    e("v_add_u32 v9, v9, v7")
    e(f"s_mul_i32 s{sT1}, s{sW}, {8 * CV_TP}")
    e(f"s_add_u32 s{sT1}, s{sT1}, {CV_T}")
    e(f"v_add_u32 v9, s{sT1}, v9")
    for j in range(4):
        e(f"ds_read_b128 {vr(16 + 4 * j, 4)}, v9 offset:{2 * j * CV_TP}")
    e("v_lshl_add_u32 v7, v6, 12, v7")
    e(f"s_lshl_b32 s{sT0}, s{sG}, 18")
    e(f"s_lshl_b32 s{sT1}, s{sW}, 15")
    e(f"s_add_u32 s{sT0}, s{sT0}, s{sT1}")
    e(f"s_add_u32 s{sT0}, s{sT0}, {WS_KV + 3584}")
    e(f"s_lshl_b32 s{sT1}, s{sJ}, 9")
    e(f"s_sub_u32 s{sT0}, s{sT0}, s{sT1}")
    for j in range(4):
        e(f"s_waitcnt lgkmcnt({3 - j})")
        e(f"buffer_store_dwordx4 {vr(16 + 4 * j, 4)}, v7, {sr(S_WS, 4)}, s{sT0} offen sc1")
        e(f"s_add_u32 s{sT0}, s{sT0}, 8192")
    c("meanwhile: zero pads and KT copies")
    e(f"s_mov_b32 s{sT1}, s{sRB}")
    e("v_lshlrev_b32 v6, 3, v1")
    e(f"v_add_u32 v6, s{sT1}, v6")
    e("v_mov_b32 v10, 0")
    e("v_mov_b32 v11, 0")
    e(f"ds_write_b64 v6, v[10:11] offset:{CV_R + 4096}")
    e(f"s_mul_i32 s{sT1}, s{sW}, {CV_KSTR}")
    e(f"s_add_u32 s{sT1}, s{sT1}, {CV_KT}")
    e("v_lshlrev_b32 v7, 2, v1")
    e(f"v_add_u32 v7, s{sT1}, v7")
    e("v_cmp_gt_u32 vcc, 8, v1")
    e("s_and_saveexec_b64 s[70:71], vcc")
    e("ds_write_b32 v7, v10")
    e(f"ds_write_b32 v7, v10 offset:{CV_KCPY}")
    e("s_mov_b64 exec, s[70:71]")
    e("s_waitcnt lgkmcnt(0)")
    e(f"s_lshl_b32 s{sT0}, s{sD}, 16")
    e(f"s_and_b32 s{sD}, s{sD}, 0xffff0000")
    e(f"s_bitcmp1_b32 s{sW}, 0")
    e(f"s_cselect_b32 s{sD}, s{sD}, s{sT0}")
    e("v_lshlrev_b32 v7, 4, v1")
    e(f"v_add_u32 v7, s{sT1}, v7")
    e("s_waitcnt vmcnt(4)")
    for j in range(4):
        d = SKD + 4 * j
        e(f"ds_write_b128 v7, {vr(d, 4)} offset:{32 + 1024 * j}")
        e(f"v_alignbit_b32 v12, v{d + 1}, v{d}, 16")
        e(f"v_alignbit_b32 v13, v{d + 2}, v{d + 1}, 16")
        e(f"v_alignbit_b32 v14, v{d + 3}, v{d + 2}, 16")
        e(f"v_alignbit_b32 v15, v{SKD + 16 + j}, v{d + 3}, 16")
        e(f"ds_write_b128 v7, v[12:15] offset:{CV_KCPY + 32 + 1024 * j}")
        e("s_nop 1")
    e(f"v_lshlrev_b32 v12, 16, v{SKD}")
    e("v_cmp_eq_u32 vcc, 0, v1")
    e("s_and_saveexec_b64 s[70:71], vcc")
    e(f"ds_write_b32 v7, v12 offset:{CV_KCPY + 28}")
    e("s_mov_b64 exec, s[70:71]")
    c("hand-off: all kv stores drained -> barrier -> flags to the 8 WGs of the group; then poll own mailbox")
    e("s_waitcnt vmcnt(0)")
    e("s_barrier")
    stamp(2)
    e(f"s_cmp_lg_u32 s{sW}, 0")
    e("s_cbranch_scc1 k1c_wait")
    zcheck()
    e(f"v_lshl_add_u32 v12, v1, 3, s{sG}")
    e("v_lshlrev_b32 v12, 8, v12")
    e(f"s_lshl_b32 s79, s{sJ}, 2")
    e(f"s_add_u32 s79, s79, {WS_MB + 4 * MB_KV}")
    e("v_mov_b32 v13, 1")
    e("v_cmp_gt_u32 vcc, 8, v1")
    e("s_and_saveexec_b64 s[70:71], vcc")
    e(f"buffer_store_dword v13, v12, {sr(S_WS, 4)}, s79 offen sc1")
    e("s_mov_b64 exec, s[70:71]")
    e("s_lshl_b32 s79, s2, 8")
    e(f"s_add_u32 s79, s79, {WS_MB}")
    pollmask(79, 0xff << MB_KV, S_WS)
    e(f"s_mov_b32 s{sZ}, 1")
    e("k1c_wait:")
    e("s_barrier")
    c("load own channel kvR row (sc1) -> LDS R")
    e(f"v_add_u32 v8, {WS_KV}, v8")
    for j in range(4):
        e(f"buffer_load_dwordx4 {vr(16 + 4 * j, 4)}, v8, {sr(S_WS, 4)}, 0 offen offset:{1024 * j} sc1")
    e(f"s_mov_b32 s{sT0}, s{sRB}")
    e("v_lshlrev_b32 v6, 4, v1")
    e(f"v_add_u32 v6, s{sT0}, v6")
    for j in range(4):
        e(f"s_waitcnt vmcnt({3 - j})")
        e(f"ds_write_b128 v6, {vr(16 + 4 * j, 4)} offset:{CV_R + 1024 * j}")
    e("s_waitcnt lgkmcnt(0)")
    stamp(3)
    c("MFMA phase: wave w -> channel w")
    ACC = 16
    AR = [48, 112]
    BR = [80, 144]
    vKT, vR, vA = 200, 201, 202
    e("v_and_b32 v2, 15, v1")
    e("v_lshrrev_b32 v3, 4, v1")
    e("v_lshlrev_b32 v4, 1, v2")
    e("v_lshlrev_b32 v5, 4, v3")
    e("v_sub_u32 v4, v4, v5")
    e(f"v_add_u32 v4, {32 - 14}, v4")
    e("v_and_b32 v5, 1, v2")
    e("v_cmp_eq_u32 vcc, 0, v5")
    e("v_mov_b32 v5, 0")
    e(f"v_mov_b32 v6, {CV_KCPY - 2}")
    e("s_nop 1")
    e("v_cndmask_b32 v5, v5, v6, vcc")
    e("v_add_u32 v4, v4, v5")
    e(f"v_add_u32 v{vKT}, s{sT1}, v4")
    e(f"s_mov_b32 s{sT0}, s{sRB}")
    e("v_lshlrev_b32 v4, 5, v2")
    e("v_lshl_add_u32 v4, v3, 4, v4")
    e(f"v_sub_u32 v4, {CV_R + 4080 - 3584}, v4")
    e(f"v_add_u32 v{vR}, s{sT0}, v4")

    def creads(ci, st):
        d0 = 2 * ci + 1
        for pp in range(4):
            e(f"v_add_u32 v{vA + pp}, {32 * d0 + 1024 * pp}, v{vKT}")
        order = [("B", 0)] + [("A", p) for p in range(8)] + [("B", m) for m in range(1, 8)]
        for kind, x in order:
            if kind == "A":
                p = x
                o = 128 * (p & 1)
                e(f"ds_read2_b32 {vr(AR[st] + 4 * p, 2)}, v{vA + (p >> 1)} offset0:{o} offset1:{o + 1}")
                e(f"ds_read2_b32 {vr(AR[st] + 4 * p + 2, 2)}, v{vA + (p >> 1)} offset0:{o + 2} offset1:{o + 3}")
            else:
                m = x
                e(f"ds_read_b128 {vr(BR[st] + 4 * m, 4)}, v{vR} offset:{32 * d0 + 512 * (7 - m)}")

    creads(0, 0)
    g2_setup(sW, 3)
    if PLO >= 0:
        out_pre_addr(sW, 206, 84)
        make_srd(84, P_OUT, 2048 * 1024)
        e(f"buffer_load_dword v207, v206, {sr(84, 4)}, 0 offen")
    if PLY:
        e(f"s_lshl_b32 s3, s{sCG}, 3")
        e(f"s_add_u32 s3, s3, s{sW}")
        e("s_lshl_b32 s3, s3, 12")
        e(f"s_add_u32 s3, s3, {WS_Y2}")
        e("v_lshlrev_b32 v206, 6, v1")
        e(f"buffer_load_dword v207, v206, {sr(S_WS, 4)}, s3 offen")
    for ci in range(8):
        st = ci & 1
        e("s_waitcnt lgkmcnt(0)")
        if ci < 7:
            creads(ci + 1, st ^ 1)
        if 2 <= ci <= 4:
            for g in g2_early(ci - 2):
                for x in g:
                    e(x)
        for m in range(8):
            for p in range(8 - m):
                cc = "0" if (ci == 0 and m == 0) else vr(ACC + 4 * (m + p), 4)
                e(f"v_mfma_f32_16x16x32_bf16 {vr(ACC + 4 * (m + p), 4)}, {vr(AR[st] + 4 * p, 4)}, "
                  f"{vr(BR[st] + 4 * m, 4)}, {cc}")
    stamp(None)
    c("epilogue: kv reads, y2 = bf16(bf16(y) + bf16(kv*D)), store y2T")
    e("v_lshlrev_b32 v4, 5, v2")
    e("v_lshl_add_u32 v4, v3, 3, v4")
    e(f"v_sub_u32 v5, {CV_R + 4088 - 3584}, v4")
    e(f"v_add_u32 v5, s{sT0}, v5")
    KVR = 48
    for n in range(8):
        e(f"ds_read_b64 {vr(KVR + 2 * n, 2)}, v5 offset:{512 * (7 - n)}")
    e(f"s_lshl_b32 s{sT1}, s{sCG}, 3")
    e(f"s_add_u32 s{sT1}, s{sT1}, s{sW}")
    e(f"s_lshl_b32 s{sT1}, s{sT1}, 12")
    e(f"s_add_u32 s{sT1}, s{sT1}, {WS_Y2}")
    e(f"v_add_u32 v6, s{sT1}, v4")
    e("s_nop 7")
    e("s_waitcnt lgkmcnt(0)")
    for n in range(8):
        a = ACC + 4 * n
        k0, k1 = KVR + 2 * n, KVR + 2 * n + 1
        o = 80 + 2 * n
        e(f"v_cvt_pk_bf16_f32 v8, v{a}, v{a + 1}")
        e(f"v_cvt_pk_bf16_f32 v9, v{a + 2}, v{a + 3}")
        e(f"v_and_b32 v10, 0xffff0000, v{k1}")
        e(f"v_lshlrev_b32 v11, 16, v{k1}")
        e(f"v_and_b32 v12, 0xffff0000, v{k0}")
        e(f"v_lshlrev_b32 v13, 16, v{k0}")
        for t in range(4):
            e(f"v_mul_f32 v{10 + t}, s{sD}, v{10 + t}")
        e("v_cvt_pk_bf16_f32 v10, v10, v11")
        e("v_cvt_pk_bf16_f32 v12, v12, v13")
        e("v_lshlrev_b32 v14, 16, v8")
        e("v_and_b32 v15, 0xffff0000, v8")
        e("v_lshlrev_b32 v11, 16, v10")
        e("v_and_b32 v10, 0xffff0000, v10")
        e("v_add_f32 v14, v14, v11")
        e("v_add_f32 v15, v15, v10")
        e(f"v_cvt_pk_bf16_f32 v{o}, v14, v15")
        e("v_lshlrev_b32 v14, 16, v9")
        e("v_and_b32 v15, 0xffff0000, v9")
        e("v_lshlrev_b32 v13, 16, v12")
        e("v_and_b32 v12, 0xffff0000, v12")
        e("v_add_f32 v14, v14, v13")
        e("v_add_f32 v15, v15, v12")
        e(f"v_cvt_pk_bf16_f32 v{o + 1}, v14, v15")
        e(f"buffer_store_dwordx2 {vr(o, 2)}, v6, {sr(S_WS, 4)}, 0 offen offset:{512 * n}{STC}")
    stamp(4)
    e("s_waitcnt vmcnt(0)")
    e("s_barrier")
    stamp(5)
    signal(sW, S_WS, "c", sG, sJ)
    e(f"s_mov_b32 s{sZ}, 1")
    e("s_branch g2_entry")


def kernel1():
    e(".globl k1_kernel")
    e(".p2align 8")
    e(".type k1_kernel,@function")
    e("k1_kernel:")
    e("s_cmp_ge_u32 s2, 256")
    e("s_cbranch_scc1 k1_done")
    load_ptrs()
    e(f"s_cmp_lt_u32 s2, {K1_NCONV}")
    e("s_cbranch_scc1 k1_conv")
    e(f"s_cmp_lt_u32 s2, {K1_NCONV + K1_NGEMM}")
    e("s_cbranch_scc1 k1_gemm")
    k1_aux()
    k1_gemm()
    k1_conv()
    kernel2()
    e("k1_done:")
    e("s_endpgm")


K2_Y2 = 147456
K2_MASK = K2_Y2 + 8192
K2_STATS = K2_MASK + 64
K2_AS = [6, 7, 8, 0, 1, 2]
K2_STEPS = 11
K2_NBR = 8
K2_NA = 6


def kernel2():
    S_H, S_WD, S_X, S_WS, S_OUT = 44, 48, 52, 56, 60
    sW, sT0, sT1, sMT, sNT, sKA, sKB, sLB = 64, 65, 66, 67, 68, 69, 70, 71
    sMASK, sW11 = 18, 19
    XR = 16
    NR = 24
    AFR = 28
    ACC = 60
    BFR = 124
    vDA, vDB, vB0, vB1, vAr, vOut = 8, 9, 10, 11, 12, 13
    e("g2_entry:")
    e("v_lshrrev_b32 v2, 6, v0")
    e("v_and_b32 v1, 63, v0")
    e(f"v_readfirstlane_b32 s{sW}, v2")
    make_srd(S_WS, P_WS, 0x1000000)
    e(f"s_cmp_gt_u32 s{sW}, 4")
    e("s_cbranch_scc1 g2_exit")
    c("x = id%8, j = id/8 : mt2 = 4x + (j&3), nt2 = j>>2")
    e("s_and_b32 s4, s2, 7")
    e("s_lshr_b32 s5, s2, 3")
    e(f"s_lshr_b32 s{sNT}, s5, 2")
    e("s_and_b32 s5, s5, 3")
    e(f"s_lshl_b32 s{sMT}, s4, 2")
    e(f"s_add_u32 s{sMT}, s{sMT}, s5")
    e(f"s_cmp_eq_u32 s{sW}, 4")
    e("s_cbranch_scc1 g2_helper")
    make_srd(S_H, P_WS, WS_H_BYTES)
    make_srd(S_X, P_Q, 2048 * 1024)
    make_srd(S_OUT, P_OUT, 2048 * 1024)
    e(f"s_mul_i32 s{sW11}, s{sW}, {K2_STEPS}")
    e(f"s_lshl_b32 s{sKA}, s{sW11}, 6")
    e(f"s_mul_i32 s{sT1}, s{sMT}, {64 * HP}")
    e(f"s_add_u32 s{sKA}, s{sKA}, s{sT1}")
    e(f"s_mov_b32 s{sLB}, s{sLB2}")
    e("v_and_b32 v2, 31, v1")
    e("v_lshrrev_b32 v3, 5, v1")
    e(f"s_mov_b32 s73, s{sROT}")
    e(f"s_mov_b32 s75, s{sROT}")
    VM = []

    def adv(sidx):
        return [f"s_add_u32 s{sidx}, s{sidx}, 1", f"s_cmp_ge_u32 s{sidx}, 11", f"s_cselect_b32 s{sidx}, 0, s{sidx}"]

    def groups_B(i, slot):
        g = []
        for j in range(4):
            x = []
            if j == 0:
                x += [f"s_lshl_b32 s77, s{sBI}, 15", f"s_add_u32 s77, s77, s{sKB2}"]
            x += [f"s_add_u32 m0, s{sLB}, {slot * 16384 + j * 1024}",
                  f"s_add_u32 s{sT0}, s77, {8 * j * 1024}",
                  f"buffer_load_dwordx4 v{vDB2}, {sr(S_WD2, 4)}, s{sT0} offen lds"]
            if j == 3:
                x += adv(sBI)
            g.append((x, f"B{i}"))
        return g

    def groups_A(i):
        slot = K2_AS[i % K2_NA]
        g = []
        for j in range(4):
            x = []
            if j == 0:
                x += [f"s_add_u32 s76, s73, s{sW11}", "s_lshr_b32 s76, s76, 2",
                      f"s_bitcmp1_b32 s{sMASK}, s76", f"s_cbranch_scc0 g2_wt{i}", ("ool", i),
                      "s_lshl_b32 s76, s73, 6", f"s_add_u32 s76, s76, s{sKA}"]
            x += [f"s_add_u32 m0, s{sLB}, {slot * 16384 + j * 1024}",
                  f"s_add_u32 s{sT0}, s76, {16 * j * HP}",
                  f"buffer_load_dwordx4 v{vDA}, {sr(S_H, 4)}, s{sT0} offen lds"]
            if j == 3:
                x += adv(73)
            g.append((x, f"A{i}"))
        return g

    def emit_group(g):
        x, tag = g
        for y in x:
            if isinstance(y, tuple):
                i = y[1]
                with ool(f"g2_wt{i}"):
                    e("s_mov_b32 s80, 0")
                    e(f"g2_wl{i}:")
                    e("ds_read_b32 v15, v26")
                    e("s_waitcnt lgkmcnt(0)")
                    e(f"v_readfirstlane_b32 s{sMASK}, v15")
                    e("s_add_u32 s80, s80, 1")
                    e("s_nop 2")
                    e(f"s_bitcmp1_b32 s{sMASK}, s76")
                    e(f"s_cbranch_scc1 g2_wt{i}_ret")
                    e("s_sleep 1")
                    e("s_cmp_lt_u32 s80, 0x400000")
                    e(f"s_cbranch_scc1 g2_wl{i}")
                continue
            e(y)
            if y.startswith("buffer_"):
                VM.append(tag)

    def nwait(tag):
        last = max(i for i, t in enumerate(VM) if t == tag)
        return min(63, len(VM) - 1 - last)

    c("B steps not issued early (branch on the role)")
    e(f"s_cmp_eq_u32 s{sNPRE}, 6")
    e("s_cbranch_scc1 g2_b6")
    e(f"s_cmp_eq_u32 s{sNPRE}, 3")
    e("s_cbranch_scc1 g2_b3")
    for i in range(9):
        if i in (3, 6):
            e(f"g2_b{i}:")
        for g in groups_B(i, K2_SB[i]):
            emit_group(g)
    c("A DMA lane offsets: row = l/4, src chunk = (l%4) ^ ((l/16)&3)")
    e("v_lshrrev_b32 v4, 2, v1")
    e(f"v_mul_u32_u24 v4, {HP}, v4")
    e("v_and_b32 v5, 3, v1")
    e("v_lshrrev_b32 v6, 4, v1")
    e("v_xor_b32 v5, v5, v6")
    e(f"v_lshl_add_u32 v{vDA}, v5, 4, v4")
    c("epilogue operand loads: tile (mi = w/2, ni = w%2)")
    e(f"s_lshr_b32 s{sT0}, s{sW}, 1")
    e(f"s_lshl_b32 s{sT0}, s{sT0}, 5")
    e(f"v_add_u32 v27, s{sT0}, v2")
    e(f"v_lshlrev_b32 v27, 3, v27")
    e(f"v_add_u32 v27, {K2_STATS}, v27")
    e(f"s_lshl_b32 s{sT1}, s{sMT}, 6")
    e(f"s_add_u32 s{sT0}, s{sT0}, s{sT1}")
    e(f"v_add_u32 v4, s{sT0}, v2")
    e(f"s_and_b32 s{sT1}, s{sW}, 1")
    e(f"s_lshl_b32 s{sT1}, s{sT1}, 6")
    e(f"s_lshl_b32 s72, s{sNT}, 7")
    e(f"s_add_u32 s{sT1}, s{sT1}, s72")
    e("v_lshlrev_b32 v5, 10, v4")
    e(f"v_add_u32 v5, s{sT1}, v5")
    e(f"v_lshl_add_u32 v{vOut}, v3, 4, v5")
    e("v_lshl_add_u32 v5, v3, 3, v5")
    for q in range(4):
        e(f"buffer_load_dwordx2 {vr(XR + 2 * q, 2)}, v5, {sr(S_X, 4)}, 0 offen offset:{16 * q}")
        VM.append("epi")
    c("B tr-read lane addresses")
    e("v_and_b32 v4, 15, v1")
    e("v_lshrrev_b32 v5, 2, v4")
    e("v_lshl_add_u32 v6, v3, 4, v5")
    e("v_lshlrev_b32 v6, 7, v6")
    e("v_lshrrev_b32 v7, 4, v1")
    e("v_and_b32 v7, 1, v7")
    e("v_lshl_add_u32 v6, v7, 5, v6")
    e("v_and_b32 v7, 3, v4")
    e("v_lshl_add_u32 v6, v7, 3, v6")
    e(f"v_add_u32 v6, s{sLB}, v6")
    e("v_lshrrev_b32 v7, 3, v4")
    e(f"v_lshl_add_u32 v{vB0}, v7, 6, v6")
    e("v_xor_b32 v7, 1, v7")
    e(f"v_lshl_add_u32 v{vB1}, v7, 6, v6")
    c("A read address: r*64 + ((2g+s) ^ ((r>>2)&3))*16 ; s via xor 16")
    e("v_lshrrev_b32 v4, 2, v2")
    e("v_and_b32 v4, 3, v4")
    e("v_lshlrev_b32 v5, 1, v3")
    e("v_xor_b32 v4, v4, v5")
    e("v_lshlrev_b32 v4, 4, v4")
    e("v_lshl_add_u32 v4, v2, 6, v4")
    e(f"v_add_u32 v{vAr}, s{sLB}, v4")
    e(f"v_xor_b32 v14, 16, v{vAr}")
    e(f"v_mov_b32 v26, {K2_MASK}")
    e(f"s_mov_b32 s{sMASK}, 0")

    c("address regs per 48 KB third: (B0, B1, A0, A1) x 3 in v[240:251]?  -> B frags end at 251, so use v[4:7] dynamically")

    def rebase(third):
        return [f"v_add_u32 v4, {third * 49152}, v{vB0}", f"v_add_u32 v5, {third * 49152}, v{vB1}",
                f"v_add_u32 v6, {third * 49152}, v{vAr}", f"v_add_u32 v7, {third * 49152}, v14"]

    def breads(i, slot):
        r = rebase(slot // 3)[:2]
        base = BFR + 16 * (i % K2_NBR)
        for s in range(2):
            for ni in range(2):
                for u in range(2):
                    r.append(f"ds_read_b64_tr_b16 {vr(base + 8 * s + 4 * ni + 2 * u, 2)}, v{5 if ni else 4} "
                             f"offset:{(slot % 3) * 16384 + (8 * s + 4 * u) * 128}")
        return r

    def areads(i):
        slot = K2_AS[i % K2_NA]
        r = rebase(slot // 3)[2:]
        for s in range(2):
            for mi in range(2):
                r.append(f"ds_read_b128 {vr(AFR + 16 * (i & 1) + 8 * mi + 4 * s, 4)}, v{7 if s else 6} "
                         f"offset:{(slot % 3) * 16384 + mi * 2048}")
        return r

    for r in range(64):
        e(f"v_mov_b32 v{ACC + r}, 0")
    e("s_barrier")
    for i in range(6):
        e(f"s_waitcnt vmcnt({nwait(f'B{i}')})")
        for x in breads(i, K2_SB[i]):
            e(x)
    e("s_waitcnt lgkmcnt(0)")
    stamp(6)
    for i in range(K2_NA):
        for g in groups_A(i):
            emit_group(g)
    for i in (6, 7):
        e(f"s_waitcnt vmcnt({nwait(f'B{i}')})")
        for x in breads(i, K2_SB[i]):
            e(x)
    e("s_waitcnt lgkmcnt(0)")
    for g in groups_B(9, 3) + groups_B(10, 4):
        emit_group(g)
    e(f"s_waitcnt vmcnt({nwait('A0')})")
    stamp(7)
    for x in areads(0):
        e(x)
    BSLOT = {8: 5, 9: 3, 10: 4}
    for i in range(K2_STEPS):
        e("s_waitcnt lgkmcnt(0)")
        dg = groups_A(i + K2_NA) if i + K2_NA < K2_STEPS else []
        rl = []
        if i + 1 < K2_STEPS:
            rl = areads(i + 1)
            if i + 1 >= K2_NBR:
                rl += breads(i + 1, BSLOT[i + 1])
        for g in dg:
            emit_group(g)
        if rl:
            tag = f"A{i + 1}"
            n = nwait(tag)
            if i + 1 >= K2_NBR:
                n = min(n, nwait(f"B{i + 1}"))
            e(f"s_waitcnt vmcnt({n})")
            for x in rl:
                e(x)
        e(f"s_add_u32 s74, s75, s{sW}")
        for x in adv(75):
            e(x)
        e("s_cmp_eq_u32 s74, 13")
        e(f"s_cbranch_scc1 k2_skip{i}")
        for s in range(2):
            for mi in range(2):
                for ni in range(2):
                    a = ACC + 16 * (2 * mi + ni)
                    bb = BFR + 16 * (i % K2_NBR) + 8 * s + 4 * ni
                    e(f"v_mfma_f32_32x32x16_bf16 {vr(a, 16)}, {vr(bb, 4)}, "
                      f"{vr(AFR + 16 * (i & 1) + 8 * mi + 4 * s, 4)}, {vr(a, 16)}")
        e(f"k2_skip{i}:")
    e("s_nop 15")
    e("s_nop 3")
    stamp(8)
    c("write non-owned partial tiles to own LDS region")
    e("v_lshlrev_b32 v4, 4, v1")
    e(f"v_add_u32 v4, s{sLB}, v4")
    for t in range(4):
        e(f"s_cmp_eq_u32 s{sW}, {t}")
        e(f"s_cbranch_scc1 k2_skipw{t}")
        for q in range(4):
            e(f"ds_write_b128 v4, {vr(ACC + 16 * t + 4 * q, 4)} offset:{t * 16384 + q * 1024}")
        e(f"k2_skipw{t}:")
    e("s_waitcnt lgkmcnt(0)")
    e("s_barrier")
    stamp(9)
    OWN, OTH, YR, OUTR, TA, TB = 124, 140, 188, 196, 204, 205
    c("owner gathers: tile w from the other 3 waves")
    for t in range(4):
        e(f"s_cmp_lg_u32 s{sW}, {t}")
        e(f"s_cbranch_scc1 k2_skipm{t}")
        for r in range(16):
            e(f"v_mov_b32 v{OWN + r}, v{ACC + 16 * t + r}")
        e(f"k2_skipm{t}:")
    e(f"s_lshl_b32 s{sT0}, s{sW}, 14")
    e("v_lshlrev_b32 v4, 4, v1")
    e(f"v_add_u32 v4, s{sT0}, v4")
    for k in range(1, 4):
        e(f"s_add_u32 s{sT1}, s{sW}, {k}")
        e(f"s_and_b32 s{sT1}, s{sT1}, 3")
        e(f"s_lshl_b32 s{sT1}, s{sT1}, 12")
        e(f"v_add_u32 v5, s{sT1}, v4")
        for q in range(4):
            e(f"ds_read_b128 {vr(OTH + 16 * (k - 1) + 4 * q, 4)}, v5 offset:{q * 1024}")
    c("y2 tr reads: c0 = 8q + 4g")
    e("v_and_b32 v4, 15, v1")
    e("v_lshrrev_b32 v5, 2, v4")
    e("v_lshl_add_u32 v5, v3, 2, v5")
    e("v_lshlrev_b32 v5, 6, v5")
    e("v_lshrrev_b32 v6, 4, v1")
    e("v_and_b32 v6, 1, v6")
    e("v_lshl_add_u32 v5, v6, 5, v5")
    e("v_and_b32 v6, 3, v4")
    e("v_lshl_add_u32 v5, v6, 3, v5")
    e(f"s_lshl_b32 s{sT1}, s{sW}, 11")
    e(f"s_add_u32 s{sT1}, s{sT1}, {K2_Y2}")
    e(f"v_add_u32 v5, s{sT1}, v5")
    e("s_waitcnt lgkmcnt(8)")
    for q in range(4):
        e(f"ds_read_b64_tr_b16 {vr(YR + 2 * q, 2)}, v5 offset:{q * 512}")
    e(f"ds_read_b64 {vr(NR, 2)}, v27")
    e("s_waitcnt vmcnt(0) lgkmcnt(0)")
    for r in range(16):
        e(f"v_add_f32 v{OWN + r}, v{OWN + r}, v{OTH + r}")
        e(f"v_add_f32 v{OTH + 16 + r}, v{OTH + 16 + r}, v{OTH + 32 + r}")
    for r in range(16):
        e(f"v_add_f32 v{OWN + r}, v{OWN + r}, v{OTH + 16 + r}")
    for q in range(4):
        for h2 in range(2):
            x = XR + 2 * q + h2
            y = YR + 2 * q + h2
            b = OWN + 4 * q + 2 * h2
            e(f"v_lshlrev_b32 v4, 16, v{x}")
            e(f"v_and_b32 v5, 0xffff0000, v{x}")
            e(f"v_fma_f32 v7, v4, v{NR}, v{NR + 1}")
            e(f"v_fma_f32 v6, v5, v{NR}, v{NR + 1}")
            e("v_cvt_pk_bf16_f32 v6, v7, v6")
            e("v_lshlrev_b32 v7, 16, v6")
            e("v_and_b32 v6, 0xffff0000, v6")
            e(f"v_lshlrev_b32 v{TA}, 16, v{y}")
            e(f"v_and_b32 v{TB}, 0xffff0000, v{y}")
            e(f"v_mul_f32 v7, v7, v{TA}")
            e(f"v_mul_f32 v6, v6, v{TB}")
            e("v_cvt_pk_bf16_f32 v6, v7, v6")
            e("v_lshlrev_b32 v7, 16, v6")
            e("v_and_b32 v6, 0xffff0000, v6")
            e("v_add_f32 v7, v4, v7")
            e("v_add_f32 v6, v5, v6")
            e("v_cvt_pk_bf16_f32 v6, v7, v6")
            e(f"v_cvt_pk_bf16_f32 v{TA}, v{b}, v{b + 1}")
            e("v_lshlrev_b32 v7, 16, v6")
            e("v_and_b32 v6, 0xffff0000, v6")
            e(f"v_lshlrev_b32 v{TB}, 16, v{TA}")
            e(f"v_and_b32 v{TA}, 0xffff0000, v{TA}")
            e(f"v_add_f32 v7, v7, v{TB}")
            e(f"v_add_f32 v6, v6, v{TA}")
            e(f"v_cvt_pk_bf16_f32 v{OUTR + 2 * q + h2}, v7, v6")
    e("s_nop 1")
    for qq in range(2):
        o = OUTR + 4 * qq
        e(f"v_permlane32_swap_b32 v{o}, v{o + 2}")
        e(f"v_permlane32_swap_b32 v{o + 1}, v{o + 3}")
        e(f"buffer_store_dwordx4 {vr(o, 4)}, v{vOut}, {sr(S_OUT, 4)}, 0 offen offset:{32 * qq}{OSC}")
    e("g2_exit:")
    stamp_flush(S_WS, WS_PROF)
    e("s_endpgm")
    flush_ool()
    e("g2_helper:")
    c("helper wave: publish the ready mask of the 11 GEMM1 tiles of row block mt2/2 (own mailbox)")
    e(f"v_mov_b32 v26, {K2_MASK}")
    e("v_mov_b32 v13, 0")
    e("ds_write_b32 v26, v13")
    e("s_waitcnt lgkmcnt(0)")
    e("s_barrier")
    zcheck()
    e("s_lshl_b32 s79, s2, 8")
    e(f"s_add_u32 s79, s79, {WS_MB}")
    e("v_and_b32 v15, 31, v0")
    e("v_lshlrev_b32 v15, 2, v15")
    e("s_mov_b32 s80, 0")
    e("g2_hp:")
    e(f"buffer_load_dword v14, v15, {sr(S_WS, 4)}, s79 offen sc1")
    e("s_waitcnt vmcnt(0)")
    e("v_cmp_ne_u32 vcc, 0, v14")
    e("s_add_u32 s80, s80, 1")
    e("s_and_b32 s81, vcc_lo, 0x7ff")
    e("v_mov_b32 v13, s81")
    e("ds_write_b32 v26, v13")
    e("s_cmp_eq_u32 s81, 0x7ff")
    e("s_cbranch_scc1 g2_hd")
    e("s_cmp_lt_u32 s80, 0x40000")
    e("s_cbranch_scc1 g2_hp")
    e("g2_hd:")
    c("row stats of the 64 rows -> LDS")
    e("v_lshlrev_b32 v5, 2, v1")
    e(f"s_lshl_b32 s{sT1}, s{sMT}, 9")
    e(f"s_add_u32 s{sT1}, s{sT1}, {WS_ST}")
    for j in range(2):
        e(f"s_mov_b32 m0, {K2_STATS + 256 * j}")
        e(f"buffer_load_dword v5, {sr(S_WS, 4)}, s{sT1} offen lds")
        e(f"s_add_u32 s{sT1}, s{sT1}, 256")
    c("wait for conv group nt2, stage the four y2T tiles")
    pollmask(79, 0xff << MB_C, S_WS, first=14)
    e("v_lshrrev_b32 v5, 2, v1")
    e("v_lshlrev_b32 v5, 12, v5")
    e("v_and_b32 v6, 3, v1")
    e("v_lshl_add_u32 v5, v6, 4, v5")
    e(f"s_lshl_b32 s{sT1}, s{sNT}, 18")
    e(f"s_lshl_b32 s{sT0}, s{sMT}, 7")
    e(f"s_add_u32 s{sT1}, s{sT1}, s{sT0}")
    e(f"s_add_u32 s{sT1}, s{sT1}, {WS_Y2}")
    for w in range(4):
        mi, ni = w >> 1, w & 1
        for j in range(2):
            e(f"s_mov_b32 m0, {K2_Y2 + w * 2048 + j * 1024}")
            e(f"s_add_u32 s{sT0}, s{sT1}, {(ni * 32 + j * 16) * 4096 + mi * 64}")
            e(f"buffer_load_dwordx4 v5, {sr(S_WS, 4)}, s{sT0} offen lds")
    e("s_waitcnt vmcnt(0) lgkmcnt(0)")
    e("s_barrier")
    e("s_branch g2_exit")


def descriptor(name, nv):
    L.append(".p2align 6")
    L.append(f".amdhsa_kernel {name}")
    L.append(f"  .amdhsa_next_free_vgpr {nv}")
    L.append("  .amdhsa_next_free_sgpr 102")
    L.append(f"  .amdhsa_accum_offset {nv}")
    L.append("  .amdhsa_group_segment_fixed_size 0")
    L.append("  .amdhsa_kernarg_size 104")
    L.append("  .amdhsa_user_sgpr_count 2")
    L.append("  .amdhsa_user_sgpr_kernarg_segment_ptr 1")
    L.append("  .amdhsa_system_sgpr_workgroup_id_x 1")
    L.append(".end_amdhsa_kernel")


def main():
    hdr = open(f"cdna_kernels/{NAME}.s.ref").read().split("\n")
    for line in hdr:
        if line.startswith("; Override") or line.startswith("; grid=") or "@launch" in line:
            continue
        if not line.startswith(";"):
            break
        L.append(line)
    L.append(f"; @launch kernel=k1_kernel grid=(256,1,1) block=(512,1,1) lds=163840")
    L.append('.amdgcn_target "amdgcn-amd-amdhsa--gfx950"')
    L.append(".text")
    kernel1()
    L.append('.section .rodata,"a"')
    descriptor("k1_kernel", 256)
    out = sys.argv[1] if len(sys.argv) > 1 else f"cdna_kernels/{NAME}.s"
    open(out, "w").write("\n".join(L) + "\n")


if __name__ == "__main__":
    main()
```

```python
import sys

NAME = "parallel_sum__ssm_conv_h3__glu_gated_bilinear__prompt"

WS_H = 0
HP = 2816
WS_H_BYTES = 2048 * HP
WS_Y2 = 0x600000
WS_ST = 0x800000
WS_XN = 0xA00000
WS_KV = 0xC00000
WS_MB = 0x900000
ZOFF = 16
ZN = 16

import os
K1MAP = int(os.environ.get('K1MAP', '1'))
WBL2 = int(os.environ.get('WBL2', '0'))
STC = os.environ.get('STC', '' if WBL2 else ' sc1')
PREF = int(os.environ.get('PREF', '1'))
PREF2 = int(os.environ.get('PREF2', '1'))
PREF3 = int(os.environ.get('PREF3', '2'))
PSLEEP = int(os.environ.get('PSLEEP', '1'))
CSLEEP = int(os.environ.get('CSLEEP', '0'))
ISLEEP = int(os.environ.get('ISLEEP', '0'))
KV16 = int(os.environ.get('KV16', '0'))
MIDN = int(os.environ.get('MIDN', '5'))
ASW = int(os.environ.get('ASW', '1'))
NODMA = int(os.environ.get('NODMA', '0'))
K2ROT_A = int(os.environ.get('K2ROT_A', '1'))
K2ROT_B = int(os.environ.get('K2ROT_B', '2'))
PROFB = int(os.environ.get('PROFB', '0'))
EBW = 0
LPF = int(os.environ.get('LPF', '0'))
LATE2 = int(os.environ.get('LATE2', '1'))
PSET = int(os.environ.get('PSET', '0'))
KROT = int(os.environ.get('KROT', '0'))
ASLEEP = int(os.environ.get('ASLEEP', '0'))
SKDEF = int(os.environ.get('SKDEF', '1'))
PLH = int(os.environ.get('PLH', '-1'))
PLO = int(os.environ.get('PLO', '-1'))
PLY = int(os.environ.get('PLY', '0'))
PLK = int(os.environ.get('PLK', '0'))
OSC = os.environ.get('OSC', '')
L = []


def e(s=""):
    L.append("    " + s if s and not s.endswith(":") else s)


def c(s):
    L.append("    ; " + s)


PROF = len(sys.argv) > 2 and sys.argv[2] == "prof"
WS_PROF = 0xE00000
_stamp = [0]


SPAIR = [6, 8, 10, 12, 14, 88, 90, 92, 94, 96, 100]


def stamp(k=None):
    if not PROF or k is None or k is True:
        return
    if k == 0:
        e("s_memrealtime s[98:99]")
        e("s_waitcnt lgkmcnt(0)")
        e("v_writelane_b32 v255, s98, 63")
        for p in SPAIR:
            e(f"s_mov_b32 s{p}, 0")
    e(f"s_memtime s[{SPAIR[k]}:{SPAIR[k] + 1}]")


def stamp_flush(srd, base):
    if not PROF:
        return
    stamp(10)
    if os.environ.get('DIAG'):
        a, b, wg, mul = [int(x) for x in os.environ['DIAG'].split(',')]
        e("s_waitcnt lgkmcnt(0)")
        e(f"s_cmp_lg_u32 s2, {wg}")
        e("s_cbranch_scc1 diag_done")
        e("v_readfirstlane_b32 s98, v0")
        e("s_nop 3")
        e("s_cmp_lg_u32 s98, 0")
        e("s_cbranch_scc1 diag_done")
        e(f"s_sub_u32 s98, s{SPAIR[b]}, s{SPAIR[a]}")
        e(f"s_mul_i32 s98, s98, {mul}")
        e("s_min_u32 s98, s98, 400000")
        e("diag_l:")
        e("s_memtime s[6:7]")
        e("s_waitcnt lgkmcnt(0)")
        e(f"s_sub_u32 s6, s6, s{SPAIR[10]}")
        e("s_cmp_lt_u32 s6, s98")
        e("s_cbranch_scc1 diag_l")
        e("diag_done:")
        return
    e("s_memrealtime s[98:99]")
    e("s_waitcnt lgkmcnt(0)")
    e("v_writelane_b32 v255, s98, 62")
    for k, p in enumerate(SPAIR):
        e(f"v_writelane_b32 v255, s{p}, {k}")
    e("v_lshrrev_b32 v253, 6, v0")
    e("v_lshl_add_u32 v253, s2, 3, v253")
    e("v_lshlrev_b32 v253, 8, v253")
    e("v_and_b32 v254, 63, v0")
    e("v_lshl_add_u32 v253, v254, 2, v253")
    e(f"v_add_u32 v253, {base}, v253")
    e(f"buffer_store_dword v255, v253, {sr(srd, 4)}, 0 offen")


OOL = []


class ool:
    def __init__(self, label):
        self.label = label

    def __enter__(self):
        global L
        self.saved = L
        L = []
        L.append(f"{self.label}:")

    def __exit__(self, *a):
        global L
        L.append(f"    s_branch {self.label}_ret")
        OOL.extend(L)
        L = self.saved
        L.append(f"{self.label}_ret:")


def flush_ool():
    L.extend(OOL)
    OOL.clear()


def vr(a, n=1):
    return f"v{a}" if n == 1 else f"v[{a}:{a + n - 1}]"


def sr(a, n=1):
    return f"s{a}" if n == 1 else f"s[{a}:{a + n - 1}]"


def make_srd(d, ptr, nbytes):
    e(f"s_mov_b32 s{d}, s{ptr}")
    e(f"s_and_b32 s{d + 1}, s{ptr + 1}, 0xffff")
    e(f"s_mov_b32 s{d + 2}, {nbytes}")
    e(f"s_mov_b32 s{d + 3}, 0x00020000")


P_Q, P_K, P_V, P_SH, P_SK, P_SD, P_BX, P_WG = 16, 18, 20, 22, 24, 26, 28, 30
P_WU, P_WD, P_OUT, P_DBG, P_WS = 32, 34, 36, 38, 40


def load_ptrs():
    e("s_load_dwordx16 s[16:31], s[0:1], 0")
    e("s_load_dwordx8 s[32:39], s[0:1], 64")
    e("s_load_dwordx2 s[40:41], s[0:1], 96")


S_DB2 = 84
_lbl = [0]


sZ = 82


def zload():
    e(f"s_load_dword s{sZ}, {sr(P_DBG, 2)}, {ZOFF}")


MB_H, MB_C, MB_KV, MB_CS, MB_ST = 0, 22, 56, 32, 48


def zcheck():
    _lbl[0] += 1
    n = _lbl[0]
    e(f"s_cmp_ge_u32 s{sZ}, 1")
    e(f"s_cbranch_scc1 sig_go{n}")
    make_srd(S_DB2, P_DBG, 256)
    e(f"s_mov_b32 s79, {ZOFF}")
    poll(79, 1, slp=8)
    e(f"sig_go{n}:")


def signal(sW, S_WS, mode, sIdx, sWord, wave=0):
    _lbl[0] += 1
    n = _lbl[0]
    if mode == "c":
        e(f"s_cmp_lg_u32 s{sW}, {wave}")
        e(f"s_cbranch_scc1 sig_skip{n}")
    zcheck()
    e("v_and_b32 v14, 63, v0")
    if mode == "h":
        e(f"s_lshl_b32 s79, s{sIdx}, 1")
        e(f"s_bfe_u32 s80, s{sW}, 0x10001")
        e("s_add_u32 s79, s79, s80")
        e("v_mov_b32 v12, s79")
        e("v_mov_b32 v13, v14")
    else:
        e("v_mov_b32 v12, v14")
        e(f"v_mov_b32 v13, s{sIdx}")
    e("v_and_b32 v15, 3, v12")
    e("v_lshl_add_u32 v15, v13, 2, v15")
    e("v_lshrrev_b32 v12, 2, v12")
    e("v_lshl_add_u32 v12, v15, 3, v12")
    e("v_lshlrev_b32 v12, 8, v12")
    if mode == "h":
        e(f"s_lshl_b32 s79, s{sWord}, 1")
        e(f"s_and_b32 s80, s{sW}, 1")
        e("s_add_u32 s79, s79, s80")
        e("s_lshl_b32 s79, s79, 2")
    else:
        e(f"s_lshl_b32 s79, s{sWord}, 2")
    e(f"s_add_u32 s79, s79, {WS_MB + 4 * (MB_H if mode == 'h' else MB_C)}")
    e("v_mov_b32 v13, 1")
    e(f"v_cmp_gt_u32 vcc, {8 if mode == 'h' else 32}, v14")
    if mode == "h":
        e("s_waitcnt vmcnt(0)")
        stamp(5)
    e("s_and_saveexec_b64 s[70:71], vcc")
    e(f"buffer_store_dword v13, v12, {sr(S_WS, 4)}, s79 offen sc1")
    e("s_mov_b64 exec, s[70:71]")
    e(f"sig_skip{n}:")


def pollmask(sOff, mask, srd, first=None):
    _lbl[0] += 1
    n = _lbl[0]
    if first is not None:
        e(f"v_cmp_ne_u32 vcc, 0, v{first}")
        e(f"s_and_b32 s81, vcc_lo, {mask}")
        e(f"s_cmp_eq_u32 s81, {mask}")
        e(f"s_cbranch_scc1 polled{n}")
    e("v_and_b32 v15, 31, v0")
    e("v_lshlrev_b32 v15, 2, v15")
    e("s_mov_b32 s80, 0")
    e(f"poll{n}:")
    e(f"buffer_load_dword v14, v15, {sr(srd, 4)}, s{sOff} offen sc1")
    e("s_waitcnt vmcnt(0)")
    e("v_cmp_ne_u32 vcc, 0, v14")
    e("s_add_u32 s80, s80, 1")
    e(f"s_and_b32 s81, vcc_lo, {mask}")
    e(f"s_cmp_eq_u32 s81, {mask}")
    e(f"s_cbranch_scc1 polled{n}")
    if PSLEEP:
        e(f"s_sleep {PSLEEP}")
    e("s_cmp_lt_u32 s80, 0x40000")
    e(f"s_cbranch_scc1 poll{n}")
    e(f"polled{n}:")


def poll(sOff, target, srd=None, slp=None):
    srd = S_DB2 if srd is None else srd
    _lbl[0] += 1
    n = _lbl[0]
    e(f"v_mov_b32 v15, s{sOff}")
    e("s_mov_b32 s80, 0")
    e(f"poll{n}:")
    e(f"buffer_load_dword v14, v15, {sr(srd, 4)}, 0 offen sc1")
    e("s_waitcnt vmcnt(0)")
    e("v_readfirstlane_b32 s81, v14")
    e("s_nop 3")
    e("s_add_u32 s80, s80, 1")
    e(f"s_cmp_ge_u32 s81, {target}")
    e(f"s_cbranch_scc1 polled{n}")
    if slp or PSLEEP:
        e(f"s_sleep {slp or PSLEEP}")
    e("s_cmp_lt_u32 s80, 0x40000")
    e(f"s_cbranch_scc1 poll{n}")
    e(f"polled{n}:")


K1_NCONV = 64
K1_NGEMM = 176
K1_BUF = [131072, 0, 32768, 65536, 98304]


K1_STG = 49152
K1_EX = 147456
K2_MASK = 160064


def mask_init():
    e(f"v_mov_b32 v14, {K2_MASK}")
    e("v_mov_b32 v12, 0")
    e("v_mov_b32 v13, 0")
    e("ds_write_b64 v14, v[12:13]")


AUXOFF = 132
WS_CS = 0x880000
WS_SP = 0x8C0000


def zadd(sW, wait=None):
    _lbl[0] += 1
    n = _lbl[0]
    e(f"s_cmp_lg_u32 s{sW}, 4")
    e(f"s_cbranch_scc1 zadd{n}")
    if wait is not None:
        e(f"s_waitcnt vmcnt({wait})")
        stamp(1)
    make_srd(S_DB2, P_DBG, 256)
    e("v_mov_b32 v14, 1")
    e(f"v_mov_b32 v15, {ZOFF}")
    e("v_cmp_eq_u32 vcc, 0, v1")
    e("s_and_saveexec_b64 s[70:71], vcc")
    e(f"buffer_atomic_add v14, v15, {sr(S_DB2, 4)}, 0 offen sc1")
    e("s_mov_b64 exec, s[70:71]")
    e(f"zadd{n}:")


S_WD2, sKB2, sBI, sROT, sLB2, sNPRE, sND, sL0 = 20, 24, 25, 26, 27, 28, 30, 31
vDB2 = 252
K2_SB = [6, 7, 8, 0, 1, 2, 5, 3, 4, 5, 3, 4]


def g2_setup(sW, npre):
    c("GEMM2 B state: x = id%8, j = id/8 : mt2 = 4x + (j&3), nt2 = j>>2")
    make_srd(S_WD2, P_WD, 1376 * 1024)
    e("s_lshr_b32 s3, s2, 3")
    e("s_lshr_b32 s4, s3, 2")
    e("s_and_b32 s3, s3, 3")
    e(f"s_mul_i32 s{sROT}, s4, {K2ROT_A}")
    e(f"s_mul_i32 s3, s3, {K2ROT_B}")
    e(f"s_add_u32 s{sROT}, s{sROT}, s3")
    e(f"s_and_b32 s3, s{sW}, 1")
    e(f"s_sub_u32 s{sND}, 6, s3")
    for _ in range((7 * K2ROT_A + 3 * K2ROT_B) // 5):
        e(f"s_cmp_ge_u32 s{sROT}, s{sND}")
        e(f"s_cselect_b32 s3, s{sND}, 0")
        e(f"s_sub_u32 s{sROT}, s{sROT}, s3")
    e(f"s_mov_b32 s{sBI}, s{sROT}")
    e(f"s_and_b32 s3, s{sW}, 3")
    e(f"s_lshl_b32 s{sLB2}, s3, 12")
    e("s_mul_i32 s3, s3, 11")
    e("s_add_u32 s3, s3, 1")
    e(f"s_lshr_b32 s{sL0}, s3, 1")
    e(f"s_lshl_b32 s{sKB2}, s{sL0}, 16")
    e("s_lshl_b32 s4, s4, 7")
    e(f"s_add_u32 s{sKB2}, s{sKB2}, s4")
    e(f"s_mov_b32 s{sNPRE}, {npre}")
    c("B DMA lane offsets: row = l/8, chunk' = l%8; global chunk = chunk' ^ (((row>>1)&1)<<2)")
    e("v_lshrrev_b32 v4, 3, v1")
    e("v_and_b32 v5, 7, v1")
    e("v_lshrrev_b32 v6, 1, v4")
    e("v_and_b32 v6, 1, v6")
    e("v_lshlrev_b32 v6, 2, v6")
    e("v_xor_b32 v5, v5, v6")
    e("v_lshlrev_b32 v5, 4, v5")
    e(f"v_lshl_add_u32 v{vDB2}, v4, 10, v5")
    e(f"s_lshr_b32 s3, s{sW}, 2")
    e(f"s_lshl_b32 s29, s3, 11")
    e(f"s_add_u32 s29, s29, s{sLB2}")
    e(f"s_lshl_b32 s5, s3, 14")
    e(f"s_add_u32 s5, s5, s{sKB2}")


def out_pre_addr(sW, vd, srd):
    e("s_and_b32 s3, s2, 7")
    e("s_lshl_b32 s3, s3, 2")
    e("s_lshr_b32 s4, s2, 3")
    e("s_and_b32 s4, s4, 3")
    e("s_add_u32 s3, s3, s4")
    e("s_lshl_b32 s3, s3, 3")
    e(f"s_add_u32 s3, s3, s{sW}")
    e("s_lshl_b32 s3, s3, 13")
    e("s_lshr_b32 s4, s2, 5")
    e("s_lshl_b32 s4, s4, 7")
    e("s_add_u32 s3, s3, s4")
    e(f"v_lshrrev_b32 v{vd}, 3, v1")
    e(f"v_lshlrev_b32 v{vd}, 10, v{vd}")
    e("v_and_b32 v4, 7, v1")
    e(f"v_lshl_add_u32 v{vd}, v4, 4, v{vd}")
    e(f"v_add_u32 v{vd}, s3, v{vd}")


def g2_adv(sidx):
    return [f"s_add_u32 s{sidx}, s{sidx}, 1", f"s_cmp_ge_u32 s{sidx}, s{sND}", f"s_cselect_b32 s{sidx}, 0, s{sidx}"]


def g2_early(i):
    g = []
    for j in range(2):
        x = []
        if j == 0:
            x += [f"s_lshl_b32 s3, s{sBI}, 16", "s_add_u32 s3, s3, s5"]
        x += [f"s_add_u32 m0, s29, {K2_SB[i] * 16384 + j * 1024}",
              f"s_add_u32 s4, s3, {8 * j * 1024 + (i & 1) * 32768}",
              f"buffer_load_dwordx4 v{vDB2}, {sr(S_WD2, 4)}, s4 offen lds"]
        if j == 1 and i & 1:
            x += g2_adv(sBI)
        g.append(x)
    return g


def k1_gemm():
    S_X, S_WG, S_WU, S_WS = 44, 48, 52, 56
    sMT, sNT, sW, sT0, sT1, sW0, sMW, sROW = 60, 61, 62, 63, 64, 65, 66, 67
    sSB, sDS, sIT, sDB, sAUX = 68, 69, 72, 73, 83
    AF = 16
    ACC = 144
    BF = 208
    vDMA, vB0, vB1, vBc0, vBc1, vHoff = 240, 241, 242, 243, 244, 245
    vXD, vA0, vCS, vST, vXD1 = 40, 41, 42, 43, 39
    vAk = 44
    CSR = 80
    e("k1_gemm:")
    e("s_sub_u32 s3, s2, %d" % K1_NCONV)
    c("k = 22*(t%8) + t/8 ; mh = k/88 ; rem = k%88 ; nt = rem/8 ; mt = mh*8 + rem%8")
    e("s_and_b32 s4, s3, 7")
    e("s_mul_i32 s4, s4, 22")
    e("s_lshr_b32 s5, s3, 3")
    e("s_add_u32 s4, s4, s5")
    e("s_cmp_ge_u32 s4, 88")
    e("s_cselect_b32 s5, 88, 0")
    e(f"s_cselect_b32 s{sMT}, 8, 0")
    e("s_sub_u32 s4, s4, s5")
    e(f"s_lshr_b32 s{sNT}, s4, 3")
    e("s_and_b32 s4, s4, 7")
    e(f"s_add_u32 s{sMT}, s{sMT}, s4")
    e("v_lshrrev_b32 v2, 6, v0")
    e("v_and_b32 v1, 63, v0")
    e(f"v_readfirstlane_b32 s{sW}, v2")
    c("x DMA lane offset: row = l>>3, src chunk = (l&7) ^ (row&7)")
    e("v_lshrrev_b32 v2, 3, v1")
    e("v_and_b32 v3, 7, v1")
    if ASW:
        e("v_lshrrev_b32 v4, 4, v1")
        e("v_xor_b32 v3, v3, v4")
    else:
        e("v_xor_b32 v3, v3, v2")
    e("v_lshlrev_b32 v3, 4, v3")
    e(f"v_lshl_add_u32 v{vXD}, v2, 10, v3")
    e(f"v_xor_b32 v{vXD1}, {64 if ASW else 0}, v{vXD}")
    c("W DMA lane offsets")
    e("v_lshrrev_b32 v12, 4, v1")
    e("v_and_b32 v13, 15, v1")
    e("v_lshlrev_b32 v14, 2, v12")
    e("v_xor_b32 v13, v13, v14")
    e("v_lshlrev_b32 v13, 4, v13")
    e("v_mul_u32_u24 v14, 2752, v12")
    e(f"v_add_u32 v{vDMA}, v13, v14")
    e(f"s_mul_i32 s{sW0}, s{sW}, {8 * 2752}")
    e(f"s_lshl_b32 s{sT0}, s{sNT}, 8")
    e(f"s_add_u32 s{sW0}, s{sW0}, s{sT0}")
    e(f"s_lshl_b32 s{sMW}, s{sW}, 11")
    e(f"s_lshl_b32 s{sROW}, s{sMT}, 17")
    e(f"s_lshl_b32 s{sT0}, s{sW}, 14")
    e(f"s_add_u32 s{sROW}, s{sROW}, s{sT0}")
    e(f"s_mov_b32 s{sDS}, 0")
    e(f"s_mov_b32 s{sDB}, s{sMW}")
    e(f"s_mov_b32 s{sSB}, s{sROW}")
    if KROT:
        c("K order rotated per XCD (spreads the cold fetches over the memory channels)")
        if KROT == 1:
            e(f"s_and_b32 s{sIT}, s2, 7")
        elif KROT == 2:
            e(f"s_and_b32 s{sIT}, s2, 3")
            e(f"s_lshl_b32 s{sIT}, s{sIT}, 1")
        elif KROT == 3:
            e(f"s_and_b32 s{sIT}, s{sMT}, 7")
        elif KROT == 4:
            e(f"s_and_b32 s{sIT}, s{sNT}, 7")
        e(f"s_lshl_b32 s{sT0}, s{sIT}, 7")
        e(f"s_add_u32 s{sROW}, s{sROW}, s{sT0}")
        e(f"s_mul_i32 s{sT0}, s{sIT}, {64 * 2752}")
        e(f"s_add_u32 s{sW0}, s{sW0}, s{sT0}")
    e("s_waitcnt lgkmcnt(0)")
    stamp(0)
    make_srd(S_X, P_Q, 2048 * 1024)
    make_srd(S_WG, P_WG, 512 * 2752)
    make_srd(S_WU, P_WU, 512 * 2752)
    make_srd(S_WS, P_WS, 0x1000000)

    def dma_groups():
        g = []
        for j in range(2):
            g.append([f"s_add_u32 m0, s{sDB}, {32768 + j * 1024}",
                      f"s_add_u32 s{sT0}, s{sROW}, {j * 8192}",
                      f"buffer_load_dwordx4 v{vXD1 if j else vXD}, {sr(S_X, 4)}, s{sT0} offen lds"])
        for part in range(2):
            for j in range(2):
                g.append([f"s_add_u32 m0, s{sDB}, {part * 16384 + j * 1024}",
                          f"s_add_u32 s{sT0}, s{sW0}, {4 * j * 2752}",
                          f"buffer_load_dwordx4 v{vDMA}, {sr(S_WU if part else S_WG, 4)}, s{sT0} offen lds"])
        g[-1] += [f"s_add_u32 s{sROW}, s{sROW}, 128",
                  f"s_add_u32 s{sW0}, s{sW0}, {64 * 2752}"]
        if KROT:
            g[-1] += [f"s_add_u32 s{sIT}, s{sIT}, 1",
                      f"s_cmp_eq_u32 s{sIT}, 8",
                      f"s_cselect_b32 s{sT0}, 1024, 0",
                      f"s_cselect_b32 s{sT1}, {512 * 2752}, 0",
                      f"s_sub_u32 s{sROW}, s{sROW}, s{sT0}",
                      f"s_sub_u32 s{sW0}, s{sW0}, s{sT1}"]
        g[-1] += [
                  f"s_add_u32 s{sDS}, s{sDS}, {K1_STG}",
                  f"s_cmp_ge_u32 s{sDS}, {3 * K1_STG}",
                  f"s_cselect_b32 s{sDS}, 0, s{sDS}",
                  f"s_add_u32 s{sDB}, s{sDS}, s{sMW}"]
        return g

    def dma_slab():
        for g in dma_groups():
            for x in g:
                e(x)

    STG = int(os.environ.get('STG', '0'))

    def linpf():
        c("linear prefetch of a slice of Wg, Wu, x (DRAM friendly)")
        e("s_sub_u32 s3, s2, %d" % K1_NCONV)
        e("s_lshl_b32 s3, s3, 3")
        e(f"s_add_u32 s3, s3, s{sW}")
        e("s_lshl_b32 s3, s3, 10")
        e("v_lshlrev_b32 v4, 4, v1")
        e(f"buffer_load_dwordx4 v[80:83], v4, {sr(S_WG, 4)}, s3 offen")
        e(f"buffer_load_dwordx4 v[80:83], v4, {sr(S_WU, 4)}, s3 offen")
        e(f"buffer_load_dwordx4 v[80:83], v4, {sr(S_X, 4)}, s3 offen")
        e(f"s_add_u32 s3, s3, {1408 * 1024}")
        e(f"buffer_load_dwordx4 v[80:83], v4, {sr(S_X, 4)}, s3 offen")
    if LPF == 1:
        linpf()
    dma_slab()
    if LPF == 2:
        linpf()
    if STG & 1:
        e("s_barrier")
    if STG & 4:
        e("s_sleep 8")
    dma_slab()
    if STG & 2:
        e("s_barrier")
    if STG & 8:
        e("s_sleep 8")
    if not LATE2:
        dma_slab()
    if LPF == 3:
        linpf()
    if PSET:
        stamp(8)
    S_OWN, S_OTH = 20, 24
    c("partial sums source + L2 prefetch: W rows (mt%8)*64.. ; own part = mt/8 (summed), other part prefetch only")
    e(f"s_cmp_ge_u32 s{sMT}, 8")
    for i in range(4):
        e(f"s_cselect_b32 s{S_OWN + i}, s{S_WU + i}, s{S_WG + i}")
        e(f"s_cselect_b32 s{S_OTH + i}, s{S_WG + i}, s{S_WU + i}")
    e(f"s_and_b32 s{sT0}, s{sMT}, 7")
    e(f"s_mul_i32 s{sT0}, s{sT0}, {64 * 2752}")
    e(f"s_lshl_b32 s{sT1}, s{sNT}, 8")
    e(f"s_add_u32 s{sT0}, s{sT0}, s{sT1}")
    e(f"s_lshl_b32 s{sT1}, s{sW}, 5")
    e(f"s_add_u32 s18, s{sT1}, s{sT0}")
    e(f"s_add_u32 s19, s18, {32 * 2752}")
    e("v_lshrrev_b32 v12, 1, v1")
    e("v_mul_u32_u24 v12, 2752, v12")
    e("v_and_b32 v13, 1, v1")
    e("v_lshl_add_u32 v76, v13, 4, v12")
    e(f"s_mul_i32 s{sT1}, s{sW}, {8 * 2752}")
    e(f"s_add_u32 s28, s{sT1}, s{sT0}")
    e("v_lshrrev_b32 v12, 4, v1")
    e(f"v_mul_u32_u24 v12, {2 * 2752}, v12")
    e("v_and_b32 v13, 15, v1")
    e("v_lshl_add_u32 v77, v13, 4, v12")
    c("x rows 16w + l/4, bytes (nt&7)*128 + (l%4)*32 + {0,16}")
    e(f"s_and_b32 s{sT1}, s{sNT}, 7")
    e(f"s_lshl_b32 s{sT1}, s{sT1}, 7")
    e(f"s_add_u32 s29, s{sT1}, s{sSB}")
    e("v_lshrrev_b32 v12, 2, v1")
    e("v_and_b32 v13, 3, v1")
    e("v_lshlrev_b32 v13, 5, v13")
    e("v_lshl_add_u32 v78, v12, 10, v13")
    PFL = [f"buffer_load_dwordx4 v[48:51], v76, {sr(S_OWN, 4)}, s18 offen",
           f"buffer_load_dwordx4 v[52:55], v76, {sr(S_OWN, 4)}, s19 offen",
           f"buffer_load_dwordx4 v[64:67], v78, {sr(S_X, 4)}, s29 offen",
           f"buffer_load_dwordx4 v[68:71], v78, {sr(S_X, 4)}, s29 offen offset:16",
           f"buffer_load_dwordx4 v[56:59], v77, {sr(S_OTH, 4)}, s28 offen",
           f"buffer_load_dwordx4 v[60:63], v77, {sr(S_OTH, 4)}, s28 offen offset:2752"]
    c("partial store addresses")
    vPC, vPS = 72, 73
    e(f"s_lshl_b32 s{sT0}, s{sNT}, 1")
    e(f"s_lshr_b32 s{sT1}, s{sMT}, 3")
    e(f"s_add_u32 s{sT0}, s{sT0}, s{sT1}")
    e(f"s_lshl_b32 s{sT0}, s{sT0}, 3")
    e(f"s_and_b32 s{sT1}, s{sMT}, 7")
    e(f"s_add_u32 s{sT0}, s{sT0}, s{sT1}")
    e(f"s_lshl_b32 s{sT0}, s{sT0}, 10")
    e(f"s_lshl_b32 s{sT1}, s{sW}, 7")
    e(f"s_add_u32 s{sT0}, s{sT0}, s{sT1}")
    e(f"s_add_u32 s{sT0}, s{sT0}, {WS_CS}")
    e("v_and_b32 v12, 1, v1")
    e(f"v_lshl_add_u32 v{vPC}, v12, 5, s{sT0}")
    e("v_lshrrev_b32 v12, 1, v1")
    e("v_and_b32 v13, 1, v12")
    e(f"v_lshl_add_u32 v{vPC}, v13, 4, v{vPC}")
    e("v_lshrrev_b32 v12, 1, v12")
    e(f"v_lshl_add_u32 v{vPC}, v12, 6, v{vPC}")
    e(f"s_lshl_b32 s{sT0}, s{sMT}, 4")
    e(f"s_add_u32 s{sT0}, s{sT0}, s{sNT}")
    e(f"s_lshl_b32 s{sT0}, s{sT0}, 10")
    e(f"s_lshl_b32 s{sT1}, s{sW}, 7")
    e(f"s_add_u32 s{sT0}, s{sT0}, s{sT1}")
    e(f"s_add_u32 s{sT0}, s{sT0}, {WS_SP}")
    e("v_lshrrev_b32 v12, 2, v1")
    e(f"v_lshl_add_u32 v{vPS}, v12, 3, s{sT0}")
    e("s_mov_b32 s74, 0x3f80")
    e("s_mov_b32 s75, 0x3f800000")
    e("s_mov_b32 s76, 0x3f803f80")
    e(f"s_cmp_eq_u32 s{sW}, 4")
    e("s_cselect_b32 s77, 1, 0")
    e(f"s_cmp_eq_u32 s{sW}, 0")
    e("s_cselect_b32 s78, 3, 99")
    e("s_cselect_b32 s5, 4, 99")
    e("s_lshl_b32 s83, s2, 8")
    e(f"s_add_u32 s83, s83, {WS_MB + 128}")
    for r in range(12):
        e(f"v_mov_b32 v{24 + r}, 0")
    c("A frag read address: 32768 + r*128 + ((2kk+g) ^ (r&7))*16 ; r = (w%4)*32 + l%32 ; kk via xor kk<<5")
    e(f"s_and_b32 s{sT0}, s{sW}, 3")
    e(f"s_lshl_b32 s{sT0}, s{sT0}, 5")
    e("v_and_b32 v2, 31, v1")
    e(f"v_add_u32 v6, s{sT0}, v2")
    if ASW:
        e("v_lshrrev_b32 v7, 1, v2")
        e("v_and_b32 v7, 7, v7")
    else:
        e("v_and_b32 v7, 7, v2")
    e("v_lshrrev_b32 v8, 5, v1")
    e("v_xor_b32 v7, v7, v8")
    e("v_lshlrev_b32 v7, 4, v7")
    e("v_lshl_add_u32 v7, v6, 7, v7")
    e(f"v_add_u32 v{vA0}, 32768, v7")
    c("partial row stats address: WS_SP + mt*16384 + r*8 (+ slot*1024)")
    e(f"s_lshl_b32 s{sT1}, s{sMT}, 14")
    e(f"s_add_u32 s{sT1}, s{sT1}, {WS_SP}")
    e(f"v_lshl_add_u32 v{vST}, v6, 3, s{sT1}")
    c("h store offset: (mt*128 + (w%4)*32 + l/8)*HP + nt*256 + nh*128 + (l%8)*16")
    e(f"s_lshl_b32 s{sT1}, s{sMT}, 7")
    e(f"s_add_u32 s{sT1}, s{sT1}, s{sT0}")
    e("v_lshrrev_b32 v6, 3, v1")
    e(f"v_add_u32 v6, s{sT1}, v6")
    e(f"v_mov_b32 v7, {HP}")
    e("v_mul_lo_u32 v6, v6, v7")
    e(f"s_lshr_b32 s{sT0}, s{sW}, 2")
    e(f"s_lshl_b32 s{sT0}, s{sT0}, 7")
    e(f"s_lshl_b32 s{sT1}, s{sNT}, 8")
    e(f"s_add_u32 s{sT0}, s{sT0}, s{sT1}")
    e(f"v_add_u32 v6, s{sT0}, v6")
    e("v_and_b32 v9, 7, v1")
    e(f"v_lshl_add_u32 v{vHoff}, v9, 4, v6")
    if PLH >= 0:
        c("pre-touch address of the own h tile: row l/2, 64 B half l%2")
        e(f"v_readfirstlane_b32 s{sT1}, v{vHoff}")
        e("v_lshrrev_b32 v36, 1, v1")
        e(f"v_mul_u32_u24 v36, {HP}, v36")
        e("v_and_b32 v37, 1, v1")
        e("v_lshl_add_u32 v36, v37, 6, v36")
        e(f"v_add_u32 v36, s{sT1}, v36")
    if PLO >= 0:
        out_pre_addr(sW, 37, 84)
    c("partial cs address: WS_CS + (nt*2 + g)*8192 + nh*512 + ((l%32)/8)*128 + (l%8)*8 (+ j*1024)")
    e(f"s_lshr_b32 s{sT0}, s{sW}, 2")
    e(f"s_lshl_b32 s{sT0}, s{sT0}, 9")
    e(f"s_lshl_b32 s{sT1}, s{sNT}, 14")
    e(f"s_add_u32 s{sT0}, s{sT0}, s{sT1}")
    e(f"s_add_u32 s{sT0}, s{sT0}, {WS_CS}")
    e(f"v_lshl_add_u32 v{vCS}, v8, 13, s{sT0}")
    e(f"v_lshl_add_u32 v{vCS}, v9, 3, v{vCS}")
    e("v_lshrrev_b32 v7, 3, v2")
    e(f"v_lshl_add_u32 v{vCS}, v7, 7, v{vCS}")
    c("B tr-read lane addresses for tiles T0=2nh, T1=2nh+1")
    e("v_and_b32 v2, 15, v1")
    e("v_lshrrev_b32 v6, 2, v2")
    e("v_lshrrev_b32 v7, 5, v1")
    e("v_lshl_add_u32 v7, v7, 3, v6")
    e("v_lshlrev_b32 v7, 8, v7")
    e("v_lshrrev_b32 v8, 4, v1")
    e("v_and_b32 v8, 1, v8")
    e("v_lshlrev_b32 v8, 5, v8")
    e("v_add_u32 v7, v7, v8")
    e("v_and_b32 v8, 3, v2")
    e("v_lshlrev_b32 v8, 3, v8")
    e("v_add_u32 v7, v7, v8")
    e(f"s_lshr_b32 s{sT0}, s{sW}, 2")
    e(f"s_lshl_b32 s{sT0}, s{sT0}, 1")
    e(f"v_xor_b32 v8, s{sT0}, v6")
    e(f"v_lshl_add_u32 v{vB0}, v8, 6, v7")
    e("v_xor_b32 v8, 1, v8")
    e(f"v_lshl_add_u32 v{vB1}, v8, 6, v7")
    if os.environ.get('BLIN'):
        e(f"v_lshlrev_b32 v{vB0}, 3, v1")
        e(f"v_add_u32 v{vB1}, 512, v{vB0}")
    if os.environ.get('ALIN'):
        e(f"v_lshlrev_b32 v{vA0}, 4, v1")
        e(f"v_add_u32 v{vA0}, 32768, v{vA0}")

    vAD = 112
    for t in range(3):
        e(f"v_add_u32 v{vAD + 6 * t}, {K1_STG * t}, v{vB0}")
        e(f"v_add_u32 v{vAD + 6 * t + 1}, {K1_STG * t}, v{vB1}")
        e(f"v_add_u32 v{vAD + 6 * t + 2}, {K1_STG * t}, v{vA0}")
        for kk in range(1, 4):
            e(f"v_xor_b32 v{vAD + 6 * t + 2 + kk}, {32 * kk}, v{vAD + 6 * t + 2}")

    def rlist(s, kk):
        st = kk & 1
        ad = vAD + 6 * (s % 3)
        r = [f"ds_read_b128 {vr(AF + 4 * st, 4)}, v{ad + 2 + kk}"]
        for ti in range(4):
            part, T = ti >> 1, ti & 1
            for u in range(2):
                off = part * 16384 + (16 * kk + 4 * u) * 256
                r.append(f"ds_read_b64_tr_b16 {vr(BF + 16 * st + 4 * ti + 2 * u, 2)}, v{ad + T} offset:{off}")
        return r

    def side_first():
        s = []
        PA, PT = 24, 32
        for row in range(2):
            for d in range(4):
                x = 48 + 4 * row + d
                s += [f"v_dot2c_f32_bf16 v{PA + 2 * d}, s74, v{x}", f"v_dot2c_f32_bf16 v{PA + 2 * d + 1}, s75, v{x}"]
        for i in range(8):
            s += [f"v_dot2c_f32_bf16 v{PT + (i & 1)}, s76, v{64 + i}",
                  f"v_dot2c_f32_bf16 v{PT + 2 + (i & 1)}, v{64 + i}, v{64 + i}"]
        s += ["s_nop 3"]
        for sh in (2, 4, 8):
            for r in range(8):
                s.append(f"v_add_f32_dpp v{PA + r}, v{PA + r}, v{PA + r} row_ror:{sh} row_mask:0xf bank_mask:0xf")
        s += [f"v_add_f32 v{PT}, v{PT}, v{PT + 1}", f"v_add_f32 v{PT + 1}, v{PT + 2}, v{PT + 3}"]
        for sw in ("v_permlane16_swap_b32", "v_permlane32_swap_b32"):
            for r in range(8):
                s.append(f"v_mov_b32 v{4 + r}, v{PA + r}")
            for r in range(8):
                s.append(f"{sw} v{4 + r}, v{PA + r}")
            qp = "[1,0,3,2]" if "16" in sw else "[2,3,0,1]"
            s += [f"v_add_f32_dpp v{PT}, v{PT}, v{PT} quad_perm:{qp} row_mask:0xf bank_mask:0xf",
                  f"v_add_f32_dpp v{PT + 1}, v{PT + 1}, v{PT + 1} quad_perm:{qp} row_mask:0xf bank_mask:0xf"]
            for r in range(8):
                s.append(f"v_add_f32 v{PA + r}, v{4 + r}, v{PA + r}")
        s += [("v_and_b32 v4, 3, v1", "v_cmp_eq_u32 vcc, 0, v4", "s_and_saveexec_b64 s[70:71], vcc",
               f"buffer_store_dwordx2 {vr(PT, 2)}, v{vPS}, {sr(S_WS, 4)}, 0 offen sc1",
               "s_mov_b64 exec, s[70:71]", "v_and_b32 v4, 2, v1", "v_cmp_ne_u32 vcc, 0, v4",
               f"v_cndmask_b32 v{PA}, v{PA}, v{PA + 4}, vcc", f"v_cndmask_b32 v{PA + 1}, v{PA + 1}, v{PA + 5}, vcc",
               f"v_cndmask_b32 v{PA + 2}, v{PA + 2}, v{PA + 6}, vcc", f"v_cndmask_b32 v{PA + 3}, v{PA + 3}, v{PA + 7}, vcc",
               "v_cmp_gt_u32 vcc, 8, v1", "s_and_b64 exec, s[70:71], vcc",
               f"buffer_store_dwordx4 {vr(PA, 4)}, v{vPC}, {sr(S_WS, 4)}, 0 offen sc1",
               "s_mov_b64 exec, s[70:71]",
               "s_cmp_eq_u32 s77, 0", "s_cbranch_scc1 k1_nozl",
               f"s_mov_b32 s{S_DB2}, s{P_DBG}", f"s_and_b32 s{S_DB2 + 1}, s{P_DBG + 1}, 0xffff",
               f"s_mov_b32 s{S_DB2 + 2}, 256", f"s_mov_b32 s{S_DB2 + 3}, 0x00020000",
               f"v_mov_b32 v15, {ZOFF}",
               f"buffer_load_dword v74, v15, {sr(S_DB2, 4)}, 0 offen sc1",
               "k1_nozl:")]
        return s

    def stats_math(SX, SQ, T):
        return [f"v_mul_f32 v{T}, 0x3b000000, v{SX}",
                f"v_mul_f32 v{T + 2}, 0x3b000000, v{SQ}",
                f"v_fma_f32 v{T + 2}, -v{T}, v{T}, v{T + 2}",
                f"v_max_f32 v{T + 2}, 0, v{T + 2}",
                f"v_cvt_pk_bf16_f32 v{T + 1}, v{T}, v{T + 2}",
                f"v_lshlrev_b32 v{T + 4}, 16, v{T + 1}",
                f"v_and_b32 v{T + 2}, 0xffff0000, v{T + 1}",
                f"v_add_f32 v{T + 2}, 0x3727c5ac, v{T + 2}",
                f"v_cvt_pk_bf16_f32 v{T + 2}, v{T + 2}, v{T + 2}",
                f"v_and_b32 v{T + 2}, 0xffff0000, v{T + 2}",
                f"v_sqrt_f32 v{T + 2}, v{T + 2}",
                "s_nop 0",
                f"v_cvt_pk_bf16_f32 v{T + 2}, v{T + 2}, v{T + 2}",
                f"v_and_b32 v{T + 2}, 0xffff0000, v{T + 2}",
                f"v_rcp_f32 v250, v{T + 2}",
                "s_nop 0",
                f"v_mul_f32 v251, v{T + 4}, v250",
                "v_sub_f32 v251, 0, v251"]

    VM = ["s0"] * 6 + (["lp"] * 4 if LPF == 2 else []) + ["s1"] * 6 + ([] if LATE2 else ["s2"] * 6) + (["lp"] * 4 if LPF == 3 else [])

    def emit(x, tag=None):
        e(x)
        if x.startswith("buffer_") and tag:
            VM.append(tag)

    def nwait(*tags):
        last = max(i for i, t in enumerate(VM) if t in tags)
        return len(VM) - 1 - last

    S_SIDE, S_SIG, S_MBR, S_CHK, S_PL = 1, 2, 5, 5, 6

    def body(s):
        last = s == 7
        dg = dma_groups() if (0 if LATE2 else 1) <= s <= 5 else []
        dtag = f"s{s + 2}"
        side = side_first() if s == S_SIDE else []
        nside = (len(side) + 7) // 8
        ex = []
        if s == 0:
            ex = [[x] for x in PFL]
        if s == S_PL:
            for j in range(8):
                ex.append([f"s_mov_b32 s{sT0}, {1024 * j}",
                           f"buffer_load_dwordx2 {vr(48 + 2 * j, 2)}, v{vCS}, {sr(S_WS, 4)}, s{sT0} offen"])
                ex.append([f"buffer_load_dwordx2 {vr(64 + 2 * j, 2)}, v{vST}, {sr(S_WS, 4)}, s{sT0} offen"])
        eb = []
        if s >= 6:
            for i in range(3 * (s - 6), 3 * (s - 6) + 3):
                eb += g2_early(i)
        for kk in range(4):
            st = kk & 1
            rl = rlist(s, kk + 1) if kk < 3 else (rlist(s + 1, 0) if not last else [])
            issued = 0
            for m in range(4):
                if not (kk == 3 and m > 0):
                    e(f"s_waitcnt lgkmcnt({9 - (3 + 2 * m) + issued})")
                cc = "0" if (s == 0 and kk == 0) else vr(ACC + 16 * m, 16)
                e(f"v_mfma_f32_32x32x16_bf16 {vr(ACC + 16 * m, 16)}, {vr(BF + 16 * st + 4 * m, 4)}, "
                  f"{vr(AF + 4 * st, 4)}, {cc}")
                if kk == 3 and m == 0 and not last:
                    tags = [f"s{s + 1}"] + (["pst"] if s == S_SIG else []) + (["mbr"] if s == S_CHK else [])
                    e(f"s_waitcnt vmcnt({nwait(*tags)}) lgkmcnt(0)")
                    if s == S_CHK:
                        c("wave 0: all 24 partial producers have signalled? (else poll)")
                        e(f"s_cmp_eq_u32 s{sW}, 0")
                        e("s_cbranch_scc1 k1_chk")
                        with ool("k1_chk"):
                            pollmask(83, 0xffffff, S_WS, first=75)
                    e("s_barrier")
                    if s == 4:
                        stamp(2)
                    if s == S_SIG:
                        c("wave 4: everybody's partial stores are complete -> signal the consumers")
                        e(f"s_cmp_eq_u32 s{sW}, 4")
                        e("s_cbranch_scc1 k1_psig")
                        with ool("k1_psig"):
                            psig()
                for _ in range(3):
                    if rl:
                        e(rl.pop(0))
                        issued += 1
                if dg and kk < 3 and (m >= 2 or s == 0):
                    for x in dg.pop(0):
                        emit(x, dtag)
                elif ex:
                    for _ in range(2 if s == S_PL else 1):
                        if ex:
                            for x in ex.pop(0):
                                emit(x, "pf" if s == 0 else "pl")
                if eb and not ex and (kk < 3 or s == 6):
                    for x in eb.pop(0):
                        emit(x, "eb")
                if s == 4 and kk == 1 and m == 0:
                    g2_setup(sW, 6)
                if s == PLH and kk == 0 and m == 1:
                    emit(f"buffer_load_dword v38, v36, {sr(S_WS, 4)}, 0 offen", "plh")
                if s == PLO and kk == 1 and m == 1:
                    make_srd(84, P_OUT, 2048 * 1024)
                    emit(f"buffer_load_dword v38, v37, {sr(84, 4)}, 0 offen", "plo")
                if s == S_MBR and kk == 0 and m == 0:
                    c("every wave issues it (uniform counting), only wave 0 uses it")
                    e("v_and_b32 v15, 31, v1")
                    e("v_lshlrev_b32 v15, 2, v15")
                    e(f"s_cmp_eq_u32 s{sW}, 0")
                    e("s_cselect_b64 exec, -1, 0")
                    emit(f"buffer_load_dword v75, v15, {sr(S_WS, 4)}, s83 offen sc1", "mbr")
                    e("s_mov_b64 exec, -1")
                if side and kk in (1, 2):
                    if kk == 1 and m == 0:
                        e(f"s_waitcnt vmcnt({nwait('pf') + 2})")
                    for _ in range(nside):
                        if side:
                            x = side.pop(0)
                            for y in (x if isinstance(x, tuple) else (x,)):
                                emit(y, "pst" if "store" in y else None)
                if last and kk == 3:
                    if m == 0:
                        e(f"s_waitcnt vmcnt({nwait('pl')})")
                        for j in range(1, 8):
                            e(f"v_add_f32 v48, v48, v{48 + 2 * j}")
                            e(f"v_add_f32 v49, v49, v{49 + 2 * j}")
                            e(f"v_add_f32 v64, v64, v{64 + 2 * j}")
                            e(f"v_add_f32 v65, v65, v{65 + 2 * j}")
                        e(f"s_lshl_b32 s{sT0}, s{sW}, 9")
                        e(f"s_add_u32 s{sT0}, s{sT0}, {K1_EX}")
                        e(f"v_lshl_add_u32 v4, v1, 3, s{sT0}")
                        e("ds_write_b64 v4, v[48:49]")
                        e("v_lshrrev_b32 v4, 5, v1")
                        e(f"v_lshl_add_u32 v4, v4, 4, s{sT0}")
                        e("s_waitcnt lgkmcnt(0)")
                    elif m == 1:
                        for ti in range(4):
                            part, T = ti >> 1, ti & 1
                            for q in range(4):
                                e(f"ds_read_b128 {vr(CSR + 16 * ti + 4 * q, 4)}, v4 offset:{256 * part + 128 * T + 32 * q}")
                    elif m == 2:
                        for x in stats_math(64, 65, 8):
                            e(x)
        assert not dg and not side and not ex and not eb

    def psig():
        e(f"v_readfirstlane_b32 s{sZ}, v74")
        e("s_nop 3")
        zcheck()
        c("lanes 0-15: (mt'=l, nt) ; lanes 16-26: (mt, nt'=l-16) if nt < 8")
        e("v_cmp_gt_u32 vcc, 16, v1")
        e(f"v_mov_b32 v12, s{sMT}")
        e(f"v_mov_b32 v13, s{sNT}")
        e("v_subrev_u32 v14, 16, v1")
        e("v_cndmask_b32 v12, v12, v1, vcc")
        e("v_cndmask_b32 v13, v14, v13, vcc")
        e("v_lshrrev_b32 v14, 3, v12")
        e("v_mul_u32_u24 v14, 88, v14")
        e("v_lshl_add_u32 v14, v13, 3, v14")
        e("v_and_b32 v12, 7, v12")
        e("v_add_u32 v14, v14, v12")
        e("v_mul_u32_u24 v12, 2979, v14")
        e("v_lshrrev_b32 v12, 16, v12")
        e("v_mul_u32_u24 v13, 22, v12")
        e("v_sub_u32 v13, v14, v13")
        e("v_lshl_add_u32 v12, v13, 3, v12")
        e("v_lshlrev_b32 v12, 8, v12")
        e(f"s_lshl_b32 s79, s{sMT}, 2")
        e(f"s_add_u32 s79, s79, {WS_MB + 64 * 256 + 4 * MB_CS}")
        e(f"s_lshl_b32 s80, s{sNT}, 2")
        e(f"s_add_u32 s80, s80, {WS_MB + 64 * 256 + 4 * MB_ST}")
        e("v_mov_b32 v13, s80")
        e("v_mov_b32 v14, s79")
        e("v_cndmask_b32 v13, v13, v14, vcc")
        e("v_add_u32 v12, v12, v13")
        e("v_mov_b32 v13, 1")
        e(f"s_cmp_lt_u32 s{sNT}, 8")
        e("s_cselect_b32 s79, 27, 16")
        e("v_cmp_gt_u32 vcc, s79, v1")
        e("s_and_saveexec_b64 s[70:71], vcc")
        e(f"buffer_store_dword v13, v12, {sr(S_WS, 4)}, 0 offen sc1")
        e("s_mov_b64 exec, s[70:71]")

    mask_init()
    e("s_waitcnt lgkmcnt(0)")
    if PSET:
        stamp(9)
    e(f"s_waitcnt vmcnt({nwait('s0')})")
    if PSET:
        stamp(7)
    e("s_barrier")
    stamp(1)
    for x in rlist(0, 0):
        e(x)
    for s in range(8):
        body(s)
    stamp(3)
    e("v_and_b32 v2, 31, v1")
    e("v_lshrrev_b32 v3, 5, v1")
    if 0:
        c("prefetch a slice of w_down (1 KB per wave) towards MALL for k2")
        e("s_sub_u32 s3, s2, %d" % K1_NCONV)
        e("s_lshl_b32 s3, s3, 3")
        e(f"s_add_u32 s3, s3, s{sW}")
        e("s_lshl_b32 s3, s3, 10")
        make_srd(S_X, P_WD, 1376 * 1024)
        e("v_lshlrev_b32 v6, 4, v1")
        e(f"buffer_load_dwordx4 v[224:227], v6, {sr(S_X, 4)}, s3 offen")
    RS, NM = 246, 248
    c("epilogue: h = bf16(bf16(g)*bf16(u)); transpose via wave-private LDS (4 KB at 49152 + w*4096)")
    e("s_barrier")
    e(f"s_lshl_b32 s{sT0}, s{sW}, 12")
    e(f"s_add_u32 s{sT0}, s{sT0}, 49152")
    e("v_and_b32 v4, 7, v2")
    e("v_xor_b32 v4, v4, v3")
    e("v_lshlrev_b32 v4, 4, v4")
    e("v_lshl_add_u32 v4, v2, 7, v4")
    e(f"v_add_u32 v4, s{sT0}, v4")
    e("v_lshrrev_b32 v5, 3, v1")
    e("v_and_b32 v6, 7, v1")
    e("v_xor_b32 v6, v6, v5")
    e("v_lshlrev_b32 v6, 4, v6")
    e("v_lshl_add_u32 v6, v5, 7, v6")
    e(f"v_add_u32 v6, s{sT0}, v6")
    e(f"v_mov_b32 v{RS}, v250")
    e(f"v_mov_b32 v{RS + 1}, v250")
    e(f"v_mov_b32 v{NM}, v251")
    e(f"v_mov_b32 v{NM + 1}, v251")
    e("s_waitcnt lgkmcnt(0)")
    for r in range(0, 64, 2):
        e(f"v_pk_mul_f32 {vr(CSR + r, 2)}, {vr(CSR + r, 2)}, {vr(NM, 2)}")
    for r in range(0, 64, 2):
        e(f"v_pk_fma_f32 {vr(ACC + r, 2)}, {vr(ACC + r, 2)}, {vr(RS, 2)}, {vr(CSR + r, 2)}")
    for T in range(2):
        G, U = ACC + 16 * T, ACC + 32 + 16 * T
        for qq in range(2):
            o = 16 + 4 * (2 * T + qq)
            for h2 in range(4):
                r = 8 * qq + 2 * h2
                e(f"v_cvt_pk_bf16_f32 v8, v{G + r}, v{G + r + 1}")
                e(f"v_cvt_pk_bf16_f32 v9, v{U + r}, v{U + r + 1}")
                e("v_lshlrev_b32 v10, 16, v8")
                e("v_and_b32 v11, 0xffff0000, v8")
                e("v_lshlrev_b32 v12, 16, v9")
                e("v_and_b32 v13, 0xffff0000, v9")
                e("v_mul_f32 v10, v10, v12")
                e("v_mul_f32 v11, v11, v13")
                e(f"v_cvt_pk_bf16_f32 v{o + h2}, v10, v11")
            e("s_nop 1")
            e(f"v_permlane32_swap_b32 v{o}, v{o + 2}")
            e(f"v_permlane32_swap_b32 v{o + 1}, v{o + 3}")
            e(f"v_xor_b32 v7, {(4 * T + 2 * qq) << 4}, v4")
            e(f"ds_write_b128 v7, {vr(o, 4)}")
    e(f"s_mov_b32 s{sZ}, 1")
    e(f"s_cmp_ge_u32 s{sW}, 4")
    e("s_cbranch_scc1 k1_stw")
    c("compute waves of GEMM2: early B DMAs done, h tile in LDS -> barrier 1")
    e("s_waitcnt vmcnt(0) lgkmcnt(0)")
    e("s_barrier")
    stamp(4)
    e("s_branch g2_entry")
    e("k1_stw:")
    c("store waves: own tile (nh = 1) first, then the partner's (nh = 0)")
    e("s_waitcnt lgkmcnt(0)")
    for j in range(4):
        e(f"ds_read_b128 {vr(32 + 4 * j, 4)}, v6 offset:{1024 * j}")
    e("s_waitcnt vmcnt(0)")
    c("row stats store (nt == 0, waves 4-7, lanes 0-31)")
    e(f"s_cmp_lg_u32 s{sNT}, 0")
    e("s_cbranch_scc1 k1_nostat")
    e(f"s_lshl_b32 s{sT0}, s{sMT}, 7")
    e(f"s_and_b32 s{sT1}, s{sW}, 3")
    e(f"s_lshl_b32 s{sT1}, s{sT1}, 5")
    e(f"s_add_u32 s{sT0}, s{sT0}, s{sT1}")
    e(f"s_lshl_b32 s{sT0}, s{sT0}, 3")
    e(f"s_add_u32 s{sT0}, s{sT0}, {WS_ST}")
    e("v_lshlrev_b32 v15, 3, v2")
    e("v_cmp_eq_u32 vcc, 0, v3")
    e("s_and_saveexec_b64 s[70:71], vcc")
    e(f"buffer_store_dwordx2 v[250:251], v15, {sr(S_WS, 4)}, s{sT0} offen{STC}")
    e("s_mov_b64 exec, s[70:71]")
    e("k1_nostat:")
    for j in range(4):
        e(f"s_waitcnt lgkmcnt({3 - j})")
        e(f"s_mov_b32 s{sT0}, {8 * j * HP}")
        e(f"buffer_store_dwordx4 {vr(32 + 4 * j, 4)}, v{vHoff}, {sr(S_WS, 4)}, s{sT0} offen{STC}")
    e("s_barrier")
    e("v_subrev_u32 v6, 16384, v6")
    for j in range(4):
        e(f"ds_read_b128 {vr(48 + 4 * j, 4)}, v6 offset:{1024 * j}")
    e(f"v_subrev_u32 v7, 128, v{vHoff}")
    for j in range(4):
        e(f"s_waitcnt lgkmcnt({3 - j})")
        e(f"s_mov_b32 s{sT0}, {8 * j * HP}")
        e(f"buffer_store_dwordx4 {vr(48 + 4 * j, 4)}, v7, {sr(S_WS, 4)}, s{sT0} offen{STC}")
    e("s_waitcnt lgkmcnt(0)")
    e("s_barrier")
    stamp(4)
    signal(sW, S_WS, "h", sMT, sNT)
    e("s_branch g2_entry")
    flush_ool()


def k1_aux():
    sW = 62
    e("k1_aux:")
    e("v_lshrrev_b32 v2, 6, v0")
    e("v_and_b32 v1, 63, v0")
    e(f"v_readfirstlane_b32 s{sW}, v2")
    e("s_waitcnt lgkmcnt(0)")
    stamp(0)
    e(f"s_mov_b32 s{sZ}, 0")
    g2_setup(sW, 0)
    if PLO >= 0:
        out_pre_addr(sW, 206, 84)
        make_srd(84, P_OUT, 2048 * 1024)
        e(f"buffer_load_dword v207, v206, {sr(84, 4)}, 0 offen")
    c("WG 240: zero all mailboxes (64 KB), then set the flag in d_debug")
    make_srd(48, P_WS, 0x1000000)
    make_srd(S_DB2, P_DBG, 256)
    e("s_cmp_lg_u32 s2, 240")
    e("s_cbranch_scc1 aux_nz")
    e(f"s_lshl_b32 s3, s{sW}, 13")
    e(f"s_add_u32 s3, s3, {WS_MB}")
    e("v_lshlrev_b32 v3, 4, v1")
    for r in range(4):
        e(f"v_mov_b32 v{4 + r}, 0")
    for j in range(8):
        e("buffer_store_dwordx4 v[4:7], v3, s[48:51], s3 offen sc1")
        e("s_add_u32 s3, s3, 1024")
    e("s_waitcnt vmcnt(0)")
    e("s_barrier")
    stamp(1)
    e(f"s_cmp_lg_u32 s{sW}, 0")
    e("s_cbranch_scc1 aux_nz")
    e("v_mov_b32 v14, 1")
    e(f"v_mov_b32 v15, {ZOFF}")
    e("v_cmp_eq_u32 vcc, 0, v1")
    e("s_and_saveexec_b64 s[70:71], vcc")
    e(f"buffer_store_dword v14, v15, {sr(S_DB2, 4)}, 0 offen sc1")
    e("s_mov_b64 exec, s[70:71]")
    e("aux_nz:")
    if PREF3 == 0:
        e("s_branch g2_entry")
        return
    if PREF3 == 2:
        e(f"s_cmp_lt_u32 s{sW}, 5")
        e("s_cbranch_scc1 g2_entry")
    for _ in range(ASLEEP):
        e("s_sleep 16")
    c("pull half of w_down into this XCD's L2 (86 KB per wave)")
    make_srd(44, P_WD, 1376 * 1024)
    e("s_sub_u32 s3, s2, 240")
    e("s_lshr_b32 s3, s3, 3")
    e("s_lshl_b32 s3, s3, 3")
    e(f"s_add_u32 s3, s3, s{sW}")
    e("s_mul_i32 s3, s3, 88064")
    e("v_lshlrev_b32 v3, 4, v1")
    for j in range(86):
        e(f"buffer_load_dwordx4 {vr(16 + 4 * (j % 8), 4)}, v3, s[44:47], s3 offen")
        e("s_add_u32 s3, s3, 1024")
        if j >= 32:
            e("s_waitcnt vmcnt(32)")
        if j == 41:
            stamp(2)
    e("s_waitcnt vmcnt(0)")
    stamp(5)
    e("s_branch g2_entry")


CV_R = 0
CV_RSTR = 4608
CV_KT = 0
CV_KSTR = 8320
CV_KCPY = 4160
CV_T = 98304
CV_TP = 528


def k1_conv():
    S_K, S_V, S_SK, S_WS, S_SH, S_DBG = 44, 48, 52, 56, 72, 76
    sW, sT0, sT1, sD, sG, sJ, sCG, sRB = 62, 63, 64, 65, 66, 67, 68, 69
    e("k1_conv:")
    e("v_lshrrev_b32 v2, 6, v0")
    e("v_and_b32 v1, 63, v0")
    e(f"v_readfirstlane_b32 s{sW}, v2")
    e("s_waitcnt lgkmcnt(0)")
    stamp(0)
    for _ in range(CSLEEP):
        e("s_sleep 16")
    make_srd(S_K, P_K, 2048 * 1024)
    make_srd(S_V, P_V, 2048 * 1024)
    make_srd(S_SK, P_SK, 512 * 4096)
    make_srd(S_WS, P_WS, 0x1000000)
    make_srd(S_SH, P_SH, 4096)
    make_srd(S_DBG, P_DBG, 256)
    c("G = id%8 (64-channel group, one XCD), J = id/8 (256-row block / channel sub-group), cg = 8G + J")
    e(f"s_and_b32 s{sG}, s2, 7")
    e(f"s_lshr_b32 s{sJ}, s2, 3")
    e(f"s_lshl_b32 s{sCG}, s{sG}, 3")
    e(f"s_add_u32 s{sCG}, s{sCG}, s{sJ}")
    e(f"s_mul_i32 s{sRB}, s{sW}, {CV_RSTR}")
    e(f"s_cmp_ge_u32 s{sW}, 6")
    e(f"s_mov_b32 s{sT0}, 66560")
    e(f"s_cselect_b32 s{sT0}, {147456 - 6 * CV_RSTR}, s{sT0}")
    e(f"s_add_u32 s{sRB}, s{sRB}, s{sT0}")
    c("---- kv phase: rows J*256 + 4*rg.., channels G*64 + cs*8..")
    e("v_lshrrev_b32 v2, 3, v0")
    e("v_and_b32 v3, 7, v0")
    e(f"s_lshl_b32 s{sT0}, s{sJ}, 18")
    e(f"s_lshl_b32 s{sT1}, s{sG}, 7")
    e(f"s_add_u32 s{sT0}, s{sT0}, s{sT1}")
    e("v_lshlrev_b32 v4, 12, v2")
    e("v_lshl_add_u32 v4, v3, 4, v4")
    e(f"v_add_u32 v4, s{sT0}, v4")
    e("v_subrev_u32 v5, 3072, v4")
    KD, VD, WD = 16, 44, 60
    for r in range(3):
        e(f"buffer_load_dwordx4 {vr(KD + 4 * r, 4)}, v5, {sr(S_K, 4)}, 0 offen offset:{1024 * r}")
    for r in range(4):
        e(f"buffer_load_dwordx4 {vr(KD + 12 + 4 * r, 4)}, v4, {sr(S_K, 4)}, 0 offen offset:{1024 * r}")
    for r in range(4):
        e(f"buffer_load_dwordx4 {vr(VD + 4 * r, 4)}, v4, {sr(S_V, 4)}, 0 offen offset:{1024 * r}")
    e(f"s_lshl_b32 s{sT1}, s{sG}, 9")
    e("v_lshlrev_b32 v6, 6, v3")
    e(f"v_add_u32 v6, s{sT1}, v6")
    for j in range(4):
        e(f"buffer_load_dwordx4 {vr(WD + 4 * j, 4)}, v6, {sr(S_SH, 4)}, 0 offen offset:{16 * j}")
    c("ssm_D for this wave's channel")
    e(f"s_lshl_b32 s{sT0}, s{sCG}, 4")
    e(f"s_lshl_b32 s{sT1}, s{sW}, 1")
    e(f"s_add_u32 s{sT0}, s{sT0}, s{sT1}")
    e(f"s_and_b32 s{sT1}, s{sT0}, 0xfffffffc")
    e(f"s_add_u32 s{P_SD}, s{P_SD}, s{sT1}")
    e(f"s_addc_u32 s{P_SD + 1}, s{P_SD + 1}, 0")
    e(f"s_load_dword s{sD}, {sr(P_SD, 2)}, 0")
    c("ssm_k row of this wave's channel")
    SKD = 232
    e(f"s_lshl_b32 s{sT0}, s{sCG}, 3")
    e(f"s_add_u32 s{sT0}, s{sT0}, s{sW}")
    e(f"s_lshl_b32 s{sT0}, s{sT0}, 12")
    e("v_lshlrev_b32 v8, 4, v1")
    e(f"v_add_u32 v8, s{sT0}, v8")
    def skloads():
        for j in range(4):
            e(f"buffer_load_dwordx4 {vr(SKD + 4 * j, 4)}, v8, {sr(S_SK, 4)}, 0 offen offset:{1024 * j}")
        for j in range(4):
            e(f"buffer_load_dword v{SKD + 16 + j}, v8, {sr(S_SK, 4)}, 0 offen offset:{1024 * j + 16}")
    if not SKDEF:
        skloads()
    c("kv LDS transpose position: T + (cs*8 + cc)*528 + 504 - 8 rg")
    e(f"v_mul_u32_u24 v7, {8 * CV_TP}, v3")
    e("v_lshlrev_b32 v9, 3, v2")
    e("v_sub_u32 v7, v7, v9")
    e(f"v_add_u32 v7, {CV_T + 504}, v7")
    mask_init()
    e(f"s_waitcnt vmcnt({0 if SKDEF else 8})")
    stamp(1)
    if SKDEF:
        skloads()
    e(f"s_cmp_lg_u32 s{sW}, 0")
    e("s_cbranch_scc1 k1c_nozl")
    zload()
    e("k1c_nozl:")
    KF, VF, WF = 80, 136, 200
    for cc in range(8):
        for jp in range(2):
            w = WD + 2 * cc + jp
            e(f"v_lshlrev_b32 v{WF + (2 * jp) * 8 + cc}, 16, v{w}")
            e(f"v_and_b32 v{WF + (2 * jp + 1) * 8 + cc}, 0xffff0000, v{w}")
    for i in range(28):
        e(f"v_lshlrev_b32 v{KF + 2 * i}, 16, v{KD + i}")
        e(f"v_and_b32 v{KF + 2 * i + 1}, 0xffff0000, v{KD + i}")
    for i in range(16):
        e(f"v_lshlrev_b32 v{VF + 2 * i}, 16, v{VD + i}")
        e(f"v_and_b32 v{VF + 2 * i + 1}, 0xffff0000, v{VD + i}")
    KV = 168
    for r in range(4):
        for cp in range(4):
            d = KV + 8 * r + 2 * cp
            e(f"v_pk_mul_f32 {vr(d, 2)}, {vr(KF + 8 * r + 2 * cp, 2)}, {vr(WF + 3 * 8 + 2 * cp, 2)}")
            for j in range(1, 4):
                e(f"v_pk_fma_f32 {vr(d, 2)}, {vr(KF + 8 * (r + j) + 2 * cp, 2)}, "
                  f"{vr(WF + (3 - j) * 8 + 2 * cp, 2)}, {vr(d, 2)}")
            e(f"v_pk_mul_f32 {vr(d, 2)}, {vr(d, 2)}, {vr(VF + 8 * r + 2 * cp, 2)}")
    for cc in range(8):
        o = 16 + 2 * cc
        e(f"v_cvt_pk_bf16_f32 v{o}, v{KV + 24 + cc}, v{KV + 16 + cc}")
        e(f"v_cvt_pk_bf16_f32 v{o + 1}, v{KV + 8 + cc}, v{KV + cc}")
        e(f"ds_write_b64 v7, {vr(o, 2)} offset:{cc * CV_TP}")
    e("s_waitcnt lgkmcnt(0)")
    e("s_barrier")
    c("wave w: channels 8w..8w+7 of the group: full-line stores (2 channels x 512 B per instruction)")
    e("v_lshrrev_b32 v6, 5, v1")
    e("v_and_b32 v7, 31, v1")
    e("v_lshlrev_b32 v7, 4, v7")
    e(f"v_mul_u32_u24 v9, {CV_TP}, v6")
    e("v_add_u32 v9, v9, v7")
    e(f"s_mul_i32 s{sT1}, s{sW}, {8 * CV_TP}")
    e(f"s_add_u32 s{sT1}, s{sT1}, {CV_T}")
    e(f"v_add_u32 v9, s{sT1}, v9")
    for j in range(4):
        e(f"ds_read_b128 {vr(16 + 4 * j, 4)}, v9 offset:{2 * j * CV_TP}")
    e("v_lshl_add_u32 v7, v6, 12, v7")
    e(f"s_lshl_b32 s{sT0}, s{sG}, 18")
    e(f"s_lshl_b32 s{sT1}, s{sW}, 15")
    e(f"s_add_u32 s{sT0}, s{sT0}, s{sT1}")
    e(f"s_add_u32 s{sT0}, s{sT0}, {WS_KV + 3584}")
    e(f"s_lshl_b32 s{sT1}, s{sJ}, 9")
    e(f"s_sub_u32 s{sT0}, s{sT0}, s{sT1}")
    for j in range(4):
        e(f"s_waitcnt lgkmcnt({3 - j})")
        e(f"buffer_store_dwordx4 {vr(16 + 4 * j, 4)}, v7, {sr(S_WS, 4)}, s{sT0} offen sc1")
        e(f"s_add_u32 s{sT0}, s{sT0}, 8192")
    c("meanwhile: zero pads and KT copies")
    e(f"s_mov_b32 s{sT1}, s{sRB}")
    e("v_lshlrev_b32 v6, 3, v1")
    e(f"v_add_u32 v6, s{sT1}, v6")
    e("v_mov_b32 v10, 0")
    e("v_mov_b32 v11, 0")
    e(f"ds_write_b64 v6, v[10:11] offset:{CV_R + 4096}")
    e(f"s_mul_i32 s{sT1}, s{sW}, {CV_KSTR}")
    e(f"s_add_u32 s{sT1}, s{sT1}, {CV_KT}")
    e("v_lshlrev_b32 v7, 2, v1")
    e(f"v_add_u32 v7, s{sT1}, v7")
    e("v_cmp_gt_u32 vcc, 8, v1")
    e("s_and_saveexec_b64 s[70:71], vcc")
    e("ds_write_b32 v7, v10")
    e(f"ds_write_b32 v7, v10 offset:{CV_KCPY}")
    e("s_mov_b64 exec, s[70:71]")
    e("s_waitcnt lgkmcnt(0)")
    e(f"s_lshl_b32 s{sT0}, s{sD}, 16")
    e(f"s_and_b32 s{sD}, s{sD}, 0xffff0000")
    e(f"s_bitcmp1_b32 s{sW}, 0")
    e(f"s_cselect_b32 s{sD}, s{sD}, s{sT0}")
    e("v_lshlrev_b32 v7, 4, v1")
    e(f"v_add_u32 v7, s{sT1}, v7")
    e("s_waitcnt vmcnt(4)")
    for j in range(4):
        d = SKD + 4 * j
        e(f"ds_write_b128 v7, {vr(d, 4)} offset:{32 + 1024 * j}")
        e(f"v_alignbit_b32 v12, v{d + 1}, v{d}, 16")
        e(f"v_alignbit_b32 v13, v{d + 2}, v{d + 1}, 16")
        e(f"v_alignbit_b32 v14, v{d + 3}, v{d + 2}, 16")
        e(f"v_alignbit_b32 v15, v{SKD + 16 + j}, v{d + 3}, 16")
        e(f"ds_write_b128 v7, v[12:15] offset:{CV_KCPY + 32 + 1024 * j}")
        e("s_nop 1")
    e(f"v_lshlrev_b32 v12, 16, v{SKD}")
    e("v_cmp_eq_u32 vcc, 0, v1")
    e("s_and_saveexec_b64 s[70:71], vcc")
    e(f"ds_write_b32 v7, v12 offset:{CV_KCPY + 28}")
    e("s_mov_b64 exec, s[70:71]")
    c("hand-off: all kv stores drained -> barrier -> flags to the 8 WGs of the group; then poll own mailbox")
    e("s_waitcnt vmcnt(0)")
    e("s_barrier")
    stamp(2)
    e(f"s_cmp_lg_u32 s{sW}, 0")
    e("s_cbranch_scc1 k1c_wait")
    zcheck()
    e(f"v_lshl_add_u32 v12, v1, 3, s{sG}")
    e("v_lshlrev_b32 v12, 8, v12")
    e(f"s_lshl_b32 s79, s{sJ}, 2")
    e(f"s_add_u32 s79, s79, {WS_MB + 4 * MB_KV}")
    e("v_mov_b32 v13, 1")
    e("v_cmp_gt_u32 vcc, 8, v1")
    e("s_and_saveexec_b64 s[70:71], vcc")
    e(f"buffer_store_dword v13, v12, {sr(S_WS, 4)}, s79 offen sc1")
    e("s_mov_b64 exec, s[70:71]")
    e("s_lshl_b32 s79, s2, 8")
    e(f"s_add_u32 s79, s79, {WS_MB + 128}")
    pollmask(79, 0xff << (MB_KV - 32), S_WS)
    e(f"s_mov_b32 s{sZ}, 1")
    e("k1c_wait:")
    e("s_barrier")
    c("load own channel kvR row (sc1) -> LDS R")
    e(f"v_add_u32 v8, {WS_KV}, v8")
    for j in range(4):
        e(f"buffer_load_dwordx4 {vr(16 + 4 * j, 4)}, v8, {sr(S_WS, 4)}, 0 offen offset:{1024 * j} sc1")
    e(f"s_mov_b32 s{sT0}, s{sRB}")
    e("v_lshlrev_b32 v6, 4, v1")
    e(f"v_add_u32 v6, s{sT0}, v6")
    for j in range(4):
        e(f"s_waitcnt vmcnt({3 - j})")
        e(f"ds_write_b128 v6, {vr(16 + 4 * j, 4)} offset:{CV_R + 1024 * j}")
    e("s_waitcnt lgkmcnt(0)")
    stamp(3)
    c("MFMA phase: wave w -> channel w")
    ACC = 16
    AR = [48, 112]
    BR = [80, 144]
    vKT, vR, vA = 200, 201, 202
    e("v_and_b32 v2, 15, v1")
    e("v_lshrrev_b32 v3, 4, v1")
    e("v_lshlrev_b32 v4, 1, v2")
    e("v_lshlrev_b32 v5, 4, v3")
    e("v_sub_u32 v4, v4, v5")
    e(f"v_add_u32 v4, {32 - 14}, v4")
    e("v_and_b32 v5, 1, v2")
    e("v_cmp_eq_u32 vcc, 0, v5")
    e("v_mov_b32 v5, 0")
    e(f"v_mov_b32 v6, {CV_KCPY - 2}")
    e("s_nop 1")
    e("v_cndmask_b32 v5, v5, v6, vcc")
    e("v_add_u32 v4, v4, v5")
    e(f"v_add_u32 v{vKT}, s{sT1}, v4")
    e(f"s_mov_b32 s{sT0}, s{sRB}")
    e("v_lshlrev_b32 v4, 5, v2")
    e("v_lshl_add_u32 v4, v3, 4, v4")
    e(f"v_sub_u32 v4, {CV_R + 4080 - 3584}, v4")
    e(f"v_add_u32 v{vR}, s{sT0}, v4")

    def creads(ci, st):
        d0 = 2 * ci + 1
        for pp in range(4):
            e(f"v_add_u32 v{vA + pp}, {32 * d0 + 1024 * pp}, v{vKT}")
        order = [("B", 0)] + [("A", p) for p in range(8)] + [("B", m) for m in range(1, 8)]
        for kind, x in order:
            if kind == "A":
                p = x
                o = 128 * (p & 1)
                e(f"ds_read2_b32 {vr(AR[st] + 4 * p, 2)}, v{vA + (p >> 1)} offset0:{o} offset1:{o + 1}")
                e(f"ds_read2_b32 {vr(AR[st] + 4 * p + 2, 2)}, v{vA + (p >> 1)} offset0:{o + 2} offset1:{o + 3}")
            else:
                m = x
                e(f"ds_read_b128 {vr(BR[st] + 4 * m, 4)}, v{vR} offset:{32 * d0 + 512 * (7 - m)}")

    creads(0, 0)
    g2_setup(sW, 3)
    if PLO >= 0:
        out_pre_addr(sW, 206, 84)
        make_srd(84, P_OUT, 2048 * 1024)
        e(f"buffer_load_dword v207, v206, {sr(84, 4)}, 0 offen")
    if PLY:
        e(f"s_lshl_b32 s3, s{sCG}, 3")
        e(f"s_add_u32 s3, s3, s{sW}")
        e("s_lshl_b32 s3, s3, 12")
        e(f"s_add_u32 s3, s3, {WS_Y2}")
        e("v_lshlrev_b32 v206, 6, v1")
        e(f"buffer_load_dword v207, v206, {sr(S_WS, 4)}, s3 offen")
    for ci in range(8):
        st = ci & 1
        e("s_waitcnt lgkmcnt(0)")
        if ci < 7:
            creads(ci + 1, st ^ 1)
        if 2 <= ci <= 4:
            for g in g2_early(ci - 2):
                for x in g:
                    e(x)
        for m in range(8):
            for p in range(8 - m):
                cc = "0" if (ci == 0 and m == 0) else vr(ACC + 4 * (m + p), 4)
                e(f"v_mfma_f32_16x16x32_bf16 {vr(ACC + 4 * (m + p), 4)}, {vr(AR[st] + 4 * p, 4)}, "
                  f"{vr(BR[st] + 4 * m, 4)}, {cc}")
    stamp(None)
    c("epilogue: kv reads, y2 = bf16(bf16(y) + bf16(kv*D)), store y2T")
    e("v_lshlrev_b32 v4, 5, v2")
    e("v_lshl_add_u32 v4, v3, 3, v4")
    e(f"v_sub_u32 v5, {CV_R + 4088 - 3584}, v4")
    e(f"v_add_u32 v5, s{sT0}, v5")
    KVR = 48
    for n in range(8):
        e(f"ds_read_b64 {vr(KVR + 2 * n, 2)}, v5 offset:{512 * (7 - n)}")
    e(f"s_lshl_b32 s{sT1}, s{sCG}, 3")
    e(f"s_add_u32 s{sT1}, s{sT1}, s{sW}")
    e(f"s_lshl_b32 s{sT1}, s{sT1}, 12")
    e(f"s_add_u32 s{sT1}, s{sT1}, {WS_Y2}")
    e(f"v_add_u32 v6, s{sT1}, v4")
    e("s_nop 7")
    e("s_waitcnt vmcnt(0) lgkmcnt(0)")
    e(f"s_cmp_lt_u32 s{sW}, 4")
    e("s_cbranch_scc1 k1c_nb1")
    e("s_barrier")
    e("k1c_nb1:")
    for n in range(8):
        a = ACC + 4 * n
        k0, k1 = KVR + 2 * n, KVR + 2 * n + 1
        o = 80 + 2 * n
        e(f"v_cvt_pk_bf16_f32 v8, v{a}, v{a + 1}")
        e(f"v_cvt_pk_bf16_f32 v9, v{a + 2}, v{a + 3}")
        e(f"v_and_b32 v10, 0xffff0000, v{k1}")
        e(f"v_lshlrev_b32 v11, 16, v{k1}")
        e(f"v_and_b32 v12, 0xffff0000, v{k0}")
        e(f"v_lshlrev_b32 v13, 16, v{k0}")
        for t in range(4):
            e(f"v_mul_f32 v{10 + t}, s{sD}, v{10 + t}")
        e("v_cvt_pk_bf16_f32 v10, v10, v11")
        e("v_cvt_pk_bf16_f32 v12, v12, v13")
        e("v_lshlrev_b32 v14, 16, v8")
        e("v_and_b32 v15, 0xffff0000, v8")
        e("v_lshlrev_b32 v11, 16, v10")
        e("v_and_b32 v10, 0xffff0000, v10")
        e("v_add_f32 v14, v14, v11")
        e("v_add_f32 v15, v15, v10")
        e(f"v_cvt_pk_bf16_f32 v{o}, v14, v15")
        e("v_lshlrev_b32 v14, 16, v9")
        e("v_and_b32 v15, 0xffff0000, v9")
        e("v_lshlrev_b32 v13, 16, v12")
        e("v_and_b32 v12, 0xffff0000, v12")
        e("v_add_f32 v14, v14, v13")
        e("v_add_f32 v15, v15, v12")
        e(f"v_cvt_pk_bf16_f32 v{o + 1}, v14, v15")
        e(f"buffer_store_dwordx2 {vr(o, 2)}, v6, {sr(S_WS, 4)}, 0 offen offset:{512 * n}{STC}")
    stamp(4)
    e(f"s_mov_b32 s{sZ}, 1")
    e(f"s_cmp_ge_u32 s{sW}, 4")
    e("s_cbranch_scc1 k1c_w47")
    e("s_barrier")
    e("s_branch g2_entry")
    e("k1c_w47:")
    e(f"v_mov_b32 v26, {K2_MASK}")
    e("v_mov_b32 v13, 1")
    e("v_cmp_eq_u32 vcc, 0, v1")
    e("s_waitcnt vmcnt(0)")
    e("s_and_saveexec_b64 s[70:71], vcc")
    e("ds_add_u32 v26, v13 offset:4")
    e("s_mov_b64 exec, s[70:71]")
    stamp(5)
    e(f"s_cmp_lg_u32 s{sW}, 5")
    e("s_cbranch_scc1 g2_entry")
    c("wave 5: wait until all eight waves' stores are complete, then signal")
    e("s_mov_b32 s80, 0")
    e("k1c_cnt:")
    e("ds_read_b32 v15, v26 offset:4")
    e("s_waitcnt lgkmcnt(0)")
    e("v_readfirstlane_b32 s81, v15")
    e("s_add_u32 s80, s80, 1")
    e("s_nop 2")
    e("s_cmp_ge_u32 s81, 8")
    e("s_cbranch_scc1 k1c_cntd")
    e("s_sleep 2")
    e("s_cmp_lt_u32 s80, 0x400000")
    e("s_cbranch_scc1 k1c_cnt")
    e("k1c_cntd:")
    signal(sW, S_WS, "c", sG, sJ, wave=5)
    e("s_branch g2_entry")


def kernel1():
    e(".globl k1_kernel")
    e(".p2align 8")
    e(".type k1_kernel,@function")
    e("k1_kernel:")
    e("s_cmp_ge_u32 s2, 256")
    e("s_cbranch_scc1 k1_done")
    load_ptrs()
    e(f"s_cmp_lt_u32 s2, {K1_NCONV}")
    e("s_cbranch_scc1 k1_conv")
    e(f"s_cmp_lt_u32 s2, {K1_NCONV + K1_NGEMM}")
    e("s_cbranch_scc1 k1_gemm")
    k1_aux()
    k1_gemm()
    k1_conv()
    kernel2()
    e("k1_done:")
    e("s_endpgm")


K2_Y2 = 147456
K2_STATS = K2_Y2 + 8192 + 64
K2_AS = [6, 7, 8, 0, 1, 2]
K2_STEPS = 12
K2_NBR = 8
K2_NA = 6


def kernel2():
    S_H, S_WD, S_X, S_WS, S_OUT = 44, 48, 52, 56, 60
    sW, sT0, sT1, sMT, sNT, sKA, sKB, sLB = 64, 65, 66, 67, 68, 69, 70, 71
    sMASK, sW11 = 18, 19
    XR = 16
    NR = 24
    AFR = 28
    ACC = 60
    BFR = 124
    vDA, vDB, vB0, vB1, vAr, vOut = 8, 9, 10, 11, 12, 13
    e("g2_entry:")
    e("v_lshrrev_b32 v2, 6, v0")
    e("v_and_b32 v1, 63, v0")
    e(f"v_readfirstlane_b32 s{sW}, v2")
    make_srd(S_WS, P_WS, 0x1000000)
    e(f"s_cmp_gt_u32 s{sW}, 4")
    e("s_cbranch_scc1 g2_exit")
    c("x = id%8, j = id/8 : mt2 = 4x + (j&3), nt2 = j>>2")
    e("s_and_b32 s4, s2, 7")
    e("s_lshr_b32 s5, s2, 3")
    e(f"s_lshr_b32 s{sNT}, s5, 2")
    e("s_and_b32 s5, s5, 3")
    e(f"s_lshl_b32 s{sMT}, s4, 2")
    e(f"s_add_u32 s{sMT}, s{sMT}, s5")
    e(f"s_cmp_eq_u32 s{sW}, 4")
    e("s_cbranch_scc1 g2_helper")
    make_srd(S_H, P_WS, WS_H_BYTES)
    make_srd(S_X, P_Q, 2048 * 1024)
    make_srd(S_OUT, P_OUT, 2048 * 1024)
    e(f"s_mul_i32 s{sKA}, s{sMT}, {64 * HP}")
    e(f"s_cmp_eq_u32 s{sND}, 6")
    e("s_cselect_b64 s[42:43], -1, 0")
    e("s_mov_b32 s78, 49152")
    e("s_mov_b32 s83, 98304")
    e(f"s_mov_b32 s{sLB}, s{sLB2}")
    e("v_and_b32 v2, 31, v1")
    e("v_lshrrev_b32 v3, 5, v1")
    e(f"s_mov_b32 s73, s{sROT}")
    VM = []

    def adv(sidx):
        return g2_adv(sidx)

    def groups_B(i, slot):
        g = []
        for j in range(4):
            x = []
            if j == 0:
                x += [f"s_lshl_b32 s77, s{sBI}, 16", f"s_add_u32 s77, s77, s{sKB2}"]
                if i >= 10:
                    x += ["s_mov_b64 exec, s[42:43]"]
            x += [f"s_add_u32 m0, s{sLB}, {slot * 16384 + j * 1024}",
                  f"s_add_u32 s{sT0}, s77, {8 * j * 1024 + (i & 1) * 32768}",
                  f"buffer_load_dwordx4 v{vDB2}, {sr(S_WD2, 4)}, s{sT0} offen lds"]
            if j == 3:
                if i & 1:
                    x += adv(sBI)
                if i >= 10:
                    x += ["s_mov_b64 exec, -1"]
            g.append((x, f"B{i}"))
        return g

    def groups_A(q):
        g = []
        for j in range(8):
            slot = K2_AS[2 * (q % 3) + (j >> 2)]
            x = []
            if j == 0:
                x += [f"s_add_u32 s74, s73, s{sL0}", "s_and_b32 s76, s74, 30",
                      f"s_bitcmp1_b32 s{sMASK}, s76", f"s_cbranch_scc0 g2_wt{q}", ("ool", q),
                      "s_lshl_b32 s76, s74, 7", f"s_add_u32 s76, s76, s{sKA}"]
                if q == 5:
                    x += ["s_mov_b64 exec, s[42:43]"]
            x += [f"s_add_u32 m0, s{sLB}, {slot * 16384 + (j & 3) * 1024}",
                  f"s_add_u32 s{sT0}, s76, {8 * j * HP}",
                  f"buffer_load_dwordx4 v{vDB if j & 1 else vDA}, {sr(S_H, 4)}, s{sT0} offen lds"]
            if j == 7:
                x += adv(73)
                if q == 5:
                    x += ["s_mov_b64 exec, -1"]
            g.append((x, f"A{q}"))
        return g

    def emit_group(g):
        x, tag = g
        for y in x:
            if isinstance(y, tuple):
                i = y[1]
                with ool(f"g2_wt{i}"):
                    e("s_mov_b32 s80, 0")
                    e(f"g2_wl{i}:")
                    e("ds_read_b32 v15, v26")
                    e("s_waitcnt lgkmcnt(0)")
                    e(f"v_readfirstlane_b32 s{sMASK}, v15")
                    e("s_add_u32 s80, s80, 1")
                    e("s_nop 2")
                    e(f"s_bitcmp1_b32 s{sMASK}, s76")
                    e(f"s_cbranch_scc1 g2_wt{i}_ret")
                    e("s_sleep 1")
                    e("s_cmp_lt_u32 s80, 0x400000")
                    e(f"s_cbranch_scc1 g2_wl{i}")
                continue
            e(y)
            if y.startswith("buffer_"):
                VM.append(tag)

    def nwait(tag):
        last = max(i for i, t in enumerate(VM) if t == tag)
        return min(63, len(VM) - 1 - last)

    c("B steps not issued early (branch on the role)")
    e(f"s_cmp_eq_u32 s{sNPRE}, 6")
    e("s_cbranch_scc1 g2_b6")
    e(f"s_cmp_eq_u32 s{sNPRE}, 3")
    e("s_cbranch_scc1 g2_b3")
    for i in range(7):
        if i in (3, 6):
            e(f"g2_b{i}:")
        for g in groups_B(i, K2_SB[i]):
            emit_group(g)
    c("A DMA lane offsets: row = l/8, src chunk = (l%8) ^ (l/16) (^4 for odd 8-row groups)")
    e("v_lshrrev_b32 v4, 3, v1")
    e(f"v_mul_u32_u24 v4, {HP}, v4")
    e("v_and_b32 v5, 7, v1")
    e("v_lshrrev_b32 v6, 4, v1")
    e("v_xor_b32 v5, v5, v6")
    e(f"v_lshl_add_u32 v{vDA}, v5, 4, v4")
    e(f"v_xor_b32 v{vDB}, 64, v{vDA}")
    c("epilogue operand loads: tile (mi = w/2, ni = w%2)")
    e(f"s_lshr_b32 s{sT0}, s{sW}, 1")
    e(f"s_lshl_b32 s{sT0}, s{sT0}, 5")
    e(f"v_add_u32 v27, s{sT0}, v2")
    e(f"v_lshlrev_b32 v27, 3, v27")
    e(f"v_add_u32 v27, {K2_STATS}, v27")
    e(f"s_lshl_b32 s{sT1}, s{sMT}, 6")
    e(f"s_add_u32 s{sT0}, s{sT0}, s{sT1}")
    e(f"v_add_u32 v4, s{sT0}, v2")
    e(f"s_and_b32 s{sT1}, s{sW}, 1")
    e(f"s_lshl_b32 s{sT1}, s{sT1}, 6")
    e(f"s_lshl_b32 s72, s{sNT}, 7")
    e(f"s_add_u32 s{sT1}, s{sT1}, s72")
    e("v_lshlrev_b32 v5, 10, v4")
    e(f"v_add_u32 v5, s{sT1}, v5")
    e(f"v_lshl_add_u32 v{vOut}, v3, 4, v5")
    e("v_lshl_add_u32 v253, v3, 3, v5")
    c("B tr-read lane addresses")
    e("v_and_b32 v4, 15, v1")
    e("v_lshrrev_b32 v5, 2, v4")
    e("v_lshl_add_u32 v6, v3, 4, v5")
    e("v_lshlrev_b32 v6, 7, v6")
    e("v_lshrrev_b32 v7, 4, v1")
    e("v_and_b32 v7, 1, v7")
    e("v_lshl_add_u32 v6, v7, 5, v6")
    e("v_and_b32 v7, 3, v4")
    e("v_lshl_add_u32 v6, v7, 3, v6")
    e(f"v_add_u32 v6, s{sLB}, v6")
    e("v_lshrrev_b32 v7, 3, v4")
    e(f"v_lshl_add_u32 v{vB0}, v7, 6, v6")
    e("v_xor_b32 v7, 1, v7")
    e(f"v_lshl_add_u32 v{vB1}, v7, 6, v6")
    c("A read address: r*128 + ((4h+2g+s) ^ ((r>>1)&7))*16 ; s via xor 16, h via xor 64")
    e("v_lshrrev_b32 v4, 1, v2")
    e("v_and_b32 v4, 7, v4")
    e("v_lshlrev_b32 v5, 1, v3")
    e("v_xor_b32 v4, v4, v5")
    e("v_lshlrev_b32 v4, 4, v4")
    e("v_lshl_add_u32 v4, v2, 7, v4")
    e(f"v_add_u32 v{vAr}, s{sLB}, v4")
    e(f"v_xor_b32 v14, 16, v{vAr}")
    e(f"v_mov_b32 v26, {K2_MASK}")
    e(f"s_mov_b32 s{sMASK}, 0")

    c("address regs per 48 KB third: (B0, B1, A0, A1) x 3 in v[240:251]?  -> B frags end at 251, so use v[4:7] dynamically")

    def rebase(third):
        return [f"v_add_u32 v4, {third * 49152}, v{vB0}", f"v_add_u32 v5, {third * 49152}, v{vB1}",
                f"v_add_u32 v6, {third * 49152}, v{vAr}", f"v_add_u32 v7, {third * 49152}, v14"]

    def breads(i, slot):
        r = rebase(slot // 3)[:2]
        base = BFR + 16 * (i % K2_NBR)
        for s in range(2):
            for ni in range(2):
                for u in range(2):
                    r.append(f"ds_read_b64_tr_b16 {vr(base + 8 * s + 4 * ni + 2 * u, 2)}, v{5 if ni else 4} "
                             f"offset:{(slot % 3) * 16384 + (8 * s + 4 * u) * 128}")
        return r

    def areads(i):
        q, h = i >> 1, i & 1
        r = []
        for mi in range(2):
            slot = K2_AS[2 * (q % 3) + mi]
            th = ["0", "s78", "s83"][slot // 3]
            for s in range(2):
                r.append(f"v_xad_u32 v{6 + s}, v{14 if s else vAr}, {64 * h}, {th}")
            for s in range(2):
                r.append(f"ds_read_b128 {vr(AFR + 16 * (i & 1) + 8 * mi + 4 * s, 4)}, v{6 + s} "
                         f"offset:{(slot % 3) * 16384}")
        return r

    for i in range(6):
        e(f"s_waitcnt vmcnt({nwait(f'B{i}')})")
        for x in breads(i, K2_SB[i]):
            e(x)
    e("s_waitcnt lgkmcnt(0)")
    e(f"s_cmp_eq_u32 s{sNPRE}, 3")
    e("s_cbranch_scc1 g2_cv")
    e("s_barrier")
    with ool("g2_cv"):
        c("conv role: this wave's y2T stores are complete (covered by the B5 wait)")
        e("v_mov_b32 v15, 1")
        e("v_cmp_eq_u32 vcc, 0, v1")
        e("s_and_saveexec_b64 s[80:81], vcc")
        e("ds_add_u32 v26, v15 offset:4")
        e("s_mov_b64 exec, s[80:81]")
    stamp(6)
    for i in (7, 8):
        for g in groups_B(i, K2_SB[i]):
            emit_group(g)
    for q in range(3):
        for g in groups_A(q):
            emit_group(g)
    for i in (6, 7):
        e(f"s_waitcnt vmcnt({nwait(f'B{i}')})")
        for x in breads(i, K2_SB[i]):
            e(x)
    e("s_waitcnt lgkmcnt(0)")
    for g in groups_B(9, K2_SB[9]) + groups_B(10, K2_SB[10]):
        emit_group(g)
    e(f"s_waitcnt vmcnt({nwait('A0')})")
    stamp(None if PSET else 7)
    for x in areads(0):
        e(x)
    BRD = {1: 8, 4: 9, 5: 10, 7: 11}
    for i in range(K2_STEPS):
        if i == 10:
            e(f"s_cmp_eq_u32 s{sND}, 5")
            e("s_cbranch_scc1 k2_lend")
        e("s_waitcnt lgkmcnt(0)")
        dg = []
        if i & 1 and (i >> 1) + 3 < 6:
            dg += groups_A((i >> 1) + 3)
        if i == 2:
            dg += groups_B(11, K2_SB[11])
        rl, tags = [], []
        if i + 1 < K2_STEPS:
            rl = areads(i + 1)
            tags.append(f"A{(i + 1) >> 1}")
        if i in BRD:
            rl += breads(BRD[i], K2_SB[BRD[i]])
            tags.append(f"B{BRD[i]}")
        for g in dg:
            emit_group(g)
        if i == 6:
            for q in range(4):
                e(f"buffer_load_dwordx2 {vr(XR + 2 * q, 2)}, v253, {sr(S_X, 4)}, 0 offen offset:{16 * q}")
                VM.append("epi")
        if rl:
            e(f"s_waitcnt vmcnt({min(nwait(t) for t in tags)})")
            for x in rl:
                e(x)
        for s in range(2):
            for mi in range(2):
                for ni in range(2):
                    a = ACC + 16 * (2 * mi + ni)
                    bb = BFR + 16 * (i % K2_NBR) + 8 * s + 4 * ni
                    cc = "0" if i == 0 and s == 0 else vr(a, 16)
                    e(f"v_mfma_f32_32x32x16_bf16 {vr(a, 16)}, {vr(bb, 4)}, "
                      f"{vr(AFR + 16 * (i & 1) + 8 * mi + 4 * s, 4)}, {cc}")
    e("k2_lend:")
    e("s_waitcnt lgkmcnt(0)")
    e("s_nop 15")
    e("s_nop 3")
    stamp(None if PSET else 8)
    c("write non-owned partial tiles to own LDS region")
    e("v_lshlrev_b32 v4, 4, v1")
    e(f"v_add_u32 v4, s{sLB}, v4")
    for t in range(4):
        e(f"s_cmp_eq_u32 s{sW}, {t}")
        e(f"s_cbranch_scc1 k2_skipw{t}")
        for q in range(4):
            e(f"ds_write_b128 v4, {vr(ACC + 16 * t + 4 * q, 4)} offset:{t * 16384 + q * 1024}")
        e(f"k2_skipw{t}:")
    e("s_waitcnt lgkmcnt(0)")
    e("s_barrier")
    stamp(None if PSET else 9)
    OWN, OTH, YR, OUTR, TA, TB = 124, 140, 188, 196, 204, 205
    c("owner gathers: tile w from the other 3 waves")
    for t in range(4):
        e(f"s_cmp_lg_u32 s{sW}, {t}")
        e(f"s_cbranch_scc1 k2_skipm{t}")
        for r in range(16):
            e(f"v_mov_b32 v{OWN + r}, v{ACC + 16 * t + r}")
        e(f"k2_skipm{t}:")
    e(f"s_lshl_b32 s{sT0}, s{sW}, 14")
    e("v_lshlrev_b32 v4, 4, v1")
    e(f"v_add_u32 v4, s{sT0}, v4")
    for k in range(1, 4):
        e(f"s_add_u32 s{sT1}, s{sW}, {k}")
        e(f"s_and_b32 s{sT1}, s{sT1}, 3")
        e(f"s_lshl_b32 s{sT1}, s{sT1}, 12")
        e(f"v_add_u32 v5, s{sT1}, v4")
        for q in range(4):
            e(f"ds_read_b128 {vr(OTH + 16 * (k - 1) + 4 * q, 4)}, v5 offset:{q * 1024}")
    c("y2 tr reads: c0 = 8q + 4g")
    e("v_and_b32 v4, 15, v1")
    e("v_lshrrev_b32 v5, 2, v4")
    e("v_lshl_add_u32 v5, v3, 2, v5")
    e("v_lshlrev_b32 v5, 6, v5")
    e("v_lshrrev_b32 v6, 4, v1")
    e("v_and_b32 v6, 1, v6")
    e("v_lshl_add_u32 v5, v6, 5, v5")
    e("v_and_b32 v6, 3, v4")
    e("v_lshl_add_u32 v5, v6, 3, v5")
    e(f"s_lshl_b32 s{sT1}, s{sW}, 11")
    e(f"s_add_u32 s{sT1}, s{sT1}, {K2_Y2}")
    e(f"v_add_u32 v5, s{sT1}, v5")
    e("s_waitcnt lgkmcnt(8)")
    for q in range(4):
        e(f"ds_read_b64_tr_b16 {vr(YR + 2 * q, 2)}, v5 offset:{q * 512}")
    e(f"ds_read_b64 {vr(NR, 2)}, v27")
    e("s_waitcnt vmcnt(0) lgkmcnt(0)")
    for r in range(16):
        e(f"v_add_f32 v{OWN + r}, v{OWN + r}, v{OTH + r}")
        e(f"v_add_f32 v{OTH + 16 + r}, v{OTH + 16 + r}, v{OTH + 32 + r}")
    for r in range(16):
        e(f"v_add_f32 v{OWN + r}, v{OWN + r}, v{OTH + 16 + r}")
    for q in range(4):
        for h2 in range(2):
            x = XR + 2 * q + h2
            y = YR + 2 * q + h2
            b = OWN + 4 * q + 2 * h2
            e(f"v_lshlrev_b32 v4, 16, v{x}")
            e(f"v_and_b32 v5, 0xffff0000, v{x}")
            e(f"v_fma_f32 v7, v4, v{NR}, v{NR + 1}")
            e(f"v_fma_f32 v6, v5, v{NR}, v{NR + 1}")
            e("v_cvt_pk_bf16_f32 v6, v7, v6")
            e("v_lshlrev_b32 v7, 16, v6")
            e("v_and_b32 v6, 0xffff0000, v6")
            e(f"v_lshlrev_b32 v{TA}, 16, v{y}")
            e(f"v_and_b32 v{TB}, 0xffff0000, v{y}")
            e(f"v_mul_f32 v7, v7, v{TA}")
            e(f"v_mul_f32 v6, v6, v{TB}")
            e("v_cvt_pk_bf16_f32 v6, v7, v6")
            e("v_lshlrev_b32 v7, 16, v6")
            e("v_and_b32 v6, 0xffff0000, v6")
            e("v_add_f32 v7, v4, v7")
            e("v_add_f32 v6, v5, v6")
            e("v_cvt_pk_bf16_f32 v6, v7, v6")
            e(f"v_cvt_pk_bf16_f32 v{TA}, v{b}, v{b + 1}")
            e("v_lshlrev_b32 v7, 16, v6")
            e("v_and_b32 v6, 0xffff0000, v6")
            e(f"v_lshlrev_b32 v{TB}, 16, v{TA}")
            e(f"v_and_b32 v{TA}, 0xffff0000, v{TA}")
            e(f"v_add_f32 v7, v7, v{TB}")
            e(f"v_add_f32 v6, v6, v{TA}")
            e(f"v_cvt_pk_bf16_f32 v{OUTR + 2 * q + h2}, v7, v6")
    e("s_nop 1")
    for qq in range(2):
        o = OUTR + 4 * qq
        e(f"v_permlane32_swap_b32 v{o}, v{o + 2}")
        e(f"v_permlane32_swap_b32 v{o + 1}, v{o + 3}")
        e(f"buffer_store_dwordx4 {vr(o, 4)}, v{vOut}, {sr(S_OUT, 4)}, 0 offen offset:{32 * qq}{OSC}")
    e("g2_exit:")
    stamp_flush(S_WS, WS_PROF)
    e("s_endpgm")
    flush_ool()
    e("g2_helper:")
    c("helper wave: publish the ready mask of the 11 GEMM1 tiles of row block mt2/2 (own mailbox)")
    e(f"v_mov_b32 v26, {K2_MASK}")
    e(f"s_cmp_lg_u32 s{sNPRE}, 0")
    e("s_cbranch_scc1 g2_h1")
    e("v_mov_b32 v13, 0")
    e("ds_write_b32 v26, v13")
    e("s_waitcnt lgkmcnt(0)")
    e("s_barrier")
    e("g2_h1:")
    zcheck()
    e("s_lshl_b32 s79, s2, 8")
    e(f"s_add_u32 s79, s79, {WS_MB}")
    e("v_and_b32 v15, 31, v0")
    e("v_lshlrev_b32 v15, 2, v15")
    e("s_mov_b32 s80, 0")
    e("g2_hp:")
    e(f"buffer_load_dword v14, v15, {sr(S_WS, 4)}, s79 offen sc1")
    e("s_waitcnt vmcnt(0)")
    e("v_cmp_ne_u32 vcc, 0, v14")
    e("s_add_u32 s80, s80, 1")
    e("s_lshr_b32 s81, vcc_lo, 1")
    e("s_and_b32 s81, s81, vcc_lo")
    e("s_and_b32 s81, s81, 0x155555")
    e("v_mov_b32 v13, s81")
    e("ds_write_b32 v26, v13")
    e("s_cmp_eq_u32 s81, 0x155555")
    e("s_cbranch_scc1 g2_hd")
    e("s_cmp_lt_u32 s80, 0x40000")
    e("s_cbranch_scc1 g2_hp")
    e("g2_hd:")
    c("row stats of the 64 rows -> LDS")
    e("v_lshlrev_b32 v5, 2, v1")
    e(f"s_lshl_b32 s{sT1}, s{sMT}, 9")
    e(f"s_add_u32 s{sT1}, s{sT1}, {WS_ST}")
    for j in range(2):
        e(f"s_mov_b32 m0, {K2_STATS + 256 * j}")
        e(f"buffer_load_dword v5, {sr(S_WS, 4)}, s{sT1} offen lds")
        e(f"s_add_u32 s{sT1}, s{sT1}, 256")
    c("wait for conv group nt2, stage the four y2T tiles")
    pollmask(79, 0xff << MB_C, S_WS, first=14)
    e("v_lshrrev_b32 v5, 2, v1")
    e("v_lshlrev_b32 v5, 12, v5")
    e("v_and_b32 v6, 3, v1")
    e("v_lshl_add_u32 v5, v6, 4, v5")
    e(f"s_lshl_b32 s{sT1}, s{sNT}, 18")
    e(f"s_lshl_b32 s{sT0}, s{sMT}, 7")
    e(f"s_add_u32 s{sT1}, s{sT1}, s{sT0}")
    e(f"s_add_u32 s{sT1}, s{sT1}, {WS_Y2}")
    for w in range(4):
        mi, ni = w >> 1, w & 1
        for j in range(2):
            e(f"s_mov_b32 m0, {K2_Y2 + w * 2048 + j * 1024}")
            e(f"s_add_u32 s{sT0}, s{sT1}, {(ni * 32 + j * 16) * 4096 + mi * 64}")
            e(f"buffer_load_dwordx4 v5, {sr(S_WS, 4)}, s{sT0} offen lds")
    e("s_waitcnt vmcnt(0) lgkmcnt(0)")
    e("s_barrier")
    e("s_branch g2_exit")


def descriptor(name, nv):
    L.append(".p2align 6")
    L.append(f".amdhsa_kernel {name}")
    L.append(f"  .amdhsa_next_free_vgpr {nv}")
    L.append("  .amdhsa_next_free_sgpr 102")
    L.append(f"  .amdhsa_accum_offset {nv}")
    L.append("  .amdhsa_group_segment_fixed_size 0")
    L.append("  .amdhsa_kernarg_size 104")
    L.append("  .amdhsa_user_sgpr_count 2")
    L.append("  .amdhsa_user_sgpr_kernarg_segment_ptr 1")
    L.append("  .amdhsa_system_sgpr_workgroup_id_x 1")
    L.append(".end_amdhsa_kernel")


def main():
    hdr = open(f"cdna_kernels/{NAME}.s.ref").read().split("\n")
    for line in hdr:
        if line.startswith("; Override") or line.startswith("; grid=") or "@launch" in line:
            continue
        if not line.startswith(";"):
            break
        L.append(line)
    L.append(f"; @launch kernel=k1_kernel grid=(256,1,1) block=(512,1,1) lds=163840")
    L.append('.amdgcn_target "amdgcn-amd-amdhsa--gfx950"')
    L.append(".text")
    kernel1()
    L.append('.section .rodata,"a"')
    descriptor("k1_kernel", 256)
    out = sys.argv[1] if len(sys.argv) > 1 else f"cdna_kernels/{NAME}.s"
    open(out, "w").write("\n".join(L) + "\n")


if __name__ == "__main__":
    main()
```

```python
import sys

NAME = "parallel_sum__ssm_conv_h3__glu_gated_bilinear__prompt"

WS_H = 0
HP = 2816
WS_H_BYTES = 2048 * HP
WS_Y2 = 0x600000
WS_ST = 0x800000
WS_XN = 0xA00000
WS_KV = 0xC00000
WS_MB = 0x900000
ZOFF = 16
ZN = 16

import os
K1MAP = int(os.environ.get('K1MAP', '1'))
WBL2 = int(os.environ.get('WBL2', '0'))
STC = os.environ.get('STC', '' if WBL2 else ' sc1')
PREF = int(os.environ.get('PREF', '1'))
PREF2 = int(os.environ.get('PREF2', '1'))
PREF3 = int(os.environ.get('PREF3', '2'))
PSLEEP = int(os.environ.get('PSLEEP', '1'))
CSLEEP = int(os.environ.get('CSLEEP', '0'))
ISLEEP = int(os.environ.get('ISLEEP', '0'))
KV16 = int(os.environ.get('KV16', '0'))
MIDN = int(os.environ.get('MIDN', '5'))
ASW = int(os.environ.get('ASW', '1'))
NODMA = int(os.environ.get('NODMA', '0'))
K2ROT_A = int(os.environ.get('K2ROT_A', '1'))
K2ROT_B = int(os.environ.get('K2ROT_B', '2'))
PROFB = int(os.environ.get('PROFB', '0'))
EBW = 0
CNT = os.environ.get('CNT', '')
SNT = os.environ.get('SNT', '')
GNT = os.environ.get('GNT', '')
LPF = int(os.environ.get('LPF', '0'))
LATE2 = int(os.environ.get('LATE2', '1'))
PSET = int(os.environ.get('PSET', '0'))
KROT = int(os.environ.get('KROT', '0'))
ASLEEP = int(os.environ.get('ASLEEP', '0'))
SKDEF = int(os.environ.get('SKDEF', '1'))
PLH = int(os.environ.get('PLH', '-1'))
PLO = int(os.environ.get('PLO', '-1'))
PLY = int(os.environ.get('PLY', '0'))
PLK = int(os.environ.get('PLK', '0'))
OSC = os.environ.get('OSC', '')
L = []


def e(s=""):
    L.append("    " + s if s and not s.endswith(":") else s)


def c(s):
    L.append("    ; " + s)


PROF = len(sys.argv) > 2 and sys.argv[2] == "prof"
WS_PROF = 0xE00000
_stamp = [0]


SPAIR = [6, 8, 10, 12, 14, 88, 90, 92, 94, 96, 100]


def stamp(k=None):
    if not PROF or k is None or k is True:
        return
    if k == 0:
        e("s_memrealtime s[98:99]")
        e("s_waitcnt lgkmcnt(0)")
        e("v_writelane_b32 v255, s98, 63")
        for p in SPAIR:
            e(f"s_mov_b32 s{p}, 0")
    e(f"s_memtime s[{SPAIR[k]}:{SPAIR[k] + 1}]")


def stamp_flush(srd, base):
    if not PROF:
        return
    stamp(10)
    if os.environ.get('DIAG'):
        a, b, wg, mul = [int(x) for x in os.environ['DIAG'].split(',')]
        e("s_waitcnt lgkmcnt(0)")
        e(f"s_cmp_lg_u32 s2, {wg}")
        e("s_cbranch_scc1 diag_done")
        e("v_readfirstlane_b32 s98, v0")
        e("s_nop 3")
        e("s_cmp_lg_u32 s98, 0")
        e("s_cbranch_scc1 diag_done")
        e(f"s_sub_u32 s98, s{SPAIR[b]}, s{SPAIR[a]}")
        e(f"s_mul_i32 s98, s98, {mul}")
        e("s_min_u32 s98, s98, 400000")
        e("diag_l:")
        e("s_memtime s[6:7]")
        e("s_waitcnt lgkmcnt(0)")
        e(f"s_sub_u32 s6, s6, s{SPAIR[10]}")
        e("s_cmp_lt_u32 s6, s98")
        e("s_cbranch_scc1 diag_l")
        e("diag_done:")
        return
    e("s_memrealtime s[98:99]")
    e("s_waitcnt lgkmcnt(0)")
    e("v_writelane_b32 v255, s98, 62")
    for k, p in enumerate(SPAIR):
        e(f"v_writelane_b32 v255, s{p}, {k}")
    e("v_lshrrev_b32 v253, 6, v0")
    e("v_lshl_add_u32 v253, s2, 3, v253")
    e("v_lshlrev_b32 v253, 8, v253")
    e("v_and_b32 v254, 63, v0")
    e("v_lshl_add_u32 v253, v254, 2, v253")
    e(f"v_add_u32 v253, {base}, v253")
    e(f"buffer_store_dword v255, v253, {sr(srd, 4)}, 0 offen")


OOL = []


class ool:
    def __init__(self, label):
        self.label = label

    def __enter__(self):
        global L
        self.saved = L
        L = []
        L.append(f"{self.label}:")

    def __exit__(self, *a):
        global L
        L.append(f"    s_branch {self.label}_ret")
        OOL.extend(L)
        L = self.saved
        L.append(f"{self.label}_ret:")


def flush_ool():
    L.extend(OOL)
    OOL.clear()


def vr(a, n=1):
    return f"v{a}" if n == 1 else f"v[{a}:{a + n - 1}]"


def sr(a, n=1):
    return f"s{a}" if n == 1 else f"s[{a}:{a + n - 1}]"


def make_srd(d, ptr, nbytes):
    e(f"s_mov_b32 s{d}, s{ptr}")
    e(f"s_and_b32 s{d + 1}, s{ptr + 1}, 0xffff")
    e(f"s_mov_b32 s{d + 2}, {nbytes}")
    e(f"s_mov_b32 s{d + 3}, 0x00020000")


P_Q, P_K, P_V, P_SH, P_SK, P_SD, P_BX, P_WG = 16, 18, 20, 22, 24, 26, 28, 30
P_WU, P_WD, P_OUT, P_DBG, P_WS = 32, 34, 36, 38, 40


def load_ptrs():
    e("s_load_dwordx16 s[16:31], s[0:1], 0")
    e("s_load_dwordx8 s[32:39], s[0:1], 64")
    e("s_load_dwordx2 s[40:41], s[0:1], 96")


S_DB2 = 84
_lbl = [0]


sZ = 82


def zload():
    e(f"s_load_dword s{sZ}, {sr(P_DBG, 2)}, {ZOFF}")


MB_H, MB_C, MB_KV, MB_CS, MB_ST = 0, 22, 56, 32, 48


def zcheck():
    _lbl[0] += 1
    n = _lbl[0]
    e(f"s_cmp_ge_u32 s{sZ}, 1")
    e(f"s_cbranch_scc1 sig_go{n}")
    make_srd(S_DB2, P_DBG, 256)
    e(f"s_mov_b32 s79, {ZOFF}")
    poll(79, 1, slp=8)
    e(f"sig_go{n}:")


def signal(sW, S_WS, mode, sIdx, sWord, wave=0):
    _lbl[0] += 1
    n = _lbl[0]
    if mode == "c":
        e(f"s_cmp_lg_u32 s{sW}, {wave}")
        e(f"s_cbranch_scc1 sig_skip{n}")
    zcheck()
    e("v_and_b32 v14, 63, v0")
    if mode == "h":
        e(f"s_lshl_b32 s79, s{sIdx}, 1")
        e(f"s_bfe_u32 s80, s{sW}, 0x10001")
        e("s_add_u32 s79, s79, s80")
        e("v_mov_b32 v12, s79")
        e("v_mov_b32 v13, v14")
    else:
        e("v_mov_b32 v12, v14")
        e(f"v_mov_b32 v13, s{sIdx}")
    e("v_and_b32 v15, 3, v12")
    e("v_lshl_add_u32 v15, v13, 2, v15")
    e("v_lshrrev_b32 v12, 2, v12")
    e("v_lshl_add_u32 v12, v15, 3, v12")
    e("v_lshlrev_b32 v12, 8, v12")
    if mode == "h":
        e(f"s_lshl_b32 s79, s{sWord}, 1")
        e(f"s_and_b32 s80, s{sW}, 1")
        e("s_add_u32 s79, s79, s80")
        e("s_lshl_b32 s79, s79, 2")
    else:
        e(f"s_lshl_b32 s79, s{sWord}, 2")
    e(f"s_add_u32 s79, s79, {WS_MB + 4 * (MB_H if mode == 'h' else MB_C)}")
    e("v_mov_b32 v13, 1")
    e(f"v_cmp_gt_u32 vcc, {8 if mode == 'h' else 32}, v14")
    if mode == "h":
        e("s_waitcnt vmcnt(0)")
        stamp(5)
    e("s_and_saveexec_b64 s[70:71], vcc")
    e(f"buffer_store_dword v13, v12, {sr(S_WS, 4)}, s79 offen sc1")
    e("s_mov_b64 exec, s[70:71]")
    e(f"sig_skip{n}:")


def pollmask(sOff, mask, srd, first=None):
    _lbl[0] += 1
    n = _lbl[0]
    if first is not None:
        e(f"v_cmp_ne_u32 vcc, 0, v{first}")
        e(f"s_and_b32 s81, vcc_lo, {mask}")
        e(f"s_cmp_eq_u32 s81, {mask}")
        e(f"s_cbranch_scc1 polled{n}")
    e("v_and_b32 v15, 31, v0")
    e("v_lshlrev_b32 v15, 2, v15")
    e("s_mov_b32 s80, 0")
    e(f"poll{n}:")
    e(f"buffer_load_dword v14, v15, {sr(srd, 4)}, s{sOff} offen sc1")
    e("s_waitcnt vmcnt(0)")
    e("v_cmp_ne_u32 vcc, 0, v14")
    e("s_add_u32 s80, s80, 1")
    e(f"s_and_b32 s81, vcc_lo, {mask}")
    e(f"s_cmp_eq_u32 s81, {mask}")
    e(f"s_cbranch_scc1 polled{n}")
    if PSLEEP:
        e(f"s_sleep {PSLEEP}")
    e("s_cmp_lt_u32 s80, 0x40000")
    e(f"s_cbranch_scc1 poll{n}")
    e(f"polled{n}:")


def poll(sOff, target, srd=None, slp=None):
    srd = S_DB2 if srd is None else srd
    _lbl[0] += 1
    n = _lbl[0]
    e(f"v_mov_b32 v15, s{sOff}")
    e("s_mov_b32 s80, 0")
    e(f"poll{n}:")
    e(f"buffer_load_dword v14, v15, {sr(srd, 4)}, 0 offen sc1")
    e("s_waitcnt vmcnt(0)")
    e("v_readfirstlane_b32 s81, v14")
    e("s_nop 3")
    e("s_add_u32 s80, s80, 1")
    e(f"s_cmp_ge_u32 s81, {target}")
    e(f"s_cbranch_scc1 polled{n}")
    if slp or PSLEEP:
        e(f"s_sleep {slp or PSLEEP}")
    e("s_cmp_lt_u32 s80, 0x40000")
    e(f"s_cbranch_scc1 poll{n}")
    e(f"polled{n}:")


K1_NCONV = 64
K1_NGEMM = 176
K1_BUF = [131072, 0, 32768, 65536, 98304]


K1_STG = 49152
K1_EX = 147456
K2_MASK = 160064


def mask_init():
    e(f"v_mov_b32 v14, {K2_MASK}")
    e("v_mov_b32 v12, 0")
    e("v_mov_b32 v13, 0")
    e("ds_write_b64 v14, v[12:13]")


AUXOFF = 132
WS_CS = 0x880000
WS_SP = 0x8C0000


def zadd(sW, wait=None):
    _lbl[0] += 1
    n = _lbl[0]
    e(f"s_cmp_lg_u32 s{sW}, 4")
    e(f"s_cbranch_scc1 zadd{n}")
    if wait is not None:
        e(f"s_waitcnt vmcnt({wait})")
        stamp(1)
    make_srd(S_DB2, P_DBG, 256)
    e("v_mov_b32 v14, 1")
    e(f"v_mov_b32 v15, {ZOFF}")
    e("v_cmp_eq_u32 vcc, 0, v1")
    e("s_and_saveexec_b64 s[70:71], vcc")
    e(f"buffer_atomic_add v14, v15, {sr(S_DB2, 4)}, 0 offen sc1")
    e("s_mov_b64 exec, s[70:71]")
    e(f"zadd{n}:")


S_WD2, sKB2, sBI, sROT, sLB2, sNPRE, sND, sL0 = 20, 24, 25, 26, 27, 28, 30, 31
vDB2 = 252
K2_SB = [6, 7, 8, 0, 1, 2, 5, 3, 4, 5, 3, 4]


def g2_setup(sW, npre):
    c("GEMM2 B state: x = id%8, j = id/8 : mt2 = 4x + (j&3), nt2 = j>>2")
    make_srd(S_WD2, P_WD, 1376 * 1024)
    e("s_lshr_b32 s3, s2, 3")
    e("s_lshr_b32 s4, s3, 2")
    e("s_and_b32 s3, s3, 3")
    e(f"s_mul_i32 s{sROT}, s4, {K2ROT_A}")
    e(f"s_mul_i32 s3, s3, {K2ROT_B}")
    e(f"s_add_u32 s{sROT}, s{sROT}, s3")
    e(f"s_and_b32 s3, s{sW}, 1")
    e(f"s_sub_u32 s{sND}, 6, s3")
    for _ in range((7 * K2ROT_A + 3 * K2ROT_B) // 5):
        e(f"s_cmp_ge_u32 s{sROT}, s{sND}")
        e(f"s_cselect_b32 s3, s{sND}, 0")
        e(f"s_sub_u32 s{sROT}, s{sROT}, s3")
    e(f"s_mov_b32 s{sBI}, s{sROT}")
    e(f"s_and_b32 s3, s{sW}, 3")
    e(f"s_lshl_b32 s{sLB2}, s3, 12")
    e("s_mul_i32 s3, s3, 11")
    e("s_add_u32 s3, s3, 1")
    e(f"s_lshr_b32 s{sL0}, s3, 1")
    e(f"s_lshl_b32 s{sKB2}, s{sL0}, 16")
    e("s_lshl_b32 s4, s4, 7")
    e(f"s_add_u32 s{sKB2}, s{sKB2}, s4")
    e(f"s_mov_b32 s{sNPRE}, {npre}")
    c("B DMA lane offsets: row = l/8, chunk' = l%8; global chunk = chunk' ^ (((row>>1)&1)<<2)")
    e("v_lshrrev_b32 v4, 3, v1")
    e("v_and_b32 v5, 7, v1")
    e("v_lshrrev_b32 v6, 1, v4")
    e("v_and_b32 v6, 1, v6")
    e("v_lshlrev_b32 v6, 2, v6")
    e("v_xor_b32 v5, v5, v6")
    e("v_lshlrev_b32 v5, 4, v5")
    e(f"v_lshl_add_u32 v{vDB2}, v4, 10, v5")
    e(f"s_lshr_b32 s3, s{sW}, 2")
    e(f"s_lshl_b32 s29, s3, 11")
    e(f"s_add_u32 s29, s29, s{sLB2}")
    e(f"s_lshl_b32 s5, s3, 14")
    e(f"s_add_u32 s5, s5, s{sKB2}")


def out_pre_addr(sW, vd, srd):
    e("s_and_b32 s3, s2, 7")
    e("s_lshl_b32 s3, s3, 2")
    e("s_lshr_b32 s4, s2, 3")
    e("s_and_b32 s4, s4, 3")
    e("s_add_u32 s3, s3, s4")
    e("s_lshl_b32 s3, s3, 3")
    e(f"s_add_u32 s3, s3, s{sW}")
    e("s_lshl_b32 s3, s3, 13")
    e("s_lshr_b32 s4, s2, 5")
    e("s_lshl_b32 s4, s4, 7")
    e("s_add_u32 s3, s3, s4")
    e(f"v_lshrrev_b32 v{vd}, 3, v1")
    e(f"v_lshlrev_b32 v{vd}, 10, v{vd}")
    e("v_and_b32 v4, 7, v1")
    e(f"v_lshl_add_u32 v{vd}, v4, 4, v{vd}")
    e(f"v_add_u32 v{vd}, s3, v{vd}")


def g2_adv(sidx):
    return [f"s_add_u32 s{sidx}, s{sidx}, 1", f"s_cmp_ge_u32 s{sidx}, s{sND}", f"s_cselect_b32 s{sidx}, 0, s{sidx}"]


def g2_early(i):
    g = []
    for j in range(2):
        x = []
        if j == 0:
            x += [f"s_lshl_b32 s3, s{sBI}, 16", "s_add_u32 s3, s3, s5"]
        x += [f"s_add_u32 m0, s29, {K2_SB[i] * 16384 + j * 1024}",
              f"s_add_u32 s4, s3, {8 * j * 1024 + (i & 1) * 32768}",
              f"buffer_load_dwordx4 v{vDB2}, {sr(S_WD2, 4)}, s4 offen lds"]
        if j == 1 and i & 1:
            x += g2_adv(sBI)
        g.append(x)
    return g


def k1_gemm():
    S_X, S_WG, S_WU, S_WS = 44, 48, 52, 56
    sMT, sNT, sW, sT0, sT1, sW0, sMW, sROW = 60, 61, 62, 63, 64, 65, 66, 67
    sSB, sDS, sIT, sDB, sAUX = 68, 69, 72, 73, 83
    AF = 16
    ACC = 144
    BF = 208
    vDMA, vB0, vB1, vBc0, vBc1, vHoff = 240, 241, 242, 243, 244, 245
    vXD, vA0, vCS, vST, vXD1 = 40, 41, 42, 43, 39
    vAk = 44
    CSR = 80
    e("k1_gemm:")
    e("s_sub_u32 s3, s2, %d" % K1_NCONV)
    c("k = 22*(t%8) + t/8 ; mh = k/88 ; rem = k%88 ; nt = rem/8 ; mt = mh*8 + rem%8")
    e("s_and_b32 s4, s3, 7")
    e("s_mul_i32 s4, s4, 22")
    e("s_lshr_b32 s5, s3, 3")
    e("s_add_u32 s4, s4, s5")
    e("s_cmp_ge_u32 s4, 88")
    e("s_cselect_b32 s5, 88, 0")
    e(f"s_cselect_b32 s{sMT}, 8, 0")
    e("s_sub_u32 s4, s4, s5")
    e(f"s_lshr_b32 s{sNT}, s4, 3")
    e("s_and_b32 s4, s4, 7")
    e(f"s_add_u32 s{sMT}, s{sMT}, s4")
    e("v_lshrrev_b32 v2, 6, v0")
    e("v_and_b32 v1, 63, v0")
    e(f"v_readfirstlane_b32 s{sW}, v2")
    c("x DMA lane offset: row = l>>3, src chunk = (l&7) ^ (row&7)")
    e("v_lshrrev_b32 v2, 3, v1")
    e("v_and_b32 v3, 7, v1")
    if ASW:
        e("v_lshrrev_b32 v4, 4, v1")
        e("v_xor_b32 v3, v3, v4")
    else:
        e("v_xor_b32 v3, v3, v2")
    e("v_lshlrev_b32 v3, 4, v3")
    e(f"v_lshl_add_u32 v{vXD}, v2, 10, v3")
    e(f"v_xor_b32 v{vXD1}, {64 if ASW else 0}, v{vXD}")
    c("W DMA lane offsets")
    e("v_lshrrev_b32 v12, 4, v1")
    e("v_and_b32 v13, 15, v1")
    e("v_lshlrev_b32 v14, 2, v12")
    e("v_xor_b32 v13, v13, v14")
    e("v_lshlrev_b32 v13, 4, v13")
    e("v_mul_u32_u24 v14, 2752, v12")
    e(f"v_add_u32 v{vDMA}, v13, v14")
    e(f"s_mul_i32 s{sW0}, s{sW}, {8 * 2752}")
    e(f"s_lshl_b32 s{sT0}, s{sNT}, 8")
    e(f"s_add_u32 s{sW0}, s{sW0}, s{sT0}")
    e(f"s_lshl_b32 s{sMW}, s{sW}, 11")
    e(f"s_lshl_b32 s{sROW}, s{sMT}, 17")
    e(f"s_lshl_b32 s{sT0}, s{sW}, 14")
    e(f"s_add_u32 s{sROW}, s{sROW}, s{sT0}")
    e(f"s_mov_b32 s{sDS}, 0")
    e(f"s_mov_b32 s{sDB}, s{sMW}")
    e(f"s_mov_b32 s{sSB}, s{sROW}")
    if KROT:
        c("K order rotated per XCD (spreads the cold fetches over the memory channels)")
        if KROT == 1:
            e(f"s_and_b32 s{sIT}, s2, 7")
        elif KROT == 2:
            e(f"s_and_b32 s{sIT}, s2, 3")
            e(f"s_lshl_b32 s{sIT}, s{sIT}, 1")
        elif KROT == 3:
            e(f"s_and_b32 s{sIT}, s{sMT}, 7")
        elif KROT == 4:
            e(f"s_and_b32 s{sIT}, s{sNT}, 7")
        e(f"s_lshl_b32 s{sT0}, s{sIT}, 7")
        e(f"s_add_u32 s{sROW}, s{sROW}, s{sT0}")
        e(f"s_mul_i32 s{sT0}, s{sIT}, {64 * 2752}")
        e(f"s_add_u32 s{sW0}, s{sW0}, s{sT0}")
    e("s_waitcnt lgkmcnt(0)")
    stamp(0)
    make_srd(S_X, P_Q, 2048 * 1024)
    make_srd(S_WG, P_WG, 512 * 2752)
    make_srd(S_WU, P_WU, 512 * 2752)
    make_srd(S_WS, P_WS, 0x1000000)

    def dma_groups():
        g = []
        for j in range(2):
            g.append([f"s_add_u32 m0, s{sDB}, {32768 + j * 1024}",
                      f"s_add_u32 s{sT0}, s{sROW}, {j * 8192}",
                      f"buffer_load_dwordx4 v{vXD1 if j else vXD}, {sr(S_X, 4)}, s{sT0} offen lds{GNT}"])
        for part in range(2):
            for j in range(2):
                g.append([f"s_add_u32 m0, s{sDB}, {part * 16384 + j * 1024}",
                          f"s_add_u32 s{sT0}, s{sW0}, {4 * j * 2752}",
                          f"buffer_load_dwordx4 v{vDMA}, {sr(S_WU if part else S_WG, 4)}, s{sT0} offen lds{GNT}"])
        g[-1] += [f"s_add_u32 s{sROW}, s{sROW}, 128",
                  f"s_add_u32 s{sW0}, s{sW0}, {64 * 2752}"]
        if KROT:
            g[-1] += [f"s_add_u32 s{sIT}, s{sIT}, 1",
                      f"s_cmp_eq_u32 s{sIT}, 8",
                      f"s_cselect_b32 s{sT0}, 1024, 0",
                      f"s_cselect_b32 s{sT1}, {512 * 2752}, 0",
                      f"s_sub_u32 s{sROW}, s{sROW}, s{sT0}",
                      f"s_sub_u32 s{sW0}, s{sW0}, s{sT1}"]
        g[-1] += [
                  f"s_add_u32 s{sDS}, s{sDS}, {K1_STG}",
                  f"s_cmp_ge_u32 s{sDS}, {3 * K1_STG}",
                  f"s_cselect_b32 s{sDS}, 0, s{sDS}",
                  f"s_add_u32 s{sDB}, s{sDS}, s{sMW}"]
        return g

    def dma_slab():
        for g in dma_groups():
            for x in g:
                e(x)

    STG = int(os.environ.get('STG', '0'))

    def linpf():
        c("linear prefetch of a slice of Wg, Wu, x (DRAM friendly)")
        e("s_sub_u32 s3, s2, %d" % K1_NCONV)
        e("s_lshl_b32 s3, s3, 3")
        e(f"s_add_u32 s3, s3, s{sW}")
        e("s_lshl_b32 s3, s3, 10")
        e("v_lshlrev_b32 v4, 4, v1")
        e(f"buffer_load_dwordx4 v[80:83], v4, {sr(S_WG, 4)}, s3 offen")
        e(f"buffer_load_dwordx4 v[80:83], v4, {sr(S_WU, 4)}, s3 offen")
        e(f"buffer_load_dwordx4 v[80:83], v4, {sr(S_X, 4)}, s3 offen")
        e(f"s_add_u32 s3, s3, {1408 * 1024}")
        e(f"buffer_load_dwordx4 v[80:83], v4, {sr(S_X, 4)}, s3 offen")
    if LPF == 1:
        linpf()
    dma_slab()
    if LPF == 2:
        linpf()
    if STG & 1:
        e("s_barrier")
    if STG & 4:
        e("s_sleep 8")
    dma_slab()
    if STG & 2:
        e("s_barrier")
    if STG & 8:
        e("s_sleep 8")
    if not LATE2:
        dma_slab()
    if LPF == 3:
        linpf()
    if PSET:
        stamp(8)
    S_OWN, S_OTH = 20, 24
    c("partial sums source + L2 prefetch: W rows (mt%8)*64.. ; own part = mt/8 (summed), other part prefetch only")
    e(f"s_cmp_ge_u32 s{sMT}, 8")
    for i in range(4):
        e(f"s_cselect_b32 s{S_OWN + i}, s{S_WU + i}, s{S_WG + i}")
        e(f"s_cselect_b32 s{S_OTH + i}, s{S_WG + i}, s{S_WU + i}")
    e(f"s_and_b32 s{sT0}, s{sMT}, 7")
    e(f"s_mul_i32 s{sT0}, s{sT0}, {64 * 2752}")
    e(f"s_lshl_b32 s{sT1}, s{sNT}, 8")
    e(f"s_add_u32 s{sT0}, s{sT0}, s{sT1}")
    e(f"s_lshl_b32 s{sT1}, s{sW}, 5")
    e(f"s_add_u32 s18, s{sT1}, s{sT0}")
    e(f"s_add_u32 s19, s18, {32 * 2752}")
    e("v_lshrrev_b32 v12, 1, v1")
    e("v_mul_u32_u24 v12, 2752, v12")
    e("v_and_b32 v13, 1, v1")
    e("v_lshl_add_u32 v76, v13, 4, v12")
    e(f"s_mul_i32 s{sT1}, s{sW}, {8 * 2752}")
    e(f"s_add_u32 s28, s{sT1}, s{sT0}")
    e("v_lshrrev_b32 v12, 4, v1")
    e(f"v_mul_u32_u24 v12, {2 * 2752}, v12")
    e("v_and_b32 v13, 15, v1")
    e("v_lshl_add_u32 v77, v13, 4, v12")
    c("x rows 16w + l/4, bytes (nt&7)*128 + (l%4)*32 + {0,16}")
    e(f"s_and_b32 s{sT1}, s{sNT}, 7")
    e(f"s_lshl_b32 s{sT1}, s{sT1}, 7")
    e(f"s_add_u32 s29, s{sT1}, s{sSB}")
    e("v_lshrrev_b32 v12, 2, v1")
    e("v_and_b32 v13, 3, v1")
    e("v_lshlrev_b32 v13, 5, v13")
    e("v_lshl_add_u32 v78, v12, 10, v13")
    PFL = [f"buffer_load_dwordx4 v[48:51], v76, {sr(S_OWN, 4)}, s18 offen",
           f"buffer_load_dwordx4 v[52:55], v76, {sr(S_OWN, 4)}, s19 offen",
           f"buffer_load_dwordx4 v[64:67], v78, {sr(S_X, 4)}, s29 offen",
           f"buffer_load_dwordx4 v[68:71], v78, {sr(S_X, 4)}, s29 offen offset:16",
           f"buffer_load_dwordx4 v[56:59], v77, {sr(S_OTH, 4)}, s28 offen",
           f"buffer_load_dwordx4 v[60:63], v77, {sr(S_OTH, 4)}, s28 offen offset:2752"]
    c("partial store addresses")
    vPC, vPS = 72, 73
    e(f"s_lshl_b32 s{sT0}, s{sNT}, 1")
    e(f"s_lshr_b32 s{sT1}, s{sMT}, 3")
    e(f"s_add_u32 s{sT0}, s{sT0}, s{sT1}")
    e(f"s_lshl_b32 s{sT0}, s{sT0}, 3")
    e(f"s_and_b32 s{sT1}, s{sMT}, 7")
    e(f"s_add_u32 s{sT0}, s{sT0}, s{sT1}")
    e(f"s_lshl_b32 s{sT0}, s{sT0}, 10")
    e(f"s_lshl_b32 s{sT1}, s{sW}, 7")
    e(f"s_add_u32 s{sT0}, s{sT0}, s{sT1}")
    e(f"s_add_u32 s{sT0}, s{sT0}, {WS_CS}")
    e("v_and_b32 v12, 1, v1")
    e(f"v_lshl_add_u32 v{vPC}, v12, 5, s{sT0}")
    e("v_lshrrev_b32 v12, 1, v1")
    e("v_and_b32 v13, 1, v12")
    e(f"v_lshl_add_u32 v{vPC}, v13, 4, v{vPC}")
    e("v_lshrrev_b32 v12, 1, v12")
    e(f"v_lshl_add_u32 v{vPC}, v12, 6, v{vPC}")
    e(f"s_lshl_b32 s{sT0}, s{sMT}, 4")
    e(f"s_add_u32 s{sT0}, s{sT0}, s{sNT}")
    e(f"s_lshl_b32 s{sT0}, s{sT0}, 10")
    e(f"s_lshl_b32 s{sT1}, s{sW}, 7")
    e(f"s_add_u32 s{sT0}, s{sT0}, s{sT1}")
    e(f"s_add_u32 s{sT0}, s{sT0}, {WS_SP}")
    e("v_lshrrev_b32 v12, 2, v1")
    e(f"v_lshl_add_u32 v{vPS}, v12, 3, s{sT0}")
    e("s_mov_b32 s74, 0x3f80")
    e("s_mov_b32 s75, 0x3f800000")
    e("s_mov_b32 s76, 0x3f803f80")
    e(f"s_cmp_eq_u32 s{sW}, 4")
    e("s_cselect_b32 s77, 1, 0")
    e(f"s_cmp_eq_u32 s{sW}, 0")
    e("s_cselect_b32 s78, 3, 99")
    e("s_cselect_b32 s5, 4, 99")
    e("s_lshl_b32 s83, s2, 8")
    e(f"s_add_u32 s83, s83, {WS_MB + 128}")
    for r in range(12):
        e(f"v_mov_b32 v{24 + r}, 0")
    c("A frag read address: 32768 + r*128 + ((2kk+g) ^ (r&7))*16 ; r = (w%4)*32 + l%32 ; kk via xor kk<<5")
    e(f"s_and_b32 s{sT0}, s{sW}, 3")
    e(f"s_lshl_b32 s{sT0}, s{sT0}, 5")
    e("v_and_b32 v2, 31, v1")
    e(f"v_add_u32 v6, s{sT0}, v2")
    if ASW:
        e("v_lshrrev_b32 v7, 1, v2")
        e("v_and_b32 v7, 7, v7")
    else:
        e("v_and_b32 v7, 7, v2")
    e("v_lshrrev_b32 v8, 5, v1")
    e("v_xor_b32 v7, v7, v8")
    e("v_lshlrev_b32 v7, 4, v7")
    e("v_lshl_add_u32 v7, v6, 7, v7")
    e(f"v_add_u32 v{vA0}, 32768, v7")
    c("partial row stats address: WS_SP + mt*16384 + r*8 (+ slot*1024)")
    e(f"s_lshl_b32 s{sT1}, s{sMT}, 14")
    e(f"s_add_u32 s{sT1}, s{sT1}, {WS_SP}")
    e(f"v_lshl_add_u32 v{vST}, v6, 3, s{sT1}")
    c("h store offset: (mt*128 + (w%4)*32 + l/8)*HP + nt*256 + nh*128 + (l%8)*16")
    e(f"s_lshl_b32 s{sT1}, s{sMT}, 7")
    e(f"s_add_u32 s{sT1}, s{sT1}, s{sT0}")
    e("v_lshrrev_b32 v6, 3, v1")
    e(f"v_add_u32 v6, s{sT1}, v6")
    e(f"v_mov_b32 v7, {HP}")
    e("v_mul_lo_u32 v6, v6, v7")
    e(f"s_lshr_b32 s{sT0}, s{sW}, 2")
    e(f"s_lshl_b32 s{sT0}, s{sT0}, 7")
    e(f"s_lshl_b32 s{sT1}, s{sNT}, 8")
    e(f"s_add_u32 s{sT0}, s{sT0}, s{sT1}")
    e(f"v_add_u32 v6, s{sT0}, v6")
    e("v_and_b32 v9, 7, v1")
    e(f"v_lshl_add_u32 v{vHoff}, v9, 4, v6")
    if PLH >= 0:
        c("pre-touch address of the own h tile: row l/2, 64 B half l%2")
        e(f"v_readfirstlane_b32 s{sT1}, v{vHoff}")
        e("v_lshrrev_b32 v36, 1, v1")
        e(f"v_mul_u32_u24 v36, {HP}, v36")
        e("v_and_b32 v37, 1, v1")
        e("v_lshl_add_u32 v36, v37, 6, v36")
        e(f"v_add_u32 v36, s{sT1}, v36")
    if PLO >= 0:
        out_pre_addr(sW, 37, 84)
    c("partial cs address: WS_CS + (nt*2 + g)*8192 + nh*512 + ((l%32)/8)*128 + (l%8)*8 (+ j*1024)")
    e(f"s_lshr_b32 s{sT0}, s{sW}, 2")
    e(f"s_lshl_b32 s{sT0}, s{sT0}, 9")
    e(f"s_lshl_b32 s{sT1}, s{sNT}, 14")
    e(f"s_add_u32 s{sT0}, s{sT0}, s{sT1}")
    e(f"s_add_u32 s{sT0}, s{sT0}, {WS_CS}")
    e(f"v_lshl_add_u32 v{vCS}, v8, 13, s{sT0}")
    e(f"v_lshl_add_u32 v{vCS}, v9, 3, v{vCS}")
    e("v_lshrrev_b32 v7, 3, v2")
    e(f"v_lshl_add_u32 v{vCS}, v7, 7, v{vCS}")
    c("B tr-read lane addresses for tiles T0=2nh, T1=2nh+1")
    e("v_and_b32 v2, 15, v1")
    e("v_lshrrev_b32 v6, 2, v2")
    e("v_lshrrev_b32 v7, 5, v1")
    e("v_lshl_add_u32 v7, v7, 3, v6")
    e("v_lshlrev_b32 v7, 8, v7")
    e("v_lshrrev_b32 v8, 4, v1")
    e("v_and_b32 v8, 1, v8")
    e("v_lshlrev_b32 v8, 5, v8")
    e("v_add_u32 v7, v7, v8")
    e("v_and_b32 v8, 3, v2")
    e("v_lshlrev_b32 v8, 3, v8")
    e("v_add_u32 v7, v7, v8")
    e(f"s_lshr_b32 s{sT0}, s{sW}, 2")
    e(f"s_lshl_b32 s{sT0}, s{sT0}, 1")
    e(f"v_xor_b32 v8, s{sT0}, v6")
    e(f"v_lshl_add_u32 v{vB0}, v8, 6, v7")
    e("v_xor_b32 v8, 1, v8")
    e(f"v_lshl_add_u32 v{vB1}, v8, 6, v7")
    if os.environ.get('BLIN'):
        e(f"v_lshlrev_b32 v{vB0}, 3, v1")
        e(f"v_add_u32 v{vB1}, 512, v{vB0}")
    if os.environ.get('ALIN'):
        e(f"v_lshlrev_b32 v{vA0}, 4, v1")
        e(f"v_add_u32 v{vA0}, 32768, v{vA0}")

    vAD = 112
    for t in range(3):
        e(f"v_add_u32 v{vAD + 6 * t}, {K1_STG * t}, v{vB0}")
        e(f"v_add_u32 v{vAD + 6 * t + 1}, {K1_STG * t}, v{vB1}")
        e(f"v_add_u32 v{vAD + 6 * t + 2}, {K1_STG * t}, v{vA0}")
        for kk in range(1, 4):
            e(f"v_xor_b32 v{vAD + 6 * t + 2 + kk}, {32 * kk}, v{vAD + 6 * t + 2}")

    def rlist(s, kk):
        st = kk & 1
        ad = vAD + 6 * (s % 3)
        r = [f"ds_read_b128 {vr(AF + 4 * st, 4)}, v{ad + 2 + kk}"]
        for ti in range(4):
            part, T = ti >> 1, ti & 1
            for u in range(2):
                off = part * 16384 + (16 * kk + 4 * u) * 256
                r.append(f"ds_read_b64_tr_b16 {vr(BF + 16 * st + 4 * ti + 2 * u, 2)}, v{ad + T} offset:{off}")
        return r

    def side_first():
        s = []
        PA, PT = 24, 32
        for row in range(2):
            for d in range(4):
                x = 48 + 4 * row + d
                s += [f"v_dot2c_f32_bf16 v{PA + 2 * d}, s74, v{x}", f"v_dot2c_f32_bf16 v{PA + 2 * d + 1}, s75, v{x}"]
        for i in range(8):
            s += [f"v_dot2c_f32_bf16 v{PT + (i & 1)}, s76, v{64 + i}",
                  f"v_dot2c_f32_bf16 v{PT + 2 + (i & 1)}, v{64 + i}, v{64 + i}"]
        s += ["s_nop 3"]
        for sh in (2, 4, 8):
            for r in range(8):
                s.append(f"v_add_f32_dpp v{PA + r}, v{PA + r}, v{PA + r} row_ror:{sh} row_mask:0xf bank_mask:0xf")
        s += [f"v_add_f32 v{PT}, v{PT}, v{PT + 1}", f"v_add_f32 v{PT + 1}, v{PT + 2}, v{PT + 3}"]
        for sw in ("v_permlane16_swap_b32", "v_permlane32_swap_b32"):
            for r in range(8):
                s.append(f"v_mov_b32 v{4 + r}, v{PA + r}")
            for r in range(8):
                s.append(f"{sw} v{4 + r}, v{PA + r}")
            qp = "[1,0,3,2]" if "16" in sw else "[2,3,0,1]"
            s += [f"v_add_f32_dpp v{PT}, v{PT}, v{PT} quad_perm:{qp} row_mask:0xf bank_mask:0xf",
                  f"v_add_f32_dpp v{PT + 1}, v{PT + 1}, v{PT + 1} quad_perm:{qp} row_mask:0xf bank_mask:0xf"]
            for r in range(8):
                s.append(f"v_add_f32 v{PA + r}, v{4 + r}, v{PA + r}")
        s += [("v_and_b32 v4, 3, v1", "v_cmp_eq_u32 vcc, 0, v4", "s_and_saveexec_b64 s[70:71], vcc",
               f"buffer_store_dwordx2 {vr(PT, 2)}, v{vPS}, {sr(S_WS, 4)}, 0 offen sc1",
               "s_mov_b64 exec, s[70:71]", "v_and_b32 v4, 2, v1", "v_cmp_ne_u32 vcc, 0, v4",
               f"v_cndmask_b32 v{PA}, v{PA}, v{PA + 4}, vcc", f"v_cndmask_b32 v{PA + 1}, v{PA + 1}, v{PA + 5}, vcc",
               f"v_cndmask_b32 v{PA + 2}, v{PA + 2}, v{PA + 6}, vcc", f"v_cndmask_b32 v{PA + 3}, v{PA + 3}, v{PA + 7}, vcc",
               "v_cmp_gt_u32 vcc, 8, v1", "s_and_b64 exec, s[70:71], vcc",
               f"buffer_store_dwordx4 {vr(PA, 4)}, v{vPC}, {sr(S_WS, 4)}, 0 offen sc1",
               "s_mov_b64 exec, s[70:71]",
               "s_cmp_eq_u32 s77, 0", "s_cbranch_scc1 k1_nozl",
               f"s_mov_b32 s{S_DB2}, s{P_DBG}", f"s_and_b32 s{S_DB2 + 1}, s{P_DBG + 1}, 0xffff",
               f"s_mov_b32 s{S_DB2 + 2}, 256", f"s_mov_b32 s{S_DB2 + 3}, 0x00020000",
               f"v_mov_b32 v15, {ZOFF}",
               f"buffer_load_dword v74, v15, {sr(S_DB2, 4)}, 0 offen sc1",
               "k1_nozl:")]
        return s

    def stats_math(SX, SQ, T):
        return [f"v_mul_f32 v{T}, 0x3b000000, v{SX}",
                f"v_mul_f32 v{T + 2}, 0x3b000000, v{SQ}",
                f"v_fma_f32 v{T + 2}, -v{T}, v{T}, v{T + 2}",
                f"v_max_f32 v{T + 2}, 0, v{T + 2}",
                f"v_cvt_pk_bf16_f32 v{T + 1}, v{T}, v{T + 2}",
                f"v_lshlrev_b32 v{T + 4}, 16, v{T + 1}",
                f"v_and_b32 v{T + 2}, 0xffff0000, v{T + 1}",
                f"v_add_f32 v{T + 2}, 0x3727c5ac, v{T + 2}",
                f"v_cvt_pk_bf16_f32 v{T + 2}, v{T + 2}, v{T + 2}",
                f"v_and_b32 v{T + 2}, 0xffff0000, v{T + 2}",
                f"v_sqrt_f32 v{T + 2}, v{T + 2}",
                "s_nop 0",
                f"v_cvt_pk_bf16_f32 v{T + 2}, v{T + 2}, v{T + 2}",
                f"v_and_b32 v{T + 2}, 0xffff0000, v{T + 2}",
                f"v_rcp_f32 v250, v{T + 2}",
                "s_nop 0",
                f"v_mul_f32 v251, v{T + 4}, v250",
                "v_sub_f32 v251, 0, v251"]

    VM = ["s0"] * 6 + (["lp"] * 4 if LPF == 2 else []) + ["s1"] * 6 + ([] if LATE2 else ["s2"] * 6) + (["lp"] * 4 if LPF == 3 else [])

    def emit(x, tag=None):
        e(x)
        if x.startswith("buffer_") and tag:
            VM.append(tag)

    def nwait(*tags):
        last = max(i for i, t in enumerate(VM) if t in tags)
        return len(VM) - 1 - last

    S_SIDE, S_SIG, S_MBR, S_CHK, S_PL = 1, 2, 5, 5, 6

    def body(s):
        last = s == 7
        dg = dma_groups() if (0 if LATE2 else 1) <= s <= 5 else []
        dtag = f"s{s + 2}"
        side = side_first() if s == S_SIDE else []
        nside = (len(side) + 7) // 8
        ex = []
        if s == 0:
            ex = [[x] for x in PFL]
        if s == S_PL:
            for j in range(8):
                ex.append([f"s_mov_b32 s{sT0}, {1024 * j}",
                           f"buffer_load_dwordx2 {vr(48 + 2 * j, 2)}, v{vCS}, {sr(S_WS, 4)}, s{sT0} offen"])
                ex.append([f"buffer_load_dwordx2 {vr(64 + 2 * j, 2)}, v{vST}, {sr(S_WS, 4)}, s{sT0} offen"])
        eb = []
        if s >= 6:
            for i in range(3 * (s - 6), 3 * (s - 6) + 3):
                eb += g2_early(i)
        for kk in range(4):
            st = kk & 1
            rl = rlist(s, kk + 1) if kk < 3 else (rlist(s + 1, 0) if not last else [])
            issued = 0
            for m in range(4):
                if not (kk == 3 and m > 0):
                    e(f"s_waitcnt lgkmcnt({9 - (3 + 2 * m) + issued})")
                cc = "0" if (s == 0 and kk == 0) else vr(ACC + 16 * m, 16)
                e(f"v_mfma_f32_32x32x16_bf16 {vr(ACC + 16 * m, 16)}, {vr(BF + 16 * st + 4 * m, 4)}, "
                  f"{vr(AF + 4 * st, 4)}, {cc}")
                if kk == 3 and m == 0 and not last:
                    tags = [f"s{s + 1}"] + (["pst"] if s == S_SIG else []) + (["mbr"] if s == S_CHK else [])
                    e(f"s_waitcnt vmcnt({nwait(*tags)}) lgkmcnt(0)")
                    if s == S_CHK:
                        c("wave 0: all 24 partial producers have signalled? (else poll)")
                        e(f"s_cmp_eq_u32 s{sW}, 0")
                        e("s_cbranch_scc1 k1_chk")
                        with ool("k1_chk"):
                            pollmask(83, 0xffffff, S_WS, first=75)
                    e("s_barrier")
                    if s == 4:
                        stamp(2)
                    if s == S_SIG:
                        c("wave 4: everybody's partial stores are complete -> signal the consumers")
                        e(f"s_cmp_eq_u32 s{sW}, 4")
                        e("s_cbranch_scc1 k1_psig")
                        with ool("k1_psig"):
                            psig()
                for _ in range(3):
                    if rl:
                        e(rl.pop(0))
                        issued += 1
                if dg and kk < 3 and (m >= 2 or s == 0):
                    for x in dg.pop(0):
                        emit(x, dtag)
                elif ex:
                    for _ in range(2 if s == S_PL else 1):
                        if ex:
                            for x in ex.pop(0):
                                emit(x, "pf" if s == 0 else "pl")
                if eb and not ex and (kk < 3 or s == 6):
                    for x in eb.pop(0):
                        emit(x, "eb")
                if s == 4 and kk == 1 and m == 0:
                    g2_setup(sW, 6)
                if s == PLH and kk == 0 and m == 1:
                    emit(f"buffer_load_dword v38, v36, {sr(S_WS, 4)}, 0 offen", "plh")
                if s == PLO and kk == 1 and m == 1:
                    make_srd(84, P_OUT, 2048 * 1024)
                    emit(f"buffer_load_dword v38, v37, {sr(84, 4)}, 0 offen", "plo")
                if s == S_MBR and kk == 0 and m == 0:
                    c("every wave issues it (uniform counting), only wave 0 uses it")
                    e("v_and_b32 v15, 31, v1")
                    e("v_lshlrev_b32 v15, 2, v15")
                    e(f"s_cmp_eq_u32 s{sW}, 0")
                    e("s_cselect_b64 exec, -1, 0")
                    emit(f"buffer_load_dword v75, v15, {sr(S_WS, 4)}, s83 offen sc1", "mbr")
                    e("s_mov_b64 exec, -1")
                if side and kk in (1, 2):
                    if kk == 1 and m == 0:
                        e(f"s_waitcnt vmcnt({nwait('pf') + 2})")
                    for _ in range(nside):
                        if side:
                            x = side.pop(0)
                            for y in (x if isinstance(x, tuple) else (x,)):
                                emit(y, "pst" if "store" in y else None)
                if last and kk == 3:
                    if m == 0:
                        e(f"s_waitcnt vmcnt({nwait('pl')})")
                        for j in range(1, 8):
                            e(f"v_add_f32 v48, v48, v{48 + 2 * j}")
                            e(f"v_add_f32 v49, v49, v{49 + 2 * j}")
                            e(f"v_add_f32 v64, v64, v{64 + 2 * j}")
                            e(f"v_add_f32 v65, v65, v{65 + 2 * j}")
                        e(f"s_lshl_b32 s{sT0}, s{sW}, 9")
                        e(f"s_add_u32 s{sT0}, s{sT0}, {K1_EX}")
                        e(f"v_lshl_add_u32 v4, v1, 3, s{sT0}")
                        e("ds_write_b64 v4, v[48:49]")
                        e("v_lshrrev_b32 v4, 5, v1")
                        e(f"v_lshl_add_u32 v4, v4, 4, s{sT0}")
                        e("s_waitcnt lgkmcnt(0)")
                    elif m == 1:
                        for ti in range(4):
                            part, T = ti >> 1, ti & 1
                            for q in range(4):
                                e(f"ds_read_b128 {vr(CSR + 16 * ti + 4 * q, 4)}, v4 offset:{256 * part + 128 * T + 32 * q}")
                    elif m == 2:
                        for x in stats_math(64, 65, 8):
                            e(x)
        assert not dg and not side and not ex and not eb

    def psig():
        e(f"v_readfirstlane_b32 s{sZ}, v74")
        e("s_nop 3")
        zcheck()
        c("lanes 0-15: (mt'=l, nt) ; lanes 16-26: (mt, nt'=l-16) if nt < 8")
        e("v_cmp_gt_u32 vcc, 16, v1")
        e(f"v_mov_b32 v12, s{sMT}")
        e(f"v_mov_b32 v13, s{sNT}")
        e("v_subrev_u32 v14, 16, v1")
        e("v_cndmask_b32 v12, v12, v1, vcc")
        e("v_cndmask_b32 v13, v14, v13, vcc")
        e("v_lshrrev_b32 v14, 3, v12")
        e("v_mul_u32_u24 v14, 88, v14")
        e("v_lshl_add_u32 v14, v13, 3, v14")
        e("v_and_b32 v12, 7, v12")
        e("v_add_u32 v14, v14, v12")
        e("v_mul_u32_u24 v12, 2979, v14")
        e("v_lshrrev_b32 v12, 16, v12")
        e("v_mul_u32_u24 v13, 22, v12")
        e("v_sub_u32 v13, v14, v13")
        e("v_lshl_add_u32 v12, v13, 3, v12")
        e("v_lshlrev_b32 v12, 8, v12")
        e(f"s_lshl_b32 s79, s{sMT}, 2")
        e(f"s_add_u32 s79, s79, {WS_MB + 64 * 256 + 4 * MB_CS}")
        e(f"s_lshl_b32 s80, s{sNT}, 2")
        e(f"s_add_u32 s80, s80, {WS_MB + 64 * 256 + 4 * MB_ST}")
        e("v_mov_b32 v13, s80")
        e("v_mov_b32 v14, s79")
        e("v_cndmask_b32 v13, v13, v14, vcc")
        e("v_add_u32 v12, v12, v13")
        e("v_mov_b32 v13, 1")
        e(f"s_cmp_lt_u32 s{sNT}, 8")
        e("s_cselect_b32 s79, 27, 16")
        e("v_cmp_gt_u32 vcc, s79, v1")
        e("s_and_saveexec_b64 s[70:71], vcc")
        e(f"buffer_store_dword v13, v12, {sr(S_WS, 4)}, 0 offen sc1")
        e("s_mov_b64 exec, s[70:71]")

    mask_init()
    e("s_waitcnt lgkmcnt(0)")
    if PSET:
        stamp(9)
    e(f"s_waitcnt vmcnt({nwait('s0')})")
    if PSET:
        stamp(7)
    e("s_barrier")
    stamp(1)
    for x in rlist(0, 0):
        e(x)
    for s in range(8):
        body(s)
    stamp(3)
    e("v_and_b32 v2, 31, v1")
    e("v_lshrrev_b32 v3, 5, v1")
    if 0:
        c("prefetch a slice of w_down (1 KB per wave) towards MALL for k2")
        e("s_sub_u32 s3, s2, %d" % K1_NCONV)
        e("s_lshl_b32 s3, s3, 3")
        e(f"s_add_u32 s3, s3, s{sW}")
        e("s_lshl_b32 s3, s3, 10")
        make_srd(S_X, P_WD, 1376 * 1024)
        e("v_lshlrev_b32 v6, 4, v1")
        e(f"buffer_load_dwordx4 v[224:227], v6, {sr(S_X, 4)}, s3 offen")
    RS, NM = 246, 248
    c("epilogue: h = bf16(bf16(g)*bf16(u)); transpose via wave-private LDS (4 KB at 49152 + w*4096)")
    e("s_barrier")
    e(f"s_lshl_b32 s{sT0}, s{sW}, 12")
    e(f"s_add_u32 s{sT0}, s{sT0}, 49152")
    e("v_and_b32 v4, 7, v2")
    e("v_xor_b32 v4, v4, v3")
    e("v_lshlrev_b32 v4, 4, v4")
    e("v_lshl_add_u32 v4, v2, 7, v4")
    e(f"v_add_u32 v4, s{sT0}, v4")
    e("v_lshrrev_b32 v5, 3, v1")
    e("v_and_b32 v6, 7, v1")
    e("v_xor_b32 v6, v6, v5")
    e("v_lshlrev_b32 v6, 4, v6")
    e("v_lshl_add_u32 v6, v5, 7, v6")
    e(f"v_add_u32 v6, s{sT0}, v6")
    e(f"v_mov_b32 v{RS}, v250")
    e(f"v_mov_b32 v{RS + 1}, v250")
    e(f"v_mov_b32 v{NM}, v251")
    e(f"v_mov_b32 v{NM + 1}, v251")
    e("s_waitcnt lgkmcnt(0)")
    for r in range(0, 64, 2):
        e(f"v_pk_mul_f32 {vr(CSR + r, 2)}, {vr(CSR + r, 2)}, {vr(NM, 2)}")
    for r in range(0, 64, 2):
        e(f"v_pk_fma_f32 {vr(ACC + r, 2)}, {vr(ACC + r, 2)}, {vr(RS, 2)}, {vr(CSR + r, 2)}")
    for T in range(2):
        G, U = ACC + 16 * T, ACC + 32 + 16 * T
        for qq in range(2):
            o = 16 + 4 * (2 * T + qq)
            for h2 in range(4):
                r = 8 * qq + 2 * h2
                e(f"v_cvt_pk_bf16_f32 v8, v{G + r}, v{G + r + 1}")
                e(f"v_cvt_pk_bf16_f32 v9, v{U + r}, v{U + r + 1}")
                e("v_lshlrev_b32 v10, 16, v8")
                e("v_and_b32 v11, 0xffff0000, v8")
                e("v_lshlrev_b32 v12, 16, v9")
                e("v_and_b32 v13, 0xffff0000, v9")
                e("v_mul_f32 v10, v10, v12")
                e("v_mul_f32 v11, v11, v13")
                e(f"v_cvt_pk_bf16_f32 v{o + h2}, v10, v11")
            e("s_nop 1")
            e(f"v_permlane32_swap_b32 v{o}, v{o + 2}")
            e(f"v_permlane32_swap_b32 v{o + 1}, v{o + 3}")
            e(f"v_xor_b32 v7, {(4 * T + 2 * qq) << 4}, v4")
            e(f"ds_write_b128 v7, {vr(o, 4)}")
    e(f"s_mov_b32 s{sZ}, 1")
    e(f"s_cmp_ge_u32 s{sW}, 4")
    e("s_cbranch_scc1 k1_stw")
    c("compute waves of GEMM2: early B DMAs done, h tile in LDS -> barrier 1")
    e("s_waitcnt vmcnt(0) lgkmcnt(0)")
    e("s_barrier")
    stamp(4)
    e("s_branch g2_entry")
    e("k1_stw:")
    c("store waves: own tile (nh = 1) first, then the partner's (nh = 0)")
    e("s_waitcnt lgkmcnt(0)")
    for j in range(4):
        e(f"ds_read_b128 {vr(32 + 4 * j, 4)}, v6 offset:{1024 * j}")
    e("s_waitcnt vmcnt(0)")
    c("row stats store (nt == 0, waves 4-7, lanes 0-31)")
    e(f"s_cmp_lg_u32 s{sNT}, 0")
    e("s_cbranch_scc1 k1_nostat")
    e(f"s_lshl_b32 s{sT0}, s{sMT}, 7")
    e(f"s_and_b32 s{sT1}, s{sW}, 3")
    e(f"s_lshl_b32 s{sT1}, s{sT1}, 5")
    e(f"s_add_u32 s{sT0}, s{sT0}, s{sT1}")
    e(f"s_lshl_b32 s{sT0}, s{sT0}, 3")
    e(f"s_add_u32 s{sT0}, s{sT0}, {WS_ST}")
    e("v_lshlrev_b32 v15, 3, v2")
    e("v_cmp_eq_u32 vcc, 0, v3")
    e("s_and_saveexec_b64 s[70:71], vcc")
    e(f"buffer_store_dwordx2 v[250:251], v15, {sr(S_WS, 4)}, s{sT0} offen{STC}")
    e("s_mov_b64 exec, s[70:71]")
    e("k1_nostat:")
    for j in range(4):
        e(f"s_waitcnt lgkmcnt({3 - j})")
        e(f"s_mov_b32 s{sT0}, {8 * j * HP}")
        e(f"buffer_store_dwordx4 {vr(32 + 4 * j, 4)}, v{vHoff}, {sr(S_WS, 4)}, s{sT0} offen{STC}")
    e("s_barrier")
    e("v_subrev_u32 v6, 16384, v6")
    for j in range(4):
        e(f"ds_read_b128 {vr(48 + 4 * j, 4)}, v6 offset:{1024 * j}")
    e(f"v_subrev_u32 v7, 128, v{vHoff}")
    for j in range(4):
        e(f"s_waitcnt lgkmcnt({3 - j})")
        e(f"s_mov_b32 s{sT0}, {8 * j * HP}")
        e(f"buffer_store_dwordx4 {vr(48 + 4 * j, 4)}, v7, {sr(S_WS, 4)}, s{sT0} offen{STC}")
    e("s_waitcnt lgkmcnt(0)")
    e("s_barrier")
    stamp(4)
    signal(sW, S_WS, "h", sMT, sNT)
    e("s_branch g2_entry")
    flush_ool()


def k1_aux():
    sW = 62
    e("k1_aux:")
    e("v_lshrrev_b32 v2, 6, v0")
    e("v_and_b32 v1, 63, v0")
    e(f"v_readfirstlane_b32 s{sW}, v2")
    e("s_waitcnt lgkmcnt(0)")
    stamp(0)
    e(f"s_mov_b32 s{sZ}, 0")
    g2_setup(sW, 0)
    if PLO >= 0:
        out_pre_addr(sW, 206, 84)
        make_srd(84, P_OUT, 2048 * 1024)
        e(f"buffer_load_dword v207, v206, {sr(84, 4)}, 0 offen")
    c("WG 240: zero all mailboxes (64 KB), then set the flag in d_debug")
    make_srd(48, P_WS, 0x1000000)
    make_srd(S_DB2, P_DBG, 256)
    e("s_cmp_lg_u32 s2, 240")
    e("s_cbranch_scc1 aux_nz")
    e(f"s_lshl_b32 s3, s{sW}, 13")
    e(f"s_add_u32 s3, s3, {WS_MB}")
    e("v_lshlrev_b32 v3, 4, v1")
    for r in range(4):
        e(f"v_mov_b32 v{4 + r}, 0")
    for j in range(8):
        e("buffer_store_dwordx4 v[4:7], v3, s[48:51], s3 offen sc1")
        e("s_add_u32 s3, s3, 1024")
    e("s_waitcnt vmcnt(0)")
    e("s_barrier")
    stamp(1)
    e(f"s_cmp_lg_u32 s{sW}, 0")
    e("s_cbranch_scc1 aux_nz")
    e("v_mov_b32 v14, 1")
    e(f"v_mov_b32 v15, {ZOFF}")
    e("v_cmp_eq_u32 vcc, 0, v1")
    e("s_and_saveexec_b64 s[70:71], vcc")
    e(f"buffer_store_dword v14, v15, {sr(S_DB2, 4)}, 0 offen sc1")
    e("s_mov_b64 exec, s[70:71]")
    e("aux_nz:")
    if PREF3 == 0:
        e("s_branch g2_entry")
        return
    if PREF3 == 2:
        e(f"s_cmp_lt_u32 s{sW}, 5")
        e("s_cbranch_scc1 g2_entry")
    for _ in range(ASLEEP):
        e("s_sleep 16")
    c("pull half of w_down into this XCD's L2 (86 KB per wave)")
    make_srd(44, P_WD, 1376 * 1024)
    e("s_sub_u32 s3, s2, 240")
    e("s_lshr_b32 s3, s3, 3")
    e("s_lshl_b32 s3, s3, 3")
    e(f"s_add_u32 s3, s3, s{sW}")
    e("s_mul_i32 s3, s3, 88064")
    e("v_lshlrev_b32 v3, 4, v1")
    for j in range(86):
        e(f"buffer_load_dwordx4 {vr(16 + 4 * (j % 8), 4)}, v3, s[44:47], s3 offen")
        e("s_add_u32 s3, s3, 1024")
        if j >= 32:
            e("s_waitcnt vmcnt(32)")
        if j == 41:
            stamp(2)
    e("s_waitcnt vmcnt(0)")
    stamp(5)
    e("s_branch g2_entry")


CV_R = 0
CV_RSTR = 4608
CV_KT = 0
CV_KSTR = 8320
CV_KCPY = 4160
CV_T = 98304
CV_TP = 528


def k1_conv():
    S_K, S_V, S_SK, S_WS, S_SH, S_DBG = 44, 48, 52, 56, 72, 76
    sW, sT0, sT1, sD, sG, sJ, sCG, sRB = 62, 63, 64, 65, 66, 67, 68, 69
    e("k1_conv:")
    e("v_lshrrev_b32 v2, 6, v0")
    e("v_and_b32 v1, 63, v0")
    e(f"v_readfirstlane_b32 s{sW}, v2")
    e("s_waitcnt lgkmcnt(0)")
    stamp(0)
    for _ in range(CSLEEP):
        e("s_sleep 16")
    make_srd(S_K, P_K, 2048 * 1024)
    make_srd(S_V, P_V, 2048 * 1024)
    make_srd(S_SK, P_SK, 512 * 4096)
    make_srd(S_WS, P_WS, 0x1000000)
    make_srd(S_SH, P_SH, 4096)
    make_srd(S_DBG, P_DBG, 256)
    c("G = id%8 (64-channel group, one XCD), J = id/8 (256-row block / channel sub-group), cg = 8G + J")
    e(f"s_and_b32 s{sG}, s2, 7")
    e(f"s_lshr_b32 s{sJ}, s2, 3")
    e(f"s_lshl_b32 s{sCG}, s{sG}, 3")
    e(f"s_add_u32 s{sCG}, s{sCG}, s{sJ}")
    e(f"s_mul_i32 s{sRB}, s{sW}, {CV_RSTR}")
    e(f"s_cmp_ge_u32 s{sW}, 6")
    e(f"s_mov_b32 s{sT0}, 66560")
    e(f"s_cselect_b32 s{sT0}, {147456 - 6 * CV_RSTR}, s{sT0}")
    e(f"s_add_u32 s{sRB}, s{sRB}, s{sT0}")
    c("---- kv phase: rows J*256 + 4*rg.., channels G*64 + cs*8..")
    e("v_lshrrev_b32 v2, 3, v0")
    e("v_and_b32 v3, 7, v0")
    e(f"s_lshl_b32 s{sT0}, s{sJ}, 18")
    e(f"s_lshl_b32 s{sT1}, s{sG}, 7")
    e(f"s_add_u32 s{sT0}, s{sT0}, s{sT1}")
    e("v_lshlrev_b32 v4, 12, v2")
    e("v_lshl_add_u32 v4, v3, 4, v4")
    e(f"v_add_u32 v4, s{sT0}, v4")
    e("v_subrev_u32 v5, 3072, v4")
    KD, VD, WD = 16, 44, 60
    for r in range(3):
        e(f"buffer_load_dwordx4 {vr(KD + 4 * r, 4)}, v5, {sr(S_K, 4)}, 0 offen offset:{1024 * r}{CNT}")
    for r in range(4):
        e(f"buffer_load_dwordx4 {vr(KD + 12 + 4 * r, 4)}, v4, {sr(S_K, 4)}, 0 offen offset:{1024 * r}{CNT}")
    for r in range(4):
        e(f"buffer_load_dwordx4 {vr(VD + 4 * r, 4)}, v4, {sr(S_V, 4)}, 0 offen offset:{1024 * r}{CNT}")
    e(f"s_lshl_b32 s{sT1}, s{sG}, 9")
    e("v_lshlrev_b32 v6, 6, v3")
    e(f"v_add_u32 v6, s{sT1}, v6")
    for j in range(4):
        e(f"buffer_load_dwordx4 {vr(WD + 4 * j, 4)}, v6, {sr(S_SH, 4)}, 0 offen offset:{16 * j}")
    c("ssm_D for this wave's channel")
    e(f"s_lshl_b32 s{sT0}, s{sCG}, 4")
    e(f"s_lshl_b32 s{sT1}, s{sW}, 1")
    e(f"s_add_u32 s{sT0}, s{sT0}, s{sT1}")
    e(f"s_and_b32 s{sT1}, s{sT0}, 0xfffffffc")
    e(f"s_add_u32 s{P_SD}, s{P_SD}, s{sT1}")
    e(f"s_addc_u32 s{P_SD + 1}, s{P_SD + 1}, 0")
    e(f"s_load_dword s{sD}, {sr(P_SD, 2)}, 0")
    c("ssm_k row of this wave's channel")
    SKD = 232
    e(f"s_lshl_b32 s{sT0}, s{sCG}, 3")
    e(f"s_add_u32 s{sT0}, s{sT0}, s{sW}")
    e(f"s_lshl_b32 s{sT0}, s{sT0}, 12")
    e("v_lshlrev_b32 v8, 4, v1")
    e(f"v_add_u32 v8, s{sT0}, v8")
    def skloads():
        for j in range(4):
            e(f"buffer_load_dwordx4 {vr(SKD + 4 * j, 4)}, v8, {sr(S_SK, 4)}, 0 offen offset:{1024 * j}{SNT}")
        for j in range(4):
            e(f"buffer_load_dword v{SKD + 16 + j}, v8, {sr(S_SK, 4)}, 0 offen offset:{1024 * j + 16}")
    if not SKDEF:
        skloads()
    c("kv LDS transpose position: T + (cs*8 + cc)*528 + 504 - 8 rg")
    e(f"v_mul_u32_u24 v7, {8 * CV_TP}, v3")
    e("v_lshlrev_b32 v9, 3, v2")
    e("v_sub_u32 v7, v7, v9")
    e(f"v_add_u32 v7, {CV_T + 504}, v7")
    mask_init()
    e(f"s_waitcnt vmcnt({0 if SKDEF else 8})")
    stamp(1)
    if SKDEF:
        skloads()
    e(f"s_cmp_lg_u32 s{sW}, 0")
    e("s_cbranch_scc1 k1c_nozl")
    zload()
    e("k1c_nozl:")
    KF, VF, WF = 80, 136, 200
    for cc in range(8):
        for jp in range(2):
            w = WD + 2 * cc + jp
            e(f"v_lshlrev_b32 v{WF + (2 * jp) * 8 + cc}, 16, v{w}")
            e(f"v_and_b32 v{WF + (2 * jp + 1) * 8 + cc}, 0xffff0000, v{w}")
    for i in range(28):
        e(f"v_lshlrev_b32 v{KF + 2 * i}, 16, v{KD + i}")
        e(f"v_and_b32 v{KF + 2 * i + 1}, 0xffff0000, v{KD + i}")
    for i in range(16):
        e(f"v_lshlrev_b32 v{VF + 2 * i}, 16, v{VD + i}")
        e(f"v_and_b32 v{VF + 2 * i + 1}, 0xffff0000, v{VD + i}")
    KV = 168
    for r in range(4):
        for cp in range(4):
            d = KV + 8 * r + 2 * cp
            e(f"v_pk_mul_f32 {vr(d, 2)}, {vr(KF + 8 * r + 2 * cp, 2)}, {vr(WF + 3 * 8 + 2 * cp, 2)}")
            for j in range(1, 4):
                e(f"v_pk_fma_f32 {vr(d, 2)}, {vr(KF + 8 * (r + j) + 2 * cp, 2)}, "
                  f"{vr(WF + (3 - j) * 8 + 2 * cp, 2)}, {vr(d, 2)}")
            e(f"v_pk_mul_f32 {vr(d, 2)}, {vr(d, 2)}, {vr(VF + 8 * r + 2 * cp, 2)}")
    for cc in range(8):
        o = 16 + 2 * cc
        e(f"v_cvt_pk_bf16_f32 v{o}, v{KV + 24 + cc}, v{KV + 16 + cc}")
        e(f"v_cvt_pk_bf16_f32 v{o + 1}, v{KV + 8 + cc}, v{KV + cc}")
        e(f"ds_write_b64 v7, {vr(o, 2)} offset:{cc * CV_TP}")
    e("s_waitcnt lgkmcnt(0)")
    e("s_barrier")
    c("wave w: channels 8w..8w+7 of the group: full-line stores (2 channels x 512 B per instruction)")
    e("v_lshrrev_b32 v6, 5, v1")
    e("v_and_b32 v7, 31, v1")
    e("v_lshlrev_b32 v7, 4, v7")
    e(f"v_mul_u32_u24 v9, {CV_TP}, v6")
    e("v_add_u32 v9, v9, v7")
    e(f"s_mul_i32 s{sT1}, s{sW}, {8 * CV_TP}")
    e(f"s_add_u32 s{sT1}, s{sT1}, {CV_T}")
    e(f"v_add_u32 v9, s{sT1}, v9")
    for j in range(4):
        e(f"ds_read_b128 {vr(16 + 4 * j, 4)}, v9 offset:{2 * j * CV_TP}")
    e("v_lshl_add_u32 v7, v6, 12, v7")
    e(f"s_lshl_b32 s{sT0}, s{sG}, 18")
    e(f"s_lshl_b32 s{sT1}, s{sW}, 15")
    e(f"s_add_u32 s{sT0}, s{sT0}, s{sT1}")
    e(f"s_add_u32 s{sT0}, s{sT0}, {WS_KV + 3584}")
    e(f"s_lshl_b32 s{sT1}, s{sJ}, 9")
    e(f"s_sub_u32 s{sT0}, s{sT0}, s{sT1}")
    for j in range(4):
        e(f"s_waitcnt lgkmcnt({3 - j})")
        e(f"buffer_store_dwordx4 {vr(16 + 4 * j, 4)}, v7, {sr(S_WS, 4)}, s{sT0} offen sc1")
        e(f"s_add_u32 s{sT0}, s{sT0}, 8192")
    c("meanwhile: zero pads and KT copies")
    e(f"s_mov_b32 s{sT1}, s{sRB}")
    e("v_lshlrev_b32 v6, 3, v1")
    e(f"v_add_u32 v6, s{sT1}, v6")
    e("v_mov_b32 v10, 0")
    e("v_mov_b32 v11, 0")
    e(f"ds_write_b64 v6, v[10:11] offset:{CV_R + 4096}")
    e(f"s_mul_i32 s{sT1}, s{sW}, {CV_KSTR}")
    e(f"s_add_u32 s{sT1}, s{sT1}, {CV_KT}")
    e("v_lshlrev_b32 v7, 2, v1")
    e(f"v_add_u32 v7, s{sT1}, v7")
    e("v_cmp_gt_u32 vcc, 8, v1")
    e("s_and_saveexec_b64 s[70:71], vcc")
    e("ds_write_b32 v7, v10")
    e(f"ds_write_b32 v7, v10 offset:{CV_KCPY}")
    e("s_mov_b64 exec, s[70:71]")
    e("s_waitcnt lgkmcnt(0)")
    e(f"s_lshl_b32 s{sT0}, s{sD}, 16")
    e(f"s_and_b32 s{sD}, s{sD}, 0xffff0000")
    e(f"s_bitcmp1_b32 s{sW}, 0")
    e(f"s_cselect_b32 s{sD}, s{sD}, s{sT0}")
    e("v_lshlrev_b32 v7, 4, v1")
    e(f"v_add_u32 v7, s{sT1}, v7")
    e("s_waitcnt vmcnt(4)")
    for j in range(4):
        d = SKD + 4 * j
        e(f"ds_write_b128 v7, {vr(d, 4)} offset:{32 + 1024 * j}")
        e(f"v_alignbit_b32 v12, v{d + 1}, v{d}, 16")
        e(f"v_alignbit_b32 v13, v{d + 2}, v{d + 1}, 16")
        e(f"v_alignbit_b32 v14, v{d + 3}, v{d + 2}, 16")
        e(f"v_alignbit_b32 v15, v{SKD + 16 + j}, v{d + 3}, 16")
        e(f"ds_write_b128 v7, v[12:15] offset:{CV_KCPY + 32 + 1024 * j}")
        e("s_nop 1")
    e(f"v_lshlrev_b32 v12, 16, v{SKD}")
    e("v_cmp_eq_u32 vcc, 0, v1")
    e("s_and_saveexec_b64 s[70:71], vcc")
    e(f"ds_write_b32 v7, v12 offset:{CV_KCPY + 28}")
    e("s_mov_b64 exec, s[70:71]")
    c("hand-off: all kv stores drained -> barrier -> flags to the 8 WGs of the group; then poll own mailbox")
    e("s_waitcnt vmcnt(0)")
    e("s_barrier")
    stamp(2)
    e(f"s_cmp_lg_u32 s{sW}, 0")
    e("s_cbranch_scc1 k1c_wait")
    zcheck()
    e(f"v_lshl_add_u32 v12, v1, 3, s{sG}")
    e("v_lshlrev_b32 v12, 8, v12")
    e(f"s_lshl_b32 s79, s{sJ}, 2")
    e(f"s_add_u32 s79, s79, {WS_MB + 4 * MB_KV}")
    e("v_mov_b32 v13, 1")
    e("v_cmp_gt_u32 vcc, 8, v1")
    e("s_and_saveexec_b64 s[70:71], vcc")
    e(f"buffer_store_dword v13, v12, {sr(S_WS, 4)}, s79 offen sc1")
    e("s_mov_b64 exec, s[70:71]")
    e("s_lshl_b32 s79, s2, 8")
    e(f"s_add_u32 s79, s79, {WS_MB + 128}")
    pollmask(79, 0xff << (MB_KV - 32), S_WS)
    e(f"s_mov_b32 s{sZ}, 1")
    e("k1c_wait:")
    e("s_barrier")
    c("load own channel kvR row (sc1) -> LDS R")
    e(f"v_add_u32 v8, {WS_KV}, v8")
    for j in range(4):
        e(f"buffer_load_dwordx4 {vr(16 + 4 * j, 4)}, v8, {sr(S_WS, 4)}, 0 offen offset:{1024 * j} sc1")
    e(f"s_mov_b32 s{sT0}, s{sRB}")
    e("v_lshlrev_b32 v6, 4, v1")
    e(f"v_add_u32 v6, s{sT0}, v6")
    for j in range(4):
        e(f"s_waitcnt vmcnt({3 - j})")
        e(f"ds_write_b128 v6, {vr(16 + 4 * j, 4)} offset:{CV_R + 1024 * j}")
    e("s_waitcnt lgkmcnt(0)")
    stamp(3)
    c("MFMA phase: wave w -> channel w")
    ACC = 16
    AR = [48, 112]
    BR = [80, 144]
    vKT, vR, vA = 200, 201, 202
    e("v_and_b32 v2, 15, v1")
    e("v_lshrrev_b32 v3, 4, v1")
    e("v_lshlrev_b32 v4, 1, v2")
    e("v_lshlrev_b32 v5, 4, v3")
    e("v_sub_u32 v4, v4, v5")
    e(f"v_add_u32 v4, {32 - 14}, v4")
    e("v_and_b32 v5, 1, v2")
    e("v_cmp_eq_u32 vcc, 0, v5")
    e("v_mov_b32 v5, 0")
    e(f"v_mov_b32 v6, {CV_KCPY - 2}")
    e("s_nop 1")
    e("v_cndmask_b32 v5, v5, v6, vcc")
    e("v_add_u32 v4, v4, v5")
    e(f"v_add_u32 v{vKT}, s{sT1}, v4")
    e(f"s_mov_b32 s{sT0}, s{sRB}")
    e("v_lshlrev_b32 v4, 5, v2")
    e("v_lshl_add_u32 v4, v3, 4, v4")
    e(f"v_sub_u32 v4, {CV_R + 4080 - 3584}, v4")
    e(f"v_add_u32 v{vR}, s{sT0}, v4")

    def creads(ci, st):
        d0 = 2 * ci + 1
        for pp in range(4):
            e(f"v_add_u32 v{vA + pp}, {32 * d0 + 1024 * pp}, v{vKT}")
        order = [("B", 0)] + [("A", p) for p in range(8)] + [("B", m) for m in range(1, 8)]
        for kind, x in order:
            if kind == "A":
                p = x
                o = 128 * (p & 1)
                e(f"ds_read2_b32 {vr(AR[st] + 4 * p, 2)}, v{vA + (p >> 1)} offset0:{o} offset1:{o + 1}")
                e(f"ds_read2_b32 {vr(AR[st] + 4 * p + 2, 2)}, v{vA + (p >> 1)} offset0:{o + 2} offset1:{o + 3}")
            else:
                m = x
                e(f"ds_read_b128 {vr(BR[st] + 4 * m, 4)}, v{vR} offset:{32 * d0 + 512 * (7 - m)}")

    creads(0, 0)
    g2_setup(sW, 3)
    if PLO >= 0:
        out_pre_addr(sW, 206, 84)
        make_srd(84, P_OUT, 2048 * 1024)
        e(f"buffer_load_dword v207, v206, {sr(84, 4)}, 0 offen")
    if PLY:
        e(f"s_lshl_b32 s3, s{sCG}, 3")
        e(f"s_add_u32 s3, s3, s{sW}")
        e("s_lshl_b32 s3, s3, 12")
        e(f"s_add_u32 s3, s3, {WS_Y2}")
        e("v_lshlrev_b32 v206, 6, v1")
        e(f"buffer_load_dword v207, v206, {sr(S_WS, 4)}, s3 offen")
    for ci in range(8):
        st = ci & 1
        e("s_waitcnt lgkmcnt(0)")
        if ci < 7:
            creads(ci + 1, st ^ 1)
        if 2 <= ci <= 4:
            for g in g2_early(ci - 2):
                for x in g:
                    e(x)
        for m in range(8):
            for p in range(8 - m):
                cc = "0" if (ci == 0 and m == 0) else vr(ACC + 4 * (m + p), 4)
                e(f"v_mfma_f32_16x16x32_bf16 {vr(ACC + 4 * (m + p), 4)}, {vr(AR[st] + 4 * p, 4)}, "
                  f"{vr(BR[st] + 4 * m, 4)}, {cc}")
    stamp(None)
    c("epilogue: kv reads, y2 = bf16(bf16(y) + bf16(kv*D)), store y2T")
    e("v_lshlrev_b32 v4, 5, v2")
    e("v_lshl_add_u32 v4, v3, 3, v4")
    e(f"v_sub_u32 v5, {CV_R + 4088 - 3584}, v4")
    e(f"v_add_u32 v5, s{sT0}, v5")
    KVR = 48
    for n in range(8):
        e(f"ds_read_b64 {vr(KVR + 2 * n, 2)}, v5 offset:{512 * (7 - n)}")
    e(f"s_lshl_b32 s{sT1}, s{sCG}, 3")
    e(f"s_add_u32 s{sT1}, s{sT1}, s{sW}")
    e(f"s_lshl_b32 s{sT1}, s{sT1}, 12")
    e(f"s_add_u32 s{sT1}, s{sT1}, {WS_Y2}")
    e(f"v_add_u32 v6, s{sT1}, v4")
    e("s_nop 7")
    e("s_waitcnt vmcnt(0) lgkmcnt(0)")
    e(f"s_cmp_lt_u32 s{sW}, 4")
    e("s_cbranch_scc1 k1c_nb1")
    e("s_barrier")
    e("k1c_nb1:")
    for n in range(8):
        a = ACC + 4 * n
        k0, k1 = KVR + 2 * n, KVR + 2 * n + 1
        o = 80 + 2 * n
        e(f"v_cvt_pk_bf16_f32 v8, v{a}, v{a + 1}")
        e(f"v_cvt_pk_bf16_f32 v9, v{a + 2}, v{a + 3}")
        e(f"v_and_b32 v10, 0xffff0000, v{k1}")
        e(f"v_lshlrev_b32 v11, 16, v{k1}")
        e(f"v_and_b32 v12, 0xffff0000, v{k0}")
        e(f"v_lshlrev_b32 v13, 16, v{k0}")
        for t in range(4):
            e(f"v_mul_f32 v{10 + t}, s{sD}, v{10 + t}")
        e("v_cvt_pk_bf16_f32 v10, v10, v11")
        e("v_cvt_pk_bf16_f32 v12, v12, v13")
        e("v_lshlrev_b32 v14, 16, v8")
        e("v_and_b32 v15, 0xffff0000, v8")
        e("v_lshlrev_b32 v11, 16, v10")
        e("v_and_b32 v10, 0xffff0000, v10")
        e("v_add_f32 v14, v14, v11")
        e("v_add_f32 v15, v15, v10")
        e(f"v_cvt_pk_bf16_f32 v{o}, v14, v15")
        e("v_lshlrev_b32 v14, 16, v9")
        e("v_and_b32 v15, 0xffff0000, v9")
        e("v_lshlrev_b32 v13, 16, v12")
        e("v_and_b32 v12, 0xffff0000, v12")
        e("v_add_f32 v14, v14, v13")
        e("v_add_f32 v15, v15, v12")
        e(f"v_cvt_pk_bf16_f32 v{o + 1}, v14, v15")
        e(f"buffer_store_dwordx2 {vr(o, 2)}, v6, {sr(S_WS, 4)}, 0 offen offset:{512 * n}{STC}")
    stamp(4)
    e(f"s_mov_b32 s{sZ}, 1")
    e(f"s_cmp_ge_u32 s{sW}, 4")
    e("s_cbranch_scc1 k1c_w47")
    e("s_barrier")
    e("s_branch g2_entry")
    e("k1c_w47:")
    e(f"v_mov_b32 v26, {K2_MASK}")
    e("v_mov_b32 v13, 1")
    e("v_cmp_eq_u32 vcc, 0, v1")
    e("s_waitcnt vmcnt(0)")
    e("s_and_saveexec_b64 s[70:71], vcc")
    e("ds_add_u32 v26, v13 offset:4")
    e("s_mov_b64 exec, s[70:71]")
    stamp(5)
    e(f"s_cmp_lg_u32 s{sW}, 5")
    e("s_cbranch_scc1 g2_entry")
    c("wave 5: wait until all eight waves' stores are complete, then signal")
    e("s_mov_b32 s80, 0")
    e("k1c_cnt:")
    e("ds_read_b32 v15, v26 offset:4")
    e("s_waitcnt lgkmcnt(0)")
    e("v_readfirstlane_b32 s81, v15")
    e("s_add_u32 s80, s80, 1")
    e("s_nop 2")
    e("s_cmp_ge_u32 s81, 8")
    e("s_cbranch_scc1 k1c_cntd")
    e("s_sleep 2")
    e("s_cmp_lt_u32 s80, 0x400000")
    e("s_cbranch_scc1 k1c_cnt")
    e("k1c_cntd:")
    signal(sW, S_WS, "c", sG, sJ, wave=5)
    e("s_branch g2_entry")


def kernel1():
    e(".globl k1_kernel")
    e(".p2align 8")
    e(".type k1_kernel,@function")
    e("k1_kernel:")
    e("s_cmp_ge_u32 s2, 256")
    e("s_cbranch_scc1 k1_done")
    load_ptrs()
    e(f"s_cmp_lt_u32 s2, {K1_NCONV}")
    e("s_cbranch_scc1 k1_conv")
    e(f"s_cmp_lt_u32 s2, {K1_NCONV + K1_NGEMM}")
    e("s_cbranch_scc1 k1_gemm")
    k1_aux()
    k1_gemm()
    k1_conv()
    kernel2()
    e("k1_done:")
    e("s_endpgm")


K2_Y2 = 147456
K2_STATS = K2_Y2 + 8192 + 64
K2_AS = [6, 7, 8, 0, 1, 2]
K2_STEPS = 12
K2_NBR = 8
K2_NA = 6


def kernel2():
    S_H, S_WD, S_X, S_WS, S_OUT = 44, 48, 52, 56, 60
    sW, sT0, sT1, sMT, sNT, sKA, sKB, sLB = 64, 65, 66, 67, 68, 69, 70, 71
    sMASK, sW11 = 18, 19
    XR = 16
    NR = 24
    AFR = 28
    ACC = 60
    BFR = 124
    vDA, vDB, vB0, vB1, vAr, vOut = 8, 9, 10, 11, 12, 13
    e("g2_entry:")
    e("v_lshrrev_b32 v2, 6, v0")
    e("v_and_b32 v1, 63, v0")
    e(f"v_readfirstlane_b32 s{sW}, v2")
    make_srd(S_WS, P_WS, 0x1000000)
    e(f"s_cmp_gt_u32 s{sW}, 4")
    e("s_cbranch_scc1 g2_exit")
    c("x = id%8, j = id/8 : mt2 = 4x + (j&3), nt2 = j>>2")
    e("s_and_b32 s4, s2, 7")
    e("s_lshr_b32 s5, s2, 3")
    e(f"s_lshr_b32 s{sNT}, s5, 2")
    e("s_and_b32 s5, s5, 3")
    e(f"s_lshl_b32 s{sMT}, s4, 2")
    e(f"s_add_u32 s{sMT}, s{sMT}, s5")
    e(f"s_cmp_eq_u32 s{sW}, 4")
    e("s_cbranch_scc1 g2_helper")
    make_srd(S_H, P_WS, WS_H_BYTES)
    make_srd(S_X, P_Q, 2048 * 1024)
    make_srd(S_OUT, P_OUT, 2048 * 1024)
    e(f"s_mul_i32 s{sKA}, s{sMT}, {64 * HP}")
    e(f"s_cmp_eq_u32 s{sND}, 6")
    e("s_cselect_b64 s[42:43], -1, 0")
    e("s_mov_b32 s78, 49152")
    e("s_mov_b32 s83, 98304")
    e(f"s_mov_b32 s{sLB}, s{sLB2}")
    e("v_and_b32 v2, 31, v1")
    e("v_lshrrev_b32 v3, 5, v1")
    e(f"s_mov_b32 s73, s{sROT}")
    VM = []

    def adv(sidx):
        return g2_adv(sidx)

    def groups_B(i, slot):
        g = []
        for j in range(4):
            x = []
            if j == 0:
                x += [f"s_lshl_b32 s77, s{sBI}, 16", f"s_add_u32 s77, s77, s{sKB2}"]
                if i >= 10:
                    x += ["s_mov_b64 exec, s[42:43]"]
            x += [f"s_add_u32 m0, s{sLB}, {slot * 16384 + j * 1024}",
                  f"s_add_u32 s{sT0}, s77, {8 * j * 1024 + (i & 1) * 32768}",
                  f"buffer_load_dwordx4 v{vDB2}, {sr(S_WD2, 4)}, s{sT0} offen lds"]
            if j == 3:
                if i & 1:
                    x += adv(sBI)
                if i >= 10:
                    x += ["s_mov_b64 exec, -1"]
            g.append((x, f"B{i}"))
        return g

    def groups_A(q):
        g = []
        for j in range(8):
            slot = K2_AS[2 * (q % 3) + (j >> 2)]
            x = []
            if j == 0:
                x += [f"s_add_u32 s74, s73, s{sL0}", "s_and_b32 s76, s74, 30",
                      f"s_bitcmp1_b32 s{sMASK}, s76", f"s_cbranch_scc0 g2_wt{q}", ("ool", q),
                      "s_lshl_b32 s76, s74, 7", f"s_add_u32 s76, s76, s{sKA}"]
                if q == 5:
                    x += ["s_mov_b64 exec, s[42:43]"]
            x += [f"s_add_u32 m0, s{sLB}, {slot * 16384 + (j & 3) * 1024}",
                  f"s_add_u32 s{sT0}, s76, {8 * j * HP}",
                  f"buffer_load_dwordx4 v{vDB if j & 1 else vDA}, {sr(S_H, 4)}, s{sT0} offen lds"]
            if j == 7:
                x += adv(73)
                if q == 5:
                    x += ["s_mov_b64 exec, -1"]
            g.append((x, f"A{q}"))
        return g

    def emit_group(g):
        x, tag = g
        for y in x:
            if isinstance(y, tuple):
                i = y[1]
                with ool(f"g2_wt{i}"):
                    e("s_mov_b32 s80, 0")
                    e(f"g2_wl{i}:")
                    e("ds_read_b32 v15, v26")
                    e("s_waitcnt lgkmcnt(0)")
                    e(f"v_readfirstlane_b32 s{sMASK}, v15")
                    e("s_add_u32 s80, s80, 1")
                    e("s_nop 2")
                    e(f"s_bitcmp1_b32 s{sMASK}, s76")
                    e(f"s_cbranch_scc1 g2_wt{i}_ret")
                    e("s_sleep 1")
                    e("s_cmp_lt_u32 s80, 0x400000")
                    e(f"s_cbranch_scc1 g2_wl{i}")
                continue
            e(y)
            if y.startswith("buffer_"):
                VM.append(tag)

    def nwait(tag):
        last = max(i for i, t in enumerate(VM) if t == tag)
        return min(63, len(VM) - 1 - last)

    c("B steps not issued early (branch on the role)")
    e(f"s_cmp_eq_u32 s{sNPRE}, 6")
    e("s_cbranch_scc1 g2_b6")
    e(f"s_cmp_eq_u32 s{sNPRE}, 3")
    e("s_cbranch_scc1 g2_b3")
    for i in range(7):
        if i in (3, 6):
            e(f"g2_b{i}:")
        for g in groups_B(i, K2_SB[i]):
            emit_group(g)
    c("A DMA lane offsets: row = l/8, src chunk = (l%8) ^ (l/16) (^4 for odd 8-row groups)")
    e("v_lshrrev_b32 v4, 3, v1")
    e(f"v_mul_u32_u24 v4, {HP}, v4")
    e("v_and_b32 v5, 7, v1")
    e("v_lshrrev_b32 v6, 4, v1")
    e("v_xor_b32 v5, v5, v6")
    e(f"v_lshl_add_u32 v{vDA}, v5, 4, v4")
    e(f"v_xor_b32 v{vDB}, 64, v{vDA}")
    c("epilogue operand loads: tile (mi = w/2, ni = w%2)")
    e(f"s_lshr_b32 s{sT0}, s{sW}, 1")
    e(f"s_lshl_b32 s{sT0}, s{sT0}, 5")
    e(f"v_add_u32 v27, s{sT0}, v2")
    e(f"v_lshlrev_b32 v27, 3, v27")
    e(f"v_add_u32 v27, {K2_STATS}, v27")
    e(f"s_lshl_b32 s{sT1}, s{sMT}, 6")
    e(f"s_add_u32 s{sT0}, s{sT0}, s{sT1}")
    e(f"v_add_u32 v4, s{sT0}, v2")
    e(f"s_and_b32 s{sT1}, s{sW}, 1")
    e(f"s_lshl_b32 s{sT1}, s{sT1}, 6")
    e(f"s_lshl_b32 s72, s{sNT}, 7")
    e(f"s_add_u32 s{sT1}, s{sT1}, s72")
    e("v_lshlrev_b32 v5, 10, v4")
    e(f"v_add_u32 v5, s{sT1}, v5")
    e(f"v_lshl_add_u32 v{vOut}, v3, 4, v5")
    e("v_lshl_add_u32 v253, v3, 3, v5")
    c("B tr-read lane addresses")
    e("v_and_b32 v4, 15, v1")
    e("v_lshrrev_b32 v5, 2, v4")
    e("v_lshl_add_u32 v6, v3, 4, v5")
    e("v_lshlrev_b32 v6, 7, v6")
    e("v_lshrrev_b32 v7, 4, v1")
    e("v_and_b32 v7, 1, v7")
    e("v_lshl_add_u32 v6, v7, 5, v6")
    e("v_and_b32 v7, 3, v4")
    e("v_lshl_add_u32 v6, v7, 3, v6")
    e(f"v_add_u32 v6, s{sLB}, v6")
    e("v_lshrrev_b32 v7, 3, v4")
    e(f"v_lshl_add_u32 v{vB0}, v7, 6, v6")
    e("v_xor_b32 v7, 1, v7")
    e(f"v_lshl_add_u32 v{vB1}, v7, 6, v6")
    c("A read address: r*128 + ((4h+2g+s) ^ ((r>>1)&7))*16 ; s via xor 16, h via xor 64")
    e("v_lshrrev_b32 v4, 1, v2")
    e("v_and_b32 v4, 7, v4")
    e("v_lshlrev_b32 v5, 1, v3")
    e("v_xor_b32 v4, v4, v5")
    e("v_lshlrev_b32 v4, 4, v4")
    e("v_lshl_add_u32 v4, v2, 7, v4")
    e(f"v_add_u32 v{vAr}, s{sLB}, v4")
    e(f"v_xor_b32 v14, 16, v{vAr}")
    e(f"v_mov_b32 v26, {K2_MASK}")
    e(f"s_mov_b32 s{sMASK}, 0")

    c("address regs per 48 KB third: (B0, B1, A0, A1) x 3 in v[240:251]?  -> B frags end at 251, so use v[4:7] dynamically")

    def rebase(third):
        return [f"v_add_u32 v4, {third * 49152}, v{vB0}", f"v_add_u32 v5, {third * 49152}, v{vB1}",
                f"v_add_u32 v6, {third * 49152}, v{vAr}", f"v_add_u32 v7, {third * 49152}, v14"]

    def breads(i, slot):
        r = rebase(slot // 3)[:2]
        base = BFR + 16 * (i % K2_NBR)
        for s in range(2):
            for ni in range(2):
                for u in range(2):
                    r.append(f"ds_read_b64_tr_b16 {vr(base + 8 * s + 4 * ni + 2 * u, 2)}, v{5 if ni else 4} "
                             f"offset:{(slot % 3) * 16384 + (8 * s + 4 * u) * 128}")
        return r

    def areads(i):
        q, h = i >> 1, i & 1
        r = []
        for mi in range(2):
            slot = K2_AS[2 * (q % 3) + mi]
            th = ["0", "s78", "s83"][slot // 3]
            for s in range(2):
                r.append(f"v_xad_u32 v{6 + s}, v{14 if s else vAr}, {64 * h}, {th}")
            for s in range(2):
                r.append(f"ds_read_b128 {vr(AFR + 16 * (i & 1) + 8 * mi + 4 * s, 4)}, v{6 + s} "
                         f"offset:{(slot % 3) * 16384}")
        return r

    for i in range(6):
        e(f"s_waitcnt vmcnt({nwait(f'B{i}')})")
        for x in breads(i, K2_SB[i]):
            e(x)
    e("s_waitcnt lgkmcnt(0)")
    e(f"s_cmp_eq_u32 s{sNPRE}, 3")
    e("s_cbranch_scc1 g2_cv")
    e("s_barrier")
    with ool("g2_cv"):
        c("conv role: this wave's y2T stores are complete (covered by the B5 wait)")
        e("v_mov_b32 v15, 1")
        e("v_cmp_eq_u32 vcc, 0, v1")
        e("s_and_saveexec_b64 s[80:81], vcc")
        e("ds_add_u32 v26, v15 offset:4")
        e("s_mov_b64 exec, s[80:81]")
    stamp(6)
    for i in (7, 8):
        for g in groups_B(i, K2_SB[i]):
            emit_group(g)
    for q in range(3):
        for g in groups_A(q):
            emit_group(g)
    for i in (6, 7):
        e(f"s_waitcnt vmcnt({nwait(f'B{i}')})")
        for x in breads(i, K2_SB[i]):
            e(x)
    e("s_waitcnt lgkmcnt(0)")
    for g in groups_B(9, K2_SB[9]) + groups_B(10, K2_SB[10]):
        emit_group(g)
    e(f"s_waitcnt vmcnt({nwait('A0')})")
    stamp(None if PSET else 7)
    for x in areads(0):
        e(x)
    BRD = {1: 8, 4: 9, 5: 10, 7: 11}
    for i in range(K2_STEPS):
        if i == 10:
            e(f"s_cmp_eq_u32 s{sND}, 5")
            e("s_cbranch_scc1 k2_lend")
        e("s_waitcnt lgkmcnt(0)")
        dg = []
        if i & 1 and (i >> 1) + 3 < 6:
            dg += groups_A((i >> 1) + 3)
        if i == 2:
            dg += groups_B(11, K2_SB[11])
        rl, tags = [], []
        if i + 1 < K2_STEPS:
            rl = areads(i + 1)
            tags.append(f"A{(i + 1) >> 1}")
        if i in BRD:
            rl += breads(BRD[i], K2_SB[BRD[i]])
            tags.append(f"B{BRD[i]}")
        for g in dg:
            emit_group(g)
        if i == 6:
            for q in range(4):
                e(f"buffer_load_dwordx2 {vr(XR + 2 * q, 2)}, v253, {sr(S_X, 4)}, 0 offen offset:{16 * q}")
                VM.append("epi")
        if rl:
            e(f"s_waitcnt vmcnt({min(nwait(t) for t in tags)})")
            for x in rl:
                e(x)
        for s in range(2):
            for mi in range(2):
                for ni in range(2):
                    a = ACC + 16 * (2 * mi + ni)
                    bb = BFR + 16 * (i % K2_NBR) + 8 * s + 4 * ni
                    cc = "0" if i == 0 and s == 0 else vr(a, 16)
                    e(f"v_mfma_f32_32x32x16_bf16 {vr(a, 16)}, {vr(bb, 4)}, "
                      f"{vr(AFR + 16 * (i & 1) + 8 * mi + 4 * s, 4)}, {cc}")
    e("k2_lend:")
    e("s_waitcnt lgkmcnt(0)")
    e("s_nop 15")
    e("s_nop 3")
    stamp(None if PSET else 8)
    c("write non-owned partial tiles to own LDS region")
    e("v_lshlrev_b32 v4, 4, v1")
    e(f"v_add_u32 v4, s{sLB}, v4")
    for t in range(4):
        e(f"s_cmp_eq_u32 s{sW}, {t}")
        e(f"s_cbranch_scc1 k2_skipw{t}")
        for q in range(4):
            e(f"ds_write_b128 v4, {vr(ACC + 16 * t + 4 * q, 4)} offset:{t * 16384 + q * 1024}")
        e(f"k2_skipw{t}:")
    e("s_waitcnt lgkmcnt(0)")
    e("s_barrier")
    stamp(None if PSET else 9)
    OWN, OTH, YR, OUTR, TA, TB = 124, 140, 188, 196, 204, 205
    c("owner gathers: tile w from the other 3 waves")
    for t in range(4):
        e(f"s_cmp_lg_u32 s{sW}, {t}")
        e(f"s_cbranch_scc1 k2_skipm{t}")
        for r in range(16):
            e(f"v_mov_b32 v{OWN + r}, v{ACC + 16 * t + r}")
        e(f"k2_skipm{t}:")
    e(f"s_lshl_b32 s{sT0}, s{sW}, 14")
    e("v_lshlrev_b32 v4, 4, v1")
    e(f"v_add_u32 v4, s{sT0}, v4")
    for k in range(1, 4):
        e(f"s_add_u32 s{sT1}, s{sW}, {k}")
        e(f"s_and_b32 s{sT1}, s{sT1}, 3")
        e(f"s_lshl_b32 s{sT1}, s{sT1}, 12")
        e(f"v_add_u32 v5, s{sT1}, v4")
        for q in range(4):
            e(f"ds_read_b128 {vr(OTH + 16 * (k - 1) + 4 * q, 4)}, v5 offset:{q * 1024}")
    c("y2 tr reads: c0 = 8q + 4g")
    e("v_and_b32 v4, 15, v1")
    e("v_lshrrev_b32 v5, 2, v4")
    e("v_lshl_add_u32 v5, v3, 2, v5")
    e("v_lshlrev_b32 v5, 6, v5")
    e("v_lshrrev_b32 v6, 4, v1")
    e("v_and_b32 v6, 1, v6")
    e("v_lshl_add_u32 v5, v6, 5, v5")
    e("v_and_b32 v6, 3, v4")
    e("v_lshl_add_u32 v5, v6, 3, v5")
    e(f"s_lshl_b32 s{sT1}, s{sW}, 11")
    e(f"s_add_u32 s{sT1}, s{sT1}, {K2_Y2}")
    e(f"v_add_u32 v5, s{sT1}, v5")
    e("s_waitcnt lgkmcnt(8)")
    for q in range(4):
        e(f"ds_read_b64_tr_b16 {vr(YR + 2 * q, 2)}, v5 offset:{q * 512}")
    e(f"ds_read_b64 {vr(NR, 2)}, v27")
    e("s_waitcnt vmcnt(0) lgkmcnt(0)")
    for r in range(16):
        e(f"v_add_f32 v{OWN + r}, v{OWN + r}, v{OTH + r}")
        e(f"v_add_f32 v{OTH + 16 + r}, v{OTH + 16 + r}, v{OTH + 32 + r}")
    for r in range(16):
        e(f"v_add_f32 v{OWN + r}, v{OWN + r}, v{OTH + 16 + r}")
    for q in range(4):
        for h2 in range(2):
            x = XR + 2 * q + h2
            y = YR + 2 * q + h2
            b = OWN + 4 * q + 2 * h2
            e(f"v_lshlrev_b32 v4, 16, v{x}")
            e(f"v_and_b32 v5, 0xffff0000, v{x}")
            e(f"v_fma_f32 v7, v4, v{NR}, v{NR + 1}")
            e(f"v_fma_f32 v6, v5, v{NR}, v{NR + 1}")
            e("v_cvt_pk_bf16_f32 v6, v7, v6")
            e("v_lshlrev_b32 v7, 16, v6")
            e("v_and_b32 v6, 0xffff0000, v6")
            e(f"v_lshlrev_b32 v{TA}, 16, v{y}")
            e(f"v_and_b32 v{TB}, 0xffff0000, v{y}")
            e(f"v_mul_f32 v7, v7, v{TA}")
            e(f"v_mul_f32 v6, v6, v{TB}")
            e("v_cvt_pk_bf16_f32 v6, v7, v6")
            e("v_lshlrev_b32 v7, 16, v6")
            e("v_and_b32 v6, 0xffff0000, v6")
            e("v_add_f32 v7, v4, v7")
            e("v_add_f32 v6, v5, v6")
            e("v_cvt_pk_bf16_f32 v6, v7, v6")
            e(f"v_cvt_pk_bf16_f32 v{TA}, v{b}, v{b + 1}")
            e("v_lshlrev_b32 v7, 16, v6")
            e("v_and_b32 v6, 0xffff0000, v6")
            e(f"v_lshlrev_b32 v{TB}, 16, v{TA}")
            e(f"v_and_b32 v{TA}, 0xffff0000, v{TA}")
            e(f"v_add_f32 v7, v7, v{TB}")
            e(f"v_add_f32 v6, v6, v{TA}")
            e(f"v_cvt_pk_bf16_f32 v{OUTR + 2 * q + h2}, v7, v6")
    e("s_nop 1")
    for qq in range(2):
        o = OUTR + 4 * qq
        e(f"v_permlane32_swap_b32 v{o}, v{o + 2}")
        e(f"v_permlane32_swap_b32 v{o + 1}, v{o + 3}")
        e(f"buffer_store_dwordx4 {vr(o, 4)}, v{vOut}, {sr(S_OUT, 4)}, 0 offen offset:{32 * qq}{OSC}")
    e("g2_exit:")
    stamp_flush(S_WS, WS_PROF)
    e("s_endpgm")
    flush_ool()
    e("g2_helper:")
    c("helper wave: publish the ready mask of the 11 GEMM1 tiles of row block mt2/2 (own mailbox)")
    e(f"v_mov_b32 v26, {K2_MASK}")
    e(f"s_cmp_lg_u32 s{sNPRE}, 0")
    e("s_cbranch_scc1 g2_h1")
    e("v_mov_b32 v13, 0")
    e("ds_write_b32 v26, v13")
    e("s_waitcnt lgkmcnt(0)")
    e("s_barrier")
    e("g2_h1:")
    zcheck()
    e("s_lshl_b32 s79, s2, 8")
    e(f"s_add_u32 s79, s79, {WS_MB}")
    e("v_and_b32 v15, 31, v0")
    e("v_lshlrev_b32 v15, 2, v15")
    e("s_mov_b32 s80, 0")
    e("g2_hp:")
    e(f"buffer_load_dword v14, v15, {sr(S_WS, 4)}, s79 offen sc1")
    e("s_waitcnt vmcnt(0)")
    e("v_cmp_ne_u32 vcc, 0, v14")
    e("s_add_u32 s80, s80, 1")
    e("s_lshr_b32 s81, vcc_lo, 1")
    e("s_and_b32 s81, s81, vcc_lo")
    e("s_and_b32 s81, s81, 0x155555")
    e("v_mov_b32 v13, s81")
    e("ds_write_b32 v26, v13")
    e("s_cmp_eq_u32 s81, 0x155555")
    e("s_cbranch_scc1 g2_hd")
    e("s_cmp_lt_u32 s80, 0x40000")
    e("s_cbranch_scc1 g2_hp")
    e("g2_hd:")
    c("row stats of the 64 rows -> LDS")
    e("v_lshlrev_b32 v5, 2, v1")
    e(f"s_lshl_b32 s{sT1}, s{sMT}, 9")
    e(f"s_add_u32 s{sT1}, s{sT1}, {WS_ST}")
    for j in range(2):
        e(f"s_mov_b32 m0, {K2_STATS + 256 * j}")
        e(f"buffer_load_dword v5, {sr(S_WS, 4)}, s{sT1} offen lds")
        e(f"s_add_u32 s{sT1}, s{sT1}, 256")
    c("wait for conv group nt2, stage the four y2T tiles")
    pollmask(79, 0xff << MB_C, S_WS, first=14)
    e("v_lshrrev_b32 v5, 2, v1")
    e("v_lshlrev_b32 v5, 12, v5")
    e("v_and_b32 v6, 3, v1")
    e("v_lshl_add_u32 v5, v6, 4, v5")
    e(f"s_lshl_b32 s{sT1}, s{sNT}, 18")
    e(f"s_lshl_b32 s{sT0}, s{sMT}, 7")
    e(f"s_add_u32 s{sT1}, s{sT1}, s{sT0}")
    e(f"s_add_u32 s{sT1}, s{sT1}, {WS_Y2}")
    for w in range(4):
        mi, ni = w >> 1, w & 1
        for j in range(2):
            e(f"s_mov_b32 m0, {K2_Y2 + w * 2048 + j * 1024}")
            e(f"s_add_u32 s{sT0}, s{sT1}, {(ni * 32 + j * 16) * 4096 + mi * 64}")
            e(f"buffer_load_dwordx4 v5, {sr(S_WS, 4)}, s{sT0} offen lds")
    e("s_waitcnt vmcnt(0) lgkmcnt(0)")
    e("s_barrier")
    e("s_branch g2_exit")


def descriptor(name, nv):
    L.append(".p2align 6")
    L.append(f".amdhsa_kernel {name}")
    L.append(f"  .amdhsa_next_free_vgpr {nv}")
    L.append("  .amdhsa_next_free_sgpr 102")
    L.append(f"  .amdhsa_accum_offset {nv}")
    L.append("  .amdhsa_group_segment_fixed_size 0")
    L.append("  .amdhsa_kernarg_size 104")
    L.append("  .amdhsa_user_sgpr_count 2")
    L.append("  .amdhsa_user_sgpr_kernarg_segment_ptr 1")
    L.append("  .amdhsa_system_sgpr_workgroup_id_x 1")
    L.append(".end_amdhsa_kernel")


def main():
    hdr = open(f"cdna_kernels/{NAME}.s.ref").read().split("\n")
    for line in hdr:
        if line.startswith("; Override") or line.startswith("; grid=") or "@launch" in line:
            continue
        if not line.startswith(";"):
            break
        L.append(line)
    L.append(f"; @launch kernel=k1_kernel grid=(256,1,1) block=(512,1,1) lds=163840")
    L.append('.amdgcn_target "amdgcn-amd-amdhsa--gfx950"')
    L.append(".text")
    kernel1()
    L.append('.section .rodata,"a"')
    descriptor("k1_kernel", 256)
    out = sys.argv[1] if len(sys.argv) > 1 else f"cdna_kernels/{NAME}.s"
    open(out, "w").write("\n".join(L) + "\n")


if __name__ == "__main__":
    main()
```

```python
import sys

NAME = "parallel_sum__ssm_conv_h3__glu_gated_bilinear__prompt"

WS_H = 0
HP = 2816
WS_H_BYTES = 2048 * HP
WS_Y2 = 0x600000
WS_ST = 0x800000
WS_XN = 0xA00000
WS_KV = 0xC00000
WS_MB = 0x900000
ZOFF = 16
ZN = 16

import os
K1MAP = int(os.environ.get('K1MAP', '1'))
WBL2 = int(os.environ.get('WBL2', '0'))
STC = os.environ.get('STC', '' if WBL2 else ' sc1')
PREF = int(os.environ.get('PREF', '1'))
PREF2 = int(os.environ.get('PREF2', '1'))
PREF3 = int(os.environ.get('PREF3', '2'))
PSLEEP = int(os.environ.get('PSLEEP', '1'))
CSLEEP = int(os.environ.get('CSLEEP', '0'))
ISLEEP = int(os.environ.get('ISLEEP', '0'))
KV16 = int(os.environ.get('KV16', '0'))
MIDN = int(os.environ.get('MIDN', '5'))
ASW = int(os.environ.get('ASW', '1'))
NODMA = int(os.environ.get('NODMA', '0'))
K2ROT_A = int(os.environ.get('K2ROT_A', '1'))
K2ROT_B = int(os.environ.get('K2ROT_B', '2'))
PROFB = int(os.environ.get('PROFB', '0'))
EBW = 0
LMAP = int(os.environ.get('LMAP', '0'))
EPB = int(os.environ.get('EPB', '2'))
TCH = int(os.environ.get('TCH', '0'))
CNT = os.environ.get('CNT', '')
SNT = os.environ.get('SNT', '')
GNT = os.environ.get('GNT', '')
LPF = int(os.environ.get('LPF', '0'))
LATE2 = int(os.environ.get('LATE2', '1'))
PSET = int(os.environ.get('PSET', '0'))
KROT = int(os.environ.get('KROT', '0'))
ASLEEP = int(os.environ.get('ASLEEP', '0'))
SKDEF = int(os.environ.get('SKDEF', '1'))
PLH = int(os.environ.get('PLH', '-1'))
PLO = int(os.environ.get('PLO', '-1'))
PLY = int(os.environ.get('PLY', '0'))
PLK = int(os.environ.get('PLK', '0'))
OSC = os.environ.get('OSC', '')
L = []


def e(s=""):
    L.append("    " + s if s and not s.endswith(":") else s)


def c(s):
    L.append("    ; " + s)


PROF = len(sys.argv) > 2 and sys.argv[2] == "prof"
WS_PROF = 0xE00000
_stamp = [0]


SPAIR = [6, 8, 10, 12, 14, 88, 90, 92, 94, 96, 100]


def stamp(k=None):
    if not PROF or k is None or k is True:
        return
    if k == 0:
        e("s_memrealtime s[98:99]")
        e("s_waitcnt lgkmcnt(0)")
        e("v_writelane_b32 v255, s98, 63")
        for p in SPAIR:
            e(f"s_mov_b32 s{p}, 0")
    e(f"s_memtime s[{SPAIR[k]}:{SPAIR[k] + 1}]")


def stamp_flush(srd, base):
    if not PROF:
        return
    stamp(10)
    if os.environ.get('DIAG'):
        a, b, wg, mul = [int(x) for x in os.environ['DIAG'].split(',')]
        e("s_waitcnt lgkmcnt(0)")
        e(f"s_cmp_lg_u32 s2, {wg}")
        e("s_cbranch_scc1 diag_done")
        e("v_readfirstlane_b32 s98, v0")
        e("s_nop 3")
        e("s_cmp_lg_u32 s98, 0")
        e("s_cbranch_scc1 diag_done")
        e(f"s_sub_u32 s98, s{SPAIR[b]}, s{SPAIR[a]}")
        e(f"s_mul_i32 s98, s98, {mul}")
        e("s_min_u32 s98, s98, 400000")
        e("diag_l:")
        e("s_memtime s[6:7]")
        e("s_waitcnt lgkmcnt(0)")
        e(f"s_sub_u32 s6, s6, s{SPAIR[10]}")
        e("s_cmp_lt_u32 s6, s98")
        e("s_cbranch_scc1 diag_l")
        e("diag_done:")
        return
    e("s_memrealtime s[98:99]")
    e("s_waitcnt lgkmcnt(0)")
    e("v_writelane_b32 v255, s98, 62")
    for k, p in enumerate(SPAIR):
        e(f"v_writelane_b32 v255, s{p}, {k}")
    e("v_lshrrev_b32 v253, 6, v0")
    e("v_lshl_add_u32 v253, s2, 3, v253")
    e("v_lshlrev_b32 v253, 8, v253")
    e("v_and_b32 v254, 63, v0")
    e("v_lshl_add_u32 v253, v254, 2, v253")
    e(f"v_add_u32 v253, {base}, v253")
    e(f"buffer_store_dword v255, v253, {sr(srd, 4)}, 0 offen")


OOL = []


class ool:
    def __init__(self, label):
        self.label = label

    def __enter__(self):
        global L
        self.saved = L
        L = []
        L.append(f"{self.label}:")

    def __exit__(self, *a):
        global L
        L.append(f"    s_branch {self.label}_ret")
        OOL.extend(L)
        L = self.saved
        L.append(f"{self.label}_ret:")


def flush_ool():
    L.extend(OOL)
    OOL.clear()


def vr(a, n=1):
    return f"v{a}" if n == 1 else f"v[{a}:{a + n - 1}]"


def sr(a, n=1):
    return f"s{a}" if n == 1 else f"s[{a}:{a + n - 1}]"


def make_srd(d, ptr, nbytes):
    e(f"s_mov_b32 s{d}, s{ptr}")
    e(f"s_and_b32 s{d + 1}, s{ptr + 1}, 0xffff")
    e(f"s_mov_b32 s{d + 2}, {nbytes}")
    e(f"s_mov_b32 s{d + 3}, 0x00020000")


P_Q, P_K, P_V, P_SH, P_SK, P_SD, P_BX, P_WG = 16, 18, 20, 22, 24, 26, 28, 30
P_WU, P_WD, P_OUT, P_DBG, P_WS = 32, 34, 36, 38, 40


def load_ptrs():
    e("s_load_dwordx16 s[16:31], s[0:1], 0")
    e("s_load_dwordx8 s[32:39], s[0:1], 64")
    e("s_load_dwordx2 s[40:41], s[0:1], 96")


S_DB2 = 84
_lbl = [0]


sZ = 82


def zload():
    e(f"s_load_dword s{sZ}, {sr(P_DBG, 2)}, {ZOFF}")


MB_H, MB_C, MB_KV, MB_CS, MB_ST = 0, 22, 56, 32, 48


def zcheck():
    _lbl[0] += 1
    n = _lbl[0]
    e(f"s_cmp_ge_u32 s{sZ}, 1")
    e(f"s_cbranch_scc1 sig_go{n}")
    make_srd(S_DB2, P_DBG, 256)
    e(f"s_mov_b32 s79, {ZOFF}")
    poll(79, 1, slp=8)
    e(f"sig_go{n}:")


def signal(sW, S_WS, mode, sIdx, sWord, wave=0):
    _lbl[0] += 1
    n = _lbl[0]
    if mode == "c":
        e(f"s_cmp_lg_u32 s{sW}, {wave}")
        e(f"s_cbranch_scc1 sig_skip{n}")
    zcheck()
    e("v_and_b32 v14, 63, v0")
    if mode == "h":
        e(f"s_lshl_b32 s79, s{sIdx}, 1")
        e(f"s_bfe_u32 s80, s{sW}, 0x10001")
        e("s_add_u32 s79, s79, s80")
        e("v_mov_b32 v12, s79")
        e("v_mov_b32 v13, v14")
    else:
        e("v_mov_b32 v12, v14")
        e(f"v_mov_b32 v13, s{sIdx}")
    e("v_and_b32 v15, 3, v12")
    e("v_lshl_add_u32 v15, v13, 2, v15")
    e("v_lshrrev_b32 v12, 2, v12")
    e("v_lshl_add_u32 v12, v15, 3, v12")
    e("v_lshlrev_b32 v12, 8, v12")
    if mode == "h":
        e(f"s_lshl_b32 s79, s{sWord}, 1")
        e(f"s_and_b32 s80, s{sW}, 1")
        e("s_add_u32 s79, s79, s80")
        e("s_lshl_b32 s79, s79, 2")
    else:
        e(f"s_lshl_b32 s79, s{sWord}, 2")
    e(f"s_add_u32 s79, s79, {WS_MB + 4 * (MB_H if mode == 'h' else MB_C)}")
    e("v_mov_b32 v13, 1")
    e(f"v_cmp_gt_u32 vcc, {8 if mode == 'h' else 32}, v14")
    if mode == "h":
        e("s_waitcnt vmcnt(0)")
        stamp(5)
    e("s_and_saveexec_b64 s[70:71], vcc")
    e(f"buffer_store_dword v13, v12, {sr(S_WS, 4)}, s79 offen sc1")
    e("s_mov_b64 exec, s[70:71]")
    e(f"sig_skip{n}:")


def pollmask(sOff, mask, srd, first=None):
    _lbl[0] += 1
    n = _lbl[0]
    if first is not None:
        e(f"v_cmp_ne_u32 vcc, 0, v{first}")
        e(f"s_and_b32 s81, vcc_lo, {mask}")
        e(f"s_cmp_eq_u32 s81, {mask}")
        e(f"s_cbranch_scc1 polled{n}")
    e("v_and_b32 v15, 31, v0")
    e("v_lshlrev_b32 v15, 2, v15")
    e("s_mov_b32 s80, 0")
    e(f"poll{n}:")
    e(f"buffer_load_dword v14, v15, {sr(srd, 4)}, s{sOff} offen sc1")
    e("s_waitcnt vmcnt(0)")
    e("v_cmp_ne_u32 vcc, 0, v14")
    e("s_add_u32 s80, s80, 1")
    e(f"s_and_b32 s81, vcc_lo, {mask}")
    e(f"s_cmp_eq_u32 s81, {mask}")
    e(f"s_cbranch_scc1 polled{n}")
    if PSLEEP:
        e(f"s_sleep {PSLEEP}")
    e("s_cmp_lt_u32 s80, 0x40000")
    e(f"s_cbranch_scc1 poll{n}")
    e(f"polled{n}:")


def poll(sOff, target, srd=None, slp=None):
    srd = S_DB2 if srd is None else srd
    _lbl[0] += 1
    n = _lbl[0]
    e(f"v_mov_b32 v15, s{sOff}")
    e("s_mov_b32 s80, 0")
    e(f"poll{n}:")
    e(f"buffer_load_dword v14, v15, {sr(srd, 4)}, 0 offen sc1")
    e("s_waitcnt vmcnt(0)")
    e("v_readfirstlane_b32 s81, v14")
    e("s_nop 3")
    e("s_add_u32 s80, s80, 1")
    e(f"s_cmp_ge_u32 s81, {target}")
    e(f"s_cbranch_scc1 polled{n}")
    if slp or PSLEEP:
        e(f"s_sleep {slp or PSLEEP}")
    e("s_cmp_lt_u32 s80, 0x40000")
    e(f"s_cbranch_scc1 poll{n}")
    e(f"polled{n}:")


K1_NCONV = 64
K1_NGEMM = 176
K1_BUF = [131072, 0, 32768, 65536, 98304]


K1_STG = 49152
K1_EX = 147456
K2_MASK = 160064


def mask_init():
    e(f"v_mov_b32 v14, {K2_MASK}")
    e("v_mov_b32 v12, 0")
    e("v_mov_b32 v13, 0")
    e("ds_write_b64 v14, v[12:13]")


AUXOFF = 132
WS_CS = 0x880000
WS_SP = 0x8C0000


def zadd(sW, wait=None):
    _lbl[0] += 1
    n = _lbl[0]
    e(f"s_cmp_lg_u32 s{sW}, 4")
    e(f"s_cbranch_scc1 zadd{n}")
    if wait is not None:
        e(f"s_waitcnt vmcnt({wait})")
        stamp(1)
    make_srd(S_DB2, P_DBG, 256)
    e("v_mov_b32 v14, 1")
    e(f"v_mov_b32 v15, {ZOFF}")
    e("v_cmp_eq_u32 vcc, 0, v1")
    e("s_and_saveexec_b64 s[70:71], vcc")
    e(f"buffer_atomic_add v14, v15, {sr(S_DB2, 4)}, 0 offen sc1")
    e("s_mov_b64 exec, s[70:71]")
    e(f"zadd{n}:")


S_WD2, sKB2, sBI, sROT, sLB2, sNPRE, sND, sL0 = 20, 24, 25, 26, 27, 28, 30, 31
vDB2 = 252
R4 = int(os.environ.get('R4', '0'))
K2_SB = [6, 7, 8, 0, 1, 2, 5, 3, 5, 5, 5, 5] if R4 else [6, 7, 8, 0, 1, 2, 5, 3, 4, 5, 3, 4]


def g2_setup(sW, npre):
    c("GEMM2 B state: x = id%8, j = id/8 : mt2 = 4x + (j&3), nt2 = j>>2")
    make_srd(S_WD2, P_WD, 1376 * 1024)
    e("s_lshr_b32 s3, s2, 3")
    e("s_lshr_b32 s4, s3, 2")
    e("s_and_b32 s3, s3, 3")
    e(f"s_mul_i32 s{sROT}, s4, {K2ROT_A}")
    e(f"s_mul_i32 s3, s3, {K2ROT_B}")
    e(f"s_add_u32 s{sROT}, s{sROT}, s3")
    e(f"s_and_b32 s3, s{sW}, 1")
    e(f"s_sub_u32 s{sND}, 6, s3")
    for _ in range((7 * K2ROT_A + 3 * K2ROT_B) // 5):
        e(f"s_cmp_ge_u32 s{sROT}, s{sND}")
        e(f"s_cselect_b32 s3, s{sND}, 0")
        e(f"s_sub_u32 s{sROT}, s{sROT}, s3")
    e(f"s_mov_b32 s{sBI}, s{sROT}")
    e(f"s_and_b32 s3, s{sW}, 3")
    e(f"s_lshl_b32 s{sLB2}, s3, 12")
    e("s_mul_i32 s3, s3, 11")
    e("s_add_u32 s3, s3, 1")
    e(f"s_lshr_b32 s{sL0}, s3, 1")
    e(f"s_lshl_b32 s{sKB2}, s{sL0}, 16")
    e("s_lshl_b32 s4, s4, 7")
    e(f"s_add_u32 s{sKB2}, s{sKB2}, s4")
    e(f"s_mov_b32 s{sNPRE}, {npre}")
    c("B DMA lane offsets: row = l/8, chunk' = l%8; global chunk = chunk' ^ (((row>>1)&1)<<2)")
    e("v_lshrrev_b32 v4, 3, v1")
    e("v_and_b32 v5, 7, v1")
    e("v_lshrrev_b32 v6, 1, v4")
    e("v_and_b32 v6, 1, v6")
    e("v_lshlrev_b32 v6, 2, v6")
    e("v_xor_b32 v5, v5, v6")
    e("v_lshlrev_b32 v5, 4, v5")
    e(f"v_lshl_add_u32 v{vDB2}, v4, 10, v5")
    e(f"s_lshr_b32 s3, s{sW}, 2")
    e(f"s_lshl_b32 s29, s3, 11")
    e(f"s_add_u32 s29, s29, s{sLB2}")
    e(f"s_lshl_b32 s5, s3, 14")
    e(f"s_add_u32 s5, s5, s{sKB2}")


def out_pre_addr(sW, vd, srd):
    e("s_and_b32 s3, s2, 7")
    e("s_lshl_b32 s3, s3, 2")
    e("s_lshr_b32 s4, s2, 3")
    e("s_and_b32 s4, s4, 3")
    e("s_add_u32 s3, s3, s4")
    e("s_lshl_b32 s3, s3, 3")
    e(f"s_add_u32 s3, s3, s{sW}")
    e("s_lshl_b32 s3, s3, 13")
    e("s_lshr_b32 s4, s2, 5")
    e("s_lshl_b32 s4, s4, 7")
    e("s_add_u32 s3, s3, s4")
    e(f"v_lshrrev_b32 v{vd}, 3, v1")
    e(f"v_lshlrev_b32 v{vd}, 10, v{vd}")
    e("v_and_b32 v4, 7, v1")
    e(f"v_lshl_add_u32 v{vd}, v4, 4, v{vd}")
    e(f"v_add_u32 v{vd}, s3, v{vd}")


def g2_adv(sidx):
    return [f"s_add_u32 s{sidx}, s{sidx}, 1", f"s_cmp_ge_u32 s{sidx}, s{sND}", f"s_cselect_b32 s{sidx}, 0, s{sidx}"]


def g2_early(i):
    g = []
    for j in range(2):
        x = []
        if j == 0:
            x += [f"s_lshl_b32 s3, s{sBI}, 16", "s_add_u32 s3, s3, s5"]
        x += [f"s_add_u32 m0, s29, {K2_SB[i] * 16384 + j * 1024}",
              f"s_add_u32 s4, s3, {8 * j * 1024 + (i & 1) * 32768}",
              f"buffer_load_dwordx4 v{vDB2}, {sr(S_WD2, 4)}, s4 offen lds"]
        if j == 1 and i & 1:
            x += g2_adv(sBI)
        g.append(x)
    return g


def k1_gemm():
    S_X, S_WG, S_WU, S_WS = 44, 48, 52, 56
    sMT, sNT, sW, sT0, sT1, sW0, sMW, sROW = 60, 61, 62, 63, 64, 65, 66, 67
    sSB, sDS, sIT, sDB, sAUX = 68, 69, 72, 73, 83
    AF = 16
    ACC = 144
    BF = 208
    vDMA, vB0, vB1, vBc0, vBc1, vHoff = 240, 241, 242, 243, 244, 245
    vXD, vA0, vCS, vST, vXD1 = 40, 41, 42, 43, 39
    vAk = 44
    CSR = 80
    e("k1_gemm:")
    e("s_sub_u32 s3, s2, %d" % K1_NCONV)
    c("k = 22*(t%8) + t/8 ; mh = k/88 ; rem = k%88 ; nt = rem/8 ; mt = mh*8 + rem%8")
    if LMAP:
        e("s_and_b32 s4, s3, 7")
        e("s_lshr_b32 s5, s3, 3")
        e("s_cmp_ge_u32 s5, 11")
        e(f"s_cselect_b32 s{sNT}, 11, 0")
        e(f"s_cselect_b32 s{sMT}, 1, 0")
        e(f"s_sub_u32 s{sNT}, s5, s{sNT}")
        e("s_lshl_b32 s4, s4, 1")
        e(f"s_add_u32 s{sMT}, s{sMT}, s4")
    else:
        e("s_and_b32 s4, s3, 7")
        e("s_mul_i32 s4, s4, 22")
        e("s_lshr_b32 s5, s3, 3")
        e("s_add_u32 s4, s4, s5")
        e("s_cmp_ge_u32 s4, 88")
        e("s_cselect_b32 s5, 88, 0")
        e(f"s_cselect_b32 s{sMT}, 8, 0")
        e("s_sub_u32 s4, s4, s5")
        e(f"s_lshr_b32 s{sNT}, s4, 3")
        e("s_and_b32 s4, s4, 7")
        e(f"s_add_u32 s{sMT}, s{sMT}, s4")
    e("v_lshrrev_b32 v2, 6, v0")
    e("v_and_b32 v1, 63, v0")
    e(f"v_readfirstlane_b32 s{sW}, v2")
    c("x DMA lane offset: row = l>>3, src chunk = (l&7) ^ (row&7)")
    e("v_lshrrev_b32 v2, 3, v1")
    e("v_and_b32 v3, 7, v1")
    if ASW:
        e("v_lshrrev_b32 v4, 4, v1")
        e("v_xor_b32 v3, v3, v4")
    else:
        e("v_xor_b32 v3, v3, v2")
    e("v_lshlrev_b32 v3, 4, v3")
    e(f"v_lshl_add_u32 v{vXD}, v2, 10, v3")
    e(f"v_xor_b32 v{vXD1}, {64 if ASW else 0}, v{vXD}")
    c("W DMA lane offsets")
    e("v_lshrrev_b32 v12, 4, v1")
    e("v_and_b32 v13, 15, v1")
    e("v_lshlrev_b32 v14, 2, v12")
    e("v_xor_b32 v13, v13, v14")
    e("v_lshlrev_b32 v13, 4, v13")
    e("v_mul_u32_u24 v14, 2752, v12")
    e(f"v_add_u32 v{vDMA}, v13, v14")
    e(f"s_mul_i32 s{sW0}, s{sW}, {8 * 2752}")
    e(f"s_lshl_b32 s{sT0}, s{sNT}, 8")
    e(f"s_add_u32 s{sW0}, s{sW0}, s{sT0}")
    e(f"s_lshl_b32 s{sMW}, s{sW}, 11")
    e(f"s_lshl_b32 s{sROW}, s{sMT}, 17")
    e(f"s_lshl_b32 s{sT0}, s{sW}, 14")
    e(f"s_add_u32 s{sROW}, s{sROW}, s{sT0}")
    e(f"s_mov_b32 s{sDS}, 0")
    e(f"s_mov_b32 s{sDB}, s{sMW}")
    e(f"s_mov_b32 s{sSB}, s{sROW}")
    if KROT:
        c("K order rotated per XCD (spreads the cold fetches over the memory channels)")
        if KROT == 1:
            e(f"s_and_b32 s{sIT}, s2, 7")
        elif KROT == 2:
            e(f"s_and_b32 s{sIT}, s2, 3")
            e(f"s_lshl_b32 s{sIT}, s{sIT}, 1")
        elif KROT == 3:
            e(f"s_and_b32 s{sIT}, s{sMT}, 7")
        elif KROT == 4:
            e(f"s_and_b32 s{sIT}, s{sNT}, 7")
        e(f"s_lshl_b32 s{sT0}, s{sIT}, 7")
        e(f"s_add_u32 s{sROW}, s{sROW}, s{sT0}")
        e(f"s_mul_i32 s{sT0}, s{sIT}, {64 * 2752}")
        e(f"s_add_u32 s{sW0}, s{sW0}, s{sT0}")
    e("s_waitcnt lgkmcnt(0)")
    stamp(0)
    make_srd(S_X, P_Q, 2048 * 1024)
    make_srd(S_WG, P_WG, 512 * 2752)
    make_srd(S_WU, P_WU, 512 * 2752)
    make_srd(S_WS, P_WS, 0x1000000)

    def dma_groups():
        g = []
        for j in range(2):
            g.append([f"s_add_u32 m0, s{sDB}, {32768 + j * 1024}",
                      f"s_add_u32 s{sT0}, s{sROW}, {j * 8192}",
                      f"buffer_load_dwordx4 v{vXD1 if j else vXD}, {sr(S_X, 4)}, s{sT0} offen{GNT} lds"])
        for part in range(2):
            for j in range(2):
                g.append([f"s_add_u32 m0, s{sDB}, {part * 16384 + j * 1024}",
                          f"s_add_u32 s{sT0}, s{sW0}, {4 * j * 2752}",
                          f"buffer_load_dwordx4 v{vDMA}, {sr(S_WU if part else S_WG, 4)}, s{sT0} offen{GNT} lds"])
        g[-1] += [f"s_add_u32 s{sROW}, s{sROW}, 128",
                  f"s_add_u32 s{sW0}, s{sW0}, {64 * 2752}"]
        if KROT:
            g[-1] += [f"s_add_u32 s{sIT}, s{sIT}, 1",
                      f"s_cmp_eq_u32 s{sIT}, 8",
                      f"s_cselect_b32 s{sT0}, 1024, 0",
                      f"s_cselect_b32 s{sT1}, {512 * 2752}, 0",
                      f"s_sub_u32 s{sROW}, s{sROW}, s{sT0}",
                      f"s_sub_u32 s{sW0}, s{sW0}, s{sT1}"]
        g[-1] += [
                  f"s_add_u32 s{sDS}, s{sDS}, {K1_STG}",
                  f"s_cmp_ge_u32 s{sDS}, {3 * K1_STG}",
                  f"s_cselect_b32 s{sDS}, 0, s{sDS}",
                  f"s_add_u32 s{sDB}, s{sDS}, s{sMW}"]
        return g

    def dma_slab():
        for g in dma_groups():
            for x in g:
                e(x)

    STG = int(os.environ.get('STG', '0'))

    def linpf():
        c("linear prefetch of a slice of Wg, Wu, x (DRAM friendly)")
        e("s_sub_u32 s3, s2, %d" % K1_NCONV)
        e("s_lshl_b32 s3, s3, 3")
        e(f"s_add_u32 s3, s3, s{sW}")
        e("s_lshl_b32 s3, s3, 10")
        e("v_lshlrev_b32 v4, 4, v1")
        e(f"buffer_load_dwordx4 v[80:83], v4, {sr(S_WG, 4)}, s3 offen")
        e(f"buffer_load_dwordx4 v[80:83], v4, {sr(S_WU, 4)}, s3 offen")
        e(f"buffer_load_dwordx4 v[80:83], v4, {sr(S_X, 4)}, s3 offen")
        e(f"s_add_u32 s3, s3, {1408 * 1024}")
        e(f"buffer_load_dwordx4 v[80:83], v4, {sr(S_X, 4)}, s3 offen")
    if LPF == 1:
        linpf()
    dma_slab()
    if LPF == 2:
        linpf()
    if STG & 1:
        e("s_barrier")
    if STG & 4:
        e("s_sleep 8")
    dma_slab()
    if STG & 2:
        e("s_barrier")
    if STG & 8:
        e("s_sleep 8")
    if not LATE2:
        dma_slab()
    if LPF == 3:
        linpf()

    def touch(first):
        c("touch the lines of slabs first .. first+3 (L2 prefetch): wave w -> slab first + w/2, half w%2")
        e(f"s_lshr_b32 s3, s{sW}, 1")
        e(f"s_add_u32 s3, s3, {first}")
        e(f"s_and_b32 s4, s{sW}, 1")
        e(f"s_lshl_b32 s5, s{sMT}, 1")
        e("s_add_u32 s5, s5, s4")
        e("s_lshl_b32 s5, s5, 16")
        e("s_lshl_b32 s6, s3, 7") if not PROF else e("s_lshl_b32 s79, s3, 7")
        e(f"s_add_u32 s5, s5, {'s6' if not PROF else 's79'}")
        e("v_lshlrev_b32 v4, 10, v1")
        e(f"buffer_load_dword v79, v4, {sr(S_X, 4)}, s5 offen")
        e("s_lshl_b32 s3, s3, 1")
        e("s_add_u32 s3, s3, s4")
        e(f"s_mul_i32 s3, s3, {32 * 2752}")
        e(f"s_lshl_b32 s4, s{sNT}, 8")
        e("s_add_u32 s3, s3, s4")
        e("v_lshrrev_b32 v4, 1, v1")
        e("v_mul_u32_u24 v4, 2752, v4")
        e("v_and_b32 v5, 1, v1")
        e("v_lshl_add_u32 v4, v5, 7, v4")
        e(f"buffer_load_dword v79, v4, {sr(S_WG, 4)}, s3 offen")
        e(f"buffer_load_dword v79, v4, {sr(S_WU, 4)}, s3 offen")
    if TCH:
        touch(TCH)
    if PSET:
        stamp(8)
    S_OWN, S_OTH = 20, 24
    c("partial sums source + L2 prefetch: W rows (mt%8)*64.. ; own part = mt/8 (summed), other part prefetch only")
    e(f"s_cmp_ge_u32 s{sMT}, 8")
    for i in range(4):
        e(f"s_cselect_b32 s{S_OWN + i}, s{S_WU + i}, s{S_WG + i}")
        e(f"s_cselect_b32 s{S_OTH + i}, s{S_WG + i}, s{S_WU + i}")
    e(f"s_and_b32 s{sT0}, s{sMT}, 7")
    e(f"s_mul_i32 s{sT0}, s{sT0}, {64 * 2752}")
    e(f"s_lshl_b32 s{sT1}, s{sNT}, 8")
    e(f"s_add_u32 s{sT0}, s{sT0}, s{sT1}")
    e(f"s_lshl_b32 s{sT1}, s{sW}, 5")
    e(f"s_add_u32 s18, s{sT1}, s{sT0}")
    e(f"s_add_u32 s19, s18, {32 * 2752}")
    e("v_lshrrev_b32 v12, 1, v1")
    e("v_mul_u32_u24 v12, 2752, v12")
    e("v_and_b32 v13, 1, v1")
    e("v_lshl_add_u32 v76, v13, 4, v12")
    e(f"s_mul_i32 s{sT1}, s{sW}, {8 * 2752}")
    e(f"s_add_u32 s28, s{sT1}, s{sT0}")
    e("v_lshrrev_b32 v12, 4, v1")
    e(f"v_mul_u32_u24 v12, {2 * 2752}, v12")
    e("v_and_b32 v13, 15, v1")
    e("v_lshl_add_u32 v77, v13, 4, v12")
    c("x rows 16w + l/4, bytes (nt&7)*128 + (l%4)*32 + {0,16}")
    e(f"s_and_b32 s{sT1}, s{sNT}, 7")
    e(f"s_lshl_b32 s{sT1}, s{sT1}, 7")
    e(f"s_add_u32 s29, s{sT1}, s{sSB}")
    e("v_lshrrev_b32 v12, 2, v1")
    e("v_and_b32 v13, 3, v1")
    e("v_lshlrev_b32 v13, 5, v13")
    e("v_lshl_add_u32 v78, v12, 10, v13")
    PFL = [f"buffer_load_dwordx4 v[48:51], v76, {sr(S_OWN, 4)}, s18 offen",
           f"buffer_load_dwordx4 v[52:55], v76, {sr(S_OWN, 4)}, s19 offen",
           f"buffer_load_dwordx4 v[64:67], v78, {sr(S_X, 4)}, s29 offen",
           f"buffer_load_dwordx4 v[68:71], v78, {sr(S_X, 4)}, s29 offen offset:16",
           f"buffer_load_dwordx4 v[56:59], v77, {sr(S_OTH, 4)}, s28 offen",
           f"buffer_load_dwordx4 v[60:63], v77, {sr(S_OTH, 4)}, s28 offen offset:2752"]
    c("partial store addresses")
    vPC, vPS = 72, 73
    e(f"s_lshl_b32 s{sT0}, s{sNT}, 1")
    e(f"s_lshr_b32 s{sT1}, s{sMT}, 3")
    e(f"s_add_u32 s{sT0}, s{sT0}, s{sT1}")
    e(f"s_lshl_b32 s{sT0}, s{sT0}, 3")
    e(f"s_and_b32 s{sT1}, s{sMT}, 7")
    e(f"s_add_u32 s{sT0}, s{sT0}, s{sT1}")
    e(f"s_lshl_b32 s{sT0}, s{sT0}, 10")
    e(f"s_lshl_b32 s{sT1}, s{sW}, 7")
    e(f"s_add_u32 s{sT0}, s{sT0}, s{sT1}")
    e(f"s_add_u32 s{sT0}, s{sT0}, {WS_CS}")
    e("v_and_b32 v12, 1, v1")
    e(f"v_lshl_add_u32 v{vPC}, v12, 5, s{sT0}")
    e("v_lshrrev_b32 v12, 1, v1")
    e("v_and_b32 v13, 1, v12")
    e(f"v_lshl_add_u32 v{vPC}, v13, 4, v{vPC}")
    e("v_lshrrev_b32 v12, 1, v12")
    e(f"v_lshl_add_u32 v{vPC}, v12, 6, v{vPC}")
    e(f"s_lshl_b32 s{sT0}, s{sMT}, 4")
    e(f"s_add_u32 s{sT0}, s{sT0}, s{sNT}")
    e(f"s_lshl_b32 s{sT0}, s{sT0}, 10")
    e(f"s_lshl_b32 s{sT1}, s{sW}, 7")
    e(f"s_add_u32 s{sT0}, s{sT0}, s{sT1}")
    e(f"s_add_u32 s{sT0}, s{sT0}, {WS_SP}")
    e("v_lshrrev_b32 v12, 2, v1")
    e(f"v_lshl_add_u32 v{vPS}, v12, 3, s{sT0}")
    e("s_mov_b32 s74, 0x3f80")
    e("s_mov_b32 s75, 0x3f800000")
    e("s_mov_b32 s76, 0x3f803f80")
    e(f"s_cmp_eq_u32 s{sW}, 4")
    e("s_cselect_b32 s77, 1, 0")
    e(f"s_cmp_eq_u32 s{sW}, 0")
    e("s_cselect_b32 s78, 3, 99")
    e("s_cselect_b32 s5, 4, 99")
    e("s_lshl_b32 s83, s2, 8")
    e(f"s_add_u32 s83, s83, {WS_MB + 128}")
    for r in range(12):
        e(f"v_mov_b32 v{24 + r}, 0")
    c("A frag read address: 32768 + r*128 + ((2kk+g) ^ (r&7))*16 ; r = (w%4)*32 + l%32 ; kk via xor kk<<5")
    e(f"s_and_b32 s{sT0}, s{sW}, 3")
    e(f"s_lshl_b32 s{sT0}, s{sT0}, 5")
    e("v_and_b32 v2, 31, v1")
    e(f"v_add_u32 v6, s{sT0}, v2")
    if ASW:
        e("v_lshrrev_b32 v7, 1, v2")
        e("v_and_b32 v7, 7, v7")
    else:
        e("v_and_b32 v7, 7, v2")
    e("v_lshrrev_b32 v8, 5, v1")
    e("v_xor_b32 v7, v7, v8")
    e("v_lshlrev_b32 v7, 4, v7")
    e("v_lshl_add_u32 v7, v6, 7, v7")
    e(f"v_add_u32 v{vA0}, 32768, v7")
    c("partial row stats address: WS_SP + mt*16384 + r*8 (+ slot*1024)")
    e(f"s_lshl_b32 s{sT1}, s{sMT}, 14")
    e(f"s_add_u32 s{sT1}, s{sT1}, {WS_SP}")
    e(f"v_lshl_add_u32 v{vST}, v6, 3, s{sT1}")
    c("h store offset: (mt*128 + (w%4)*32 + l/8)*HP + nt*256 + nh*128 + (l%8)*16")
    e(f"s_lshl_b32 s{sT1}, s{sMT}, 7")
    e(f"s_add_u32 s{sT1}, s{sT1}, s{sT0}")
    e("v_lshrrev_b32 v6, 3, v1")
    e(f"v_add_u32 v6, s{sT1}, v6")
    e(f"v_mov_b32 v7, {HP}")
    e("v_mul_lo_u32 v6, v6, v7")
    e(f"s_lshr_b32 s{sT0}, s{sW}, 2")
    e(f"s_lshl_b32 s{sT0}, s{sT0}, 7")
    e(f"s_lshl_b32 s{sT1}, s{sNT}, 8")
    e(f"s_add_u32 s{sT0}, s{sT0}, s{sT1}")
    e(f"v_add_u32 v6, s{sT0}, v6")
    e("v_and_b32 v9, 7, v1")
    e(f"v_lshl_add_u32 v{vHoff}, v9, 4, v6")
    if PLH >= 0:
        c("pre-touch address of the own h tile: row l/2, 64 B half l%2")
        e(f"v_readfirstlane_b32 s{sT1}, v{vHoff}")
        e("v_lshrrev_b32 v36, 1, v1")
        e(f"v_mul_u32_u24 v36, {HP}, v36")
        e("v_and_b32 v37, 1, v1")
        e("v_lshl_add_u32 v36, v37, 6, v36")
        e(f"v_add_u32 v36, s{sT1}, v36")
    if PLO >= 0:
        out_pre_addr(sW, 37, 84)
    c("partial cs address: WS_CS + (nt*2 + g)*8192 + nh*512 + ((l%32)/8)*128 + (l%8)*8 (+ j*1024)")
    e(f"s_lshr_b32 s{sT0}, s{sW}, 2")
    e(f"s_lshl_b32 s{sT0}, s{sT0}, 9")
    e(f"s_lshl_b32 s{sT1}, s{sNT}, 14")
    e(f"s_add_u32 s{sT0}, s{sT0}, s{sT1}")
    e(f"s_add_u32 s{sT0}, s{sT0}, {WS_CS}")
    e(f"v_lshl_add_u32 v{vCS}, v8, 13, s{sT0}")
    e(f"v_lshl_add_u32 v{vCS}, v9, 3, v{vCS}")
    e("v_lshrrev_b32 v7, 3, v2")
    e(f"v_lshl_add_u32 v{vCS}, v7, 7, v{vCS}")
    c("B tr-read lane addresses for tiles T0=2nh, T1=2nh+1")
    e("v_and_b32 v2, 15, v1")
    e("v_lshrrev_b32 v6, 2, v2")
    e("v_lshrrev_b32 v7, 5, v1")
    e("v_lshl_add_u32 v7, v7, 3, v6")
    e("v_lshlrev_b32 v7, 8, v7")
    e("v_lshrrev_b32 v8, 4, v1")
    e("v_and_b32 v8, 1, v8")
    e("v_lshlrev_b32 v8, 5, v8")
    e("v_add_u32 v7, v7, v8")
    e("v_and_b32 v8, 3, v2")
    e("v_lshlrev_b32 v8, 3, v8")
    e("v_add_u32 v7, v7, v8")
    e(f"s_lshr_b32 s{sT0}, s{sW}, 2")
    e(f"s_lshl_b32 s{sT0}, s{sT0}, 1")
    e(f"v_xor_b32 v8, s{sT0}, v6")
    e(f"v_lshl_add_u32 v{vB0}, v8, 6, v7")
    e("v_xor_b32 v8, 1, v8")
    e(f"v_lshl_add_u32 v{vB1}, v8, 6, v7")
    if os.environ.get('BLIN'):
        e(f"v_lshlrev_b32 v{vB0}, 3, v1")
        e(f"v_add_u32 v{vB1}, 512, v{vB0}")
    if os.environ.get('ALIN'):
        e(f"v_lshlrev_b32 v{vA0}, 4, v1")
        e(f"v_add_u32 v{vA0}, 32768, v{vA0}")

    vAD = 112
    for t in range(3):
        e(f"v_add_u32 v{vAD + 6 * t}, {K1_STG * t}, v{vB0}")
        e(f"v_add_u32 v{vAD + 6 * t + 1}, {K1_STG * t}, v{vB1}")
        e(f"v_add_u32 v{vAD + 6 * t + 2}, {K1_STG * t}, v{vA0}")
        for kk in range(1, 4):
            e(f"v_xor_b32 v{vAD + 6 * t + 2 + kk}, {32 * kk}, v{vAD + 6 * t + 2}")

    def rlist(s, kk):
        st = kk & 1
        ad = vAD + 6 * (s % 3)
        r = [f"ds_read_b128 {vr(AF + 4 * st, 4)}, v{ad + 2 + kk}"]
        for ti in range(4):
            part, T = ti >> 1, ti & 1
            for u in range(2):
                off = part * 16384 + (16 * kk + 4 * u) * 256
                r.append(f"ds_read_b64_tr_b16 {vr(BF + 16 * st + 4 * ti + 2 * u, 2)}, v{ad + T} offset:{off}")
        return r

    def side_first():
        s = []
        PA, PT = 24, 32
        for row in range(2):
            for d in range(4):
                x = 48 + 4 * row + d
                s += [f"v_dot2c_f32_bf16 v{PA + 2 * d}, s74, v{x}", f"v_dot2c_f32_bf16 v{PA + 2 * d + 1}, s75, v{x}"]
        for i in range(8):
            s += [f"v_dot2c_f32_bf16 v{PT + (i & 1)}, s76, v{64 + i}",
                  f"v_dot2c_f32_bf16 v{PT + 2 + (i & 1)}, v{64 + i}, v{64 + i}"]
        s += ["s_nop 3"]
        for sh in (2, 4, 8):
            for r in range(8):
                s.append(f"v_add_f32_dpp v{PA + r}, v{PA + r}, v{PA + r} row_ror:{sh} row_mask:0xf bank_mask:0xf")
        s += [f"v_add_f32 v{PT}, v{PT}, v{PT + 1}", f"v_add_f32 v{PT + 1}, v{PT + 2}, v{PT + 3}"]
        for sw in ("v_permlane16_swap_b32", "v_permlane32_swap_b32"):
            for r in range(8):
                s.append(f"v_mov_b32 v{4 + r}, v{PA + r}")
            for r in range(8):
                s.append(f"{sw} v{4 + r}, v{PA + r}")
            qp = "[1,0,3,2]" if "16" in sw else "[2,3,0,1]"
            s += [f"v_add_f32_dpp v{PT}, v{PT}, v{PT} quad_perm:{qp} row_mask:0xf bank_mask:0xf",
                  f"v_add_f32_dpp v{PT + 1}, v{PT + 1}, v{PT + 1} quad_perm:{qp} row_mask:0xf bank_mask:0xf"]
            for r in range(8):
                s.append(f"v_add_f32 v{PA + r}, v{4 + r}, v{PA + r}")
        s += [("v_and_b32 v4, 3, v1", "v_cmp_eq_u32 vcc, 0, v4", "s_and_saveexec_b64 s[70:71], vcc",
               f"buffer_store_dwordx2 {vr(PT, 2)}, v{vPS}, {sr(S_WS, 4)}, 0 offen sc1",
               "s_mov_b64 exec, s[70:71]", "v_and_b32 v4, 2, v1", "v_cmp_ne_u32 vcc, 0, v4",
               f"v_cndmask_b32 v{PA}, v{PA}, v{PA + 4}, vcc", f"v_cndmask_b32 v{PA + 1}, v{PA + 1}, v{PA + 5}, vcc",
               f"v_cndmask_b32 v{PA + 2}, v{PA + 2}, v{PA + 6}, vcc", f"v_cndmask_b32 v{PA + 3}, v{PA + 3}, v{PA + 7}, vcc",
               "v_cmp_gt_u32 vcc, 8, v1", "s_and_b64 exec, s[70:71], vcc",
               f"buffer_store_dwordx4 {vr(PA, 4)}, v{vPC}, {sr(S_WS, 4)}, 0 offen sc1",
               "s_mov_b64 exec, s[70:71]",
               "s_cmp_eq_u32 s77, 0", "s_cbranch_scc1 k1_nozl",
               f"s_mov_b32 s{S_DB2}, s{P_DBG}", f"s_and_b32 s{S_DB2 + 1}, s{P_DBG + 1}, 0xffff",
               f"s_mov_b32 s{S_DB2 + 2}, 256", f"s_mov_b32 s{S_DB2 + 3}, 0x00020000",
               f"v_mov_b32 v15, {ZOFF}",
               f"buffer_load_dword v74, v15, {sr(S_DB2, 4)}, 0 offen sc1",
               "k1_nozl:")]
        return s

    def stats_math(SX, SQ, T):
        return [f"v_mul_f32 v{T}, 0x3b000000, v{SX}",
                f"v_mul_f32 v{T + 2}, 0x3b000000, v{SQ}",
                f"v_fma_f32 v{T + 2}, -v{T}, v{T}, v{T + 2}",
                f"v_max_f32 v{T + 2}, 0, v{T + 2}",
                f"v_cvt_pk_bf16_f32 v{T + 1}, v{T}, v{T + 2}",
                f"v_lshlrev_b32 v{T + 4}, 16, v{T + 1}",
                f"v_and_b32 v{T + 2}, 0xffff0000, v{T + 1}",
                f"v_add_f32 v{T + 2}, 0x3727c5ac, v{T + 2}",
                f"v_cvt_pk_bf16_f32 v{T + 2}, v{T + 2}, v{T + 2}",
                f"v_and_b32 v{T + 2}, 0xffff0000, v{T + 2}",
                f"v_sqrt_f32 v{T + 2}, v{T + 2}",
                "s_nop 0",
                f"v_cvt_pk_bf16_f32 v{T + 2}, v{T + 2}, v{T + 2}",
                f"v_and_b32 v{T + 2}, 0xffff0000, v{T + 2}",
                f"v_rcp_f32 v250, v{T + 2}",
                "s_nop 0",
                f"v_mul_f32 v251, v{T + 4}, v250",
                "v_sub_f32 v251, 0, v251"]

    VM = ["s0"] * 6 + (["lp"] * 4 if LPF == 2 else []) + ["s1"] * 6 + ([] if LATE2 else ["s2"] * 6) + (["lp"] * 4 if LPF == 3 else []) + (["tp"] * 3 if TCH else [])

    def emit(x, tag=None):
        e(x)
        if x.startswith("buffer_") and tag:
            VM.append(tag)

    def nwait(*tags):
        last = max(i for i, t in enumerate(VM) if t in tags)
        return len(VM) - 1 - last

    S_SIDE, S_SIG, S_MBR, S_CHK, S_PL = 1, 2, 5, 5, 6

    def body(s):
        last = s == 7
        dg = dma_groups() if (0 if LATE2 else 1) <= s <= 5 else []
        dtag = f"s{s + 2}"
        side = side_first() if s == S_SIDE else []
        nside = (len(side) + 7) // 8
        ex = []
        if s == 0:
            ex = [[x] for x in PFL]
        if s == S_PL:
            for j in range(8):
                ex.append([f"s_mov_b32 s{sT0}, {1024 * j}",
                           f"buffer_load_dwordx2 {vr(48 + 2 * j, 2)}, v{vCS}, {sr(S_WS, 4)}, s{sT0} offen"])
                ex.append([f"buffer_load_dwordx2 {vr(64 + 2 * j, 2)}, v{vST}, {sr(S_WS, 4)}, s{sT0} offen"])
        eb = []
        if s >= 6:
            for i in range(3 * (s - 6), 3 * (s - 6) + 3):
                eb += g2_early(i)
        for kk in range(4):
            st = kk & 1
            rl = rlist(s, kk + 1) if kk < 3 else (rlist(s + 1, 0) if not last else [])
            issued = 0
            for m in range(4):
                if not (kk == 3 and m > 0):
                    e(f"s_waitcnt lgkmcnt({9 - (3 + 2 * m) + issued})")
                cc = "0" if (s == 0 and kk == 0) else vr(ACC + 16 * m, 16)
                e(f"v_mfma_f32_32x32x16_bf16 {vr(ACC + 16 * m, 16)}, {vr(BF + 16 * st + 4 * m, 4)}, "
                  f"{vr(AF + 4 * st, 4)}, {cc}")
                if kk == 3 and m == 0 and not last:
                    tags = [f"s{s + 1}"] + (["pst"] if s == S_SIG else []) + (["mbr"] if s == S_CHK else [])
                    e(f"s_waitcnt vmcnt({nwait(*tags)}) lgkmcnt(0)")
                    if s == S_CHK:
                        c("wave 0: all 24 partial producers have signalled? (else poll)")
                        e(f"s_cmp_eq_u32 s{sW}, 0")
                        e("s_cbranch_scc1 k1_chk")
                        with ool("k1_chk"):
                            pollmask(83, 0xffffff, S_WS, first=75)
                    e("s_barrier")
                    if s == 4:
                        stamp(2)
                    if s == S_SIG:
                        c("wave 4: everybody's partial stores are complete -> signal the consumers")
                        e(f"s_cmp_eq_u32 s{sW}, 4")
                        e("s_cbranch_scc1 k1_psig")
                        with ool("k1_psig"):
                            psig()
                for _ in range(3):
                    if rl:
                        e(rl.pop(0))
                        issued += 1
                if dg and kk < 3 and (m >= 2 or s == 0):
                    for x in dg.pop(0):
                        emit(x, dtag)
                elif ex:
                    for _ in range(2 if s == S_PL else 1):
                        if ex:
                            for x in ex.pop(0):
                                emit(x, "pf" if s == 0 else "pl")
                if eb and not ex and (kk < 3 or s == 6):
                    for x in eb.pop(0):
                        emit(x, "eb")
                if s == 4 and kk == 1 and m == 0:
                    g2_setup(sW, 6)
                if s == PLH and kk == 0 and m == 1:
                    emit(f"buffer_load_dword v38, v36, {sr(S_WS, 4)}, 0 offen", "plh")
                if s == PLO and kk == 1 and m == 1:
                    make_srd(84, P_OUT, 2048 * 1024)
                    emit(f"buffer_load_dword v38, v37, {sr(84, 4)}, 0 offen", "plo")
                if s == S_MBR and kk == 0 and m == 0:
                    c("every wave issues it (uniform counting), only wave 0 uses it")
                    e("v_and_b32 v15, 31, v1")
                    e("v_lshlrev_b32 v15, 2, v15")
                    e(f"s_cmp_eq_u32 s{sW}, 0")
                    e("s_cselect_b64 exec, -1, 0")
                    emit(f"buffer_load_dword v75, v15, {sr(S_WS, 4)}, s83 offen sc1", "mbr")
                    e("s_mov_b64 exec, -1")
                if side and kk in (1, 2):
                    if kk == 1 and m == 0:
                        e(f"s_waitcnt vmcnt({nwait('pf') + 2})")
                    for _ in range(nside):
                        if side:
                            x = side.pop(0)
                            for y in (x if isinstance(x, tuple) else (x,)):
                                emit(y, "pst" if "store" in y else None)
                if last and kk == 3:
                    if m == 0:
                        e(f"s_waitcnt vmcnt({nwait('pl')})")
                        for j in range(1, 8):
                            e(f"v_add_f32 v48, v48, v{48 + 2 * j}")
                            e(f"v_add_f32 v49, v49, v{49 + 2 * j}")
                            e(f"v_add_f32 v64, v64, v{64 + 2 * j}")
                            e(f"v_add_f32 v65, v65, v{65 + 2 * j}")
                        e(f"s_lshl_b32 s{sT0}, s{sW}, 9")
                        e(f"s_add_u32 s{sT0}, s{sT0}, {K1_EX}")
                        e(f"v_lshl_add_u32 v4, v1, 3, s{sT0}")
                        e("ds_write_b64 v4, v[48:49]")
                        e("v_lshrrev_b32 v4, 5, v1")
                        e(f"v_lshl_add_u32 v4, v4, 4, s{sT0}")
                        e("s_waitcnt lgkmcnt(0)")
                    elif m == 1:
                        for ti in range(4):
                            part, T = ti >> 1, ti & 1
                            for q in range(4):
                                e(f"ds_read_b128 {vr(CSR + 16 * ti + 4 * q, 4)}, v4 offset:{256 * part + 128 * T + 32 * q}")
                    elif m == 2:
                        for x in stats_math(64, 65, 8):
                            e(x)
        assert not dg and not side and not ex and not eb

    def psig():
        e(f"v_readfirstlane_b32 s{sZ}, v74")
        e("s_nop 3")
        zcheck()
        c("lanes 0-15: (mt'=l, nt) ; lanes 16-26: (mt, nt'=l-16) if nt < 8")
        e("v_cmp_gt_u32 vcc, 16, v1")
        e(f"v_mov_b32 v12, s{sMT}")
        e(f"v_mov_b32 v13, s{sNT}")
        e("v_subrev_u32 v14, 16, v1")
        e("v_cndmask_b32 v12, v12, v1, vcc")
        e("v_cndmask_b32 v13, v14, v13, vcc")
        if LMAP:
            e("v_and_b32 v14, 1, v12")
            e("v_mul_u32_u24 v14, 11, v14")
            e("v_add_u32 v14, v14, v13")
            e("v_lshrrev_b32 v12, 1, v12")
            e("v_lshl_add_u32 v12, v14, 3, v12")
        else:
            e("v_lshrrev_b32 v14, 3, v12")
            e("v_mul_u32_u24 v14, 88, v14")
            e("v_lshl_add_u32 v14, v13, 3, v14")
            e("v_and_b32 v12, 7, v12")
            e("v_add_u32 v14, v14, v12")
            e("v_mul_u32_u24 v12, 2979, v14")
            e("v_lshrrev_b32 v12, 16, v12")
            e("v_mul_u32_u24 v13, 22, v12")
            e("v_sub_u32 v13, v14, v13")
            e("v_lshl_add_u32 v12, v13, 3, v12")
        e("v_lshlrev_b32 v12, 8, v12")
        e(f"s_lshl_b32 s79, s{sMT}, 2")
        e(f"s_add_u32 s79, s79, {WS_MB + 64 * 256 + 4 * MB_CS}")
        e(f"s_lshl_b32 s80, s{sNT}, 2")
        e(f"s_add_u32 s80, s80, {WS_MB + 64 * 256 + 4 * MB_ST}")
        e("v_mov_b32 v13, s80")
        e("v_mov_b32 v14, s79")
        e("v_cndmask_b32 v13, v13, v14, vcc")
        e("v_add_u32 v12, v12, v13")
        e("v_mov_b32 v13, 1")
        e(f"s_cmp_lt_u32 s{sNT}, 8")
        e("s_cselect_b32 s79, 27, 16")
        e("v_cmp_gt_u32 vcc, s79, v1")
        e("s_and_saveexec_b64 s[70:71], vcc")
        e(f"buffer_store_dword v13, v12, {sr(S_WS, 4)}, 0 offen sc1")
        e("s_mov_b64 exec, s[70:71]")

    mask_init()
    e("s_waitcnt lgkmcnt(0)")
    if PSET:
        stamp(9)
    e(f"s_waitcnt vmcnt({nwait('s0')})")
    if PSET:
        stamp(7)
    e("s_barrier")
    stamp(1)
    for x in rlist(0, 0):
        e(x)
    for s in range(8):
        body(s)
    stamp(3)
    e("v_and_b32 v2, 31, v1")
    e("v_lshrrev_b32 v3, 5, v1")
    if 0:
        c("prefetch a slice of w_down (1 KB per wave) towards MALL for k2")
        e("s_sub_u32 s3, s2, %d" % K1_NCONV)
        e("s_lshl_b32 s3, s3, 3")
        e(f"s_add_u32 s3, s3, s{sW}")
        e("s_lshl_b32 s3, s3, 10")
        make_srd(S_X, P_WD, 1376 * 1024)
        e("v_lshlrev_b32 v6, 4, v1")
        e(f"buffer_load_dwordx4 v[224:227], v6, {sr(S_X, 4)}, s3 offen")
    RS, NM = 246, 248
    c("epilogue: h = bf16(bf16(g)*bf16(u)); transpose via wave-private LDS (4 KB at 49152 + w*4096)")
    if not EPB:
        e("s_barrier")
    e(f"s_lshl_b32 s{sT0}, s{sW}, 12")
    e(f"s_add_u32 s{sT0}, s{sT0}, 49152")
    e("v_and_b32 v4, 7, v2")
    e("v_xor_b32 v4, v4, v3")
    e("v_lshlrev_b32 v4, 4, v4")
    e("v_lshl_add_u32 v4, v2, 7, v4")
    e(f"v_add_u32 v4, s{sT0}, v4")
    e("v_lshrrev_b32 v5, 3, v1")
    e("v_and_b32 v6, 7, v1")
    e("v_xor_b32 v6, v6, v5")
    e("v_lshlrev_b32 v6, 4, v6")
    e("v_lshl_add_u32 v6, v5, 7, v6")
    e(f"v_add_u32 v6, s{sT0}, v6")
    e(f"v_mov_b32 v{RS}, v250")
    e(f"v_mov_b32 v{RS + 1}, v250")
    e(f"v_mov_b32 v{NM}, v251")
    e(f"v_mov_b32 v{NM + 1}, v251")
    e("s_waitcnt lgkmcnt(0)")
    for r in range(0, 64, 2):
        e(f"v_pk_mul_f32 {vr(CSR + r, 2)}, {vr(CSR + r, 2)}, {vr(NM, 2)}")
    for r in range(0, 64, 2):
        e(f"v_pk_fma_f32 {vr(ACC + r, 2)}, {vr(ACC + r, 2)}, {vr(RS, 2)}, {vr(CSR + r, 2)}")
    for T in range(2):
        G, U = ACC + 16 * T, ACC + 32 + 16 * T
        for qq in range(2):
            o = 16 + 4 * (2 * T + qq)
            for h2 in range(4):
                r = 8 * qq + 2 * h2
                e(f"v_cvt_pk_bf16_f32 v8, v{G + r}, v{G + r + 1}")
                e(f"v_cvt_pk_bf16_f32 v9, v{U + r}, v{U + r + 1}")
                e("v_lshlrev_b32 v10, 16, v8")
                e("v_and_b32 v11, 0xffff0000, v8")
                e("v_lshlrev_b32 v12, 16, v9")
                e("v_and_b32 v13, 0xffff0000, v9")
                if EPB:
                    e("v_pk_mul_f32 v[10:11], v[10:11], v[12:13]")
                else:
                    e("v_mul_f32 v10, v10, v12")
                    e("v_mul_f32 v11, v11, v13")
                e(f"v_cvt_pk_bf16_f32 v{o + h2}, v10, v11")
            e("s_nop 1")
            e(f"v_permlane32_swap_b32 v{o}, v{o + 2}")
            e(f"v_permlane32_swap_b32 v{o + 1}, v{o + 3}")
            if EPB == 2:
                continue
            e(f"v_xor_b32 v7, {(4 * T + 2 * qq) << 4}, v4")
            if EPB and T == 0 and qq == 0:
                e("s_barrier")
            e(f"ds_write_b128 v7, {vr(o, 4)}")
    if EPB == 2:
        e("s_barrier")
        for T in range(2):
            for qq in range(2):
                e(f"v_xor_b32 v7, {(4 * T + 2 * qq) << 4}, v4")
                e(f"ds_write_b128 v7, {vr(16 + 4 * (2 * T + qq), 4)}")
    e(f"s_mov_b32 s{sZ}, 1")
    e(f"s_cmp_ge_u32 s{sW}, 4")
    e("s_cbranch_scc1 k1_stw")
    c("compute waves of GEMM2: early B DMAs done, h tile in LDS -> barrier 1")
    e("s_waitcnt lgkmcnt(0)")
    e("s_barrier")
    stamp(4)
    e("s_branch g2_entry")
    e("k1_stw:")
    c("store waves: own tile (nh = 1) first, then the partner's (nh = 0)")
    e("s_waitcnt lgkmcnt(0)")
    for j in range(4):
        e(f"ds_read_b128 {vr(32 + 4 * j, 4)}, v6 offset:{1024 * j}")
    for j in range(4):
        e(f"s_waitcnt lgkmcnt({3 - j})")
        e(f"s_mov_b32 s{sT0}, {8 * j * HP}")
        e(f"buffer_store_dwordx4 {vr(32 + 4 * j, 4)}, v{vHoff}, {sr(S_WS, 4)}, s{sT0} offen{STC}")
    e("s_barrier")
    e("v_subrev_u32 v6, 16384, v6")
    for j in range(4):
        e(f"ds_read_b128 {vr(48 + 4 * j, 4)}, v6 offset:{1024 * j}")
    e(f"v_subrev_u32 v7, 128, v{vHoff}")
    for j in range(4):
        e(f"s_waitcnt lgkmcnt({3 - j})")
        e(f"s_mov_b32 s{sT0}, {8 * j * HP}")
        e(f"buffer_store_dwordx4 {vr(48 + 4 * j, 4)}, v7, {sr(S_WS, 4)}, s{sT0} offen{STC}")
    e("s_waitcnt vmcnt(8) lgkmcnt(0)")
    e("s_barrier")
    stamp(4)
    c("row stats store (nt == 0, waves 4-7, lanes 0-31)")
    e(f"s_cmp_lg_u32 s{sNT}, 0")
    e("s_cbranch_scc1 k1_nostat")
    e(f"s_lshl_b32 s{sT0}, s{sMT}, 7")
    e(f"s_and_b32 s{sT1}, s{sW}, 3")
    e(f"s_lshl_b32 s{sT1}, s{sT1}, 5")
    e(f"s_add_u32 s{sT0}, s{sT0}, s{sT1}")
    e(f"s_lshl_b32 s{sT0}, s{sT0}, 3")
    e(f"s_add_u32 s{sT0}, s{sT0}, {WS_ST}")
    e("v_lshlrev_b32 v15, 3, v2")
    e("v_cmp_eq_u32 vcc, 0, v3")
    e("s_and_saveexec_b64 s[70:71], vcc")
    e(f"buffer_store_dwordx2 v[250:251], v15, {sr(S_WS, 4)}, s{sT0} offen{STC}")
    e("s_mov_b64 exec, s[70:71]")
    e("k1_nostat:")
    signal(sW, S_WS, "h", sMT, sNT)
    e("s_branch g2_entry")
    flush_ool()


def k1_aux():
    sW = 62
    e("k1_aux:")
    e("v_lshrrev_b32 v2, 6, v0")
    e("v_and_b32 v1, 63, v0")
    e(f"v_readfirstlane_b32 s{sW}, v2")
    e("s_waitcnt lgkmcnt(0)")
    stamp(0)
    e(f"s_mov_b32 s{sZ}, 0")
    g2_setup(sW, 0)
    if PLO >= 0:
        out_pre_addr(sW, 206, 84)
        make_srd(84, P_OUT, 2048 * 1024)
        e(f"buffer_load_dword v207, v206, {sr(84, 4)}, 0 offen")
    c("WG 240: zero all mailboxes (64 KB), then set the flag in d_debug")
    make_srd(48, P_WS, 0x1000000)
    make_srd(S_DB2, P_DBG, 256)
    e("s_cmp_lg_u32 s2, 240")
    e("s_cbranch_scc1 aux_nz")
    e(f"s_lshl_b32 s3, s{sW}, 13")
    e(f"s_add_u32 s3, s3, {WS_MB}")
    e("v_lshlrev_b32 v3, 4, v1")
    for r in range(4):
        e(f"v_mov_b32 v{4 + r}, 0")
    for j in range(8):
        e("buffer_store_dwordx4 v[4:7], v3, s[48:51], s3 offen sc1")
        e("s_add_u32 s3, s3, 1024")
    e("s_waitcnt vmcnt(0)")
    e("s_barrier")
    stamp(1)
    e(f"s_cmp_lg_u32 s{sW}, 0")
    e("s_cbranch_scc1 aux_nz")
    e("v_mov_b32 v14, 1")
    e(f"v_mov_b32 v15, {ZOFF}")
    e("v_cmp_eq_u32 vcc, 0, v1")
    e("s_and_saveexec_b64 s[70:71], vcc")
    e(f"buffer_store_dword v14, v15, {sr(S_DB2, 4)}, 0 offen sc1")
    e("s_mov_b64 exec, s[70:71]")
    e("aux_nz:")
    if PREF3 == 0:
        e("s_branch g2_entry")
        return
    if PREF3 == 2:
        e(f"s_cmp_lt_u32 s{sW}, 5")
        e("s_cbranch_scc1 g2_entry")
    for _ in range(ASLEEP):
        e("s_sleep 16")
    c("pull half of w_down into this XCD's L2 (86 KB per wave)")
    make_srd(44, P_WD, 1376 * 1024)
    e("s_sub_u32 s3, s2, 240")
    e("s_lshr_b32 s3, s3, 3")
    e("s_lshl_b32 s3, s3, 3")
    e(f"s_add_u32 s3, s3, s{sW}")
    e("s_mul_i32 s3, s3, 88064")
    e("v_lshlrev_b32 v3, 4, v1")
    for j in range(86):
        e(f"buffer_load_dwordx4 {vr(16 + 4 * (j % 8), 4)}, v3, s[44:47], s3 offen")
        e("s_add_u32 s3, s3, 1024")
        if j >= 32:
            e("s_waitcnt vmcnt(32)")
        if j == 41:
            stamp(2)
    e("s_waitcnt vmcnt(0)")
    stamp(5)
    e("s_branch g2_entry")


CV_R = 0
CV_RSTR = 4608
CV_KT = 0
CV_KSTR = 8320
CV_KCPY = 4160
CV_T = 98304
CV_TP = 528


def k1_conv():
    S_K, S_V, S_SK, S_WS, S_SH, S_DBG = 44, 48, 52, 56, 72, 76
    sW, sT0, sT1, sD, sG, sJ, sCG, sRB = 62, 63, 64, 65, 66, 67, 68, 69
    e("k1_conv:")
    e("v_lshrrev_b32 v2, 6, v0")
    e("v_and_b32 v1, 63, v0")
    e(f"v_readfirstlane_b32 s{sW}, v2")
    e("s_waitcnt lgkmcnt(0)")
    stamp(0)
    for _ in range(CSLEEP):
        e("s_sleep 16")
    make_srd(S_K, P_K, 2048 * 1024)
    make_srd(S_V, P_V, 2048 * 1024)
    make_srd(S_SK, P_SK, 512 * 4096)
    make_srd(S_WS, P_WS, 0x1000000)
    make_srd(S_SH, P_SH, 4096)
    make_srd(S_DBG, P_DBG, 256)
    c("G = id%8 (64-channel group, one XCD), J = id/8 (256-row block / channel sub-group), cg = 8G + J")
    e(f"s_and_b32 s{sG}, s2, 7")
    e(f"s_lshr_b32 s{sJ}, s2, 3")
    e(f"s_lshl_b32 s{sCG}, s{sG}, 3")
    e(f"s_add_u32 s{sCG}, s{sCG}, s{sJ}")
    e(f"s_mul_i32 s{sRB}, s{sW}, {CV_RSTR}")
    e(f"s_cmp_ge_u32 s{sW}, 6")
    e(f"s_mov_b32 s{sT0}, 66560")
    e(f"s_cselect_b32 s{sT0}, {147456 - 6 * CV_RSTR}, s{sT0}")
    e(f"s_add_u32 s{sRB}, s{sRB}, s{sT0}")
    c("---- kv phase: rows J*256 + 4*rg.., channels G*64 + cs*8..")
    e("v_lshrrev_b32 v2, 3, v0")
    e("v_and_b32 v3, 7, v0")
    e(f"s_lshl_b32 s{sT0}, s{sJ}, 18")
    e(f"s_lshl_b32 s{sT1}, s{sG}, 7")
    e(f"s_add_u32 s{sT0}, s{sT0}, s{sT1}")
    e("v_lshlrev_b32 v4, 12, v2")
    e("v_lshl_add_u32 v4, v3, 4, v4")
    e(f"v_add_u32 v4, s{sT0}, v4")
    e("v_subrev_u32 v5, 3072, v4")
    KD, VD, WD = 16, 44, 60
    for r in range(3):
        e(f"buffer_load_dwordx4 {vr(KD + 4 * r, 4)}, v5, {sr(S_K, 4)}, 0 offen offset:{1024 * r}{CNT}")
    for r in range(4):
        e(f"buffer_load_dwordx4 {vr(KD + 12 + 4 * r, 4)}, v4, {sr(S_K, 4)}, 0 offen offset:{1024 * r}{CNT}")
    for r in range(4):
        e(f"buffer_load_dwordx4 {vr(VD + 4 * r, 4)}, v4, {sr(S_V, 4)}, 0 offen offset:{1024 * r}{CNT}")
    e(f"s_lshl_b32 s{sT1}, s{sG}, 9")
    e("v_lshlrev_b32 v6, 6, v3")
    e(f"v_add_u32 v6, s{sT1}, v6")
    for j in range(4):
        e(f"buffer_load_dwordx4 {vr(WD + 4 * j, 4)}, v6, {sr(S_SH, 4)}, 0 offen offset:{16 * j}")
    c("ssm_D for this wave's channel")
    e(f"s_lshl_b32 s{sT0}, s{sCG}, 4")
    e(f"s_lshl_b32 s{sT1}, s{sW}, 1")
    e(f"s_add_u32 s{sT0}, s{sT0}, s{sT1}")
    e(f"s_and_b32 s{sT1}, s{sT0}, 0xfffffffc")
    e(f"s_add_u32 s{P_SD}, s{P_SD}, s{sT1}")
    e(f"s_addc_u32 s{P_SD + 1}, s{P_SD + 1}, 0")
    e(f"s_load_dword s{sD}, {sr(P_SD, 2)}, 0")
    c("ssm_k row of this wave's channel")
    SKD = 232
    e(f"s_lshl_b32 s{sT0}, s{sCG}, 3")
    e(f"s_add_u32 s{sT0}, s{sT0}, s{sW}")
    e(f"s_lshl_b32 s{sT0}, s{sT0}, 12")
    e("v_lshlrev_b32 v8, 4, v1")
    e(f"v_add_u32 v8, s{sT0}, v8")
    def skloads():
        for j in range(4):
            e(f"buffer_load_dwordx4 {vr(SKD + 4 * j, 4)}, v8, {sr(S_SK, 4)}, 0 offen offset:{1024 * j}{SNT}")
        for j in range(4):
            e(f"buffer_load_dword v{SKD + 16 + j}, v8, {sr(S_SK, 4)}, 0 offen offset:{1024 * j + 16}")
    if not SKDEF:
        skloads()
    c("kv LDS transpose position: T + (cs*8 + cc)*528 + 504 - 8 rg")
    e(f"v_mul_u32_u24 v7, {8 * CV_TP}, v3")
    e("v_lshlrev_b32 v9, 3, v2")
    e("v_sub_u32 v7, v7, v9")
    e(f"v_add_u32 v7, {CV_T + 504}, v7")
    mask_init()
    e(f"s_waitcnt vmcnt({0 if SKDEF else 8})")
    stamp(1)
    if SKDEF:
        skloads()
    e(f"s_cmp_lg_u32 s{sW}, 0")
    e("s_cbranch_scc1 k1c_nozl")
    zload()
    e("k1c_nozl:")
    KF, VF, WF = 80, 136, 200
    for cc in range(8):
        for jp in range(2):
            w = WD + 2 * cc + jp
            e(f"v_lshlrev_b32 v{WF + (2 * jp) * 8 + cc}, 16, v{w}")
            e(f"v_and_b32 v{WF + (2 * jp + 1) * 8 + cc}, 0xffff0000, v{w}")
    for i in range(28):
        e(f"v_lshlrev_b32 v{KF + 2 * i}, 16, v{KD + i}")
        e(f"v_and_b32 v{KF + 2 * i + 1}, 0xffff0000, v{KD + i}")
    for i in range(16):
        e(f"v_lshlrev_b32 v{VF + 2 * i}, 16, v{VD + i}")
        e(f"v_and_b32 v{VF + 2 * i + 1}, 0xffff0000, v{VD + i}")
    KV = 168
    for r in range(4):
        for cp in range(4):
            d = KV + 8 * r + 2 * cp
            e(f"v_pk_mul_f32 {vr(d, 2)}, {vr(KF + 8 * r + 2 * cp, 2)}, {vr(WF + 3 * 8 + 2 * cp, 2)}")
            for j in range(1, 4):
                e(f"v_pk_fma_f32 {vr(d, 2)}, {vr(KF + 8 * (r + j) + 2 * cp, 2)}, "
                  f"{vr(WF + (3 - j) * 8 + 2 * cp, 2)}, {vr(d, 2)}")
            e(f"v_pk_mul_f32 {vr(d, 2)}, {vr(d, 2)}, {vr(VF + 8 * r + 2 * cp, 2)}")
    for cc in range(8):
        o = 16 + 2 * cc
        e(f"v_cvt_pk_bf16_f32 v{o}, v{KV + 24 + cc}, v{KV + 16 + cc}")
        e(f"v_cvt_pk_bf16_f32 v{o + 1}, v{KV + 8 + cc}, v{KV + cc}")
        e(f"ds_write_b64 v7, {vr(o, 2)} offset:{cc * CV_TP}")
    e("s_waitcnt lgkmcnt(0)")
    e("s_barrier")
    c("wave w: channels 8w..8w+7 of the group: full-line stores (2 channels x 512 B per instruction)")
    e("v_lshrrev_b32 v6, 5, v1")
    e("v_and_b32 v7, 31, v1")
    e("v_lshlrev_b32 v7, 4, v7")
    e(f"v_mul_u32_u24 v9, {CV_TP}, v6")
    e("v_add_u32 v9, v9, v7")
    e(f"s_mul_i32 s{sT1}, s{sW}, {8 * CV_TP}")
    e(f"s_add_u32 s{sT1}, s{sT1}, {CV_T}")
    e(f"v_add_u32 v9, s{sT1}, v9")
    for j in range(4):
        e(f"ds_read_b128 {vr(16 + 4 * j, 4)}, v9 offset:{2 * j * CV_TP}")
    e("v_lshl_add_u32 v7, v6, 12, v7")
    e(f"s_lshl_b32 s{sT0}, s{sG}, 18")
    e(f"s_lshl_b32 s{sT1}, s{sW}, 15")
    e(f"s_add_u32 s{sT0}, s{sT0}, s{sT1}")
    e(f"s_add_u32 s{sT0}, s{sT0}, {WS_KV + 3584}")
    e(f"s_lshl_b32 s{sT1}, s{sJ}, 9")
    e(f"s_sub_u32 s{sT0}, s{sT0}, s{sT1}")
    for j in range(4):
        e(f"s_waitcnt lgkmcnt({3 - j})")
        e(f"buffer_store_dwordx4 {vr(16 + 4 * j, 4)}, v7, {sr(S_WS, 4)}, s{sT0} offen sc1")
        e(f"s_add_u32 s{sT0}, s{sT0}, 8192")
    c("meanwhile: zero pads and KT copies")
    e(f"s_mov_b32 s{sT1}, s{sRB}")
    e("v_lshlrev_b32 v6, 3, v1")
    e(f"v_add_u32 v6, s{sT1}, v6")
    e("v_mov_b32 v10, 0")
    e("v_mov_b32 v11, 0")
    e(f"ds_write_b64 v6, v[10:11] offset:{CV_R + 4096}")
    e(f"s_mul_i32 s{sT1}, s{sW}, {CV_KSTR}")
    e(f"s_add_u32 s{sT1}, s{sT1}, {CV_KT}")
    e("v_lshlrev_b32 v7, 2, v1")
    e(f"v_add_u32 v7, s{sT1}, v7")
    e("v_cmp_gt_u32 vcc, 8, v1")
    e("s_and_saveexec_b64 s[70:71], vcc")
    e("ds_write_b32 v7, v10")
    e(f"ds_write_b32 v7, v10 offset:{CV_KCPY}")
    e("s_mov_b64 exec, s[70:71]")
    e("s_waitcnt lgkmcnt(0)")
    e(f"s_lshl_b32 s{sT0}, s{sD}, 16")
    e(f"s_and_b32 s{sD}, s{sD}, 0xffff0000")
    e(f"s_bitcmp1_b32 s{sW}, 0")
    e(f"s_cselect_b32 s{sD}, s{sD}, s{sT0}")
    e("v_lshlrev_b32 v7, 4, v1")
    e(f"v_add_u32 v7, s{sT1}, v7")
    e("s_waitcnt vmcnt(4)")
    for j in range(4):
        d = SKD + 4 * j
        e(f"ds_write_b128 v7, {vr(d, 4)} offset:{32 + 1024 * j}")
        e(f"v_alignbit_b32 v12, v{d + 1}, v{d}, 16")
        e(f"v_alignbit_b32 v13, v{d + 2}, v{d + 1}, 16")
        e(f"v_alignbit_b32 v14, v{d + 3}, v{d + 2}, 16")
        e(f"v_alignbit_b32 v15, v{SKD + 16 + j}, v{d + 3}, 16")
        e(f"ds_write_b128 v7, v[12:15] offset:{CV_KCPY + 32 + 1024 * j}")
        e("s_nop 1")
    e(f"v_lshlrev_b32 v12, 16, v{SKD}")
    e("v_cmp_eq_u32 vcc, 0, v1")
    e("s_and_saveexec_b64 s[70:71], vcc")
    e(f"ds_write_b32 v7, v12 offset:{CV_KCPY + 28}")
    e("s_mov_b64 exec, s[70:71]")
    c("hand-off: all kv stores drained -> barrier -> flags to the 8 WGs of the group; then poll own mailbox")
    e("s_waitcnt vmcnt(0)")
    e("s_barrier")
    stamp(2)
    e(f"s_cmp_lg_u32 s{sW}, 0")
    e("s_cbranch_scc1 k1c_wait")
    zcheck()
    e(f"v_lshl_add_u32 v12, v1, 3, s{sG}")
    e("v_lshlrev_b32 v12, 8, v12")
    e(f"s_lshl_b32 s79, s{sJ}, 2")
    e(f"s_add_u32 s79, s79, {WS_MB + 4 * MB_KV}")
    e("v_mov_b32 v13, 1")
    e("v_cmp_gt_u32 vcc, 8, v1")
    e("s_and_saveexec_b64 s[70:71], vcc")
    e(f"buffer_store_dword v13, v12, {sr(S_WS, 4)}, s79 offen sc1")
    e("s_mov_b64 exec, s[70:71]")
    e("s_lshl_b32 s79, s2, 8")
    e(f"s_add_u32 s79, s79, {WS_MB + 128}")
    pollmask(79, 0xff << (MB_KV - 32), S_WS)
    e(f"s_mov_b32 s{sZ}, 1")
    e("k1c_wait:")
    e("s_barrier")
    c("load own channel kvR row (sc1) -> LDS R")
    e(f"v_add_u32 v8, {WS_KV}, v8")
    for j in range(4):
        e(f"buffer_load_dwordx4 {vr(16 + 4 * j, 4)}, v8, {sr(S_WS, 4)}, 0 offen offset:{1024 * j} sc1")
    e(f"s_mov_b32 s{sT0}, s{sRB}")
    e("v_lshlrev_b32 v6, 4, v1")
    e(f"v_add_u32 v6, s{sT0}, v6")
    for j in range(4):
        e(f"s_waitcnt vmcnt({3 - j})")
        e(f"ds_write_b128 v6, {vr(16 + 4 * j, 4)} offset:{CV_R + 1024 * j}")
    e("s_waitcnt lgkmcnt(0)")
    stamp(3)
    c("MFMA phase: wave w -> channel w")
    ACC = 16
    AR = [48, 112]
    BR = [80, 144]
    vKT, vR, vA = 200, 201, 202
    e("v_and_b32 v2, 15, v1")
    e("v_lshrrev_b32 v3, 4, v1")
    e("v_lshlrev_b32 v4, 1, v2")
    e("v_lshlrev_b32 v5, 4, v3")
    e("v_sub_u32 v4, v4, v5")
    e(f"v_add_u32 v4, {32 - 14}, v4")
    e("v_and_b32 v5, 1, v2")
    e("v_cmp_eq_u32 vcc, 0, v5")
    e("v_mov_b32 v5, 0")
    e(f"v_mov_b32 v6, {CV_KCPY - 2}")
    e("s_nop 1")
    e("v_cndmask_b32 v5, v5, v6, vcc")
    e("v_add_u32 v4, v4, v5")
    e(f"v_add_u32 v{vKT}, s{sT1}, v4")
    e(f"s_mov_b32 s{sT0}, s{sRB}")
    e("v_lshlrev_b32 v4, 5, v2")
    e("v_lshl_add_u32 v4, v3, 4, v4")
    e(f"v_sub_u32 v4, {CV_R + 4080 - 3584}, v4")
    e(f"v_add_u32 v{vR}, s{sT0}, v4")

    def creads(ci, st):
        d0 = 2 * ci + 1
        for pp in range(4):
            e(f"v_add_u32 v{vA + pp}, {32 * d0 + 1024 * pp}, v{vKT}")
        order = [("B", 0)] + [("A", p) for p in range(8)] + [("B", m) for m in range(1, 8)]
        for kind, x in order:
            if kind == "A":
                p = x
                o = 128 * (p & 1)
                e(f"ds_read2_b32 {vr(AR[st] + 4 * p, 2)}, v{vA + (p >> 1)} offset0:{o} offset1:{o + 1}")
                e(f"ds_read2_b32 {vr(AR[st] + 4 * p + 2, 2)}, v{vA + (p >> 1)} offset0:{o + 2} offset1:{o + 3}")
            else:
                m = x
                e(f"ds_read_b128 {vr(BR[st] + 4 * m, 4)}, v{vR} offset:{32 * d0 + 512 * (7 - m)}")

    creads(0, 0)
    g2_setup(sW, 3)
    if PLO >= 0:
        out_pre_addr(sW, 206, 84)
        make_srd(84, P_OUT, 2048 * 1024)
        e(f"buffer_load_dword v207, v206, {sr(84, 4)}, 0 offen")
    if PLY:
        e(f"s_lshl_b32 s3, s{sCG}, 3")
        e(f"s_add_u32 s3, s3, s{sW}")
        e("s_lshl_b32 s3, s3, 12")
        e(f"s_add_u32 s3, s3, {WS_Y2}")
        e("v_lshlrev_b32 v206, 6, v1")
        e(f"buffer_load_dword v207, v206, {sr(S_WS, 4)}, s3 offen")
    for ci in range(8):
        st = ci & 1
        e("s_waitcnt lgkmcnt(0)")
        if ci < 7:
            creads(ci + 1, st ^ 1)
        if 2 <= ci <= 4:
            for g in g2_early(ci - 2):
                for x in g:
                    e(x)
        for m in range(8):
            for p in range(8 - m):
                cc = "0" if (ci == 0 and m == 0) else vr(ACC + 4 * (m + p), 4)
                e(f"v_mfma_f32_16x16x32_bf16 {vr(ACC + 4 * (m + p), 4)}, {vr(AR[st] + 4 * p, 4)}, "
                  f"{vr(BR[st] + 4 * m, 4)}, {cc}")
    stamp(None)
    c("epilogue: kv reads, y2 = bf16(bf16(y) + bf16(kv*D)), store y2T")
    e("v_lshlrev_b32 v4, 5, v2")
    e("v_lshl_add_u32 v4, v3, 3, v4")
    e(f"v_sub_u32 v5, {CV_R + 4088 - 3584}, v4")
    e(f"v_add_u32 v5, s{sT0}, v5")
    KVR = 48
    for n in range(8):
        e(f"ds_read_b64 {vr(KVR + 2 * n, 2)}, v5 offset:{512 * (7 - n)}")
    e(f"s_lshl_b32 s{sT1}, s{sCG}, 3")
    e(f"s_add_u32 s{sT1}, s{sT1}, s{sW}")
    e(f"s_lshl_b32 s{sT1}, s{sT1}, 12")
    e(f"s_add_u32 s{sT1}, s{sT1}, {WS_Y2}")
    e(f"v_add_u32 v6, s{sT1}, v4")
    e("s_nop 7")
    e("s_waitcnt vmcnt(0) lgkmcnt(0)")
    e(f"s_cmp_lt_u32 s{sW}, 4")
    e("s_cbranch_scc1 k1c_nb1")
    e("s_barrier")
    e("k1c_nb1:")
    for n in range(8):
        a = ACC + 4 * n
        k0, k1 = KVR + 2 * n, KVR + 2 * n + 1
        o = 80 + 2 * n
        e(f"v_cvt_pk_bf16_f32 v8, v{a}, v{a + 1}")
        e(f"v_cvt_pk_bf16_f32 v9, v{a + 2}, v{a + 3}")
        e(f"v_and_b32 v10, 0xffff0000, v{k1}")
        e(f"v_lshlrev_b32 v11, 16, v{k1}")
        e(f"v_and_b32 v12, 0xffff0000, v{k0}")
        e(f"v_lshlrev_b32 v13, 16, v{k0}")
        for t in range(4):
            e(f"v_mul_f32 v{10 + t}, s{sD}, v{10 + t}")
        e("v_cvt_pk_bf16_f32 v10, v10, v11")
        e("v_cvt_pk_bf16_f32 v12, v12, v13")
        e("v_lshlrev_b32 v14, 16, v8")
        e("v_and_b32 v15, 0xffff0000, v8")
        e("v_lshlrev_b32 v11, 16, v10")
        e("v_and_b32 v10, 0xffff0000, v10")
        e("v_add_f32 v14, v14, v11")
        e("v_add_f32 v15, v15, v10")
        e(f"v_cvt_pk_bf16_f32 v{o}, v14, v15")
        e("v_lshlrev_b32 v14, 16, v9")
        e("v_and_b32 v15, 0xffff0000, v9")
        e("v_lshlrev_b32 v13, 16, v12")
        e("v_and_b32 v12, 0xffff0000, v12")
        e("v_add_f32 v14, v14, v13")
        e("v_add_f32 v15, v15, v12")
        e(f"v_cvt_pk_bf16_f32 v{o + 1}, v14, v15")
        e(f"buffer_store_dwordx2 {vr(o, 2)}, v6, {sr(S_WS, 4)}, 0 offen offset:{512 * n}{STC}")
    stamp(4)
    e(f"s_mov_b32 s{sZ}, 1")
    e(f"s_cmp_ge_u32 s{sW}, 4")
    e("s_cbranch_scc1 k1c_w47")
    e("s_barrier")
    e("s_branch g2_entry")
    e("k1c_w47:")
    e(f"v_mov_b32 v26, {K2_MASK}")
    e("v_mov_b32 v13, 1")
    e("v_cmp_eq_u32 vcc, 0, v1")
    e("s_waitcnt vmcnt(0)")
    e("s_and_saveexec_b64 s[70:71], vcc")
    e("ds_add_u32 v26, v13 offset:4")
    e("s_mov_b64 exec, s[70:71]")
    stamp(5)
    e(f"s_cmp_lg_u32 s{sW}, 5")
    e("s_cbranch_scc1 g2_entry")
    c("wave 5: wait until all eight waves' stores are complete, then signal")
    e("s_mov_b32 s80, 0")
    e("k1c_cnt:")
    e("ds_read_b32 v15, v26 offset:4")
    e("s_waitcnt lgkmcnt(0)")
    e("v_readfirstlane_b32 s81, v15")
    e("s_add_u32 s80, s80, 1")
    e("s_nop 2")
    e("s_cmp_ge_u32 s81, 8")
    e("s_cbranch_scc1 k1c_cntd")
    e("s_sleep 2")
    e("s_cmp_lt_u32 s80, 0x400000")
    e("s_cbranch_scc1 k1c_cnt")
    e("k1c_cntd:")
    signal(sW, S_WS, "c", sG, sJ, wave=5)
    e("s_branch g2_entry")


def kernel1():
    e(".globl k1_kernel")
    e(".p2align 8")
    e(".type k1_kernel,@function")
    e("k1_kernel:")
    e("s_cmp_ge_u32 s2, 256")
    e("s_cbranch_scc1 k1_done")
    load_ptrs()
    e(f"s_cmp_lt_u32 s2, {K1_NCONV}")
    e("s_cbranch_scc1 k1_conv")
    e(f"s_cmp_lt_u32 s2, {K1_NCONV + K1_NGEMM}")
    e("s_cbranch_scc1 k1_gemm")
    k1_aux()
    k1_gemm()
    k1_conv()
    kernel2()
    e("k1_done:")
    e("s_endpgm")


K2_Y2 = 147456
K2_STATS = K2_Y2 + 8192 + 64
K2_AS = [6, 7, 8, 0, 1, 2, 3, 4]
NRG = 4 if R4 else 3
K2_STEPS = 12
K2_NBR = 8
K2_NA = 6


def kernel2():
    S_H, S_WD, S_X, S_WS, S_OUT = 44, 48, 52, 56, 60
    sW, sT0, sT1, sMT, sNT, sKA, sKB, sLB = 64, 65, 66, 67, 68, 69, 70, 71
    sMASK, sW11 = 18, 19
    XR = 16
    NR = 24
    AFR = 28
    ACC = 60
    BFR = 124
    vDA, vDB, vB0, vB1, vAr, vOut = 8, 9, 10, 11, 12, 13
    e("g2_entry:")
    e("v_lshrrev_b32 v2, 6, v0")
    e("v_and_b32 v1, 63, v0")
    e(f"v_readfirstlane_b32 s{sW}, v2")
    make_srd(S_WS, P_WS, 0x1000000)
    e(f"s_cmp_gt_u32 s{sW}, 4")
    e("s_cbranch_scc1 g2_exit")
    c("x = id%8, j = id/8 : mt2 = 4x + (j&3), nt2 = j>>2")
    e("s_and_b32 s4, s2, 7")
    e("s_lshr_b32 s5, s2, 3")
    e(f"s_lshr_b32 s{sNT}, s5, 2")
    e("s_and_b32 s5, s5, 3")
    e(f"s_lshl_b32 s{sMT}, s4, 2")
    e(f"s_add_u32 s{sMT}, s{sMT}, s5")
    e(f"s_cmp_eq_u32 s{sW}, 4")
    e("s_cbranch_scc1 g2_helper")
    make_srd(S_H, P_WS, WS_H_BYTES)
    make_srd(S_X, P_Q, 2048 * 1024)
    make_srd(S_OUT, P_OUT, 2048 * 1024)
    e(f"s_mul_i32 s{sKA}, s{sMT}, {64 * HP}")
    e(f"s_cmp_eq_u32 s{sND}, 6")
    e("s_cselect_b64 s[42:43], -1, 0")
    e("s_mov_b32 s78, 49152")
    e("s_mov_b32 s83, 98304")
    e(f"s_mov_b32 s{sLB}, s{sLB2}")
    e("v_and_b32 v2, 31, v1")
    e("v_lshrrev_b32 v3, 5, v1")
    e(f"s_mov_b32 s73, s{sROT}")
    VM = []

    def adv(sidx):
        return g2_adv(sidx)

    def groups_B(i, slot):
        g = []
        for j in range(4):
            x = []
            if j == 0:
                x += [f"s_lshl_b32 s77, s{sBI}, 16", f"s_add_u32 s77, s77, s{sKB2}"]
                if i >= 10:
                    x += ["s_mov_b64 exec, s[42:43]"]
            x += [f"s_add_u32 m0, s{sLB}, {slot * 16384 + j * 1024}",
                  f"s_add_u32 s{sT0}, s77, {8 * j * 1024 + (i & 1) * 32768}",
                  f"buffer_load_dwordx4 v{vDB2}, {sr(S_WD2, 4)}, s{sT0} offen lds"]
            if j == 3:
                if i & 1:
                    x += adv(sBI)
                if i >= 10:
                    x += ["s_mov_b64 exec, -1"]
            g.append((x, f"B{i}"))
        return g

    def groups_A(q):
        g = []
        for j in range(8):
            slot = K2_AS[2 * (q % NRG) + (j >> 2)]
            x = []
            if j == 0:
                x += [f"s_add_u32 s74, s73, s{sL0}", "s_and_b32 s76, s74, 30",
                      f"s_bitcmp1_b32 s{sMASK}, s76", f"s_cbranch_scc0 g2_wt{q}", ("ool", q),
                      "s_lshl_b32 s76, s74, 7", f"s_add_u32 s76, s76, s{sKA}"]
                if q == 5:
                    x += ["s_mov_b64 exec, s[42:43]"]
            x += [f"s_add_u32 m0, s{sLB}, {slot * 16384 + (j & 3) * 1024}",
                  f"s_add_u32 s{sT0}, s76, {8 * j * HP}",
                  f"buffer_load_dwordx4 v{vDB if j & 1 else vDA}, {sr(S_H, 4)}, s{sT0} offen lds"]
            if j == 7:
                x += adv(73)
                if q == 5:
                    x += ["s_mov_b64 exec, -1"]
            g.append((x, f"A{q}"))
        return g

    def emit_group(g):
        x, tag = g
        for y in x:
            if isinstance(y, tuple):
                i = y[1]
                with ool(f"g2_wt{i}"):
                    e("s_mov_b32 s80, 0")
                    e(f"g2_wl{i}:")
                    e("ds_read_b32 v15, v26")
                    e("s_waitcnt lgkmcnt(0)")
                    e(f"v_readfirstlane_b32 s{sMASK}, v15")
                    e("s_add_u32 s80, s80, 1")
                    e("s_nop 2")
                    e(f"s_bitcmp1_b32 s{sMASK}, s76")
                    e(f"s_cbranch_scc1 g2_wt{i}_ret")
                    e("s_sleep 1")
                    e("s_cmp_lt_u32 s80, 0x400000")
                    e(f"s_cbranch_scc1 g2_wl{i}")
                continue
            e(y)
            if y.startswith("buffer_"):
                VM.append(tag)

    def nwait(tag):
        last = max(i for i, t in enumerate(VM) if t == tag)
        return min(63, len(VM) - 1 - last)

    c("B steps not issued early (branch on the role)")
    e(f"s_cmp_eq_u32 s{sNPRE}, 6")
    e("s_cbranch_scc1 g2_b6")
    e(f"s_cmp_eq_u32 s{sNPRE}, 3")
    e("s_cbranch_scc1 g2_b3")
    for i in range(7):
        if i in (3, 6):
            e(f"g2_b{i}:")
        for g in groups_B(i, K2_SB[i]):
            emit_group(g)
    c("A DMA lane offsets: row = l/8, src chunk = (l%8) ^ (l/16) (^4 for odd 8-row groups)")
    e("v_lshrrev_b32 v4, 3, v1")
    e(f"v_mul_u32_u24 v4, {HP}, v4")
    e("v_and_b32 v5, 7, v1")
    e("v_lshrrev_b32 v6, 4, v1")
    e("v_xor_b32 v5, v5, v6")
    e(f"v_lshl_add_u32 v{vDA}, v5, 4, v4")
    e(f"v_xor_b32 v{vDB}, 64, v{vDA}")
    c("epilogue operand loads: tile (mi = w/2, ni = w%2)")
    e(f"s_lshr_b32 s{sT0}, s{sW}, 1")
    e(f"s_lshl_b32 s{sT0}, s{sT0}, 5")
    e(f"v_add_u32 v27, s{sT0}, v2")
    e(f"v_lshlrev_b32 v27, 3, v27")
    e(f"v_add_u32 v27, {K2_STATS}, v27")
    e(f"s_lshl_b32 s{sT1}, s{sMT}, 6")
    e(f"s_add_u32 s{sT0}, s{sT0}, s{sT1}")
    e(f"v_add_u32 v4, s{sT0}, v2")
    e(f"s_and_b32 s{sT1}, s{sW}, 1")
    e(f"s_lshl_b32 s{sT1}, s{sT1}, 6")
    e(f"s_lshl_b32 s72, s{sNT}, 7")
    e(f"s_add_u32 s{sT1}, s{sT1}, s72")
    e("v_lshlrev_b32 v5, 10, v4")
    e(f"v_add_u32 v5, s{sT1}, v5")
    e(f"v_lshl_add_u32 v{vOut}, v3, 4, v5")
    e("v_lshl_add_u32 v253, v3, 3, v5")
    c("B tr-read lane addresses")
    e("v_and_b32 v4, 15, v1")
    e("v_lshrrev_b32 v5, 2, v4")
    e("v_lshl_add_u32 v6, v3, 4, v5")
    e("v_lshlrev_b32 v6, 7, v6")
    e("v_lshrrev_b32 v7, 4, v1")
    e("v_and_b32 v7, 1, v7")
    e("v_lshl_add_u32 v6, v7, 5, v6")
    e("v_and_b32 v7, 3, v4")
    e("v_lshl_add_u32 v6, v7, 3, v6")
    e(f"v_add_u32 v6, s{sLB}, v6")
    e("v_lshrrev_b32 v7, 3, v4")
    e(f"v_lshl_add_u32 v{vB0}, v7, 6, v6")
    e("v_xor_b32 v7, 1, v7")
    e(f"v_lshl_add_u32 v{vB1}, v7, 6, v6")
    c("A read address: r*128 + ((4h+2g+s) ^ ((r>>1)&7))*16 ; s via xor 16, h via xor 64")
    e("v_lshrrev_b32 v4, 1, v2")
    e("v_and_b32 v4, 7, v4")
    e("v_lshlrev_b32 v5, 1, v3")
    e("v_xor_b32 v4, v4, v5")
    e("v_lshlrev_b32 v4, 4, v4")
    e("v_lshl_add_u32 v4, v2, 7, v4")
    e(f"v_add_u32 v{vAr}, s{sLB}, v4")
    e(f"v_xor_b32 v14, 16, v{vAr}")
    e(f"v_mov_b32 v26, {K2_MASK}")
    e(f"s_mov_b32 s{sMASK}, 0")

    c("address regs per 48 KB third: (B0, B1, A0, A1) x 3 in v[240:251]?  -> B frags end at 251, so use v[4:7] dynamically")

    def rebase(third):
        return [f"v_add_u32 v4, {third * 49152}, v{vB0}", f"v_add_u32 v5, {third * 49152}, v{vB1}",
                f"v_add_u32 v6, {third * 49152}, v{vAr}", f"v_add_u32 v7, {third * 49152}, v14"]

    def breads(i, slot):
        r = rebase(slot // 3)[:2]
        base = BFR + 16 * (i % K2_NBR)
        for s in range(2):
            for ni in range(2):
                for u in range(2):
                    r.append(f"ds_read_b64_tr_b16 {vr(base + 8 * s + 4 * ni + 2 * u, 2)}, v{5 if ni else 4} "
                             f"offset:{(slot % 3) * 16384 + (8 * s + 4 * u) * 128}")
        return r

    def areads(i):
        q, h = i >> 1, i & 1
        r = []
        for mi in range(2):
            slot = K2_AS[2 * (q % NRG) + mi]
            th = ["0", "s78", "s83"][slot // 3]
            for s in range(2):
                r.append(f"v_xad_u32 v{6 + s}, v{14 if s else vAr}, {64 * h}, {th}")
            for s in range(2):
                r.append(f"ds_read_b128 {vr(AFR + 16 * (i & 1) + 8 * mi + 4 * s, 4)}, v{6 + s} "
                         f"offset:{(slot % 3) * 16384}")
        return r

    e(f"s_cmp_eq_u32 s{sNPRE}, 3")
    e("s_cbranch_scc1 g2_nb2")
    e("s_barrier")
    e("s_waitcnt vmcnt(4)")
    e("g2_nb2:")
    for i in range(6):
        e(f"s_waitcnt vmcnt({nwait(f'B{i}')})")
        for x in breads(i, K2_SB[i]):
            e(x)
    e("s_waitcnt lgkmcnt(0)")
    e(f"s_cmp_eq_u32 s{sNPRE}, 3")
    e("s_cbranch_scc1 g2_cv")
    with ool("g2_cv"):
        c("conv role: this wave's y2T stores are complete (covered by the B5 wait)")
        e("v_mov_b32 v15, 1")
        e("v_cmp_eq_u32 vcc, 0, v1")
        e("s_and_saveexec_b64 s[80:81], vcc")
        e("ds_add_u32 v26, v15 offset:4")
        e("s_mov_b64 exec, s[80:81]")
    stamp(6)
    if R4:
        for g in groups_B(7, K2_SB[7]):
            emit_group(g)
        e(f"s_waitcnt vmcnt({nwait('B6')})")
        for x in breads(6, K2_SB[6]):
            e(x)
        e("s_waitcnt lgkmcnt(0)")
        for g in groups_B(8, K2_SB[8]):
            emit_group(g)
        for q in range(3):
            for g in groups_A(q):
                emit_group(g)
        e(f"s_waitcnt vmcnt({nwait('B7')})")
        for x in breads(7, K2_SB[7]):
            e(x)
    else:
        for i in (7, 8):
            for g in groups_B(i, K2_SB[i]):
                emit_group(g)
        for q in range(3):
            for g in groups_A(q):
                emit_group(g)
        for i in (6, 7):
            e(f"s_waitcnt vmcnt({nwait(f'B{i}')})")
            for x in breads(i, K2_SB[i]):
                e(x)
        e("s_waitcnt lgkmcnt(0)")
        for g in groups_B(9, K2_SB[9]) + groups_B(10, K2_SB[10]):
            emit_group(g)
    e(f"s_waitcnt vmcnt({nwait('A0')})")
    stamp(None if PSET else 7)
    for x in areads(0):
        e(x)
    BRD = {1: 8, 4: 9, 7: 10, 10: 11} if R4 else {1: 8, 4: 9, 5: 10, 7: 11}
    for i in range(K2_STEPS):
        if i == 10:
            e(f"s_cmp_eq_u32 s{sND}, 5")
            e("s_cbranch_scc1 k2_lend")
        e("s_waitcnt lgkmcnt(0)")
        dg = []
        if R4:
            if i in (0, 1, 3):
                dg += groups_A({0: 3, 1: 4, 3: 5}[i])
            if i in (2, 5, 8):
                dg += groups_B(9 + (i - 2) // 3, 5)
        else:
            if i & 1 and (i >> 1) + 3 < 6:
                dg += groups_A((i >> 1) + 3)
            if i == 2:
                dg += groups_B(11, K2_SB[11])
        rl, tags = [], []
        if i + 1 < K2_STEPS:
            rl = areads(i + 1)
            tags.append(f"A{(i + 1) >> 1}")
        if i in BRD:
            rl += breads(BRD[i], K2_SB[BRD[i]])
            tags.append(f"B{BRD[i]}")
        for g in dg:
            emit_group(g)
        if i == 6:
            for q in range(4):
                e(f"buffer_load_dwordx2 {vr(XR + 2 * q, 2)}, v253, {sr(S_X, 4)}, 0 offen offset:{16 * q}")
                VM.append("epi")
        if rl:
            e(f"s_waitcnt vmcnt({min(nwait(t) for t in tags)})")
            for x in rl:
                e(x)
        for s in range(2):
            for mi in range(2):
                for ni in range(2):
                    a = ACC + 16 * (2 * mi + ni)
                    bb = BFR + 16 * (i % K2_NBR) + 8 * s + 4 * ni
                    cc = "0" if i == 0 and s == 0 else vr(a, 16)
                    e(f"v_mfma_f32_32x32x16_bf16 {vr(a, 16)}, {vr(bb, 4)}, "
                      f"{vr(AFR + 16 * (i & 1) + 8 * mi + 4 * s, 4)}, {cc}")
    e("k2_lend:")
    e("s_waitcnt lgkmcnt(0)")
    e("s_nop 15")
    e("s_nop 3")
    stamp(None if PSET else 8)
    c("write non-owned partial tiles to own LDS region")
    e("v_lshlrev_b32 v4, 4, v1")
    e(f"v_add_u32 v4, s{sLB}, v4")
    for t in range(4):
        e(f"s_cmp_eq_u32 s{sW}, {t}")
        e(f"s_cbranch_scc1 k2_skipw{t}")
        for q in range(4):
            e(f"ds_write_b128 v4, {vr(ACC + 16 * t + 4 * q, 4)} offset:{t * 16384 + q * 1024}")
        e(f"k2_skipw{t}:")
    e("s_waitcnt lgkmcnt(0)")
    e("s_barrier")
    stamp(None if PSET else 9)
    OWN, OTH, YR, OUTR, TA, TB = 124, 140, 188, 196, 204, 205
    c("owner gathers: tile w from the other 3 waves")
    for t in range(4):
        e(f"s_cmp_lg_u32 s{sW}, {t}")
        e(f"s_cbranch_scc1 k2_skipm{t}")
        for r in range(16):
            e(f"v_mov_b32 v{OWN + r}, v{ACC + 16 * t + r}")
        e(f"k2_skipm{t}:")
    e(f"s_lshl_b32 s{sT0}, s{sW}, 14")
    e("v_lshlrev_b32 v4, 4, v1")
    e(f"v_add_u32 v4, s{sT0}, v4")
    for k in range(1, 4):
        e(f"s_add_u32 s{sT1}, s{sW}, {k}")
        e(f"s_and_b32 s{sT1}, s{sT1}, 3")
        e(f"s_lshl_b32 s{sT1}, s{sT1}, 12")
        e(f"v_add_u32 v5, s{sT1}, v4")
        for q in range(4):
            e(f"ds_read_b128 {vr(OTH + 16 * (k - 1) + 4 * q, 4)}, v5 offset:{q * 1024}")
    c("y2 tr reads: c0 = 8q + 4g")
    e("v_and_b32 v4, 15, v1")
    e("v_lshrrev_b32 v5, 2, v4")
    e("v_lshl_add_u32 v5, v3, 2, v5")
    e("v_lshlrev_b32 v5, 6, v5")
    e("v_lshrrev_b32 v6, 4, v1")
    e("v_and_b32 v6, 1, v6")
    e("v_lshl_add_u32 v5, v6, 5, v5")
    e("v_and_b32 v6, 3, v4")
    e("v_lshl_add_u32 v5, v6, 3, v5")
    e(f"s_lshl_b32 s{sT1}, s{sW}, 11")
    e(f"s_add_u32 s{sT1}, s{sT1}, {K2_Y2}")
    e(f"v_add_u32 v5, s{sT1}, v5")
    e("s_waitcnt lgkmcnt(8)")
    for q in range(4):
        e(f"ds_read_b64_tr_b16 {vr(YR + 2 * q, 2)}, v5 offset:{q * 512}")
    e(f"ds_read_b64 {vr(NR, 2)}, v27")
    e("s_waitcnt vmcnt(0) lgkmcnt(0)")
    for r in range(16):
        e(f"v_add_f32 v{OWN + r}, v{OWN + r}, v{OTH + r}")
        e(f"v_add_f32 v{OTH + 16 + r}, v{OTH + 16 + r}, v{OTH + 32 + r}")
    for r in range(16):
        e(f"v_add_f32 v{OWN + r}, v{OWN + r}, v{OTH + 16 + r}")
    for q in range(4):
        for h2 in range(2):
            x = XR + 2 * q + h2
            y = YR + 2 * q + h2
            b = OWN + 4 * q + 2 * h2
            e(f"v_lshlrev_b32 v4, 16, v{x}")
            e(f"v_and_b32 v5, 0xffff0000, v{x}")
            e(f"v_fma_f32 v7, v4, v{NR}, v{NR + 1}")
            e(f"v_fma_f32 v6, v5, v{NR}, v{NR + 1}")
            e("v_cvt_pk_bf16_f32 v6, v7, v6")
            e("v_lshlrev_b32 v7, 16, v6")
            e("v_and_b32 v6, 0xffff0000, v6")
            e(f"v_lshlrev_b32 v{TA}, 16, v{y}")
            e(f"v_and_b32 v{TB}, 0xffff0000, v{y}")
            e(f"v_mul_f32 v7, v7, v{TA}")
            e(f"v_mul_f32 v6, v6, v{TB}")
            e("v_cvt_pk_bf16_f32 v6, v7, v6")
            e("v_lshlrev_b32 v7, 16, v6")
            e("v_and_b32 v6, 0xffff0000, v6")
            e("v_add_f32 v7, v4, v7")
            e("v_add_f32 v6, v5, v6")
            e("v_cvt_pk_bf16_f32 v6, v7, v6")
            e(f"v_cvt_pk_bf16_f32 v{TA}, v{b}, v{b + 1}")
            e("v_lshlrev_b32 v7, 16, v6")
            e("v_and_b32 v6, 0xffff0000, v6")
            e(f"v_lshlrev_b32 v{TB}, 16, v{TA}")
            e(f"v_and_b32 v{TA}, 0xffff0000, v{TA}")
            e(f"v_add_f32 v7, v7, v{TB}")
            e(f"v_add_f32 v6, v6, v{TA}")
            e(f"v_cvt_pk_bf16_f32 v{OUTR + 2 * q + h2}, v7, v6")
    e("s_nop 1")
    for qq in range(2):
        o = OUTR + 4 * qq
        e(f"v_permlane32_swap_b32 v{o}, v{o + 2}")
        e(f"v_permlane32_swap_b32 v{o + 1}, v{o + 3}")
        e(f"buffer_store_dwordx4 {vr(o, 4)}, v{vOut}, {sr(S_OUT, 4)}, 0 offen offset:{32 * qq}{OSC}")
    e("g2_exit:")
    stamp_flush(S_WS, WS_PROF)
    e("s_endpgm")
    flush_ool()
    e("g2_helper:")
    c("helper wave: publish the ready mask of the 11 GEMM1 tiles of row block mt2/2 (own mailbox)")
    e(f"v_mov_b32 v26, {K2_MASK}")
    e(f"s_cmp_lg_u32 s{sNPRE}, 0")
    e("s_cbranch_scc1 g2_h1")
    e("v_mov_b32 v13, 0")
    e("ds_write_b32 v26, v13")
    e("s_waitcnt lgkmcnt(0)")
    e("s_barrier")
    e("g2_h1:")
    zcheck()
    e("s_lshl_b32 s79, s2, 8")
    e(f"s_add_u32 s79, s79, {WS_MB}")
    e("v_and_b32 v15, 31, v0")
    e("v_lshlrev_b32 v15, 2, v15")
    e("s_mov_b32 s80, 0")
    e("g2_hp:")
    e(f"buffer_load_dword v14, v15, {sr(S_WS, 4)}, s79 offen sc1")
    e("s_waitcnt vmcnt(0)")
    e("v_cmp_ne_u32 vcc, 0, v14")
    e("s_add_u32 s80, s80, 1")
    e("s_lshr_b32 s81, vcc_lo, 1")
    e("s_and_b32 s81, s81, vcc_lo")
    e("s_and_b32 s81, s81, 0x155555")
    e("v_mov_b32 v13, s81")
    e("ds_write_b32 v26, v13")
    e("s_cmp_eq_u32 s81, 0x155555")
    e("s_cbranch_scc1 g2_hd")
    e("s_cmp_lt_u32 s80, 0x40000")
    e("s_cbranch_scc1 g2_hp")
    e("g2_hd:")
    c("row stats of the 64 rows -> LDS")
    e("v_lshlrev_b32 v5, 2, v1")
    e(f"s_lshl_b32 s{sT1}, s{sMT}, 9")
    e(f"s_add_u32 s{sT1}, s{sT1}, {WS_ST}")
    for j in range(2):
        e(f"s_mov_b32 m0, {K2_STATS + 256 * j}")
        e(f"buffer_load_dword v5, {sr(S_WS, 4)}, s{sT1} offen lds")
        e(f"s_add_u32 s{sT1}, s{sT1}, 256")
    c("wait for conv group nt2, stage the four y2T tiles")
    pollmask(79, 0xff << MB_C, S_WS, first=14)
    e("v_lshrrev_b32 v5, 2, v1")
    e("v_lshlrev_b32 v5, 12, v5")
    e("v_and_b32 v6, 3, v1")
    e("v_lshl_add_u32 v5, v6, 4, v5")
    e(f"s_lshl_b32 s{sT1}, s{sNT}, 18")
    e(f"s_lshl_b32 s{sT0}, s{sMT}, 7")
    e(f"s_add_u32 s{sT1}, s{sT1}, s{sT0}")
    e(f"s_add_u32 s{sT1}, s{sT1}, {WS_Y2}")
    for w in range(4):
        mi, ni = w >> 1, w & 1
        for j in range(2):
            e(f"s_mov_b32 m0, {K2_Y2 + w * 2048 + j * 1024}")
            e(f"s_add_u32 s{sT0}, s{sT1}, {(ni * 32 + j * 16) * 4096 + mi * 64}")
            e(f"buffer_load_dwordx4 v5, {sr(S_WS, 4)}, s{sT0} offen lds")
    e("s_waitcnt vmcnt(0) lgkmcnt(0)")
    e("s_barrier")
    e("s_branch g2_exit")


def descriptor(name, nv):
    L.append(".p2align 6")
    L.append(f".amdhsa_kernel {name}")
    L.append(f"  .amdhsa_next_free_vgpr {nv}")
    L.append("  .amdhsa_next_free_sgpr 102")
    L.append(f"  .amdhsa_accum_offset {nv}")
    L.append("  .amdhsa_group_segment_fixed_size 0")
    L.append("  .amdhsa_kernarg_size 104")
    L.append("  .amdhsa_user_sgpr_count 2")
    L.append("  .amdhsa_user_sgpr_kernarg_segment_ptr 1")
    L.append("  .amdhsa_system_sgpr_workgroup_id_x 1")
    L.append(".end_amdhsa_kernel")


def main():
    hdr = open(f"cdna_kernels/{NAME}.s.ref").read().split("\n")
    for line in hdr:
        if line.startswith("; Override") or line.startswith("; grid=") or "@launch" in line:
            continue
        if not line.startswith(";"):
            break
        L.append(line)
    L.append(f"; @launch kernel=k1_kernel grid=(256,1,1) block=(512,1,1) lds=163840")
    L.append('.amdgcn_target "amdgcn-amd-amdhsa--gfx950"')
    L.append(".text")
    kernel1()
    L.append('.section .rodata,"a"')
    descriptor("k1_kernel", 256)
    out = sys.argv[1] if len(sys.argv) > 1 else f"cdna_kernels/{NAME}.s"
    open(out, "w").write("\n".join(L) + "\n")


if __name__ == "__main__":
    main()
```

```python
import sys

NAME = "parallel_sum__ssm_conv_h3__glu_gated_bilinear__prompt"

WS_H = 0
HP = 2816
WS_H_BYTES = 2048 * HP
WS_Y2 = 0x600000
WS_ST = 0x800000
WS_XN = 0xA00000
WS_KV = 0xC00000
WS_MB = 0x900000
ZOFF = 16
ZN = 16

import os
K1MAP = int(os.environ.get('K1MAP', '1'))
WBL2 = int(os.environ.get('WBL2', '0'))
STC = os.environ.get('STC', '' if WBL2 else ' sc1')
PREF = int(os.environ.get('PREF', '1'))
PREF2 = int(os.environ.get('PREF2', '1'))
PREF3 = int(os.environ.get('PREF3', '2'))
PSLEEP = int(os.environ.get('PSLEEP', '1'))
CSLEEP = int(os.environ.get('CSLEEP', '0'))
ISLEEP = int(os.environ.get('ISLEEP', '0'))
KV16 = int(os.environ.get('KV16', '0'))
MIDN = int(os.environ.get('MIDN', '5'))
ASW = int(os.environ.get('ASW', '1'))
NODMA = int(os.environ.get('NODMA', '0'))
K2ROT_A = int(os.environ.get('K2ROT_A', '1'))
K2ROT_B = int(os.environ.get('K2ROT_B', '2'))
PROFB = int(os.environ.get('PROFB', '0'))
EBW = 0
LPF = int(os.environ.get('LPF', '0'))
LATE2 = int(os.environ.get('LATE2', '1'))
PSET = int(os.environ.get('PSET', '0'))
KROT = int(os.environ.get('KROT', '0'))
ASLEEP = int(os.environ.get('ASLEEP', '0'))
SKDEF = int(os.environ.get('SKDEF', '1'))
PLH = int(os.environ.get('PLH', '-1'))
PLO = int(os.environ.get('PLO', '-1'))
PLY = int(os.environ.get('PLY', '0'))
PLK = int(os.environ.get('PLK', '0'))
OSC = os.environ.get('OSC', '')
CIL = int(os.environ.get('CIL', '1'))
L = []


def e(s=""):
    L.append("    " + s if s and not s.endswith(":") else s)


def c(s):
    L.append("    ; " + s)


PROF = len(sys.argv) > 2 and sys.argv[2] == "prof"
WS_PROF = 0xE00000
_stamp = [0]


SPAIR = [6, 8, 10, 12, 14, 88, 90, 92, 94, 96, 100]


def stamp(k=None):
    if not PROF or k is None or k is True:
        return
    if k == 0:
        e("s_memrealtime s[98:99]")
        e("s_waitcnt lgkmcnt(0)")
        e("v_writelane_b32 v255, s98, 63")
        for p in SPAIR:
            e(f"s_mov_b32 s{p}, 0")
    e(f"s_memtime s[{SPAIR[k]}:{SPAIR[k] + 1}]")


def stamp_flush(srd, base):
    if not PROF:
        return
    stamp(10)
    if os.environ.get('DIAG'):
        a, b, wg, mul = [int(x) for x in os.environ['DIAG'].split(',')]
        e("s_waitcnt lgkmcnt(0)")
        e(f"s_cmp_lg_u32 s2, {wg}")
        e("s_cbranch_scc1 diag_done")
        e("v_readfirstlane_b32 s98, v0")
        e("s_nop 3")
        e("s_cmp_lg_u32 s98, 0")
        e("s_cbranch_scc1 diag_done")
        e(f"s_sub_u32 s98, s{SPAIR[b]}, s{SPAIR[a]}")
        e(f"s_mul_i32 s98, s98, {mul}")
        e("s_min_u32 s98, s98, 400000")
        e("diag_l:")
        e("s_memtime s[6:7]")
        e("s_waitcnt lgkmcnt(0)")
        e(f"s_sub_u32 s6, s6, s{SPAIR[10]}")
        e("s_cmp_lt_u32 s6, s98")
        e("s_cbranch_scc1 diag_l")
        e("diag_done:")
        return
    e("s_memrealtime s[98:99]")
    e("s_waitcnt lgkmcnt(0)")
    e("v_writelane_b32 v255, s98, 62")
    for k, p in enumerate(SPAIR):
        e(f"v_writelane_b32 v255, s{p}, {k}")
    e("v_lshrrev_b32 v253, 6, v0")
    e("v_lshl_add_u32 v253, s2, 3, v253")
    e("v_lshlrev_b32 v253, 8, v253")
    e("v_and_b32 v254, 63, v0")
    e("v_lshl_add_u32 v253, v254, 2, v253")
    e(f"v_add_u32 v253, {base}, v253")
    e(f"buffer_store_dword v255, v253, {sr(srd, 4)}, 0 offen")


OOL = []


class ool:
    def __init__(self, label):
        self.label = label

    def __enter__(self):
        global L
        self.saved = L
        L = []
        L.append(f"{self.label}:")

    def __exit__(self, *a):
        global L
        L.append(f"    s_branch {self.label}_ret")
        OOL.extend(L)
        L = self.saved
        L.append(f"{self.label}_ret:")


def flush_ool():
    L.extend(OOL)
    OOL.clear()


def vr(a, n=1):
    return f"v{a}" if n == 1 else f"v[{a}:{a + n - 1}]"


def sr(a, n=1):
    return f"s{a}" if n == 1 else f"s[{a}:{a + n - 1}]"


def make_srd(d, ptr, nbytes):
    e(f"s_mov_b32 s{d}, s{ptr}")
    e(f"s_and_b32 s{d + 1}, s{ptr + 1}, 0xffff")
    e(f"s_mov_b32 s{d + 2}, {nbytes}")
    e(f"s_mov_b32 s{d + 3}, 0x00020000")


P_Q, P_K, P_V, P_SH, P_SK, P_SD, P_BX, P_WG = 16, 18, 20, 22, 24, 26, 28, 30
P_WU, P_WD, P_OUT, P_DBG, P_WS = 32, 34, 36, 38, 40


def load_ptrs():
    e("s_load_dwordx16 s[16:31], s[0:1], 0")
    e("s_load_dwordx8 s[32:39], s[0:1], 64")
    e("s_load_dwordx2 s[40:41], s[0:1], 96")


S_DB2 = 84
_lbl = [0]


sZ = 82


def zload():
    e(f"s_load_dword s{sZ}, {sr(P_DBG, 2)}, {ZOFF}")


MB_H, MB_C, MB_KV, MB_CS, MB_ST = 0, 22, 56, 32, 48


def zcheck():
    _lbl[0] += 1
    n = _lbl[0]
    e(f"s_cmp_ge_u32 s{sZ}, 1")
    e(f"s_cbranch_scc1 sig_go{n}")
    make_srd(S_DB2, P_DBG, 256)
    e(f"s_mov_b32 s79, {ZOFF}")
    poll(79, 1, slp=8)
    e(f"sig_go{n}:")


def signal(sW, S_WS, mode, sIdx, sWord, wave=0):
    _lbl[0] += 1
    n = _lbl[0]
    if mode == "c":
        e(f"s_cmp_lg_u32 s{sW}, {wave}")
        e(f"s_cbranch_scc1 sig_skip{n}")
    zcheck()
    e("v_and_b32 v14, 63, v0")
    if mode == "h":
        e(f"s_lshl_b32 s79, s{sIdx}, 1")
        e(f"s_bfe_u32 s80, s{sW}, 0x10001")
        e("s_add_u32 s79, s79, s80")
        e("v_mov_b32 v12, s79")
        e("v_mov_b32 v13, v14")
    else:
        e("v_mov_b32 v12, v14")
        e(f"v_mov_b32 v13, s{sIdx}")
    e("v_and_b32 v15, 3, v12")
    e("v_lshl_add_u32 v15, v13, 2, v15")
    e("v_lshrrev_b32 v12, 2, v12")
    e("v_lshl_add_u32 v12, v15, 3, v12")
    e("v_lshlrev_b32 v12, 8, v12")
    if mode == "h":
        e(f"s_lshl_b32 s79, s{sWord}, 1")
        e(f"s_and_b32 s80, s{sW}, 1")
        e("s_add_u32 s79, s79, s80")
        e("s_lshl_b32 s79, s79, 2")
    else:
        e(f"s_lshl_b32 s79, s{sWord}, 2")
    e(f"s_add_u32 s79, s79, {WS_MB + 4 * (MB_H if mode == 'h' else MB_C)}")
    e("v_mov_b32 v13, 1")
    e(f"v_cmp_gt_u32 vcc, {8 if mode == 'h' else 32}, v14")
    if mode == "h":
        e("s_waitcnt vmcnt(0)")
        stamp(5)
    e("s_and_saveexec_b64 s[70:71], vcc")
    e(f"buffer_store_dword v13, v12, {sr(S_WS, 4)}, s79 offen sc1")
    e("s_mov_b64 exec, s[70:71]")
    e(f"sig_skip{n}:")


def pollmask(sOff, mask, srd, first=None):
    _lbl[0] += 1
    n = _lbl[0]
    if first is not None:
        e(f"v_cmp_ne_u32 vcc, 0, v{first}")
        e(f"s_and_b32 s81, vcc_lo, {mask}")
        e(f"s_cmp_eq_u32 s81, {mask}")
        e(f"s_cbranch_scc1 polled{n}")
    e("v_and_b32 v15, 31, v0")
    e("v_lshlrev_b32 v15, 2, v15")
    e("s_mov_b32 s80, 0")
    e(f"poll{n}:")
    e(f"buffer_load_dword v14, v15, {sr(srd, 4)}, s{sOff} offen sc1")
    e("s_waitcnt vmcnt(0)")
    e("v_cmp_ne_u32 vcc, 0, v14")
    e("s_add_u32 s80, s80, 1")
    e(f"s_and_b32 s81, vcc_lo, {mask}")
    e(f"s_cmp_eq_u32 s81, {mask}")
    e(f"s_cbranch_scc1 polled{n}")
    if PSLEEP:
        e(f"s_sleep {PSLEEP}")
    e("s_cmp_lt_u32 s80, 0x40000")
    e(f"s_cbranch_scc1 poll{n}")
    e(f"polled{n}:")


def poll(sOff, target, srd=None, slp=None):
    srd = S_DB2 if srd is None else srd
    _lbl[0] += 1
    n = _lbl[0]
    e(f"v_mov_b32 v15, s{sOff}")
    e("s_mov_b32 s80, 0")
    e(f"poll{n}:")
    e(f"buffer_load_dword v14, v15, {sr(srd, 4)}, 0 offen sc1")
    e("s_waitcnt vmcnt(0)")
    e("v_readfirstlane_b32 s81, v14")
    e("s_nop 3")
    e("s_add_u32 s80, s80, 1")
    e(f"s_cmp_ge_u32 s81, {target}")
    e(f"s_cbranch_scc1 polled{n}")
    if slp or PSLEEP:
        e(f"s_sleep {slp or PSLEEP}")
    e("s_cmp_lt_u32 s80, 0x40000")
    e(f"s_cbranch_scc1 poll{n}")
    e(f"polled{n}:")


K1_NCONV = 64
K1_NGEMM = 176
K1_BUF = [131072, 0, 32768, 65536, 98304]


K1_STG = 49152
K1_EX = 147456
K2_MASK = 160064


def mask_init():
    e(f"v_mov_b32 v14, {K2_MASK}")
    e("v_mov_b32 v12, 0")
    e("v_mov_b32 v13, 0")
    e("ds_write_b64 v14, v[12:13]")


AUXOFF = 132
WS_CS = 0x880000
WS_SP = 0x8C0000


def zadd(sW, wait=None):
    _lbl[0] += 1
    n = _lbl[0]
    e(f"s_cmp_lg_u32 s{sW}, 4")
    e(f"s_cbranch_scc1 zadd{n}")
    if wait is not None:
        e(f"s_waitcnt vmcnt({wait})")
        stamp(1)
    make_srd(S_DB2, P_DBG, 256)
    e("v_mov_b32 v14, 1")
    e(f"v_mov_b32 v15, {ZOFF}")
    e("v_cmp_eq_u32 vcc, 0, v1")
    e("s_and_saveexec_b64 s[70:71], vcc")
    e(f"buffer_atomic_add v14, v15, {sr(S_DB2, 4)}, 0 offen sc1")
    e("s_mov_b64 exec, s[70:71]")
    e(f"zadd{n}:")


S_WD2, sKB2, sBI, sROT, sLB2, sNPRE, sND, sL0 = 20, 24, 25, 26, 27, 28, 30, 31
vDB2 = 252
K2_SB = [6, 7, 8, 0, 1, 2, 5, 3, 4, 5, 3, 4]


def g2_setup(sW, npre):
    c("GEMM2 B state: x = id%8, j = id/8 : mt2 = 4x + (j&3), nt2 = j>>2")
    make_srd(S_WD2, P_WD, 1376 * 1024)
    e("s_lshr_b32 s3, s2, 3")
    e("s_lshr_b32 s4, s3, 2")
    e("s_and_b32 s3, s3, 3")
    e(f"s_mul_i32 s{sROT}, s4, {K2ROT_A}")
    e(f"s_mul_i32 s3, s3, {K2ROT_B}")
    e(f"s_add_u32 s{sROT}, s{sROT}, s3")
    e(f"s_and_b32 s3, s{sW}, 1")
    e(f"s_sub_u32 s{sND}, 6, s3")
    for _ in range((7 * K2ROT_A + 3 * K2ROT_B) // 5):
        e(f"s_cmp_ge_u32 s{sROT}, s{sND}")
        e(f"s_cselect_b32 s3, s{sND}, 0")
        e(f"s_sub_u32 s{sROT}, s{sROT}, s3")
    e(f"s_mov_b32 s{sBI}, s{sROT}")
    e(f"s_and_b32 s3, s{sW}, 3")
    e(f"s_lshl_b32 s{sLB2}, s3, 12")
    e("s_mul_i32 s3, s3, 11")
    e("s_add_u32 s3, s3, 1")
    e(f"s_lshr_b32 s{sL0}, s3, 1")
    e(f"s_lshl_b32 s{sKB2}, s{sL0}, 16")
    e("s_lshl_b32 s4, s4, 7")
    e(f"s_add_u32 s{sKB2}, s{sKB2}, s4")
    e(f"s_mov_b32 s{sNPRE}, {npre}")
    c("B DMA lane offsets: row = l/8, chunk' = l%8; global chunk = chunk' ^ (((row>>1)&1)<<2)")
    e("v_lshrrev_b32 v4, 3, v1")
    e("v_and_b32 v5, 7, v1")
    e("v_lshrrev_b32 v6, 1, v4")
    e("v_and_b32 v6, 1, v6")
    e("v_lshlrev_b32 v6, 2, v6")
    e("v_xor_b32 v5, v5, v6")
    e("v_lshlrev_b32 v5, 4, v5")
    e(f"v_lshl_add_u32 v{vDB2}, v4, 10, v5")
    e(f"s_lshr_b32 s3, s{sW}, 2")
    e(f"s_lshl_b32 s29, s3, 11")
    e(f"s_add_u32 s29, s29, s{sLB2}")
    e(f"s_lshl_b32 s5, s3, 14")
    e(f"s_add_u32 s5, s5, s{sKB2}")


def out_pre_addr(sW, vd, srd):
    e("s_and_b32 s3, s2, 7")
    e("s_lshl_b32 s3, s3, 2")
    e("s_lshr_b32 s4, s2, 3")
    e("s_and_b32 s4, s4, 3")
    e("s_add_u32 s3, s3, s4")
    e("s_lshl_b32 s3, s3, 3")
    e(f"s_add_u32 s3, s3, s{sW}")
    e("s_lshl_b32 s3, s3, 13")
    e("s_lshr_b32 s4, s2, 5")
    e("s_lshl_b32 s4, s4, 7")
    e("s_add_u32 s3, s3, s4")
    e(f"v_lshrrev_b32 v{vd}, 3, v1")
    e(f"v_lshlrev_b32 v{vd}, 10, v{vd}")
    e("v_and_b32 v4, 7, v1")
    e(f"v_lshl_add_u32 v{vd}, v4, 4, v{vd}")
    e(f"v_add_u32 v{vd}, s3, v{vd}")


def g2_adv(sidx):
    return [f"s_add_u32 s{sidx}, s{sidx}, 1", f"s_cmp_ge_u32 s{sidx}, s{sND}", f"s_cselect_b32 s{sidx}, 0, s{sidx}"]


def g2_early(i):
    g = []
    for j in range(2):
        x = []
        if j == 0:
            x += [f"s_lshl_b32 s3, s{sBI}, 16", "s_add_u32 s3, s3, s5"]
        x += [f"s_add_u32 m0, s29, {K2_SB[i] * 16384 + j * 1024}",
              f"s_add_u32 s4, s3, {8 * j * 1024 + (i & 1) * 32768}",
              f"buffer_load_dwordx4 v{vDB2}, {sr(S_WD2, 4)}, s4 offen lds"]
        if j == 1 and i & 1:
            x += g2_adv(sBI)
        g.append(x)
    return g


def k1_gemm():
    S_X, S_WG, S_WU, S_WS = 44, 48, 52, 56
    sMT, sNT, sW, sT0, sT1, sW0, sMW, sROW = 60, 61, 62, 63, 64, 65, 66, 67
    sSB, sDS, sIT, sDB, sAUX = 68, 69, 72, 73, 83
    AF = 16
    ACC = 144
    BF = 208
    vDMA, vB0, vB1, vBc0, vBc1, vHoff = 240, 241, 242, 243, 244, 245
    vXD, vA0, vCS, vST, vXD1 = 40, 41, 42, 43, 39
    vAk = 44
    CSR = 80
    e("k1_gemm:")
    e("s_sub_u32 s3, s2, %d" % K1_NCONV)
    c("k = 22*(t%8) + t/8 ; mh = k/88 ; rem = k%88 ; nt = rem/8 ; mt = mh*8 + rem%8")
    e("s_and_b32 s4, s3, 7")
    e("s_mul_i32 s4, s4, 22")
    e("s_lshr_b32 s5, s3, 3")
    e("s_add_u32 s4, s4, s5")
    e("s_cmp_ge_u32 s4, 88")
    e("s_cselect_b32 s5, 88, 0")
    e(f"s_cselect_b32 s{sMT}, 8, 0")
    e("s_sub_u32 s4, s4, s5")
    e(f"s_lshr_b32 s{sNT}, s4, 3")
    e("s_and_b32 s4, s4, 7")
    e(f"s_add_u32 s{sMT}, s{sMT}, s4")
    e("v_lshrrev_b32 v2, 6, v0")
    e("v_and_b32 v1, 63, v0")
    e(f"v_readfirstlane_b32 s{sW}, v2")
    c("x DMA lane offset: row = l>>3, src chunk = (l&7) ^ (row&7)")
    e("v_lshrrev_b32 v2, 3, v1")
    e("v_and_b32 v3, 7, v1")
    if ASW:
        e("v_lshrrev_b32 v4, 4, v1")
        e("v_xor_b32 v3, v3, v4")
    else:
        e("v_xor_b32 v3, v3, v2")
    e("v_lshlrev_b32 v3, 4, v3")
    e(f"v_lshl_add_u32 v{vXD}, v2, 10, v3")
    e(f"v_xor_b32 v{vXD1}, {64 if ASW else 0}, v{vXD}")
    c("W DMA lane offsets")
    e("v_lshrrev_b32 v12, 4, v1")
    e("v_and_b32 v13, 15, v1")
    e("v_lshlrev_b32 v14, 2, v12")
    e("v_xor_b32 v13, v13, v14")
    e("v_lshlrev_b32 v13, 4, v13")
    e("v_mul_u32_u24 v14, 2752, v12")
    e(f"v_add_u32 v{vDMA}, v13, v14")
    e(f"s_mul_i32 s{sW0}, s{sW}, {8 * 2752}")
    e(f"s_lshl_b32 s{sT0}, s{sNT}, 8")
    e(f"s_add_u32 s{sW0}, s{sW0}, s{sT0}")
    e(f"s_lshl_b32 s{sMW}, s{sW}, 11")
    e(f"s_lshl_b32 s{sROW}, s{sMT}, 17")
    e(f"s_lshl_b32 s{sT0}, s{sW}, 14")
    e(f"s_add_u32 s{sROW}, s{sROW}, s{sT0}")
    e(f"s_mov_b32 s{sDS}, 0")
    e(f"s_mov_b32 s{sDB}, s{sMW}")
    e(f"s_mov_b32 s{sSB}, s{sROW}")
    if KROT:
        c("K order rotated per XCD (spreads the cold fetches over the memory channels)")
        if KROT == 1:
            e(f"s_and_b32 s{sIT}, s2, 7")
        elif KROT == 2:
            e(f"s_and_b32 s{sIT}, s2, 3")
            e(f"s_lshl_b32 s{sIT}, s{sIT}, 1")
        elif KROT == 3:
            e(f"s_and_b32 s{sIT}, s{sMT}, 7")
        elif KROT == 4:
            e(f"s_and_b32 s{sIT}, s{sNT}, 7")
        e(f"s_lshl_b32 s{sT0}, s{sIT}, 7")
        e(f"s_add_u32 s{sROW}, s{sROW}, s{sT0}")
        e(f"s_mul_i32 s{sT0}, s{sIT}, {64 * 2752}")
        e(f"s_add_u32 s{sW0}, s{sW0}, s{sT0}")
    e("s_waitcnt lgkmcnt(0)")
    stamp(0)
    make_srd(S_X, P_Q, 2048 * 1024)
    make_srd(S_WG, P_WG, 512 * 2752)
    make_srd(S_WU, P_WU, 512 * 2752)
    make_srd(S_WS, P_WS, 0x1000000)

    def dma_groups():
        g = []
        for j in range(2):
            g.append([f"s_add_u32 m0, s{sDB}, {32768 + j * 1024}",
                      f"s_add_u32 s{sT0}, s{sROW}, {j * 8192}",
                      f"buffer_load_dwordx4 v{vXD1 if j else vXD}, {sr(S_X, 4)}, s{sT0} offen lds"])
        for part in range(2):
            for j in range(2):
                g.append([f"s_add_u32 m0, s{sDB}, {part * 16384 + j * 1024}",
                          f"s_add_u32 s{sT0}, s{sW0}, {4 * j * 2752}",
                          f"buffer_load_dwordx4 v{vDMA}, {sr(S_WU if part else S_WG, 4)}, s{sT0} offen lds"])
        g[-1] += [f"s_add_u32 s{sROW}, s{sROW}, 128",
                  f"s_add_u32 s{sW0}, s{sW0}, {64 * 2752}"]
        if KROT:
            g[-1] += [f"s_add_u32 s{sIT}, s{sIT}, 1",
                      f"s_cmp_eq_u32 s{sIT}, 8",
                      f"s_cselect_b32 s{sT0}, 1024, 0",
                      f"s_cselect_b32 s{sT1}, {512 * 2752}, 0",
                      f"s_sub_u32 s{sROW}, s{sROW}, s{sT0}",
                      f"s_sub_u32 s{sW0}, s{sW0}, s{sT1}"]
        g[-1] += [
                  f"s_add_u32 s{sDS}, s{sDS}, {K1_STG}",
                  f"s_cmp_ge_u32 s{sDS}, {3 * K1_STG}",
                  f"s_cselect_b32 s{sDS}, 0, s{sDS}",
                  f"s_add_u32 s{sDB}, s{sDS}, s{sMW}"]
        return g

    def dma_slab():
        for g in dma_groups():
            for x in g:
                e(x)

    STG = int(os.environ.get('STG', '0'))

    def linpf():
        c("linear prefetch of a slice of Wg, Wu, x (DRAM friendly)")
        e("s_sub_u32 s3, s2, %d" % K1_NCONV)
        e("s_lshl_b32 s3, s3, 3")
        e(f"s_add_u32 s3, s3, s{sW}")
        e("s_lshl_b32 s3, s3, 10")
        e("v_lshlrev_b32 v4, 4, v1")
        e(f"buffer_load_dwordx4 v[80:83], v4, {sr(S_WG, 4)}, s3 offen")
        e(f"buffer_load_dwordx4 v[80:83], v4, {sr(S_WU, 4)}, s3 offen")
        e(f"buffer_load_dwordx4 v[80:83], v4, {sr(S_X, 4)}, s3 offen")
        e(f"s_add_u32 s3, s3, {1408 * 1024}")
        e(f"buffer_load_dwordx4 v[80:83], v4, {sr(S_X, 4)}, s3 offen")
    if LPF == 1:
        linpf()
    dma_slab()
    if LPF == 2:
        linpf()
    if STG & 1:
        e("s_barrier")
    if STG & 4:
        e("s_sleep 8")
    dma_slab()
    if STG & 2:
        e("s_barrier")
    if STG & 8:
        e("s_sleep 8")
    if not LATE2:
        dma_slab()
    if LPF == 3:
        linpf()
    if PSET:
        stamp(8)
    S_OWN, S_OTH = 20, 24
    c("partial sums source + L2 prefetch: W rows (mt%8)*64.. ; own part = mt/8 (summed), other part prefetch only")
    e(f"s_cmp_ge_u32 s{sMT}, 8")
    for i in range(4):
        e(f"s_cselect_b32 s{S_OWN + i}, s{S_WU + i}, s{S_WG + i}")
        e(f"s_cselect_b32 s{S_OTH + i}, s{S_WG + i}, s{S_WU + i}")
    e(f"s_and_b32 s{sT0}, s{sMT}, 7")
    e(f"s_mul_i32 s{sT0}, s{sT0}, {64 * 2752}")
    e(f"s_lshl_b32 s{sT1}, s{sNT}, 8")
    e(f"s_add_u32 s{sT0}, s{sT0}, s{sT1}")
    e(f"s_lshl_b32 s{sT1}, s{sW}, 5")
    e(f"s_add_u32 s18, s{sT1}, s{sT0}")
    e(f"s_add_u32 s19, s18, {32 * 2752}")
    e("v_lshrrev_b32 v12, 1, v1")
    e("v_mul_u32_u24 v12, 2752, v12")
    e("v_and_b32 v13, 1, v1")
    e("v_lshl_add_u32 v76, v13, 4, v12")
    e(f"s_mul_i32 s{sT1}, s{sW}, {8 * 2752}")
    e(f"s_add_u32 s28, s{sT1}, s{sT0}")
    e("v_lshrrev_b32 v12, 4, v1")
    e(f"v_mul_u32_u24 v12, {2 * 2752}, v12")
    e("v_and_b32 v13, 15, v1")
    e("v_lshl_add_u32 v77, v13, 4, v12")
    c("x rows 16w + l/4, bytes (nt&7)*128 + (l%4)*32 + {0,16}")
    e(f"s_and_b32 s{sT1}, s{sNT}, 7")
    e(f"s_lshl_b32 s{sT1}, s{sT1}, 7")
    e(f"s_add_u32 s29, s{sT1}, s{sSB}")
    e("v_lshrrev_b32 v12, 2, v1")
    e("v_and_b32 v13, 3, v1")
    e("v_lshlrev_b32 v13, 5, v13")
    e("v_lshl_add_u32 v78, v12, 10, v13")
    PFL = [f"buffer_load_dwordx4 v[48:51], v76, {sr(S_OWN, 4)}, s18 offen",
           f"buffer_load_dwordx4 v[52:55], v76, {sr(S_OWN, 4)}, s19 offen",
           f"buffer_load_dwordx4 v[64:67], v78, {sr(S_X, 4)}, s29 offen",
           f"buffer_load_dwordx4 v[68:71], v78, {sr(S_X, 4)}, s29 offen offset:16",
           f"buffer_load_dwordx4 v[56:59], v77, {sr(S_OTH, 4)}, s28 offen",
           f"buffer_load_dwordx4 v[60:63], v77, {sr(S_OTH, 4)}, s28 offen offset:2752"]
    c("partial store addresses")
    vPC, vPS = 72, 73
    e(f"s_lshl_b32 s{sT0}, s{sNT}, 1")
    e(f"s_lshr_b32 s{sT1}, s{sMT}, 3")
    e(f"s_add_u32 s{sT0}, s{sT0}, s{sT1}")
    e(f"s_lshl_b32 s{sT0}, s{sT0}, 3")
    e(f"s_and_b32 s{sT1}, s{sMT}, 7")
    e(f"s_add_u32 s{sT0}, s{sT0}, s{sT1}")
    e(f"s_lshl_b32 s{sT0}, s{sT0}, 10")
    e(f"s_lshl_b32 s{sT1}, s{sW}, 7")
    e(f"s_add_u32 s{sT0}, s{sT0}, s{sT1}")
    e(f"s_add_u32 s{sT0}, s{sT0}, {WS_CS}")
    e("v_and_b32 v12, 1, v1")
    e(f"v_lshl_add_u32 v{vPC}, v12, 5, s{sT0}")
    e("v_lshrrev_b32 v12, 1, v1")
    e("v_and_b32 v13, 1, v12")
    e(f"v_lshl_add_u32 v{vPC}, v13, 4, v{vPC}")
    e("v_lshrrev_b32 v12, 1, v12")
    e(f"v_lshl_add_u32 v{vPC}, v12, 6, v{vPC}")
    e(f"s_lshl_b32 s{sT0}, s{sMT}, 4")
    e(f"s_add_u32 s{sT0}, s{sT0}, s{sNT}")
    e(f"s_lshl_b32 s{sT0}, s{sT0}, 10")
    e(f"s_lshl_b32 s{sT1}, s{sW}, 7")
    e(f"s_add_u32 s{sT0}, s{sT0}, s{sT1}")
    e(f"s_add_u32 s{sT0}, s{sT0}, {WS_SP}")
    e("v_lshrrev_b32 v12, 2, v1")
    e(f"v_lshl_add_u32 v{vPS}, v12, 3, s{sT0}")
    e("s_mov_b32 s74, 0x3f80")
    e("s_mov_b32 s75, 0x3f800000")
    e("s_mov_b32 s76, 0x3f803f80")
    e(f"s_cmp_eq_u32 s{sW}, 4")
    e("s_cselect_b32 s77, 1, 0")
    e(f"s_cmp_eq_u32 s{sW}, 0")
    e("s_cselect_b32 s78, 3, 99")
    e("s_cselect_b32 s5, 4, 99")
    e("s_lshl_b32 s83, s2, 8")
    e(f"s_add_u32 s83, s83, {WS_MB + 128}")
    for r in range(12):
        e(f"v_mov_b32 v{24 + r}, 0")
    c("A frag read address: 32768 + r*128 + ((2kk+g) ^ (r&7))*16 ; r = (w%4)*32 + l%32 ; kk via xor kk<<5")
    e(f"s_and_b32 s{sT0}, s{sW}, 3")
    e(f"s_lshl_b32 s{sT0}, s{sT0}, 5")
    e("v_and_b32 v2, 31, v1")
    e(f"v_add_u32 v6, s{sT0}, v2")
    if ASW:
        e("v_lshrrev_b32 v7, 1, v2")
        e("v_and_b32 v7, 7, v7")
    else:
        e("v_and_b32 v7, 7, v2")
    e("v_lshrrev_b32 v8, 5, v1")
    e("v_xor_b32 v7, v7, v8")
    e("v_lshlrev_b32 v7, 4, v7")
    e("v_lshl_add_u32 v7, v6, 7, v7")
    e(f"v_add_u32 v{vA0}, 32768, v7")
    c("partial row stats address: WS_SP + mt*16384 + r*8 (+ slot*1024)")
    e(f"s_lshl_b32 s{sT1}, s{sMT}, 14")
    e(f"s_add_u32 s{sT1}, s{sT1}, {WS_SP}")
    e(f"v_lshl_add_u32 v{vST}, v6, 3, s{sT1}")
    c("h store offset: (mt*128 + (w%4)*32 + l/8)*HP + nt*256 + nh*128 + (l%8)*16")
    e(f"s_lshl_b32 s{sT1}, s{sMT}, 7")
    e(f"s_add_u32 s{sT1}, s{sT1}, s{sT0}")
    e("v_lshrrev_b32 v6, 3, v1")
    e(f"v_add_u32 v6, s{sT1}, v6")
    e(f"v_mov_b32 v7, {HP}")
    e("v_mul_lo_u32 v6, v6, v7")
    e(f"s_lshr_b32 s{sT0}, s{sW}, 2")
    e(f"s_lshl_b32 s{sT0}, s{sT0}, 7")
    e(f"s_lshl_b32 s{sT1}, s{sNT}, 8")
    e(f"s_add_u32 s{sT0}, s{sT0}, s{sT1}")
    e(f"v_add_u32 v6, s{sT0}, v6")
    e("v_and_b32 v9, 7, v1")
    e(f"v_lshl_add_u32 v{vHoff}, v9, 4, v6")
    if PLH >= 0:
        c("pre-touch address of the own h tile: row l/2, 64 B half l%2")
        e(f"v_readfirstlane_b32 s{sT1}, v{vHoff}")
        e("v_lshrrev_b32 v36, 1, v1")
        e(f"v_mul_u32_u24 v36, {HP}, v36")
        e("v_and_b32 v37, 1, v1")
        e("v_lshl_add_u32 v36, v37, 6, v36")
        e(f"v_add_u32 v36, s{sT1}, v36")
    if PLO >= 0:
        out_pre_addr(sW, 37, 84)
    c("partial cs address: WS_CS + (nt*2 + g)*8192 + nh*512 + ((l%32)/8)*128 + (l%8)*8 (+ j*1024)")
    e(f"s_lshr_b32 s{sT0}, s{sW}, 2")
    e(f"s_lshl_b32 s{sT0}, s{sT0}, 9")
    e(f"s_lshl_b32 s{sT1}, s{sNT}, 14")
    e(f"s_add_u32 s{sT0}, s{sT0}, s{sT1}")
    e(f"s_add_u32 s{sT0}, s{sT0}, {WS_CS}")
    e(f"v_lshl_add_u32 v{vCS}, v8, 13, s{sT0}")
    e(f"v_lshl_add_u32 v{vCS}, v9, 3, v{vCS}")
    e("v_lshrrev_b32 v7, 3, v2")
    e(f"v_lshl_add_u32 v{vCS}, v7, 7, v{vCS}")
    c("B tr-read lane addresses for tiles T0=2nh, T1=2nh+1")
    e("v_and_b32 v2, 15, v1")
    e("v_lshrrev_b32 v6, 2, v2")
    e("v_lshrrev_b32 v7, 5, v1")
    e("v_lshl_add_u32 v7, v7, 3, v6")
    e("v_lshlrev_b32 v7, 8, v7")
    e("v_lshrrev_b32 v8, 4, v1")
    e("v_and_b32 v8, 1, v8")
    e("v_lshlrev_b32 v8, 5, v8")
    e("v_add_u32 v7, v7, v8")
    e("v_and_b32 v8, 3, v2")
    e("v_lshlrev_b32 v8, 3, v8")
    e("v_add_u32 v7, v7, v8")
    e(f"s_lshr_b32 s{sT0}, s{sW}, 2")
    e(f"s_lshl_b32 s{sT0}, s{sT0}, 1")
    e(f"v_xor_b32 v8, s{sT0}, v6")
    e(f"v_lshl_add_u32 v{vB0}, v8, 6, v7")
    e("v_xor_b32 v8, 1, v8")
    e(f"v_lshl_add_u32 v{vB1}, v8, 6, v7")
    if os.environ.get('BLIN'):
        e(f"v_lshlrev_b32 v{vB0}, 3, v1")
        e(f"v_add_u32 v{vB1}, 512, v{vB0}")
    if os.environ.get('ALIN'):
        e(f"v_lshlrev_b32 v{vA0}, 4, v1")
        e(f"v_add_u32 v{vA0}, 32768, v{vA0}")

    vAD = 112
    for t in range(3):
        e(f"v_add_u32 v{vAD + 6 * t}, {K1_STG * t}, v{vB0}")
        e(f"v_add_u32 v{vAD + 6 * t + 1}, {K1_STG * t}, v{vB1}")
        e(f"v_add_u32 v{vAD + 6 * t + 2}, {K1_STG * t}, v{vA0}")
        for kk in range(1, 4):
            e(f"v_xor_b32 v{vAD + 6 * t + 2 + kk}, {32 * kk}, v{vAD + 6 * t + 2}")

    def rlist(s, kk):
        st = kk & 1
        ad = vAD + 6 * (s % 3)
        r = [f"ds_read_b128 {vr(AF + 4 * st, 4)}, v{ad + 2 + kk}"]
        for ti in range(4):
            part, T = ti >> 1, ti & 1
            for u in range(2):
                off = part * 16384 + (16 * kk + 4 * u) * 256
                r.append(f"ds_read_b64_tr_b16 {vr(BF + 16 * st + 4 * ti + 2 * u, 2)}, v{ad + T} offset:{off}")
        return r

    def side_first():
        s = []
        PA, PT = 24, 32
        for row in range(2):
            for d in range(4):
                x = 48 + 4 * row + d
                s += [f"v_dot2c_f32_bf16 v{PA + 2 * d}, s74, v{x}", f"v_dot2c_f32_bf16 v{PA + 2 * d + 1}, s75, v{x}"]
        for i in range(8):
            s += [f"v_dot2c_f32_bf16 v{PT + (i & 1)}, s76, v{64 + i}",
                  f"v_dot2c_f32_bf16 v{PT + 2 + (i & 1)}, v{64 + i}, v{64 + i}"]
        s += ["s_nop 3"]
        for sh in (2, 4, 8):
            for r in range(8):
                s.append(f"v_add_f32_dpp v{PA + r}, v{PA + r}, v{PA + r} row_ror:{sh} row_mask:0xf bank_mask:0xf")
        s += [f"v_add_f32 v{PT}, v{PT}, v{PT + 1}", f"v_add_f32 v{PT + 1}, v{PT + 2}, v{PT + 3}"]
        for sw in ("v_permlane16_swap_b32", "v_permlane32_swap_b32"):
            for r in range(8):
                s.append(f"v_mov_b32 v{4 + r}, v{PA + r}")
            for r in range(8):
                s.append(f"{sw} v{4 + r}, v{PA + r}")
            qp = "[1,0,3,2]" if "16" in sw else "[2,3,0,1]"
            s += [f"v_add_f32_dpp v{PT}, v{PT}, v{PT} quad_perm:{qp} row_mask:0xf bank_mask:0xf",
                  f"v_add_f32_dpp v{PT + 1}, v{PT + 1}, v{PT + 1} quad_perm:{qp} row_mask:0xf bank_mask:0xf"]
            for r in range(8):
                s.append(f"v_add_f32 v{PA + r}, v{4 + r}, v{PA + r}")
        s += [("v_and_b32 v4, 3, v1", "v_cmp_eq_u32 vcc, 0, v4", "s_and_saveexec_b64 s[70:71], vcc",
               f"buffer_store_dwordx2 {vr(PT, 2)}, v{vPS}, {sr(S_WS, 4)}, 0 offen sc1",
               "s_mov_b64 exec, s[70:71]", "v_and_b32 v4, 2, v1", "v_cmp_ne_u32 vcc, 0, v4",
               f"v_cndmask_b32 v{PA}, v{PA}, v{PA + 4}, vcc", f"v_cndmask_b32 v{PA + 1}, v{PA + 1}, v{PA + 5}, vcc",
               f"v_cndmask_b32 v{PA + 2}, v{PA + 2}, v{PA + 6}, vcc", f"v_cndmask_b32 v{PA + 3}, v{PA + 3}, v{PA + 7}, vcc",
               "v_cmp_gt_u32 vcc, 8, v1", "s_and_b64 exec, s[70:71], vcc",
               f"buffer_store_dwordx4 {vr(PA, 4)}, v{vPC}, {sr(S_WS, 4)}, 0 offen sc1",
               "s_mov_b64 exec, s[70:71]",
               "s_cmp_eq_u32 s77, 0", "s_cbranch_scc1 k1_nozl",
               f"s_mov_b32 s{S_DB2}, s{P_DBG}", f"s_and_b32 s{S_DB2 + 1}, s{P_DBG + 1}, 0xffff",
               f"s_mov_b32 s{S_DB2 + 2}, 256", f"s_mov_b32 s{S_DB2 + 3}, 0x00020000",
               f"v_mov_b32 v15, {ZOFF}",
               f"buffer_load_dword v74, v15, {sr(S_DB2, 4)}, 0 offen sc1",
               "k1_nozl:")]
        return s

    def stats_math(SX, SQ, T):
        return [f"v_mul_f32 v{T}, 0x3b000000, v{SX}",
                f"v_mul_f32 v{T + 2}, 0x3b000000, v{SQ}",
                f"v_fma_f32 v{T + 2}, -v{T}, v{T}, v{T + 2}",
                f"v_max_f32 v{T + 2}, 0, v{T + 2}",
                f"v_cvt_pk_bf16_f32 v{T + 1}, v{T}, v{T + 2}",
                f"v_lshlrev_b32 v{T + 4}, 16, v{T + 1}",
                f"v_and_b32 v{T + 2}, 0xffff0000, v{T + 1}",
                f"v_add_f32 v{T + 2}, 0x3727c5ac, v{T + 2}",
                f"v_cvt_pk_bf16_f32 v{T + 2}, v{T + 2}, v{T + 2}",
                f"v_and_b32 v{T + 2}, 0xffff0000, v{T + 2}",
                f"v_sqrt_f32 v{T + 2}, v{T + 2}",
                "s_nop 0",
                f"v_cvt_pk_bf16_f32 v{T + 2}, v{T + 2}, v{T + 2}",
                f"v_and_b32 v{T + 2}, 0xffff0000, v{T + 2}",
                f"v_rcp_f32 v250, v{T + 2}",
                "s_nop 0",
                f"v_mul_f32 v251, v{T + 4}, v250",
                "v_sub_f32 v251, 0, v251"]

    VM = ["s0"] * 6 + (["lp"] * 4 if LPF == 2 else []) + ["s1"] * 6 + ([] if LATE2 else ["s2"] * 6) + (["lp"] * 4 if LPF == 3 else [])

    def emit(x, tag=None):
        e(x)
        if x.startswith("buffer_") and tag:
            VM.append(tag)

    def nwait(*tags):
        last = max(i for i, t in enumerate(VM) if t in tags)
        return len(VM) - 1 - last

    S_SIDE, S_SIG, S_MBR, S_CHK, S_PL = 1, 2, 5, 5, 6

    def body(s):
        last = s == 7
        dg = dma_groups() if (0 if LATE2 else 1) <= s <= 5 else []
        dtag = f"s{s + 2}"
        side = side_first() if s == S_SIDE else []
        nside = (len(side) + 7) // 8
        ex = []
        if s == 0:
            ex = [[x] for x in PFL]
        if s == S_PL:
            for j in range(8):
                ex.append([f"s_mov_b32 s{sT0}, {1024 * j}",
                           f"buffer_load_dwordx2 {vr(48 + 2 * j, 2)}, v{vCS}, {sr(S_WS, 4)}, s{sT0} offen"])
                ex.append([f"buffer_load_dwordx2 {vr(64 + 2 * j, 2)}, v{vST}, {sr(S_WS, 4)}, s{sT0} offen"])
        eb = []
        if s >= 6:
            for i in range(3 * (s - 6), 3 * (s - 6) + 3):
                eb += g2_early(i)
        for kk in range(4):
            st = kk & 1
            rl = rlist(s, kk + 1) if kk < 3 else (rlist(s + 1, 0) if not last else [])
            issued = 0
            for m in range(4):
                if not (kk == 3 and m > 0):
                    e(f"s_waitcnt lgkmcnt({9 - (3 + 2 * m) + issued})")
                cc = "0" if (s == 0 and kk == 0) else vr(ACC + 16 * m, 16)
                e(f"v_mfma_f32_32x32x16_bf16 {vr(ACC + 16 * m, 16)}, {vr(BF + 16 * st + 4 * m, 4)}, "
                  f"{vr(AF + 4 * st, 4)}, {cc}")
                if kk == 3 and m == 0 and not last:
                    tags = [f"s{s + 1}"] + (["pst"] if s == S_SIG else []) + (["mbr"] if s == S_CHK else [])
                    e(f"s_waitcnt vmcnt({nwait(*tags)}) lgkmcnt(0)")
                    if s == S_CHK:
                        c("wave 0: all 24 partial producers have signalled? (else poll)")
                        e(f"s_cmp_eq_u32 s{sW}, 0")
                        e("s_cbranch_scc1 k1_chk")
                        with ool("k1_chk"):
                            pollmask(83, 0xffffff, S_WS, first=75)
                    e("s_barrier")
                    if s == 4:
                        stamp(2)
                    if s == S_SIG:
                        c("wave 4: everybody's partial stores are complete -> signal the consumers")
                        e(f"s_cmp_eq_u32 s{sW}, 4")
                        e("s_cbranch_scc1 k1_psig")
                        with ool("k1_psig"):
                            psig()
                for _ in range(3):
                    if rl:
                        e(rl.pop(0))
                        issued += 1
                if dg and kk < 3 and (m >= 2 or s == 0):
                    for x in dg.pop(0):
                        emit(x, dtag)
                elif ex:
                    for _ in range(2 if s == S_PL else 1):
                        if ex:
                            for x in ex.pop(0):
                                emit(x, "pf" if s == 0 else "pl")
                if eb and not ex and (kk < 3 or s == 6):
                    for x in eb.pop(0):
                        emit(x, "eb")
                if s == 4 and kk == 1 and m == 0:
                    g2_setup(sW, 6)
                if s == PLH and kk == 0 and m == 1:
                    emit(f"buffer_load_dword v38, v36, {sr(S_WS, 4)}, 0 offen", "plh")
                if s == PLO and kk == 1 and m == 1:
                    make_srd(84, P_OUT, 2048 * 1024)
                    emit(f"buffer_load_dword v38, v37, {sr(84, 4)}, 0 offen", "plo")
                if s == S_MBR and kk == 0 and m == 0:
                    c("every wave issues it (uniform counting), only wave 0 uses it")
                    e("v_and_b32 v15, 31, v1")
                    e("v_lshlrev_b32 v15, 2, v15")
                    e(f"s_cmp_eq_u32 s{sW}, 0")
                    e("s_cselect_b64 exec, -1, 0")
                    emit(f"buffer_load_dword v75, v15, {sr(S_WS, 4)}, s83 offen sc1", "mbr")
                    e("s_mov_b64 exec, -1")
                if side and kk in (1, 2):
                    if kk == 1 and m == 0:
                        e(f"s_waitcnt vmcnt({nwait('pf') + 2})")
                    for _ in range(nside):
                        if side:
                            x = side.pop(0)
                            for y in (x if isinstance(x, tuple) else (x,)):
                                emit(y, "pst" if "store" in y else None)
                if last and kk == 3:
                    if m == 0:
                        e(f"s_waitcnt vmcnt({nwait('pl')})")
                        for j in range(1, 8):
                            e(f"v_add_f32 v48, v48, v{48 + 2 * j}")
                            e(f"v_add_f32 v49, v49, v{49 + 2 * j}")
                            e(f"v_add_f32 v64, v64, v{64 + 2 * j}")
                            e(f"v_add_f32 v65, v65, v{65 + 2 * j}")
                        e(f"s_lshl_b32 s{sT0}, s{sW}, 9")
                        e(f"s_add_u32 s{sT0}, s{sT0}, {K1_EX}")
                        e(f"v_lshl_add_u32 v4, v1, 3, s{sT0}")
                        e("ds_write_b64 v4, v[48:49]")
                        e("v_lshrrev_b32 v4, 5, v1")
                        e(f"v_lshl_add_u32 v4, v4, 4, s{sT0}")
                        e("s_waitcnt lgkmcnt(0)")
                    elif m == 1:
                        for ti in range(4):
                            part, T = ti >> 1, ti & 1
                            for q in range(4):
                                e(f"ds_read_b128 {vr(CSR + 16 * ti + 4 * q, 4)}, v4 offset:{256 * part + 128 * T + 32 * q}")
                    elif m == 2:
                        for x in stats_math(64, 65, 8):
                            e(x)
        assert not dg and not side and not ex and not eb

    def psig():
        e(f"v_readfirstlane_b32 s{sZ}, v74")
        e("s_nop 3")
        zcheck()
        c("lanes 0-15: (mt'=l, nt) ; lanes 16-26: (mt, nt'=l-16) if nt < 8")
        e("v_cmp_gt_u32 vcc, 16, v1")
        e(f"v_mov_b32 v12, s{sMT}")
        e(f"v_mov_b32 v13, s{sNT}")
        e("v_subrev_u32 v14, 16, v1")
        e("v_cndmask_b32 v12, v12, v1, vcc")
        e("v_cndmask_b32 v13, v14, v13, vcc")
        e("v_lshrrev_b32 v14, 3, v12")
        e("v_mul_u32_u24 v14, 88, v14")
        e("v_lshl_add_u32 v14, v13, 3, v14")
        e("v_and_b32 v12, 7, v12")
        e("v_add_u32 v14, v14, v12")
        e("v_mul_u32_u24 v12, 2979, v14")
        e("v_lshrrev_b32 v12, 16, v12")
        e("v_mul_u32_u24 v13, 22, v12")
        e("v_sub_u32 v13, v14, v13")
        e("v_lshl_add_u32 v12, v13, 3, v12")
        e("v_lshlrev_b32 v12, 8, v12")
        e(f"s_lshl_b32 s79, s{sMT}, 2")
        e(f"s_add_u32 s79, s79, {WS_MB + 64 * 256 + 4 * MB_CS}")
        e(f"s_lshl_b32 s80, s{sNT}, 2")
        e(f"s_add_u32 s80, s80, {WS_MB + 64 * 256 + 4 * MB_ST}")
        e("v_mov_b32 v13, s80")
        e("v_mov_b32 v14, s79")
        e("v_cndmask_b32 v13, v13, v14, vcc")
        e("v_add_u32 v12, v12, v13")
        e("v_mov_b32 v13, 1")
        e(f"s_cmp_lt_u32 s{sNT}, 8")
        e("s_cselect_b32 s79, 27, 16")
        e("v_cmp_gt_u32 vcc, s79, v1")
        e("s_and_saveexec_b64 s[70:71], vcc")
        e(f"buffer_store_dword v13, v12, {sr(S_WS, 4)}, 0 offen sc1")
        e("s_mov_b64 exec, s[70:71]")

    mask_init()
    e("s_waitcnt lgkmcnt(0)")
    if PSET:
        stamp(9)
    e(f"s_waitcnt vmcnt({nwait('s0')})")
    if PSET:
        stamp(7)
    e("s_barrier")
    stamp(1)
    for x in rlist(0, 0):
        e(x)
    for s in range(8):
        body(s)
    stamp(3)
    e("v_and_b32 v2, 31, v1")
    e("v_lshrrev_b32 v3, 5, v1")
    if 0:
        c("prefetch a slice of w_down (1 KB per wave) towards MALL for k2")
        e("s_sub_u32 s3, s2, %d" % K1_NCONV)
        e("s_lshl_b32 s3, s3, 3")
        e(f"s_add_u32 s3, s3, s{sW}")
        e("s_lshl_b32 s3, s3, 10")
        make_srd(S_X, P_WD, 1376 * 1024)
        e("v_lshlrev_b32 v6, 4, v1")
        e(f"buffer_load_dwordx4 v[224:227], v6, {sr(S_X, 4)}, s3 offen")
    RS, NM = 246, 248
    c("epilogue: h = bf16(bf16(g)*bf16(u)); transpose via wave-private LDS (4 KB at 49152 + w*4096)")
    e("s_barrier")
    e(f"s_lshl_b32 s{sT0}, s{sW}, 12")
    e(f"s_add_u32 s{sT0}, s{sT0}, 49152")
    e("v_and_b32 v4, 7, v2")
    e("v_xor_b32 v4, v4, v3")
    e("v_lshlrev_b32 v4, 4, v4")
    e("v_lshl_add_u32 v4, v2, 7, v4")
    e(f"v_add_u32 v4, s{sT0}, v4")
    e("v_lshrrev_b32 v5, 3, v1")
    e("v_and_b32 v6, 7, v1")
    e("v_xor_b32 v6, v6, v5")
    e("v_lshlrev_b32 v6, 4, v6")
    e("v_lshl_add_u32 v6, v5, 7, v6")
    e(f"v_add_u32 v6, s{sT0}, v6")
    e(f"v_mov_b32 v{RS}, v250")
    e(f"v_mov_b32 v{RS + 1}, v250")
    e(f"v_mov_b32 v{NM}, v251")
    e(f"v_mov_b32 v{NM + 1}, v251")
    e("s_waitcnt lgkmcnt(0)")
    for r in range(0, 64, 2):
        e(f"v_pk_mul_f32 {vr(CSR + r, 2)}, {vr(CSR + r, 2)}, {vr(NM, 2)}")
    for r in range(0, 64, 2):
        e(f"v_pk_fma_f32 {vr(ACC + r, 2)}, {vr(ACC + r, 2)}, {vr(RS, 2)}, {vr(CSR + r, 2)}")
    for T in range(2):
        G, U = ACC + 16 * T, ACC + 32 + 16 * T
        for qq in range(2):
            o = 16 + 4 * (2 * T + qq)
            for h2 in range(4):
                r = 8 * qq + 2 * h2
                e(f"v_cvt_pk_bf16_f32 v8, v{G + r}, v{G + r + 1}")
                e(f"v_cvt_pk_bf16_f32 v9, v{U + r}, v{U + r + 1}")
                e("v_lshlrev_b32 v10, 16, v8")
                e("v_and_b32 v11, 0xffff0000, v8")
                e("v_lshlrev_b32 v12, 16, v9")
                e("v_and_b32 v13, 0xffff0000, v9")
                e("v_mul_f32 v10, v10, v12")
                e("v_mul_f32 v11, v11, v13")
                e(f"v_cvt_pk_bf16_f32 v{o + h2}, v10, v11")
            e("s_nop 1")
            e(f"v_permlane32_swap_b32 v{o}, v{o + 2}")
            e(f"v_permlane32_swap_b32 v{o + 1}, v{o + 3}")
            e(f"v_xor_b32 v7, {(4 * T + 2 * qq) << 4}, v4")
            e(f"ds_write_b128 v7, {vr(o, 4)}")
    e(f"s_mov_b32 s{sZ}, 1")
    e(f"s_cmp_ge_u32 s{sW}, 4")
    e("s_cbranch_scc1 k1_stw")
    c("compute waves of GEMM2: early B DMAs done, h tile in LDS -> barrier 1")
    e("s_waitcnt vmcnt(0) lgkmcnt(0)")
    e("s_barrier")
    stamp(4)
    e("s_branch g2_entry")
    e("k1_stw:")
    c("store waves: own tile (nh = 1) first, then the partner's (nh = 0)")
    e("s_waitcnt lgkmcnt(0)")
    for j in range(4):
        e(f"ds_read_b128 {vr(32 + 4 * j, 4)}, v6 offset:{1024 * j}")
    e("s_waitcnt vmcnt(0)")
    c("row stats store (nt == 0, waves 4-7, lanes 0-31)")
    e(f"s_cmp_lg_u32 s{sNT}, 0")
    e("s_cbranch_scc1 k1_nostat")
    e(f"s_lshl_b32 s{sT0}, s{sMT}, 7")
    e(f"s_and_b32 s{sT1}, s{sW}, 3")
    e(f"s_lshl_b32 s{sT1}, s{sT1}, 5")
    e(f"s_add_u32 s{sT0}, s{sT0}, s{sT1}")
    e(f"s_lshl_b32 s{sT0}, s{sT0}, 3")
    e(f"s_add_u32 s{sT0}, s{sT0}, {WS_ST}")
    e("v_lshlrev_b32 v15, 3, v2")
    e("v_cmp_eq_u32 vcc, 0, v3")
    e("s_and_saveexec_b64 s[70:71], vcc")
    e(f"buffer_store_dwordx2 v[250:251], v15, {sr(S_WS, 4)}, s{sT0} offen{STC}")
    e("s_mov_b64 exec, s[70:71]")
    e("k1_nostat:")
    for j in range(4):
        e(f"s_waitcnt lgkmcnt({3 - j})")
        e(f"s_mov_b32 s{sT0}, {8 * j * HP}")
        e(f"buffer_store_dwordx4 {vr(32 + 4 * j, 4)}, v{vHoff}, {sr(S_WS, 4)}, s{sT0} offen{STC}")
    e("s_barrier")
    e("v_subrev_u32 v6, 16384, v6")
    for j in range(4):
        e(f"ds_read_b128 {vr(48 + 4 * j, 4)}, v6 offset:{1024 * j}")
    e(f"v_subrev_u32 v7, 128, v{vHoff}")
    for j in range(4):
        e(f"s_waitcnt lgkmcnt({3 - j})")
        e(f"s_mov_b32 s{sT0}, {8 * j * HP}")
        e(f"buffer_store_dwordx4 {vr(48 + 4 * j, 4)}, v7, {sr(S_WS, 4)}, s{sT0} offen{STC}")
    e("s_waitcnt lgkmcnt(0)")
    e("s_barrier")
    stamp(4)
    signal(sW, S_WS, "h", sMT, sNT)
    e("s_branch g2_entry")
    flush_ool()


def k1_aux():
    sW = 62
    e("k1_aux:")
    e("v_lshrrev_b32 v2, 6, v0")
    e("v_and_b32 v1, 63, v0")
    e(f"v_readfirstlane_b32 s{sW}, v2")
    e("s_waitcnt lgkmcnt(0)")
    stamp(0)
    e(f"s_mov_b32 s{sZ}, 0")
    g2_setup(sW, 0)
    if PLO >= 0:
        out_pre_addr(sW, 206, 84)
        make_srd(84, P_OUT, 2048 * 1024)
        e(f"buffer_load_dword v207, v206, {sr(84, 4)}, 0 offen")
    c("WG 240: zero all mailboxes (64 KB), then set the flag in d_debug")
    make_srd(48, P_WS, 0x1000000)
    make_srd(S_DB2, P_DBG, 256)
    e("s_cmp_lg_u32 s2, 240")
    e("s_cbranch_scc1 aux_nz")
    e(f"s_lshl_b32 s3, s{sW}, 13")
    e(f"s_add_u32 s3, s3, {WS_MB}")
    e("v_lshlrev_b32 v3, 4, v1")
    for r in range(4):
        e(f"v_mov_b32 v{4 + r}, 0")
    for j in range(8):
        e("buffer_store_dwordx4 v[4:7], v3, s[48:51], s3 offen sc1")
        e("s_add_u32 s3, s3, 1024")
    e("s_waitcnt vmcnt(0)")
    e("s_barrier")
    stamp(1)
    e(f"s_cmp_lg_u32 s{sW}, 0")
    e("s_cbranch_scc1 aux_nz")
    e("v_mov_b32 v14, 1")
    e(f"v_mov_b32 v15, {ZOFF}")
    e("v_cmp_eq_u32 vcc, 0, v1")
    e("s_and_saveexec_b64 s[70:71], vcc")
    e(f"buffer_store_dword v14, v15, {sr(S_DB2, 4)}, 0 offen sc1")
    e("s_mov_b64 exec, s[70:71]")
    e("aux_nz:")
    if PREF3 == 0:
        e("s_branch g2_entry")
        return
    if PREF3 == 2:
        e(f"s_cmp_lt_u32 s{sW}, 5")
        e("s_cbranch_scc1 g2_entry")
    for _ in range(ASLEEP):
        e("s_sleep 16")
    c("pull half of w_down into this XCD's L2 (86 KB per wave)")
    make_srd(44, P_WD, 1376 * 1024)
    e("s_sub_u32 s3, s2, 240")
    e("s_lshr_b32 s3, s3, 3")
    e("s_lshl_b32 s3, s3, 3")
    e(f"s_add_u32 s3, s3, s{sW}")
    e("s_mul_i32 s3, s3, 88064")
    e("v_lshlrev_b32 v3, 4, v1")
    for j in range(86):
        e(f"buffer_load_dwordx4 {vr(16 + 4 * (j % 8), 4)}, v3, s[44:47], s3 offen")
        e("s_add_u32 s3, s3, 1024")
        if j >= 32:
            e("s_waitcnt vmcnt(32)")
        if j == 41:
            stamp(2)
    e("s_waitcnt vmcnt(0)")
    stamp(5)
    e("s_branch g2_entry")


CV_R = 0
CV_RSTR = 4608
CV_KT = 0
CV_KSTR = 8320
CV_KCPY = 4160
CV_T = 98304
CV_TP = 528


def k1_conv():
    S_K, S_V, S_SK, S_WS, S_SH, S_DBG = 44, 48, 52, 56, 72, 76
    sW, sT0, sT1, sD, sG, sJ, sCG, sRB = 62, 63, 64, 65, 66, 67, 68, 69
    e("k1_conv:")
    e("v_lshrrev_b32 v2, 6, v0")
    e("v_and_b32 v1, 63, v0")
    e(f"v_readfirstlane_b32 s{sW}, v2")
    e("s_waitcnt lgkmcnt(0)")
    stamp(0)
    for _ in range(CSLEEP):
        e("s_sleep 16")
    make_srd(S_K, P_K, 2048 * 1024)
    make_srd(S_V, P_V, 2048 * 1024)
    make_srd(S_SK, P_SK, 512 * 4096)
    make_srd(S_WS, P_WS, 0x1000000)
    make_srd(S_SH, P_SH, 4096)
    make_srd(S_DBG, P_DBG, 256)
    c("G = id%8 (64-channel group, one XCD), J = id/8 (256-row block / channel sub-group), cg = 8G + J")
    e(f"s_and_b32 s{sG}, s2, 7")
    e(f"s_lshr_b32 s{sJ}, s2, 3")
    e(f"s_lshl_b32 s{sCG}, s{sG}, 3")
    e(f"s_add_u32 s{sCG}, s{sCG}, s{sJ}")
    e(f"s_mul_i32 s{sRB}, s{sW}, {CV_RSTR}")
    e(f"s_cmp_ge_u32 s{sW}, 6")
    e(f"s_mov_b32 s{sT0}, 66560")
    e(f"s_cselect_b32 s{sT0}, {147456 - 6 * CV_RSTR}, s{sT0}")
    e(f"s_add_u32 s{sRB}, s{sRB}, s{sT0}")
    c("---- kv phase: rows J*256 + 4*rg.., channels G*64 + cs*8..")
    e("v_lshrrev_b32 v2, 3, v0")
    e("v_and_b32 v3, 7, v0")
    e(f"s_lshl_b32 s{sT0}, s{sJ}, 18")
    e(f"s_lshl_b32 s{sT1}, s{sG}, 7")
    e(f"s_add_u32 s{sT0}, s{sT0}, s{sT1}")
    e("v_lshlrev_b32 v4, 12, v2")
    e("v_lshl_add_u32 v4, v3, 4, v4")
    e(f"v_add_u32 v4, s{sT0}, v4")
    e("v_subrev_u32 v5, 3072, v4")
    KD, VD, WD = 16, 44, 60
    for r in range(3):
        e(f"buffer_load_dwordx4 {vr(KD + 4 * r, 4)}, v5, {sr(S_K, 4)}, 0 offen offset:{1024 * r}")
    for r in range(4):
        e(f"buffer_load_dwordx4 {vr(KD + 12 + 4 * r, 4)}, v4, {sr(S_K, 4)}, 0 offen offset:{1024 * r}")
    for r in range(4):
        e(f"buffer_load_dwordx4 {vr(VD + 4 * r, 4)}, v4, {sr(S_V, 4)}, 0 offen offset:{1024 * r}")
    e(f"s_lshl_b32 s{sT1}, s{sG}, 9")
    e("v_lshlrev_b32 v6, 6, v3")
    e(f"v_add_u32 v6, s{sT1}, v6")
    for j in range(4):
        e(f"buffer_load_dwordx4 {vr(WD + 4 * j, 4)}, v6, {sr(S_SH, 4)}, 0 offen offset:{16 * j}")
    c("ssm_D for this wave's channel")
    e(f"s_lshl_b32 s{sT0}, s{sCG}, 4")
    e(f"s_lshl_b32 s{sT1}, s{sW}, 1")
    e(f"s_add_u32 s{sT0}, s{sT0}, s{sT1}")
    e(f"s_and_b32 s{sT1}, s{sT0}, 0xfffffffc")
    e(f"s_add_u32 s{P_SD}, s{P_SD}, s{sT1}")
    e(f"s_addc_u32 s{P_SD + 1}, s{P_SD + 1}, 0")
    e(f"s_load_dword s{sD}, {sr(P_SD, 2)}, 0")
    c("ssm_k row of this wave's channel")
    SKD = 232
    e(f"s_lshl_b32 s{sT0}, s{sCG}, 3")
    e(f"s_add_u32 s{sT0}, s{sT0}, s{sW}")
    e(f"s_lshl_b32 s{sT0}, s{sT0}, 12")
    e("v_lshlrev_b32 v8, 4, v1")
    e(f"v_add_u32 v8, s{sT0}, v8")
    def skloads():
        for j in range(4):
            e(f"buffer_load_dwordx4 {vr(SKD + 4 * j, 4)}, v8, {sr(S_SK, 4)}, 0 offen offset:{1024 * j}")
        for j in range(4):
            e(f"buffer_load_dword v{SKD + 16 + j}, v8, {sr(S_SK, 4)}, 0 offen offset:{1024 * j + 16}")
    if not SKDEF:
        skloads()
    c("kv LDS transpose position: T + (cs*8 + cc)*528 + 504 - 8 rg")
    e(f"v_mul_u32_u24 v7, {8 * CV_TP}, v3")
    e("v_lshlrev_b32 v9, 3, v2")
    e("v_sub_u32 v7, v7, v9")
    e(f"v_add_u32 v7, {CV_T + 504}, v7")
    mask_init()
    e(f"s_waitcnt vmcnt({0 if SKDEF else 8})")
    stamp(1)
    if SKDEF:
        skloads()
    e(f"s_cmp_lg_u32 s{sW}, 0")
    e("s_cbranch_scc1 k1c_nozl")
    zload()
    e("k1c_nozl:")
    KF, VF, WF = 80, 136, 200
    for cc in range(8):
        for jp in range(2):
            w = WD + 2 * cc + jp
            e(f"v_lshlrev_b32 v{WF + (2 * jp) * 8 + cc}, 16, v{w}")
            e(f"v_and_b32 v{WF + (2 * jp + 1) * 8 + cc}, 0xffff0000, v{w}")
    for i in range(28):
        e(f"v_lshlrev_b32 v{KF + 2 * i}, 16, v{KD + i}")
        e(f"v_and_b32 v{KF + 2 * i + 1}, 0xffff0000, v{KD + i}")
    for i in range(16):
        e(f"v_lshlrev_b32 v{VF + 2 * i}, 16, v{VD + i}")
        e(f"v_and_b32 v{VF + 2 * i + 1}, 0xffff0000, v{VD + i}")
    KV = 168
    for r in range(4):
        for cp in range(4):
            d = KV + 8 * r + 2 * cp
            e(f"v_pk_mul_f32 {vr(d, 2)}, {vr(KF + 8 * r + 2 * cp, 2)}, {vr(WF + 3 * 8 + 2 * cp, 2)}")
            for j in range(1, 4):
                e(f"v_pk_fma_f32 {vr(d, 2)}, {vr(KF + 8 * (r + j) + 2 * cp, 2)}, "
                  f"{vr(WF + (3 - j) * 8 + 2 * cp, 2)}, {vr(d, 2)}")
            e(f"v_pk_mul_f32 {vr(d, 2)}, {vr(d, 2)}, {vr(VF + 8 * r + 2 * cp, 2)}")
    for cc in range(8):
        o = 16 + 2 * cc
        e(f"v_cvt_pk_bf16_f32 v{o}, v{KV + 24 + cc}, v{KV + 16 + cc}")
        e(f"v_cvt_pk_bf16_f32 v{o + 1}, v{KV + 8 + cc}, v{KV + cc}")
        e(f"ds_write_b64 v7, {vr(o, 2)} offset:{cc * CV_TP}")
    e("s_waitcnt lgkmcnt(0)")
    e("s_barrier")
    c("wave w: channels 8w..8w+7 of the group: full-line stores (2 channels x 512 B per instruction)")
    e("v_lshrrev_b32 v6, 5, v1")
    e("v_and_b32 v7, 31, v1")
    e("v_lshlrev_b32 v7, 4, v7")
    e(f"v_mul_u32_u24 v9, {CV_TP}, v6")
    e("v_add_u32 v9, v9, v7")
    e(f"s_mul_i32 s{sT1}, s{sW}, {8 * CV_TP}")
    e(f"s_add_u32 s{sT1}, s{sT1}, {CV_T}")
    e(f"v_add_u32 v9, s{sT1}, v9")
    for j in range(4):
        e(f"ds_read_b128 {vr(16 + 4 * j, 4)}, v9 offset:{2 * j * CV_TP}")
    e("v_lshl_add_u32 v7, v6, 12, v7")
    e(f"s_lshl_b32 s{sT0}, s{sG}, 18")
    e(f"s_lshl_b32 s{sT1}, s{sW}, 15")
    e(f"s_add_u32 s{sT0}, s{sT0}, s{sT1}")
    e(f"s_add_u32 s{sT0}, s{sT0}, {WS_KV + 3584}")
    e(f"s_lshl_b32 s{sT1}, s{sJ}, 9")
    e(f"s_sub_u32 s{sT0}, s{sT0}, s{sT1}")
    for j in range(4):
        e(f"s_waitcnt lgkmcnt({3 - j})")
        e(f"buffer_store_dwordx4 {vr(16 + 4 * j, 4)}, v7, {sr(S_WS, 4)}, s{sT0} offen sc1")
        e(f"s_add_u32 s{sT0}, s{sT0}, 8192")
    c("meanwhile: zero pads and KT copies")
    e(f"s_mov_b32 s{sT1}, s{sRB}")
    e("v_lshlrev_b32 v6, 3, v1")
    e(f"v_add_u32 v6, s{sT1}, v6")
    e("v_mov_b32 v10, 0")
    e("v_mov_b32 v11, 0")
    e(f"ds_write_b64 v6, v[10:11] offset:{CV_R + 4096}")
    e(f"s_mul_i32 s{sT1}, s{sW}, {CV_KSTR}")
    e(f"s_add_u32 s{sT1}, s{sT1}, {CV_KT}")
    e("v_lshlrev_b32 v7, 2, v1")
    e(f"v_add_u32 v7, s{sT1}, v7")
    e("v_cmp_gt_u32 vcc, 8, v1")
    e("s_and_saveexec_b64 s[70:71], vcc")
    e("ds_write_b32 v7, v10")
    e(f"ds_write_b32 v7, v10 offset:{CV_KCPY}")
    e("s_mov_b64 exec, s[70:71]")
    e("s_waitcnt lgkmcnt(0)")
    e(f"s_lshl_b32 s{sT0}, s{sD}, 16")
    e(f"s_and_b32 s{sD}, s{sD}, 0xffff0000")
    e(f"s_bitcmp1_b32 s{sW}, 0")
    e(f"s_cselect_b32 s{sD}, s{sD}, s{sT0}")
    e("v_lshlrev_b32 v7, 4, v1")
    e(f"v_add_u32 v7, s{sT1}, v7")
    e("s_waitcnt vmcnt(4)")
    for j in range(4):
        d = SKD + 4 * j
        e(f"ds_write_b128 v7, {vr(d, 4)} offset:{32 + 1024 * j}")
        e(f"v_alignbit_b32 v12, v{d + 1}, v{d}, 16")
        e(f"v_alignbit_b32 v13, v{d + 2}, v{d + 1}, 16")
        e(f"v_alignbit_b32 v14, v{d + 3}, v{d + 2}, 16")
        e(f"v_alignbit_b32 v15, v{SKD + 16 + j}, v{d + 3}, 16")
        e(f"ds_write_b128 v7, v[12:15] offset:{CV_KCPY + 32 + 1024 * j}")
        e("s_nop 1")
    e(f"v_lshlrev_b32 v12, 16, v{SKD}")
    e("v_cmp_eq_u32 vcc, 0, v1")
    e("s_and_saveexec_b64 s[70:71], vcc")
    e(f"ds_write_b32 v7, v12 offset:{CV_KCPY + 28}")
    e("s_mov_b64 exec, s[70:71]")
    c("hand-off: all kv stores drained -> barrier -> flags to the 8 WGs of the group; then poll own mailbox")
    e("s_waitcnt vmcnt(0)")
    e("s_barrier")
    stamp(2)
    e(f"s_cmp_lg_u32 s{sW}, 0")
    e("s_cbranch_scc1 k1c_wait")
    zcheck()
    e(f"v_lshl_add_u32 v12, v1, 3, s{sG}")
    e("v_lshlrev_b32 v12, 8, v12")
    e(f"s_lshl_b32 s79, s{sJ}, 2")
    e(f"s_add_u32 s79, s79, {WS_MB + 4 * MB_KV}")
    e("v_mov_b32 v13, 1")
    e("v_cmp_gt_u32 vcc, 8, v1")
    e("s_and_saveexec_b64 s[70:71], vcc")
    e(f"buffer_store_dword v13, v12, {sr(S_WS, 4)}, s79 offen sc1")
    e("s_mov_b64 exec, s[70:71]")
    e("s_lshl_b32 s79, s2, 8")
    e(f"s_add_u32 s79, s79, {WS_MB + 128}")
    pollmask(79, 0xff << (MB_KV - 32), S_WS)
    e(f"s_mov_b32 s{sZ}, 1")
    e("k1c_wait:")
    e("s_barrier")
    c("load own channel kvR row (sc1) -> LDS R")
    e(f"v_add_u32 v8, {WS_KV}, v8")
    for j in range(4):
        e(f"buffer_load_dwordx4 {vr(16 + 4 * j, 4)}, v8, {sr(S_WS, 4)}, 0 offen offset:{1024 * j} sc1")
    e(f"s_mov_b32 s{sT0}, s{sRB}")
    e("v_lshlrev_b32 v6, 4, v1")
    e(f"v_add_u32 v6, s{sT0}, v6")
    for j in range(4):
        e(f"s_waitcnt vmcnt({3 - j})")
        e(f"ds_write_b128 v6, {vr(16 + 4 * j, 4)} offset:{CV_R + 1024 * j}")
    e("s_waitcnt lgkmcnt(0)")
    stamp(3)
    c("MFMA phase: wave w -> channel w")
    ACC = 16
    AR = [48, 112]
    BR = [80, 144]
    vKT, vR, vA = 200, 201, 202
    e("v_and_b32 v2, 15, v1")
    e("v_lshrrev_b32 v3, 4, v1")
    e("v_lshlrev_b32 v4, 1, v2")
    e("v_lshlrev_b32 v5, 4, v3")
    e("v_sub_u32 v4, v4, v5")
    e(f"v_add_u32 v4, {32 - 14}, v4")
    e("v_and_b32 v5, 1, v2")
    e("v_cmp_eq_u32 vcc, 0, v5")
    e("v_mov_b32 v5, 0")
    e(f"v_mov_b32 v6, {CV_KCPY - 2}")
    e("s_nop 1")
    e("v_cndmask_b32 v5, v5, v6, vcc")
    e("v_add_u32 v4, v4, v5")
    e(f"v_add_u32 v{vKT}, s{sT1}, v4")
    e(f"s_mov_b32 s{sT0}, s{sRB}")
    e("v_lshlrev_b32 v4, 5, v2")
    e("v_lshl_add_u32 v4, v3, 4, v4")
    e(f"v_sub_u32 v4, {CV_R + 4080 - 3584}, v4")
    e(f"v_add_u32 v{vR}, s{sT0}, v4")

    def crlist(ci, st):
        d0 = 2 * ci + 1
        r = []
        for pp in range(4):
            r.append(f"v_add_u32 v{vA + pp}, {32 * d0 + 1024 * pp}, v{vKT}")
        order = [("B", 0)] + [("A", p) for p in range(8)] + [("B", m) for m in range(1, 8)]
        for kind, x in order:
            if kind == "A":
                p = x
                o = 128 * (p & 1)
                r.append(f"ds_read2_b32 {vr(AR[st] + 4 * p, 2)}, v{vA + (p >> 1)} offset0:{o} offset1:{o + 1}")
                r.append(f"ds_read2_b32 {vr(AR[st] + 4 * p + 2, 2)}, v{vA + (p >> 1)} offset0:{o + 2} offset1:{o + 3}")
            else:
                m = x
                r.append(f"ds_read_b128 {vr(BR[st] + 4 * m, 4)}, v{vR} offset:{32 * d0 + 512 * (7 - m)}")
        return r

    def creads(ci, st):
        for x in crlist(ci, st):
            e(x)

    creads(0, 0)
    g2_setup(sW, 3)
    if PLO >= 0:
        out_pre_addr(sW, 206, 84)
        make_srd(84, P_OUT, 2048 * 1024)
        e(f"buffer_load_dword v207, v206, {sr(84, 4)}, 0 offen")
    if PLY:
        e(f"s_lshl_b32 s3, s{sCG}, 3")
        e(f"s_add_u32 s3, s3, s{sW}")
        e("s_lshl_b32 s3, s3, 12")
        e(f"s_add_u32 s3, s3, {WS_Y2}")
        e("v_lshlrev_b32 v206, 6, v1")
        e(f"buffer_load_dword v207, v206, {sr(S_WS, 4)}, s3 offen")
    for ci in range(8):
        st = ci & 1
        e("s_waitcnt lgkmcnt(0)")
        if PSET and ci in (1, 4):
            stamp(7 if ci == 1 else 9)
        rl = []
        if ci < 7:
            if CIL:
                rl = crlist(ci + 1, st ^ 1)
                for _ in range(4):
                    e(rl.pop(0))
            else:
                creads(ci + 1, st ^ 1)
        eb = []
        if 2 <= ci <= 4:
            if CIL:
                eb = g2_early(ci - 2)
            else:
                for g in g2_early(ci - 2):
                    for x in g:
                        e(x)
        for m in range(8):
            for p in range(8 - m):
                cc = "0" if (ci == 0 and m == 0) else vr(ACC + 4 * (m + p), 4)
                e(f"v_mfma_f32_16x16x32_bf16 {vr(ACC + 4 * (m + p), 4)}, {vr(AR[st] + 4 * p, 4)}, "
                  f"{vr(BR[st] + 4 * m, 4)}, {cc}")
                for _ in range(CIL):
                    if rl:
                        e(rl.pop(0))
                    elif eb:
                        for x in eb.pop(0):
                            e(x)
        assert not rl and not eb
    stamp(8 if PSET else None)
    c("epilogue: kv reads, y2 = bf16(bf16(y) + bf16(kv*D)), store y2T")
    e("v_lshlrev_b32 v4, 5, v2")
    e("v_lshl_add_u32 v4, v3, 3, v4")
    e(f"v_sub_u32 v5, {CV_R + 4088 - 3584}, v4")
    e(f"v_add_u32 v5, s{sT0}, v5")
    KVR = 48
    for n in range(8):
        e(f"ds_read_b64 {vr(KVR + 2 * n, 2)}, v5 offset:{512 * (7 - n)}")
    e(f"s_lshl_b32 s{sT1}, s{sCG}, 3")
    e(f"s_add_u32 s{sT1}, s{sT1}, s{sW}")
    e(f"s_lshl_b32 s{sT1}, s{sT1}, 12")
    e(f"s_add_u32 s{sT1}, s{sT1}, {WS_Y2}")
    e(f"v_add_u32 v6, s{sT1}, v4")
    e("s_nop 7")
    e("s_waitcnt vmcnt(0) lgkmcnt(0)")
    e(f"s_cmp_lt_u32 s{sW}, 4")
    e("s_cbranch_scc1 k1c_nb1")
    e("s_barrier")
    e("k1c_nb1:")
    for n in range(8):
        a = ACC + 4 * n
        k0, k1 = KVR + 2 * n, KVR + 2 * n + 1
        o = 80 + 2 * n
        e(f"v_cvt_pk_bf16_f32 v8, v{a}, v{a + 1}")
        e(f"v_cvt_pk_bf16_f32 v9, v{a + 2}, v{a + 3}")
        e(f"v_and_b32 v10, 0xffff0000, v{k1}")
        e(f"v_lshlrev_b32 v11, 16, v{k1}")
        e(f"v_and_b32 v12, 0xffff0000, v{k0}")
        e(f"v_lshlrev_b32 v13, 16, v{k0}")
        for t in range(4):
            e(f"v_mul_f32 v{10 + t}, s{sD}, v{10 + t}")
        e("v_cvt_pk_bf16_f32 v10, v10, v11")
        e("v_cvt_pk_bf16_f32 v12, v12, v13")
        e("v_lshlrev_b32 v14, 16, v8")
        e("v_and_b32 v15, 0xffff0000, v8")
        e("v_lshlrev_b32 v11, 16, v10")
        e("v_and_b32 v10, 0xffff0000, v10")
        e("v_add_f32 v14, v14, v11")
        e("v_add_f32 v15, v15, v10")
        e(f"v_cvt_pk_bf16_f32 v{o}, v14, v15")
        e("v_lshlrev_b32 v14, 16, v9")
        e("v_and_b32 v15, 0xffff0000, v9")
        e("v_lshlrev_b32 v13, 16, v12")
        e("v_and_b32 v12, 0xffff0000, v12")
        e("v_add_f32 v14, v14, v13")
        e("v_add_f32 v15, v15, v12")
        e(f"v_cvt_pk_bf16_f32 v{o + 1}, v14, v15")
        e(f"buffer_store_dwordx2 {vr(o, 2)}, v6, {sr(S_WS, 4)}, 0 offen offset:{512 * n}{STC}")
    stamp(4)
    e(f"s_mov_b32 s{sZ}, 1")
    e(f"s_cmp_ge_u32 s{sW}, 4")
    e("s_cbranch_scc1 k1c_w47")
    e("s_barrier")
    e("s_branch g2_entry")
    e("k1c_w47:")
    e(f"v_mov_b32 v26, {K2_MASK}")
    e("v_mov_b32 v13, 1")
    e("v_cmp_eq_u32 vcc, 0, v1")
    e("s_waitcnt vmcnt(0)")
    e("s_and_saveexec_b64 s[70:71], vcc")
    e("ds_add_u32 v26, v13 offset:4")
    e("s_mov_b64 exec, s[70:71]")
    stamp(5)
    e(f"s_cmp_lg_u32 s{sW}, 5")
    e("s_cbranch_scc1 g2_entry")
    c("wave 5: wait until all eight waves' stores are complete, then signal")
    e("s_mov_b32 s80, 0")
    e("k1c_cnt:")
    e("ds_read_b32 v15, v26 offset:4")
    e("s_waitcnt lgkmcnt(0)")
    e("v_readfirstlane_b32 s81, v15")
    e("s_add_u32 s80, s80, 1")
    e("s_nop 2")
    e("s_cmp_ge_u32 s81, 8")
    e("s_cbranch_scc1 k1c_cntd")
    e("s_sleep 2")
    e("s_cmp_lt_u32 s80, 0x400000")
    e("s_cbranch_scc1 k1c_cnt")
    e("k1c_cntd:")
    signal(sW, S_WS, "c", sG, sJ, wave=5)
    e("s_branch g2_entry")


def kernel1():
    e(".globl k1_kernel")
    e(".p2align 8")
    e(".type k1_kernel,@function")
    e("k1_kernel:")
    e("s_cmp_ge_u32 s2, 256")
    e("s_cbranch_scc1 k1_done")
    load_ptrs()
    e(f"s_cmp_lt_u32 s2, {K1_NCONV}")
    e("s_cbranch_scc1 k1_conv")
    e(f"s_cmp_lt_u32 s2, {K1_NCONV + K1_NGEMM}")
    e("s_cbranch_scc1 k1_gemm")
    k1_aux()
    k1_gemm()
    k1_conv()
    kernel2()
    e("k1_done:")
    e("s_endpgm")


K2_Y2 = 147456
K2_STATS = K2_Y2 + 8192 + 64
K2_AS = [6, 7, 8, 0, 1, 2]
K2_STEPS = 12
K2_NBR = 8
K2_NA = 6


def kernel2():
    S_H, S_WD, S_X, S_WS, S_OUT = 44, 48, 52, 56, 60
    sW, sT0, sT1, sMT, sNT, sKA, sKB, sLB = 64, 65, 66, 67, 68, 69, 70, 71
    sMASK, sW11 = 18, 19
    XR = 16
    NR = 24
    AFR = 28
    ACC = 60
    BFR = 124
    vDA, vDB, vB0, vB1, vAr, vOut = 8, 9, 10, 11, 12, 13
    e("g2_entry:")
    e("v_lshrrev_b32 v2, 6, v0")
    e("v_and_b32 v1, 63, v0")
    e(f"v_readfirstlane_b32 s{sW}, v2")
    make_srd(S_WS, P_WS, 0x1000000)
    e(f"s_cmp_gt_u32 s{sW}, 4")
    e("s_cbranch_scc1 g2_exit")
    c("x = id%8, j = id/8 : mt2 = 4x + (j&3), nt2 = j>>2")
    e("s_and_b32 s4, s2, 7")
    e("s_lshr_b32 s5, s2, 3")
    e(f"s_lshr_b32 s{sNT}, s5, 2")
    e("s_and_b32 s5, s5, 3")
    e(f"s_lshl_b32 s{sMT}, s4, 2")
    e(f"s_add_u32 s{sMT}, s{sMT}, s5")
    e(f"s_cmp_eq_u32 s{sW}, 4")
    e("s_cbranch_scc1 g2_helper")
    make_srd(S_H, P_WS, WS_H_BYTES)
    make_srd(S_X, P_Q, 2048 * 1024)
    make_srd(S_OUT, P_OUT, 2048 * 1024)
    e(f"s_mul_i32 s{sKA}, s{sMT}, {64 * HP}")
    e(f"s_cmp_eq_u32 s{sND}, 6")
    e("s_cselect_b64 s[42:43], -1, 0")
    e("s_mov_b32 s78, 49152")
    e("s_mov_b32 s83, 98304")
    e(f"s_mov_b32 s{sLB}, s{sLB2}")
    e("v_and_b32 v2, 31, v1")
    e("v_lshrrev_b32 v3, 5, v1")
    e(f"s_mov_b32 s73, s{sROT}")
    VM = []

    def adv(sidx):
        return g2_adv(sidx)

    def groups_B(i, slot):
        g = []
        for j in range(4):
            x = []
            if j == 0:
                x += [f"s_lshl_b32 s77, s{sBI}, 16", f"s_add_u32 s77, s77, s{sKB2}"]
                if i >= 10:
                    x += ["s_mov_b64 exec, s[42:43]"]
            x += [f"s_add_u32 m0, s{sLB}, {slot * 16384 + j * 1024}",
                  f"s_add_u32 s{sT0}, s77, {8 * j * 1024 + (i & 1) * 32768}",
                  f"buffer_load_dwordx4 v{vDB2}, {sr(S_WD2, 4)}, s{sT0} offen lds"]
            if j == 3:
                if i & 1:
                    x += adv(sBI)
                if i >= 10:
                    x += ["s_mov_b64 exec, -1"]
            g.append((x, f"B{i}"))
        return g

    def groups_A(q):
        g = []
        for j in range(8):
            slot = K2_AS[2 * (q % 3) + (j >> 2)]
            x = []
            if j == 0:
                x += [f"s_add_u32 s74, s73, s{sL0}", "s_and_b32 s76, s74, 30",
                      f"s_bitcmp1_b32 s{sMASK}, s76", f"s_cbranch_scc0 g2_wt{q}", ("ool", q),
                      "s_lshl_b32 s76, s74, 7", f"s_add_u32 s76, s76, s{sKA}"]
                if q == 5:
                    x += ["s_mov_b64 exec, s[42:43]"]
            x += [f"s_add_u32 m0, s{sLB}, {slot * 16384 + (j & 3) * 1024}",
                  f"s_add_u32 s{sT0}, s76, {8 * j * HP}",
                  f"buffer_load_dwordx4 v{vDB if j & 1 else vDA}, {sr(S_H, 4)}, s{sT0} offen lds"]
            if j == 7:
                x += adv(73)
                if q == 5:
                    x += ["s_mov_b64 exec, -1"]
            g.append((x, f"A{q}"))
        return g

    def emit_group(g):
        x, tag = g
        for y in x:
            if isinstance(y, tuple):
                i = y[1]
                with ool(f"g2_wt{i}"):
                    e("s_mov_b32 s80, 0")
                    e(f"g2_wl{i}:")
                    e("ds_read_b32 v15, v26")
                    e("s_waitcnt lgkmcnt(0)")
                    e(f"v_readfirstlane_b32 s{sMASK}, v15")
                    e("s_add_u32 s80, s80, 1")
                    e("s_nop 2")
                    e(f"s_bitcmp1_b32 s{sMASK}, s76")
                    e(f"s_cbranch_scc1 g2_wt{i}_ret")
                    e("s_sleep 1")
                    e("s_cmp_lt_u32 s80, 0x400000")
                    e(f"s_cbranch_scc1 g2_wl{i}")
                continue
            e(y)
            if y.startswith("buffer_"):
                VM.append(tag)

    def nwait(tag):
        last = max(i for i, t in enumerate(VM) if t == tag)
        return min(63, len(VM) - 1 - last)

    c("B steps not issued early (branch on the role)")
    e(f"s_cmp_eq_u32 s{sNPRE}, 6")
    e("s_cbranch_scc1 g2_b6")
    e(f"s_cmp_eq_u32 s{sNPRE}, 3")
    e("s_cbranch_scc1 g2_b3")
    for i in range(7):
        if i in (3, 6):
            e(f"g2_b{i}:")
        for g in groups_B(i, K2_SB[i]):
            emit_group(g)
    c("A DMA lane offsets: row = l/8, src chunk = (l%8) ^ (l/16) (^4 for odd 8-row groups)")
    e("v_lshrrev_b32 v4, 3, v1")
    e(f"v_mul_u32_u24 v4, {HP}, v4")
    e("v_and_b32 v5, 7, v1")
    e("v_lshrrev_b32 v6, 4, v1")
    e("v_xor_b32 v5, v5, v6")
    e(f"v_lshl_add_u32 v{vDA}, v5, 4, v4")
    e(f"v_xor_b32 v{vDB}, 64, v{vDA}")
    c("epilogue operand loads: tile (mi = w/2, ni = w%2)")
    e(f"s_lshr_b32 s{sT0}, s{sW}, 1")
    e(f"s_lshl_b32 s{sT0}, s{sT0}, 5")
    e(f"v_add_u32 v27, s{sT0}, v2")
    e(f"v_lshlrev_b32 v27, 3, v27")
    e(f"v_add_u32 v27, {K2_STATS}, v27")
    e(f"s_lshl_b32 s{sT1}, s{sMT}, 6")
    e(f"s_add_u32 s{sT0}, s{sT0}, s{sT1}")
    e(f"v_add_u32 v4, s{sT0}, v2")
    e(f"s_and_b32 s{sT1}, s{sW}, 1")
    e(f"s_lshl_b32 s{sT1}, s{sT1}, 6")
    e(f"s_lshl_b32 s72, s{sNT}, 7")
    e(f"s_add_u32 s{sT1}, s{sT1}, s72")
    e("v_lshlrev_b32 v5, 10, v4")
    e(f"v_add_u32 v5, s{sT1}, v5")
    e(f"v_lshl_add_u32 v{vOut}, v3, 4, v5")
    e("v_lshl_add_u32 v253, v3, 3, v5")
    c("B tr-read lane addresses")
    e("v_and_b32 v4, 15, v1")
    e("v_lshrrev_b32 v5, 2, v4")
    e("v_lshl_add_u32 v6, v3, 4, v5")
    e("v_lshlrev_b32 v6, 7, v6")
    e("v_lshrrev_b32 v7, 4, v1")
    e("v_and_b32 v7, 1, v7")
    e("v_lshl_add_u32 v6, v7, 5, v6")
    e("v_and_b32 v7, 3, v4")
    e("v_lshl_add_u32 v6, v7, 3, v6")
    e(f"v_add_u32 v6, s{sLB}, v6")
    e("v_lshrrev_b32 v7, 3, v4")
    e(f"v_lshl_add_u32 v{vB0}, v7, 6, v6")
    e("v_xor_b32 v7, 1, v7")
    e(f"v_lshl_add_u32 v{vB1}, v7, 6, v6")
    c("A read address: r*128 + ((4h+2g+s) ^ ((r>>1)&7))*16 ; s via xor 16, h via xor 64")
    e("v_lshrrev_b32 v4, 1, v2")
    e("v_and_b32 v4, 7, v4")
    e("v_lshlrev_b32 v5, 1, v3")
    e("v_xor_b32 v4, v4, v5")
    e("v_lshlrev_b32 v4, 4, v4")
    e("v_lshl_add_u32 v4, v2, 7, v4")
    e(f"v_add_u32 v{vAr}, s{sLB}, v4")
    e(f"v_xor_b32 v14, 16, v{vAr}")
    e(f"v_mov_b32 v26, {K2_MASK}")
    e(f"s_mov_b32 s{sMASK}, 0")

    c("address regs per 48 KB third: (B0, B1, A0, A1) x 3 in v[240:251]?  -> B frags end at 251, so use v[4:7] dynamically")

    def rebase(third):
        return [f"v_add_u32 v4, {third * 49152}, v{vB0}", f"v_add_u32 v5, {third * 49152}, v{vB1}",
                f"v_add_u32 v6, {third * 49152}, v{vAr}", f"v_add_u32 v7, {third * 49152}, v14"]

    def breads(i, slot):
        r = rebase(slot // 3)[:2]
        base = BFR + 16 * (i % K2_NBR)
        for s in range(2):
            for ni in range(2):
                for u in range(2):
                    r.append(f"ds_read_b64_tr_b16 {vr(base + 8 * s + 4 * ni + 2 * u, 2)}, v{5 if ni else 4} "
                             f"offset:{(slot % 3) * 16384 + (8 * s + 4 * u) * 128}")
        return r

    def areads(i):
        q, h = i >> 1, i & 1
        r = []
        for mi in range(2):
            slot = K2_AS[2 * (q % 3) + mi]
            th = ["0", "s78", "s83"][slot // 3]
            for s in range(2):
                r.append(f"v_xad_u32 v{6 + s}, v{14 if s else vAr}, {64 * h}, {th}")
            for s in range(2):
                r.append(f"ds_read_b128 {vr(AFR + 16 * (i & 1) + 8 * mi + 4 * s, 4)}, v{6 + s} "
                         f"offset:{(slot % 3) * 16384}")
        return r

    for i in range(6):
        e(f"s_waitcnt vmcnt({nwait(f'B{i}')})")
        for x in breads(i, K2_SB[i]):
            e(x)
    e("s_waitcnt lgkmcnt(0)")
    e(f"s_cmp_eq_u32 s{sNPRE}, 3")
    e("s_cbranch_scc1 g2_cv")
    e("s_barrier")
    with ool("g2_cv"):
        c("conv role: this wave's y2T stores are complete (covered by the B5 wait)")
        e("v_mov_b32 v15, 1")
        e("v_cmp_eq_u32 vcc, 0, v1")
        e("s_and_saveexec_b64 s[80:81], vcc")
        e("ds_add_u32 v26, v15 offset:4")
        e("s_mov_b64 exec, s[80:81]")
    stamp(6)
    for i in (7, 8):
        for g in groups_B(i, K2_SB[i]):
            emit_group(g)
    for q in range(3):
        for g in groups_A(q):
            emit_group(g)
    for i in (6, 7):
        e(f"s_waitcnt vmcnt({nwait(f'B{i}')})")
        for x in breads(i, K2_SB[i]):
            e(x)
    e("s_waitcnt lgkmcnt(0)")
    for g in groups_B(9, K2_SB[9]) + groups_B(10, K2_SB[10]):
        emit_group(g)
    e(f"s_waitcnt vmcnt({nwait('A0')})")
    stamp(None if PSET else 7)
    for x in areads(0):
        e(x)
    BRD = {1: 8, 4: 9, 5: 10, 7: 11}
    for i in range(K2_STEPS):
        if i == 10:
            e(f"s_cmp_eq_u32 s{sND}, 5")
            e("s_cbranch_scc1 k2_lend")
        e("s_waitcnt lgkmcnt(0)")
        dg = []
        if i & 1 and (i >> 1) + 3 < 6:
            dg += groups_A((i >> 1) + 3)
        if i == 2:
            dg += groups_B(11, K2_SB[11])
        rl, tags = [], []
        if i + 1 < K2_STEPS:
            rl = areads(i + 1)
            tags.append(f"A{(i + 1) >> 1}")
        if i in BRD:
            rl += breads(BRD[i], K2_SB[BRD[i]])
            tags.append(f"B{BRD[i]}")
        for g in dg:
            emit_group(g)
        if i == 6:
            for q in range(4):
                e(f"buffer_load_dwordx2 {vr(XR + 2 * q, 2)}, v253, {sr(S_X, 4)}, 0 offen offset:{16 * q}")
                VM.append("epi")
        if rl:
            e(f"s_waitcnt vmcnt({min(nwait(t) for t in tags)})")
            for x in rl:
                e(x)
        for s in range(2):
            for mi in range(2):
                for ni in range(2):
                    a = ACC + 16 * (2 * mi + ni)
                    bb = BFR + 16 * (i % K2_NBR) + 8 * s + 4 * ni
                    cc = "0" if i == 0 and s == 0 else vr(a, 16)
                    e(f"v_mfma_f32_32x32x16_bf16 {vr(a, 16)}, {vr(bb, 4)}, "
                      f"{vr(AFR + 16 * (i & 1) + 8 * mi + 4 * s, 4)}, {cc}")
    e("k2_lend:")
    e("s_waitcnt lgkmcnt(0)")
    e("s_nop 15")
    e("s_nop 3")
    stamp(None if PSET else 8)
    c("write non-owned partial tiles to own LDS region")
    e("v_lshlrev_b32 v4, 4, v1")
    e(f"v_add_u32 v4, s{sLB}, v4")
    for t in range(4):
        e(f"s_cmp_eq_u32 s{sW}, {t}")
        e(f"s_cbranch_scc1 k2_skipw{t}")
        for q in range(4):
            e(f"ds_write_b128 v4, {vr(ACC + 16 * t + 4 * q, 4)} offset:{t * 16384 + q * 1024}")
        e(f"k2_skipw{t}:")
    e("s_waitcnt lgkmcnt(0)")
    e("s_barrier")
    stamp(None if PSET else 9)
    OWN, OTH, YR, OUTR, TA, TB = 124, 140, 188, 196, 204, 205
    c("owner gathers: tile w from the other 3 waves")
    for t in range(4):
        e(f"s_cmp_lg_u32 s{sW}, {t}")
        e(f"s_cbranch_scc1 k2_skipm{t}")
        for r in range(16):
            e(f"v_mov_b32 v{OWN + r}, v{ACC + 16 * t + r}")
        e(f"k2_skipm{t}:")
    e(f"s_lshl_b32 s{sT0}, s{sW}, 14")
    e("v_lshlrev_b32 v4, 4, v1")
    e(f"v_add_u32 v4, s{sT0}, v4")
    for k in range(1, 4):
        e(f"s_add_u32 s{sT1}, s{sW}, {k}")
        e(f"s_and_b32 s{sT1}, s{sT1}, 3")
        e(f"s_lshl_b32 s{sT1}, s{sT1}, 12")
        e(f"v_add_u32 v5, s{sT1}, v4")
        for q in range(4):
            e(f"ds_read_b128 {vr(OTH + 16 * (k - 1) + 4 * q, 4)}, v5 offset:{q * 1024}")
    c("y2 tr reads: c0 = 8q + 4g")
    e("v_and_b32 v4, 15, v1")
    e("v_lshrrev_b32 v5, 2, v4")
    e("v_lshl_add_u32 v5, v3, 2, v5")
    e("v_lshlrev_b32 v5, 6, v5")
    e("v_lshrrev_b32 v6, 4, v1")
    e("v_and_b32 v6, 1, v6")
    e("v_lshl_add_u32 v5, v6, 5, v5")
    e("v_and_b32 v6, 3, v4")
    e("v_lshl_add_u32 v5, v6, 3, v5")
    e(f"s_lshl_b32 s{sT1}, s{sW}, 11")
    e(f"s_add_u32 s{sT1}, s{sT1}, {K2_Y2}")
    e(f"v_add_u32 v5, s{sT1}, v5")
    e("s_waitcnt lgkmcnt(8)")
    for q in range(4):
        e(f"ds_read_b64_tr_b16 {vr(YR + 2 * q, 2)}, v5 offset:{q * 512}")
    e(f"ds_read_b64 {vr(NR, 2)}, v27")
    e("s_waitcnt vmcnt(0) lgkmcnt(0)")
    for r in range(16):
        e(f"v_add_f32 v{OWN + r}, v{OWN + r}, v{OTH + r}")
        e(f"v_add_f32 v{OTH + 16 + r}, v{OTH + 16 + r}, v{OTH + 32 + r}")
    for r in range(16):
        e(f"v_add_f32 v{OWN + r}, v{OWN + r}, v{OTH + 16 + r}")
    for q in range(4):
        for h2 in range(2):
            x = XR + 2 * q + h2
            y = YR + 2 * q + h2
            b = OWN + 4 * q + 2 * h2
            e(f"v_lshlrev_b32 v4, 16, v{x}")
            e(f"v_and_b32 v5, 0xffff0000, v{x}")
            e(f"v_fma_f32 v7, v4, v{NR}, v{NR + 1}")
            e(f"v_fma_f32 v6, v5, v{NR}, v{NR + 1}")
            e("v_cvt_pk_bf16_f32 v6, v7, v6")
            e("v_lshlrev_b32 v7, 16, v6")
            e("v_and_b32 v6, 0xffff0000, v6")
            e(f"v_lshlrev_b32 v{TA}, 16, v{y}")
            e(f"v_and_b32 v{TB}, 0xffff0000, v{y}")
            e(f"v_mul_f32 v7, v7, v{TA}")
            e(f"v_mul_f32 v6, v6, v{TB}")
            e("v_cvt_pk_bf16_f32 v6, v7, v6")
            e("v_lshlrev_b32 v7, 16, v6")
            e("v_and_b32 v6, 0xffff0000, v6")
            e("v_add_f32 v7, v4, v7")
            e("v_add_f32 v6, v5, v6")
            e("v_cvt_pk_bf16_f32 v6, v7, v6")
            e(f"v_cvt_pk_bf16_f32 v{TA}, v{b}, v{b + 1}")
            e("v_lshlrev_b32 v7, 16, v6")
            e("v_and_b32 v6, 0xffff0000, v6")
            e(f"v_lshlrev_b32 v{TB}, 16, v{TA}")
            e(f"v_and_b32 v{TA}, 0xffff0000, v{TA}")
            e(f"v_add_f32 v7, v7, v{TB}")
            e(f"v_add_f32 v6, v6, v{TA}")
            e(f"v_cvt_pk_bf16_f32 v{OUTR + 2 * q + h2}, v7, v6")
    e("s_nop 1")
    for qq in range(2):
        o = OUTR + 4 * qq
        e(f"v_permlane32_swap_b32 v{o}, v{o + 2}")
        e(f"v_permlane32_swap_b32 v{o + 1}, v{o + 3}")
        e(f"buffer_store_dwordx4 {vr(o, 4)}, v{vOut}, {sr(S_OUT, 4)}, 0 offen offset:{32 * qq}{OSC}")
    e("g2_exit:")
    stamp_flush(S_WS, WS_PROF)
    e("s_endpgm")
    flush_ool()
    e("g2_helper:")
    c("helper wave: publish the ready mask of the 11 GEMM1 tiles of row block mt2/2 (own mailbox)")
    e(f"v_mov_b32 v26, {K2_MASK}")
    e(f"s_cmp_lg_u32 s{sNPRE}, 0")
    e("s_cbranch_scc1 g2_h1")
    e("v_mov_b32 v13, 0")
    e("ds_write_b32 v26, v13")
    e("s_waitcnt lgkmcnt(0)")
    e("s_barrier")
    e("g2_h1:")
    zcheck()
    e("s_lshl_b32 s79, s2, 8")
    e(f"s_add_u32 s79, s79, {WS_MB}")
    e("v_and_b32 v15, 31, v0")
    e("v_lshlrev_b32 v15, 2, v15")
    e("s_mov_b32 s80, 0")
    e("g2_hp:")
    e(f"buffer_load_dword v14, v15, {sr(S_WS, 4)}, s79 offen sc1")
    e("s_waitcnt vmcnt(0)")
    e("v_cmp_ne_u32 vcc, 0, v14")
    e("s_add_u32 s80, s80, 1")
    e("s_lshr_b32 s81, vcc_lo, 1")
    e("s_and_b32 s81, s81, vcc_lo")
    e("s_and_b32 s81, s81, 0x155555")
    e("v_mov_b32 v13, s81")
    e("ds_write_b32 v26, v13")
    e("s_cmp_eq_u32 s81, 0x155555")
    e("s_cbranch_scc1 g2_hd")
    e("s_cmp_lt_u32 s80, 0x40000")
    e("s_cbranch_scc1 g2_hp")
    e("g2_hd:")
    c("row stats of the 64 rows -> LDS")
    e("v_lshlrev_b32 v5, 2, v1")
    e(f"s_lshl_b32 s{sT1}, s{sMT}, 9")
    e(f"s_add_u32 s{sT1}, s{sT1}, {WS_ST}")
    for j in range(2):
        e(f"s_mov_b32 m0, {K2_STATS + 256 * j}")
        e(f"buffer_load_dword v5, {sr(S_WS, 4)}, s{sT1} offen lds")
        e(f"s_add_u32 s{sT1}, s{sT1}, 256")
    c("wait for conv group nt2, stage the four y2T tiles")
    pollmask(79, 0xff << MB_C, S_WS, first=14)
    e("v_lshrrev_b32 v5, 2, v1")
    e("v_lshlrev_b32 v5, 12, v5")
    e("v_and_b32 v6, 3, v1")
    e("v_lshl_add_u32 v5, v6, 4, v5")
    e(f"s_lshl_b32 s{sT1}, s{sNT}, 18")
    e(f"s_lshl_b32 s{sT0}, s{sMT}, 7")
    e(f"s_add_u32 s{sT1}, s{sT1}, s{sT0}")
    e(f"s_add_u32 s{sT1}, s{sT1}, {WS_Y2}")
    for w in range(4):
        mi, ni = w >> 1, w & 1
        for j in range(2):
            e(f"s_mov_b32 m0, {K2_Y2 + w * 2048 + j * 1024}")
            e(f"s_add_u32 s{sT0}, s{sT1}, {(ni * 32 + j * 16) * 4096 + mi * 64}")
            e(f"buffer_load_dwordx4 v5, {sr(S_WS, 4)}, s{sT0} offen lds")
    e("s_waitcnt vmcnt(0) lgkmcnt(0)")
    e("s_barrier")
    e("s_branch g2_exit")


def descriptor(name, nv):
    L.append(".p2align 6")
    L.append(f".amdhsa_kernel {name}")
    L.append(f"  .amdhsa_next_free_vgpr {nv}")
    L.append("  .amdhsa_next_free_sgpr 102")
    L.append(f"  .amdhsa_accum_offset {nv}")
    L.append("  .amdhsa_group_segment_fixed_size 0")
    L.append("  .amdhsa_kernarg_size 104")
    L.append("  .amdhsa_user_sgpr_count 2")
    L.append("  .amdhsa_user_sgpr_kernarg_segment_ptr 1")
    L.append("  .amdhsa_system_sgpr_workgroup_id_x 1")
    L.append(".end_amdhsa_kernel")


def main():
    hdr = open(f"cdna_kernels/{NAME}.s.ref").read().split("\n")
    for line in hdr:
        if line.startswith("; Override") or line.startswith("; grid=") or "@launch" in line:
            continue
        if not line.startswith(";"):
            break
        L.append(line)
    L.append(f"; @launch kernel=k1_kernel grid=(256,1,1) block=(512,1,1) lds=163840")
    L.append('.amdgcn_target "amdgcn-amd-amdhsa--gfx950"')
    L.append(".text")
    kernel1()
    L.append('.section .rodata,"a"')
    descriptor("k1_kernel", 256)
    out = sys.argv[1] if len(sys.argv) > 1 else f"cdna_kernels/{NAME}.s"
    open(out, "w").write("\n".join(L) + "\n")


if __name__ == "__main__":
    main()
```

```python
import os
import sys

NAME = "parallel_sum__ssm_conv_h3__glu_gated_bilinear__prompt"

WS_H = 0
HRT = 88 * 1024
WS_Y2 = 0x600000
WS_ST = 0x800000
WS_CS = 0x880000
WS_SP = 0x8C0000
WS_MB = 0x900000
WS_WD = 0xA00000
WDT = 88 * 2048
WS_KV = 0xC00000
ZOFF = 16
MB_H, MB_W, MB_S = 0, 22, 24
MB_CS, MB_ST, MB_KV = 64, 80, 88
MB_C = 128


def env(k, d):
    return int(os.environ.get(k, str(d)))


PSLEEP = env('PSLEEP', 1)
NI = env('NI', 2)
RPG = env('RPG', 2)
SPG = env('SPG', 6)
S_POLL = env('S_POLL', 3)
SKD = env('SKD', 1)
PFO = env('PFO', 0)
PC = env('PC', 0)
PS = env('PS', 1)
SG = env('SG', 2)
ASLEEP = env('ASLEEP', 0)
CPRIO = env('CPRIO', 2)
MAP = env('MAP', 0)
GSLEEP = env('GSLEEP', 0)
EB = env('EB', 1)
EBN = env('EBN', 22)
CGATE = env('CGATE', 0)
CSLEEP = env('CSLEEP', 0)
C8 = env('C8', 1)
XPF = env('XPF', 0)
XSL = env('XSL', 0)
ROT = env('ROT', 0)
UROT = env('UROT', 1)
APF = env('APF', 1)
BL = env('BL', 1)
CEB = env('CEB', 1)
STC = ' sc1'
STH = os.environ.get('STH', ' sc1')
STK = os.environ.get('STK', ' sc1')
HOOKF = env('HOOKF', 1)
L = []


def e(s=""):
    L.append("    " + s if s and not s.endswith(":") else s)


def c(s):
    L.append("    ; " + s)


PROF = len(sys.argv) > 2 and sys.argv[2] == "prof"
WS_PROF = 0xE00000
SPAIR = [6, 8, 10, 12, 14, 88, 90, 92, 94, 96, 100]
sRT = 83


def stamp(k=None):
    if not PROF or k is None:
        return
    if k == 0:
        e("s_memrealtime s[98:99]")
        e("s_waitcnt lgkmcnt(0)")
        e(f"s_mov_b32 s{sRT}, s98")
        for p in SPAIR:
            e(f"s_mov_b32 s{p}, 0")
    e(f"s_memtime s[{SPAIR[k]}:{SPAIR[k] + 1}]")
    e("s_waitcnt lgkmcnt(0)")


def stamp_flush(srd, base):
    if not PROF:
        return
    stamp(10)
    e("s_memrealtime s[98:99]")
    e("s_waitcnt lgkmcnt(0)")
    e("v_writelane_b32 v255, s98, 62")
    e(f"v_writelane_b32 v255, s{sRT}, 63")
    for k, p in enumerate(SPAIR):
        e(f"v_writelane_b32 v255, s{p}, {k}")
    e("v_lshrrev_b32 v253, 6, v0")
    e("v_lshl_add_u32 v253, s2, 3, v253")
    e("v_lshlrev_b32 v253, 8, v253")
    e("v_and_b32 v254, 63, v0")
    e("v_lshl_add_u32 v253, v254, 2, v253")
    e(f"v_add_u32 v253, {base}, v253")
    e(f"buffer_store_dword v255, v253, {sr(srd, 4)}, 0 offen")


OOL = []


class ool:
    def __init__(self, label):
        self.label = label

    def __enter__(self):
        global L
        self.saved = L
        L = []
        L.append(f"{self.label}:")

    def __exit__(self, *a):
        global L
        L.append(f"    s_branch {self.label}_ret")
        OOL.extend(L)
        L = self.saved
        L.append(f"{self.label}_ret:")


def flush_ool():
    L.extend(OOL)
    OOL.clear()


def vr(a, n=1):
    return f"v{a}" if n == 1 else f"v[{a}:{a + n - 1}]"


def sr(a, n=1):
    return f"s{a}" if n == 1 else f"s[{a}:{a + n - 1}]"


def make_srd(d, ptr, nbytes):
    e(f"s_mov_b32 s{d}, s{ptr}")
    e(f"s_and_b32 s{d + 1}, s{ptr + 1}, 0xffff")
    e(f"s_mov_b32 s{d + 2}, {nbytes}")
    e(f"s_mov_b32 s{d + 3}, 0x00020000")


P_Q, P_K, P_V, P_SH, P_SK, P_SD, P_BX, P_WG = 16, 18, 20, 22, 24, 26, 28, 30
P_WU, P_WD, P_OUT, P_DBG, P_WS = 32, 34, 36, 38, 40


def load_ptrs():
    e("s_load_dwordx16 s[16:31], s[0:1], 0")
    e("s_load_dwordx8 s[32:39], s[0:1], 64")
    e("s_load_dwordx2 s[40:41], s[0:1], 96")


S_DB2 = 84
S_WS = 56
_lbl = [0]
sZ = 82


def zload():
    e(f"s_load_dword s{sZ}, {sr(P_DBG, 2)}, {ZOFF}")


def zcheck():
    _lbl[0] += 1
    n = _lbl[0]
    e(f"s_cmp_ge_u32 s{sZ}, 1")
    e(f"s_cbranch_scc1 sig_go{n}")
    make_srd(S_DB2, P_DBG, 256)
    e(f"v_mov_b32 v15, {ZOFF}")
    e("s_mov_b32 s80, 0")
    e(f"zp{n}:")
    e(f"buffer_load_dword v14, v15, {sr(S_DB2, 4)}, 0 offen sc1")
    e("s_waitcnt vmcnt(0)")
    e("v_readfirstlane_b32 s81, v14")
    e("s_nop 3")
    e("s_add_u32 s80, s80, 1")
    e("s_cmp_ge_u32 s81, 1")
    e(f"s_cbranch_scc1 zd{n}")
    e("s_sleep 8")
    e("s_cmp_lt_u32 s80, 0x40000")
    e(f"s_cbranch_scc1 zp{n}")
    e(f"zd{n}:")
    e(f"s_mov_b32 s{sZ}, 1")
    e(f"sig_go{n}:")


def pollbytes(sOff, sMask, first=None):
    _lbl[0] += 1
    n = _lbl[0]
    if first is not None:
        e(f"v_cmp_ne_u32 vcc, 0, v{first}")
        e(f"s_and_b32 s81, vcc_lo, s{sMask}")
        e(f"s_cmp_eq_u32 s81, s{sMask}")
        e(f"s_cbranch_scc1 polled{n}")
    e("s_mov_b32 s80, 0")
    e(f"poll{n}:")
    e(f"buffer_load_ubyte v14, v1, {sr(S_WS, 4)}, s{sOff} offen sc1")
    e("s_waitcnt vmcnt(0)")
    e("v_cmp_ne_u32 vcc, 0, v14")
    e("s_add_u32 s80, s80, 1")
    e(f"s_and_b32 s81, vcc_lo, s{sMask}")
    e(f"s_cmp_eq_u32 s81, s{sMask}")
    e(f"s_cbranch_scc1 polled{n}")
    if PSLEEP:
        e(f"s_sleep {PSLEEP}")
    e("s_cmp_lt_u32 s80, 0x40000")
    e(f"s_cbranch_scc1 poll{n}")
    e(f"polled{n}:")


K1_NCONV = 64
K1_NGEMM = 176
STG = 49152
MISC = 147456
L_CS = MISC
L_MN = MISC + 8192
L_RS = MISC + 12288
L_ST = 163328

sSGX = 42
sWM = 43
sNU = 76
sNS = 77
sSG0, sSG1 = 78, 79


def state_init(val, a=12):
    e(f"v_mov_b32 v{a}, {val}")
    e(f"v_mov_b32 v{a + 1}, 0")
    e(f"v_mov_b32 v{a + 2}, 0")
    e(f"v_mov_b32 v{a + 3}, {L_ST}")
    e(f"ds_write_b96 v{a + 3}, {vr(a, 3)}")


def lds_wait(off, sMask):
    _lbl[0] += 1
    n = _lbl[0]
    e(f"v_mov_b32 v14, {L_ST}")
    e("s_mov_b32 s80, 0")
    e(f"lw{n}:")
    e(f"ds_read_b32 v15, v14 offset:{off}")
    e("s_waitcnt lgkmcnt(0)")
    e("v_readfirstlane_b32 s81, v15")
    e("s_add_u32 s80, s80, 1")
    e("s_nop 2")
    e(f"s_and_b32 s81, s81, s{sMask}")
    e(f"s_cmp_eq_u32 s81, s{sMask}")
    e(f"s_cbranch_scc1 lwd{n}")
    e("s_sleep 1")
    e("s_cmp_lt_u32 s80, 0x1000000")
    e(f"s_cbranch_scc1 lw{n}")
    e(f"lwd{n}:")


def sig_h(mt2, byte, t):
    e(f"s_and_b32 s{t}, s{mt2}, 3")
    e(f"s_lshl_b32 s{t}, s{t}, 3")
    e(f"s_lshr_b32 s{sSG0}, s{mt2}, 2")
    e(f"s_add_u32 s{sSG0}, s{sSG0}, s{t}")
    e(f"s_lshl_b32 s{sSG0}, s{sSG0}, 8")
    e(f"s_add_u32 s{sSG0}, s{sSG0}, s{byte}")
    e(f"s_add_u32 s{sSG0}, s{sSG0}, {WS_MB}")
    e(f"s_mov_b32 s{sSG1}, 13")


def stats_math(SX, SQ, T, RS, NM):
    return [f"v_mul_f32 v{T}, 0x3b000000, v{SX}",
            f"v_mul_f32 v{T + 2}, 0x3b000000, v{SQ}",
            f"v_fma_f32 v{T + 2}, -v{T}, v{T}, v{T + 2}",
            f"v_max_f32 v{T + 2}, 0, v{T + 2}",
            f"v_cvt_pk_bf16_f32 v{T + 1}, v{T}, v{T + 2}",
            f"v_lshlrev_b32 v{T + 4}, 16, v{T + 1}",
            f"v_and_b32 v{T + 2}, 0xffff0000, v{T + 1}",
            f"v_add_f32 v{T + 2}, 0x3727c5ac, v{T + 2}",
            f"v_cvt_pk_bf16_f32 v{T + 2}, v{T + 2}, v{T + 2}",
            f"v_and_b32 v{T + 2}, 0xffff0000, v{T + 2}",
            f"v_sqrt_f32 v{T + 2}, v{T + 2}",
            "s_nop 0",
            f"v_cvt_pk_bf16_f32 v{T + 2}, v{T + 2}, v{T + 2}",
            f"v_and_b32 v{T + 2}, 0xffff0000, v{T + 2}",
            f"v_rcp_f32 v{RS}, v{T + 2}",
            "s_nop 0",
            f"v_mul_f32 v{NM}, v{T + 4}, v{RS}",
            f"v_sub_f32 v{NM}, 0, v{NM}"]


def pk(op, d, a, b, c_=None):
    return [f"v_{op}_f32 v{d + i}, v{a + i}, v{b + i}" + (f", v{c_ + i}" if c_ is not None else "") for i in range(2)]


def epk(*a):
    for x in pk(*a):
        e(x)


class VMQ:
    def __init__(self, init=()):
        self.q = list(init)

    def emit(self, x, tag=None):
        e(x)
        if x.startswith("buffer_"):
            self.q.append(tag)

    def n(self, *tags):
        last = max(i for i, t in enumerate(self.q) if t in tags)
        return min(63, len(self.q) - 1 - last)

    def wait(self, *tags, extra=""):
        e(f"s_waitcnt vmcnt({self.n(*tags)}){extra}")


def k1_gemm():
    S_X, S_WG, S_WU = 44, 48, 52
    sMT, sNT, sW, sT0, sT1 = 60, 61, 62, 63, 64
    e("k1_gemm:")
    e("s_sub_u32 s3, s2, %d" % K1_NCONV)
    if MAP:
        c("mt = 2 (t%8) + ((t/8)&1) ; nt = t/16")
        e("s_and_b32 s4, s3, 7")
        e("s_lshl_b32 s4, s4, 1")
        e("s_bfe_u32 s5, s3, 0x10003")
        e(f"s_add_u32 s{sMT}, s4, s5")
        e(f"s_lshr_b32 s{sNT}, s3, 4")
    else:
        c("k = 22*(t%8) + t/8 ; mh = k/88 ; rem = k%88 ; nt = rem/8 ; mt = mh*8 + rem%8")
        e("s_and_b32 s4, s3, 7")
        e("s_mul_i32 s4, s4, 22")
        e("s_lshr_b32 s5, s3, 3")
        e("s_add_u32 s4, s4, s5")
        e("s_cmp_ge_u32 s4, 88")
        e("s_cselect_b32 s5, 88, 0")
        e(f"s_cselect_b32 s{sMT}, 8, 0")
        e("s_sub_u32 s4, s4, s5")
        e(f"s_lshr_b32 s{sNT}, s4, 3")
        e("s_and_b32 s4, s4, 7")
        e(f"s_add_u32 s{sMT}, s{sMT}, s4")
    e("v_lshrrev_b32 v2, 6, v0")
    e("v_and_b32 v1, 63, v0")
    e(f"v_readfirstlane_b32 s{sW}, v2")
    e("s_nop 3")
    e(f"s_cmp_ge_u32 s{sW}, 4")
    e("s_cbranch_scc1 k1_help")

    AF, BF, ACC, vAD = 16, 32, 64, 192
    vH, RSV, CO, MO = 210, 212, 216, 224
    sRH, sNH, sHB = 65, 66, 67
    e(f"s_and_b32 s{sRH}, s{sW}, 1")
    e(f"s_lshr_b32 s{sNH}, s{sW}, 1")
    c("A frag read address: 32768 + r*128 + ((2kk+g) ^ ((r>>1)&7))*16 ; r = 64 rh + 32 a + l%32")
    e(f"s_lshl_b32 s{sT0}, s{sRH}, 6")
    e("v_and_b32 v2, 31, v1")
    e(f"v_add_u32 v6, s{sT0}, v2")
    e("v_lshrrev_b32 v7, 1, v2")
    e("v_and_b32 v7, 7, v7")
    e("v_lshrrev_b32 v8, 5, v1")
    e("v_xor_b32 v7, v7, v8")
    e("v_lshlrev_b32 v7, 4, v7")
    e("v_lshl_add_u32 v7, v6, 7, v7")
    e("v_add_u32 v10, 32768, v7")
    e(f"v_lshlrev_b32 v9, 2, v6")
    e(f"v_add_u32 v9, {L_RS}, v9")
    c("B tr-read lane addresses for tiles T0=2nh, T1=2nh+1")
    e("v_and_b32 v2, 15, v1")
    e("v_lshrrev_b32 v6, 2, v2")
    e("v_lshrrev_b32 v7, 5, v1")
    e("v_lshl_add_u32 v7, v7, 3, v6")
    e("v_lshlrev_b32 v7, 8, v7")
    e("v_lshrrev_b32 v8, 4, v1")
    e("v_and_b32 v8, 1, v8")
    e("v_lshlrev_b32 v8, 5, v8")
    e("v_add_u32 v7, v7, v8")
    e("v_and_b32 v8, 3, v2")
    e("v_lshlrev_b32 v8, 3, v8")
    e("v_add_u32 v7, v7, v8")
    e(f"s_lshl_b32 s{sT0}, s{sNH}, 1")
    e(f"v_xor_b32 v8, s{sT0}, v6")
    e("v_lshl_add_u32 v11, v8, 6, v7")
    e("v_xor_b32 v8, 1, v8")
    e("v_lshl_add_u32 v12, v8, 6, v7")
    for t in range(3):
        e(f"v_add_u32 v{vAD + 6 * t}, {STG * t}, v11")
        e(f"v_add_u32 v{vAD + 6 * t + 1}, {STG * t}, v12")
        e(f"v_add_u32 v{vAD + 6 * t + 2}, {STG * t}, v10")
        for kk in range(1, 4):
            e(f"v_xor_b32 v{vAD + 6 * t + 2 + kk}, {32 * kk}, v{vAD + 6 * t + 2}")
    e(f"v_lshlrev_b32 v{vH}, 4, v1")
    c("operand addresses: cs tile (part*4 + 2nh + T), mean tile (2rh + a)")
    e(f"s_lshl_b32 s{sT0}, s{sNH}, 11")
    e(f"s_add_u32 s{sT0}, s{sT0}, {L_CS}")
    e(f"v_add_u32 v10, s{sT0}, v{vH}")
    e(f"s_lshl_b32 s{sT0}, s{sRH}, 11")
    e(f"s_add_u32 s{sT0}, s{sT0}, {L_MN}")
    e(f"v_add_u32 v11, s{sT0}, v{vH}")
    c("h store base: (4mt + 2rh)*HRT + (8nt + 4nh)*1024")
    e(f"s_lshl_b32 s{sT0}, s{sMT}, 1")
    e(f"s_add_u32 s{sT0}, s{sT0}, s{sRH}")
    e(f"s_mul_i32 s{sHB}, s{sT0}, {2 * HRT}")
    e(f"s_lshl_b32 s{sT1}, s{sNT}, 1")
    e(f"s_add_u32 s{sT1}, s{sT1}, s{sNH}")
    sig_h(sT0, sT1, 3)
    e(f"s_lshl_b32 s{sT1}, s{sT1}, 12")
    e(f"s_add_u32 s{sHB}, s{sHB}, s{sT1}")
    e(f"s_mov_b32 s{sSGX}, 0xff")
    e(f"s_mov_b32 s{sWM}, 0")
    e(f"s_mov_b32 s{sNU}, 1")
    e(f"s_mov_b32 s{sNS}, 0")
    e(f"v_mov_b32 v14, {L_ST}")
    e("v_mov_b32 v15, 1")
    e("s_waitcnt lgkmcnt(0)")
    stamp(0)
    make_srd(S_WS, P_WS, 0x1000000)
    if XPF:
        c("L2 prefetch: W rows 64(mt%8).. of the other part, x slabs 2+2(nt%3), 3+2(nt%3)")
        for _ in range(XSL):
            e("s_sleep 4")
        make_srd(S_X, P_Q, 2048 * 1024)
        e(f"s_cmp_ge_u32 s{sMT}, 8")
        e(f"s_cselect_b32 s{S_WG}, s{P_WG}, s{P_WU}")
        e(f"s_cselect_b32 s{S_WG + 1}, s{P_WG + 1}, s{P_WU + 1}")
        e(f"s_and_b32 s{S_WG + 1}, s{S_WG + 1}, 0xffff")
        e(f"s_mov_b32 s{S_WG + 2}, {512 * 2752}")
        e(f"s_mov_b32 s{S_WG + 3}, 0x00020000")
        e("v_lshrrev_b32 v2, 4, v1")
        e("v_and_b32 v3, 15, v1")
        e("v_lshlrev_b32 v3, 4, v3")
        e("v_lshl_add_u32 v4, v2, 10, v3")
        e("v_mul_u32_u24 v2, 2752, v2")
        e("v_add_u32 v3, v2, v3")
        e(f"s_and_b32 s3, s{sMT}, 7")
        e("s_lshl_b32 s3, s3, 2")
        e(f"s_add_u32 s3, s3, s{sW}")
        e(f"s_mul_i32 s3, s3, {16 * 2752}")
        e(f"s_lshl_b32 s{sT0}, s{sNT}, 8")
        e(f"s_add_u32 s3, s3, s{sT0}")
        e(f"s_mul_i32 s{sT0}, s{sNT}, 11")
        e(f"s_lshr_b32 s{sT0}, s{sT0}, 5")
        e(f"s_mul_i32 s{sT0}, s{sT0}, 3")
        e(f"s_sub_u32 s{sT0}, s{sNT}, s{sT0}")
        e(f"s_lshl_b32 s{sT0}, s{sT0}, 8")
        e(f"s_lshl_b32 s4, s{sMT}, 2")
        e(f"s_add_u32 s4, s4, s{sW}")
        e("s_lshl_b32 s4, s4, 15")
        e(f"s_add_u32 s4, s4, s{sT0}")
        e("s_add_u32 s4, s4, 256")
        for j in range(8):
            if XPF & 1:
                e(f"buffer_load_dwordx4 v[232:235], v4, {sr(S_X, 4)}, s4 offen")
                e("s_add_u32 s4, s4, 4096")
            if j < 4 and XPF & 2:
                e(f"buffer_load_dwordx4 v[236:239], v3, {sr(S_WG, 4)}, s3 offen")
                e(f"s_add_u32 s3, s3, {4 * 2752}")

    M = []
    R = []

    def rd(ins, reg, n, slab):
        R.append(dict(ins=ins, regs=set(range(reg, reg + n)), slab=slab))
        return len(R) - 1

    def rdA(s, kk, a, reg):
        return rd(f"ds_read_b128 {vr(reg, 4)}, v{vAD + 6 * (s % 3) + 2 + kk} offset:{4096 * a}", reg, 4, s)

    def rdB(s, kk, part, T, reg):
        return [rd(f"ds_read_b64_tr_b16 {vr(reg + 2 * u, 2)}, v{vAD + 6 * (s % 3) + T} "
                   f"offset:{part * 16384 + (16 * kk + 4 * u) * 256}", reg + 2 * u, 2, s) for u in range(2)]

    def mf(acc, b, a, needs, first=False):
        cc = "0" if first else vr(acc, 16)
        M.append(dict(ins=f"v_mfma_f32_32x32x16_bf16 {vr(acc, 16)}, {vr(b, 4)}, {vr(a, 4)}, {cc}", needs=needs,
                      regs=set(range(b, b + 4)) | set(range(a, a + 4)), bar=None, side=None))

    for s in range(7):
        for kk in range(4):
            st = kk & 1
            a0 = rdA(s, kk, 0, AF + 8 * st)
            b = [rdB(s, kk, ti >> 1, ti & 1, BF + 16 * st + 4 * ti) for ti in range(4)]
            a1 = rdA(s, kk, 1, AF + 8 * st + 4)
            for m in range(8):
                a, ti = m >> 2, m & 3
                mf(ACC + 16 * m, BF + 16 * st + 4 * ti, AF + 8 * st + 4 * a, [a1 if a else a0] + b[ti], s == 0 and kk == 0)
                if kk == 3 and m == 0:
                    M[-1]["bar"] = s
    VM = []

    def epilogue(a, T):
        G, U = ACC + 16 * (4 * a + T), ACC + 16 * (4 * a + 2 + T)
        rs = vr(RSV + 2 * a, 2)
        last = (a, T) == (1, 1)
        s = []
        for f in range(2):
            for r in range(8 * f, 8 * f + 8, 2):
                if last:
                    s += [f"v_pk_mul_f32 {vr(G + r, 2)}, {vr(G + r, 2)}, {rs}",
                          f"v_pk_mul_f32 {vr(U + r, 2)}, {vr(U + r, 2)}, {rs}"]
                else:
                    s += pk("mul", G + r, G + r, RSV + 2 * a) + pk("mul", U + r, U + r, RSV + 2 * a)
                s += [f"v_cvt_pk_bf16_f32 v{G + r}, 0, v{G + r}",
                      f"v_cvt_pk_bf16_f32 v{G + r + 1}, 0, v{G + r + 1}",
                      f"v_cvt_pk_bf16_f32 v{U + r}, 0, v{U + r}",
                      f"v_cvt_pk_bf16_f32 v{U + r + 1}, 0, v{U + r + 1}"]
                if last:
                    s += [f"v_pk_mul_f32 {vr(G + r, 2)}, {vr(G + r, 2)}, {vr(U + r, 2)}"]
                else:
                    s += pk("mul", G + r, G + r, U + r)
                s += [f"v_cvt_pk_bf16_f32 v{G + r // 2}, v{G + r}, v{G + r + 1}"]
            s += [f"s_add_u32 s{sT0}, s{sHB}, {a * HRT + (2 * T + f) * 1024}",
                  f"buffer_store_dwordx4 {vr(G + 4 * f, 4)}, v{vH}, {sr(S_WS, 4)}, s{sT0} offen{STH}"]
        return s

    rA = {}
    extra = []
    for gi, (a, T) in enumerate([(0, 0), (0, 1), (1, 0), (1, 1)]):
        for kk in range(4):
            n = 4 * gi + kk
            if T == 0:
                rA[kk] = rdA(7, kk, a, AF + 4 * kk)
            slot = BF + 8 * (n % 4)
            bg = rdB(7, kk, 0, T, slot)
            bu = rdB(7, kk, 1, T, slot + 4)
            mf(ACC + 16 * (4 * a + T), slot, AF + 4 * kk, [rA[kk]] + bg)
            mf(ACC + 16 * (4 * a + 2 + T), slot + 4, AF + 4 * kk, [rA[kk]] + bu)
            if gi == 0 and kk == 1:
                for aa in range(2):
                    extra.append(rd(f"ds_read_b128 {vr(MO + 4 * aa, 4)}, v11 offset:{1024 * aa}", MO + 4 * aa, 4, 7))
                    extra.append(rd(f"ds_read_b32 v{RSV + 2 * aa}, v9 offset:{128 * aa}", RSV + 2 * aa, 1, 7))
                    extra.append(rd(f"ds_read_b32 v{RSV + 2 * aa + 1}, v9 offset:{128 * aa}", RSV + 2 * aa + 1, 1, 7))
        for part in range(2):
            cid = rd(f"ds_read_b128 {vr(CO + 4 * part, 4)}, v10 offset:{4096 * part + 1024 * T}", CO + 4 * part, 4, 7)
            mf(ACC + 16 * (4 * a + 2 * part + T), CO + 4 * part, MO + 4 * a, [cid] + extra)
        M[-1]["side"] = epilogue(a, T)
    first_use = {}
    for i, m in enumerate(M):
        for r in m["needs"]:
            first_use.setdefault(r, i)
    for ri, r in enumerate(R):
        r["after"] = max([i for i in range(first_use[ri]) if M[i]["regs"] & r["regs"]], default=-1)
    LQ = []
    nxt = [0]
    slab_ok = [0]

    def issue(i, n):
        while n > 0 and nxt[0] < len(R):
            r = R[nxt[0]]
            if r["after"] > i or r["slab"] > slab_ok[0] or len(LQ) >= 14:
                break
            e(r["ins"])
            LQ.append(nxt[0])
            nxt[0] += 1
            n -= 1

    def lwait(ids):
        pend = [LQ.index(x) for x in ids if x in LQ]
        for x in ids:
            assert x < nxt[0], "read not issued"
        if pend:
            last = max(pend)
            e(f"s_waitcnt lgkmcnt({len(LQ) - 1 - last})")
            del LQ[:last + 1]

    e("s_barrier")
    stamp(1)
    issue(-1, 10)
    side = []
    for i, m in enumerate(M):
        while any(x >= nxt[0] for x in m["needs"]):
            k = nxt[0]
            issue(i - 1, 1)
            assert nxt[0] > k, (i, m, R[k], LQ)
        lwait(m["needs"])
        e(m["ins"])
        if m["bar"] is not None:
            assert all(R[x]["slab"] > m["bar"] for x in range(nxt[0], len(R)))
            e("s_waitcnt lgkmcnt(0)")
            LQ.clear()
            e("s_barrier")
            slab_ok[0] = m["bar"] + 1
            if m["bar"] == 3:
                stamp(2)
            if m["bar"] == 6:
                stamp(3)
        if m["side"]:
            side.append(("gate", i + 2))
            side.extend(m["side"])
        issue(i, RPG)
        n = SPG
        while side and n > 0:
            if isinstance(side[0], tuple):
                if side[0][1] > i:
                    break
                side.pop(0)
                continue
            e(side.pop(0))
            n -= 1
    assert not LQ and nxt[0] == len(R)
    if not BL:
        e("s_mov_b64 exec, 1")
        e("ds_add_u32 v14, v15")
        e("s_mov_b64 exec, -1")
    while side:
        x = side.pop(0)
        if isinstance(x, tuple):
            e("s_nop 15")
            e("s_nop 3")
        else:
            e(x)
    stamp(4)
    e(f"s_mov_b32 s{sZ}, 1")
    if BL:
        c("GEMM2 B fragments from LDS (staged by the helper waves)")
        e(f"s_mul_i32 s{sT0}, s{sRH}, 22528")
        e(f"s_cmp_eq_u32 s{sNH}, 0")
        e(f"s_cselect_b32 s{sT1}, {2 * STG}, 0")
        e(f"s_add_u32 s{sT0}, s{sT0}, s{sT1}")
        e(f"v_add_u32 v2, s{sT0}, v{vH}")
        e(f"s_mov_b32 s{sT0}, 15")
        lds_wait(8, sT0)
        for i in range(22):
            e(f"ds_read_b128 {vr(168 + 4 * i, 4)}, v2 offset:{1024 * i}")
        e("v_mov_b32 v15, 1")
        e("s_waitcnt lgkmcnt(0)")
        e("s_mov_b64 exec, 1")
        e("ds_add_u32 v14, v15")
        e("s_mov_b64 exec, -1")
        e(f"s_mov_b32 s{sWM}, -1")
    e("s_branch g2_unit")

    sH, sWB, sXB, sLB, sPM, sMBX = 65, 66, 67, 68, 69, 70
    sEX = 72
    S_OWN = 76
    vX0, vX1, vWD, vPO = 10, 11, 12, 13
    PW, PX = 16, 32
    T = 64
    e("k1_help:")
    e(f"s_sub_u32 s{sH}, s{sW}, 4")
    c("partial sources: W rows 64(mt%8) + 16j + l/4, cols 128nt + 32h + 8(l%4) ; x rows 128mt + 32h + 8j + l/8, K slab nt%8")
    e("v_lshrrev_b32 v2, 2, v1")
    e("v_mul_u32_u24 v2, 2752, v2")
    e("v_and_b32 v3, 3, v1")
    e("v_lshl_add_u32 v8, v3, 4, v2")
    e(f"s_and_b32 s{sT0}, s{sMT}, 7")
    e(f"s_mul_i32 s{sT0}, s{sT0}, {64 * 2752}")
    e(f"s_lshl_b32 s{sT1}, s{sNT}, 8")
    e(f"s_add_u32 s{sT0}, s{sT0}, s{sT1}")
    e(f"s_lshl_b32 s3, s{sH}, 6")
    e(f"s_add_u32 s3, s3, s{sT0}")
    e("v_lshrrev_b32 v2, 3, v1")
    e("v_and_b32 v3, 7, v1")
    e("v_lshlrev_b32 v4, 4, v3")
    e("v_lshl_add_u32 v9, v2, 10, v4")
    e(f"s_lshl_b32 s{sXB}, s{sMT}, 17")
    e(f"s_lshl_b32 s{sT0}, s{sH}, 15")
    e(f"s_add_u32 s{sXB}, s{sXB}, s{sT0}")
    e(f"s_and_b32 s4, s{sNT}, 7")
    e("s_lshl_b32 s4, s4, 7")
    e(f"s_add_u32 s4, s4, s{sXB}")
    c("x DMA lane offset: row = l>>3, src chunk = (l&7) ^ (l>>4) (^4 for odd 8-row groups)")
    e("v_lshrrev_b32 v4, 4, v1")
    e("v_xor_b32 v3, v3, v4")
    e("v_lshlrev_b32 v3, 4, v3")
    e(f"v_lshl_add_u32 v{vX0}, v2, 10, v3")
    e(f"v_xor_b32 v{vX1}, 64, v{vX0}")
    c("W DMA lane offsets")
    e("v_and_b32 v5, 15, v1")
    e("v_lshlrev_b32 v6, 2, v4")
    e("v_xor_b32 v5, v5, v6")
    e("v_lshlrev_b32 v5, 4, v5")
    e("v_mul_u32_u24 v6, 2752, v4")
    e(f"v_add_u32 v{vWD}, v5, v6")
    e(f"s_mul_i32 s{sWB}, s{sH}, {16 * 2752}")
    e(f"s_add_u32 s{sWB}, s{sWB}, s{sT1}")
    e(f"s_lshl_b32 s{sLB}, s{sH}, 12")
    e("s_waitcnt lgkmcnt(0)")
    stamp(0)
    make_srd(S_X, P_Q, 2048 * 1024)
    make_srd(S_WG, P_WG, 512 * 2752)
    make_srd(S_WU, P_WU, 512 * 2752)
    e(f"s_cmp_ge_u32 s{sMT}, 8")
    e(f"s_cselect_b32 s{S_OWN}, s{S_WU}, s{S_WG}")
    e(f"s_cselect_b32 s{S_OWN + 1}, s{S_WU + 1}, s{S_WG + 1}")
    e(f"s_mov_b32 s{S_OWN + 2}, {512 * 2752}")
    e(f"s_mov_b32 s{S_OWN + 3}, 0x00020000")
    V = VMQ()

    def pf():
        for j in range(4):
            V.emit(f"buffer_load_dwordx4 {vr(PW + 4 * j, 4)}, v8, {sr(S_OWN, 4)}, s3 offen", "pf")
            V.emit(f"buffer_load_dwordx4 {vr(PX + 4 * j, 4)}, v9, {sr(S_X, 4)}, s4 offen", "pf")
            if j < 3:
                e(f"s_add_u32 s3, s3, {16 * 2752}")
                e("s_add_u32 s4, s4, 8192")

    def dma(s):
        st = (s % 3) * STG
        for j in range(4):
            e(f"s_add_u32 m0, s{sLB}, {st + 32768 + j * 1024}")
            e(f"s_add_u32 s{sT0}, s{sXB}, {j * 8192 + 128 * s}")
            V.emit(f"buffer_load_dwordx4 v{vX1 if j & 1 else vX0}, {sr(S_X, 4)}, s{sT0} offen lds", f"s{s}")
        for j in range(4):
            e(f"s_add_u32 s{sT0}, s{sWB}, {(64 * s + 4 * j) * 2752}")
            for part in range(2):
                e(f"s_add_u32 m0, s{sLB}, {st + part * 16384 + j * 1024}")
                V.emit(f"buffer_load_dwordx4 v{vWD}, {sr(S_WU if part else S_WG, 4)}, s{sT0} offen lds", f"s{s}")

    for _ in range(GSLEEP):
        e("s_sleep 8")
    for s in range(NI):
        if s == PFO:
            pf()
        dma(s)
    if PFO == NI:
        pf()
    make_srd(S_WS, P_WS, 0x1000000)
    state_init(0, 4)
    e("s_lshl_b32 s%d, s2, 8" % sMBX)
    e(f"s_add_u32 s{sMBX}, s{sMBX}, {WS_MB + 64}")
    c("flags needed: cs partials of part h/2 (8 bytes) + stats partials (8 bytes)")
    e(f"s_lshr_b32 s{sT0}, s{sH}, 1")
    e(f"s_lshl_b32 s{sT0}, s{sT0}, 3")
    e(f"s_lshl_b32 s{sPM}, 0xff, s{sT0}")
    e(f"s_or_b32 s{sPM}, s{sPM}, 0xff0000")

    def part_cs():
        V.wait("pf")
        stamp(4)
        zload()
        c("partial column sums")
        for j in range(4):
            for d in range(4):
                e(f"v_lshlrev_b32 v{T + 8 * j + 2 * d}, 16, v{PW + 4 * j + d}")
                e(f"v_and_b32 v{T + 8 * j + 2 * d + 1}, 0xffff0000, v{PW + 4 * j + d}")
        for d in range(4):
            epk("add", T + 2 * d, T + 2 * d, T + 8 + 2 * d)
            epk("add", T + 16 + 2 * d, T + 16 + 2 * d, T + 24 + 2 * d)
        for d in range(4):
            epk("add", T + 2 * d, T + 2 * d, T + 16 + 2 * d)
        e("s_nop 1")
        for i in range(4):
            e(f"v_permlane32_swap_b32 v{T + i}, v{T + 4 + i}")
        e("s_nop 1")
        for i in range(0, 4, 2):
            epk("add", T + i, T + i, T + 4 + i)
        e("s_nop 1")
        for i in range(2):
            e(f"v_permlane16_swap_b32 v{T + i}, v{T + 2 + i}")
        e("s_nop 1")
        epk("add", T, T, T + 2)
        for sh in (4, 8):
            e("s_nop 1")
            for i in range(2):
                e(f"v_add_f32_dpp v{T + i}, v{T + i}, v{T + i} row_ror:{sh} row_mask:0xf bank_mask:0xf")
        c("store: lanes with l%16 < 4: col = 32h + 8(l%4) + 2(l/16)")
        e("v_and_b32 v2, 3, v1")
        e("v_lshrrev_b32 v3, 4, v1")
        e("v_lshlrev_b32 v3, 3, v3")
        e("v_lshl_add_u32 v2, v2, 5, v3")
        e(f"s_lshl_b32 s{sT0}, s{sNT}, 4")
        e(f"s_add_u32 s{sT0}, s{sT0}, s{sMT}")
        e(f"s_lshl_b32 s{sT0}, s{sT0}, 9")
        e(f"s_lshl_b32 s{sT1}, s{sH}, 7")
        e(f"s_add_u32 s{sT0}, s{sT0}, s{sT1}")
        e(f"s_add_u32 s{sT0}, s{sT0}, {WS_CS}")
        e("s_mov_b32 exec_lo, 0x000f000f")
        e("s_mov_b32 exec_hi, 0x000f000f")
        V.emit(f"buffer_store_dwordx2 {vr(T, 2)}, v2, {sr(S_WS, 4)}, s{sT0} offen sc1", "pst")
        e("s_mov_b64 exec, -1")

    def part_st():
        c("partial row stats")
        U = T + 8
        SS = T + 48
        for j in range(4):
            for d in range(4):
                e(f"v_lshlrev_b32 v{U + 8 * j + 2 * d}, 16, v{PX + 4 * j + d}")
                e(f"v_and_b32 v{U + 8 * j + 2 * d + 1}, 0xffff0000, v{PX + 4 * j + d}")
        for j in range(4):
            u = U + 8 * j
            q = PX + 4 * j
            epk("mul", q, u, u)
            for d in range(1, 4):
                epk("fma", q, u + 2 * d, u + 2 * d, q)
            epk("add", u, u, u + 2)
            epk("add", u + 4, u + 4, u + 6)
            epk("add", u, u, u + 4)
            e(f"v_add_f32 v{SS + 2 * j}, v{u}, v{u + 1}")
            e(f"v_add_f32 v{SS + 2 * j + 1}, v{q}, v{q + 1}")
        for ctl in ("quad_perm:[1,0,3,2]", "quad_perm:[2,3,0,1]", "row_half_mirror"):
            e("s_nop 1")
            for i in range(8):
                e(f"v_add_f32_dpp v{SS + i}, v{SS + i}, v{SS + i} {ctl} row_mask:0xf bank_mask:0xf")
        e("v_and_b32 v2, 7, v1")
        for j in range(1, 4):
            e(f"v_cmp_eq_u32 vcc, {j}, v2")
            e(f"v_cndmask_b32 v{SS}, v{SS}, v{SS + 2 * j}, vcc")
            e(f"v_cndmask_b32 v{SS + 1}, v{SS + 1}, v{SS + 2 * j + 1}, vcc")
        e("v_lshrrev_b32 v3, 3, v1")
        e("v_lshl_add_u32 v2, v2, 3, v3")
        e("v_lshlrev_b32 v2, 3, v2")
        e(f"s_lshl_b32 s{sT0}, s{sMT}, 4")
        e(f"s_add_u32 s{sT0}, s{sT0}, s{sNT}")
        e(f"s_lshl_b32 s{sT0}, s{sT0}, 10")
        e(f"s_lshl_b32 s{sT1}, s{sH}, 8")
        e(f"s_add_u32 s{sT0}, s{sT0}, s{sT1}")
        e(f"s_add_u32 s{sT0}, s{sT0}, {WS_SP}")
        e("s_mov_b32 exec_lo, 0x0f0f0f0f")
        e("s_mov_b32 exec_hi, 0x0f0f0f0f")
        V.emit(f"buffer_store_dwordx2 {vr(SS, 2)}, v2, {sr(S_WS, 4)}, s{sT0} offen sc1", "pst")
        e("s_mov_b64 exec, -1")

    if PC < 0:
        part_cs()
    if PS < 0:
        part_st()
    c("signal addresses: lanes 0-15: (mt'=l, nt) byte MB_CS + mt ; lanes 16-26: (mt, nt'=l-16) byte MB_ST + nt (nt < 8)")
    e("v_cmp_gt_u32 vcc, 16, v1")
    e(f"v_mov_b32 v2, s{sMT}")
    e(f"v_mov_b32 v3, s{sNT}")
    e("v_subrev_u32 v4, 16, v1")
    e("v_cndmask_b32 v2, v2, v1, vcc")
    e("v_cndmask_b32 v3, v4, v3, vcc")
    if MAP:
        e("v_and_b32 v4, 1, v2")
        e("v_lshl_add_u32 v4, v3, 1, v4")
        e("v_lshrrev_b32 v2, 1, v2")
        e("v_lshl_add_u32 v2, v4, 3, v2")
    else:
        e("v_lshrrev_b32 v4, 3, v2")
        e("v_mul_u32_u24 v4, 88, v4")
        e("v_lshl_add_u32 v4, v3, 3, v4")
        e("v_and_b32 v2, 7, v2")
        e("v_add_u32 v4, v4, v2")
        e("v_mul_u32_u24 v2, 2979, v4")
        e("v_lshrrev_b32 v2, 16, v2")
        e("v_mul_u32_u24 v3, 22, v2")
        e("v_sub_u32 v3, v4, v3")
        e("v_lshl_add_u32 v2, v3, 3, v2")
    e("v_lshlrev_b32 v2, 8, v2")
    e(f"s_add_u32 s{sT0}, s{sMT}, {WS_MB + 64 * 256 + MB_CS}")
    e(f"s_add_u32 s{sT1}, s{sNT}, {WS_MB + 64 * 256 + MB_ST}")
    e(f"v_mov_b32 v3, s{sT1}")
    e(f"v_mov_b32 v4, s{sT0}")
    e("v_cndmask_b32 v3, v3, v4, vcc")
    e(f"v_add_u32 v{vPO}, v2, v3")
    e(f"s_cmp_lt_u32 s{sNT}, 8")
    e(f"s_cselect_b32 s{sEX}, 0x7ffffff, 0xffff") if 0 else None
    e(f"s_mov_b32 s{sEX}, 0xffff")
    e(f"s_cselect_b32 s{sEX}, 0x7ffffff, s{sEX}")
    e(f"s_cmp_eq_u32 s{sH}, 0")
    e(f"s_cselect_b32 s{sEX}, s{sEX}, 0")
    e(f"s_mov_b32 s{sEX + 1}, 0")
    V.wait("s0", extra=" lgkmcnt(0)")
    e("s_barrier")
    stamp(1)
    for s in range(NI, 3):
        dma(s)
    PL = 16
    for s in range(7):
        tags = [f"s{s + 1}"] + (["pst"] if s == SG else [])
        if s == 6:
            T = 40
            if BL:
                V.wait("pl", "s7")
            else:
                V.wait("pl", "s7", "mb2")
                e(f"s_mov_b32 s{sPM}, {3 << (MB_KV - 64)}")
                pollbytes(sMBX, sPM, first=8)
            c("column sum operand: lane = column 64(h&1) + l of part h/2: (c1|c2, c3|0, 0, 0)")
            for a, b in ((0, 1), (2, 3), (4, 5), (6, 7), (0, 2), (4, 6), (0, 4)):
                e(f"v_add_f32 v{PL + a}, v{PL + a}, v{PL + b}")
                epk("add", PL + 8 + 2 * a, PL + 8 + 2 * a, PL + 8 + 2 * b)
            e(f"v_cvt_pk_bf16_f32 v4, 0, v{PL}")
            e(f"v_sub_f32 v{PL}, v{PL}, v4")
            e(f"v_cvt_pk_bf16_f32 v5, 0, v{PL}")
            e(f"v_sub_f32 v{PL}, v{PL}, v5")
            e(f"v_cvt_pk_bf16_f32 v{T + 1}, v{PL}, 0")
            e(f"v_lshrrev_b32 v4, 16, v4")
            e(f"v_or_b32 v{T}, v4, v5")
            for r in range(2, 8):
                e(f"v_mov_b32 v{T + r}, 0")
            e("v_lshrrev_b32 v2, 5, v1")
            e("v_and_b32 v3, 31, v1")
            e("v_lshlrev_b32 v3, 4, v3")
            e("v_lshl_add_u32 v2, v2, 10, v3")
            e(f"s_lshl_b32 s{sT0}, s{sH}, 11")
            e(f"s_add_u32 s{sT0}, s{sT0}, {L_CS}")
            e(f"v_add_u32 v2, s{sT0}, v2")
            e(f"ds_write_b128 v2, {vr(T, 4)}")
            e(f"ds_write_b128 v2, {vr(T + 4, 4)} offset:512")
            c("row statistics of row tile h (lanes 0-31)")
            for x in stats_math(PL + 8, PL + 9, T + 8, T + 16, T + 17):
                e(x)
            e(f"v_xor_b32 v4, 0x80000000, v{T + 12}")
            e(f"v_lshrrev_b32 v{T + 1}, 16, v4")
            e(f"v_or_b32 v{T}, v4, v{T + 1}")
            e("v_cmp_gt_u32 vcc, 32, v1")
            e(f"v_cndmask_b32 v{T}, 0, v{T}, vcc")
            e(f"v_cndmask_b32 v{T + 1}, 0, v{T + 1}, vcc")
            e(f"s_lshl_b32 s{sT0}, s{sH}, 10")
            e(f"s_add_u32 s{sT0}, s{sT0}, {L_MN}")
            e(f"v_lshl_add_u32 v2, v1, 4, s{sT0}")
            e(f"ds_write_b128 v2, {vr(T, 4)}")
            e(f"s_lshl_b32 s{sT0}, s{sH}, 7")
            e(f"s_add_u32 s{sT0}, s{sT0}, {L_RS}")
            e(f"v_lshl_add_u32 v2, v1, 2, s{sT0}")
            e("s_mov_b32 exec_hi, 0")
            e(f"ds_write_b32 v2, v{T + 16}")
            c("nt == 0: (rs, nm) -> ws")
            e(f"s_lshl_b32 s{sT0}, s{sMT}, 10")
            e(f"s_lshl_b32 s{sT1}, s{sH}, 8")
            e(f"s_add_u32 s{sT0}, s{sT0}, s{sT1}")
            e(f"s_add_u32 s{sT0}, s{sT0}, {WS_ST}")
            e("v_lshlrev_b32 v2, 3, v1")
            e(f"s_cmp_eq_u32 s{sNT}, 0")
            e("s_cselect_b32 exec_lo, -1, 0")
            V.emit(f"buffer_store_dwordx2 {vr(T + 16, 2)}, v2, {sr(S_WS, 4)}, s{sT0} offen sc1", "ss")
            e("s_mov_b64 exec, -1")
            e("s_waitcnt lgkmcnt(0)")
        else:
            V.wait(*tags)
        e("s_barrier")
        if s == 3:
            stamp(2)
        if s == 6:
            stamp(3)
        if s == SG:
            c("everybody's partial stores are complete -> wave 4 signals the consumers")
            zcheck()
            e("v_mov_b32 v2, 1")
            e(f"s_mov_b64 exec, {sr(sEX, 2)}")
            V.emit(f"buffer_store_byte v2, v{vPO}, {sr(S_WS, 4)}, 0 offen sc1", "sig")
            e("s_mov_b64 exec, -1")
        if s == S_POLL:
            V.emit(f"buffer_load_ubyte v8, v1, {sr(S_WS, 4)}, s{sMBX} offen sc1", "mb")
        if s + 3 < 8:
            dma(s + 3)
        if s == PC:
            part_cs()
        if s == PS:
            part_st()
            e("s_waitcnt lgkmcnt(0)")
        if s == 5 and not BL:
            V.emit(f"buffer_load_ubyte v8, v1, {sr(S_WS, 4)}, s{sMBX} offen sc1", "mb2")
        if s == S_POLL + 1:
            V.wait("mb")
            pollbytes(sMBX, sPM, first=8)
            stamp(9 if EB else None)
            if EB:
                c("w_down fragments ready? (vcc = flags of the last read)")
                e(f"s_bfe_u32 s{sT0}, vcc_lo, {0x20000 + MB_KV - 64}")
                e(f"s_cmp_eq_u32 s{sT0}, 3")
                e(f"s_cselect_b32 s{sWM}, -1, 0")
            c("partial loads")
            e(f"s_lshl_b32 s{sT0}, s{sNT}, 13")
            e(f"s_lshr_b32 s{sT1}, s{sH}, 1")
            e(f"s_lshl_b32 s{sT1}, s{sT1}, 12")
            e(f"s_add_u32 s{sT0}, s{sT0}, s{sT1}")
            e(f"s_and_b32 s{sT1}, s{sH}, 1")
            e(f"s_lshl_b32 s{sT1}, s{sT1}, 8")
            e(f"s_add_u32 s{sT0}, s{sT0}, s{sT1}")
            e(f"s_add_u32 s{sT0}, s{sT0}, {WS_CS}")
            e("v_lshlrev_b32 v2, 2, v1")
            for j in range(8):
                V.emit(f"buffer_load_dword v{PL + j}, v2, {sr(S_WS, 4)}, s{sT0} offen offset:{512 * j}", "pl")
            e(f"s_lshl_b32 s{sT0}, s{sMT}, 14")
            e(f"s_lshl_b32 s{sT1}, s{sH}, 8")
            e(f"s_add_u32 s{sT0}, s{sT0}, s{sT1}")
            e(f"s_add_u32 s{sT0}, s{sT0}, {WS_SP}")
            e(f"s_add_u32 s{sT1}, s{sT0}, 4096")
            e("v_and_b32 v2, 31, v1")
            e("v_lshlrev_b32 v2, 3, v2")
            for j in range(8):
                V.emit(f"buffer_load_dwordx2 {vr(PL + 8 + 2 * j, 2)}, v2, {sr(S_WS, 4)}, s{sT1 if j >= 4 else sT0} offen "
                       f"offset:{1024 * (j & 3)}", "pl")
        if EB and s == max(4, S_POLL + 1):
            c("GEMM2 B fragments of this wave + L2 prefetch of a quarter of unit (id/8)&3")
            e("s_lshr_b32 s3, s2, 5")
            e(f"s_mul_i32 s3, s3, {WDT}")
            e(f"s_add_u32 s3, s3, {WS_WD}")
            e("s_bfe_u32 s4, s2, 0x20003")
            if UROT:
                e(f"s_lshr_b32 s{sT1}, s2, 5")
                e(f"s_add_u32 s4, s4, s{sT1}")
                e("s_and_b32 s4, s4, 7")
            e(f"s_mul_i32 s4, s4, {11 * 2048}")
            e(f"s_mul_i32 s{sT0}, s{sH}, 5632")
            e(f"s_add_u32 s4, s4, s{sT0}")
            e("s_add_u32 s4, s4, s3")
            if UROT:
                e(f"s_add_u32 s{sT0}, s{sW}, s{sT1}")
                e(f"s_and_b32 s{sT0}, s{sT0}, 7")
                e(f"s_mul_i32 s{sT0}, s{sT0}, {11 * 2048}")
            else:
                e(f"s_mul_i32 s{sT0}, s{sW}, {11 * 2048}")
            e(f"s_add_u32 s3, s3, s{sT0}")
            e("v_lshlrev_b32 v9, 4, v1")
            ebl = []
            for i in range(22):
                ebl.append(f"buffer_load_dwordx4 {vr(168 + 4 * i, 4)}, v9, {sr(S_WS, 4)}, s3 offen offset:{1024 * (i & 3)}")
                if i & 3 == 3:
                    ebl[-1] += "|s_add_u32 s3, s3, 4096"
            if EB & 2:
                for i in range(6):
                    ebl.append(f"buffer_load_dwordx4 {vr(80 + 4 * i, 4)}, v9, {sr(S_WS, 4)}, s4 offen offset:{1024 * (i & 3)}")
                    if i == 3:
                        ebl[-1] += "|s_add_u32 s4, s4, 4096"
        if EB and s >= max(4, S_POLL + 1):
            n = len(ebl) if s == 6 else EBN
            e(f"s_mov_b32 exec_lo, s{sWM}")
            e(f"s_mov_b32 exec_hi, s{sWM}")
            for x in ebl[:n]:
                for y in x.split("|"):
                    V.emit(y, "eb")
            e("s_mov_b64 exec, -1")
            del ebl[:n]
        if BL and s == 5:
            c("w_down fragments must be ready now")
            e(f"s_cmp_lg_u32 s{sWM}, 0")
            e("s_cbranch_scc1 k1h_wok")
            e(f"s_mov_b32 s{sPM}, {3 << (MB_KV - 64)}")
            pollbytes(sMBX, sPM)
            e("k1h_wok:")
        if BL and s >= 5:
            c("stage the B fragments of compute waves 2(s-5) + h/2: half h&1 (11 KB)")
            e(f"s_lshr_b32 s{sT0}, s{sH}, 1")
            e(f"s_mul_i32 s5, s{sH}, 11264")
            e(f"s_add_u32 s{sT0}, s{sT0}, {2 * (s - 5)}")
            e(f"s_lshr_b32 s{sT1}, s2, 5")
            if UROT:
                e(f"s_add_u32 s{sT0}, s{sT0}, s{sT1}")
                e(f"s_and_b32 s{sT0}, s{sT0}, 7")
            e(f"s_mul_i32 s{sT0}, s{sT0}, 22528")
            e(f"s_mul_i32 s{sT1}, s{sT1}, {WDT}")
            e(f"s_add_u32 s{sT0}, s{sT0}, s{sT1}")
            e(f"s_and_b32 s{sT1}, s{sH}, 1")
            e(f"s_mul_i32 s{sT1}, s{sT1}, 11264")
            e(f"s_add_u32 s{sT0}, s{sT0}, s{sT1}")
            e(f"s_add_u32 s{sT0}, s{sT0}, {WS_WD}")
            for i in range(11):
                e(f"s_add_u32 m0, s5, {(2 * STG if s == 5 else 0) + 1024 * i}")
                V.emit(f"buffer_load_dwordx4 v9, {sr(S_WS, 4)}, s{sT0} offen lds", "bl")
                e(f"s_add_u32 s{sT0}, s{sT0}, 1024")
    if BL:
        e(f"s_lshl_b32 s{sT0}, 1, s{sH}")
        e(f"v_mov_b32 v2, s{sT0}")
        e(f"v_mov_b32 v3, {L_ST}")
        V.wait("bl")
        e("s_mov_b64 exec, 1")
        e("ds_or_b32 v3, v2 offset:8")
        e("s_mov_b64 exec, -1")
    c("nt == 0: stats flag of row tile h to the 8 consumers of row block 2mt + h/2")
    e(f"s_lshl_b32 s{sT0}, s{sMT}, 1")
    e(f"s_lshr_b32 s{sT1}, s{sH}, 1")
    e(f"s_add_u32 s{sT0}, s{sT0}, s{sT1}")
    e(f"s_and_b32 s{sT1}, s{sH}, 1")
    e(f"s_add_u32 s{sT1}, s{sT1}, {MB_S}")
    sig_h(sT0, sT1, 3)
    e(f"s_cmp_eq_u32 s{sNT}, 0")
    e(f"s_cselect_b32 s{sSGX}, 0xff, 0")
    if not EB:
        e(f"s_mov_b32 s{sWM}, 0")
    e(f"s_mov_b32 s{sNU}, 1")
    e(f"s_mov_b32 s{sNS}, 0")
    e("s_branch g2_unit")
    flush_ool()


def k1_aux():
    S_WD = 44
    sW, sT0, sT1, sN2, sKH, sLB = 62, 63, 64, 65, 66, 67
    sKS = 68
    e("k1_aux:")
    e("v_lshrrev_b32 v2, 6, v0")
    e("v_and_b32 v1, 63, v0")
    e(f"v_readfirstlane_b32 s{sW}, v2")
    e(f"s_and_b32 s{sN2}, s2, 7")
    e(f"s_bfe_u32 s{sKH}, s2, 0x10003")
    e("v_lshrrev_b32 v2, 3, v1")
    e("v_and_b32 v3, 7, v1")
    e("v_lshlrev_b32 v3, 4, v3")
    e("v_lshl_add_u32 v2, v2, 10, v3")
    e(f"s_mul_i32 s{sLB}, s{sW}, 12288")
    e(f"s_mul_i32 s{sT1}, s{sKH}, 43")
    for j in range(6):
        e(f"s_add_u32 s{sT0}, s{sW}, {8 * j}")
        e(f"s_min_u32 s{sT0}, s{sT0}, 42")
        e(f"s_add_u32 s{sKS + j}, s{sT0}, s{sT1}")
    e("s_waitcnt lgkmcnt(0)")
    stamp(0)
    make_srd(S_WD, P_WD, 1376 * 1024)
    make_srd(S_WS, P_WS, 0x1000000)
    e("v_lshlrev_b32 v3, 4, v1")
    c("WG 240: zero all mailboxes (64 KB), then set the flag in d_debug")
    e("s_cmp_lg_u32 s2, 240")
    e("s_cbranch_scc1 aux_nz0")
    e(f"s_lshl_b32 s3, s{sW}, 13")
    e(f"s_add_u32 s3, s3, {WS_MB}")
    for r in range(4):
        e(f"v_mov_b32 v{4 + r}, 0")
    for j in range(8):
        e(f"buffer_store_dwordx4 v[4:7], v3, {sr(S_WS, 4)}, s3 offen sc1")
        e("s_add_u32 s3, s3, 1024")
    e("aux_nz0:")
    if ASLEEP:
        e("s_cmp_eq_u32 s2, 240")
        e("s_cbranch_scc1 aux_ns")
        for _ in range(ASLEEP):
            e("s_sleep 16")
        e("aux_ns:")
    e(f"s_lshl_b32 s{sT1}, s{sN2}, 7")
    for j in range(6):
        e(f"s_lshl_b32 s{sT0}, s{sKS + j}, 14")
        e(f"s_add_u32 s{sT0}, s{sT0}, s{sT1}")
        for i in range(2):
            e(f"s_add_u32 m0, s{sLB}, {2048 * j + 1024 * i}")
            if i:
                e(f"s_add_u32 s{sT0}, s{sT0}, 8192")
            e(f"buffer_load_dwordx4 v2, {sr(S_WD, 4)}, s{sT0} offen lds")
    e(f"s_mov_b32 s{sZ}, 0")
    state_init(4)
    e("s_cmp_lg_u32 s2, 240")
    e("s_cbranch_scc1 aux_nz")
    make_srd(S_DB2, P_DBG, 256)
    e("s_waitcnt vmcnt(12)")
    e("s_barrier")
    stamp(1)
    e(f"s_mov_b32 s{sZ}, 1")
    e(f"s_cmp_lg_u32 s{sW}, 0")
    e("s_cbranch_scc1 aux_nz")
    e("v_mov_b32 v14, 1")
    e(f"v_mov_b32 v15, {ZOFF}")
    e("s_mov_b64 exec, 1")
    e(f"buffer_store_dword v14, v15, {sr(S_DB2, 4)}, 0 offen sc1")
    e("s_mov_b64 exec, -1")
    e("aux_nz:")
    c("tr read address: row 4g + li/4 (+8u), col bytes 64ct + 32((l/16)&1) + 8(li%4)")
    e("v_and_b32 v4, 15, v1")
    e("v_lshrrev_b32 v5, 2, v4")
    e("v_lshrrev_b32 v6, 5, v1")
    e("v_lshl_add_u32 v5, v6, 2, v5")
    e("v_lshlrev_b32 v5, 7, v5")
    e("v_bfe_u32 v6, v1, 4, 1")
    e("v_lshl_add_u32 v5, v6, 5, v5")
    e("v_and_b32 v4, 3, v4")
    e("v_lshl_add_u32 v5, v4, 3, v5")
    e(f"v_add_u32 v5, s{sLB}, v5")
    e(f"s_mul_i32 s{sT1}, s{sN2}, {WDT}")
    e(f"s_add_u32 s{sT1}, s{sT1}, {WS_WD}")
    e("s_waitcnt vmcnt(0)")
    stamp(2)
    for j in range(6):
        for ct in range(2):
            for u in range(2):
                e(f"ds_read_b64_tr_b16 {vr(16 + 8 * j + 4 * ct + 2 * u, 2)}, v5 offset:{2048 * j + 1024 * u + 64 * ct}")
        if j >= 1:
            e("s_waitcnt lgkmcnt(4)")
            e(f"s_lshl_b32 s{sT0}, s{sKS + j - 1}, 11")
            e(f"s_add_u32 s{sT0}, s{sT0}, s{sT1}")
            for ct in range(2):
                e(f"buffer_store_dwordx4 {vr(16 + 8 * (j - 1) + 4 * ct, 4)}, v3, {sr(S_WS, 4)}, s{sT0} offen offset:{1024 * ct} sc1")
    e("s_waitcnt lgkmcnt(0)")
    e(f"s_lshl_b32 s{sT0}, s{sKS + 5}, 11")
    e(f"s_add_u32 s{sT0}, s{sT0}, s{sT1}")
    for ct in range(2):
        e(f"buffer_store_dwordx4 {vr(16 + 40 + 4 * ct, 4)}, v3, {sr(S_WS, 4)}, s{sT0} offen offset:{1024 * ct} sc1")
    zcheck()
    e("s_waitcnt vmcnt(0)")
    e("s_barrier")
    stamp(3)
    c("wave 0: flag to the 32 consumers id = 32 nt2 + l (byte MB_W + kh, GEMM1 WGs: MB_KV + kh)")
    e(f"s_lshl_b32 s{sT0}, s{sN2}, 5")
    e(f"v_add_u32 v4, s{sT0}, v1")
    e(f"v_subrev_u32 v5, {K1_NCONV}, v4")
    e(f"v_cmp_gt_u32 vcc, {K1_NGEMM}, v5")
    e(f"v_mov_b32 v5, {MB_W}")
    e(f"v_mov_b32 v6, {MB_KV}")
    e("v_cndmask_b32 v5, v5, v6, vcc")
    e(f"v_cmp_gt_u32 vcc, {K1_NCONV}, v4")
    e("v_cndmask_b32 v5, v5, 64, vcc")
    e("v_lshl_add_u32 v4, v4, 8, v5")
    c("nt2 < 2: also to the aux WGs 240 + 8 nt2 + (l - 32), byte 64 + kh")
    e(f"s_lshl_b32 s{sT0}, s{sN2}, 3")
    e(f"s_add_u32 s{sT0}, s{sT0}, {240 - 32}")
    e(f"v_add_u32 v5, s{sT0}, v1")
    e("v_lshlrev_b32 v5, 8, v5")
    e("v_add_u32 v5, 64, v5")
    e("v_cmp_gt_u32 vcc, 32, v1")
    e("v_cndmask_b32 v4, v5, v4, vcc")
    e(f"s_add_u32 s{sT0}, s{sKH}, {WS_MB}")
    e("v_mov_b32 v5, 1")
    e(f"s_cmp_lt_u32 s{sN2}, 2")
    e(f"s_cselect_b32 s{sT1}, 0xff, 0")
    e(f"s_cmp_eq_u32 s{sW}, 0")
    e("s_cselect_b32 exec_lo, -1, 0")
    e(f"s_cselect_b32 exec_hi, s{sT1}, 0")
    e(f"buffer_store_byte v5, v4, {sr(S_WS, 4)}, s{sT0} offen sc1")
    e("s_mov_b64 exec, -1")
    if APF:
        c("pull the fragments of column block kh (conv WGs' tiles) into this XCD's L2")
        e("s_mov_b32 s5, 3")
        e(f"s_cmp_lg_u32 s{sW}, 7")
        e("s_cbranch_scc1 aux_kw")
        e("s_lshl_b32 s4, s2, 8")
        e(f"s_add_u32 s4, s4, {WS_MB + 64}")
        pollbytes(4, 5)
        e(f"v_mov_b32 v14, {L_ST}")
        e("v_mov_b32 v15, -1")
        e("ds_write_b32 v14, v15 offset:8")
        e("s_branch aux_kd")
        e("aux_kw:")
        lds_wait(8, 5)
        e("aux_kd:")
        e(f"s_mul_i32 s{sT0}, s{sKH}, {WDT}")
        e(f"s_mul_i32 s{sT1}, s{sW}, {11 * 2048}")
        e(f"s_add_u32 s{sT0}, s{sT0}, s{sT1}")
        e(f"s_add_u32 s{sT0}, s{sT0}, {WS_WD}")
        for i in range(22):
            e(f"buffer_load_dwordx4 {vr(80 + 4 * i, 4)}, v3, {sr(S_WS, 4)}, s{sT0} offen offset:{1024 * (i & 3)}")
            if i & 3 == 3:
                e(f"s_add_u32 s{sT0}, s{sT0}, 4096")
    e(f"s_mov_b32 s{sSGX}, 0")
    e(f"s_mov_b32 s{sSG0}, {WS_MB}")
    e(f"s_mov_b32 s{sSG1}, 0")
    e(f"s_mov_b32 s{sWM}, {3 << MB_W}")
    e(f"s_mov_b32 s{sNU}, 1")
    e(f"s_mov_b32 s{sNS}, 0")
    e("s_branch g2_unit")


CV_KCPY = 4160
CV_T = 117248
CV_TP = 528


def k1_conv():
    S_K, S_V, S_SK, S_SH = 44, 48, 52, 72
    sW, sT0, sT1, sD, sG, sJ, sCH, sRB, sKT, sMBX = 62, 63, 64, 65, 66, 67, 68, 69, 70, 71
    e("k1_conv:")
    e("v_lshrrev_b32 v2, 6, v0")
    e("v_and_b32 v1, 63, v0")
    e(f"v_readfirstlane_b32 s{sW}, v2")
    c("G = id%8 (64-channel group), J = id/8 (256-row block / channel sub-group)")
    e(f"s_and_b32 s{sG}, s2, 7")
    e(f"s_lshr_b32 s{sJ}, s2, 3")
    sGP = 60
    if ROT:
        e(f"s_add_u32 s{sGP}, s{sG}, s{sJ}")
        e(f"s_and_b32 s{sGP}, s{sGP}, 7")
    else:
        e(f"s_mov_b32 s{sGP}, s{sG}")
    c("---- kv phase: rows J*256 + 4*rg.., channels G*64 + cs*8..")
    e("v_lshrrev_b32 v2, 3, v0")
    e("v_and_b32 v3, 7, v0")
    e(f"s_lshl_b32 s{sT0}, s{sJ}, 18")
    e(f"s_lshl_b32 s{sT1}, s{sGP}, 7")
    e(f"s_add_u32 s{sT0}, s{sT0}, s{sT1}")
    e("v_lshlrev_b32 v4, 12, v2")
    e("v_lshl_add_u32 v4, v3, 4, v4")
    e(f"v_add_u32 v4, s{sT0}, v4")
    e("v_subrev_u32 v5, 3072, v4")
    e(f"s_lshl_b32 s{sT1}, s{sGP}, 9")
    e("v_lshlrev_b32 v6, 6, v3")
    e(f"v_add_u32 v6, s{sT1}, v6")
    e("s_waitcnt lgkmcnt(0)")
    stamp(0)
    for _ in range(CSLEEP):
        e("s_sleep 8")
    make_srd(S_K, P_K, 2048 * 1024)
    make_srd(S_V, P_V, 2048 * 1024)
    make_srd(S_SH, P_SH, 4096)
    V = VMQ()
    KD, VD, WD = 16, 44, 60
    for r in range(3):
        V.emit(f"buffer_load_dwordx4 {vr(KD + 4 * r, 4)}, v5, {sr(S_K, 4)}, 0 offen offset:{1024 * r}", "kv")
    for r in range(4):
        V.emit(f"buffer_load_dwordx4 {vr(KD + 12 + 4 * r, 4)}, v4, {sr(S_K, 4)}, 0 offen offset:{1024 * r}", "kv")
    for r in range(4):
        V.emit(f"buffer_load_dwordx4 {vr(VD + 4 * r, 4)}, v4, {sr(S_V, 4)}, 0 offen offset:{1024 * r}", "kv")
    for j in range(4):
        V.emit(f"buffer_load_dwordx4 {vr(WD + 4 * j, 4)}, v6, {sr(S_SH, 4)}, 0 offen offset:{16 * j}", "kv")
    make_srd(S_SK, P_SK, 512 * 4096)
    make_srd(S_WS, P_WS, 0x1000000)
    c("channel of this wave: 64G + 8J + w")
    e(f"s_lshl_b32 s{sCH}, s{sG}, 3")
    e(f"s_add_u32 s{sCH}, s{sCH}, s{sJ}")
    e(f"s_lshl_b32 s{sCH}, s{sCH}, 3")
    e(f"s_add_u32 s{sCH}, s{sCH}, s{sW}")
    e(f"s_lshl_b32 s{sKT}, s{sW}, 14")
    e(f"s_mul_i32 s{sT0}, s{sW}, 12928")
    e(f"s_add_u32 s{sT0}, s{sT0}, {65536 - 4 * 12928}")
    e(f"s_cmp_ge_u32 s{sW}, 4")
    e(f"s_cselect_b32 s{sKT}, s{sT0}, s{sKT}")
    e(f"s_add_u32 s{sRB}, s{sKT}, 8320")
    e(f"s_lshl_b32 s{sT0}, s{sCH}, 1")
    e(f"s_and_b32 s{sT1}, s{sT0}, 0xfffffffc")
    e(f"s_add_u32 s{P_SD}, s{P_SD}, s{sT1}")
    e(f"s_addc_u32 s{P_SD + 1}, s{P_SD + 1}, 0")
    e(f"s_load_dword s{sD}, {sr(P_SD, 2)}, 0")
    SKR = 232
    e(f"s_lshl_b32 s{sCH}, s{sCH}, 12")
    e("v_lshlrev_b32 v8, 4, v1")

    def skloads():
        for j in range(4):
            V.emit(f"buffer_load_dwordx4 {vr(SKR + 4 * j, 4)}, v8, {sr(S_SK, 4)}, s{sCH} offen offset:{1024 * j}", "sk")
        for j in range(4):
            V.emit(f"buffer_load_dword v{SKR + 16 + j}, v8, {sr(S_SK, 4)}, s{sCH} offen offset:{1024 * j + 16}", "sk")
    if SKD == 0:
        skloads()
    c("kv LDS transpose position: T + (cs*8 + cc)*528 + 504 - 8 rg")
    e(f"v_mul_u32_u24 v7, {8 * CV_TP}, v3")
    e("v_lshlrev_b32 v9, 3, v2")
    e("v_sub_u32 v7, v7, v9")
    e(f"v_add_u32 v7, {CV_T + 504}, v7")
    state_init(-4 if C8 else 4)
    c("zero pads")
    e("v_lshlrev_b32 v6, 3, v1")
    e(f"v_add_u32 v6, s{sRB}, v6")
    e("v_mov_b32 v10, 0")
    e("v_mov_b32 v11, 0")
    e("ds_write_b64 v6, v[10:11] offset:4096")
    e("v_lshlrev_b32 v6, 2, v1")
    e(f"v_add_u32 v6, s{sKT}, v6")
    e("s_mov_b64 exec, 0xff")
    e("ds_write_b32 v6, v10")
    e(f"ds_write_b32 v6, v10 offset:{CV_KCPY}")
    e("s_mov_b64 exec, -1")
    c("addresses of the kv row stores")
    e("v_lshrrev_b32 v6, 5, v1")
    e("v_and_b32 v10, 31, v1")
    e("v_lshlrev_b32 v10, 4, v10")
    e(f"v_mul_u32_u24 v9, {CV_TP}, v6")
    e("v_add_u32 v9, v9, v10")
    e(f"s_mul_i32 s{sT1}, s{sW}, {8 * CV_TP}")
    e(f"s_add_u32 s{sT1}, s{sT1}, {CV_T}")
    e(f"v_add_u32 v9, s{sT1}, v9")
    e("v_lshl_add_u32 v10, v6, 12, v10")
    e(f"s_lshl_b32 s3, s{sGP}, 18")
    e(f"s_lshl_b32 s{sT1}, s{sW}, 15")
    e(f"s_add_u32 s3, s3, s{sT1}")
    e(f"s_add_u32 s3, s3, {WS_KV + 3584}")
    e(f"s_lshl_b32 s{sT1}, s{sJ}, 9")
    e(f"s_sub_u32 s3, s3, s{sT1}")
    c("kv flag: consumer id 8w + G, byte MB_KV + J")
    e(f"s_lshl_b32 s4, s{sW}, 3")
    e(f"s_add_u32 s4, s4, s{sGP}")
    e("s_lshl_b32 s4, s4, 8")
    e(f"s_add_u32 s4, s4, s{sJ}")
    e(f"s_add_u32 s4, s4, {WS_MB + MB_KV}")
    e(f"s_lshl_b32 s{sMBX}, s2, 8")
    e(f"s_add_u32 s{sMBX}, s{sMBX}, {WS_MB + 64}")
    e(f"s_mov_b32 s5, {0xff << (MB_KV - 64)}")
    V.wait("kv")
    stamp(1)
    zload()
    if SKD == 1:
        skloads()
    KF, VF, WF = 80, 136, 200
    for cc in range(8):
        for jp in range(2):
            w = WD + 2 * cc + jp
            e(f"v_lshlrev_b32 v{WF + (2 * jp) * 8 + cc}, 16, v{w}")
            e(f"v_and_b32 v{WF + (2 * jp + 1) * 8 + cc}, 0xffff0000, v{w}")
    for i in range(28):
        e(f"v_lshlrev_b32 v{KF + 2 * i}, 16, v{KD + i}")
        e(f"v_and_b32 v{KF + 2 * i + 1}, 0xffff0000, v{KD + i}")
    for i in range(16):
        e(f"v_lshlrev_b32 v{VF + 2 * i}, 16, v{VD + i}")
        e(f"v_and_b32 v{VF + 2 * i + 1}, 0xffff0000, v{VD + i}")
    KV = 168
    for cp in range(4):
        for r in range(4):
            d = KV + 8 * r + 2 * cp
            e(f"v_pk_mul_f32 {vr(d, 2)}, {vr(KF + 8 * r + 2 * cp, 2)}, {vr(WF + 3 * 8 + 2 * cp, 2)}")
            for j in range(1, 4):
                e(f"v_pk_fma_f32 {vr(d, 2)}, {vr(KF + 8 * (r + j) + 2 * cp, 2)}, "
                  f"{vr(WF + (3 - j) * 8 + 2 * cp, 2)}, {vr(d, 2)}")
            e(f"v_pk_mul_f32 {vr(d, 2)}, {vr(d, 2)}, {vr(VF + 8 * r + 2 * cp, 2)}")
        for cc in (2 * cp, 2 * cp + 1):
            o = 16 + 2 * cc
            e(f"v_cvt_pk_bf16_f32 v{o}, v{KV + 24 + cc}, v{KV + 16 + cc}")
            e(f"v_cvt_pk_bf16_f32 v{o + 1}, v{KV + 8 + cc}, v{KV + cc}")
            e(f"ds_write_b64 v7, {vr(o, 2)} offset:{cc * CV_TP}")
    e("s_waitcnt lgkmcnt(0)")
    e("s_barrier")
    c("wave w: channels 8w..8w+7 of the group: full-line stores (2 channels x 512 B per instruction)")
    for j in range(4):
        e(f"ds_read_b128 {vr(16 + 4 * j, 4)}, v9 offset:{2 * j * CV_TP}")
    for j in range(4):
        e(f"s_waitcnt lgkmcnt({3 - j})")
        V.emit(f"buffer_store_dwordx4 {vr(16 + 4 * j, 4)}, v10, {sr(S_WS, 4)}, s3 offen{STK}", "st")
        e("s_add_u32 s3, s3, 8192")
    if SKD == 2:
        skloads()

    def ktwork():
        e(f"v_add_u32 v7, s{sKT}, v8")
        V.wait("sk")
        for j in range(4):
            d = SKR + 4 * j
            t = 32 + 4 * j
            e(f"ds_write_b128 v7, {vr(d, 4)} offset:{32 + 1024 * j}")
            e(f"v_alignbit_b32 v{t}, v{d + 1}, v{d}, 16")
            e(f"v_alignbit_b32 v{t + 1}, v{d + 2}, v{d + 1}, 16")
            e(f"v_alignbit_b32 v{t + 2}, v{d + 3}, v{d + 2}, 16")
            e(f"v_alignbit_b32 v{t + 3}, v{SKR + 16 + j}, v{d + 3}, 16")
            e(f"ds_write_b128 v7, {vr(t, 4)} offset:{CV_KCPY + 32 + 1024 * j}")
        e(f"v_lshlrev_b32 v12, 16, v{SKR}")
        e("s_mov_b64 exec, 1")
        e(f"ds_write_b32 v7, v12 offset:{CV_KCPY + 28}")
        e("s_mov_b64 exec, -1")

    if SKD < 2:
        ktwork()
    zcheck()
    e("v_mov_b32 v13, 1")
    V.wait("st")
    e("s_mov_b64 exec, 1")
    V.emit(f"buffer_store_byte v13, off, {sr(S_WS, 4)}, s4 sc1", "fl")
    e("s_mov_b64 exec, -1")
    stamp(2)
    if SKD == 2:
        ktwork()
    e(f"s_lshl_b32 s{sT0}, s{sD}, 16")
    e(f"s_and_b32 s{sD}, s{sD}, 0xffff0000")
    e(f"s_bitcmp1_b32 s{sW}, 0")
    e(f"s_cselect_b32 s{sD}, s{sD}, s{sT0}")
    c("MFMA phase addresses")
    ACC = 16
    AR = [48, 112]
    BR = [80, 144]
    vKT, vR, vA = 200, 201, 202
    e("v_and_b32 v2, 15, v1")
    e("v_lshrrev_b32 v3, 4, v1")
    e("v_lshlrev_b32 v4, 1, v2")
    e("v_lshlrev_b32 v5, 4, v3")
    e("v_sub_u32 v4, v4, v5")
    e(f"v_add_u32 v4, {32 - 14}, v4")
    e("v_and_b32 v5, 1, v2")
    e("v_cmp_eq_u32 vcc, 0, v5")
    e("v_mov_b32 v5, 0")
    e(f"v_mov_b32 v6, {CV_KCPY - 2}")
    e("s_nop 1")
    e("v_cndmask_b32 v5, v5, v6, vcc")
    e("v_add_u32 v4, v4, v5")
    e(f"v_add_u32 v{vKT}, s{sKT}, v4")
    e("v_lshlrev_b32 v4, 5, v2")
    e("v_lshl_add_u32 v4, v3, 4, v4")
    e(f"v_sub_u32 v4, {4080 - 3584}, v4")
    e(f"v_add_u32 v{vR}, s{sRB}, v4")
    e("v_lshlrev_b32 v4, 5, v2")
    e("v_lshl_add_u32 v4, v3, 3, v4")
    e(f"v_sub_u32 v5, {4088 - 3584}, v4")
    e(f"v_add_u32 v5, s{sRB}, v5")
    c("GEMM2 interface: flag byte MB_C + 8J + w to the 32 consumers 32G + l")
    e(f"s_lshl_b32 s{sSG0}, s{sG}, 13")
    e(f"s_lshl_b32 s{sT0}, s{sJ}, 3")
    e(f"s_add_u32 s{sSG0}, s{sSG0}, s{sT0}")
    e(f"s_add_u32 s{sSG0}, s{sSG0}, s{sW}")
    e(f"s_add_u32 s{sSG0}, s{sSG0}, {WS_MB + MB_C}")
    e(f"s_mov_b32 s{sSG1}, 8")
    e(f"s_mov_b32 s{sSGX}, -1")
    if C8:
        e(f"s_mov_b32 s{sNS}, 0")
        e(f"s_mov_b32 s{sNU}, 1")
    else:
        e(f"s_mov_b32 s{sNS}, 1")
        e(f"s_cmp_lt_u32 s{sW}, 4")
        e(f"s_cselect_b32 s{sNU}, 2, 0")
    e(f"s_add_u32 s3, s{sCH}, {WS_KV}")

    def crlist(ci, st, kinds="AB"):
        d0 = 2 * ci + 1
        r = []
        if "A" in kinds:
            for pp in range(4):
                r.append(f"v_add_u32 v{vA + pp}, {32 * d0 + 1024 * pp}, v{vKT}")
        order = [("B", 0)] + [("A", p) for p in range(8)] + [("B", m) for m in range(1, 8)]
        for kind, x in order:
            if kind not in kinds:
                continue
            if kind == "A":
                p = x
                o = 128 * (p & 1)
                r.append(f"ds_read2_b32 {vr(AR[st] + 4 * p, 2)}, v{vA + (p >> 1)} offset0:{o} offset1:{o + 1}")
                r.append(f"ds_read2_b32 {vr(AR[st] + 4 * p + 2, 2)}, v{vA + (p >> 1)} offset0:{o + 2} offset1:{o + 3}")
            else:
                m = x
                r.append(f"ds_read_b128 {vr(BR[st] + 4 * m, 4)}, v{vR} offset:{32 * d0 + 512 * (7 - m)}")
        return r

    e("s_waitcnt lgkmcnt(0)")
    for x in crlist(0, 0, "A"):
        e(x)
    e(f"s_cmp_lg_u32 s{sW}, 7")
    e("s_cbranch_scc1 k1c_kw")
    pollbytes(sMBX, 5)
    e(f"v_mov_b32 v14, {L_ST}")
    e("s_or_b32 s81, vcc_lo, s5")
    e("v_mov_b32 v15, s81")
    e("ds_write_b32 v14, v15 offset:8")
    e("s_branch k1c_kd")
    e("k1c_kw:")
    lds_wait(8, 5)
    e("k1c_kd:")
    c("own channel kvR row -> LDS R")
    for j in range(4):
        e(f"s_add_u32 m0, s{sRB}, {1024 * j}")
        e(f"buffer_load_dwordx4 v8, {sr(S_WS, 4)}, s3 offen offset:{1024 * j} lds sc1") if 0 else None
        e(f"buffer_load_dwordx4 v8, {sr(S_WS, 4)}, s3 offen lds")
        e("s_add_u32 s3, s3, 1024")
    if CPRIO == 1:
        e(f"s_cmp_lt_u32 s{sW}, 4")
        e("s_cbranch_scc0 k1c_p1")
        e("s_setprio 2")
        e("k1c_p1:")
    e("s_waitcnt vmcnt(0)")
    stamp(3)
    for x in crlist(0, 0, "B"):
        e(x)
    c("w_down fragments ready -> B fragments of the GEMM2 unit are loaded under the MFMAs")
    e("v_readfirstlane_b32 s81, v15")
    e("s_lshr_b32 s4, s2, 5")
    e(f"s_add_u32 s{sT0}, s{sW}, s4") if UROT else e(f"s_mov_b32 s{sT0}, s{sW}")
    e(f"s_and_b32 s{sT0}, s{sT0}, 7")
    e(f"s_mul_i32 s{sT0}, s{sT0}, 22528")
    e(f"s_mul_i32 s4, s4, {WDT}")
    e(f"s_add_u32 s4, s4, s{sT0}")
    e(f"s_add_u32 s4, s4, {WS_WD}")
    e("s_and_b32 s81, s81, 3")
    e("s_cmp_eq_u32 s81, 3")
    e(f"s_cselect_b32 s{sWM}, -1, 0")
    e(f"s_cselect_b32 s{sWM + 1}, -1, 0")
    if not CEB:
        e(f"s_mov_b32 s{sWM}, 0")

    def bload(i):
        return [f"s_add_u32 s{sT0}, s4, {1024 * i}", f"s_mov_b32 exec_lo, s{sWM}", f"s_mov_b32 exec_hi, s{sWM}",
                f"buffer_load_dwordx4 {vr(168 + 4 * i, 4)}, v8, {sr(S_WS, 4)}, s{sT0} offen", "s_mov_b64 exec, -1"]

    early = [i for i in range(22) if i not in (0, 1, 8, 9)] if CEB else []
    KVR = 80
    for ci in range(8):
        st = ci & 1
        if CPRIO == 2 and ci % 2 == 0:
            e(f"s_setprio {3 - ci // 2}")
        e("s_waitcnt lgkmcnt(0)")
        rl = []
        if ci < 7:
            rl = crlist(ci + 1, st ^ 1)
            for _ in range(4):
                e(rl.pop(0))
            if ci >= 1:
                for k in range(3):
                    if early:
                        rl += [bload(early.pop(0)), []]
        if ci == 7:
            rl += [f"ds_read_b64 {vr(KVR + 2 * n, 2)}, v5 offset:{512 * (7 - n)}" for n in range(8)]
            rl += [[], [], [], ["s_waitcnt lgkmcnt(0)"]]
            vl = []
            for n in range(8):
                k0, k1 = KVR + 2 * n, KVR + 2 * n + 1
                t = 48 + 4 * n
                vl += [f"v_and_b32 v{t}, 0xffff0000, v{k1}", f"v_lshlrev_b32 v{t + 1}, 16, v{k1}",
                       f"v_and_b32 v{t + 2}, 0xffff0000, v{k0}", f"v_lshlrev_b32 v{t + 3}, 16, v{k0}"]
                vl += [f"v_mul_f32 v{t + i}, s{sD}, v{t + i}" for i in range(4)]
                vl += [f"v_cvt_pk_bf16_f32 v{t + i}, 0, v{t + i}" for i in range(4)]
            rl += [vl[i:i + 4] for i in range(0, 96, 4)]
        for m in range(8):
            for p in range(8 - m):
                cc = "0" if (ci == 0 and m == 0) else vr(ACC + 4 * (m + p), 4)
                e(f"v_mfma_f32_16x16x32_bf16 {vr(ACC + 4 * (m + p), 4)}, {vr(AR[st] + 4 * p, 4)}, "
                  f"{vr(BR[st] + 4 * m, 4)}, {cc}")
                if rl:
                    x = rl.pop(0)
                    for y in (x if isinstance(x, list) else [x]):
                        e(y)
        assert not rl
    stamp(9)
    c("epilogue: y2 = bf16(bf16(y) + bf16(kv*D)), store y2T")
    e(f"s_add_u32 s3, s{sCH}, {WS_Y2}")
    for n in range(8):
        a = ACC + 4 * n
        t = 48 + 4 * n
        if n == 7:
            e("s_nop 3")
        for i in range(4):
            e(f"v_cvt_pk_bf16_f32 v{a + i}, 0, v{a + i}")
        for i in range(0, 4, 2):
            epk("add", a + i, a + i, t + i)
        e(f"v_cvt_pk_bf16_f32 v{a}, v{a}, v{a + 1}")
        e(f"v_cvt_pk_bf16_f32 v{a + 1}, v{a + 2}, v{a + 3}")
        e(f"buffer_store_dwordx2 {vr(a, 2)}, v4, {sr(S_WS, 4)}, s3 offen offset:{512 * n}{STC}")
    stamp(4)
    if C8:
        e(f"v_mov_b32 v14, {L_ST}")
        e("v_mov_b32 v15, 1")
        e("s_mov_b64 exec, 1")
        e("ds_add_u32 v14, v15")
        e("s_mov_b64 exec, -1")
    if CPRIO:
        e("s_setprio 0")
    if CGATE:
        c("own flag, then wait until all waves of the WG have issued their stores")
        e(f"v_lshlrev_b32 v12, s{sSG1}, v1")
        e("s_waitcnt vmcnt(0)")
        e("s_mov_b32 exec_hi, 0")
        e(f"buffer_store_byte v15, v12, {sr(S_WS, 4)}, s{sSG0} offen sc1")
        e("s_mov_b64 exec, -1")
        e(f"s_mov_b32 s{sSGX}, 0")
        e("s_mov_b32 s80, 0")
        e("k1c_g:")
        e("ds_read_b32 v13, v14")
        e("s_waitcnt lgkmcnt(0)")
        e(f"v_readfirstlane_b32 s{sT0}, v13")
        e("s_add_u32 s80, s80, 1")
        e("s_nop 2")
        e(f"s_cmp_ge_i32 s{sT0}, 4")
        e("s_cbranch_scc1 k1c_gd")
        e("s_sleep 2")
        e("s_cmp_lt_u32 s80, 0x400000")
        e("s_cbranch_scc1 k1c_g")
        e("k1c_gd:")
    if CEB:
        for i in (0, 1, 8, 9):
            for x in bload(i):
                e(x)
    e(f"s_cmp_lg_u32 s{sWM + 1}, 0")
    e("s_cbranch_scc1 g2_unit")
    e("s_mov_b32 s5, 3")
    pollbytes(sMBX, 5)
    e("s_branch g2_unit")
    flush_ool()


G2S = env('G2S', 0)


def gemm2():
    S_X, S_OUT = 44, 48
    sMT2, sNT2, sW, sT0, sT1 = 60, 61, 62, 63, 64
    sU, sAB, sBB, sHM, sMB, sFIRST, sY, sXO, sMB3, sYO = 65, 66, 67, 68, 69, 70, 71, 72, 73, 74
    ACC2, BF2, AF2 = 16, 168, 80
    XR = 4
    YR, SR_ = 80, 84

    def hook(n):
        e(f"v_lshlrev_b32 v12, s{sSG1}, v1")
        e("v_mov_b32 v13, 1")
        e(f"s_waitcnt vmcnt({n})")
        e(f"s_mov_b32 exec_lo, s{sSGX}")
        e("s_mov_b32 exec_hi, 0")
        e(f"buffer_store_byte v13, v12, {sr(S_WS, 4)}, s{sSG0} offen sc1")
        e("s_mov_b64 exec, -1")
        e(f"s_mov_b32 s{sSGX}, 0")

    def xloads():
        make_srd(S_X, P_Q, 2048 * 1024)
        make_srd(S_OUT, P_OUT, 2048 * 1024)
        c("x / out offset: row 64mt2 + 8w, col 64nt2 + l")
        e(f"s_lshl_b32 s{sXO}, s{sMT2}, 3")
        e(f"s_add_u32 s{sXO}, s{sXO}, s{sW}")
        e(f"s_lshl_b32 s{sYO}, s{sXO}, 4")
        e(f"s_lshl_b32 s{sT0}, s{sNT2}, 18")
        e(f"s_add_u32 s{sYO}, s{sYO}, s{sT0}")
        e(f"s_add_u32 s{sYO}, s{sYO}, {WS_Y2}")
        e(f"s_lshl_b32 s{sXO}, s{sXO}, 13")
        e(f"s_lshl_b32 s{sT0}, s{sNT2}, 7")
        e(f"s_add_u32 s{sXO}, s{sXO}, s{sT0}")
        e(f"s_add_u32 s{sT0}, s{sXO}, 4096")
        e("v_lshlrev_b32 v3, 1, v1")
        for r in range(8):
            e(f"v_mov_b32 v{XR + r}, 0")
        for r in range(8):
            e(f"buffer_load_short_d16_hi v{XR + r}, v3, {sr(S_X, 4)}, s{sT0 if r >= 4 else sXO} offen offset:{1024 * (r & 3)}")

    def stloads():
        e(f"s_lshr_b32 s{sT0}, s{sXO}, 13")
        e(f"s_lshl_b32 s{sT0}, s{sT0}, 6")
        e(f"s_add_u32 s{sT0}, s{sT0}, {WS_ST}")
        for j in range(4):
            e(f"buffer_load_dwordx4 {vr(SR_ + 4 * j, 4)}, off, {sr(S_WS, 4)}, s{sT0} offset:{16 * j}")

    def yload():
        e("v_lshlrev_b32 v12, 12, v1")
        e(f"buffer_load_dwordx4 {vr(YR, 4)}, v12, {sr(S_WS, 4)}, s{sYO} offen")

    e("g2_unit:")
    e(f"s_lshr_b32 s{sNT2}, s2, 5")
    e(f"s_mul_i32 s{sBB}, s{sNT2}, {WDT}")
    if UROT:
        e(f"s_add_u32 s{sU}, s{sW}, s{sNT2}")
        e(f"s_and_b32 s{sU}, s{sU}, 7")
    else:
        e(f"s_mov_b32 s{sU}, s{sW}")
    e(f"s_mul_i32 s{sT0}, s{sU}, {11 * 2048}")
    e(f"s_add_u32 s{sBB}, s{sBB}, s{sT0}")
    e(f"s_add_u32 s{sBB}, s{sBB}, {WS_WD}")
    e("v_lshlrev_b32 v2, 4, v1")
    e(f"s_lshl_b32 s{sMB}, s2, 8")
    e(f"s_add_u32 s{sMB}, s{sMB}, {WS_MB}")
    e(f"s_add_u32 s{sMB3}, s{sMB}, {MB_C}")
    e(f"s_and_b32 s{sMT2}, s2, 7")
    e(f"s_lshl_b32 s{sMT2}, s{sMT2}, 2")
    e(f"s_bfe_u32 s{sT0}, s2, 0x20003")
    e(f"s_add_u32 s{sMT2}, s{sMT2}, s{sT0}")
    e(f"s_mov_b32 s{sFIRST}, 1")
    e(f"s_mov_b32 s{sY}, 0")
    e(f"s_cmp_eq_u32 s{sNU}, 0")
    e("s_cbranch_scc1 g2_nounit")
    e(f"s_cmp_eq_u32 s{sWM}, -1")
    e("s_cbranch_scc1 g2_bd")
    if HOOKF:
        hook(0)
        stamp(9 if G2S else None)
    e(f"s_cmp_eq_u32 s{sWM}, 0")
    e("s_cbranch_scc1 g2_loop")
    pollbytes(sMB, sWM)
    e("g2_loop:")
    for i in range(22):
        e(f"buffer_load_dwordx4 {vr(BF2 + 4 * i, 4)}, v2, {sr(S_WS, 4)}, s{sBB} offen offset:{1024 * (i & 3)}")
        if i & 3 == 3:
            e(f"s_add_u32 s{sBB}, s{sBB}, 4096")
    e(f"s_cmp_eq_u32 s{sFIRST}, 0")
    e("s_cbranch_scc1 g2_l2")
    if not HOOKF:
        hook(22)
    e("g2_bd_ret:")
    stamp(9 if G2S and not HOOKF else None)
    xloads()
    for r in range(64):
        e(f"v_mov_b32 v{ACC2 + r}, 0")
    e("g2_l2:")
    c("h flags of ks 11u .. 11u+10 (+ stats flags)")
    e(f"s_mul_i32 s{sT0}, s{sU}, 11")
    e(f"s_add_u32 s{sT1}, s{sT0}, 10")
    e(f"s_lshr_b32 s{sT1}, s{sT1}, 2")
    e(f"s_lshl_b32 s{sHM}, 2, s{sT1}")
    e(f"s_lshr_b32 s{sT1}, s{sT0}, 2")
    e(f"s_lshl_b32 s{sT1}, 1, s{sT1}")
    e(f"s_sub_u32 s{sHM}, s{sHM}, s{sT1}")
    e(f"s_or_b32 s{sHM}, s{sHM}, {3 << MB_S}")
    e(f"s_mul_i32 s{sAB}, s{sMT2}, {2 * HRT}")
    e(f"s_lshl_b32 s{sT0}, s{sT0}, 10")
    e(f"s_add_u32 s{sAB}, s{sAB}, s{sT0}")
    e(f"s_add_u32 s{sT1}, s{sAB}, {HRT}")
    e(f"s_cmp_eq_u32 s{sW}, 7")
    e("s_cbranch_scc1 g2_pol")
    lds_wait(4, sHM)
    e("s_waitcnt vmcnt(0)")
    with ool("g2_pol"):
        c("poller: relay the flags until all h / stats flags are set; bit 31: y2 complete")
        e("s_mov_b32 s80, 0")
        e(f"v_mov_b32 v15, {L_ST}")
        e("g2_pol2:")
        e(f"buffer_load_ubyte v14, v1, {sr(S_WS, 4)}, s{sMB} offen sc1")
        e(f"buffer_load_ubyte v13, v1, {sr(S_WS, 4)}, s{sMB3} offen sc1")
        e("s_waitcnt vmcnt(0)")
        e("v_cmp_ne_u32 vcc, 0, v13")
        e("s_cmp_eq_u64 vcc, -1")
        e(f"s_cselect_b32 s{sT0}, 0x80000000, 0")
        e("v_cmp_ne_u32 vcc, 0, v14")
        e("s_add_u32 s80, s80, 1")
        e(f"s_or_b32 s81, vcc_lo, s{sT0}")
        e("v_mov_b32 v14, s81")
        e("ds_write_b32 v15, v14 offset:4")
        e(f"s_and_b32 s81, s81, {0x3fffff | (3 << MB_S)}")
        e(f"s_cmp_eq_u32 s81, {0x3fffff | (3 << MB_S)}")
        e("s_cbranch_scc1 g2_pol_ret")
        if PSLEEP:
            e(f"s_sleep {PSLEEP}")
        e("s_cmp_lt_u32 s80, 0x40000")
        e("s_cbranch_scc1 g2_pol2")
        e(f"v_mov_b32 v14, -1")
        e("ds_write_b32 v15, v14 offset:4")
    stamp(5)
    for j in range(11):
        for a in range(2):
            e(f"buffer_load_dwordx4 {vr(AF2 + 8 * j + 4 * a, 4)}, v2, {sr(S_WS, 4)}, s{sT1 if a else sAB} offen offset:{1024 * (j & 3)}")
        if j & 3 == 3:
            e(f"s_add_u32 s{sAB}, s{sAB}, 4096")
            e(f"s_add_u32 s{sT1}, s{sT1}, 4096")
    e(f"s_cmp_eq_u32 s{sW}, 7")
    e("s_cselect_b64 exec, -1, 0")
    e(f"buffer_load_ubyte v12, v1, {sr(S_WS, 4)}, s{sMB3} offen sc1")
    e("s_mov_b64 exec, -1")
    for j in range(11):
        if j == 9:
            e(f"v_mov_b32 v13, {L_ST}")
            e("ds_read_b64 v[14:15], v13")
            e(f"s_cmp_eq_u32 s{sU}, 7")
            e("s_cbranch_scc1 g2_mfd")
        for a in range(2):
            e(f"s_waitcnt vmcnt({22 - 2 * j - a})")
            for ct in range(2):
                acc = ACC2 + 32 * a + 16 * ct
                e(f"v_mfma_f32_32x32x16_bf16 {vr(acc, 16)}, {vr(AF2 + 8 * j + 4 * a, 4)}, {vr(BF2 + 8 * j + 4 * ct, 4)}, {vr(acc, 16)}")
    e("g2_mfd:")
    e(f"s_sub_u32 s{sNU}, s{sNU}, 1")
    e(f"s_cmp_eq_u32 s{sNU}, 0")
    e("s_cbranch_scc1 g2_ud")
    e(f"s_add_u32 s{sU}, s{sU}, 4")
    e(f"s_add_u32 s{sBB}, s{sBB}, {44 * 2048 - 5 * 4096}")
    e(f"s_mov_b32 s{sFIRST}, 0")
    e("s_nop 7")
    e("s_branch g2_loop")
    e("g2_ud:")
    stamp(6)
    e(f"s_cmp_lg_u32 s{sW}, 7")
    e("s_cbranch_scc1 g2_np")
    e("s_waitcnt vmcnt(0) lgkmcnt(0)")
    e("v_cmp_ne_u32 vcc, 0, v12")
    e("s_cmp_eq_u64 vcc, -1")
    e("s_cbranch_scc0 g2_np")
    e("v_mov_b32 v15, -1")
    e(f"v_mov_b32 v13, {L_ST}")
    e("ds_write_b32 v13, v15 offset:4")
    e("g2_np:")
    c("partial address: slot w + n*256 + ((8a + 2q + g) ^ (n & 15))*16")
    e("v_and_b32 v12, 15, v1")
    e("v_lshrrev_b32 v13, 5, v1")
    e("v_xor_b32 v12, v12, v13")
    e("v_lshlrev_b32 v12, 4, v12")
    e("v_and_b32 v13, 31, v1")
    e("v_lshl_add_u32 v12, v13, 8, v12")
    e(f"s_lshl_b32 s{sT0}, s{sW}, 14")
    e(f"v_add_u32 v12, s{sT0}, v12")
    for k in range(1, 8):
        e(f"v_xor_b32 v{BF2 + k}, {32 * k}, v12")
    e("s_waitcnt vmcnt(0) lgkmcnt(0)")
    stloads()
    e(f"v_readfirstlane_b32 s{sT0}, v14")
    e(f"v_readfirstlane_b32 s{sT1}, v15")
    e("s_nop 3")
    e(f"s_cmp_ge_i32 s{sT0}, 4")
    e("s_cbranch_scc0 g2_cnt")
    with ool("g2_cnt"):
        e("s_mov_b32 s80, 0")
        e(f"v_mov_b32 v14, {L_ST}")
        e("g2_cnt2:")
        e("s_sleep 2")
        e("ds_read_b32 v15, v14")
        e("s_waitcnt lgkmcnt(0)")
        e(f"v_readfirstlane_b32 s{sT0}, v15")
        e("s_add_u32 s80, s80, 1")
        e("s_nop 2")
        e(f"s_cmp_ge_i32 s{sT0}, 4")
        e("s_cbranch_scc1 g2_cnt_ret")
        e("s_cmp_lt_u32 s80, 0x400000")
        e("s_cbranch_scc1 g2_cnt2")
    e(f"s_bitcmp1_b32 s{sT1}, 31")
    e("s_cbranch_scc0 g2_noy")
    e(f"s_mov_b32 s{sY}, 1")
    e("v_lshlrev_b32 v14, 12, v1")
    e(f"buffer_load_dwordx4 {vr(YR, 4)}, v14, {sr(S_WS, 4)}, s{sYO} offen")
    e("g2_noy:")
    for a in range(2):
        for q in range(4):
            k = 4 * a + q
            for ct in range(2):
                e(f"ds_write_b128 v{BF2 + k if k else 12}, {vr(ACC2 + 32 * a + 16 * ct + 4 * q, 4)} offset:{8192 * ct}")
    e("g2_bar:")
    c("final: lane = column, rows 8w .. 8w+7 (chunks 2w, 2w+1)")
    e("v_and_b32 v12, 15, v1")
    e(f"s_lshl_b32 s{sT0}, s{sW}, 1")
    e(f"v_xor_b32 v12, s{sT0}, v12")
    e("v_lshlrev_b32 v12, 4, v12")
    e("v_lshl_add_u32 v12, v1, 8, v12")
    e("v_xor_b32 v13, 16, v12")
    e("v_add_u32 v14, 0x10000, v12")
    e("v_add_u32 v15, 0x10000, v13")
    e("s_waitcnt lgkmcnt(0)")
    e("s_barrier")
    stamp(7)
    P = ACC2
    e(f"v_mov_b32 v2, {L_ST}")
    e("ds_read_b32 v2, v2 offset:4")
    for j in range(4):
        for h in range(2):
            e(f"ds_read_b128 {vr(P + 8 * j + 4 * h, 4)}, v{12 + h} offset:{16384 * j}")
    e("s_waitcnt lgkmcnt(8)")
    e(f"v_readfirstlane_b32 s{sT1}, v2")
    e("v_lshlrev_b32 v2, 12, v1")
    e("s_nop 2")
    e(f"s_lshr_b32 s{sT1}, s{sT1}, 31")
    e(f"s_cmp_gt_u32 s{sT1}, s{sY}")
    e("s_cbranch_scc0 g2_y2n")
    e(f"s_mov_b32 s{sY}, 1")
    e(f"buffer_load_dwordx4 {vr(YR, 4)}, v2, {sr(S_WS, 4)}, s{sYO} offen")
    e("g2_y2n:")
    e(f"s_cmp_lg_u32 s{sNS}, 0")
    e("s_cbranch_scc1 g2_s4")
    for j in range(4):
        for h in range(2):
            e(f"ds_read_b128 {vr(P + 32 + 8 * j + 4 * h, 4)}, v{14 + h} offset:{16384 * j}")
    for j in range(4):
        e(f"s_waitcnt lgkmcnt({6 - 2 * j})")
        for d in range(0, 8, 2):
            e(f"v_pk_add_f32 {vr(P + 8 * j + d, 2)}, {vr(P + 8 * j + d, 2)}, {vr(P + 32 + 8 * j + d, 2)}")
    e("g2_s4:")
    e("s_waitcnt lgkmcnt(0)")
    for a, b in ((0, 1), (2, 3), (0, 2)):
        for d in range(0, 8, 2):
            e(f"v_pk_add_f32 {vr(P + 8 * a + d, 2)}, {vr(P + 8 * a + d, 2)}, {vr(P + 8 * b + d, 2)}")
    for r in range(8):
        e(f"v_cvt_pk_bf16_f32 v{P + r}, 0, v{P + r}")
    e(f"s_cmp_lg_u32 s{sY}, 0")
    e("s_cbranch_scc1 g2_ydone")
    e(f"s_cmp_eq_u32 s{sW}, 7")
    e("s_cbranch_scc1 g2_yp0")
    e(f"s_mov_b32 s{sHM}, 0x80000000")
    lds_wait(4, sHM)
    e("s_branch g2_ypd2")
    e("g2_yp0:")
    e("s_mov_b32 s80, 0")
    e("g2_yp:")
    e(f"buffer_load_ubyte v14, v1, {sr(S_WS, 4)}, s{sMB3} offen sc1")
    e("s_waitcnt vmcnt(0)")
    e("v_cmp_ne_u32 vcc, 0, v14")
    e("s_add_u32 s80, s80, 1")
    e("s_cmp_eq_u64 vcc, -1")
    e("s_cbranch_scc1 g2_ypd")
    e("s_cmp_lt_u32 s80, 0x40000")
    e("s_cbranch_scc1 g2_yp")
    e("g2_ypd:")
    e(f"v_mov_b32 v15, {L_ST}")
    e("v_mov_b32 v14, -1")
    e("ds_write_b32 v15, v14 offset:4")
    e("g2_ypd2:")
    yload()
    e("g2_ydone:")
    stamp(8)
    XN = P + 8
    e("s_waitcnt vmcnt(1)")
    for r in range(8):
        e(f"v_fma_f32 v{XN + r}, v{XR + r}, v{SR_ + 2 * r}, v{SR_ + 2 * r + 1}")
    for r in range(8):
        e(f"v_cvt_pk_bf16_f32 v{XN + r}, 0, v{XN + r}")
    e(f"s_add_u32 s{sT0}, s{sXO}, 4096")
    e("s_waitcnt vmcnt(0)")
    YF = P + 16
    for d in range(4):
        e(f"v_lshlrev_b32 v{YF + 2 * d}, 16, v{YR + d}")
        e(f"v_and_b32 v{YF + 2 * d + 1}, 0xffff0000, v{YR + d}")
    for d in range(0, 8, 2):
        e(f"v_pk_mul_f32 {vr(YF + d, 2)}, {vr(YF + d, 2)}, {vr(XN + d, 2)}")
    for r in range(8):
        e(f"v_cvt_pk_bf16_f32 v{YF + r}, 0, v{YF + r}")
    for d in range(0, 8, 2):
        e(f"v_pk_add_f32 {vr(YF + d, 2)}, {vr(YF + d, 2)}, {vr(XR + d, 2)}")
    for r in range(8):
        e(f"v_cvt_pk_bf16_f32 v{YF + r}, 0, v{YF + r}")
    for d in range(0, 8, 2):
        e(f"v_pk_add_f32 {vr(YF + d, 2)}, {vr(YF + d, 2)}, {vr(P + d, 2)}")
        e(f"v_cvt_pk_bf16_f32 v{YF + d}, v{YF + d}, v{YF + d + 1}")
        s = sT0 if d >= 4 else sXO
        e(f"buffer_store_short v{YF + d}, v3, {sr(S_OUT, 4)}, s{s} offen offset:{1024 * (d & 3)}")
        e(f"buffer_store_short_d16_hi v{YF + d}, v3, {sr(S_OUT, 4)}, s{s} offen offset:{1024 * ((d + 1) & 3)}")
    stamp_flush(S_WS, WS_PROF)
    e("k1_done:")
    e("s_endpgm")
    flush_ool()
    e("g2_bd:")
    hook(0)
    stamp(9 if G2S else None)
    e("s_branch g2_bd_ret")
    e("g2_nounit:")
    hook(0)
    xloads()
    e(f"s_mov_b32 s{sHM}, {3 << MB_S}")
    pollbytes(sMB, sHM)
    stloads()
    e("s_branch g2_bar")


def kernel1():
    e(".globl k1_kernel")
    e(".p2align 8")
    e(".type k1_kernel,@function")
    e("k1_kernel:")
    e("s_cmp_ge_u32 s2, 256")
    e("s_cbranch_scc1 k1_done")
    load_ptrs()
    e(f"s_cmp_lt_u32 s2, {K1_NCONV}")
    e("s_cbranch_scc1 k1_conv")
    e(f"s_cmp_lt_u32 s2, {K1_NCONV + K1_NGEMM}")
    e("s_cbranch_scc1 k1_gemm")
    k1_aux()
    k1_gemm()
    k1_conv()
    gemm2()


def descriptor(name, nv):
    L.append(".p2align 6")
    L.append(f".amdhsa_kernel {name}")
    L.append(f"  .amdhsa_next_free_vgpr {nv}")
    L.append("  .amdhsa_next_free_sgpr 102")
    L.append(f"  .amdhsa_accum_offset {nv}")
    L.append("  .amdhsa_group_segment_fixed_size 0")
    L.append("  .amdhsa_kernarg_size 104")
    L.append("  .amdhsa_user_sgpr_count 2")
    L.append("  .amdhsa_user_sgpr_kernarg_segment_ptr 1")
    L.append("  .amdhsa_system_sgpr_workgroup_id_x 1")
    L.append(".end_amdhsa_kernel")


def main():
    hdr = open(f"cdna_kernels/{NAME}.s.ref").read().split("\n")
    for line in hdr:
        if line.startswith("; Override") or line.startswith("; grid=") or "@launch" in line:
            continue
        if not line.startswith(";"):
            break
        L.append(line)
    L.append(f"; @launch kernel=k1_kernel grid=(256,1,1) block=(512,1,1) lds=163840")
    L.append('.amdgcn_target "amdgcn-amd-amdhsa--gfx950"')
    L.append(".text")
    kernel1()
    L.append('.section .rodata,"a"')
    descriptor("k1_kernel", 256)
    out = sys.argv[1] if len(sys.argv) > 1 else f"cdna_kernels/{NAME}.s"
    open(out, "w").write("\n".join(L) + "\n")


if __name__ == "__main__":
    main()
```

```python
import os
import sys

NAME = "parallel_sum__ssm_conv_h3__glu_gated_bilinear__prompt"

WS_H = 0
HRT = 88 * 1024
WS_Y2 = 0x600000
WS_ST = 0x800000
WS_CS = 0x880000
WS_SP = 0x8C0000
WS_MB = 0x900000
WS_WD = 0xA00000
WDT = 88 * 2048
WS_KV = 0xC00000
ZOFF = 16
MB_H, MB_W, MB_S = 0, 22, 24
MB_CS, MB_ST, MB_KV = 64, 80, 88
MB_C = 128


def env(k, d):
    return int(os.environ.get(k, str(d)))


PSLEEP = env('PSLEEP', 1)
NI = env('NI', 2)
RPG = env('RPG', 2)
SPG = env('SPG', 6)
S_POLL = env('S_POLL', 3)
SKD = env('SKD', 1)
PFO = env('PFO', 0)
PC = env('PC', 0)
PS = env('PS', 1)
SG = env('SG', 2)
ASLEEP = env('ASLEEP', 0)
CPRIO = env('CPRIO', 2)
MAP = env('MAP', 0)
GSLEEP = env('GSLEEP', 0)
EB = env('EB', 1)
EBN = env('EBN', 8)
CGATE = env('CGATE', 0)
CSLEEP = env('CSLEEP', 8)
C8 = env('C8', 1)
XPF = env('XPF', 0)
XSL = env('XSL', 0)
ROT = env('ROT', 0)
UROT = env('UROT', 1)
APF = env('APF', 1)
BL = env('BL', 1)
CEB = env('CEB', 1)
PGAP = env('PGAP', 1)
CPOL = env('CPOL', 2)
PWAIT = env('PWAIT', 1)
RID = env('RID', 240)
AW = env('AW', 8)
YPOS = env('YPOS', 12)
XPOS = env('XPOS', 12)
KVF = env('KVF', 0)
CS3 = env('CS3', 0)
STC = ' sc1'
STH = os.environ.get('STH', ' sc1')
STK = os.environ.get('STK', ' sc1')
HOOKF = env('HOOKF', 1)
L = []


def e(s=""):
    L.append("    " + s if s and not s.endswith(":") else s)


def c(s):
    L.append("    ; " + s)


PROF = len(sys.argv) > 2 and sys.argv[2] == "prof"
WS_PROF = 0xE00000
SPAIR = [6, 8, 10, 12, 14, 88, 90, 92, 94, 96, 100]
sRT = 83


def stamp(k=None):
    if not PROF or k is None:
        return
    if k == 0:
        e("s_memrealtime s[98:99]")
        e("s_waitcnt lgkmcnt(0)")
        e(f"s_mov_b32 s{sRT}, s98")
        for p in SPAIR:
            e(f"s_mov_b32 s{p}, 0")
    e(f"s_memtime s[{SPAIR[k]}:{SPAIR[k] + 1}]")
    e("s_waitcnt lgkmcnt(0)")


def stamp_flush(srd, base):
    if not PROF:
        return
    stamp(10)
    e("s_memrealtime s[98:99]")
    e("s_waitcnt lgkmcnt(0)")
    e("v_writelane_b32 v255, s98, 62")
    e(f"v_writelane_b32 v255, s{sRT}, 63")
    for k, p in enumerate(SPAIR):
        e(f"v_writelane_b32 v255, s{p}, {k}")
    e("v_lshrrev_b32 v253, 6, v0")
    e("v_lshl_add_u32 v253, s2, 3, v253")
    e("v_lshlrev_b32 v253, 8, v253")
    e("v_and_b32 v254, 63, v0")
    e("v_lshl_add_u32 v253, v254, 2, v253")
    e(f"v_add_u32 v253, {base}, v253")
    e(f"buffer_store_dword v255, v253, {sr(srd, 4)}, 0 offen")


OOL = []


class ool:
    def __init__(self, label):
        self.label = label

    def __enter__(self):
        global L
        self.saved = L
        L = []
        L.append(f"{self.label}:")

    def __exit__(self, *a):
        global L
        L.append(f"    s_branch {self.label}_ret")
        OOL.extend(L)
        L = self.saved
        L.append(f"{self.label}_ret:")


def flush_ool():
    L.extend(OOL)
    OOL.clear()


def vr(a, n=1):
    return f"v{a}" if n == 1 else f"v[{a}:{a + n - 1}]"


def sr(a, n=1):
    return f"s{a}" if n == 1 else f"s[{a}:{a + n - 1}]"


def make_srd(d, ptr, nbytes):
    e(f"s_mov_b32 s{d}, s{ptr}")
    e(f"s_and_b32 s{d + 1}, s{ptr + 1}, 0xffff")
    e(f"s_mov_b32 s{d + 2}, {nbytes}")
    e(f"s_mov_b32 s{d + 3}, 0x00020000")


P_Q, P_K, P_V, P_SH, P_SK, P_SD, P_BX, P_WG = 16, 18, 20, 22, 24, 26, 28, 30
P_WU, P_WD, P_OUT, P_DBG, P_WS = 32, 34, 36, 38, 40


def load_ptrs():
    e("s_load_dwordx16 s[16:31], s[0:1], 0")
    e("s_load_dwordx8 s[32:39], s[0:1], 64")
    e("s_load_dwordx2 s[40:41], s[0:1], 96")


S_DB2 = 84
S_WS = 56
_lbl = [0]
sZ = 82


def zload():
    e(f"s_load_dword s{sZ}, {sr(P_DBG, 2)}, {ZOFF}")


def zcheck():
    _lbl[0] += 1
    n = _lbl[0]
    e(f"s_cmp_ge_u32 s{sZ}, 1")
    e(f"s_cbranch_scc1 sig_go{n}")
    make_srd(S_DB2, P_DBG, 256)
    e(f"v_mov_b32 v15, {ZOFF}")
    e("s_mov_b32 s80, 0")
    e(f"zp{n}:")
    e(f"buffer_load_dword v14, v15, {sr(S_DB2, 4)}, 0 offen sc1")
    e("s_waitcnt vmcnt(0)")
    e("v_readfirstlane_b32 s81, v14")
    e("s_nop 3")
    e("s_add_u32 s80, s80, 1")
    e("s_cmp_ge_u32 s81, 1")
    e(f"s_cbranch_scc1 zd{n}")
    e("s_sleep 8")
    e("s_cmp_lt_u32 s80, 0x40000")
    e(f"s_cbranch_scc1 zp{n}")
    e(f"zd{n}:")
    e(f"s_mov_b32 s{sZ}, 1")
    e(f"sig_go{n}:")


def pollbytes(sOff, sMask, first=None):
    _lbl[0] += 1
    n = _lbl[0]
    if first is not None:
        e(f"v_cmp_ne_u32 vcc, 0, v{first}")
        e(f"s_and_b32 s81, vcc_lo, s{sMask}")
        e(f"s_cmp_eq_u32 s81, s{sMask}")
        e(f"s_cbranch_scc1 polled{n}")
    e("s_mov_b32 s80, 0")
    e(f"poll{n}:")
    e(f"buffer_load_ubyte v14, v1, {sr(S_WS, 4)}, s{sOff} offen sc1")
    e("s_waitcnt vmcnt(0)")
    e("v_cmp_ne_u32 vcc, 0, v14")
    e("s_add_u32 s80, s80, 1")
    e(f"s_and_b32 s81, vcc_lo, s{sMask}")
    e(f"s_cmp_eq_u32 s81, s{sMask}")
    e(f"s_cbranch_scc1 polled{n}")
    if PSLEEP:
        e(f"s_sleep {PSLEEP}")
    e("s_cmp_lt_u32 s80, 0x40000")
    e(f"s_cbranch_scc1 poll{n}")
    e(f"polled{n}:")


K1_NCONV = 64
K1_NGEMM = 176
STG = 49152
MISC = 147456
L_CS = MISC
L_MN = MISC + 8192
L_RS = MISC + 12288
L_ST = 163328

sSGX = 42
sWM = 43
sNU = 76
sNS = 77
sSG0, sSG1 = 78, 79


def state_init(val, a=12):
    e(f"v_mov_b32 v{a}, {val}")
    e(f"v_mov_b32 v{a + 1}, 0")
    e(f"v_mov_b32 v{a + 2}, 0")
    e(f"v_mov_b32 v{a + 3}, {L_ST}")
    e(f"ds_write_b96 v{a + 3}, {vr(a, 3)}")


def lds_wait(off, sMask):
    _lbl[0] += 1
    n = _lbl[0]
    e(f"v_mov_b32 v14, {L_ST}")
    e("s_mov_b32 s80, 0")
    e(f"lw{n}:")
    e(f"ds_read_b32 v15, v14 offset:{off}")
    e("s_waitcnt lgkmcnt(0)")
    e("v_readfirstlane_b32 s81, v15")
    e("s_add_u32 s80, s80, 1")
    e("s_nop 2")
    e(f"s_and_b32 s81, s81, s{sMask}")
    e(f"s_cmp_eq_u32 s81, s{sMask}")
    e(f"s_cbranch_scc1 lwd{n}")
    e("s_sleep 1")
    e("s_cmp_lt_u32 s80, 0x1000000")
    e(f"s_cbranch_scc1 lw{n}")
    e(f"lwd{n}:")


def sig_h(mt2, byte, t):
    e(f"s_and_b32 s{t}, s{mt2}, 3")
    e(f"s_lshl_b32 s{t}, s{t}, 3")
    e(f"s_lshr_b32 s{sSG0}, s{mt2}, 2")
    e(f"s_add_u32 s{sSG0}, s{sSG0}, s{t}")
    e(f"s_lshl_b32 s{sSG0}, s{sSG0}, 8")
    e(f"s_add_u32 s{sSG0}, s{sSG0}, s{byte}")
    e(f"s_add_u32 s{sSG0}, s{sSG0}, {WS_MB}")
    e(f"s_mov_b32 s{sSG1}, 13")


def stats_math(SX, SQ, T, RS, NM):
    return [f"v_mul_f32 v{T}, 0x3b000000, v{SX}",
            f"v_mul_f32 v{T + 2}, 0x3b000000, v{SQ}",
            f"v_fma_f32 v{T + 2}, -v{T}, v{T}, v{T + 2}",
            f"v_max_f32 v{T + 2}, 0, v{T + 2}",
            f"v_cvt_pk_bf16_f32 v{T + 1}, v{T}, v{T + 2}",
            f"v_lshlrev_b32 v{T + 4}, 16, v{T + 1}",
            f"v_and_b32 v{T + 2}, 0xffff0000, v{T + 1}",
            f"v_add_f32 v{T + 2}, 0x3727c5ac, v{T + 2}",
            f"v_cvt_pk_bf16_f32 v{T + 2}, v{T + 2}, v{T + 2}",
            f"v_and_b32 v{T + 2}, 0xffff0000, v{T + 2}",
            f"v_sqrt_f32 v{T + 2}, v{T + 2}",
            "s_nop 0",
            f"v_cvt_pk_bf16_f32 v{T + 2}, v{T + 2}, v{T + 2}",
            f"v_and_b32 v{T + 2}, 0xffff0000, v{T + 2}",
            f"v_rcp_f32 v{RS}, v{T + 2}",
            "s_nop 0",
            f"v_mul_f32 v{NM}, v{T + 4}, v{RS}",
            f"v_sub_f32 v{NM}, 0, v{NM}"]


def pk(op, d, a, b, c_=None):
    return [f"v_{op}_f32 v{d + i}, v{a + i}, v{b + i}" + (f", v{c_ + i}" if c_ is not None else "") for i in range(2)]


def epk(*a):
    for x in pk(*a):
        e(x)


class VMQ:
    def __init__(self, init=()):
        self.q = list(init)

    def emit(self, x, tag=None):
        e(x)
        if x.startswith("buffer_"):
            self.q.append(tag)

    def n(self, *tags):
        last = max(i for i, t in enumerate(self.q) if t in tags)
        return min(63, len(self.q) - 1 - last)

    def wait(self, *tags, extra=""):
        e(f"s_waitcnt vmcnt({self.n(*tags)}){extra}")


def k1_gemm():
    S_X, S_WG, S_WU = 44, 48, 52
    sMT, sNT, sW, sT0, sT1 = 60, 61, 62, 63, 64
    e("k1_gemm:")
    e("s_sub_u32 s3, s2, %d" % K1_NCONV)
    if MAP:
        c("mt = 2 (t%8) + ((t/8)&1) ; nt = t/16")
        e("s_and_b32 s4, s3, 7")
        e("s_lshl_b32 s4, s4, 1")
        e("s_bfe_u32 s5, s3, 0x10003")
        e(f"s_add_u32 s{sMT}, s4, s5")
        e(f"s_lshr_b32 s{sNT}, s3, 4")
    else:
        c("k = 22*(t%8) + t/8 ; mh = k/88 ; rem = k%88 ; nt = rem/8 ; mt = mh*8 + rem%8")
        e("s_and_b32 s4, s3, 7")
        e("s_mul_i32 s4, s4, 22")
        e("s_lshr_b32 s5, s3, 3")
        e("s_add_u32 s4, s4, s5")
        e("s_cmp_ge_u32 s4, 88")
        e("s_cselect_b32 s5, 88, 0")
        e(f"s_cselect_b32 s{sMT}, 8, 0")
        e("s_sub_u32 s4, s4, s5")
        e(f"s_lshr_b32 s{sNT}, s4, 3")
        e("s_and_b32 s4, s4, 7")
        e(f"s_add_u32 s{sMT}, s{sMT}, s4")
    e("v_lshrrev_b32 v2, 6, v0")
    e("v_and_b32 v1, 63, v0")
    e(f"v_readfirstlane_b32 s{sW}, v2")
    e("s_nop 3")
    e(f"s_cmp_ge_u32 s{sW}, 4")
    e("s_cbranch_scc1 k1_help")

    AF, BF, ACC, vAD = 16, 32, 64, 192
    vH, RSV, CO, MO = 210, 212, 216, 224
    sRH, sNH, sHB = 65, 66, 67
    e(f"s_and_b32 s{sRH}, s{sW}, 1")
    e(f"s_lshr_b32 s{sNH}, s{sW}, 1")
    c("A frag read address: 32768 + r*128 + ((2kk+g) ^ ((r>>1)&7))*16 ; r = 64 rh + 32 a + l%32")
    e(f"s_lshl_b32 s{sT0}, s{sRH}, 6")
    e("v_and_b32 v2, 31, v1")
    e(f"v_add_u32 v6, s{sT0}, v2")
    e("v_lshrrev_b32 v7, 1, v2")
    e("v_and_b32 v7, 7, v7")
    e("v_lshrrev_b32 v8, 5, v1")
    e("v_xor_b32 v7, v7, v8")
    e("v_lshlrev_b32 v7, 4, v7")
    e("v_lshl_add_u32 v7, v6, 7, v7")
    e("v_add_u32 v10, 32768, v7")
    e(f"v_lshlrev_b32 v9, 2, v6")
    e(f"v_add_u32 v9, {L_RS}, v9")
    c("B tr-read lane addresses for tiles T0=2nh, T1=2nh+1")
    e("v_and_b32 v2, 15, v1")
    e("v_lshrrev_b32 v6, 2, v2")
    e("v_lshrrev_b32 v7, 5, v1")
    e("v_lshl_add_u32 v7, v7, 3, v6")
    e("v_lshlrev_b32 v7, 8, v7")
    e("v_lshrrev_b32 v8, 4, v1")
    e("v_and_b32 v8, 1, v8")
    e("v_lshlrev_b32 v8, 5, v8")
    e("v_add_u32 v7, v7, v8")
    e("v_and_b32 v8, 3, v2")
    e("v_lshlrev_b32 v8, 3, v8")
    e("v_add_u32 v7, v7, v8")
    e(f"s_lshl_b32 s{sT0}, s{sNH}, 1")
    e(f"v_xor_b32 v8, s{sT0}, v6")
    e("v_lshl_add_u32 v11, v8, 6, v7")
    e("v_xor_b32 v8, 1, v8")
    e("v_lshl_add_u32 v12, v8, 6, v7")
    for t in range(3):
        e(f"v_add_u32 v{vAD + 6 * t}, {STG * t}, v11")
        e(f"v_add_u32 v{vAD + 6 * t + 1}, {STG * t}, v12")
        e(f"v_add_u32 v{vAD + 6 * t + 2}, {STG * t}, v10")
        for kk in range(1, 4):
            e(f"v_xor_b32 v{vAD + 6 * t + 2 + kk}, {32 * kk}, v{vAD + 6 * t + 2}")
    e(f"v_lshlrev_b32 v{vH}, 4, v1")
    c("operand addresses: cs tile (part*4 + 2nh + T), mean tile (2rh + a)")
    e(f"s_lshl_b32 s{sT0}, s{sNH}, 11")
    e(f"s_add_u32 s{sT0}, s{sT0}, {L_CS}")
    e(f"v_add_u32 v10, s{sT0}, v{vH}")
    e(f"s_lshl_b32 s{sT0}, s{sRH}, 11")
    e(f"s_add_u32 s{sT0}, s{sT0}, {L_MN}")
    e(f"v_add_u32 v11, s{sT0}, v{vH}")
    c("h store base: (4mt + 2rh)*HRT + (8nt + 4nh)*1024")
    e(f"s_lshl_b32 s{sT0}, s{sMT}, 1")
    e(f"s_add_u32 s{sT0}, s{sT0}, s{sRH}")
    e(f"s_mul_i32 s{sHB}, s{sT0}, {2 * HRT}")
    e(f"s_lshl_b32 s{sT1}, s{sNT}, 1")
    e(f"s_add_u32 s{sT1}, s{sT1}, s{sNH}")
    sig_h(sT0, sT1, 3)
    e(f"s_lshl_b32 s{sT1}, s{sT1}, 12")
    e(f"s_add_u32 s{sHB}, s{sHB}, s{sT1}")
    e(f"s_mov_b32 s{sSGX}, 0xff")
    e(f"s_mov_b32 s{sWM}, 0")
    e(f"s_mov_b32 s{sNU}, 1")
    e(f"s_mov_b32 s{sNS}, 0")
    e(f"v_mov_b32 v14, {L_ST}")
    e("v_mov_b32 v15, 1")
    e("s_waitcnt lgkmcnt(0)")
    stamp(0)
    make_srd(S_WS, P_WS, 0x1000000)
    if XPF:
        c("L2 prefetch: W rows 64(mt%8).. of the other part, x slabs 2+2(nt%3), 3+2(nt%3)")
        for _ in range(XSL):
            e("s_sleep 4")
        make_srd(S_X, P_Q, 2048 * 1024)
        e(f"s_cmp_ge_u32 s{sMT}, 8")
        e(f"s_cselect_b32 s{S_WG}, s{P_WG}, s{P_WU}")
        e(f"s_cselect_b32 s{S_WG + 1}, s{P_WG + 1}, s{P_WU + 1}")
        e(f"s_and_b32 s{S_WG + 1}, s{S_WG + 1}, 0xffff")
        e(f"s_mov_b32 s{S_WG + 2}, {512 * 2752}")
        e(f"s_mov_b32 s{S_WG + 3}, 0x00020000")
        e("v_lshrrev_b32 v2, 4, v1")
        e("v_and_b32 v3, 15, v1")
        e("v_lshlrev_b32 v3, 4, v3")
        e("v_lshl_add_u32 v4, v2, 10, v3")
        e("v_mul_u32_u24 v2, 2752, v2")
        e("v_add_u32 v3, v2, v3")
        e(f"s_and_b32 s3, s{sMT}, 7")
        e("s_lshl_b32 s3, s3, 2")
        e(f"s_add_u32 s3, s3, s{sW}")
        e(f"s_mul_i32 s3, s3, {16 * 2752}")
        e(f"s_lshl_b32 s{sT0}, s{sNT}, 8")
        e(f"s_add_u32 s3, s3, s{sT0}")
        e(f"s_mul_i32 s{sT0}, s{sNT}, 11")
        e(f"s_lshr_b32 s{sT0}, s{sT0}, 5")
        e(f"s_mul_i32 s{sT0}, s{sT0}, 3")
        e(f"s_sub_u32 s{sT0}, s{sNT}, s{sT0}")
        e(f"s_lshl_b32 s{sT0}, s{sT0}, 8")
        e(f"s_lshl_b32 s4, s{sMT}, 2")
        e(f"s_add_u32 s4, s4, s{sW}")
        e("s_lshl_b32 s4, s4, 15")
        e(f"s_add_u32 s4, s4, s{sT0}")
        e("s_add_u32 s4, s4, 256")
        for j in range(8):
            if XPF & 1:
                e(f"buffer_load_dwordx4 v[232:235], v4, {sr(S_X, 4)}, s4 offen")
                e("s_add_u32 s4, s4, 4096")
            if j < 4 and XPF & 2:
                e(f"buffer_load_dwordx4 v[236:239], v3, {sr(S_WG, 4)}, s3 offen")
                e(f"s_add_u32 s3, s3, {4 * 2752}")

    M = []
    R = []

    def rd(ins, reg, n, slab):
        R.append(dict(ins=ins, regs=set(range(reg, reg + n)), slab=slab))
        return len(R) - 1

    def rdA(s, kk, a, reg):
        return rd(f"ds_read_b128 {vr(reg, 4)}, v{vAD + 6 * (s % 3) + 2 + kk} offset:{4096 * a}", reg, 4, s)

    def rdB(s, kk, part, T, reg):
        return [rd(f"ds_read_b64_tr_b16 {vr(reg + 2 * u, 2)}, v{vAD + 6 * (s % 3) + T} "
                   f"offset:{part * 16384 + (16 * kk + 4 * u) * 256}", reg + 2 * u, 2, s) for u in range(2)]

    def mf(acc, b, a, needs, first=False):
        cc = "0" if first else vr(acc, 16)
        M.append(dict(ins=f"v_mfma_f32_32x32x16_bf16 {vr(acc, 16)}, {vr(b, 4)}, {vr(a, 4)}, {cc}", needs=needs,
                      regs=set(range(b, b + 4)) | set(range(a, a + 4)), bar=None, side=None))

    for s in range(7):
        for kk in range(4):
            st = kk & 1
            a0 = rdA(s, kk, 0, AF + 8 * st)
            b = [rdB(s, kk, ti >> 1, ti & 1, BF + 16 * st + 4 * ti) for ti in range(4)]
            a1 = rdA(s, kk, 1, AF + 8 * st + 4)
            for m in range(8):
                a, ti = m >> 2, m & 3
                mf(ACC + 16 * m, BF + 16 * st + 4 * ti, AF + 8 * st + 4 * a, [a1 if a else a0] + b[ti], s == 0 and kk == 0)
                if kk == 3 and m == 0:
                    M[-1]["bar"] = s
    VM = []

    def epilogue(a, T):
        G, U = ACC + 16 * (4 * a + T), ACC + 16 * (4 * a + 2 + T)
        rs = vr(RSV + 2 * a, 2)
        last = (a, T) == (1, 1)
        s = []
        for f in range(2):
            for r in range(8 * f, 8 * f + 8, 2):
                if last:
                    s += [f"v_pk_mul_f32 {vr(G + r, 2)}, {vr(G + r, 2)}, {rs}",
                          f"v_pk_mul_f32 {vr(U + r, 2)}, {vr(U + r, 2)}, {rs}"]
                else:
                    s += pk("mul", G + r, G + r, RSV + 2 * a) + pk("mul", U + r, U + r, RSV + 2 * a)
                s += [f"v_cvt_pk_bf16_f32 v{G + r}, 0, v{G + r}",
                      f"v_cvt_pk_bf16_f32 v{G + r + 1}, 0, v{G + r + 1}",
                      f"v_cvt_pk_bf16_f32 v{U + r}, 0, v{U + r}",
                      f"v_cvt_pk_bf16_f32 v{U + r + 1}, 0, v{U + r + 1}"]
                if last:
                    s += [f"v_pk_mul_f32 {vr(G + r, 2)}, {vr(G + r, 2)}, {vr(U + r, 2)}"]
                else:
                    s += pk("mul", G + r, G + r, U + r)
                s += [f"v_cvt_pk_bf16_f32 v{G + r // 2}, v{G + r}, v{G + r + 1}"]
            s += [f"s_add_u32 s{sT0}, s{sHB}, {a * HRT + (2 * T + f) * 1024}",
                  f"buffer_store_dwordx4 {vr(G + 4 * f, 4)}, v{vH}, {sr(S_WS, 4)}, s{sT0} offen{STH}"]
        return s

    rA = {}
    extra = []
    for gi, (a, T) in enumerate([(0, 0), (0, 1), (1, 0), (1, 1)]):
        for kk in range(4):
            n = 4 * gi + kk
            if T == 0:
                rA[kk] = rdA(7, kk, a, AF + 4 * kk)
            slot = BF + 8 * (n % 4)
            bg = rdB(7, kk, 0, T, slot)
            bu = rdB(7, kk, 1, T, slot + 4)
            mf(ACC + 16 * (4 * a + T), slot, AF + 4 * kk, [rA[kk]] + bg)
            mf(ACC + 16 * (4 * a + 2 + T), slot + 4, AF + 4 * kk, [rA[kk]] + bu)
            if gi == 0 and kk == 1:
                for aa in range(2):
                    extra.append(rd(f"ds_read_b128 {vr(MO + 4 * aa, 4)}, v11 offset:{1024 * aa}", MO + 4 * aa, 4, 7))
                    extra.append(rd(f"ds_read_b32 v{RSV + 2 * aa}, v9 offset:{128 * aa}", RSV + 2 * aa, 1, 7))
                    extra.append(rd(f"ds_read_b32 v{RSV + 2 * aa + 1}, v9 offset:{128 * aa}", RSV + 2 * aa + 1, 1, 7))
        for part in range(2):
            cid = rd(f"ds_read_b128 {vr(CO + 4 * part, 4)}, v10 offset:{4096 * part + 1024 * T}", CO + 4 * part, 4, 7)
            mf(ACC + 16 * (4 * a + 2 * part + T), CO + 4 * part, MO + 4 * a, [cid] + extra)
        M[-1]["side"] = epilogue(a, T)
    first_use = {}
    for i, m in enumerate(M):
        for r in m["needs"]:
            first_use.setdefault(r, i)
    for ri, r in enumerate(R):
        r["after"] = max([i for i in range(first_use[ri]) if M[i]["regs"] & r["regs"]], default=-1)
    LQ = []
    nxt = [0]
    slab_ok = [0]

    def issue(i, n):
        while n > 0 and nxt[0] < len(R):
            r = R[nxt[0]]
            if r["after"] > i or r["slab"] > slab_ok[0] or len(LQ) >= 14:
                break
            e(r["ins"])
            LQ.append(nxt[0])
            nxt[0] += 1
            n -= 1

    def lwait(ids):
        pend = [LQ.index(x) for x in ids if x in LQ]
        for x in ids:
            assert x < nxt[0], "read not issued"
        if pend:
            last = max(pend)
            e(f"s_waitcnt lgkmcnt({len(LQ) - 1 - last})")
            del LQ[:last + 1]

    e("s_barrier")
    stamp(1)
    issue(-1, 10)
    side = []
    for i, m in enumerate(M):
        while any(x >= nxt[0] for x in m["needs"]):
            k = nxt[0]
            issue(i - 1, 1)
            assert nxt[0] > k, (i, m, R[k], LQ)
        lwait(m["needs"])
        e(m["ins"])
        if m["bar"] is not None:
            assert all(R[x]["slab"] > m["bar"] for x in range(nxt[0], len(R)))
            e("s_waitcnt lgkmcnt(0)")
            LQ.clear()
            e("s_barrier")
            slab_ok[0] = m["bar"] + 1
            if m["bar"] == 3:
                stamp(2)
            if m["bar"] == 6:
                stamp(3)
        if m["side"]:
            side.append(("gate", i + 2))
            side.extend(m["side"])
        issue(i, RPG)
        n = SPG
        while side and n > 0:
            if isinstance(side[0], tuple):
                if side[0][1] > i:
                    break
                side.pop(0)
                continue
            e(side.pop(0))
            n -= 1
    assert not LQ and nxt[0] == len(R)
    if not BL:
        e("s_mov_b64 exec, 1")
        e("ds_add_u32 v14, v15")
        e("s_mov_b64 exec, -1")
    while side:
        x = side.pop(0)
        if isinstance(x, tuple):
            e("s_nop 15")
            e("s_nop 3")
        else:
            e(x)
    stamp(4)
    e(f"s_mov_b32 s{sZ}, 1")
    if BL:
        c("GEMM2 B fragments from LDS (staged by the helper waves)")
        e(f"s_mul_i32 s{sT0}, s{sRH}, 22528")
        e(f"s_cmp_eq_u32 s{sNH}, 0")
        e(f"s_cselect_b32 s{sT1}, {2 * STG}, 0")
        e(f"s_add_u32 s{sT0}, s{sT0}, s{sT1}")
        e(f"v_add_u32 v2, s{sT0}, v{vH}")
        e(f"s_mov_b32 s{sT0}, 15")
        lds_wait(8, sT0)
        for i in range(22):
            e(f"ds_read_b128 {vr(168 + 4 * i, 4)}, v2 offset:{1024 * i}")
        e("v_mov_b32 v15, 1")
        e("s_waitcnt lgkmcnt(0)")
        e("s_mov_b64 exec, 1")
        e("ds_add_u32 v14, v15")
        e("s_mov_b64 exec, -1")
        e(f"s_mov_b32 s{sWM}, -1")
    e("s_branch g2_unit")

    sH, sWB, sXB, sLB, sPM, sMBX = 65, 66, 67, 68, 69, 70
    sEX = 72
    S_OWN = 76
    vX0, vX1, vWD, vPO = 10, 11, 12, 13
    PW, PX = 16, 32
    T = 64
    e("k1_help:")
    e(f"s_sub_u32 s{sH}, s{sW}, 4")
    c("partial sources: W rows 64(mt%8) + 16j + l/4, cols 128nt + 32h + 8(l%4) ; x rows 128mt + 32h + 8j + l/8, K slab nt%8")
    e("v_lshrrev_b32 v2, 2, v1")
    e("v_mul_u32_u24 v2, 2752, v2")
    e("v_and_b32 v3, 3, v1")
    e("v_lshl_add_u32 v8, v3, 4, v2")
    e(f"s_and_b32 s{sT0}, s{sMT}, 7")
    e(f"s_mul_i32 s{sT0}, s{sT0}, {64 * 2752}")
    e(f"s_lshl_b32 s{sT1}, s{sNT}, 8")
    e(f"s_add_u32 s{sT0}, s{sT0}, s{sT1}")
    e(f"s_lshl_b32 s3, s{sH}, 6")
    e(f"s_add_u32 s3, s3, s{sT0}")
    e("v_lshrrev_b32 v2, 3, v1")
    e("v_and_b32 v3, 7, v1")
    e("v_lshlrev_b32 v4, 4, v3")
    e("v_lshl_add_u32 v9, v2, 10, v4")
    e(f"s_lshl_b32 s{sXB}, s{sMT}, 17")
    e(f"s_lshl_b32 s{sT0}, s{sH}, 15")
    e(f"s_add_u32 s{sXB}, s{sXB}, s{sT0}")
    e(f"s_and_b32 s4, s{sNT}, 7")
    e("s_lshl_b32 s4, s4, 7")
    e(f"s_add_u32 s4, s4, s{sXB}")
    c("x DMA lane offset: row = l>>3, src chunk = (l&7) ^ (l>>4) (^4 for odd 8-row groups)")
    e("v_lshrrev_b32 v4, 4, v1")
    e("v_xor_b32 v3, v3, v4")
    e("v_lshlrev_b32 v3, 4, v3")
    e(f"v_lshl_add_u32 v{vX0}, v2, 10, v3")
    e(f"v_xor_b32 v{vX1}, 64, v{vX0}")
    c("W DMA lane offsets")
    e("v_and_b32 v5, 15, v1")
    e("v_lshlrev_b32 v6, 2, v4")
    e("v_xor_b32 v5, v5, v6")
    e("v_lshlrev_b32 v5, 4, v5")
    e("v_mul_u32_u24 v6, 2752, v4")
    e(f"v_add_u32 v{vWD}, v5, v6")
    e(f"s_mul_i32 s{sWB}, s{sH}, {16 * 2752}")
    e(f"s_add_u32 s{sWB}, s{sWB}, s{sT1}")
    e(f"s_lshl_b32 s{sLB}, s{sH}, 12")
    e("s_waitcnt lgkmcnt(0)")
    stamp(0)
    make_srd(S_X, P_Q, 2048 * 1024)
    make_srd(S_WG, P_WG, 512 * 2752)
    make_srd(S_WU, P_WU, 512 * 2752)
    e(f"s_cmp_ge_u32 s{sMT}, 8")
    e(f"s_cselect_b32 s{S_OWN}, s{S_WU}, s{S_WG}")
    e(f"s_cselect_b32 s{S_OWN + 1}, s{S_WU + 1}, s{S_WG + 1}")
    e(f"s_mov_b32 s{S_OWN + 2}, {512 * 2752}")
    e(f"s_mov_b32 s{S_OWN + 3}, 0x00020000")
    V = VMQ()

    def pf():
        for j in range(4):
            V.emit(f"buffer_load_dwordx4 {vr(PW + 4 * j, 4)}, v8, {sr(S_OWN, 4)}, s3 offen", "pf")
            V.emit(f"buffer_load_dwordx4 {vr(PX + 4 * j, 4)}, v9, {sr(S_X, 4)}, s4 offen", "pf")
            if j < 3:
                e(f"s_add_u32 s3, s3, {16 * 2752}")
                e("s_add_u32 s4, s4, 8192")

    def dma(s):
        st = (s % 3) * STG
        for j in range(4):
            e(f"s_add_u32 m0, s{sLB}, {st + 32768 + j * 1024}")
            e(f"s_add_u32 s{sT0}, s{sXB}, {j * 8192 + 128 * s}")
            V.emit(f"buffer_load_dwordx4 v{vX1 if j & 1 else vX0}, {sr(S_X, 4)}, s{sT0} offen lds", f"s{s}")
        for j in range(4):
            e(f"s_add_u32 s{sT0}, s{sWB}, {(64 * s + 4 * j) * 2752}")
            for part in range(2):
                e(f"s_add_u32 m0, s{sLB}, {st + part * 16384 + j * 1024}")
                V.emit(f"buffer_load_dwordx4 v{vWD}, {sr(S_WU if part else S_WG, 4)}, s{sT0} offen lds", f"s{s}")

    for _ in range(GSLEEP):
        e("s_sleep 8")
    for s in range(NI):
        if s == PFO:
            pf()
        dma(s)
    if PFO == NI:
        pf()
    make_srd(S_WS, P_WS, 0x1000000)
    state_init(0, 4)
    e("s_lshl_b32 s%d, s2, 8" % sMBX)
    e(f"s_add_u32 s{sMBX}, s{sMBX}, {WS_MB + 64}")
    c("flags needed: cs partials of part h/2 (8 bytes) + stats partials (8 bytes)")
    e(f"s_lshr_b32 s{sT0}, s{sH}, 1")
    e(f"s_lshl_b32 s{sT0}, s{sT0}, 3")
    e(f"s_lshl_b32 s{sPM}, 0xff, s{sT0}")
    e(f"s_or_b32 s{sPM}, s{sPM}, 0xff0000")

    def part_cs():
        V.wait("pf")
        stamp(4)
        zload()
        c("partial column sums")
        for j in range(4):
            for d in range(4):
                e(f"v_lshlrev_b32 v{T + 8 * j + 2 * d}, 16, v{PW + 4 * j + d}")
                e(f"v_and_b32 v{T + 8 * j + 2 * d + 1}, 0xffff0000, v{PW + 4 * j + d}")
        for d in range(4):
            epk("add", T + 2 * d, T + 2 * d, T + 8 + 2 * d)
            epk("add", T + 16 + 2 * d, T + 16 + 2 * d, T + 24 + 2 * d)
        for d in range(4):
            epk("add", T + 2 * d, T + 2 * d, T + 16 + 2 * d)
        e("s_nop 1")
        for i in range(4):
            e(f"v_permlane32_swap_b32 v{T + i}, v{T + 4 + i}")
        e("s_nop 1")
        for i in range(0, 4, 2):
            epk("add", T + i, T + i, T + 4 + i)
        e("s_nop 1")
        for i in range(2):
            e(f"v_permlane16_swap_b32 v{T + i}, v{T + 2 + i}")
        e("s_nop 1")
        epk("add", T, T, T + 2)
        for sh in (4, 8):
            e("s_nop 1")
            for i in range(2):
                e(f"v_add_f32_dpp v{T + i}, v{T + i}, v{T + i} row_ror:{sh} row_mask:0xf bank_mask:0xf")
        c("store: lanes with l%16 < 4: col = 32h + 8(l%4) + 2(l/16)")
        e("v_and_b32 v2, 3, v1")
        e("v_lshrrev_b32 v3, 4, v1")
        e("v_lshlrev_b32 v3, 3, v3")
        e("v_lshl_add_u32 v2, v2, 5, v3")
        e(f"s_lshl_b32 s{sT0}, s{sNT}, 4")
        e(f"s_add_u32 s{sT0}, s{sT0}, s{sMT}")
        e(f"s_lshl_b32 s{sT0}, s{sT0}, 9")
        e(f"s_lshl_b32 s{sT1}, s{sH}, 7")
        e(f"s_add_u32 s{sT0}, s{sT0}, s{sT1}")
        e(f"s_add_u32 s{sT0}, s{sT0}, {WS_CS}")
        e("s_mov_b32 exec_lo, 0x000f000f")
        e("s_mov_b32 exec_hi, 0x000f000f")
        V.emit(f"buffer_store_dwordx2 {vr(T, 2)}, v2, {sr(S_WS, 4)}, s{sT0} offen sc1", "pst")
        e("s_mov_b64 exec, -1")

    def part_st():
        c("partial row stats")
        U = T + 8
        SS = T + 48
        for j in range(4):
            for d in range(4):
                e(f"v_lshlrev_b32 v{U + 8 * j + 2 * d}, 16, v{PX + 4 * j + d}")
                e(f"v_and_b32 v{U + 8 * j + 2 * d + 1}, 0xffff0000, v{PX + 4 * j + d}")
        for j in range(4):
            u = U + 8 * j
            q = PX + 4 * j
            epk("mul", q, u, u)
            for d in range(1, 4):
                epk("fma", q, u + 2 * d, u + 2 * d, q)
            epk("add", u, u, u + 2)
            epk("add", u + 4, u + 4, u + 6)
            epk("add", u, u, u + 4)
            e(f"v_add_f32 v{SS + 2 * j}, v{u}, v{u + 1}")
            e(f"v_add_f32 v{SS + 2 * j + 1}, v{q}, v{q + 1}")
        for ctl in ("quad_perm:[1,0,3,2]", "quad_perm:[2,3,0,1]", "row_half_mirror"):
            e("s_nop 1")
            for i in range(8):
                e(f"v_add_f32_dpp v{SS + i}, v{SS + i}, v{SS + i} {ctl} row_mask:0xf bank_mask:0xf")
        e("v_and_b32 v2, 7, v1")
        for j in range(1, 4):
            e(f"v_cmp_eq_u32 vcc, {j}, v2")
            e(f"v_cndmask_b32 v{SS}, v{SS}, v{SS + 2 * j}, vcc")
            e(f"v_cndmask_b32 v{SS + 1}, v{SS + 1}, v{SS + 2 * j + 1}, vcc")
        e("v_lshrrev_b32 v3, 3, v1")
        e("v_lshl_add_u32 v2, v2, 3, v3")
        e("v_lshlrev_b32 v2, 3, v2")
        e(f"s_lshl_b32 s{sT0}, s{sMT}, 4")
        e(f"s_add_u32 s{sT0}, s{sT0}, s{sNT}")
        e(f"s_lshl_b32 s{sT0}, s{sT0}, 10")
        e(f"s_lshl_b32 s{sT1}, s{sH}, 8")
        e(f"s_add_u32 s{sT0}, s{sT0}, s{sT1}")
        e(f"s_add_u32 s{sT0}, s{sT0}, {WS_SP}")
        e("s_mov_b32 exec_lo, 0x0f0f0f0f")
        e("s_mov_b32 exec_hi, 0x0f0f0f0f")
        V.emit(f"buffer_store_dwordx2 {vr(SS, 2)}, v2, {sr(S_WS, 4)}, s{sT0} offen sc1", "pst")
        e("s_mov_b64 exec, -1")

    if PC < 0:
        part_cs()
    if PS < 0:
        part_st()
    c("signal addresses: lanes 0-15: (mt'=l, nt) byte MB_CS + mt ; lanes 16-26: (mt, nt'=l-16) byte MB_ST + nt (nt < 8)")
    e("v_cmp_gt_u32 vcc, 16, v1")
    e(f"v_mov_b32 v2, s{sMT}")
    e(f"v_mov_b32 v3, s{sNT}")
    e("v_subrev_u32 v4, 16, v1")
    e("v_cndmask_b32 v2, v2, v1, vcc")
    e("v_cndmask_b32 v3, v4, v3, vcc")
    if MAP:
        e("v_and_b32 v4, 1, v2")
        e("v_lshl_add_u32 v4, v3, 1, v4")
        e("v_lshrrev_b32 v2, 1, v2")
        e("v_lshl_add_u32 v2, v4, 3, v2")
    else:
        e("v_lshrrev_b32 v4, 3, v2")
        e("v_mul_u32_u24 v4, 88, v4")
        e("v_lshl_add_u32 v4, v3, 3, v4")
        e("v_and_b32 v2, 7, v2")
        e("v_add_u32 v4, v4, v2")
        e("v_mul_u32_u24 v2, 2979, v4")
        e("v_lshrrev_b32 v2, 16, v2")
        e("v_mul_u32_u24 v3, 22, v2")
        e("v_sub_u32 v3, v4, v3")
        e("v_lshl_add_u32 v2, v3, 3, v2")
    e("v_lshlrev_b32 v2, 8, v2")
    e(f"s_add_u32 s{sT0}, s{sMT}, {WS_MB + 64 * 256 + MB_CS}")
    e(f"s_add_u32 s{sT1}, s{sNT}, {WS_MB + 64 * 256 + MB_ST}")
    e(f"v_mov_b32 v3, s{sT1}")
    e(f"v_mov_b32 v4, s{sT0}")
    e("v_cndmask_b32 v3, v3, v4, vcc")
    e(f"v_add_u32 v{vPO}, v2, v3")
    e(f"s_cmp_lt_u32 s{sNT}, 8")
    e(f"s_cselect_b32 s{sEX}, 0x7ffffff, 0xffff") if 0 else None
    e(f"s_mov_b32 s{sEX}, 0xffff")
    e(f"s_cselect_b32 s{sEX}, 0x7ffffff, s{sEX}")
    e(f"s_cmp_eq_u32 s{sH}, 0")
    e(f"s_cselect_b32 s{sEX}, s{sEX}, 0")
    e(f"s_mov_b32 s{sEX + 1}, 0")
    V.wait("s0", extra=" lgkmcnt(0)")
    e("s_barrier")
    stamp(1)
    for s in range(NI, 3):
        dma(s)
    PL = 16
    for s in range(7):
        tags = [f"s{s + 1}"] + (["pst"] if s == SG else [])
        if s == 6:
            T = 40
            if BL:
                V.wait("pl", "s7")
            else:
                V.wait("pl", "s7", "mb2")
                e(f"s_mov_b32 s{sPM}, {3 << (MB_KV - 64)}")
                pollbytes(sMBX, sPM, first=8)
            c("column sum operand: lane = column 64(h&1) + l of part h/2: (c1|c2, c3|0, 0, 0)")
            for a, b in ((0, 1), (2, 3), (4, 5), (6, 7), (0, 2), (4, 6), (0, 4)):
                e(f"v_add_f32 v{PL + a}, v{PL + a}, v{PL + b}")
                epk("add", PL + 8 + 2 * a, PL + 8 + 2 * a, PL + 8 + 2 * b)
            e(f"v_cvt_pk_bf16_f32 v4, 0, v{PL}")
            e(f"v_sub_f32 v{PL}, v{PL}, v4")
            e(f"v_cvt_pk_bf16_f32 v5, 0, v{PL}")
            e(f"v_sub_f32 v{PL}, v{PL}, v5")
            e(f"v_cvt_pk_bf16_f32 v{T + 1}, v{PL}, 0")
            e(f"v_lshrrev_b32 v4, 16, v4")
            e(f"v_or_b32 v{T}, v4, v5")
            for r in range(2, 8):
                e(f"v_mov_b32 v{T + r}, 0")
            e("v_lshrrev_b32 v2, 5, v1")
            e("v_and_b32 v3, 31, v1")
            e("v_lshlrev_b32 v3, 4, v3")
            e("v_lshl_add_u32 v2, v2, 10, v3")
            e(f"s_lshl_b32 s{sT0}, s{sH}, 11")
            e(f"s_add_u32 s{sT0}, s{sT0}, {L_CS}")
            e(f"v_add_u32 v2, s{sT0}, v2")
            e(f"ds_write_b128 v2, {vr(T, 4)}")
            e(f"ds_write_b128 v2, {vr(T + 4, 4)} offset:512")
            c("row statistics of row tile h (lanes 0-31)")
            for x in stats_math(PL + 8, PL + 9, T + 8, T + 16, T + 17):
                e(x)
            e(f"v_xor_b32 v4, 0x80000000, v{T + 12}")
            e(f"v_lshrrev_b32 v{T + 1}, 16, v4")
            e(f"v_or_b32 v{T}, v4, v{T + 1}")
            e("v_cmp_gt_u32 vcc, 32, v1")
            e(f"v_cndmask_b32 v{T}, 0, v{T}, vcc")
            e(f"v_cndmask_b32 v{T + 1}, 0, v{T + 1}, vcc")
            e(f"s_lshl_b32 s{sT0}, s{sH}, 10")
            e(f"s_add_u32 s{sT0}, s{sT0}, {L_MN}")
            e(f"v_lshl_add_u32 v2, v1, 4, s{sT0}")
            e(f"ds_write_b128 v2, {vr(T, 4)}")
            e(f"s_lshl_b32 s{sT0}, s{sH}, 7")
            e(f"s_add_u32 s{sT0}, s{sT0}, {L_RS}")
            e(f"v_lshl_add_u32 v2, v1, 2, s{sT0}")
            e("s_mov_b32 exec_hi, 0")
            e(f"ds_write_b32 v2, v{T + 16}")
            c("nt == 0: (rs, nm) -> ws")
            e(f"s_lshl_b32 s{sT0}, s{sMT}, 10")
            e(f"s_lshl_b32 s{sT1}, s{sH}, 8")
            e(f"s_add_u32 s{sT0}, s{sT0}, s{sT1}")
            e(f"s_add_u32 s{sT0}, s{sT0}, {WS_ST}")
            e("v_lshlrev_b32 v2, 3, v1")
            e(f"s_cmp_eq_u32 s{sNT}, 0")
            e("s_cselect_b32 exec_lo, -1, 0")
            V.emit(f"buffer_store_dwordx2 {vr(T + 16, 2)}, v2, {sr(S_WS, 4)}, s{sT0} offen sc1", "ss")
            e("s_mov_b64 exec, -1")
            e("s_waitcnt lgkmcnt(0)")
        else:
            V.wait(*tags)
        e("s_barrier")
        if s == 3:
            stamp(2)
        if s == 6:
            stamp(3)
        if s == SG:
            c("everybody's partial stores are complete -> wave 4 signals the consumers")
            zcheck()
            e("v_mov_b32 v2, 1")
            e(f"s_mov_b64 exec, {sr(sEX, 2)}")
            V.emit(f"buffer_store_byte v2, v{vPO}, {sr(S_WS, 4)}, 0 offen sc1", "sig")
            e("s_mov_b64 exec, -1")
        if s == S_POLL:
            V.emit(f"buffer_load_ubyte v8, v1, {sr(S_WS, 4)}, s{sMBX} offen sc1", "mb")
        if s + 3 < 8:
            dma(s + 3)
        if s == PC:
            part_cs()
        if s == PS:
            part_st()
            e("s_waitcnt lgkmcnt(0)")
        if s == 5 and not BL:
            V.emit(f"buffer_load_ubyte v8, v1, {sr(S_WS, 4)}, s{sMBX} offen sc1", "mb2")
        if s == S_POLL + 1:
            V.wait("mb")
            pollbytes(sMBX, sPM, first=8)
            stamp(9 if EB else None)
            if EB:
                c("w_down fragments ready? (vcc = flags of the last read)")
                e(f"s_bfe_u32 s{sT0}, vcc_lo, {0x20000 + MB_KV - 64}")
                e(f"s_cmp_eq_u32 s{sT0}, 3")
                e(f"s_cselect_b32 s{sWM}, -1, 0")
            c("partial loads")
            e(f"s_lshl_b32 s{sT0}, s{sNT}, 13")
            e(f"s_lshr_b32 s{sT1}, s{sH}, 1")
            e(f"s_lshl_b32 s{sT1}, s{sT1}, 12")
            e(f"s_add_u32 s{sT0}, s{sT0}, s{sT1}")
            e(f"s_and_b32 s{sT1}, s{sH}, 1")
            e(f"s_lshl_b32 s{sT1}, s{sT1}, 8")
            e(f"s_add_u32 s{sT0}, s{sT0}, s{sT1}")
            e(f"s_add_u32 s{sT0}, s{sT0}, {WS_CS}")
            e("v_lshlrev_b32 v2, 2, v1")
            for j in range(8):
                V.emit(f"buffer_load_dword v{PL + j}, v2, {sr(S_WS, 4)}, s{sT0} offen offset:{512 * j}", "pl")
            e(f"s_lshl_b32 s{sT0}, s{sMT}, 14")
            e(f"s_lshl_b32 s{sT1}, s{sH}, 8")
            e(f"s_add_u32 s{sT0}, s{sT0}, s{sT1}")
            e(f"s_add_u32 s{sT0}, s{sT0}, {WS_SP}")
            e(f"s_add_u32 s{sT1}, s{sT0}, 4096")
            e("v_and_b32 v2, 31, v1")
            e("v_lshlrev_b32 v2, 3, v2")
            for j in range(8):
                V.emit(f"buffer_load_dwordx2 {vr(PL + 8 + 2 * j, 2)}, v2, {sr(S_WS, 4)}, s{sT1 if j >= 4 else sT0} offen "
                       f"offset:{1024 * (j & 3)}", "pl")
        if EB and s == max(4, S_POLL + 1):
            c("GEMM2 B fragments of this wave + L2 prefetch of a quarter of unit (id/8)&3")
            e("s_lshr_b32 s3, s2, 5")
            e(f"s_mul_i32 s3, s3, {WDT}")
            e(f"s_add_u32 s3, s3, {WS_WD}")
            e("s_bfe_u32 s4, s2, 0x20003")
            if UROT:
                e(f"s_lshr_b32 s{sT1}, s2, 5")
                e(f"s_add_u32 s4, s4, s{sT1}")
                e("s_and_b32 s4, s4, 7")
            e(f"s_mul_i32 s4, s4, {11 * 2048}")
            e(f"s_mul_i32 s{sT0}, s{sH}, 5632")
            e(f"s_add_u32 s4, s4, s{sT0}")
            e("s_add_u32 s4, s4, s3")
            if UROT:
                e(f"s_add_u32 s{sT0}, s{sW}, s{sT1}")
                e(f"s_and_b32 s{sT0}, s{sT0}, 7")
                e(f"s_mul_i32 s{sT0}, s{sT0}, {11 * 2048}")
            else:
                e(f"s_mul_i32 s{sT0}, s{sW}, {11 * 2048}")
            e(f"s_add_u32 s3, s3, s{sT0}")
            e("v_lshlrev_b32 v9, 4, v1")
            ebl = []
            for i in range(22):
                ebl.append(f"buffer_load_dwordx4 {vr(168 + 4 * i, 4)}, v9, {sr(S_WS, 4)}, s3 offen offset:{1024 * (i & 3)}")
                if i & 3 == 3:
                    ebl[-1] += "|s_add_u32 s3, s3, 4096"
            if EB & 2:
                for i in range(6):
                    ebl.append(f"buffer_load_dwordx4 {vr(80 + 4 * i, 4)}, v9, {sr(S_WS, 4)}, s4 offen offset:{1024 * (i & 3)}")
                    if i == 3:
                        ebl[-1] += "|s_add_u32 s4, s4, 4096"
        if EB and s >= max(4, S_POLL + 1):
            n = len(ebl) if s == 6 else EBN
            e(f"s_mov_b32 exec_lo, s{sWM}")
            e(f"s_mov_b32 exec_hi, s{sWM}")
            for x in ebl[:n]:
                for y in x.split("|"):
                    V.emit(y, "eb")
            e("s_mov_b64 exec, -1")
            del ebl[:n]
        if BL and s == 5:
            c("w_down fragments must be ready now")
            e(f"s_cmp_lg_u32 s{sWM}, 0")
            e("s_cbranch_scc1 k1h_wok")
            e(f"s_mov_b32 s{sPM}, {3 << (MB_KV - 64)}")
            pollbytes(sMBX, sPM)
            e("k1h_wok:")
        if BL and s >= 5:
            c("stage the B fragments of compute waves 2(s-5) + h/2: half h&1 (11 KB)")
            e(f"s_lshr_b32 s{sT0}, s{sH}, 1")
            e(f"s_mul_i32 s5, s{sH}, 11264")
            e(f"s_add_u32 s{sT0}, s{sT0}, {2 * (s - 5)}")
            e(f"s_lshr_b32 s{sT1}, s2, 5")
            if UROT:
                e(f"s_add_u32 s{sT0}, s{sT0}, s{sT1}")
                e(f"s_and_b32 s{sT0}, s{sT0}, 7")
            e(f"s_mul_i32 s{sT0}, s{sT0}, 22528")
            e(f"s_mul_i32 s{sT1}, s{sT1}, {WDT}")
            e(f"s_add_u32 s{sT0}, s{sT0}, s{sT1}")
            e(f"s_and_b32 s{sT1}, s{sH}, 1")
            e(f"s_mul_i32 s{sT1}, s{sT1}, 11264")
            e(f"s_add_u32 s{sT0}, s{sT0}, s{sT1}")
            e(f"s_add_u32 s{sT0}, s{sT0}, {WS_WD}")
            for i in range(11):
                e(f"s_add_u32 m0, s5, {(2 * STG if s == 5 else 0) + 1024 * i}")
                V.emit(f"buffer_load_dwordx4 v9, {sr(S_WS, 4)}, s{sT0} offen lds", "bl")
                e(f"s_add_u32 s{sT0}, s{sT0}, 1024")
    if BL:
        e(f"s_lshl_b32 s{sT0}, 1, s{sH}")
        e(f"v_mov_b32 v2, s{sT0}")
        e(f"v_mov_b32 v3, {L_ST}")
        V.wait("bl")
        e("s_mov_b64 exec, 1")
        e("ds_or_b32 v3, v2 offset:8")
        e("s_mov_b64 exec, -1")
    c("nt == 0: stats flag of row tile h to the 8 consumers of row block 2mt + h/2")
    e(f"s_lshl_b32 s{sT0}, s{sMT}, 1")
    e(f"s_lshr_b32 s{sT1}, s{sH}, 1")
    e(f"s_add_u32 s{sT0}, s{sT0}, s{sT1}")
    e(f"s_and_b32 s{sT1}, s{sH}, 1")
    e(f"s_add_u32 s{sT1}, s{sT1}, {MB_S}")
    sig_h(sT0, sT1, 3)
    e(f"s_cmp_eq_u32 s{sNT}, 0")
    e(f"s_cselect_b32 s{sSGX}, 0xff, 0")
    if not EB:
        e(f"s_mov_b32 s{sWM}, 0")
    e(f"s_mov_b32 s{sNU}, 1")
    e(f"s_mov_b32 s{sNS}, 0")
    e("s_branch g2_unit")
    flush_ool()


def k1_aux():
    S_WD = 44
    sW, sT0, sT1, sN2, sKH, sLB = 62, 63, 64, 65, 66, 67
    sKS = 68
    e("k1_aux:")
    e("v_lshrrev_b32 v2, 6, v0")
    e("v_and_b32 v1, 63, v0")
    e(f"v_readfirstlane_b32 s{sW}, v2")
    e(f"s_and_b32 s{sN2}, s2, 7")
    e(f"s_bfe_u32 s{sKH}, s2, 0x10003")
    e("v_lshrrev_b32 v2, 3, v1")
    e("v_and_b32 v3, 7, v1")
    e("v_lshlrev_b32 v3, 4, v3")
    e("v_lshl_add_u32 v2, v2, 10, v3")
    e(f"s_mul_i32 s{sLB}, s{sW}, 12288")
    e(f"s_mul_i32 s{sT1}, s{sKH}, 43")
    for j in range(6):
        e(f"s_add_u32 s{sT0}, s{sW}, {8 * j}")
        e(f"s_min_u32 s{sT0}, s{sT0}, 42")
        e(f"s_add_u32 s{sKS + j}, s{sT0}, s{sT1}")
    e("s_waitcnt lgkmcnt(0)")
    stamp(0)
    make_srd(S_WD, P_WD, 1376 * 1024)
    make_srd(S_WS, P_WS, 0x1000000)
    e("v_lshlrev_b32 v3, 4, v1")
    c("WG 240: zero all mailboxes (64 KB), then set the flag in d_debug")
    e("s_cmp_lg_u32 s2, 240")
    e("s_cbranch_scc1 aux_nz0")
    e(f"s_lshl_b32 s3, s{sW}, 13")
    e(f"s_add_u32 s3, s3, {WS_MB}")
    for r in range(4):
        e(f"v_mov_b32 v{4 + r}, 0")
    for j in range(8):
        e(f"buffer_store_dwordx4 v[4:7], v3, {sr(S_WS, 4)}, s3 offen sc1")
        e("s_add_u32 s3, s3, 1024")
    e("aux_nz0:")
    if ASLEEP:
        e("s_cmp_eq_u32 s2, 240")
        e("s_cbranch_scc1 aux_ns")
        for _ in range(ASLEEP):
            e("s_sleep 16")
        e("aux_ns:")
    e(f"s_lshl_b32 s{sT1}, s{sN2}, 7")
    for j in range(6):
        e(f"s_lshl_b32 s{sT0}, s{sKS + j}, 14")
        e(f"s_add_u32 s{sT0}, s{sT0}, s{sT1}")
        for i in range(2):
            e(f"s_add_u32 m0, s{sLB}, {2048 * j + 1024 * i}")
            if i:
                e(f"s_add_u32 s{sT0}, s{sT0}, 8192")
            e(f"buffer_load_dwordx4 v2, {sr(S_WD, 4)}, s{sT0} offen lds")
    e(f"s_mov_b32 s{sZ}, 0")
    state_init(4)
    e("s_cmp_lg_u32 s2, 240")
    e("s_cbranch_scc1 aux_nz")
    make_srd(S_DB2, P_DBG, 256)
    e("s_waitcnt vmcnt(12)")
    e("s_barrier")
    stamp(1)
    e(f"s_mov_b32 s{sZ}, 1")
    e(f"s_cmp_lg_u32 s{sW}, 0")
    e("s_cbranch_scc1 aux_nz")
    e("v_mov_b32 v14, 1")
    e(f"v_mov_b32 v15, {ZOFF}")
    e("s_mov_b64 exec, 1")
    e(f"buffer_store_dword v14, v15, {sr(S_DB2, 4)}, 0 offen sc1")
    e("s_mov_b64 exec, -1")
    e("aux_nz:")
    c("tr read address: row 4g + li/4 (+8u), col bytes 64ct + 32((l/16)&1) + 8(li%4)")
    e("v_and_b32 v4, 15, v1")
    e("v_lshrrev_b32 v5, 2, v4")
    e("v_lshrrev_b32 v6, 5, v1")
    e("v_lshl_add_u32 v5, v6, 2, v5")
    e("v_lshlrev_b32 v5, 7, v5")
    e("v_bfe_u32 v6, v1, 4, 1")
    e("v_lshl_add_u32 v5, v6, 5, v5")
    e("v_and_b32 v4, 3, v4")
    e("v_lshl_add_u32 v5, v4, 3, v5")
    e(f"v_add_u32 v5, s{sLB}, v5")
    e(f"s_mul_i32 s{sT1}, s{sN2}, {WDT}")
    e(f"s_add_u32 s{sT1}, s{sT1}, {WS_WD}")
    e("s_waitcnt vmcnt(0)")
    stamp(2)
    e("s_cmp_eq_u32 s2, 240")
    e("s_cbranch_scc1 aux_z1")
    zload()
    e("aux_z1:")
    for j in range(6):
        for ct in range(2):
            for u in range(2):
                e(f"ds_read_b64_tr_b16 {vr(16 + 8 * j + 4 * ct + 2 * u, 2)}, v5 offset:{2048 * j + 1024 * u + 64 * ct}")
        if j >= 1:
            e("s_waitcnt lgkmcnt(0)" if j == 1 else "s_waitcnt lgkmcnt(4)")
            e(f"s_lshl_b32 s{sT0}, s{sKS + j - 1}, 11")
            e(f"s_add_u32 s{sT0}, s{sT0}, s{sT1}")
            for ct in range(2):
                e(f"buffer_store_dwordx4 {vr(16 + 8 * (j - 1) + 4 * ct, 4)}, v3, {sr(S_WS, 4)}, s{sT0} offen offset:{1024 * ct} sc1")
    e("s_waitcnt lgkmcnt(0)")
    e(f"s_lshl_b32 s{sT0}, s{sKS + 5}, 11")
    e(f"s_add_u32 s{sT0}, s{sT0}, s{sT1}")
    for ct in range(2):
        e(f"buffer_store_dwordx4 {vr(16 + 40 + 4 * ct, 4)}, v3, {sr(S_WS, 4)}, s{sT0} offen offset:{1024 * ct} sc1")
    zcheck()
    e("s_waitcnt vmcnt(0)")
    e("s_barrier")
    stamp(3)
    c("wave 0: flag to the 32 consumers id = 32 nt2 + l (byte MB_W + kh, GEMM1 WGs: MB_KV + kh)")
    e(f"s_lshl_b32 s{sT0}, s{sN2}, 5")
    e(f"v_add_u32 v4, s{sT0}, v1")
    e(f"v_subrev_u32 v5, {K1_NCONV}, v4")
    e(f"v_cmp_gt_u32 vcc, {K1_NGEMM}, v5")
    e(f"v_mov_b32 v5, {MB_W}")
    e(f"v_mov_b32 v6, {MB_KV}")
    e("v_cndmask_b32 v5, v5, v6, vcc")
    e(f"v_cmp_gt_u32 vcc, {K1_NCONV}, v4")
    e("v_cndmask_b32 v5, v5, 64, vcc")
    e("v_lshl_add_u32 v4, v4, 8, v5")
    c("nt2 < 2: also to the aux WGs 240 + 8 nt2 + (l - 32), byte 64 + kh")
    e(f"s_lshl_b32 s{sT0}, s{sN2}, 3")
    e(f"s_add_u32 s{sT0}, s{sT0}, {240 - 32}")
    e(f"v_add_u32 v5, s{sT0}, v1")
    e("v_lshlrev_b32 v5, 8, v5")
    e("v_add_u32 v5, 64, v5")
    e("v_cmp_gt_u32 vcc, 32, v1")
    e("v_cndmask_b32 v4, v5, v4, vcc")
    e(f"s_add_u32 s{sT0}, s{sKH}, {WS_MB}")
    e("v_mov_b32 v5, 1")
    e(f"s_cmp_lt_u32 s{sN2}, 2")
    e(f"s_cselect_b32 s{sT1}, 0xff, 0")
    e(f"s_cmp_eq_u32 s{sW}, 0")
    e("s_cselect_b32 exec_lo, -1, 0")
    e(f"s_cselect_b32 exec_hi, s{sT1}, 0")
    e(f"buffer_store_byte v5, v4, {sr(S_WS, 4)}, s{sT0} offen sc1")
    e("s_mov_b64 exec, -1")
    if APF:
        c("pull the fragments of column block kh (conv WGs' tiles) into this XCD's L2")
        e("s_mov_b32 s5, 3")
        e(f"s_cmp_lg_u32 s{sW}, 7")
        e("s_cbranch_scc1 aux_kw")
        e("s_lshl_b32 s4, s2, 8")
        e(f"s_add_u32 s4, s4, {WS_MB + 64}")
        pollbytes(4, 5)
        e(f"v_mov_b32 v14, {L_ST}")
        e("v_mov_b32 v15, -1")
        e("ds_write_b32 v14, v15 offset:8")
        e("s_branch aux_kd")
        e("aux_kw:")
        lds_wait(8, 5)
        e("aux_kd:")
        e(f"s_mul_i32 s{sT0}, s{sKH}, {WDT}")
        e(f"s_mul_i32 s{sT1}, s{sW}, {11 * 2048}")
        e(f"s_add_u32 s{sT0}, s{sT0}, s{sT1}")
        e(f"s_add_u32 s{sT0}, s{sT0}, {WS_WD}")
        for i in range(22):
            e(f"buffer_load_dwordx4 {vr(80 + 4 * i, 4)}, v3, {sr(S_WS, 4)}, s{sT0} offen offset:{1024 * (i & 3)}")
            if i & 3 == 3:
                e(f"s_add_u32 s{sT0}, s{sT0}, 4096")
    e(f"s_mov_b32 s{sSGX}, 0")
    e(f"s_mov_b32 s{sSG0}, {WS_MB}")
    e(f"s_mov_b32 s{sSG1}, 0")
    e(f"s_mov_b32 s{sWM}, {3 << MB_W}")
    e(f"s_mov_b32 s{sNU}, 1")
    e(f"s_mov_b32 s{sNS}, 0")
    e("s_branch g2_unit")


CV_KCPY = 4160
CV_T = 117248
CV_TP = 528


def k1_conv():
    S_K, S_V, S_SK, S_SH = 44, 48, 52, 72
    sW, sT0, sT1, sD, sG, sJ, sCH, sRB, sKT, sMBX = 62, 63, 64, 65, 66, 67, 68, 69, 70, 71
    e("k1_conv:")
    e("v_lshrrev_b32 v2, 6, v0")
    e("v_and_b32 v1, 63, v0")
    e(f"v_readfirstlane_b32 s{sW}, v2")
    c("G = id%8 (64-channel group), J = id/8 (256-row block / channel sub-group)")
    e(f"s_and_b32 s{sG}, s2, 7")
    e(f"s_lshr_b32 s{sJ}, s2, 3")
    sGP = 60
    if ROT:
        e(f"s_add_u32 s{sGP}, s{sG}, s{sJ}")
        e(f"s_and_b32 s{sGP}, s{sGP}, 7")
    else:
        e(f"s_mov_b32 s{sGP}, s{sG}")
    c("---- kv phase: rows J*256 + 4*rg.., channels G*64 + cs*8..")
    if KVF:
        c("full rows: WG r: rows 32r + 4w .., lane: 8 channels")
        e("v_lshrrev_b32 v2, 6, v0")
        e("v_lshlrev_b32 v4, 4, v1")
        e("v_lshl_add_u32 v4, v2, 12, v4")
        e(f"s_lshl_b32 s{sT0}, s2, 15")
        e(f"v_add_u32 v4, s{sT0}, v4")
        e("v_subrev_u32 v5, 3072, v4")
        e("v_lshlrev_b32 v6, 6, v1")
    else:
        e("v_lshrrev_b32 v2, 3, v0")
        e("v_and_b32 v3, 7, v0")
        e(f"s_lshl_b32 s{sT0}, s{sJ}, 18")
        e(f"s_lshl_b32 s{sT1}, s{sGP}, 7")
        e(f"s_add_u32 s{sT0}, s{sT0}, s{sT1}")
        e("v_lshlrev_b32 v4, 12, v2")
        e("v_lshl_add_u32 v4, v3, 4, v4")
        e(f"v_add_u32 v4, s{sT0}, v4")
        e("v_subrev_u32 v5, 3072, v4")
        e(f"s_lshl_b32 s{sT1}, s{sGP}, 9")
        e("v_lshlrev_b32 v6, 6, v3")
        e(f"v_add_u32 v6, s{sT1}, v6")
    e("s_waitcnt lgkmcnt(0)")
    stamp(0)
    V = VMQ()
    KD, VD, WD = 16, 44, 60

    def kvloads():
        for _ in range(CS3):
            e("s_sleep 8")
        e(f"s_cmp_eq_u32 s{sGP}, 3")
        e("s_cbranch_scc1 k1c_ns")
        for _ in range(CSLEEP - CS3):
            e("s_sleep 8")
        e("k1c_ns:")
        make_srd(S_K, P_K, 2048 * 1024)
        make_srd(S_V, P_V, 2048 * 1024)
        make_srd(S_SH, P_SH, 4096)
        for r in range(3):
            V.emit(f"buffer_load_dwordx4 {vr(KD + 4 * r, 4)}, v5, {sr(S_K, 4)}, 0 offen offset:{1024 * r}", "kv")
        for r in range(4):
            V.emit(f"buffer_load_dwordx4 {vr(KD + 12 + 4 * r, 4)}, v4, {sr(S_K, 4)}, 0 offen offset:{1024 * r}", "kv")
        for r in range(4):
            V.emit(f"buffer_load_dwordx4 {vr(VD + 4 * r, 4)}, v4, {sr(S_V, 4)}, 0 offen offset:{1024 * r}", "kv")
        for j in range(4):
            V.emit(f"buffer_load_dwordx4 {vr(WD + 4 * j, 4)}, v6, {sr(S_SH, 4)}, 0 offen offset:{16 * j}", "kv")

    if SKD != 3:
        kvloads()
    make_srd(S_SK, P_SK, 512 * 4096)
    make_srd(S_WS, P_WS, 0x1000000)
    c("channel of this wave: 64G + 8J + w")
    e(f"s_lshl_b32 s{sCH}, s{sG}, 3")
    e(f"s_add_u32 s{sCH}, s{sCH}, s{sJ}")
    e(f"s_lshl_b32 s{sCH}, s{sCH}, 3")
    e(f"s_add_u32 s{sCH}, s{sCH}, s{sW}")
    e(f"s_lshl_b32 s{sKT}, s{sW}, 14")
    e(f"s_mul_i32 s{sT0}, s{sW}, 12928")
    e(f"s_add_u32 s{sT0}, s{sT0}, {65536 - 4 * 12928}")
    e(f"s_cmp_ge_u32 s{sW}, 4")
    e(f"s_cselect_b32 s{sKT}, s{sT0}, s{sKT}")
    e(f"s_add_u32 s{sRB}, s{sKT}, 8320")
    e(f"s_lshl_b32 s{sT0}, s{sCH}, 1")
    e(f"s_and_b32 s{sT1}, s{sT0}, 0xfffffffc")
    e(f"s_add_u32 s{P_SD}, s{P_SD}, s{sT1}")
    e(f"s_addc_u32 s{P_SD + 1}, s{P_SD + 1}, 0")
    e(f"s_load_dword s{sD}, {sr(P_SD, 2)}, 0")
    SKR = 232
    e(f"s_lshl_b32 s{sCH}, s{sCH}, 12")
    e("v_lshlrev_b32 v8, 4, v1")

    def skloads():
        for j in range(4):
            V.emit(f"buffer_load_dwordx4 {vr(SKR + 4 * j, 4)}, v8, {sr(S_SK, 4)}, s{sCH} offen offset:{1024 * j}", "sk")
        for j in range(4):
            V.emit(f"buffer_load_dword v{SKR + 16 + j}, v8, {sr(S_SK, 4)}, s{sCH} offen offset:{1024 * j + 16}", "sk")
    if SKD == 0:
        skloads()
    if SKD == 3:
        skloads()
        kvloads()
    c("kv LDS transpose position: T + (cs*8 + cc)*528 + 504 - 8 rg")
    if KVF:
        e("v_mul_u32_u24 v7, 80, v1")
        e("v_lshlrev_b32 v9, 3, v2")
        e("v_sub_u32 v7, v7, v9")
        e(f"v_add_u32 v7, {CV_T + 56}, v7")
    else:
        e(f"v_mul_u32_u24 v7, {8 * CV_TP}, v3")
        e("v_lshlrev_b32 v9, 3, v2")
        e("v_sub_u32 v7, v7, v9")
        e(f"v_add_u32 v7, {CV_T + 504}, v7")
    state_init(-4 if C8 else 4)
    c("zero pads")
    e("v_lshlrev_b32 v6, 3, v1")
    e(f"v_add_u32 v6, s{sRB}, v6")
    e("v_mov_b32 v10, 0")
    e("v_mov_b32 v11, 0")
    e("ds_write_b64 v6, v[10:11] offset:4096")
    e("v_lshlrev_b32 v6, 2, v1")
    e(f"v_add_u32 v6, s{sKT}, v6")
    e("s_mov_b64 exec, 0xff")
    e("ds_write_b32 v6, v10")
    e(f"ds_write_b32 v6, v10 offset:{CV_KCPY}")
    e("s_mov_b64 exec, -1")
    c("addresses of the kv row stores")
    if KVF:
        e("v_bfe_u32 v6, v1, 2, 3")
        e("v_mul_u32_u24 v9, 5120, v6")
        e("v_lshrrev_b32 v6, 5, v1")
        e("v_mul_u32_u24 v6, 80, v6")
        e("v_add_u32 v9, v9, v6")
        e("v_and_b32 v6, 3, v1")
        e("v_lshl_add_u32 v9, v6, 4, v9")
        e(f"s_mul_i32 s{sT1}, s{sW}, 640")
        e(f"s_add_u32 s{sT1}, s{sT1}, {CV_T}")
        e(f"v_add_u32 v9, s{sT1}, v9")
        e("v_lshrrev_b32 v6, 3, v1")
        e("v_and_b32 v10, 7, v1")
        e("v_lshlrev_b32 v10, 4, v10")
        e("v_lshl_add_u32 v10, v6, 13, v10")
        e(f"s_lshl_b32 s3, s{sW}, 18")
        e(f"s_add_u32 s3, s3, {WS_KV + 63 * 128}")
        e(f"s_lshl_b32 s{sT1}, s2, 7")
        e(f"s_sub_u32 s3, s3, s{sT1}")
        c("kv flags: consumers 8l + w, byte 192 + r")
        e(f"s_lshl_b32 s4, s{sW}, 8")
        e("s_add_u32 s4, s4, s2")
        e(f"s_add_u32 s4, s4, {WS_MB + 192}")
        e("v_lshlrev_b32 v11, 11, v1")
    else:
        e("v_lshrrev_b32 v6, 5, v1")
        e("v_and_b32 v10, 31, v1")
        e("v_lshlrev_b32 v10, 4, v10")
        e(f"v_mul_u32_u24 v9, {CV_TP}, v6")
        e("v_add_u32 v9, v9, v10")
        e(f"s_mul_i32 s{sT1}, s{sW}, {8 * CV_TP}")
        e(f"s_add_u32 s{sT1}, s{sT1}, {CV_T}")
        e(f"v_add_u32 v9, s{sT1}, v9")
        e("v_lshl_add_u32 v10, v6, 12, v10")
        e(f"s_lshl_b32 s3, s{sGP}, 18")
        e(f"s_lshl_b32 s{sT1}, s{sW}, 15")
        e(f"s_add_u32 s3, s3, s{sT1}")
        e(f"s_add_u32 s3, s3, {WS_KV + 3584}")
        e(f"s_lshl_b32 s{sT1}, s{sJ}, 9")
        e(f"s_sub_u32 s3, s3, s{sT1}")
        c("kv flag: consumer id 8w + G, byte MB_KV + J")
        e(f"s_lshl_b32 s4, s{sW}, 3")
        e(f"s_add_u32 s4, s4, s{sGP}")
        e("s_lshl_b32 s4, s4, 8")
        e(f"s_add_u32 s4, s4, s{sJ}")
        e(f"s_add_u32 s4, s4, {WS_MB + MB_KV}")
    e(f"s_lshl_b32 s{sMBX}, s2, 8")
    e(f"s_add_u32 s{sMBX}, s{sMBX}, {WS_MB + 64}")
    e(f"s_mov_b32 s5, {0xff << (MB_KV - 64)}")
    V.wait("kv")
    stamp(1)
    zload()
    if SKD == 1:
        skloads()
    KF, VF, WF = 80, 136, 200
    for cc in range(8):
        for jp in range(2):
            w = WD + 2 * cc + jp
            e(f"v_lshlrev_b32 v{WF + (2 * jp) * 8 + cc}, 16, v{w}")
            e(f"v_and_b32 v{WF + (2 * jp + 1) * 8 + cc}, 0xffff0000, v{w}")
    for i in range(28):
        e(f"v_lshlrev_b32 v{KF + 2 * i}, 16, v{KD + i}")
        e(f"v_and_b32 v{KF + 2 * i + 1}, 0xffff0000, v{KD + i}")
    for i in range(16):
        e(f"v_lshlrev_b32 v{VF + 2 * i}, 16, v{VD + i}")
        e(f"v_and_b32 v{VF + 2 * i + 1}, 0xffff0000, v{VD + i}")
    KV = 168
    for cp in range(4):
        for r in range(4):
            d = KV + 8 * r + 2 * cp
            e(f"v_pk_mul_f32 {vr(d, 2)}, {vr(KF + 8 * r + 2 * cp, 2)}, {vr(WF + 3 * 8 + 2 * cp, 2)}")
            for j in range(1, 4):
                e(f"v_pk_fma_f32 {vr(d, 2)}, {vr(KF + 8 * (r + j) + 2 * cp, 2)}, "
                  f"{vr(WF + (3 - j) * 8 + 2 * cp, 2)}, {vr(d, 2)}")
            e(f"v_pk_mul_f32 {vr(d, 2)}, {vr(d, 2)}, {vr(VF + 8 * r + 2 * cp, 2)}")
        for cc in (2 * cp, 2 * cp + 1):
            o = 16 + 2 * cc
            e(f"v_cvt_pk_bf16_f32 v{o}, v{KV + 24 + cc}, v{KV + 16 + cc}")
            e(f"v_cvt_pk_bf16_f32 v{o + 1}, v{KV + 8 + cc}, v{KV + cc}")
            e(f"ds_write_b64 v7, {vr(o, 2)} offset:{cc * (5120 if KVF else CV_TP)}")
    e("s_waitcnt lgkmcnt(0)")
    e("s_barrier")
    c("wave w: channels 8w..8w+7 of the group: full-line stores (2 channels x 512 B per instruction)")
    for j in range(4):
        e(f"ds_read_b128 {vr(16 + 4 * j, 4)}, v9 offset:{160 * j if KVF else 2 * j * CV_TP}")
    for j in range(4):
        e(f"s_waitcnt lgkmcnt({3 - j})")
        V.emit(f"buffer_store_dwordx4 {vr(16 + 4 * j, 4)}, v10, {sr(S_WS, 4)}, s3 offen{STK}", "st")
        e(f"s_add_u32 s3, s3, {65536 if KVF else 8192}")
    if SKD == 2:
        skloads()

    def ktwork():
        e(f"v_add_u32 v7, s{sKT}, v8")
        V.wait("sk")
        for j in range(4):
            d = SKR + 4 * j
            t = 32 + 4 * j
            e(f"ds_write_b128 v7, {vr(d, 4)} offset:{32 + 1024 * j}")
            e(f"v_alignbit_b32 v{t}, v{d + 1}, v{d}, 16")
            e(f"v_alignbit_b32 v{t + 1}, v{d + 2}, v{d + 1}, 16")
            e(f"v_alignbit_b32 v{t + 2}, v{d + 3}, v{d + 2}, 16")
            e(f"v_alignbit_b32 v{t + 3}, v{SKR + 16 + j}, v{d + 3}, 16")
            e(f"ds_write_b128 v7, {vr(t, 4)} offset:{CV_KCPY + 32 + 1024 * j}")
        e(f"v_lshlrev_b32 v12, 16, v{SKR}")
        e("s_mov_b64 exec, 1")
        e(f"ds_write_b32 v7, v12 offset:{CV_KCPY + 28}")
        e("s_mov_b64 exec, -1")

    if SKD != 2:
        ktwork()
    zcheck()
    e("v_mov_b32 v13, 1")
    V.wait("st")
    if KVF:
        e("s_mov_b64 exec, 0xff")
        V.emit(f"buffer_store_byte v13, v11, {sr(S_WS, 4)}, s4 offen sc1", "fl")
    else:
        e("s_mov_b64 exec, 1")
        V.emit(f"buffer_store_byte v13, off, {sr(S_WS, 4)}, s4 sc1", "fl")
    e("s_mov_b64 exec, -1")
    stamp(2)
    if SKD == 2:
        ktwork()
    e(f"s_lshl_b32 s{sT0}, s{sD}, 16")
    e(f"s_and_b32 s{sD}, s{sD}, 0xffff0000")
    e(f"s_bitcmp1_b32 s{sW}, 0")
    e(f"s_cselect_b32 s{sD}, s{sD}, s{sT0}")
    c("MFMA phase addresses")
    ACC = 16
    AR = [48, 112]
    BR = [80, 144]
    vKT, vR, vA = 200, 201, 202
    e("v_and_b32 v2, 15, v1")
    e("v_lshrrev_b32 v3, 4, v1")
    e("v_lshlrev_b32 v4, 1, v2")
    e("v_lshlrev_b32 v5, 4, v3")
    e("v_sub_u32 v4, v4, v5")
    e(f"v_add_u32 v4, {32 - 14}, v4")
    e("v_and_b32 v5, 1, v2")
    e("v_cmp_eq_u32 vcc, 0, v5")
    e("v_mov_b32 v5, 0")
    e(f"v_mov_b32 v6, {CV_KCPY - 2}")
    e("s_nop 1")
    e("v_cndmask_b32 v5, v5, v6, vcc")
    e("v_add_u32 v4, v4, v5")
    e(f"v_add_u32 v{vKT}, s{sKT}, v4")
    e("v_lshlrev_b32 v4, 5, v2")
    e("v_lshl_add_u32 v4, v3, 4, v4")
    e(f"v_sub_u32 v4, {4080 - 3584}, v4")
    e(f"v_add_u32 v{vR}, s{sRB}, v4")
    e("v_lshlrev_b32 v4, 5, v2")
    e("v_lshl_add_u32 v4, v3, 3, v4")
    e(f"v_sub_u32 v5, {4088 - 3584}, v4")
    e(f"v_add_u32 v5, s{sRB}, v5")
    c("GEMM2 interface: flag byte MB_C + 8J + w to the 32 consumers 32G + l")
    e(f"s_lshl_b32 s{sSG0}, s{sG}, 13")
    e(f"s_lshl_b32 s{sT0}, s{sJ}, 3")
    e(f"s_add_u32 s{sSG0}, s{sSG0}, s{sT0}")
    e(f"s_add_u32 s{sSG0}, s{sSG0}, s{sW}")
    e(f"s_add_u32 s{sSG0}, s{sSG0}, {WS_MB + MB_C}")
    e(f"s_mov_b32 s{sSG1}, 8")
    e(f"s_mov_b32 s{sSGX}, -1")
    if C8:
        e(f"s_mov_b32 s{sNS}, 0")
        e(f"s_mov_b32 s{sNU}, 1")
    else:
        e(f"s_mov_b32 s{sNS}, 1")
        e(f"s_cmp_lt_u32 s{sW}, 4")
        e(f"s_cselect_b32 s{sNU}, 2, 0")
    if KVF:
        e(f"s_and_b32 s3, s{sCH}, 0xffffe000")
        e(f"s_bfe_u32 s{sT0}, s{sCH}, 0x1000c")
        e(f"s_lshl_b32 s{sT0}, s{sT0}, 6")
        e(f"s_add_u32 s3, s3, s{sT0}")
        e(f"s_add_u32 s3, s3, {WS_KV}")
        e("v_lshrrev_b32 v6, 2, v1")
        e("v_and_b32 v7, 3, v1")
        e("v_lshlrev_b32 v7, 4, v7")
        e("v_lshl_add_u32 v7, v6, 7, v7")
        e("s_mov_b32 s5, 0x80000000")
    else:
        e(f"s_add_u32 s3, s{sCH}, {WS_KV}")

    def crlist(ci, st, kinds="AB"):
        d0 = 2 * ci + 1
        r = []
        if "A" in kinds:
            for pp in range(4):
                r.append(f"v_add_u32 v{vA + pp}, {32 * d0 + 1024 * pp}, v{vKT}")
        order = [("B", 0)] + [("A", p) for p in range(8)] + [("B", m) for m in range(1, 8)]
        for kind, x in order:
            if kind not in kinds:
                continue
            if kind == "A":
                p = x
                o = 128 * (p & 1)
                r.append(f"ds_read2_b32 {vr(AR[st] + 4 * p, 2)}, v{vA + (p >> 1)} offset0:{o} offset1:{o + 1}")
                r.append(f"ds_read2_b32 {vr(AR[st] + 4 * p + 2, 2)}, v{vA + (p >> 1)} offset0:{o + 2} offset1:{o + 3}")
            else:
                m = x
                r.append(f"ds_read_b128 {vr(BR[st] + 4 * m, 4)}, v{vR} offset:{32 * d0 + 512 * (7 - m)}")
        return r

    e("s_waitcnt lgkmcnt(0)")
    for x in crlist(0, 0, "A"):
        e(x)
    e(f"s_cmp_lg_u32 s{sW}, 7")
    e("s_cbranch_scc1 k1c_kw")
    if KVF:
        e("s_mov_b32 s80, 0")
        e("k1c_kp:")
        e(f"buffer_load_ubyte v14, v1, {sr(S_WS, 4)}, s{sMBX} offen offset:128 sc1")
        e(f"buffer_load_ubyte v15, v1, {sr(S_WS, 4)}, s{sMBX} offen sc1")
        e("s_waitcnt vmcnt(0)")
        e("v_cmp_ne_u32 vcc, 0, v14")
        e("s_add_u32 s80, s80, 1")
        e("s_cmp_eq_u64 vcc, -1")
        e("s_cbranch_scc1 k1c_kpd")
        e("s_sleep 1")
        e("s_cmp_lt_u32 s80, 0x40000")
        e("s_cbranch_scc1 k1c_kp")
        e("k1c_kpd:")
        e("v_cmp_ne_u32 vcc, 0, v15")
    else:
        pollbytes(sMBX, 5)
    e(f"v_mov_b32 v14, {L_ST}")
    e("s_or_b32 s81, vcc_lo, s5")
    e("v_mov_b32 v15, s81")
    e("ds_write_b32 v14, v15 offset:8")
    e("s_branch k1c_kd")
    e("k1c_kw:")
    lds_wait(8, 5)
    e("k1c_kd:")
    c("own channel kvR row -> LDS R")
    for j in range(4):
        e(f"s_add_u32 m0, s{sRB}, {1024 * j}")
        e(f"buffer_load_dwordx4 v8, {sr(S_WS, 4)}, s3 offen offset:{1024 * j} lds sc1") if 0 else None
        e(f"buffer_load_dwordx4 v{7 if KVF else 8}, {sr(S_WS, 4)}, s3 offen lds")
        e(f"s_add_u32 s3, s3, {2048 if KVF else 1024}")
    if CPRIO == 1:
        e(f"s_cmp_lt_u32 s{sW}, 4")
        e("s_cbranch_scc0 k1c_p1")
        e("s_setprio 2")
        e("k1c_p1:")
    e("s_waitcnt vmcnt(0)")
    stamp(3)
    for x in crlist(0, 0, "B"):
        e(x)
    c("w_down fragments ready -> B fragments of the GEMM2 unit are loaded under the MFMAs")
    e("v_readfirstlane_b32 s81, v15")
    e("s_lshr_b32 s4, s2, 5")
    e(f"s_add_u32 s{sT0}, s{sW}, s4") if UROT else e(f"s_mov_b32 s{sT0}, s{sW}")
    e(f"s_and_b32 s{sT0}, s{sT0}, 7")
    e(f"s_mul_i32 s{sT0}, s{sT0}, 22528")
    e(f"s_mul_i32 s4, s4, {WDT}")
    e(f"s_add_u32 s4, s4, s{sT0}")
    e(f"s_add_u32 s4, s4, {WS_WD}")
    e("s_and_b32 s81, s81, 3")
    e("s_cmp_eq_u32 s81, 3")
    e(f"s_cselect_b32 s{sWM}, -1, 0")
    e(f"s_cselect_b32 s{sWM + 1}, -1, 0")
    if not CEB:
        e(f"s_mov_b32 s{sWM}, 0")

    def bload(i):
        return [f"s_add_u32 s{sT0}, s4, {1024 * i}", f"s_mov_b32 exec_lo, s{sWM}", f"s_mov_b32 exec_hi, s{sWM}",
                f"buffer_load_dwordx4 {vr(168 + 4 * i, 4)}, v8, {sr(S_WS, 4)}, s{sT0} offen", "s_mov_b64 exec, -1"]

    early = [i for i in range(22) if i not in (0, 1, 8, 9)] if CEB else []
    KVR = 80
    for ci in range(8):
        st = ci & 1
        if CPRIO == 2 and ci % 2 == 0:
            e(f"s_setprio {3 - ci // 2}")
        e("s_waitcnt lgkmcnt(0)")
        rl = []
        if ci < 7:
            rl = crlist(ci + 1, st ^ 1)
            for _ in range(4):
                e(rl.pop(0))
            if ci >= 1:
                for k in range(3):
                    if early:
                        rl += [bload(early.pop(0)), []]
        if ci == 7 and CPOL == 1:
            e(f"s_sub_u32 s{sT1}, s{sMBX}, 64")
            e(f"s_cmp_eq_u32 s{sW}, 7")
            e("s_cselect_b64 exec, -1, 0")
            e(f"buffer_load_ubyte v206, v1, {sr(S_WS, 4)}, s{sT1} offen sc1")
            e("s_mov_b64 exec, -1")
        if ci == 7:
            rl += [f"ds_read_b64 {vr(KVR + 2 * n, 2)}, v5 offset:{512 * (7 - n)}" for n in range(8)]
            rl += [[], [], [], ["s_waitcnt lgkmcnt(0)"]]
            vl = []
            for n in range(8):
                k0, k1 = KVR + 2 * n, KVR + 2 * n + 1
                t = 48 + 4 * n
                vl += [f"v_and_b32 v{t}, 0xffff0000, v{k1}", f"v_lshlrev_b32 v{t + 1}, 16, v{k1}",
                       f"v_and_b32 v{t + 2}, 0xffff0000, v{k0}", f"v_lshlrev_b32 v{t + 3}, 16, v{k0}"]
                vl += [f"v_mul_f32 v{t + i}, s{sD}, v{t + i}" for i in range(4)]
                vl += [f"v_cvt_pk_bf16_f32 v{t + i}, 0, v{t + i}" for i in range(4)]
            rl += [vl[i:i + 4] for i in range(0, 96, 4)]
        for m in range(8):
            for p in range(8 - m):
                cc = "0" if (ci == 0 and m == 0) else vr(ACC + 4 * (m + p), 4)
                e(f"v_mfma_f32_16x16x32_bf16 {vr(ACC + 4 * (m + p), 4)}, {vr(AR[st] + 4 * p, 4)}, "
                  f"{vr(BR[st] + 4 * m, 4)}, {cc}")
                if rl:
                    x = rl.pop(0)
                    for y in (x if isinstance(x, list) else [x]):
                        e(y)
        assert not rl
    stamp(9)
    c("epilogue: y2 = bf16(bf16(y) + bf16(kv*D)), store y2T")
    e(f"s_add_u32 s3, s{sCH}, {WS_Y2}")
    for n in range(8):
        a = ACC + 4 * n
        t = 48 + 4 * n
        if n == 7:
            e("s_nop 3")
        for i in range(4):
            e(f"v_cvt_pk_bf16_f32 v{a + i}, 0, v{a + i}")
        for i in range(0, 4, 2):
            epk("add", a + i, a + i, t + i)
        e(f"v_cvt_pk_bf16_f32 v{a}, v{a}, v{a + 1}")
        e(f"v_cvt_pk_bf16_f32 v{a + 1}, v{a + 2}, v{a + 3}")
        e(f"buffer_store_dwordx2 {vr(a, 2)}, v4, {sr(S_WS, 4)}, s3 offen offset:{512 * n}{STC}")
    stamp(4)
    if CPOL == 2:
        c("waves 0 and 7 read the mailbox while their stores drain")
        assert CEB and not CGATE
        e(f"s_sub_u32 s{sT1}, s{sMBX}, 64")
        e("v_mov_b32 v6, 0")
        e(f"s_add_u32 s{sT0}, s{sW}, 1")
        e(f"s_and_b32 s{sT0}, s{sT0}, 6")
        e("s_cselect_b64 exec, 0, -1")
        e(f"buffer_load_ubyte v6, v1, {sr(S_WS, 4)}, s{sT1} offen sc1")
        for i in (0, 1, 8, 9):
            for x in bload(i):
                e(x)
        e(f"v_lshlrev_b32 v12, s{sSG1}, v1")
        e("v_mov_b32 v13, 1")
        e("s_waitcnt vmcnt(5)")
        e("s_mov_b32 exec_hi, 0")
        e(f"buffer_store_byte v13, v12, {sr(S_WS, 4)}, s{sSG0} offen sc1")
        e("s_mov_b64 exec, -1")
        stamp(9 if env('G2S', 0) else None)
        e(f"s_mov_b32 s{sSGX}, 0")
        e("s_waitcnt vmcnt(5)")
        e("v_cmp_ne_u32 vcc, 0, v6")
        e(f"v_mov_b32 v14, {L_ST}")
        e("s_mov_b32 s81, vcc_lo")
        e("v_mov_b32 v15, s81")
        e("s_mov_b64 exec, 1")
        e("ds_or_b32 v14, v15 offset:4")
        e("s_mov_b64 exec, -1")
    if CPOL == 1:
        e(f"s_cmp_lg_u32 s{sW}, 7")
        e("s_cbranch_scc1 k1c_np")
        e("s_waitcnt vmcnt(8)")
        e("v_cmp_ne_u32 vcc, 0, v206")
        e(f"v_mov_b32 v14, {L_ST}")
        e("s_mov_b32 s81, vcc_lo")
        e("v_mov_b32 v15, s81")
        e("ds_write_b32 v14, v15 offset:4")
        e("k1c_np:")
    if C8:
        e(f"v_mov_b32 v14, {L_ST}")
        e("v_mov_b32 v15, 1")
        e("s_mov_b64 exec, 1")
        e("ds_add_u32 v14, v15")
        e("s_mov_b64 exec, -1")
    if CPRIO:
        e("s_setprio 0")
    if CGATE:
        c("own flag, then wait until all waves of the WG have issued their stores")
        e(f"v_lshlrev_b32 v12, s{sSG1}, v1")
        e("s_waitcnt vmcnt(0)")
        e("s_mov_b32 exec_hi, 0")
        e(f"buffer_store_byte v15, v12, {sr(S_WS, 4)}, s{sSG0} offen sc1")
        e("s_mov_b64 exec, -1")
        e(f"s_mov_b32 s{sSGX}, 0")
        e("s_mov_b32 s80, 0")
        e("k1c_g:")
        e("ds_read_b32 v13, v14")
        e("s_waitcnt lgkmcnt(0)")
        e(f"v_readfirstlane_b32 s{sT0}, v13")
        e("s_add_u32 s80, s80, 1")
        e("s_nop 2")
        e(f"s_cmp_ge_i32 s{sT0}, 4")
        e("s_cbranch_scc1 k1c_gd")
        e("s_sleep 2")
        e("s_cmp_lt_u32 s80, 0x400000")
        e("s_cbranch_scc1 k1c_g")
        e("k1c_gd:")
    if CEB and CPOL != 2:
        for i in (0, 1, 8, 9):
            for x in bload(i):
                e(x)
    e(f"s_cmp_lg_u32 s{sWM + 1}, 0")
    e("s_cbranch_scc1 g2_unit")
    e("s_mov_b32 s5, 3")
    pollbytes(sMBX, 5)
    e("s_branch g2_unit")
    flush_ool()


G2S = env('G2S', 0)
HKN = 0


def gemm2():
    S_X, S_OUT = 44, 48
    sMT2, sNT2, sW, sT0, sT1 = 60, 61, 62, 63, 64
    sU, sAB, sBB, sHM, sMB, sFIRST, sY, sXO, sMB3, sYO = 65, 66, 67, 68, 69, 70, 71, 72, 73, 74
    ACC2, BF2, AF2 = 16, 168, 80
    XR = 4
    YR, SR_ = 80, 84

    def hook(n):
        e(f"v_lshlrev_b32 v12, s{sSG1}, v1")
        e("v_mov_b32 v13, 1")
        e(f"s_waitcnt vmcnt({n})")
        e(f"s_mov_b32 exec_lo, s{sSGX}")
        e("s_mov_b32 exec_hi, 0")
        e(f"buffer_store_byte v13, v12, {sr(S_WS, 4)}, s{sSG0} offen sc1")
        e("s_mov_b64 exec, -1")
        e(f"s_mov_b32 s{sSGX}, 0")

    def xloads(part=0):
        make_srd(S_X, P_Q, 2048 * 1024)
        make_srd(S_OUT, P_OUT, 2048 * 1024)
        c("x / out offset: row 64mt2 + 8w, col 64nt2 + l")
        e(f"s_lshl_b32 s{sXO}, s{sMT2}, 3")
        e(f"s_add_u32 s{sXO}, s{sXO}, s{sW}")
        e(f"s_lshl_b32 s{sYO}, s{sXO}, 4")
        e(f"s_lshl_b32 s{sT0}, s{sNT2}, 18")
        e(f"s_add_u32 s{sYO}, s{sYO}, s{sT0}")
        e(f"s_add_u32 s{sYO}, s{sYO}, {WS_Y2}")
        e(f"s_lshl_b32 s{sXO}, s{sXO}, 13")
        e(f"s_lshl_b32 s{sT0}, s{sNT2}, 7")
        e(f"s_add_u32 s{sXO}, s{sXO}, s{sT0}")
        e(f"s_add_u32 s{sT0}, s{sXO}, 4096")
        e("v_lshlrev_b32 v3, 1, v1")
        for r in range(8):
            e(f"v_mov_b32 v{XR + r}, 0")
        if part == 0:
            return

    def xloads2():
        e(f"s_add_u32 s{sT0}, s{sXO}, 4096")
        for r in range(8):
            e(f"buffer_load_short_d16_hi v{XR + r}, v3, {sr(S_X, 4)}, s{sT0 if r >= 4 else sXO} offen offset:{1024 * (r & 3)}")

    def stloads():
        e(f"s_lshr_b32 s{sT0}, s{sXO}, 13")
        e(f"s_lshl_b32 s{sT0}, s{sT0}, 6")
        e(f"s_add_u32 s{sT0}, s{sT0}, {WS_ST}")
        for j in range(4):
            e(f"buffer_load_dwordx4 {vr(SR_ + 4 * j, 4)}, off, {sr(S_WS, 4)}, s{sT0} offset:{16 * j}")

    def yload():
        e("v_lshlrev_b32 v12, 12, v1")
        e(f"buffer_load_dwordx4 {vr(YR, 4)}, v12, {sr(S_WS, 4)}, s{sYO} offen")

    e("g2_unit:")
    e(f"s_lshr_b32 s{sNT2}, s2, 5")
    e(f"s_mul_i32 s{sBB}, s{sNT2}, {WDT}")
    if UROT:
        e(f"s_add_u32 s{sU}, s{sW}, s{sNT2}")
        e(f"s_and_b32 s{sU}, s{sU}, 7")
    else:
        e(f"s_mov_b32 s{sU}, s{sW}")
    e(f"s_mul_i32 s{sT0}, s{sU}, {11 * 2048}")
    e(f"s_add_u32 s{sBB}, s{sBB}, s{sT0}")
    e(f"s_add_u32 s{sBB}, s{sBB}, {WS_WD}")
    e("v_lshlrev_b32 v2, 4, v1")
    e(f"s_lshl_b32 s{sMB}, s2, 8")
    e(f"s_add_u32 s{sMB}, s{sMB}, {WS_MB}")
    e(f"s_add_u32 s{sMB3}, s{sMB}, {MB_C}")
    e(f"s_and_b32 s{sMT2}, s2, 7")
    e(f"s_lshl_b32 s{sMT2}, s{sMT2}, 2")
    e(f"s_bfe_u32 s{sT0}, s2, 0x20003")
    e(f"s_add_u32 s{sMT2}, s{sMT2}, s{sT0}")
    e(f"s_mov_b32 s{sFIRST}, 1")
    e(f"s_mov_b32 s{sY}, 0")
    e(f"s_cmp_eq_u32 s{sNU}, 0")
    e("s_cbranch_scc1 g2_nounit")
    e(f"s_cmp_eq_u32 s{sWM}, -1")
    e("s_cbranch_scc1 g2_bd")
    if HOOKF:
        hook(0)
        stamp(9 if G2S else None)
    e(f"s_cmp_eq_u32 s{sWM}, 0")
    e("s_cbranch_scc1 g2_loop")
    pollbytes(sMB, sWM)
    e("g2_loop:")
    for i in range(22):
        e(f"buffer_load_dwordx4 {vr(BF2 + 4 * i, 4)}, v2, {sr(S_WS, 4)}, s{sBB} offen offset:{1024 * (i & 3)}")
        if i & 3 == 3:
            e(f"s_add_u32 s{sBB}, s{sBB}, 4096")
    e(f"s_cmp_eq_u32 s{sFIRST}, 0")
    e("s_cbranch_scc1 g2_l2")
    if not HOOKF:
        hook(22)
    e("g2_bd_ret:")
    stamp(9 if G2S and not HOOKF else None)
    xloads()
    for r in range(64):
        e(f"v_mov_b32 v{ACC2 + r}, 0")
    e("g2_l2:")
    c("h flags of ks 11u .. 11u+10 (+ stats flags)")
    e(f"s_mul_i32 s{sT0}, s{sU}, 11")
    e(f"s_add_u32 s{sT1}, s{sT0}, 10")
    e(f"s_lshr_b32 s{sT1}, s{sT1}, 2")
    e(f"s_lshl_b32 s{sHM}, 2, s{sT1}")
    e(f"s_lshr_b32 s{sT1}, s{sT0}, 2")
    e(f"s_lshl_b32 s{sT1}, 1, s{sT1}")
    e(f"s_sub_u32 s{sHM}, s{sHM}, s{sT1}")
    e(f"s_or_b32 s{sHM}, s{sHM}, {3 << MB_S}")
    e(f"s_mul_i32 s{sAB}, s{sMT2}, {2 * HRT}")
    e(f"s_lshl_b32 s{sT0}, s{sT0}, 10")
    e(f"s_add_u32 s{sAB}, s{sAB}, s{sT0}")
    e(f"s_add_u32 s{sT1}, s{sAB}, {HRT}")
    e(f"s_cmp_eq_u32 s{sW}, 7")
    e("s_cbranch_scc1 g2_pol")
    lds_wait(4, sHM)
    with ool("g2_pol"):
        c("poller: relay the flags until all h / stats flags are set (two reads in flight)")
        e(f"v_mov_b32 v15, {L_ST}")
        e("ds_read_b32 v12, v15 offset:4")
        e("s_mov_b32 s80, 0")
        e("s_waitcnt lgkmcnt(0)")
        e("v_readfirstlane_b32 s81, v12")
        e("s_nop 3")
        e(f"s_and_b32 s81, s81, {0x3fffff | (3 << MB_S)}")
        e(f"s_cmp_eq_u32 s81, {0x3fffff | (3 << MB_S)}")
        e("s_cbranch_scc1 g2_pol_ret")
        if PWAIT:
            c("start when the own WG's first phase is complete")
            e("g2_pol1:")
            e("ds_read_b32 v12, v15")
            e("s_waitcnt lgkmcnt(0)")
            e("v_readfirstlane_b32 s81, v12")
            e("s_add_u32 s80, s80, 1")
            e("s_nop 2")
            e("s_cmp_ge_i32 s81, 4")
            e("s_cbranch_scc1 g2_pol1d")
            e("s_sleep 2")
            e("s_cmp_lt_u32 s80, 0x400000")
            e("s_cbranch_scc1 g2_pol1")
            e("g2_pol1d:")
            e("s_mov_b32 s80, 0")
            if PWAIT > 1:
                e(f"s_sleep {PWAIT}")
        e("g2_pol2:")
        e(f"buffer_load_ubyte v14, v1, {sr(S_WS, 4)}, s{sMB} offen sc1")
        e("s_waitcnt vmcnt(0)")
        e("v_cmp_ne_u32 vcc, 0, v14")
        e("s_mov_b32 s81, vcc_lo")
        e("v_mov_b32 v12, s81")
        e("s_mov_b64 exec, 1")
        e("ds_or_b32 v15, v12 offset:4")
        e("s_mov_b64 exec, -1")
        e(f"s_and_b32 s81, vcc_lo, {0x3fffff | (3 << MB_S)}")
        e(f"s_cmp_eq_u32 s81, {0x3fffff | (3 << MB_S)}")
        e("s_cbranch_scc1 g2_pol_ret")
        if PGAP:
            e(f"s_sleep {PGAP}")
        e("s_add_u32 s80, s80, 1")
        e("s_cmp_lt_u32 s80, 0x40000")
        e("s_cbranch_scc1 g2_pol2")
        e(f"v_mov_b32 v12, 0x7fffffff")
        e("ds_or_b32 v15, v12 offset:4")
    stamp(5)
    V = VMQ()

    def aload(i):
        j, a = i >> 1, i & 1
        V.emit(f"buffer_load_dwordx4 {vr(AF2 + 4 * i, 4)}, v2, {sr(S_WS, 4)}, s{sT1 if a else sAB} offen offset:{1024 * (j & 3)}", f"a{i}")
        if j & 3 == 3 and a:
            e(f"s_add_u32 s{sAB}, s{sAB}, 4096")
            e(f"s_add_u32 s{sT1}, s{sT1}, 4096")
        if i == YPOS:
            e(f"s_cmp_eq_u32 s{sW}, 7")
            e("s_cselect_b64 exec, -1, 0")
            V.emit(f"buffer_load_ubyte v12, v1, {sr(S_WS, 4)}, s{sMB3} offen sc1", "y")
            e("s_mov_b64 exec, -1")
        if i == XPOS:
            xloads2()
            V.q += ["x"] * 8

    for i in range(AW):
        aload(i)
    for j in range(11):
        if j == 9:
            e(f"v_mov_b32 v13, {L_ST}")
            e("ds_read_b64 v[14:15], v13")
            e(f"s_cmp_eq_u32 s{sU}, 7")
            e("s_cbranch_scc1 g2_mfd")
        for a in range(2):
            i = 2 * j + a
            V.wait(f"a{i}")
            if i + AW < 22:
                aload(i + AW)
            for ct in range(2):
                acc = ACC2 + 32 * a + 16 * ct
                e(f"v_mfma_f32_32x32x16_bf16 {vr(acc, 16)}, {vr(AF2 + 8 * j + 4 * a, 4)}, {vr(BF2 + 8 * j + 4 * ct, 4)}, {vr(acc, 16)}")
    e("g2_mfd:")
    e(f"s_sub_u32 s{sNU}, s{sNU}, 1")
    e(f"s_cmp_eq_u32 s{sNU}, 0")
    e("s_cbranch_scc1 g2_ud")
    e(f"s_add_u32 s{sU}, s{sU}, 4")
    e(f"s_add_u32 s{sBB}, s{sBB}, {44 * 2048 - 5 * 4096}")
    e(f"s_mov_b32 s{sFIRST}, 0")
    e("s_nop 7")
    e("s_branch g2_loop")
    e("g2_ud:")
    stamp(6)
    e(f"s_cmp_lg_u32 s{sW}, 7")
    e("s_cbranch_scc1 g2_np")
    e("s_waitcnt vmcnt(0) lgkmcnt(0)")
    e("v_cmp_ne_u32 vcc, 0, v12")
    e("s_cmp_eq_u64 vcc, -1")
    e("s_cbranch_scc0 g2_np")
    e("v_mov_b32 v15, -1")
    e(f"v_mov_b32 v13, {L_ST}")
    e("ds_write_b32 v13, v15 offset:4")
    e("g2_np:")
    c("partial address: slot w + n*256 + ((8a + 2q + g) ^ (n & 15))*16")
    e("v_and_b32 v12, 15, v1")
    e("v_lshrrev_b32 v13, 5, v1")
    e("v_xor_b32 v12, v12, v13")
    e("v_lshlrev_b32 v12, 4, v12")
    e("v_and_b32 v13, 31, v1")
    e("v_lshl_add_u32 v12, v13, 8, v12")
    e(f"s_lshl_b32 s{sT0}, s{sW}, 14")
    e(f"v_add_u32 v12, s{sT0}, v12")
    for k in range(1, 8):
        e(f"v_xor_b32 v{BF2 + k}, {32 * k}, v12")
    e("s_waitcnt vmcnt(0) lgkmcnt(0)")
    stloads()
    e(f"v_readfirstlane_b32 s{sT0}, v14")
    e(f"v_readfirstlane_b32 s{sT1}, v15")
    e("s_nop 3")
    e(f"s_cmp_ge_i32 s{sT0}, 4")
    e("s_cbranch_scc0 g2_cnt")
    with ool("g2_cnt"):
        e("s_mov_b32 s80, 0")
        e(f"v_mov_b32 v14, {L_ST}")
        e("g2_cnt2:")
        e("s_sleep 2")
        e("ds_read_b32 v15, v14")
        e("s_waitcnt lgkmcnt(0)")
        e(f"v_readfirstlane_b32 s{sT0}, v15")
        e("s_add_u32 s80, s80, 1")
        e("s_nop 2")
        e(f"s_cmp_ge_i32 s{sT0}, 4")
        e("s_cbranch_scc1 g2_cnt_ret")
        e("s_cmp_lt_u32 s80, 0x400000")
        e("s_cbranch_scc1 g2_cnt2")
    e(f"s_bitcmp1_b32 s{sT1}, 31")
    e("s_cbranch_scc0 g2_noy")
    e(f"s_mov_b32 s{sY}, 1")
    e("v_lshlrev_b32 v14, 12, v1")
    e(f"buffer_load_dwordx4 {vr(YR, 4)}, v14, {sr(S_WS, 4)}, s{sYO} offen")
    e("g2_noy:")
    for a in range(2):
        for q in range(4):
            k = 4 * a + q
            for ct in range(2):
                e(f"ds_write_b128 v{BF2 + k if k else 12}, {vr(ACC2 + 32 * a + 16 * ct + 4 * q, 4)} offset:{8192 * ct}")
    e("g2_bar:")
    c("final: lane = column, rows 8w .. 8w+7 (chunks 2w, 2w+1)")
    e("v_and_b32 v12, 15, v1")
    e(f"s_lshl_b32 s{sT0}, s{sW}, 1")
    e(f"v_xor_b32 v12, s{sT0}, v12")
    e("v_lshlrev_b32 v12, 4, v12")
    e("v_lshl_add_u32 v12, v1, 8, v12")
    e("v_xor_b32 v13, 16, v12")
    e("v_add_u32 v14, 0x10000, v12")
    e("v_add_u32 v15, 0x10000, v13")
    e("s_waitcnt lgkmcnt(0)")
    e("s_barrier")
    stamp(7)
    P = ACC2
    e(f"v_mov_b32 v2, {L_ST}")
    e("ds_read_b32 v2, v2 offset:4")
    for j in range(4):
        for h in range(2):
            e(f"ds_read_b128 {vr(P + 8 * j + 4 * h, 4)}, v{12 + h} offset:{16384 * j}")
    e("s_waitcnt lgkmcnt(8)")
    e(f"v_readfirstlane_b32 s{sT1}, v2")
    e("v_lshlrev_b32 v2, 12, v1")
    e("s_nop 2")
    e(f"s_lshr_b32 s{sT1}, s{sT1}, 31")
    e(f"s_cmp_gt_u32 s{sT1}, s{sY}")
    e("s_cbranch_scc0 g2_y2n")
    e(f"s_mov_b32 s{sY}, 1")
    e(f"buffer_load_dwordx4 {vr(YR, 4)}, v2, {sr(S_WS, 4)}, s{sYO} offen")
    e("g2_y2n:")
    e(f"s_cmp_lg_u32 s{sNS}, 0")
    e("s_cbranch_scc1 g2_s4")
    for j in range(4):
        for h in range(2):
            e(f"ds_read_b128 {vr(P + 32 + 8 * j + 4 * h, 4)}, v{14 + h} offset:{16384 * j}")
    for j in range(4):
        e(f"s_waitcnt lgkmcnt({6 - 2 * j})")
        for d in range(0, 8, 2):
            e(f"v_pk_add_f32 {vr(P + 8 * j + d, 2)}, {vr(P + 8 * j + d, 2)}, {vr(P + 32 + 8 * j + d, 2)}")
    e("g2_s4:")
    e("s_waitcnt lgkmcnt(0)")
    for a, b in ((0, 1), (2, 3), (0, 2)):
        for d in range(0, 8, 2):
            e(f"v_pk_add_f32 {vr(P + 8 * a + d, 2)}, {vr(P + 8 * a + d, 2)}, {vr(P + 8 * b + d, 2)}")
    for r in range(8):
        e(f"v_cvt_pk_bf16_f32 v{P + r}, 0, v{P + r}")
    e(f"s_cmp_lg_u32 s{sY}, 0")
    e("s_cbranch_scc1 g2_ydone")
    e(f"s_cmp_eq_u32 s{sW}, 7")
    e("s_cbranch_scc1 g2_yp0")
    e(f"s_mov_b32 s{sHM}, 0x80000000")
    lds_wait(4, sHM)
    e("s_branch g2_ypd2")
    e("g2_yp0:")
    e("s_mov_b32 s80, 0")
    e("g2_yp:")
    e(f"buffer_load_ubyte v14, v1, {sr(S_WS, 4)}, s{sMB3} offen sc1")
    e("s_waitcnt vmcnt(0)")
    e("v_cmp_ne_u32 vcc, 0, v14")
    e("s_add_u32 s80, s80, 1")
    e("s_cmp_eq_u64 vcc, -1")
    e("s_cbranch_scc1 g2_ypd")
    e("s_cmp_lt_u32 s80, 0x40000")
    e("s_cbranch_scc1 g2_yp")
    e("g2_ypd:")
    e(f"v_mov_b32 v15, {L_ST}")
    e("v_mov_b32 v14, -1")
    e("ds_write_b32 v15, v14 offset:4")
    e("g2_ypd2:")
    yload()
    e("g2_ydone:")
    stamp(8)
    XN = P + 8
    e("s_waitcnt vmcnt(1)")
    for r in range(8):
        e(f"v_fma_f32 v{XN + r}, v{XR + r}, v{SR_ + 2 * r}, v{SR_ + 2 * r + 1}")
    for r in range(8):
        e(f"v_cvt_pk_bf16_f32 v{XN + r}, 0, v{XN + r}")
    e(f"s_add_u32 s{sT0}, s{sXO}, 4096")
    e("s_waitcnt vmcnt(0)")
    YF = P + 16
    for d in range(4):
        e(f"v_lshlrev_b32 v{YF + 2 * d}, 16, v{YR + d}")
        e(f"v_and_b32 v{YF + 2 * d + 1}, 0xffff0000, v{YR + d}")
    for d in range(0, 8, 2):
        e(f"v_pk_mul_f32 {vr(YF + d, 2)}, {vr(YF + d, 2)}, {vr(XN + d, 2)}")
    for r in range(8):
        e(f"v_cvt_pk_bf16_f32 v{YF + r}, 0, v{YF + r}")
    for d in range(0, 8, 2):
        e(f"v_pk_add_f32 {vr(YF + d, 2)}, {vr(YF + d, 2)}, {vr(XR + d, 2)}")
    for r in range(8):
        e(f"v_cvt_pk_bf16_f32 v{YF + r}, 0, v{YF + r}")
    for d in range(0, 8, 2):
        e(f"v_pk_add_f32 {vr(YF + d, 2)}, {vr(YF + d, 2)}, {vr(P + d, 2)}")
        e(f"v_cvt_pk_bf16_f32 v{YF + d}, v{YF + d}, v{YF + d + 1}")
        s = sT0 if d >= 4 else sXO
        e(f"buffer_store_short v{YF + d}, v3, {sr(S_OUT, 4)}, s{s} offen offset:{1024 * (d & 3)}")
        e(f"buffer_store_short_d16_hi v{YF + d}, v3, {sr(S_OUT, 4)}, s{s} offen offset:{1024 * ((d + 1) & 3)}")
    stamp_flush(S_WS, WS_PROF)
    e("k1_done:")
    e("s_endpgm")
    flush_ool()
    e("g2_bd:")
    e(f"s_cmp_eq_u32 s{sSGX}, 0")
    e("s_cbranch_scc1 g2_bd_ret")
    hook(HKN)
    stamp(9 if G2S else None)
    e("s_branch g2_bd_ret")
    e("g2_nounit:")
    hook(0)
    xloads()
    xloads2()
    e(f"s_mov_b32 s{sHM}, {3 << MB_S}")
    pollbytes(sMB, sHM)
    stloads()
    e("s_branch g2_bar")


def kernel1():
    e(".globl k1_kernel")
    e(".p2align 8")
    e(".type k1_kernel,@function")
    e("k1_kernel:")
    e("s_cmp_ge_u32 s2, 256")
    e("s_cbranch_scc1 k1_done")
    load_ptrs()
    if RID:
        e(f"s_add_u32 s2, s2, {RID}")
        e("s_and_b32 s2, s2, 255")
    e(f"s_cmp_lt_u32 s2, {K1_NCONV}")
    e("s_cbranch_scc1 k1_conv")
    e(f"s_cmp_lt_u32 s2, {K1_NCONV + K1_NGEMM}")
    e("s_cbranch_scc1 k1_gemm")
    k1_aux()
    k1_gemm()
    k1_conv()
    gemm2()


def descriptor(name, nv):
    L.append(".p2align 6")
    L.append(f".amdhsa_kernel {name}")
    L.append(f"  .amdhsa_next_free_vgpr {nv}")
    L.append("  .amdhsa_next_free_sgpr 102")
    L.append(f"  .amdhsa_accum_offset {nv}")
    L.append("  .amdhsa_group_segment_fixed_size 0")
    L.append("  .amdhsa_kernarg_size 104")
    L.append("  .amdhsa_user_sgpr_count 2")
    L.append("  .amdhsa_user_sgpr_kernarg_segment_ptr 1")
    L.append("  .amdhsa_system_sgpr_workgroup_id_x 1")
    L.append(".end_amdhsa_kernel")


def main():
    hdr = open(f"cdna_kernels/{NAME}.s.ref").read().split("\n")
    for line in hdr:
        if line.startswith("; Override") or line.startswith("; grid=") or "@launch" in line:
            continue
        if not line.startswith(";"):
            break
        L.append(line)
    L.append(f"; @launch kernel=k1_kernel grid=(256,1,1) block=(512,1,1) lds=163840")
    L.append('.amdgcn_target "amdgcn-amd-amdhsa--gfx950"')
    L.append(".text")
    kernel1()
    L.append('.section .rodata,"a"')
    descriptor("k1_kernel", 256)
    out = sys.argv[1] if len(sys.argv) > 1 else f"cdna_kernels/{NAME}.s"
    open(out, "w").write("\n".join(L) + "\n")


if __name__ == "__main__":
    main()
```

```python
import os
import sys

NAME = "parallel_sum__ssm_conv_h3__glu_gated_bilinear__prompt"

WS_H = 0
HRT = 88 * 1024
WS_Y2 = 0x600000
WS_ST = 0x800000
WS_CS = 0x880000
WS_SP = 0x8C0000
WS_MB = 0x900000
WS_WD = 0xA00000
WDT = 88 * 2048
WS_KV = 0xC00000
ZOFF = 16
MB_H, MB_W, MB_S = 0, 22, 24
MB_CS, MB_ST, MB_KV = 64, 80, 88
MB_C = 128


def env(k, d):
    return int(os.environ.get(k, str(d)))


PSLEEP = env('PSLEEP', 1)
NI = env('NI', 2)
RPG = env('RPG', 2)
SPG = env('SPG', 6)
S_POLL = env('S_POLL', 3)
SKD = env('SKD', 1)
PFO = env('PFO', 0)
PC = env('PC', 0)
PS = env('PS', 1)
SG = env('SG', 2)
ASLEEP = env('ASLEEP', 0)
CPRIO = env('CPRIO', 2)
MAP = env('MAP', 0)
GSLEEP = env('GSLEEP', 0)
EB = env('EB', 1)
EBN = env('EBN', 8)
CGATE = env('CGATE', 0)
CSLEEP = env('CSLEEP', 8)
C8 = env('C8', 1)
XPF = env('XPF', 0)
XSL = env('XSL', 0)
ROT = env('ROT', 0)
UROT = env('UROT', 1)
APF = env('APF', 1)
BL = env('BL', 1)
CEB = env('CEB', 1)
PGAP = env('PGAP', 1)
CPOL = env('CPOL', 2)
PWAIT = env('PWAIT', 1)
RID = env('RID', 240)
AW = env('AW', 8)
YPOS = env('YPOS', 12)
XPOS = env('XPOS', 12)
KVF = env('KVF', 0)
CS3 = env('CS3', 0)
EBW = env('EBW', 0)
STC = ' sc1'
STH = os.environ.get('STH', ' sc1')
STK = os.environ.get('STK', ' sc1')
HOOKF = env('HOOKF', 1)
L = []


def e(s=""):
    L.append("    " + s if s and not s.endswith(":") else s)


def c(s):
    L.append("    ; " + s)


PROF = len(sys.argv) > 2 and sys.argv[2] == "prof"
WS_PROF = 0xE00000
SPAIR = [6, 8, 10, 12, 14, 88, 90, 92, 94, 96, 100]
sRT = 83


def stamp(k=None):
    if not PROF or k is None:
        return
    if k == 0:
        e("s_memrealtime s[98:99]")
        e("s_waitcnt lgkmcnt(0)")
        e(f"s_mov_b32 s{sRT}, s98")
        for p in SPAIR:
            e(f"s_mov_b32 s{p}, 0")
    e(f"s_memtime s[{SPAIR[k]}:{SPAIR[k] + 1}]")
    e("s_waitcnt lgkmcnt(0)")


def stamp_flush(srd, base):
    if not PROF:
        return
    stamp(10)
    e("s_memrealtime s[98:99]")
    e("s_waitcnt lgkmcnt(0)")
    e("v_writelane_b32 v255, s98, 62")
    e(f"v_writelane_b32 v255, s{sRT}, 63")
    for k, p in enumerate(SPAIR):
        e(f"v_writelane_b32 v255, s{p}, {k}")
    e("v_lshrrev_b32 v253, 6, v0")
    e("v_lshl_add_u32 v253, s2, 3, v253")
    e("v_lshlrev_b32 v253, 8, v253")
    e("v_and_b32 v254, 63, v0")
    e("v_lshl_add_u32 v253, v254, 2, v253")
    e(f"v_add_u32 v253, {base}, v253")
    e(f"buffer_store_dword v255, v253, {sr(srd, 4)}, 0 offen")


OOL = []


class ool:
    def __init__(self, label):
        self.label = label

    def __enter__(self):
        global L
        self.saved = L
        L = []
        L.append(f"{self.label}:")

    def __exit__(self, *a):
        global L
        L.append(f"    s_branch {self.label}_ret")
        OOL.extend(L)
        L = self.saved
        L.append(f"{self.label}_ret:")


def flush_ool():
    L.extend(OOL)
    OOL.clear()


def vr(a, n=1):
    return f"v{a}" if n == 1 else f"v[{a}:{a + n - 1}]"


def sr(a, n=1):
    return f"s{a}" if n == 1 else f"s[{a}:{a + n - 1}]"


def make_srd(d, ptr, nbytes):
    e(f"s_mov_b32 s{d}, s{ptr}")
    e(f"s_and_b32 s{d + 1}, s{ptr + 1}, 0xffff")
    e(f"s_mov_b32 s{d + 2}, {nbytes}")
    e(f"s_mov_b32 s{d + 3}, 0x00020000")


P_Q, P_K, P_V, P_SH, P_SK, P_SD, P_BX, P_WG = 16, 18, 20, 22, 24, 26, 28, 30
P_WU, P_WD, P_OUT, P_DBG, P_WS = 32, 34, 36, 38, 40


def load_ptrs():
    e("s_load_dwordx16 s[16:31], s[0:1], 0")
    e("s_load_dwordx8 s[32:39], s[0:1], 64")
    e("s_load_dwordx2 s[40:41], s[0:1], 96")


S_DB2 = 84
S_WS = 56
_lbl = [0]
sZ = 82


def zload():
    e(f"s_load_dword s{sZ}, {sr(P_DBG, 2)}, {ZOFF}")


def zcheck():
    _lbl[0] += 1
    n = _lbl[0]
    e(f"s_cmp_ge_u32 s{sZ}, 1")
    e(f"s_cbranch_scc1 sig_go{n}")
    make_srd(S_DB2, P_DBG, 256)
    e(f"v_mov_b32 v15, {ZOFF}")
    e("s_mov_b32 s80, 0")
    e(f"zp{n}:")
    e(f"buffer_load_dword v14, v15, {sr(S_DB2, 4)}, 0 offen sc1")
    e("s_waitcnt vmcnt(0)")
    e("v_readfirstlane_b32 s81, v14")
    e("s_nop 3")
    e("s_add_u32 s80, s80, 1")
    e("s_cmp_ge_u32 s81, 1")
    e(f"s_cbranch_scc1 zd{n}")
    e("s_sleep 8")
    e("s_cmp_lt_u32 s80, 0x40000")
    e(f"s_cbranch_scc1 zp{n}")
    e(f"zd{n}:")
    e(f"s_mov_b32 s{sZ}, 1")
    e(f"sig_go{n}:")


def pollbytes(sOff, sMask, first=None):
    _lbl[0] += 1
    n = _lbl[0]
    if first is not None:
        e(f"v_cmp_ne_u32 vcc, 0, v{first}")
        e(f"s_and_b32 s81, vcc_lo, s{sMask}")
        e(f"s_cmp_eq_u32 s81, s{sMask}")
        e(f"s_cbranch_scc1 polled{n}")
    e("s_mov_b32 s80, 0")
    e(f"poll{n}:")
    e(f"buffer_load_ubyte v14, v1, {sr(S_WS, 4)}, s{sOff} offen sc1")
    e("s_waitcnt vmcnt(0)")
    e("v_cmp_ne_u32 vcc, 0, v14")
    e("s_add_u32 s80, s80, 1")
    e(f"s_and_b32 s81, vcc_lo, s{sMask}")
    e(f"s_cmp_eq_u32 s81, s{sMask}")
    e(f"s_cbranch_scc1 polled{n}")
    if PSLEEP:
        e(f"s_sleep {PSLEEP}")
    e("s_cmp_lt_u32 s80, 0x40000")
    e(f"s_cbranch_scc1 poll{n}")
    e(f"polled{n}:")


K1_NCONV = 64
K1_NGEMM = 176
STG = 49152
MISC = 147456
L_CS = MISC
L_MN = MISC + 8192
L_RS = MISC + 12288
L_ST = 163328

sSGX = 42
sWM = 43
sNU = 76
sNS = 77
sSG0, sSG1 = 78, 79


def state_init(val, a=12):
    e(f"v_mov_b32 v{a}, {val}")
    e(f"v_mov_b32 v{a + 1}, 0")
    e(f"v_mov_b32 v{a + 2}, 0")
    e(f"v_mov_b32 v{a + 3}, {L_ST}")
    e(f"ds_write_b96 v{a + 3}, {vr(a, 3)}")


def lds_wait(off, sMask):
    _lbl[0] += 1
    n = _lbl[0]
    e(f"v_mov_b32 v14, {L_ST}")
    e("s_mov_b32 s80, 0")
    e(f"lw{n}:")
    e(f"ds_read_b32 v15, v14 offset:{off}")
    e("s_waitcnt lgkmcnt(0)")
    e("v_readfirstlane_b32 s81, v15")
    e("s_add_u32 s80, s80, 1")
    e("s_nop 2")
    e(f"s_and_b32 s81, s81, s{sMask}")
    e(f"s_cmp_eq_u32 s81, s{sMask}")
    e(f"s_cbranch_scc1 lwd{n}")
    e("s_sleep 1")
    e("s_cmp_lt_u32 s80, 0x1000000")
    e(f"s_cbranch_scc1 lw{n}")
    e(f"lwd{n}:")


def sig_h(mt2, byte, t):
    e(f"s_and_b32 s{t}, s{mt2}, 3")
    e(f"s_lshl_b32 s{t}, s{t}, 3")
    e(f"s_lshr_b32 s{sSG0}, s{mt2}, 2")
    e(f"s_add_u32 s{sSG0}, s{sSG0}, s{t}")
    e(f"s_lshl_b32 s{sSG0}, s{sSG0}, 8")
    e(f"s_add_u32 s{sSG0}, s{sSG0}, s{byte}")
    e(f"s_add_u32 s{sSG0}, s{sSG0}, {WS_MB}")
    e(f"s_mov_b32 s{sSG1}, 13")


def stats_math(SX, SQ, T, RS, NM):
    return [f"v_mul_f32 v{T}, 0x3b000000, v{SX}",
            f"v_mul_f32 v{T + 2}, 0x3b000000, v{SQ}",
            f"v_fma_f32 v{T + 2}, -v{T}, v{T}, v{T + 2}",
            f"v_max_f32 v{T + 2}, 0, v{T + 2}",
            f"v_cvt_pk_bf16_f32 v{T + 1}, v{T}, v{T + 2}",
            f"v_lshlrev_b32 v{T + 4}, 16, v{T + 1}",
            f"v_and_b32 v{T + 2}, 0xffff0000, v{T + 1}",
            f"v_add_f32 v{T + 2}, 0x3727c5ac, v{T + 2}",
            f"v_cvt_pk_bf16_f32 v{T + 2}, v{T + 2}, v{T + 2}",
            f"v_and_b32 v{T + 2}, 0xffff0000, v{T + 2}",
            f"v_sqrt_f32 v{T + 2}, v{T + 2}",
            "s_nop 0",
            f"v_cvt_pk_bf16_f32 v{T + 2}, v{T + 2}, v{T + 2}",
            f"v_and_b32 v{T + 2}, 0xffff0000, v{T + 2}",
            f"v_rcp_f32 v{RS}, v{T + 2}",
            "s_nop 0",
            f"v_mul_f32 v{NM}, v{T + 4}, v{RS}",
            f"v_sub_f32 v{NM}, 0, v{NM}"]


def pk(op, d, a, b, c_=None):
    return [f"v_{op}_f32 v{d + i}, v{a + i}, v{b + i}" + (f", v{c_ + i}" if c_ is not None else "") for i in range(2)]


def epk(*a):
    for x in pk(*a):
        e(x)


class VMQ:
    def __init__(self, init=()):
        self.q = list(init)

    def emit(self, x, tag=None):
        e(x)
        if x.startswith("buffer_"):
            self.q.append(tag)

    def n(self, *tags):
        last = max(i for i, t in enumerate(self.q) if t in tags)
        return min(63, len(self.q) - 1 - last)

    def wait(self, *tags, extra=""):
        e(f"s_waitcnt vmcnt({self.n(*tags)}){extra}")


def k1_gemm():
    S_X, S_WG, S_WU = 44, 48, 52
    sMT, sNT, sW, sT0, sT1 = 60, 61, 62, 63, 64
    e("k1_gemm:")
    e("s_sub_u32 s3, s2, %d" % K1_NCONV)
    if MAP:
        c("mt = 2 (t%8) + ((t/8)&1) ; nt = t/16")
        e("s_and_b32 s4, s3, 7")
        e("s_lshl_b32 s4, s4, 1")
        e("s_bfe_u32 s5, s3, 0x10003")
        e(f"s_add_u32 s{sMT}, s4, s5")
        e(f"s_lshr_b32 s{sNT}, s3, 4")
    else:
        c("k = 22*(t%8) + t/8 ; mh = k/88 ; rem = k%88 ; nt = rem/8 ; mt = mh*8 + rem%8")
        e("s_and_b32 s4, s3, 7")
        e("s_mul_i32 s4, s4, 22")
        e("s_lshr_b32 s5, s3, 3")
        e("s_add_u32 s4, s4, s5")
        e("s_cmp_ge_u32 s4, 88")
        e("s_cselect_b32 s5, 88, 0")
        e(f"s_cselect_b32 s{sMT}, 8, 0")
        e("s_sub_u32 s4, s4, s5")
        e(f"s_lshr_b32 s{sNT}, s4, 3")
        e("s_and_b32 s4, s4, 7")
        e(f"s_add_u32 s{sMT}, s{sMT}, s4")
    e("v_lshrrev_b32 v2, 6, v0")
    e("v_and_b32 v1, 63, v0")
    e(f"v_readfirstlane_b32 s{sW}, v2")
    e("s_nop 3")
    e(f"s_cmp_ge_u32 s{sW}, 4")
    e("s_cbranch_scc1 k1_help")

    AF, BF, ACC, vAD = 16, 32, 64, 192
    vH, RSV, CO, MO = 210, 212, 216, 224
    sRH, sNH, sHB = 65, 66, 67
    e(f"s_and_b32 s{sRH}, s{sW}, 1")
    e(f"s_lshr_b32 s{sNH}, s{sW}, 1")
    c("A frag read address: 32768 + r*128 + ((2kk+g) ^ ((r>>1)&7))*16 ; r = 64 rh + 32 a + l%32")
    e(f"s_lshl_b32 s{sT0}, s{sRH}, 6")
    e("v_and_b32 v2, 31, v1")
    e(f"v_add_u32 v6, s{sT0}, v2")
    e("v_lshrrev_b32 v7, 1, v2")
    e("v_and_b32 v7, 7, v7")
    e("v_lshrrev_b32 v8, 5, v1")
    e("v_xor_b32 v7, v7, v8")
    e("v_lshlrev_b32 v7, 4, v7")
    e("v_lshl_add_u32 v7, v6, 7, v7")
    e("v_add_u32 v10, 32768, v7")
    e(f"v_lshlrev_b32 v9, 2, v6")
    e(f"v_add_u32 v9, {L_RS}, v9")
    c("B tr-read lane addresses for tiles T0=2nh, T1=2nh+1")
    e("v_and_b32 v2, 15, v1")
    e("v_lshrrev_b32 v6, 2, v2")
    e("v_lshrrev_b32 v7, 5, v1")
    e("v_lshl_add_u32 v7, v7, 3, v6")
    e("v_lshlrev_b32 v7, 8, v7")
    e("v_lshrrev_b32 v8, 4, v1")
    e("v_and_b32 v8, 1, v8")
    e("v_lshlrev_b32 v8, 5, v8")
    e("v_add_u32 v7, v7, v8")
    e("v_and_b32 v8, 3, v2")
    e("v_lshlrev_b32 v8, 3, v8")
    e("v_add_u32 v7, v7, v8")
    e(f"s_lshl_b32 s{sT0}, s{sNH}, 1")
    e(f"v_xor_b32 v8, s{sT0}, v6")
    e("v_lshl_add_u32 v11, v8, 6, v7")
    e("v_xor_b32 v8, 1, v8")
    e("v_lshl_add_u32 v12, v8, 6, v7")
    for t in range(3):
        e(f"v_add_u32 v{vAD + 6 * t}, {STG * t}, v11")
        e(f"v_add_u32 v{vAD + 6 * t + 1}, {STG * t}, v12")
        e(f"v_add_u32 v{vAD + 6 * t + 2}, {STG * t}, v10")
        for kk in range(1, 4):
            e(f"v_xor_b32 v{vAD + 6 * t + 2 + kk}, {32 * kk}, v{vAD + 6 * t + 2}")
    e(f"v_lshlrev_b32 v{vH}, 4, v1")
    c("operand addresses: cs tile (part*4 + 2nh + T), mean tile (2rh + a)")
    e(f"s_lshl_b32 s{sT0}, s{sNH}, 11")
    e(f"s_add_u32 s{sT0}, s{sT0}, {L_CS}")
    e(f"v_add_u32 v10, s{sT0}, v{vH}")
    e(f"s_lshl_b32 s{sT0}, s{sRH}, 11")
    e(f"s_add_u32 s{sT0}, s{sT0}, {L_MN}")
    e(f"v_add_u32 v11, s{sT0}, v{vH}")
    c("h store base: (4mt + 2rh)*HRT + (8nt + 4nh)*1024")
    e(f"s_lshl_b32 s{sT0}, s{sMT}, 1")
    e(f"s_add_u32 s{sT0}, s{sT0}, s{sRH}")
    e(f"s_mul_i32 s{sHB}, s{sT0}, {2 * HRT}")
    e(f"s_lshl_b32 s{sT1}, s{sNT}, 1")
    e(f"s_add_u32 s{sT1}, s{sT1}, s{sNH}")
    sig_h(sT0, sT1, 3)
    e(f"s_lshl_b32 s{sT1}, s{sT1}, 12")
    e(f"s_add_u32 s{sHB}, s{sHB}, s{sT1}")
    e(f"s_mov_b32 s{sSGX}, 0xff")
    e(f"s_mov_b32 s{sWM}, 0")
    e(f"s_mov_b32 s{sNU}, 1")
    e(f"s_mov_b32 s{sNS}, 0")
    e(f"v_mov_b32 v14, {L_ST}")
    e("v_mov_b32 v15, 1")
    e("s_waitcnt lgkmcnt(0)")
    stamp(0)
    make_srd(S_WS, P_WS, 0x1000000)
    if XPF:
        c("L2 prefetch: W rows 64(mt%8).. of the other part, x slabs 2+2(nt%3), 3+2(nt%3)")
        for _ in range(XSL):
            e("s_sleep 4")
        make_srd(S_X, P_Q, 2048 * 1024)
        e(f"s_cmp_ge_u32 s{sMT}, 8")
        e(f"s_cselect_b32 s{S_WG}, s{P_WG}, s{P_WU}")
        e(f"s_cselect_b32 s{S_WG + 1}, s{P_WG + 1}, s{P_WU + 1}")
        e(f"s_and_b32 s{S_WG + 1}, s{S_WG + 1}, 0xffff")
        e(f"s_mov_b32 s{S_WG + 2}, {512 * 2752}")
        e(f"s_mov_b32 s{S_WG + 3}, 0x00020000")
        e("v_lshrrev_b32 v2, 4, v1")
        e("v_and_b32 v3, 15, v1")
        e("v_lshlrev_b32 v3, 4, v3")
        e("v_lshl_add_u32 v4, v2, 10, v3")
        e("v_mul_u32_u24 v2, 2752, v2")
        e("v_add_u32 v3, v2, v3")
        e(f"s_and_b32 s3, s{sMT}, 7")
        e("s_lshl_b32 s3, s3, 2")
        e(f"s_add_u32 s3, s3, s{sW}")
        e(f"s_mul_i32 s3, s3, {16 * 2752}")
        e(f"s_lshl_b32 s{sT0}, s{sNT}, 8")
        e(f"s_add_u32 s3, s3, s{sT0}")
        e(f"s_mul_i32 s{sT0}, s{sNT}, 11")
        e(f"s_lshr_b32 s{sT0}, s{sT0}, 5")
        e(f"s_mul_i32 s{sT0}, s{sT0}, 3")
        e(f"s_sub_u32 s{sT0}, s{sNT}, s{sT0}")
        e(f"s_lshl_b32 s{sT0}, s{sT0}, 8")
        e(f"s_lshl_b32 s4, s{sMT}, 2")
        e(f"s_add_u32 s4, s4, s{sW}")
        e("s_lshl_b32 s4, s4, 15")
        e(f"s_add_u32 s4, s4, s{sT0}")
        e("s_add_u32 s4, s4, 256")
        for j in range(8):
            if XPF & 1:
                e(f"buffer_load_dwordx4 v[232:235], v4, {sr(S_X, 4)}, s4 offen")
                e("s_add_u32 s4, s4, 4096")
            if j < 4 and XPF & 2:
                e(f"buffer_load_dwordx4 v[236:239], v3, {sr(S_WG, 4)}, s3 offen")
                e(f"s_add_u32 s3, s3, {4 * 2752}")

    M = []
    R = []

    def rd(ins, reg, n, slab):
        R.append(dict(ins=ins, regs=set(range(reg, reg + n)), slab=slab))
        return len(R) - 1

    def rdA(s, kk, a, reg):
        return rd(f"ds_read_b128 {vr(reg, 4)}, v{vAD + 6 * (s % 3) + 2 + kk} offset:{4096 * a}", reg, 4, s)

    def rdB(s, kk, part, T, reg):
        return [rd(f"ds_read_b64_tr_b16 {vr(reg + 2 * u, 2)}, v{vAD + 6 * (s % 3) + T} "
                   f"offset:{part * 16384 + (16 * kk + 4 * u) * 256}", reg + 2 * u, 2, s) for u in range(2)]

    def mf(acc, b, a, needs, first=False):
        cc = "0" if first else vr(acc, 16)
        M.append(dict(ins=f"v_mfma_f32_32x32x16_bf16 {vr(acc, 16)}, {vr(b, 4)}, {vr(a, 4)}, {cc}", needs=needs,
                      regs=set(range(b, b + 4)) | set(range(a, a + 4)), bar=None, side=None))

    for s in range(7):
        for kk in range(4):
            st = kk & 1
            a0 = rdA(s, kk, 0, AF + 8 * st)
            b = [rdB(s, kk, ti >> 1, ti & 1, BF + 16 * st + 4 * ti) for ti in range(4)]
            a1 = rdA(s, kk, 1, AF + 8 * st + 4)
            for m in range(8):
                a, ti = m >> 2, m & 3
                mf(ACC + 16 * m, BF + 16 * st + 4 * ti, AF + 8 * st + 4 * a, [a1 if a else a0] + b[ti], s == 0 and kk == 0)
                if kk == 3 and m == 0:
                    M[-1]["bar"] = s
    VM = []

    def epilogue(a, T):
        G, U = ACC + 16 * (4 * a + T), ACC + 16 * (4 * a + 2 + T)
        rs = vr(RSV + 2 * a, 2)
        last = (a, T) == (1, 1)
        s = []
        for f in range(2):
            for r in range(8 * f, 8 * f + 8, 2):
                if last:
                    s += [f"v_pk_mul_f32 {vr(G + r, 2)}, {vr(G + r, 2)}, {rs}",
                          f"v_pk_mul_f32 {vr(U + r, 2)}, {vr(U + r, 2)}, {rs}"]
                else:
                    s += pk("mul", G + r, G + r, RSV + 2 * a) + pk("mul", U + r, U + r, RSV + 2 * a)
                s += [f"v_cvt_pk_bf16_f32 v{G + r}, 0, v{G + r}",
                      f"v_cvt_pk_bf16_f32 v{G + r + 1}, 0, v{G + r + 1}",
                      f"v_cvt_pk_bf16_f32 v{U + r}, 0, v{U + r}",
                      f"v_cvt_pk_bf16_f32 v{U + r + 1}, 0, v{U + r + 1}"]
                if last:
                    s += [f"v_pk_mul_f32 {vr(G + r, 2)}, {vr(G + r, 2)}, {vr(U + r, 2)}"]
                else:
                    s += pk("mul", G + r, G + r, U + r)
                s += [f"v_cvt_pk_bf16_f32 v{G + r // 2}, v{G + r}, v{G + r + 1}"]
            s += [f"s_add_u32 s{sT0}, s{sHB}, {a * HRT + (2 * T + f) * 1024}",
                  f"buffer_store_dwordx4 {vr(G + 4 * f, 4)}, v{vH}, {sr(S_WS, 4)}, s{sT0} offen{STH}"]
        return s

    rA = {}
    extra = []
    for gi, (a, T) in enumerate([(0, 0), (0, 1), (1, 0), (1, 1)]):
        for kk in range(4):
            n = 4 * gi + kk
            if T == 0:
                rA[kk] = rdA(7, kk, a, AF + 4 * kk)
            slot = BF + 8 * (n % 4)
            bg = rdB(7, kk, 0, T, slot)
            bu = rdB(7, kk, 1, T, slot + 4)
            mf(ACC + 16 * (4 * a + T), slot, AF + 4 * kk, [rA[kk]] + bg)
            mf(ACC + 16 * (4 * a + 2 + T), slot + 4, AF + 4 * kk, [rA[kk]] + bu)
            if gi == 0 and kk == 1:
                for aa in range(2):
                    extra.append(rd(f"ds_read_b128 {vr(MO + 4 * aa, 4)}, v11 offset:{1024 * aa}", MO + 4 * aa, 4, 7))
                    extra.append(rd(f"ds_read_b32 v{RSV + 2 * aa}, v9 offset:{128 * aa}", RSV + 2 * aa, 1, 7))
                    extra.append(rd(f"ds_read_b32 v{RSV + 2 * aa + 1}, v9 offset:{128 * aa}", RSV + 2 * aa + 1, 1, 7))
        for part in range(2):
            cid = rd(f"ds_read_b128 {vr(CO + 4 * part, 4)}, v10 offset:{4096 * part + 1024 * T}", CO + 4 * part, 4, 7)
            mf(ACC + 16 * (4 * a + 2 * part + T), CO + 4 * part, MO + 4 * a, [cid] + extra)
        M[-1]["side"] = epilogue(a, T)
    first_use = {}
    for i, m in enumerate(M):
        for r in m["needs"]:
            first_use.setdefault(r, i)
    for ri, r in enumerate(R):
        r["after"] = max([i for i in range(first_use[ri]) if M[i]["regs"] & r["regs"]], default=-1)
    LQ = []
    nxt = [0]
    slab_ok = [0]

    def issue(i, n):
        while n > 0 and nxt[0] < len(R):
            r = R[nxt[0]]
            if r["after"] > i or r["slab"] > slab_ok[0] or len(LQ) >= 14:
                break
            e(r["ins"])
            LQ.append(nxt[0])
            nxt[0] += 1
            n -= 1

    def lwait(ids):
        pend = [LQ.index(x) for x in ids if x in LQ]
        for x in ids:
            assert x < nxt[0], "read not issued"
        if pend:
            last = max(pend)
            e(f"s_waitcnt lgkmcnt({len(LQ) - 1 - last})")
            del LQ[:last + 1]

    e("s_barrier")
    stamp(1)
    issue(-1, 10)
    side = []
    for i, m in enumerate(M):
        while any(x >= nxt[0] for x in m["needs"]):
            k = nxt[0]
            issue(i - 1, 1)
            assert nxt[0] > k, (i, m, R[k], LQ)
        lwait(m["needs"])
        e(m["ins"])
        if m["bar"] is not None:
            assert all(R[x]["slab"] > m["bar"] for x in range(nxt[0], len(R)))
            e("s_waitcnt lgkmcnt(0)")
            LQ.clear()
            e("s_barrier")
            slab_ok[0] = m["bar"] + 1
            if m["bar"] == 3:
                stamp(2)
            if m["bar"] == 6:
                stamp(3)
        if m["side"]:
            side.append(("gate", i + 2))
            side.extend(m["side"])
        issue(i, RPG)
        n = SPG
        while side and n > 0:
            if isinstance(side[0], tuple):
                if side[0][1] > i:
                    break
                side.pop(0)
                continue
            e(side.pop(0))
            n -= 1
    assert not LQ and nxt[0] == len(R)
    if not BL:
        e("s_mov_b64 exec, 1")
        e("ds_add_u32 v14, v15")
        e("s_mov_b64 exec, -1")
    while side:
        x = side.pop(0)
        if isinstance(x, tuple):
            e("s_nop 15")
            e("s_nop 3")
        else:
            e(x)
    stamp(4)
    e(f"s_mov_b32 s{sZ}, 1")
    if BL:
        c("GEMM2 B fragments from LDS (staged by the helper waves)")
        e(f"s_mul_i32 s{sT0}, s{sRH}, 22528")
        e(f"s_cmp_eq_u32 s{sNH}, 0")
        e(f"s_cselect_b32 s{sT1}, {2 * STG}, 0")
        e(f"s_add_u32 s{sT0}, s{sT0}, s{sT1}")
        e(f"v_add_u32 v2, s{sT0}, v{vH}")
        e(f"s_mov_b32 s{sT0}, 15")
        lds_wait(8, sT0)
        for i in range(22):
            e(f"ds_read_b128 {vr(168 + 4 * i, 4)}, v2 offset:{1024 * i}")
        e("v_mov_b32 v15, 1")
        e("s_waitcnt lgkmcnt(0)")
        e("s_mov_b64 exec, 1")
        e("ds_add_u32 v14, v15")
        e("s_mov_b64 exec, -1")
        e(f"s_mov_b32 s{sWM}, -1")
    e("s_branch g2_unit")

    sH, sWB, sXB, sLB, sPM, sMBX = 65, 66, 67, 68, 69, 70
    sEX = 72
    S_OWN = 76
    vX0, vX1, vWD, vPO = 10, 11, 12, 13
    PW, PX = 16, 32
    T = 64
    e("k1_help:")
    e(f"s_sub_u32 s{sH}, s{sW}, 4")
    c("partial sources: W rows 64(mt%8) + 16j + l/4, cols 128nt + 32h + 8(l%4) ; x rows 128mt + 32h + 8j + l/8, K slab nt%8")
    e("v_lshrrev_b32 v2, 2, v1")
    e("v_mul_u32_u24 v2, 2752, v2")
    e("v_and_b32 v3, 3, v1")
    e("v_lshl_add_u32 v8, v3, 4, v2")
    e(f"s_and_b32 s{sT0}, s{sMT}, 7")
    e(f"s_mul_i32 s{sT0}, s{sT0}, {64 * 2752}")
    e(f"s_lshl_b32 s{sT1}, s{sNT}, 8")
    e(f"s_add_u32 s{sT0}, s{sT0}, s{sT1}")
    e(f"s_lshl_b32 s3, s{sH}, 6")
    e(f"s_add_u32 s3, s3, s{sT0}")
    e("v_lshrrev_b32 v2, 3, v1")
    e("v_and_b32 v3, 7, v1")
    e("v_lshlrev_b32 v4, 4, v3")
    e("v_lshl_add_u32 v9, v2, 10, v4")
    e(f"s_lshl_b32 s{sXB}, s{sMT}, 17")
    e(f"s_lshl_b32 s{sT0}, s{sH}, 15")
    e(f"s_add_u32 s{sXB}, s{sXB}, s{sT0}")
    e(f"s_and_b32 s4, s{sNT}, 7")
    e("s_lshl_b32 s4, s4, 7")
    e(f"s_add_u32 s4, s4, s{sXB}")
    c("x DMA lane offset: row = l>>3, src chunk = (l&7) ^ (l>>4) (^4 for odd 8-row groups)")
    e("v_lshrrev_b32 v4, 4, v1")
    e("v_xor_b32 v3, v3, v4")
    e("v_lshlrev_b32 v3, 4, v3")
    e(f"v_lshl_add_u32 v{vX0}, v2, 10, v3")
    e(f"v_xor_b32 v{vX1}, 64, v{vX0}")
    c("W DMA lane offsets")
    e("v_and_b32 v5, 15, v1")
    e("v_lshlrev_b32 v6, 2, v4")
    e("v_xor_b32 v5, v5, v6")
    e("v_lshlrev_b32 v5, 4, v5")
    e("v_mul_u32_u24 v6, 2752, v4")
    e(f"v_add_u32 v{vWD}, v5, v6")
    e(f"s_mul_i32 s{sWB}, s{sH}, {16 * 2752}")
    e(f"s_add_u32 s{sWB}, s{sWB}, s{sT1}")
    e(f"s_lshl_b32 s{sLB}, s{sH}, 12")
    e("s_waitcnt lgkmcnt(0)")
    stamp(0)
    make_srd(S_X, P_Q, 2048 * 1024)
    make_srd(S_WG, P_WG, 512 * 2752)
    make_srd(S_WU, P_WU, 512 * 2752)
    e(f"s_cmp_ge_u32 s{sMT}, 8")
    e(f"s_cselect_b32 s{S_OWN}, s{S_WU}, s{S_WG}")
    e(f"s_cselect_b32 s{S_OWN + 1}, s{S_WU + 1}, s{S_WG + 1}")
    e(f"s_mov_b32 s{S_OWN + 2}, {512 * 2752}")
    e(f"s_mov_b32 s{S_OWN + 3}, 0x00020000")
    V = VMQ()

    def pf():
        for j in range(4):
            V.emit(f"buffer_load_dwordx4 {vr(PW + 4 * j, 4)}, v8, {sr(S_OWN, 4)}, s3 offen", "pf")
            V.emit(f"buffer_load_dwordx4 {vr(PX + 4 * j, 4)}, v9, {sr(S_X, 4)}, s4 offen", "pf")
            if j < 3:
                e(f"s_add_u32 s3, s3, {16 * 2752}")
                e("s_add_u32 s4, s4, 8192")

    def dma(s):
        st = (s % 3) * STG
        for j in range(4):
            e(f"s_add_u32 m0, s{sLB}, {st + 32768 + j * 1024}")
            e(f"s_add_u32 s{sT0}, s{sXB}, {j * 8192 + 128 * s}")
            V.emit(f"buffer_load_dwordx4 v{vX1 if j & 1 else vX0}, {sr(S_X, 4)}, s{sT0} offen lds", f"s{s}")
        for j in range(4):
            e(f"s_add_u32 s{sT0}, s{sWB}, {(64 * s + 4 * j) * 2752}")
            for part in range(2):
                e(f"s_add_u32 m0, s{sLB}, {st + part * 16384 + j * 1024}")
                V.emit(f"buffer_load_dwordx4 v{vWD}, {sr(S_WU if part else S_WG, 4)}, s{sT0} offen lds", f"s{s}")

    for _ in range(GSLEEP):
        e("s_sleep 8")
    for s in range(NI):
        if s == PFO:
            pf()
        dma(s)
    if PFO == NI:
        pf()
    make_srd(S_WS, P_WS, 0x1000000)
    state_init(0, 4)
    e("s_lshl_b32 s%d, s2, 8" % sMBX)
    e(f"s_add_u32 s{sMBX}, s{sMBX}, {WS_MB + 64}")
    c("flags needed: cs partials of part h/2 (8 bytes) + stats partials (8 bytes)")
    e(f"s_lshr_b32 s{sT0}, s{sH}, 1")
    e(f"s_lshl_b32 s{sT0}, s{sT0}, 3")
    e(f"s_lshl_b32 s{sPM}, 0xff, s{sT0}")
    e(f"s_or_b32 s{sPM}, s{sPM}, 0xff0000")

    def part_cs():
        V.wait("pf")
        stamp(4)
        zload()
        c("partial column sums")
        for j in range(4):
            for d in range(4):
                e(f"v_lshlrev_b32 v{T + 8 * j + 2 * d}, 16, v{PW + 4 * j + d}")
                e(f"v_and_b32 v{T + 8 * j + 2 * d + 1}, 0xffff0000, v{PW + 4 * j + d}")
        for d in range(4):
            epk("add", T + 2 * d, T + 2 * d, T + 8 + 2 * d)
            epk("add", T + 16 + 2 * d, T + 16 + 2 * d, T + 24 + 2 * d)
        for d in range(4):
            epk("add", T + 2 * d, T + 2 * d, T + 16 + 2 * d)
        e("s_nop 1")
        for i in range(4):
            e(f"v_permlane32_swap_b32 v{T + i}, v{T + 4 + i}")
        e("s_nop 1")
        for i in range(0, 4, 2):
            epk("add", T + i, T + i, T + 4 + i)
        e("s_nop 1")
        for i in range(2):
            e(f"v_permlane16_swap_b32 v{T + i}, v{T + 2 + i}")
        e("s_nop 1")
        epk("add", T, T, T + 2)
        for sh in (4, 8):
            e("s_nop 1")
            for i in range(2):
                e(f"v_add_f32_dpp v{T + i}, v{T + i}, v{T + i} row_ror:{sh} row_mask:0xf bank_mask:0xf")
        c("store: lanes with l%16 < 4: col = 32h + 8(l%4) + 2(l/16)")
        e("v_and_b32 v2, 3, v1")
        e("v_lshrrev_b32 v3, 4, v1")
        e("v_lshlrev_b32 v3, 3, v3")
        e("v_lshl_add_u32 v2, v2, 5, v3")
        e(f"s_lshl_b32 s{sT0}, s{sNT}, 4")
        e(f"s_add_u32 s{sT0}, s{sT0}, s{sMT}")
        e(f"s_lshl_b32 s{sT0}, s{sT0}, 9")
        e(f"s_lshl_b32 s{sT1}, s{sH}, 7")
        e(f"s_add_u32 s{sT0}, s{sT0}, s{sT1}")
        e(f"s_add_u32 s{sT0}, s{sT0}, {WS_CS}")
        e("s_mov_b32 exec_lo, 0x000f000f")
        e("s_mov_b32 exec_hi, 0x000f000f")
        V.emit(f"buffer_store_dwordx2 {vr(T, 2)}, v2, {sr(S_WS, 4)}, s{sT0} offen sc1", "pst")
        e("s_mov_b64 exec, -1")

    def part_st():
        c("partial row stats")
        U = T + 8
        SS = T + 48
        for j in range(4):
            for d in range(4):
                e(f"v_lshlrev_b32 v{U + 8 * j + 2 * d}, 16, v{PX + 4 * j + d}")
                e(f"v_and_b32 v{U + 8 * j + 2 * d + 1}, 0xffff0000, v{PX + 4 * j + d}")
        for j in range(4):
            u = U + 8 * j
            q = PX + 4 * j
            epk("mul", q, u, u)
            for d in range(1, 4):
                epk("fma", q, u + 2 * d, u + 2 * d, q)
            epk("add", u, u, u + 2)
            epk("add", u + 4, u + 4, u + 6)
            epk("add", u, u, u + 4)
            e(f"v_add_f32 v{SS + 2 * j}, v{u}, v{u + 1}")
            e(f"v_add_f32 v{SS + 2 * j + 1}, v{q}, v{q + 1}")
        for ctl in ("quad_perm:[1,0,3,2]", "quad_perm:[2,3,0,1]", "row_half_mirror"):
            e("s_nop 1")
            for i in range(8):
                e(f"v_add_f32_dpp v{SS + i}, v{SS + i}, v{SS + i} {ctl} row_mask:0xf bank_mask:0xf")
        e("v_and_b32 v2, 7, v1")
        for j in range(1, 4):
            e(f"v_cmp_eq_u32 vcc, {j}, v2")
            e(f"v_cndmask_b32 v{SS}, v{SS}, v{SS + 2 * j}, vcc")
            e(f"v_cndmask_b32 v{SS + 1}, v{SS + 1}, v{SS + 2 * j + 1}, vcc")
        e("v_lshrrev_b32 v3, 3, v1")
        e("v_lshl_add_u32 v2, v2, 3, v3")
        e("v_lshlrev_b32 v2, 3, v2")
        e(f"s_lshl_b32 s{sT0}, s{sMT}, 4")
        e(f"s_add_u32 s{sT0}, s{sT0}, s{sNT}")
        e(f"s_lshl_b32 s{sT0}, s{sT0}, 10")
        e(f"s_lshl_b32 s{sT1}, s{sH}, 8")
        e(f"s_add_u32 s{sT0}, s{sT0}, s{sT1}")
        e(f"s_add_u32 s{sT0}, s{sT0}, {WS_SP}")
        e("s_mov_b32 exec_lo, 0x0f0f0f0f")
        e("s_mov_b32 exec_hi, 0x0f0f0f0f")
        V.emit(f"buffer_store_dwordx2 {vr(SS, 2)}, v2, {sr(S_WS, 4)}, s{sT0} offen sc1", "pst")
        e("s_mov_b64 exec, -1")

    if PC < 0:
        part_cs()
    if PS < 0:
        part_st()
    c("signal addresses: lanes 0-15: (mt'=l, nt) byte MB_CS + mt ; lanes 16-26: (mt, nt'=l-16) byte MB_ST + nt (nt < 8)")
    e("v_cmp_gt_u32 vcc, 16, v1")
    e(f"v_mov_b32 v2, s{sMT}")
    e(f"v_mov_b32 v3, s{sNT}")
    e("v_subrev_u32 v4, 16, v1")
    e("v_cndmask_b32 v2, v2, v1, vcc")
    e("v_cndmask_b32 v3, v4, v3, vcc")
    if MAP:
        e("v_and_b32 v4, 1, v2")
        e("v_lshl_add_u32 v4, v3, 1, v4")
        e("v_lshrrev_b32 v2, 1, v2")
        e("v_lshl_add_u32 v2, v4, 3, v2")
    else:
        e("v_lshrrev_b32 v4, 3, v2")
        e("v_mul_u32_u24 v4, 88, v4")
        e("v_lshl_add_u32 v4, v3, 3, v4")
        e("v_and_b32 v2, 7, v2")
        e("v_add_u32 v4, v4, v2")
        e("v_mul_u32_u24 v2, 2979, v4")
        e("v_lshrrev_b32 v2, 16, v2")
        e("v_mul_u32_u24 v3, 22, v2")
        e("v_sub_u32 v3, v4, v3")
        e("v_lshl_add_u32 v2, v3, 3, v2")
    e("v_lshlrev_b32 v2, 8, v2")
    e(f"s_add_u32 s{sT0}, s{sMT}, {WS_MB + 64 * 256 + MB_CS}")
    e(f"s_add_u32 s{sT1}, s{sNT}, {WS_MB + 64 * 256 + MB_ST}")
    e(f"v_mov_b32 v3, s{sT1}")
    e(f"v_mov_b32 v4, s{sT0}")
    e("v_cndmask_b32 v3, v3, v4, vcc")
    e(f"v_add_u32 v{vPO}, v2, v3")
    e(f"s_cmp_lt_u32 s{sNT}, 8")
    e(f"s_cselect_b32 s{sEX}, 0x7ffffff, 0xffff") if 0 else None
    e(f"s_mov_b32 s{sEX}, 0xffff")
    e(f"s_cselect_b32 s{sEX}, 0x7ffffff, s{sEX}")
    e(f"s_cmp_eq_u32 s{sH}, 0")
    e(f"s_cselect_b32 s{sEX}, s{sEX}, 0")
    e(f"s_mov_b32 s{sEX + 1}, 0")
    V.wait("s0", extra=" lgkmcnt(0)")
    e("s_barrier")
    stamp(1)
    for s in range(NI, 3):
        dma(s)
    PL = 16
    for s in range(7):
        tags = [f"s{s + 1}"] + (["pst"] if s == SG else [])
        if s == 6:
            T = 40
            if BL:
                V.wait("pl", "s7")
            else:
                V.wait("pl", "s7", "mb2")
                e(f"s_mov_b32 s{sPM}, {3 << (MB_KV - 64)}")
                pollbytes(sMBX, sPM, first=8)
            c("column sum operand: lane = column 64(h&1) + l of part h/2: (c1|c2, c3|0, 0, 0)")
            for a, b in ((0, 1), (2, 3), (4, 5), (6, 7), (0, 2), (4, 6), (0, 4)):
                e(f"v_add_f32 v{PL + a}, v{PL + a}, v{PL + b}")
                epk("add", PL + 8 + 2 * a, PL + 8 + 2 * a, PL + 8 + 2 * b)
            e(f"v_cvt_pk_bf16_f32 v4, 0, v{PL}")
            e(f"v_sub_f32 v{PL}, v{PL}, v4")
            e(f"v_cvt_pk_bf16_f32 v5, 0, v{PL}")
            e(f"v_sub_f32 v{PL}, v{PL}, v5")
            e(f"v_cvt_pk_bf16_f32 v{T + 1}, v{PL}, 0")
            e(f"v_lshrrev_b32 v4, 16, v4")
            e(f"v_or_b32 v{T}, v4, v5")
            for r in range(2, 8):
                e(f"v_mov_b32 v{T + r}, 0")
            e("v_lshrrev_b32 v2, 5, v1")
            e("v_and_b32 v3, 31, v1")
            e("v_lshlrev_b32 v3, 4, v3")
            e("v_lshl_add_u32 v2, v2, 10, v3")
            e(f"s_lshl_b32 s{sT0}, s{sH}, 11")
            e(f"s_add_u32 s{sT0}, s{sT0}, {L_CS}")
            e(f"v_add_u32 v2, s{sT0}, v2")
            e(f"ds_write_b128 v2, {vr(T, 4)}")
            e(f"ds_write_b128 v2, {vr(T + 4, 4)} offset:512")
            c("row statistics of row tile h (lanes 0-31)")
            for x in stats_math(PL + 8, PL + 9, T + 8, T + 16, T + 17):
                e(x)
            e(f"v_xor_b32 v4, 0x80000000, v{T + 12}")
            e(f"v_lshrrev_b32 v{T + 1}, 16, v4")
            e(f"v_or_b32 v{T}, v4, v{T + 1}")
            e("v_cmp_gt_u32 vcc, 32, v1")
            e(f"v_cndmask_b32 v{T}, 0, v{T}, vcc")
            e(f"v_cndmask_b32 v{T + 1}, 0, v{T + 1}, vcc")
            e(f"s_lshl_b32 s{sT0}, s{sH}, 10")
            e(f"s_add_u32 s{sT0}, s{sT0}, {L_MN}")
            e(f"v_lshl_add_u32 v2, v1, 4, s{sT0}")
            e(f"ds_write_b128 v2, {vr(T, 4)}")
            e(f"s_lshl_b32 s{sT0}, s{sH}, 7")
            e(f"s_add_u32 s{sT0}, s{sT0}, {L_RS}")
            e(f"v_lshl_add_u32 v2, v1, 2, s{sT0}")
            e("s_mov_b32 exec_hi, 0")
            e(f"ds_write_b32 v2, v{T + 16}")
            c("nt == 0: (rs, nm) -> ws")
            e(f"s_lshl_b32 s{sT0}, s{sMT}, 10")
            e(f"s_lshl_b32 s{sT1}, s{sH}, 8")
            e(f"s_add_u32 s{sT0}, s{sT0}, s{sT1}")
            e(f"s_add_u32 s{sT0}, s{sT0}, {WS_ST}")
            e("v_lshlrev_b32 v2, 3, v1")
            e(f"s_cmp_eq_u32 s{sNT}, 0")
            e("s_cselect_b32 exec_lo, -1, 0")
            V.emit(f"buffer_store_dwordx2 {vr(T + 16, 2)}, v2, {sr(S_WS, 4)}, s{sT0} offen sc1", "ss")
            e("s_mov_b64 exec, -1")
            e("s_waitcnt lgkmcnt(0)")
        else:
            V.wait(*tags)
        e("s_barrier")
        if s == 3:
            stamp(2)
        if s == 6:
            stamp(3)
        if s == SG:
            c("everybody's partial stores are complete -> wave 4 signals the consumers")
            zcheck()
            e("v_mov_b32 v2, 1")
            e(f"s_mov_b64 exec, {sr(sEX, 2)}")
            V.emit(f"buffer_store_byte v2, v{vPO}, {sr(S_WS, 4)}, 0 offen sc1", "sig")
            e("s_mov_b64 exec, -1")
        if s == S_POLL:
            V.emit(f"buffer_load_ubyte v8, v1, {sr(S_WS, 4)}, s{sMBX} offen sc1", "mb")
        if s + 3 < 8:
            dma(s + 3)
        if s == PC:
            part_cs()
        if s == PS:
            part_st()
            e("s_waitcnt lgkmcnt(0)")
        if s == 5 and not BL:
            V.emit(f"buffer_load_ubyte v8, v1, {sr(S_WS, 4)}, s{sMBX} offen sc1", "mb2")
        if s == S_POLL + 1:
            V.wait("mb")
            pollbytes(sMBX, sPM, first=8)
            stamp(9 if EB else None)
            if EB:
                c("w_down fragments ready? (vcc = flags of the last read)")
                e(f"s_bfe_u32 s{sT0}, vcc_lo, {0x20000 + MB_KV - 64}")
                e(f"s_cmp_eq_u32 s{sT0}, 3")
                e(f"s_cselect_b32 s{sWM}, -1, 0")
            c("partial loads")
            e(f"s_lshl_b32 s{sT0}, s{sNT}, 13")
            e(f"s_lshr_b32 s{sT1}, s{sH}, 1")
            e(f"s_lshl_b32 s{sT1}, s{sT1}, 12")
            e(f"s_add_u32 s{sT0}, s{sT0}, s{sT1}")
            e(f"s_and_b32 s{sT1}, s{sH}, 1")
            e(f"s_lshl_b32 s{sT1}, s{sT1}, 8")
            e(f"s_add_u32 s{sT0}, s{sT0}, s{sT1}")
            e(f"s_add_u32 s{sT0}, s{sT0}, {WS_CS}")
            e("v_lshlrev_b32 v2, 2, v1")
            for j in range(8):
                V.emit(f"buffer_load_dword v{PL + j}, v2, {sr(S_WS, 4)}, s{sT0} offen offset:{512 * j}", "pl")
            e(f"s_lshl_b32 s{sT0}, s{sMT}, 14")
            e(f"s_lshl_b32 s{sT1}, s{sH}, 8")
            e(f"s_add_u32 s{sT0}, s{sT0}, s{sT1}")
            e(f"s_add_u32 s{sT0}, s{sT0}, {WS_SP}")
            e(f"s_add_u32 s{sT1}, s{sT0}, 4096")
            e("v_and_b32 v2, 31, v1")
            e("v_lshlrev_b32 v2, 3, v2")
            for j in range(8):
                V.emit(f"buffer_load_dwordx2 {vr(PL + 8 + 2 * j, 2)}, v2, {sr(S_WS, 4)}, s{sT1 if j >= 4 else sT0} offen "
                       f"offset:{1024 * (j & 3)}", "pl")
        if EB and s == max(4, S_POLL + 1):
            c("GEMM2 B fragments of this wave + L2 prefetch of a quarter of unit (id/8)&3")
            e("s_lshr_b32 s3, s2, 5")
            e(f"s_mul_i32 s3, s3, {WDT}")
            e(f"s_add_u32 s3, s3, {WS_WD}")
            e("s_bfe_u32 s4, s2, 0x20003")
            if UROT:
                e(f"s_lshr_b32 s{sT1}, s2, 5")
                e(f"s_add_u32 s4, s4, s{sT1}")
                e("s_and_b32 s4, s4, 7")
            e(f"s_mul_i32 s4, s4, {11 * 2048}")
            e(f"s_mul_i32 s{sT0}, s{sH}, 5632")
            e(f"s_add_u32 s4, s4, s{sT0}")
            e("s_add_u32 s4, s4, s3")
            if UROT:
                e(f"s_add_u32 s{sT0}, s{sW}, s{sT1}")
                e(f"s_and_b32 s{sT0}, s{sT0}, 7")
                e(f"s_mul_i32 s{sT0}, s{sT0}, {11 * 2048}")
            else:
                e(f"s_mul_i32 s{sT0}, s{sW}, {11 * 2048}")
            e(f"s_add_u32 s3, s3, s{sT0}")
            e("v_lshlrev_b32 v9, 4, v1")
            ebl = []
            for i in range(22):
                ebl.append(f"buffer_load_dwordx4 {vr(168 + 4 * i, 4)}, v9, {sr(S_WS, 4)}, s3 offen offset:{1024 * (i & 3)}")
                if i & 3 == 3:
                    ebl[-1] += "|s_add_u32 s3, s3, 4096"
            if EB & 2:
                for i in range(6):
                    ebl.append(f"buffer_load_dwordx4 {vr(80 + 4 * i, 4)}, v9, {sr(S_WS, 4)}, s4 offen offset:{1024 * (i & 3)}")
                    if i == 3:
                        ebl[-1] += "|s_add_u32 s4, s4, 4096"
        if EB and s >= max(4, S_POLL + 1):
            n = (0 if EBW else len(ebl)) if s == 6 else EBN
            e(f"s_mov_b32 exec_lo, s{sWM}")
            e(f"s_mov_b32 exec_hi, s{sWM}")
            for x in ebl[:n]:
                for y in x.split("|"):
                    V.emit(y, "eb")
            e("s_mov_b64 exec, -1")
            del ebl[:n]
        if BL and s == 5:
            c("w_down fragments must be ready now")
            e(f"s_cmp_lg_u32 s{sWM}, 0")
            e("s_cbranch_scc1 k1h_wok")
            e(f"s_mov_b32 s{sPM}, {3 << (MB_KV - 64)}")
            pollbytes(sMBX, sPM)
            e("k1h_wok:")
        if BL and s >= 5:
            c("stage the B fragments of compute waves 2(s-5) + h/2: half h&1 (11 KB)")
            e(f"s_lshr_b32 s{sT0}, s{sH}, 1")
            e(f"s_mul_i32 s5, s{sH}, 11264")
            e(f"s_add_u32 s{sT0}, s{sT0}, {2 * (s - 5)}")
            e(f"s_lshr_b32 s{sT1}, s2, 5")
            if UROT:
                e(f"s_add_u32 s{sT0}, s{sT0}, s{sT1}")
                e(f"s_and_b32 s{sT0}, s{sT0}, 7")
            e(f"s_mul_i32 s{sT0}, s{sT0}, 22528")
            e(f"s_mul_i32 s{sT1}, s{sT1}, {WDT}")
            e(f"s_add_u32 s{sT0}, s{sT0}, s{sT1}")
            e(f"s_and_b32 s{sT1}, s{sH}, 1")
            e(f"s_mul_i32 s{sT1}, s{sT1}, 11264")
            e(f"s_add_u32 s{sT0}, s{sT0}, s{sT1}")
            e(f"s_add_u32 s{sT0}, s{sT0}, {WS_WD}")
            for i in range(11):
                e(f"s_add_u32 m0, s5, {(2 * STG if s == 5 else 0) + 1024 * i}")
                V.emit(f"buffer_load_dwordx4 v9, {sr(S_WS, 4)}, s{sT0} offen lds", "bl")
                e(f"s_add_u32 s{sT0}, s{sT0}, 1024")
    if BL:
        e(f"s_lshl_b32 s{sT0}, 1, s{sH}")
        e(f"v_mov_b32 v2, s{sT0}")
        e(f"v_mov_b32 v3, {L_ST}")
        V.wait("bl")
        e("s_mov_b64 exec, 1")
        e("ds_or_b32 v3, v2 offset:8")
        e("s_mov_b64 exec, -1")
    if EBW:
        c("remaining own B loads, at most EBW in flight")
        e(f"s_mov_b32 exec_lo, s{sWM}")
        e(f"s_mov_b32 exec_hi, s{sWM}")
        for k, x in enumerate(ebl):
            if k >= EBW:
                e(f"s_waitcnt vmcnt({EBW - 1})")
            for y in x.split("|"):
                V.emit(y, "eb")
        e("s_mov_b64 exec, -1")
    c("nt == 0: stats flag of row tile h to the 8 consumers of row block 2mt + h/2")
    e(f"s_lshl_b32 s{sT0}, s{sMT}, 1")
    e(f"s_lshr_b32 s{sT1}, s{sH}, 1")
    e(f"s_add_u32 s{sT0}, s{sT0}, s{sT1}")
    e(f"s_and_b32 s{sT1}, s{sH}, 1")
    e(f"s_add_u32 s{sT1}, s{sT1}, {MB_S}")
    sig_h(sT0, sT1, 3)
    e(f"s_cmp_eq_u32 s{sNT}, 0")
    e(f"s_cselect_b32 s{sSGX}, 0xff, 0")
    if not EB:
        e(f"s_mov_b32 s{sWM}, 0")
    e(f"s_mov_b32 s{sNU}, 1")
    e(f"s_mov_b32 s{sNS}, 0")
    e("s_branch g2_unit")
    flush_ool()


def k1_aux():
    S_WD = 44
    sW, sT0, sT1, sN2, sKH, sLB = 62, 63, 64, 65, 66, 67
    sKS = 68
    e("k1_aux:")
    e("v_lshrrev_b32 v2, 6, v0")
    e("v_and_b32 v1, 63, v0")
    e(f"v_readfirstlane_b32 s{sW}, v2")
    e(f"s_and_b32 s{sN2}, s2, 7")
    e(f"s_bfe_u32 s{sKH}, s2, 0x10003")
    e("v_lshrrev_b32 v2, 3, v1")
    e("v_and_b32 v3, 7, v1")
    e("v_lshlrev_b32 v3, 4, v3")
    e("v_lshl_add_u32 v2, v2, 10, v3")
    e(f"s_mul_i32 s{sLB}, s{sW}, 12288")
    e(f"s_mul_i32 s{sT1}, s{sKH}, 43")
    for j in range(6):
        e(f"s_add_u32 s{sT0}, s{sW}, {8 * j}")
        e(f"s_min_u32 s{sT0}, s{sT0}, 42")
        e(f"s_add_u32 s{sKS + j}, s{sT0}, s{sT1}")
    e("s_waitcnt lgkmcnt(0)")
    stamp(0)
    make_srd(S_WD, P_WD, 1376 * 1024)
    make_srd(S_WS, P_WS, 0x1000000)
    e("v_lshlrev_b32 v3, 4, v1")
    c("WG 240: zero all mailboxes (64 KB), then set the flag in d_debug")
    e("s_cmp_lg_u32 s2, 240")
    e("s_cbranch_scc1 aux_nz0")
    e(f"s_lshl_b32 s3, s{sW}, 13")
    e(f"s_add_u32 s3, s3, {WS_MB}")
    for r in range(4):
        e(f"v_mov_b32 v{4 + r}, 0")
    for j in range(8):
        e(f"buffer_store_dwordx4 v[4:7], v3, {sr(S_WS, 4)}, s3 offen sc1")
        e("s_add_u32 s3, s3, 1024")
    e("aux_nz0:")
    if ASLEEP:
        e("s_cmp_eq_u32 s2, 240")
        e("s_cbranch_scc1 aux_ns")
        for _ in range(ASLEEP):
            e("s_sleep 16")
        e("aux_ns:")
    e(f"s_lshl_b32 s{sT1}, s{sN2}, 7")
    for j in range(6):
        e(f"s_lshl_b32 s{sT0}, s{sKS + j}, 14")
        e(f"s_add_u32 s{sT0}, s{sT0}, s{sT1}")
        for i in range(2):
            e(f"s_add_u32 m0, s{sLB}, {2048 * j + 1024 * i}")
            if i:
                e(f"s_add_u32 s{sT0}, s{sT0}, 8192")
            e(f"buffer_load_dwordx4 v2, {sr(S_WD, 4)}, s{sT0} offen lds")
    e(f"s_mov_b32 s{sZ}, 0")
    state_init(4)
    e("s_cmp_lg_u32 s2, 240")
    e("s_cbranch_scc1 aux_nz")
    make_srd(S_DB2, P_DBG, 256)
    e("s_waitcnt vmcnt(12)")
    e("s_barrier")
    stamp(1)
    e(f"s_mov_b32 s{sZ}, 1")
    e(f"s_cmp_lg_u32 s{sW}, 0")
    e("s_cbranch_scc1 aux_nz")
    e("v_mov_b32 v14, 1")
    e(f"v_mov_b32 v15, {ZOFF}")
    e("s_mov_b64 exec, 1")
    e(f"buffer_store_dword v14, v15, {sr(S_DB2, 4)}, 0 offen sc1")
    e("s_mov_b64 exec, -1")
    e("aux_nz:")
    c("tr read address: row 4g + li/4 (+8u), col bytes 64ct + 32((l/16)&1) + 8(li%4)")
    e("v_and_b32 v4, 15, v1")
    e("v_lshrrev_b32 v5, 2, v4")
    e("v_lshrrev_b32 v6, 5, v1")
    e("v_lshl_add_u32 v5, v6, 2, v5")
    e("v_lshlrev_b32 v5, 7, v5")
    e("v_bfe_u32 v6, v1, 4, 1")
    e("v_lshl_add_u32 v5, v6, 5, v5")
    e("v_and_b32 v4, 3, v4")
    e("v_lshl_add_u32 v5, v4, 3, v5")
    e(f"v_add_u32 v5, s{sLB}, v5")
    e(f"s_mul_i32 s{sT1}, s{sN2}, {WDT}")
    e(f"s_add_u32 s{sT1}, s{sT1}, {WS_WD}")
    e("s_waitcnt vmcnt(0)")
    stamp(2)
    e("s_cmp_eq_u32 s2, 240")
    e("s_cbranch_scc1 aux_z1")
    zload()
    e("aux_z1:")
    for j in range(6):
        for ct in range(2):
            for u in range(2):
                e(f"ds_read_b64_tr_b16 {vr(16 + 8 * j + 4 * ct + 2 * u, 2)}, v5 offset:{2048 * j + 1024 * u + 64 * ct}")
        if j >= 1:
            e("s_waitcnt lgkmcnt(0)" if j == 1 else "s_waitcnt lgkmcnt(4)")
            e(f"s_lshl_b32 s{sT0}, s{sKS + j - 1}, 11")
            e(f"s_add_u32 s{sT0}, s{sT0}, s{sT1}")
            for ct in range(2):
                e(f"buffer_store_dwordx4 {vr(16 + 8 * (j - 1) + 4 * ct, 4)}, v3, {sr(S_WS, 4)}, s{sT0} offen offset:{1024 * ct} sc1")
    e("s_waitcnt lgkmcnt(0)")
    e(f"s_lshl_b32 s{sT0}, s{sKS + 5}, 11")
    e(f"s_add_u32 s{sT0}, s{sT0}, s{sT1}")
    for ct in range(2):
        e(f"buffer_store_dwordx4 {vr(16 + 40 + 4 * ct, 4)}, v3, {sr(S_WS, 4)}, s{sT0} offen offset:{1024 * ct} sc1")
    zcheck()
    e("s_waitcnt vmcnt(0)")
    e("s_barrier")
    stamp(3)
    c("wave 0: flag to the 32 consumers id = 32 nt2 + l (byte MB_W + kh, GEMM1 WGs: MB_KV + kh)")
    e(f"s_lshl_b32 s{sT0}, s{sN2}, 5")
    e(f"v_add_u32 v4, s{sT0}, v1")
    e(f"v_subrev_u32 v5, {K1_NCONV}, v4")
    e(f"v_cmp_gt_u32 vcc, {K1_NGEMM}, v5")
    e(f"v_mov_b32 v5, {MB_W}")
    e(f"v_mov_b32 v6, {MB_KV}")
    e("v_cndmask_b32 v5, v5, v6, vcc")
    e(f"v_cmp_gt_u32 vcc, {K1_NCONV}, v4")
    e("v_cndmask_b32 v5, v5, 64, vcc")
    e("v_lshl_add_u32 v4, v4, 8, v5")
    c("nt2 < 2: also to the aux WGs 240 + 8 nt2 + (l - 32), byte 64 + kh")
    e(f"s_lshl_b32 s{sT0}, s{sN2}, 3")
    e(f"s_add_u32 s{sT0}, s{sT0}, {240 - 32}")
    e(f"v_add_u32 v5, s{sT0}, v1")
    e("v_lshlrev_b32 v5, 8, v5")
    e("v_add_u32 v5, 64, v5")
    e("v_cmp_gt_u32 vcc, 32, v1")
    e("v_cndmask_b32 v4, v5, v4, vcc")
    e(f"s_add_u32 s{sT0}, s{sKH}, {WS_MB}")
    e("v_mov_b32 v5, 1")
    e(f"s_cmp_lt_u32 s{sN2}, 2")
    e(f"s_cselect_b32 s{sT1}, 0xff, 0")
    e(f"s_cmp_eq_u32 s{sW}, 0")
    e("s_cselect_b32 exec_lo, -1, 0")
    e(f"s_cselect_b32 exec_hi, s{sT1}, 0")
    e(f"buffer_store_byte v5, v4, {sr(S_WS, 4)}, s{sT0} offen sc1")
    e("s_mov_b64 exec, -1")
    if APF:
        c("pull the fragments of column block kh (conv WGs' tiles) into this XCD's L2")
        e("s_mov_b32 s5, 3")
        e(f"s_cmp_lg_u32 s{sW}, 7")
        e("s_cbranch_scc1 aux_kw")
        e("s_lshl_b32 s4, s2, 8")
        e(f"s_add_u32 s4, s4, {WS_MB + 64}")
        pollbytes(4, 5)
        e(f"v_mov_b32 v14, {L_ST}")
        e("v_mov_b32 v15, -1")
        e("ds_write_b32 v14, v15 offset:8")
        e("s_branch aux_kd")
        e("aux_kw:")
        lds_wait(8, 5)
        e("aux_kd:")
        e(f"s_mul_i32 s{sT0}, s{sKH}, {WDT}")
        e(f"s_mul_i32 s{sT1}, s{sW}, {11 * 2048}")
        e(f"s_add_u32 s{sT0}, s{sT0}, s{sT1}")
        e(f"s_add_u32 s{sT0}, s{sT0}, {WS_WD}")
        for i in range(22):
            e(f"buffer_load_dwordx4 {vr(80 + 4 * i, 4)}, v3, {sr(S_WS, 4)}, s{sT0} offen offset:{1024 * (i & 3)}")
            if i & 3 == 3:
                e(f"s_add_u32 s{sT0}, s{sT0}, 4096")
    e(f"s_mov_b32 s{sSGX}, 0")
    e(f"s_mov_b32 s{sSG0}, {WS_MB}")
    e(f"s_mov_b32 s{sSG1}, 0")
    e(f"s_mov_b32 s{sWM}, {3 << MB_W}")
    e(f"s_mov_b32 s{sNU}, 1")
    e(f"s_mov_b32 s{sNS}, 0")
    e("s_branch g2_unit")


CV_KCPY = 4160
CV_T = 117248
CV_TP = 528


def k1_conv():
    S_K, S_V, S_SK, S_SH = 44, 48, 52, 72
    sW, sT0, sT1, sD, sG, sJ, sCH, sRB, sKT, sMBX = 62, 63, 64, 65, 66, 67, 68, 69, 70, 71
    e("k1_conv:")
    e("v_lshrrev_b32 v2, 6, v0")
    e("v_and_b32 v1, 63, v0")
    e(f"v_readfirstlane_b32 s{sW}, v2")
    c("G = id%8 (64-channel group), J = id/8 (256-row block / channel sub-group)")
    e(f"s_and_b32 s{sG}, s2, 7")
    e(f"s_lshr_b32 s{sJ}, s2, 3")
    sGP = 60
    if ROT:
        e(f"s_add_u32 s{sGP}, s{sG}, s{sJ}")
        e(f"s_and_b32 s{sGP}, s{sGP}, 7")
    else:
        e(f"s_mov_b32 s{sGP}, s{sG}")
    c("---- kv phase: rows J*256 + 4*rg.., channels G*64 + cs*8..")
    if KVF:
        c("full rows: WG r: rows 32r + 4w .., lane: 8 channels")
        e("v_lshrrev_b32 v2, 6, v0")
        e("v_lshlrev_b32 v4, 4, v1")
        e("v_lshl_add_u32 v4, v2, 12, v4")
        e(f"s_lshl_b32 s{sT0}, s2, 15")
        e(f"v_add_u32 v4, s{sT0}, v4")
        e("v_subrev_u32 v5, 3072, v4")
        e("v_lshlrev_b32 v6, 6, v1")
    else:
        e("v_lshrrev_b32 v2, 3, v0")
        e("v_and_b32 v3, 7, v0")
        e(f"s_lshl_b32 s{sT0}, s{sJ}, 18")
        e(f"s_lshl_b32 s{sT1}, s{sGP}, 7")
        e(f"s_add_u32 s{sT0}, s{sT0}, s{sT1}")
        e("v_lshlrev_b32 v4, 12, v2")
        e("v_lshl_add_u32 v4, v3, 4, v4")
        e(f"v_add_u32 v4, s{sT0}, v4")
        e("v_subrev_u32 v5, 3072, v4")
        e(f"s_lshl_b32 s{sT1}, s{sGP}, 9")
        e("v_lshlrev_b32 v6, 6, v3")
        e(f"v_add_u32 v6, s{sT1}, v6")
    e("s_waitcnt lgkmcnt(0)")
    stamp(0)
    V = VMQ()
    KD, VD, WD = 16, 44, 60

    def kvloads():
        for _ in range(CS3):
            e("s_sleep 8")
        e(f"s_cmp_eq_u32 s{sGP}, 3")
        e("s_cbranch_scc1 k1c_ns")
        for _ in range(CSLEEP - CS3):
            e("s_sleep 8")
        e("k1c_ns:")
        make_srd(S_K, P_K, 2048 * 1024)
        make_srd(S_V, P_V, 2048 * 1024)
        make_srd(S_SH, P_SH, 4096)
        for r in range(3):
            V.emit(f"buffer_load_dwordx4 {vr(KD + 4 * r, 4)}, v5, {sr(S_K, 4)}, 0 offen offset:{1024 * r}", "kv")
        for r in range(4):
            V.emit(f"buffer_load_dwordx4 {vr(KD + 12 + 4 * r, 4)}, v4, {sr(S_K, 4)}, 0 offen offset:{1024 * r}", "kv")
        for r in range(4):
            V.emit(f"buffer_load_dwordx4 {vr(VD + 4 * r, 4)}, v4, {sr(S_V, 4)}, 0 offen offset:{1024 * r}", "kv")
        for j in range(4):
            V.emit(f"buffer_load_dwordx4 {vr(WD + 4 * j, 4)}, v6, {sr(S_SH, 4)}, 0 offen offset:{16 * j}", "kv")

    if SKD != 3:
        kvloads()
    make_srd(S_SK, P_SK, 512 * 4096)
    make_srd(S_WS, P_WS, 0x1000000)
    c("channel of this wave: 64G + 8J + w")
    e(f"s_lshl_b32 s{sCH}, s{sG}, 3")
    e(f"s_add_u32 s{sCH}, s{sCH}, s{sJ}")
    e(f"s_lshl_b32 s{sCH}, s{sCH}, 3")
    e(f"s_add_u32 s{sCH}, s{sCH}, s{sW}")
    e(f"s_lshl_b32 s{sKT}, s{sW}, 14")
    e(f"s_mul_i32 s{sT0}, s{sW}, 12928")
    e(f"s_add_u32 s{sT0}, s{sT0}, {65536 - 4 * 12928}")
    e(f"s_cmp_ge_u32 s{sW}, 4")
    e(f"s_cselect_b32 s{sKT}, s{sT0}, s{sKT}")
    e(f"s_add_u32 s{sRB}, s{sKT}, 8320")
    e(f"s_lshl_b32 s{sT0}, s{sCH}, 1")
    e(f"s_and_b32 s{sT1}, s{sT0}, 0xfffffffc")
    e(f"s_add_u32 s{P_SD}, s{P_SD}, s{sT1}")
    e(f"s_addc_u32 s{P_SD + 1}, s{P_SD + 1}, 0")
    e(f"s_load_dword s{sD}, {sr(P_SD, 2)}, 0")
    SKR = 232
    e(f"s_lshl_b32 s{sCH}, s{sCH}, 12")
    e("v_lshlrev_b32 v8, 4, v1")

    def skloads():
        for j in range(4):
            V.emit(f"buffer_load_dwordx4 {vr(SKR + 4 * j, 4)}, v8, {sr(S_SK, 4)}, s{sCH} offen offset:{1024 * j}", "sk")
        for j in range(4):
            V.emit(f"buffer_load_dword v{SKR + 16 + j}, v8, {sr(S_SK, 4)}, s{sCH} offen offset:{1024 * j + 16}", "sk")
    if SKD == 0:
        skloads()
    if SKD == 3:
        skloads()
        kvloads()
    c("kv LDS transpose position: T + (cs*8 + cc)*528 + 504 - 8 rg")
    if KVF:
        e("v_mul_u32_u24 v7, 80, v1")
        e("v_lshlrev_b32 v9, 3, v2")
        e("v_sub_u32 v7, v7, v9")
        e(f"v_add_u32 v7, {CV_T + 56}, v7")
    else:
        e(f"v_mul_u32_u24 v7, {8 * CV_TP}, v3")
        e("v_lshlrev_b32 v9, 3, v2")
        e("v_sub_u32 v7, v7, v9")
        e(f"v_add_u32 v7, {CV_T + 504}, v7")
    state_init(-4 if C8 else 4)
    c("zero pads")
    e("v_lshlrev_b32 v6, 3, v1")
    e(f"v_add_u32 v6, s{sRB}, v6")
    e("v_mov_b32 v10, 0")
    e("v_mov_b32 v11, 0")
    e("ds_write_b64 v6, v[10:11] offset:4096")
    e("v_lshlrev_b32 v6, 2, v1")
    e(f"v_add_u32 v6, s{sKT}, v6")
    e("s_mov_b64 exec, 0xff")
    e("ds_write_b32 v6, v10")
    e(f"ds_write_b32 v6, v10 offset:{CV_KCPY}")
    e("s_mov_b64 exec, -1")
    c("addresses of the kv row stores")
    if KVF:
        e("v_bfe_u32 v6, v1, 2, 3")
        e("v_mul_u32_u24 v9, 5120, v6")
        e("v_lshrrev_b32 v6, 5, v1")
        e("v_mul_u32_u24 v6, 80, v6")
        e("v_add_u32 v9, v9, v6")
        e("v_and_b32 v6, 3, v1")
        e("v_lshl_add_u32 v9, v6, 4, v9")
        e(f"s_mul_i32 s{sT1}, s{sW}, 640")
        e(f"s_add_u32 s{sT1}, s{sT1}, {CV_T}")
        e(f"v_add_u32 v9, s{sT1}, v9")
        e("v_lshrrev_b32 v6, 3, v1")
        e("v_and_b32 v10, 7, v1")
        e("v_lshlrev_b32 v10, 4, v10")
        e("v_lshl_add_u32 v10, v6, 13, v10")
        e(f"s_lshl_b32 s3, s{sW}, 18")
        e(f"s_add_u32 s3, s3, {WS_KV + 63 * 128}")
        e(f"s_lshl_b32 s{sT1}, s2, 7")
        e(f"s_sub_u32 s3, s3, s{sT1}")
        c("kv flags: consumers 8l + w, byte 192 + r")
        e(f"s_lshl_b32 s4, s{sW}, 8")
        e("s_add_u32 s4, s4, s2")
        e(f"s_add_u32 s4, s4, {WS_MB + 192}")
        e("v_lshlrev_b32 v11, 11, v1")
    else:
        e("v_lshrrev_b32 v6, 5, v1")
        e("v_and_b32 v10, 31, v1")
        e("v_lshlrev_b32 v10, 4, v10")
        e(f"v_mul_u32_u24 v9, {CV_TP}, v6")
        e("v_add_u32 v9, v9, v10")
        e(f"s_mul_i32 s{sT1}, s{sW}, {8 * CV_TP}")
        e(f"s_add_u32 s{sT1}, s{sT1}, {CV_T}")
        e(f"v_add_u32 v9, s{sT1}, v9")
        e("v_lshl_add_u32 v10, v6, 12, v10")
        e(f"s_lshl_b32 s3, s{sGP}, 18")
        e(f"s_lshl_b32 s{sT1}, s{sW}, 15")
        e(f"s_add_u32 s3, s3, s{sT1}")
        e(f"s_add_u32 s3, s3, {WS_KV + 3584}")
        e(f"s_lshl_b32 s{sT1}, s{sJ}, 9")
        e(f"s_sub_u32 s3, s3, s{sT1}")
        c("kv flag: consumer id 8w + G, byte MB_KV + J")
        e(f"s_lshl_b32 s4, s{sW}, 3")
        e(f"s_add_u32 s4, s4, s{sGP}")
        e("s_lshl_b32 s4, s4, 8")
        e(f"s_add_u32 s4, s4, s{sJ}")
        e(f"s_add_u32 s4, s4, {WS_MB + MB_KV}")
    e(f"s_lshl_b32 s{sMBX}, s2, 8")
    e(f"s_add_u32 s{sMBX}, s{sMBX}, {WS_MB + 64}")
    e(f"s_mov_b32 s5, {0xff << (MB_KV - 64)}")
    V.wait("kv")
    stamp(1)
    zload()
    if SKD == 1:
        skloads()
    KF, VF, WF = 80, 136, 200
    for cc in range(8):
        for jp in range(2):
            w = WD + 2 * cc + jp
            e(f"v_lshlrev_b32 v{WF + (2 * jp) * 8 + cc}, 16, v{w}")
            e(f"v_and_b32 v{WF + (2 * jp + 1) * 8 + cc}, 0xffff0000, v{w}")
    for i in range(28):
        e(f"v_lshlrev_b32 v{KF + 2 * i}, 16, v{KD + i}")
        e(f"v_and_b32 v{KF + 2 * i + 1}, 0xffff0000, v{KD + i}")
    for i in range(16):
        e(f"v_lshlrev_b32 v{VF + 2 * i}, 16, v{VD + i}")
        e(f"v_and_b32 v{VF + 2 * i + 1}, 0xffff0000, v{VD + i}")
    KV = 168
    for cp in range(4):
        for r in range(4):
            d = KV + 8 * r + 2 * cp
            e(f"v_pk_mul_f32 {vr(d, 2)}, {vr(KF + 8 * r + 2 * cp, 2)}, {vr(WF + 3 * 8 + 2 * cp, 2)}")
            for j in range(1, 4):
                e(f"v_pk_fma_f32 {vr(d, 2)}, {vr(KF + 8 * (r + j) + 2 * cp, 2)}, "
                  f"{vr(WF + (3 - j) * 8 + 2 * cp, 2)}, {vr(d, 2)}")
            e(f"v_pk_mul_f32 {vr(d, 2)}, {vr(d, 2)}, {vr(VF + 8 * r + 2 * cp, 2)}")
        for cc in (2 * cp, 2 * cp + 1):
            o = 16 + 2 * cc
            e(f"v_cvt_pk_bf16_f32 v{o}, v{KV + 24 + cc}, v{KV + 16 + cc}")
            e(f"v_cvt_pk_bf16_f32 v{o + 1}, v{KV + 8 + cc}, v{KV + cc}")
            e(f"ds_write_b64 v7, {vr(o, 2)} offset:{cc * (5120 if KVF else CV_TP)}")
    e("s_waitcnt lgkmcnt(0)")
    e("s_barrier")
    c("wave w: channels 8w..8w+7 of the group: full-line stores (2 channels x 512 B per instruction)")
    for j in range(4):
        e(f"ds_read_b128 {vr(16 + 4 * j, 4)}, v9 offset:{160 * j if KVF else 2 * j * CV_TP}")
    for j in range(4):
        e(f"s_waitcnt lgkmcnt({3 - j})")
        V.emit(f"buffer_store_dwordx4 {vr(16 + 4 * j, 4)}, v10, {sr(S_WS, 4)}, s3 offen{STK}", "st")
        e(f"s_add_u32 s3, s3, {65536 if KVF else 8192}")
    if SKD == 2:
        skloads()

    def ktwork():
        e(f"v_add_u32 v7, s{sKT}, v8")
        V.wait("sk")
        for j in range(4):
            d = SKR + 4 * j
            t = 32 + 4 * j
            e(f"ds_write_b128 v7, {vr(d, 4)} offset:{32 + 1024 * j}")
            e(f"v_alignbit_b32 v{t}, v{d + 1}, v{d}, 16")
            e(f"v_alignbit_b32 v{t + 1}, v{d + 2}, v{d + 1}, 16")
            e(f"v_alignbit_b32 v{t + 2}, v{d + 3}, v{d + 2}, 16")
            e(f"v_alignbit_b32 v{t + 3}, v{SKR + 16 + j}, v{d + 3}, 16")
            e(f"ds_write_b128 v7, {vr(t, 4)} offset:{CV_KCPY + 32 + 1024 * j}")
        e(f"v_lshlrev_b32 v12, 16, v{SKR}")
        e("s_mov_b64 exec, 1")
        e(f"ds_write_b32 v7, v12 offset:{CV_KCPY + 28}")
        e("s_mov_b64 exec, -1")

    if SKD != 2:
        ktwork()
    zcheck()
    e("v_mov_b32 v13, 1")
    V.wait("st")
    if KVF:
        e("s_mov_b64 exec, 0xff")
        V.emit(f"buffer_store_byte v13, v11, {sr(S_WS, 4)}, s4 offen sc1", "fl")
    else:
        e("s_mov_b64 exec, 1")
        V.emit(f"buffer_store_byte v13, off, {sr(S_WS, 4)}, s4 sc1", "fl")
    e("s_mov_b64 exec, -1")
    stamp(2)
    if SKD == 2:
        ktwork()
    e(f"s_lshl_b32 s{sT0}, s{sD}, 16")
    e(f"s_and_b32 s{sD}, s{sD}, 0xffff0000")
    e(f"s_bitcmp1_b32 s{sW}, 0")
    e(f"s_cselect_b32 s{sD}, s{sD}, s{sT0}")
    c("MFMA phase addresses")
    ACC = 16
    AR = [48, 112]
    BR = [80, 144]
    vKT, vR, vA = 200, 201, 202
    e("v_and_b32 v2, 15, v1")
    e("v_lshrrev_b32 v3, 4, v1")
    e("v_lshlrev_b32 v4, 1, v2")
    e("v_lshlrev_b32 v5, 4, v3")
    e("v_sub_u32 v4, v4, v5")
    e(f"v_add_u32 v4, {32 - 14}, v4")
    e("v_and_b32 v5, 1, v2")
    e("v_cmp_eq_u32 vcc, 0, v5")
    e("v_mov_b32 v5, 0")
    e(f"v_mov_b32 v6, {CV_KCPY - 2}")
    e("s_nop 1")
    e("v_cndmask_b32 v5, v5, v6, vcc")
    e("v_add_u32 v4, v4, v5")
    e(f"v_add_u32 v{vKT}, s{sKT}, v4")
    e("v_lshlrev_b32 v4, 5, v2")
    e("v_lshl_add_u32 v4, v3, 4, v4")
    e(f"v_sub_u32 v4, {4080 - 3584}, v4")
    e(f"v_add_u32 v{vR}, s{sRB}, v4")
    e("v_lshlrev_b32 v4, 5, v2")
    e("v_lshl_add_u32 v4, v3, 3, v4")
    e(f"v_sub_u32 v5, {4088 - 3584}, v4")
    e(f"v_add_u32 v5, s{sRB}, v5")
    c("GEMM2 interface: flag byte MB_C + 8J + w to the 32 consumers 32G + l")
    e(f"s_lshl_b32 s{sSG0}, s{sG}, 13")
    e(f"s_lshl_b32 s{sT0}, s{sJ}, 3")
    e(f"s_add_u32 s{sSG0}, s{sSG0}, s{sT0}")
    e(f"s_add_u32 s{sSG0}, s{sSG0}, s{sW}")
    e(f"s_add_u32 s{sSG0}, s{sSG0}, {WS_MB + MB_C}")
    e(f"s_mov_b32 s{sSG1}, 8")
    e(f"s_mov_b32 s{sSGX}, -1")
    if C8:
        e(f"s_mov_b32 s{sNS}, 0")
        e(f"s_mov_b32 s{sNU}, 1")
    else:
        e(f"s_mov_b32 s{sNS}, 1")
        e(f"s_cmp_lt_u32 s{sW}, 4")
        e(f"s_cselect_b32 s{sNU}, 2, 0")
    if KVF:
        e(f"s_and_b32 s3, s{sCH}, 0xffffe000")
        e(f"s_bfe_u32 s{sT0}, s{sCH}, 0x1000c")
        e(f"s_lshl_b32 s{sT0}, s{sT0}, 6")
        e(f"s_add_u32 s3, s3, s{sT0}")
        e(f"s_add_u32 s3, s3, {WS_KV}")
        e("v_lshrrev_b32 v6, 2, v1")
        e("v_and_b32 v7, 3, v1")
        e("v_lshlrev_b32 v7, 4, v7")
        e("v_lshl_add_u32 v7, v6, 7, v7")
        e("s_mov_b32 s5, 0x80000000")
    else:
        e(f"s_add_u32 s3, s{sCH}, {WS_KV}")

    def crlist(ci, st, kinds="AB"):
        d0 = 2 * ci + 1
        r = []
        if "A" in kinds:
            for pp in range(4):
                r.append(f"v_add_u32 v{vA + pp}, {32 * d0 + 1024 * pp}, v{vKT}")
        order = [("B", 0)] + [("A", p) for p in range(8)] + [("B", m) for m in range(1, 8)]
        for kind, x in order:
            if kind not in kinds:
                continue
            if kind == "A":
                p = x
                o = 128 * (p & 1)
                r.append(f"ds_read2_b32 {vr(AR[st] + 4 * p, 2)}, v{vA + (p >> 1)} offset0:{o} offset1:{o + 1}")
                r.append(f"ds_read2_b32 {vr(AR[st] + 4 * p + 2, 2)}, v{vA + (p >> 1)} offset0:{o + 2} offset1:{o + 3}")
            else:
                m = x
                r.append(f"ds_read_b128 {vr(BR[st] + 4 * m, 4)}, v{vR} offset:{32 * d0 + 512 * (7 - m)}")
        return r

    e("s_waitcnt lgkmcnt(0)")
    for x in crlist(0, 0, "A"):
        e(x)
    e(f"s_cmp_lg_u32 s{sW}, 7")
    e("s_cbranch_scc1 k1c_kw")
    if KVF:
        e("s_mov_b32 s80, 0")
        e("k1c_kp:")
        e(f"buffer_load_ubyte v14, v1, {sr(S_WS, 4)}, s{sMBX} offen offset:128 sc1")
        e(f"buffer_load_ubyte v15, v1, {sr(S_WS, 4)}, s{sMBX} offen sc1")
        e("s_waitcnt vmcnt(0)")
        e("v_cmp_ne_u32 vcc, 0, v14")
        e("s_add_u32 s80, s80, 1")
        e("s_cmp_eq_u64 vcc, -1")
        e("s_cbranch_scc1 k1c_kpd")
        e("s_sleep 1")
        e("s_cmp_lt_u32 s80, 0x40000")
        e("s_cbranch_scc1 k1c_kp")
        e("k1c_kpd:")
        e("v_cmp_ne_u32 vcc, 0, v15")
    else:
        pollbytes(sMBX, 5)
    e(f"v_mov_b32 v14, {L_ST}")
    e("s_or_b32 s81, vcc_lo, s5")
    e("v_mov_b32 v15, s81")
    e("ds_write_b32 v14, v15 offset:8")
    e("s_branch k1c_kd")
    e("k1c_kw:")
    lds_wait(8, 5)
    e("k1c_kd:")
    c("own channel kvR row -> LDS R")
    for j in range(4):
        e(f"s_add_u32 m0, s{sRB}, {1024 * j}")
        e(f"buffer_load_dwordx4 v8, {sr(S_WS, 4)}, s3 offen offset:{1024 * j} lds sc1") if 0 else None
        e(f"buffer_load_dwordx4 v{7 if KVF else 8}, {sr(S_WS, 4)}, s3 offen lds")
        e(f"s_add_u32 s3, s3, {2048 if KVF else 1024}")
    if CPRIO == 1:
        e(f"s_cmp_lt_u32 s{sW}, 4")
        e("s_cbranch_scc0 k1c_p1")
        e("s_setprio 2")
        e("k1c_p1:")
    e("s_waitcnt vmcnt(0)")
    stamp(3)
    for x in crlist(0, 0, "B"):
        e(x)
    c("w_down fragments ready -> B fragments of the GEMM2 unit are loaded under the MFMAs")
    e("v_readfirstlane_b32 s81, v15")
    e("s_lshr_b32 s4, s2, 5")
    e(f"s_add_u32 s{sT0}, s{sW}, s4") if UROT else e(f"s_mov_b32 s{sT0}, s{sW}")
    e(f"s_and_b32 s{sT0}, s{sT0}, 7")
    e(f"s_mul_i32 s{sT0}, s{sT0}, 22528")
    e(f"s_mul_i32 s4, s4, {WDT}")
    e(f"s_add_u32 s4, s4, s{sT0}")
    e(f"s_add_u32 s4, s4, {WS_WD}")
    e("s_and_b32 s81, s81, 3")
    e("s_cmp_eq_u32 s81, 3")
    e(f"s_cselect_b32 s{sWM}, -1, 0")
    e(f"s_cselect_b32 s{sWM + 1}, -1, 0")
    if not CEB:
        e(f"s_mov_b32 s{sWM}, 0")

    def bload(i):
        return [f"s_add_u32 s{sT0}, s4, {1024 * i}", f"s_mov_b32 exec_lo, s{sWM}", f"s_mov_b32 exec_hi, s{sWM}",
                f"buffer_load_dwordx4 {vr(168 + 4 * i, 4)}, v8, {sr(S_WS, 4)}, s{sT0} offen", "s_mov_b64 exec, -1"]

    early = [i for i in range(22) if i not in (0, 1, 8, 9)] if CEB else []
    KVR = 80
    for ci in range(8):
        st = ci & 1
        if CPRIO == 2 and ci % 2 == 0:
            e(f"s_setprio {3 - ci // 2}")
        e("s_waitcnt lgkmcnt(0)")
        rl = []
        if ci < 7:
            rl = crlist(ci + 1, st ^ 1)
            for _ in range(4):
                e(rl.pop(0))
            if ci >= 1:
                for k in range(3):
                    if early:
                        rl += [bload(early.pop(0)), []]
        if ci == 7 and CPOL == 1:
            e(f"s_sub_u32 s{sT1}, s{sMBX}, 64")
            e(f"s_cmp_eq_u32 s{sW}, 7")
            e("s_cselect_b64 exec, -1, 0")
            e(f"buffer_load_ubyte v206, v1, {sr(S_WS, 4)}, s{sT1} offen sc1")
            e("s_mov_b64 exec, -1")
        if ci == 7:
            rl += [f"ds_read_b64 {vr(KVR + 2 * n, 2)}, v5 offset:{512 * (7 - n)}" for n in range(8)]
            rl += [[], [], [], ["s_waitcnt lgkmcnt(0)"]]
            vl = []
            for n in range(8):
                k0, k1 = KVR + 2 * n, KVR + 2 * n + 1
                t = 48 + 4 * n
                vl += [f"v_and_b32 v{t}, 0xffff0000, v{k1}", f"v_lshlrev_b32 v{t + 1}, 16, v{k1}",
                       f"v_and_b32 v{t + 2}, 0xffff0000, v{k0}", f"v_lshlrev_b32 v{t + 3}, 16, v{k0}"]
                vl += [f"v_mul_f32 v{t + i}, s{sD}, v{t + i}" for i in range(4)]
                vl += [f"v_cvt_pk_bf16_f32 v{t + i}, 0, v{t + i}" for i in range(4)]
            rl += [vl[i:i + 4] for i in range(0, 96, 4)]
        for m in range(8):
            for p in range(8 - m):
                cc = "0" if (ci == 0 and m == 0) else vr(ACC + 4 * (m + p), 4)
                e(f"v_mfma_f32_16x16x32_bf16 {vr(ACC + 4 * (m + p), 4)}, {vr(AR[st] + 4 * p, 4)}, "
                  f"{vr(BR[st] + 4 * m, 4)}, {cc}")
                if rl:
                    x = rl.pop(0)
                    for y in (x if isinstance(x, list) else [x]):
                        e(y)
        assert not rl
    stamp(9)
    c("epilogue: y2 = bf16(bf16(y) + bf16(kv*D)), store y2T")
    e(f"s_add_u32 s3, s{sCH}, {WS_Y2}")
    for n in range(8):
        a = ACC + 4 * n
        t = 48 + 4 * n
        if n == 7:
            e("s_nop 3")
        for i in range(4):
            e(f"v_cvt_pk_bf16_f32 v{a + i}, 0, v{a + i}")
        for i in range(0, 4, 2):
            epk("add", a + i, a + i, t + i)
        e(f"v_cvt_pk_bf16_f32 v{a}, v{a}, v{a + 1}")
        e(f"v_cvt_pk_bf16_f32 v{a + 1}, v{a + 2}, v{a + 3}")
        e(f"buffer_store_dwordx2 {vr(a, 2)}, v4, {sr(S_WS, 4)}, s3 offen offset:{512 * n}{STC}")
    stamp(4)
    if CPOL == 2:
        c("waves 0 and 7 read the mailbox while their stores drain")
        assert CEB and not CGATE
        e(f"s_sub_u32 s{sT1}, s{sMBX}, 64")
        e("v_mov_b32 v6, 0")
        e(f"s_add_u32 s{sT0}, s{sW}, 1")
        e(f"s_and_b32 s{sT0}, s{sT0}, 6")
        e("s_cselect_b64 exec, 0, -1")
        e(f"buffer_load_ubyte v6, v1, {sr(S_WS, 4)}, s{sT1} offen sc1")
        for i in (0, 1, 8, 9):
            for x in bload(i):
                e(x)
        e(f"v_lshlrev_b32 v12, s{sSG1}, v1")
        e("v_mov_b32 v13, 1")
        e("s_waitcnt vmcnt(5)")
        e("s_mov_b32 exec_hi, 0")
        e(f"buffer_store_byte v13, v12, {sr(S_WS, 4)}, s{sSG0} offen sc1")
        e("s_mov_b64 exec, -1")
        stamp(9 if env('G2S', 0) else None)
        e(f"s_mov_b32 s{sSGX}, 0")
        e("s_waitcnt vmcnt(5)")
        e("v_cmp_ne_u32 vcc, 0, v6")
        e(f"v_mov_b32 v14, {L_ST}")
        e("s_mov_b32 s81, vcc_lo")
        e("v_mov_b32 v15, s81")
        e("s_mov_b64 exec, 1")
        e("ds_or_b32 v14, v15 offset:4")
        e("s_mov_b64 exec, -1")
    if CPOL == 1:
        e(f"s_cmp_lg_u32 s{sW}, 7")
        e("s_cbranch_scc1 k1c_np")
        e("s_waitcnt vmcnt(8)")
        e("v_cmp_ne_u32 vcc, 0, v206")
        e(f"v_mov_b32 v14, {L_ST}")
        e("s_mov_b32 s81, vcc_lo")
        e("v_mov_b32 v15, s81")
        e("ds_write_b32 v14, v15 offset:4")
        e("k1c_np:")
    if C8:
        e(f"v_mov_b32 v14, {L_ST}")
        e("v_mov_b32 v15, 1")
        e("s_mov_b64 exec, 1")
        e("ds_add_u32 v14, v15")
        e("s_mov_b64 exec, -1")
    if CPRIO:
        e("s_setprio 0")
    if CGATE:
        c("own flag, then wait until all waves of the WG have issued their stores")
        e(f"v_lshlrev_b32 v12, s{sSG1}, v1")
        e("s_waitcnt vmcnt(0)")
        e("s_mov_b32 exec_hi, 0")
        e(f"buffer_store_byte v15, v12, {sr(S_WS, 4)}, s{sSG0} offen sc1")
        e("s_mov_b64 exec, -1")
        e(f"s_mov_b32 s{sSGX}, 0")
        e("s_mov_b32 s80, 0")
        e("k1c_g:")
        e("ds_read_b32 v13, v14")
        e("s_waitcnt lgkmcnt(0)")
        e(f"v_readfirstlane_b32 s{sT0}, v13")
        e("s_add_u32 s80, s80, 1")
        e("s_nop 2")
        e(f"s_cmp_ge_i32 s{sT0}, 4")
        e("s_cbranch_scc1 k1c_gd")
        e("s_sleep 2")
        e("s_cmp_lt_u32 s80, 0x400000")
        e("s_cbranch_scc1 k1c_g")
        e("k1c_gd:")
    if CEB and CPOL != 2:
        for i in (0, 1, 8, 9):
            for x in bload(i):
                e(x)
    e(f"s_cmp_lg_u32 s{sWM + 1}, 0")
    e("s_cbranch_scc1 g2_unit")
    e("s_mov_b32 s5, 3")
    pollbytes(sMBX, 5)
    e("s_branch g2_unit")
    flush_ool()


G2S = env('G2S', 0)
HKN = 0


def gemm2():
    S_X, S_OUT = 44, 48
    sMT2, sNT2, sW, sT0, sT1 = 60, 61, 62, 63, 64
    sU, sAB, sBB, sHM, sMB, sFIRST, sY, sXO, sMB3, sYO = 65, 66, 67, 68, 69, 70, 71, 72, 73, 74
    ACC2, BF2, AF2 = 16, 168, 80
    XR = 4
    YR, SR_ = 80, 84

    def hook(n):
        e(f"v_lshlrev_b32 v12, s{sSG1}, v1")
        e("v_mov_b32 v13, 1")
        e(f"s_waitcnt vmcnt({n})")
        e(f"s_mov_b32 exec_lo, s{sSGX}")
        e("s_mov_b32 exec_hi, 0")
        e(f"buffer_store_byte v13, v12, {sr(S_WS, 4)}, s{sSG0} offen sc1")
        e("s_mov_b64 exec, -1")
        e(f"s_mov_b32 s{sSGX}, 0")

    def xloads(part=0):
        make_srd(S_X, P_Q, 2048 * 1024)
        make_srd(S_OUT, P_OUT, 2048 * 1024)
        c("x / out offset: row 64mt2 + 8w, col 64nt2 + l")
        e(f"s_lshl_b32 s{sXO}, s{sMT2}, 3")
        e(f"s_add_u32 s{sXO}, s{sXO}, s{sW}")
        e(f"s_lshl_b32 s{sYO}, s{sXO}, 4")
        e(f"s_lshl_b32 s{sT0}, s{sNT2}, 18")
        e(f"s_add_u32 s{sYO}, s{sYO}, s{sT0}")
        e(f"s_add_u32 s{sYO}, s{sYO}, {WS_Y2}")
        e(f"s_lshl_b32 s{sXO}, s{sXO}, 13")
        e(f"s_lshl_b32 s{sT0}, s{sNT2}, 7")
        e(f"s_add_u32 s{sXO}, s{sXO}, s{sT0}")
        e(f"s_add_u32 s{sT0}, s{sXO}, 4096")
        e("v_lshlrev_b32 v3, 1, v1")
        for r in range(8):
            e(f"v_mov_b32 v{XR + r}, 0")
        if part == 0:
            return

    def xloads2():
        e(f"s_add_u32 s{sT0}, s{sXO}, 4096")
        for r in range(8):
            e(f"buffer_load_short_d16_hi v{XR + r}, v3, {sr(S_X, 4)}, s{sT0 if r >= 4 else sXO} offen offset:{1024 * (r & 3)}")

    def stloads():
        e(f"s_lshr_b32 s{sT0}, s{sXO}, 13")
        e(f"s_lshl_b32 s{sT0}, s{sT0}, 6")
        e(f"s_add_u32 s{sT0}, s{sT0}, {WS_ST}")
        for j in range(4):
            e(f"buffer_load_dwordx4 {vr(SR_ + 4 * j, 4)}, off, {sr(S_WS, 4)}, s{sT0} offset:{16 * j}")

    def yload():
        e("v_lshlrev_b32 v12, 12, v1")
        e(f"buffer_load_dwordx4 {vr(YR, 4)}, v12, {sr(S_WS, 4)}, s{sYO} offen")

    e("g2_unit:")
    e(f"s_lshr_b32 s{sNT2}, s2, 5")
    e(f"s_mul_i32 s{sBB}, s{sNT2}, {WDT}")
    if UROT:
        e(f"s_add_u32 s{sU}, s{sW}, s{sNT2}")
        e(f"s_and_b32 s{sU}, s{sU}, 7")
    else:
        e(f"s_mov_b32 s{sU}, s{sW}")
    e(f"s_mul_i32 s{sT0}, s{sU}, {11 * 2048}")
    e(f"s_add_u32 s{sBB}, s{sBB}, s{sT0}")
    e(f"s_add_u32 s{sBB}, s{sBB}, {WS_WD}")
    e("v_lshlrev_b32 v2, 4, v1")
    e(f"s_lshl_b32 s{sMB}, s2, 8")
    e(f"s_add_u32 s{sMB}, s{sMB}, {WS_MB}")
    e(f"s_add_u32 s{sMB3}, s{sMB}, {MB_C}")
    e(f"s_and_b32 s{sMT2}, s2, 7")
    e(f"s_lshl_b32 s{sMT2}, s{sMT2}, 2")
    e(f"s_bfe_u32 s{sT0}, s2, 0x20003")
    e(f"s_add_u32 s{sMT2}, s{sMT2}, s{sT0}")
    e(f"s_mov_b32 s{sFIRST}, 1")
    e(f"s_mov_b32 s{sY}, 0")
    e(f"s_cmp_eq_u32 s{sNU}, 0")
    e("s_cbranch_scc1 g2_nounit")
    e(f"s_cmp_eq_u32 s{sWM}, -1")
    e("s_cbranch_scc1 g2_bd")
    if HOOKF:
        hook(0)
        stamp(9 if G2S else None)
    e(f"s_cmp_eq_u32 s{sWM}, 0")
    e("s_cbranch_scc1 g2_loop")
    pollbytes(sMB, sWM)
    e("g2_loop:")
    for i in range(22):
        e(f"buffer_load_dwordx4 {vr(BF2 + 4 * i, 4)}, v2, {sr(S_WS, 4)}, s{sBB} offen offset:{1024 * (i & 3)}")
        if i & 3 == 3:
            e(f"s_add_u32 s{sBB}, s{sBB}, 4096")
    e(f"s_cmp_eq_u32 s{sFIRST}, 0")
    e("s_cbranch_scc1 g2_l2")
    if not HOOKF:
        hook(22)
    e("g2_bd_ret:")
    stamp(9 if G2S and not HOOKF else None)
    xloads()
    for r in range(64):
        e(f"v_mov_b32 v{ACC2 + r}, 0")
    e("g2_l2:")
    c("h flags of ks 11u .. 11u+10 (+ stats flags)")
    e(f"s_mul_i32 s{sT0}, s{sU}, 11")
    e(f"s_add_u32 s{sT1}, s{sT0}, 10")
    e(f"s_lshr_b32 s{sT1}, s{sT1}, 2")
    e(f"s_lshl_b32 s{sHM}, 2, s{sT1}")
    e(f"s_lshr_b32 s{sT1}, s{sT0}, 2")
    e(f"s_lshl_b32 s{sT1}, 1, s{sT1}")
    e(f"s_sub_u32 s{sHM}, s{sHM}, s{sT1}")
    e(f"s_or_b32 s{sHM}, s{sHM}, {3 << MB_S}")
    e(f"s_mul_i32 s{sAB}, s{sMT2}, {2 * HRT}")
    e(f"s_lshl_b32 s{sT0}, s{sT0}, 10")
    e(f"s_add_u32 s{sAB}, s{sAB}, s{sT0}")
    e(f"s_add_u32 s{sT1}, s{sAB}, {HRT}")
    e(f"s_cmp_eq_u32 s{sW}, 7")
    e("s_cbranch_scc1 g2_pol")
    lds_wait(4, sHM)
    with ool("g2_pol"):
        c("poller: relay the flags until all h / stats flags are set (two reads in flight)")
        e(f"v_mov_b32 v15, {L_ST}")
        e("ds_read_b32 v12, v15 offset:4")
        e("s_mov_b32 s80, 0")
        e("s_waitcnt lgkmcnt(0)")
        e("v_readfirstlane_b32 s81, v12")
        e("s_nop 3")
        e(f"s_and_b32 s81, s81, {0x3fffff | (3 << MB_S)}")
        e(f"s_cmp_eq_u32 s81, {0x3fffff | (3 << MB_S)}")
        e("s_cbranch_scc1 g2_pol_ret")
        if PWAIT:
            c("start when the own WG's first phase is complete")
            e("g2_pol1:")
            e("ds_read_b32 v12, v15")
            e("s_waitcnt lgkmcnt(0)")
            e("v_readfirstlane_b32 s81, v12")
            e("s_add_u32 s80, s80, 1")
            e("s_nop 2")
            e("s_cmp_ge_i32 s81, 4")
            e("s_cbranch_scc1 g2_pol1d")
            e("s_sleep 2")
            e("s_cmp_lt_u32 s80, 0x400000")
            e("s_cbranch_scc1 g2_pol1")
            e("g2_pol1d:")
            e("s_mov_b32 s80, 0")
            if PWAIT > 1:
                e(f"s_sleep {PWAIT}")
        e("g2_pol2:")
        e(f"buffer_load_ubyte v14, v1, {sr(S_WS, 4)}, s{sMB} offen sc1")
        e("s_waitcnt vmcnt(0)")
        e("v_cmp_ne_u32 vcc, 0, v14")
        e("s_mov_b32 s81, vcc_lo")
        e("v_mov_b32 v12, s81")
        e("s_mov_b64 exec, 1")
        e("ds_or_b32 v15, v12 offset:4")
        e("s_mov_b64 exec, -1")
        e(f"s_and_b32 s81, vcc_lo, {0x3fffff | (3 << MB_S)}")
        e(f"s_cmp_eq_u32 s81, {0x3fffff | (3 << MB_S)}")
        e("s_cbranch_scc1 g2_pol_ret")
        if PGAP:
            e(f"s_sleep {PGAP}")
        e("s_add_u32 s80, s80, 1")
        e("s_cmp_lt_u32 s80, 0x40000")
        e("s_cbranch_scc1 g2_pol2")
        e(f"v_mov_b32 v12, 0x7fffffff")
        e("ds_or_b32 v15, v12 offset:4")
    stamp(5)
    V = VMQ()

    def aload(i):
        j, a = i >> 1, i & 1
        V.emit(f"buffer_load_dwordx4 {vr(AF2 + 4 * i, 4)}, v2, {sr(S_WS, 4)}, s{sT1 if a else sAB} offen offset:{1024 * (j & 3)}", f"a{i}")
        if j & 3 == 3 and a:
            e(f"s_add_u32 s{sAB}, s{sAB}, 4096")
            e(f"s_add_u32 s{sT1}, s{sT1}, 4096")
        if i == YPOS:
            e(f"s_cmp_eq_u32 s{sW}, 7")
            e("s_cselect_b64 exec, -1, 0")
            V.emit(f"buffer_load_ubyte v12, v1, {sr(S_WS, 4)}, s{sMB3} offen sc1", "y")
            e("s_mov_b64 exec, -1")
        if i == XPOS:
            xloads2()
            V.q += ["x"] * 8

    for i in range(AW):
        aload(i)
    for j in range(11):
        if j == 9:
            e(f"v_mov_b32 v13, {L_ST}")
            e("ds_read_b64 v[14:15], v13")
            e(f"s_cmp_eq_u32 s{sU}, 7")
            e("s_cbranch_scc1 g2_mfd")
        for a in range(2):
            i = 2 * j + a
            V.wait(f"a{i}")
            if i + AW < 22:
                aload(i + AW)
            for ct in range(2):
                acc = ACC2 + 32 * a + 16 * ct
                e(f"v_mfma_f32_32x32x16_bf16 {vr(acc, 16)}, {vr(AF2 + 8 * j + 4 * a, 4)}, {vr(BF2 + 8 * j + 4 * ct, 4)}, {vr(acc, 16)}")
    e("g2_mfd:")
    e(f"s_sub_u32 s{sNU}, s{sNU}, 1")
    e(f"s_cmp_eq_u32 s{sNU}, 0")
    e("s_cbranch_scc1 g2_ud")
    e(f"s_add_u32 s{sU}, s{sU}, 4")
    e(f"s_add_u32 s{sBB}, s{sBB}, {44 * 2048 - 5 * 4096}")
    e(f"s_mov_b32 s{sFIRST}, 0")
    e("s_nop 7")
    e("s_branch g2_loop")
    e("g2_ud:")
    stamp(6)
    e(f"s_cmp_lg_u32 s{sW}, 7")
    e("s_cbranch_scc1 g2_np")
    e("s_waitcnt vmcnt(0) lgkmcnt(0)")
    e("v_cmp_ne_u32 vcc, 0, v12")
    e("s_cmp_eq_u64 vcc, -1")
    e("s_cbranch_scc0 g2_np")
    e("v_mov_b32 v15, -1")
    e(f"v_mov_b32 v13, {L_ST}")
    e("ds_write_b32 v13, v15 offset:4")
    e("g2_np:")
    c("partial address: slot w + n*256 + ((8a + 2q + g) ^ (n & 15))*16")
    e("v_and_b32 v12, 15, v1")
    e("v_lshrrev_b32 v13, 5, v1")
    e("v_xor_b32 v12, v12, v13")
    e("v_lshlrev_b32 v12, 4, v12")
    e("v_and_b32 v13, 31, v1")
    e("v_lshl_add_u32 v12, v13, 8, v12")
    e(f"s_lshl_b32 s{sT0}, s{sW}, 14")
    e(f"v_add_u32 v12, s{sT0}, v12")
    for k in range(1, 8):
        e(f"v_xor_b32 v{BF2 + k}, {32 * k}, v12")
    e("s_waitcnt vmcnt(0) lgkmcnt(0)")
    stloads()
    e(f"v_readfirstlane_b32 s{sT0}, v14")
    e(f"v_readfirstlane_b32 s{sT1}, v15")
    e("s_nop 3")
    e(f"s_cmp_ge_i32 s{sT0}, 4")
    e("s_cbranch_scc0 g2_cnt")
    with ool("g2_cnt"):
        e("s_mov_b32 s80, 0")
        e(f"v_mov_b32 v14, {L_ST}")
        e("g2_cnt2:")
        e("s_sleep 2")
        e("ds_read_b32 v15, v14")
        e("s_waitcnt lgkmcnt(0)")
        e(f"v_readfirstlane_b32 s{sT0}, v15")
        e("s_add_u32 s80, s80, 1")
        e("s_nop 2")
        e(f"s_cmp_ge_i32 s{sT0}, 4")
        e("s_cbranch_scc1 g2_cnt_ret")
        e("s_cmp_lt_u32 s80, 0x400000")
        e("s_cbranch_scc1 g2_cnt2")
    e(f"s_bitcmp1_b32 s{sT1}, 31")
    e("s_cbranch_scc0 g2_noy")
    e(f"s_mov_b32 s{sY}, 1")
    e("v_lshlrev_b32 v14, 12, v1")
    e(f"buffer_load_dwordx4 {vr(YR, 4)}, v14, {sr(S_WS, 4)}, s{sYO} offen")
    e("g2_noy:")
    for a in range(2):
        for q in range(4):
            k = 4 * a + q
            for ct in range(2):
                e(f"ds_write_b128 v{BF2 + k if k else 12}, {vr(ACC2 + 32 * a + 16 * ct + 4 * q, 4)} offset:{8192 * ct}")
    e("g2_bar:")
    c("final: lane = column, rows 8w .. 8w+7 (chunks 2w, 2w+1)")
    e("v_and_b32 v12, 15, v1")
    e(f"s_lshl_b32 s{sT0}, s{sW}, 1")
    e(f"v_xor_b32 v12, s{sT0}, v12")
    e("v_lshlrev_b32 v12, 4, v12")
    e("v_lshl_add_u32 v12, v1, 8, v12")
    e("v_xor_b32 v13, 16, v12")
    e("v_add_u32 v14, 0x10000, v12")
    e("v_add_u32 v15, 0x10000, v13")
    e("s_waitcnt lgkmcnt(0)")
    e("s_barrier")
    stamp(7)
    P = ACC2
    e(f"v_mov_b32 v2, {L_ST}")
    e("ds_read_b32 v2, v2 offset:4")
    for j in range(4):
        for h in range(2):
            e(f"ds_read_b128 {vr(P + 8 * j + 4 * h, 4)}, v{12 + h} offset:{16384 * j}")
    e("s_waitcnt lgkmcnt(8)")
    e(f"v_readfirstlane_b32 s{sT1}, v2")
    e("v_lshlrev_b32 v2, 12, v1")
    e("s_nop 2")
    e(f"s_lshr_b32 s{sT1}, s{sT1}, 31")
    e(f"s_cmp_gt_u32 s{sT1}, s{sY}")
    e("s_cbranch_scc0 g2_y2n")
    e(f"s_mov_b32 s{sY}, 1")
    e(f"buffer_load_dwordx4 {vr(YR, 4)}, v2, {sr(S_WS, 4)}, s{sYO} offen")
    e("g2_y2n:")
    e(f"s_cmp_lg_u32 s{sNS}, 0")
    e("s_cbranch_scc1 g2_s4")
    for j in range(4):
        for h in range(2):
            e(f"ds_read_b128 {vr(P + 32 + 8 * j + 4 * h, 4)}, v{14 + h} offset:{16384 * j}")
    for j in range(4):
        e(f"s_waitcnt lgkmcnt({6 - 2 * j})")
        for d in range(0, 8, 2):
            e(f"v_pk_add_f32 {vr(P + 8 * j + d, 2)}, {vr(P + 8 * j + d, 2)}, {vr(P + 32 + 8 * j + d, 2)}")
    e("g2_s4:")
    e("s_waitcnt lgkmcnt(0)")
    for a, b in ((0, 1), (2, 3), (0, 2)):
        for d in range(0, 8, 2):
            e(f"v_pk_add_f32 {vr(P + 8 * a + d, 2)}, {vr(P + 8 * a + d, 2)}, {vr(P + 8 * b + d, 2)}")
    for r in range(8):
        e(f"v_cvt_pk_bf16_f32 v{P + r}, 0, v{P + r}")
    e(f"s_cmp_lg_u32 s{sY}, 0")
    e("s_cbranch_scc1 g2_ydone")
    e(f"s_cmp_eq_u32 s{sW}, 7")
    e("s_cbranch_scc1 g2_yp0")
    e(f"s_mov_b32 s{sHM}, 0x80000000")
    lds_wait(4, sHM)
    e("s_branch g2_ypd2")
    e("g2_yp0:")
    e("s_mov_b32 s80, 0")
    e("g2_yp:")
    e(f"buffer_load_ubyte v14, v1, {sr(S_WS, 4)}, s{sMB3} offen sc1")
    e("s_waitcnt vmcnt(0)")
    e("v_cmp_ne_u32 vcc, 0, v14")
    e("s_add_u32 s80, s80, 1")
    e("s_cmp_eq_u64 vcc, -1")
    e("s_cbranch_scc1 g2_ypd")
    e("s_cmp_lt_u32 s80, 0x40000")
    e("s_cbranch_scc1 g2_yp")
    e("g2_ypd:")
    e(f"v_mov_b32 v15, {L_ST}")
    e("v_mov_b32 v14, -1")
    e("ds_write_b32 v15, v14 offset:4")
    e("g2_ypd2:")
    yload()
    e("g2_ydone:")
    stamp(8)
    XN = P + 8
    e("s_waitcnt vmcnt(1)")
    for r in range(8):
        e(f"v_fma_f32 v{XN + r}, v{XR + r}, v{SR_ + 2 * r}, v{SR_ + 2 * r + 1}")
    for r in range(8):
        e(f"v_cvt_pk_bf16_f32 v{XN + r}, 0, v{XN + r}")
    e(f"s_add_u32 s{sT0}, s{sXO}, 4096")
    e("s_waitcnt vmcnt(0)")
    YF = P + 16
    for d in range(4):
        e(f"v_lshlrev_b32 v{YF + 2 * d}, 16, v{YR + d}")
        e(f"v_and_b32 v{YF + 2 * d + 1}, 0xffff0000, v{YR + d}")
    for d in range(0, 8, 2):
        e(f"v_pk_mul_f32 {vr(YF + d, 2)}, {vr(YF + d, 2)}, {vr(XN + d, 2)}")
    for r in range(8):
        e(f"v_cvt_pk_bf16_f32 v{YF + r}, 0, v{YF + r}")
    for d in range(0, 8, 2):
        e(f"v_pk_add_f32 {vr(YF + d, 2)}, {vr(YF + d, 2)}, {vr(XR + d, 2)}")
    for r in range(8):
        e(f"v_cvt_pk_bf16_f32 v{YF + r}, 0, v{YF + r}")
    for d in range(0, 8, 2):
        e(f"v_pk_add_f32 {vr(YF + d, 2)}, {vr(YF + d, 2)}, {vr(P + d, 2)}")
        e(f"v_cvt_pk_bf16_f32 v{YF + d}, v{YF + d}, v{YF + d + 1}")
        s = sT0 if d >= 4 else sXO
        e(f"buffer_store_short v{YF + d}, v3, {sr(S_OUT, 4)}, s{s} offen offset:{1024 * (d & 3)}")
        e(f"buffer_store_short_d16_hi v{YF + d}, v3, {sr(S_OUT, 4)}, s{s} offen offset:{1024 * ((d + 1) & 3)}")
    stamp_flush(S_WS, WS_PROF)
    e("k1_done:")
    e("s_endpgm")
    flush_ool()
    e("g2_bd:")
    e(f"s_cmp_eq_u32 s{sSGX}, 0")
    e("s_cbranch_scc1 g2_bd_ret")
    hook(HKN)
    stamp(9 if G2S else None)
    e("s_branch g2_bd_ret")
    e("g2_nounit:")
    hook(0)
    xloads()
    xloads2()
    e(f"s_mov_b32 s{sHM}, {3 << MB_S}")
    pollbytes(sMB, sHM)
    stloads()
    e("s_branch g2_bar")


def kernel1():
    e(".globl k1_kernel")
    e(".p2align 8")
    e(".type k1_kernel,@function")
    e("k1_kernel:")
    e("s_cmp_ge_u32 s2, 256")
    e("s_cbranch_scc1 k1_done")
    load_ptrs()
    if RID:
        e(f"s_add_u32 s2, s2, {RID}")
        e("s_and_b32 s2, s2, 255")
    e(f"s_cmp_lt_u32 s2, {K1_NCONV}")
    e("s_cbranch_scc1 k1_conv")
    e(f"s_cmp_lt_u32 s2, {K1_NCONV + K1_NGEMM}")
    e("s_cbranch_scc1 k1_gemm")
    k1_aux()
    k1_gemm()
    k1_conv()
    gemm2()


def descriptor(name, nv):
    L.append(".p2align 6")
    L.append(f".amdhsa_kernel {name}")
    L.append(f"  .amdhsa_next_free_vgpr {nv}")
    L.append("  .amdhsa_next_free_sgpr 102")
    L.append(f"  .amdhsa_accum_offset {nv}")
    L.append("  .amdhsa_group_segment_fixed_size 0")
    L.append("  .amdhsa_kernarg_size 104")
    L.append("  .amdhsa_user_sgpr_count 2")
    L.append("  .amdhsa_user_sgpr_kernarg_segment_ptr 1")
    L.append("  .amdhsa_system_sgpr_workgroup_id_x 1")
    L.append(".end_amdhsa_kernel")


def main():
    hdr = open(f"cdna_kernels/{NAME}.s.ref").read().split("\n")
    for line in hdr:
        if line.startswith("; Override") or line.startswith("; grid=") or "@launch" in line:
            continue
        if not line.startswith(";"):
            break
        L.append(line)
    L.append(f"; @launch kernel=k1_kernel grid=(256,1,1) block=(512,1,1) lds=163840")
    L.append('.amdgcn_target "amdgcn-amd-amdhsa--gfx950"')
    L.append(".text")
    kernel1()
    L.append('.section .rodata,"a"')
    descriptor("k1_kernel", 256)
    out = sys.argv[1] if len(sys.argv) > 1 else f"cdna_kernels/{NAME}.s"
    open(out, "w").write("\n".join(L) + "\n")


if __name__ == "__main__":
    main()
```

```python
import os
import sys

NAME = "parallel_sum__ssm_conv_h3__glu_gated_bilinear__prompt"

WS_H = 0
HRT = 88 * 1024
WS_Y2 = 0x600000
WS_ST = 0x800000
WS_CS = 0x880000
WS_SP = 0x8C0000
WS_MB = 0x900000
WS_WD = 0xA00000
WDT = 88 * 2048
WS_KV = 0xC00000
ZOFF = 16
MB_H, MB_W, MB_S = 0, 22, 24
MB_CS, MB_ST, MB_KV = 64, 80, 88
MB_C = 128


def env(k, d):
    return int(os.environ.get(k, str(d)))


PSLEEP = env('PSLEEP', 1)
NI = env('NI', 2)
RPG = env('RPG', 2)
SPG = env('SPG', 6)
S_POLL = env('S_POLL', 3)
SKD = env('SKD', 1)
PFO = env('PFO', 0)
PC = env('PC', 0)
PS = env('PS', 1)
SG = env('SG', 2)
ASLEEP = env('ASLEEP', 0)
CPRIO = env('CPRIO', 2)
MAP = env('MAP', 0)
GSLEEP = env('GSLEEP', 0)
EB = env('EB', 1)
EBN = env('EBN', 8)
CGATE = env('CGATE', 0)
CSLEEP = env('CSLEEP', 8)
C8 = env('C8', 1)
XPF = env('XPF', 0)
XSL = env('XSL', 0)
ROT = env('ROT', 0)
UROT = env('UROT', 1)
APF = env('APF', 1)
BL = env('BL', 1)
CEB = env('CEB', 1)
PGAP = env('PGAP', 1)
CPOL = env('CPOL', 2)
PWAIT = env('PWAIT', 1)
RID = env('RID', 240)
AW = env('AW', 8)
YPOS = env('YPOS', 12)
XPOS = env('XPOS', 12)
KVF = env('KVF', 0)
CS3 = env('CS3', 0)
EBW = env('EBW', 0)
STC = ' sc1'
STH = os.environ.get('STH', ' sc1')
STK = os.environ.get('STK', ' sc1')
HOOKF = env('HOOKF', 1)
TW = env('TW', 0)
TWS = env('TWS', 4)
WS_FREE = WS_WD + 0x1F0000
L = []


def e(s=""):
    L.append("    " + s if s and not s.endswith(":") else s)


def c(s):
    L.append("    ; " + s)


PROF = len(sys.argv) > 2 and sys.argv[2] == "prof"
WS_PROF = 0xE00000
SPAIR = [6, 8, 10, 12, 14, 88, 90, 92, 94, 96, 100]
sRT = 83


def stamp(k=None):
    if not PROF or k is None:
        return
    if k == 0:
        e("s_memrealtime s[98:99]")
        e("s_waitcnt lgkmcnt(0)")
        e(f"s_mov_b32 s{sRT}, s98")
        for p in SPAIR:
            e(f"s_mov_b32 s{p}, 0")
    e(f"s_memtime s[{SPAIR[k]}:{SPAIR[k] + 1}]")
    e("s_waitcnt lgkmcnt(0)")


def stamp_flush(srd, base):
    if not PROF:
        return
    stamp(10)
    e("s_memrealtime s[98:99]")
    e("s_waitcnt lgkmcnt(0)")
    e("v_writelane_b32 v255, s98, 62")
    e(f"v_writelane_b32 v255, s{sRT}, 63")
    for k, p in enumerate(SPAIR):
        e(f"v_writelane_b32 v255, s{p}, {k}")
    e("v_lshrrev_b32 v253, 6, v0")
    e("v_lshl_add_u32 v253, s2, 3, v253")
    e("v_lshlrev_b32 v253, 8, v253")
    e("v_and_b32 v254, 63, v0")
    e("v_lshl_add_u32 v253, v254, 2, v253")
    e(f"v_add_u32 v253, {base}, v253")
    e(f"buffer_store_dword v255, v253, {sr(srd, 4)}, 0 offen")


OOL = []


class ool:
    def __init__(self, label):
        self.label = label

    def __enter__(self):
        global L
        self.saved = L
        L = []
        L.append(f"{self.label}:")

    def __exit__(self, *a):
        global L
        L.append(f"    s_branch {self.label}_ret")
        OOL.extend(L)
        L = self.saved
        L.append(f"{self.label}_ret:")


def flush_ool():
    L.extend(OOL)
    OOL.clear()


def vr(a, n=1):
    return f"v{a}" if n == 1 else f"v[{a}:{a + n - 1}]"


def sr(a, n=1):
    return f"s{a}" if n == 1 else f"s[{a}:{a + n - 1}]"


def make_srd(d, ptr, nbytes):
    e(f"s_mov_b32 s{d}, s{ptr}")
    e(f"s_and_b32 s{d + 1}, s{ptr + 1}, 0xffff")
    e(f"s_mov_b32 s{d + 2}, {nbytes}")
    e(f"s_mov_b32 s{d + 3}, 0x00020000")


P_Q, P_K, P_V, P_SH, P_SK, P_SD, P_BX, P_WG = 16, 18, 20, 22, 24, 26, 28, 30
P_WU, P_WD, P_OUT, P_DBG, P_WS = 32, 34, 36, 38, 40


def load_ptrs():
    e("s_load_dwordx16 s[16:31], s[0:1], 0")
    e("s_load_dwordx8 s[32:39], s[0:1], 64")
    e("s_load_dwordx2 s[40:41], s[0:1], 96")


S_DB2 = 84
S_WS = 56
_lbl = [0]
sZ = 82


def zload():
    e(f"s_load_dword s{sZ}, {sr(P_DBG, 2)}, {ZOFF}")


def zcheck():
    _lbl[0] += 1
    n = _lbl[0]
    e(f"s_cmp_ge_u32 s{sZ}, 1")
    e(f"s_cbranch_scc1 sig_go{n}")
    make_srd(S_DB2, P_DBG, 256)
    e(f"v_mov_b32 v15, {ZOFF}")
    e("s_mov_b32 s80, 0")
    e(f"zp{n}:")
    e(f"buffer_load_dword v14, v15, {sr(S_DB2, 4)}, 0 offen sc1")
    e("s_waitcnt vmcnt(0)")
    e("v_readfirstlane_b32 s81, v14")
    e("s_nop 3")
    e("s_add_u32 s80, s80, 1")
    e("s_cmp_ge_u32 s81, 1")
    e(f"s_cbranch_scc1 zd{n}")
    e("s_sleep 8")
    e("s_cmp_lt_u32 s80, 0x40000")
    e(f"s_cbranch_scc1 zp{n}")
    e(f"zd{n}:")
    e(f"s_mov_b32 s{sZ}, 1")
    e(f"sig_go{n}:")


def pollbytes(sOff, sMask, first=None):
    _lbl[0] += 1
    n = _lbl[0]
    if first is not None:
        e(f"v_cmp_ne_u32 vcc, 0, v{first}")
        e(f"s_and_b32 s81, vcc_lo, s{sMask}")
        e(f"s_cmp_eq_u32 s81, s{sMask}")
        e(f"s_cbranch_scc1 polled{n}")
    e("s_mov_b32 s80, 0")
    e(f"poll{n}:")
    e(f"buffer_load_ubyte v14, v1, {sr(S_WS, 4)}, s{sOff} offen sc1")
    e("s_waitcnt vmcnt(0)")
    e("v_cmp_ne_u32 vcc, 0, v14")
    e("s_add_u32 s80, s80, 1")
    e(f"s_and_b32 s81, vcc_lo, s{sMask}")
    e(f"s_cmp_eq_u32 s81, s{sMask}")
    e(f"s_cbranch_scc1 polled{n}")
    if PSLEEP:
        e(f"s_sleep {PSLEEP}")
    e("s_cmp_lt_u32 s80, 0x40000")
    e(f"s_cbranch_scc1 poll{n}")
    e(f"polled{n}:")


K1_NCONV = 64
K1_NGEMM = 176
STG = 49152
MISC = 147456
L_CS = MISC
L_MN = MISC + 8192
L_RS = MISC + 12288
L_ST = 163328

sSGX = 42
sWM = 43
sNU = 76
sNS = 77
sSG0, sSG1 = 78, 79


def state_init(val, a=12):
    e(f"v_mov_b32 v{a}, {val}")
    e(f"v_mov_b32 v{a + 1}, 0")
    e(f"v_mov_b32 v{a + 2}, 0")
    e(f"v_mov_b32 v{a + 3}, {L_ST}")
    e(f"ds_write_b96 v{a + 3}, {vr(a, 3)}")


def lds_wait(off, sMask):
    _lbl[0] += 1
    n = _lbl[0]
    e(f"v_mov_b32 v14, {L_ST}")
    e("s_mov_b32 s80, 0")
    e(f"lw{n}:")
    e(f"ds_read_b32 v15, v14 offset:{off}")
    e("s_waitcnt lgkmcnt(0)")
    e("v_readfirstlane_b32 s81, v15")
    e("s_add_u32 s80, s80, 1")
    e("s_nop 2")
    e(f"s_and_b32 s81, s81, s{sMask}")
    e(f"s_cmp_eq_u32 s81, s{sMask}")
    e(f"s_cbranch_scc1 lwd{n}")
    e("s_sleep 1")
    e("s_cmp_lt_u32 s80, 0x1000000")
    e(f"s_cbranch_scc1 lw{n}")
    e(f"lwd{n}:")


def sig_h(mt2, byte, t):
    e(f"s_and_b32 s{t}, s{mt2}, 3")
    e(f"s_lshl_b32 s{t}, s{t}, 3")
    e(f"s_lshr_b32 s{sSG0}, s{mt2}, 2")
    e(f"s_add_u32 s{sSG0}, s{sSG0}, s{t}")
    e(f"s_lshl_b32 s{sSG0}, s{sSG0}, 8")
    e(f"s_add_u32 s{sSG0}, s{sSG0}, s{byte}")
    e(f"s_add_u32 s{sSG0}, s{sSG0}, {WS_MB}")
    e(f"s_mov_b32 s{sSG1}, 13")


def stats_math(SX, SQ, T, RS, NM):
    return [f"v_mul_f32 v{T}, 0x3b000000, v{SX}",
            f"v_mul_f32 v{T + 2}, 0x3b000000, v{SQ}",
            f"v_fma_f32 v{T + 2}, -v{T}, v{T}, v{T + 2}",
            f"v_max_f32 v{T + 2}, 0, v{T + 2}",
            f"v_cvt_pk_bf16_f32 v{T + 1}, v{T}, v{T + 2}",
            f"v_lshlrev_b32 v{T + 4}, 16, v{T + 1}",
            f"v_and_b32 v{T + 2}, 0xffff0000, v{T + 1}",
            f"v_add_f32 v{T + 2}, 0x3727c5ac, v{T + 2}",
            f"v_cvt_pk_bf16_f32 v{T + 2}, v{T + 2}, v{T + 2}",
            f"v_and_b32 v{T + 2}, 0xffff0000, v{T + 2}",
            f"v_sqrt_f32 v{T + 2}, v{T + 2}",
            "s_nop 0",
            f"v_cvt_pk_bf16_f32 v{T + 2}, v{T + 2}, v{T + 2}",
            f"v_and_b32 v{T + 2}, 0xffff0000, v{T + 2}",
            f"v_rcp_f32 v{RS}, v{T + 2}",
            "s_nop 0",
            f"v_mul_f32 v{NM}, v{T + 4}, v{RS}",
            f"v_sub_f32 v{NM}, 0, v{NM}"]


def pk(op, d, a, b, c_=None):
    return [f"v_{op}_f32 v{d + i}, v{a + i}, v{b + i}" + (f", v{c_ + i}" if c_ is not None else "") for i in range(2)]


def epk(*a):
    for x in pk(*a):
        e(x)


class VMQ:
    def __init__(self, init=()):
        self.q = list(init)

    def emit(self, x, tag=None):
        e(x)
        if x.startswith("buffer_"):
            self.q.append(tag)

    def n(self, *tags):
        last = max(i for i, t in enumerate(self.q) if t in tags)
        return min(63, len(self.q) - 1 - last)

    def wait(self, *tags, extra=""):
        e(f"s_waitcnt vmcnt({self.n(*tags)}){extra}")


def k1_gemm():
    S_X, S_WG, S_WU = 44, 48, 52
    sMT, sNT, sW, sT0, sT1 = 60, 61, 62, 63, 64
    e("k1_gemm:")
    e("s_sub_u32 s3, s2, %d" % K1_NCONV)
    if MAP:
        c("mt = 2 (t%8) + ((t/8)&1) ; nt = t/16")
        e("s_and_b32 s4, s3, 7")
        e("s_lshl_b32 s4, s4, 1")
        e("s_bfe_u32 s5, s3, 0x10003")
        e(f"s_add_u32 s{sMT}, s4, s5")
        e(f"s_lshr_b32 s{sNT}, s3, 4")
    else:
        c("k = 22*(t%8) + t/8 ; mh = k/88 ; rem = k%88 ; nt = rem/8 ; mt = mh*8 + rem%8")
        e("s_and_b32 s4, s3, 7")
        e("s_mul_i32 s4, s4, 22")
        e("s_lshr_b32 s5, s3, 3")
        e("s_add_u32 s4, s4, s5")
        e("s_cmp_ge_u32 s4, 88")
        e("s_cselect_b32 s5, 88, 0")
        e(f"s_cselect_b32 s{sMT}, 8, 0")
        e("s_sub_u32 s4, s4, s5")
        e(f"s_lshr_b32 s{sNT}, s4, 3")
        e("s_and_b32 s4, s4, 7")
        e(f"s_add_u32 s{sMT}, s{sMT}, s4")
    e("v_lshrrev_b32 v2, 6, v0")
    e("v_and_b32 v1, 63, v0")
    e(f"v_readfirstlane_b32 s{sW}, v2")
    e("s_nop 3")
    e(f"s_cmp_ge_u32 s{sW}, 4")
    e("s_cbranch_scc1 k1_help")

    AF, BF, ACC, vAD = 16, 32, 64, 192
    vH, RSV, CO, MO = 210, 212, 216, 224
    sRH, sNH, sHB = 65, 66, 67
    e(f"s_and_b32 s{sRH}, s{sW}, 1")
    e(f"s_lshr_b32 s{sNH}, s{sW}, 1")
    c("A frag read address: 32768 + r*128 + ((2kk+g) ^ ((r>>1)&7))*16 ; r = 64 rh + 32 a + l%32")
    e(f"s_lshl_b32 s{sT0}, s{sRH}, 6")
    e("v_and_b32 v2, 31, v1")
    e(f"v_add_u32 v6, s{sT0}, v2")
    e("v_lshrrev_b32 v7, 1, v2")
    e("v_and_b32 v7, 7, v7")
    e("v_lshrrev_b32 v8, 5, v1")
    e("v_xor_b32 v7, v7, v8")
    e("v_lshlrev_b32 v7, 4, v7")
    e("v_lshl_add_u32 v7, v6, 7, v7")
    e("v_add_u32 v10, 32768, v7")
    e(f"v_lshlrev_b32 v9, 2, v6")
    e(f"v_add_u32 v9, {L_RS}, v9")
    c("B tr-read lane addresses for tiles T0=2nh, T1=2nh+1")
    e("v_and_b32 v2, 15, v1")
    e("v_lshrrev_b32 v6, 2, v2")
    e("v_lshrrev_b32 v7, 5, v1")
    e("v_lshl_add_u32 v7, v7, 3, v6")
    e("v_lshlrev_b32 v7, 8, v7")
    e("v_lshrrev_b32 v8, 4, v1")
    e("v_and_b32 v8, 1, v8")
    e("v_lshlrev_b32 v8, 5, v8")
    e("v_add_u32 v7, v7, v8")
    e("v_and_b32 v8, 3, v2")
    e("v_lshlrev_b32 v8, 3, v8")
    e("v_add_u32 v7, v7, v8")
    e(f"s_lshl_b32 s{sT0}, s{sNH}, 1")
    e(f"v_xor_b32 v8, s{sT0}, v6")
    e("v_lshl_add_u32 v11, v8, 6, v7")
    e("v_xor_b32 v8, 1, v8")
    e("v_lshl_add_u32 v12, v8, 6, v7")
    for t in range(3):
        e(f"v_add_u32 v{vAD + 6 * t}, {STG * t}, v11")
        e(f"v_add_u32 v{vAD + 6 * t + 1}, {STG * t}, v12")
        e(f"v_add_u32 v{vAD + 6 * t + 2}, {STG * t}, v10")
        for kk in range(1, 4):
            e(f"v_xor_b32 v{vAD + 6 * t + 2 + kk}, {32 * kk}, v{vAD + 6 * t + 2}")
    e(f"v_lshlrev_b32 v{vH}, 4, v1")
    c("operand addresses: cs tile (part*4 + 2nh + T), mean tile (2rh + a)")
    e(f"s_lshl_b32 s{sT0}, s{sNH}, 11")
    e(f"s_add_u32 s{sT0}, s{sT0}, {L_CS}")
    e(f"v_add_u32 v10, s{sT0}, v{vH}")
    e(f"s_lshl_b32 s{sT0}, s{sRH}, 11")
    e(f"s_add_u32 s{sT0}, s{sT0}, {L_MN}")
    e(f"v_add_u32 v11, s{sT0}, v{vH}")
    c("h store base: (4mt + 2rh)*HRT + (8nt + 4nh)*1024")
    e(f"s_lshl_b32 s{sT0}, s{sMT}, 1")
    e(f"s_add_u32 s{sT0}, s{sT0}, s{sRH}")
    e(f"s_mul_i32 s{sHB}, s{sT0}, {2 * HRT}")
    e(f"s_lshl_b32 s{sT1}, s{sNT}, 1")
    e(f"s_add_u32 s{sT1}, s{sT1}, s{sNH}")
    sig_h(sT0, sT1, 3)
    e(f"s_lshl_b32 s{sT1}, s{sT1}, 12")
    e(f"s_add_u32 s{sHB}, s{sHB}, s{sT1}")
    e(f"s_mov_b32 s{sSGX}, 0xff")
    e(f"s_mov_b32 s{sWM}, 0")
    e(f"s_mov_b32 s{sNU}, 1")
    e(f"s_mov_b32 s{sNS}, 0")
    e(f"v_mov_b32 v14, {L_ST}")
    e("v_mov_b32 v15, 1")
    e("s_waitcnt lgkmcnt(0)")
    stamp(0)
    make_srd(S_WS, P_WS, 0x1000000)
    if TW & 2:
        c("touch pages used later: d_debug now; own h lines, w_down fragments, d_out after a while")
        make_srd(S_WG, P_DBG, 256)
        make_srd(S_X, P_OUT, 2048 * 1024)
        e(f"v_mul_u32_u24 v232, {HRT}, v1")
        e(f"v_add_u32 v232, s{sHB}, v232")
        e(f"s_mov_b32 s3, {WS_FREE}")
        e("v_writelane_b32 v232, s3, 2")
        e("s_lshl_b32 s3, s2, 13")
        e(f"s_lshl_b32 s4, s{sW}, 11")
        e("s_add_u32 s3, s3, s4")
        e("s_mov_b64 exec, 1")
        e(f"buffer_load_dword v233, off, {sr(S_WG, 4)}, 0 offset:192 sc1")
        for _ in range(TWS):
            e("s_sleep 8")
        e("s_mov_b64 exec, 7")
        e(f"buffer_load_dword v233, v232, {sr(S_WS, 4)}, 0 offen")
        e("s_mov_b64 exec, 1")
        e(f"buffer_load_dword v233, off, {sr(S_X, 4)}, s3")
        e("s_mov_b64 exec, -1")
    if XPF:
        c("L2 prefetch: W rows 64(mt%8).. of the other part, x slabs 2+2(nt%3), 3+2(nt%3)")
        for _ in range(XSL):
            e("s_sleep 4")
        make_srd(S_X, P_Q, 2048 * 1024)
        e(f"s_cmp_ge_u32 s{sMT}, 8")
        e(f"s_cselect_b32 s{S_WG}, s{P_WG}, s{P_WU}")
        e(f"s_cselect_b32 s{S_WG + 1}, s{P_WG + 1}, s{P_WU + 1}")
        e(f"s_and_b32 s{S_WG + 1}, s{S_WG + 1}, 0xffff")
        e(f"s_mov_b32 s{S_WG + 2}, {512 * 2752}")
        e(f"s_mov_b32 s{S_WG + 3}, 0x00020000")
        e("v_lshrrev_b32 v2, 4, v1")
        e("v_and_b32 v3, 15, v1")
        e("v_lshlrev_b32 v3, 4, v3")
        e("v_lshl_add_u32 v4, v2, 10, v3")
        e("v_mul_u32_u24 v2, 2752, v2")
        e("v_add_u32 v3, v2, v3")
        e(f"s_and_b32 s3, s{sMT}, 7")
        e("s_lshl_b32 s3, s3, 2")
        e(f"s_add_u32 s3, s3, s{sW}")
        e(f"s_mul_i32 s3, s3, {16 * 2752}")
        e(f"s_lshl_b32 s{sT0}, s{sNT}, 8")
        e(f"s_add_u32 s3, s3, s{sT0}")
        e(f"s_mul_i32 s{sT0}, s{sNT}, 11")
        e(f"s_lshr_b32 s{sT0}, s{sT0}, 5")
        e(f"s_mul_i32 s{sT0}, s{sT0}, 3")
        e(f"s_sub_u32 s{sT0}, s{sNT}, s{sT0}")
        e(f"s_lshl_b32 s{sT0}, s{sT0}, 8")
        e(f"s_lshl_b32 s4, s{sMT}, 2")
        e(f"s_add_u32 s4, s4, s{sW}")
        e("s_lshl_b32 s4, s4, 15")
        e(f"s_add_u32 s4, s4, s{sT0}")
        e("s_add_u32 s4, s4, 256")
        for j in range(8):
            if XPF & 1:
                e(f"buffer_load_dwordx4 v[232:235], v4, {sr(S_X, 4)}, s4 offen")
                e("s_add_u32 s4, s4, 4096")
            if j < 4 and XPF & 2:
                e(f"buffer_load_dwordx4 v[236:239], v3, {sr(S_WG, 4)}, s3 offen")
                e(f"s_add_u32 s3, s3, {4 * 2752}")

    M = []
    R = []

    def rd(ins, reg, n, slab):
        R.append(dict(ins=ins, regs=set(range(reg, reg + n)), slab=slab))
        return len(R) - 1

    def rdA(s, kk, a, reg):
        return rd(f"ds_read_b128 {vr(reg, 4)}, v{vAD + 6 * (s % 3) + 2 + kk} offset:{4096 * a}", reg, 4, s)

    def rdB(s, kk, part, T, reg):
        return [rd(f"ds_read_b64_tr_b16 {vr(reg + 2 * u, 2)}, v{vAD + 6 * (s % 3) + T} "
                   f"offset:{part * 16384 + (16 * kk + 4 * u) * 256}", reg + 2 * u, 2, s) for u in range(2)]

    def mf(acc, b, a, needs, first=False):
        cc = "0" if first else vr(acc, 16)
        M.append(dict(ins=f"v_mfma_f32_32x32x16_bf16 {vr(acc, 16)}, {vr(b, 4)}, {vr(a, 4)}, {cc}", needs=needs,
                      regs=set(range(b, b + 4)) | set(range(a, a + 4)), bar=None, side=None))

    for s in range(7):
        for kk in range(4):
            st = kk & 1
            a0 = rdA(s, kk, 0, AF + 8 * st)
            b = [rdB(s, kk, ti >> 1, ti & 1, BF + 16 * st + 4 * ti) for ti in range(4)]
            a1 = rdA(s, kk, 1, AF + 8 * st + 4)
            for m in range(8):
                a, ti = m >> 2, m & 3
                mf(ACC + 16 * m, BF + 16 * st + 4 * ti, AF + 8 * st + 4 * a, [a1 if a else a0] + b[ti], s == 0 and kk == 0)
                if kk == 3 and m == 0:
                    M[-1]["bar"] = s
    VM = []

    def epilogue(a, T):
        G, U = ACC + 16 * (4 * a + T), ACC + 16 * (4 * a + 2 + T)
        rs = vr(RSV + 2 * a, 2)
        last = (a, T) == (1, 1)
        s = []
        for f in range(2):
            for r in range(8 * f, 8 * f + 8, 2):
                if last:
                    s += [f"v_pk_mul_f32 {vr(G + r, 2)}, {vr(G + r, 2)}, {rs}",
                          f"v_pk_mul_f32 {vr(U + r, 2)}, {vr(U + r, 2)}, {rs}"]
                else:
                    s += pk("mul", G + r, G + r, RSV + 2 * a) + pk("mul", U + r, U + r, RSV + 2 * a)
                s += [f"v_cvt_pk_bf16_f32 v{G + r}, 0, v{G + r}",
                      f"v_cvt_pk_bf16_f32 v{G + r + 1}, 0, v{G + r + 1}",
                      f"v_cvt_pk_bf16_f32 v{U + r}, 0, v{U + r}",
                      f"v_cvt_pk_bf16_f32 v{U + r + 1}, 0, v{U + r + 1}"]
                if last:
                    s += [f"v_pk_mul_f32 {vr(G + r, 2)}, {vr(G + r, 2)}, {vr(U + r, 2)}"]
                else:
                    s += pk("mul", G + r, G + r, U + r)
                s += [f"v_cvt_pk_bf16_f32 v{G + r // 2}, v{G + r}, v{G + r + 1}"]
            s += [f"s_add_u32 s{sT0}, s{sHB}, {a * HRT + (2 * T + f) * 1024}",
                  f"buffer_store_dwordx4 {vr(G + 4 * f, 4)}, v{vH}, {sr(S_WS, 4)}, s{sT0} offen{STH}"]
        return s

    rA = {}
    extra = []
    for gi, (a, T) in enumerate([(0, 0), (0, 1), (1, 0), (1, 1)]):
        for kk in range(4):
            n = 4 * gi + kk
            if T == 0:
                rA[kk] = rdA(7, kk, a, AF + 4 * kk)
            slot = BF + 8 * (n % 4)
            bg = rdB(7, kk, 0, T, slot)
            bu = rdB(7, kk, 1, T, slot + 4)
            mf(ACC + 16 * (4 * a + T), slot, AF + 4 * kk, [rA[kk]] + bg)
            mf(ACC + 16 * (4 * a + 2 + T), slot + 4, AF + 4 * kk, [rA[kk]] + bu)
            if gi == 0 and kk == 1:
                for aa in range(2):
                    extra.append(rd(f"ds_read_b128 {vr(MO + 4 * aa, 4)}, v11 offset:{1024 * aa}", MO + 4 * aa, 4, 7))
                    extra.append(rd(f"ds_read_b32 v{RSV + 2 * aa}, v9 offset:{128 * aa}", RSV + 2 * aa, 1, 7))
                    extra.append(rd(f"ds_read_b32 v{RSV + 2 * aa + 1}, v9 offset:{128 * aa}", RSV + 2 * aa + 1, 1, 7))
        for part in range(2):
            cid = rd(f"ds_read_b128 {vr(CO + 4 * part, 4)}, v10 offset:{4096 * part + 1024 * T}", CO + 4 * part, 4, 7)
            mf(ACC + 16 * (4 * a + 2 * part + T), CO + 4 * part, MO + 4 * a, [cid] + extra)
        M[-1]["side"] = epilogue(a, T)
    first_use = {}
    for i, m in enumerate(M):
        for r in m["needs"]:
            first_use.setdefault(r, i)
    for ri, r in enumerate(R):
        r["after"] = max([i for i in range(first_use[ri]) if M[i]["regs"] & r["regs"]], default=-1)
    LQ = []
    nxt = [0]
    slab_ok = [0]

    def issue(i, n):
        while n > 0 and nxt[0] < len(R):
            r = R[nxt[0]]
            if r["after"] > i or r["slab"] > slab_ok[0] or len(LQ) >= 14:
                break
            e(r["ins"])
            LQ.append(nxt[0])
            nxt[0] += 1
            n -= 1

    def lwait(ids):
        pend = [LQ.index(x) for x in ids if x in LQ]
        for x in ids:
            assert x < nxt[0], "read not issued"
        if pend:
            last = max(pend)
            e(f"s_waitcnt lgkmcnt({len(LQ) - 1 - last})")
            del LQ[:last + 1]

    e("s_barrier")
    stamp(1)
    issue(-1, 10)
    side = []
    for i, m in enumerate(M):
        while any(x >= nxt[0] for x in m["needs"]):
            k = nxt[0]
            issue(i - 1, 1)
            assert nxt[0] > k, (i, m, R[k], LQ)
        lwait(m["needs"])
        e(m["ins"])
        if m["bar"] is not None:
            assert all(R[x]["slab"] > m["bar"] for x in range(nxt[0], len(R)))
            e("s_waitcnt lgkmcnt(0)")
            LQ.clear()
            e("s_barrier")
            slab_ok[0] = m["bar"] + 1
            if m["bar"] == 3:
                if TW & 2:
                    e("s_waitcnt vmcnt(0)")
                stamp(2)
            if m["bar"] == 6:
                stamp(3)
        if m["side"]:
            side.append(("gate", i + 2))
            side.extend(m["side"])
        issue(i, RPG)
        n = SPG
        while side and n > 0:
            if isinstance(side[0], tuple):
                if side[0][1] > i:
                    break
                side.pop(0)
                continue
            e(side.pop(0))
            n -= 1
    assert not LQ and nxt[0] == len(R)
    if not BL:
        e("s_mov_b64 exec, 1")
        e("ds_add_u32 v14, v15")
        e("s_mov_b64 exec, -1")
    while side:
        x = side.pop(0)
        if isinstance(x, tuple):
            e("s_nop 15")
            e("s_nop 3")
        else:
            e(x)
    stamp(4)
    e(f"s_mov_b32 s{sZ}, 1")
    if BL:
        c("GEMM2 B fragments from LDS (staged by the helper waves)")
        e(f"s_mul_i32 s{sT0}, s{sRH}, 22528")
        e(f"s_cmp_eq_u32 s{sNH}, 0")
        e(f"s_cselect_b32 s{sT1}, {2 * STG}, 0")
        e(f"s_add_u32 s{sT0}, s{sT0}, s{sT1}")
        e(f"v_add_u32 v2, s{sT0}, v{vH}")
        e(f"s_mov_b32 s{sT0}, 15")
        lds_wait(8, sT0)
        for i in range(22):
            e(f"ds_read_b128 {vr(168 + 4 * i, 4)}, v2 offset:{1024 * i}")
        e("v_mov_b32 v15, 1")
        e("s_waitcnt lgkmcnt(0)")
        e("s_mov_b64 exec, 1")
        e("ds_add_u32 v14, v15")
        e("s_mov_b64 exec, -1")
        e(f"s_mov_b32 s{sWM}, -1")
    e("s_branch g2_unit")

    sH, sWB, sXB, sLB, sPM, sMBX = 65, 66, 67, 68, 69, 70
    sEX = 72
    S_OWN = 76
    vX0, vX1, vWD, vPO = 10, 11, 12, 13
    PW, PX = 16, 32
    T = 64
    e("k1_help:")
    e(f"s_sub_u32 s{sH}, s{sW}, 4")
    c("partial sources: W rows 64(mt%8) + 16j + l/4, cols 128nt + 32h + 8(l%4) ; x rows 128mt + 32h + 8j + l/8, K slab nt%8")
    e("v_lshrrev_b32 v2, 2, v1")
    e("v_mul_u32_u24 v2, 2752, v2")
    e("v_and_b32 v3, 3, v1")
    e("v_lshl_add_u32 v8, v3, 4, v2")
    e(f"s_and_b32 s{sT0}, s{sMT}, 7")
    e(f"s_mul_i32 s{sT0}, s{sT0}, {64 * 2752}")
    e(f"s_lshl_b32 s{sT1}, s{sNT}, 8")
    e(f"s_add_u32 s{sT0}, s{sT0}, s{sT1}")
    e(f"s_lshl_b32 s3, s{sH}, 6")
    e(f"s_add_u32 s3, s3, s{sT0}")
    e("v_lshrrev_b32 v2, 3, v1")
    e("v_and_b32 v3, 7, v1")
    e("v_lshlrev_b32 v4, 4, v3")
    e("v_lshl_add_u32 v9, v2, 10, v4")
    e(f"s_lshl_b32 s{sXB}, s{sMT}, 17")
    e(f"s_lshl_b32 s{sT0}, s{sH}, 15")
    e(f"s_add_u32 s{sXB}, s{sXB}, s{sT0}")
    e(f"s_and_b32 s4, s{sNT}, 7")
    e("s_lshl_b32 s4, s4, 7")
    e(f"s_add_u32 s4, s4, s{sXB}")
    c("x DMA lane offset: row = l>>3, src chunk = (l&7) ^ (l>>4) (^4 for odd 8-row groups)")
    e("v_lshrrev_b32 v4, 4, v1")
    e("v_xor_b32 v3, v3, v4")
    e("v_lshlrev_b32 v3, 4, v3")
    e(f"v_lshl_add_u32 v{vX0}, v2, 10, v3")
    e(f"v_xor_b32 v{vX1}, 64, v{vX0}")
    c("W DMA lane offsets")
    e("v_and_b32 v5, 15, v1")
    e("v_lshlrev_b32 v6, 2, v4")
    e("v_xor_b32 v5, v5, v6")
    e("v_lshlrev_b32 v5, 4, v5")
    e("v_mul_u32_u24 v6, 2752, v4")
    e(f"v_add_u32 v{vWD}, v5, v6")
    e(f"s_mul_i32 s{sWB}, s{sH}, {16 * 2752}")
    e(f"s_add_u32 s{sWB}, s{sWB}, s{sT1}")
    e(f"s_lshl_b32 s{sLB}, s{sH}, 12")
    e("s_waitcnt lgkmcnt(0)")
    stamp(0)
    make_srd(S_X, P_Q, 2048 * 1024)
    make_srd(S_WG, P_WG, 512 * 2752)
    make_srd(S_WU, P_WU, 512 * 2752)
    e(f"s_cmp_ge_u32 s{sMT}, 8")
    e(f"s_cselect_b32 s{S_OWN}, s{S_WU}, s{S_WG}")
    e(f"s_cselect_b32 s{S_OWN + 1}, s{S_WU + 1}, s{S_WG + 1}")
    e(f"s_mov_b32 s{S_OWN + 2}, {512 * 2752}")
    e(f"s_mov_b32 s{S_OWN + 3}, 0x00020000")
    V = VMQ()

    def pf():
        for j in range(4):
            V.emit(f"buffer_load_dwordx4 {vr(PW + 4 * j, 4)}, v8, {sr(S_OWN, 4)}, s3 offen", "pf")
            V.emit(f"buffer_load_dwordx4 {vr(PX + 4 * j, 4)}, v9, {sr(S_X, 4)}, s4 offen", "pf")
            if j < 3:
                e(f"s_add_u32 s3, s3, {16 * 2752}")
                e("s_add_u32 s4, s4, 8192")

    def dma(s):
        st = (s % 3) * STG
        for j in range(4):
            e(f"s_add_u32 m0, s{sLB}, {st + 32768 + j * 1024}")
            e(f"s_add_u32 s{sT0}, s{sXB}, {j * 8192 + 128 * s}")
            V.emit(f"buffer_load_dwordx4 v{vX1 if j & 1 else vX0}, {sr(S_X, 4)}, s{sT0} offen lds", f"s{s}")
        for j in range(4):
            e(f"s_add_u32 s{sT0}, s{sWB}, {(64 * s + 4 * j) * 2752}")
            for part in range(2):
                e(f"s_add_u32 m0, s{sLB}, {st + part * 16384 + j * 1024}")
                V.emit(f"buffer_load_dwordx4 v{vWD}, {sr(S_WU if part else S_WG, 4)}, s{sT0} offen lds", f"s{s}")

    for _ in range(GSLEEP):
        e("s_sleep 8")
    for s in range(NI):
        if s == PFO:
            pf()
        dma(s)
    if PFO == NI:
        pf()
    make_srd(S_WS, P_WS, 0x1000000)
    state_init(0, 4)
    e("s_lshl_b32 s%d, s2, 8" % sMBX)
    e(f"s_add_u32 s{sMBX}, s{sMBX}, {WS_MB + 64}")
    c("flags needed: cs partials of part h/2 (8 bytes) + stats partials (8 bytes)")
    e(f"s_lshr_b32 s{sT0}, s{sH}, 1")
    e(f"s_lshl_b32 s{sT0}, s{sT0}, 3")
    e(f"s_lshl_b32 s{sPM}, 0xff, s{sT0}")
    e(f"s_or_b32 s{sPM}, s{sPM}, 0xff0000")

    def part_cs():
        V.wait("pf")
        stamp(4)
        zload()
        c("partial column sums")
        for j in range(4):
            for d in range(4):
                e(f"v_lshlrev_b32 v{T + 8 * j + 2 * d}, 16, v{PW + 4 * j + d}")
                e(f"v_and_b32 v{T + 8 * j + 2 * d + 1}, 0xffff0000, v{PW + 4 * j + d}")
        for d in range(4):
            epk("add", T + 2 * d, T + 2 * d, T + 8 + 2 * d)
            epk("add", T + 16 + 2 * d, T + 16 + 2 * d, T + 24 + 2 * d)
        for d in range(4):
            epk("add", T + 2 * d, T + 2 * d, T + 16 + 2 * d)
        e("s_nop 1")
        for i in range(4):
            e(f"v_permlane32_swap_b32 v{T + i}, v{T + 4 + i}")
        e("s_nop 1")
        for i in range(0, 4, 2):
            epk("add", T + i, T + i, T + 4 + i)
        e("s_nop 1")
        for i in range(2):
            e(f"v_permlane16_swap_b32 v{T + i}, v{T + 2 + i}")
        e("s_nop 1")
        epk("add", T, T, T + 2)
        for sh in (4, 8):
            e("s_nop 1")
            for i in range(2):
                e(f"v_add_f32_dpp v{T + i}, v{T + i}, v{T + i} row_ror:{sh} row_mask:0xf bank_mask:0xf")
        c("store: lanes with l%16 < 4: col = 32h + 8(l%4) + 2(l/16)")
        e("v_and_b32 v2, 3, v1")
        e("v_lshrrev_b32 v3, 4, v1")
        e("v_lshlrev_b32 v3, 3, v3")
        e("v_lshl_add_u32 v2, v2, 5, v3")
        e(f"s_lshl_b32 s{sT0}, s{sNT}, 4")
        e(f"s_add_u32 s{sT0}, s{sT0}, s{sMT}")
        e(f"s_lshl_b32 s{sT0}, s{sT0}, 9")
        e(f"s_lshl_b32 s{sT1}, s{sH}, 7")
        e(f"s_add_u32 s{sT0}, s{sT0}, s{sT1}")
        e(f"s_add_u32 s{sT0}, s{sT0}, {WS_CS}")
        e("s_mov_b32 exec_lo, 0x000f000f")
        e("s_mov_b32 exec_hi, 0x000f000f")
        V.emit(f"buffer_store_dwordx2 {vr(T, 2)}, v2, {sr(S_WS, 4)}, s{sT0} offen sc1", "pst")
        e("s_mov_b64 exec, -1")

    def part_st():
        c("partial row stats")
        U = T + 8
        SS = T + 48
        for j in range(4):
            for d in range(4):
                e(f"v_lshlrev_b32 v{U + 8 * j + 2 * d}, 16, v{PX + 4 * j + d}")
                e(f"v_and_b32 v{U + 8 * j + 2 * d + 1}, 0xffff0000, v{PX + 4 * j + d}")
        for j in range(4):
            u = U + 8 * j
            q = PX + 4 * j
            epk("mul", q, u, u)
            for d in range(1, 4):
                epk("fma", q, u + 2 * d, u + 2 * d, q)
            epk("add", u, u, u + 2)
            epk("add", u + 4, u + 4, u + 6)
            epk("add", u, u, u + 4)
            e(f"v_add_f32 v{SS + 2 * j}, v{u}, v{u + 1}")
            e(f"v_add_f32 v{SS + 2 * j + 1}, v{q}, v{q + 1}")
        for ctl in ("quad_perm:[1,0,3,2]", "quad_perm:[2,3,0,1]", "row_half_mirror"):
            e("s_nop 1")
            for i in range(8):
                e(f"v_add_f32_dpp v{SS + i}, v{SS + i}, v{SS + i} {ctl} row_mask:0xf bank_mask:0xf")
        e("v_and_b32 v2, 7, v1")
        for j in range(1, 4):
            e(f"v_cmp_eq_u32 vcc, {j}, v2")
            e(f"v_cndmask_b32 v{SS}, v{SS}, v{SS + 2 * j}, vcc")
            e(f"v_cndmask_b32 v{SS + 1}, v{SS + 1}, v{SS + 2 * j + 1}, vcc")
        e("v_lshrrev_b32 v3, 3, v1")
        e("v_lshl_add_u32 v2, v2, 3, v3")
        e("v_lshlrev_b32 v2, 3, v2")
        e(f"s_lshl_b32 s{sT0}, s{sMT}, 4")
        e(f"s_add_u32 s{sT0}, s{sT0}, s{sNT}")
        e(f"s_lshl_b32 s{sT0}, s{sT0}, 10")
        e(f"s_lshl_b32 s{sT1}, s{sH}, 8")
        e(f"s_add_u32 s{sT0}, s{sT0}, s{sT1}")
        e(f"s_add_u32 s{sT0}, s{sT0}, {WS_SP}")
        e("s_mov_b32 exec_lo, 0x0f0f0f0f")
        e("s_mov_b32 exec_hi, 0x0f0f0f0f")
        V.emit(f"buffer_store_dwordx2 {vr(SS, 2)}, v2, {sr(S_WS, 4)}, s{sT0} offen sc1", "pst")
        e("s_mov_b64 exec, -1")

    if PC < 0:
        part_cs()
    if PS < 0:
        part_st()
    c("signal addresses: lanes 0-15: (mt'=l, nt) byte MB_CS + mt ; lanes 16-26: (mt, nt'=l-16) byte MB_ST + nt (nt < 8)")
    e("v_cmp_gt_u32 vcc, 16, v1")
    e(f"v_mov_b32 v2, s{sMT}")
    e(f"v_mov_b32 v3, s{sNT}")
    e("v_subrev_u32 v4, 16, v1")
    e("v_cndmask_b32 v2, v2, v1, vcc")
    e("v_cndmask_b32 v3, v4, v3, vcc")
    if MAP:
        e("v_and_b32 v4, 1, v2")
        e("v_lshl_add_u32 v4, v3, 1, v4")
        e("v_lshrrev_b32 v2, 1, v2")
        e("v_lshl_add_u32 v2, v4, 3, v2")
    else:
        e("v_lshrrev_b32 v4, 3, v2")
        e("v_mul_u32_u24 v4, 88, v4")
        e("v_lshl_add_u32 v4, v3, 3, v4")
        e("v_and_b32 v2, 7, v2")
        e("v_add_u32 v4, v4, v2")
        e("v_mul_u32_u24 v2, 2979, v4")
        e("v_lshrrev_b32 v2, 16, v2")
        e("v_mul_u32_u24 v3, 22, v2")
        e("v_sub_u32 v3, v4, v3")
        e("v_lshl_add_u32 v2, v3, 3, v2")
    e("v_lshlrev_b32 v2, 8, v2")
    e(f"s_add_u32 s{sT0}, s{sMT}, {WS_MB + 64 * 256 + MB_CS}")
    e(f"s_add_u32 s{sT1}, s{sNT}, {WS_MB + 64 * 256 + MB_ST}")
    e(f"v_mov_b32 v3, s{sT1}")
    e(f"v_mov_b32 v4, s{sT0}")
    e("v_cndmask_b32 v3, v3, v4, vcc")
    e(f"v_add_u32 v{vPO}, v2, v3")
    e(f"s_cmp_lt_u32 s{sNT}, 8")
    e(f"s_cselect_b32 s{sEX}, 0x7ffffff, 0xffff") if 0 else None
    e(f"s_mov_b32 s{sEX}, 0xffff")
    e(f"s_cselect_b32 s{sEX}, 0x7ffffff, s{sEX}")
    e(f"s_cmp_eq_u32 s{sH}, 0")
    e(f"s_cselect_b32 s{sEX}, s{sEX}, 0")
    e(f"s_mov_b32 s{sEX + 1}, 0")
    V.wait("s0", extra=" lgkmcnt(0)")
    e("s_barrier")
    stamp(1)
    for s in range(NI, 3):
        dma(s)
    PL = 16
    for s in range(7):
        tags = [f"s{s + 1}"] + (["pst"] if s == SG else [])
        if s == 6:
            T = 40
            if BL:
                V.wait("pl", "s7")
            else:
                V.wait("pl", "s7", "mb2")
                e(f"s_mov_b32 s{sPM}, {3 << (MB_KV - 64)}")
                pollbytes(sMBX, sPM, first=8)
            c("column sum operand: lane = column 64(h&1) + l of part h/2: (c1|c2, c3|0, 0, 0)")
            for a, b in ((0, 1), (2, 3), (4, 5), (6, 7), (0, 2), (4, 6), (0, 4)):
                e(f"v_add_f32 v{PL + a}, v{PL + a}, v{PL + b}")
                epk("add", PL + 8 + 2 * a, PL + 8 + 2 * a, PL + 8 + 2 * b)
            e(f"v_cvt_pk_bf16_f32 v4, 0, v{PL}")
            e(f"v_sub_f32 v{PL}, v{PL}, v4")
            e(f"v_cvt_pk_bf16_f32 v5, 0, v{PL}")
            e(f"v_sub_f32 v{PL}, v{PL}, v5")
            e(f"v_cvt_pk_bf16_f32 v{T + 1}, v{PL}, 0")
            e(f"v_lshrrev_b32 v4, 16, v4")
            e(f"v_or_b32 v{T}, v4, v5")
            for r in range(2, 8):
                e(f"v_mov_b32 v{T + r}, 0")
            e("v_lshrrev_b32 v2, 5, v1")
            e("v_and_b32 v3, 31, v1")
            e("v_lshlrev_b32 v3, 4, v3")
            e("v_lshl_add_u32 v2, v2, 10, v3")
            e(f"s_lshl_b32 s{sT0}, s{sH}, 11")
            e(f"s_add_u32 s{sT0}, s{sT0}, {L_CS}")
            e(f"v_add_u32 v2, s{sT0}, v2")
            e(f"ds_write_b128 v2, {vr(T, 4)}")
            e(f"ds_write_b128 v2, {vr(T + 4, 4)} offset:512")
            c("row statistics of row tile h (lanes 0-31)")
            for x in stats_math(PL + 8, PL + 9, T + 8, T + 16, T + 17):
                e(x)
            e(f"v_xor_b32 v4, 0x80000000, v{T + 12}")
            e(f"v_lshrrev_b32 v{T + 1}, 16, v4")
            e(f"v_or_b32 v{T}, v4, v{T + 1}")
            e("v_cmp_gt_u32 vcc, 32, v1")
            e(f"v_cndmask_b32 v{T}, 0, v{T}, vcc")
            e(f"v_cndmask_b32 v{T + 1}, 0, v{T + 1}, vcc")
            e(f"s_lshl_b32 s{sT0}, s{sH}, 10")
            e(f"s_add_u32 s{sT0}, s{sT0}, {L_MN}")
            e(f"v_lshl_add_u32 v2, v1, 4, s{sT0}")
            e(f"ds_write_b128 v2, {vr(T, 4)}")
            e(f"s_lshl_b32 s{sT0}, s{sH}, 7")
            e(f"s_add_u32 s{sT0}, s{sT0}, {L_RS}")
            e(f"v_lshl_add_u32 v2, v1, 2, s{sT0}")
            e("s_mov_b32 exec_hi, 0")
            e(f"ds_write_b32 v2, v{T + 16}")
            c("nt == 0: (rs, nm) -> ws")
            e(f"s_lshl_b32 s{sT0}, s{sMT}, 10")
            e(f"s_lshl_b32 s{sT1}, s{sH}, 8")
            e(f"s_add_u32 s{sT0}, s{sT0}, s{sT1}")
            e(f"s_add_u32 s{sT0}, s{sT0}, {WS_ST}")
            e("v_lshlrev_b32 v2, 3, v1")
            e(f"s_cmp_eq_u32 s{sNT}, 0")
            e("s_cselect_b32 exec_lo, -1, 0")
            V.emit(f"buffer_store_dwordx2 {vr(T + 16, 2)}, v2, {sr(S_WS, 4)}, s{sT0} offen sc1", "ss")
            e("s_mov_b64 exec, -1")
            e("s_waitcnt lgkmcnt(0)")
        else:
            V.wait(*tags)
        e("s_barrier")
        if s == 3:
            stamp(2)
        if s == 6:
            stamp(3)
        if s == SG:
            c("everybody's partial stores are complete -> wave 4 signals the consumers")
            zcheck()
            e("v_mov_b32 v2, 1")
            e(f"s_mov_b64 exec, {sr(sEX, 2)}")
            V.emit(f"buffer_store_byte v2, v{vPO}, {sr(S_WS, 4)}, 0 offen sc1", "sig")
            e("s_mov_b64 exec, -1")
        if s == S_POLL:
            V.emit(f"buffer_load_ubyte v8, v1, {sr(S_WS, 4)}, s{sMBX} offen sc1", "mb")
        if s + 3 < 8:
            dma(s + 3)
        if s == PC:
            part_cs()
        if s == PS:
            part_st()
            e("s_waitcnt lgkmcnt(0)")
        if s == 5 and not BL:
            V.emit(f"buffer_load_ubyte v8, v1, {sr(S_WS, 4)}, s{sMBX} offen sc1", "mb2")
        if s == S_POLL + 1:
            V.wait("mb")
            pollbytes(sMBX, sPM, first=8)
            stamp(9 if EB else None)
            if EB:
                c("w_down fragments ready? (vcc = flags of the last read)")
                e(f"s_bfe_u32 s{sT0}, vcc_lo, {0x20000 + MB_KV - 64}")
                e(f"s_cmp_eq_u32 s{sT0}, 3")
                e(f"s_cselect_b32 s{sWM}, -1, 0")
            c("partial loads")
            e(f"s_lshl_b32 s{sT0}, s{sNT}, 13")
            e(f"s_lshr_b32 s{sT1}, s{sH}, 1")
            e(f"s_lshl_b32 s{sT1}, s{sT1}, 12")
            e(f"s_add_u32 s{sT0}, s{sT0}, s{sT1}")
            e(f"s_and_b32 s{sT1}, s{sH}, 1")
            e(f"s_lshl_b32 s{sT1}, s{sT1}, 8")
            e(f"s_add_u32 s{sT0}, s{sT0}, s{sT1}")
            e(f"s_add_u32 s{sT0}, s{sT0}, {WS_CS}")
            e("v_lshlrev_b32 v2, 2, v1")
            for j in range(8):
                V.emit(f"buffer_load_dword v{PL + j}, v2, {sr(S_WS, 4)}, s{sT0} offen offset:{512 * j}", "pl")
            e(f"s_lshl_b32 s{sT0}, s{sMT}, 14")
            e(f"s_lshl_b32 s{sT1}, s{sH}, 8")
            e(f"s_add_u32 s{sT0}, s{sT0}, s{sT1}")
            e(f"s_add_u32 s{sT0}, s{sT0}, {WS_SP}")
            e(f"s_add_u32 s{sT1}, s{sT0}, 4096")
            e("v_and_b32 v2, 31, v1")
            e("v_lshlrev_b32 v2, 3, v2")
            for j in range(8):
                V.emit(f"buffer_load_dwordx2 {vr(PL + 8 + 2 * j, 2)}, v2, {sr(S_WS, 4)}, s{sT1 if j >= 4 else sT0} offen "
                       f"offset:{1024 * (j & 3)}", "pl")
        if EB and s == max(4, S_POLL + 1):
            c("GEMM2 B fragments of this wave + L2 prefetch of a quarter of unit (id/8)&3")
            e("s_lshr_b32 s3, s2, 5")
            e(f"s_mul_i32 s3, s3, {WDT}")
            e(f"s_add_u32 s3, s3, {WS_WD}")
            e("s_bfe_u32 s4, s2, 0x20003")
            if UROT:
                e(f"s_lshr_b32 s{sT1}, s2, 5")
                e(f"s_add_u32 s4, s4, s{sT1}")
                e("s_and_b32 s4, s4, 7")
            e(f"s_mul_i32 s4, s4, {11 * 2048}")
            e(f"s_mul_i32 s{sT0}, s{sH}, 5632")
            e(f"s_add_u32 s4, s4, s{sT0}")
            e("s_add_u32 s4, s4, s3")
            if UROT:
                e(f"s_add_u32 s{sT0}, s{sW}, s{sT1}")
                e(f"s_and_b32 s{sT0}, s{sT0}, 7")
                e(f"s_mul_i32 s{sT0}, s{sT0}, {11 * 2048}")
            else:
                e(f"s_mul_i32 s{sT0}, s{sW}, {11 * 2048}")
            e(f"s_add_u32 s3, s3, s{sT0}")
            e("v_lshlrev_b32 v9, 4, v1")
            ebl = []
            for i in range(22):
                ebl.append(f"buffer_load_dwordx4 {vr(168 + 4 * i, 4)}, v9, {sr(S_WS, 4)}, s3 offen offset:{1024 * (i & 3)}")
                if i & 3 == 3:
                    ebl[-1] += "|s_add_u32 s3, s3, 4096"
            if EB & 2:
                for i in range(6):
                    ebl.append(f"buffer_load_dwordx4 {vr(80 + 4 * i, 4)}, v9, {sr(S_WS, 4)}, s4 offen offset:{1024 * (i & 3)}")
                    if i == 3:
                        ebl[-1] += "|s_add_u32 s4, s4, 4096"
        if EB and s >= max(4, S_POLL + 1):
            n = (0 if EBW else len(ebl)) if s == 6 else EBN
            e(f"s_mov_b32 exec_lo, s{sWM}")
            e(f"s_mov_b32 exec_hi, s{sWM}")
            for x in ebl[:n]:
                for y in x.split("|"):
                    V.emit(y, "eb")
            e("s_mov_b64 exec, -1")
            del ebl[:n]
        if BL and s == 5:
            c("w_down fragments must be ready now")
            e(f"s_cmp_lg_u32 s{sWM}, 0")
            e("s_cbranch_scc1 k1h_wok")
            e(f"s_mov_b32 s{sPM}, {3 << (MB_KV - 64)}")
            pollbytes(sMBX, sPM)
            e("k1h_wok:")
        if BL and s >= 5:
            c("stage the B fragments of compute waves 2(s-5) + h/2: half h&1 (11 KB)")
            e(f"s_lshr_b32 s{sT0}, s{sH}, 1")
            e(f"s_mul_i32 s5, s{sH}, 11264")
            e(f"s_add_u32 s{sT0}, s{sT0}, {2 * (s - 5)}")
            e(f"s_lshr_b32 s{sT1}, s2, 5")
            if UROT:
                e(f"s_add_u32 s{sT0}, s{sT0}, s{sT1}")
                e(f"s_and_b32 s{sT0}, s{sT0}, 7")
            e(f"s_mul_i32 s{sT0}, s{sT0}, 22528")
            e(f"s_mul_i32 s{sT1}, s{sT1}, {WDT}")
            e(f"s_add_u32 s{sT0}, s{sT0}, s{sT1}")
            e(f"s_and_b32 s{sT1}, s{sH}, 1")
            e(f"s_mul_i32 s{sT1}, s{sT1}, 11264")
            e(f"s_add_u32 s{sT0}, s{sT0}, s{sT1}")
            e(f"s_add_u32 s{sT0}, s{sT0}, {WS_WD}")
            for i in range(11):
                e(f"s_add_u32 m0, s5, {(2 * STG if s == 5 else 0) + 1024 * i}")
                V.emit(f"buffer_load_dwordx4 v9, {sr(S_WS, 4)}, s{sT0} offen lds", "bl")
                e(f"s_add_u32 s{sT0}, s{sT0}, 1024")
    if BL:
        e(f"s_lshl_b32 s{sT0}, 1, s{sH}")
        e(f"v_mov_b32 v2, s{sT0}")
        e(f"v_mov_b32 v3, {L_ST}")
        V.wait("bl")
        e("s_mov_b64 exec, 1")
        e("ds_or_b32 v3, v2 offset:8")
        e("s_mov_b64 exec, -1")
    if EBW:
        c("remaining own B loads, at most EBW in flight")
        e(f"s_mov_b32 exec_lo, s{sWM}")
        e(f"s_mov_b32 exec_hi, s{sWM}")
        for k, x in enumerate(ebl):
            if k >= EBW:
                e(f"s_waitcnt vmcnt({EBW - 1})")
            for y in x.split("|"):
                V.emit(y, "eb")
        e("s_mov_b64 exec, -1")
    c("nt == 0: stats flag of row tile h to the 8 consumers of row block 2mt + h/2")
    e(f"s_lshl_b32 s{sT0}, s{sMT}, 1")
    e(f"s_lshr_b32 s{sT1}, s{sH}, 1")
    e(f"s_add_u32 s{sT0}, s{sT0}, s{sT1}")
    e(f"s_and_b32 s{sT1}, s{sH}, 1")
    e(f"s_add_u32 s{sT1}, s{sT1}, {MB_S}")
    sig_h(sT0, sT1, 3)
    e(f"s_cmp_eq_u32 s{sNT}, 0")
    e(f"s_cselect_b32 s{sSGX}, 0xff, 0")
    if not EB:
        e(f"s_mov_b32 s{sWM}, 0")
    e(f"s_mov_b32 s{sNU}, 1")
    e(f"s_mov_b32 s{sNS}, 0")
    e("s_branch g2_unit")
    flush_ool()


def k1_aux():
    S_WD = 44
    sW, sT0, sT1, sN2, sKH, sLB = 62, 63, 64, 65, 66, 67
    sKS = 68
    e("k1_aux:")
    e("v_lshrrev_b32 v2, 6, v0")
    e("v_and_b32 v1, 63, v0")
    e(f"v_readfirstlane_b32 s{sW}, v2")
    e(f"s_and_b32 s{sN2}, s2, 7")
    e(f"s_bfe_u32 s{sKH}, s2, 0x10003")
    e("v_lshrrev_b32 v2, 3, v1")
    e("v_and_b32 v3, 7, v1")
    e("v_lshlrev_b32 v3, 4, v3")
    e("v_lshl_add_u32 v2, v2, 10, v3")
    e(f"s_mul_i32 s{sLB}, s{sW}, 12288")
    e(f"s_mul_i32 s{sT1}, s{sKH}, 43")
    for j in range(6):
        e(f"s_add_u32 s{sT0}, s{sW}, {8 * j}")
        e(f"s_min_u32 s{sT0}, s{sT0}, 42")
        e(f"s_add_u32 s{sKS + j}, s{sT0}, s{sT1}")
    e("s_waitcnt lgkmcnt(0)")
    stamp(0)
    make_srd(S_WD, P_WD, 1376 * 1024)
    make_srd(S_WS, P_WS, 0x1000000)
    e("v_lshlrev_b32 v3, 4, v1")
    c("WG 240: zero all mailboxes (64 KB), then set the flag in d_debug")
    e("s_cmp_lg_u32 s2, 240")
    e("s_cbranch_scc1 aux_nz0")
    e(f"s_lshl_b32 s3, s{sW}, 13")
    e(f"s_add_u32 s3, s3, {WS_MB}")
    for r in range(4):
        e(f"v_mov_b32 v{4 + r}, 0")
    for j in range(8):
        e(f"buffer_store_dwordx4 v[4:7], v3, {sr(S_WS, 4)}, s3 offen sc1")
        e("s_add_u32 s3, s3, 1024")
    e("aux_nz0:")
    if TW & 4:
        c("touch the pages of d_debug and of the w_down fragments early")
        make_srd(S_DB2, P_DBG, 256)
        e(f"s_mov_b32 s3, {WS_FREE}")
        e("s_mov_b64 exec, 1")
        e(f"buffer_load_dword v8, off, {sr(S_DB2, 4)}, 0 offset:192 sc1")
        e(f"buffer_load_dword v8, off, {sr(S_WS, 4)}, s3")
        e("s_mov_b64 exec, -1")
    if ASLEEP:
        e("s_cmp_eq_u32 s2, 240")
        e("s_cbranch_scc1 aux_ns")
        for _ in range(ASLEEP):
            e("s_sleep 16")
        e("aux_ns:")
    e(f"s_lshl_b32 s{sT1}, s{sN2}, 7")
    for j in range(6):
        e(f"s_lshl_b32 s{sT0}, s{sKS + j}, 14")
        e(f"s_add_u32 s{sT0}, s{sT0}, s{sT1}")
        for i in range(2):
            e(f"s_add_u32 m0, s{sLB}, {2048 * j + 1024 * i}")
            if i:
                e(f"s_add_u32 s{sT0}, s{sT0}, 8192")
            e(f"buffer_load_dwordx4 v2, {sr(S_WD, 4)}, s{sT0} offen lds")
    e(f"s_mov_b32 s{sZ}, 0")
    state_init(4)
    e("s_cmp_lg_u32 s2, 240")
    e("s_cbranch_scc1 aux_nz")
    make_srd(S_DB2, P_DBG, 256)
    e(f"s_waitcnt vmcnt({14 if TW & 4 else 12})")
    e("s_barrier")
    stamp(1)
    e(f"s_mov_b32 s{sZ}, 1")
    e(f"s_cmp_lg_u32 s{sW}, 0")
    e("s_cbranch_scc1 aux_nz")
    e("v_mov_b32 v14, 1")
    e(f"v_mov_b32 v15, {ZOFF}")
    e("s_mov_b64 exec, 1")
    e(f"buffer_store_dword v14, v15, {sr(S_DB2, 4)}, 0 offen sc1")
    e("s_mov_b64 exec, -1")
    e("aux_nz:")
    c("tr read address: row 4g + li/4 (+8u), col bytes 64ct + 32((l/16)&1) + 8(li%4)")
    e("v_and_b32 v4, 15, v1")
    e("v_lshrrev_b32 v5, 2, v4")
    e("v_lshrrev_b32 v6, 5, v1")
    e("v_lshl_add_u32 v5, v6, 2, v5")
    e("v_lshlrev_b32 v5, 7, v5")
    e("v_bfe_u32 v6, v1, 4, 1")
    e("v_lshl_add_u32 v5, v6, 5, v5")
    e("v_and_b32 v4, 3, v4")
    e("v_lshl_add_u32 v5, v4, 3, v5")
    e(f"v_add_u32 v5, s{sLB}, v5")
    e(f"s_mul_i32 s{sT1}, s{sN2}, {WDT}")
    e(f"s_add_u32 s{sT1}, s{sT1}, {WS_WD}")
    e("s_waitcnt vmcnt(0)")
    stamp(2)
    e("s_cmp_eq_u32 s2, 240")
    e("s_cbranch_scc1 aux_z1")
    zload()
    e("aux_z1:")
    for j in range(6):
        for ct in range(2):
            for u in range(2):
                e(f"ds_read_b64_tr_b16 {vr(16 + 8 * j + 4 * ct + 2 * u, 2)}, v5 offset:{2048 * j + 1024 * u + 64 * ct}")
        if j >= 1:
            e("s_waitcnt lgkmcnt(0)" if j == 1 else "s_waitcnt lgkmcnt(4)")
            e(f"s_lshl_b32 s{sT0}, s{sKS + j - 1}, 11")
            e(f"s_add_u32 s{sT0}, s{sT0}, s{sT1}")
            for ct in range(2):
                e(f"buffer_store_dwordx4 {vr(16 + 8 * (j - 1) + 4 * ct, 4)}, v3, {sr(S_WS, 4)}, s{sT0} offen offset:{1024 * ct} sc1")
    e("s_waitcnt lgkmcnt(0)")
    e(f"s_lshl_b32 s{sT0}, s{sKS + 5}, 11")
    e(f"s_add_u32 s{sT0}, s{sT0}, s{sT1}")
    for ct in range(2):
        e(f"buffer_store_dwordx4 {vr(16 + 40 + 4 * ct, 4)}, v3, {sr(S_WS, 4)}, s{sT0} offen offset:{1024 * ct} sc1")
    zcheck()
    e("s_waitcnt vmcnt(0)")
    e("s_barrier")
    stamp(3)
    c("wave 0: flag to the 32 consumers id = 32 nt2 + l (byte MB_W + kh, GEMM1 WGs: MB_KV + kh)")
    e(f"s_lshl_b32 s{sT0}, s{sN2}, 5")
    e(f"v_add_u32 v4, s{sT0}, v1")
    e(f"v_subrev_u32 v5, {K1_NCONV}, v4")
    e(f"v_cmp_gt_u32 vcc, {K1_NGEMM}, v5")
    e(f"v_mov_b32 v5, {MB_W}")
    e(f"v_mov_b32 v6, {MB_KV}")
    e("v_cndmask_b32 v5, v5, v6, vcc")
    e(f"v_cmp_gt_u32 vcc, {K1_NCONV}, v4")
    e("v_cndmask_b32 v5, v5, 64, vcc")
    e("v_lshl_add_u32 v4, v4, 8, v5")
    c("nt2 < 2: also to the aux WGs 240 + 8 nt2 + (l - 32), byte 64 + kh")
    e(f"s_lshl_b32 s{sT0}, s{sN2}, 3")
    e(f"s_add_u32 s{sT0}, s{sT0}, {240 - 32}")
    e(f"v_add_u32 v5, s{sT0}, v1")
    e("v_lshlrev_b32 v5, 8, v5")
    e("v_add_u32 v5, 64, v5")
    e("v_cmp_gt_u32 vcc, 32, v1")
    e("v_cndmask_b32 v4, v5, v4, vcc")
    e(f"s_add_u32 s{sT0}, s{sKH}, {WS_MB}")
    e("v_mov_b32 v5, 1")
    e(f"s_cmp_lt_u32 s{sN2}, 2")
    e(f"s_cselect_b32 s{sT1}, 0xff, 0")
    e(f"s_cmp_eq_u32 s{sW}, 0")
    e("s_cselect_b32 exec_lo, -1, 0")
    e(f"s_cselect_b32 exec_hi, s{sT1}, 0")
    e(f"buffer_store_byte v5, v4, {sr(S_WS, 4)}, s{sT0} offen sc1")
    e("s_mov_b64 exec, -1")
    if APF:
        c("pull the fragments of column block kh (conv WGs' tiles) into this XCD's L2")
        e("s_mov_b32 s5, 3")
        e(f"s_cmp_lg_u32 s{sW}, 7")
        e("s_cbranch_scc1 aux_kw")
        e("s_lshl_b32 s4, s2, 8")
        e(f"s_add_u32 s4, s4, {WS_MB + 64}")
        pollbytes(4, 5)
        e(f"v_mov_b32 v14, {L_ST}")
        e("v_mov_b32 v15, -1")
        e("ds_write_b32 v14, v15 offset:8")
        e("s_branch aux_kd")
        e("aux_kw:")
        lds_wait(8, 5)
        e("aux_kd:")
        e(f"s_mul_i32 s{sT0}, s{sKH}, {WDT}")
        e(f"s_mul_i32 s{sT1}, s{sW}, {11 * 2048}")
        e(f"s_add_u32 s{sT0}, s{sT0}, s{sT1}")
        e(f"s_add_u32 s{sT0}, s{sT0}, {WS_WD}")
        for i in range(22):
            e(f"buffer_load_dwordx4 {vr(80 + 4 * i, 4)}, v3, {sr(S_WS, 4)}, s{sT0} offen offset:{1024 * (i & 3)}")
            if i & 3 == 3:
                e(f"s_add_u32 s{sT0}, s{sT0}, 4096")
    e(f"s_mov_b32 s{sSGX}, 0")
    e(f"s_mov_b32 s{sSG0}, {WS_MB}")
    e(f"s_mov_b32 s{sSG1}, 0")
    e(f"s_mov_b32 s{sWM}, {3 << MB_W}")
    e(f"s_mov_b32 s{sNU}, 1")
    e(f"s_mov_b32 s{sNS}, 0")
    e("s_branch g2_unit")


CV_KCPY = 4160
CV_T = 117248
CV_TP = 528


def k1_conv():
    S_K, S_V, S_SK, S_SH = 44, 48, 52, 72
    sW, sT0, sT1, sD, sG, sJ, sCH, sRB, sKT, sMBX = 62, 63, 64, 65, 66, 67, 68, 69, 70, 71
    e("k1_conv:")
    e("v_lshrrev_b32 v2, 6, v0")
    e("v_and_b32 v1, 63, v0")
    e(f"v_readfirstlane_b32 s{sW}, v2")
    c("G = id%8 (64-channel group), J = id/8 (256-row block / channel sub-group)")
    e(f"s_and_b32 s{sG}, s2, 7")
    e(f"s_lshr_b32 s{sJ}, s2, 3")
    sGP = 60
    if ROT:
        e(f"s_add_u32 s{sGP}, s{sG}, s{sJ}")
        e(f"s_and_b32 s{sGP}, s{sGP}, 7")
    else:
        e(f"s_mov_b32 s{sGP}, s{sG}")
    c("---- kv phase: rows J*256 + 4*rg.., channels G*64 + cs*8..")
    if KVF:
        c("full rows: WG r: rows 32r + 4w .., lane: 8 channels")
        e("v_lshrrev_b32 v2, 6, v0")
        e("v_lshlrev_b32 v4, 4, v1")
        e("v_lshl_add_u32 v4, v2, 12, v4")
        e(f"s_lshl_b32 s{sT0}, s2, 15")
        e(f"v_add_u32 v4, s{sT0}, v4")
        e("v_subrev_u32 v5, 3072, v4")
        e("v_lshlrev_b32 v6, 6, v1")
    else:
        e("v_lshrrev_b32 v2, 3, v0")
        e("v_and_b32 v3, 7, v0")
        e(f"s_lshl_b32 s{sT0}, s{sJ}, 18")
        e(f"s_lshl_b32 s{sT1}, s{sGP}, 7")
        e(f"s_add_u32 s{sT0}, s{sT0}, s{sT1}")
        e("v_lshlrev_b32 v4, 12, v2")
        e("v_lshl_add_u32 v4, v3, 4, v4")
        e(f"v_add_u32 v4, s{sT0}, v4")
        e("v_subrev_u32 v5, 3072, v4")
        e(f"s_lshl_b32 s{sT1}, s{sGP}, 9")
        e("v_lshlrev_b32 v6, 6, v3")
        e(f"v_add_u32 v6, s{sT1}, v6")
    e("s_waitcnt lgkmcnt(0)")
    stamp(0)
    V = VMQ()
    KD, VD, WD = 16, 44, 60

    def kvloads():
        if TW & 1:
            c("touch every page this wave uses (own lines of the ws regions)")
            make_srd(S_K, P_K, 2048 * 1024)
            make_srd(S_V, P_V, 2048 * 1024)
            make_srd(S_SH, P_SH, 4096)
            make_srd(S_SK, P_SK, 512 * 4096)
            make_srd(S_WS, P_WS, 0x1000000)
            make_srd(S_DB2, P_DBG, 256)
            e(f"s_lshl_b32 s{sCH}, s{sG}, 3")
            e(f"s_add_u32 s{sCH}, s{sCH}, s{sJ}")
            e(f"s_lshl_b32 s{sCH}, s{sCH}, 3")
            e(f"s_add_u32 s{sCH}, s{sCH}, s{sW}")
            e(f"s_lshl_b32 s{sCH}, s{sCH}, 12")
            e(f"s_add_u32 s4, s{sCH}, {WS_Y2}")
            e(f"s_lshl_b32 s3, s{sGP}, 18")
            e(f"s_lshl_b32 s{sT1}, s{sW}, 15")
            e(f"s_add_u32 s3, s3, s{sT1}")
            e(f"s_add_u32 s3, s3, {WS_KV + 3584}")
            e(f"s_lshl_b32 s{sT1}, s{sJ}, 9")
            e(f"s_sub_u32 s3, s3, s{sT1}")
            e("s_mov_b64 exec, 1")
            V.emit(f"buffer_load_dword v252, v4, {sr(S_K, 4)}, 0 offen", "tw")
            V.emit(f"buffer_load_dword v252, v4, {sr(S_V, 4)}, 0 offen", "tw")
            V.emit(f"buffer_load_dword v252, v6, {sr(S_SH, 4)}, 0 offen", "tw")
            V.emit(f"buffer_load_dword v252, off, {sr(S_SK, 4)}, s{sCH}", "tw")
            V.emit(f"buffer_load_dword v252, off, {sr(S_WS, 4)}, s3", "tw")
            V.emit(f"buffer_load_dword v252, off, {sr(S_DB2, 4)}, 0 offset:192 sc1", "tw")
            V.emit(f"buffer_load_dword v252, off, {sr(S_WS, 4)}, s4", "tw")
            e("s_mov_b64 exec, -1")
        for _ in range(CS3):
            e("s_sleep 8")
        e(f"s_cmp_eq_u32 s{sGP}, 3")
        e("s_cbranch_scc1 k1c_ns")
        for _ in range(CSLEEP - CS3):
            e("s_sleep 8")
        e("k1c_ns:")
        make_srd(S_K, P_K, 2048 * 1024)
        make_srd(S_V, P_V, 2048 * 1024)
        make_srd(S_SH, P_SH, 4096)
        for r in range(3):
            V.emit(f"buffer_load_dwordx4 {vr(KD + 4 * r, 4)}, v5, {sr(S_K, 4)}, 0 offen offset:{1024 * r}", "kv")
        for r in range(4):
            V.emit(f"buffer_load_dwordx4 {vr(KD + 12 + 4 * r, 4)}, v4, {sr(S_K, 4)}, 0 offen offset:{1024 * r}", "kv")
        for r in range(4):
            V.emit(f"buffer_load_dwordx4 {vr(VD + 4 * r, 4)}, v4, {sr(S_V, 4)}, 0 offen offset:{1024 * r}", "kv")
        for j in range(4):
            V.emit(f"buffer_load_dwordx4 {vr(WD + 4 * j, 4)}, v6, {sr(S_SH, 4)}, 0 offen offset:{16 * j}", "kv")

    if SKD != 3:
        kvloads()
    make_srd(S_SK, P_SK, 512 * 4096)
    make_srd(S_WS, P_WS, 0x1000000)
    c("channel of this wave: 64G + 8J + w")
    e(f"s_lshl_b32 s{sCH}, s{sG}, 3")
    e(f"s_add_u32 s{sCH}, s{sCH}, s{sJ}")
    e(f"s_lshl_b32 s{sCH}, s{sCH}, 3")
    e(f"s_add_u32 s{sCH}, s{sCH}, s{sW}")
    e(f"s_lshl_b32 s{sKT}, s{sW}, 14")
    e(f"s_mul_i32 s{sT0}, s{sW}, 12928")
    e(f"s_add_u32 s{sT0}, s{sT0}, {65536 - 4 * 12928}")
    e(f"s_cmp_ge_u32 s{sW}, 4")
    e(f"s_cselect_b32 s{sKT}, s{sT0}, s{sKT}")
    e(f"s_add_u32 s{sRB}, s{sKT}, 8320")
    e(f"s_lshl_b32 s{sT0}, s{sCH}, 1")
    e(f"s_and_b32 s{sT1}, s{sT0}, 0xfffffffc")
    e(f"s_add_u32 s{P_SD}, s{P_SD}, s{sT1}")
    e(f"s_addc_u32 s{P_SD + 1}, s{P_SD + 1}, 0")
    e(f"s_load_dword s{sD}, {sr(P_SD, 2)}, 0")
    SKR = 232
    e(f"s_lshl_b32 s{sCH}, s{sCH}, 12")
    e("v_lshlrev_b32 v8, 4, v1")

    def skloads():
        for j in range(4):
            V.emit(f"buffer_load_dwordx4 {vr(SKR + 4 * j, 4)}, v8, {sr(S_SK, 4)}, s{sCH} offen offset:{1024 * j}", "sk")
        for j in range(4):
            V.emit(f"buffer_load_dword v{SKR + 16 + j}, v8, {sr(S_SK, 4)}, s{sCH} offen offset:{1024 * j + 16}", "sk")
    if SKD == 0:
        skloads()
    if SKD == 3:
        skloads()
        kvloads()
    c("kv LDS transpose position: T + (cs*8 + cc)*528 + 504 - 8 rg")
    if KVF:
        e("v_mul_u32_u24 v7, 80, v1")
        e("v_lshlrev_b32 v9, 3, v2")
        e("v_sub_u32 v7, v7, v9")
        e(f"v_add_u32 v7, {CV_T + 56}, v7")
    else:
        e(f"v_mul_u32_u24 v7, {8 * CV_TP}, v3")
        e("v_lshlrev_b32 v9, 3, v2")
        e("v_sub_u32 v7, v7, v9")
        e(f"v_add_u32 v7, {CV_T + 504}, v7")
    state_init(-4 if C8 else 4)
    c("zero pads")
    e("v_lshlrev_b32 v6, 3, v1")
    e(f"v_add_u32 v6, s{sRB}, v6")
    e("v_mov_b32 v10, 0")
    e("v_mov_b32 v11, 0")
    e("ds_write_b64 v6, v[10:11] offset:4096")
    e("v_lshlrev_b32 v6, 2, v1")
    e(f"v_add_u32 v6, s{sKT}, v6")
    e("s_mov_b64 exec, 0xff")
    e("ds_write_b32 v6, v10")
    e(f"ds_write_b32 v6, v10 offset:{CV_KCPY}")
    e("s_mov_b64 exec, -1")
    c("addresses of the kv row stores")
    if KVF:
        e("v_bfe_u32 v6, v1, 2, 3")
        e("v_mul_u32_u24 v9, 5120, v6")
        e("v_lshrrev_b32 v6, 5, v1")
        e("v_mul_u32_u24 v6, 80, v6")
        e("v_add_u32 v9, v9, v6")
        e("v_and_b32 v6, 3, v1")
        e("v_lshl_add_u32 v9, v6, 4, v9")
        e(f"s_mul_i32 s{sT1}, s{sW}, 640")
        e(f"s_add_u32 s{sT1}, s{sT1}, {CV_T}")
        e(f"v_add_u32 v9, s{sT1}, v9")
        e("v_lshrrev_b32 v6, 3, v1")
        e("v_and_b32 v10, 7, v1")
        e("v_lshlrev_b32 v10, 4, v10")
        e("v_lshl_add_u32 v10, v6, 13, v10")
        e(f"s_lshl_b32 s3, s{sW}, 18")
        e(f"s_add_u32 s3, s3, {WS_KV + 63 * 128}")
        e(f"s_lshl_b32 s{sT1}, s2, 7")
        e(f"s_sub_u32 s3, s3, s{sT1}")
        c("kv flags: consumers 8l + w, byte 192 + r")
        e(f"s_lshl_b32 s4, s{sW}, 8")
        e("s_add_u32 s4, s4, s2")
        e(f"s_add_u32 s4, s4, {WS_MB + 192}")
        e("v_lshlrev_b32 v11, 11, v1")
    else:
        e("v_lshrrev_b32 v6, 5, v1")
        e("v_and_b32 v10, 31, v1")
        e("v_lshlrev_b32 v10, 4, v10")
        e(f"v_mul_u32_u24 v9, {CV_TP}, v6")
        e("v_add_u32 v9, v9, v10")
        e(f"s_mul_i32 s{sT1}, s{sW}, {8 * CV_TP}")
        e(f"s_add_u32 s{sT1}, s{sT1}, {CV_T}")
        e(f"v_add_u32 v9, s{sT1}, v9")
        e("v_lshl_add_u32 v10, v6, 12, v10")
        e(f"s_lshl_b32 s3, s{sGP}, 18")
        e(f"s_lshl_b32 s{sT1}, s{sW}, 15")
        e(f"s_add_u32 s3, s3, s{sT1}")
        e(f"s_add_u32 s3, s3, {WS_KV + 3584}")
        e(f"s_lshl_b32 s{sT1}, s{sJ}, 9")
        e(f"s_sub_u32 s3, s3, s{sT1}")
        c("kv flag: consumer id 8w + G, byte MB_KV + J")
        e(f"s_lshl_b32 s4, s{sW}, 3")
        e(f"s_add_u32 s4, s4, s{sGP}")
        e("s_lshl_b32 s4, s4, 8")
        e(f"s_add_u32 s4, s4, s{sJ}")
        e(f"s_add_u32 s4, s4, {WS_MB + MB_KV}")
    e(f"s_lshl_b32 s{sMBX}, s2, 8")
    e(f"s_add_u32 s{sMBX}, s{sMBX}, {WS_MB + 64}")
    e(f"s_mov_b32 s5, {0xff << (MB_KV - 64)}")
    V.wait("kv")
    stamp(1)
    zload()
    if SKD == 1:
        skloads()
    KF, VF, WF = 80, 136, 200
    for cc in range(8):
        for jp in range(2):
            w = WD + 2 * cc + jp
            e(f"v_lshlrev_b32 v{WF + (2 * jp) * 8 + cc}, 16, v{w}")
            e(f"v_and_b32 v{WF + (2 * jp + 1) * 8 + cc}, 0xffff0000, v{w}")
    for i in range(28):
        e(f"v_lshlrev_b32 v{KF + 2 * i}, 16, v{KD + i}")
        e(f"v_and_b32 v{KF + 2 * i + 1}, 0xffff0000, v{KD + i}")
    for i in range(16):
        e(f"v_lshlrev_b32 v{VF + 2 * i}, 16, v{VD + i}")
        e(f"v_and_b32 v{VF + 2 * i + 1}, 0xffff0000, v{VD + i}")
    KV = 168
    for cp in range(4):
        for r in range(4):
            d = KV + 8 * r + 2 * cp
            e(f"v_pk_mul_f32 {vr(d, 2)}, {vr(KF + 8 * r + 2 * cp, 2)}, {vr(WF + 3 * 8 + 2 * cp, 2)}")
            for j in range(1, 4):
                e(f"v_pk_fma_f32 {vr(d, 2)}, {vr(KF + 8 * (r + j) + 2 * cp, 2)}, "
                  f"{vr(WF + (3 - j) * 8 + 2 * cp, 2)}, {vr(d, 2)}")
            e(f"v_pk_mul_f32 {vr(d, 2)}, {vr(d, 2)}, {vr(VF + 8 * r + 2 * cp, 2)}")
        for cc in (2 * cp, 2 * cp + 1):
            o = 16 + 2 * cc
            e(f"v_cvt_pk_bf16_f32 v{o}, v{KV + 24 + cc}, v{KV + 16 + cc}")
            e(f"v_cvt_pk_bf16_f32 v{o + 1}, v{KV + 8 + cc}, v{KV + cc}")
            e(f"ds_write_b64 v7, {vr(o, 2)} offset:{cc * (5120 if KVF else CV_TP)}")
    e("s_waitcnt lgkmcnt(0)")
    e("s_barrier")
    c("wave w: channels 8w..8w+7 of the group: full-line stores (2 channels x 512 B per instruction)")
    for j in range(4):
        e(f"ds_read_b128 {vr(16 + 4 * j, 4)}, v9 offset:{160 * j if KVF else 2 * j * CV_TP}")
    for j in range(4):
        e(f"s_waitcnt lgkmcnt({3 - j})")
        V.emit(f"buffer_store_dwordx4 {vr(16 + 4 * j, 4)}, v10, {sr(S_WS, 4)}, s3 offen{STK}", "st")
        e(f"s_add_u32 s3, s3, {65536 if KVF else 8192}")
    if SKD == 2:
        skloads()

    def ktwork():
        e(f"v_add_u32 v7, s{sKT}, v8")
        V.wait("sk")
        for j in range(4):
            d = SKR + 4 * j
            t = 32 + 4 * j
            e(f"ds_write_b128 v7, {vr(d, 4)} offset:{32 + 1024 * j}")
            e(f"v_alignbit_b32 v{t}, v{d + 1}, v{d}, 16")
            e(f"v_alignbit_b32 v{t + 1}, v{d + 2}, v{d + 1}, 16")
            e(f"v_alignbit_b32 v{t + 2}, v{d + 3}, v{d + 2}, 16")
            e(f"v_alignbit_b32 v{t + 3}, v{SKR + 16 + j}, v{d + 3}, 16")
            e(f"ds_write_b128 v7, {vr(t, 4)} offset:{CV_KCPY + 32 + 1024 * j}")
        e(f"v_lshlrev_b32 v12, 16, v{SKR}")
        e("s_mov_b64 exec, 1")
        e(f"ds_write_b32 v7, v12 offset:{CV_KCPY + 28}")
        e("s_mov_b64 exec, -1")

    if SKD != 2:
        ktwork()
    zcheck()
    e("v_mov_b32 v13, 1")
    V.wait("st")
    if KVF:
        e("s_mov_b64 exec, 0xff")
        V.emit(f"buffer_store_byte v13, v11, {sr(S_WS, 4)}, s4 offen sc1", "fl")
    else:
        e("s_mov_b64 exec, 1")
        V.emit(f"buffer_store_byte v13, off, {sr(S_WS, 4)}, s4 sc1", "fl")
    e("s_mov_b64 exec, -1")
    stamp(2)
    if SKD == 2:
        ktwork()
    e(f"s_lshl_b32 s{sT0}, s{sD}, 16")
    e(f"s_and_b32 s{sD}, s{sD}, 0xffff0000")
    e(f"s_bitcmp1_b32 s{sW}, 0")
    e(f"s_cselect_b32 s{sD}, s{sD}, s{sT0}")
    c("MFMA phase addresses")
    ACC = 16
    AR = [48, 112]
    BR = [80, 144]
    vKT, vR, vA = 200, 201, 202
    e("v_and_b32 v2, 15, v1")
    e("v_lshrrev_b32 v3, 4, v1")
    e("v_lshlrev_b32 v4, 1, v2")
    e("v_lshlrev_b32 v5, 4, v3")
    e("v_sub_u32 v4, v4, v5")
    e(f"v_add_u32 v4, {32 - 14}, v4")
    e("v_and_b32 v5, 1, v2")
    e("v_cmp_eq_u32 vcc, 0, v5")
    e("v_mov_b32 v5, 0")
    e(f"v_mov_b32 v6, {CV_KCPY - 2}")
    e("s_nop 1")
    e("v_cndmask_b32 v5, v5, v6, vcc")
    e("v_add_u32 v4, v4, v5")
    e(f"v_add_u32 v{vKT}, s{sKT}, v4")
    e("v_lshlrev_b32 v4, 5, v2")
    e("v_lshl_add_u32 v4, v3, 4, v4")
    e(f"v_sub_u32 v4, {4080 - 3584}, v4")
    e(f"v_add_u32 v{vR}, s{sRB}, v4")
    e("v_lshlrev_b32 v4, 5, v2")
    e("v_lshl_add_u32 v4, v3, 3, v4")
    e(f"v_sub_u32 v5, {4088 - 3584}, v4")
    e(f"v_add_u32 v5, s{sRB}, v5")
    c("GEMM2 interface: flag byte MB_C + 8J + w to the 32 consumers 32G + l")
    e(f"s_lshl_b32 s{sSG0}, s{sG}, 13")
    e(f"s_lshl_b32 s{sT0}, s{sJ}, 3")
    e(f"s_add_u32 s{sSG0}, s{sSG0}, s{sT0}")
    e(f"s_add_u32 s{sSG0}, s{sSG0}, s{sW}")
    e(f"s_add_u32 s{sSG0}, s{sSG0}, {WS_MB + MB_C}")
    e(f"s_mov_b32 s{sSG1}, 8")
    e(f"s_mov_b32 s{sSGX}, -1")
    if C8:
        e(f"s_mov_b32 s{sNS}, 0")
        e(f"s_mov_b32 s{sNU}, 1")
    else:
        e(f"s_mov_b32 s{sNS}, 1")
        e(f"s_cmp_lt_u32 s{sW}, 4")
        e(f"s_cselect_b32 s{sNU}, 2, 0")
    if KVF:
        e(f"s_and_b32 s3, s{sCH}, 0xffffe000")
        e(f"s_bfe_u32 s{sT0}, s{sCH}, 0x1000c")
        e(f"s_lshl_b32 s{sT0}, s{sT0}, 6")
        e(f"s_add_u32 s3, s3, s{sT0}")
        e(f"s_add_u32 s3, s3, {WS_KV}")
        e("v_lshrrev_b32 v6, 2, v1")
        e("v_and_b32 v7, 3, v1")
        e("v_lshlrev_b32 v7, 4, v7")
        e("v_lshl_add_u32 v7, v6, 7, v7")
        e("s_mov_b32 s5, 0x80000000")
    else:
        e(f"s_add_u32 s3, s{sCH}, {WS_KV}")

    def crlist(ci, st, kinds="AB"):
        d0 = 2 * ci + 1
        r = []
        if "A" in kinds:
            for pp in range(4):
                r.append(f"v_add_u32 v{vA + pp}, {32 * d0 + 1024 * pp}, v{vKT}")
        order = [("B", 0)] + [("A", p) for p in range(8)] + [("B", m) for m in range(1, 8)]
        for kind, x in order:
            if kind not in kinds:
                continue
            if kind == "A":
                p = x
                o = 128 * (p & 1)
                r.append(f"ds_read2_b32 {vr(AR[st] + 4 * p, 2)}, v{vA + (p >> 1)} offset0:{o} offset1:{o + 1}")
                r.append(f"ds_read2_b32 {vr(AR[st] + 4 * p + 2, 2)}, v{vA + (p >> 1)} offset0:{o + 2} offset1:{o + 3}")
            else:
                m = x
                r.append(f"ds_read_b128 {vr(BR[st] + 4 * m, 4)}, v{vR} offset:{32 * d0 + 512 * (7 - m)}")
        return r

    e("s_waitcnt lgkmcnt(0)")
    for x in crlist(0, 0, "A"):
        e(x)
    e(f"s_cmp_lg_u32 s{sW}, 7")
    e("s_cbranch_scc1 k1c_kw")
    if KVF:
        e("s_mov_b32 s80, 0")
        e("k1c_kp:")
        e(f"buffer_load_ubyte v14, v1, {sr(S_WS, 4)}, s{sMBX} offen offset:128 sc1")
        e(f"buffer_load_ubyte v15, v1, {sr(S_WS, 4)}, s{sMBX} offen sc1")
        e("s_waitcnt vmcnt(0)")
        e("v_cmp_ne_u32 vcc, 0, v14")
        e("s_add_u32 s80, s80, 1")
        e("s_cmp_eq_u64 vcc, -1")
        e("s_cbranch_scc1 k1c_kpd")
        e("s_sleep 1")
        e("s_cmp_lt_u32 s80, 0x40000")
        e("s_cbranch_scc1 k1c_kp")
        e("k1c_kpd:")
        e("v_cmp_ne_u32 vcc, 0, v15")
    else:
        pollbytes(sMBX, 5)
    e(f"v_mov_b32 v14, {L_ST}")
    e("s_or_b32 s81, vcc_lo, s5")
    e("v_mov_b32 v15, s81")
    e("ds_write_b32 v14, v15 offset:8")
    e("s_branch k1c_kd")
    e("k1c_kw:")
    lds_wait(8, 5)
    e("k1c_kd:")
    c("own channel kvR row -> LDS R")
    for j in range(4):
        e(f"s_add_u32 m0, s{sRB}, {1024 * j}")
        e(f"buffer_load_dwordx4 v8, {sr(S_WS, 4)}, s3 offen offset:{1024 * j} lds sc1") if 0 else None
        e(f"buffer_load_dwordx4 v{7 if KVF else 8}, {sr(S_WS, 4)}, s3 offen lds")
        e(f"s_add_u32 s3, s3, {2048 if KVF else 1024}")
    if CPRIO == 1:
        e(f"s_cmp_lt_u32 s{sW}, 4")
        e("s_cbranch_scc0 k1c_p1")
        e("s_setprio 2")
        e("k1c_p1:")
    e("s_waitcnt vmcnt(0)")
    stamp(3)
    for x in crlist(0, 0, "B"):
        e(x)
    c("w_down fragments ready -> B fragments of the GEMM2 unit are loaded under the MFMAs")
    e("v_readfirstlane_b32 s81, v15")
    e("s_lshr_b32 s4, s2, 5")
    e(f"s_add_u32 s{sT0}, s{sW}, s4") if UROT else e(f"s_mov_b32 s{sT0}, s{sW}")
    e(f"s_and_b32 s{sT0}, s{sT0}, 7")
    e(f"s_mul_i32 s{sT0}, s{sT0}, 22528")
    e(f"s_mul_i32 s4, s4, {WDT}")
    e(f"s_add_u32 s4, s4, s{sT0}")
    e(f"s_add_u32 s4, s4, {WS_WD}")
    e("s_and_b32 s81, s81, 3")
    e("s_cmp_eq_u32 s81, 3")
    e(f"s_cselect_b32 s{sWM}, -1, 0")
    e(f"s_cselect_b32 s{sWM + 1}, -1, 0")
    if not CEB:
        e(f"s_mov_b32 s{sWM}, 0")

    def bload(i):
        return [f"s_add_u32 s{sT0}, s4, {1024 * i}", f"s_mov_b32 exec_lo, s{sWM}", f"s_mov_b32 exec_hi, s{sWM}",
                f"buffer_load_dwordx4 {vr(168 + 4 * i, 4)}, v8, {sr(S_WS, 4)}, s{sT0} offen", "s_mov_b64 exec, -1"]

    early = [i for i in range(22) if i not in (0, 1, 8, 9)] if CEB else []
    KVR = 80
    for ci in range(8):
        st = ci & 1
        if CPRIO == 2 and ci % 2 == 0:
            e(f"s_setprio {3 - ci // 2}")
        e("s_waitcnt lgkmcnt(0)")
        rl = []
        if ci < 7:
            rl = crlist(ci + 1, st ^ 1)
            for _ in range(4):
                e(rl.pop(0))
            if ci >= 1:
                for k in range(3):
                    if early:
                        rl += [bload(early.pop(0)), []]
        if ci == 7 and CPOL == 1:
            e(f"s_sub_u32 s{sT1}, s{sMBX}, 64")
            e(f"s_cmp_eq_u32 s{sW}, 7")
            e("s_cselect_b64 exec, -1, 0")
            e(f"buffer_load_ubyte v206, v1, {sr(S_WS, 4)}, s{sT1} offen sc1")
            e("s_mov_b64 exec, -1")
        if ci == 7:
            rl += [f"ds_read_b64 {vr(KVR + 2 * n, 2)}, v5 offset:{512 * (7 - n)}" for n in range(8)]
            rl += [[], [], [], ["s_waitcnt lgkmcnt(0)"]]
            vl = []
            for n in range(8):
                k0, k1 = KVR + 2 * n, KVR + 2 * n + 1
                t = 48 + 4 * n
                vl += [f"v_and_b32 v{t}, 0xffff0000, v{k1}", f"v_lshlrev_b32 v{t + 1}, 16, v{k1}",
                       f"v_and_b32 v{t + 2}, 0xffff0000, v{k0}", f"v_lshlrev_b32 v{t + 3}, 16, v{k0}"]
                vl += [f"v_mul_f32 v{t + i}, s{sD}, v{t + i}" for i in range(4)]
                vl += [f"v_cvt_pk_bf16_f32 v{t + i}, 0, v{t + i}" for i in range(4)]
            rl += [vl[i:i + 4] for i in range(0, 96, 4)]
        for m in range(8):
            for p in range(8 - m):
                cc = "0" if (ci == 0 and m == 0) else vr(ACC + 4 * (m + p), 4)
                e(f"v_mfma_f32_16x16x32_bf16 {vr(ACC + 4 * (m + p), 4)}, {vr(AR[st] + 4 * p, 4)}, "
                  f"{vr(BR[st] + 4 * m, 4)}, {cc}")
                if rl:
                    x = rl.pop(0)
                    for y in (x if isinstance(x, list) else [x]):
                        e(y)
        assert not rl
    stamp(9)
    c("epilogue: y2 = bf16(bf16(y) + bf16(kv*D)), store y2T")
    e(f"s_add_u32 s3, s{sCH}, {WS_Y2}")
    for n in range(8):
        a = ACC + 4 * n
        t = 48 + 4 * n
        if n == 7:
            e("s_nop 3")
        for i in range(4):
            e(f"v_cvt_pk_bf16_f32 v{a + i}, 0, v{a + i}")
        for i in range(0, 4, 2):
            epk("add", a + i, a + i, t + i)
        e(f"v_cvt_pk_bf16_f32 v{a}, v{a}, v{a + 1}")
        e(f"v_cvt_pk_bf16_f32 v{a + 1}, v{a + 2}, v{a + 3}")
        e(f"buffer_store_dwordx2 {vr(a, 2)}, v4, {sr(S_WS, 4)}, s3 offen offset:{512 * n}{STC}")
    stamp(4)
    if CPOL == 2:
        c("waves 0 and 7 read the mailbox while their stores drain")
        assert CEB and not CGATE
        e(f"s_sub_u32 s{sT1}, s{sMBX}, 64")
        e("v_mov_b32 v6, 0")
        e(f"s_add_u32 s{sT0}, s{sW}, 1")
        e(f"s_and_b32 s{sT0}, s{sT0}, 6")
        e("s_cselect_b64 exec, 0, -1")
        e(f"buffer_load_ubyte v6, v1, {sr(S_WS, 4)}, s{sT1} offen sc1")
        for i in (0, 1, 8, 9):
            for x in bload(i):
                e(x)
        e(f"v_lshlrev_b32 v12, s{sSG1}, v1")
        e("v_mov_b32 v13, 1")
        e("s_waitcnt vmcnt(5)")
        e("s_mov_b32 exec_hi, 0")
        e(f"buffer_store_byte v13, v12, {sr(S_WS, 4)}, s{sSG0} offen sc1")
        e("s_mov_b64 exec, -1")
        stamp(9 if env('G2S', 0) else None)
        e(f"s_mov_b32 s{sSGX}, 0")
        e("s_waitcnt vmcnt(5)")
        e("v_cmp_ne_u32 vcc, 0, v6")
        e(f"v_mov_b32 v14, {L_ST}")
        e("s_mov_b32 s81, vcc_lo")
        e("v_mov_b32 v15, s81")
        e("s_mov_b64 exec, 1")
        e("ds_or_b32 v14, v15 offset:4")
        e("s_mov_b64 exec, -1")
    if CPOL == 1:
        e(f"s_cmp_lg_u32 s{sW}, 7")
        e("s_cbranch_scc1 k1c_np")
        e("s_waitcnt vmcnt(8)")
        e("v_cmp_ne_u32 vcc, 0, v206")
        e(f"v_mov_b32 v14, {L_ST}")
        e("s_mov_b32 s81, vcc_lo")
        e("v_mov_b32 v15, s81")
        e("ds_write_b32 v14, v15 offset:4")
        e("k1c_np:")
    if C8:
        e(f"v_mov_b32 v14, {L_ST}")
        e("v_mov_b32 v15, 1")
        e("s_mov_b64 exec, 1")
        e("ds_add_u32 v14, v15")
        e("s_mov_b64 exec, -1")
    if CPRIO:
        e("s_setprio 0")
    if CGATE:
        c("own flag, then wait until all waves of the WG have issued their stores")
        e(f"v_lshlrev_b32 v12, s{sSG1}, v1")
        e("s_waitcnt vmcnt(0)")
        e("s_mov_b32 exec_hi, 0")
        e(f"buffer_store_byte v15, v12, {sr(S_WS, 4)}, s{sSG0} offen sc1")
        e("s_mov_b64 exec, -1")
        e(f"s_mov_b32 s{sSGX}, 0")
        e("s_mov_b32 s80, 0")
        e("k1c_g:")
        e("ds_read_b32 v13, v14")
        e("s_waitcnt lgkmcnt(0)")
        e(f"v_readfirstlane_b32 s{sT0}, v13")
        e("s_add_u32 s80, s80, 1")
        e("s_nop 2")
        e(f"s_cmp_ge_i32 s{sT0}, 4")
        e("s_cbranch_scc1 k1c_gd")
        e("s_sleep 2")
        e("s_cmp_lt_u32 s80, 0x400000")
        e("s_cbranch_scc1 k1c_g")
        e("k1c_gd:")
    if CEB and CPOL != 2:
        for i in (0, 1, 8, 9):
            for x in bload(i):
                e(x)
    e(f"s_cmp_lg_u32 s{sWM + 1}, 0")
    e("s_cbranch_scc1 g2_unit")
    e("s_mov_b32 s5, 3")
    pollbytes(sMBX, 5)
    e("s_branch g2_unit")
    flush_ool()


G2S = env('G2S', 0)
HKN = 0


def gemm2():
    S_X, S_OUT = 44, 48
    sMT2, sNT2, sW, sT0, sT1 = 60, 61, 62, 63, 64
    sU, sAB, sBB, sHM, sMB, sFIRST, sY, sXO, sMB3, sYO = 65, 66, 67, 68, 69, 70, 71, 72, 73, 74
    ACC2, BF2, AF2 = 16, 168, 80
    XR = 4
    YR, SR_ = 80, 84

    def hook(n):
        e(f"v_lshlrev_b32 v12, s{sSG1}, v1")
        e("v_mov_b32 v13, 1")
        e(f"s_waitcnt vmcnt({n})")
        e(f"s_mov_b32 exec_lo, s{sSGX}")
        e("s_mov_b32 exec_hi, 0")
        e(f"buffer_store_byte v13, v12, {sr(S_WS, 4)}, s{sSG0} offen sc1")
        e("s_mov_b64 exec, -1")
        e(f"s_mov_b32 s{sSGX}, 0")

    def xloads(part=0):
        make_srd(S_X, P_Q, 2048 * 1024)
        make_srd(S_OUT, P_OUT, 2048 * 1024)
        c("x / out offset: row 64mt2 + 8w, col 64nt2 + l")
        e(f"s_lshl_b32 s{sXO}, s{sMT2}, 3")
        e(f"s_add_u32 s{sXO}, s{sXO}, s{sW}")
        e(f"s_lshl_b32 s{sYO}, s{sXO}, 4")
        e(f"s_lshl_b32 s{sT0}, s{sNT2}, 18")
        e(f"s_add_u32 s{sYO}, s{sYO}, s{sT0}")
        e(f"s_add_u32 s{sYO}, s{sYO}, {WS_Y2}")
        e(f"s_lshl_b32 s{sXO}, s{sXO}, 13")
        e(f"s_lshl_b32 s{sT0}, s{sNT2}, 7")
        e(f"s_add_u32 s{sXO}, s{sXO}, s{sT0}")
        e(f"s_add_u32 s{sT0}, s{sXO}, 4096")
        e("v_lshlrev_b32 v3, 1, v1")
        for r in range(8):
            e(f"v_mov_b32 v{XR + r}, 0")
        if part == 0:
            return

    def xloads2():
        e(f"s_add_u32 s{sT0}, s{sXO}, 4096")
        for r in range(8):
            e(f"buffer_load_short_d16_hi v{XR + r}, v3, {sr(S_X, 4)}, s{sT0 if r >= 4 else sXO} offen offset:{1024 * (r & 3)}")

    def stloads():
        e(f"s_lshr_b32 s{sT0}, s{sXO}, 13")
        e(f"s_lshl_b32 s{sT0}, s{sT0}, 6")
        e(f"s_add_u32 s{sT0}, s{sT0}, {WS_ST}")
        for j in range(4):
            e(f"buffer_load_dwordx4 {vr(SR_ + 4 * j, 4)}, off, {sr(S_WS, 4)}, s{sT0} offset:{16 * j}")

    def yload():
        e("v_lshlrev_b32 v12, 12, v1")
        e(f"buffer_load_dwordx4 {vr(YR, 4)}, v12, {sr(S_WS, 4)}, s{sYO} offen")

    e("g2_unit:")
    e(f"s_lshr_b32 s{sNT2}, s2, 5")
    e(f"s_mul_i32 s{sBB}, s{sNT2}, {WDT}")
    if UROT:
        e(f"s_add_u32 s{sU}, s{sW}, s{sNT2}")
        e(f"s_and_b32 s{sU}, s{sU}, 7")
    else:
        e(f"s_mov_b32 s{sU}, s{sW}")
    e(f"s_mul_i32 s{sT0}, s{sU}, {11 * 2048}")
    e(f"s_add_u32 s{sBB}, s{sBB}, s{sT0}")
    e(f"s_add_u32 s{sBB}, s{sBB}, {WS_WD}")
    e("v_lshlrev_b32 v2, 4, v1")
    e(f"s_lshl_b32 s{sMB}, s2, 8")
    e(f"s_add_u32 s{sMB}, s{sMB}, {WS_MB}")
    e(f"s_add_u32 s{sMB3}, s{sMB}, {MB_C}")
    e(f"s_and_b32 s{sMT2}, s2, 7")
    e(f"s_lshl_b32 s{sMT2}, s{sMT2}, 2")
    e(f"s_bfe_u32 s{sT0}, s2, 0x20003")
    e(f"s_add_u32 s{sMT2}, s{sMT2}, s{sT0}")
    e(f"s_mov_b32 s{sFIRST}, 1")
    e(f"s_mov_b32 s{sY}, 0")
    e(f"s_cmp_eq_u32 s{sNU}, 0")
    e("s_cbranch_scc1 g2_nounit")
    e(f"s_cmp_eq_u32 s{sWM}, -1")
    e("s_cbranch_scc1 g2_bd")
    if HOOKF:
        hook(0)
        stamp(9 if G2S else None)
    e(f"s_cmp_eq_u32 s{sWM}, 0")
    e("s_cbranch_scc1 g2_loop")
    pollbytes(sMB, sWM)
    e("g2_loop:")
    for i in range(22):
        e(f"buffer_load_dwordx4 {vr(BF2 + 4 * i, 4)}, v2, {sr(S_WS, 4)}, s{sBB} offen offset:{1024 * (i & 3)}")
        if i & 3 == 3:
            e(f"s_add_u32 s{sBB}, s{sBB}, 4096")
    e(f"s_cmp_eq_u32 s{sFIRST}, 0")
    e("s_cbranch_scc1 g2_l2")
    if not HOOKF:
        hook(22)
    e("g2_bd_ret:")
    stamp(9 if G2S and not HOOKF else None)
    xloads()
    for r in range(64):
        e(f"v_mov_b32 v{ACC2 + r}, 0")
    e("g2_l2:")
    c("h flags of ks 11u .. 11u+10 (+ stats flags)")
    e(f"s_mul_i32 s{sT0}, s{sU}, 11")
    e(f"s_add_u32 s{sT1}, s{sT0}, 10")
    e(f"s_lshr_b32 s{sT1}, s{sT1}, 2")
    e(f"s_lshl_b32 s{sHM}, 2, s{sT1}")
    e(f"s_lshr_b32 s{sT1}, s{sT0}, 2")
    e(f"s_lshl_b32 s{sT1}, 1, s{sT1}")
    e(f"s_sub_u32 s{sHM}, s{sHM}, s{sT1}")
    e(f"s_or_b32 s{sHM}, s{sHM}, {3 << MB_S}")
    e(f"s_mul_i32 s{sAB}, s{sMT2}, {2 * HRT}")
    e(f"s_lshl_b32 s{sT0}, s{sT0}, 10")
    e(f"s_add_u32 s{sAB}, s{sAB}, s{sT0}")
    e(f"s_add_u32 s{sT1}, s{sAB}, {HRT}")
    e(f"s_cmp_eq_u32 s{sW}, 7")
    e("s_cbranch_scc1 g2_pol")
    lds_wait(4, sHM)
    with ool("g2_pol"):
        c("poller: relay the flags until all h / stats flags are set (two reads in flight)")
        e(f"v_mov_b32 v15, {L_ST}")
        e("ds_read_b32 v12, v15 offset:4")
        e("s_mov_b32 s80, 0")
        e("s_waitcnt lgkmcnt(0)")
        e("v_readfirstlane_b32 s81, v12")
        e("s_nop 3")
        e(f"s_and_b32 s81, s81, {0x3fffff | (3 << MB_S)}")
        e(f"s_cmp_eq_u32 s81, {0x3fffff | (3 << MB_S)}")
        e("s_cbranch_scc1 g2_pol_ret")
        if PWAIT:
            c("start when the own WG's first phase is complete")
            e("g2_pol1:")
            e("ds_read_b32 v12, v15")
            e("s_waitcnt lgkmcnt(0)")
            e("v_readfirstlane_b32 s81, v12")
            e("s_add_u32 s80, s80, 1")
            e("s_nop 2")
            e("s_cmp_ge_i32 s81, 4")
            e("s_cbranch_scc1 g2_pol1d")
            e("s_sleep 2")
            e("s_cmp_lt_u32 s80, 0x400000")
            e("s_cbranch_scc1 g2_pol1")
            e("g2_pol1d:")
            e("s_mov_b32 s80, 0")
            if PWAIT > 1:
                e(f"s_sleep {PWAIT}")
        e("g2_pol2:")
        e(f"buffer_load_ubyte v14, v1, {sr(S_WS, 4)}, s{sMB} offen sc1")
        e("s_waitcnt vmcnt(0)")
        e("v_cmp_ne_u32 vcc, 0, v14")
        e("s_mov_b32 s81, vcc_lo")
        e("v_mov_b32 v12, s81")
        e("s_mov_b64 exec, 1")
        e("ds_or_b32 v15, v12 offset:4")
        e("s_mov_b64 exec, -1")
        e(f"s_and_b32 s81, vcc_lo, {0x3fffff | (3 << MB_S)}")
        e(f"s_cmp_eq_u32 s81, {0x3fffff | (3 << MB_S)}")
        e("s_cbranch_scc1 g2_pol_ret")
        if PGAP:
            e(f"s_sleep {PGAP}")
        e("s_add_u32 s80, s80, 1")
        e("s_cmp_lt_u32 s80, 0x40000")
        e("s_cbranch_scc1 g2_pol2")
        e(f"v_mov_b32 v12, 0x7fffffff")
        e("ds_or_b32 v15, v12 offset:4")
    stamp(5)
    V = VMQ()

    def aload(i):
        j, a = i >> 1, i & 1
        V.emit(f"buffer_load_dwordx4 {vr(AF2 + 4 * i, 4)}, v2, {sr(S_WS, 4)}, s{sT1 if a else sAB} offen offset:{1024 * (j & 3)}", f"a{i}")
        if j & 3 == 3 and a:
            e(f"s_add_u32 s{sAB}, s{sAB}, 4096")
            e(f"s_add_u32 s{sT1}, s{sT1}, 4096")
        if i == YPOS:
            e(f"s_cmp_eq_u32 s{sW}, 7")
            e("s_cselect_b64 exec, -1, 0")
            V.emit(f"buffer_load_ubyte v12, v1, {sr(S_WS, 4)}, s{sMB3} offen sc1", "y")
            e("s_mov_b64 exec, -1")
        if i == XPOS:
            xloads2()
            V.q += ["x"] * 8

    for i in range(AW):
        aload(i)
    for j in range(11):
        if j == 9:
            e(f"v_mov_b32 v13, {L_ST}")
            e("ds_read_b64 v[14:15], v13")
            e(f"s_cmp_eq_u32 s{sU}, 7")
            e("s_cbranch_scc1 g2_mfd")
        for a in range(2):
            i = 2 * j + a
            V.wait(f"a{i}")
            if i + AW < 22:
                aload(i + AW)
            for ct in range(2):
                acc = ACC2 + 32 * a + 16 * ct
                e(f"v_mfma_f32_32x32x16_bf16 {vr(acc, 16)}, {vr(AF2 + 8 * j + 4 * a, 4)}, {vr(BF2 + 8 * j + 4 * ct, 4)}, {vr(acc, 16)}")
    e("g2_mfd:")
    e(f"s_sub_u32 s{sNU}, s{sNU}, 1")
    e(f"s_cmp_eq_u32 s{sNU}, 0")
    e("s_cbranch_scc1 g2_ud")
    e(f"s_add_u32 s{sU}, s{sU}, 4")
    e(f"s_add_u32 s{sBB}, s{sBB}, {44 * 2048 - 5 * 4096}")
    e(f"s_mov_b32 s{sFIRST}, 0")
    e("s_nop 7")
    e("s_branch g2_loop")
    e("g2_ud:")
    stamp(6)
    e(f"s_cmp_lg_u32 s{sW}, 7")
    e("s_cbranch_scc1 g2_np")
    e("s_waitcnt vmcnt(0) lgkmcnt(0)")
    e("v_cmp_ne_u32 vcc, 0, v12")
    e("s_cmp_eq_u64 vcc, -1")
    e("s_cbranch_scc0 g2_np")
    e("v_mov_b32 v15, -1")
    e(f"v_mov_b32 v13, {L_ST}")
    e("ds_write_b32 v13, v15 offset:4")
    e("g2_np:")
    c("partial address: slot w + n*256 + ((8a + 2q + g) ^ (n & 15))*16")
    e("v_and_b32 v12, 15, v1")
    e("v_lshrrev_b32 v13, 5, v1")
    e("v_xor_b32 v12, v12, v13")
    e("v_lshlrev_b32 v12, 4, v12")
    e("v_and_b32 v13, 31, v1")
    e("v_lshl_add_u32 v12, v13, 8, v12")
    e(f"s_lshl_b32 s{sT0}, s{sW}, 14")
    e(f"v_add_u32 v12, s{sT0}, v12")
    for k in range(1, 8):
        e(f"v_xor_b32 v{BF2 + k}, {32 * k}, v12")
    e("s_waitcnt vmcnt(0) lgkmcnt(0)")
    stloads()
    e(f"v_readfirstlane_b32 s{sT0}, v14")
    e(f"v_readfirstlane_b32 s{sT1}, v15")
    e("s_nop 3")
    e(f"s_cmp_ge_i32 s{sT0}, 4")
    e("s_cbranch_scc0 g2_cnt")
    with ool("g2_cnt"):
        e("s_mov_b32 s80, 0")
        e(f"v_mov_b32 v14, {L_ST}")
        e("g2_cnt2:")
        e("s_sleep 2")
        e("ds_read_b32 v15, v14")
        e("s_waitcnt lgkmcnt(0)")
        e(f"v_readfirstlane_b32 s{sT0}, v15")
        e("s_add_u32 s80, s80, 1")
        e("s_nop 2")
        e(f"s_cmp_ge_i32 s{sT0}, 4")
        e("s_cbranch_scc1 g2_cnt_ret")
        e("s_cmp_lt_u32 s80, 0x400000")
        e("s_cbranch_scc1 g2_cnt2")
    e(f"s_bitcmp1_b32 s{sT1}, 31")
    e("s_cbranch_scc0 g2_noy")
    e(f"s_mov_b32 s{sY}, 1")
    e("v_lshlrev_b32 v14, 12, v1")
    e(f"buffer_load_dwordx4 {vr(YR, 4)}, v14, {sr(S_WS, 4)}, s{sYO} offen")
    e("g2_noy:")
    for a in range(2):
        for q in range(4):
            k = 4 * a + q
            for ct in range(2):
                e(f"ds_write_b128 v{BF2 + k if k else 12}, {vr(ACC2 + 32 * a + 16 * ct + 4 * q, 4)} offset:{8192 * ct}")
    e("g2_bar:")
    c("final: lane = column, rows 8w .. 8w+7 (chunks 2w, 2w+1)")
    e("v_and_b32 v12, 15, v1")
    e(f"s_lshl_b32 s{sT0}, s{sW}, 1")
    e(f"v_xor_b32 v12, s{sT0}, v12")
    e("v_lshlrev_b32 v12, 4, v12")
    e("v_lshl_add_u32 v12, v1, 8, v12")
    e("v_xor_b32 v13, 16, v12")
    e("v_add_u32 v14, 0x10000, v12")
    e("v_add_u32 v15, 0x10000, v13")
    e("s_waitcnt lgkmcnt(0)")
    e("s_barrier")
    stamp(7)
    P = ACC2
    e(f"v_mov_b32 v2, {L_ST}")
    e("ds_read_b32 v2, v2 offset:4")
    for j in range(4):
        for h in range(2):
            e(f"ds_read_b128 {vr(P + 8 * j + 4 * h, 4)}, v{12 + h} offset:{16384 * j}")
    e("s_waitcnt lgkmcnt(8)")
    e(f"v_readfirstlane_b32 s{sT1}, v2")
    e("v_lshlrev_b32 v2, 12, v1")
    e("s_nop 2")
    e(f"s_lshr_b32 s{sT1}, s{sT1}, 31")
    e(f"s_cmp_gt_u32 s{sT1}, s{sY}")
    e("s_cbranch_scc0 g2_y2n")
    e(f"s_mov_b32 s{sY}, 1")
    e(f"buffer_load_dwordx4 {vr(YR, 4)}, v2, {sr(S_WS, 4)}, s{sYO} offen")
    e("g2_y2n:")
    e(f"s_cmp_lg_u32 s{sNS}, 0")
    e("s_cbranch_scc1 g2_s4")
    for j in range(4):
        for h in range(2):
            e(f"ds_read_b128 {vr(P + 32 + 8 * j + 4 * h, 4)}, v{14 + h} offset:{16384 * j}")
    for j in range(4):
        e(f"s_waitcnt lgkmcnt({6 - 2 * j})")
        for d in range(0, 8, 2):
            e(f"v_pk_add_f32 {vr(P + 8 * j + d, 2)}, {vr(P + 8 * j + d, 2)}, {vr(P + 32 + 8 * j + d, 2)}")
    e("g2_s4:")
    e("s_waitcnt lgkmcnt(0)")
    for a, b in ((0, 1), (2, 3), (0, 2)):
        for d in range(0, 8, 2):
            e(f"v_pk_add_f32 {vr(P + 8 * a + d, 2)}, {vr(P + 8 * a + d, 2)}, {vr(P + 8 * b + d, 2)}")
    for r in range(8):
        e(f"v_cvt_pk_bf16_f32 v{P + r}, 0, v{P + r}")
    e(f"s_cmp_lg_u32 s{sY}, 0")
    e("s_cbranch_scc1 g2_ydone")
    e(f"s_cmp_eq_u32 s{sW}, 7")
    e("s_cbranch_scc1 g2_yp0")
    e(f"s_mov_b32 s{sHM}, 0x80000000")
    lds_wait(4, sHM)
    e("s_branch g2_ypd2")
    e("g2_yp0:")
    e("s_mov_b32 s80, 0")
    e("g2_yp:")
    e(f"buffer_load_ubyte v14, v1, {sr(S_WS, 4)}, s{sMB3} offen sc1")
    e("s_waitcnt vmcnt(0)")
    e("v_cmp_ne_u32 vcc, 0, v14")
    e("s_add_u32 s80, s80, 1")
    e("s_cmp_eq_u64 vcc, -1")
    e("s_cbranch_scc1 g2_ypd")
    e("s_cmp_lt_u32 s80, 0x40000")
    e("s_cbranch_scc1 g2_yp")
    e("g2_ypd:")
    e(f"v_mov_b32 v15, {L_ST}")
    e("v_mov_b32 v14, -1")
    e("ds_write_b32 v15, v14 offset:4")
    e("g2_ypd2:")
    yload()
    e("g2_ydone:")
    stamp(8)
    XN = P + 8
    e("s_waitcnt vmcnt(1)")
    for r in range(8):
        e(f"v_fma_f32 v{XN + r}, v{XR + r}, v{SR_ + 2 * r}, v{SR_ + 2 * r + 1}")
    for r in range(8):
        e(f"v_cvt_pk_bf16_f32 v{XN + r}, 0, v{XN + r}")
    e(f"s_add_u32 s{sT0}, s{sXO}, 4096")
    e("s_waitcnt vmcnt(0)")
    YF = P + 16
    for d in range(4):
        e(f"v_lshlrev_b32 v{YF + 2 * d}, 16, v{YR + d}")
        e(f"v_and_b32 v{YF + 2 * d + 1}, 0xffff0000, v{YR + d}")
    for d in range(0, 8, 2):
        e(f"v_pk_mul_f32 {vr(YF + d, 2)}, {vr(YF + d, 2)}, {vr(XN + d, 2)}")
    for r in range(8):
        e(f"v_cvt_pk_bf16_f32 v{YF + r}, 0, v{YF + r}")
    for d in range(0, 8, 2):
        e(f"v_pk_add_f32 {vr(YF + d, 2)}, {vr(YF + d, 2)}, {vr(XR + d, 2)}")
    for r in range(8):
        e(f"v_cvt_pk_bf16_f32 v{YF + r}, 0, v{YF + r}")
    for d in range(0, 8, 2):
        e(f"v_pk_add_f32 {vr(YF + d, 2)}, {vr(YF + d, 2)}, {vr(P + d, 2)}")
        e(f"v_cvt_pk_bf16_f32 v{YF + d}, v{YF + d}, v{YF + d + 1}")
        s = sT0 if d >= 4 else sXO
        e(f"buffer_store_short v{YF + d}, v3, {sr(S_OUT, 4)}, s{s} offen offset:{1024 * (d & 3)}")
        e(f"buffer_store_short_d16_hi v{YF + d}, v3, {sr(S_OUT, 4)}, s{s} offen offset:{1024 * ((d + 1) & 3)}")
    stamp_flush(S_WS, WS_PROF)
    e("k1_done:")
    e("s_endpgm")
    flush_ool()
    e("g2_bd:")
    e(f"s_cmp_eq_u32 s{sSGX}, 0")
    e("s_cbranch_scc1 g2_bd_ret")
    hook(HKN)
    stamp(9 if G2S else None)
    e("s_branch g2_bd_ret")
    e("g2_nounit:")
    hook(0)
    xloads()
    xloads2()
    e(f"s_mov_b32 s{sHM}, {3 << MB_S}")
    pollbytes(sMB, sHM)
    stloads()
    e("s_branch g2_bar")


def kernel1():
    e(".globl k1_kernel")
    e(".p2align 8")
    e(".type k1_kernel,@function")
    e("k1_kernel:")
    e("s_cmp_ge_u32 s2, 256")
    e("s_cbranch_scc1 k1_done")
    load_ptrs()
    if RID:
        e(f"s_add_u32 s2, s2, {RID}")
        e("s_and_b32 s2, s2, 255")
    e(f"s_cmp_lt_u32 s2, {K1_NCONV}")
    e("s_cbranch_scc1 k1_conv")
    e(f"s_cmp_lt_u32 s2, {K1_NCONV + K1_NGEMM}")
    e("s_cbranch_scc1 k1_gemm")
    k1_aux()
    k1_gemm()
    k1_conv()
    gemm2()


def descriptor(name, nv):
    L.append(".p2align 6")
    L.append(f".amdhsa_kernel {name}")
    L.append(f"  .amdhsa_next_free_vgpr {nv}")
    L.append("  .amdhsa_next_free_sgpr 102")
    L.append(f"  .amdhsa_accum_offset {nv}")
    L.append("  .amdhsa_group_segment_fixed_size 0")
    L.append("  .amdhsa_kernarg_size 104")
    L.append("  .amdhsa_user_sgpr_count 2")
    L.append("  .amdhsa_user_sgpr_kernarg_segment_ptr 1")
    L.append("  .amdhsa_system_sgpr_workgroup_id_x 1")
    L.append(".end_amdhsa_kernel")


def main():
    hdr = open(f"cdna_kernels/{NAME}.s.ref").read().split("\n")
    for line in hdr:
        if line.startswith("; Override") or line.startswith("; grid=") or "@launch" in line:
            continue
        if not line.startswith(";"):
            break
        L.append(line)
    L.append(f"; @launch kernel=k1_kernel grid=(256,1,1) block=(512,1,1) lds=163840")
    L.append('.amdgcn_target "amdgcn-amd-amdhsa--gfx950"')
    L.append(".text")
    kernel1()
    L.append('.section .rodata,"a"')
    descriptor("k1_kernel", 256)
    out = sys.argv[1] if len(sys.argv) > 1 else f"cdna_kernels/{NAME}.s"
    open(out, "w").write("\n".join(L) + "\n")


if __name__ == "__main__":
    main()
```

```python
import os
import sys

NAME = "parallel_sum__ssm_conv_h3__glu_gated_bilinear__prompt"

WS_H = 0
HRT = 88 * 1024
WS_Y2 = 0x600000
WS_ST = 0x800000
WS_CS = 0x880000
WS_SP = 0x8C0000
WS_MB = 0x900000
WS_WD = 0xA00000
WDT = 88 * 2048
WS_KV = 0xC00000
ZOFF = 16
MB_H, MB_W, MB_S = 0, 22, 24
MB_CS, MB_ST, MB_KV = 64, 80, 88
MB_C = 128


def env(k, d):
    return int(os.environ.get(k, str(d)))


PSLEEP = env('PSLEEP', 1)
NI = env('NI', 2)
RPG = env('RPG', 2)
SPG = env('SPG', 6)
S_POLL = env('S_POLL', 3)
SKD = env('SKD', 1)
PFO = env('PFO', 0)
PC = env('PC', 0)
PS = env('PS', 1)
SG = env('SG', 2)
ASLEEP = env('ASLEEP', 0)
CPRIO = env('CPRIO', 2)
MAP = env('MAP', 0)
GSLEEP = env('GSLEEP', 0)
EB = env('EB', 1)
EBN = env('EBN', 8)
CGATE = env('CGATE', 0)
CSLEEP = env('CSLEEP', 8)
C8 = env('C8', 1)
XPF = env('XPF', 0)
XSL = env('XSL', 0)
ROT = env('ROT', 0)
UROT = env('UROT', 1)
APF = env('APF', 1)
BL = env('BL', 1)
CEB = env('CEB', 1)
PGAP = env('PGAP', 1)
CPOL = env('CPOL', 2)
PWAIT = env('PWAIT', 1)
RID = env('RID', 240)
AW = env('AW', 8)
YPOS = env('YPOS', 12)
XPOS = env('XPOS', 12)
KVF = env('KVF', 0)
CS3 = env('CS3', 0)
EBW = env('EBW', 0)
STC = ' sc1'
STH = os.environ.get('STH', ' sc1')
STK = os.environ.get('STK', ' sc1')
HOOKF = env('HOOKF', 1)
TW = env('TW', 0)
C7 = env('C7', 0)
HPRIO = env('HPRIO', 1)
PSH = env('PSH', 1)
KX = env('KX', 0)
PFP = env('PFP', 0)
KXS = env('KXS', 1)
TWS = env('TWS', 4)
WS_FREE = WS_WD + 0x1F0000
L = []


def e(s=""):
    L.append("    " + s if s and not s.endswith(":") else s)


def c(s):
    L.append("    ; " + s)


PROF = len(sys.argv) > 2 and sys.argv[2] == "prof"
WS_PROF = 0xE00000
SPAIR = [6, 8, 10, 12, 14, 88, 90, 92, 94, 96, 100]
sRT = 83


def stamp(k=None):
    if not PROF or k is None:
        return
    if k == 0:
        e("s_memrealtime s[98:99]")
        e("s_waitcnt lgkmcnt(0)")
        e(f"s_mov_b32 s{sRT}, s98")
        for p in SPAIR:
            e(f"s_mov_b32 s{p}, 0")
    e(f"s_memtime s[{SPAIR[k]}:{SPAIR[k] + 1}]")
    e("s_waitcnt lgkmcnt(0)")


def stamp_flush(srd, base):
    if not PROF:
        return
    stamp(10)
    e("s_memrealtime s[98:99]")
    e("s_waitcnt lgkmcnt(0)")
    e("v_writelane_b32 v255, s98, 62")
    e("s_getreg_b32 s98, hwreg(HW_REG_HW_ID)")
    e("v_writelane_b32 v255, s98, 61")
    e(f"v_writelane_b32 v255, s{sRT}, 63")
    for k, p in enumerate(SPAIR):
        e(f"v_writelane_b32 v255, s{p}, {k}")
    e("v_lshrrev_b32 v253, 6, v0")
    e("v_lshl_add_u32 v253, s2, 3, v253")
    e("v_lshlrev_b32 v253, 8, v253")
    e("v_and_b32 v254, 63, v0")
    e("v_lshl_add_u32 v253, v254, 2, v253")
    e(f"v_add_u32 v253, {base}, v253")
    e(f"buffer_store_dword v255, v253, {sr(srd, 4)}, 0 offen")


OOL = []


class ool:
    def __init__(self, label):
        self.label = label

    def __enter__(self):
        global L
        self.saved = L
        L = []
        L.append(f"{self.label}:")

    def __exit__(self, *a):
        global L
        L.append(f"    s_branch {self.label}_ret")
        OOL.extend(L)
        L = self.saved
        L.append(f"{self.label}_ret:")


def flush_ool():
    L.extend(OOL)
    OOL.clear()


def vr(a, n=1):
    return f"v{a}" if n == 1 else f"v[{a}:{a + n - 1}]"


def sr(a, n=1):
    return f"s{a}" if n == 1 else f"s[{a}:{a + n - 1}]"


def make_srd(d, ptr, nbytes):
    e(f"s_mov_b32 s{d}, s{ptr}")
    e(f"s_and_b32 s{d + 1}, s{ptr + 1}, 0xffff")
    e(f"s_mov_b32 s{d + 2}, {nbytes}")
    e(f"s_mov_b32 s{d + 3}, 0x00020000")


P_Q, P_K, P_V, P_SH, P_SK, P_SD, P_BX, P_WG = 16, 18, 20, 22, 24, 26, 28, 30
P_WU, P_WD, P_OUT, P_DBG, P_WS = 32, 34, 36, 38, 40


def load_ptrs():
    e("s_load_dwordx16 s[16:31], s[0:1], 0")
    e("s_load_dwordx8 s[32:39], s[0:1], 64")
    e("s_load_dwordx2 s[40:41], s[0:1], 96")


S_DB2 = 84
S_WS = 56
_lbl = [0]
sZ = 82


def zload():
    e(f"s_load_dword s{sZ}, {sr(P_DBG, 2)}, {ZOFF}")


def zcheck():
    _lbl[0] += 1
    n = _lbl[0]
    e(f"s_cmp_ge_u32 s{sZ}, 1")
    e(f"s_cbranch_scc1 sig_go{n}")
    make_srd(S_DB2, P_DBG, 256)
    e(f"v_mov_b32 v15, {ZOFF}")
    e("s_mov_b32 s80, 0")
    e(f"zp{n}:")
    e(f"buffer_load_dword v14, v15, {sr(S_DB2, 4)}, 0 offen sc1")
    e("s_waitcnt vmcnt(0)")
    e("v_readfirstlane_b32 s81, v14")
    e("s_nop 3")
    e("s_add_u32 s80, s80, 1")
    e("s_cmp_ge_u32 s81, 1")
    e(f"s_cbranch_scc1 zd{n}")
    e("s_sleep 8")
    e("s_cmp_lt_u32 s80, 0x40000")
    e(f"s_cbranch_scc1 zp{n}")
    e(f"zd{n}:")
    e(f"s_mov_b32 s{sZ}, 1")
    e(f"sig_go{n}:")


def pollbytes(sOff, sMask, first=None):
    _lbl[0] += 1
    n = _lbl[0]
    if first is not None:
        e(f"v_cmp_ne_u32 vcc, 0, v{first}")
        e(f"s_and_b32 s81, vcc_lo, s{sMask}")
        e(f"s_cmp_eq_u32 s81, s{sMask}")
        e(f"s_cbranch_scc1 polled{n}")
    e("s_mov_b32 s80, 0")
    e(f"poll{n}:")
    e(f"buffer_load_ubyte v14, v1, {sr(S_WS, 4)}, s{sOff} offen sc1")
    e("s_waitcnt vmcnt(0)")
    e("v_cmp_ne_u32 vcc, 0, v14")
    e("s_add_u32 s80, s80, 1")
    e(f"s_and_b32 s81, vcc_lo, s{sMask}")
    e(f"s_cmp_eq_u32 s81, s{sMask}")
    e(f"s_cbranch_scc1 polled{n}")
    if PSLEEP:
        e(f"s_sleep {PSLEEP}")
    e("s_cmp_lt_u32 s80, 0x40000")
    e(f"s_cbranch_scc1 poll{n}")
    e(f"polled{n}:")


K1_NCONV = 64
K1_NGEMM = 176
STG = 49152
MISC = 147456
L_CS = MISC
L_MN = MISC + 8192
L_RS = MISC + 12288
L_ST = 163328

sSGX = 42
sWM = 43
sNU = 76
sNS = 77
sSG0, sSG1 = 78, 79


def state_init(val, a=12):
    e(f"v_mov_b32 v{a}, {val}")
    e(f"v_mov_b32 v{a + 1}, 0")
    e(f"v_mov_b32 v{a + 2}, 0")
    e(f"v_mov_b32 v{a + 3}, {L_ST}")
    e(f"ds_write_b96 v{a + 3}, {vr(a, 3)}")


def lds_wait(off, sMask):
    _lbl[0] += 1
    n = _lbl[0]
    e(f"v_mov_b32 v14, {L_ST}")
    e("s_mov_b32 s80, 0")
    e(f"lw{n}:")
    e(f"ds_read_b32 v15, v14 offset:{off}")
    e("s_waitcnt lgkmcnt(0)")
    e("v_readfirstlane_b32 s81, v15")
    e("s_add_u32 s80, s80, 1")
    e("s_nop 2")
    e(f"s_and_b32 s81, s81, s{sMask}")
    e(f"s_cmp_eq_u32 s81, s{sMask}")
    e(f"s_cbranch_scc1 lwd{n}")
    e("s_sleep 1")
    e("s_cmp_lt_u32 s80, 0x1000000")
    e(f"s_cbranch_scc1 lw{n}")
    e(f"lwd{n}:")


def sig_h(mt2, byte, t):
    e(f"s_and_b32 s{t}, s{mt2}, 3")
    e(f"s_lshl_b32 s{t}, s{t}, 3")
    e(f"s_lshr_b32 s{sSG0}, s{mt2}, 2")
    e(f"s_add_u32 s{sSG0}, s{sSG0}, s{t}")
    e(f"s_lshl_b32 s{sSG0}, s{sSG0}, 8")
    e(f"s_add_u32 s{sSG0}, s{sSG0}, s{byte}")
    e(f"s_add_u32 s{sSG0}, s{sSG0}, {WS_MB}")
    e(f"s_mov_b32 s{sSG1}, 13")


def stats_math(SX, SQ, T, RS, NM):
    return [f"v_mul_f32 v{T}, 0x3b000000, v{SX}",
            f"v_mul_f32 v{T + 2}, 0x3b000000, v{SQ}",
            f"v_fma_f32 v{T + 2}, -v{T}, v{T}, v{T + 2}",
            f"v_max_f32 v{T + 2}, 0, v{T + 2}",
            f"v_cvt_pk_bf16_f32 v{T + 1}, v{T}, v{T + 2}",
            f"v_lshlrev_b32 v{T + 4}, 16, v{T + 1}",
            f"v_and_b32 v{T + 2}, 0xffff0000, v{T + 1}",
            f"v_add_f32 v{T + 2}, 0x3727c5ac, v{T + 2}",
            f"v_cvt_pk_bf16_f32 v{T + 2}, v{T + 2}, v{T + 2}",
            f"v_and_b32 v{T + 2}, 0xffff0000, v{T + 2}",
            f"v_sqrt_f32 v{T + 2}, v{T + 2}",
            "s_nop 0",
            f"v_cvt_pk_bf16_f32 v{T + 2}, v{T + 2}, v{T + 2}",
            f"v_and_b32 v{T + 2}, 0xffff0000, v{T + 2}",
            f"v_rcp_f32 v{RS}, v{T + 2}",
            "s_nop 0",
            f"v_mul_f32 v{NM}, v{T + 4}, v{RS}",
            f"v_sub_f32 v{NM}, 0, v{NM}"]


def pk(op, d, a, b, c_=None):
    return [f"v_{op}_f32 v{d + i}, v{a + i}, v{b + i}" + (f", v{c_ + i}" if c_ is not None else "") for i in range(2)]


def epk(*a):
    for x in pk(*a):
        e(x)


class VMQ:
    def __init__(self, init=()):
        self.q = list(init)

    def emit(self, x, tag=None):
        e(x)
        if x.startswith("buffer_"):
            self.q.append(tag)

    def n(self, *tags):
        last = max(i for i, t in enumerate(self.q) if t in tags)
        return min(63, len(self.q) - 1 - last)

    def wait(self, *tags, extra=""):
        e(f"s_waitcnt vmcnt({self.n(*tags)}){extra}")


def k1_gemm():
    S_X, S_WG, S_WU = 44, 48, 52
    sMT, sNT, sW, sT0, sT1 = 60, 61, 62, 63, 64
    e("k1_gemm:")
    e("s_sub_u32 s3, s2, %d" % K1_NCONV)
    if MAP:
        c("mt = 2 (t%8) + ((t/8)&1) ; nt = t/16")
        e("s_and_b32 s4, s3, 7")
        e("s_lshl_b32 s4, s4, 1")
        e("s_bfe_u32 s5, s3, 0x10003")
        e(f"s_add_u32 s{sMT}, s4, s5")
        e(f"s_lshr_b32 s{sNT}, s3, 4")
    else:
        c("k = 22*(t%8) + t/8 ; mh = k/88 ; rem = k%88 ; nt = rem/8 ; mt = mh*8 + rem%8")
        e("s_and_b32 s4, s3, 7")
        e("s_mul_i32 s4, s4, 22")
        e("s_lshr_b32 s5, s3, 3")
        e("s_add_u32 s4, s4, s5")
        e("s_cmp_ge_u32 s4, 88")
        e("s_cselect_b32 s5, 88, 0")
        e(f"s_cselect_b32 s{sMT}, 8, 0")
        e("s_sub_u32 s4, s4, s5")
        e(f"s_lshr_b32 s{sNT}, s4, 3")
        e("s_and_b32 s4, s4, 7")
        e(f"s_add_u32 s{sMT}, s{sMT}, s4")
    e("v_lshrrev_b32 v2, 6, v0")
    e("v_and_b32 v1, 63, v0")
    e(f"v_readfirstlane_b32 s{sW}, v2")
    e("s_nop 3")
    e(f"s_cmp_ge_u32 s{sW}, 4")
    e("s_cbranch_scc1 k1_help")

    AF, BF, ACC, vAD = 16, 32, 64, 192
    vH, RSV, CO, MO = 210, 212, 216, 224
    sRH, sNH, sHB = 65, 66, 67
    e(f"s_and_b32 s{sRH}, s{sW}, 1")
    e(f"s_lshr_b32 s{sNH}, s{sW}, 1")
    c("A frag read address: 32768 + r*128 + ((2kk+g) ^ ((r>>1)&7))*16 ; r = 64 rh + 32 a + l%32")
    e(f"s_lshl_b32 s{sT0}, s{sRH}, 6")
    e("v_and_b32 v2, 31, v1")
    e(f"v_add_u32 v6, s{sT0}, v2")
    e("v_lshrrev_b32 v7, 1, v2")
    e("v_and_b32 v7, 7, v7")
    e("v_lshrrev_b32 v8, 5, v1")
    e("v_xor_b32 v7, v7, v8")
    e("v_lshlrev_b32 v7, 4, v7")
    e("v_lshl_add_u32 v7, v6, 7, v7")
    e("v_add_u32 v10, 32768, v7")
    e(f"v_lshlrev_b32 v9, 2, v6")
    e(f"v_add_u32 v9, {L_RS}, v9")
    c("B tr-read lane addresses for tiles T0=2nh, T1=2nh+1")
    e("v_and_b32 v2, 15, v1")
    e("v_lshrrev_b32 v6, 2, v2")
    e("v_lshrrev_b32 v7, 5, v1")
    e("v_lshl_add_u32 v7, v7, 3, v6")
    e("v_lshlrev_b32 v7, 8, v7")
    e("v_lshrrev_b32 v8, 4, v1")
    e("v_and_b32 v8, 1, v8")
    e("v_lshlrev_b32 v8, 5, v8")
    e("v_add_u32 v7, v7, v8")
    e("v_and_b32 v8, 3, v2")
    e("v_lshlrev_b32 v8, 3, v8")
    e("v_add_u32 v7, v7, v8")
    e(f"s_lshl_b32 s{sT0}, s{sNH}, 1")
    e(f"v_xor_b32 v8, s{sT0}, v6")
    e("v_lshl_add_u32 v11, v8, 6, v7")
    e("v_xor_b32 v8, 1, v8")
    e("v_lshl_add_u32 v12, v8, 6, v7")
    for t in range(3):
        e(f"v_add_u32 v{vAD + 6 * t}, {STG * t}, v11")
        e(f"v_add_u32 v{vAD + 6 * t + 1}, {STG * t}, v12")
        e(f"v_add_u32 v{vAD + 6 * t + 2}, {STG * t}, v10")
        for kk in range(1, 4):
            e(f"v_xor_b32 v{vAD + 6 * t + 2 + kk}, {32 * kk}, v{vAD + 6 * t + 2}")
    e(f"v_lshlrev_b32 v{vH}, 4, v1")
    c("operand addresses: cs tile (part*4 + 2nh + T), mean tile (2rh + a)")
    e(f"s_lshl_b32 s{sT0}, s{sNH}, 11")
    e(f"s_add_u32 s{sT0}, s{sT0}, {L_CS}")
    e(f"v_add_u32 v10, s{sT0}, v{vH}")
    e(f"s_lshl_b32 s{sT0}, s{sRH}, 11")
    e(f"s_add_u32 s{sT0}, s{sT0}, {L_MN}")
    e(f"v_add_u32 v11, s{sT0}, v{vH}")
    c("h store base: (4mt + 2rh)*HRT + (8nt + 4nh)*1024")
    e(f"s_lshl_b32 s{sT0}, s{sMT}, 1")
    e(f"s_add_u32 s{sT0}, s{sT0}, s{sRH}")
    e(f"s_mul_i32 s{sHB}, s{sT0}, {2 * HRT}")
    e(f"s_lshl_b32 s{sT1}, s{sNT}, 1")
    e(f"s_add_u32 s{sT1}, s{sT1}, s{sNH}")
    sig_h(sT0, sT1, 3)
    e(f"s_lshl_b32 s{sT1}, s{sT1}, 12")
    e(f"s_add_u32 s{sHB}, s{sHB}, s{sT1}")
    e(f"s_mov_b32 s{sSGX}, 0xff")
    e(f"s_mov_b32 s{sWM}, 0")
    e(f"s_mov_b32 s{sNU}, 1")
    e(f"s_mov_b32 s{sNS}, 0")
    e(f"v_mov_b32 v14, {L_ST}")
    e("v_mov_b32 v15, 1")
    e("s_waitcnt lgkmcnt(0)")
    stamp(0)
    make_srd(S_WS, P_WS, 0x1000000)
    if TW & 2:
        c("touch pages used later: d_debug now; own h lines, w_down fragments, d_out after a while")
        make_srd(S_WG, P_DBG, 256)
        make_srd(S_X, P_OUT, 2048 * 1024)
        e(f"v_mul_u32_u24 v232, {HRT}, v1")
        e(f"v_add_u32 v232, s{sHB}, v232")
        e(f"s_mov_b32 s3, {WS_FREE}")
        e("v_writelane_b32 v232, s3, 2")
        e("s_lshl_b32 s3, s2, 13")
        e(f"s_lshl_b32 s4, s{sW}, 11")
        e("s_add_u32 s3, s3, s4")
        e("s_mov_b64 exec, 1")
        e(f"buffer_load_dword v233, off, {sr(S_WG, 4)}, 0 offset:192 sc1")
        for _ in range(TWS):
            e("s_sleep 8")
        e("s_mov_b64 exec, 7")
        e(f"buffer_load_dword v233, v232, {sr(S_WS, 4)}, 0 offen")
        e("s_mov_b64 exec, 1")
        e(f"buffer_load_dword v233, off, {sr(S_X, 4)}, s3")
        e("s_mov_b64 exec, -1")
    if XPF:
        c("L2 prefetch: W rows 64(mt%8).. of the other part, x slabs 2+2(nt%3), 3+2(nt%3)")
        for _ in range(XSL):
            e("s_sleep 4")
        make_srd(S_X, P_Q, 2048 * 1024)
        e(f"s_cmp_ge_u32 s{sMT}, 8")
        e(f"s_cselect_b32 s{S_WG}, s{P_WG}, s{P_WU}")
        e(f"s_cselect_b32 s{S_WG + 1}, s{P_WG + 1}, s{P_WU + 1}")
        e(f"s_and_b32 s{S_WG + 1}, s{S_WG + 1}, 0xffff")
        e(f"s_mov_b32 s{S_WG + 2}, {512 * 2752}")
        e(f"s_mov_b32 s{S_WG + 3}, 0x00020000")
        e("v_lshrrev_b32 v2, 4, v1")
        e("v_and_b32 v3, 15, v1")
        e("v_lshlrev_b32 v3, 4, v3")
        e("v_lshl_add_u32 v4, v2, 10, v3")
        e("v_mul_u32_u24 v2, 2752, v2")
        e("v_add_u32 v3, v2, v3")
        e(f"s_and_b32 s3, s{sMT}, 7")
        e("s_lshl_b32 s3, s3, 2")
        e(f"s_add_u32 s3, s3, s{sW}")
        e(f"s_mul_i32 s3, s3, {16 * 2752}")
        e(f"s_lshl_b32 s{sT0}, s{sNT}, 8")
        e(f"s_add_u32 s3, s3, s{sT0}")
        e(f"s_mul_i32 s{sT0}, s{sNT}, 11")
        e(f"s_lshr_b32 s{sT0}, s{sT0}, 5")
        e(f"s_mul_i32 s{sT0}, s{sT0}, 3")
        e(f"s_sub_u32 s{sT0}, s{sNT}, s{sT0}")
        e(f"s_lshl_b32 s{sT0}, s{sT0}, 8")
        e(f"s_lshl_b32 s4, s{sMT}, 2")
        e(f"s_add_u32 s4, s4, s{sW}")
        e("s_lshl_b32 s4, s4, 15")
        e(f"s_add_u32 s4, s4, s{sT0}")
        e("s_add_u32 s4, s4, 256")
        for j in range(8):
            if XPF & 1:
                e(f"buffer_load_dwordx4 v[232:235], v4, {sr(S_X, 4)}, s4 offen")
                e("s_add_u32 s4, s4, 4096")
            if j < 4 and XPF & 2:
                e(f"buffer_load_dwordx4 v[236:239], v3, {sr(S_WG, 4)}, s3 offen")
                e(f"s_add_u32 s3, s3, {4 * 2752}")

    M = []
    R = []

    def rd(ins, reg, n, slab):
        R.append(dict(ins=ins, regs=set(range(reg, reg + n)), slab=slab))
        return len(R) - 1

    def rdA(s, kk, a, reg):
        return rd(f"ds_read_b128 {vr(reg, 4)}, v{vAD + 6 * (s % 3) + 2 + kk} offset:{4096 * a}", reg, 4, s)

    def rdB(s, kk, part, T, reg):
        return [rd(f"ds_read_b64_tr_b16 {vr(reg + 2 * u, 2)}, v{vAD + 6 * (s % 3) + T} "
                   f"offset:{part * 16384 + (16 * kk + 4 * u) * 256}", reg + 2 * u, 2, s) for u in range(2)]

    def mf(acc, b, a, needs, first=False):
        cc = "0" if first else vr(acc, 16)
        M.append(dict(ins=f"v_mfma_f32_32x32x16_bf16 {vr(acc, 16)}, {vr(b, 4)}, {vr(a, 4)}, {cc}", needs=needs,
                      regs=set(range(b, b + 4)) | set(range(a, a + 4)), bar=None, side=None))

    for s in range(7):
        for kk in range(4):
            st = kk & 1
            a0 = rdA(s, kk, 0, AF + 8 * st)
            b = [rdB(s, kk, ti >> 1, ti & 1, BF + 16 * st + 4 * ti) for ti in range(4)]
            a1 = rdA(s, kk, 1, AF + 8 * st + 4)
            for m in range(8):
                a, ti = m >> 2, m & 3
                mf(ACC + 16 * m, BF + 16 * st + 4 * ti, AF + 8 * st + 4 * a, [a1 if a else a0] + b[ti], s == 0 and kk == 0)
                if kk == 3 and m == 0:
                    M[-1]["bar"] = s
    VM = []

    def epilogue(a, T):
        G, U = ACC + 16 * (4 * a + T), ACC + 16 * (4 * a + 2 + T)
        rs = vr(RSV + 2 * a, 2)
        last = (a, T) == (1, 1)
        s = []
        for f in range(2):
            for r in range(8 * f, 8 * f + 8, 2):
                if last:
                    s += [f"v_pk_mul_f32 {vr(G + r, 2)}, {vr(G + r, 2)}, {rs}",
                          f"v_pk_mul_f32 {vr(U + r, 2)}, {vr(U + r, 2)}, {rs}"]
                else:
                    s += pk("mul", G + r, G + r, RSV + 2 * a) + pk("mul", U + r, U + r, RSV + 2 * a)
                s += [f"v_cvt_pk_bf16_f32 v{G + r}, 0, v{G + r}",
                      f"v_cvt_pk_bf16_f32 v{G + r + 1}, 0, v{G + r + 1}",
                      f"v_cvt_pk_bf16_f32 v{U + r}, 0, v{U + r}",
                      f"v_cvt_pk_bf16_f32 v{U + r + 1}, 0, v{U + r + 1}"]
                if last:
                    s += [f"v_pk_mul_f32 {vr(G + r, 2)}, {vr(G + r, 2)}, {vr(U + r, 2)}"]
                else:
                    s += pk("mul", G + r, G + r, U + r)
                s += [f"v_cvt_pk_bf16_f32 v{G + r // 2}, v{G + r}, v{G + r + 1}"]
            s += [f"s_add_u32 s{sT0}, s{sHB}, {a * HRT + (2 * T + f) * 1024}",
                  f"buffer_store_dwordx4 {vr(G + 4 * f, 4)}, v{vH}, {sr(S_WS, 4)}, s{sT0} offen{STH}"]
        return s

    rA = {}
    extra = []
    for gi, (a, T) in enumerate([(0, 0), (0, 1), (1, 0), (1, 1)]):
        for kk in range(4):
            n = 4 * gi + kk
            if T == 0:
                rA[kk] = rdA(7, kk, a, AF + 4 * kk)
            slot = BF + 8 * (n % 4)
            bg = rdB(7, kk, 0, T, slot)
            bu = rdB(7, kk, 1, T, slot + 4)
            mf(ACC + 16 * (4 * a + T), slot, AF + 4 * kk, [rA[kk]] + bg)
            mf(ACC + 16 * (4 * a + 2 + T), slot + 4, AF + 4 * kk, [rA[kk]] + bu)
            if gi == 0 and kk == 1:
                for aa in range(2):
                    extra.append(rd(f"ds_read_b128 {vr(MO + 4 * aa, 4)}, v11 offset:{1024 * aa}", MO + 4 * aa, 4, 7))
                    extra.append(rd(f"ds_read_b32 v{RSV + 2 * aa}, v9 offset:{128 * aa}", RSV + 2 * aa, 1, 7))
                    extra.append(rd(f"ds_read_b32 v{RSV + 2 * aa + 1}, v9 offset:{128 * aa}", RSV + 2 * aa + 1, 1, 7))
        for part in range(2):
            cid = rd(f"ds_read_b128 {vr(CO + 4 * part, 4)}, v10 offset:{4096 * part + 1024 * T}", CO + 4 * part, 4, 7)
            mf(ACC + 16 * (4 * a + 2 * part + T), CO + 4 * part, MO + 4 * a, [cid] + extra)
        M[-1]["side"] = epilogue(a, T)
    first_use = {}
    for i, m in enumerate(M):
        for r in m["needs"]:
            first_use.setdefault(r, i)
    for ri, r in enumerate(R):
        r["after"] = max([i for i in range(first_use[ri]) if M[i]["regs"] & r["regs"]], default=-1)
    LQ = []
    nxt = [0]
    slab_ok = [0]

    def issue(i, n):
        while n > 0 and nxt[0] < len(R):
            r = R[nxt[0]]
            if r["after"] > i or r["slab"] > slab_ok[0] or len(LQ) >= 14:
                break
            e(r["ins"])
            LQ.append(nxt[0])
            nxt[0] += 1
            n -= 1

    def lwait(ids):
        pend = [LQ.index(x) for x in ids if x in LQ]
        for x in ids:
            assert x < nxt[0], "read not issued"
        if pend:
            last = max(pend)
            e(f"s_waitcnt lgkmcnt({len(LQ) - 1 - last})")
            del LQ[:last + 1]

    e("s_barrier")
    stamp(1)
    issue(-1, 10)
    side = []
    for i, m in enumerate(M):
        while any(x >= nxt[0] for x in m["needs"]):
            k = nxt[0]
            issue(i - 1, 1)
            assert nxt[0] > k, (i, m, R[k], LQ)
        lwait(m["needs"])
        e(m["ins"])
        if m["bar"] is not None:
            assert all(R[x]["slab"] > m["bar"] for x in range(nxt[0], len(R)))
            e("s_waitcnt lgkmcnt(0)")
            LQ.clear()
            e("s_barrier")
            slab_ok[0] = m["bar"] + 1
            if m["bar"] == 3:
                if TW & 2:
                    e("s_waitcnt vmcnt(0)")
                stamp(2)
            if m["bar"] == 6:
                stamp(3)
        if m["side"]:
            side.append(("gate", i + 2))
            side.extend(m["side"])
        issue(i, RPG)
        n = SPG
        while side and n > 0:
            if isinstance(side[0], tuple):
                if side[0][1] > i:
                    break
                side.pop(0)
                continue
            e(side.pop(0))
            n -= 1
    assert not LQ and nxt[0] == len(R)
    if not BL:
        e("s_mov_b64 exec, 1")
        e("ds_add_u32 v14, v15")
        e("s_mov_b64 exec, -1")
    while side:
        x = side.pop(0)
        if isinstance(x, tuple):
            e("s_nop 15")
            e("s_nop 3")
        else:
            e(x)
    stamp(4)
    e(f"s_mov_b32 s{sZ}, 1")
    if BL:
        c("GEMM2 B fragments from LDS (staged by the helper waves)")
        e(f"s_mul_i32 s{sT0}, s{sRH}, 22528")
        e(f"s_cmp_eq_u32 s{sNH}, 0")
        e(f"s_cselect_b32 s{sT1}, {2 * STG}, 0")
        e(f"s_add_u32 s{sT0}, s{sT0}, s{sT1}")
        e(f"v_add_u32 v2, s{sT0}, v{vH}")
        e(f"s_mov_b32 s{sT0}, 15")
        lds_wait(8, sT0)
        for i in range(22):
            e(f"ds_read_b128 {vr(168 + 4 * i, 4)}, v2 offset:{1024 * i}")
        e("v_mov_b32 v15, 1")
        e("s_waitcnt lgkmcnt(0)")
        e("s_mov_b64 exec, 1")
        e("ds_add_u32 v14, v15")
        e("s_mov_b64 exec, -1")
        e(f"s_mov_b32 s{sWM}, -1")
    e("s_branch g2_unit")

    sH, sWB, sXB, sLB, sPM, sMBX = 65, 66, 67, 68, 69, 70
    sEX = 72
    S_OWN = 76
    vX0, vX1, vWD, vPO = 10, 11, 12, 13
    PW, PX = 16, 32
    T = 64
    e("k1_help:")
    e(f"s_sub_u32 s{sH}, s{sW}, 4")
    c("partial sources: W rows 64(mt%8) + 16j + l/4, cols 128nt + 32h + 8(l%4) ; x rows 128mt + 32h + 8j + l/8, K slab nt%8")
    e("v_lshrrev_b32 v2, 2, v1")
    e("v_mul_u32_u24 v2, 2752, v2")
    e("v_and_b32 v3, 3, v1")
    e("v_lshl_add_u32 v8, v3, 4, v2")
    e(f"s_and_b32 s{sT0}, s{sMT}, 7")
    e(f"s_mul_i32 s{sT0}, s{sT0}, {64 * 2752}")
    e(f"s_lshl_b32 s{sT1}, s{sNT}, 8")
    e(f"s_add_u32 s{sT0}, s{sT0}, s{sT1}")
    e(f"s_lshl_b32 s3, s{sH}, 6")
    e(f"s_add_u32 s3, s3, s{sT0}")
    e("v_lshrrev_b32 v2, 3, v1")
    e("v_and_b32 v3, 7, v1")
    e("v_lshlrev_b32 v4, 4, v3")
    e("v_lshl_add_u32 v9, v2, 10, v4")
    e(f"s_lshl_b32 s{sXB}, s{sMT}, 17")
    e(f"s_lshl_b32 s{sT0}, s{sH}, 15")
    e(f"s_add_u32 s{sXB}, s{sXB}, s{sT0}")
    e(f"s_and_b32 s4, s{sNT}, 7")
    e("s_lshl_b32 s4, s4, 7")
    e(f"s_add_u32 s4, s4, s{sXB}")
    c("x DMA lane offset: row = l>>3, src chunk = (l&7) ^ (l>>4) (^4 for odd 8-row groups)")
    e("v_lshrrev_b32 v4, 4, v1")
    e("v_xor_b32 v3, v3, v4")
    e("v_lshlrev_b32 v3, 4, v3")
    e(f"v_lshl_add_u32 v{vX0}, v2, 10, v3")
    e(f"v_xor_b32 v{vX1}, 64, v{vX0}")
    c("W DMA lane offsets")
    e("v_and_b32 v5, 15, v1")
    e("v_lshlrev_b32 v6, 2, v4")
    e("v_xor_b32 v5, v5, v6")
    e("v_lshlrev_b32 v5, 4, v5")
    e("v_mul_u32_u24 v6, 2752, v4")
    e(f"v_add_u32 v{vWD}, v5, v6")
    e(f"s_mul_i32 s{sWB}, s{sH}, {16 * 2752}")
    e(f"s_add_u32 s{sWB}, s{sWB}, s{sT1}")
    e(f"s_lshl_b32 s{sLB}, s{sH}, 12")
    e("s_waitcnt lgkmcnt(0)")
    stamp(0)
    make_srd(S_X, P_Q, 2048 * 1024)
    make_srd(S_WG, P_WG, 512 * 2752)
    make_srd(S_WU, P_WU, 512 * 2752)
    e(f"s_cmp_ge_u32 s{sMT}, 8")
    e(f"s_cselect_b32 s{S_OWN}, s{S_WU}, s{S_WG}")
    e(f"s_cselect_b32 s{S_OWN + 1}, s{S_WU + 1}, s{S_WG + 1}")
    e(f"s_mov_b32 s{S_OWN + 2}, {512 * 2752}")
    e(f"s_mov_b32 s{S_OWN + 3}, 0x00020000")
    V = VMQ()

    def pf():
        for j in range(4):
            V.emit(f"buffer_load_dwordx4 {vr(PW + 4 * j, 4)}, v8, {sr(S_OWN, 4)}, s3 offen", "pf")
            V.emit(f"buffer_load_dwordx4 {vr(PX + 4 * j, 4)}, v9, {sr(S_X, 4)}, s4 offen", "pf")
            if j < 3:
                e(f"s_add_u32 s3, s3, {16 * 2752}")
                e("s_add_u32 s4, s4, 8192")

    def dma(s):
        st = (s % 3) * STG
        for j in range(4):
            e(f"s_add_u32 m0, s{sLB}, {st + 32768 + j * 1024}")
            e(f"s_add_u32 s{sT0}, s{sXB}, {j * 8192 + 128 * s}")
            V.emit(f"buffer_load_dwordx4 v{vX1 if j & 1 else vX0}, {sr(S_X, 4)}, s{sT0} offen lds", f"s{s}")
        for j in range(4):
            e(f"s_add_u32 s{sT0}, s{sWB}, {(64 * s + 4 * j) * 2752}")
            for part in range(2):
                e(f"s_add_u32 m0, s{sLB}, {st + part * 16384 + j * 1024}")
                V.emit(f"buffer_load_dwordx4 v{vWD}, {sr(S_WU if part else S_WG, 4)}, s{sT0} offen lds", f"s{s}")

    for _ in range(GSLEEP):
        e("s_sleep 8")
    for s in range(NI):
        if s == PFO:
            pf()
        dma(s)
    if PFO == NI:
        pf()
    make_srd(S_WS, P_WS, 0x1000000)
    state_init(0, 4)
    e("s_lshl_b32 s%d, s2, 8" % sMBX)
    e(f"s_add_u32 s{sMBX}, s{sMBX}, {WS_MB + 64}")
    c("flags needed: cs partials of part h/2 (8 bytes) + stats partials (8 bytes)")
    e(f"s_lshr_b32 s{sT0}, s{sH}, 1")
    e(f"s_lshl_b32 s{sT0}, s{sT0}, 3")
    e(f"s_lshl_b32 s{sPM}, 0xff, s{sT0}")
    e(f"s_or_b32 s{sPM}, s{sPM}, 0xff0000")

    def part_cs():
        V.wait("pf")
        stamp(4)
        zload()
        c("partial column sums")
        for j in range(4):
            for d in range(4):
                e(f"v_lshlrev_b32 v{T + 8 * j + 2 * d}, 16, v{PW + 4 * j + d}")
                e(f"v_and_b32 v{T + 8 * j + 2 * d + 1}, 0xffff0000, v{PW + 4 * j + d}")
        for d in range(4):
            epk("add", T + 2 * d, T + 2 * d, T + 8 + 2 * d)
            epk("add", T + 16 + 2 * d, T + 16 + 2 * d, T + 24 + 2 * d)
        for d in range(4):
            epk("add", T + 2 * d, T + 2 * d, T + 16 + 2 * d)
        e("s_nop 1")
        for i in range(4):
            e(f"v_permlane32_swap_b32 v{T + i}, v{T + 4 + i}")
        e("s_nop 1")
        for i in range(0, 4, 2):
            epk("add", T + i, T + i, T + 4 + i)
        e("s_nop 1")
        for i in range(2):
            e(f"v_permlane16_swap_b32 v{T + i}, v{T + 2 + i}")
        e("s_nop 1")
        epk("add", T, T, T + 2)
        for sh in (4, 8):
            e("s_nop 1")
            for i in range(2):
                e(f"v_add_f32_dpp v{T + i}, v{T + i}, v{T + i} row_ror:{sh} row_mask:0xf bank_mask:0xf")
        c("store: lanes with l%16 < 4: col = 32h + 8(l%4) + 2(l/16)")
        e("v_and_b32 v2, 3, v1")
        e("v_lshrrev_b32 v3, 4, v1")
        e("v_lshlrev_b32 v3, 3, v3")
        e("v_lshl_add_u32 v2, v2, 5, v3")
        e(f"s_lshl_b32 s{sT0}, s{sNT}, 4")
        e(f"s_add_u32 s{sT0}, s{sT0}, s{sMT}")
        e(f"s_lshl_b32 s{sT0}, s{sT0}, 9")
        e(f"s_lshl_b32 s{sT1}, s{sH}, 7")
        e(f"s_add_u32 s{sT0}, s{sT0}, s{sT1}")
        e(f"s_add_u32 s{sT0}, s{sT0}, {WS_CS}")
        e("s_mov_b32 exec_lo, 0x000f000f")
        e("s_mov_b32 exec_hi, 0x000f000f")
        V.emit(f"buffer_store_dwordx2 {vr(T, 2)}, v2, {sr(S_WS, 4)}, s{sT0} offen sc1", "pst")
        e("s_mov_b64 exec, -1")

    def part_st():
        c("partial row stats")
        U = T + 8
        SS = T + 48
        for j in range(4):
            for d in range(4):
                e(f"v_lshlrev_b32 v{U + 8 * j + 2 * d}, 16, v{PX + 4 * j + d}")
                e(f"v_and_b32 v{U + 8 * j + 2 * d + 1}, 0xffff0000, v{PX + 4 * j + d}")
        for j in range(4):
            u = U + 8 * j
            q = PX + 4 * j
            epk("mul", q, u, u)
            for d in range(1, 4):
                epk("fma", q, u + 2 * d, u + 2 * d, q)
            epk("add", u, u, u + 2)
            epk("add", u + 4, u + 4, u + 6)
            epk("add", u, u, u + 4)
            e(f"v_add_f32 v{SS + 2 * j}, v{u}, v{u + 1}")
            e(f"v_add_f32 v{SS + 2 * j + 1}, v{q}, v{q + 1}")
        for ctl in ("quad_perm:[1,0,3,2]", "quad_perm:[2,3,0,1]", "row_half_mirror"):
            e("s_nop 1")
            for i in range(8):
                e(f"v_add_f32_dpp v{SS + i}, v{SS + i}, v{SS + i} {ctl} row_mask:0xf bank_mask:0xf")
        e("v_and_b32 v2, 7, v1")
        for j in range(1, 4):
            e(f"v_cmp_eq_u32 vcc, {j}, v2")
            e(f"v_cndmask_b32 v{SS}, v{SS}, v{SS + 2 * j}, vcc")
            e(f"v_cndmask_b32 v{SS + 1}, v{SS + 1}, v{SS + 2 * j + 1}, vcc")
        e("v_lshrrev_b32 v3, 3, v1")
        e("v_lshl_add_u32 v2, v2, 3, v3")
        e("v_lshlrev_b32 v2, 3, v2")
        e(f"s_lshl_b32 s{sT0}, s{sMT}, 4")
        e(f"s_add_u32 s{sT0}, s{sT0}, s{sNT}")
        e(f"s_lshl_b32 s{sT0}, s{sT0}, 10")
        e(f"s_lshl_b32 s{sT1}, s{sH}, 8")
        e(f"s_add_u32 s{sT0}, s{sT0}, s{sT1}")
        e(f"s_add_u32 s{sT0}, s{sT0}, {WS_SP}")
        e("s_mov_b32 exec_lo, 0x0f0f0f0f")
        e("s_mov_b32 exec_hi, 0x0f0f0f0f")
        V.emit(f"buffer_store_dwordx2 {vr(SS, 2)}, v2, {sr(S_WS, 4)}, s{sT0} offen sc1", "pst")
        e("s_mov_b64 exec, -1")

    if PC < 0:
        part_cs()
    if PS < 0:
        part_st()
    c("signal addresses: lanes 0-15: (mt'=l, nt) byte MB_CS + mt ; lanes 16-26: (mt, nt'=l-16) byte MB_ST + nt (nt < 8)")
    e("v_cmp_gt_u32 vcc, 16, v1")
    e(f"v_mov_b32 v2, s{sMT}")
    e(f"v_mov_b32 v3, s{sNT}")
    e("v_subrev_u32 v4, 16, v1")
    e("v_cndmask_b32 v2, v2, v1, vcc")
    e("v_cndmask_b32 v3, v4, v3, vcc")
    if MAP:
        e("v_and_b32 v4, 1, v2")
        e("v_lshl_add_u32 v4, v3, 1, v4")
        e("v_lshrrev_b32 v2, 1, v2")
        e("v_lshl_add_u32 v2, v4, 3, v2")
    else:
        e("v_lshrrev_b32 v4, 3, v2")
        e("v_mul_u32_u24 v4, 88, v4")
        e("v_lshl_add_u32 v4, v3, 3, v4")
        e("v_and_b32 v2, 7, v2")
        e("v_add_u32 v4, v4, v2")
        e("v_mul_u32_u24 v2, 2979, v4")
        e("v_lshrrev_b32 v2, 16, v2")
        e("v_mul_u32_u24 v3, 22, v2")
        e("v_sub_u32 v3, v4, v3")
        e("v_lshl_add_u32 v2, v3, 3, v2")
    e("v_lshlrev_b32 v2, 8, v2")
    e(f"s_add_u32 s{sT0}, s{sMT}, {WS_MB + 64 * 256 + MB_CS}")
    e(f"s_add_u32 s{sT1}, s{sNT}, {WS_MB + 64 * 256 + MB_ST}")
    e(f"v_mov_b32 v3, s{sT1}")
    e(f"v_mov_b32 v4, s{sT0}")
    e("v_cndmask_b32 v3, v3, v4, vcc")
    e(f"v_add_u32 v{vPO}, v2, v3")
    e(f"s_cmp_lt_u32 s{sNT}, 8")
    e(f"s_cselect_b32 s{sEX}, 0x7ffffff, 0xffff") if 0 else None
    e(f"s_mov_b32 s{sEX}, 0xffff")
    e(f"s_cselect_b32 s{sEX}, 0x7ffffff, s{sEX}")
    e(f"s_cmp_eq_u32 s{sH}, 0")
    e(f"s_cselect_b32 s{sEX}, s{sEX}, 0")
    e(f"s_mov_b32 s{sEX + 1}, 0")
    V.wait("s0", extra=" lgkmcnt(0)")
    e("s_barrier")
    stamp(1)
    for s in range(NI, 3):
        dma(s)
    PL = 16
    for s in range(7):
        tags = [f"s{s + 1}"] + (["pst"] if s == SG else [])
        if s == 6:
            T = 40
            if BL:
                V.wait("pl", "s7")
            else:
                V.wait("pl", "s7", "mb2")
                e(f"s_mov_b32 s{sPM}, {3 << (MB_KV - 64)}")
                pollbytes(sMBX, sPM, first=8)
            c("column sum operand: lane = column 64(h&1) + l of part h/2: (c1|c2, c3|0, 0, 0)")
            for a, b in ((0, 1), (2, 3), (4, 5), (6, 7), (0, 2), (4, 6), (0, 4)):
                e(f"v_add_f32 v{PL + a}, v{PL + a}, v{PL + b}")
                epk("add", PL + 8 + 2 * a, PL + 8 + 2 * a, PL + 8 + 2 * b)
            e(f"v_cvt_pk_bf16_f32 v4, 0, v{PL}")
            e(f"v_sub_f32 v{PL}, v{PL}, v4")
            e(f"v_cvt_pk_bf16_f32 v5, 0, v{PL}")
            e(f"v_sub_f32 v{PL}, v{PL}, v5")
            e(f"v_cvt_pk_bf16_f32 v{T + 1}, v{PL}, 0")
            e(f"v_lshrrev_b32 v4, 16, v4")
            e(f"v_or_b32 v{T}, v4, v5")
            for r in range(2, 8):
                e(f"v_mov_b32 v{T + r}, 0")
            e("v_lshrrev_b32 v2, 5, v1")
            e("v_and_b32 v3, 31, v1")
            e("v_lshlrev_b32 v3, 4, v3")
            e("v_lshl_add_u32 v2, v2, 10, v3")
            e(f"s_lshl_b32 s{sT0}, s{sH}, 11")
            e(f"s_add_u32 s{sT0}, s{sT0}, {L_CS}")
            e(f"v_add_u32 v2, s{sT0}, v2")
            e(f"ds_write_b128 v2, {vr(T, 4)}")
            e(f"ds_write_b128 v2, {vr(T + 4, 4)} offset:512")
            c("row statistics of row tile h (lanes 0-31)")
            for x in stats_math(PL + 8, PL + 9, T + 8, T + 16, T + 17):
                e(x)
            e(f"v_xor_b32 v4, 0x80000000, v{T + 12}")
            e(f"v_lshrrev_b32 v{T + 1}, 16, v4")
            e(f"v_or_b32 v{T}, v4, v{T + 1}")
            e("v_cmp_gt_u32 vcc, 32, v1")
            e(f"v_cndmask_b32 v{T}, 0, v{T}, vcc")
            e(f"v_cndmask_b32 v{T + 1}, 0, v{T + 1}, vcc")
            e(f"s_lshl_b32 s{sT0}, s{sH}, 10")
            e(f"s_add_u32 s{sT0}, s{sT0}, {L_MN}")
            e(f"v_lshl_add_u32 v2, v1, 4, s{sT0}")
            e(f"ds_write_b128 v2, {vr(T, 4)}")
            e(f"s_lshl_b32 s{sT0}, s{sH}, 7")
            e(f"s_add_u32 s{sT0}, s{sT0}, {L_RS}")
            e(f"v_lshl_add_u32 v2, v1, 2, s{sT0}")
            e("s_mov_b32 exec_hi, 0")
            e(f"ds_write_b32 v2, v{T + 16}")
            c("nt == 0: (rs, nm) -> ws")
            e(f"s_lshl_b32 s{sT0}, s{sMT}, 10")
            e(f"s_lshl_b32 s{sT1}, s{sH}, 8")
            e(f"s_add_u32 s{sT0}, s{sT0}, s{sT1}")
            e(f"s_add_u32 s{sT0}, s{sT0}, {WS_ST}")
            e("v_lshlrev_b32 v2, 3, v1")
            e(f"s_cmp_eq_u32 s{sNT}, 0")
            e("s_cselect_b32 exec_lo, -1, 0")
            V.emit(f"buffer_store_dwordx2 {vr(T + 16, 2)}, v2, {sr(S_WS, 4)}, s{sT0} offen sc1", "ss")
            e("s_mov_b64 exec, -1")
            e("s_waitcnt lgkmcnt(0)")
        else:
            V.wait(*tags)
        e("s_barrier")
        if s == 3:
            stamp(2)
        if s == 6:
            stamp(3)
        if s == SG:
            c("everybody's partial stores are complete -> wave 4 signals the consumers")
            zcheck()
            e("v_mov_b32 v2, 1")
            e(f"s_mov_b64 exec, {sr(sEX, 2)}")
            V.emit(f"buffer_store_byte v2, v{vPO}, {sr(S_WS, 4)}, 0 offen sc1", "sig")
            e("s_mov_b64 exec, -1")
        if s == S_POLL:
            V.emit(f"buffer_load_ubyte v8, v1, {sr(S_WS, 4)}, s{sMBX} offen sc1", "mb")
        if s + 3 < 8:
            dma(s + 3)
        if s == PC:
            part_cs()
        if s == PS:
            part_st()
            e("s_waitcnt lgkmcnt(0)")
        if s == 5 and not BL:
            V.emit(f"buffer_load_ubyte v8, v1, {sr(S_WS, 4)}, s{sMBX} offen sc1", "mb2")
        if s == S_POLL + 1:
            V.wait("mb")
            pollbytes(sMBX, sPM, first=8)
            stamp(9 if EB else None)
            if EB:
                c("w_down fragments ready? (vcc = flags of the last read)")
                e(f"s_bfe_u32 s{sT0}, vcc_lo, {0x20000 + MB_KV - 64}")
                e(f"s_cmp_eq_u32 s{sT0}, 3")
                e(f"s_cselect_b32 s{sWM}, -1, 0")
            c("partial loads")
            e(f"s_lshl_b32 s{sT0}, s{sNT}, 13")
            e(f"s_lshr_b32 s{sT1}, s{sH}, 1")
            e(f"s_lshl_b32 s{sT1}, s{sT1}, 12")
            e(f"s_add_u32 s{sT0}, s{sT0}, s{sT1}")
            e(f"s_and_b32 s{sT1}, s{sH}, 1")
            e(f"s_lshl_b32 s{sT1}, s{sT1}, 8")
            e(f"s_add_u32 s{sT0}, s{sT0}, s{sT1}")
            e(f"s_add_u32 s{sT0}, s{sT0}, {WS_CS}")
            e("v_lshlrev_b32 v2, 2, v1")
            for j in range(8):
                V.emit(f"buffer_load_dword v{PL + j}, v2, {sr(S_WS, 4)}, s{sT0} offen offset:{512 * j}", "pl")
            e(f"s_lshl_b32 s{sT0}, s{sMT}, 14")
            e(f"s_lshl_b32 s{sT1}, s{sH}, 8")
            e(f"s_add_u32 s{sT0}, s{sT0}, s{sT1}")
            e(f"s_add_u32 s{sT0}, s{sT0}, {WS_SP}")
            e(f"s_add_u32 s{sT1}, s{sT0}, 4096")
            e("v_and_b32 v2, 31, v1")
            e("v_lshlrev_b32 v2, 3, v2")
            for j in range(8):
                V.emit(f"buffer_load_dwordx2 {vr(PL + 8 + 2 * j, 2)}, v2, {sr(S_WS, 4)}, s{sT1 if j >= 4 else sT0} offen "
                       f"offset:{1024 * (j & 3)}", "pl")
        if EB and s == max(4, S_POLL + 1):
            c("GEMM2 B fragments of this wave + L2 prefetch of a quarter of unit (id/8)&3")
            e("s_lshr_b32 s3, s2, 5")
            e(f"s_mul_i32 s3, s3, {WDT}")
            e(f"s_add_u32 s3, s3, {WS_WD}")
            e("s_bfe_u32 s4, s2, 0x20003")
            if UROT:
                e(f"s_lshr_b32 s{sT1}, s2, 5")
                e(f"s_add_u32 s4, s4, s{sT1}")
                e("s_and_b32 s4, s4, 7")
            e(f"s_mul_i32 s4, s4, {11 * 2048}")
            e(f"s_mul_i32 s{sT0}, s{sH}, 5632")
            e(f"s_add_u32 s4, s4, s{sT0}")
            e("s_add_u32 s4, s4, s3")
            if UROT:
                e(f"s_add_u32 s{sT0}, s{sW}, s{sT1}")
                e(f"s_and_b32 s{sT0}, s{sT0}, 7")
                e(f"s_mul_i32 s{sT0}, s{sT0}, {11 * 2048}")
            else:
                e(f"s_mul_i32 s{sT0}, s{sW}, {11 * 2048}")
            e(f"s_add_u32 s3, s3, s{sT0}")
            e("v_lshlrev_b32 v9, 4, v1")
            ebl = []
            for i in range(22):
                ebl.append(f"buffer_load_dwordx4 {vr(168 + 4 * i, 4)}, v9, {sr(S_WS, 4)}, s3 offen offset:{1024 * (i & 3)}")
                if i & 3 == 3:
                    ebl[-1] += "|s_add_u32 s3, s3, 4096"
            if EB & 2:
                for i in range(6):
                    ebl.append(f"buffer_load_dwordx4 {vr(80 + 4 * i, 4)}, v9, {sr(S_WS, 4)}, s4 offen offset:{1024 * (i & 3)}")
                    if i == 3:
                        ebl[-1] += "|s_add_u32 s4, s4, 4096"
        if EB and s >= max(4, S_POLL + 1):
            n = (0 if EBW else len(ebl)) if s == 6 else EBN
            e(f"s_mov_b32 exec_lo, s{sWM}")
            e(f"s_mov_b32 exec_hi, s{sWM}")
            for x in ebl[:n]:
                for y in x.split("|"):
                    V.emit(y, "eb")
            e("s_mov_b64 exec, -1")
            del ebl[:n]
        if BL and s == 5:
            c("w_down fragments must be ready now")
            e(f"s_cmp_lg_u32 s{sWM}, 0")
            e("s_cbranch_scc1 k1h_wok")
            e(f"s_mov_b32 s{sPM}, {3 << (MB_KV - 64)}")
            pollbytes(sMBX, sPM)
            e("k1h_wok:")
        if BL and s >= 5:
            c("stage the B fragments of compute waves 2(s-5) + h/2: half h&1 (11 KB)")
            e(f"s_lshr_b32 s{sT0}, s{sH}, 1")
            e(f"s_mul_i32 s5, s{sH}, 11264")
            e(f"s_add_u32 s{sT0}, s{sT0}, {2 * (s - 5)}")
            e(f"s_lshr_b32 s{sT1}, s2, 5")
            if UROT:
                e(f"s_add_u32 s{sT0}, s{sT0}, s{sT1}")
                e(f"s_and_b32 s{sT0}, s{sT0}, 7")
            e(f"s_mul_i32 s{sT0}, s{sT0}, 22528")
            e(f"s_mul_i32 s{sT1}, s{sT1}, {WDT}")
            e(f"s_add_u32 s{sT0}, s{sT0}, s{sT1}")
            e(f"s_and_b32 s{sT1}, s{sH}, 1")
            e(f"s_mul_i32 s{sT1}, s{sT1}, 11264")
            e(f"s_add_u32 s{sT0}, s{sT0}, s{sT1}")
            e(f"s_add_u32 s{sT0}, s{sT0}, {WS_WD}")
            for i in range(11):
                e(f"s_add_u32 m0, s5, {(2 * STG if s == 5 else 0) + 1024 * i}")
                V.emit(f"buffer_load_dwordx4 v9, {sr(S_WS, 4)}, s{sT0} offen lds", "bl")
                e(f"s_add_u32 s{sT0}, s{sT0}, 1024")
    if BL:
        e(f"s_lshl_b32 s{sT0}, 1, s{sH}")
        e(f"v_mov_b32 v2, s{sT0}")
        e(f"v_mov_b32 v3, {L_ST}")
        V.wait("bl")
        e("s_mov_b64 exec, 1")
        e("ds_or_b32 v3, v2 offset:8")
        e("s_mov_b64 exec, -1")
    if EBW:
        c("remaining own B loads, at most EBW in flight")
        e(f"s_mov_b32 exec_lo, s{sWM}")
        e(f"s_mov_b32 exec_hi, s{sWM}")
        for k, x in enumerate(ebl):
            if k >= EBW:
                e(f"s_waitcnt vmcnt({EBW - 1})")
            for y in x.split("|"):
                V.emit(y, "eb")
        e("s_mov_b64 exec, -1")
    c("nt == 0: stats flag of row tile h to the 8 consumers of row block 2mt + h/2")
    e(f"s_lshl_b32 s{sT0}, s{sMT}, 1")
    e(f"s_lshr_b32 s{sT1}, s{sH}, 1")
    e(f"s_add_u32 s{sT0}, s{sT0}, s{sT1}")
    e(f"s_and_b32 s{sT1}, s{sH}, 1")
    e(f"s_add_u32 s{sT1}, s{sT1}, {MB_S}")
    sig_h(sT0, sT1, 3)
    e(f"s_cmp_eq_u32 s{sNT}, 0")
    e(f"s_cselect_b32 s{sSGX}, 0xff, 0")
    if not EB:
        e(f"s_mov_b32 s{sWM}, 0")
    e(f"s_mov_b32 s{sNU}, 1")
    e(f"s_mov_b32 s{sNS}, 0")
    e("s_branch g2_unit")
    flush_ool()


def k1_aux():
    S_WD = 44
    sW, sT0, sT1, sN2, sKH, sLB = 62, 63, 64, 65, 66, 67
    sKS = 68
    e("k1_aux:")
    e("v_lshrrev_b32 v2, 6, v0")
    e("v_and_b32 v1, 63, v0")
    e(f"v_readfirstlane_b32 s{sW}, v2")
    e(f"s_and_b32 s{sN2}, s2, 7")
    e(f"s_bfe_u32 s{sKH}, s2, 0x10003")
    e("v_lshrrev_b32 v2, 3, v1")
    e("v_and_b32 v3, 7, v1")
    e("v_lshlrev_b32 v3, 4, v3")
    e("v_lshl_add_u32 v2, v2, 10, v3")
    e(f"s_mul_i32 s{sLB}, s{sW}, 12288")
    e(f"s_mul_i32 s{sT1}, s{sKH}, 43")
    for j in range(6):
        e(f"s_add_u32 s{sT0}, s{sW}, {8 * j}")
        e(f"s_min_u32 s{sT0}, s{sT0}, 42")
        e(f"s_add_u32 s{sKS + j}, s{sT0}, s{sT1}")
    e("s_waitcnt lgkmcnt(0)")
    stamp(0)
    make_srd(S_WD, P_WD, 1376 * 1024)
    make_srd(S_WS, P_WS, 0x1000000)
    e("v_lshlrev_b32 v3, 4, v1")
    c("WG 240: zero all mailboxes (64 KB), then set the flag in d_debug")
    e("s_cmp_lg_u32 s2, 240")
    e("s_cbranch_scc1 aux_nz0")
    e(f"s_lshl_b32 s3, s{sW}, 13")
    e(f"s_add_u32 s3, s3, {WS_MB}")
    for r in range(4):
        e(f"v_mov_b32 v{4 + r}, 0")
    for j in range(8):
        e(f"buffer_store_dwordx4 v[4:7], v3, {sr(S_WS, 4)}, s3 offen sc1")
        e("s_add_u32 s3, s3, 1024")
    e("aux_nz0:")
    if TW & 4:
        c("touch the pages of d_debug and of the w_down fragments early")
        make_srd(S_DB2, P_DBG, 256)
        e(f"s_mov_b32 s3, {WS_FREE}")
        e("s_mov_b64 exec, 1")
        e(f"buffer_load_dword v8, off, {sr(S_DB2, 4)}, 0 offset:192 sc1")
        e(f"buffer_load_dword v8, off, {sr(S_WS, 4)}, s3")
        e("s_mov_b64 exec, -1")
    if ASLEEP:
        e("s_cmp_eq_u32 s2, 240")
        e("s_cbranch_scc1 aux_ns")
        for _ in range(ASLEEP):
            e("s_sleep 16")
        e("aux_ns:")
    e(f"s_lshl_b32 s{sT1}, s{sN2}, 7")
    for j in range(6):
        e(f"s_lshl_b32 s{sT0}, s{sKS + j}, 14")
        e(f"s_add_u32 s{sT0}, s{sT0}, s{sT1}")
        for i in range(2):
            e(f"s_add_u32 m0, s{sLB}, {2048 * j + 1024 * i}")
            if i:
                e(f"s_add_u32 s{sT0}, s{sT0}, 8192")
            e(f"buffer_load_dwordx4 v2, {sr(S_WD, 4)}, s{sT0} offen lds")
    e(f"s_mov_b32 s{sZ}, 0")
    state_init(0 if C7 else 4)
    e("s_cmp_lg_u32 s2, 240")
    e("s_cbranch_scc1 aux_nz")
    make_srd(S_DB2, P_DBG, 256)
    e(f"s_waitcnt vmcnt({14 if TW & 4 else 12})")
    e("s_barrier")
    stamp(1)
    e(f"s_mov_b32 s{sZ}, 1")
    e(f"s_cmp_lg_u32 s{sW}, 0")
    e("s_cbranch_scc1 aux_nz")
    e("v_mov_b32 v14, 1")
    e(f"v_mov_b32 v15, {ZOFF}")
    e("s_mov_b64 exec, 1")
    e(f"buffer_store_dword v14, v15, {sr(S_DB2, 4)}, 0 offen sc1")
    e("s_mov_b64 exec, -1")
    e("aux_nz:")
    c("tr read address: row 4g + li/4 (+8u), col bytes 64ct + 32((l/16)&1) + 8(li%4)")
    e("v_and_b32 v4, 15, v1")
    e("v_lshrrev_b32 v5, 2, v4")
    e("v_lshrrev_b32 v6, 5, v1")
    e("v_lshl_add_u32 v5, v6, 2, v5")
    e("v_lshlrev_b32 v5, 7, v5")
    e("v_bfe_u32 v6, v1, 4, 1")
    e("v_lshl_add_u32 v5, v6, 5, v5")
    e("v_and_b32 v4, 3, v4")
    e("v_lshl_add_u32 v5, v4, 3, v5")
    e(f"v_add_u32 v5, s{sLB}, v5")
    e(f"s_mul_i32 s{sT1}, s{sN2}, {WDT}")
    e(f"s_add_u32 s{sT1}, s{sT1}, {WS_WD}")
    e("s_waitcnt vmcnt(0)")
    stamp(2)
    e("s_cmp_eq_u32 s2, 240")
    e("s_cbranch_scc1 aux_z1")
    zload()
    e("aux_z1:")
    for j in range(6):
        for ct in range(2):
            for u in range(2):
                e(f"ds_read_b64_tr_b16 {vr(16 + 8 * j + 4 * ct + 2 * u, 2)}, v5 offset:{2048 * j + 1024 * u + 64 * ct}")
        if j >= 1:
            e("s_waitcnt lgkmcnt(0)" if j == 1 else "s_waitcnt lgkmcnt(4)")
            e(f"s_lshl_b32 s{sT0}, s{sKS + j - 1}, 11")
            e(f"s_add_u32 s{sT0}, s{sT0}, s{sT1}")
            for ct in range(2):
                e(f"buffer_store_dwordx4 {vr(16 + 8 * (j - 1) + 4 * ct, 4)}, v3, {sr(S_WS, 4)}, s{sT0} offen offset:{1024 * ct} sc1")
    e("s_waitcnt lgkmcnt(0)")
    e(f"s_lshl_b32 s{sT0}, s{sKS + 5}, 11")
    e(f"s_add_u32 s{sT0}, s{sT0}, s{sT1}")
    for ct in range(2):
        e(f"buffer_store_dwordx4 {vr(16 + 40 + 4 * ct, 4)}, v3, {sr(S_WS, 4)}, s{sT0} offen offset:{1024 * ct} sc1")
    zcheck()
    e("s_waitcnt vmcnt(0)")
    e("s_barrier")
    stamp(3)
    c("wave 0: flag to the 32 consumers id = 32 nt2 + l (byte MB_W + kh, GEMM1 WGs: MB_KV + kh)")
    e(f"s_lshl_b32 s{sT0}, s{sN2}, 5")
    e(f"v_add_u32 v4, s{sT0}, v1")
    e(f"v_subrev_u32 v5, {K1_NCONV}, v4")
    e(f"v_cmp_gt_u32 vcc, {K1_NGEMM}, v5")
    e(f"v_mov_b32 v5, {MB_W}")
    e(f"v_mov_b32 v6, {MB_KV}")
    e("v_cndmask_b32 v5, v5, v6, vcc")
    e(f"v_cmp_gt_u32 vcc, {K1_NCONV}, v4")
    e("v_cndmask_b32 v5, v5, 64, vcc")
    e("v_lshl_add_u32 v4, v4, 8, v5")
    c("nt2 < 2: also to the aux WGs 240 + 8 nt2 + (l - 32), byte 64 + kh")
    e(f"s_lshl_b32 s{sT0}, s{sN2}, 3")
    e(f"s_add_u32 s{sT0}, s{sT0}, {240 - 32}")
    e(f"v_add_u32 v5, s{sT0}, v1")
    e("v_lshlrev_b32 v5, 8, v5")
    e("v_add_u32 v5, 64, v5")
    e("v_cmp_gt_u32 vcc, 32, v1")
    e("v_cndmask_b32 v4, v5, v4, vcc")
    e(f"s_add_u32 s{sT0}, s{sKH}, {WS_MB}")
    e("v_mov_b32 v5, 1")
    e(f"s_cmp_lt_u32 s{sN2}, 2")
    e(f"s_cselect_b32 s{sT1}, 0xff, 0")
    e(f"s_cmp_eq_u32 s{sW}, 0")
    e("s_cselect_b32 exec_lo, -1, 0")
    e(f"s_cselect_b32 exec_hi, s{sT1}, 0")
    e(f"buffer_store_byte v5, v4, {sr(S_WS, 4)}, s{sT0} offen sc1")
    e("s_mov_b64 exec, -1")
    if C7:
        e(f"s_cmp_lt_u32 s{sW}, 4")
        e("s_cbranch_scc1 k1c_aux")
    if APF:
        c("pull the fragments of column block kh (conv WGs' tiles) into this XCD's L2")
        e("s_mov_b32 s5, 3")
        e(f"s_cmp_lg_u32 s{sW}, 7")
        e("s_cbranch_scc1 aux_kw")
        e("s_lshl_b32 s4, s2, 8")
        e(f"s_add_u32 s4, s4, {WS_MB + 64}")
        pollbytes(4, 5)
        e(f"v_mov_b32 v14, {L_ST}")
        e("v_mov_b32 v15, -1")
        e("ds_write_b32 v14, v15 offset:8")
        e("s_branch aux_kd")
        e("aux_kw:")
        lds_wait(8, 5)
        e("aux_kd:")
        e(f"s_mul_i32 s{sT0}, s{sKH}, {WDT}")
        e(f"s_mul_i32 s{sT1}, s{sW}, {(22 if C7 else 11) * 2048}")
        e(f"s_add_u32 s{sT0}, s{sT0}, s{sT1}")
        e(f"s_add_u32 s{sT0}, s{sT0}, {WS_WD - (88 * 2048 if C7 else 0)}")
        for i in range(44 if C7 else 22):
            e(f"buffer_load_dwordx4 {vr(80 + 4 * (i % 22), 4)}, v3, {sr(S_WS, 4)}, s{sT0} offen offset:{1024 * (i & 3)}")
            if i & 3 == 3:
                e(f"s_add_u32 s{sT0}, s{sT0}, 4096")
    e(f"s_mov_b32 s{sSGX}, 0")
    e(f"s_mov_b32 s{sSG0}, {WS_MB}")
    e(f"s_mov_b32 s{sSG1}, 0")
    e(f"s_mov_b32 s{sWM}, {3 << MB_W}")
    e(f"s_mov_b32 s{sNU}, 1")
    e(f"s_mov_b32 s{sNS}, 0")
    e("s_branch g2_unit")


CV_KCPY = 4160
CV_T = 117248
CV_TP = 528


def k1_conv():
    S_K, S_V, S_SK, S_SH = 44, 48, 52, 72
    sW, sT0, sT1, sD, sG, sJ, sCH, sRB, sKT, sMBX = 62, 63, 64, 65, 66, 67, 68, 69, 70, 71
    e("k1_conv:")
    e("v_lshrrev_b32 v2, 6, v0")
    e("v_and_b32 v1, 63, v0")
    e(f"v_readfirstlane_b32 s{sW}, v2")
    c("G = id%8 (64-channel group), J = id/8 (256-row block / channel sub-group)")
    e(f"s_and_b32 s{sG}, s2, 7")
    e(f"s_lshr_b32 s{sJ}, s2, 3")
    sGP = 60
    if ROT:
        e(f"s_add_u32 s{sGP}, s{sG}, s{sJ}")
        e(f"s_and_b32 s{sGP}, s{sGP}, 7")
    else:
        e(f"s_mov_b32 s{sGP}, s{sG}")
    c("---- kv phase: rows J*256 + 4*rg.., channels G*64 + cs*8..")
    if KVF:
        c("full rows: WG r: rows 32r + 4w .., lane: 8 channels")
        e("v_lshrrev_b32 v2, 6, v0")
        e("v_lshlrev_b32 v4, 4, v1")
        e("v_lshl_add_u32 v4, v2, 12, v4")
        e(f"s_lshl_b32 s{sT0}, s2, 15")
        e(f"v_add_u32 v4, s{sT0}, v4")
        e("v_subrev_u32 v5, 3072, v4")
        e("v_lshlrev_b32 v6, 6, v1")
    else:
        e("v_lshrrev_b32 v2, 3, v0")
        e("v_and_b32 v3, 7, v0")
        e(f"s_lshl_b32 s{sT0}, s{sJ}, 18")
        e(f"s_lshl_b32 s{sT1}, s{sGP}, 7")
        e(f"s_add_u32 s{sT0}, s{sT0}, s{sT1}")
        e("v_lshlrev_b32 v4, 12, v2")
        e("v_lshl_add_u32 v4, v3, 4, v4")
        e(f"v_add_u32 v4, s{sT0}, v4")
        e("v_subrev_u32 v5, 3072, v4")
        e(f"s_lshl_b32 s{sT1}, s{sGP}, 9")
        e("v_lshlrev_b32 v6, 6, v3")
        e(f"v_add_u32 v6, s{sT1}, v6")
    e("s_waitcnt lgkmcnt(0)")
    stamp(0)
    V = VMQ()
    KD, VD, WD = 16, 44, 60

    def kvloads():
        if TW & 1:
            c("touch every page this wave uses (own lines of the ws regions)")
            make_srd(S_K, P_K, 2048 * 1024)
            make_srd(S_V, P_V, 2048 * 1024)
            make_srd(S_SH, P_SH, 4096)
            make_srd(S_SK, P_SK, 512 * 4096)
            make_srd(S_WS, P_WS, 0x1000000)
            make_srd(S_DB2, P_DBG, 256)
            e(f"s_lshl_b32 s{sCH}, s{sG}, 3")
            e(f"s_add_u32 s{sCH}, s{sCH}, s{sJ}")
            e(f"s_lshl_b32 s{sCH}, s{sCH}, 3")
            e(f"s_add_u32 s{sCH}, s{sCH}, s{sW}")
            e(f"s_lshl_b32 s{sCH}, s{sCH}, 12")
            e(f"s_add_u32 s4, s{sCH}, {WS_Y2}")
            e(f"s_lshl_b32 s3, s{sGP}, 18")
            e(f"s_lshl_b32 s{sT1}, s{sW}, 15")
            e(f"s_add_u32 s3, s3, s{sT1}")
            e(f"s_add_u32 s3, s3, {WS_KV + 3584}")
            e(f"s_lshl_b32 s{sT1}, s{sJ}, 9")
            e(f"s_sub_u32 s3, s3, s{sT1}")
            e("s_mov_b64 exec, 1")
            V.emit(f"buffer_load_dword v252, v4, {sr(S_K, 4)}, 0 offen", "tw")
            V.emit(f"buffer_load_dword v252, v4, {sr(S_V, 4)}, 0 offen", "tw")
            V.emit(f"buffer_load_dword v252, v6, {sr(S_SH, 4)}, 0 offen", "tw")
            V.emit(f"buffer_load_dword v252, off, {sr(S_SK, 4)}, s{sCH}", "tw")
            V.emit(f"buffer_load_dword v252, off, {sr(S_WS, 4)}, s3", "tw")
            V.emit(f"buffer_load_dword v252, off, {sr(S_DB2, 4)}, 0 offset:192 sc1", "tw")
            V.emit(f"buffer_load_dword v252, off, {sr(S_WS, 4)}, s4", "tw")
            e("s_mov_b64 exec, -1")
        for _ in range(CS3):
            e("s_sleep 8")
        e(f"s_cmp_eq_u32 s{sGP}, 3")
        e("s_cbranch_scc1 k1c_ns")
        for _ in range(CSLEEP - CS3):
            e("s_sleep 8")
        e("k1c_ns:")
        make_srd(S_K, P_K, 2048 * 1024)
        make_srd(S_V, P_V, 2048 * 1024)
        make_srd(S_SH, P_SH, 4096)
        for r in range(3):
            V.emit(f"buffer_load_dwordx4 {vr(KD + 4 * r, 4)}, v5, {sr(S_K, 4)}, 0 offen offset:{1024 * r}", "kv")
        for r in range(4):
            V.emit(f"buffer_load_dwordx4 {vr(KD + 12 + 4 * r, 4)}, v4, {sr(S_K, 4)}, 0 offen offset:{1024 * r}", "kv")
        for r in range(4):
            V.emit(f"buffer_load_dwordx4 {vr(VD + 4 * r, 4)}, v4, {sr(S_V, 4)}, 0 offen offset:{1024 * r}", "kv")
        for j in range(4):
            V.emit(f"buffer_load_dwordx4 {vr(WD + 4 * j, 4)}, v6, {sr(S_SH, 4)}, 0 offen offset:{16 * j}", "kv")

    if SKD != 3:
        kvloads()
    make_srd(S_SK, P_SK, 512 * 4096)
    make_srd(S_WS, P_WS, 0x1000000)
    c("channel of this wave: 64G + 8J + w")
    e(f"s_lshl_b32 s{sCH}, s{sG}, 3")
    e(f"s_add_u32 s{sCH}, s{sCH}, s{sJ}")
    e(f"s_lshl_b32 s{sCH}, s{sCH}, 3")
    e(f"s_add_u32 s{sCH}, s{sCH}, s{sW}")
    e(f"s_lshl_b32 s{sKT}, s{sW}, 14")
    e(f"s_mul_i32 s{sT0}, s{sW}, 12928")
    e(f"s_add_u32 s{sT0}, s{sT0}, {65536 - 4 * 12928}")
    e(f"s_cmp_ge_u32 s{sW}, 4")
    e(f"s_cselect_b32 s{sKT}, s{sT0}, s{sKT}")
    e(f"s_add_u32 s{sRB}, s{sKT}, 8320")
    SKR = 232

    def dload():
        e(f"s_lshl_b32 s{sT0}, s{sCH}, 1")
        e(f"s_and_b32 s{sT1}, s{sT0}, 0xfffffffc")
        e(f"s_add_u32 s{P_SD}, s{P_SD}, s{sT1}")
        e(f"s_addc_u32 s{P_SD + 1}, s{P_SD + 1}, 0")
        e(f"s_load_dword s{sD}, {sr(P_SD, 2)}, 0")
        e(f"s_lshl_b32 s{sCH}, s{sCH}, 12")
        e("v_lshlrev_b32 v8, 4, v1")
    dload()

    def skloads():
        if C7:
            e(f"s_cmp_eq_u32 s{sW}, 7")
            e("s_cselect_b64 exec, 0, -1")
        skloads2()
        if C7:
            e("s_mov_b64 exec, -1")

    def skloads2():
        for j in range(4):
            V.emit(f"buffer_load_dwordx4 {vr(SKR + 4 * j, 4)}, v8, {sr(S_SK, 4)}, s{sCH} offen offset:{1024 * j}", "sk")
        for j in range(4):
            V.emit(f"buffer_load_dword v{SKR + 16 + j}, v8, {sr(S_SK, 4)}, s{sCH} offen offset:{1024 * j + 16}", "sk")
    if SKD == 0:
        skloads()
    if SKD == 3:
        skloads()
        kvloads()
    c("kv LDS transpose position: T + (cs*8 + cc)*528 + 504 - 8 rg")
    if KVF:
        e("v_mul_u32_u24 v7, 80, v1")
        e("v_lshlrev_b32 v9, 3, v2")
        e("v_sub_u32 v7, v7, v9")
        e(f"v_add_u32 v7, {CV_T + 56}, v7")
    else:
        e(f"v_mul_u32_u24 v7, {8 * CV_TP}, v3")
        e("v_lshlrev_b32 v9, 3, v2")
        e("v_sub_u32 v7, v7, v9")
        e(f"v_add_u32 v7, {CV_T + 504}, v7")
    state_init(-4 if C8 else 4)
    def pads():
        c("zero pads")
        e("v_lshlrev_b32 v6, 3, v1")
        e(f"v_add_u32 v6, s{sRB}, v6")
        e("v_mov_b32 v10, 0")
        e("v_mov_b32 v11, 0")
        e("ds_write_b64 v6, v[10:11] offset:4096")
        e("v_lshlrev_b32 v6, 2, v1")
        e(f"v_add_u32 v6, s{sKT}, v6")
        e("s_mov_b64 exec, 0xff")
        e("ds_write_b32 v6, v10")
        e(f"ds_write_b32 v6, v10 offset:{CV_KCPY}")
        e("s_mov_b64 exec, -1")
    pads()
    c("addresses of the kv row stores")
    if KVF:
        e("v_bfe_u32 v6, v1, 2, 3")
        e("v_mul_u32_u24 v9, 5120, v6")
        e("v_lshrrev_b32 v6, 5, v1")
        e("v_mul_u32_u24 v6, 80, v6")
        e("v_add_u32 v9, v9, v6")
        e("v_and_b32 v6, 3, v1")
        e("v_lshl_add_u32 v9, v6, 4, v9")
        e(f"s_mul_i32 s{sT1}, s{sW}, 640")
        e(f"s_add_u32 s{sT1}, s{sT1}, {CV_T}")
        e(f"v_add_u32 v9, s{sT1}, v9")
        e("v_lshrrev_b32 v6, 3, v1")
        e("v_and_b32 v10, 7, v1")
        e("v_lshlrev_b32 v10, 4, v10")
        e("v_lshl_add_u32 v10, v6, 13, v10")
        e(f"s_lshl_b32 s3, s{sW}, 18")
        e(f"s_add_u32 s3, s3, {WS_KV + 63 * 128}")
        e(f"s_lshl_b32 s{sT1}, s2, 7")
        e(f"s_sub_u32 s3, s3, s{sT1}")
        c("kv flags: consumers 8l + w, byte 192 + r")
        e(f"s_lshl_b32 s4, s{sW}, 8")
        e("s_add_u32 s4, s4, s2")
        e(f"s_add_u32 s4, s4, {WS_MB + 192}")
        e("v_lshlrev_b32 v11, 11, v1")
    else:
        e("v_lshrrev_b32 v6, 5, v1")
        e("v_and_b32 v10, 31, v1")
        e("v_lshlrev_b32 v10, 4, v10")
        e(f"v_mul_u32_u24 v9, {CV_TP}, v6")
        e("v_add_u32 v9, v9, v10")
        e(f"s_mul_i32 s{sT1}, s{sW}, {8 * CV_TP}")
        e(f"s_add_u32 s{sT1}, s{sT1}, {CV_T}")
        e(f"v_add_u32 v9, s{sT1}, v9")
        e("v_lshl_add_u32 v10, v6, 12, v10")
        e(f"s_lshl_b32 s3, s{sGP}, 18")
        e(f"s_lshl_b32 s{sT1}, s{sW}, 15")
        e(f"s_add_u32 s3, s3, s{sT1}")
        e(f"s_add_u32 s3, s3, {WS_KV + 3584}")
        e(f"s_lshl_b32 s{sT1}, s{sJ}, 9")
        e(f"s_sub_u32 s3, s3, s{sT1}")
        c("kv flag: consumer id 8w + G, byte MB_KV + J")
        e(f"s_lshl_b32 s4, s{sW}, 3")
        e(f"s_add_u32 s4, s4, s{sGP}")
        e("s_lshl_b32 s4, s4, 8")
        e(f"s_add_u32 s4, s4, s{sJ}")
        e(f"s_add_u32 s4, s4, {WS_MB + MB_KV}")
        if C7:
            assert not KVF and not ROT and CEB and CPOL == 2 and C8 and SKD == 1
            c("lane 1: aux WG 240 + 8(w/4) + G, byte 192 + 8(w%4) + J")
            e(f"s_lshr_b32 s{sT0}, s{sW}, 2")
            e(f"s_lshl_b32 s{sT0}, s{sT0}, 3")
            e(f"s_add_u32 s{sT0}, s{sT0}, s{sGP}")
            e(f"s_lshl_b32 s{sT0}, s{sT0}, 8")
            e(f"s_and_b32 s{sT1}, s{sW}, 3")
            e(f"s_lshl_b32 s{sT1}, s{sT1}, 3")
            e(f"s_add_u32 s{sT0}, s{sT0}, s{sT1}")
            e(f"s_add_u32 s{sT0}, s{sT0}, s{sJ}")
            e(f"s_add_u32 s{sT0}, s{sT0}, {WS_MB + 240 * 256 + 192}")
            e(f"s_sub_u32 s{sT0}, s{sT0}, s4")
            e(f"v_mul_lo_u32 v11, v1, s{sT0}")
    e(f"s_lshl_b32 s{sMBX}, s2, 8")
    e(f"s_add_u32 s{sMBX}, s{sMBX}, {WS_MB + 64}")
    e(f"s_mov_b32 s5, {0xff << (MB_KV - 64)}")
    V.wait("kv")
    stamp(1)
    zload()
    if SKD == 1:
        skloads()
    KF, VF, WF = 80, 136, 200
    for cc in range(8):
        for jp in range(2):
            w = WD + 2 * cc + jp
            e(f"v_lshlrev_b32 v{WF + (2 * jp) * 8 + cc}, 16, v{w}")
            e(f"v_and_b32 v{WF + (2 * jp + 1) * 8 + cc}, 0xffff0000, v{w}")
    for i in range(28):
        e(f"v_lshlrev_b32 v{KF + 2 * i}, 16, v{KD + i}")
        e(f"v_and_b32 v{KF + 2 * i + 1}, 0xffff0000, v{KD + i}")
    for i in range(16):
        e(f"v_lshlrev_b32 v{VF + 2 * i}, 16, v{VD + i}")
        e(f"v_and_b32 v{VF + 2 * i + 1}, 0xffff0000, v{VD + i}")
    KV = 168
    for cp in range(4):
        for r in range(4):
            d = KV + 8 * r + 2 * cp
            e(f"v_pk_mul_f32 {vr(d, 2)}, {vr(KF + 8 * r + 2 * cp, 2)}, {vr(WF + 3 * 8 + 2 * cp, 2)}")
            for j in range(1, 4):
                e(f"v_pk_fma_f32 {vr(d, 2)}, {vr(KF + 8 * (r + j) + 2 * cp, 2)}, "
                  f"{vr(WF + (3 - j) * 8 + 2 * cp, 2)}, {vr(d, 2)}")
            e(f"v_pk_mul_f32 {vr(d, 2)}, {vr(d, 2)}, {vr(VF + 8 * r + 2 * cp, 2)}")
        for cc in (2 * cp, 2 * cp + 1):
            o = 16 + 2 * cc
            e(f"v_cvt_pk_bf16_f32 v{o}, v{KV + 24 + cc}, v{KV + 16 + cc}")
            e(f"v_cvt_pk_bf16_f32 v{o + 1}, v{KV + 8 + cc}, v{KV + cc}")
            e(f"ds_write_b64 v7, {vr(o, 2)} offset:{cc * (5120 if KVF else CV_TP)}")
    e("s_waitcnt lgkmcnt(0)")
    e("s_barrier")
    c("wave w: channels 8w..8w+7 of the group: full-line stores (2 channels x 512 B per instruction)")
    for j in range(4):
        e(f"ds_read_b128 {vr(16 + 4 * j, 4)}, v9 offset:{160 * j if KVF else 2 * j * CV_TP}")
    for j in range(4):
        e(f"s_waitcnt lgkmcnt({3 - j})")
        V.emit(f"buffer_store_dwordx4 {vr(16 + 4 * j, 4)}, v10, {sr(S_WS, 4)}, s3 offen{STK}", "st")
        e(f"s_add_u32 s3, s3, {65536 if KVF else 8192}")
    if SKD == 2:
        skloads()

    def ktwork():
        e(f"v_add_u32 v7, s{sKT}, v8")
        V.wait("sk")
        for j in range(4):
            d = SKR + 4 * j
            t = 32 + 4 * j
            e(f"ds_write_b128 v7, {vr(d, 4)} offset:{32 + 1024 * j}")
            e(f"v_alignbit_b32 v{t}, v{d + 1}, v{d}, 16")
            e(f"v_alignbit_b32 v{t + 1}, v{d + 2}, v{d + 1}, 16")
            e(f"v_alignbit_b32 v{t + 2}, v{d + 3}, v{d + 2}, 16")
            e(f"v_alignbit_b32 v{t + 3}, v{SKR + 16 + j}, v{d + 3}, 16")
            e(f"ds_write_b128 v7, {vr(t, 4)} offset:{CV_KCPY + 32 + 1024 * j}")
        e(f"v_lshlrev_b32 v12, 16, v{SKR}")
        e("s_mov_b64 exec, 1")
        e(f"ds_write_b32 v7, v12 offset:{CV_KCPY + 28}")
        e("s_mov_b64 exec, -1")

    if SKD != 2:
        ktwork()
    zcheck()
    e("v_mov_b32 v13, 1")
    V.wait("st")
    if KVF:
        e("s_mov_b64 exec, 0xff")
        V.emit(f"buffer_store_byte v13, v11, {sr(S_WS, 4)}, s4 offen sc1", "fl")
    elif C7:
        e("s_mov_b64 exec, 3")
        V.emit(f"buffer_store_byte v13, v11, {sr(S_WS, 4)}, s4 offen sc1", "fl")
    else:
        e("s_mov_b64 exec, 1")
        V.emit(f"buffer_store_byte v13, off, {sr(S_WS, 4)}, s4 sc1", "fl")
    e("s_mov_b64 exec, -1")
    stamp(2)
    if SKD == 2:
        ktwork()
    sAX = 72
    if C7:
        e(f"s_mov_b32 s{sAX}, 0")
        with ool("k1c_aux"):
            c("aux WG 240 + 8a + G, waves 0-3: channel 64G + 8(4a + w) + 7")
            e(f"s_and_b32 s{sG}, s2, 7")
            e(f"s_bfe_u32 s{sJ}, s2, 0x10003")
            e(f"s_lshl_b32 s{sJ}, s{sJ}, 2")
            e(f"s_add_u32 s{sJ}, s{sJ}, s{sW}")
            e(f"s_lshl_b32 s{sCH}, s{sG}, 3")
            e(f"s_add_u32 s{sCH}, s{sCH}, s{sJ}")
            e(f"s_lshl_b32 s{sCH}, s{sCH}, 3")
            e(f"s_add_u32 s{sCH}, s{sCH}, 7")
            e(f"s_lshl_b32 s{sKT}, s{sW}, 14")
            e(f"s_add_u32 s{sRB}, s{sKT}, 8320")
            make_srd(S_SK, P_SK, 512 * 4096)
            dload()
            skloads2()
            pads()
            zcheck()
            ktwork()
            e(f"s_lshl_b32 s{sMBX}, s2, 8")
            e(f"s_add_u32 s{sMBX}, s{sMBX}, {WS_MB + 192}")
            e(f"s_lshl_b32 s{sT0}, s{sW}, 3")
            e(f"s_lshl_b32 s5, 0xff, s{sT0}")
            e(f"s_mov_b32 s{sAX}, 1")
            e("s_waitcnt lgkmcnt(0)")
    e(f"s_lshl_b32 s{sT0}, s{sD}, 16")
    e(f"s_and_b32 s{sD}, s{sD}, 0xffff0000")
    e(f"s_bitcmp1_b32 s{sCH}, 12")
    e(f"s_cselect_b32 s{sD}, s{sD}, s{sT0}")
    c("MFMA phase addresses")
    ACC = 16
    AR = [48, 112]
    BR = [80, 144]
    vKT, vR, vA = 200, 201, 202
    e("v_and_b32 v2, 15, v1")
    e("v_lshrrev_b32 v3, 4, v1")
    e("v_lshlrev_b32 v4, 1, v2")
    e("v_lshlrev_b32 v5, 4, v3")
    e("v_sub_u32 v4, v4, v5")
    e(f"v_add_u32 v4, {32 - 14}, v4")
    e("v_and_b32 v5, 1, v2")
    e("v_cmp_eq_u32 vcc, 0, v5")
    e("v_mov_b32 v5, 0")
    e(f"v_mov_b32 v6, {CV_KCPY - 2}")
    e("s_nop 1")
    e("v_cndmask_b32 v5, v5, v6, vcc")
    e("v_add_u32 v4, v4, v5")
    e(f"v_add_u32 v{vKT}, s{sKT}, v4")
    e("v_lshlrev_b32 v4, 5, v2")
    e("v_lshl_add_u32 v4, v3, 4, v4")
    e(f"v_sub_u32 v4, {4080 - 3584}, v4")
    e(f"v_add_u32 v{vR}, s{sRB}, v4")
    e("v_lshlrev_b32 v4, 5, v2")
    e("v_lshl_add_u32 v4, v3, 3, v4")
    e(f"v_sub_u32 v5, {4088 - 3584}, v4")
    e(f"v_add_u32 v5, s{sRB}, v5")
    c("GEMM2 interface: flag byte MB_C + 8J + w to the 32 consumers 32G + l")
    e(f"s_lshl_b32 s{sSG0}, s{sG}, 13")
    e(f"s_bfe_u32 s{sT0}, s{sCH}, 0x6000c")
    e(f"s_add_u32 s{sSG0}, s{sSG0}, s{sT0}")
    e(f"s_add_u32 s{sSG0}, s{sSG0}, {WS_MB + MB_C}")
    e(f"s_mov_b32 s{sSG1}, 8")
    e(f"s_mov_b32 s{sSGX}, -1")
    if C8:
        e(f"s_mov_b32 s{sNS}, 0")
        e(f"s_mov_b32 s{sNU}, 1")
    else:
        e(f"s_mov_b32 s{sNS}, 1")
        e(f"s_cmp_lt_u32 s{sW}, 4")
        e(f"s_cselect_b32 s{sNU}, 2, 0")
    if KVF:
        e(f"s_and_b32 s3, s{sCH}, 0xffffe000")
        e(f"s_bfe_u32 s{sT0}, s{sCH}, 0x1000c")
        e(f"s_lshl_b32 s{sT0}, s{sT0}, 6")
        e(f"s_add_u32 s3, s3, s{sT0}")
        e(f"s_add_u32 s3, s3, {WS_KV}")
        e("v_lshrrev_b32 v6, 2, v1")
        e("v_and_b32 v7, 3, v1")
        e("v_lshlrev_b32 v7, 4, v7")
        e("v_lshl_add_u32 v7, v6, 7, v7")
        e("s_mov_b32 s5, 0x80000000")
    else:
        e(f"s_add_u32 s3, s{sCH}, {WS_KV}")

    def crlist(ci, st, kinds="AB"):
        d0 = 2 * ci + 1
        r = []
        if "A" in kinds:
            for pp in range(4):
                r.append(f"v_add_u32 v{vA + pp}, {32 * d0 + 1024 * pp}, v{vKT}")
        order = [("B", 0)] + [("A", p) for p in range(8)] + [("B", m) for m in range(1, 8)]
        for kind, x in order:
            if kind not in kinds:
                continue
            if kind == "A":
                p = x
                o = 128 * (p & 1)
                r.append(f"ds_read2_b32 {vr(AR[st] + 4 * p, 2)}, v{vA + (p >> 1)} offset0:{o} offset1:{o + 1}")
                r.append(f"ds_read2_b32 {vr(AR[st] + 4 * p + 2, 2)}, v{vA + (p >> 1)} offset0:{o + 2} offset1:{o + 3}")
            else:
                m = x
                r.append(f"ds_read_b128 {vr(BR[st] + 4 * m, 4)}, v{vR} offset:{32 * d0 + 512 * (7 - m)}")
        return r

    sOF = 73
    if C7:
        c("waves 4-6 start with chunk 2 (wave 7 does their chunks 0, 1)")
        e(f"s_cmp_ge_u32 s{sW}, 4")
        e(f"s_cselect_b32 s{sOF}, 128, 0")
        e(f"v_add_u32 v{vKT}, s{sOF}, v{vKT}")
        e(f"v_add_u32 v{vR}, s{sOF}, v{vR}")
    e("s_waitcnt lgkmcnt(0)")
    for x in crlist(0, 0, "A"):
        e(x)
    if C7:
        e(f"s_cmp_lg_u32 s{sAX}, 0")
        e("s_cbranch_scc1 k1c_ap")
    e(f"s_cmp_lg_u32 s{sW}, 7")
    e("s_cbranch_scc1 k1c_kw")
    if KVF:
        e("s_mov_b32 s80, 0")
        e("k1c_kp:")
        e(f"buffer_load_ubyte v14, v1, {sr(S_WS, 4)}, s{sMBX} offen offset:128 sc1")
        e(f"buffer_load_ubyte v15, v1, {sr(S_WS, 4)}, s{sMBX} offen sc1")
        e("s_waitcnt vmcnt(0)")
        e("v_cmp_ne_u32 vcc, 0, v14")
        e("s_add_u32 s80, s80, 1")
        e("s_cmp_eq_u64 vcc, -1")
        e("s_cbranch_scc1 k1c_kpd")
        e("s_sleep 1")
        e("s_cmp_lt_u32 s80, 0x40000")
        e("s_cbranch_scc1 k1c_kp")
        e("k1c_kpd:")
        e("v_cmp_ne_u32 vcc, 0, v15")
    else:
        pollbytes(sMBX, 5)
    e(f"v_mov_b32 v14, {L_ST}")
    e("s_or_b32 s81, vcc_lo, s5")
    e("v_mov_b32 v15, s81")
    e("ds_write_b32 v14, v15 offset:8")
    e("s_branch k1c_help" if C7 else "s_branch k1c_kd")
    if C7:
        e("k1c_ap:")
        e(f"s_sub_u32 s{sT1}, s{sMBX}, 192")
        e(f"s_mov_b32 s{sT0}, {3 << MB_W}")
        pollbytes(sT1, sT0)
        pollbytes(sMBX, 5)
        e("v_mov_b32 v15, 3")
        e(f"s_sub_u32 s{sMBX}, s{sMBX}, 128")
        e("s_branch k1c_kd")
    e("k1c_kw:")
    lds_wait(8, 5)
    e("k1c_kd:")
    c("own channel kvR row -> LDS R")
    for j in range(4):
        e(f"s_add_u32 m0, s{sRB}, {1024 * j}")
        e(f"buffer_load_dwordx4 v8, {sr(S_WS, 4)}, s3 offen offset:{1024 * j} lds sc1") if 0 else None
        e(f"buffer_load_dwordx4 v{7 if KVF else 8}, {sr(S_WS, 4)}, s3 offen lds")
        e(f"s_add_u32 s3, s3, {2048 if KVF else 1024}")
    if CPRIO == 1:
        e(f"s_cmp_lt_u32 s{sW}, 4")
        e("s_cbranch_scc0 k1c_p1")
        e("s_setprio 2")
        e("k1c_p1:")
    if C7:
        e(f"s_lshl_b32 s{sT0}, 0x100, s{sW}")
        e(f"v_mov_b32 v12, {L_ST}")
        e(f"v_mov_b32 v13, s{sT0}")
    e("s_waitcnt vmcnt(0)")
    stamp(3)
    if C7:
        e("s_mov_b64 exec, 1")
        e("ds_or_b32 v12, v13 offset:8")
        e("s_mov_b64 exec, -1")
    for x in crlist(0, 0, "B"):
        e(x)

    def bsetup():
        c("w_down fragments ready -> B fragments of the GEMM2 unit are loaded under the MFMAs")
        e("v_readfirstlane_b32 s81, v15")
        e("s_lshr_b32 s4, s2, 5")
        e(f"s_add_u32 s{sT0}, s{sW}, s4") if UROT else e(f"s_mov_b32 s{sT0}, s{sW}")
        e(f"s_and_b32 s{sT0}, s{sT0}, 7")
        e(f"s_mul_i32 s{sT0}, s{sT0}, 22528")
        e(f"s_mul_i32 s4, s4, {WDT}")
        e(f"s_add_u32 s4, s4, s{sT0}")
        e(f"s_add_u32 s4, s4, {WS_WD}")
        e("s_and_b32 s81, s81, 3")
        e("s_cmp_eq_u32 s81, 3")
        e(f"s_cselect_b32 s{sWM}, -1, 0")
        e(f"s_cselect_b32 s{sWM + 1}, -1, 0")
    bsetup()
    if C7:
        e(f"v_subrev_u32 v{vKT}, s{sOF}, v{vKT}")
        e(f"v_subrev_u32 v{vR}, s{sOF}, v{vR}")
        for r in range(32):
            e(f"v_mov_b32 v{ACC + r}, 0")
        e(f"s_cmp_ge_u32 s{sW}, 4")
        e("s_cbranch_scc1 k1c_c2")
    if not CEB:
        e(f"s_mov_b32 s{sWM}, 0")

    def bload(i):
        return [f"s_add_u32 s{sT0}, s4, {1024 * i}", f"s_mov_b32 exec_lo, s{sWM}", f"s_mov_b32 exec_hi, s{sWM}",
                f"buffer_load_dwordx4 {vr(168 + 4 * i, 4)}, v8, {sr(S_WS, 4)}, s{sT0} offen", "s_mov_b64 exec, -1"]

    early = [i for i in range(22) if i not in (0, 1, 8, 9)] if CEB else []
    KVR = 80
    for ci in range(8):
        st = ci & 1
        if C7 and ci == 2:
            e("k1c_c2:")
        if CPRIO == 2 and C7 and PSH and ci >= 2:
            e(f"s_setprio {3 - ci // 2}")
            if min(3, 3 - (ci - PSH) // 2) != 3 - ci // 2:
                e(f"s_cmp_lt_u32 s{sW}, 4")
                e(f"s_cbranch_scc1 k1c_pr{ci}")
                e(f"s_setprio {min(3, 3 - (ci - PSH) // 2)}")
                e(f"k1c_pr{ci}:")
        elif CPRIO == 2 and ci % 2 == 0:
            e(f"s_setprio {3 - ci // 2}")
        e("s_waitcnt lgkmcnt(0)")
        rl = []
        if ci < 7:
            rl = crlist(ci + 1, st ^ 1)
            for _ in range(4):
                e(rl.pop(0))
            if ci >= (2 if C7 else 1):
                for k in range(4 if C7 and ci < 5 else 3):
                    if early:
                        rl += [bload(early.pop(0)), []]
        if ci == 7 and CPOL == 1:
            e(f"s_sub_u32 s{sT1}, s{sMBX}, 64")
            e(f"s_cmp_eq_u32 s{sW}, 7")
            e("s_cselect_b64 exec, -1, 0")
            e(f"buffer_load_ubyte v206, v1, {sr(S_WS, 4)}, s{sT1} offen sc1")
            e("s_mov_b64 exec, -1")
        if ci == 7:
            rl += [f"ds_read_b64 {vr(KVR + 2 * n, 2)}, v5 offset:{512 * (7 - n)}" for n in range(8)]
            rl += [[], [], [], ["s_waitcnt lgkmcnt(0)"]]
            vl = []
            for n in range(8):
                k0, k1 = KVR + 2 * n, KVR + 2 * n + 1
                t = 48 + 4 * n
                vl += [f"v_and_b32 v{t}, 0xffff0000, v{k1}", f"v_lshlrev_b32 v{t + 1}, 16, v{k1}",
                       f"v_and_b32 v{t + 2}, 0xffff0000, v{k0}", f"v_lshlrev_b32 v{t + 3}, 16, v{k0}"]
                vl += [f"v_mul_f32 v{t + i}, s{sD}, v{t + i}" for i in range(4)]
                vl += [f"v_cvt_pk_bf16_f32 v{t + i}, 0, v{t + i}" for i in range(4)]
            rl += [vl[i:i + 4] for i in range(0, 96, 4)]
        for m in range(8):
            for p in range(8 - m):
                cc = "0" if (ci == 0 and m == 0) else vr(ACC + 4 * (m + p), 4)
                e(f"v_mfma_f32_16x16x32_bf16 {vr(ACC + 4 * (m + p), 4)}, {vr(AR[st] + 4 * p, 4)}, "
                  f"{vr(BR[st] + 4 * m, 4)}, {cc}")
                if rl:
                    x = rl.pop(0)
                    for y in (x if isinstance(x, list) else [x]):
                        e(y)
        assert not rl
    assert not early
    if C7:
        e(f"s_cmp_lt_u32 s{sW}, 4")
        e("s_cbranch_scc1 k1c_na")
        e(f"s_lshl_b32 s5, 0x10000, s{sW}")
        e(f"s_lshl_b32 s{sT0}, s{sW}, 13")
        e(f"s_add_u32 s{sT0}, s{sT0}, {CV_T - 4 * 8192}")
        e(f"v_add_u32 v12, s{sT0}, v8")
        lds_wait(8, 5)
        for n in range(8):
            e(f"ds_read_b128 {vr(80 + 4 * n, 4)}, v12 offset:{1024 * n}")
        for n in range(8):
            e(f"s_waitcnt lgkmcnt({7 - n})")
            for i in range(4):
                e(f"v_add_f32 v{ACC + 4 * n + i}, v{ACC + 4 * n + i}, v{80 + 4 * n + i}")
        e("k1c_na:")
    stamp(9)
    c("epilogue: y2 = bf16(bf16(y) + bf16(kv*D)), store y2T")
    e(f"s_add_u32 s3, s{sCH}, {WS_Y2}")
    for n in range(8):
        a = ACC + 4 * n
        t = 48 + 4 * n
        if n == 7:
            e("s_nop 3")
        for i in range(4):
            e(f"v_cvt_pk_bf16_f32 v{a + i}, 0, v{a + i}")
        for i in range(0, 4, 2):
            epk("add", a + i, a + i, t + i)
        e(f"v_cvt_pk_bf16_f32 v{a}, v{a}, v{a + 1}")
        e(f"v_cvt_pk_bf16_f32 v{a + 1}, v{a + 2}, v{a + 3}")
        e(f"buffer_store_dwordx2 {vr(a, 2)}, v4, {sr(S_WS, 4)}, s3 offen offset:{512 * n}{STC}")
    stamp(4)
    if CPOL == 2:
        c("waves 0 and 7 read the mailbox while their stores drain")
        assert CEB and not CGATE
        e(f"s_sub_u32 s{sT1}, s{sMBX}, 64")
        e("v_mov_b32 v6, 0")
        e(f"s_add_u32 s{sT0}, s{sW}, 1")
        e(f"s_and_b32 s{sT0}, s{sT0}, 6")
        e("s_cselect_b64 exec, 0, -1")
        e(f"buffer_load_ubyte v6, v1, {sr(S_WS, 4)}, s{sT1} offen sc1")
        for i in (0, 1, 8, 9):
            for x in bload(i):
                e(x)
        e(f"v_lshlrev_b32 v12, s{sSG1}, v1")
        e("v_mov_b32 v13, 1")
        e("s_waitcnt vmcnt(5)")
        e("s_mov_b32 exec_hi, 0")
        e(f"buffer_store_byte v13, v12, {sr(S_WS, 4)}, s{sSG0} offen sc1")
        e("s_mov_b64 exec, -1")
        stamp(9 if env('G2S', 0) else None)
        e(f"s_mov_b32 s{sSGX}, 0")
        e("s_waitcnt vmcnt(5)")
        e("v_cmp_ne_u32 vcc, 0, v6")
        e(f"v_mov_b32 v14, {L_ST}")
        e("s_mov_b32 s81, vcc_lo")
        e("v_mov_b32 v15, s81")
        e("s_mov_b64 exec, 1")
        e("ds_or_b32 v14, v15 offset:4")
        e("s_mov_b64 exec, -1")
    if CPOL == 1:
        e(f"s_cmp_lg_u32 s{sW}, 7")
        e("s_cbranch_scc1 k1c_np")
        e("s_waitcnt vmcnt(8)")
        e("v_cmp_ne_u32 vcc, 0, v206")
        e(f"v_mov_b32 v14, {L_ST}")
        e("s_mov_b32 s81, vcc_lo")
        e("v_mov_b32 v15, s81")
        e("ds_write_b32 v14, v15 offset:4")
        e("k1c_np:")
    if C7:
        with ool("k1c_help"):
            c("wave 7: own B fragments, then chunks 0, 1 of the channels of waves 4, 5, 6")
            bsetup()
            for i in range(22):
                if i not in (0, 1, 8, 9):
                    for x in bload(i):
                        e(x)
            e(f"v_subrev_u32 v{vKT}, {128 + 3 * 12928}, v{vKT}")
            e(f"v_subrev_u32 v{vR}, {128 + 3 * 12928}, v{vR}")
            e(f"v_add_u32 v12, {CV_T}, v8")
            e("s_mov_b32 s5, 0x1000")
            e(f"s_setprio {HPRIO}")
            e("k1c_hl:")
            lds_wait(8, 5)
            for x in crlist(0, 0):
                e(x)
            for ci in range(2):
                e("s_waitcnt lgkmcnt(0)")
                rl = crlist(1, 1) if ci == 0 else []
                for _ in range(4 if rl else 0):
                    e(rl.pop(0))
                for m in range(8):
                    for p in range(8 - m):
                        cc = "0" if (ci == 0 and m == 0) else vr(ACC + 4 * (m + p), 4)
                        e(f"v_mfma_f32_16x16x32_bf16 {vr(ACC + 4 * (m + p), 4)}, {vr(AR[ci] + 4 * p, 4)}, "
                          f"{vr(BR[ci] + 4 * m, 4)}, {cc}")
                        if rl:
                            e(rl.pop(0))
            e(f"v_add_u32 v{vKT}, 12928, v{vKT}")
            e(f"v_add_u32 v{vR}, 12928, v{vR}")
            e(f"s_lshl_b32 s{sT0}, s5, 8")
            e(f"v_mov_b32 v13, s{sT0}")
            e(f"v_mov_b32 v14, {L_ST}")
            e("s_nop 7")
            e("s_nop 7")
            for n in range(8):
                e(f"ds_write_b128 v12, {vr(ACC + 4 * n, 4)} offset:{1024 * n}")
            e("s_waitcnt lgkmcnt(0)")
            e("s_mov_b64 exec, 1")
            e("ds_or_b32 v14, v13 offset:8")
            e("s_mov_b64 exec, -1")
            e("v_add_u32 v12, 8192, v12")
            e("s_lshl_b32 s5, s5, 1")
            e("s_cmp_lt_u32 s5, 0x8000")
            e("s_cbranch_scc1 k1c_hl")
            for i in (0, 1, 8, 9):
                for x in bload(i):
                    e(x)
            e(f"s_mov_b32 s{sSGX}, 0")
    if C8:
        e(f"v_mov_b32 v14, {L_ST}")
        e("v_mov_b32 v15, 1")
        e("s_mov_b64 exec, 1")
        e("ds_add_u32 v14, v15")
        e("s_mov_b64 exec, -1")
    if CPRIO:
        e("s_setprio 0")
    if CGATE:
        c("own flag, then wait until all waves of the WG have issued their stores")
        e(f"v_lshlrev_b32 v12, s{sSG1}, v1")
        e("s_waitcnt vmcnt(0)")
        e("s_mov_b32 exec_hi, 0")
        e(f"buffer_store_byte v15, v12, {sr(S_WS, 4)}, s{sSG0} offen sc1")
        e("s_mov_b64 exec, -1")
        e(f"s_mov_b32 s{sSGX}, 0")
        e("s_mov_b32 s80, 0")
        e("k1c_g:")
        e("ds_read_b32 v13, v14")
        e("s_waitcnt lgkmcnt(0)")
        e(f"v_readfirstlane_b32 s{sT0}, v13")
        e("s_add_u32 s80, s80, 1")
        e("s_nop 2")
        e(f"s_cmp_ge_i32 s{sT0}, 4")
        e("s_cbranch_scc1 k1c_gd")
        e("s_sleep 2")
        e("s_cmp_lt_u32 s80, 0x400000")
        e("s_cbranch_scc1 k1c_g")
        e("k1c_gd:")
    if CEB and CPOL != 2:
        for i in (0, 1, 8, 9):
            for x in bload(i):
                e(x)
    e(f"s_cmp_lg_u32 s{sWM + 1}, 0")
    e("s_cbranch_scc1 g2_unit")
    if C7:
        e(f"s_cmp_lg_u32 s{sAX}, 0")
        e(f"s_cselect_b32 s{sWM}, {3 << MB_W}, s{sWM}")
        e("s_cbranch_scc1 g2_unit")
    e("s_mov_b32 s5, 3")
    pollbytes(sMBX, 5)
    e("s_branch g2_unit")
    flush_ool()


G2S = env('G2S', 0)
HKN = 0


def gemm2():
    S_X, S_OUT = 44, 48
    sMT2, sNT2, sW, sT0, sT1 = 60, 61, 62, 63, 64
    sU, sAB, sBB, sHM, sMB, sFIRST, sY, sXO, sMB3, sYO = 65, 66, 67, 68, 69, 70, 71, 72, 73, 74
    ACC2, BF2, AF2 = 16, 168, 80
    XR = 4
    YR, SR_ = 80, 84

    def hook(n):
        e(f"v_lshlrev_b32 v12, s{sSG1}, v1")
        e("v_mov_b32 v13, 1")
        e(f"s_waitcnt vmcnt({n})")
        e(f"s_mov_b32 exec_lo, s{sSGX}")
        e("s_mov_b32 exec_hi, 0")
        e(f"buffer_store_byte v13, v12, {sr(S_WS, 4)}, s{sSG0} offen sc1")
        e("s_mov_b64 exec, -1")
        e(f"s_mov_b32 s{sSGX}, 0")

    def xloads(part=0):
        make_srd(S_X, P_Q, 2048 * 1024)
        make_srd(S_OUT, P_OUT, 2048 * 1024)
        c("x / out offset: row 64mt2 + 8w, col 64nt2 + l")
        e(f"s_lshl_b32 s{sXO}, s{sMT2}, 3")
        e(f"s_add_u32 s{sXO}, s{sXO}, s{sW}")
        e(f"s_lshl_b32 s{sYO}, s{sXO}, 4")
        e(f"s_lshl_b32 s{sT0}, s{sNT2}, 18")
        e(f"s_add_u32 s{sYO}, s{sYO}, s{sT0}")
        e(f"s_add_u32 s{sYO}, s{sYO}, {WS_Y2}")
        e(f"s_lshl_b32 s{sXO}, s{sXO}, 13")
        e(f"s_lshl_b32 s{sT0}, s{sNT2}, 7")
        e(f"s_add_u32 s{sXO}, s{sXO}, s{sT0}")
        e(f"s_add_u32 s{sT0}, s{sXO}, 4096")
        e("v_lshlrev_b32 v3, 1, v1")
        for r in range(8):
            e(f"v_mov_b32 v{XR + r}, 0")
        if part == 0:
            return

    def xloads2():
        e(f"s_add_u32 s{sT0}, s{sXO}, 4096")
        for r in range(8):
            e(f"buffer_load_short_d16_hi v{XR + r}, v3, {sr(S_X, 4)}, s{sT0 if r >= 4 else sXO} offen offset:{1024 * (r & 3)}")

    def stloads():
        e(f"s_lshr_b32 s{sT0}, s{sXO}, 13")
        e(f"s_lshl_b32 s{sT0}, s{sT0}, 6")
        e(f"s_add_u32 s{sT0}, s{sT0}, {WS_ST}")
        for j in range(4):
            e(f"buffer_load_dwordx4 {vr(SR_ + 4 * j, 4)}, off, {sr(S_WS, 4)}, s{sT0} offset:{16 * j}")

    def yload():
        e("v_lshlrev_b32 v12, 12, v1")
        e(f"buffer_load_dwordx4 {vr(YR, 4)}, v12, {sr(S_WS, 4)}, s{sYO} offen")

    e("g2_unit:")
    e(f"s_lshr_b32 s{sNT2}, s2, 5")
    e(f"s_mul_i32 s{sBB}, s{sNT2}, {WDT}")
    if UROT:
        e(f"s_add_u32 s{sU}, s{sW}, s{sNT2}")
        e(f"s_and_b32 s{sU}, s{sU}, 7")
    else:
        e(f"s_mov_b32 s{sU}, s{sW}")
    e(f"s_mul_i32 s{sT0}, s{sU}, {11 * 2048}")
    e(f"s_add_u32 s{sBB}, s{sBB}, s{sT0}")
    e(f"s_add_u32 s{sBB}, s{sBB}, {WS_WD}")
    e("v_lshlrev_b32 v2, 4, v1")
    e(f"s_lshl_b32 s{sMB}, s2, 8")
    e(f"s_add_u32 s{sMB}, s{sMB}, {WS_MB}")
    e(f"s_add_u32 s{sMB3}, s{sMB}, {MB_C}")
    e(f"s_and_b32 s{sMT2}, s2, 7")
    e(f"s_lshl_b32 s{sMT2}, s{sMT2}, 2")
    e(f"s_bfe_u32 s{sT0}, s2, 0x20003")
    e(f"s_add_u32 s{sMT2}, s{sMT2}, s{sT0}")
    e(f"s_mov_b32 s{sFIRST}, 1")
    e(f"s_mov_b32 s{sY}, 0")
    e(f"s_cmp_eq_u32 s{sNU}, 0")
    e("s_cbranch_scc1 g2_nounit")
    e(f"s_cmp_eq_u32 s{sWM}, -1")
    e("s_cbranch_scc1 g2_bd")
    if HOOKF:
        hook(0)
        stamp(9 if G2S else None)
    e(f"s_cmp_eq_u32 s{sWM}, 0")
    e("s_cbranch_scc1 g2_loop")
    pollbytes(sMB, sWM)
    e("g2_loop:")
    for i in range(22):
        e(f"buffer_load_dwordx4 {vr(BF2 + 4 * i, 4)}, v2, {sr(S_WS, 4)}, s{sBB} offen offset:{1024 * (i & 3)}")
        if i & 3 == 3:
            e(f"s_add_u32 s{sBB}, s{sBB}, 4096")
    e(f"s_cmp_eq_u32 s{sFIRST}, 0")
    e("s_cbranch_scc1 g2_l2")
    if not HOOKF:
        hook(22)
    e("g2_bd_ret:")
    stamp(9 if G2S and not HOOKF else None)
    xloads()
    for r in range(64):
        e(f"v_mov_b32 v{ACC2 + r}, 0")
    e("g2_l2:")
    c("h flags of ks 11u .. 11u+10 (+ stats flags)")
    e(f"s_mul_i32 s{sT0}, s{sU}, 11")
    e(f"s_add_u32 s{sT1}, s{sT0}, 10")
    e(f"s_lshr_b32 s{sT1}, s{sT1}, 2")
    e(f"s_lshl_b32 s{sHM}, 2, s{sT1}")
    e(f"s_lshr_b32 s{sT1}, s{sT0}, 2")
    e(f"s_lshl_b32 s{sT1}, 1, s{sT1}")
    e(f"s_sub_u32 s{sHM}, s{sHM}, s{sT1}")
    e(f"s_or_b32 s{sHM}, s{sHM}, {3 << MB_S}")
    e(f"s_mul_i32 s{sAB}, s{sMT2}, {2 * HRT}")
    e(f"s_lshl_b32 s{sT0}, s{sT0}, 10")
    e(f"s_add_u32 s{sAB}, s{sAB}, s{sT0}")
    e(f"s_add_u32 s{sT1}, s{sAB}, {HRT}")
    e(f"s_cmp_eq_u32 s{sW}, 7")
    e("s_cbranch_scc1 g2_pol")
    lds_wait(4, sHM)
    with ool("g2_pol"):
        c("poller: relay the flags until all h / stats flags are set (two reads in flight)")
        e(f"v_mov_b32 v15, {L_ST}")
        e("ds_read_b32 v12, v15 offset:4")
        e("s_mov_b32 s80, 0")
        e("s_waitcnt lgkmcnt(0)")
        e("v_readfirstlane_b32 s81, v12")
        e("s_nop 3")
        e(f"s_and_b32 s81, s81, {0x3fffff | (3 << MB_S)}")
        e(f"s_cmp_eq_u32 s81, {0x3fffff | (3 << MB_S)}")
        e("s_cbranch_scc1 g2_pol_ret")
        if PWAIT:
            c("start when the own WG's first phase is complete")
            e("g2_pol1:")
            e("ds_read_b32 v12, v15")
            e("s_waitcnt lgkmcnt(0)")
            e("v_readfirstlane_b32 s81, v12")
            e("s_add_u32 s80, s80, 1")
            e("s_nop 2")
            e("s_cmp_ge_i32 s81, 4")
            e("s_cbranch_scc1 g2_pol1d")
            e("s_sleep 2")
            e("s_cmp_lt_u32 s80, 0x400000")
            e("s_cbranch_scc1 g2_pol1")
            e("g2_pol1d:")
            e("s_mov_b32 s80, 0")
            if PWAIT > 1:
                e(f"s_sleep {PWAIT}")
        e("g2_pol2:")
        e(f"buffer_load_ubyte v14, v1, {sr(S_WS, 4)}, s{sMB} offen sc1")
        e("s_waitcnt vmcnt(0)")
        e("v_cmp_ne_u32 vcc, 0, v14")
        e("s_mov_b32 s81, vcc_lo")
        e("v_mov_b32 v12, s81")
        e("s_mov_b64 exec, 1")
        e("ds_or_b32 v15, v12 offset:4")
        e("s_mov_b64 exec, -1")
        e(f"s_and_b32 s81, vcc_lo, {0x3fffff | (3 << MB_S)}")
        e(f"s_cmp_eq_u32 s81, {0x3fffff | (3 << MB_S)}")
        e("s_cbranch_scc1 g2_pol_ret")
        if PGAP:
            e(f"s_sleep {PGAP}")
        e("s_add_u32 s80, s80, 1")
        e("s_cmp_lt_u32 s80, 0x40000")
        e("s_cbranch_scc1 g2_pol2")
        e(f"v_mov_b32 v12, 0x7fffffff")
        e("ds_or_b32 v15, v12 offset:4")
    stamp(5)
    V = VMQ()

    def aload(i):
        j, a = i >> 1, i & 1
        V.emit(f"buffer_load_dwordx4 {vr(AF2 + 4 * i, 4)}, v2, {sr(S_WS, 4)}, s{sT1 if a else sAB} offen offset:{1024 * (j & 3)}", f"a{i}")
        if j & 3 == 3 and a:
            e(f"s_add_u32 s{sAB}, s{sAB}, 4096")
            e(f"s_add_u32 s{sT1}, s{sT1}, 4096")
        if i == YPOS:
            e(f"s_cmp_eq_u32 s{sW}, 7")
            e("s_cselect_b64 exec, -1, 0")
            V.emit(f"buffer_load_ubyte v12, v1, {sr(S_WS, 4)}, s{sMB3} offen sc1", "y")
            e("s_mov_b64 exec, -1")
        if i == XPOS:
            xloads2()
            V.q += ["x"] * 8

    for i in range(AW):
        aload(i)
    for j in range(11):
        if j == 9:
            e(f"v_mov_b32 v13, {L_ST}")
            e("ds_read_b64 v[14:15], v13")
            e(f"s_cmp_eq_u32 s{sU}, 7")
            e("s_cbranch_scc1 g2_mfd")
        for a in range(2):
            i = 2 * j + a
            V.wait(f"a{i}")
            if i + AW < 22:
                aload(i + AW)
            for ct in range(2):
                acc = ACC2 + 32 * a + 16 * ct
                e(f"v_mfma_f32_32x32x16_bf16 {vr(acc, 16)}, {vr(AF2 + 8 * j + 4 * a, 4)}, {vr(BF2 + 8 * j + 4 * ct, 4)}, {vr(acc, 16)}")
    e("g2_mfd:")
    e(f"s_sub_u32 s{sNU}, s{sNU}, 1")
    e(f"s_cmp_eq_u32 s{sNU}, 0")
    e("s_cbranch_scc1 g2_ud")
    e(f"s_add_u32 s{sU}, s{sU}, 4")
    e(f"s_add_u32 s{sBB}, s{sBB}, {44 * 2048 - 5 * 4096}")
    e(f"s_mov_b32 s{sFIRST}, 0")
    e("s_nop 7")
    e("s_branch g2_loop")
    e("g2_ud:")
    stamp(6)
    e(f"s_cmp_lg_u32 s{sW}, 7")
    e("s_cbranch_scc1 g2_np")
    e("s_waitcnt vmcnt(0) lgkmcnt(0)")
    e("v_cmp_ne_u32 vcc, 0, v12")
    e("s_cmp_eq_u64 vcc, -1")
    e("s_cbranch_scc0 g2_np")
    e("v_mov_b32 v15, -1")
    e(f"v_mov_b32 v13, {L_ST}")
    e("ds_write_b32 v13, v15 offset:4")
    e("g2_np:")
    c("partial address: slot w + n*256 + ((8a + 2q + g) ^ (n & 15))*16")
    e("v_and_b32 v12, 15, v1")
    e("v_lshrrev_b32 v13, 5, v1")
    e("v_xor_b32 v12, v12, v13")
    e("v_lshlrev_b32 v12, 4, v12")
    e("v_and_b32 v13, 31, v1")
    e("v_lshl_add_u32 v12, v13, 8, v12")
    e(f"s_lshl_b32 s{sT0}, s{sW}, 14")
    e(f"v_add_u32 v12, s{sT0}, v12")
    for k in range(1, 8):
        e(f"v_xor_b32 v{BF2 + k}, {32 * k}, v12")
    e("s_waitcnt vmcnt(0) lgkmcnt(0)")
    stloads()
    e(f"v_readfirstlane_b32 s{sT0}, v14")
    e(f"v_readfirstlane_b32 s{sT1}, v15")
    e("s_nop 3")
    e(f"s_cmp_ge_i32 s{sT0}, 4")
    e("s_cbranch_scc0 g2_cnt")
    with ool("g2_cnt"):
        e("s_mov_b32 s80, 0")
        e(f"v_mov_b32 v14, {L_ST}")
        e("g2_cnt2:")
        e("s_sleep 2")
        e("ds_read_b32 v15, v14")
        e("s_waitcnt lgkmcnt(0)")
        e(f"v_readfirstlane_b32 s{sT0}, v15")
        e("s_add_u32 s80, s80, 1")
        e("s_nop 2")
        e(f"s_cmp_ge_i32 s{sT0}, 4")
        e("s_cbranch_scc1 g2_cnt_ret")
        e("s_cmp_lt_u32 s80, 0x400000")
        e("s_cbranch_scc1 g2_cnt2")
    e(f"s_bitcmp1_b32 s{sT1}, 31")
    e("s_cbranch_scc0 g2_noy")
    e(f"s_mov_b32 s{sY}, 1")
    e("v_lshlrev_b32 v14, 12, v1")
    e(f"buffer_load_dwordx4 {vr(YR, 4)}, v14, {sr(S_WS, 4)}, s{sYO} offen")
    e("g2_noy:")
    for a in range(2):
        for q in range(4):
            k = 4 * a + q
            for ct in range(2):
                e(f"ds_write_b128 v{BF2 + k if k else 12}, {vr(ACC2 + 32 * a + 16 * ct + 4 * q, 4)} offset:{8192 * ct}")
    e("g2_bar:")
    c("final: lane = column, rows 8w .. 8w+7 (chunks 2w, 2w+1)")
    e("v_and_b32 v12, 15, v1")
    e(f"s_lshl_b32 s{sT0}, s{sW}, 1")
    e(f"v_xor_b32 v12, s{sT0}, v12")
    e("v_lshlrev_b32 v12, 4, v12")
    e("v_lshl_add_u32 v12, v1, 8, v12")
    e("v_xor_b32 v13, 16, v12")
    e("v_add_u32 v14, 0x10000, v12")
    e("v_add_u32 v15, 0x10000, v13")
    e("s_waitcnt lgkmcnt(0)")
    e("s_barrier")
    stamp(7)
    P = ACC2
    e(f"v_mov_b32 v2, {L_ST}")
    e("ds_read_b32 v2, v2 offset:4")
    for j in range(4):
        for h in range(2):
            e(f"ds_read_b128 {vr(P + 8 * j + 4 * h, 4)}, v{12 + h} offset:{16384 * j}")
    e("s_waitcnt lgkmcnt(8)")
    e(f"v_readfirstlane_b32 s{sT1}, v2")
    e("v_lshlrev_b32 v2, 12, v1")
    e("s_nop 2")
    e(f"s_lshr_b32 s{sT1}, s{sT1}, 31")
    e(f"s_cmp_gt_u32 s{sT1}, s{sY}")
    e("s_cbranch_scc0 g2_y2n")
    e(f"s_mov_b32 s{sY}, 1")
    e(f"buffer_load_dwordx4 {vr(YR, 4)}, v2, {sr(S_WS, 4)}, s{sYO} offen")
    e("g2_y2n:")
    e(f"s_cmp_lg_u32 s{sNS}, 0")
    e("s_cbranch_scc1 g2_s4")
    for j in range(4):
        for h in range(2):
            e(f"ds_read_b128 {vr(P + 32 + 8 * j + 4 * h, 4)}, v{14 + h} offset:{16384 * j}")
    for j in range(4):
        e(f"s_waitcnt lgkmcnt({6 - 2 * j})")
        for d in range(0, 8, 2):
            e(f"v_pk_add_f32 {vr(P + 8 * j + d, 2)}, {vr(P + 8 * j + d, 2)}, {vr(P + 32 + 8 * j + d, 2)}")
    e("g2_s4:")
    e("s_waitcnt lgkmcnt(0)")
    for a, b in ((0, 1), (2, 3), (0, 2)):
        for d in range(0, 8, 2):
            e(f"v_pk_add_f32 {vr(P + 8 * a + d, 2)}, {vr(P + 8 * a + d, 2)}, {vr(P + 8 * b + d, 2)}")
    for r in range(8):
        e(f"v_cvt_pk_bf16_f32 v{P + r}, 0, v{P + r}")
    e(f"s_cmp_lg_u32 s{sY}, 0")
    e("s_cbranch_scc1 g2_ydone")
    e(f"s_cmp_eq_u32 s{sW}, 7")
    e("s_cbranch_scc1 g2_yp0")
    e(f"s_mov_b32 s{sHM}, 0x80000000")
    lds_wait(4, sHM)
    e("s_branch g2_ypd2")
    e("g2_yp0:")
    e("s_mov_b32 s80, 0")
    e("g2_yp:")
    e(f"buffer_load_ubyte v14, v1, {sr(S_WS, 4)}, s{sMB3} offen sc1")
    e("s_waitcnt vmcnt(0)")
    e("v_cmp_ne_u32 vcc, 0, v14")
    e("s_add_u32 s80, s80, 1")
    e("s_cmp_eq_u64 vcc, -1")
    e("s_cbranch_scc1 g2_ypd")
    e("s_cmp_lt_u32 s80, 0x40000")
    e("s_cbranch_scc1 g2_yp")
    e("g2_ypd:")
    e(f"v_mov_b32 v15, {L_ST}")
    e("v_mov_b32 v14, -1")
    e("ds_write_b32 v15, v14 offset:4")
    e("g2_ypd2:")
    yload()
    e("g2_ydone:")
    stamp(8)
    XN = P + 8
    e("s_waitcnt vmcnt(1)")
    for r in range(8):
        e(f"v_fma_f32 v{XN + r}, v{XR + r}, v{SR_ + 2 * r}, v{SR_ + 2 * r + 1}")
    for r in range(8):
        e(f"v_cvt_pk_bf16_f32 v{XN + r}, 0, v{XN + r}")
    e(f"s_add_u32 s{sT0}, s{sXO}, 4096")
    e("s_waitcnt vmcnt(0)")
    YF = P + 16
    for d in range(4):
        e(f"v_lshlrev_b32 v{YF + 2 * d}, 16, v{YR + d}")
        e(f"v_and_b32 v{YF + 2 * d + 1}, 0xffff0000, v{YR + d}")
    for d in range(0, 8, 2):
        e(f"v_pk_mul_f32 {vr(YF + d, 2)}, {vr(YF + d, 2)}, {vr(XN + d, 2)}")
    for r in range(8):
        e(f"v_cvt_pk_bf16_f32 v{YF + r}, 0, v{YF + r}")
    for d in range(0, 8, 2):
        e(f"v_pk_add_f32 {vr(YF + d, 2)}, {vr(YF + d, 2)}, {vr(XR + d, 2)}")
    for r in range(8):
        e(f"v_cvt_pk_bf16_f32 v{YF + r}, 0, v{YF + r}")
    for d in range(0, 8, 2):
        e(f"v_pk_add_f32 {vr(YF + d, 2)}, {vr(YF + d, 2)}, {vr(P + d, 2)}")
        e(f"v_cvt_pk_bf16_f32 v{YF + d}, v{YF + d}, v{YF + d + 1}")
        s = sT0 if d >= 4 else sXO
        e(f"buffer_store_short v{YF + d}, v3, {sr(S_OUT, 4)}, s{s} offen offset:{1024 * (d & 3)}")
        e(f"buffer_store_short_d16_hi v{YF + d}, v3, {sr(S_OUT, 4)}, s{s} offen offset:{1024 * ((d + 1) & 3)}")
    stamp_flush(S_WS, WS_PROF)
    e("k1_done:")
    e("s_endpgm")
    flush_ool()
    e("g2_bd:")
    e(f"s_cmp_eq_u32 s{sSGX}, 0")
    e("s_cbranch_scc1 g2_bd_ret")
    hook(HKN)
    stamp(9 if G2S else None)
    e("s_branch g2_bd_ret")
    e("g2_nounit:")
    hook(0)
    xloads()
    xloads2()
    e(f"s_mov_b32 s{sHM}, {3 << MB_S}")
    pollbytes(sMB, sHM)
    stloads()
    e("s_branch g2_bar")


def kernel1():
    e(".globl k1_kernel")
    e(".p2align 8")
    e(".type k1_kernel,@function")
    e("k1_kernel:")
    e("s_cmp_ge_u32 s2, 256")
    e("s_cbranch_scc1 k1_done")
    load_ptrs()
    if RID:
        e(f"s_add_u32 s2, s2, {RID}")
        e("s_and_b32 s2, s2, 255")
    e(f"s_cmp_lt_u32 s2, {K1_NCONV}")
    e("s_cbranch_scc1 k1_conv")
    e(f"s_cmp_lt_u32 s2, {K1_NCONV + K1_NGEMM}")
    e("s_cbranch_scc1 k1_gemm")
    k1_aux()
    k1_gemm()
    k1_conv()
    gemm2()


def descriptor(name, nv):
    L.append(".p2align 6")
    L.append(f".amdhsa_kernel {name}")
    L.append(f"  .amdhsa_next_free_vgpr {nv}")
    L.append("  .amdhsa_next_free_sgpr 102")
    L.append(f"  .amdhsa_accum_offset {nv}")
    L.append("  .amdhsa_group_segment_fixed_size 0")
    L.append("  .amdhsa_kernarg_size 104")
    L.append("  .amdhsa_user_sgpr_count 2")
    L.append("  .amdhsa_user_sgpr_kernarg_segment_ptr 1")
    L.append("  .amdhsa_system_sgpr_workgroup_id_x 1")
    L.append(".end_amdhsa_kernel")


def main():
    hdr = open(f"cdna_kernels/{NAME}.s.ref").read().split("\n")
    for line in hdr:
        if line.startswith("; Override") or line.startswith("; grid=") or "@launch" in line:
            continue
        if not line.startswith(";"):
            break
        L.append(line)
    L.append(f"; @launch kernel=k1_kernel grid=(256,1,1) block=(512,1,1) lds=163840")
    L.append('.amdgcn_target "amdgcn-amd-amdhsa--gfx950"')
    L.append(".text")
    kernel1()
    L.append('.section .rodata,"a"')
    descriptor("k1_kernel", 256)
    out = sys.argv[1] if len(sys.argv) > 1 else f"cdna_kernels/{NAME}.s"
    open(out, "w").write("\n".join(L) + "\n")


if __name__ == "__main__":
    main()
```

```python
import os
import sys

NAME = "parallel_sum__ssm_conv_h3__glu_gated_bilinear__prompt"

WS_H = 0
HRT = 88 * 1024
WS_Y2 = 0x600000
WS_ST = 0x800000
WS_CS = 0x880000
WS_SP = 0x8C0000
WS_MB = 0x900000
WS_WD = 0xA00000
WDT = 88 * 2048
WS_KV = 0xC00000
ZOFF = 16
MB_H, MB_W, MB_S = 0, 22, 24
MB_CS, MB_ST, MB_KV = 64, 80, 88
MB_C = 128


def env(k, d):
    return int(os.environ.get(k, str(d)))


PSLEEP = env('PSLEEP', 1)
NI = env('NI', 2)
RPG = env('RPG', 2)
SPG = env('SPG', 6)
S_POLL = env('S_POLL', 3)
SKD = env('SKD', 1)
PFO = env('PFO', 0)
PC = env('PC', 0)
PS = env('PS', 1)
SG = env('SG', 2)
ASLEEP = env('ASLEEP', 0)
CPRIO = env('CPRIO', 2)
MAP = env('MAP', 0)
GSLEEP = env('GSLEEP', 0)
EB = env('EB', 1)
EBN = env('EBN', 8)
CGATE = env('CGATE', 0)
CSLEEP = env('CSLEEP', 8)
C8 = env('C8', 1)
XPF = env('XPF', 0)
XSL = env('XSL', 0)
ROT = env('ROT', 0)
UROT = env('UROT', 1)
APF = env('APF', 1)
BL = env('BL', 1)
CEB = env('CEB', 1)
PGAP = env('PGAP', 1)
CPOL = env('CPOL', 2)
PWAIT = env('PWAIT', 1)
RID = env('RID', 240)
AW = env('AW', 8)
YPOS = env('YPOS', 12)
XPOS = env('XPOS', 12)
KVF = env('KVF', 0)
CS3 = env('CS3', 0)
EBW = env('EBW', 0)
STC = ' sc1'
STH = os.environ.get('STH', ' sc1')
STK = os.environ.get('STK', ' sc1')
HOOKF = env('HOOKF', 1)
TW = env('TW', 0)
PT = env('PT', -1)
PTC = env('PTC', 0)
PTM = os.environ.get('PTM', '')
ZE = env('ZE', 0)
C7 = env('C7', 0)
HPRIO = env('HPRIO', 1)
PSH = env('PSH', 1)
KX = env('KX', 0)
PFP = env('PFP', 0)
KXS = env('KXS', 1)
TWS = env('TWS', 4)
WS_FREE = WS_WD + 0x1F0000
L = []


def e(s=""):
    L.append("    " + s if s and not s.endswith(":") else s)


def c(s):
    L.append("    ; " + s)


PROF = len(sys.argv) > 2 and sys.argv[2] == "prof"
WS_PROF = 0xE00000
SPAIR = [6, 8, 10, 12, 14, 88, 90, 92, 94, 96, 100]
sRT = 83


def stamp(k=None):
    if not PROF or k is None:
        return
    if k == 0:
        e("s_memrealtime s[98:99]")
        e("s_waitcnt lgkmcnt(0)")
        e(f"s_mov_b32 s{sRT}, s98")
        for p in SPAIR:
            e(f"s_mov_b32 s{p}, 0")
    e(f"s_memtime s[{SPAIR[k]}:{SPAIR[k] + 1}]")
    e("s_waitcnt lgkmcnt(0)")


def stamp_flush(srd, base):
    if not PROF:
        return
    stamp(10)
    e("s_memrealtime s[98:99]")
    e("s_waitcnt lgkmcnt(0)")
    e("v_writelane_b32 v255, s98, 62")
    e("s_getreg_b32 s98, hwreg(HW_REG_HW_ID)")
    e("v_writelane_b32 v255, s98, 61")
    e(f"v_writelane_b32 v255, s{sRT}, 63")
    for k, p in enumerate(SPAIR):
        e(f"v_writelane_b32 v255, s{p}, {k}")
    e("v_lshrrev_b32 v253, 6, v0")
    e("v_lshl_add_u32 v253, s2, 3, v253")
    e("v_lshlrev_b32 v253, 8, v253")
    e("v_and_b32 v254, 63, v0")
    e("v_lshl_add_u32 v253, v254, 2, v253")
    e(f"v_add_u32 v253, {base}, v253")
    e(f"buffer_store_dword v255, v253, {sr(srd, 4)}, 0 offen")


OOL = []


class ool:
    def __init__(self, label):
        self.label = label

    def __enter__(self):
        global L
        self.saved = L
        L = []
        L.append(f"{self.label}:")

    def __exit__(self, *a):
        global L
        L.append(f"    s_branch {self.label}_ret")
        OOL.extend(L)
        L = self.saved
        L.append(f"{self.label}_ret:")


def flush_ool():
    L.extend(OOL)
    OOL.clear()


def vr(a, n=1):
    return f"v{a}" if n == 1 else f"v[{a}:{a + n - 1}]"


def sr(a, n=1):
    return f"s{a}" if n == 1 else f"s[{a}:{a + n - 1}]"


def make_srd(d, ptr, nbytes):
    e(f"s_mov_b32 s{d}, s{ptr}")
    e(f"s_and_b32 s{d + 1}, s{ptr + 1}, 0xffff")
    e(f"s_mov_b32 s{d + 2}, {nbytes}")
    e(f"s_mov_b32 s{d + 3}, 0x00020000")


P_Q, P_K, P_V, P_SH, P_SK, P_SD, P_BX, P_WG = 16, 18, 20, 22, 24, 26, 28, 30
P_WU, P_WD, P_OUT, P_DBG, P_WS = 32, 34, 36, 38, 40


def load_ptrs():
    e("s_load_dwordx16 s[16:31], s[0:1], 0")
    e("s_load_dwordx8 s[32:39], s[0:1], 64")
    e("s_load_dwordx2 s[40:41], s[0:1], 96")


S_DB2 = 84
S_WS = 56
_lbl = [0]
sZ = 82


def zload():
    e(f"s_load_dword s{sZ}, {sr(P_DBG, 2)}, {ZOFF}")


def zcheck():
    _lbl[0] += 1
    n = _lbl[0]
    e(f"s_cmp_ge_u32 s{sZ}, 1")
    e(f"s_cbranch_scc1 sig_go{n}")
    make_srd(S_DB2, P_DBG, 256)
    e(f"v_mov_b32 v15, {ZOFF}")
    e("s_mov_b32 s80, 0")
    e(f"zp{n}:")
    e(f"buffer_load_dword v14, v15, {sr(S_DB2, 4)}, 0 offen sc1")
    e("s_waitcnt vmcnt(0)")
    e("v_readfirstlane_b32 s81, v14")
    e("s_nop 3")
    e("s_add_u32 s80, s80, 1")
    e("s_cmp_ge_u32 s81, 1")
    e(f"s_cbranch_scc1 zd{n}")
    e("s_sleep 8")
    e("s_cmp_lt_u32 s80, 0x40000")
    e(f"s_cbranch_scc1 zp{n}")
    e(f"zd{n}:")
    e(f"s_mov_b32 s{sZ}, 1")
    e(f"sig_go{n}:")


def pollbytes(sOff, sMask, first=None):
    _lbl[0] += 1
    n = _lbl[0]
    if first is not None:
        e(f"v_cmp_ne_u32 vcc, 0, v{first}")
        e(f"s_and_b32 s81, vcc_lo, s{sMask}")
        e(f"s_cmp_eq_u32 s81, s{sMask}")
        e(f"s_cbranch_scc1 polled{n}")
    e("s_mov_b32 s80, 0")
    e(f"poll{n}:")
    e(f"buffer_load_ubyte v14, v1, {sr(S_WS, 4)}, s{sOff} offen sc1")
    e("s_waitcnt vmcnt(0)")
    e("v_cmp_ne_u32 vcc, 0, v14")
    e("s_add_u32 s80, s80, 1")
    e(f"s_and_b32 s81, vcc_lo, s{sMask}")
    e(f"s_cmp_eq_u32 s81, s{sMask}")
    e(f"s_cbranch_scc1 polled{n}")
    if PSLEEP:
        e(f"s_sleep {PSLEEP}")
    e("s_cmp_lt_u32 s80, 0x40000")
    e(f"s_cbranch_scc1 poll{n}")
    e(f"polled{n}:")


K1_NCONV = 64
K1_NGEMM = 176
STG = 49152
MISC = 147456
L_CS = MISC
L_MN = MISC + 8192
L_RS = MISC + 12288
L_ST = 163328

sSGX = 42
sWM = 43
sNU = 76
sNS = 77
sSG0, sSG1 = 78, 79


def state_init(val, a=12):
    e(f"v_mov_b32 v{a}, {val}")
    e(f"v_mov_b32 v{a + 1}, 0")
    e(f"v_mov_b32 v{a + 2}, 0")
    e(f"v_mov_b32 v{a + 3}, {L_ST}")
    e(f"ds_write_b96 v{a + 3}, {vr(a, 3)}")
    if SKD == 5:
        e(f"ds_write_b32 v{a + 3}, v{a + 1} offset:12")


def lds_wait(off, sMask):
    _lbl[0] += 1
    n = _lbl[0]
    e(f"v_mov_b32 v14, {L_ST}")
    e("s_mov_b32 s80, 0")
    e(f"lw{n}:")
    e(f"ds_read_b32 v15, v14 offset:{off}")
    e("s_waitcnt lgkmcnt(0)")
    e("v_readfirstlane_b32 s81, v15")
    e("s_add_u32 s80, s80, 1")
    e("s_nop 2")
    e(f"s_and_b32 s81, s81, s{sMask}")
    e(f"s_cmp_eq_u32 s81, s{sMask}")
    e(f"s_cbranch_scc1 lwd{n}")
    e("s_sleep 1")
    e("s_cmp_lt_u32 s80, 0x1000000")
    e(f"s_cbranch_scc1 lw{n}")
    e(f"lwd{n}:")


def sig_h(mt2, byte, t):
    e(f"s_and_b32 s{t}, s{mt2}, 3")
    e(f"s_lshl_b32 s{t}, s{t}, 3")
    e(f"s_lshr_b32 s{sSG0}, s{mt2}, 2")
    e(f"s_add_u32 s{sSG0}, s{sSG0}, s{t}")
    e(f"s_lshl_b32 s{sSG0}, s{sSG0}, 8")
    e(f"s_add_u32 s{sSG0}, s{sSG0}, s{byte}")
    e(f"s_add_u32 s{sSG0}, s{sSG0}, {WS_MB}")
    e(f"s_mov_b32 s{sSG1}, 13")


def stats_math(SX, SQ, T, RS, NM):
    return [f"v_mul_f32 v{T}, 0x3b000000, v{SX}",
            f"v_mul_f32 v{T + 2}, 0x3b000000, v{SQ}",
            f"v_fma_f32 v{T + 2}, -v{T}, v{T}, v{T + 2}",
            f"v_max_f32 v{T + 2}, 0, v{T + 2}",
            f"v_cvt_pk_bf16_f32 v{T + 1}, v{T}, v{T + 2}",
            f"v_lshlrev_b32 v{T + 4}, 16, v{T + 1}",
            f"v_and_b32 v{T + 2}, 0xffff0000, v{T + 1}",
            f"v_add_f32 v{T + 2}, 0x3727c5ac, v{T + 2}",
            f"v_cvt_pk_bf16_f32 v{T + 2}, v{T + 2}, v{T + 2}",
            f"v_and_b32 v{T + 2}, 0xffff0000, v{T + 2}",
            f"v_sqrt_f32 v{T + 2}, v{T + 2}",
            "s_nop 0",
            f"v_cvt_pk_bf16_f32 v{T + 2}, v{T + 2}, v{T + 2}",
            f"v_and_b32 v{T + 2}, 0xffff0000, v{T + 2}",
            f"v_rcp_f32 v{RS}, v{T + 2}",
            "s_nop 0",
            f"v_mul_f32 v{NM}, v{T + 4}, v{RS}",
            f"v_sub_f32 v{NM}, 0, v{NM}"]


def pk(op, d, a, b, c_=None):
    return [f"v_{op}_f32 v{d + i}, v{a + i}, v{b + i}" + (f", v{c_ + i}" if c_ is not None else "") for i in range(2)]


def epk(*a):
    for x in pk(*a):
        e(x)


class VMQ:
    def __init__(self, init=()):
        self.q = list(init)

    def emit(self, x, tag=None):
        e(x)
        if x.startswith("buffer_"):
            self.q.append(tag)

    def n(self, *tags):
        last = max(i for i, t in enumerate(self.q) if t in tags)
        return min(63, len(self.q) - 1 - last)

    def wait(self, *tags, extra=""):
        e(f"s_waitcnt vmcnt({self.n(*tags)}){extra}")


def k1_gemm():
    S_X, S_WG, S_WU = 44, 48, 52
    sMT, sNT, sW, sT0, sT1 = 60, 61, 62, 63, 64
    e("k1_gemm:")
    e("s_sub_u32 s3, s2, %d" % K1_NCONV)
    if MAP:
        c("mt = 2 (t%8) + ((t/8)&1) ; nt = t/16")
        e("s_and_b32 s4, s3, 7")
        e("s_lshl_b32 s4, s4, 1")
        e("s_bfe_u32 s5, s3, 0x10003")
        e(f"s_add_u32 s{sMT}, s4, s5")
        e(f"s_lshr_b32 s{sNT}, s3, 4")
    else:
        c("k = 22*(t%8) + t/8 ; mh = k/88 ; rem = k%88 ; nt = rem/8 ; mt = mh*8 + rem%8")
        e("s_and_b32 s4, s3, 7")
        e("s_mul_i32 s4, s4, 22")
        e("s_lshr_b32 s5, s3, 3")
        e("s_add_u32 s4, s4, s5")
        e("s_cmp_ge_u32 s4, 88")
        e("s_cselect_b32 s5, 88, 0")
        e(f"s_cselect_b32 s{sMT}, 8, 0")
        e("s_sub_u32 s4, s4, s5")
        e(f"s_lshr_b32 s{sNT}, s4, 3")
        e("s_and_b32 s4, s4, 7")
        e(f"s_add_u32 s{sMT}, s{sMT}, s4")
    e("v_lshrrev_b32 v2, 6, v0")
    e("v_and_b32 v1, 63, v0")
    e(f"v_readfirstlane_b32 s{sW}, v2")
    e("s_nop 3")
    e(f"s_cmp_ge_u32 s{sW}, 4")
    e("s_cbranch_scc1 k1_help")

    AF, BF, ACC, vAD = 16, 32, 64, 192
    vH, RSV, CO, MO = 210, 212, 216, 224
    sRH, sNH, sHB = 65, 66, 67
    e(f"s_and_b32 s{sRH}, s{sW}, 1")
    e(f"s_lshr_b32 s{sNH}, s{sW}, 1")
    c("A frag read address: 32768 + r*128 + ((2kk+g) ^ ((r>>1)&7))*16 ; r = 64 rh + 32 a + l%32")
    e(f"s_lshl_b32 s{sT0}, s{sRH}, 6")
    e("v_and_b32 v2, 31, v1")
    e(f"v_add_u32 v6, s{sT0}, v2")
    e("v_lshrrev_b32 v7, 1, v2")
    e("v_and_b32 v7, 7, v7")
    e("v_lshrrev_b32 v8, 5, v1")
    e("v_xor_b32 v7, v7, v8")
    e("v_lshlrev_b32 v7, 4, v7")
    e("v_lshl_add_u32 v7, v6, 7, v7")
    e("v_add_u32 v10, 32768, v7")
    e(f"v_lshlrev_b32 v9, 2, v6")
    e(f"v_add_u32 v9, {L_RS}, v9")
    c("B tr-read lane addresses for tiles T0=2nh, T1=2nh+1")
    e("v_and_b32 v2, 15, v1")
    e("v_lshrrev_b32 v6, 2, v2")
    e("v_lshrrev_b32 v7, 5, v1")
    e("v_lshl_add_u32 v7, v7, 3, v6")
    e("v_lshlrev_b32 v7, 8, v7")
    e("v_lshrrev_b32 v8, 4, v1")
    e("v_and_b32 v8, 1, v8")
    e("v_lshlrev_b32 v8, 5, v8")
    e("v_add_u32 v7, v7, v8")
    e("v_and_b32 v8, 3, v2")
    e("v_lshlrev_b32 v8, 3, v8")
    e("v_add_u32 v7, v7, v8")
    e(f"s_lshl_b32 s{sT0}, s{sNH}, 1")
    e(f"v_xor_b32 v8, s{sT0}, v6")
    e("v_lshl_add_u32 v11, v8, 6, v7")
    e("v_xor_b32 v8, 1, v8")
    e("v_lshl_add_u32 v12, v8, 6, v7")
    for t in range(3):
        e(f"v_add_u32 v{vAD + 6 * t}, {STG * t}, v11")
        e(f"v_add_u32 v{vAD + 6 * t + 1}, {STG * t}, v12")
        e(f"v_add_u32 v{vAD + 6 * t + 2}, {STG * t}, v10")
        for kk in range(1, 4):
            e(f"v_xor_b32 v{vAD + 6 * t + 2 + kk}, {32 * kk}, v{vAD + 6 * t + 2}")
    e(f"v_lshlrev_b32 v{vH}, 4, v1")
    c("operand addresses: cs tile (part*4 + 2nh + T), mean tile (2rh + a)")
    e(f"s_lshl_b32 s{sT0}, s{sNH}, 11")
    e(f"s_add_u32 s{sT0}, s{sT0}, {L_CS}")
    e(f"v_add_u32 v10, s{sT0}, v{vH}")
    e(f"s_lshl_b32 s{sT0}, s{sRH}, 11")
    e(f"s_add_u32 s{sT0}, s{sT0}, {L_MN}")
    e(f"v_add_u32 v11, s{sT0}, v{vH}")
    c("h store base: (4mt + 2rh)*HRT + (8nt + 4nh)*1024")
    e(f"s_lshl_b32 s{sT0}, s{sMT}, 1")
    e(f"s_add_u32 s{sT0}, s{sT0}, s{sRH}")
    e(f"s_mul_i32 s{sHB}, s{sT0}, {2 * HRT}")
    e(f"s_lshl_b32 s{sT1}, s{sNT}, 1")
    e(f"s_add_u32 s{sT1}, s{sT1}, s{sNH}")
    sig_h(sT0, sT1, 3)
    e(f"s_lshl_b32 s{sT1}, s{sT1}, 12")
    e(f"s_add_u32 s{sHB}, s{sHB}, s{sT1}")
    e(f"s_mov_b32 s{sSGX}, 0xff")
    e(f"s_mov_b32 s{sWM}, 0")
    e(f"s_mov_b32 s{sNU}, 1")
    e(f"s_mov_b32 s{sNS}, 0")
    e(f"v_mov_b32 v14, {L_ST}")
    e("v_mov_b32 v15, 1")
    e("s_waitcnt lgkmcnt(0)")
    stamp(0)
    make_srd(S_WS, P_WS, 0x1000000)
    if PT >= 0:
        e("v_lshrrev_b32 v232, 5, v1")
        e(f"v_mul_u32_u24 v232, {HRT}, v232")
        e("v_and_b32 v233, 31, v1")
        e("v_lshl_add_u32 v232, v233, 7, v232")
    if TW & 2:
        c("touch pages used later: d_debug now; own h lines, w_down fragments, d_out after a while")
        make_srd(S_WG, P_DBG, 256)
        make_srd(S_X, P_OUT, 2048 * 1024)
        e(f"v_mul_u32_u24 v232, {HRT}, v1")
        e(f"v_add_u32 v232, s{sHB}, v232")
        e(f"s_mov_b32 s3, {WS_FREE}")
        e("v_writelane_b32 v232, s3, 2")
        e("s_lshl_b32 s3, s2, 13")
        e(f"s_lshl_b32 s4, s{sW}, 11")
        e("s_add_u32 s3, s3, s4")
        e("s_mov_b64 exec, 1")
        e(f"buffer_load_dword v233, off, {sr(S_WG, 4)}, 0 offset:192 sc1")
        for _ in range(TWS):
            e("s_sleep 8")
        e("s_mov_b64 exec, 7")
        e(f"buffer_load_dword v233, v232, {sr(S_WS, 4)}, 0 offen")
        e("s_mov_b64 exec, 1")
        e(f"buffer_load_dword v233, off, {sr(S_X, 4)}, s3")
        e("s_mov_b64 exec, -1")
    if XPF:
        c("L2 prefetch: W rows 64(mt%8).. of the other part, x slabs 2+2(nt%3), 3+2(nt%3)")
        for _ in range(XSL):
            e("s_sleep 4")
        make_srd(S_X, P_Q, 2048 * 1024)
        e(f"s_cmp_ge_u32 s{sMT}, 8")
        e(f"s_cselect_b32 s{S_WG}, s{P_WG}, s{P_WU}")
        e(f"s_cselect_b32 s{S_WG + 1}, s{P_WG + 1}, s{P_WU + 1}")
        e(f"s_and_b32 s{S_WG + 1}, s{S_WG + 1}, 0xffff")
        e(f"s_mov_b32 s{S_WG + 2}, {512 * 2752}")
        e(f"s_mov_b32 s{S_WG + 3}, 0x00020000")
        e("v_lshrrev_b32 v2, 4, v1")
        e("v_and_b32 v3, 15, v1")
        e("v_lshlrev_b32 v3, 4, v3")
        e("v_lshl_add_u32 v4, v2, 10, v3")
        e("v_mul_u32_u24 v2, 2752, v2")
        e("v_add_u32 v3, v2, v3")
        e(f"s_and_b32 s3, s{sMT}, 7")
        e("s_lshl_b32 s3, s3, 2")
        e(f"s_add_u32 s3, s3, s{sW}")
        e(f"s_mul_i32 s3, s3, {16 * 2752}")
        e(f"s_lshl_b32 s{sT0}, s{sNT}, 8")
        e(f"s_add_u32 s3, s3, s{sT0}")
        e(f"s_mul_i32 s{sT0}, s{sNT}, 11")
        e(f"s_lshr_b32 s{sT0}, s{sT0}, 5")
        e(f"s_mul_i32 s{sT0}, s{sT0}, 3")
        e(f"s_sub_u32 s{sT0}, s{sNT}, s{sT0}")
        e(f"s_lshl_b32 s{sT0}, s{sT0}, 8")
        e(f"s_lshl_b32 s4, s{sMT}, 2")
        e(f"s_add_u32 s4, s4, s{sW}")
        e("s_lshl_b32 s4, s4, 15")
        e(f"s_add_u32 s4, s4, s{sT0}")
        e("s_add_u32 s4, s4, 256")
        for j in range(8):
            if XPF & 1:
                e(f"buffer_load_dwordx4 v[232:235], v4, {sr(S_X, 4)}, s4 offen")
                e("s_add_u32 s4, s4, 4096")
            if j < 4 and XPF & 2:
                e(f"buffer_load_dwordx4 v[236:239], v3, {sr(S_WG, 4)}, s3 offen")
                e(f"s_add_u32 s3, s3, {4 * 2752}")

    M = []
    R = []

    def rd(ins, reg, n, slab):
        R.append(dict(ins=ins, regs=set(range(reg, reg + n)), slab=slab))
        return len(R) - 1

    def rdA(s, kk, a, reg):
        return rd(f"ds_read_b128 {vr(reg, 4)}, v{vAD + 6 * (s % 3) + 2 + kk} offset:{4096 * a}", reg, 4, s)

    def rdB(s, kk, part, T, reg):
        return [rd(f"ds_read_b64_tr_b16 {vr(reg + 2 * u, 2)}, v{vAD + 6 * (s % 3) + T} "
                   f"offset:{part * 16384 + (16 * kk + 4 * u) * 256}", reg + 2 * u, 2, s) for u in range(2)]

    def mf(acc, b, a, needs, first=False):
        cc = "0" if first else vr(acc, 16)
        M.append(dict(ins=f"v_mfma_f32_32x32x16_bf16 {vr(acc, 16)}, {vr(b, 4)}, {vr(a, 4)}, {cc}", needs=needs,
                      regs=set(range(b, b + 4)) | set(range(a, a + 4)), bar=None, side=None))

    for s in range(7):
        for kk in range(4):
            st = kk & 1
            a0 = rdA(s, kk, 0, AF + 8 * st)
            b = [rdB(s, kk, ti >> 1, ti & 1, BF + 16 * st + 4 * ti) for ti in range(4)]
            a1 = rdA(s, kk, 1, AF + 8 * st + 4)
            for m in range(8):
                a, ti = m >> 2, m & 3
                mf(ACC + 16 * m, BF + 16 * st + 4 * ti, AF + 8 * st + 4 * a, [a1 if a else a0] + b[ti], s == 0 and kk == 0)
                if kk == 3 and m == 0:
                    M[-1]["bar"] = s
    VM = []

    def epilogue(a, T):
        G, U = ACC + 16 * (4 * a + T), ACC + 16 * (4 * a + 2 + T)
        rs = vr(RSV + 2 * a, 2)
        last = (a, T) == (1, 1)
        s = []
        for f in range(2):
            for r in range(8 * f, 8 * f + 8, 2):
                if last:
                    s += [f"v_pk_mul_f32 {vr(G + r, 2)}, {vr(G + r, 2)}, {rs}",
                          f"v_pk_mul_f32 {vr(U + r, 2)}, {vr(U + r, 2)}, {rs}"]
                else:
                    s += pk("mul", G + r, G + r, RSV + 2 * a) + pk("mul", U + r, U + r, RSV + 2 * a)
                s += [f"v_cvt_pk_bf16_f32 v{G + r}, 0, v{G + r}",
                      f"v_cvt_pk_bf16_f32 v{G + r + 1}, 0, v{G + r + 1}",
                      f"v_cvt_pk_bf16_f32 v{U + r}, 0, v{U + r}",
                      f"v_cvt_pk_bf16_f32 v{U + r + 1}, 0, v{U + r + 1}"]
                if last:
                    s += [f"v_pk_mul_f32 {vr(G + r, 2)}, {vr(G + r, 2)}, {vr(U + r, 2)}"]
                else:
                    s += pk("mul", G + r, G + r, U + r)
                s += [f"v_cvt_pk_bf16_f32 v{G + r // 2}, v{G + r}, v{G + r + 1}"]
            s += [f"s_add_u32 s{sT0}, s{sHB}, {a * HRT + (2 * T + f) * 1024}",
                  f"buffer_store_dwordx4 {vr(G + 4 * f, 4)}, v{vH}, {sr(S_WS, 4)}, s{sT0} offen{STH}"]
        return s

    rA = {}
    extra = []
    for gi, (a, T) in enumerate([(0, 0), (0, 1), (1, 0), (1, 1)]):
        for kk in range(4):
            n = 4 * gi + kk
            if T == 0:
                rA[kk] = rdA(7, kk, a, AF + 4 * kk)
            slot = BF + 8 * (n % 4)
            bg = rdB(7, kk, 0, T, slot)
            bu = rdB(7, kk, 1, T, slot + 4)
            mf(ACC + 16 * (4 * a + T), slot, AF + 4 * kk, [rA[kk]] + bg)
            mf(ACC + 16 * (4 * a + 2 + T), slot + 4, AF + 4 * kk, [rA[kk]] + bu)
            if gi == 0 and kk == 1:
                for aa in range(2):
                    extra.append(rd(f"ds_read_b128 {vr(MO + 4 * aa, 4)}, v11 offset:{1024 * aa}", MO + 4 * aa, 4, 7))
                    extra.append(rd(f"ds_read_b32 v{RSV + 2 * aa}, v9 offset:{128 * aa}", RSV + 2 * aa, 1, 7))
                    extra.append(rd(f"ds_read_b32 v{RSV + 2 * aa + 1}, v9 offset:{128 * aa}", RSV + 2 * aa + 1, 1, 7))
        for part in range(2):
            cid = rd(f"ds_read_b128 {vr(CO + 4 * part, 4)}, v10 offset:{4096 * part + 1024 * T}", CO + 4 * part, 4, 7)
            mf(ACC + 16 * (4 * a + 2 * part + T), CO + 4 * part, MO + 4 * a, [cid] + extra)
        M[-1]["side"] = epilogue(a, T)
    first_use = {}
    for i, m in enumerate(M):
        for r in m["needs"]:
            first_use.setdefault(r, i)
    for ri, r in enumerate(R):
        r["after"] = max([i for i in range(first_use[ri]) if M[i]["regs"] & r["regs"]], default=-1)
    LQ = []
    nxt = [0]
    slab_ok = [0]

    def issue(i, n):
        while n > 0 and nxt[0] < len(R):
            r = R[nxt[0]]
            if r["after"] > i or r["slab"] > slab_ok[0] or len(LQ) >= 14:
                break
            e(r["ins"])
            LQ.append(nxt[0])
            nxt[0] += 1
            n -= 1

    def lwait(ids):
        pend = [LQ.index(x) for x in ids if x in LQ]
        for x in ids:
            assert x < nxt[0], "read not issued"
        if pend:
            last = max(pend)
            e(f"s_waitcnt lgkmcnt({len(LQ) - 1 - last})")
            del LQ[:last + 1]

    e("s_barrier")
    stamp(1)
    issue(-1, 10)
    side = []
    for i, m in enumerate(M):
        while any(x >= nxt[0] for x in m["needs"]):
            k = nxt[0]
            issue(i - 1, 1)
            assert nxt[0] > k, (i, m, R[k], LQ)
        lwait(m["needs"])
        e(m["ins"])
        if m["bar"] is not None:
            assert all(R[x]["slab"] > m["bar"] for x in range(nxt[0], len(R)))
            e("s_waitcnt lgkmcnt(0)")
            LQ.clear()
            e("s_barrier")
            slab_ok[0] = m["bar"] + 1
            if m["bar"] == PT:
                c("read the lines this wave writes later")
                e(f"buffer_load_dword v233, v232, {sr(S_WS, 4)}, s{sHB} offen{PTM}")
            if m["bar"] == 6 and PT >= 0:
                e("s_waitcnt vmcnt(0)")
            if m["bar"] == 3:
                if TW & 2:
                    e("s_waitcnt vmcnt(0)")
                stamp(2)
            if m["bar"] == 6:
                stamp(3)
        if m["side"]:
            side.append(("gate", i + 2))
            side.extend(m["side"])
        issue(i, RPG)
        n = SPG
        while side and n > 0:
            if isinstance(side[0], tuple):
                if side[0][1] > i:
                    break
                side.pop(0)
                continue
            e(side.pop(0))
            n -= 1
    assert not LQ and nxt[0] == len(R)
    if not BL:
        e("s_mov_b64 exec, 1")
        e("ds_add_u32 v14, v15")
        e("s_mov_b64 exec, -1")
    while side:
        x = side.pop(0)
        if isinstance(x, tuple):
            e("s_nop 15")
            e("s_nop 3")
        else:
            e(x)
    stamp(4)
    e(f"s_mov_b32 s{sZ}, 1")
    if BL:
        c("GEMM2 B fragments from LDS (staged by the helper waves)")
        e(f"s_mul_i32 s{sT0}, s{sRH}, 22528")
        e(f"s_cmp_eq_u32 s{sNH}, 0")
        e(f"s_cselect_b32 s{sT1}, {2 * STG}, 0")
        e(f"s_add_u32 s{sT0}, s{sT0}, s{sT1}")
        e(f"v_add_u32 v2, s{sT0}, v{vH}")
        e(f"s_mov_b32 s{sT0}, 15")
        lds_wait(8, sT0)
        for i in range(22):
            e(f"ds_read_b128 {vr(168 + 4 * i, 4)}, v2 offset:{1024 * i}")
        e("v_mov_b32 v15, 1")
        e("s_waitcnt lgkmcnt(0)")
        e("s_mov_b64 exec, 1")
        e("ds_add_u32 v14, v15")
        e("s_mov_b64 exec, -1")
        e(f"s_mov_b32 s{sWM}, -1")
    e("s_branch g2_unit")

    sH, sWB, sXB, sLB, sPM, sMBX = 65, 66, 67, 68, 69, 70
    sEX = 72
    S_OWN = 76
    vX0, vX1, vWD, vPO = 10, 11, 12, 13
    PW, PX = 16, 32
    T = 64
    e("k1_help:")
    e(f"s_sub_u32 s{sH}, s{sW}, 4")
    c("partial sources: W rows 64(mt%8) + 16j + l/4, cols 128nt + 32h + 8(l%4) ; x rows 128mt + 32h + 8j + l/8, K slab nt%8")
    e("v_lshrrev_b32 v2, 2, v1")
    e("v_mul_u32_u24 v2, 2752, v2")
    e("v_and_b32 v3, 3, v1")
    e("v_lshl_add_u32 v8, v3, 4, v2")
    e(f"s_and_b32 s{sT0}, s{sMT}, 7")
    e(f"s_mul_i32 s{sT0}, s{sT0}, {64 * 2752}")
    e(f"s_lshl_b32 s{sT1}, s{sNT}, 8")
    e(f"s_add_u32 s{sT0}, s{sT0}, s{sT1}")
    e(f"s_lshl_b32 s3, s{sH}, 6")
    e(f"s_add_u32 s3, s3, s{sT0}")
    e("v_lshrrev_b32 v2, 3, v1")
    e("v_and_b32 v3, 7, v1")
    e("v_lshlrev_b32 v4, 4, v3")
    e("v_lshl_add_u32 v9, v2, 10, v4")
    e(f"s_lshl_b32 s{sXB}, s{sMT}, 17")
    e(f"s_lshl_b32 s{sT0}, s{sH}, 15")
    e(f"s_add_u32 s{sXB}, s{sXB}, s{sT0}")
    e(f"s_and_b32 s4, s{sNT}, 7")
    e("s_lshl_b32 s4, s4, 7")
    e(f"s_add_u32 s4, s4, s{sXB}")
    c("x DMA lane offset: row = l>>3, src chunk = (l&7) ^ (l>>4) (^4 for odd 8-row groups)")
    e("v_lshrrev_b32 v4, 4, v1")
    e("v_xor_b32 v3, v3, v4")
    e("v_lshlrev_b32 v3, 4, v3")
    e(f"v_lshl_add_u32 v{vX0}, v2, 10, v3")
    e(f"v_xor_b32 v{vX1}, 64, v{vX0}")
    c("W DMA lane offsets")
    e("v_and_b32 v5, 15, v1")
    e("v_lshlrev_b32 v6, 2, v4")
    e("v_xor_b32 v5, v5, v6")
    e("v_lshlrev_b32 v5, 4, v5")
    e("v_mul_u32_u24 v6, 2752, v4")
    e(f"v_add_u32 v{vWD}, v5, v6")
    e(f"s_mul_i32 s{sWB}, s{sH}, {16 * 2752}")
    e(f"s_add_u32 s{sWB}, s{sWB}, s{sT1}")
    e(f"s_lshl_b32 s{sLB}, s{sH}, 12")
    e("s_waitcnt lgkmcnt(0)")
    stamp(0)
    make_srd(S_X, P_Q, 2048 * 1024)
    make_srd(S_WG, P_WG, 512 * 2752)
    make_srd(S_WU, P_WU, 512 * 2752)
    e(f"s_cmp_ge_u32 s{sMT}, 8")
    e(f"s_cselect_b32 s{S_OWN}, s{S_WU}, s{S_WG}")
    e(f"s_cselect_b32 s{S_OWN + 1}, s{S_WU + 1}, s{S_WG + 1}")
    e(f"s_mov_b32 s{S_OWN + 2}, {512 * 2752}")
    e(f"s_mov_b32 s{S_OWN + 3}, 0x00020000")
    V = VMQ()

    def pf():
        for j in range(4):
            V.emit(f"buffer_load_dwordx4 {vr(PW + 4 * j, 4)}, v8, {sr(S_OWN, 4)}, s3 offen", "pf")
            V.emit(f"buffer_load_dwordx4 {vr(PX + 4 * j, 4)}, v9, {sr(S_X, 4)}, s4 offen", "pf")
            if j < 3:
                e(f"s_add_u32 s3, s3, {16 * 2752}")
                e("s_add_u32 s4, s4, 8192")

    def dma(s):
        st = (s % 3) * STG
        for j in range(4):
            e(f"s_add_u32 m0, s{sLB}, {st + 32768 + j * 1024}")
            e(f"s_add_u32 s{sT0}, s{sXB}, {j * 8192 + 128 * s}")
            V.emit(f"buffer_load_dwordx4 v{vX1 if j & 1 else vX0}, {sr(S_X, 4)}, s{sT0} offen lds", f"s{s}")
        for j in range(4):
            e(f"s_add_u32 s{sT0}, s{sWB}, {(64 * s + 4 * j) * 2752}")
            for part in range(2):
                e(f"s_add_u32 m0, s{sLB}, {st + part * 16384 + j * 1024}")
                V.emit(f"buffer_load_dwordx4 v{vWD}, {sr(S_WU if part else S_WG, 4)}, s{sT0} offen lds", f"s{s}")

    for _ in range(GSLEEP):
        e("s_sleep 8")
    for s in range(NI):
        if s == PFO:
            pf()
        dma(s)
    if PFO == NI:
        pf()
    make_srd(S_WS, P_WS, 0x1000000)
    state_init(0, 4)
    e("s_lshl_b32 s%d, s2, 8" % sMBX)
    e(f"s_add_u32 s{sMBX}, s{sMBX}, {WS_MB + 64}")
    c("flags needed: cs partials of part h/2 (8 bytes) + stats partials (8 bytes)")
    e(f"s_lshr_b32 s{sT0}, s{sH}, 1")
    e(f"s_lshl_b32 s{sT0}, s{sT0}, 3")
    e(f"s_lshl_b32 s{sPM}, 0xff, s{sT0}")
    e(f"s_or_b32 s{sPM}, s{sPM}, 0xff0000")

    def part_cs():
        V.wait("pf")
        stamp(4)
        zload()
        c("partial column sums")
        for j in range(4):
            for d in range(4):
                e(f"v_lshlrev_b32 v{T + 8 * j + 2 * d}, 16, v{PW + 4 * j + d}")
                e(f"v_and_b32 v{T + 8 * j + 2 * d + 1}, 0xffff0000, v{PW + 4 * j + d}")
        for d in range(4):
            epk("add", T + 2 * d, T + 2 * d, T + 8 + 2 * d)
            epk("add", T + 16 + 2 * d, T + 16 + 2 * d, T + 24 + 2 * d)
        for d in range(4):
            epk("add", T + 2 * d, T + 2 * d, T + 16 + 2 * d)
        e("s_nop 1")
        for i in range(4):
            e(f"v_permlane32_swap_b32 v{T + i}, v{T + 4 + i}")
        e("s_nop 1")
        for i in range(0, 4, 2):
            epk("add", T + i, T + i, T + 4 + i)
        e("s_nop 1")
        for i in range(2):
            e(f"v_permlane16_swap_b32 v{T + i}, v{T + 2 + i}")
        e("s_nop 1")
        epk("add", T, T, T + 2)
        for sh in (4, 8):
            e("s_nop 1")
            for i in range(2):
                e(f"v_add_f32_dpp v{T + i}, v{T + i}, v{T + i} row_ror:{sh} row_mask:0xf bank_mask:0xf")
        c("store: lanes with l%16 < 4: col = 32h + 8(l%4) + 2(l/16)")
        e("v_and_b32 v2, 3, v1")
        e("v_lshrrev_b32 v3, 4, v1")
        e("v_lshlrev_b32 v3, 3, v3")
        e("v_lshl_add_u32 v2, v2, 5, v3")
        e(f"s_lshl_b32 s{sT0}, s{sNT}, 4")
        e(f"s_add_u32 s{sT0}, s{sT0}, s{sMT}")
        e(f"s_lshl_b32 s{sT0}, s{sT0}, 9")
        e(f"s_lshl_b32 s{sT1}, s{sH}, 7")
        e(f"s_add_u32 s{sT0}, s{sT0}, s{sT1}")
        e(f"s_add_u32 s{sT0}, s{sT0}, {WS_CS}")
        e("s_mov_b32 exec_lo, 0x000f000f")
        e("s_mov_b32 exec_hi, 0x000f000f")
        V.emit(f"buffer_store_dwordx2 {vr(T, 2)}, v2, {sr(S_WS, 4)}, s{sT0} offen sc1", "pst")
        e("s_mov_b64 exec, -1")

    def part_st():
        c("partial row stats")
        U = T + 8
        SS = T + 48
        for j in range(4):
            for d in range(4):
                e(f"v_lshlrev_b32 v{U + 8 * j + 2 * d}, 16, v{PX + 4 * j + d}")
                e(f"v_and_b32 v{U + 8 * j + 2 * d + 1}, 0xffff0000, v{PX + 4 * j + d}")
        for j in range(4):
            u = U + 8 * j
            q = PX + 4 * j
            epk("mul", q, u, u)
            for d in range(1, 4):
                epk("fma", q, u + 2 * d, u + 2 * d, q)
            epk("add", u, u, u + 2)
            epk("add", u + 4, u + 4, u + 6)
            epk("add", u, u, u + 4)
            e(f"v_add_f32 v{SS + 2 * j}, v{u}, v{u + 1}")
            e(f"v_add_f32 v{SS + 2 * j + 1}, v{q}, v{q + 1}")
        for ctl in ("quad_perm:[1,0,3,2]", "quad_perm:[2,3,0,1]", "row_half_mirror"):
            e("s_nop 1")
            for i in range(8):
                e(f"v_add_f32_dpp v{SS + i}, v{SS + i}, v{SS + i} {ctl} row_mask:0xf bank_mask:0xf")
        e("v_and_b32 v2, 7, v1")
        for j in range(1, 4):
            e(f"v_cmp_eq_u32 vcc, {j}, v2")
            e(f"v_cndmask_b32 v{SS}, v{SS}, v{SS + 2 * j}, vcc")
            e(f"v_cndmask_b32 v{SS + 1}, v{SS + 1}, v{SS + 2 * j + 1}, vcc")
        e("v_lshrrev_b32 v3, 3, v1")
        e("v_lshl_add_u32 v2, v2, 3, v3")
        e("v_lshlrev_b32 v2, 3, v2")
        e(f"s_lshl_b32 s{sT0}, s{sMT}, 4")
        e(f"s_add_u32 s{sT0}, s{sT0}, s{sNT}")
        e(f"s_lshl_b32 s{sT0}, s{sT0}, 10")
        e(f"s_lshl_b32 s{sT1}, s{sH}, 8")
        e(f"s_add_u32 s{sT0}, s{sT0}, s{sT1}")
        e(f"s_add_u32 s{sT0}, s{sT0}, {WS_SP}")
        e("s_mov_b32 exec_lo, 0x0f0f0f0f")
        e("s_mov_b32 exec_hi, 0x0f0f0f0f")
        V.emit(f"buffer_store_dwordx2 {vr(SS, 2)}, v2, {sr(S_WS, 4)}, s{sT0} offen sc1", "pst")
        e("s_mov_b64 exec, -1")

    if PC < 0:
        part_cs()
    if PS < 0:
        part_st()
    c("signal addresses: lanes 0-15: (mt'=l, nt) byte MB_CS + mt ; lanes 16-26: (mt, nt'=l-16) byte MB_ST + nt (nt < 8)")
    e("v_cmp_gt_u32 vcc, 16, v1")
    e(f"v_mov_b32 v2, s{sMT}")
    e(f"v_mov_b32 v3, s{sNT}")
    e("v_subrev_u32 v4, 16, v1")
    e("v_cndmask_b32 v2, v2, v1, vcc")
    e("v_cndmask_b32 v3, v4, v3, vcc")
    if MAP:
        e("v_and_b32 v4, 1, v2")
        e("v_lshl_add_u32 v4, v3, 1, v4")
        e("v_lshrrev_b32 v2, 1, v2")
        e("v_lshl_add_u32 v2, v4, 3, v2")
    else:
        e("v_lshrrev_b32 v4, 3, v2")
        e("v_mul_u32_u24 v4, 88, v4")
        e("v_lshl_add_u32 v4, v3, 3, v4")
        e("v_and_b32 v2, 7, v2")
        e("v_add_u32 v4, v4, v2")
        e("v_mul_u32_u24 v2, 2979, v4")
        e("v_lshrrev_b32 v2, 16, v2")
        e("v_mul_u32_u24 v3, 22, v2")
        e("v_sub_u32 v3, v4, v3")
        e("v_lshl_add_u32 v2, v3, 3, v2")
    e("v_lshlrev_b32 v2, 8, v2")
    e(f"s_add_u32 s{sT0}, s{sMT}, {WS_MB + 64 * 256 + MB_CS}")
    e(f"s_add_u32 s{sT1}, s{sNT}, {WS_MB + 64 * 256 + MB_ST}")
    e(f"v_mov_b32 v3, s{sT1}")
    e(f"v_mov_b32 v4, s{sT0}")
    e("v_cndmask_b32 v3, v3, v4, vcc")
    e(f"v_add_u32 v{vPO}, v2, v3")
    e(f"s_cmp_lt_u32 s{sNT}, 8")
    e(f"s_cselect_b32 s{sEX}, 0x7ffffff, 0xffff") if 0 else None
    e(f"s_mov_b32 s{sEX}, 0xffff")
    e(f"s_cselect_b32 s{sEX}, 0x7ffffff, s{sEX}")
    e(f"s_cmp_eq_u32 s{sH}, 0")
    e(f"s_cselect_b32 s{sEX}, s{sEX}, 0")
    e(f"s_mov_b32 s{sEX + 1}, 0")
    V.wait("s0", extra=" lgkmcnt(0)")
    e("s_barrier")
    stamp(1)
    for s in range(NI, 3):
        dma(s)
    PL = 16
    for s in range(7):
        tags = [f"s{s + 1}"] + (["pst"] if s == SG else [])
        if s == 6:
            T = 40
            if BL:
                V.wait("pl", "s7")
            else:
                V.wait("pl", "s7", "mb2")
                e(f"s_mov_b32 s{sPM}, {3 << (MB_KV - 64)}")
                pollbytes(sMBX, sPM, first=8)
            c("column sum operand: lane = column 64(h&1) + l of part h/2: (c1|c2, c3|0, 0, 0)")
            for a, b in ((0, 1), (2, 3), (4, 5), (6, 7), (0, 2), (4, 6), (0, 4)):
                e(f"v_add_f32 v{PL + a}, v{PL + a}, v{PL + b}")
                epk("add", PL + 8 + 2 * a, PL + 8 + 2 * a, PL + 8 + 2 * b)
            e(f"v_cvt_pk_bf16_f32 v4, 0, v{PL}")
            e(f"v_sub_f32 v{PL}, v{PL}, v4")
            e(f"v_cvt_pk_bf16_f32 v5, 0, v{PL}")
            e(f"v_sub_f32 v{PL}, v{PL}, v5")
            e(f"v_cvt_pk_bf16_f32 v{T + 1}, v{PL}, 0")
            e(f"v_lshrrev_b32 v4, 16, v4")
            e(f"v_or_b32 v{T}, v4, v5")
            for r in range(2, 8):
                e(f"v_mov_b32 v{T + r}, 0")
            e("v_lshrrev_b32 v2, 5, v1")
            e("v_and_b32 v3, 31, v1")
            e("v_lshlrev_b32 v3, 4, v3")
            e("v_lshl_add_u32 v2, v2, 10, v3")
            e(f"s_lshl_b32 s{sT0}, s{sH}, 11")
            e(f"s_add_u32 s{sT0}, s{sT0}, {L_CS}")
            e(f"v_add_u32 v2, s{sT0}, v2")
            e(f"ds_write_b128 v2, {vr(T, 4)}")
            e(f"ds_write_b128 v2, {vr(T + 4, 4)} offset:512")
            c("row statistics of row tile h (lanes 0-31)")
            for x in stats_math(PL + 8, PL + 9, T + 8, T + 16, T + 17):
                e(x)
            e(f"v_xor_b32 v4, 0x80000000, v{T + 12}")
            e(f"v_lshrrev_b32 v{T + 1}, 16, v4")
            e(f"v_or_b32 v{T}, v4, v{T + 1}")
            e("v_cmp_gt_u32 vcc, 32, v1")
            e(f"v_cndmask_b32 v{T}, 0, v{T}, vcc")
            e(f"v_cndmask_b32 v{T + 1}, 0, v{T + 1}, vcc")
            e(f"s_lshl_b32 s{sT0}, s{sH}, 10")
            e(f"s_add_u32 s{sT0}, s{sT0}, {L_MN}")
            e(f"v_lshl_add_u32 v2, v1, 4, s{sT0}")
            e(f"ds_write_b128 v2, {vr(T, 4)}")
            e(f"s_lshl_b32 s{sT0}, s{sH}, 7")
            e(f"s_add_u32 s{sT0}, s{sT0}, {L_RS}")
            e(f"v_lshl_add_u32 v2, v1, 2, s{sT0}")
            e("s_mov_b32 exec_hi, 0")
            e(f"ds_write_b32 v2, v{T + 16}")
            c("nt == 0: (rs, nm) -> ws")
            e(f"s_lshl_b32 s{sT0}, s{sMT}, 10")
            e(f"s_lshl_b32 s{sT1}, s{sH}, 8")
            e(f"s_add_u32 s{sT0}, s{sT0}, s{sT1}")
            e(f"s_add_u32 s{sT0}, s{sT0}, {WS_ST}")
            e("v_lshlrev_b32 v2, 3, v1")
            e(f"s_cmp_eq_u32 s{sNT}, 0")
            e("s_cselect_b32 exec_lo, -1, 0")
            V.emit(f"buffer_store_dwordx2 {vr(T + 16, 2)}, v2, {sr(S_WS, 4)}, s{sT0} offen sc1", "ss")
            e("s_mov_b64 exec, -1")
            e("s_waitcnt lgkmcnt(0)")
        else:
            V.wait(*tags)
        e("s_barrier")
        if s == 3:
            stamp(2)
        if s == 6:
            stamp(3)
        if s == SG:
            c("everybody's partial stores are complete -> wave 4 signals the consumers")
            zcheck()
            e("v_mov_b32 v2, 1")
            e(f"s_mov_b64 exec, {sr(sEX, 2)}")
            V.emit(f"buffer_store_byte v2, v{vPO}, {sr(S_WS, 4)}, 0 offen sc1", "sig")
            e("s_mov_b64 exec, -1")
        if s == S_POLL:
            V.emit(f"buffer_load_ubyte v8, v1, {sr(S_WS, 4)}, s{sMBX} offen sc1", "mb")
        if s + 3 < 8:
            dma(s + 3)
        if s == PC:
            part_cs()
        if s == PS:
            part_st()
            e("s_waitcnt lgkmcnt(0)")
        if s == 5 and not BL:
            V.emit(f"buffer_load_ubyte v8, v1, {sr(S_WS, 4)}, s{sMBX} offen sc1", "mb2")
        if s == S_POLL + 1:
            V.wait("mb")
            pollbytes(sMBX, sPM, first=8)
            stamp(9 if EB else None)
            if EB:
                c("w_down fragments ready? (vcc = flags of the last read)")
                e(f"s_bfe_u32 s{sT0}, vcc_lo, {0x20000 + MB_KV - 64}")
                e(f"s_cmp_eq_u32 s{sT0}, 3")
                e(f"s_cselect_b32 s{sWM}, -1, 0")
            c("partial loads")
            e(f"s_lshl_b32 s{sT0}, s{sNT}, 13")
            e(f"s_lshr_b32 s{sT1}, s{sH}, 1")
            e(f"s_lshl_b32 s{sT1}, s{sT1}, 12")
            e(f"s_add_u32 s{sT0}, s{sT0}, s{sT1}")
            e(f"s_and_b32 s{sT1}, s{sH}, 1")
            e(f"s_lshl_b32 s{sT1}, s{sT1}, 8")
            e(f"s_add_u32 s{sT0}, s{sT0}, s{sT1}")
            e(f"s_add_u32 s{sT0}, s{sT0}, {WS_CS}")
            e("v_lshlrev_b32 v2, 2, v1")
            for j in range(8):
                V.emit(f"buffer_load_dword v{PL + j}, v2, {sr(S_WS, 4)}, s{sT0} offen offset:{512 * j}", "pl")
            e(f"s_lshl_b32 s{sT0}, s{sMT}, 14")
            e(f"s_lshl_b32 s{sT1}, s{sH}, 8")
            e(f"s_add_u32 s{sT0}, s{sT0}, s{sT1}")
            e(f"s_add_u32 s{sT0}, s{sT0}, {WS_SP}")
            e(f"s_add_u32 s{sT1}, s{sT0}, 4096")
            e("v_and_b32 v2, 31, v1")
            e("v_lshlrev_b32 v2, 3, v2")
            for j in range(8):
                V.emit(f"buffer_load_dwordx2 {vr(PL + 8 + 2 * j, 2)}, v2, {sr(S_WS, 4)}, s{sT1 if j >= 4 else sT0} offen "
                       f"offset:{1024 * (j & 3)}", "pl")
        if EB and s == max(4, S_POLL + 1):
            c("GEMM2 B fragments of this wave + L2 prefetch of a quarter of unit (id/8)&3")
            e("s_lshr_b32 s3, s2, 5")
            e(f"s_mul_i32 s3, s3, {WDT}")
            e(f"s_add_u32 s3, s3, {WS_WD}")
            e("s_bfe_u32 s4, s2, 0x20003")
            if UROT:
                e(f"s_lshr_b32 s{sT1}, s2, 5")
                e(f"s_add_u32 s4, s4, s{sT1}")
                e("s_and_b32 s4, s4, 7")
            e(f"s_mul_i32 s4, s4, {11 * 2048}")
            e(f"s_mul_i32 s{sT0}, s{sH}, 5632")
            e(f"s_add_u32 s4, s4, s{sT0}")
            e("s_add_u32 s4, s4, s3")
            if UROT:
                e(f"s_add_u32 s{sT0}, s{sW}, s{sT1}")
                e(f"s_and_b32 s{sT0}, s{sT0}, 7")
                e(f"s_mul_i32 s{sT0}, s{sT0}, {11 * 2048}")
            else:
                e(f"s_mul_i32 s{sT0}, s{sW}, {11 * 2048}")
            e(f"s_add_u32 s3, s3, s{sT0}")
            e("v_lshlrev_b32 v9, 4, v1")
            ebl = []
            for i in range(22):
                ebl.append(f"buffer_load_dwordx4 {vr(168 + 4 * i, 4)}, v9, {sr(S_WS, 4)}, s3 offen offset:{1024 * (i & 3)}")
                if i & 3 == 3:
                    ebl[-1] += "|s_add_u32 s3, s3, 4096"
            if EB & 2:
                for i in range(6):
                    ebl.append(f"buffer_load_dwordx4 {vr(80 + 4 * i, 4)}, v9, {sr(S_WS, 4)}, s4 offen offset:{1024 * (i & 3)}")
                    if i == 3:
                        ebl[-1] += "|s_add_u32 s4, s4, 4096"
        if EB and s >= max(4, S_POLL + 1):
            n = (0 if EBW else len(ebl)) if s == 6 else EBN
            e(f"s_mov_b32 exec_lo, s{sWM}")
            e(f"s_mov_b32 exec_hi, s{sWM}")
            for x in ebl[:n]:
                for y in x.split("|"):
                    V.emit(y, "eb")
            e("s_mov_b64 exec, -1")
            del ebl[:n]
        if BL and s == 5:
            c("w_down fragments must be ready now")
            e(f"s_cmp_lg_u32 s{sWM}, 0")
            e("s_cbranch_scc1 k1h_wok")
            e(f"s_mov_b32 s{sPM}, {3 << (MB_KV - 64)}")
            pollbytes(sMBX, sPM)
            e("k1h_wok:")
        if BL and s >= 5:
            c("stage the B fragments of compute waves 2(s-5) + h/2: half h&1 (11 KB)")
            e(f"s_lshr_b32 s{sT0}, s{sH}, 1")
            e(f"s_mul_i32 s5, s{sH}, 11264")
            e(f"s_add_u32 s{sT0}, s{sT0}, {2 * (s - 5)}")
            e(f"s_lshr_b32 s{sT1}, s2, 5")
            if UROT:
                e(f"s_add_u32 s{sT0}, s{sT0}, s{sT1}")
                e(f"s_and_b32 s{sT0}, s{sT0}, 7")
            e(f"s_mul_i32 s{sT0}, s{sT0}, 22528")
            e(f"s_mul_i32 s{sT1}, s{sT1}, {WDT}")
            e(f"s_add_u32 s{sT0}, s{sT0}, s{sT1}")
            e(f"s_and_b32 s{sT1}, s{sH}, 1")
            e(f"s_mul_i32 s{sT1}, s{sT1}, 11264")
            e(f"s_add_u32 s{sT0}, s{sT0}, s{sT1}")
            e(f"s_add_u32 s{sT0}, s{sT0}, {WS_WD}")
            for i in range(11):
                e(f"s_add_u32 m0, s5, {(2 * STG if s == 5 else 0) + 1024 * i}")
                V.emit(f"buffer_load_dwordx4 v9, {sr(S_WS, 4)}, s{sT0} offen lds", "bl")
                e(f"s_add_u32 s{sT0}, s{sT0}, 1024")
    if BL:
        e(f"s_lshl_b32 s{sT0}, 1, s{sH}")
        e(f"v_mov_b32 v2, s{sT0}")
        e(f"v_mov_b32 v3, {L_ST}")
        V.wait("bl")
        e("s_mov_b64 exec, 1")
        e("ds_or_b32 v3, v2 offset:8")
        e("s_mov_b64 exec, -1")
    if EBW:
        c("remaining own B loads, at most EBW in flight")
        e(f"s_mov_b32 exec_lo, s{sWM}")
        e(f"s_mov_b32 exec_hi, s{sWM}")
        for k, x in enumerate(ebl):
            if k >= EBW:
                e(f"s_waitcnt vmcnt({EBW - 1})")
            for y in x.split("|"):
                V.emit(y, "eb")
        e("s_mov_b64 exec, -1")
    c("nt == 0: stats flag of row tile h to the 8 consumers of row block 2mt + h/2")
    e(f"s_lshl_b32 s{sT0}, s{sMT}, 1")
    e(f"s_lshr_b32 s{sT1}, s{sH}, 1")
    e(f"s_add_u32 s{sT0}, s{sT0}, s{sT1}")
    e(f"s_and_b32 s{sT1}, s{sH}, 1")
    e(f"s_add_u32 s{sT1}, s{sT1}, {MB_S}")
    sig_h(sT0, sT1, 3)
    e(f"s_cmp_eq_u32 s{sNT}, 0")
    e(f"s_cselect_b32 s{sSGX}, 0xff, 0")
    if not EB:
        e(f"s_mov_b32 s{sWM}, 0")
    e(f"s_mov_b32 s{sNU}, 1")
    e(f"s_mov_b32 s{sNS}, 0")
    e("s_branch g2_unit")
    flush_ool()


def k1_aux():
    S_WD = 44
    sW, sT0, sT1, sN2, sKH, sLB = 62, 63, 64, 65, 66, 67
    sKS = 68
    e("k1_aux:")
    e("v_lshrrev_b32 v2, 6, v0")
    e("v_and_b32 v1, 63, v0")
    e(f"v_readfirstlane_b32 s{sW}, v2")
    e(f"s_and_b32 s{sN2}, s2, 7")
    e(f"s_bfe_u32 s{sKH}, s2, 0x10003")
    e("v_lshrrev_b32 v2, 3, v1")
    e("v_and_b32 v3, 7, v1")
    e("v_lshlrev_b32 v3, 4, v3")
    e("v_lshl_add_u32 v2, v2, 10, v3")
    e(f"s_mul_i32 s{sLB}, s{sW}, 12288")
    e(f"s_mul_i32 s{sT1}, s{sKH}, 43")
    for j in range(6):
        e(f"s_add_u32 s{sT0}, s{sW}, {8 * j}")
        e(f"s_min_u32 s{sT0}, s{sT0}, 42")
        e(f"s_add_u32 s{sKS + j}, s{sT0}, s{sT1}")
    e("s_waitcnt lgkmcnt(0)")
    stamp(0)
    make_srd(S_WD, P_WD, 1376 * 1024)
    make_srd(S_WS, P_WS, 0x1000000)
    e("v_lshlrev_b32 v3, 4, v1")
    c("WG 240: zero all mailboxes (64 KB), then set the flag in d_debug")
    e("s_cmp_lg_u32 s2, 240")
    e("s_cbranch_scc1 aux_nz0")
    e(f"s_lshl_b32 s3, s{sW}, 13")
    e(f"s_add_u32 s3, s3, {WS_MB}")
    for r in range(4):
        e(f"v_mov_b32 v{4 + r}, 0")
    for j in range(8):
        e(f"buffer_store_dwordx4 v[4:7], v3, {sr(S_WS, 4)}, s3 offen sc1")
        e("s_add_u32 s3, s3, 1024")
    e("aux_nz0:")
    if TW & 4:
        c("touch the pages of d_debug and of the w_down fragments early")
        make_srd(S_DB2, P_DBG, 256)
        e(f"s_mov_b32 s3, {WS_FREE}")
        e("s_mov_b64 exec, 1")
        e(f"buffer_load_dword v8, off, {sr(S_DB2, 4)}, 0 offset:192 sc1")
        e(f"buffer_load_dword v8, off, {sr(S_WS, 4)}, s3")
        e("s_mov_b64 exec, -1")
    if ASLEEP:
        e("s_cmp_eq_u32 s2, 240")
        e("s_cbranch_scc1 aux_ns")
        for _ in range(ASLEEP):
            e("s_sleep 16")
        e("aux_ns:")
    e(f"s_lshl_b32 s{sT1}, s{sN2}, 7")
    for j in range(6):
        e(f"s_lshl_b32 s{sT0}, s{sKS + j}, 14")
        e(f"s_add_u32 s{sT0}, s{sT0}, s{sT1}")
        for i in range(2):
            e(f"s_add_u32 m0, s{sLB}, {2048 * j + 1024 * i}")
            if i:
                e(f"s_add_u32 s{sT0}, s{sT0}, 8192")
            e(f"buffer_load_dwordx4 v2, {sr(S_WD, 4)}, s{sT0} offen lds")
    e(f"s_mov_b32 s{sZ}, 0")
    state_init(0 if C7 else 4)
    e("s_cmp_lg_u32 s2, 240")
    e("s_cbranch_scc1 aux_nz")
    make_srd(S_DB2, P_DBG, 256)
    e(f"s_waitcnt vmcnt({14 if TW & 4 else 12})")
    e("s_barrier")
    stamp(1)
    e(f"s_mov_b32 s{sZ}, 1")
    e(f"s_cmp_lg_u32 s{sW}, 0")
    e("s_cbranch_scc1 aux_nz")
    e("v_mov_b32 v14, 1")
    e(f"v_mov_b32 v15, {ZOFF}")
    e("s_mov_b64 exec, 1")
    e(f"buffer_store_dword v14, v15, {sr(S_DB2, 4)}, 0 offen sc1")
    e("s_mov_b64 exec, -1")
    e("aux_nz:")
    c("tr read address: row 4g + li/4 (+8u), col bytes 64ct + 32((l/16)&1) + 8(li%4)")
    e("v_and_b32 v4, 15, v1")
    e("v_lshrrev_b32 v5, 2, v4")
    e("v_lshrrev_b32 v6, 5, v1")
    e("v_lshl_add_u32 v5, v6, 2, v5")
    e("v_lshlrev_b32 v5, 7, v5")
    e("v_bfe_u32 v6, v1, 4, 1")
    e("v_lshl_add_u32 v5, v6, 5, v5")
    e("v_and_b32 v4, 3, v4")
    e("v_lshl_add_u32 v5, v4, 3, v5")
    e(f"v_add_u32 v5, s{sLB}, v5")
    e(f"s_mul_i32 s{sT1}, s{sN2}, {WDT}")
    e(f"s_add_u32 s{sT1}, s{sT1}, {WS_WD}")
    e("s_waitcnt vmcnt(0)")
    stamp(2)
    e("s_cmp_eq_u32 s2, 240")
    e("s_cbranch_scc1 aux_z1")
    zload()
    e("aux_z1:")
    for j in range(6):
        for ct in range(2):
            for u in range(2):
                e(f"ds_read_b64_tr_b16 {vr(16 + 8 * j + 4 * ct + 2 * u, 2)}, v5 offset:{2048 * j + 1024 * u + 64 * ct}")
        if j >= 1:
            e("s_waitcnt lgkmcnt(0)" if j == 1 else "s_waitcnt lgkmcnt(4)")
            e(f"s_lshl_b32 s{sT0}, s{sKS + j - 1}, 11")
            e(f"s_add_u32 s{sT0}, s{sT0}, s{sT1}")
            for ct in range(2):
                e(f"buffer_store_dwordx4 {vr(16 + 8 * (j - 1) + 4 * ct, 4)}, v3, {sr(S_WS, 4)}, s{sT0} offen offset:{1024 * ct} sc1")
    e("s_waitcnt lgkmcnt(0)")
    e(f"s_lshl_b32 s{sT0}, s{sKS + 5}, 11")
    e(f"s_add_u32 s{sT0}, s{sT0}, s{sT1}")
    for ct in range(2):
        e(f"buffer_store_dwordx4 {vr(16 + 40 + 4 * ct, 4)}, v3, {sr(S_WS, 4)}, s{sT0} offen offset:{1024 * ct} sc1")
    zcheck()
    e("s_waitcnt vmcnt(0)")
    e("s_barrier")
    stamp(3)
    c("wave 0: flag to the 32 consumers id = 32 nt2 + l (byte MB_W + kh, GEMM1 WGs: MB_KV + kh)")
    e(f"s_lshl_b32 s{sT0}, s{sN2}, 5")
    e(f"v_add_u32 v4, s{sT0}, v1")
    e(f"v_subrev_u32 v5, {K1_NCONV}, v4")
    e(f"v_cmp_gt_u32 vcc, {K1_NGEMM}, v5")
    e(f"v_mov_b32 v5, {MB_W}")
    e(f"v_mov_b32 v6, {MB_KV}")
    e("v_cndmask_b32 v5, v5, v6, vcc")
    e(f"v_cmp_gt_u32 vcc, {K1_NCONV}, v4")
    e("v_cndmask_b32 v5, v5, 64, vcc")
    e("v_lshl_add_u32 v4, v4, 8, v5")
    c("nt2 < 2: also to the aux WGs 240 + 8 nt2 + (l - 32), byte 64 + kh")
    e(f"s_lshl_b32 s{sT0}, s{sN2}, 3")
    e(f"s_add_u32 s{sT0}, s{sT0}, {240 - 32}")
    e(f"v_add_u32 v5, s{sT0}, v1")
    e("v_lshlrev_b32 v5, 8, v5")
    e("v_add_u32 v5, 64, v5")
    e("v_cmp_gt_u32 vcc, 32, v1")
    e("v_cndmask_b32 v4, v5, v4, vcc")
    e(f"s_add_u32 s{sT0}, s{sKH}, {WS_MB}")
    e("v_mov_b32 v5, 1")
    e(f"s_cmp_lt_u32 s{sN2}, 2")
    e(f"s_cselect_b32 s{sT1}, 0xff, 0")
    e(f"s_cmp_eq_u32 s{sW}, 0")
    e("s_cselect_b32 exec_lo, -1, 0")
    e(f"s_cselect_b32 exec_hi, s{sT1}, 0")
    e(f"buffer_store_byte v5, v4, {sr(S_WS, 4)}, s{sT0} offen sc1")
    e("s_mov_b64 exec, -1")
    if C7:
        e(f"s_cmp_lt_u32 s{sW}, 4")
        e("s_cbranch_scc1 k1c_aux")
    if APF:
        c("pull the fragments of column block kh (conv WGs' tiles) into this XCD's L2")
        e("s_mov_b32 s5, 3")
        e(f"s_cmp_lg_u32 s{sW}, 7")
        e("s_cbranch_scc1 aux_kw")
        e("s_lshl_b32 s4, s2, 8")
        e(f"s_add_u32 s4, s4, {WS_MB + 64}")
        pollbytes(4, 5)
        e(f"v_mov_b32 v14, {L_ST}")
        e("v_mov_b32 v15, -1")
        e("ds_write_b32 v14, v15 offset:8")
        e("s_branch aux_kd")
        e("aux_kw:")
        lds_wait(8, 5)
        e("aux_kd:")
        e(f"s_mul_i32 s{sT0}, s{sKH}, {WDT}")
        e(f"s_mul_i32 s{sT1}, s{sW}, {(22 if C7 else 11) * 2048}")
        e(f"s_add_u32 s{sT0}, s{sT0}, s{sT1}")
        e(f"s_add_u32 s{sT0}, s{sT0}, {WS_WD - (88 * 2048 if C7 else 0)}")
        for i in range(44 if C7 else 22):
            e(f"buffer_load_dwordx4 {vr(80 + 4 * (i % 22), 4)}, v3, {sr(S_WS, 4)}, s{sT0} offen offset:{1024 * (i & 3)}")
            if i & 3 == 3:
                e(f"s_add_u32 s{sT0}, s{sT0}, 4096")
    e(f"s_mov_b32 s{sSGX}, 0")
    e(f"s_mov_b32 s{sSG0}, {WS_MB}")
    e(f"s_mov_b32 s{sSG1}, 0")
    e(f"s_mov_b32 s{sWM}, {3 << MB_W}")
    e(f"s_mov_b32 s{sNU}, 1")
    e(f"s_mov_b32 s{sNS}, 0")
    e("s_branch g2_unit")


CV_KCPY = 4160
CV_T = 117248
CV_TP = 528


def k1_conv():
    S_K, S_V, S_SK, S_SH = 44, 48, 52, 72
    sW, sT0, sT1, sD, sG, sJ, sCH, sRB, sKT, sMBX = 62, 63, 64, 65, 66, 67, 68, 69, 70, 71
    e("k1_conv:")
    e("v_lshrrev_b32 v2, 6, v0")
    e("v_and_b32 v1, 63, v0")
    e(f"v_readfirstlane_b32 s{sW}, v2")
    c("G = id%8 (64-channel group), J = id/8 (256-row block / channel sub-group)")
    e(f"s_and_b32 s{sG}, s2, 7")
    e(f"s_lshr_b32 s{sJ}, s2, 3")
    sGP = 60
    if ROT:
        e(f"s_add_u32 s{sGP}, s{sG}, s{sJ}")
        e(f"s_and_b32 s{sGP}, s{sGP}, 7")
    else:
        e(f"s_mov_b32 s{sGP}, s{sG}")
    c("---- kv phase: rows J*256 + 4*rg.., channels G*64 + cs*8..")
    if KVF:
        c("full rows: WG r: rows 32r + 4w .., lane: 8 channels")
        e("v_lshrrev_b32 v2, 6, v0")
        e("v_lshlrev_b32 v4, 4, v1")
        e("v_lshl_add_u32 v4, v2, 12, v4")
        e(f"s_lshl_b32 s{sT0}, s2, 15")
        e(f"v_add_u32 v4, s{sT0}, v4")
        e("v_subrev_u32 v5, 3072, v4")
        e("v_lshlrev_b32 v6, 6, v1")
    else:
        e("v_lshrrev_b32 v2, 3, v0")
        e("v_and_b32 v3, 7, v0")
        e(f"s_lshl_b32 s{sT0}, s{sJ}, 18")
        e(f"s_lshl_b32 s{sT1}, s{sGP}, 7")
        e(f"s_add_u32 s{sT0}, s{sT0}, s{sT1}")
        e("v_lshlrev_b32 v4, 12, v2")
        e("v_lshl_add_u32 v4, v3, 4, v4")
        e(f"v_add_u32 v4, s{sT0}, v4")
        e("v_subrev_u32 v5, 3072, v4")
        e(f"s_lshl_b32 s{sT1}, s{sGP}, 9")
        e("v_lshlrev_b32 v6, 6, v3")
        e(f"v_add_u32 v6, s{sT1}, v6")
    e("s_waitcnt lgkmcnt(0)")
    stamp(0)
    V = VMQ()
    KD, VD, WD = 16, 44, 60

    def kvloads():
        if TW & 1:
            c("touch every page this wave uses (own lines of the ws regions)")
            make_srd(S_K, P_K, 2048 * 1024)
            make_srd(S_V, P_V, 2048 * 1024)
            make_srd(S_SH, P_SH, 4096)
            make_srd(S_SK, P_SK, 512 * 4096)
            make_srd(S_WS, P_WS, 0x1000000)
            make_srd(S_DB2, P_DBG, 256)
            e(f"s_lshl_b32 s{sCH}, s{sG}, 3")
            e(f"s_add_u32 s{sCH}, s{sCH}, s{sJ}")
            e(f"s_lshl_b32 s{sCH}, s{sCH}, 3")
            e(f"s_add_u32 s{sCH}, s{sCH}, s{sW}")
            e(f"s_lshl_b32 s{sCH}, s{sCH}, 12")
            e(f"s_add_u32 s4, s{sCH}, {WS_Y2}")
            e(f"s_lshl_b32 s3, s{sGP}, 18")
            e(f"s_lshl_b32 s{sT1}, s{sW}, 15")
            e(f"s_add_u32 s3, s3, s{sT1}")
            e(f"s_add_u32 s3, s3, {WS_KV + 3584}")
            e(f"s_lshl_b32 s{sT1}, s{sJ}, 9")
            e(f"s_sub_u32 s3, s3, s{sT1}")
            e("s_mov_b64 exec, 1")
            V.emit(f"buffer_load_dword v252, v4, {sr(S_K, 4)}, 0 offen", "tw")
            V.emit(f"buffer_load_dword v252, v4, {sr(S_V, 4)}, 0 offen", "tw")
            V.emit(f"buffer_load_dword v252, v6, {sr(S_SH, 4)}, 0 offen", "tw")
            V.emit(f"buffer_load_dword v252, off, {sr(S_SK, 4)}, s{sCH}", "tw")
            V.emit(f"buffer_load_dword v252, off, {sr(S_WS, 4)}, s3", "tw")
            V.emit(f"buffer_load_dword v252, off, {sr(S_DB2, 4)}, 0 offset:192 sc1", "tw")
            V.emit(f"buffer_load_dword v252, off, {sr(S_WS, 4)}, s4", "tw")
            e("s_mov_b64 exec, -1")
        if os.environ.get('CST'):
            tab = sum(int(x) << (4 * i) for i, x in enumerate(os.environ['CST'].split(',')))
            e(f"s_lshl_b32 s{sT0}, s{sGP}, 2")
            e(f"s_lshr_b32 s{sT0}, {tab:#x}, s{sT0}")
            e(f"s_and_b32 s{sT0}, s{sT0}, 15")
            e("s_cbranch_scc0 k1c_ns")
            e("k1c_sl:")
            e("s_sleep 8")
            e(f"s_sub_u32 s{sT0}, s{sT0}, 1")
            e(f"s_cmp_lg_u32 s{sT0}, 0")
            e("s_cbranch_scc1 k1c_sl")
        else:
            for _ in range(CS3):
                e("s_sleep 8")
            e(f"s_cmp_eq_u32 s{sGP}, 3")
            e("s_cbranch_scc1 k1c_ns")
            for _ in range(CSLEEP - CS3):
                e("s_sleep 8")
        e("k1c_ns:")
        make_srd(S_K, P_K, 2048 * 1024)
        make_srd(S_V, P_V, 2048 * 1024)
        make_srd(S_SH, P_SH, 4096)
        for r in range(3):
            V.emit(f"buffer_load_dwordx4 {vr(KD + 4 * r, 4)}, v5, {sr(S_K, 4)}, 0 offen offset:{1024 * r}", "kv")
        for r in range(4):
            V.emit(f"buffer_load_dwordx4 {vr(KD + 12 + 4 * r, 4)}, v4, {sr(S_K, 4)}, 0 offen offset:{1024 * r}", "kv")
        for r in range(4):
            V.emit(f"buffer_load_dwordx4 {vr(VD + 4 * r, 4)}, v4, {sr(S_V, 4)}, 0 offen offset:{1024 * r}", "kv")
        for j in range(4):
            V.emit(f"buffer_load_dwordx4 {vr(WD + 4 * j, 4)}, v6, {sr(S_SH, 4)}, 0 offen offset:{16 * j}", "kv")

    if SKD != 3:
        kvloads()
    make_srd(S_SK, P_SK, 512 * 4096)
    make_srd(S_WS, P_WS, 0x1000000)
    c("channel of this wave: 64G + 8J + w")
    e(f"s_lshl_b32 s{sCH}, s{sG}, 3")
    e(f"s_add_u32 s{sCH}, s{sCH}, s{sJ}")
    e(f"s_lshl_b32 s{sCH}, s{sCH}, 3")
    e(f"s_add_u32 s{sCH}, s{sCH}, s{sW}")
    e(f"s_lshl_b32 s{sKT}, s{sW}, 14")
    e(f"s_mul_i32 s{sT0}, s{sW}, 12928")
    e(f"s_add_u32 s{sT0}, s{sT0}, {65536 - 4 * 12928}")
    e(f"s_cmp_ge_u32 s{sW}, 4")
    e(f"s_cselect_b32 s{sKT}, s{sT0}, s{sKT}")
    e(f"s_add_u32 s{sRB}, s{sKT}, 8320")
    SKR = 232

    def dload():
        e(f"s_lshl_b32 s{sT0}, s{sCH}, 1")
        e(f"s_and_b32 s{sT1}, s{sT0}, 0xfffffffc")
        e(f"s_add_u32 s{P_SD}, s{P_SD}, s{sT1}")
        e(f"s_addc_u32 s{P_SD + 1}, s{P_SD + 1}, 0")
        e(f"s_load_dword s{sD}, {sr(P_SD, 2)}, 0")
        e(f"s_lshl_b32 s{sCH}, s{sCH}, 12")
        e("v_lshlrev_b32 v8, 4, v1")
    dload()

    def skloads():
        if C7:
            e(f"s_cmp_eq_u32 s{sW}, 7")
            e("s_cselect_b64 exec, 0, -1")
        skloads2()
        if C7:
            e("s_mov_b64 exec, -1")

    def skloads2():
        for j in range(4):
            V.emit(f"buffer_load_dwordx4 {vr(SKR + 4 * j, 4)}, v8, {sr(S_SK, 4)}, s{sCH} offen offset:{1024 * j}", "sk")
        for j in range(4):
            V.emit(f"buffer_load_dword v{SKR + 16 + j}, v8, {sr(S_SK, 4)}, s{sCH} offen offset:{1024 * j + 16}", "sk")
    if SKD == 0:
        skloads()
    if SKD == 3:
        skloads()
        kvloads()
    c("kv LDS transpose position: T + (cs*8 + cc)*528 + 504 - 8 rg")
    if KVF:
        e("v_mul_u32_u24 v7, 80, v1")
        e("v_lshlrev_b32 v9, 3, v2")
        e("v_sub_u32 v7, v7, v9")
        e(f"v_add_u32 v7, {CV_T + 56}, v7")
    else:
        e(f"v_mul_u32_u24 v7, {8 * CV_TP}, v3")
        e("v_lshlrev_b32 v9, 3, v2")
        e("v_sub_u32 v7, v7, v9")
        e(f"v_add_u32 v7, {CV_T + 504}, v7")
    state_init(-4 if C8 else 4)
    def pads():
        c("zero pads")
        e("v_lshlrev_b32 v6, 3, v1")
        e(f"v_add_u32 v6, s{sRB}, v6")
        e("v_mov_b32 v10, 0")
        e("v_mov_b32 v11, 0")
        e("ds_write_b64 v6, v[10:11] offset:4096")
        e("v_lshlrev_b32 v6, 2, v1")
        e(f"v_add_u32 v6, s{sKT}, v6")
        e("s_mov_b64 exec, 0xff")
        e("ds_write_b32 v6, v10")
        e(f"ds_write_b32 v6, v10 offset:{CV_KCPY}")
        e("s_mov_b64 exec, -1")
    pads()
    c("addresses of the kv row stores")
    if KVF:
        e("v_bfe_u32 v6, v1, 2, 3")
        e("v_mul_u32_u24 v9, 5120, v6")
        e("v_lshrrev_b32 v6, 5, v1")
        e("v_mul_u32_u24 v6, 80, v6")
        e("v_add_u32 v9, v9, v6")
        e("v_and_b32 v6, 3, v1")
        e("v_lshl_add_u32 v9, v6, 4, v9")
        e(f"s_mul_i32 s{sT1}, s{sW}, 640")
        e(f"s_add_u32 s{sT1}, s{sT1}, {CV_T}")
        e(f"v_add_u32 v9, s{sT1}, v9")
        e("v_lshrrev_b32 v6, 3, v1")
        e("v_and_b32 v10, 7, v1")
        e("v_lshlrev_b32 v10, 4, v10")
        e("v_lshl_add_u32 v10, v6, 13, v10")
        e(f"s_lshl_b32 s3, s{sW}, 18")
        e(f"s_add_u32 s3, s3, {WS_KV + 63 * 128}")
        e(f"s_lshl_b32 s{sT1}, s2, 7")
        e(f"s_sub_u32 s3, s3, s{sT1}")
        c("kv flags: consumers 8l + w, byte 192 + r")
        e(f"s_lshl_b32 s4, s{sW}, 8")
        e("s_add_u32 s4, s4, s2")
        e(f"s_add_u32 s4, s4, {WS_MB + 192}")
        e("v_lshlrev_b32 v11, 11, v1")
    else:
        e("v_lshrrev_b32 v6, 5, v1")
        e("v_and_b32 v10, 31, v1")
        e("v_lshlrev_b32 v10, 4, v10")
        e(f"v_mul_u32_u24 v9, {CV_TP}, v6")
        e("v_add_u32 v9, v9, v10")
        e(f"s_mul_i32 s{sT1}, s{sW}, {8 * CV_TP}")
        e(f"s_add_u32 s{sT1}, s{sT1}, {CV_T}")
        e(f"v_add_u32 v9, s{sT1}, v9")
        e("v_lshl_add_u32 v10, v6, 12, v10")
        e(f"s_lshl_b32 s3, s{sGP}, 18")
        e(f"s_lshl_b32 s{sT1}, s{sW}, 15")
        e(f"s_add_u32 s3, s3, s{sT1}")
        e(f"s_add_u32 s3, s3, {WS_KV + 3584}")
        e(f"s_lshl_b32 s{sT1}, s{sJ}, 9")
        e(f"s_sub_u32 s3, s3, s{sT1}")
        c("kv flag: consumer id 8w + G, byte MB_KV + J")
        e(f"s_lshl_b32 s4, s{sW}, 3")
        e(f"s_add_u32 s4, s4, s{sGP}")
        e("s_lshl_b32 s4, s4, 8")
        e(f"s_add_u32 s4, s4, s{sJ}")
        e(f"s_add_u32 s4, s4, {WS_MB + MB_KV}")
        if C7:
            assert not KVF and not ROT and CEB and CPOL == 2 and C8 and SKD == 1
            c("lane 1: aux WG 240 + 8(w/4) + G, byte 192 + 8(w%4) + J")
            e(f"s_lshr_b32 s{sT0}, s{sW}, 2")
            e(f"s_lshl_b32 s{sT0}, s{sT0}, 3")
            e(f"s_add_u32 s{sT0}, s{sT0}, s{sGP}")
            e(f"s_lshl_b32 s{sT0}, s{sT0}, 8")
            e(f"s_and_b32 s{sT1}, s{sW}, 3")
            e(f"s_lshl_b32 s{sT1}, s{sT1}, 3")
            e(f"s_add_u32 s{sT0}, s{sT0}, s{sT1}")
            e(f"s_add_u32 s{sT0}, s{sT0}, s{sJ}")
            e(f"s_add_u32 s{sT0}, s{sT0}, {WS_MB + 240 * 256 + 192}")
            e(f"s_sub_u32 s{sT0}, s{sT0}, s4")
            e(f"v_mul_lo_u32 v11, v1, s{sT0}")
    e(f"s_lshl_b32 s{sMBX}, s2, 8")
    e(f"s_add_u32 s{sMBX}, s{sMBX}, {WS_MB + 64}")
    e(f"s_mov_b32 s5, {0xff << (MB_KV - 64)}")
    if SKD == 5:
        assert not C7
        e(f"v_mov_b32 v76, {L_ST}")
        e("v_mov_b32 v77, 1")
        e("s_waitcnt lgkmcnt(0)")
        e("s_barrier")
    V.wait("kv")
    stamp(1)
    if SKD == 5:
        c("the first waves whose k / v arrived load ssm_k now, the others after their kv flag")
        e("s_mov_b64 exec, 1")
        e("ds_add_rtn_u32 v13, v76, v77 offset:12")
        e("s_mov_b64 exec, -1")
        e("s_waitcnt lgkmcnt(0)")
        e("v_readfirstlane_b32 s74, v13")
        e(f"s_mov_b32 s{sZ}, 0")
        make_srd(S_DB2, P_DBG, 256)
        e(f"s_cmp_lt_u32 s74, {env('SKE', 5)}")
        e("s_cselect_b32 s74, -1, 0")
        e("s_mov_b32 exec_lo, s74")
        e("s_mov_b32 exec_hi, s74")
        skloads2()
        e("s_mov_b64 exec, -1")
    elif ZE:
        make_srd(S_DB2, P_DBG, 256)
    else:
        zload()
    if SKD == 1:
        skloads()
    KF, VF, WF = 80, 136, 200
    for cc in range(8):
        for jp in range(2):
            w = WD + 2 * cc + jp
            e(f"v_lshlrev_b32 v{WF + (2 * jp) * 8 + cc}, 16, v{w}")
            e(f"v_and_b32 v{WF + (2 * jp + 1) * 8 + cc}, 0xffff0000, v{w}")
    for i in range(28):
        e(f"v_lshlrev_b32 v{KF + 2 * i}, 16, v{KD + i}")
        e(f"v_and_b32 v{KF + 2 * i + 1}, 0xffff0000, v{KD + i}")
    for i in range(16):
        e(f"v_lshlrev_b32 v{VF + 2 * i}, 16, v{VD + i}")
        e(f"v_and_b32 v{VF + 2 * i + 1}, 0xffff0000, v{VD + i}")
    KV = 168
    for cp in range(4):
        for r in range(4):
            d = KV + 8 * r + 2 * cp
            e(f"v_pk_mul_f32 {vr(d, 2)}, {vr(KF + 8 * r + 2 * cp, 2)}, {vr(WF + 3 * 8 + 2 * cp, 2)}")
            for j in range(1, 4):
                e(f"v_pk_fma_f32 {vr(d, 2)}, {vr(KF + 8 * (r + j) + 2 * cp, 2)}, "
                  f"{vr(WF + (3 - j) * 8 + 2 * cp, 2)}, {vr(d, 2)}")
            e(f"v_pk_mul_f32 {vr(d, 2)}, {vr(d, 2)}, {vr(VF + 8 * r + 2 * cp, 2)}")
        for cc in (2 * cp, 2 * cp + 1):
            o = 16 + 2 * cc
            e(f"v_cvt_pk_bf16_f32 v{o}, v{KV + 24 + cc}, v{KV + 16 + cc}")
            e(f"v_cvt_pk_bf16_f32 v{o + 1}, v{KV + 8 + cc}, v{KV + cc}")
            e(f"ds_write_b64 v7, {vr(o, 2)} offset:{cc * (5120 if KVF else CV_TP)}")
    e("s_waitcnt lgkmcnt(0)")
    e("s_barrier")
    c("wave w: channels 8w..8w+7 of the group: full-line stores (2 channels x 512 B per instruction)")
    for j in range(4):
        e(f"ds_read_b128 {vr(16 + 4 * j, 4)}, v9 offset:{160 * j if KVF else 2 * j * CV_TP}")
    if SKD == 5 or ZE:
        V.emit(f"buffer_load_dword v78, off, {sr(S_DB2, 4)}, 0 offset:{ZOFF} sc1", "z")
    for j in range(4):
        e(f"s_waitcnt lgkmcnt({3 - j})")
        V.emit(f"buffer_store_dwordx4 {vr(16 + 4 * j, 4)}, v10, {sr(S_WS, 4)}, s3 offen{STK}", "st")
        e(f"s_add_u32 s3, s3, {65536 if KVF else 8192}")
    if SKD == 2:
        skloads()

    def ktwork():
        e(f"v_add_u32 v7, s{sKT}, v8")
        V.wait("sk")
        for j in range(4):
            d = SKR + 4 * j
            t = 32 + 4 * j
            e(f"ds_write_b128 v7, {vr(d, 4)} offset:{32 + 1024 * j}")
            e(f"v_alignbit_b32 v{t}, v{d + 1}, v{d}, 16")
            e(f"v_alignbit_b32 v{t + 1}, v{d + 2}, v{d + 1}, 16")
            e(f"v_alignbit_b32 v{t + 2}, v{d + 3}, v{d + 2}, 16")
            e(f"v_alignbit_b32 v{t + 3}, v{SKR + 16 + j}, v{d + 3}, 16")
            e(f"ds_write_b128 v7, {vr(t, 4)} offset:{CV_KCPY + 32 + 1024 * j}")
        e(f"v_lshlrev_b32 v12, 16, v{SKR}")
        e("s_mov_b64 exec, 1")
        e(f"ds_write_b32 v7, v12 offset:{CV_KCPY + 28}")
        e("s_mov_b64 exec, -1")

    if SKD not in (2, 5):
        ktwork()
    if SKD == 5 or ZE:
        V.wait("st")
        e(f"v_readfirstlane_b32 s{sZ}, v78")
        e("s_nop 3")
    stamp(8 if env('ZST', 0) else None)
    zcheck()
    stamp(7 if env('ZST', 0) else None)
    e("v_mov_b32 v13, 1")
    V.wait("st")
    if KVF:
        e("s_mov_b64 exec, 0xff")
        V.emit(f"buffer_store_byte v13, v11, {sr(S_WS, 4)}, s4 offen sc1", "fl")
    elif C7:
        e("s_mov_b64 exec, 3")
        V.emit(f"buffer_store_byte v13, v11, {sr(S_WS, 4)}, s4 offen sc1", "fl")
    else:
        e("s_mov_b64 exec, 1")
        V.emit(f"buffer_store_byte v13, off, {sr(S_WS, 4)}, s4 sc1", "fl")
    e("s_mov_b64 exec, -1")
    stamp(2)
    if SKD == 5:
        e("s_not_b32 exec_lo, s74")
        e("s_not_b32 exec_hi, s74")
        skloads2()
        e("s_mov_b64 exec, -1")
    if SKD in (2, 5):
        ktwork()
    sAX = 72
    if C7:
        e(f"s_mov_b32 s{sAX}, 0")
        with ool("k1c_aux"):
            c("aux WG 240 + 8a + G, waves 0-3: channel 64G + 8(4a + w) + 7")
            e(f"s_and_b32 s{sG}, s2, 7")
            e(f"s_bfe_u32 s{sJ}, s2, 0x10003")
            e(f"s_lshl_b32 s{sJ}, s{sJ}, 2")
            e(f"s_add_u32 s{sJ}, s{sJ}, s{sW}")
            e(f"s_lshl_b32 s{sCH}, s{sG}, 3")
            e(f"s_add_u32 s{sCH}, s{sCH}, s{sJ}")
            e(f"s_lshl_b32 s{sCH}, s{sCH}, 3")
            e(f"s_add_u32 s{sCH}, s{sCH}, 7")
            e(f"s_lshl_b32 s{sKT}, s{sW}, 14")
            e(f"s_add_u32 s{sRB}, s{sKT}, 8320")
            make_srd(S_SK, P_SK, 512 * 4096)
            dload()
            skloads2()
            pads()
            zcheck()
            ktwork()
            e(f"s_lshl_b32 s{sMBX}, s2, 8")
            e(f"s_add_u32 s{sMBX}, s{sMBX}, {WS_MB + 192}")
            e(f"s_lshl_b32 s{sT0}, s{sW}, 3")
            e(f"s_lshl_b32 s5, 0xff, s{sT0}")
            e(f"s_mov_b32 s{sAX}, 1")
            e("s_waitcnt lgkmcnt(0)")
    e(f"s_lshl_b32 s{sT0}, s{sD}, 16")
    e(f"s_and_b32 s{sD}, s{sD}, 0xffff0000")
    e(f"s_bitcmp1_b32 s{sCH}, 12")
    e(f"s_cselect_b32 s{sD}, s{sD}, s{sT0}")
    c("MFMA phase addresses")
    ACC = 16
    AR = [48, 112]
    BR = [80, 144]
    vKT, vR, vA = 200, 201, 202
    e("v_and_b32 v2, 15, v1")
    e("v_lshrrev_b32 v3, 4, v1")
    e("v_lshlrev_b32 v4, 1, v2")
    e("v_lshlrev_b32 v5, 4, v3")
    e("v_sub_u32 v4, v4, v5")
    e(f"v_add_u32 v4, {32 - 14}, v4")
    e("v_and_b32 v5, 1, v2")
    e("v_cmp_eq_u32 vcc, 0, v5")
    e("v_mov_b32 v5, 0")
    e(f"v_mov_b32 v6, {CV_KCPY - 2}")
    e("s_nop 1")
    e("v_cndmask_b32 v5, v5, v6, vcc")
    e("v_add_u32 v4, v4, v5")
    e(f"v_add_u32 v{vKT}, s{sKT}, v4")
    e("v_lshlrev_b32 v4, 5, v2")
    e("v_lshl_add_u32 v4, v3, 4, v4")
    e(f"v_sub_u32 v4, {4080 - 3584}, v4")
    e(f"v_add_u32 v{vR}, s{sRB}, v4")
    e("v_lshlrev_b32 v4, 5, v2")
    e("v_lshl_add_u32 v4, v3, 3, v4")
    e(f"v_sub_u32 v5, {4088 - 3584}, v4")
    e(f"v_add_u32 v5, s{sRB}, v5")
    c("GEMM2 interface: flag byte MB_C + 8J + w to the 32 consumers 32G + l")
    e(f"s_lshl_b32 s{sSG0}, s{sG}, 13")
    e(f"s_bfe_u32 s{sT0}, s{sCH}, 0x6000c")
    e(f"s_add_u32 s{sSG0}, s{sSG0}, s{sT0}")
    e(f"s_add_u32 s{sSG0}, s{sSG0}, {WS_MB + MB_C}")
    e(f"s_mov_b32 s{sSG1}, 8")
    e(f"s_mov_b32 s{sSGX}, -1")
    if C8:
        e(f"s_mov_b32 s{sNS}, 0")
        e(f"s_mov_b32 s{sNU}, 1")
    else:
        e(f"s_mov_b32 s{sNS}, 1")
        e(f"s_cmp_lt_u32 s{sW}, 4")
        e(f"s_cselect_b32 s{sNU}, 2, 0")
    if KVF:
        e(f"s_and_b32 s3, s{sCH}, 0xffffe000")
        e(f"s_bfe_u32 s{sT0}, s{sCH}, 0x1000c")
        e(f"s_lshl_b32 s{sT0}, s{sT0}, 6")
        e(f"s_add_u32 s3, s3, s{sT0}")
        e(f"s_add_u32 s3, s3, {WS_KV}")
        e("v_lshrrev_b32 v6, 2, v1")
        e("v_and_b32 v7, 3, v1")
        e("v_lshlrev_b32 v7, 4, v7")
        e("v_lshl_add_u32 v7, v6, 7, v7")
        e("s_mov_b32 s5, 0x80000000")
    else:
        e(f"s_add_u32 s3, s{sCH}, {WS_KV}")

    def crlist(ci, st, kinds="AB"):
        d0 = 2 * ci + 1
        r = []
        if "A" in kinds:
            for pp in range(4):
                r.append(f"v_add_u32 v{vA + pp}, {32 * d0 + 1024 * pp}, v{vKT}")
        order = [("B", 0)] + [("A", p) for p in range(8)] + [("B", m) for m in range(1, 8)]
        for kind, x in order:
            if kind not in kinds:
                continue
            if kind == "A":
                p = x
                o = 128 * (p & 1)
                r.append(f"ds_read2_b32 {vr(AR[st] + 4 * p, 2)}, v{vA + (p >> 1)} offset0:{o} offset1:{o + 1}")
                r.append(f"ds_read2_b32 {vr(AR[st] + 4 * p + 2, 2)}, v{vA + (p >> 1)} offset0:{o + 2} offset1:{o + 3}")
            else:
                m = x
                r.append(f"ds_read_b128 {vr(BR[st] + 4 * m, 4)}, v{vR} offset:{32 * d0 + 512 * (7 - m)}")
        return r

    sOF = 73
    if C7:
        c("waves 4-6 start with chunk 2 (wave 7 does their chunks 0, 1)")
        e(f"s_cmp_ge_u32 s{sW}, 4")
        e(f"s_cselect_b32 s{sOF}, 128, 0")
        e(f"v_add_u32 v{vKT}, s{sOF}, v{vKT}")
        e(f"v_add_u32 v{vR}, s{sOF}, v{vR}")
    e("s_waitcnt lgkmcnt(0)")
    for x in crlist(0, 0, "A"):
        e(x)
    if C7:
        e(f"s_cmp_lg_u32 s{sAX}, 0")
        e("s_cbranch_scc1 k1c_ap")
    e(f"s_cmp_lg_u32 s{sW}, 7")
    e("s_cbranch_scc1 k1c_kw")
    if KVF:
        e("s_mov_b32 s80, 0")
        e("k1c_kp:")
        e(f"buffer_load_ubyte v14, v1, {sr(S_WS, 4)}, s{sMBX} offen offset:128 sc1")
        e(f"buffer_load_ubyte v15, v1, {sr(S_WS, 4)}, s{sMBX} offen sc1")
        e("s_waitcnt vmcnt(0)")
        e("v_cmp_ne_u32 vcc, 0, v14")
        e("s_add_u32 s80, s80, 1")
        e("s_cmp_eq_u64 vcc, -1")
        e("s_cbranch_scc1 k1c_kpd")
        e("s_sleep 1")
        e("s_cmp_lt_u32 s80, 0x40000")
        e("s_cbranch_scc1 k1c_kp")
        e("k1c_kpd:")
        e("v_cmp_ne_u32 vcc, 0, v15")
    else:
        pollbytes(sMBX, 5)
    e(f"v_mov_b32 v14, {L_ST}")
    e("s_or_b32 s81, vcc_lo, s5")
    e("v_mov_b32 v15, s81")
    e("ds_write_b32 v14, v15 offset:8")
    e("s_branch k1c_help" if C7 else "s_branch k1c_kd")
    if C7:
        e("k1c_ap:")
        e(f"s_sub_u32 s{sT1}, s{sMBX}, 192")
        e(f"s_mov_b32 s{sT0}, {3 << MB_W}")
        pollbytes(sT1, sT0)
        pollbytes(sMBX, 5)
        e("v_mov_b32 v15, 3")
        e(f"s_sub_u32 s{sMBX}, s{sMBX}, 128")
        e("s_branch k1c_kd")
    e("k1c_kw:")
    lds_wait(8, 5)
    e("k1c_kd:")
    c("own channel kvR row -> LDS R")
    for j in range(4):
        e(f"s_add_u32 m0, s{sRB}, {1024 * j}")
        e(f"buffer_load_dwordx4 v8, {sr(S_WS, 4)}, s3 offen offset:{1024 * j} lds sc1") if 0 else None
        e(f"buffer_load_dwordx4 v{7 if KVF else 8}, {sr(S_WS, 4)}, s3 offen lds")
        e(f"s_add_u32 s3, s3, {2048 if KVF else 1024}")
    if CPRIO == 1:
        e(f"s_cmp_lt_u32 s{sW}, 4")
        e("s_cbranch_scc0 k1c_p1")
        e("s_setprio 2")
        e("k1c_p1:")
    if C7:
        e(f"s_lshl_b32 s{sT0}, 0x100, s{sW}")
        e(f"v_mov_b32 v12, {L_ST}")
        e(f"v_mov_b32 v13, s{sT0}")
    e("s_waitcnt vmcnt(0)")
    stamp(3)
    if C7:
        e("s_mov_b64 exec, 1")
        e("ds_or_b32 v12, v13 offset:8")
        e("s_mov_b64 exec, -1")
    for x in crlist(0, 0, "B"):
        e(x)

    def bsetup():
        c("w_down fragments ready -> B fragments of the GEMM2 unit are loaded under the MFMAs")
        e("v_readfirstlane_b32 s81, v15")
        e("s_lshr_b32 s4, s2, 5")
        e(f"s_add_u32 s{sT0}, s{sW}, s4") if UROT else e(f"s_mov_b32 s{sT0}, s{sW}")
        e(f"s_and_b32 s{sT0}, s{sT0}, 7")
        e(f"s_mul_i32 s{sT0}, s{sT0}, 22528")
        e(f"s_mul_i32 s4, s4, {WDT}")
        e(f"s_add_u32 s4, s4, s{sT0}")
        e(f"s_add_u32 s4, s4, {WS_WD}")
        e("s_and_b32 s81, s81, 3")
        e("s_cmp_eq_u32 s81, 3")
        e(f"s_cselect_b32 s{sWM}, -1, 0")
        e(f"s_cselect_b32 s{sWM + 1}, -1, 0")
    bsetup()
    if PTC:
        e(f"s_add_u32 s{sT0}, s{sCH}, {WS_Y2}")
        e("v_lshlrev_b32 v206, 7, v1")
        e("s_mov_b32 exec_hi, 0")
        e(f"buffer_load_dword v207, v206, {sr(S_WS, 4)}, s{sT0} offen{PTM}")
        e("s_mov_b64 exec, -1")
    if C7:
        e(f"v_subrev_u32 v{vKT}, s{sOF}, v{vKT}")
        e(f"v_subrev_u32 v{vR}, s{sOF}, v{vR}")
        for r in range(32):
            e(f"v_mov_b32 v{ACC + r}, 0")
        e(f"s_cmp_ge_u32 s{sW}, 4")
        e("s_cbranch_scc1 k1c_c2")
    if not CEB:
        e(f"s_mov_b32 s{sWM}, 0")

    def bload(i):
        return [f"s_add_u32 s{sT0}, s4, {1024 * i}", f"s_mov_b32 exec_lo, s{sWM}", f"s_mov_b32 exec_hi, s{sWM}",
                f"buffer_load_dwordx4 {vr(168 + 4 * i, 4)}, v8, {sr(S_WS, 4)}, s{sT0} offen", "s_mov_b64 exec, -1"]

    early = [i for i in range(22) if i not in (0, 1, 8, 9)] if CEB else []
    KVR = 80
    for ci in range(8):
        st = ci & 1
        if C7 and ci == 2:
            e("k1c_c2:")
        if CPRIO == 2 and C7 and PSH and ci >= 2:
            e(f"s_setprio {3 - ci // 2}")
            if min(3, 3 - (ci - PSH) // 2) != 3 - ci // 2:
                e(f"s_cmp_lt_u32 s{sW}, 4")
                e(f"s_cbranch_scc1 k1c_pr{ci}")
                e(f"s_setprio {min(3, 3 - (ci - PSH) // 2)}")
                e(f"k1c_pr{ci}:")
        elif CPRIO == 2 and ci % 2 == 0:
            e(f"s_setprio {3 - ci // 2}")
        e("s_waitcnt lgkmcnt(0)")
        rl = []
        if ci < 7:
            rl = crlist(ci + 1, st ^ 1)
            for _ in range(4):
                e(rl.pop(0))
            if ci >= (2 if C7 else 1):
                for k in range(4 if C7 and ci < 5 else 3):
                    if early:
                        rl += [bload(early.pop(0)), []]
        if ci == 7 and CPOL == 1:
            e(f"s_sub_u32 s{sT1}, s{sMBX}, 64")
            e(f"s_cmp_eq_u32 s{sW}, 7")
            e("s_cselect_b64 exec, -1, 0")
            e(f"buffer_load_ubyte v206, v1, {sr(S_WS, 4)}, s{sT1} offen sc1")
            e("s_mov_b64 exec, -1")
        if ci == 7:
            rl += [f"ds_read_b64 {vr(KVR + 2 * n, 2)}, v5 offset:{512 * (7 - n)}" for n in range(8)]
            rl += [[], [], [], ["s_waitcnt lgkmcnt(0)"]]
            vl = []
            for n in range(8):
                k0, k1 = KVR + 2 * n, KVR + 2 * n + 1
                t = 48 + 4 * n
                vl += [f"v_and_b32 v{t}, 0xffff0000, v{k1}", f"v_lshlrev_b32 v{t + 1}, 16, v{k1}",
                       f"v_and_b32 v{t + 2}, 0xffff0000, v{k0}", f"v_lshlrev_b32 v{t + 3}, 16, v{k0}"]
                vl += [f"v_mul_f32 v{t + i}, s{sD}, v{t + i}" for i in range(4)]
                vl += [f"v_cvt_pk_bf16_f32 v{t + i}, 0, v{t + i}" for i in range(4)]
            rl += [vl[i:i + 4] for i in range(0, 96, 4)]
        for m in range(8):
            for p in range(8 - m):
                cc = "0" if (ci == 0 and m == 0) else vr(ACC + 4 * (m + p), 4)
                e(f"v_mfma_f32_16x16x32_bf16 {vr(ACC + 4 * (m + p), 4)}, {vr(AR[st] + 4 * p, 4)}, "
                  f"{vr(BR[st] + 4 * m, 4)}, {cc}")
                if rl:
                    x = rl.pop(0)
                    for y in (x if isinstance(x, list) else [x]):
                        e(y)
        assert not rl
    assert not early
    if C7:
        e(f"s_cmp_lt_u32 s{sW}, 4")
        e("s_cbranch_scc1 k1c_na")
        e(f"s_lshl_b32 s5, 0x10000, s{sW}")
        e(f"s_lshl_b32 s{sT0}, s{sW}, 13")
        e(f"s_add_u32 s{sT0}, s{sT0}, {CV_T - 4 * 8192}")
        e(f"v_add_u32 v12, s{sT0}, v8")
        lds_wait(8, 5)
        for n in range(8):
            e(f"ds_read_b128 {vr(80 + 4 * n, 4)}, v12 offset:{1024 * n}")
        for n in range(8):
            e(f"s_waitcnt lgkmcnt({7 - n})")
            for i in range(4):
                e(f"v_add_f32 v{ACC + 4 * n + i}, v{ACC + 4 * n + i}, v{80 + 4 * n + i}")
        e("k1c_na:")
    stamp(9)
    c("epilogue: y2 = bf16(bf16(y) + bf16(kv*D)), store y2T")
    e(f"s_add_u32 s3, s{sCH}, {WS_Y2}")
    for n in range(8):
        a = ACC + 4 * n
        t = 48 + 4 * n
        if n == 7:
            e("s_nop 3")
        for i in range(4):
            e(f"v_cvt_pk_bf16_f32 v{a + i}, 0, v{a + i}")
        for i in range(0, 4, 2):
            epk("add", a + i, a + i, t + i)
        e(f"v_cvt_pk_bf16_f32 v{a}, v{a}, v{a + 1}")
        e(f"v_cvt_pk_bf16_f32 v{a + 1}, v{a + 2}, v{a + 3}")
        e(f"buffer_store_dwordx2 {vr(a, 2)}, v4, {sr(S_WS, 4)}, s3 offen offset:{512 * n}{STC}")
    stamp(4)
    if CPOL == 2:
        c("waves 0 and 7 read the mailbox while their stores drain")
        assert CEB and not CGATE
        e(f"s_sub_u32 s{sT1}, s{sMBX}, 64")
        e("v_mov_b32 v6, 0")
        e(f"s_bitcmp1_b32 {env('CPA', 0x81)}, s{sW}")
        e("s_cselect_b64 exec, -1, 0")
        e(f"buffer_load_ubyte v6, v1, {sr(S_WS, 4)}, s{sT1} offen sc1")
        for i in (0, 1, 8, 9):
            for x in bload(i):
                e(x)
        e(f"v_lshlrev_b32 v12, s{sSG1}, v1")
        e("v_mov_b32 v13, 1")
        e("s_waitcnt vmcnt(5)")
        e("s_mov_b32 exec_hi, 0")
        e(f"buffer_store_byte v13, v12, {sr(S_WS, 4)}, s{sSG0} offen sc1")
        e("s_mov_b64 exec, -1")
        stamp(9 if env('G2S', 0) else None)
        e(f"s_mov_b32 s{sSGX}, 0")
        e("s_waitcnt vmcnt(5)")
        e("v_cmp_ne_u32 vcc, 0, v6")
        e(f"v_mov_b32 v14, {L_ST}")
        e("s_mov_b32 s81, vcc_lo")
        e("v_mov_b32 v15, s81")
        e("s_mov_b64 exec, 1")
        e("ds_or_b32 v14, v15 offset:4")
        e("s_mov_b64 exec, -1")
    if CPOL == 1:
        e(f"s_cmp_lg_u32 s{sW}, 7")
        e("s_cbranch_scc1 k1c_np")
        e("s_waitcnt vmcnt(8)")
        e("v_cmp_ne_u32 vcc, 0, v206")
        e(f"v_mov_b32 v14, {L_ST}")
        e("s_mov_b32 s81, vcc_lo")
        e("v_mov_b32 v15, s81")
        e("ds_write_b32 v14, v15 offset:4")
        e("k1c_np:")
    if C7:
        with ool("k1c_help"):
            c("wave 7: own B fragments, then chunks 0, 1 of the channels of waves 4, 5, 6")
            bsetup()
            for i in range(22):
                if i not in (0, 1, 8, 9):
                    for x in bload(i):
                        e(x)
            e(f"v_subrev_u32 v{vKT}, {128 + 3 * 12928}, v{vKT}")
            e(f"v_subrev_u32 v{vR}, {128 + 3 * 12928}, v{vR}")
            e(f"v_add_u32 v12, {CV_T}, v8")
            e("s_mov_b32 s5, 0x1000")
            e(f"s_setprio {HPRIO}")
            e("k1c_hl:")
            lds_wait(8, 5)
            for x in crlist(0, 0):
                e(x)
            for ci in range(2):
                e("s_waitcnt lgkmcnt(0)")
                rl = crlist(1, 1) if ci == 0 else []
                for _ in range(4 if rl else 0):
                    e(rl.pop(0))
                for m in range(8):
                    for p in range(8 - m):
                        cc = "0" if (ci == 0 and m == 0) else vr(ACC + 4 * (m + p), 4)
                        e(f"v_mfma_f32_16x16x32_bf16 {vr(ACC + 4 * (m + p), 4)}, {vr(AR[ci] + 4 * p, 4)}, "
                          f"{vr(BR[ci] + 4 * m, 4)}, {cc}")
                        if rl:
                            e(rl.pop(0))
            e(f"v_add_u32 v{vKT}, 12928, v{vKT}")
            e(f"v_add_u32 v{vR}, 12928, v{vR}")
            e(f"s_lshl_b32 s{sT0}, s5, 8")
            e(f"v_mov_b32 v13, s{sT0}")
            e(f"v_mov_b32 v14, {L_ST}")
            e("s_nop 7")
            e("s_nop 7")
            for n in range(8):
                e(f"ds_write_b128 v12, {vr(ACC + 4 * n, 4)} offset:{1024 * n}")
            e("s_waitcnt lgkmcnt(0)")
            e("s_mov_b64 exec, 1")
            e("ds_or_b32 v14, v13 offset:8")
            e("s_mov_b64 exec, -1")
            e("v_add_u32 v12, 8192, v12")
            e("s_lshl_b32 s5, s5, 1")
            e("s_cmp_lt_u32 s5, 0x8000")
            e("s_cbranch_scc1 k1c_hl")
            for i in (0, 1, 8, 9):
                for x in bload(i):
                    e(x)
            e(f"s_mov_b32 s{sSGX}, 0")
    if C8:
        e(f"v_mov_b32 v14, {L_ST}")
        e("v_mov_b32 v15, 1")
        e("s_mov_b64 exec, 1")
        e("ds_add_u32 v14, v15")
        e("s_mov_b64 exec, -1")
    if CPRIO:
        e("s_setprio 0")
    if CGATE:
        c("own flag, then wait until all waves of the WG have issued their stores")
        e(f"v_lshlrev_b32 v12, s{sSG1}, v1")
        e("s_waitcnt vmcnt(0)")
        e("s_mov_b32 exec_hi, 0")
        e(f"buffer_store_byte v15, v12, {sr(S_WS, 4)}, s{sSG0} offen sc1")
        e("s_mov_b64 exec, -1")
        e(f"s_mov_b32 s{sSGX}, 0")
        e("s_mov_b32 s80, 0")
        e("k1c_g:")
        e("ds_read_b32 v13, v14")
        e("s_waitcnt lgkmcnt(0)")
        e(f"v_readfirstlane_b32 s{sT0}, v13")
        e("s_add_u32 s80, s80, 1")
        e("s_nop 2")
        e(f"s_cmp_ge_i32 s{sT0}, 4")
        e("s_cbranch_scc1 k1c_gd")
        e("s_sleep 2")
        e("s_cmp_lt_u32 s80, 0x400000")
        e("s_cbranch_scc1 k1c_g")
        e("k1c_gd:")
    if CEB and CPOL != 2:
        for i in (0, 1, 8, 9):
            for x in bload(i):
                e(x)
    e(f"s_cmp_lg_u32 s{sWM + 1}, 0")
    e("s_cbranch_scc1 g2_unit")
    if C7:
        e(f"s_cmp_lg_u32 s{sAX}, 0")
        e(f"s_cselect_b32 s{sWM}, {3 << MB_W}, s{sWM}")
        e("s_cbranch_scc1 g2_unit")
    e("s_mov_b32 s5, 3")
    pollbytes(sMBX, 5)
    e("s_branch g2_unit")
    flush_ool()


G2S = env('G2S', 0)
HKN = 0


def gemm2():
    S_X, S_OUT = 44, 48
    sMT2, sNT2, sW, sT0, sT1 = 60, 61, 62, 63, 64
    sU, sAB, sBB, sHM, sMB, sFIRST, sY, sXO, sMB3, sYO = 65, 66, 67, 68, 69, 70, 71, 72, 73, 74
    ACC2, BF2, AF2 = 16, 168, 80
    XR = 4
    YR, SR_ = 80, 84

    def hook(n):
        e(f"v_lshlrev_b32 v12, s{sSG1}, v1")
        e("v_mov_b32 v13, 1")
        e(f"s_waitcnt vmcnt({n})")
        e(f"s_mov_b32 exec_lo, s{sSGX}")
        e("s_mov_b32 exec_hi, 0")
        e(f"buffer_store_byte v13, v12, {sr(S_WS, 4)}, s{sSG0} offen sc1")
        e("s_mov_b64 exec, -1")
        e(f"s_mov_b32 s{sSGX}, 0")

    def xloads(part=0):
        make_srd(S_X, P_Q, 2048 * 1024)
        make_srd(S_OUT, P_OUT, 2048 * 1024)
        c("x / out offset: row 64mt2 + 8w, col 64nt2 + l")
        e(f"s_lshl_b32 s{sXO}, s{sMT2}, 3")
        e(f"s_add_u32 s{sXO}, s{sXO}, s{sW}")
        e(f"s_lshl_b32 s{sYO}, s{sXO}, 4")
        e(f"s_lshl_b32 s{sT0}, s{sNT2}, 18")
        e(f"s_add_u32 s{sYO}, s{sYO}, s{sT0}")
        e(f"s_add_u32 s{sYO}, s{sYO}, {WS_Y2}")
        e(f"s_lshl_b32 s{sXO}, s{sXO}, 13")
        e(f"s_lshl_b32 s{sT0}, s{sNT2}, 7")
        e(f"s_add_u32 s{sXO}, s{sXO}, s{sT0}")
        e(f"s_add_u32 s{sT0}, s{sXO}, 4096")
        e("v_lshlrev_b32 v3, 1, v1")
        for r in range(8):
            e(f"v_mov_b32 v{XR + r}, 0")
        if part == 0:
            return

    def xloads2():
        e(f"s_add_u32 s{sT0}, s{sXO}, 4096")
        for r in range(8):
            e(f"buffer_load_short_d16_hi v{XR + r}, v3, {sr(S_X, 4)}, s{sT0 if r >= 4 else sXO} offen offset:{1024 * (r & 3)}")

    def stloads():
        e(f"s_lshr_b32 s{sT0}, s{sXO}, 13")
        e(f"s_lshl_b32 s{sT0}, s{sT0}, 6")
        e(f"s_add_u32 s{sT0}, s{sT0}, {WS_ST}")
        for j in range(4):
            e(f"buffer_load_dwordx4 {vr(SR_ + 4 * j, 4)}, off, {sr(S_WS, 4)}, s{sT0} offset:{16 * j}")

    def yload():
        e("v_lshlrev_b32 v12, 12, v1")
        e(f"buffer_load_dwordx4 {vr(YR, 4)}, v12, {sr(S_WS, 4)}, s{sYO} offen")

    e("g2_unit:")
    e(f"s_lshr_b32 s{sNT2}, s2, 5")
    e(f"s_mul_i32 s{sBB}, s{sNT2}, {WDT}")
    if UROT:
        e(f"s_add_u32 s{sU}, s{sW}, s{sNT2}")
        e(f"s_and_b32 s{sU}, s{sU}, 7")
    else:
        e(f"s_mov_b32 s{sU}, s{sW}")
    e(f"s_mul_i32 s{sT0}, s{sU}, {11 * 2048}")
    e(f"s_add_u32 s{sBB}, s{sBB}, s{sT0}")
    e(f"s_add_u32 s{sBB}, s{sBB}, {WS_WD}")
    e("v_lshlrev_b32 v2, 4, v1")
    e(f"s_lshl_b32 s{sMB}, s2, 8")
    e(f"s_add_u32 s{sMB}, s{sMB}, {WS_MB}")
    e(f"s_add_u32 s{sMB3}, s{sMB}, {MB_C}")
    e(f"s_and_b32 s{sMT2}, s2, 7")
    e(f"s_lshl_b32 s{sMT2}, s{sMT2}, 2")
    e(f"s_bfe_u32 s{sT0}, s2, 0x20003")
    e(f"s_add_u32 s{sMT2}, s{sMT2}, s{sT0}")
    e(f"s_mov_b32 s{sFIRST}, 1")
    e(f"s_mov_b32 s{sY}, 0")
    e(f"s_cmp_eq_u32 s{sNU}, 0")
    e("s_cbranch_scc1 g2_nounit")
    e(f"s_cmp_eq_u32 s{sWM}, -1")
    e("s_cbranch_scc1 g2_bd")
    if HOOKF:
        hook(0)
        stamp(9 if G2S else None)
    e(f"s_cmp_eq_u32 s{sWM}, 0")
    e("s_cbranch_scc1 g2_loop")
    pollbytes(sMB, sWM)
    e("g2_loop:")
    for i in range(22):
        e(f"buffer_load_dwordx4 {vr(BF2 + 4 * i, 4)}, v2, {sr(S_WS, 4)}, s{sBB} offen offset:{1024 * (i & 3)}")
        if i & 3 == 3:
            e(f"s_add_u32 s{sBB}, s{sBB}, 4096")
    e(f"s_cmp_eq_u32 s{sFIRST}, 0")
    e("s_cbranch_scc1 g2_l2")
    if not HOOKF:
        hook(22)
    e("g2_bd_ret:")
    stamp(9 if G2S and not HOOKF else None)
    xloads()
    for r in range(64):
        e(f"v_mov_b32 v{ACC2 + r}, 0")
    e("g2_l2:")
    c("h flags of ks 11u .. 11u+10 (+ stats flags)")
    e(f"s_mul_i32 s{sT0}, s{sU}, 11")
    e(f"s_add_u32 s{sT1}, s{sT0}, 10")
    e(f"s_lshr_b32 s{sT1}, s{sT1}, 2")
    e(f"s_lshl_b32 s{sHM}, 2, s{sT1}")
    e(f"s_lshr_b32 s{sT1}, s{sT0}, 2")
    e(f"s_lshl_b32 s{sT1}, 1, s{sT1}")
    e(f"s_sub_u32 s{sHM}, s{sHM}, s{sT1}")
    e(f"s_or_b32 s{sHM}, s{sHM}, {3 << MB_S}")
    e(f"s_mul_i32 s{sAB}, s{sMT2}, {2 * HRT}")
    e(f"s_lshl_b32 s{sT0}, s{sT0}, 10")
    e(f"s_add_u32 s{sAB}, s{sAB}, s{sT0}")
    e(f"s_add_u32 s{sT1}, s{sAB}, {HRT}")
    e(f"s_cmp_eq_u32 s{sW}, 7")
    e("s_cbranch_scc1 g2_pol")
    lds_wait(4, sHM)
    with ool("g2_pol"):
        c("poller: relay the flags until all h / stats flags are set (two reads in flight)")
        e(f"v_mov_b32 v15, {L_ST}")
        e("ds_read_b32 v12, v15 offset:4")
        e("s_mov_b32 s80, 0")
        e("s_waitcnt lgkmcnt(0)")
        e("v_readfirstlane_b32 s81, v12")
        e("s_nop 3")
        e(f"s_and_b32 s81, s81, {0x3fffff | (3 << MB_S)}")
        e(f"s_cmp_eq_u32 s81, {0x3fffff | (3 << MB_S)}")
        e("s_cbranch_scc1 g2_pol_ret")
        if PWAIT:
            c("start when the own WG's first phase is complete")
            if env('CNW', 0):
                e(f"s_cmp_lt_u32 s2, {K1_NCONV}")
                e("s_cbranch_scc1 g2_pol1d")
            e("g2_pol1:")
            e("ds_read_b32 v12, v15")
            e("s_waitcnt lgkmcnt(0)")
            e("v_readfirstlane_b32 s81, v12")
            e("s_add_u32 s80, s80, 1")
            e("s_nop 2")
            e("s_cmp_ge_i32 s81, 4")
            e("s_cbranch_scc1 g2_pol1d")
            e("s_sleep 2")
            e("s_cmp_lt_u32 s80, 0x400000")
            e("s_cbranch_scc1 g2_pol1")
            e("g2_pol1d:")
            e("s_mov_b32 s80, 0")
            if PWAIT > 1:
                e(f"s_sleep {PWAIT}")
        e("g2_pol2:")
        e(f"buffer_load_ubyte v14, v1, {sr(S_WS, 4)}, s{sMB} offen sc1")
        e("s_waitcnt vmcnt(0)")
        e("v_cmp_ne_u32 vcc, 0, v14")
        e("s_mov_b32 s81, vcc_lo")
        e("v_mov_b32 v12, s81")
        e("s_mov_b64 exec, 1")
        e("ds_or_b32 v15, v12 offset:4")
        e("s_mov_b64 exec, -1")
        e(f"s_and_b32 s81, vcc_lo, {0x3fffff | (3 << MB_S)}")
        e(f"s_cmp_eq_u32 s81, {0x3fffff | (3 << MB_S)}")
        e("s_cbranch_scc1 g2_pol_ret")
        if PGAP:
            e(f"s_sleep {PGAP}")
        e("s_add_u32 s80, s80, 1")
        e("s_cmp_lt_u32 s80, 0x40000")
        e("s_cbranch_scc1 g2_pol2")
        e(f"v_mov_b32 v12, 0x7fffffff")
        e("ds_or_b32 v15, v12 offset:4")
    stamp(5)
    V = VMQ()

    def aload(i):
        j, a = i >> 1, i & 1
        V.emit(f"buffer_load_dwordx4 {vr(AF2 + 4 * i, 4)}, v2, {sr(S_WS, 4)}, s{sT1 if a else sAB} offen offset:{1024 * (j & 3)}", f"a{i}")
        if j & 3 == 3 and a:
            e(f"s_add_u32 s{sAB}, s{sAB}, 4096")
            e(f"s_add_u32 s{sT1}, s{sT1}, 4096")
        if i == YPOS:
            e(f"s_cmp_eq_u32 s{sW}, 7")
            e("s_cselect_b64 exec, -1, 0")
            V.emit(f"buffer_load_ubyte v12, v1, {sr(S_WS, 4)}, s{sMB3} offen sc1", "y")
            e("s_mov_b64 exec, -1")
        if i == XPOS:
            xloads2()
            V.q += ["x"] * 8

    for i in range(AW):
        aload(i)
    for j in range(11):
        if j == 9:
            e(f"v_mov_b32 v13, {L_ST}")
            e("ds_read_b64 v[14:15], v13")
            e(f"s_cmp_eq_u32 s{sU}, 7")
            e("s_cbranch_scc1 g2_mfd")
        for a in range(2):
            i = 2 * j + a
            V.wait(f"a{i}")
            if i + AW < 22:
                aload(i + AW)
            for ct in range(2):
                acc = ACC2 + 32 * a + 16 * ct
                e(f"v_mfma_f32_32x32x16_bf16 {vr(acc, 16)}, {vr(AF2 + 8 * j + 4 * a, 4)}, {vr(BF2 + 8 * j + 4 * ct, 4)}, {vr(acc, 16)}")
    e("g2_mfd:")
    e(f"s_sub_u32 s{sNU}, s{sNU}, 1")
    e(f"s_cmp_eq_u32 s{sNU}, 0")
    e("s_cbranch_scc1 g2_ud")
    e(f"s_add_u32 s{sU}, s{sU}, 4")
    e(f"s_add_u32 s{sBB}, s{sBB}, {44 * 2048 - 5 * 4096}")
    e(f"s_mov_b32 s{sFIRST}, 0")
    e("s_nop 7")
    e("s_branch g2_loop")
    e("g2_ud:")
    stamp(6)
    e(f"s_cmp_lg_u32 s{sW}, 7")
    e("s_cbranch_scc1 g2_np")
    e("s_waitcnt vmcnt(0) lgkmcnt(0)")
    e("v_cmp_ne_u32 vcc, 0, v12")
    e("s_cmp_eq_u64 vcc, -1")
    e("s_cbranch_scc0 g2_np")
    e("v_mov_b32 v15, -1")
    e(f"v_mov_b32 v13, {L_ST}")
    e("ds_write_b32 v13, v15 offset:4")
    e("g2_np:")
    c("partial address: slot w + n*256 + ((8a + 2q + g) ^ (n & 15))*16")
    e("v_and_b32 v12, 15, v1")
    e("v_lshrrev_b32 v13, 5, v1")
    e("v_xor_b32 v12, v12, v13")
    e("v_lshlrev_b32 v12, 4, v12")
    e("v_and_b32 v13, 31, v1")
    e("v_lshl_add_u32 v12, v13, 8, v12")
    e(f"s_lshl_b32 s{sT0}, s{sW}, 14")
    e(f"v_add_u32 v12, s{sT0}, v12")
    for k in range(1, 8):
        e(f"v_xor_b32 v{BF2 + k}, {32 * k}, v12")
    e("s_waitcnt vmcnt(0) lgkmcnt(0)")
    stloads()
    e(f"v_readfirstlane_b32 s{sT0}, v14")
    e(f"v_readfirstlane_b32 s{sT1}, v15")
    e("s_nop 3")
    e(f"s_cmp_ge_i32 s{sT0}, 4")
    e("s_cbranch_scc0 g2_cnt")
    with ool("g2_cnt"):
        e("s_mov_b32 s80, 0")
        e(f"v_mov_b32 v14, {L_ST}")
        e("g2_cnt2:")
        e("s_sleep 2")
        e("ds_read_b32 v15, v14")
        e("s_waitcnt lgkmcnt(0)")
        e(f"v_readfirstlane_b32 s{sT0}, v15")
        e("s_add_u32 s80, s80, 1")
        e("s_nop 2")
        e(f"s_cmp_ge_i32 s{sT0}, 4")
        e("s_cbranch_scc1 g2_cnt_ret")
        e("s_cmp_lt_u32 s80, 0x400000")
        e("s_cbranch_scc1 g2_cnt2")
    e(f"s_bitcmp1_b32 s{sT1}, 31")
    e("s_cbranch_scc0 g2_noy")
    e(f"s_mov_b32 s{sY}, 1")
    e("v_lshlrev_b32 v14, 12, v1")
    e(f"buffer_load_dwordx4 {vr(YR, 4)}, v14, {sr(S_WS, 4)}, s{sYO} offen")
    e("g2_noy:")
    for a in range(2):
        for q in range(4):
            k = 4 * a + q
            for ct in range(2):
                e(f"ds_write_b128 v{BF2 + k if k else 12}, {vr(ACC2 + 32 * a + 16 * ct + 4 * q, 4)} offset:{8192 * ct}")
    e("g2_bar:")
    c("final: lane = column, rows 8w .. 8w+7 (chunks 2w, 2w+1)")
    e("v_and_b32 v12, 15, v1")
    e(f"s_lshl_b32 s{sT0}, s{sW}, 1")
    e(f"v_xor_b32 v12, s{sT0}, v12")
    e("v_lshlrev_b32 v12, 4, v12")
    e("v_lshl_add_u32 v12, v1, 8, v12")
    e("v_xor_b32 v13, 16, v12")
    e("v_add_u32 v14, 0x10000, v12")
    e("v_add_u32 v15, 0x10000, v13")
    e("s_waitcnt lgkmcnt(0)")
    e("s_barrier")
    stamp(None if env('ZST', 0) else 7)
    P = ACC2
    e(f"v_mov_b32 v2, {L_ST}")
    e("ds_read_b32 v2, v2 offset:4")
    for j in range(4):
        for h in range(2):
            e(f"ds_read_b128 {vr(P + 8 * j + 4 * h, 4)}, v{12 + h} offset:{16384 * j}")
    e("s_waitcnt lgkmcnt(8)")
    e(f"v_readfirstlane_b32 s{sT1}, v2")
    e("v_lshlrev_b32 v2, 12, v1")
    e("s_nop 2")
    e(f"s_lshr_b32 s{sT1}, s{sT1}, 31")
    e(f"s_cmp_gt_u32 s{sT1}, s{sY}")
    e("s_cbranch_scc0 g2_y2n")
    e(f"s_mov_b32 s{sY}, 1")
    e(f"buffer_load_dwordx4 {vr(YR, 4)}, v2, {sr(S_WS, 4)}, s{sYO} offen")
    e("g2_y2n:")
    e(f"s_cmp_lg_u32 s{sNS}, 0")
    e("s_cbranch_scc1 g2_s4")
    for j in range(4):
        for h in range(2):
            e(f"ds_read_b128 {vr(P + 32 + 8 * j + 4 * h, 4)}, v{14 + h} offset:{16384 * j}")
    for j in range(4):
        e(f"s_waitcnt lgkmcnt({6 - 2 * j})")
        for d in range(0, 8, 2):
            e(f"v_pk_add_f32 {vr(P + 8 * j + d, 2)}, {vr(P + 8 * j + d, 2)}, {vr(P + 32 + 8 * j + d, 2)}")
    e("g2_s4:")
    e("s_waitcnt lgkmcnt(0)")
    for a, b in ((0, 1), (2, 3), (0, 2)):
        for d in range(0, 8, 2):
            e(f"v_pk_add_f32 {vr(P + 8 * a + d, 2)}, {vr(P + 8 * a + d, 2)}, {vr(P + 8 * b + d, 2)}")
    for r in range(8):
        e(f"v_cvt_pk_bf16_f32 v{P + r}, 0, v{P + r}")
    e(f"s_cmp_lg_u32 s{sY}, 0")
    e("s_cbranch_scc1 g2_ydone")
    e(f"s_cmp_eq_u32 s{sW}, 7")
    e("s_cbranch_scc1 g2_yp0")
    e(f"s_mov_b32 s{sHM}, 0x80000000")
    lds_wait(4, sHM)
    e("s_branch g2_ypd2")
    e("g2_yp0:")
    e("s_mov_b32 s80, 0")
    e("g2_yp:")
    e(f"buffer_load_ubyte v14, v1, {sr(S_WS, 4)}, s{sMB3} offen sc1")
    e("s_waitcnt vmcnt(0)")
    e("v_cmp_ne_u32 vcc, 0, v14")
    e("s_add_u32 s80, s80, 1")
    e("s_cmp_eq_u64 vcc, -1")
    e("s_cbranch_scc1 g2_ypd")
    e("s_cmp_lt_u32 s80, 0x40000")
    e("s_cbranch_scc1 g2_yp")
    e("g2_ypd:")
    e(f"v_mov_b32 v15, {L_ST}")
    e("v_mov_b32 v14, -1")
    e("ds_write_b32 v15, v14 offset:4")
    e("g2_ypd2:")
    yload()
    e("g2_ydone:")
    stamp(None if env('ZST', 0) else 8)
    XN = P + 8
    e("s_waitcnt vmcnt(1)")
    for r in range(8):
        e(f"v_fma_f32 v{XN + r}, v{XR + r}, v{SR_ + 2 * r}, v{SR_ + 2 * r + 1}")
    for r in range(8):
        e(f"v_cvt_pk_bf16_f32 v{XN + r}, 0, v{XN + r}")
    e(f"s_add_u32 s{sT0}, s{sXO}, 4096")
    e("s_waitcnt vmcnt(0)")
    YF = P + 16
    for d in range(4):
        e(f"v_lshlrev_b32 v{YF + 2 * d}, 16, v{YR + d}")
        e(f"v_and_b32 v{YF + 2 * d + 1}, 0xffff0000, v{YR + d}")
    for d in range(0, 8, 2):
        e(f"v_pk_mul_f32 {vr(YF + d, 2)}, {vr(YF + d, 2)}, {vr(XN + d, 2)}")
    for r in range(8):
        e(f"v_cvt_pk_bf16_f32 v{YF + r}, 0, v{YF + r}")
    for d in range(0, 8, 2):
        e(f"v_pk_add_f32 {vr(YF + d, 2)}, {vr(YF + d, 2)}, {vr(XR + d, 2)}")
    for r in range(8):
        e(f"v_cvt_pk_bf16_f32 v{YF + r}, 0, v{YF + r}")
    for d in range(0, 8, 2):
        e(f"v_pk_add_f32 {vr(YF + d, 2)}, {vr(YF + d, 2)}, {vr(P + d, 2)}")
        e(f"v_cvt_pk_bf16_f32 v{YF + d}, v{YF + d}, v{YF + d + 1}")
        s = sT0 if d >= 4 else sXO
        e(f"buffer_store_short v{YF + d}, v3, {sr(S_OUT, 4)}, s{s} offen offset:{1024 * (d & 3)}")
        e(f"buffer_store_short_d16_hi v{YF + d}, v3, {sr(S_OUT, 4)}, s{s} offen offset:{1024 * ((d + 1) & 3)}")
    stamp_flush(S_WS, WS_PROF)
    e("k1_done:")
    e("s_endpgm")
    flush_ool()
    e("g2_bd:")
    e(f"s_cmp_eq_u32 s{sSGX}, 0")
    e("s_cbranch_scc1 g2_bd_ret")
    hook(HKN)
    stamp(9 if G2S else None)
    e("s_branch g2_bd_ret")
    e("g2_nounit:")
    hook(0)
    xloads()
    xloads2()
    e(f"s_mov_b32 s{sHM}, {3 << MB_S}")
    pollbytes(sMB, sHM)
    stloads()
    e("s_branch g2_bar")


def kernel1():
    e(".globl k1_kernel")
    e(".p2align 8")
    e(".type k1_kernel,@function")
    e("k1_kernel:")
    e("s_cmp_ge_u32 s2, 256")
    e("s_cbranch_scc1 k1_done")
    load_ptrs()
    if RID:
        e(f"s_add_u32 s2, s2, {RID}")
        e("s_and_b32 s2, s2, 255")
    e(f"s_cmp_lt_u32 s2, {K1_NCONV}")
    e("s_cbranch_scc1 k1_conv")
    e(f"s_cmp_lt_u32 s2, {K1_NCONV + K1_NGEMM}")
    e("s_cbranch_scc1 k1_gemm")
    k1_aux()
    k1_gemm()
    k1_conv()
    gemm2()


def descriptor(name, nv):
    L.append(".p2align 6")
    L.append(f".amdhsa_kernel {name}")
    L.append(f"  .amdhsa_next_free_vgpr {nv}")
    L.append("  .amdhsa_next_free_sgpr 102")
    L.append(f"  .amdhsa_accum_offset {nv}")
    L.append("  .amdhsa_group_segment_fixed_size 0")
    L.append("  .amdhsa_kernarg_size 104")
    L.append("  .amdhsa_user_sgpr_count 2")
    L.append("  .amdhsa_user_sgpr_kernarg_segment_ptr 1")
    L.append("  .amdhsa_system_sgpr_workgroup_id_x 1")
    L.append(".end_amdhsa_kernel")


def main():
    hdr = open(f"cdna_kernels/{NAME}.s.ref").read().split("\n")
    for line in hdr:
        if line.startswith("; Override") or line.startswith("; grid=") or "@launch" in line:
            continue
        if not line.startswith(";"):
            break
        L.append(line)
    L.append(f"; @launch kernel=k1_kernel grid=(256,1,1) block=(512,1,1) lds=163840")
    L.append('.amdgcn_target "amdgcn-amd-amdhsa--gfx950"')
    L.append(".text")
    kernel1()
    L.append('.section .rodata,"a"')
    descriptor("k1_kernel", 256)
    out = sys.argv[1] if len(sys.argv) > 1 else f"cdna_kernels/{NAME}.s"
    open(out, "w").write("\n".join(L) + "\n")


if __name__ == "__main__":
    main()
```

```python
import os
import sys

NAME = "parallel_sum__ssm_conv_h3__glu_gated_bilinear__prompt"

WS_H = 0
HRT = 88 * 1024
WS_Y2 = 0x600000
WS_ST = 0x800000
WS_CS = 0x880000
WS_SP = 0x8C0000
WS_MB = 0x900000
WS_WD = 0xA00000
WDT = 88 * 2048
WS_KV = 0xC00000
ZOFF = 16
MB_H, MB_W, MB_S = 0, 22, 24
MB_CS, MB_ST, MB_KV = 64, 80, 88
MB_C = 128


def env(k, d):
    return int(os.environ.get(k, str(d)))


PSLEEP = env('PSLEEP', 1)
NI = env('NI', 2)
RPG = env('RPG', 2)
SPG = env('SPG', 6)
S_POLL = env('S_POLL', 3)
SKD = env('SKD', 1)
PFO = env('PFO', 0)
PC = env('PC', 0)
PS = env('PS', 1)
SG = env('SG', 2)
ASLEEP = env('ASLEEP', 0)
CPRIO = env('CPRIO', 2)
MAP = env('MAP', 0)
GSLEEP = env('GSLEEP', 0)
EB = env('EB', 1)
EBN = env('EBN', 8)
CGATE = env('CGATE', 0)
CSLEEP = env('CSLEEP', 8)
C8 = env('C8', 1)
XPF = env('XPF', 0)
XSL = env('XSL', 0)
ROT = env('ROT', 0)
UROT = env('UROT', 1)
APF = env('APF', 1)
BL = env('BL', 1)
CEB = env('CEB', 1)
PGAP = env('PGAP', 1)
CPOL = env('CPOL', 2)
PWAIT = env('PWAIT', 1)
RID = env('RID', 240)
AW = env('AW', 8)
YPOS = env('YPOS', 12)
XPOS = env('XPOS', 12)
KVF = env('KVF', 0)
CS3 = env('CS3', 0)
EBW = env('EBW', 0)
STC = ' sc1'
STH = os.environ.get('STH', ' sc1')
STK = os.environ.get('STK', ' sc1')
HOOKF = env('HOOKF', 1)
TW = env('TW', 0)
PT = env('PT', -1)
PTC = env('PTC', 0)
PTM = os.environ.get('PTM', '')
ZE = env('ZE', 0)
C7 = env('C7', 0)
HPRIO = env('HPRIO', 1)
PSH = env('PSH', 1)
KX = env('KX', 0)
PFP = env('PFP', 0)
KXS = env('KXS', 1)
TWS = env('TWS', 4)
WS_FREE = WS_WD + 0x1F0000
L = []


def e(s=""):
    L.append("    " + s if s and not s.endswith(":") else s)


def c(s):
    L.append("    ; " + s)


PROF = len(sys.argv) > 2 and sys.argv[2] == "prof"
WS_PROF = 0xE00000
SPAIR = [6, 8, 10, 12, 14, 88, 90, 92, 94, 96, 100]
sRT = 83


def stamp(k=None):
    if not PROF or k is None:
        return
    if k == 0:
        e("s_memrealtime s[98:99]")
        e("s_waitcnt lgkmcnt(0)")
        e(f"s_mov_b32 s{sRT}, s98")
        for p in SPAIR:
            e(f"s_mov_b32 s{p}, 0")
    e(f"s_memtime s[{SPAIR[k]}:{SPAIR[k] + 1}]")
    e("s_waitcnt lgkmcnt(0)")


def stamp_flush(srd, base):
    if not PROF:
        return
    stamp(10)
    e("s_memrealtime s[98:99]")
    e("s_waitcnt lgkmcnt(0)")
    e("v_writelane_b32 v255, s98, 62")
    e("s_getreg_b32 s98, hwreg(HW_REG_HW_ID)")
    e("v_writelane_b32 v255, s98, 61")
    e(f"v_writelane_b32 v255, s{sRT}, 63")
    for k, p in enumerate(SPAIR):
        e(f"v_writelane_b32 v255, s{p}, {k}")
    e("v_lshrrev_b32 v253, 6, v0")
    e("v_lshl_add_u32 v253, s2, 3, v253")
    e("v_lshlrev_b32 v253, 8, v253")
    e("v_and_b32 v254, 63, v0")
    e("v_lshl_add_u32 v253, v254, 2, v253")
    e(f"v_add_u32 v253, {base}, v253")
    e(f"buffer_store_dword v255, v253, {sr(srd, 4)}, 0 offen")


OOL = []


class ool:
    def __init__(self, label):
        self.label = label

    def __enter__(self):
        global L
        self.saved = L
        L = []
        L.append(f"{self.label}:")

    def __exit__(self, *a):
        global L
        L.append(f"    s_branch {self.label}_ret")
        OOL.extend(L)
        L = self.saved
        L.append(f"{self.label}_ret:")


def flush_ool():
    L.extend(OOL)
    OOL.clear()


def vr(a, n=1):
    return f"v{a}" if n == 1 else f"v[{a}:{a + n - 1}]"


def sr(a, n=1):
    return f"s{a}" if n == 1 else f"s[{a}:{a + n - 1}]"


def make_srd(d, ptr, nbytes):
    e(f"s_mov_b32 s{d}, s{ptr}")
    e(f"s_and_b32 s{d + 1}, s{ptr + 1}, 0xffff")
    e(f"s_mov_b32 s{d + 2}, {nbytes}")
    e(f"s_mov_b32 s{d + 3}, 0x00020000")


P_Q, P_K, P_V, P_SH, P_SK, P_SD, P_BX, P_WG = 16, 18, 20, 22, 24, 26, 28, 30
P_WU, P_WD, P_OUT, P_DBG, P_WS = 32, 34, 36, 38, 40


def load_ptrs():
    e("s_load_dwordx16 s[16:31], s[0:1], 0")
    e("s_load_dwordx8 s[32:39], s[0:1], 64")
    e("s_load_dwordx2 s[40:41], s[0:1], 96")


S_DB2 = 84
S_WS = 56
_lbl = [0]
sZ = 82


def zload():
    e(f"s_load_dword s{sZ}, {sr(P_DBG, 2)}, {ZOFF}")


def zcheck():
    _lbl[0] += 1
    n = _lbl[0]
    e(f"s_cmp_ge_u32 s{sZ}, 1")
    e(f"s_cbranch_scc1 sig_go{n}")
    make_srd(S_DB2, P_DBG, 256)
    e(f"v_mov_b32 v15, {ZOFF}")
    e("s_mov_b32 s80, 0")
    e(f"zp{n}:")
    e(f"buffer_load_dword v14, v15, {sr(S_DB2, 4)}, 0 offen sc1")
    e("s_waitcnt vmcnt(0)")
    e("v_readfirstlane_b32 s81, v14")
    e("s_nop 3")
    e("s_add_u32 s80, s80, 1")
    e("s_cmp_ge_u32 s81, 1")
    e(f"s_cbranch_scc1 zd{n}")
    e("s_sleep 8")
    e("s_cmp_lt_u32 s80, 0x40000")
    e(f"s_cbranch_scc1 zp{n}")
    e(f"zd{n}:")
    e(f"s_mov_b32 s{sZ}, 1")
    e(f"sig_go{n}:")


def pollbytes(sOff, sMask, first=None):
    _lbl[0] += 1
    n = _lbl[0]
    if first is not None:
        e(f"v_cmp_ne_u32 vcc, 0, v{first}")
        e(f"s_and_b32 s81, vcc_lo, s{sMask}")
        e(f"s_cmp_eq_u32 s81, s{sMask}")
        e(f"s_cbranch_scc1 polled{n}")
    e("s_mov_b32 s80, 0")
    e(f"poll{n}:")
    e(f"buffer_load_ubyte v14, v1, {sr(S_WS, 4)}, s{sOff} offen sc1")
    e("s_waitcnt vmcnt(0)")
    e("v_cmp_ne_u32 vcc, 0, v14")
    e("s_add_u32 s80, s80, 1")
    e(f"s_and_b32 s81, vcc_lo, s{sMask}")
    e(f"s_cmp_eq_u32 s81, s{sMask}")
    e(f"s_cbranch_scc1 polled{n}")
    if PSLEEP:
        e(f"s_sleep {PSLEEP}")
    e("s_cmp_lt_u32 s80, 0x40000")
    e(f"s_cbranch_scc1 poll{n}")
    e(f"polled{n}:")


K1_NCONV = 64
K1_NGEMM = 176
STG = 49152
MISC = 147456
L_CS = MISC
L_MN = MISC + 8192
L_RS = MISC + 12288
L_ST = 163328

sSGX = 42
sWM = 43
sNU = 76
sNS = 77
sSG0, sSG1 = 78, 79


def state_init(val, a=12):
    e(f"v_mov_b32 v{a}, {val}")
    e(f"v_mov_b32 v{a + 1}, 0")
    e(f"v_mov_b32 v{a + 2}, 0")
    e(f"v_mov_b32 v{a + 3}, {L_ST}")
    e(f"ds_write_b96 v{a + 3}, {vr(a, 3)}")
    if SKD == 5:
        e(f"ds_write_b32 v{a + 3}, v{a + 1} offset:12")


def lds_wait(off, sMask):
    _lbl[0] += 1
    n = _lbl[0]
    e(f"v_mov_b32 v14, {L_ST}")
    e("s_mov_b32 s80, 0")
    e(f"lw{n}:")
    e(f"ds_read_b32 v15, v14 offset:{off}")
    e("s_waitcnt lgkmcnt(0)")
    e("v_readfirstlane_b32 s81, v15")
    e("s_add_u32 s80, s80, 1")
    e("s_nop 2")
    e(f"s_and_b32 s81, s81, s{sMask}")
    e(f"s_cmp_eq_u32 s81, s{sMask}")
    e(f"s_cbranch_scc1 lwd{n}")
    e("s_sleep 1")
    e("s_cmp_lt_u32 s80, 0x1000000")
    e(f"s_cbranch_scc1 lw{n}")
    e(f"lwd{n}:")


def sig_h(mt2, byte, t):
    e(f"s_and_b32 s{t}, s{mt2}, 3")
    e(f"s_lshl_b32 s{t}, s{t}, 3")
    e(f"s_lshr_b32 s{sSG0}, s{mt2}, 2")
    e(f"s_add_u32 s{sSG0}, s{sSG0}, s{t}")
    e(f"s_lshl_b32 s{sSG0}, s{sSG0}, 8")
    e(f"s_add_u32 s{sSG0}, s{sSG0}, s{byte}")
    e(f"s_add_u32 s{sSG0}, s{sSG0}, {WS_MB}")
    e(f"s_mov_b32 s{sSG1}, 13")


def stats_math(SX, SQ, T, RS, NM):
    return [f"v_mul_f32 v{T}, 0x3b000000, v{SX}",
            f"v_mul_f32 v{T + 2}, 0x3b000000, v{SQ}",
            f"v_fma_f32 v{T + 2}, -v{T}, v{T}, v{T + 2}",
            f"v_max_f32 v{T + 2}, 0, v{T + 2}",
            f"v_cvt_pk_bf16_f32 v{T + 1}, v{T}, v{T + 2}",
            f"v_lshlrev_b32 v{T + 4}, 16, v{T + 1}",
            f"v_and_b32 v{T + 2}, 0xffff0000, v{T + 1}",
            f"v_add_f32 v{T + 2}, 0x3727c5ac, v{T + 2}",
            f"v_cvt_pk_bf16_f32 v{T + 2}, v{T + 2}, v{T + 2}",
            f"v_and_b32 v{T + 2}, 0xffff0000, v{T + 2}",
            f"v_sqrt_f32 v{T + 2}, v{T + 2}",
            "s_nop 0",
            f"v_cvt_pk_bf16_f32 v{T + 2}, v{T + 2}, v{T + 2}",
            f"v_and_b32 v{T + 2}, 0xffff0000, v{T + 2}",
            f"v_rcp_f32 v{RS}, v{T + 2}",
            "s_nop 0",
            f"v_mul_f32 v{NM}, v{T + 4}, v{RS}",
            f"v_sub_f32 v{NM}, 0, v{NM}"]


def pk(op, d, a, b, c_=None):
    return [f"v_{op}_f32 v{d + i}, v{a + i}, v{b + i}" + (f", v{c_ + i}" if c_ is not None else "") for i in range(2)]


def epk(*a):
    for x in pk(*a):
        e(x)


class VMQ:
    def __init__(self, init=()):
        self.q = list(init)

    def emit(self, x, tag=None):
        e(x)
        if x.startswith("buffer_"):
            self.q.append(tag)

    def n(self, *tags):
        last = max(i for i, t in enumerate(self.q) if t in tags)
        return min(63, len(self.q) - 1 - last)

    def wait(self, *tags, extra=""):
        e(f"s_waitcnt vmcnt({self.n(*tags)}){extra}")


def k1_gemm():
    S_X, S_WG, S_WU = 44, 48, 52
    sMT, sNT, sW, sT0, sT1 = 60, 61, 62, 63, 64
    e("k1_gemm:")
    e("s_sub_u32 s3, s2, %d" % K1_NCONV)
    if MAP:
        c("mt = 2 (t%8) + ((t/8)&1) ; nt = t/16")
        e("s_and_b32 s4, s3, 7")
        e("s_lshl_b32 s4, s4, 1")
        e("s_bfe_u32 s5, s3, 0x10003")
        e(f"s_add_u32 s{sMT}, s4, s5")
        e(f"s_lshr_b32 s{sNT}, s3, 4")
    else:
        c("k = 22*(t%8) + t/8 ; mh = k/88 ; rem = k%88 ; nt = rem/8 ; mt = mh*8 + rem%8")
        e("s_and_b32 s4, s3, 7")
        e("s_mul_i32 s4, s4, 22")
        e("s_lshr_b32 s5, s3, 3")
        e("s_add_u32 s4, s4, s5")
        e("s_cmp_ge_u32 s4, 88")
        e("s_cselect_b32 s5, 88, 0")
        e(f"s_cselect_b32 s{sMT}, 8, 0")
        e("s_sub_u32 s4, s4, s5")
        e(f"s_lshr_b32 s{sNT}, s4, 3")
        e("s_and_b32 s4, s4, 7")
        e(f"s_add_u32 s{sMT}, s{sMT}, s4")
    e("v_lshrrev_b32 v2, 6, v0")
    e("v_and_b32 v1, 63, v0")
    e(f"v_readfirstlane_b32 s{sW}, v2")
    e("s_nop 3")
    e(f"s_cmp_ge_u32 s{sW}, 4")
    e("s_cbranch_scc1 k1_help")

    AF, BF, ACC, vAD = 16, 32, 64, 192
    vH, RSV, CO, MO = 210, 212, 216, 224
    sRH, sNH, sHB = 65, 66, 67
    e(f"s_and_b32 s{sRH}, s{sW}, 1")
    e(f"s_lshr_b32 s{sNH}, s{sW}, 1")
    c("A frag read address: 32768 + r*128 + ((2kk+g) ^ ((r>>1)&7))*16 ; r = 64 rh + 32 a + l%32")
    e(f"s_lshl_b32 s{sT0}, s{sRH}, 6")
    e("v_and_b32 v2, 31, v1")
    e(f"v_add_u32 v6, s{sT0}, v2")
    e("v_lshrrev_b32 v7, 1, v2")
    e("v_and_b32 v7, 7, v7")
    e("v_lshrrev_b32 v8, 5, v1")
    e("v_xor_b32 v7, v7, v8")
    e("v_lshlrev_b32 v7, 4, v7")
    e("v_lshl_add_u32 v7, v6, 7, v7")
    e("v_add_u32 v10, 32768, v7")
    e(f"v_lshlrev_b32 v9, 2, v6")
    e(f"v_add_u32 v9, {L_RS}, v9")
    c("B tr-read lane addresses for tiles T0=2nh, T1=2nh+1")
    e("v_and_b32 v2, 15, v1")
    e("v_lshrrev_b32 v6, 2, v2")
    e("v_lshrrev_b32 v7, 5, v1")
    e("v_lshl_add_u32 v7, v7, 3, v6")
    e("v_lshlrev_b32 v7, 8, v7")
    e("v_lshrrev_b32 v8, 4, v1")
    e("v_and_b32 v8, 1, v8")
    e("v_lshlrev_b32 v8, 5, v8")
    e("v_add_u32 v7, v7, v8")
    e("v_and_b32 v8, 3, v2")
    e("v_lshlrev_b32 v8, 3, v8")
    e("v_add_u32 v7, v7, v8")
    e(f"s_lshl_b32 s{sT0}, s{sNH}, 1")
    e(f"v_xor_b32 v8, s{sT0}, v6")
    e("v_lshl_add_u32 v11, v8, 6, v7")
    e("v_xor_b32 v8, 1, v8")
    e("v_lshl_add_u32 v12, v8, 6, v7")
    for t in range(3):
        e(f"v_add_u32 v{vAD + 6 * t}, {STG * t}, v11")
        e(f"v_add_u32 v{vAD + 6 * t + 1}, {STG * t}, v12")
        e(f"v_add_u32 v{vAD + 6 * t + 2}, {STG * t}, v10")
        for kk in range(1, 4):
            e(f"v_xor_b32 v{vAD + 6 * t + 2 + kk}, {32 * kk}, v{vAD + 6 * t + 2}")
    e(f"v_lshlrev_b32 v{vH}, 4, v1")
    c("operand addresses: cs tile (part*4 + 2nh + T), mean tile (2rh + a)")
    e(f"s_lshl_b32 s{sT0}, s{sNH}, 11")
    e(f"s_add_u32 s{sT0}, s{sT0}, {L_CS}")
    e(f"v_add_u32 v10, s{sT0}, v{vH}")
    e(f"s_lshl_b32 s{sT0}, s{sRH}, 11")
    e(f"s_add_u32 s{sT0}, s{sT0}, {L_MN}")
    e(f"v_add_u32 v11, s{sT0}, v{vH}")
    c("h store base: (4mt + 2rh)*HRT + (8nt + 4nh)*1024")
    e(f"s_lshl_b32 s{sT0}, s{sMT}, 1")
    e(f"s_add_u32 s{sT0}, s{sT0}, s{sRH}")
    e(f"s_mul_i32 s{sHB}, s{sT0}, {2 * HRT}")
    e(f"s_lshl_b32 s{sT1}, s{sNT}, 1")
    e(f"s_add_u32 s{sT1}, s{sT1}, s{sNH}")
    sig_h(sT0, sT1, 3)
    e(f"s_lshl_b32 s{sT1}, s{sT1}, 12")
    e(f"s_add_u32 s{sHB}, s{sHB}, s{sT1}")
    e(f"s_mov_b32 s{sSGX}, 0xff")
    e(f"s_mov_b32 s{sWM}, 0")
    e(f"s_mov_b32 s{sNU}, 1")
    e(f"s_mov_b32 s{sNS}, 0")
    e(f"v_mov_b32 v14, {L_ST}")
    e("v_mov_b32 v15, 1")
    e("s_waitcnt lgkmcnt(0)")
    stamp(0)
    make_srd(S_WS, P_WS, 0x1000000)
    if PT >= 0:
        e("v_lshrrev_b32 v232, 5, v1")
        e(f"v_mul_u32_u24 v232, {HRT}, v232")
        e("v_and_b32 v233, 31, v1")
        e("v_lshl_add_u32 v232, v233, 7, v232")
    if TW & 2:
        c("touch pages used later: d_debug now; own h lines, w_down fragments, d_out after a while")
        make_srd(S_WG, P_DBG, 256)
        make_srd(S_X, P_OUT, 2048 * 1024)
        e(f"v_mul_u32_u24 v232, {HRT}, v1")
        e(f"v_add_u32 v232, s{sHB}, v232")
        e(f"s_mov_b32 s3, {WS_FREE}")
        e("v_writelane_b32 v232, s3, 2")
        e("s_lshl_b32 s3, s2, 13")
        e(f"s_lshl_b32 s4, s{sW}, 11")
        e("s_add_u32 s3, s3, s4")
        e("s_mov_b64 exec, 1")
        e(f"buffer_load_dword v233, off, {sr(S_WG, 4)}, 0 offset:192 sc1")
        for _ in range(TWS):
            e("s_sleep 8")
        e("s_mov_b64 exec, 7")
        e(f"buffer_load_dword v233, v232, {sr(S_WS, 4)}, 0 offen")
        e("s_mov_b64 exec, 1")
        e(f"buffer_load_dword v233, off, {sr(S_X, 4)}, s3")
        e("s_mov_b64 exec, -1")
    if XPF:
        c("L2 prefetch: W rows 64(mt%8).. of the other part, x slabs 2+2(nt%3), 3+2(nt%3)")
        for _ in range(XSL):
            e("s_sleep 4")
        make_srd(S_X, P_Q, 2048 * 1024)
        e(f"s_cmp_ge_u32 s{sMT}, 8")
        e(f"s_cselect_b32 s{S_WG}, s{P_WG}, s{P_WU}")
        e(f"s_cselect_b32 s{S_WG + 1}, s{P_WG + 1}, s{P_WU + 1}")
        e(f"s_and_b32 s{S_WG + 1}, s{S_WG + 1}, 0xffff")
        e(f"s_mov_b32 s{S_WG + 2}, {512 * 2752}")
        e(f"s_mov_b32 s{S_WG + 3}, 0x00020000")
        e("v_lshrrev_b32 v2, 4, v1")
        e("v_and_b32 v3, 15, v1")
        e("v_lshlrev_b32 v3, 4, v3")
        e("v_lshl_add_u32 v4, v2, 10, v3")
        e("v_mul_u32_u24 v2, 2752, v2")
        e("v_add_u32 v3, v2, v3")
        e(f"s_and_b32 s3, s{sMT}, 7")
        e("s_lshl_b32 s3, s3, 2")
        e(f"s_add_u32 s3, s3, s{sW}")
        e(f"s_mul_i32 s3, s3, {16 * 2752}")
        e(f"s_lshl_b32 s{sT0}, s{sNT}, 8")
        e(f"s_add_u32 s3, s3, s{sT0}")
        e(f"s_mul_i32 s{sT0}, s{sNT}, 11")
        e(f"s_lshr_b32 s{sT0}, s{sT0}, 5")
        e(f"s_mul_i32 s{sT0}, s{sT0}, 3")
        e(f"s_sub_u32 s{sT0}, s{sNT}, s{sT0}")
        e(f"s_lshl_b32 s{sT0}, s{sT0}, 8")
        e(f"s_lshl_b32 s4, s{sMT}, 2")
        e(f"s_add_u32 s4, s4, s{sW}")
        e("s_lshl_b32 s4, s4, 15")
        e(f"s_add_u32 s4, s4, s{sT0}")
        e("s_add_u32 s4, s4, 256")
        for j in range(8):
            if XPF & 1:
                e(f"buffer_load_dwordx4 v[232:235], v4, {sr(S_X, 4)}, s4 offen")
                e("s_add_u32 s4, s4, 4096")
            if j < 4 and XPF & 2:
                e(f"buffer_load_dwordx4 v[236:239], v3, {sr(S_WG, 4)}, s3 offen")
                e(f"s_add_u32 s3, s3, {4 * 2752}")

    M = []
    R = []

    def rd(ins, reg, n, slab):
        R.append(dict(ins=ins, regs=set(range(reg, reg + n)), slab=slab))
        return len(R) - 1

    def rdA(s, kk, a, reg):
        return rd(f"ds_read_b128 {vr(reg, 4)}, v{vAD + 6 * (s % 3) + 2 + kk} offset:{4096 * a}", reg, 4, s)

    def rdB(s, kk, part, T, reg):
        return [rd(f"ds_read_b64_tr_b16 {vr(reg + 2 * u, 2)}, v{vAD + 6 * (s % 3) + T} "
                   f"offset:{part * 16384 + (16 * kk + 4 * u) * 256}", reg + 2 * u, 2, s) for u in range(2)]

    def mf(acc, b, a, needs, first=False):
        cc = "0" if first else vr(acc, 16)
        M.append(dict(ins=f"v_mfma_f32_32x32x16_bf16 {vr(acc, 16)}, {vr(b, 4)}, {vr(a, 4)}, {cc}", needs=needs,
                      regs=set(range(b, b + 4)) | set(range(a, a + 4)), bar=None, side=None))

    for s in range(7):
        for kk in range(4):
            st = kk & 1
            a0 = rdA(s, kk, 0, AF + 8 * st)
            b = [rdB(s, kk, ti >> 1, ti & 1, BF + 16 * st + 4 * ti) for ti in range(4)]
            a1 = rdA(s, kk, 1, AF + 8 * st + 4)
            for m in range(8):
                a, ti = m >> 2, m & 3
                mf(ACC + 16 * m, BF + 16 * st + 4 * ti, AF + 8 * st + 4 * a, [a1 if a else a0] + b[ti], s == 0 and kk == 0)
                if kk == 3 and m == 0:
                    M[-1]["bar"] = s
    VM = []

    def epilogue(a, T):
        G, U = ACC + 16 * (4 * a + T), ACC + 16 * (4 * a + 2 + T)
        rs = vr(RSV + 2 * a, 2)
        last = (a, T) == (1, 1)
        s = []
        for f in range(2):
            for r in range(8 * f, 8 * f + 8, 2):
                if last:
                    s += [f"v_pk_mul_f32 {vr(G + r, 2)}, {vr(G + r, 2)}, {rs}",
                          f"v_pk_mul_f32 {vr(U + r, 2)}, {vr(U + r, 2)}, {rs}"]
                else:
                    s += pk("mul", G + r, G + r, RSV + 2 * a) + pk("mul", U + r, U + r, RSV + 2 * a)
                s += [f"v_cvt_pk_bf16_f32 v{G + r}, 0, v{G + r}",
                      f"v_cvt_pk_bf16_f32 v{G + r + 1}, 0, v{G + r + 1}",
                      f"v_cvt_pk_bf16_f32 v{U + r}, 0, v{U + r}",
                      f"v_cvt_pk_bf16_f32 v{U + r + 1}, 0, v{U + r + 1}"]
                if last:
                    s += [f"v_pk_mul_f32 {vr(G + r, 2)}, {vr(G + r, 2)}, {vr(U + r, 2)}"]
                else:
                    s += pk("mul", G + r, G + r, U + r)
                s += [f"v_cvt_pk_bf16_f32 v{G + r // 2}, v{G + r}, v{G + r + 1}"]
            s += [f"s_add_u32 s{sT0}, s{sHB}, {a * HRT + (2 * T + f) * 1024}",
                  f"buffer_store_dwordx4 {vr(G + 4 * f, 4)}, v{vH}, {sr(S_WS, 4)}, s{sT0} offen{STH}"]
        return s

    rA = {}
    extra = []
    for gi, (a, T) in enumerate([(0, 0), (0, 1), (1, 0), (1, 1)]):
        for kk in range(4):
            n = 4 * gi + kk
            if T == 0:
                rA[kk] = rdA(7, kk, a, AF + 4 * kk)
            slot = BF + 8 * (n % 4)
            bg = rdB(7, kk, 0, T, slot)
            bu = rdB(7, kk, 1, T, slot + 4)
            mf(ACC + 16 * (4 * a + T), slot, AF + 4 * kk, [rA[kk]] + bg)
            mf(ACC + 16 * (4 * a + 2 + T), slot + 4, AF + 4 * kk, [rA[kk]] + bu)
            if gi == 0 and kk == 1:
                for aa in range(2):
                    extra.append(rd(f"ds_read_b128 {vr(MO + 4 * aa, 4)}, v11 offset:{1024 * aa}", MO + 4 * aa, 4, 7))
                    extra.append(rd(f"ds_read_b32 v{RSV + 2 * aa}, v9 offset:{128 * aa}", RSV + 2 * aa, 1, 7))
                    extra.append(rd(f"ds_read_b32 v{RSV + 2 * aa + 1}, v9 offset:{128 * aa}", RSV + 2 * aa + 1, 1, 7))
        for part in range(2):
            cid = rd(f"ds_read_b128 {vr(CO + 4 * part, 4)}, v10 offset:{4096 * part + 1024 * T}", CO + 4 * part, 4, 7)
            mf(ACC + 16 * (4 * a + 2 * part + T), CO + 4 * part, MO + 4 * a, [cid] + extra)
        M[-1]["side"] = epilogue(a, T)
    first_use = {}
    for i, m in enumerate(M):
        for r in m["needs"]:
            first_use.setdefault(r, i)
    for ri, r in enumerate(R):
        r["after"] = max([i for i in range(first_use[ri]) if M[i]["regs"] & r["regs"]], default=-1)
    LQ = []
    nxt = [0]
    slab_ok = [0]

    def issue(i, n):
        while n > 0 and nxt[0] < len(R):
            r = R[nxt[0]]
            if r["after"] > i or r["slab"] > slab_ok[0] or len(LQ) >= 14:
                break
            e(r["ins"])
            LQ.append(nxt[0])
            nxt[0] += 1
            n -= 1

    def lwait(ids):
        pend = [LQ.index(x) for x in ids if x in LQ]
        for x in ids:
            assert x < nxt[0], "read not issued"
        if pend:
            last = max(pend)
            e(f"s_waitcnt lgkmcnt({len(LQ) - 1 - last})")
            del LQ[:last + 1]

    e("s_barrier")
    stamp(1)
    issue(-1, 10)
    side = []
    for i, m in enumerate(M):
        while any(x >= nxt[0] for x in m["needs"]):
            k = nxt[0]
            issue(i - 1, 1)
            assert nxt[0] > k, (i, m, R[k], LQ)
        lwait(m["needs"])
        e(m["ins"])
        if m["bar"] is not None:
            assert all(R[x]["slab"] > m["bar"] for x in range(nxt[0], len(R)))
            e("s_waitcnt lgkmcnt(0)")
            LQ.clear()
            e("s_barrier")
            slab_ok[0] = m["bar"] + 1
            if m["bar"] == PT:
                c("read the lines this wave writes later")
                e(f"buffer_load_dword v{233 if env('PTW', 1) else 5}, v232, {sr(S_WS, 4)}, s{sHB} offen{PTM}")
            if m["bar"] == 6 and PT >= 0 and env('PTW', 1):
                e("s_waitcnt vmcnt(0)")
            if m["bar"] == 3:
                if TW & 2:
                    e("s_waitcnt vmcnt(0)")
                stamp(2)
            if m["bar"] == 6:
                stamp(3)
        if m["side"]:
            side.append(("gate", i + 2))
            side.extend(m["side"])
        issue(i, RPG)
        n = SPG
        while side and n > 0:
            if isinstance(side[0], tuple):
                if side[0][1] > i:
                    break
                side.pop(0)
                continue
            e(side.pop(0))
            n -= 1
    assert not LQ and nxt[0] == len(R)
    if not BL:
        e("s_mov_b64 exec, 1")
        e("ds_add_u32 v14, v15")
        e("s_mov_b64 exec, -1")
    while side:
        x = side.pop(0)
        if isinstance(x, tuple):
            e("s_nop 15")
            e("s_nop 3")
        else:
            e(x)
    stamp(4)
    e(f"s_mov_b32 s{sZ}, 1")
    if BL:
        c("GEMM2 B fragments from LDS (staged by the helper waves)")
        e(f"s_mul_i32 s{sT0}, s{sRH}, 22528")
        e(f"s_cmp_eq_u32 s{sNH}, 0")
        e(f"s_cselect_b32 s{sT1}, {2 * STG}, 0")
        e(f"s_add_u32 s{sT0}, s{sT0}, s{sT1}")
        e(f"v_add_u32 v2, s{sT0}, v{vH}")
        e(f"s_mov_b32 s{sT0}, 15")
        lds_wait(8, sT0)
        for i in range(22):
            e(f"ds_read_b128 {vr(168 + 4 * i, 4)}, v2 offset:{1024 * i}")
        e("v_mov_b32 v15, 1")
        e("s_waitcnt lgkmcnt(0)")
        e("s_mov_b64 exec, 1")
        e("ds_add_u32 v14, v15")
        e("s_mov_b64 exec, -1")
        e(f"s_mov_b32 s{sWM}, -1")
    e("s_branch g2_unit")

    sH, sWB, sXB, sLB, sPM, sMBX = 65, 66, 67, 68, 69, 70
    sEX = 72
    S_OWN = 76
    vX0, vX1, vWD, vPO = 10, 11, 12, 13
    PW, PX = 16, 32
    T = 64
    e("k1_help:")
    e(f"s_sub_u32 s{sH}, s{sW}, 4")
    c("partial sources: W rows 64(mt%8) + 16j + l/4, cols 128nt + 32h + 8(l%4) ; x rows 128mt + 32h + 8j + l/8, K slab nt%8")
    e("v_lshrrev_b32 v2, 2, v1")
    e("v_mul_u32_u24 v2, 2752, v2")
    e("v_and_b32 v3, 3, v1")
    e("v_lshl_add_u32 v8, v3, 4, v2")
    e(f"s_and_b32 s{sT0}, s{sMT}, 7")
    e(f"s_mul_i32 s{sT0}, s{sT0}, {64 * 2752}")
    e(f"s_lshl_b32 s{sT1}, s{sNT}, 8")
    e(f"s_add_u32 s{sT0}, s{sT0}, s{sT1}")
    e(f"s_lshl_b32 s3, s{sH}, 6")
    e(f"s_add_u32 s3, s3, s{sT0}")
    e("v_lshrrev_b32 v2, 3, v1")
    e("v_and_b32 v3, 7, v1")
    e("v_lshlrev_b32 v4, 4, v3")
    e("v_lshl_add_u32 v9, v2, 10, v4")
    e(f"s_lshl_b32 s{sXB}, s{sMT}, 17")
    e(f"s_lshl_b32 s{sT0}, s{sH}, 15")
    e(f"s_add_u32 s{sXB}, s{sXB}, s{sT0}")
    e(f"s_and_b32 s4, s{sNT}, 7")
    e("s_lshl_b32 s4, s4, 7")
    e(f"s_add_u32 s4, s4, s{sXB}")
    c("x DMA lane offset: row = l>>3, src chunk = (l&7) ^ (l>>4) (^4 for odd 8-row groups)")
    e("v_lshrrev_b32 v4, 4, v1")
    e("v_xor_b32 v3, v3, v4")
    e("v_lshlrev_b32 v3, 4, v3")
    e(f"v_lshl_add_u32 v{vX0}, v2, 10, v3")
    e(f"v_xor_b32 v{vX1}, 64, v{vX0}")
    c("W DMA lane offsets")
    e("v_and_b32 v5, 15, v1")
    e("v_lshlrev_b32 v6, 2, v4")
    e("v_xor_b32 v5, v5, v6")
    e("v_lshlrev_b32 v5, 4, v5")
    e("v_mul_u32_u24 v6, 2752, v4")
    e(f"v_add_u32 v{vWD}, v5, v6")
    e(f"s_mul_i32 s{sWB}, s{sH}, {16 * 2752}")
    e(f"s_add_u32 s{sWB}, s{sWB}, s{sT1}")
    e(f"s_lshl_b32 s{sLB}, s{sH}, 12")
    e("s_waitcnt lgkmcnt(0)")
    stamp(0)
    make_srd(S_X, P_Q, 2048 * 1024)
    make_srd(S_WG, P_WG, 512 * 2752)
    make_srd(S_WU, P_WU, 512 * 2752)
    e(f"s_cmp_ge_u32 s{sMT}, 8")
    e(f"s_cselect_b32 s{S_OWN}, s{S_WU}, s{S_WG}")
    e(f"s_cselect_b32 s{S_OWN + 1}, s{S_WU + 1}, s{S_WG + 1}")
    e(f"s_mov_b32 s{S_OWN + 2}, {512 * 2752}")
    e(f"s_mov_b32 s{S_OWN + 3}, 0x00020000")
    V = VMQ()

    def pf():
        for j in range(4):
            V.emit(f"buffer_load_dwordx4 {vr(PW + 4 * j, 4)}, v8, {sr(S_OWN, 4)}, s3 offen", "pf")
            V.emit(f"buffer_load_dwordx4 {vr(PX + 4 * j, 4)}, v9, {sr(S_X, 4)}, s4 offen", "pf")
            if j < 3:
                e(f"s_add_u32 s3, s3, {16 * 2752}")
                e("s_add_u32 s4, s4, 8192")

    def dma(s):
        st = (s % 3) * STG
        for j in range(4):
            e(f"s_add_u32 m0, s{sLB}, {st + 32768 + j * 1024}")
            e(f"s_add_u32 s{sT0}, s{sXB}, {j * 8192 + 128 * s}")
            V.emit(f"buffer_load_dwordx4 v{vX1 if j & 1 else vX0}, {sr(S_X, 4)}, s{sT0} offen lds", f"s{s}")
        for j in range(4):
            e(f"s_add_u32 s{sT0}, s{sWB}, {(64 * s + 4 * j) * 2752}")
            for part in range(2):
                e(f"s_add_u32 m0, s{sLB}, {st + part * 16384 + j * 1024}")
                V.emit(f"buffer_load_dwordx4 v{vWD}, {sr(S_WU if part else S_WG, 4)}, s{sT0} offen lds", f"s{s}")

    for _ in range(GSLEEP):
        e("s_sleep 8")
    for s in range(NI):
        if s == PFO:
            pf()
        dma(s)
    if PFO == NI:
        pf()
    make_srd(S_WS, P_WS, 0x1000000)
    state_init(0, 4)
    e("s_lshl_b32 s%d, s2, 8" % sMBX)
    e(f"s_add_u32 s{sMBX}, s{sMBX}, {WS_MB + 64}")
    c("flags needed: cs partials of part h/2 (8 bytes) + stats partials (8 bytes)")
    e(f"s_lshr_b32 s{sT0}, s{sH}, 1")
    e(f"s_lshl_b32 s{sT0}, s{sT0}, 3")
    e(f"s_lshl_b32 s{sPM}, 0xff, s{sT0}")
    e(f"s_or_b32 s{sPM}, s{sPM}, 0xff0000")

    def part_cs():
        V.wait("pf")
        stamp(4)
        zload()
        c("partial column sums")
        for j in range(4):
            for d in range(4):
                e(f"v_lshlrev_b32 v{T + 8 * j + 2 * d}, 16, v{PW + 4 * j + d}")
                e(f"v_and_b32 v{T + 8 * j + 2 * d + 1}, 0xffff0000, v{PW + 4 * j + d}")
        for d in range(4):
            epk("add", T + 2 * d, T + 2 * d, T + 8 + 2 * d)
            epk("add", T + 16 + 2 * d, T + 16 + 2 * d, T + 24 + 2 * d)
        for d in range(4):
            epk("add", T + 2 * d, T + 2 * d, T + 16 + 2 * d)
        e("s_nop 1")
        for i in range(4):
            e(f"v_permlane32_swap_b32 v{T + i}, v{T + 4 + i}")
        e("s_nop 1")
        for i in range(0, 4, 2):
            epk("add", T + i, T + i, T + 4 + i)
        e("s_nop 1")
        for i in range(2):
            e(f"v_permlane16_swap_b32 v{T + i}, v{T + 2 + i}")
        e("s_nop 1")
        epk("add", T, T, T + 2)
        for sh in (4, 8):
            e("s_nop 1")
            for i in range(2):
                e(f"v_add_f32_dpp v{T + i}, v{T + i}, v{T + i} row_ror:{sh} row_mask:0xf bank_mask:0xf")
        c("store: lanes with l%16 < 4: col = 32h + 8(l%4) + 2(l/16)")
        e("v_and_b32 v2, 3, v1")
        e("v_lshrrev_b32 v3, 4, v1")
        e("v_lshlrev_b32 v3, 3, v3")
        e("v_lshl_add_u32 v2, v2, 5, v3")
        e(f"s_lshl_b32 s{sT0}, s{sNT}, 4")
        e(f"s_add_u32 s{sT0}, s{sT0}, s{sMT}")
        e(f"s_lshl_b32 s{sT0}, s{sT0}, 9")
        e(f"s_lshl_b32 s{sT1}, s{sH}, 7")
        e(f"s_add_u32 s{sT0}, s{sT0}, s{sT1}")
        e(f"s_add_u32 s{sT0}, s{sT0}, {WS_CS}")
        e("s_mov_b32 exec_lo, 0x000f000f")
        e("s_mov_b32 exec_hi, 0x000f000f")
        V.emit(f"buffer_store_dwordx2 {vr(T, 2)}, v2, {sr(S_WS, 4)}, s{sT0} offen sc1", "pst")
        e("s_mov_b64 exec, -1")

    def part_st():
        c("partial row stats")
        U = T + 8
        SS = T + 48
        for j in range(4):
            for d in range(4):
                e(f"v_lshlrev_b32 v{U + 8 * j + 2 * d}, 16, v{PX + 4 * j + d}")
                e(f"v_and_b32 v{U + 8 * j + 2 * d + 1}, 0xffff0000, v{PX + 4 * j + d}")
        for j in range(4):
            u = U + 8 * j
            q = PX + 4 * j
            epk("mul", q, u, u)
            for d in range(1, 4):
                epk("fma", q, u + 2 * d, u + 2 * d, q)
            epk("add", u, u, u + 2)
            epk("add", u + 4, u + 4, u + 6)
            epk("add", u, u, u + 4)
            e(f"v_add_f32 v{SS + 2 * j}, v{u}, v{u + 1}")
            e(f"v_add_f32 v{SS + 2 * j + 1}, v{q}, v{q + 1}")
        for ctl in ("quad_perm:[1,0,3,2]", "quad_perm:[2,3,0,1]", "row_half_mirror"):
            e("s_nop 1")
            for i in range(8):
                e(f"v_add_f32_dpp v{SS + i}, v{SS + i}, v{SS + i} {ctl} row_mask:0xf bank_mask:0xf")
        e("v_and_b32 v2, 7, v1")
        for j in range(1, 4):
            e(f"v_cmp_eq_u32 vcc, {j}, v2")
            e(f"v_cndmask_b32 v{SS}, v{SS}, v{SS + 2 * j}, vcc")
            e(f"v_cndmask_b32 v{SS + 1}, v{SS + 1}, v{SS + 2 * j + 1}, vcc")
        e("v_lshrrev_b32 v3, 3, v1")
        e("v_lshl_add_u32 v2, v2, 3, v3")
        e("v_lshlrev_b32 v2, 3, v2")
        e(f"s_lshl_b32 s{sT0}, s{sMT}, 4")
        e(f"s_add_u32 s{sT0}, s{sT0}, s{sNT}")
        e(f"s_lshl_b32 s{sT0}, s{sT0}, 10")
        e(f"s_lshl_b32 s{sT1}, s{sH}, 8")
        e(f"s_add_u32 s{sT0}, s{sT0}, s{sT1}")
        e(f"s_add_u32 s{sT0}, s{sT0}, {WS_SP}")
        e("s_mov_b32 exec_lo, 0x0f0f0f0f")
        e("s_mov_b32 exec_hi, 0x0f0f0f0f")
        V.emit(f"buffer_store_dwordx2 {vr(SS, 2)}, v2, {sr(S_WS, 4)}, s{sT0} offen sc1", "pst")
        e("s_mov_b64 exec, -1")

    if PC < 0:
        part_cs()
    if PS < 0:
        part_st()
    c("signal addresses: lanes 0-15: (mt'=l, nt) byte MB_CS + mt ; lanes 16-26: (mt, nt'=l-16) byte MB_ST + nt (nt < 8)")
    e("v_cmp_gt_u32 vcc, 16, v1")
    e(f"v_mov_b32 v2, s{sMT}")
    e(f"v_mov_b32 v3, s{sNT}")
    e("v_subrev_u32 v4, 16, v1")
    e("v_cndmask_b32 v2, v2, v1, vcc")
    e("v_cndmask_b32 v3, v4, v3, vcc")
    if MAP:
        e("v_and_b32 v4, 1, v2")
        e("v_lshl_add_u32 v4, v3, 1, v4")
        e("v_lshrrev_b32 v2, 1, v2")
        e("v_lshl_add_u32 v2, v4, 3, v2")
    else:
        e("v_lshrrev_b32 v4, 3, v2")
        e("v_mul_u32_u24 v4, 88, v4")
        e("v_lshl_add_u32 v4, v3, 3, v4")
        e("v_and_b32 v2, 7, v2")
        e("v_add_u32 v4, v4, v2")
        e("v_mul_u32_u24 v2, 2979, v4")
        e("v_lshrrev_b32 v2, 16, v2")
        e("v_mul_u32_u24 v3, 22, v2")
        e("v_sub_u32 v3, v4, v3")
        e("v_lshl_add_u32 v2, v3, 3, v2")
    e("v_lshlrev_b32 v2, 8, v2")
    e(f"s_add_u32 s{sT0}, s{sMT}, {WS_MB + 64 * 256 + MB_CS}")
    e(f"s_add_u32 s{sT1}, s{sNT}, {WS_MB + 64 * 256 + MB_ST}")
    e(f"v_mov_b32 v3, s{sT1}")
    e(f"v_mov_b32 v4, s{sT0}")
    e("v_cndmask_b32 v3, v3, v4, vcc")
    e(f"v_add_u32 v{vPO}, v2, v3")
    e(f"s_cmp_lt_u32 s{sNT}, 8")
    e(f"s_cselect_b32 s{sEX}, 0x7ffffff, 0xffff") if 0 else None
    e(f"s_mov_b32 s{sEX}, 0xffff")
    e(f"s_cselect_b32 s{sEX}, 0x7ffffff, s{sEX}")
    e(f"s_cmp_eq_u32 s{sH}, 0")
    e(f"s_cselect_b32 s{sEX}, s{sEX}, 0")
    e(f"s_mov_b32 s{sEX + 1}, 0")
    V.wait("s0", extra=" lgkmcnt(0)")
    e("s_barrier")
    stamp(1)
    for s in range(NI, 3):
        dma(s)
    PL = 16
    for s in range(7):
        tags = [f"s{s + 1}"] + (["pst"] if s == SG else [])
        if s == 6:
            T = 40
            if BL:
                V.wait("pl", "s7")
            else:
                V.wait("pl", "s7", "mb2")
                e(f"s_mov_b32 s{sPM}, {3 << (MB_KV - 64)}")
                pollbytes(sMBX, sPM, first=8)
            c("column sum operand: lane = column 64(h&1) + l of part h/2: (c1|c2, c3|0, 0, 0)")
            for a, b in ((0, 1), (2, 3), (4, 5), (6, 7), (0, 2), (4, 6), (0, 4)):
                e(f"v_add_f32 v{PL + a}, v{PL + a}, v{PL + b}")
                epk("add", PL + 8 + 2 * a, PL + 8 + 2 * a, PL + 8 + 2 * b)
            e(f"v_cvt_pk_bf16_f32 v4, 0, v{PL}")
            e(f"v_sub_f32 v{PL}, v{PL}, v4")
            e(f"v_cvt_pk_bf16_f32 v5, 0, v{PL}")
            e(f"v_sub_f32 v{PL}, v{PL}, v5")
            e(f"v_cvt_pk_bf16_f32 v{T + 1}, v{PL}, 0")
            e(f"v_lshrrev_b32 v4, 16, v4")
            e(f"v_or_b32 v{T}, v4, v5")
            for r in range(2, 8):
                e(f"v_mov_b32 v{T + r}, 0")
            e("v_lshrrev_b32 v2, 5, v1")
            e("v_and_b32 v3, 31, v1")
            e("v_lshlrev_b32 v3, 4, v3")
            e("v_lshl_add_u32 v2, v2, 10, v3")
            e(f"s_lshl_b32 s{sT0}, s{sH}, 11")
            e(f"s_add_u32 s{sT0}, s{sT0}, {L_CS}")
            e(f"v_add_u32 v2, s{sT0}, v2")
            e(f"ds_write_b128 v2, {vr(T, 4)}")
            e(f"ds_write_b128 v2, {vr(T + 4, 4)} offset:512")
            c("row statistics of row tile h (lanes 0-31)")
            for x in stats_math(PL + 8, PL + 9, T + 8, T + 16, T + 17):
                e(x)
            e(f"v_xor_b32 v4, 0x80000000, v{T + 12}")
            e(f"v_lshrrev_b32 v{T + 1}, 16, v4")
            e(f"v_or_b32 v{T}, v4, v{T + 1}")
            e("v_cmp_gt_u32 vcc, 32, v1")
            e(f"v_cndmask_b32 v{T}, 0, v{T}, vcc")
            e(f"v_cndmask_b32 v{T + 1}, 0, v{T + 1}, vcc")
            e(f"s_lshl_b32 s{sT0}, s{sH}, 10")
            e(f"s_add_u32 s{sT0}, s{sT0}, {L_MN}")
            e(f"v_lshl_add_u32 v2, v1, 4, s{sT0}")
            e(f"ds_write_b128 v2, {vr(T, 4)}")
            e(f"s_lshl_b32 s{sT0}, s{sH}, 7")
            e(f"s_add_u32 s{sT0}, s{sT0}, {L_RS}")
            e(f"v_lshl_add_u32 v2, v1, 2, s{sT0}")
            e("s_mov_b32 exec_hi, 0")
            e(f"ds_write_b32 v2, v{T + 16}")
            c("nt == 0: (rs, nm) -> ws")
            e(f"s_lshl_b32 s{sT0}, s{sMT}, 10")
            e(f"s_lshl_b32 s{sT1}, s{sH}, 8")
            e(f"s_add_u32 s{sT0}, s{sT0}, s{sT1}")
            e(f"s_add_u32 s{sT0}, s{sT0}, {WS_ST}")
            e("v_lshlrev_b32 v2, 3, v1")
            e(f"s_cmp_eq_u32 s{sNT}, 0")
            e("s_cselect_b32 exec_lo, -1, 0")
            V.emit(f"buffer_store_dwordx2 {vr(T + 16, 2)}, v2, {sr(S_WS, 4)}, s{sT0} offen sc1", "ss")
            e("s_mov_b64 exec, -1")
            e("s_waitcnt lgkmcnt(0)")
        else:
            V.wait(*tags)
        e("s_barrier")
        if s == 3:
            stamp(2)
        if s == 6:
            stamp(3)
        if s == SG:
            c("everybody's partial stores are complete -> wave 4 signals the consumers")
            zcheck()
            e("v_mov_b32 v2, 1")
            e(f"s_mov_b64 exec, {sr(sEX, 2)}")
            V.emit(f"buffer_store_byte v2, v{vPO}, {sr(S_WS, 4)}, 0 offen sc1", "sig")
            e("s_mov_b64 exec, -1")
        if s == S_POLL:
            V.emit(f"buffer_load_ubyte v8, v1, {sr(S_WS, 4)}, s{sMBX} offen sc1", "mb")
        if s + 3 < 8:
            dma(s + 3)
        if s == PC:
            part_cs()
        if s == PS:
            part_st()
            e("s_waitcnt lgkmcnt(0)")
        if s == 5 and not BL:
            V.emit(f"buffer_load_ubyte v8, v1, {sr(S_WS, 4)}, s{sMBX} offen sc1", "mb2")
        if s == S_POLL + 1:
            V.wait("mb")
            pollbytes(sMBX, sPM, first=8)
            stamp(9 if EB else None)
            if EB:
                c("w_down fragments ready? (vcc = flags of the last read)")
                e(f"s_bfe_u32 s{sT0}, vcc_lo, {0x20000 + MB_KV - 64}")
                e(f"s_cmp_eq_u32 s{sT0}, 3")
                e(f"s_cselect_b32 s{sWM}, -1, 0")
            c("partial loads")
            e(f"s_lshl_b32 s{sT0}, s{sNT}, 13")
            e(f"s_lshr_b32 s{sT1}, s{sH}, 1")
            e(f"s_lshl_b32 s{sT1}, s{sT1}, 12")
            e(f"s_add_u32 s{sT0}, s{sT0}, s{sT1}")
            e(f"s_and_b32 s{sT1}, s{sH}, 1")
            e(f"s_lshl_b32 s{sT1}, s{sT1}, 8")
            e(f"s_add_u32 s{sT0}, s{sT0}, s{sT1}")
            e(f"s_add_u32 s{sT0}, s{sT0}, {WS_CS}")
            e("v_lshlrev_b32 v2, 2, v1")
            for j in range(8):
                V.emit(f"buffer_load_dword v{PL + j}, v2, {sr(S_WS, 4)}, s{sT0} offen offset:{512 * j}", "pl")
            e(f"s_lshl_b32 s{sT0}, s{sMT}, 14")
            e(f"s_lshl_b32 s{sT1}, s{sH}, 8")
            e(f"s_add_u32 s{sT0}, s{sT0}, s{sT1}")
            e(f"s_add_u32 s{sT0}, s{sT0}, {WS_SP}")
            e(f"s_add_u32 s{sT1}, s{sT0}, 4096")
            e("v_and_b32 v2, 31, v1")
            e("v_lshlrev_b32 v2, 3, v2")
            for j in range(8):
                V.emit(f"buffer_load_dwordx2 {vr(PL + 8 + 2 * j, 2)}, v2, {sr(S_WS, 4)}, s{sT1 if j >= 4 else sT0} offen "
                       f"offset:{1024 * (j & 3)}", "pl")
        if EB and s == max(4, S_POLL + 1):
            c("GEMM2 B fragments of this wave + L2 prefetch of a quarter of unit (id/8)&3")
            e("s_lshr_b32 s3, s2, 5")
            e(f"s_mul_i32 s3, s3, {WDT}")
            e(f"s_add_u32 s3, s3, {WS_WD}")
            e("s_bfe_u32 s4, s2, 0x20003")
            if UROT:
                e(f"s_lshr_b32 s{sT1}, s2, 5")
                e(f"s_add_u32 s4, s4, s{sT1}")
                e("s_and_b32 s4, s4, 7")
            e(f"s_mul_i32 s4, s4, {11 * 2048}")
            e(f"s_mul_i32 s{sT0}, s{sH}, 5632")
            e(f"s_add_u32 s4, s4, s{sT0}")
            e("s_add_u32 s4, s4, s3")
            if UROT:
                e(f"s_add_u32 s{sT0}, s{sW}, s{sT1}")
                e(f"s_and_b32 s{sT0}, s{sT0}, 7")
                e(f"s_mul_i32 s{sT0}, s{sT0}, {11 * 2048}")
            else:
                e(f"s_mul_i32 s{sT0}, s{sW}, {11 * 2048}")
            e(f"s_add_u32 s3, s3, s{sT0}")
            e("v_lshlrev_b32 v9, 4, v1")
            ebl = []
            for i in range(22):
                ebl.append(f"buffer_load_dwordx4 {vr(168 + 4 * i, 4)}, v9, {sr(S_WS, 4)}, s3 offen offset:{1024 * (i & 3)}")
                if i & 3 == 3:
                    ebl[-1] += "|s_add_u32 s3, s3, 4096"
            if EB & 2:
                for i in range(6):
                    ebl.append(f"buffer_load_dwordx4 {vr(80 + 4 * i, 4)}, v9, {sr(S_WS, 4)}, s4 offen offset:{1024 * (i & 3)}")
                    if i == 3:
                        ebl[-1] += "|s_add_u32 s4, s4, 4096"
        if EB and s >= max(4, S_POLL + 1):
            n = (0 if EBW else len(ebl)) if s == 6 else EBN
            e(f"s_mov_b32 exec_lo, s{sWM}")
            e(f"s_mov_b32 exec_hi, s{sWM}")
            for x in ebl[:n]:
                for y in x.split("|"):
                    V.emit(y, "eb")
            e("s_mov_b64 exec, -1")
            del ebl[:n]
        if BL and s == 5:
            c("w_down fragments must be ready now")
            e(f"s_cmp_lg_u32 s{sWM}, 0")
            e("s_cbranch_scc1 k1h_wok")
            e(f"s_mov_b32 s{sPM}, {3 << (MB_KV - 64)}")
            pollbytes(sMBX, sPM)
            e("k1h_wok:")
        if BL and s >= 5:
            c("stage the B fragments of compute waves 2(s-5) + h/2: half h&1 (11 KB)")
            e(f"s_lshr_b32 s{sT0}, s{sH}, 1")
            e(f"s_mul_i32 s5, s{sH}, 11264")
            e(f"s_add_u32 s{sT0}, s{sT0}, {2 * (s - 5)}")
            e(f"s_lshr_b32 s{sT1}, s2, 5")
            if UROT:
                e(f"s_add_u32 s{sT0}, s{sT0}, s{sT1}")
                e(f"s_and_b32 s{sT0}, s{sT0}, 7")
            e(f"s_mul_i32 s{sT0}, s{sT0}, 22528")
            e(f"s_mul_i32 s{sT1}, s{sT1}, {WDT}")
            e(f"s_add_u32 s{sT0}, s{sT0}, s{sT1}")
            e(f"s_and_b32 s{sT1}, s{sH}, 1")
            e(f"s_mul_i32 s{sT1}, s{sT1}, 11264")
            e(f"s_add_u32 s{sT0}, s{sT0}, s{sT1}")
            e(f"s_add_u32 s{sT0}, s{sT0}, {WS_WD}")
            for i in range(11):
                e(f"s_add_u32 m0, s5, {(2 * STG if s == 5 else 0) + 1024 * i}")
                V.emit(f"buffer_load_dwordx4 v9, {sr(S_WS, 4)}, s{sT0} offen lds", "bl")
                e(f"s_add_u32 s{sT0}, s{sT0}, 1024")
    if BL:
        e(f"s_lshl_b32 s{sT0}, 1, s{sH}")
        e(f"v_mov_b32 v2, s{sT0}")
        e(f"v_mov_b32 v3, {L_ST}")
        V.wait("bl")
        e("s_mov_b64 exec, 1")
        e("ds_or_b32 v3, v2 offset:8")
        e("s_mov_b64 exec, -1")
    def statsig(t):
        c("nt == 0: stats flag of row tile h to the 8 consumers of row block 2mt + h/2")
        e(f"s_lshl_b32 s{sT0}, s{sMT}, 1")
        e(f"s_lshr_b32 s{sT1}, s{sH}, 1")
        e(f"s_add_u32 s{sT0}, s{sT0}, s{sT1}")
        e(f"s_and_b32 s{sT1}, s{sH}, 1")
        e(f"s_add_u32 s{sT1}, s{sT1}, {MB_S}")
        sig_h(sT0, sT1, t)
        e(f"s_cmp_eq_u32 s{sNT}, 0")
        e(f"s_cselect_b32 s{sSGX}, 0xff, 0")

    if env('SFE', 0):
        assert BL and V.q.index("ss") < len(V.q) - 1 - V.q[::-1].index("bl")
        statsig(5)
        e(f"v_lshlrev_b32 v12, s{sSG1}, v1")
        e("v_mov_b32 v13, 1")
        e(f"s_mov_b32 exec_lo, s{sSGX}")
        e("s_mov_b32 exec_hi, 0")
        V.emit(f"buffer_store_byte v13, v12, {sr(S_WS, 4)}, s{sSG0} offen sc1", "sf")
        e("s_mov_b64 exec, -1")
        e(f"s_mov_b32 s{sSGX}, 0")
    if EBW:
        c("remaining own B loads, at most EBW in flight")
        e(f"s_mov_b32 exec_lo, s{sWM}")
        e(f"s_mov_b32 exec_hi, s{sWM}")
        for k, x in enumerate(ebl):
            if k >= EBW:
                e(f"s_waitcnt vmcnt({EBW - 1})")
            for y in x.split("|"):
                V.emit(y, "eb")
        e("s_mov_b64 exec, -1")
    if not env('SFE', 0):
        statsig(3)
    if not EB:
        e(f"s_mov_b32 s{sWM}, 0")
    e(f"s_mov_b32 s{sNU}, 1")
    e(f"s_mov_b32 s{sNS}, 0")
    e("s_branch g2_unit")
    flush_ool()


def k1_aux():
    S_WD = 44
    sW, sT0, sT1, sN2, sKH, sLB = 62, 63, 64, 65, 66, 67
    sKS = 68
    e("k1_aux:")
    e("v_lshrrev_b32 v2, 6, v0")
    e("v_and_b32 v1, 63, v0")
    e(f"v_readfirstlane_b32 s{sW}, v2")
    e(f"s_and_b32 s{sN2}, s2, 7")
    e(f"s_bfe_u32 s{sKH}, s2, 0x10003")
    e("v_lshrrev_b32 v2, 3, v1")
    e("v_and_b32 v3, 7, v1")
    e("v_lshlrev_b32 v3, 4, v3")
    e("v_lshl_add_u32 v2, v2, 10, v3")
    e(f"s_mul_i32 s{sLB}, s{sW}, 12288")
    e(f"s_mul_i32 s{sT1}, s{sKH}, 43")
    for j in range(6):
        e(f"s_add_u32 s{sT0}, s{sW}, {8 * j}")
        e(f"s_min_u32 s{sT0}, s{sT0}, 42")
        e(f"s_add_u32 s{sKS + j}, s{sT0}, s{sT1}")
    e("s_waitcnt lgkmcnt(0)")
    stamp(0)
    make_srd(S_WD, P_WD, 1376 * 1024)
    make_srd(S_WS, P_WS, 0x1000000)
    e("v_lshlrev_b32 v3, 4, v1")
    c("WG 240: zero all mailboxes (64 KB), then set the flag in d_debug")
    e("s_cmp_lg_u32 s2, 240")
    e("s_cbranch_scc1 aux_nz0")
    e(f"s_lshl_b32 s3, s{sW}, 13")
    e(f"s_add_u32 s3, s3, {WS_MB}")
    for r in range(4):
        e(f"v_mov_b32 v{4 + r}, 0")
    for j in range(8):
        e(f"buffer_store_dwordx4 v[4:7], v3, {sr(S_WS, 4)}, s3 offen sc1")
        e("s_add_u32 s3, s3, 1024")
    e("aux_nz0:")
    if TW & 4:
        c("touch the pages of d_debug and of the w_down fragments early")
        make_srd(S_DB2, P_DBG, 256)
        e(f"s_mov_b32 s3, {WS_FREE}")
        e("s_mov_b64 exec, 1")
        e(f"buffer_load_dword v8, off, {sr(S_DB2, 4)}, 0 offset:192 sc1")
        e(f"buffer_load_dword v8, off, {sr(S_WS, 4)}, s3")
        e("s_mov_b64 exec, -1")
    if ASLEEP:
        e("s_cmp_eq_u32 s2, 240")
        e("s_cbranch_scc1 aux_ns")
        for _ in range(ASLEEP):
            e("s_sleep 16")
        e("aux_ns:")
    e(f"s_lshl_b32 s{sT1}, s{sN2}, 7")
    for j in range(6):
        e(f"s_lshl_b32 s{sT0}, s{sKS + j}, 14")
        e(f"s_add_u32 s{sT0}, s{sT0}, s{sT1}")
        for i in range(2):
            e(f"s_add_u32 m0, s{sLB}, {2048 * j + 1024 * i}")
            if i:
                e(f"s_add_u32 s{sT0}, s{sT0}, 8192")
            e(f"buffer_load_dwordx4 v2, {sr(S_WD, 4)}, s{sT0} offen lds")
    e(f"s_mov_b32 s{sZ}, 0")
    state_init(0 if C7 else 4)
    e("s_cmp_lg_u32 s2, 240")
    e("s_cbranch_scc1 aux_nz")
    make_srd(S_DB2, P_DBG, 256)
    e(f"s_waitcnt vmcnt({14 if TW & 4 else 12})")
    e("s_barrier")
    stamp(1)
    e(f"s_mov_b32 s{sZ}, 1")
    e(f"s_cmp_lg_u32 s{sW}, 0")
    e("s_cbranch_scc1 aux_nz")
    e("v_mov_b32 v14, 1")
    e(f"v_mov_b32 v15, {ZOFF}")
    e("s_mov_b64 exec, 1")
    e(f"buffer_store_dword v14, v15, {sr(S_DB2, 4)}, 0 offen sc1")
    e("s_mov_b64 exec, -1")
    e("aux_nz:")
    c("tr read address: row 4g + li/4 (+8u), col bytes 64ct + 32((l/16)&1) + 8(li%4)")
    e("v_and_b32 v4, 15, v1")
    e("v_lshrrev_b32 v5, 2, v4")
    e("v_lshrrev_b32 v6, 5, v1")
    e("v_lshl_add_u32 v5, v6, 2, v5")
    e("v_lshlrev_b32 v5, 7, v5")
    e("v_bfe_u32 v6, v1, 4, 1")
    e("v_lshl_add_u32 v5, v6, 5, v5")
    e("v_and_b32 v4, 3, v4")
    e("v_lshl_add_u32 v5, v4, 3, v5")
    e(f"v_add_u32 v5, s{sLB}, v5")
    e(f"s_mul_i32 s{sT1}, s{sN2}, {WDT}")
    e(f"s_add_u32 s{sT1}, s{sT1}, {WS_WD}")
    e("s_waitcnt vmcnt(0)")
    stamp(2)
    e("s_cmp_eq_u32 s2, 240")
    e("s_cbranch_scc1 aux_z1")
    zload()
    e("aux_z1:")
    for j in range(6):
        for ct in range(2):
            for u in range(2):
                e(f"ds_read_b64_tr_b16 {vr(16 + 8 * j + 4 * ct + 2 * u, 2)}, v5 offset:{2048 * j + 1024 * u + 64 * ct}")
        if j >= 1:
            e("s_waitcnt lgkmcnt(0)" if j == 1 else "s_waitcnt lgkmcnt(4)")
            e(f"s_lshl_b32 s{sT0}, s{sKS + j - 1}, 11")
            e(f"s_add_u32 s{sT0}, s{sT0}, s{sT1}")
            for ct in range(2):
                e(f"buffer_store_dwordx4 {vr(16 + 8 * (j - 1) + 4 * ct, 4)}, v3, {sr(S_WS, 4)}, s{sT0} offen offset:{1024 * ct} sc1")
    e("s_waitcnt lgkmcnt(0)")
    e(f"s_lshl_b32 s{sT0}, s{sKS + 5}, 11")
    e(f"s_add_u32 s{sT0}, s{sT0}, s{sT1}")
    for ct in range(2):
        e(f"buffer_store_dwordx4 {vr(16 + 40 + 4 * ct, 4)}, v3, {sr(S_WS, 4)}, s{sT0} offen offset:{1024 * ct} sc1")
    zcheck()
    e("s_waitcnt vmcnt(0)")
    e("s_barrier")
    stamp(3)
    c("wave 0: flag to the 32 consumers id = 32 nt2 + l (byte MB_W + kh, GEMM1 WGs: MB_KV + kh)")
    e(f"s_lshl_b32 s{sT0}, s{sN2}, 5")
    e(f"v_add_u32 v4, s{sT0}, v1")
    e(f"v_subrev_u32 v5, {K1_NCONV}, v4")
    e(f"v_cmp_gt_u32 vcc, {K1_NGEMM}, v5")
    e(f"v_mov_b32 v5, {MB_W}")
    e(f"v_mov_b32 v6, {MB_KV}")
    e("v_cndmask_b32 v5, v5, v6, vcc")
    e(f"v_cmp_gt_u32 vcc, {K1_NCONV}, v4")
    e("v_cndmask_b32 v5, v5, 64, vcc")
    e("v_lshl_add_u32 v4, v4, 8, v5")
    c("nt2 < 2: also to the aux WGs 240 + 8 nt2 + (l - 32), byte 64 + kh")
    e(f"s_lshl_b32 s{sT0}, s{sN2}, 3")
    e(f"s_add_u32 s{sT0}, s{sT0}, {240 - 32}")
    e(f"v_add_u32 v5, s{sT0}, v1")
    e("v_lshlrev_b32 v5, 8, v5")
    e("v_add_u32 v5, 64, v5")
    e("v_cmp_gt_u32 vcc, 32, v1")
    e("v_cndmask_b32 v4, v5, v4, vcc")
    e(f"s_add_u32 s{sT0}, s{sKH}, {WS_MB}")
    e("v_mov_b32 v5, 1")
    e(f"s_cmp_lt_u32 s{sN2}, 2")
    e(f"s_cselect_b32 s{sT1}, 0xff, 0")
    e(f"s_cmp_eq_u32 s{sW}, 0")
    e("s_cselect_b32 exec_lo, -1, 0")
    e(f"s_cselect_b32 exec_hi, s{sT1}, 0")
    e(f"buffer_store_byte v5, v4, {sr(S_WS, 4)}, s{sT0} offen sc1")
    e("s_mov_b64 exec, -1")
    if C7:
        e(f"s_cmp_lt_u32 s{sW}, 4")
        e("s_cbranch_scc1 k1c_aux")
    if APF:
        c("pull the fragments of column block kh (conv WGs' tiles) into this XCD's L2")
        e("s_mov_b32 s5, 3")
        e(f"s_cmp_lg_u32 s{sW}, 7")
        e("s_cbranch_scc1 aux_kw")
        e("s_lshl_b32 s4, s2, 8")
        e(f"s_add_u32 s4, s4, {WS_MB + 64}")
        pollbytes(4, 5)
        e(f"v_mov_b32 v14, {L_ST}")
        e("v_mov_b32 v15, -1")
        e("ds_write_b32 v14, v15 offset:8")
        e("s_branch aux_kd")
        e("aux_kw:")
        lds_wait(8, 5)
        e("aux_kd:")
        e(f"s_mul_i32 s{sT0}, s{sKH}, {WDT}")
        e(f"s_mul_i32 s{sT1}, s{sW}, {(22 if C7 else 11) * 2048}")
        e(f"s_add_u32 s{sT0}, s{sT0}, s{sT1}")
        e(f"s_add_u32 s{sT0}, s{sT0}, {WS_WD - (88 * 2048 if C7 else 0)}")
        for i in range(44 if C7 else 22):
            e(f"buffer_load_dwordx4 {vr(80 + 4 * (i % 22), 4)}, v3, {sr(S_WS, 4)}, s{sT0} offen offset:{1024 * (i & 3)}")
            if i & 3 == 3:
                e(f"s_add_u32 s{sT0}, s{sT0}, 4096")
    e(f"s_mov_b32 s{sSGX}, 0")
    e(f"s_mov_b32 s{sSG0}, {WS_MB}")
    e(f"s_mov_b32 s{sSG1}, 0")
    e(f"s_mov_b32 s{sWM}, {3 << MB_W}")
    e(f"s_mov_b32 s{sNU}, 1")
    e(f"s_mov_b32 s{sNS}, 0")
    e("s_branch g2_unit")


CV_KCPY = 4160
CV_T = 117248
CV_TP = 528


def k1_conv():
    S_K, S_V, S_SK, S_SH = 44, 48, 52, 72
    sW, sT0, sT1, sD, sG, sJ, sCH, sRB, sKT, sMBX = 62, 63, 64, 65, 66, 67, 68, 69, 70, 71
    e("k1_conv:")
    e("v_lshrrev_b32 v2, 6, v0")
    e("v_and_b32 v1, 63, v0")
    e(f"v_readfirstlane_b32 s{sW}, v2")
    c("G = id%8 (64-channel group), J = id/8 (256-row block / channel sub-group)")
    e(f"s_and_b32 s{sG}, s2, 7")
    e(f"s_lshr_b32 s{sJ}, s2, 3")
    sGP = 60
    if ROT:
        e(f"s_add_u32 s{sGP}, s{sG}, s{sJ}")
        e(f"s_and_b32 s{sGP}, s{sGP}, 7")
    else:
        e(f"s_mov_b32 s{sGP}, s{sG}")
    c("---- kv phase: rows J*256 + 4*rg.., channels G*64 + cs*8..")
    if KVF:
        c("full rows: WG r: rows 32r + 4w .., lane: 8 channels")
        e("v_lshrrev_b32 v2, 6, v0")
        e("v_lshlrev_b32 v4, 4, v1")
        e("v_lshl_add_u32 v4, v2, 12, v4")
        e(f"s_lshl_b32 s{sT0}, s2, 15")
        e(f"v_add_u32 v4, s{sT0}, v4")
        e("v_subrev_u32 v5, 3072, v4")
        e("v_lshlrev_b32 v6, 6, v1")
    else:
        e("v_lshrrev_b32 v2, 3, v0")
        e("v_and_b32 v3, 7, v0")
        e(f"s_lshl_b32 s{sT0}, s{sJ}, 18")
        e(f"s_lshl_b32 s{sT1}, s{sGP}, 7")
        e(f"s_add_u32 s{sT0}, s{sT0}, s{sT1}")
        e("v_lshlrev_b32 v4, 12, v2")
        e("v_lshl_add_u32 v4, v3, 4, v4")
        e(f"v_add_u32 v4, s{sT0}, v4")
        e("v_subrev_u32 v5, 3072, v4")
        e(f"s_lshl_b32 s{sT1}, s{sGP}, 9")
        e("v_lshlrev_b32 v6, 6, v3")
        e(f"v_add_u32 v6, s{sT1}, v6")
    e("s_waitcnt lgkmcnt(0)")
    stamp(0)
    V = VMQ()
    KD, VD, WD = 16, 44, 60

    def kvloads():
        if TW & 1:
            c("touch every page this wave uses (own lines of the ws regions)")
            make_srd(S_K, P_K, 2048 * 1024)
            make_srd(S_V, P_V, 2048 * 1024)
            make_srd(S_SH, P_SH, 4096)
            make_srd(S_SK, P_SK, 512 * 4096)
            make_srd(S_WS, P_WS, 0x1000000)
            make_srd(S_DB2, P_DBG, 256)
            e(f"s_lshl_b32 s{sCH}, s{sG}, 3")
            e(f"s_add_u32 s{sCH}, s{sCH}, s{sJ}")
            e(f"s_lshl_b32 s{sCH}, s{sCH}, 3")
            e(f"s_add_u32 s{sCH}, s{sCH}, s{sW}")
            e(f"s_lshl_b32 s{sCH}, s{sCH}, 12")
            e(f"s_add_u32 s4, s{sCH}, {WS_Y2}")
            e(f"s_lshl_b32 s3, s{sGP}, 18")
            e(f"s_lshl_b32 s{sT1}, s{sW}, 15")
            e(f"s_add_u32 s3, s3, s{sT1}")
            e(f"s_add_u32 s3, s3, {WS_KV + 3584}")
            e(f"s_lshl_b32 s{sT1}, s{sJ}, 9")
            e(f"s_sub_u32 s3, s3, s{sT1}")
            e("s_mov_b64 exec, 1")
            V.emit(f"buffer_load_dword v252, v4, {sr(S_K, 4)}, 0 offen", "tw")
            V.emit(f"buffer_load_dword v252, v4, {sr(S_V, 4)}, 0 offen", "tw")
            V.emit(f"buffer_load_dword v252, v6, {sr(S_SH, 4)}, 0 offen", "tw")
            V.emit(f"buffer_load_dword v252, off, {sr(S_SK, 4)}, s{sCH}", "tw")
            V.emit(f"buffer_load_dword v252, off, {sr(S_WS, 4)}, s3", "tw")
            V.emit(f"buffer_load_dword v252, off, {sr(S_DB2, 4)}, 0 offset:192 sc1", "tw")
            V.emit(f"buffer_load_dword v252, off, {sr(S_WS, 4)}, s4", "tw")
            e("s_mov_b64 exec, -1")
        if os.environ.get('CST'):
            tab = sum(int(x) << (4 * i) for i, x in enumerate(os.environ['CST'].split(',')))
            e(f"s_lshl_b32 s{sT0}, s{sGP}, 2")
            e(f"s_lshr_b32 s{sT0}, {tab:#x}, s{sT0}")
            e(f"s_and_b32 s{sT0}, s{sT0}, 15")
            e("s_cbranch_scc0 k1c_ns")
            e("k1c_sl:")
            e("s_sleep 8")
            e(f"s_sub_u32 s{sT0}, s{sT0}, 1")
            e(f"s_cmp_lg_u32 s{sT0}, 0")
            e("s_cbranch_scc1 k1c_sl")
        else:
            for _ in range(CS3):
                e("s_sleep 8")
            e(f"s_cmp_eq_u32 s{sGP}, 3")
            e("s_cbranch_scc1 k1c_ns")
            for _ in range(CSLEEP - CS3):
                e("s_sleep 8")
        e("k1c_ns:")
        make_srd(S_K, P_K, 2048 * 1024)
        make_srd(S_V, P_V, 2048 * 1024)
        make_srd(S_SH, P_SH, 4096)
        for r in range(3):
            V.emit(f"buffer_load_dwordx4 {vr(KD + 4 * r, 4)}, v5, {sr(S_K, 4)}, 0 offen offset:{1024 * r}", "kv")
        for r in range(4):
            V.emit(f"buffer_load_dwordx4 {vr(KD + 12 + 4 * r, 4)}, v4, {sr(S_K, 4)}, 0 offen offset:{1024 * r}", "kv")
        for r in range(4):
            V.emit(f"buffer_load_dwordx4 {vr(VD + 4 * r, 4)}, v4, {sr(S_V, 4)}, 0 offen offset:{1024 * r}", "kv")
        for j in range(4):
            V.emit(f"buffer_load_dwordx4 {vr(WD + 4 * j, 4)}, v6, {sr(S_SH, 4)}, 0 offen offset:{16 * j}", "kv")

    if SKD != 3:
        kvloads()
    make_srd(S_SK, P_SK, 512 * 4096)
    make_srd(S_WS, P_WS, 0x1000000)
    c("channel of this wave: 64G + 8J + w")
    e(f"s_lshl_b32 s{sCH}, s{sG}, 3")
    e(f"s_add_u32 s{sCH}, s{sCH}, s{sJ}")
    e(f"s_lshl_b32 s{sCH}, s{sCH}, 3")
    e(f"s_add_u32 s{sCH}, s{sCH}, s{sW}")
    e(f"s_lshl_b32 s{sKT}, s{sW}, 14")
    e(f"s_mul_i32 s{sT0}, s{sW}, 12928")
    e(f"s_add_u32 s{sT0}, s{sT0}, {65536 - 4 * 12928}")
    e(f"s_cmp_ge_u32 s{sW}, 4")
    e(f"s_cselect_b32 s{sKT}, s{sT0}, s{sKT}")
    e(f"s_add_u32 s{sRB}, s{sKT}, 8320")
    SKR = 232

    def dload():
        e(f"s_lshl_b32 s{sT0}, s{sCH}, 1")
        e(f"s_and_b32 s{sT1}, s{sT0}, 0xfffffffc")
        e(f"s_add_u32 s{P_SD}, s{P_SD}, s{sT1}")
        e(f"s_addc_u32 s{P_SD + 1}, s{P_SD + 1}, 0")
        e(f"s_load_dword s{sD}, {sr(P_SD, 2)}, 0")
        e(f"s_lshl_b32 s{sCH}, s{sCH}, 12")
        e("v_lshlrev_b32 v8, 4, v1")
    dload()

    def skloads():
        if C7:
            e(f"s_cmp_eq_u32 s{sW}, 7")
            e("s_cselect_b64 exec, 0, -1")
        skloads2()
        if C7:
            e("s_mov_b64 exec, -1")

    def skloads2():
        for j in range(4):
            V.emit(f"buffer_load_dwordx4 {vr(SKR + 4 * j, 4)}, v8, {sr(S_SK, 4)}, s{sCH} offen offset:{1024 * j}", "sk")
        for j in range(4):
            V.emit(f"buffer_load_dword v{SKR + 16 + j}, v8, {sr(S_SK, 4)}, s{sCH} offen offset:{1024 * j + 16}", "sk")
    if SKD == 0:
        skloads()
    if SKD == 3:
        skloads()
        kvloads()
    c("kv LDS transpose position: T + (cs*8 + cc)*528 + 504 - 8 rg")
    if KVF:
        e("v_mul_u32_u24 v7, 80, v1")
        e("v_lshlrev_b32 v9, 3, v2")
        e("v_sub_u32 v7, v7, v9")
        e(f"v_add_u32 v7, {CV_T + 56}, v7")
    else:
        e(f"v_mul_u32_u24 v7, {8 * CV_TP}, v3")
        e("v_lshlrev_b32 v9, 3, v2")
        e("v_sub_u32 v7, v7, v9")
        e(f"v_add_u32 v7, {CV_T + 504}, v7")
    state_init(-4 if C8 else 4)
    def pads():
        c("zero pads")
        e("v_lshlrev_b32 v6, 3, v1")
        e(f"v_add_u32 v6, s{sRB}, v6")
        e("v_mov_b32 v10, 0")
        e("v_mov_b32 v11, 0")
        e("ds_write_b64 v6, v[10:11] offset:4096")
        e("v_lshlrev_b32 v6, 2, v1")
        e(f"v_add_u32 v6, s{sKT}, v6")
        e("s_mov_b64 exec, 0xff")
        e("ds_write_b32 v6, v10")
        e(f"ds_write_b32 v6, v10 offset:{CV_KCPY}")
        e("s_mov_b64 exec, -1")
    pads()
    c("addresses of the kv row stores")
    if KVF:
        e("v_bfe_u32 v6, v1, 2, 3")
        e("v_mul_u32_u24 v9, 5120, v6")
        e("v_lshrrev_b32 v6, 5, v1")
        e("v_mul_u32_u24 v6, 80, v6")
        e("v_add_u32 v9, v9, v6")
        e("v_and_b32 v6, 3, v1")
        e("v_lshl_add_u32 v9, v6, 4, v9")
        e(f"s_mul_i32 s{sT1}, s{sW}, 640")
        e(f"s_add_u32 s{sT1}, s{sT1}, {CV_T}")
        e(f"v_add_u32 v9, s{sT1}, v9")
        e("v_lshrrev_b32 v6, 3, v1")
        e("v_and_b32 v10, 7, v1")
        e("v_lshlrev_b32 v10, 4, v10")
        e("v_lshl_add_u32 v10, v6, 13, v10")
        e(f"s_lshl_b32 s3, s{sW}, 18")
        e(f"s_add_u32 s3, s3, {WS_KV + 63 * 128}")
        e(f"s_lshl_b32 s{sT1}, s2, 7")
        e(f"s_sub_u32 s3, s3, s{sT1}")
        c("kv flags: consumers 8l + w, byte 192 + r")
        e(f"s_lshl_b32 s4, s{sW}, 8")
        e("s_add_u32 s4, s4, s2")
        e(f"s_add_u32 s4, s4, {WS_MB + 192}")
        e("v_lshlrev_b32 v11, 11, v1")
    else:
        e("v_lshrrev_b32 v6, 5, v1")
        e("v_and_b32 v10, 31, v1")
        e("v_lshlrev_b32 v10, 4, v10")
        e(f"v_mul_u32_u24 v9, {CV_TP}, v6")
        e("v_add_u32 v9, v9, v10")
        e(f"s_mul_i32 s{sT1}, s{sW}, {8 * CV_TP}")
        e(f"s_add_u32 s{sT1}, s{sT1}, {CV_T}")
        e(f"v_add_u32 v9, s{sT1}, v9")
        e("v_lshl_add_u32 v10, v6, 12, v10")
        e(f"s_lshl_b32 s3, s{sGP}, 18")
        e(f"s_lshl_b32 s{sT1}, s{sW}, 15")
        e(f"s_add_u32 s3, s3, s{sT1}")
        e(f"s_add_u32 s3, s3, {WS_KV + 3584}")
        e(f"s_lshl_b32 s{sT1}, s{sJ}, 9")
        e(f"s_sub_u32 s3, s3, s{sT1}")
        c("kv flag: consumer id 8w + G, byte MB_KV + J")
        e(f"s_lshl_b32 s4, s{sW}, 3")
        e(f"s_add_u32 s4, s4, s{sGP}")
        e("s_lshl_b32 s4, s4, 8")
        e(f"s_add_u32 s4, s4, s{sJ}")
        e(f"s_add_u32 s4, s4, {WS_MB + MB_KV}")
        if C7:
            assert not KVF and not ROT and CEB and CPOL == 2 and C8 and SKD == 1
            c("lane 1: aux WG 240 + 8(w/4) + G, byte 192 + 8(w%4) + J")
            e(f"s_lshr_b32 s{sT0}, s{sW}, 2")
            e(f"s_lshl_b32 s{sT0}, s{sT0}, 3")
            e(f"s_add_u32 s{sT0}, s{sT0}, s{sGP}")
            e(f"s_lshl_b32 s{sT0}, s{sT0}, 8")
            e(f"s_and_b32 s{sT1}, s{sW}, 3")
            e(f"s_lshl_b32 s{sT1}, s{sT1}, 3")
            e(f"s_add_u32 s{sT0}, s{sT0}, s{sT1}")
            e(f"s_add_u32 s{sT0}, s{sT0}, s{sJ}")
            e(f"s_add_u32 s{sT0}, s{sT0}, {WS_MB + 240 * 256 + 192}")
            e(f"s_sub_u32 s{sT0}, s{sT0}, s4")
            e(f"v_mul_lo_u32 v11, v1, s{sT0}")
    e(f"s_lshl_b32 s{sMBX}, s2, 8")
    e(f"s_add_u32 s{sMBX}, s{sMBX}, {WS_MB + 64}")
    e(f"s_mov_b32 s5, {0xff << (MB_KV - 64)}")
    if SKD == 5:
        assert not C7
        e(f"v_mov_b32 v76, {L_ST}")
        e("v_mov_b32 v77, 1")
        e("s_waitcnt lgkmcnt(0)")
        e("s_barrier")
    V.wait("kv")
    stamp(1)
    if SKD == 5:
        c("the first waves whose k / v arrived load ssm_k now, the others after their kv flag")
        e("s_mov_b64 exec, 1")
        e("ds_add_rtn_u32 v13, v76, v77 offset:12")
        e("s_mov_b64 exec, -1")
        e("s_waitcnt lgkmcnt(0)")
        e("v_readfirstlane_b32 s74, v13")
        e(f"s_mov_b32 s{sZ}, 0")
        make_srd(S_DB2, P_DBG, 256)
        e(f"s_cmp_lt_u32 s74, {env('SKE', 5)}")
        e("s_cselect_b32 s74, -1, 0")
        e("s_mov_b32 exec_lo, s74")
        e("s_mov_b32 exec_hi, s74")
        skloads2()
        e("s_mov_b64 exec, -1")
    elif ZE:
        make_srd(S_DB2, P_DBG, 256)
    else:
        zload()
    if SKD == 1:
        skloads()
    KF, VF, WF = 80, 136, 200
    for cc in range(8):
        for jp in range(2):
            w = WD + 2 * cc + jp
            e(f"v_lshlrev_b32 v{WF + (2 * jp) * 8 + cc}, 16, v{w}")
            e(f"v_and_b32 v{WF + (2 * jp + 1) * 8 + cc}, 0xffff0000, v{w}")
    for i in range(28):
        e(f"v_lshlrev_b32 v{KF + 2 * i}, 16, v{KD + i}")
        e(f"v_and_b32 v{KF + 2 * i + 1}, 0xffff0000, v{KD + i}")
    for i in range(16):
        e(f"v_lshlrev_b32 v{VF + 2 * i}, 16, v{VD + i}")
        e(f"v_and_b32 v{VF + 2 * i + 1}, 0xffff0000, v{VD + i}")
    KV = 168
    for cp in range(4):
        for r in range(4):
            d = KV + 8 * r + 2 * cp
            e(f"v_pk_mul_f32 {vr(d, 2)}, {vr(KF + 8 * r + 2 * cp, 2)}, {vr(WF + 3 * 8 + 2 * cp, 2)}")
            for j in range(1, 4):
                e(f"v_pk_fma_f32 {vr(d, 2)}, {vr(KF + 8 * (r + j) + 2 * cp, 2)}, "
                  f"{vr(WF + (3 - j) * 8 + 2 * cp, 2)}, {vr(d, 2)}")
            e(f"v_pk_mul_f32 {vr(d, 2)}, {vr(d, 2)}, {vr(VF + 8 * r + 2 * cp, 2)}")
        for cc in (2 * cp, 2 * cp + 1):
            o = 16 + 2 * cc
            e(f"v_cvt_pk_bf16_f32 v{o}, v{KV + 24 + cc}, v{KV + 16 + cc}")
            e(f"v_cvt_pk_bf16_f32 v{o + 1}, v{KV + 8 + cc}, v{KV + cc}")
            e(f"ds_write_b64 v7, {vr(o, 2)} offset:{cc * (5120 if KVF else CV_TP)}")
    e("s_waitcnt lgkmcnt(0)")
    e("s_barrier")
    c("wave w: channels 8w..8w+7 of the group: full-line stores (2 channels x 512 B per instruction)")
    for j in range(4):
        e(f"ds_read_b128 {vr(16 + 4 * j, 4)}, v9 offset:{160 * j if KVF else 2 * j * CV_TP}")
    if SKD == 5 or ZE:
        V.emit(f"buffer_load_dword v78, off, {sr(S_DB2, 4)}, 0 offset:{ZOFF} sc1", "z")
    for j in range(4):
        e(f"s_waitcnt lgkmcnt({3 - j})")
        V.emit(f"buffer_store_dwordx4 {vr(16 + 4 * j, 4)}, v10, {sr(S_WS, 4)}, s3 offen{STK}", "st")
        e(f"s_add_u32 s3, s3, {65536 if KVF else 8192}")
    if SKD == 2:
        skloads()

    def ktwork():
        e(f"v_add_u32 v7, s{sKT}, v8")
        V.wait("sk")
        for j in range(4):
            d = SKR + 4 * j
            t = 32 + 4 * j
            e(f"ds_write_b128 v7, {vr(d, 4)} offset:{32 + 1024 * j}")
            e(f"v_alignbit_b32 v{t}, v{d + 1}, v{d}, 16")
            e(f"v_alignbit_b32 v{t + 1}, v{d + 2}, v{d + 1}, 16")
            e(f"v_alignbit_b32 v{t + 2}, v{d + 3}, v{d + 2}, 16")
            e(f"v_alignbit_b32 v{t + 3}, v{SKR + 16 + j}, v{d + 3}, 16")
            e(f"ds_write_b128 v7, {vr(t, 4)} offset:{CV_KCPY + 32 + 1024 * j}")
        e(f"v_lshlrev_b32 v12, 16, v{SKR}")
        e("s_mov_b64 exec, 1")
        e(f"ds_write_b32 v7, v12 offset:{CV_KCPY + 28}")
        e("s_mov_b64 exec, -1")

    if SKD not in (2, 5):
        ktwork()
    if SKD == 5 or ZE:
        V.wait("st")
        e(f"v_readfirstlane_b32 s{sZ}, v78")
        e("s_nop 3")
    stamp(8 if env('ZST', 0) else None)
    zcheck()
    stamp(7 if env('ZST', 0) else None)
    e("v_mov_b32 v13, 1")
    V.wait("st")
    if KVF:
        e("s_mov_b64 exec, 0xff")
        V.emit(f"buffer_store_byte v13, v11, {sr(S_WS, 4)}, s4 offen sc1", "fl")
    elif C7:
        e("s_mov_b64 exec, 3")
        V.emit(f"buffer_store_byte v13, v11, {sr(S_WS, 4)}, s4 offen sc1", "fl")
    else:
        e("s_mov_b64 exec, 1")
        V.emit(f"buffer_store_byte v13, off, {sr(S_WS, 4)}, s4 sc1", "fl")
    e("s_mov_b64 exec, -1")
    stamp(2)
    if SKD == 5:
        e("s_not_b32 exec_lo, s74")
        e("s_not_b32 exec_hi, s74")
        skloads2()
        e("s_mov_b64 exec, -1")
    if SKD in (2, 5):
        ktwork()
    sAX = 72
    if C7:
        e(f"s_mov_b32 s{sAX}, 0")
        with ool("k1c_aux"):
            c("aux WG 240 + 8a + G, waves 0-3: channel 64G + 8(4a + w) + 7")
            e(f"s_and_b32 s{sG}, s2, 7")
            e(f"s_bfe_u32 s{sJ}, s2, 0x10003")
            e(f"s_lshl_b32 s{sJ}, s{sJ}, 2")
            e(f"s_add_u32 s{sJ}, s{sJ}, s{sW}")
            e(f"s_lshl_b32 s{sCH}, s{sG}, 3")
            e(f"s_add_u32 s{sCH}, s{sCH}, s{sJ}")
            e(f"s_lshl_b32 s{sCH}, s{sCH}, 3")
            e(f"s_add_u32 s{sCH}, s{sCH}, 7")
            e(f"s_lshl_b32 s{sKT}, s{sW}, 14")
            e(f"s_add_u32 s{sRB}, s{sKT}, 8320")
            make_srd(S_SK, P_SK, 512 * 4096)
            dload()
            skloads2()
            pads()
            zcheck()
            ktwork()
            e(f"s_lshl_b32 s{sMBX}, s2, 8")
            e(f"s_add_u32 s{sMBX}, s{sMBX}, {WS_MB + 192}")
            e(f"s_lshl_b32 s{sT0}, s{sW}, 3")
            e(f"s_lshl_b32 s5, 0xff, s{sT0}")
            e(f"s_mov_b32 s{sAX}, 1")
            e("s_waitcnt lgkmcnt(0)")
    e(f"s_lshl_b32 s{sT0}, s{sD}, 16")
    e(f"s_and_b32 s{sD}, s{sD}, 0xffff0000")
    e(f"s_bitcmp1_b32 s{sCH}, 12")
    e(f"s_cselect_b32 s{sD}, s{sD}, s{sT0}")
    c("MFMA phase addresses")
    ACC = 16
    AR = [48, 112]
    BR = [80, 144]
    vKT, vR, vA = 200, 201, 202
    e("v_and_b32 v2, 15, v1")
    e("v_lshrrev_b32 v3, 4, v1")
    e("v_lshlrev_b32 v4, 1, v2")
    e("v_lshlrev_b32 v5, 4, v3")
    e("v_sub_u32 v4, v4, v5")
    e(f"v_add_u32 v4, {32 - 14}, v4")
    e("v_and_b32 v5, 1, v2")
    e("v_cmp_eq_u32 vcc, 0, v5")
    e("v_mov_b32 v5, 0")
    e(f"v_mov_b32 v6, {CV_KCPY - 2}")
    e("s_nop 1")
    e("v_cndmask_b32 v5, v5, v6, vcc")
    e("v_add_u32 v4, v4, v5")
    e(f"v_add_u32 v{vKT}, s{sKT}, v4")
    e("v_lshlrev_b32 v4, 5, v2")
    e("v_lshl_add_u32 v4, v3, 4, v4")
    e(f"v_sub_u32 v4, {4080 - 3584}, v4")
    e(f"v_add_u32 v{vR}, s{sRB}, v4")
    e("v_lshlrev_b32 v4, 5, v2")
    e("v_lshl_add_u32 v4, v3, 3, v4")
    e(f"v_sub_u32 v5, {4088 - 3584}, v4")
    e(f"v_add_u32 v5, s{sRB}, v5")
    c("GEMM2 interface: flag byte MB_C + 8J + w to the 32 consumers 32G + l")
    e(f"s_lshl_b32 s{sSG0}, s{sG}, 13")
    e(f"s_bfe_u32 s{sT0}, s{sCH}, 0x6000c")
    e(f"s_add_u32 s{sSG0}, s{sSG0}, s{sT0}")
    e(f"s_add_u32 s{sSG0}, s{sSG0}, {WS_MB + MB_C}")
    e(f"s_mov_b32 s{sSG1}, 8")
    e(f"s_mov_b32 s{sSGX}, -1")
    if C8:
        e(f"s_mov_b32 s{sNS}, 0")
        e(f"s_mov_b32 s{sNU}, 1")
    else:
        e(f"s_mov_b32 s{sNS}, 1")
        e(f"s_cmp_lt_u32 s{sW}, 4")
        e(f"s_cselect_b32 s{sNU}, 2, 0")
    if KVF:
        e(f"s_and_b32 s3, s{sCH}, 0xffffe000")
        e(f"s_bfe_u32 s{sT0}, s{sCH}, 0x1000c")
        e(f"s_lshl_b32 s{sT0}, s{sT0}, 6")
        e(f"s_add_u32 s3, s3, s{sT0}")
        e(f"s_add_u32 s3, s3, {WS_KV}")
        e("v_lshrrev_b32 v6, 2, v1")
        e("v_and_b32 v7, 3, v1")
        e("v_lshlrev_b32 v7, 4, v7")
        e("v_lshl_add_u32 v7, v6, 7, v7")
        e("s_mov_b32 s5, 0x80000000")
    else:
        e(f"s_add_u32 s3, s{sCH}, {WS_KV}")

    def crlist(ci, st, kinds="AB"):
        d0 = 2 * ci + 1
        r = []
        if "A" in kinds:
            for pp in range(4):
                r.append(f"v_add_u32 v{vA + pp}, {32 * d0 + 1024 * pp}, v{vKT}")
        order = [("B", 0)] + [("A", p) for p in range(8)] + [("B", m) for m in range(1, 8)]
        for kind, x in order:
            if kind not in kinds:
                continue
            if kind == "A":
                p = x
                o = 128 * (p & 1)
                r.append(f"ds_read2_b32 {vr(AR[st] + 4 * p, 2)}, v{vA + (p >> 1)} offset0:{o} offset1:{o + 1}")
                r.append(f"ds_read2_b32 {vr(AR[st] + 4 * p + 2, 2)}, v{vA + (p >> 1)} offset0:{o + 2} offset1:{o + 3}")
            else:
                m = x
                r.append(f"ds_read_b128 {vr(BR[st] + 4 * m, 4)}, v{vR} offset:{32 * d0 + 512 * (7 - m)}")
        return r

    sOF = 73
    if C7:
        c("waves 4-6 start with chunk 2 (wave 7 does their chunks 0, 1)")
        e(f"s_cmp_ge_u32 s{sW}, 4")
        e(f"s_cselect_b32 s{sOF}, 128, 0")
        e(f"v_add_u32 v{vKT}, s{sOF}, v{vKT}")
        e(f"v_add_u32 v{vR}, s{sOF}, v{vR}")
    e("s_waitcnt lgkmcnt(0)")
    for x in crlist(0, 0, "A"):
        e(x)
    if C7:
        e(f"s_cmp_lg_u32 s{sAX}, 0")
        e("s_cbranch_scc1 k1c_ap")
    e(f"s_cmp_lg_u32 s{sW}, 7")
    e("s_cbranch_scc1 k1c_kw")
    if KVF:
        e("s_mov_b32 s80, 0")
        e("k1c_kp:")
        e(f"buffer_load_ubyte v14, v1, {sr(S_WS, 4)}, s{sMBX} offen offset:128 sc1")
        e(f"buffer_load_ubyte v15, v1, {sr(S_WS, 4)}, s{sMBX} offen sc1")
        e("s_waitcnt vmcnt(0)")
        e("v_cmp_ne_u32 vcc, 0, v14")
        e("s_add_u32 s80, s80, 1")
        e("s_cmp_eq_u64 vcc, -1")
        e("s_cbranch_scc1 k1c_kpd")
        e("s_sleep 1")
        e("s_cmp_lt_u32 s80, 0x40000")
        e("s_cbranch_scc1 k1c_kp")
        e("k1c_kpd:")
        e("v_cmp_ne_u32 vcc, 0, v15")
    else:
        pollbytes(sMBX, 5)
    e(f"v_mov_b32 v14, {L_ST}")
    e("s_or_b32 s81, vcc_lo, s5")
    e("v_mov_b32 v15, s81")
    e("ds_write_b32 v14, v15 offset:8")
    e("s_branch k1c_help" if C7 else "s_branch k1c_kd")
    if C7:
        e("k1c_ap:")
        e(f"s_sub_u32 s{sT1}, s{sMBX}, 192")
        e(f"s_mov_b32 s{sT0}, {3 << MB_W}")
        pollbytes(sT1, sT0)
        pollbytes(sMBX, 5)
        e("v_mov_b32 v15, 3")
        e(f"s_sub_u32 s{sMBX}, s{sMBX}, 128")
        e("s_branch k1c_kd")
    e("k1c_kw:")
    lds_wait(8, 5)
    e("k1c_kd:")
    c("own channel kvR row -> LDS R")
    for j in range(4):
        e(f"s_add_u32 m0, s{sRB}, {1024 * j}")
        e(f"buffer_load_dwordx4 v8, {sr(S_WS, 4)}, s3 offen offset:{1024 * j} lds sc1") if 0 else None
        e(f"buffer_load_dwordx4 v{7 if KVF else 8}, {sr(S_WS, 4)}, s3 offen lds")
        e(f"s_add_u32 s3, s3, {2048 if KVF else 1024}")
    if CPRIO == 1:
        e(f"s_cmp_lt_u32 s{sW}, 4")
        e("s_cbranch_scc0 k1c_p1")
        e("s_setprio 2")
        e("k1c_p1:")
    if C7:
        e(f"s_lshl_b32 s{sT0}, 0x100, s{sW}")
        e(f"v_mov_b32 v12, {L_ST}")
        e(f"v_mov_b32 v13, s{sT0}")
    e("s_waitcnt vmcnt(0)")
    stamp(3)
    if C7:
        e("s_mov_b64 exec, 1")
        e("ds_or_b32 v12, v13 offset:8")
        e("s_mov_b64 exec, -1")
    for x in crlist(0, 0, "B"):
        e(x)

    def bsetup():
        c("w_down fragments ready -> B fragments of the GEMM2 unit are loaded under the MFMAs")
        e("v_readfirstlane_b32 s81, v15")
        e("s_lshr_b32 s4, s2, 5")
        e(f"s_add_u32 s{sT0}, s{sW}, s4") if UROT else e(f"s_mov_b32 s{sT0}, s{sW}")
        e(f"s_and_b32 s{sT0}, s{sT0}, 7")
        e(f"s_mul_i32 s{sT0}, s{sT0}, 22528")
        e(f"s_mul_i32 s4, s4, {WDT}")
        e(f"s_add_u32 s4, s4, s{sT0}")
        e(f"s_add_u32 s4, s4, {WS_WD}")
        e("s_and_b32 s81, s81, 3")
        e("s_cmp_eq_u32 s81, 3")
        e(f"s_cselect_b32 s{sWM}, -1, 0")
        e(f"s_cselect_b32 s{sWM + 1}, -1, 0")
    bsetup()
    if PTC:
        e(f"s_add_u32 s{sT0}, s{sCH}, {WS_Y2}")
        e("v_lshlrev_b32 v206, 7, v1")
        e("s_mov_b32 exec_hi, 0")
        e(f"buffer_load_dword v207, v206, {sr(S_WS, 4)}, s{sT0} offen{PTM}")
        e("s_mov_b64 exec, -1")
    if C7:
        e(f"v_subrev_u32 v{vKT}, s{sOF}, v{vKT}")
        e(f"v_subrev_u32 v{vR}, s{sOF}, v{vR}")
        for r in range(32):
            e(f"v_mov_b32 v{ACC + r}, 0")
        e(f"s_cmp_ge_u32 s{sW}, 4")
        e("s_cbranch_scc1 k1c_c2")
    if not CEB:
        e(f"s_mov_b32 s{sWM}, 0")

    def bload(i):
        return [f"s_add_u32 s{sT0}, s4, {1024 * i}", f"s_mov_b32 exec_lo, s{sWM}", f"s_mov_b32 exec_hi, s{sWM}",
                f"buffer_load_dwordx4 {vr(168 + 4 * i, 4)}, v8, {sr(S_WS, 4)}, s{sT0} offen", "s_mov_b64 exec, -1"]

    early = [i for i in range(22) if i not in (0, 1, 8, 9)] if CEB else []
    KVR = 80
    for ci in range(8):
        st = ci & 1
        if C7 and ci == 2:
            e("k1c_c2:")
        if CPRIO == 2 and C7 and PSH and ci >= 2:
            e(f"s_setprio {3 - ci // 2}")
            if min(3, 3 - (ci - PSH) // 2) != 3 - ci // 2:
                e(f"s_cmp_lt_u32 s{sW}, 4")
                e(f"s_cbranch_scc1 k1c_pr{ci}")
                e(f"s_setprio {min(3, 3 - (ci - PSH) // 2)}")
                e(f"k1c_pr{ci}:")
        elif CPRIO == 2 and ci % 2 == 0:
            e(f"s_setprio {3 - ci // 2}")
        e("s_waitcnt lgkmcnt(0)")
        rl = []
        if ci < 7:
            rl = crlist(ci + 1, st ^ 1)
            for _ in range(4):
                e(rl.pop(0))
            if ci >= (2 if C7 else 1):
                for k in range(4 if C7 and ci < 5 else 3):
                    if early:
                        rl += [bload(early.pop(0)), []]
        if ci == 7 and CPOL == 1:
            e(f"s_sub_u32 s{sT1}, s{sMBX}, 64")
            e(f"s_cmp_eq_u32 s{sW}, 7")
            e("s_cselect_b64 exec, -1, 0")
            e(f"buffer_load_ubyte v206, v1, {sr(S_WS, 4)}, s{sT1} offen sc1")
            e("s_mov_b64 exec, -1")
        if ci == 7:
            rl += [f"ds_read_b64 {vr(KVR + 2 * n, 2)}, v5 offset:{512 * (7 - n)}" for n in range(8)]
            rl += [[], [], [], ["s_waitcnt lgkmcnt(0)"]]
            vl = []
            for n in range(8):
                k0, k1 = KVR + 2 * n, KVR + 2 * n + 1
                t = 48 + 4 * n
                vl += [f"v_and_b32 v{t}, 0xffff0000, v{k1}", f"v_lshlrev_b32 v{t + 1}, 16, v{k1}",
                       f"v_and_b32 v{t + 2}, 0xffff0000, v{k0}", f"v_lshlrev_b32 v{t + 3}, 16, v{k0}"]
                vl += [f"v_mul_f32 v{t + i}, s{sD}, v{t + i}" for i in range(4)]
                vl += [f"v_cvt_pk_bf16_f32 v{t + i}, 0, v{t + i}" for i in range(4)]
            rl += [vl[i:i + 4] for i in range(0, 96, 4)]
        for m in range(8):
            for p in range(8 - m):
                cc = "0" if (ci == 0 and m == 0) else vr(ACC + 4 * (m + p), 4)
                e(f"v_mfma_f32_16x16x32_bf16 {vr(ACC + 4 * (m + p), 4)}, {vr(AR[st] + 4 * p, 4)}, "
                  f"{vr(BR[st] + 4 * m, 4)}, {cc}")
                if rl:
                    x = rl.pop(0)
                    for y in (x if isinstance(x, list) else [x]):
                        e(y)
        assert not rl
    assert not early
    if C7:
        e(f"s_cmp_lt_u32 s{sW}, 4")
        e("s_cbranch_scc1 k1c_na")
        e(f"s_lshl_b32 s5, 0x10000, s{sW}")
        e(f"s_lshl_b32 s{sT0}, s{sW}, 13")
        e(f"s_add_u32 s{sT0}, s{sT0}, {CV_T - 4 * 8192}")
        e(f"v_add_u32 v12, s{sT0}, v8")
        lds_wait(8, 5)
        for n in range(8):
            e(f"ds_read_b128 {vr(80 + 4 * n, 4)}, v12 offset:{1024 * n}")
        for n in range(8):
            e(f"s_waitcnt lgkmcnt({7 - n})")
            for i in range(4):
                e(f"v_add_f32 v{ACC + 4 * n + i}, v{ACC + 4 * n + i}, v{80 + 4 * n + i}")
        e("k1c_na:")
    stamp(9)
    c("epilogue: y2 = bf16(bf16(y) + bf16(kv*D)), store y2T")
    e(f"s_add_u32 s3, s{sCH}, {WS_Y2}")
    for n in range(8):
        a = ACC + 4 * n
        t = 48 + 4 * n
        if n == 7:
            e("s_nop 3")
        for i in range(4):
            e(f"v_cvt_pk_bf16_f32 v{a + i}, 0, v{a + i}")
        for i in range(0, 4, 2):
            epk("add", a + i, a + i, t + i)
        e(f"v_cvt_pk_bf16_f32 v{a}, v{a}, v{a + 1}")
        e(f"v_cvt_pk_bf16_f32 v{a + 1}, v{a + 2}, v{a + 3}")
        e(f"buffer_store_dwordx2 {vr(a, 2)}, v4, {sr(S_WS, 4)}, s3 offen offset:{512 * n}{STC}")
    stamp(4)
    if CPOL == 2:
        c("waves 0 and 7 read the mailbox while their stores drain")
        assert CEB and not CGATE
        if env('DF', 0):
            c("all h / stats flags already relayed -> the own flag is sent from the GEMM2 loop")
            e(f"v_mov_b32 v14, {L_ST}")
            e("ds_read_b32 v15, v14 offset:4")
            e("s_mov_b32 s75, 0")
            e("s_waitcnt lgkmcnt(0)")
            e("v_readfirstlane_b32 s81, v15")
            e("s_nop 3")
            e(f"s_and_b32 s81, s81, s{sWM}")
            e(f"s_and_b32 s81, s81, {0x3fffff | (3 << MB_S)}")
            e(f"s_cmp_eq_u32 s81, {0x3fffff | (3 << MB_S)}")
            e("s_cbranch_scc0 k1c_ndf")
            for i in (0, 1, 8, 9):
                for x in bload(i):
                    e(x)
            e("s_mov_b32 s75, -1")
            e(f"s_mov_b32 s{sSGX}, 0")
            e("s_branch k1c_df")
            e("k1c_ndf:")
        e(f"s_sub_u32 s{sT1}, s{sMBX}, 64")
        e("v_mov_b32 v6, 0")
        e(f"s_bitcmp1_b32 {env('CPA', 0x81)}, s{sW}")
        e("s_cselect_b64 exec, -1, 0")
        e(f"buffer_load_ubyte v6, v1, {sr(S_WS, 4)}, s{sT1} offen sc1")
        for i in (0, 1, 8, 9):
            for x in bload(i):
                e(x)
        e(f"v_lshlrev_b32 v12, s{sSG1}, v1")
        e("v_mov_b32 v13, 1")
        e("s_waitcnt vmcnt(5)")
        e("s_mov_b32 exec_hi, 0")
        e(f"buffer_store_byte v13, v12, {sr(S_WS, 4)}, s{sSG0} offen sc1")
        e("s_mov_b64 exec, -1")
        stamp(9 if env('G2S', 0) else None)
        e(f"s_mov_b32 s{sSGX}, 0")
        e("s_waitcnt vmcnt(5)")
        e("v_cmp_ne_u32 vcc, 0, v6")
        e(f"v_mov_b32 v14, {L_ST}")
        e("s_mov_b32 s81, vcc_lo")
        e("v_mov_b32 v15, s81")
        e("s_mov_b64 exec, 1")
        e("ds_or_b32 v14, v15 offset:4")
        e("s_mov_b64 exec, -1")
        if env('DF', 0):
            e("k1c_df:")
    if CPOL == 1:
        e(f"s_cmp_lg_u32 s{sW}, 7")
        e("s_cbranch_scc1 k1c_np")
        e("s_waitcnt vmcnt(8)")
        e("v_cmp_ne_u32 vcc, 0, v206")
        e(f"v_mov_b32 v14, {L_ST}")
        e("s_mov_b32 s81, vcc_lo")
        e("v_mov_b32 v15, s81")
        e("ds_write_b32 v14, v15 offset:4")
        e("k1c_np:")
    if C7:
        with ool("k1c_help"):
            c("wave 7: own B fragments, then chunks 0, 1 of the channels of waves 4, 5, 6")
            bsetup()
            for i in range(22):
                if i not in (0, 1, 8, 9):
                    for x in bload(i):
                        e(x)
            e(f"v_subrev_u32 v{vKT}, {128 + 3 * 12928}, v{vKT}")
            e(f"v_subrev_u32 v{vR}, {128 + 3 * 12928}, v{vR}")
            e(f"v_add_u32 v12, {CV_T}, v8")
            e("s_mov_b32 s5, 0x1000")
            e(f"s_setprio {HPRIO}")
            e("k1c_hl:")
            lds_wait(8, 5)
            for x in crlist(0, 0):
                e(x)
            for ci in range(2):
                e("s_waitcnt lgkmcnt(0)")
                rl = crlist(1, 1) if ci == 0 else []
                for _ in range(4 if rl else 0):
                    e(rl.pop(0))
                for m in range(8):
                    for p in range(8 - m):
                        cc = "0" if (ci == 0 and m == 0) else vr(ACC + 4 * (m + p), 4)
                        e(f"v_mfma_f32_16x16x32_bf16 {vr(ACC + 4 * (m + p), 4)}, {vr(AR[ci] + 4 * p, 4)}, "
                          f"{vr(BR[ci] + 4 * m, 4)}, {cc}")
                        if rl:
                            e(rl.pop(0))
            e(f"v_add_u32 v{vKT}, 12928, v{vKT}")
            e(f"v_add_u32 v{vR}, 12928, v{vR}")
            e(f"s_lshl_b32 s{sT0}, s5, 8")
            e(f"v_mov_b32 v13, s{sT0}")
            e(f"v_mov_b32 v14, {L_ST}")
            e("s_nop 7")
            e("s_nop 7")
            for n in range(8):
                e(f"ds_write_b128 v12, {vr(ACC + 4 * n, 4)} offset:{1024 * n}")
            e("s_waitcnt lgkmcnt(0)")
            e("s_mov_b64 exec, 1")
            e("ds_or_b32 v14, v13 offset:8")
            e("s_mov_b64 exec, -1")
            e("v_add_u32 v12, 8192, v12")
            e("s_lshl_b32 s5, s5, 1")
            e("s_cmp_lt_u32 s5, 0x8000")
            e("s_cbranch_scc1 k1c_hl")
            for i in (0, 1, 8, 9):
                for x in bload(i):
                    e(x)
            e(f"s_mov_b32 s{sSGX}, 0")
    if C8:
        e(f"v_mov_b32 v14, {L_ST}")
        e("v_mov_b32 v15, 1")
        e("s_mov_b64 exec, 1")
        e("ds_add_u32 v14, v15")
        e("s_mov_b64 exec, -1")
    if CPRIO:
        e("s_setprio 0")
    if CGATE:
        c("own flag, then wait until all waves of the WG have issued their stores")
        e(f"v_lshlrev_b32 v12, s{sSG1}, v1")
        e("s_waitcnt vmcnt(0)")
        e("s_mov_b32 exec_hi, 0")
        e(f"buffer_store_byte v15, v12, {sr(S_WS, 4)}, s{sSG0} offen sc1")
        e("s_mov_b64 exec, -1")
        e(f"s_mov_b32 s{sSGX}, 0")
        e("s_mov_b32 s80, 0")
        e("k1c_g:")
        e("ds_read_b32 v13, v14")
        e("s_waitcnt lgkmcnt(0)")
        e(f"v_readfirstlane_b32 s{sT0}, v13")
        e("s_add_u32 s80, s80, 1")
        e("s_nop 2")
        e(f"s_cmp_ge_i32 s{sT0}, 4")
        e("s_cbranch_scc1 k1c_gd")
        e("s_sleep 2")
        e("s_cmp_lt_u32 s80, 0x400000")
        e("s_cbranch_scc1 k1c_g")
        e("k1c_gd:")
    if CEB and CPOL != 2:
        for i in (0, 1, 8, 9):
            for x in bload(i):
                e(x)
    e(f"s_cmp_lg_u32 s{sWM + 1}, 0")
    e("s_cbranch_scc1 g2_unit")
    if C7:
        e(f"s_cmp_lg_u32 s{sAX}, 0")
        e(f"s_cselect_b32 s{sWM}, {3 << MB_W}, s{sWM}")
        e("s_cbranch_scc1 g2_unit")
    e("s_mov_b32 s5, 3")
    pollbytes(sMBX, 5)
    e("s_branch g2_unit")
    flush_ool()


G2S = env('G2S', 0)
HKN = 0
POLW = env('POLW', 7)


def gemm2():
    S_X, S_OUT = 44, 48
    sMT2, sNT2, sW, sT0, sT1 = 60, 61, 62, 63, 64
    sU, sAB, sBB, sHM, sMB, sFIRST, sY, sXO, sMB3, sYO = 65, 66, 67, 68, 69, 70, 71, 72, 73, 74
    ACC2, BF2, AF2 = 16, 168, 80
    XR = 4
    YR, SR_ = 80, 84

    def hook(n):
        e(f"v_lshlrev_b32 v12, s{sSG1}, v1")
        e("v_mov_b32 v13, 1")
        e(f"s_waitcnt vmcnt({n})")
        e(f"s_mov_b32 exec_lo, s{sSGX}")
        e("s_mov_b32 exec_hi, 0")
        e(f"buffer_store_byte v13, v12, {sr(S_WS, 4)}, s{sSG0} offen sc1")
        e("s_mov_b64 exec, -1")
        e(f"s_mov_b32 s{sSGX}, 0")

    def xloads(part=0):
        make_srd(S_X, P_Q, 2048 * 1024)
        make_srd(S_OUT, P_OUT, 2048 * 1024)
        c("x / out offset: row 64mt2 + 8w, col 64nt2 + l")
        e(f"s_lshl_b32 s{sXO}, s{sMT2}, 3")
        e(f"s_add_u32 s{sXO}, s{sXO}, s{sW}")
        e(f"s_lshl_b32 s{sYO}, s{sXO}, 4")
        e(f"s_lshl_b32 s{sT0}, s{sNT2}, 18")
        e(f"s_add_u32 s{sYO}, s{sYO}, s{sT0}")
        e(f"s_add_u32 s{sYO}, s{sYO}, {WS_Y2}")
        e(f"s_lshl_b32 s{sXO}, s{sXO}, 13")
        e(f"s_lshl_b32 s{sT0}, s{sNT2}, 7")
        e(f"s_add_u32 s{sXO}, s{sXO}, s{sT0}")
        e(f"s_add_u32 s{sT0}, s{sXO}, 4096")
        e("v_lshlrev_b32 v3, 1, v1")
        for r in range(8):
            e(f"v_mov_b32 v{XR + r}, 0")
        if part == 0:
            return

    def xloads2():
        e(f"s_add_u32 s{sT0}, s{sXO}, 4096")
        for r in range(8):
            e(f"buffer_load_short_d16_hi v{XR + r}, v3, {sr(S_X, 4)}, s{sT0 if r >= 4 else sXO} offen offset:{1024 * (r & 3)}")

    def stloads():
        e(f"s_lshr_b32 s{sT0}, s{sXO}, 13")
        e(f"s_lshl_b32 s{sT0}, s{sT0}, 6")
        e(f"s_add_u32 s{sT0}, s{sT0}, {WS_ST}")
        for j in range(4):
            e(f"buffer_load_dwordx4 {vr(SR_ + 4 * j, 4)}, off, {sr(S_WS, 4)}, s{sT0} offset:{16 * j}")

    def yload():
        e("v_lshlrev_b32 v12, 12, v1")
        e(f"buffer_load_dwordx4 {vr(YR, 4)}, v12, {sr(S_WS, 4)}, s{sYO} offen")

    e("g2_unit:")
    e(f"s_lshr_b32 s{sNT2}, s2, 5")
    e(f"s_mul_i32 s{sBB}, s{sNT2}, {WDT}")
    if UROT:
        e(f"s_add_u32 s{sU}, s{sW}, s{sNT2}")
        e(f"s_and_b32 s{sU}, s{sU}, 7")
    else:
        e(f"s_mov_b32 s{sU}, s{sW}")
    e(f"s_mul_i32 s{sT0}, s{sU}, {11 * 2048}")
    e(f"s_add_u32 s{sBB}, s{sBB}, s{sT0}")
    e(f"s_add_u32 s{sBB}, s{sBB}, {WS_WD}")
    e("v_lshlrev_b32 v2, 4, v1")
    e(f"s_lshl_b32 s{sMB}, s2, 8")
    e(f"s_add_u32 s{sMB}, s{sMB}, {WS_MB}")
    e(f"s_add_u32 s{sMB3}, s{sMB}, {MB_C}")
    e(f"s_and_b32 s{sMT2}, s2, 7")
    e(f"s_lshl_b32 s{sMT2}, s{sMT2}, 2")
    e(f"s_bfe_u32 s{sT0}, s2, 0x20003")
    e(f"s_add_u32 s{sMT2}, s{sMT2}, s{sT0}")
    e(f"s_mov_b32 s{sFIRST}, 1")
    e(f"s_mov_b32 s{sY}, 0")
    e(f"s_cmp_eq_u32 s{sNU}, 0")
    e("s_cbranch_scc1 g2_nounit")
    e(f"s_cmp_eq_u32 s{sWM}, -1")
    e("s_cbranch_scc1 g2_bd")
    if HOOKF:
        hook(0)
        stamp(9 if G2S else None)
    e(f"s_cmp_eq_u32 s{sWM}, 0")
    e("s_cbranch_scc1 g2_loop")
    pollbytes(sMB, sWM)
    e("g2_loop:")
    for i in range(22):
        e(f"buffer_load_dwordx4 {vr(BF2 + 4 * i, 4)}, v2, {sr(S_WS, 4)}, s{sBB} offen offset:{1024 * (i & 3)}")
        if i & 3 == 3:
            e(f"s_add_u32 s{sBB}, s{sBB}, 4096")
    e(f"s_cmp_eq_u32 s{sFIRST}, 0")
    e("s_cbranch_scc1 g2_l2")
    if not HOOKF:
        hook(22)
    e("g2_bd_ret:")
    stamp(9 if G2S and not HOOKF else None)
    xloads()
    for r in range(64):
        e(f"v_mov_b32 v{ACC2 + r}, 0")
    e("g2_l2:")
    c("h flags of ks 11u .. 11u+10 (+ stats flags)")
    e(f"s_mul_i32 s{sT0}, s{sU}, 11")
    e(f"s_add_u32 s{sT1}, s{sT0}, 10")
    e(f"s_lshr_b32 s{sT1}, s{sT1}, 2")
    e(f"s_lshl_b32 s{sHM}, 2, s{sT1}")
    e(f"s_lshr_b32 s{sT1}, s{sT0}, 2")
    e(f"s_lshl_b32 s{sT1}, 1, s{sT1}")
    e(f"s_sub_u32 s{sHM}, s{sHM}, s{sT1}")
    e(f"s_or_b32 s{sHM}, s{sHM}, {3 << MB_S}")
    e(f"s_mul_i32 s{sAB}, s{sMT2}, {2 * HRT}")
    e(f"s_lshl_b32 s{sT0}, s{sT0}, 10")
    e(f"s_add_u32 s{sAB}, s{sAB}, s{sT0}")
    e(f"s_add_u32 s{sT1}, s{sAB}, {HRT}")
    e(f"s_cmp_eq_u32 s{sW}, {POLW}")
    e("s_cbranch_scc1 g2_pol")
    lds_wait(4, sHM)
    with ool("g2_pol"):
        c("poller: relay the flags until all h / stats flags are set (two reads in flight)")
        e(f"v_mov_b32 v15, {L_ST}")
        e("ds_read_b32 v12, v15 offset:4")
        e("s_mov_b32 s80, 0")
        e("s_waitcnt lgkmcnt(0)")
        e("v_readfirstlane_b32 s81, v12")
        e("s_nop 3")
        e(f"s_and_b32 s81, s81, {0x3fffff | (3 << MB_S)}")
        e(f"s_cmp_eq_u32 s81, {0x3fffff | (3 << MB_S)}")
        e("s_cbranch_scc1 g2_pol_ret")
        if PWAIT:
            c("start when the own WG's first phase is complete")
            if env('CNW', 0):
                e(f"s_cmp_lt_u32 s2, {K1_NCONV}")
                e("s_cbranch_scc1 g2_pol1d")
            e("g2_pol1:")
            e("ds_read_b32 v12, v15")
            e("s_waitcnt lgkmcnt(0)")
            e("v_readfirstlane_b32 s81, v12")
            e("s_add_u32 s80, s80, 1")
            e("s_nop 2")
            e("s_cmp_ge_i32 s81, 4")
            e("s_cbranch_scc1 g2_pol1d")
            e("s_sleep 2")
            e("s_cmp_lt_u32 s80, 0x400000")
            e("s_cbranch_scc1 g2_pol1")
            e("g2_pol1d:")
            e("s_mov_b32 s80, 0")
            if PWAIT > 1:
                e(f"s_sleep {PWAIT}")
        e("g2_pol2:")
        e(f"buffer_load_ubyte v14, v1, {sr(S_WS, 4)}, s{sMB} offen sc1")
        e("s_waitcnt vmcnt(0)")
        e("v_cmp_ne_u32 vcc, 0, v14")
        e("s_mov_b32 s81, vcc_lo")
        e("v_mov_b32 v12, s81")
        e("s_mov_b64 exec, 1")
        e("ds_or_b32 v15, v12 offset:4")
        e("s_mov_b64 exec, -1")
        e(f"s_and_b32 s81, vcc_lo, {0x3fffff | (3 << MB_S)}")
        e(f"s_cmp_eq_u32 s81, {0x3fffff | (3 << MB_S)}")
        e("s_cbranch_scc1 g2_pol_ret")
        if PGAP:
            e(f"s_sleep {PGAP}")
        e("s_add_u32 s80, s80, 1")
        e("s_cmp_lt_u32 s80, 0x40000")
        e("s_cbranch_scc1 g2_pol2")
        e(f"v_mov_b32 v12, 0x7fffffff")
        e("ds_or_b32 v15, v12 offset:4")
    stamp(5)
    V = VMQ()

    def aload(i):
        j, a = i >> 1, i & 1
        V.emit(f"buffer_load_dwordx4 {vr(AF2 + 4 * i, 4)}, v2, {sr(S_WS, 4)}, s{sT1 if a else sAB} offen offset:{1024 * (j & 3)}", f"a{i}")
        if j & 3 == 3 and a:
            e(f"s_add_u32 s{sAB}, s{sAB}, 4096")
            e(f"s_add_u32 s{sT1}, s{sT1}, 4096")
        if i == YPOS:
            e(f"s_cmp_eq_u32 s{sW}, {POLW}")
            e("s_cselect_b64 exec, -1, 0")
            V.emit(f"buffer_load_ubyte v12, v1, {sr(S_WS, 4)}, s{sMB3} offen sc1", "y")
            e("s_mov_b64 exec, -1")
        if i == XPOS:
            xloads2()
            V.q += ["x"] * 8

    for i in range(AW):
        aload(i)
    for j in range(11):
        if j == 9:
            e(f"v_mov_b32 v13, {L_ST}")
            e("ds_read_b64 v[14:15], v13")
            e(f"s_cmp_eq_u32 s{sU}, 7")
            e("s_cbranch_scc1 g2_mfd")
        for a in range(2):
            i = 2 * j + a
            V.wait(f"a{i}")
            if i == 0 and env('DF', 0):
                e(f"v_lshlrev_b32 v12, s{sSG1}, v1")
                e("v_mov_b32 v13, 1")
                e("s_mov_b32 exec_lo, s75")
                e("s_mov_b32 exec_hi, 0")
                V.emit(f"buffer_store_byte v13, v12, {sr(S_WS, 4)}, s{sSG0} offen sc1", "df")
                e("s_mov_b64 exec, -1")
            if i + AW < 22:
                aload(i + AW)
            for ct in range(2):
                acc = ACC2 + 32 * a + 16 * ct
                e(f"v_mfma_f32_32x32x16_bf16 {vr(acc, 16)}, {vr(AF2 + 8 * j + 4 * a, 4)}, {vr(BF2 + 8 * j + 4 * ct, 4)}, {vr(acc, 16)}")
    e("g2_mfd:")
    e(f"s_sub_u32 s{sNU}, s{sNU}, 1")
    e(f"s_cmp_eq_u32 s{sNU}, 0")
    e("s_cbranch_scc1 g2_ud")
    e(f"s_add_u32 s{sU}, s{sU}, 4")
    e(f"s_add_u32 s{sBB}, s{sBB}, {44 * 2048 - 5 * 4096}")
    e(f"s_mov_b32 s{sFIRST}, 0")
    e("s_nop 7")
    e("s_branch g2_loop")
    e("g2_ud:")
    stamp(6)
    e(f"s_cmp_lg_u32 s{sW}, {POLW}")
    e("s_cbranch_scc1 g2_np")
    e("s_waitcnt vmcnt(0) lgkmcnt(0)")
    e("v_cmp_ne_u32 vcc, 0, v12")
    e("s_cmp_eq_u64 vcc, -1")
    e("s_cbranch_scc0 g2_np")
    e("v_mov_b32 v15, -1")
    e(f"v_mov_b32 v13, {L_ST}")
    e("ds_write_b32 v13, v15 offset:4")
    e("g2_np:")
    c("partial address: slot w + n*256 + ((8a + 2q + g) ^ (n & 15))*16")
    e("v_and_b32 v12, 15, v1")
    e("v_lshrrev_b32 v13, 5, v1")
    e("v_xor_b32 v12, v12, v13")
    e("v_lshlrev_b32 v12, 4, v12")
    e("v_and_b32 v13, 31, v1")
    e("v_lshl_add_u32 v12, v13, 8, v12")
    e(f"s_lshl_b32 s{sT0}, s{sW}, 14")
    e(f"v_add_u32 v12, s{sT0}, v12")
    for k in range(1, 8):
        e(f"v_xor_b32 v{BF2 + k}, {32 * k}, v12")
    e("s_waitcnt vmcnt(0) lgkmcnt(0)")
    stloads()
    e(f"v_readfirstlane_b32 s{sT0}, v14")
    e(f"v_readfirstlane_b32 s{sT1}, v15")
    e("s_nop 3")
    e(f"s_cmp_ge_i32 s{sT0}, 4")
    e("s_cbranch_scc0 g2_cnt")
    with ool("g2_cnt"):
        e("s_mov_b32 s80, 0")
        e(f"v_mov_b32 v14, {L_ST}")
        e("g2_cnt2:")
        e("s_sleep 2")
        e("ds_read_b32 v15, v14")
        e("s_waitcnt lgkmcnt(0)")
        e(f"v_readfirstlane_b32 s{sT0}, v15")
        e("s_add_u32 s80, s80, 1")
        e("s_nop 2")
        e(f"s_cmp_ge_i32 s{sT0}, 4")
        e("s_cbranch_scc1 g2_cnt_ret")
        e("s_cmp_lt_u32 s80, 0x400000")
        e("s_cbranch_scc1 g2_cnt2")
    e(f"s_bitcmp1_b32 s{sT1}, 31")
    e("s_cbranch_scc0 g2_noy")
    e(f"s_mov_b32 s{sY}, 1")
    e("v_lshlrev_b32 v14, 12, v1")
    e(f"buffer_load_dwordx4 {vr(YR, 4)}, v14, {sr(S_WS, 4)}, s{sYO} offen")
    e("g2_noy:")
    for a in range(2):
        for q in range(4):
            k = 4 * a + q
            for ct in range(2):
                e(f"ds_write_b128 v{BF2 + k if k else 12}, {vr(ACC2 + 32 * a + 16 * ct + 4 * q, 4)} offset:{8192 * ct}")
    e("g2_bar:")
    c("final: lane = column, rows 8w .. 8w+7 (chunks 2w, 2w+1)")
    e("v_and_b32 v12, 15, v1")
    e(f"s_lshl_b32 s{sT0}, s{sW}, 1")
    e(f"v_xor_b32 v12, s{sT0}, v12")
    e("v_lshlrev_b32 v12, 4, v12")
    e("v_lshl_add_u32 v12, v1, 8, v12")
    e("v_xor_b32 v13, 16, v12")
    e("v_add_u32 v14, 0x10000, v12")
    e("v_add_u32 v15, 0x10000, v13")
    e("s_waitcnt lgkmcnt(0)")
    e("s_barrier")
    stamp(None if env('ZST', 0) else 7)
    P = ACC2
    e(f"v_mov_b32 v2, {L_ST}")
    e("ds_read_b32 v2, v2 offset:4")
    for j in range(4):
        for h in range(2):
            e(f"ds_read_b128 {vr(P + 8 * j + 4 * h, 4)}, v{12 + h} offset:{16384 * j}")
    e("s_waitcnt lgkmcnt(8)")
    e(f"v_readfirstlane_b32 s{sT1}, v2")
    e("v_lshlrev_b32 v2, 12, v1")
    e("s_nop 2")
    e(f"s_lshr_b32 s{sT1}, s{sT1}, 31")
    e(f"s_cmp_gt_u32 s{sT1}, s{sY}")
    e("s_cbranch_scc0 g2_y2n")
    e(f"s_mov_b32 s{sY}, 1")
    e(f"buffer_load_dwordx4 {vr(YR, 4)}, v2, {sr(S_WS, 4)}, s{sYO} offen")
    e("g2_y2n:")
    e(f"s_cmp_lg_u32 s{sNS}, 0")
    e("s_cbranch_scc1 g2_s4")
    for j in range(4):
        for h in range(2):
            e(f"ds_read_b128 {vr(P + 32 + 8 * j + 4 * h, 4)}, v{14 + h} offset:{16384 * j}")
    for j in range(4):
        e(f"s_waitcnt lgkmcnt({6 - 2 * j})")
        for d in range(0, 8, 2):
            e(f"v_pk_add_f32 {vr(P + 8 * j + d, 2)}, {vr(P + 8 * j + d, 2)}, {vr(P + 32 + 8 * j + d, 2)}")
    e("g2_s4:")
    e("s_waitcnt lgkmcnt(0)")
    for a, b in ((0, 1), (2, 3), (0, 2)):
        for d in range(0, 8, 2):
            e(f"v_pk_add_f32 {vr(P + 8 * a + d, 2)}, {vr(P + 8 * a + d, 2)}, {vr(P + 8 * b + d, 2)}")
    for r in range(8):
        e(f"v_cvt_pk_bf16_f32 v{P + r}, 0, v{P + r}")
    e(f"s_cmp_lg_u32 s{sY}, 0")
    e("s_cbranch_scc1 g2_ydone")
    e(f"s_cmp_eq_u32 s{sW}, {POLW}")
    e("s_cbranch_scc1 g2_yp0")
    e(f"s_mov_b32 s{sHM}, 0x80000000")
    lds_wait(4, sHM)
    e("s_branch g2_ypd2")
    e("g2_yp0:")
    e("s_mov_b32 s80, 0")
    e("g2_yp:")
    e(f"buffer_load_ubyte v14, v1, {sr(S_WS, 4)}, s{sMB3} offen sc1")
    e("s_waitcnt vmcnt(0)")
    e("v_cmp_ne_u32 vcc, 0, v14")
    e("s_add_u32 s80, s80, 1")
    e("s_cmp_eq_u64 vcc, -1")
    e("s_cbranch_scc1 g2_ypd")
    e("s_cmp_lt_u32 s80, 0x40000")
    e("s_cbranch_scc1 g2_yp")
    e("g2_ypd:")
    e(f"v_mov_b32 v15, {L_ST}")
    e("v_mov_b32 v14, -1")
    e("ds_write_b32 v15, v14 offset:4")
    e("g2_ypd2:")
    yload()
    e("g2_ydone:")
    stamp(None if env('ZST', 0) else 8)
    XN = P + 8
    e("s_waitcnt vmcnt(1)")
    for r in range(8):
        e(f"v_fma_f32 v{XN + r}, v{XR + r}, v{SR_ + 2 * r}, v{SR_ + 2 * r + 1}")
    for r in range(8):
        e(f"v_cvt_pk_bf16_f32 v{XN + r}, 0, v{XN + r}")
    e(f"s_add_u32 s{sT0}, s{sXO}, 4096")
    e("s_waitcnt vmcnt(0)")
    YF = P + 16
    for d in range(4):
        e(f"v_lshlrev_b32 v{YF + 2 * d}, 16, v{YR + d}")
        e(f"v_and_b32 v{YF + 2 * d + 1}, 0xffff0000, v{YR + d}")
    for d in range(0, 8, 2):
        e(f"v_pk_mul_f32 {vr(YF + d, 2)}, {vr(YF + d, 2)}, {vr(XN + d, 2)}")
    for r in range(8):
        e(f"v_cvt_pk_bf16_f32 v{YF + r}, 0, v{YF + r}")
    for d in range(0, 8, 2):
        e(f"v_pk_add_f32 {vr(YF + d, 2)}, {vr(YF + d, 2)}, {vr(XR + d, 2)}")
    for r in range(8):
        e(f"v_cvt_pk_bf16_f32 v{YF + r}, 0, v{YF + r}")
    for d in range(0, 8, 2):
        e(f"v_pk_add_f32 {vr(YF + d, 2)}, {vr(YF + d, 2)}, {vr(P + d, 2)}")
        e(f"v_cvt_pk_bf16_f32 v{YF + d}, v{YF + d}, v{YF + d + 1}")
        s = sT0 if d >= 4 else sXO
        e(f"buffer_store_short v{YF + d}, v3, {sr(S_OUT, 4)}, s{s} offen offset:{1024 * (d & 3)}")
        e(f"buffer_store_short_d16_hi v{YF + d}, v3, {sr(S_OUT, 4)}, s{s} offen offset:{1024 * ((d + 1) & 3)}")
    stamp_flush(S_WS, WS_PROF)
    e("k1_done:")
    e("s_endpgm")
    flush_ool()
    e("g2_bd:")
    e(f"s_cmp_eq_u32 s{sSGX}, 0")
    e("s_cbranch_scc1 g2_bd_ret")
    hook(HKN)
    stamp(9 if G2S else None)
    e("s_branch g2_bd_ret")
    e("g2_nounit:")
    hook(0)
    xloads()
    xloads2()
    e(f"s_mov_b32 s{sHM}, {3 << MB_S}")
    pollbytes(sMB, sHM)
    stloads()
    e("s_branch g2_bar")


def kernel1():
    e(".globl k1_kernel")
    e(".p2align 8")
    e(".type k1_kernel,@function")
    e("k1_kernel:")
    e("s_cmp_ge_u32 s2, 256")
    e("s_cbranch_scc1 k1_done")
    load_ptrs()
    if env('DF', 0):
        assert YPOS >= AW and not C7
        e("s_mov_b32 s75, 0")
    if RID:
        e(f"s_add_u32 s2, s2, {RID}")
        e("s_and_b32 s2, s2, 255")
    e(f"s_cmp_lt_u32 s2, {K1_NCONV}")
    e("s_cbranch_scc1 k1_conv")
    e(f"s_cmp_lt_u32 s2, {K1_NCONV + K1_NGEMM}")
    e("s_cbranch_scc1 k1_gemm")
    k1_aux()
    k1_gemm()
    k1_conv()
    gemm2()


def descriptor(name, nv):
    L.append(".p2align 6")
    L.append(f".amdhsa_kernel {name}")
    L.append(f"  .amdhsa_next_free_vgpr {nv}")
    L.append("  .amdhsa_next_free_sgpr 102")
    L.append(f"  .amdhsa_accum_offset {nv}")
    L.append("  .amdhsa_group_segment_fixed_size 0")
    L.append("  .amdhsa_kernarg_size 104")
    L.append("  .amdhsa_user_sgpr_count 2")
    L.append("  .amdhsa_user_sgpr_kernarg_segment_ptr 1")
    L.append("  .amdhsa_system_sgpr_workgroup_id_x 1")
    L.append(".end_amdhsa_kernel")


def main():
    hdr = open(f"cdna_kernels/{NAME}.s.ref").read().split("\n")
    for line in hdr:
        if line.startswith("; Override") or line.startswith("; grid=") or "@launch" in line:
            continue
        if not line.startswith(";"):
            break
        L.append(line)
    L.append(f"; @launch kernel=k1_kernel grid=(256,1,1) block=(512,1,1) lds=163840")
    L.append('.amdgcn_target "amdgcn-amd-amdhsa--gfx950"')
    L.append(".text")
    kernel1()
    L.append('.section .rodata,"a"')
    descriptor("k1_kernel", 256)
    out = sys.argv[1] if len(sys.argv) > 1 else f"cdna_kernels/{NAME}.s"
    open(out, "w").write("\n".join(L) + "\n")


if __name__ == "__main__":
    main()
```
